```python
import torch

def _softmax(x, axis=-1):
    return torch.softmax(x, dim=axis)
def _gelu(x):
    return torch.nn.functional.gelu(x, approximate="tanh")
def _silu(x):
    return torch.nn.functional.silu(x)
def _sigmoid(x):
    return torch.sigmoid(x)
def _layernorm(x, axis=-1, eps=1e-5):
    m = x.mean(dim=axis, keepdim=True)
    v = x.var(dim=axis, keepdim=True, unbiased=False)
    return (x - m) / torch.sqrt(v + eps)
def _scatter_add(tgt, idx, src, axis=0):
    return tgt.clone().index_add_(axis, idx, src)
def _segment_sum(src, seg, n):
    out = torch.zeros((n,) + src.shape[1:], dtype=src.dtype)
    return out.index_add_(0, seg, src)
def _pad(x, pw):
    flat = tuple(v for pair in reversed(pw) for v in pair)
    return torch.nn.functional.pad(x, flat)

kernel_name = 'gated_mix__mha_block__ssm_conv_h3__prompt'

def setup_inputs():

    _w = (lambda a: (lambda t: t.to(torch.bfloat16) if t.is_floating_point() else t)(torch.as_tensor(a)))
    def _A_setup():
        B, S, D, H = 1, 2048, 640, 32
        return {
            "x": _w((lambda *s: torch.randn(*s, dtype=torch.bfloat16) * 0.05)(B, S, D)),
            "wqkv": _w((lambda *s: torch.randn(*s, dtype=torch.bfloat16) * 0.8)(D, 3 * D)),
            "wo": _w((lambda *s: torch.randn(*s, dtype=torch.bfloat16) * 0.05)(D, D)),
        }
    _A_in = _A_setup()

    def _B_setup():
        B, S, D = 1, 2048, 640
        ks = 4
        return {
            "q": _w((lambda *s: torch.randn(*s, dtype=torch.bfloat16) * 0.05)(B, S, D)),
            "k": _w((lambda *s: torch.randn(*s, dtype=torch.bfloat16) * 0.8)(B, S, D)),
            "v": _w((lambda *s: torch.randn(*s, dtype=torch.bfloat16) * 0.4)(B, S, D)),
            "shift_k": _w((lambda *s: torch.randn(*s, dtype=torch.bfloat16) * 0.8)(D, ks) * 0.5),
            "ssm_k": _w((lambda *s: torch.randn(*s, dtype=torch.bfloat16) * 0.8)(D, S) * (1.0 / S ** 0.5)),
            "ssm_D": _w((lambda *s: torch.randn(*s, dtype=torch.bfloat16) * 0.4)(D)),
        }
    _B_in = _B_setup()

    return {
        "A_x": _A_in["x"],
        "A_wqkv": _A_in["wqkv"],
        "A_wo": _A_in["wo"],
        "B_q": _B_in["q"],
        "B_k": _B_in["k"],
        "B_v": _B_in["v"],
        "B_shift_k": _B_in["shift_k"],
        "B_ssm_k": _B_in["ssm_k"],
        "B_ssm_D": _B_in["ssm_D"],
        "gate_w": _w((lambda *s: torch.randn(*s, dtype=torch.bfloat16) * 0.05)(640) * 16.0),
    }

def reference(A_x, A_wqkv, A_wo, B_q, B_k, B_v, B_shift_k, B_ssm_k, B_ssm_D, gate_w):
    def _A_ref(x, wqkv, wo):
        B, S, D = x.shape
        H = 32
        Dh = D // H
        qkv = (lambda x, *d: x.permute(*d))((x @ wqkv).reshape(B, S, 3, H, Dh), 2, 0, 3, 1, 4)
        q, k, v = qkv[0], qkv[1], qkv[2]
        scores = torch.einsum("bhqd,bhkd->bhqk", q, k) * (Dh ** -0.5)
        p = _softmax(scores, axis=-1)
        o = torch.einsum("bhqk,bhkd->bhqd", p, v)
        return (lambda x, *d: x.permute(*d))(o, 0, 2, 1, 3).reshape(B, S, D) @ wo

    def _B_ref(q, k, v, shift_k, ssm_k, ssm_D):
        B, S, D = q.shape
        ks = shift_k.shape[-1]
        k_pad = _pad(k, ((0, 0), (ks - 1, 0), (0, 0)))
        k_shift = torch.zeros_like(k)
        for t in range(ks):
            k_shift = k_shift + k_pad[:, t:t + S, :] * shift_k[:, ks - 1 - t][None, None, :]
        kv = k_shift * v
        L = 2 * S
        kv_pad = _pad(kv, ((0, 0), (0, S), (0, 0)))
        kf_pad = _pad(ssm_k, ((0, 0), (0, S)))
        kv_f = (lambda x, axes=(-2,-1): torch.fft.rfft2(x.float(), dim=axes))(kv_pad[:, None, :, :], axes=(1, 2))
        kf_f = (lambda x, axes=(-2,-1): torch.fft.rfft2(x.float(), dim=axes))(kf_pad[:, None, :], axes=(1, 2))
        kf_f = (lambda x, *d: x.permute(*d))(kf_f, 1, 2, 0)
        y_f = kv_f * kf_f[None, :, :, :]
        y = (lambda x, s, axes=(-2,-1): torch.fft.irfft2(x, s=s, dim=axes).to(torch.bfloat16))(y_f, (1, L), axes=(1, 2))[:, 0, :S, :]
        y = y + kv * ssm_D[None, None, :]
        return q * y

    x = A_x
    g = _sigmoid((x * gate_w).sum(-1, keepdims=True))
    a = _A_ref(x, A_wqkv, A_wo)
    b = _B_ref(x, B_k, B_v, B_shift_k, B_ssm_k, B_ssm_D)
    return g * a + (1 - g) * b
```

```python
import re

class Tok:
    __slots__ = ("kind", "idx")
    def __init__(self, kind, idx): self.kind, self.idx = kind, idx

class Asm:
    def __init__(self):
        self.lines = []
        self.reset_counters()
        self.uid = 0
    def reset_counters(self):
        self.n = {"vm": 0, "ds": 0}
        self.done = {"vm": 0, "ds": 0}
    def snapshot(self): return (dict(self.n), dict(self.done))
    def restore(self, s): self.n, self.done = dict(s[0]), dict(s[1])
    def __call__(self, text):
        for l in text.strip("\n").split("\n"):
            l = l.strip()
            if l: self.lines.append(l)
    def label(self, name): self.lines.append(name + ":")
    def newlabel(self, p="L"):
        self.uid += 1
        return f"{p}_{self.uid}"
    def vm(self, text):
        self(text); self.n["vm"] += 1
        assert self.n["vm"] - self.done["vm"] <= 63, "vmcnt overflow"
        return Tok("vm", self.n["vm"])
    def ds(self, text):
        self(text); self.n["ds"] += 1
        return Tok("ds", self.n["ds"])
    def wait(self, *toks):
        need = {}
        for t in toks:
            if t is None: continue
            if isinstance(t, (list, tuple)):
                for x in t:
                    if x is not None and x.idx > self.done[x.kind]: need[x.kind] = max(need.get(x.kind, 0), x.idx)
            elif t.idx > self.done[t.kind]: need[t.kind] = max(need.get(t.kind, 0), t.idx)
        parts = []
        if "vm" in need:
            c = self.n["vm"] - need["vm"]; assert c <= 63
            parts.append(f"vmcnt({c})"); self.done["vm"] = need["vm"]
        if "ds" in need:
            c = self.n["ds"] - need["ds"]
            if c > 15: c = 15;
            parts.append(f"lgkmcnt({c})"); self.done["ds"] = max(need["ds"], self.n["ds"] - c)
        if parts: self("s_waitcnt " + " ".join(parts))
    def wait_all(self, vm=True, ds=True, force=False):
        parts = []
        if vm and (force or self.n["vm"] > self.done["vm"]): parts.append("vmcnt(0)"); self.done["vm"] = self.n["vm"]
        if ds and (force or self.n["ds"] > self.done["ds"]): parts.append("lgkmcnt(0)"); self.done["ds"] = self.n["ds"]
        if parts: self("s_waitcnt " + " ".join(parts))
    def nop(self, n):
        while n > 0:
            k = min(n, 16); self(f"s_nop {k-1}"); n -= k
    def text(self):
        return "\n".join((l if l.endswith(":") or l.startswith(".") or l.startswith(";") else "    " + l) for l in self.lines) + "\n"

def vr(a, n=1): return f"v{a}" if n == 1 else f"v[{a}:{a+n-1}]"
def sr(a, n=1): return f"s{a}" if n == 1 else f"s[{a}:{a+n-1}]"

_REG = re.compile(r"^(-|abs\(|\|)?([vsa])(?:(\d+)|\[(\d+):(\d+)\])\)?\|?$")
def regs_of(op):
    op = op.strip()
    if op in ("vcc", "exec"): return {(op, 0), (op, 1)}
    if op in ("vcc_lo", "exec_lo"): return {(op[:-3], 0)}
    if op in ("vcc_hi", "exec_hi"): return {(op[:-3], 1)}
    if op == "m0": return {("m0", 0)}
    m = _REG.match(op)
    if not m: return set()
    k = m.group(2)
    if m.group(3) is not None: return {(k, int(m.group(3)))}
    return {(k, i) for i in range(int(m.group(4)), int(m.group(5)) + 1)}

TRANS = ("v_exp_", "v_log_", "v_rcp_", "v_rsq_", "v_sqrt_", "v_sin_", "v_cos_")
def passes(mn):
    if "32x32x4_2b" in mn: return 16
    if "32x32" in mn: return 8
    if "16x16" in mn: return 4
    raise ValueError(mn)

class Ins:
    def __init__(self, text):
        self.text = text
        t = text.split(";")[0].strip()
        p = t.split(None, 1)
        self.mn = p[0]
        ops = [o.strip() for o in re.split(r",\s*(?![^\[]*\])", p[1])] if len(p) > 1 else []
        if ops:
            last = ops[-1].split()
            self.mods = last[1:]; ops[-1] = last[0] if last else ""
        else: self.mods = []
        self.ops = ops
        mn = self.mn
        self.mfma = mn.startswith("v_mfma") or mn.startswith("v_smfmac")
        self.valu = mn.startswith("v_") and not self.mfma
        self.trans = mn.startswith(TRANS)
        self.vmem = mn.startswith("buffer_") or mn.startswith("global_")
        self.dsop = mn.startswith("ds_")
        self.salu = mn.startswith("s_")
        R = [regs_of(o) for o in ops]
        w, r = set(), set()
        self.A = self.B = self.C = self.D = set()
        if self.mfma:
            self.D = R[0]; self.A = R[1]; self.B = R[2]
            if mn.startswith("v_smfmac"): self.C = R[0]; self.A = R[1] | R[3]
            else: self.C = R[3]
            w = self.D; r = self.A | self.B | self.C
        elif self.valu:
            if mn.startswith("v_cmp"):
                w = R[0]; r = set().union(*R[1:])
                if mn.startswith("v_cmpx"): w = w | regs_of("exec")
            elif mn.startswith("v_permlane") and "swap" in mn:
                w = R[0] | R[1]; r = R[0] | R[1]
            elif "_co_" in mn:
                w = R[0] | R[1]; r = set().union(*R[2:])
            elif mn in ("v_nop",): pass
            else:
                w = R[0]; r = set().union(*R[1:]) if len(R) > 1 else set()
                if mn.startswith(("v_fmac", "v_dot2c", "v_writelane", "v_pk_fmac")): r |= R[0]
                if mn.startswith("v_cndmask") and len(ops) == 3: r |= regs_of("vcc")
        elif self.vmem:
            if "lds" in self.mods or "_lds_" in mn:
                r = set().union(*R) | {("m0", 0)}
            elif "load" in mn: w = R[0]; r = set().union(*R[1:])
            elif mn in ("buffer_wbl2", "buffer_inv"): pass
            else:
                r = set().union(*R)
                if "atomic" in mn and "sc0" in self.mods: w = R[0]
        elif self.dsop:
            if "read" in mn or "permute" in mn or "swizzle" in mn: w = R[0]; r = set().union(*R[1:])
            else: r = set().union(*R)
        elif self.salu:
            if mn.startswith(("s_cmp", "s_cbranch", "s_branch", "s_waitcnt", "s_nop", "s_barrier", "s_endpgm", "s_sleep", "s_setprio", "s_bitcmp")):
                r = set().union(*R) if R else set()
            else:
                w = R[0] if R else set(); r = set().union(*R[1:]) if len(R) > 1 else set()
                if "saveexec" in mn: w = w | regs_of("exec")
        self.w, self.r = w, r
        self.ws = int(ops[0]) + 1 if mn == "s_nop" else 1
        self.widestore = (self.vmem and "store" in mn and ("x4" in mn or "x3" in mn))
        self.stdata = R[0] if self.widestore else set()

def need_states(p, c):
    n = 0
    sg = lambda s: {x for x in s if x[0] in ("s", "vcc")}
    vg = lambda s: {x for x in s if x[0] in ("v", "a")}
    if p.valu:
        pw = vg(p.w)
        if c.mfma and pw & c.r: n = max(n, 2)
        if p.trans and c.valu and not c.trans and pw & c.r: n = max(n, 1)
        if p.trans and c.valu and c.trans and pw & c.r: n = max(n, 1)
        if c.mn.startswith("v_permlane") and pw & c.r: n = max(n, 2)
        if c.mn.startswith(("v_readlane", "v_readfirstlane")) and pw & c.r: n = max(n, 1)
        if c.valu and any(m.startswith(("row_", "quad_perm", "wave_", "row_bcast")) for m in c.mods) and pw & c.r: n = max(n, 2)
        ps = sg(p.w)
        if c.valu and ps & c.r: n = max(n, 4 if c.mn.startswith(("v_readlane", "v_writelane")) else 2)
        if c.vmem and ps & c.r: n = max(n, 5)
        if c.salu and ps & c.r: n = max(n, 1)
        if ("exec", 0) in p.w and (c.mfma or c.mn.startswith(("v_permlane", "v_read", "v_write"))): n = max(n, 4)
    if p.salu and ("m0", 0) in p.w and c.vmem and ("m0", 0) in c.r: n = max(n, 1)
    if p.widestore and p.stdata & c.w: n = max(n, 2)
    if p.mfma:
        k = passes(p.mn); i = {4: 0, 8: 1, 16: 2}[k]
        if c.mfma:
            if p.D & (c.A | c.B): n = max(n, (8, 12, 20)[i])
            if p.D & c.C:
                if not (p.D == c.C and passes(c.mn) == k): n = max(n, (6, 10, 18)[i])
            elif p.D & c.D and not (p.D == c.D and passes(c.mn) == k): n = max(n, (6, 10, 18)[i])
        else:
            if p.D & (c.r | c.w): n = max(n, (8, 12, 20)[i])
            if c.valu and p.C & c.w: n = max(n, (3, 7, 15)[i])
    return n

def lint(lines):
    ins = []
    for l in lines:
        if l.endswith(":") or l.startswith(".") or l.startswith(";"): continue
        ins.append(Ins(l))
    bad = []
    for j, c in enumerate(ins):
        d = 0
        for i in range(j - 1, max(-1, j - 24), -1):
            p = ins[i]
            if p.mn in ("s_branch", "s_endpgm"): break
            n = need_states(p, c)
            if n > d: bad.append(f"need {n} have {d}: [{p.text}] -> [{c.text}]")
            d += p.ws
            if d >= 20: break
    return bad
```

```python
import sys, math, struct
from asmlib import *

NAME = "gated_mix__mha_block__ssm_conv_h3__prompt_kernel"
def f2u(x): return struct.unpack("<I", struct.pack("<f", x))[0]

KV, QO, UR, YD, OM, ORM = 0, 0x500000, 0x780000, 0xA00000, 0xC80000, 0xE80000
F1, F2, F3, F4 = 0xF00000, 0xF01000, 0xF02000, 0xF03000
TS = 0xF10000
WS_SIZE = 0x1000000
KV_HS, KV_US = 163840, 5120
Q_HS, Q_US = 81920, 2560
L_X, L_W = 0, 49152
L_Q = 81920
L_CONV, CONV_SZ, CS, U_OFF = 98304, 21248, 4160, 16640
L_WO, L_YD, L_EX = 0, 102400, 112640
LDS_BYTES = 163840
sWG, sWAVE = 2, 3
pX, pW, pWO, pWS, pK, pV, pSH, pH, pD, pGW, pOUT, pDBG = 4, 6, 8, 10, 12, 14, 16, 18, 20, 22, 24, 26
rWS, rA, rB, rC, rD = 28, 32, 36, 40, 44
sXCD, sI, sJT, sRT, sPRT, sCJ, sCH0, sNCH, sHEAD, sQB = 48, 49, 50, 51, 52, 53, 54, 55, 56, 57
sLW, sCH, sKH, sTB, sCNT, sSLOW = 58, 59, 60, 61, 62, 63
T0, T1, T2, T3, T4, T5, T6, T7 = 64, 65, 66, 67, 68, 69, 70, 71
sM, sM2 = 72, 74
sVMASK = 76
sTS = 80
POLL_MAX = 30000

class Gen:
    def __init__(self, stamps=False, dump=False):
        self.a = Asm(); self.stamps = stamps; self.nst = 0
    def srd(self, r, p, size):
        self.a(f"s_mov_b32 s{r}, s{p}\ns_mov_b32 s{r+1}, s{p+1}\ns_mov_b32 s{r+2}, {size:#x}\ns_mov_b32 s{r+3}, 0x20000")
    def stamp(self, k):
        if not self.stamps: return
        self.a(f"s_memrealtime s[{sTS}:{sTS+1}]\ns_waitcnt lgkmcnt(0)\ns_mov_b32 s{82+k}, s{sTS}")
        self.a.done["ds"] = self.a.n["ds"]
    def poll(self, loads, tmp, cmp=None):
        a = self.a
        L, D = a.newlabel("POLL"), a.newlabel("POLLD")
        a(f"s_mov_b32 s{sCNT}, 0")
        a.label(L)
        k = 0
        for (va, r, imm, wd) in loads:
            ins = {1: "buffer_load_dword", 2: "buffer_load_dwordx2"}[wd]
            a(f"{ins} {vr(tmp+k, wd)}, v{va}, s[{r}:{r+3}], 0 offen offset:{imm} sc1"); k += wd
        a("s_waitcnt vmcnt(0)")
        a.done["vm"] = a.n["vm"]
        self.poll_check(tmp, k, cmp)
        a(f"s_cbranch_scc1 {D}")
        a(f"s_add_u32 s{sCNT}, s{sCNT}, 1\ns_cmp_lt_u32 s{sCNT}, {POLL_MAX}\ns_cbranch_scc0 {D}\ns_sleep 1\ns_branch {L}")
        a.label(D)
    def poll_check(self, tmp, k, cmp=None):
        a = self.a
        for j in range(1, k): a(f"v_min_u32 v{tmp}, v{tmp}, v{tmp+j}")
        a(cmp or f"v_cmp_ne_u32 vcc, 0, v{tmp}")
        a("s_nop 1\ns_cmp_eq_u64 vcc, exec")
    def flag_store(self, soff_expr_sreg, vt):
        a = self.a
        a(f"v_mov_b32 v{vt}, s{soff_expr_sreg}\nv_mov_b32 v{vt+1}, 1\ns_mov_b64 exec, 1")
        t = a.vm(f"buffer_store_dword v{vt+1}, v{vt}, s[{rWS}:{rWS+3}], 0 offen sc1")
        a("s_mov_b64 exec, -1")
        return t

    def prologue(self):
        a = self.a
        a(f"s_cmp_ge_u32 s{sWG}, 256\ns_cbranch_scc1 L_END")
        a(f"""s_load_dwordx4 s[4:7], s[0:1], 0
        s_load_dwordx2 s[8:9], s[0:1], 16
        s_load_dwordx2 s[10:11], s[0:1], 96
        s_load_dwordx16 s[12:27], s[0:1], 32
        v_lshrrev_b32 v1, 6, v0
        v_and_b32 v0, 63, v0
        s_and_b32 s{sXCD}, s{sWG}, 7
        v_readfirstlane_b32 s{sWAVE}, v1
        s_lshr_b32 s{sI}, s{sWG}, 3
        s_and_b32 s{T0}, s{sXCD}, 1
        s_mul_i32 s{T0}, s{T0}, 30
        s_add_u32 s{T0}, s{T0}, s{sI}
        s_lshr_b32 s{sJT}, s{T0}, 2
        s_and_b32 s{T0}, s{T0}, 3
        s_lshr_b32 s{T1}, s{sXCD}, 1
        s_lshl_b32 s{T1}, s{T1}, 2
        s_add_u32 s{sRT}, s{T0}, s{T1}
        s_lshr_b32 s{T0}, s{sI}, 4
        s_lshl_b32 s{T1}, s{sXCD}, 1
        s_add_u32 s{sPRT}, s{T0}, s{T1}
        s_and_b32 s{sCJ}, s{sI}, 15
        s_lshr_b32 s{T0}, s{sWG}, 1
        s_mul_i32 s{T0}, s{T0}, 5
        s_and_b32 s{T1}, s{sWG}, 1
        s_mul_i32 s{T2}, s{T1}, 3
        s_add_u32 s{sCH0}, s{T0}, s{T2}
        s_sub_u32 s{sNCH}, 3, s{T1}
        s_lshr_b32 s{T0}, s{sI}, 3
        s_lshl_b32 s{T1}, s{sXCD}, 2
        s_add_u32 s{sHEAD}, s{T0}, s{T1}
        s_and_b32 s{sQB}, s{sI}, 7
        s_lshr_b32 s{sKH}, s{sWAVE}, 2
        s_and_b32 s{sTB}, s{sWAVE}, 3
        s_mov_b32 s{sSLOW}, 0
        s_mov_b32 s{sVMASK}, 0x000fffff
        s_mov_b32 s{sVMASK+1}, 0x000fffff
        s_waitcnt lgkmcnt(0)""")
        self.srd(rWS, pWS, WS_SIZE)
        self.stamp(0)
        a(f"s_cmp_ge_u32 s{sWAVE}, 4\ns_cbranch_scc1 L_LOADER")

    def flag_reset(self):
        a = self.a
        L = a.newlabel("NOZ")
        a(f"s_cmp_lg_u32 s{sWAVE}, 0\ns_cbranch_scc1 {L}")
        a(f"""s_lshl_b32 s{T0}, s{sCJ}, 8
        s_lshl_b32 s{T1}, s{sPRT}, 4
        s_add_u32 s{T0}, s{T0}, s{T1}
        s_add_u32 s{T0}, s{T0}, {F1:#x}
        v_and_b32 v10, 3, v0
        v_lshlrev_b32 v11, 2, v10
        v_add_u32 v12, s{T0}, v11""")
        a(f"""s_lshl_b32 s{T0}, s{sJT}, 8
        s_lshl_b32 s{T1}, s{sRT}, 3
        s_add_u32 s{T0}, s{T0}, s{T1}
        s_add_u32 s{T0}, s{T0}, {F2:#x}
        v_and_b32 v13, 2, v0
        v_lshlrev_b32 v13, 6, v13
        v_and_b32 v14, 1, v0
        v_lshlrev_b32 v14, 2, v14
        v_add3_u32 v13, v13, v14, s{T0}
        s_cmp_lt_u32 s{sI}, 30
        s_cselect_b32 s{sM}, 0xf0, 0
        s_mov_b32 s{sM+1}, 0
        s_nop 0
        v_cndmask_b32 v12, v12, v13, s[{sM}:{sM+1}]""")
        a(f"""s_lshl_b32 s{T0}, s{sCH0}, 2
        s_add_u32 s{T0}, s{T0}, {F3:#x}
        v_add_u32 v13, s{T0}, v11
        s_mov_b32 s{sM}, 0x300
        s_cmp_eq_u32 s{sNCH}, 3
        s_cselect_b32 s{sM}, 0x700, s{sM}
        s_nop 0
        v_cndmask_b32 v12, v12, v13, s[{sM}:{sM+1}]""")
        a(f"""s_lshl_b32 s{T0}, s{sQB}, 10
        s_lshl_b32 s{T1}, s{sHEAD}, 3
        s_add_u32 s{T0}, s{T0}, s{T1}
        s_add_u32 s{T0}, s{T0}, {F4:#x}
        v_and_b32 v13, 6, v0
        v_lshlrev_b32 v13, 7, v13
        v_add3_u32 v13, v13, v14, s{T0}
        s_mov_b32 s{sM}, 0xff0000
        s_nop 0
        v_cndmask_b32 v12, v12, v13, s[{sM}:{sM+1}]
        v_mov_b32 v13, 0
        s_mov_b32 exec_lo, 0xffffff
        s_mov_b32 exec_hi, 0
        buffer_store_dword v13, v12, s[{rWS}:{rWS+3}], 0 offen sc1
        s_mov_b64 exec, 1""")
        self.srd(rA, pDBG, 256)
        a(f"""s_and_b32 s{T0}, s{sWG}, 1
        s_lshl_b32 s{T0}, s{T0}, 7
        v_mov_b32 v12, s{T0}
        v_mov_b32 v13, 1
        s_waitcnt vmcnt(0)
        buffer_atomic_add v13, v12, s[{rA}:{rA+3}], 0 offen sc1
        s_mov_b64 exec, -1""")
        a.label(L)

    def gemm_compute(self):
        a = self.a
        XA, WA = 2, 6
        a(f"""s_and_b32 s{T0}, s{sWAVE}, 1
        s_lshl_b32 s{T0}, s{T0}, 13
        v_and_b32 v8, 31, v0
        v_lshrrev_b32 v9, 5, v0
        v_lshrrev_b32 v10, 1, v8
        v_and_b32 v10, 7, v10
        v_xor_b32 v10, v10, v9
        v_lshlrev_b32 v8, 7, v8
        v_add_u32 v8, s{T0}, v8""")
        for ks in range(4):
            a(f"v_xor_b32 v11, {2*ks}, v10\nv_lshl_add_u32 v{XA+ks}, v11, 4, v8")
        a(f"""v_lshrrev_b32 v8, 2, v0
        v_and_b32 v8, 3, v8
        v_lshrrev_b32 v9, 5, v0
        v_lshl_add_u32 v9, v9, 3, v8
        v_lshlrev_b32 v9, 8, v9
        v_lshrrev_b32 v10, 4, v0
        v_and_b32 v10, 1, v10
        v_lshlrev_b32 v10, 1, v10
        v_lshrrev_b32 v11, 1, v0
        v_and_b32 v11, 1, v11
        v_or_b32 v10, v10, v11
        v_and_b32 v11, 1, v0
        v_lshlrev_b32 v11, 3, v11
        v_add_u32 v9, v9, v11
        v_add_u32 v9, {L_W}, v9
        s_and_b32 s{T0}, s{sWAVE}, 2""")
        for i in range(2):
            a(f"""s_add_u32 s{T1}, s{T0}, {i}
            v_xor_b32 v11, s{T1}, v8
            v_lshl_add_u32 v11, v11, 2, v10
            v_lshl_add_u32 v{WA+i}, v11, 4, v9""")
        self.flag_reset()
        a(f"s_cmp_ge_u32 s{sI}, 30\ns_cbranch_scc1 L_C_NOTILE")
        a(f"s_cmp_ge_u32 s{sJT}, 10\ns_cbranch_scc1 L_C_VTILE")
        self.gemm_loop(False)
        self.gemm_epi_qk()
        a("s_branch L_C_FLAG")
        a.label("L_C_VTILE")
        self.gemm_loop(True)
        self.gemm_epi_v()
        a.label("L_C_FLAG")
        a.reset_counters()
        self.stamp(2)
        a(f"""s_lshl_b32 s{T0}, s{sJT}, 8
        s_and_b32 s{T1}, s{sWAVE}, 2
        s_lshl_b32 s{T1}, s{T1}, 6
        s_add_u32 s{T0}, s{T0}, s{T1}
        s_lshl_b32 s{T1}, s{sRT}, 3
        s_add_u32 s{T0}, s{T0}, s{T1}
        s_and_b32 s{T1}, s{sWAVE}, 1
        s_lshl_b32 s{T1}, s{T1}, 2
        s_add_u32 s{T0}, s{T0}, s{T1}
        s_add_u32 s{T0}, s{T0}, {F2:#x}
        s_waitcnt vmcnt(0)""")
        self.flag_store(T0, 8)
        self.stamp(3)
        a("s_branch L_C_POLL")
        a.label("L_C_NOTILE")
        a("s_barrier\ns_barrier")
        a.label("L_C_POLL")
        a.reset_counters()
        a(f"""s_mul_i32 s{T0}, s{sHEAD}, 20
        v_lshrrev_b32 v8, 5, v0
        v_mul_u32_u24 v8, 19, v8
        v_add_u32 v8, s{T0}, v8
        v_lshrrev_b32 v8, 6, v8
        v_lshlrev_b32 v8, 7, v8
        v_and_b32 v9, 31, v0
        v_lshl_add_u32 v8, v9, 2, v8
        v_add_u32 v8, {F2:#x}, v8""")
        self.poll([(8, rWS, 0, 1), (8, rWS, 1280, 1), (8, rWS, 2560, 1)], 10)
        self.stamp(4)
        a(f"""v_lshlrev_b32 v6, 4, v0
        s_mul_i32 s{T0}, s{sHEAD}, {Q_HS}
        s_lshl_b32 s{T1}, s{sQB}, 2
        s_add_u32 s{T1}, s{T1}, s{sWAVE}
        s_mul_i32 s{T1}, s{T1}, {Q_US}
        s_add_u32 s{T0}, s{T0}, s{T1}
        s_add_u32 s{T0}, s{T0}, {QO:#x}
        s_mul_i32 s{T1}, s{sWAVE}, {Q_US}
        s_add_u32 m0, s{T1}, {L_Q}
        s_mul_i32 s{T2}, s{sHEAD}, {KV_HS}""")
        a.vm(f"buffer_load_dwordx4 v6, s[{rWS}:{rWS+3}], s{T0} offen sc1 lds")
        a.vm(f"buffer_load_dwordx4 v6, s[{rWS}:{rWS+3}], s{T0} offen offset:1024 sc1 lds")
        a("s_mov_b32 exec_hi, 0")
        a.vm(f"buffer_load_dwordx4 v6, s[{rWS}:{rWS+3}], s{T0} offen offset:2048 sc1 lds")
        a("s_mov_b32 exec_hi, -1")
        a(f"s_mul_i32 s{T3}, s{sWAVE}, {KV_US}")
        toks = []
        for k in range(4):
            toks.append(self.kv_unit_dma(T2, T3, 4 * k * KV_US))
        a.wait(toks[1])
        self.stamp(5)
        a("s_branch L_ATT")

    def kv_unit_dma(self, sBase, sOff, add):
        a = self.a
        a(f"s_add_u32 s{T4}, s{sOff}, {add}\ns_mov_b32 m0, s{T4}\ns_add_u32 s{T5}, s{T4}, s{sBase}")
        for j in range(4):
            a.vm(f"buffer_load_dwordx4 v6, s[{rWS}:{rWS+3}], s{T5} offen offset:{1024*j} sc1 lds")
        a(f"s_add_u32 m0, s{T4}, 4096\ns_add_u32 s{T5}, s{T5}, 4096")
        return a.vm(f"buffer_load_dwordx4 v6, s[{rWS}:{rWS+3}], s{T5} offen sc1 lds")

    def gemm_loop(self, vt):
        a = self.a
        a.reset_counters()
        XA, WA, FR, ACC = 2, 6, 32, 64
        def reads(s, ks):
            st = FR + 16 * (ks & 1); sl = (s % 3) * 16384
            rx = lambda j: (lambda: a.ds(f"ds_read_b128 {vr(st+4*j,4)}, v{XA+ks} offset:{sl + 4096*j}"))
            rw = lambda i, q: (lambda: a.ds(f"ds_read_b64_tr_b16 {vr(st+8+4*i+2*q,2)}, v{WA+i} offset:{sl + (16*ks+4*q)*256}"))
            if vt: return [("X0", rx(0)), ("W0", rw(0,0)), ("W0", rw(0,1)), ("W1", rw(1,0)), ("W1", rw(1,1)), ("X1", rx(1))]
            return [("W0", rw(0,0)), ("W0", rw(0,1)), ("X0", rx(0)), ("X1", rx(1)), ("W1", rw(1,0)), ("W1", rw(1,1))]
        def group(ks, toks, nxt, first):
            st = FR + 16 * (ks & 1); out = {}
            sched = [3, 3, 0, 0]; k = 0
            for m, (i, j) in enumerate(((0,0),(0,1),(1,0),(1,1))):
                if vt: A, B, na, nb = st + 4*i, st + 8 + 4*j, f"X{i}", f"W{j}"
                else:  A, B, na, nb = st + 8 + 4*i, st + 4*j, f"W{i}", f"X{j}"
                a.wait(toks[na], toks[nb])
                d = ACC + 16 * (2*i + j)
                a(f"v_mfma_f32_32x32x16_bf16 {vr(d,16)}, {vr(A,4)}, {vr(B,4)}, {'0' if first else vr(d,16)}")
                for _ in range(sched[m]):
                    if k < len(nxt): out[nxt[k][0]] = nxt[k][1](); k += 1
            return out
        a("s_barrier")
        if self.stamps: self.stamp(1)
        toks = {}
        for n, f in reads(0, 0): toks[n] = f()
        for s in range(10):
            for ks in range(4):
                if ks < 3:
                    toks = group(ks, toks, reads(s, ks + 1), s == 0 and ks == 0)
                else:
                    a.wait_all(vm=False); a("s_barrier")
                    toks = group(ks, toks, reads(s + 1, 0) if s < 9 else [], False)

    def gemm_epi_qk(self):
        a = self.a
        ACC = 64
        sBASE, sHS, sSC, sPQ = T0, T1, T2, T3
        c = math.log2(math.e) / math.sqrt(20.0)
        a(f"""s_mov_b32 s{sHS}, {Q_HS}
        s_mov_b32 s{T4}, {Q_US}
        s_cmp_ge_u32 s{sJT}, 5
        s_cselect_b32 s{sHS}, {KV_HS}, s{sHS}
        s_cselect_b32 s{T4}, {KV_US}, s{T4}
        s_cselect_b32 s{sBASE}, {KV}, {QO:#x}
        s_cselect_b32 s{sSC}, 1.0, {f2u(c):#x}
        s_cselect_b32 s{T5}, 5, 0
        s_cselect_b64 s[{sM}:{sM+1}], -1, 0
        s_sub_u32 s{T5}, s{sJT}, s{T5}
        s_lshl_b32 s{sPQ}, s{T5}, 4
        s_and_b32 s{T5}, s{sWAVE}, 2
        s_lshl_b32 s{T5}, s{T5}, 2
        s_add_u32 s{sPQ}, s{sPQ}, s{T5}
        s_lshl_b32 s{T5}, s{sRT}, 1
        s_and_b32 s{T6}, s{sWAVE}, 1
        s_add_u32 s{T5}, s{T5}, s{T6}
        s_mul_i32 s{T5}, s{T5}, s{T4}
        s_add_u32 s{sBASE}, s{sBASE}, s{T5}
        v_and_b32 v8, 31, v0
        v_and_b32 v9, 0x13, v0
        v_and_b32 v10, 4, v0
        v_lshl_or_b32 v9, v10, 1, v9
        v_and_b32 v10, 8, v0
        v_lshrrev_b32 v10, 1, v10
        v_or_b32 v9, v9, v10
        v_cndmask_b32 v8, v8, v9, s[{sM}:{sM+1}]
        v_lshrrev_b32 v9, 5, v0
        v_lshlrev_b32 v10, 3, v9
        v_lshl_add_u32 v2, v8, 4, v10
        v_add_u32 v3, 1024, v2
        v_mul_lo_u32 v10, v9, s{sHS}
        v_lshl_add_u32 v4, v8, 3, v10
        v_add_u32 v4, 1024, v4
        v_add_u32 v5, 256, v4""")
        k = 0
        for i in range(2):
            for g in range(4):
                a(f"""s_add_u32 s{T4}, s{sPQ}, {4*i+g}
                s_mul_i32 s{T5}, s{T4}, 205
                s_lshr_b32 s{T5}, s{T5}, 10
                s_mul_i32 s{T6}, s{T5}, 5
                s_sub_u32 s{T4}, s{T4}, s{T6}
                s_lshl_b32 s{T5}, s{T5}, 1
                s_mul_i32 s{T5}, s{T5}, s{sHS}
                s_add_u32 s{T5}, s{T5}, s{sBASE}
                s_lshl_b32 s{T6}, s{T4}, 9
                s_add_u32 s{T5}, s{T5}, s{T6}
                s_sub_u32 s{T6}, s{sHS}, 1536
                s_cmp_ge_u32 s{T4}, 3
                s_cselect_b32 s{T6}, s{T6}, 0
                s_add_u32 s{T7}, s{T5}, s{T6}
                s_cmp_eq_u32 s{T4}, 2
                s_cselect_b64 s[{sM}:{sM+1}], -1, 0""")
                for j in range(2):
                    d = ACC + 16 * (2*i + j) + 4*g
                    t = 8 + 4 * (k % 6); k += 1
                    for e in range(4): a(f"v_mul_f32 v{d+e}, s{sSC}, v{d+e}")
                    a(f"v_cndmask_b32 v{t+2}, v{2+j}, v{4+j}, s[{sM}:{sM+1}]")
                    a(f"v_cvt_pk_bf16_f32 v{t}, v{d}, v{d+1}\nv_cvt_pk_bf16_f32 v{t+1}, v{d+2}, v{d+3}")
                    a.vm(f"buffer_store_dwordx2 {vr(t,2)}, v{t+2}, s[{rWS}:{rWS+3}], s{T7} offen sc1")

    def gemm_epi_v(self):
        a = self.a
        ACC = 64
        a(f"""s_sub_u32 s{T0}, s{sJT}, 10
        s_lshl_b32 s{T0}, s{T0}, 7
        s_and_b32 s{T1}, s{sWAVE}, 2
        s_lshl_b32 s{T1}, s{T1}, 5
        s_add_u32 s{T0}, s{T0}, s{T1}
        s_lshl_b32 s{T1}, s{sRT}, 1
        s_and_b32 s{T2}, s{sWAVE}, 1
        s_add_u32 s{T1}, s{T1}, s{T2}
        s_mul_i32 s{T1}, s{T1}, {KV_US}
        s_add_u32 s{T1}, s{T1}, {KV + 2560}
        s_mov_b32 s{T2}, {KV_HS - 320}
        v_and_b32 v8, 31, v0
        v_lshrrev_b32 v9, 5, v0
        v_mul_u32_u24 v9, 320, v9""")
        for j in range(2):
            a(f"""v_add_u32 v10, s{T0}, v8
            v_add_u32 v10, {32*j}, v10
            v_mul_u32_u24 v11, 3277, v10
            v_lshrrev_b32 v11, 16, v11
            v_mul_lo_u32 v11, v11, s{T2}
            v_lshl_add_u32 v10, v10, 4, v9
            v_add_u32 v{2+j}, v10, v11""")
        k = 0
        for i in range(2):
            for j in range(2):
                for s in range(2):
                    d = ACC + 16 * (2*i + j) + 8*s
                    t = 8 + 4 * (k % 6); k += 1
                    for e in range(4): a(f"v_cvt_pk_bf16_f32 v{t+e}, v{d+2*e}, v{d+2*e+1}")
                    a.vm(f"buffer_store_dwordx4 {vr(t,4)}, v{2+j}, s[{rWS}:{rWS+3}], s{T1} offen offset:{(2*i+s)*640} sc1")

    XS, WS_, PA, PB, PW, PS, HA, HL = 2, 6, 10, 11, 12, 13, 14, 15
    KR_, VV_, SW_, HD_, DV_, PO_ = 16, 44, 60, 128, 152, 160
    def loader_setup(self):
        a = self.a
        a(f"s_sub_u32 s{sLW}, s{sWAVE}, 4")
        self.srd(rA, pX, 2048 * 1280); self.srd(rB, pW, 640 * 3840)
        a(f"""v_lshrrev_b32 v16, 3, v0
        v_and_b32 v17, 7, v0
        v_lshrrev_b32 v18, 1, v16
        s_lshl_b32 s{T0}, s{sRT}, 7
        s_lshl_b32 s{T1}, s{sLW}, 5
        s_add_u32 s{T0}, s{T0}, s{T1}
        v_add_u32 v16, s{T0}, v16
        v_mul_u32_u24 v16, 1280, v16""")
        for n in range(4):
            a(f"""v_xor_b32 v19, {(4*n) & 7}, v18
            v_xor_b32 v19, v19, v17
            v_lshl_add_u32 v19, v19, 4, v16
            v_add_u32 v{self.XS+n}, {n*(8*1280-1024)}, v19""")
        a(f"""v_lshrrev_b32 v16, 4, v0
        v_and_b32 v17, 15, v0
        v_lshlrev_b32 v18, 2, v16
        v_xor_b32 v17, v17, v18
        s_lshl_b32 s{T0}, s{sLW}, 4
        v_add_u32 v16, s{T0}, v16
        v_mul_u32_u24 v16, 3840, v16
        v_lshl_add_u32 v16, v17, 4, v16
        s_lshl_b32 s{T0}, s{sJT}, 8
        v_add_u32 v{self.WS_}, s{T0}, v16""")
        for n in range(1, 4): a(f"v_add_u32 v{self.WS_+n}, {n*(4*3840-1024)}, v{self.WS_}")
        a(f"s_lshl_b32 s{T7}, s{sLW}, 12")
    def stage_dma(self, s):
        a = self.a
        sl = (s % 3) * 16384
        a(f"s_add_u32 m0, s{T7}, {L_X + sl}\ns_mov_b32 s{T0}, {128*s}")
        for n in range(4): a.vm(f"buffer_load_dwordx4 v{self.XS+n}, s[{rA}:{rA+3}], s{T0} offen offset:{1024*n} lds")
        a(f"s_add_u32 m0, s{T7}, {L_W + sl}\ns_mov_b32 s{T0}, {64*3840*s}")
        for n in range(4): t = a.vm(f"buffer_load_dwordx4 v{self.WS_+n}, s[{rB}:{rB+3}], s{T0} offen offset:{1024*n} lds")
        return t
    def pre_loads(self):
        a = self.a
        a(f"""v_mul_u32_u24 v16, 52, v0
        v_lshrrev_b32 v16, 8, v16
        v_mul_u32_u24 v17, 5, v16
        v_sub_u32 v17, v0, v17
        s_lshl_b32 s{T0}, s{sPRT}, 7
        s_lshl_b32 s{T1}, s{sLW}, 5
        s_add_u32 s{T0}, s{T0}, s{T1}
        v_lshl_add_u32 v16, v16, 2, s{T0}
        s_mul_i32 s{T1}, s{sCJ}, 80
        v_lshl_add_u32 v18, v17, 4, s{T1}
        v_mul_u32_u24 v19, 1280, v16
        v_add_u32 v{self.PB}, v19, v18
        v_subrev_u32 v{self.PA}, 3840, v{self.PB}
        v_lshlrev_b32 v{self.PW}, 2, v18
        v_lshlrev_b32 v18, 11, v18
        v_lshlrev_b32 v16, 1, v16
        v_sub_u32 v18, v18, v16
        v_add_u32 v{self.PS}, {UR + 4088:#x}, v18
        s_min_u32 s{T0}, s{sLW}, 2
        s_add_u32 s{sCH}, s{sCH0}, s{T0}
        s_min_u32 s{sCH}, s{sCH}, 639
        s_lshl_b32 s{T1}, s{sCH}, 12
        v_lshl_add_u32 v{self.HA}, v0, 4, s{T1}
        s_mul_i32 s{T0}, s{T0}, {CONV_SZ}
        s_add_u32 s{T6}, s{T0}, {L_CONV}
        v_lshl_add_u32 v{self.HL}, v0, 4, s{T6}
        s_lshl_b32 s{T1}, s{sCH}, 1
        v_mov_b32 v{self.DV_}, s{T1}""")
        self.srd(rC, pK, 2048 * 1280); self.srd(rD, pV, 2048 * 1280)
        a("s_mov_b32 exec_hi, 0xff")
        for j in range(3): a.vm(f"buffer_load_dwordx4 {vr(self.KR_+4*j,4)}, v{self.PA}, s[{rC}:{rC+3}], 0 offen offset:{1280*j}")
        for j in range(4): a.vm(f"buffer_load_dwordx4 {vr(self.KR_+12+4*j,4)}, v{self.PB}, s[{rC}:{rC+3}], 0 offen offset:{1280*j}")
        for j in range(4): a.vm(f"buffer_load_dwordx4 {vr(self.VV_+4*j,4)}, v{self.PB}, s[{rD}:{rD+3}], 0 offen offset:{1280*j}")
        self.srd(rC, pSH, 640 * 8)
        for j in range(4): tp = a.vm(f"buffer_load_dwordx4 {vr(self.SW_+4*j,4)}, v{self.PW}, s[{rC}:{rC+3}], 0 offen offset:{16*j}")
        a("s_mov_b32 exec_hi, -1")
        self.srd(rD, pH, 640 * 4096)
        for g in range(4):
            a.vm(f"buffer_load_dwordx4 {vr(self.HD_+6*g,4)}, v{self.HA}, s[{rD}:{rD+3}], 0 offen offset:{1024*g}")
            a.vm(f"buffer_load_dwordx2 {vr(self.HD_+6*g+4,2)}, v{self.HA}, s[{rD}:{rD+3}], 0 offen offset:{1024*g+16}")
        self.srd(rC, pD, 640 * 2)
        th = a.vm(f"buffer_load_ushort v{self.DV_}, v{self.DV_}, s[{rC}:{rC+3}], 0 offen")
        return tp, th
    def pre_compute(self, p):
        a = self.a
        K, V, W, AC = 76, 90, 98, 106
        lo = lambda d, s: a(f"v_lshlrev_b32 v{d}, 16, v{s}")
        hi = lambda d, s: a(f"v_and_b32 v{d}, 0xffff0000, v{s}")
        for j in range(7): lo(K+2*j, self.KR_+4*j+p); hi(K+2*j+1, self.KR_+4*j+p)
        for j in range(4): lo(V+2*j, self.VV_+4*j+p); hi(V+2*j+1, self.VV_+4*j+p)
        w = self.SW_ + 4*p
        lo(W, w); lo(W+1, w+2); hi(W+2, w); hi(W+3, w+2); lo(W+4, w+1); lo(W+5, w+3); hi(W+6, w+1); hi(W+7, w+3)
        for lag in (3, 2, 1, 0):
            for t in range(4):
                kk = K + 2*(3 + t - lag)
                if lag == 3: a(f"v_pk_mul_f32 {vr(AC+2*t,2)}, {vr(kk,2)}, {vr(W+2*lag,2)}")
                else: a(f"v_pk_fma_f32 {vr(AC+2*t,2)}, {vr(kk,2)}, {vr(W+2*lag,2)}, {vr(AC+2*t,2)}")
        for t in range(4): a(f"v_pk_mul_f32 {vr(AC+2*t,2)}, {vr(AC+2*t,2)}, {vr(V+2*t,2)}")
        for h in range(2):
            o = self.PO_ + 4*p + 2*h
            a(f"v_cvt_pk_bf16_f32 v{o}, v{AC+6+h}, v{AC+4+h}\nv_cvt_pk_bf16_f32 v{o+1}, v{AC+2+h}, v{AC+h}")
    def pre_stores(self):
        a = self.a
        a("s_mov_b32 exec_hi, 0xff")
        for e in range(8):
            a(f"s_mov_b32 s{T0}, {4096*e}")
            t = a.vm(f"buffer_store_dwordx2 {vr(self.PO_+2*e,2)}, v{self.PS}, s[{rWS}:{rWS+3}], s{T0} offen sc1")
        a("s_mov_b32 exec_hi, -1")
        return t
    def h_group(self, D, imm):
        a = self.a
        t0, t1, t2 = 76, 80, 84
        for e in range(4): a(f"v_alignbit_b32 v{t0+e}, v{D+e+1}, v{D+e}, 16")
        for e in range(4): a(f"v_mov_b32 v{t1+e}, v{D+e+1}")
        for e in range(4): a(f"v_alignbit_b32 v{t2+e}, v{D+e+2}, v{D+e+1}, 16")
        for r, src in enumerate((t0, t1, t2, D + 2)):
            a.ds(f"ds_write_b128 v{self.HL}, {vr(src,4)} offset:{r*CS + imm}")
        a.wait_all(vm=False)
    def h_to_lds(self):
        a = self.a
        L = a.newlabel("NOH")
        a(f"s_cmp_ge_u32 s{sLW}, s{sNCH}\ns_cbranch_scc1 {L}")
        a(f"v_readlane_b32 s{T0}, v{self.HD_}, 0\nv_readlane_b32 s{T1}, v{self.HD_+1}, 0")
        for g in range(4): self.h_group(self.HD_ + 6*g, 32 + 1024*g)
        D = self.HD_
        for e in range(6): a(f"v_mov_b32 v{D+e}, 0")
        a.ds(f"ds_write_b128 v{self.HL}, {vr(D,4)} offset:{U_OFF + 3584}")
        a(f"v_writelane_b32 v{D+4}, s{T0}, 1\nv_writelane_b32 v{D+5}, s{T1}, 1\ns_mov_b64 exec, 3")
        self.h_group(D, 0)
        a("s_mov_b64 exec, -1")
        a.label(L)
    def init_check(self):
        a = self.a
        L = a.newlabel("NOCHK")
        a(f"s_cmp_lg_u32 s{sWAVE}, 7\ns_cbranch_scc1 {L}")
        self.srd(rC, pDBG, 256)
        a("v_and_b32 v76, 1, v0\nv_lshlrev_b32 v76, 7, v76")
        snap = a.snapshot()
        self.poll([(76, rC, 0, 1)], 77, cmp="v_cmp_le_u32 vcc, 0x80, v77")
        a.restore(snap)
        a.label(L)
    def f1_flag(self):
        a = self.a
        a(f"""s_lshl_b32 s{T0}, s{sCJ}, 8
        s_lshl_b32 s{T1}, s{sPRT}, 4
        s_add_u32 s{T0}, s{T0}, s{T1}
        s_lshl_b32 s{T1}, s{sLW}, 2
        s_add_u32 s{T0}, s{T0}, s{T1}
        s_add_u32 s{T0}, s{T0}, {F1:#x}""")
        return self.flag_store(T0, 76)

    def loader(self):
        a = self.a
        a.label("L_LOADER")
        a.reset_counters()
        self.loader_setup()
        a(f"s_cmp_ge_u32 s{sI}, 30\ns_cbranch_scc1 L_L_NOTILE")
        S = {s: self.stage_dma(s) for s in range(3)}
        tp, th = self.pre_loads()
        ts = None
        for s in range(10):
            if s == 6: self.init_check()
            a.wait(S[s])
            a("s_barrier")
            if 1 <= s <= 7: S[s+2] = self.stage_dma(s + 2)
            if s == 2: a.wait(tp); self.pre_compute(0); self.pre_compute(1)
            if s == 3: self.pre_compute(2); self.pre_compute(3); ts = self.pre_stores()
            if s == 4: a.wait(th); self.h_to_lds()
            if s == 6:
                assert a.done["vm"] >= ts.idx
                self.f1_flag()
        a("s_branch L_CONV")
        a.label("L_L_NOTILE")
        a.reset_counters()
        tp, th = self.pre_loads()
        a.wait(th)
        for p in range(4): self.pre_compute(p)
        self.pre_stores()
        self.h_to_lds()
        self.init_check()
        a.wait_all(force=True)
        a("s_barrier")
        self.f1_flag()
        a.label("L_CONV")
        a.reset_counters()
        a("s_barrier")
        a(f"s_cmp_ge_u32 s{sLW}, s{sNCH}\ns_cbranch_scc1 L_ATT")
        self.conv()

    def conv(self):
        a = self.a
        ACC, FR = 16, 64
        HA, UB, UE, YS, DV = 2, 3, 4, 5, self.DV_
        a(f"""s_mul_i32 s{T0}, s{sCH0}, 1639
        s_lshr_b32 s{T0}, s{T0}, 16
        s_lshl_b32 s{T0}, s{T0}, 8
        s_add_u32 s{T0}, s{T0}, {F1:#x}
        v_lshl_add_u32 v8, v0, 2, s{T0}""")
        self.poll([(8, rWS, 0, 1)], 9)
        self.stamp(2)
        a(f"""v_lshlrev_b32 v6, 4, v0
        s_lshl_b32 s{T0}, s{sCH}, 12
        s_add_u32 s{T1}, s{T0}, {UR:#x}
        s_add_u32 m0, s{T6}, {U_OFF}
        v_lshrrev_b32 v8, 4, v0""")
        for j in range(4): tu = a.vm(f"buffer_load_dwordx4 v6, s[{rWS}:{rWS+3}], s{T1} offen offset:{1024*j} sc1 lds")
        a(f"""v_lshrrev_b32 v9, 2, v0
        v_and_b32 v9, 3, v9
        v_mul_u32_u24 v9, {CS}, v9
        v_lshl_add_u32 v9, v8, 4, v9
        v_and_b32 v10, 3, v0
        v_lshl_add_u32 v9, v10, 3, v9
        v_add_u32 v{HA}, s{T6}, v9
        v_and_b32 v9, 15, v0
        v_lshlrev_b32 v9, 5, v9
        v_lshlrev_b32 v10, 4, v8
        v_sub_u32 v10, v10, v9
        v_add_u32 v10, s{T6}, v10
        v_add_u32 v{UB}, {U_OFF + 480}, v10
        v_lshl_add_u32 v9, v8, 3, v9
        v_sub_u32 v10, s{T6}, v9
        v_add_u32 v{UE}, {U_OFF + 504}, v10
        s_add_u32 s{T0}, s{T0}, {YD:#x}
        v_add_u32 v{YS}, s{T0}, v9
        v_lshlrev_b32 v7, 16, v{DV}""")
        def reads(rho):
            st = FR + 64 * (rho & 1)
            ra = lambda i, q: (lambda: a.ds(f"ds_read_b64_tr_b16 {vr(st+4*i+2*q,2)}, v{HA} offset:{64*(8*i+rho) + 8*q}"))
            rb = lambda d: (lambda: a.ds(f"ds_read_b128 {vr(st+32+4*d,4)}, v{UB} offset:{64*(56 - (8*d - rho))}"))
            L = [("A0", ra(0,0)), ("A0", ra(0,1))] + [(f"B{d}", rb(d)) for d in range(8)]
            for i in range(1, 8): L += [(f"A{i}", ra(i,0)), (f"A{i}", ra(i,1))]
            return L
        toks = {}
        R0 = reads(0)
        for n, f in R0:
            if n == "B0": a.wait(tu)
            toks[n] = f()
        self.stamp(3)
        for rho in range(8):
            st = FR + 64 * (rho & 1)
            nxt = reads(rho + 1) if rho < 7 else []
            out = {}; k = 0; m = 0
            for i in range(8):
                for c in range(i, 8):
                    a.wait(toks[f"A{i}"], toks[f"B{c-i}"])
                    d = ACC + 4 * c
                    a(f"v_mfma_f32_16x16x32_bf16 {vr(d,4)}, {vr(st+4*i,4)}, {vr(st+32+4*(c-i),4)}, {'0' if (rho == 0 and i == 0) else vr(d,4)}")
                    m += 1
                    if m >= 4 and k < len(nxt): out[nxt[k][0]] = nxt[k][1](); k += 1
            assert k == len(nxt)
            toks = out
        self.stamp(4)
        tu = [a.ds(f"ds_read_b64 {vr(FR+2*c,2)}, v{UE} offset:{512*(7-c)}") for c in range(8)]
        for c in range(8):
            a.wait(tu[c])
            d, u, t = ACC + 4*c, FR + 2*c, FR + 32 + 8*(c & 1)
            a(f"""v_and_b32 v{t}, 0xffff0000, v{u+1}
            v_lshlrev_b32 v{t+1}, 16, v{u+1}
            v_and_b32 v{t+2}, 0xffff0000, v{u}
            v_lshlrev_b32 v{t+3}, 16, v{u}""")
            for e in range(4): a(f"v_fmac_f32 v{d+e}, v7, v{t+e}")
            a(f"v_cvt_pk_bf16_f32 v{t+4}, v{d}, v{d+1}\nv_cvt_pk_bf16_f32 v{t+5}, v{d+2}, v{d+3}")
            a.vm(f"buffer_store_dwordx2 {vr(t+4,2)}, v{YS}, s[{rWS}:{rWS+3}], 0 offen offset:{512*c} sc1")
        self.stamp(5)

    O_, QM, QR, KRM, KM, S_, IDX, AKM, AKR, AV = 16, 32, 36, 38, 40, 64, 2, 3, 4, 5
    VS = (48, 128)
    GX, GW, XE, WOV, YDV, F3T = 144, 184, 224, 230, 235, 12
    def m2b(self, S): self.a(f"v_mfma_f32_32x32x4_2b_bf16 {vr(S,32)}, {vr(self.KRM,2)}, {vr(self.QR,2)}, 0")
    def mqk(self, S, h): self.a(f"v_mfma_f32_32x32x16_bf16 {vr(S+16*h,16)}, {vr(self.KM+4*h,4)}, {vr(self.QM,4)}, {vr(S+16*h,16)}")
    def smf(self, V, P): self.a(f"v_smfmac_f32_32x32x32_bf16 {vr(self.O_,16)}, {vr(V,4)}, {vr(P,8)}, v{self.IDX}")
    def attention(self):
        a = self.a
        a.label("L_ATT")
        a.reset_counters()
        a(f"""v_mov_b32 v{self.IDX}, 0xdddddddd
        v_lshlrev_b32 v{self.AKM}, 4, v0
        v_lshlrev_b32 v6, 4, v0
        v_lshlrev_b32 v8, 3, v0
        v_add_u32 v{self.AKR}, 2048, v8
        v_and_b32 v9, 31, v0
        v_lshrrev_b32 v10, 5, v0
        v_mul_u32_u24 v10, 320, v10
        v_lshl_add_u32 v10, v9, 4, v10
        v_add_u32 v{self.AV}, 2560, v10
        s_lshr_b32 s{T0}, s{sWAVE}, 1
        s_mul_i32 s{T0}, s{T0}, {Q_US}
        s_add_u32 s{T0}, s{T0}, {L_Q}
        s_and_b32 s{T1}, s{sWAVE}, 1
        s_lshl_b32 s{T2}, s{T1}, 10
        s_add_u32 s{T2}, s{T2}, s{T0}
        v_add_u32 v10, s{T2}, v6
        s_lshl_b32 s{T1}, s{T1}, 8
        s_add_u32 s{T1}, s{T1}, s{T0}
        v_lshl_add_u32 v11, v9, 3, s{T1}""")
        for e in range(16): a(f"v_mov_b32 v{self.O_+e}, 0")
        for st in self.VS:
            for e in range(16): a(f"v_mov_b32 v{st+e}, 0x3f803f80")
        a("s_barrier")
        self.stamp(6)
        base = {"K": 0, "V": 0}
        def bump(kind, u):
            while u * KV_US - base[kind] > 11 * KV_US:
                base[kind] += 12 * KV_US
                for r in ((self.AKM, self.AKR) if kind == "K" else (self.AV,)): a(f"v_add_u32 v{r}, {12*KV_US}, v{r}")
            return u * KV_US - base[kind]
        def rKR(u): o = bump("K", u); return a.ds(f"ds_read_b64 {vr(self.KRM,2)}, v{self.AKR} offset:{o}")
        def rKM(u, h): o = bump("K", u); return a.ds(f"ds_read_b128 {vr(self.KM+4*h,4)}, v{self.AKM} offset:{o + 1024*h}")
        def rV(u):
            o = bump("V", u)
            a(f"s_mov_b64 exec, s[{sVMASK}:{sVMASK+1}]")
            for g in range(4): t = a.ds(f"ds_read_b128 {vr(self.VS[u&1]+4*g,4)}, v{self.AV} offset:{o + 640*g}")
            a("s_mov_b64 exec, -1")
            return t
        tq = [a.ds(f"ds_read_b64 {vr(self.QR,2)}, v11 offset:2048")]
        tKR = rKR(0)
        tq.append(a.ds(f"ds_read_b128 {vr(self.QM,4)}, v10"))
        tK0 = rKM(0, 0); tK1 = rKM(0, 1); tV = {0: rV(0)}
        a.wait(tq[0], tKR); self.m2b(self.S_); tKR = rKR(1)
        a.nop(17)
        a.wait(tq[1], tK0); self.mqk(self.S_, 0); tK0 = rKM(1, 0)
        a.wait(tK1); self.mqk(self.S_, 1); tK1 = rKM(1, 1)
        a.nop(9)
        for u in range(32):
            if u % 8 == 6 and u < 30: self.att_sync(u // 8)
            X, Y = self.S_ + 32 * (u & 1), self.S_ + 32 * ((u + 1) & 1)
            Vc, Vp = self.VS[u & 1], self.VS[(u + 1) & 1]
            nx = u < 31
            for p in range(32):
                if p == 2:
                    if nx: a.wait(tKR, tV[u])
                    else: a.wait(tV[u])
                    if u > 0: self.smf(Vp + 12, Y + 24)
                    if nx: tV[u+1] = rV(u + 1)
                if p == 6 and nx:
                    self.m2b(Y)
                    if u < 30: tKR = rKR(u + 2)
                if p == 14: self.smf(Vc, X)
                if p == 18: self.smf(Vc + 4, X + 8)
                if p == 22 and nx:
                    a.wait(tK0, tK1); self.mqk(Y, 0)
                    if u < 30: tK0 = rKM(u + 2, 0)
                if p == 26: self.smf(Vc + 8, X + 16)
                if p == 30 and nx:
                    self.mqk(Y, 1)
                    if u < 30: tK1 = rKM(u + 2, 1)
                a(f"v_exp_f32 v{X+p}, v{X+p}")
        a.nop(2)
        self.smf(self.VS[1] + 12, self.S_ + 32 + 24)
        self.stamp(10)

    def att_sync(self, k):
        a = self.a
        if k == 0:
            a.wait_all(vm=True, ds=False, force=True)
            L = a.newlabel("NOF3")
            a(f"s_cmp_lt_u32 s{sWAVE}, 4\ns_cbranch_scc1 {L}\ns_cmp_ge_u32 s{sLW}, s{sNCH}\ns_cbranch_scc1 {L}")
            a(f"s_lshl_b32 s{T0}, s{sCH}, 2\ns_add_u32 s{T0}, s{T0}, {F3:#x}")
            self.flag_store(T0, 8)
            a.label(L)
            a("s_barrier")
            self.stamp(7)
            a(f"s_mul_i32 s{T2}, s{sHEAD}, {KV_HS}\ns_mul_i32 s{T3}, s{sWAVE}, {KV_US}")
            self.kv_unit_dma(T2, T3, 16 * KV_US); self.kv_unit_dma(T2, T3, 24 * KV_US)
        elif k == 1:
            a.wait_all(vm=True, ds=False, force=True)
            a("s_barrier")
            self.stamp(8)
            self.srd(rA, pX, 2048 * 1280); self.srd(rB, pGW, 1280)
            a(f"""v_and_b32 v8, 15, v0
            v_lshrrev_b32 v9, 4, v0
            s_lshl_b32 s{T0}, s{sHEAD}, 6
            s_lshl_b32 s{T1}, s{sTB}, 4
            s_add_u32 s{T0}, s{T0}, s{T1}
            v_add_u32 v8, s{T0}, v8
            v_mul_u32_u24 v8, 1280, v8
            s_mul_i32 s{T0}, s{sKH}, 640
            v_lshl_add_u32 v10, v9, 4, s{T0}
            v_add_u32 v11, v8, v10
            s_mul_i32 s{T0}, s{sQB}, 160
            s_mul_i32 s{T1}, s{sKH}, 96
            s_add_u32 s{T0}, s{T0}, s{T1}
            v_lshl_add_u32 v8, v9, 3, v8
            v_add_u32 v7, s{T0}, v8
            s_mul_i32 s{T0}, s{sQB}, 320
            s_add_u32 s{T0}, s{T0}, {F3:#x}
            v_min_u32 v9, 39, v0
            v_lshl_add_u32 v14, v9, 3, s{T0}""")
            for j in range(10):
                a.vm(f"buffer_load_dwordx4 {vr(self.GX+4*j,4)}, v11, s[{rA}:{rA+3}], 0 offen offset:{64*j}")
                a.vm(f"buffer_load_dwordx4 {vr(self.GW+4*j,4)}, v10, s[{rB}:{rB+3}], 0 offen offset:{64*j}")
            for j in range(3): a.vm(f"buffer_load_dwordx2 {vr(self.XE+2*j,2)}, v7, s[{rA}:{rA+3}], 0 offen offset:{32*j}")
            self.tF3 = a.vm(f"buffer_load_dwordx2 {vr(self.F3T,2)}, v14, s[{rWS}:{rWS+3}], 0 offen sc1")
        else:
            a("s_barrier")
            self.stamp(9)
            self.srd(rA, pWO, 640 * 1280)
            a(f"s_mul_i32 s{T0}, s{sQB}, 160")
            for j in range(5):
                a(f"""v_add_u32 v8, {64*j}, v0
                v_mul_u32_u24 v9, 6554, v8
                v_lshrrev_b32 v9, 16, v9
                v_mul_u32_u24 v9, {1280-160}, v9
                v_lshl_add_u32 v9, v8, 4, v9
                v_add_u32 v9, s{T0}, v9""")
                a(f"v_subrev_u32 v{self.WOV+j}, {1024*j if j < 4 else 0}, v9")
            def piece(add):
                a(f"s_add_u32 s{T1}, s{sWAVE}, {add}\ns_mul_i32 s{T2}, s{T1}, 5120\ns_mul_i32 s{T1}, s{T1}, 40960\ns_add_u32 m0, s{T2}, {L_WO}\ns_nop 0")
                for j in range(4): a.vm(f"buffer_load_dwordx4 v{self.WOV+j}, s[{rA}:{rA+3}], s{T1} offen offset:{1024*j} lds")
                a(f"s_add_u32 m0, s{T2}, {L_WO + 4096}\ns_nop 0")
                a.vm(f"buffer_load_dwordx4 v{self.WOV+4}, s[{rA}:{rA+3}], s{T1} offen lds")
            L1, L2 = a.newlabel("YD"), a.newlabel("YDD")
            a(f"s_cmp_ge_u32 s{sWAVE}, 4\ns_cbranch_scc1 {L1}")
            snap = a.snapshot()
            piece(0); piece(8); piece(16)
            a(f"s_branch {L2}")
            a.label(L1)
            a.restore(snap)
            a.wait(self.tF3)
            LD = a.newlabel("F3OK")
            self.poll_check(self.F3T, 2)
            a(f"s_cbranch_scc1 {LD}")
            self.poll([(14, rWS, 0, 2)], self.F3T)
            a.label(LD)
            a(f"""s_mul_i32 s{T0}, s{sQB}, 80
            s_mul_i32 s{T1}, s{sLW}, 20
            s_add_u32 s{T0}, s{T0}, s{T1}
            v_lshrrev_b32 v8, 3, v0
            v_add_u32 v8, s{T0}, v8
            v_lshlrev_b32 v8, 12, v8
            v_and_b32 v9, 7, v0
            v_lshl_add_u32 v8, v9, 4, v8
            s_lshl_b32 s{T0}, s{sHEAD}, 7
            s_add_u32 s{T0}, s{T0}, {YD:#x}
            s_mul_i32 s{T1}, s{sLW}, 2560
            s_add_u32 m0, s{T1}, {L_YD}
            s_add_u32 s{T2}, s{T0}, {8*4096-1024}
            s_add_u32 s{T3}, s{T0}, {16*4096-2048}""")
            a.vm(f"buffer_load_dwordx4 v8, s[{rWS}:{rWS+3}], s{T0} offen sc1 lds")
            a.vm(f"buffer_load_dwordx4 v8, s[{rWS}:{rWS+3}], s{T2} offen offset:1024 sc1 lds")
            a("s_mov_b32 exec_hi, 0")
            a.vm(f"buffer_load_dwordx4 v8, s[{rWS}:{rWS+3}], s{T3} offen offset:2048 sc1 lds")
            a("s_mov_b32 exec_hi, -1")
            piece(0); piece(8)
            a.label(L2)
            a.reset_counters_vm_unknown = True

    def finish(self):
        a = self.a
        O = self.O_
        TMP = 64
        GA, ACC, OF, WF = 8, 236, 16, 64
        a(f"""s_lshl_b32 s{T0}, s{sHEAD}, 16
        s_lshl_b32 s{T1}, s{sQB}, 3
        s_add_u32 s{T1}, s{T1}, s{sWAVE}
        s_lshl_b32 s{T2}, s{T1}, 10
        s_add_u32 s{T0}, s{T0}, s{T2}
        s_add_u32 s{T0}, s{T0}, {OM:#x}
        s_lshl_b32 s{T2}, s{sHEAD}, 14
        s_lshl_b32 s{T1}, s{T1}, 8
        s_add_u32 s{T1}, s{T1}, s{T2}
        s_add_u32 s{T1}, s{T1}, {ORM:#x}
        v_lshlrev_b32 v3, 3, v0
        s_mov_b32 s{T2}, {f2u(2.0**-60):#x}
        s_mov_b32 s{T3}, {f2u(2.0**60):#x}
        s_mov_b32 s{T4}, 0x7f7fffff""")
        a.label("L_NORM")
        a(f"v_rcp_f32 v{TMP+4}, v{O+12}")
        for e in range(4): a(f"v_add_f32 v{TMP+e}, abs(v{O+e}), abs(v{O+4+e})")
        for e in range(4): a(f"v_add_f32 v{TMP+e}, v{TMP+e}, abs(v{O+8+e})")
        a(f"""v_add_f32 v{TMP}, v{TMP}, v{TMP+1}
        v_add_f32 v{TMP+2}, v{TMP+2}, v{TMP+3}
        v_cmp_le_f32 vcc, s{T2}, v{O+12}
        v_cmp_ge_f32 s[{sM}:{sM+1}], s{T3}, v{O+12}
        v_add_f32 v{TMP}, v{TMP}, v{TMP+2}
        s_nop 0
        s_and_b64 s[{sM}:{sM+1}], s[{sM}:{sM+1}], vcc
        v_cmp_ge_f32 vcc, s{T4}, v{TMP}
        s_nop 1
        s_and_b64 s[{sM}:{sM+1}], s[{sM}:{sM+1}], vcc
        s_cmp_eq_u64 s[{sM}:{sM+1}], exec
        s_cbranch_scc1 L_NORM_OK
        s_cmp_eq_u32 s{sSLOW}, 0
        s_cbranch_scc1 L_SLOW""")
        a.label("L_NORM_OK")
        for e in range(12): a(f"v_mul_f32 v{O+e}, v{O+e}, v{TMP+4}")
        for e in range(6): a(f"v_cvt_pk_bf16_f32 v{TMP+8+e}, v{O+2*e}, v{O+2*e+1}")
        a(f"buffer_store_dwordx4 {vr(TMP+8,4)}, v6, s[{rWS}:{rWS+3}], s{T0} offen sc1")
        a("s_mov_b32 exec_hi, 0")
        a(f"buffer_store_dwordx2 {vr(TMP+12,2)}, v3, s[{rWS}:{rWS+3}], s{T1} offen sc1")
        a("s_mov_b32 exec_hi, -1")
        a("s_waitcnt vmcnt(2)")
        a.reset_counters()
        for j in range(10):
            a(f"v_mfma_f32_16x16x32_bf16 {vr(GA,4)}, {vr(self.GW+4*j,4)}, {vr(self.GX+4*j,4)}, {'0' if j == 0 else vr(GA,4)}")
        WM0, WM1, WR0, WR1, AOM, AOR, AF4, AEX = 56, 57, 58, 59, 60, 61, 62, 63
        a(f"""v_lshrrev_b32 v2, 4, v0
        v_lshrrev_b32 v3, 2, v0
        v_and_b32 v3, 3, v3
        v_and_b32 v4, 3, v0
        v_lshlrev_b32 v4, 3, v4
        s_mul_i32 s{T2}, s{sKH}, {51200 + 96}
        s_mul_i32 s{T3}, s{sKH}, {51200 - 64}
        v_lshrrev_b32 v5, 1, v2
        v_mul_u32_u24 v5, 20, v5
        v_and_b32 v12, 1, v2
        v_lshl_add_u32 v5, v12, 2, v5
        v_add_u32 v5, v5, v3
        v_mul_u32_u24 v5, 160, v5
        v_add_u32 v5, v5, v4
        v_add_u32 v{WM0}, s{T2}, v5
        v_add_u32 v{WM1}, s{T3}, v5
        v_mul_u32_u24 v5, 20, v2
        v_add3_u32 v5, v5, v3, 16
        v_mul_u32_u24 v5, 160, v5
        v_add_u32 v5, v5, v4
        v_add_u32 v{WR0}, s{T2}, v5
        v_add_u32 v{WR1}, s{T3}, v5
        v_and_b32 v5, 15, v0
        s_lshl_b32 s{T2}, s{sKH}, 20
        s_lshl_b32 s{T3}, s{sHEAD}, 11
        s_add_u32 s{T2}, s{T2}, s{T3}
        s_lshr_b32 s{T3}, s{sTB}, 1
        s_lshl_b32 s{T4}, s{T3}, 10
        s_add_u32 s{T2}, s{T2}, s{T4}
        s_and_b32 s{T4}, s{sTB}, 1
        s_lshl_b32 s{T4}, s{T4}, 8
        s_add_u32 s{T2}, s{T2}, s{T4}
        s_add_u32 s{T2}, s{T2}, {OM:#x}
        v_lshrrev_b32 v13, 1, v2
        v_lshlrev_b32 v13, 16, v13
        v_lshl_add_u32 v13, v12, 9, v13
        v_lshl_add_u32 v13, v5, 4, v13
        v_add_u32 v{AOM}, s{T2}, v13
        s_lshl_b32 s{T2}, s{sKH}, 18
        s_lshl_b32 s{T4}, s{sHEAD}, 9
        s_add_u32 s{T2}, s{T2}, s{T4}
        s_lshl_b32 s{T4}, s{sTB}, 7
        s_add_u32 s{T2}, s{T2}, s{T4}
        s_add_u32 s{T2}, s{T2}, {ORM:#x}
        v_lshlrev_b32 v13, 14, v2
        v_lshl_add_u32 v13, v5, 3, v13
        v_add_u32 v{AOR}, s{T2}, v13
        s_lshl_b32 s{T2}, s{sHEAD}, 8
        s_lshl_b32 s{T4}, s{sKH}, 7
        s_add_u32 s{T2}, s{T2}, s{T4}
        s_lshl_b32 s{T3}, s{T3}, 2
        s_add_u32 s{T2}, s{T2}, s{T3}
        s_add_u32 s{T2}, s{T2}, {F4:#x}
        v_lshl_add_u32 v{AF4}, v5, 3, s{T2}""")
        a(f"""s_lshl_b32 s{T0}, s{sQB}, 10
        s_lshr_b32 s{T1}, s{sWAVE}, 1
        s_lshl_b32 s{T1}, s{T1}, 8
        s_add_u32 s{T0}, s{T0}, s{T1}
        s_lshl_b32 s{T1}, s{sHEAD}, 3
        s_add_u32 s{T0}, s{T0}, s{T1}
        s_and_b32 s{T1}, s{sWAVE}, 1
        s_lshl_b32 s{T1}, s{T1}, 2
        s_add_u32 s{T0}, s{T0}, s{T1}
        s_add_u32 s{T0}, s{T0}, {F4:#x}
        s_barrier""")
        def wfrag(step, regstep):
            toks = []
            for b in range(5):
                for q in range(2):
                    if step < 8: ad, off = (WM0 if b < 2 else WM1), (40*step + 8*q)*160 + 32*b
                    else: ad, off = (WR0 if b < 2 else WR1), (160*(step-8) + 80*q)*160 + 32*b
                    t = a.ds(f"ds_read_b64_tr_b16 {vr(WF + 20*regstep + 4*b + 2*q, 2)}, v{ad} offset:{L_WO + off}")
                toks.append(t)
            return toks
        tw = {0: wfrag(0, 0), 1: wfrag(1, 1)}
        a("s_waitcnt vmcnt(0)")
        self.flag_store(T0, 12)
        self.stamp(11)
        for s in range(2, 8): tw[s] = wfrag(s, s)
        self.poll([(AF4, rWS, 0, 1)], 12)
        self.stamp(12)
        to = {}
        for s in range(8):
            a(f"s_mov_b32 s{T0}, {s*131072}")
            to[s] = a.vm(f"buffer_load_dwordx4 {vr(OF+4*s,4)}, v{AOM}, s[{rWS}:{rWS+3}], s{T0} offen sc1")
        for rs in range(2):
            for q in range(2):
                a(f"s_mov_b32 s{T0}, {(8*rs+4*q)*16384}")
                to[8+rs] = a.vm(f"buffer_load_dwordx2 {vr(OF+32+4*rs+2*q,2)}, v{AOR}, s[{rWS}:{rWS+3}], s{T0} offen sc1")
        AYD, AX2 = 5, 15
        a(f"""s_lshl_b32 s{T0}, s{sWAVE}, 12
        s_add_u32 s{T0}, s{T0}, {L_EX}
        v_add_u32 v{AEX}, s{T0}, v6
        s_xor_b32 s{T0}, s{sWAVE}, 4
        s_lshl_b32 s{T0}, s{T0}, 12
        s_lshl_b32 s{T1}, s{sKH}, 10
        s_add_u32 s{T1}, s{T1}, s{T0}
        s_add_u32 s{T1}, s{T1}, {L_EX}
        v_add_u32 v{AX2}, s{T1}, v6
        s_add_u32 s{T0}, s{T0}, {L_EX}
        v_add_u32 v14, s{T0}, v6
        v_lshl_add_u32 v{AYD}, v2, 2, v3
        v_lshl_add_u32 v{AYD}, v{AYD}, 7, v4
        s_mul_i32 s{T0}, s{sKH}, {48*128}
        s_lshl_b32 s{T1}, s{sTB}, 5
        s_add_u32 s{T0}, s{T0}, s{T1}
        s_add_u32 s{T0}, s{T0}, {L_YD}
        v_add_u32 v{AYD}, s{T0}, v{AYD}""")
        self.srd(rA, pOUT, 2048 * 1280)
        for s in range(10):
            rs = s if s < 8 else s - 8
            a.wait(to[s])
            for b in range(5):
                a.wait(tw[s][b])
                d = ACC + 4*b
                a(f"v_mfma_f32_16x16x32_bf16 {vr(d,4)}, {vr(WF+20*rs+4*b,4)}, {vr(OF+4*s,4)}, {'0' if s == 0 else vr(d,4)}")
            if s < 2: tw[8+s] = wfrag(8 + s, s)
        self.stamp(13)
        YR = 64
        ty = [a.ds(f"ds_read_b64_tr_b16 {vr(YR+2*b,2)}, v{AYD} offset:{2048*b}") for b in range(3)]
        a.ds(f"ds_write_b32 v{AEX}, v{GA} offset:3072")
        a.nop(3)
        for b in (2, 3, 4): a.ds(f"ds_write_b128 v{AEX}, {vr(ACC+4*b,4)} offset:{1024*(b-2)}")
        BB = 96
        for b in range(3):
            a.wait(ty[b])
            x, y, t = self.XE + 2*b, YR + 2*b, BB + 4*b
            a(f"""v_lshlrev_b32 v72, 16, v{x}
            v_and_b32 v73, 0xffff0000, v{x}
            v_lshlrev_b32 v74, 16, v{x+1}
            v_and_b32 v75, 0xffff0000, v{x+1}
            v_lshlrev_b32 v76, 16, v{y}
            v_and_b32 v77, 0xffff0000, v{y}
            v_lshlrev_b32 v78, 16, v{y+1}
            v_and_b32 v79, 0xffff0000, v{y+1}""")
            for e in range(4): a(f"v_mul_f32 v{t+e}, v{72+e}, v{76+e}")
        a.wait_all(vm=False)
        a("s_barrier")
        tg = a.ds(f"ds_read_b32 v9, v14 offset:3072")
        tp = [a.ds(f"ds_read_b128 {vr(80+4*b,4)}, v{AX2} offset:{1024*b}") for b in range(3)]
        a.wait(tg)
        a(f"""v_add_f32 v8, v8, v9
        v_mul_f32 v8, {f2u(-math.log2(math.e)):#x}, v8
        v_exp_f32 v8, v8
        s_nop 0
        v_add_f32 v8, 1.0, v8
        v_rcp_f32 v8, v8""")
        for b in range(3):
            if b == 2: a(f"s_cmp_lg_u32 s{sKH}, 0\ns_cbranch_scc1 L_FIN")
            a.wait(tp[b])
            for e in range(4): a(f"v_add_f32 v{80+4*b+e}, v{80+4*b+e}, v{ACC+4*b+e}")
            for e in range(4): a(f"v_sub_f32 v{80+4*b+e}, v{80+4*b+e}, v{BB+4*b+e}")
            for e in range(4): a(f"v_fmac_f32 v{BB+4*b+e}, v8, v{80+4*b+e}")
            a(f"v_cvt_pk_bf16_f32 v{72+2*b}, v{BB+4*b}, v{BB+4*b+1}\nv_cvt_pk_bf16_f32 v{73+2*b}, v{BB+4*b+2}, v{BB+4*b+3}")
            a.vm(f"buffer_store_dwordx2 {vr(72+2*b,2)}, v7, s[{rA}:{rA+3}], 0 offen offset:{32*b}")
        a.label("L_FIN")
        if self.stamps:
            a("s_waitcnt vmcnt(0)")
            self.stamp(14)
            a(f"s_lshl_b32 s{T0}, s{sWG}, 3\ns_add_u32 s{T0}, s{T0}, s{sWAVE}\ns_lshl_b32 s{T0}, s{T0}, 6\ns_add_u32 s{T0}, s{T0}, {TS:#x}\nv_mov_b32 v1, s{T0}\ns_mov_b64 exec, 1")
            for k in range(15):
                a(f"v_mov_b32 v2, s{82+k}\nbuffer_store_dword v2, v1, s[{rWS}:{rWS+3}], 0 offen offset:{4*k}")
        a.label("L_END")
        a("s_endpgm")

    def slow(self):
        a = self.a
        S, V, M = self.S_, self.VS[0], 96
        a.label("L_SLOW")
        a(f"""s_mov_b32 s{sSLOW}, 1
        s_mul_i32 s{T5}, s{sHEAD}, {KV_HS}
        v_lshlrev_b32 v{self.AKM}, 3, v0
        v_and_b32 v9, 31, v0
        v_lshrrev_b32 v10, 5, v0
        v_mul_u32_u24 v10, 320, v10
        v_lshl_add_u32 v10, v9, 4, v10
        v_add_u32 v{self.AV}, 2560, v10
        v_mov_b32 v{M}, 0xff800000""")
        def scores():
            a(f"""buffer_load_dwordx2 {vr(self.KRM,2)}, v{self.AKM}, s[{rWS}:{rWS+3}], s{T6} offen offset:2048 sc1
            buffer_load_dwordx4 {vr(self.KM,4)}, v6, s[{rWS}:{rWS+3}], s{T6} offen sc1
            buffer_load_dwordx4 {vr(self.KM+4,4)}, v6, s[{rWS}:{rWS+3}], s{T6} offen offset:1024 sc1
            s_waitcnt vmcnt(0)""")
            self.m2b(S); a.nop(18); self.mqk(S, 0); self.mqk(S, 1); a.nop(12)
        a(f"s_mov_b32 s{T6}, s{T5}\ns_mov_b32 s{sCNT}, 0")
        a.label("L_SLOW1")
        scores()
        for e in range(16): a(f"v_max3_f32 v{M}, v{M}, v{S+2*e}, v{S+2*e+1}")
        a(f"s_add_u32 s{T6}, s{T6}, {KV_US}\ns_add_u32 s{sCNT}, s{sCNT}, 1\ns_cmp_lt_u32 s{sCNT}, 32\ns_cbranch_scc1 L_SLOW1")
        a(f"v_mov_b32 v{M+1}, v{M}\ns_nop 1\nv_permlane32_swap_b32 v{M}, v{M+1}\ns_nop 1\nv_max_f32 v{M}, v{M}, v{M+1}")
        for e in range(16): a(f"v_mov_b32 v{self.O_+e}, 0")
        a(f"s_mov_b32 s{T6}, s{T5}\ns_mov_b32 s{sCNT}, 0")
        a.label("L_SLOW2")
        a(f"s_mov_b64 exec, s[{sVMASK}:{sVMASK+1}]")
        for g in range(4): a(f"buffer_load_dwordx4 {vr(V+4*g,4)}, v{self.AV}, s[{rWS}:{rWS+3}], s{T6} offen offset:{640*g} sc1")
        a("s_mov_b64 exec, -1")
        scores()
        for e in range(32): a(f"v_sub_f32 v{S+e}, v{S+e}, v{M}")
        for e in range(32): a(f"v_exp_f32 v{S+e}, v{S+e}")
        a.nop(2)
        for g in range(4): self.smf(V + 4*g, S + 8*g)
        a(f"s_add_u32 s{T6}, s{T6}, {KV_US}\ns_add_u32 s{sCNT}, s{sCNT}, 1\ns_cmp_lt_u32 s{sCNT}, 32\ns_cbranch_scc1 L_SLOW2")
        a(f"v_lshlrev_b32 v3, 3, v0")
        a.nop(12)
        a("s_branch L_NORM")

    def build(self):
        self.prologue(); self.gemm_compute(); self.loader(); self.attention(); self.finish(); self.slow()
        bad = lint(self.a.lines)
        head = f"""; Fused kernel: QKV projection, depthwise convolutions, attention, output projection and gated mix.
; @launch grid=(256,1,1) block=(512,1,1) lds={LDS_BYTES}
.amdgcn_target "amdgcn-amd-amdhsa--gfx950"
.text
.globl {NAME}
.p2align 8
.type {NAME},@function
{NAME}:
"""
        tail = f""".section .rodata,"a"
.p2align 6
.amdhsa_kernel {NAME}
  .amdhsa_next_free_vgpr 256
  .amdhsa_next_free_sgpr 102
  .amdhsa_accum_offset 256
  .amdhsa_group_segment_fixed_size 0
  .amdhsa_kernarg_size 104
  .amdhsa_user_sgpr_count 2
  .amdhsa_user_sgpr_kernarg_segment_ptr 1
  .amdhsa_system_sgpr_workgroup_id_x 1
  .amdhsa_float_denorm_mode_32 3
.end_amdhsa_kernel
"""
        return head + self.a.text() + tail, bad

if __name__ == "__main__":
    out = sys.argv[1] if len(sys.argv) > 1 else "gated_mix__mha_block__ssm_conv_h3__prompt.s"
    src, bad = Gen(stamps="--stamps" in sys.argv).build()
    for b in bad: print("LINT:", b)
    open(out, "w").write(src)
    print("wrote", out, len(src), "bytes;", len(bad), "lint findings")
```

```python
import sys, math, struct
from asmlib import *

NAME = "gated_mix__mha_block__ssm_conv_h3__prompt_kernel"
def f2u(x): return struct.unpack("<I", struct.pack("<f", x))[0]

KV, QO, UR, YD, OM, ORM = 0, 0x500000, 0x780000, 0xA00000, 0xC80000, 0xE80000
F1, F2, F3, F4 = 0xF00000, 0xF01000, 0xF02000, 0xF03000
TS = 0xF10000
WS_SIZE = 0x1000000
KV_HS, KV_US = 163840, 5120
Q_HS, Q_US = 81920, 2560
L_X, L_W = 0, 49152
L_Q = 81920
L_CONV, CONV_SZ, CS, U_OFF = 98304, 21248, 4160, 16640
L_WO, L_YD, L_EX = 0, 102400, 112640
LDS_BYTES = 163840
sWG, sWAVE = 2, 3
pX, pW, pWO, pWS, pK, pV, pSH, pH, pD, pGW, pOUT, pDBG = 4, 6, 8, 10, 12, 14, 16, 18, 20, 22, 24, 26
rWS, rA, rB, rC, rD = 28, 32, 36, 40, 44
sXCD, sI, sJT, sRT, sPRT, sCJ, sCH0, sNCH, sHEAD, sQB = 48, 49, 50, 51, 52, 53, 54, 55, 56, 57
sLW, sCH, sKH, sTB, sCNT, sSLOW = 58, 59, 60, 61, 62, 63
T0, T1, T2, T3, T4, T5, T6, T7 = 64, 65, 66, 67, 68, 69, 70, 71
sM, sM2 = 72, 74
sVMASK = 76
sTS = 80
POLL_MAX = 30000

class Gen:
    def __init__(self, stamps=False, opt=None):
        self.a = Asm(); self.stamps = stamps; self.names = []; self.opt = opt or {}
    def srd(self, r, p, size):
        self.a(f"s_mov_b32 s{r}, s{p}\ns_mov_b32 s{r+1}, s{p+1}\ns_mov_b32 s{r+2}, {size:#x}\ns_mov_b32 s{r+3}, 0x20000")
    def stamp(self, name):
        if not self.stamps: return
        if name not in self.names: self.names.append(name)
        k = self.names.index(name); assert k < 62
        self.a(f"s_memrealtime s[{sTS}:{sTS+1}]\ns_waitcnt lgkmcnt(0)\nv_writelane_b32 v1, s{sTS}, {k}")
        if name == "start": self.a(f"s_memtime s[{sTS}:{sTS+1}]\ns_waitcnt lgkmcnt(0)\nv_writelane_b32 v1, s{sTS}, 62")
        if name == "end": self.a(f"s_memtime s[{sTS}:{sTS+1}]\ns_waitcnt lgkmcnt(0)\nv_writelane_b32 v1, s{sTS}, 63")
        self.a.done["ds"] = self.a.n["ds"]
    def poll(self, loads, tmp, cmp=None):
        a = self.a
        L, D = a.newlabel("POLL"), a.newlabel("POLLD")
        a(f"s_mov_b32 s{sCNT}, 0")
        a.label(L)
        k = 0
        for (va, r, imm, wd) in loads:
            ins = {1: "buffer_load_dword", 2: "buffer_load_dwordx2"}[wd]
            a(f"{ins} {vr(tmp+k, wd)}, v{va}, s[{r}:{r+3}], 0 offen offset:{imm} sc1"); k += wd
        a("s_waitcnt vmcnt(0)")
        a.done["vm"] = a.n["vm"]
        self.poll_check(tmp, k, cmp)
        a(f"s_cbranch_scc1 {D}")
        a(f"s_add_u32 s{sCNT}, s{sCNT}, 1\ns_cmp_lt_u32 s{sCNT}, {POLL_MAX}\ns_cbranch_scc0 {D}\ns_sleep 1\ns_branch {L}")
        a.label(D)
    def poll_check(self, tmp, k, cmp=None):
        a = self.a
        for j in range(1, k): a(f"v_min_u32 v{tmp}, v{tmp}, v{tmp+j}")
        a(cmp or f"v_cmp_ne_u32 vcc, 0, v{tmp}")
        a("s_nop 1\ns_cmp_eq_u64 vcc, exec")
    def flag_store(self, soff_expr_sreg, vt):
        a = self.a
        a(f"v_mov_b32 v{vt}, s{soff_expr_sreg}\nv_mov_b32 v{vt+1}, 1\ns_mov_b64 exec, 1")
        t = a.vm(f"buffer_store_dword v{vt+1}, v{vt}, s[{rWS}:{rWS+3}], 0 offen sc1")
        a("s_mov_b64 exec, -1")
        return t

    def prologue(self):
        a = self.a
        a(f"s_cmp_ge_u32 s{sWG}, 256\ns_cbranch_scc1 L_END")
        a(f"""s_load_dwordx4 s[4:7], s[0:1], 0
        s_load_dwordx2 s[8:9], s[0:1], 16
        s_load_dwordx2 s[10:11], s[0:1], 96
        s_load_dwordx16 s[12:27], s[0:1], 32
        v_lshrrev_b32 v1, 6, v0
        v_and_b32 v0, 63, v0
        s_and_b32 s{sXCD}, s{sWG}, 7
        v_readfirstlane_b32 s{sWAVE}, v1
        s_lshr_b32 s{sI}, s{sWG}, 3
        s_and_b32 s{T0}, s{sXCD}, 1
        s_mul_i32 s{T0}, s{T0}, 30
        s_add_u32 s{T0}, s{T0}, s{sI}
        s_lshr_b32 s{sJT}, s{T0}, 2
        s_and_b32 s{T0}, s{T0}, 3
        s_lshr_b32 s{T1}, s{sXCD}, 1
        s_lshl_b32 s{T1}, s{T1}, 2
        s_add_u32 s{sRT}, s{T0}, s{T1}
        s_lshr_b32 s{T0}, s{sI}, 4
        s_lshl_b32 s{T1}, s{sXCD}, 1
        s_add_u32 s{sPRT}, s{T0}, s{T1}
        s_and_b32 s{sCJ}, s{sI}, 15
        s_lshr_b32 s{T0}, s{sWG}, 1
        s_mul_i32 s{T0}, s{T0}, 5
        s_and_b32 s{T1}, s{sWG}, 1
        s_mul_i32 s{T2}, s{T1}, 3
        s_add_u32 s{sCH0}, s{T0}, s{T2}
        s_sub_u32 s{sNCH}, 3, s{T1}
        s_lshr_b32 s{T0}, s{sI}, 3
        s_lshl_b32 s{T1}, s{sXCD}, 2
        s_add_u32 s{sHEAD}, s{T0}, s{T1}
        s_and_b32 s{sQB}, s{sI}, 7
        s_lshr_b32 s{sKH}, s{sWAVE}, 2
        s_and_b32 s{sTB}, s{sWAVE}, 3
        s_mov_b32 s{sSLOW}, 0
        s_mov_b32 s{sVMASK}, 0x000fffff
        s_mov_b32 s{sVMASK+1}, 0x000fffff
        s_waitcnt lgkmcnt(0)""")
        self.srd(rWS, pWS, WS_SIZE)
        if self.stamps: a("v_mov_b32 v1, 0")
        self.stamp("start")
        a(f"s_cmp_ge_u32 s{sWAVE}, 4\ns_cbranch_scc1 L_LOADER")

    def flag_reset(self):
        a = self.a
        L = a.newlabel("NOZ")
        a(f"s_cmp_lg_u32 s{sWAVE}, 0\ns_cbranch_scc1 {L}")
        a(f"""s_lshl_b32 s{T0}, s{sCJ}, 8
        s_lshl_b32 s{T1}, s{sPRT}, 4
        s_add_u32 s{T0}, s{T0}, s{T1}
        s_add_u32 s{T0}, s{T0}, {F1:#x}
        v_and_b32 v10, 3, v0
        v_lshlrev_b32 v11, 2, v10
        v_add_u32 v12, s{T0}, v11""")
        a(f"""s_lshl_b32 s{T0}, s{sJT}, 8
        s_lshl_b32 s{T1}, s{sRT}, 3
        s_add_u32 s{T0}, s{T0}, s{T1}
        s_add_u32 s{T0}, s{T0}, {F2:#x}
        v_and_b32 v13, 2, v0
        v_lshlrev_b32 v13, 6, v13
        v_and_b32 v14, 1, v0
        v_lshlrev_b32 v14, 2, v14
        v_add3_u32 v13, v13, v14, s{T0}
        s_cmp_lt_u32 s{sI}, 30
        s_cselect_b32 s{sM}, 0xf0, 0
        s_mov_b32 s{sM+1}, 0
        s_nop 0
        v_cndmask_b32 v12, v12, v13, s[{sM}:{sM+1}]""")
        a(f"""s_lshl_b32 s{T0}, s{sCH0}, 2
        s_add_u32 s{T0}, s{T0}, {F3:#x}
        v_add_u32 v13, s{T0}, v11
        s_mov_b32 s{sM}, 0x300
        s_cmp_eq_u32 s{sNCH}, 3
        s_cselect_b32 s{sM}, 0x700, s{sM}
        s_nop 0
        v_cndmask_b32 v12, v12, v13, s[{sM}:{sM+1}]""")
        a(f"""s_lshl_b32 s{T0}, s{sQB}, 10
        s_lshl_b32 s{T1}, s{sHEAD}, 3
        s_add_u32 s{T0}, s{T0}, s{T1}
        s_add_u32 s{T0}, s{T0}, {F4:#x}
        v_and_b32 v13, 6, v0
        v_lshlrev_b32 v13, 7, v13
        v_add3_u32 v13, v13, v14, s{T0}
        s_mov_b32 s{sM}, 0xff0000
        s_nop 0
        v_cndmask_b32 v12, v12, v13, s[{sM}:{sM+1}]
        v_mov_b32 v13, 0
        s_mov_b32 exec_lo, 0xffffff
        s_mov_b32 exec_hi, 0
        buffer_store_dword v13, v12, s[{rWS}:{rWS+3}], 0 offen sc1
        s_mov_b64 exec, 1""")
        self.srd(rA, pDBG, 256)
        a(f"""s_and_b32 s{T0}, s{sWG}, 1
        s_lshl_b32 s{T0}, s{T0}, 7
        v_mov_b32 v12, s{T0}
        v_mov_b32 v13, 1
        s_waitcnt vmcnt(0)
        buffer_atomic_add v13, v12, s[{rA}:{rA+3}], 0 offen sc1
        s_mov_b64 exec, -1""")
        a.label(L)

    def gemm_compute(self):
        a = self.a
        XA, WA = 2, 6
        a(f"""s_and_b32 s{T0}, s{sWAVE}, 1
        s_lshl_b32 s{T0}, s{T0}, 13
        v_and_b32 v8, 31, v0
        v_lshrrev_b32 v9, 5, v0
        v_lshrrev_b32 v10, 1, v8
        v_and_b32 v10, 7, v10
        v_xor_b32 v10, v10, v9
        v_lshlrev_b32 v8, 7, v8
        v_add_u32 v8, s{T0}, v8""")
        for ks in range(4):
            a(f"v_xor_b32 v11, {2*ks}, v10\nv_lshl_add_u32 v{XA+ks}, v11, 4, v8")
        a(f"""v_lshrrev_b32 v8, 2, v0
        v_and_b32 v8, 3, v8
        v_lshrrev_b32 v9, 5, v0
        v_lshl_add_u32 v9, v9, 3, v8
        v_lshlrev_b32 v9, 8, v9
        v_lshrrev_b32 v10, 4, v0
        v_and_b32 v10, 1, v10
        v_lshlrev_b32 v10, 1, v10
        v_lshrrev_b32 v11, 1, v0
        v_and_b32 v11, 1, v11
        v_or_b32 v10, v10, v11
        v_and_b32 v11, 1, v0
        v_lshlrev_b32 v11, 3, v11
        v_add_u32 v9, v9, v11
        v_add_u32 v9, {L_W}, v9
        s_and_b32 s{T0}, s{sWAVE}, 2""")
        for i in range(2):
            a(f"""s_add_u32 s{T1}, s{T0}, {i}
            v_xor_b32 v11, s{T1}, v8
            v_lshl_add_u32 v11, v11, 2, v10
            v_lshl_add_u32 v{WA+i}, v11, 4, v9""")
        self.flag_reset()
        a(f"s_cmp_ge_u32 s{sI}, 30\ns_cbranch_scc1 L_C_NOTILE")
        a(f"s_cmp_ge_u32 s{sJT}, 10\ns_cbranch_scc1 L_C_VTILE")
        self.gemm_loop(False)
        self.gemm_epi_qk()
        a("s_branch L_C_FLAG")
        a.label("L_C_VTILE")
        self.gemm_loop(True)
        self.gemm_epi_v()
        a.label("L_C_FLAG")
        a.reset_counters()
        self.stamp("c.epi")
        a(f"""s_lshl_b32 s{T0}, s{sJT}, 8
        s_and_b32 s{T1}, s{sWAVE}, 2
        s_lshl_b32 s{T1}, s{T1}, 6
        s_add_u32 s{T0}, s{T0}, s{T1}
        s_lshl_b32 s{T1}, s{sRT}, 3
        s_add_u32 s{T0}, s{T0}, s{T1}
        s_and_b32 s{T1}, s{sWAVE}, 1
        s_lshl_b32 s{T1}, s{T1}, 2
        s_add_u32 s{T0}, s{T0}, s{T1}
        s_add_u32 s{T0}, s{T0}, {F2:#x}
        s_waitcnt vmcnt(0)""")
        self.flag_store(T0, 8)
        self.stamp("c.F2set")
        a("s_branch L_C_POLL")
        a.label("L_C_NOTILE")
        a("s_barrier\ns_barrier")
        a.label("L_C_POLL")
        a.reset_counters()
        a(f"""s_mul_i32 s{T0}, s{sHEAD}, 20
        v_lshrrev_b32 v8, 5, v0
        v_mul_u32_u24 v8, 19, v8
        v_add_u32 v8, s{T0}, v8
        v_lshrrev_b32 v8, 6, v8
        v_lshlrev_b32 v8, 7, v8
        v_and_b32 v9, 31, v0
        v_lshl_add_u32 v8, v9, 2, v8
        v_add_u32 v8, {F2:#x}, v8""")
        self.poll([(8, rWS, 0, 1), (8, rWS, 1280, 1), (8, rWS, 2560, 1)], 10)
        self.stamp("c.F2ok")
        a(f"""v_lshlrev_b32 v6, 4, v0
        s_mul_i32 s{T0}, s{sHEAD}, {Q_HS}
        s_lshl_b32 s{T1}, s{sQB}, 2
        s_add_u32 s{T1}, s{T1}, s{sWAVE}
        s_mul_i32 s{T1}, s{T1}, {Q_US}
        s_add_u32 s{T0}, s{T0}, s{T1}
        s_add_u32 s{T0}, s{T0}, {QO:#x}
        s_mul_i32 s{T1}, s{sWAVE}, {Q_US}
        s_add_u32 m0, s{T1}, {L_Q}
        s_mul_i32 s{T2}, s{sHEAD}, {KV_HS}""")
        a.vm(f"buffer_load_dwordx4 v6, s[{rWS}:{rWS+3}], s{T0} offen sc1 lds")
        a.vm(f"buffer_load_dwordx4 v6, s[{rWS}:{rWS+3}], s{T0} offen offset:1024 sc1 lds")
        a("s_mov_b32 exec_hi, 0")
        a.vm(f"buffer_load_dwordx4 v6, s[{rWS}:{rWS+3}], s{T0} offen offset:2048 sc1 lds")
        a("s_mov_b32 exec_hi, -1")
        a(f"s_mul_i32 s{T3}, s{sWAVE}, {KV_US}")
        toks = []
        for k in range(4):
            toks.append(self.kv_unit_dma(T2, T3, 4 * k * KV_US))
        a.wait(toks[1])
        self.stamp("c.kv0")
        a("s_branch L_ATT")

    def kv_unit_dma(self, sBase, sOff, add):
        a = self.a
        a(f"s_add_u32 s{T4}, s{sOff}, {add}\ns_mov_b32 m0, s{T4}\ns_add_u32 s{T5}, s{T4}, s{sBase}")
        for j in range(4):
            a.vm(f"buffer_load_dwordx4 v6, s[{rWS}:{rWS+3}], s{T5} offen offset:{1024*j} sc1 lds")
        a(f"s_add_u32 m0, s{T4}, 4096\ns_add_u32 s{T5}, s{T5}, 4096")
        return a.vm(f"buffer_load_dwordx4 v6, s[{rWS}:{rWS+3}], s{T5} offen sc1 lds")

    def gemm_loop(self, vt):
        a = self.a
        a.reset_counters()
        XA, WA, FR, ACC = 2, 6, 32, 64
        def reads(s, ks):
            st = FR + 16 * (ks & 1); sl = (s % 3) * 16384
            rx = lambda j: (lambda: a.ds(f"ds_read_b128 {vr(st+4*j,4)}, v{XA+ks} offset:{sl + 4096*j}"))
            rw = lambda i, q: (lambda: a.ds(f"ds_read_b64_tr_b16 {vr(st+8+4*i+2*q,2)}, v{WA+i} offset:{sl + (16*ks+4*q)*256}"))
            if vt: return [("X0", rx(0)), ("W0", rw(0,0)), ("W0", rw(0,1)), ("W1", rw(1,0)), ("W1", rw(1,1)), ("X1", rx(1))]
            return [("W0", rw(0,0)), ("W0", rw(0,1)), ("X0", rx(0)), ("X1", rx(1)), ("W1", rw(1,0)), ("W1", rw(1,1))]
        def group(ks, toks, nxt, first):
            st = FR + 16 * (ks & 1); out = {}
            sched = [3, 3, 0, 0]; k = 0
            for m, (i, j) in enumerate(((0,0),(0,1),(1,0),(1,1))):
                if vt: A, B, na, nb = st + 4*i, st + 8 + 4*j, f"X{i}", f"W{j}"
                else:  A, B, na, nb = st + 8 + 4*i, st + 4*j, f"W{i}", f"X{j}"
                a.wait(toks[na], toks[nb])
                d = ACC + 16 * (2*i + j)
                a(f"v_mfma_f32_32x32x16_bf16 {vr(d,16)}, {vr(A,4)}, {vr(B,4)}, {'0' if first else vr(d,16)}")
                for _ in range(sched[m]):
                    if k < len(nxt): out[nxt[k][0]] = nxt[k][1](); k += 1
            return out
        a("s_barrier")
        pass
        toks = {}
        for n, f in reads(0, 0): toks[n] = f()
        for s in range(10):
            for ks in range(4):
                if ks < 3:
                    toks = group(ks, toks, reads(s, ks + 1), s == 0 and ks == 0)
                else:
                    a.wait_all(vm=False); a("s_barrier")
                    toks = group(ks, toks, reads(s + 1, 0) if s < 9 else [], False)

    def gemm_epi_qk(self):
        a = self.a
        ACC = 64
        sBASE, sHS, sSC, sPQ = T0, T1, T2, T3
        c = math.log2(math.e) / math.sqrt(20.0)
        a(f"""s_mov_b32 s{sHS}, {Q_HS}
        s_mov_b32 s{T4}, {Q_US}
        s_cmp_ge_u32 s{sJT}, 5
        s_cselect_b32 s{sHS}, {KV_HS}, s{sHS}
        s_cselect_b32 s{T4}, {KV_US}, s{T4}
        s_cselect_b32 s{sBASE}, {KV}, {QO:#x}
        s_cselect_b32 s{sSC}, 1.0, {f2u(c):#x}
        s_cselect_b32 s{T5}, 5, 0
        s_cselect_b64 s[{sM}:{sM+1}], -1, 0
        s_sub_u32 s{T5}, s{sJT}, s{T5}
        s_lshl_b32 s{sPQ}, s{T5}, 4
        s_and_b32 s{T5}, s{sWAVE}, 2
        s_lshl_b32 s{T5}, s{T5}, 2
        s_add_u32 s{sPQ}, s{sPQ}, s{T5}
        s_lshl_b32 s{T5}, s{sRT}, 1
        s_and_b32 s{T6}, s{sWAVE}, 1
        s_add_u32 s{T5}, s{T5}, s{T6}
        s_mul_i32 s{T5}, s{T5}, s{T4}
        s_add_u32 s{sBASE}, s{sBASE}, s{T5}
        v_and_b32 v8, 31, v0
        v_and_b32 v9, 0x13, v0
        v_and_b32 v10, 4, v0
        v_lshl_or_b32 v9, v10, 1, v9
        v_and_b32 v10, 8, v0
        v_lshrrev_b32 v10, 1, v10
        v_or_b32 v9, v9, v10
        v_cndmask_b32 v8, v8, v9, s[{sM}:{sM+1}]
        v_lshrrev_b32 v9, 5, v0
        v_lshlrev_b32 v10, 3, v9
        v_lshl_add_u32 v2, v8, 4, v10
        v_add_u32 v3, 1024, v2
        v_mul_lo_u32 v10, v9, s{sHS}
        v_lshl_add_u32 v4, v8, 3, v10
        v_add_u32 v4, 1024, v4
        v_add_u32 v5, 256, v4""")
        k = 0
        for i in range(2):
            for g in range(4):
                a(f"""s_add_u32 s{T4}, s{sPQ}, {4*i+g}
                s_mul_i32 s{T5}, s{T4}, 205
                s_lshr_b32 s{T5}, s{T5}, 10
                s_mul_i32 s{T6}, s{T5}, 5
                s_sub_u32 s{T4}, s{T4}, s{T6}
                s_lshl_b32 s{T5}, s{T5}, 1
                s_mul_i32 s{T5}, s{T5}, s{sHS}
                s_add_u32 s{T5}, s{T5}, s{sBASE}
                s_lshl_b32 s{T6}, s{T4}, 9
                s_add_u32 s{T5}, s{T5}, s{T6}
                s_sub_u32 s{T6}, s{sHS}, 1536
                s_cmp_ge_u32 s{T4}, 3
                s_cselect_b32 s{T6}, s{T6}, 0
                s_add_u32 s{T7}, s{T5}, s{T6}
                s_cmp_eq_u32 s{T4}, 2
                s_cselect_b64 s[{sM}:{sM+1}], -1, 0""")
                for j in range(2):
                    d = ACC + 16 * (2*i + j) + 4*g
                    t = 8 + 4 * (k % 6); k += 1
                    for e in range(4): a(f"v_mul_f32 v{d+e}, s{sSC}, v{d+e}")
                    a(f"v_cndmask_b32 v{t+2}, v{2+j}, v{4+j}, s[{sM}:{sM+1}]")
                    a(f"v_cvt_pk_bf16_f32 v{t}, v{d}, v{d+1}\nv_cvt_pk_bf16_f32 v{t+1}, v{d+2}, v{d+3}")
                    a.vm(f"buffer_store_dwordx2 {vr(t,2)}, v{t+2}, s[{rWS}:{rWS+3}], s{T7} offen sc1")

    def gemm_epi_v(self):
        a = self.a
        ACC = 64
        a(f"""s_sub_u32 s{T0}, s{sJT}, 10
        s_lshl_b32 s{T0}, s{T0}, 7
        s_and_b32 s{T1}, s{sWAVE}, 2
        s_lshl_b32 s{T1}, s{T1}, 5
        s_add_u32 s{T0}, s{T0}, s{T1}
        s_lshl_b32 s{T1}, s{sRT}, 1
        s_and_b32 s{T2}, s{sWAVE}, 1
        s_add_u32 s{T1}, s{T1}, s{T2}
        s_mul_i32 s{T1}, s{T1}, {KV_US}
        s_add_u32 s{T1}, s{T1}, {KV + 2560}
        s_mov_b32 s{T2}, {KV_HS - 320}
        v_and_b32 v8, 31, v0
        v_lshrrev_b32 v9, 5, v0
        v_mul_u32_u24 v9, 320, v9""")
        for j in range(2):
            a(f"""v_add_u32 v10, s{T0}, v8
            v_add_u32 v10, {32*j}, v10
            v_mul_u32_u24 v11, 3277, v10
            v_lshrrev_b32 v11, 16, v11
            v_mul_lo_u32 v11, v11, s{T2}
            v_lshl_add_u32 v10, v10, 4, v9
            v_add_u32 v{2+j}, v10, v11""")
        k = 0
        for i in range(2):
            for j in range(2):
                for s in range(2):
                    d = ACC + 16 * (2*i + j) + 8*s
                    t = 8 + 4 * (k % 6); k += 1
                    for e in range(4): a(f"v_cvt_pk_bf16_f32 v{t+e}, v{d+2*e}, v{d+2*e+1}")
                    a.vm(f"buffer_store_dwordx4 {vr(t,4)}, v{2+j}, s[{rWS}:{rWS+3}], s{T1} offen offset:{(2*i+s)*640} sc1")

    XS, WS_, PA, PB, PW, PS, HA, HL = 2, 6, 10, 11, 12, 13, 14, 15
    KR_, VV_, SW_, HD_, DV_, PO_ = 16, 44, 60, 128, 152, 160
    def loader_setup(self):
        a = self.a
        a(f"s_sub_u32 s{sLW}, s{sWAVE}, 4")
        self.srd(rA, pX, 2048 * 1280); self.srd(rB, pW, 640 * 3840)
        a(f"""v_lshrrev_b32 v16, 3, v0
        v_and_b32 v17, 7, v0
        v_lshrrev_b32 v18, 1, v16
        s_lshl_b32 s{T0}, s{sRT}, 7
        s_lshl_b32 s{T1}, s{sLW}, 5
        s_add_u32 s{T0}, s{T0}, s{T1}
        v_add_u32 v16, s{T0}, v16
        v_mul_u32_u24 v16, 1280, v16""")
        for n in range(4):
            a(f"""v_xor_b32 v19, {(4*n) & 7}, v18
            v_xor_b32 v19, v19, v17
            v_lshl_add_u32 v19, v19, 4, v16
            v_add_u32 v{self.XS+n}, {n*(8*1280-1024)}, v19""")
        a(f"""v_lshrrev_b32 v16, 4, v0
        v_and_b32 v17, 15, v0
        v_lshlrev_b32 v18, 2, v16
        v_xor_b32 v17, v17, v18
        s_lshl_b32 s{T0}, s{sLW}, 4
        v_add_u32 v16, s{T0}, v16
        v_mul_u32_u24 v16, 3840, v16
        v_lshl_add_u32 v16, v17, 4, v16
        s_lshl_b32 s{T0}, s{sJT}, 8
        v_add_u32 v{self.WS_}, s{T0}, v16""")
        for n in range(1, 4): a(f"v_add_u32 v{self.WS_+n}, {n*(4*3840-1024)}, v{self.WS_}")
        a(f"s_lshl_b32 s{T7}, s{sLW}, 12")
    def stage_dma(self, s):
        a = self.a
        sl = (s % 3) * 16384
        a(f"s_add_u32 m0, s{T7}, {L_X + sl}\ns_mov_b32 s{T0}, {128*s}")
        for n in range(4): a.vm(f"buffer_load_dwordx4 v{self.XS+n}, s[{rA}:{rA+3}], s{T0} offen offset:{1024*n} lds")
        a(f"s_add_u32 m0, s{T7}, {L_W + sl}\ns_mov_b32 s{T0}, {64*3840*s}")
        for n in range(4): t = a.vm(f"buffer_load_dwordx4 v{self.WS_+n}, s[{rB}:{rB+3}], s{T0} offen offset:{1024*n} lds")
        return t
    def pre_loads(self):
        a = self.a
        a(f"""v_mul_u32_u24 v16, 52, v0
        v_lshrrev_b32 v16, 8, v16
        v_mul_u32_u24 v17, 5, v16
        v_sub_u32 v17, v0, v17
        s_lshl_b32 s{T0}, s{sPRT}, 7
        s_lshl_b32 s{T1}, s{sLW}, 5
        s_add_u32 s{T0}, s{T0}, s{T1}
        v_lshl_add_u32 v16, v16, 2, s{T0}
        s_mul_i32 s{T1}, s{sCJ}, 80
        v_lshl_add_u32 v18, v17, 4, s{T1}
        v_mul_u32_u24 v19, 1280, v16
        v_add_u32 v{self.PB}, v19, v18
        v_subrev_u32 v{self.PA}, 3840, v{self.PB}
        v_lshlrev_b32 v{self.PW}, 2, v18
        v_lshlrev_b32 v18, 11, v18
        v_lshlrev_b32 v16, 1, v16
        v_sub_u32 v18, v18, v16
        v_add_u32 v{self.PS}, {UR + 4088:#x}, v18
        s_min_u32 s{T0}, s{sLW}, 2
        s_add_u32 s{sCH}, s{sCH0}, s{T0}
        s_min_u32 s{sCH}, s{sCH}, 639
        s_lshl_b32 s{T1}, s{sCH}, 12
        v_lshl_add_u32 v{self.HA}, v0, 4, s{T1}
        s_mul_i32 s{T0}, s{T0}, {CONV_SZ}
        s_add_u32 s{T6}, s{T0}, {L_CONV}
        v_lshl_add_u32 v{self.HL}, v0, 4, s{T6}
        s_lshl_b32 s{T1}, s{sCH}, 1
        v_mov_b32 v{self.DV_}, s{T1}""")
        self.srd(rC, pK, 2048 * 1280); self.srd(rD, pV, 2048 * 1280)
        a("s_mov_b32 exec_hi, 0xff")
        for j in range(3): a.vm(f"buffer_load_dwordx4 {vr(self.KR_+4*j,4)}, v{self.PA}, s[{rC}:{rC+3}], 0 offen offset:{1280*j}")
        for j in range(4): a.vm(f"buffer_load_dwordx4 {vr(self.KR_+12+4*j,4)}, v{self.PB}, s[{rC}:{rC+3}], 0 offen offset:{1280*j}")
        for j in range(4): a.vm(f"buffer_load_dwordx4 {vr(self.VV_+4*j,4)}, v{self.PB}, s[{rD}:{rD+3}], 0 offen offset:{1280*j}")
        self.srd(rC, pSH, 640 * 8)
        for j in range(4): tp = a.vm(f"buffer_load_dwordx4 {vr(self.SW_+4*j,4)}, v{self.PW}, s[{rC}:{rC+3}], 0 offen offset:{16*j}")
        a("s_mov_b32 exec_hi, -1")
        self.srd(rD, pH, 640 * 4096)
        for g in range(4):
            a.vm(f"buffer_load_dwordx4 {vr(self.HD_+6*g,4)}, v{self.HA}, s[{rD}:{rD+3}], 0 offen offset:{1024*g}")
            a.vm(f"buffer_load_dwordx2 {vr(self.HD_+6*g+4,2)}, v{self.HA}, s[{rD}:{rD+3}], 0 offen offset:{1024*g+16}")
        self.srd(rC, pD, 640 * 2)
        th = a.vm(f"buffer_load_ushort v{self.DV_}, v{self.DV_}, s[{rC}:{rC+3}], 0 offen")
        return tp, th
    def pre_compute(self, p):
        a = self.a
        K, V, W, AC = 76, 90, 98, 106
        lo = lambda d, s: a(f"v_lshlrev_b32 v{d}, 16, v{s}")
        hi = lambda d, s: a(f"v_and_b32 v{d}, 0xffff0000, v{s}")
        for j in range(7): lo(K+2*j, self.KR_+4*j+p); hi(K+2*j+1, self.KR_+4*j+p)
        for j in range(4): lo(V+2*j, self.VV_+4*j+p); hi(V+2*j+1, self.VV_+4*j+p)
        w = self.SW_ + 4*p
        lo(W, w); lo(W+1, w+2); hi(W+2, w); hi(W+3, w+2); lo(W+4, w+1); lo(W+5, w+3); hi(W+6, w+1); hi(W+7, w+3)
        for lag in (3, 2, 1, 0):
            for t in range(4):
                kk = K + 2*(3 + t - lag)
                if lag == 3: a(f"v_pk_mul_f32 {vr(AC+2*t,2)}, {vr(kk,2)}, {vr(W+2*lag,2)}")
                else: a(f"v_pk_fma_f32 {vr(AC+2*t,2)}, {vr(kk,2)}, {vr(W+2*lag,2)}, {vr(AC+2*t,2)}")
        for t in range(4): a(f"v_pk_mul_f32 {vr(AC+2*t,2)}, {vr(AC+2*t,2)}, {vr(V+2*t,2)}")
        for h in range(2):
            o = self.PO_ + 4*p + 2*h
            a(f"v_cvt_pk_bf16_f32 v{o}, v{AC+6+h}, v{AC+4+h}\nv_cvt_pk_bf16_f32 v{o+1}, v{AC+2+h}, v{AC+h}")
    def pre_stores(self):
        a = self.a
        a("s_mov_b32 exec_hi, 0xff")
        for e in range(8):
            a(f"s_mov_b32 s{T0}, {4096*e}")
            t = a.vm(f"buffer_store_dwordx2 {vr(self.PO_+2*e,2)}, v{self.PS}, s[{rWS}:{rWS+3}], s{T0} offen sc1")
        a("s_mov_b32 exec_hi, -1")
        return t
    def h_group(self, D, imm):
        a = self.a
        t0, t1, t2 = 76, 80, 84
        for e in range(4): a(f"v_alignbit_b32 v{t0+e}, v{D+e+1}, v{D+e}, 16")
        for e in range(4): a(f"v_mov_b32 v{t1+e}, v{D+e+1}")
        for e in range(4): a(f"v_alignbit_b32 v{t2+e}, v{D+e+2}, v{D+e+1}, 16")
        for r, src in enumerate((t0, t1, t2, D + 2)):
            a.ds(f"ds_write_b128 v{self.HL}, {vr(src,4)} offset:{r*CS + imm}")
        a.wait_all(vm=False)
    def h_to_lds(self):
        a = self.a
        L = a.newlabel("NOH")
        a(f"s_cmp_ge_u32 s{sLW}, s{sNCH}\ns_cbranch_scc1 {L}")
        a(f"v_readlane_b32 s{T0}, v{self.HD_}, 0\nv_readlane_b32 s{T1}, v{self.HD_+1}, 0")
        for g in range(4): self.h_group(self.HD_ + 6*g, 32 + 1024*g)
        D = self.HD_
        for e in range(6): a(f"v_mov_b32 v{D+e}, 0")
        a.ds(f"ds_write_b128 v{self.HL}, {vr(D,4)} offset:{U_OFF + 3584}")
        a(f"v_writelane_b32 v{D+4}, s{T0}, 1\nv_writelane_b32 v{D+5}, s{T1}, 1\ns_mov_b64 exec, 3")
        self.h_group(D, 0)
        a("s_mov_b64 exec, -1")
        a.label(L)
    def init_check(self):
        a = self.a
        L = a.newlabel("NOCHK")
        a(f"s_cmp_lg_u32 s{sWAVE}, 7\ns_cbranch_scc1 {L}")
        self.srd(rC, pDBG, 256)
        a("v_and_b32 v76, 1, v0\nv_lshlrev_b32 v76, 7, v76")
        snap = a.snapshot()
        self.poll([(76, rC, 0, 1)], 77, cmp="v_cmp_le_u32 vcc, 0x80, v77")
        a.restore(snap)
        a.label(L)
    def f1_flag(self):
        a = self.a
        a(f"""s_lshl_b32 s{T0}, s{sCJ}, 8
        s_lshl_b32 s{T1}, s{sPRT}, 4
        s_add_u32 s{T0}, s{T0}, s{T1}
        s_lshl_b32 s{T1}, s{sLW}, 2
        s_add_u32 s{T0}, s{T0}, s{T1}
        s_add_u32 s{T0}, s{T0}, {F1:#x}""")
        return self.flag_store(T0, 76)

    def loader(self):
        a = self.a
        a.label("L_LOADER")
        a.reset_counters()
        self.loader_setup()
        a(f"s_cmp_ge_u32 s{sI}, 30\ns_cbranch_scc1 L_L_NOTILE")
        S = {s: self.stage_dma(s) for s in range(3)}
        d = int(self.opt.get("predelay", -1))
        if d < 0: tp, th = self.pre_loads()
        c0 = max(2, d + 2)
        ts = None
        for s in range(10):
            if s == 6 and "nochk" not in self.opt: self.init_check()
            a.wait(S[s])
            self.stamp(f"l.w{s}")
            a("s_barrier")
            self.stamp(f"l.b{s}")
            if 1 <= s <= 7: S[s+2] = self.stage_dma(s + 2)
            if s == d: tp, th = self.pre_loads()
            if s == c0: a.wait(tp); self.pre_compute(0); self.pre_compute(1)
            if s == c0 + 1: self.pre_compute(2); self.pre_compute(3); ts = self.pre_stores()
            if s == c0 + 2: a.wait(th); self.h_to_lds()
            if s == min(9, c0 + 4):
                a.wait(ts)
                self.f1_flag()
        a("s_branch L_CONV")
        a.label("L_L_NOTILE")
        a.reset_counters()
        tp, th = self.pre_loads()
        a.wait(th)
        for p in range(4): self.pre_compute(p)
        self.pre_stores()
        self.h_to_lds()
        self.init_check()
        a.wait_all(force=True)
        a("s_barrier")
        self.f1_flag()
        a.label("L_CONV")
        a.reset_counters()
        a("s_barrier")
        a(f"s_cmp_ge_u32 s{sLW}, s{sNCH}\ns_cbranch_scc1 L_ATT")
        self.conv()

    def conv(self):
        a = self.a
        ACC, FR = 16, 64
        HA, UB, UE, YS, DV = 2, 3, 4, 5, self.DV_
        a(f"""s_mul_i32 s{T0}, s{sCH0}, 1639
        s_lshr_b32 s{T0}, s{T0}, 16
        s_lshl_b32 s{T0}, s{T0}, 8
        s_add_u32 s{T0}, s{T0}, {F1:#x}
        v_lshl_add_u32 v8, v0, 2, s{T0}""")
        self.poll([(8, rWS, 0, 1)], 9)
        self.stamp("v.F1ok")
        a(f"""v_lshlrev_b32 v6, 4, v0
        s_lshl_b32 s{T0}, s{sCH}, 12
        s_add_u32 s{T1}, s{T0}, {UR:#x}
        s_add_u32 m0, s{T6}, {U_OFF}
        v_lshrrev_b32 v8, 4, v0""")
        for j in range(4): tu = a.vm(f"buffer_load_dwordx4 v6, s[{rWS}:{rWS+3}], s{T1} offen offset:{1024*j} sc1 lds")
        a(f"""v_lshrrev_b32 v9, 2, v0
        v_and_b32 v9, 3, v9
        v_mul_u32_u24 v9, {CS}, v9
        v_lshl_add_u32 v9, v8, 4, v9
        v_and_b32 v10, 3, v0
        v_lshl_add_u32 v9, v10, 3, v9
        v_add_u32 v{HA}, s{T6}, v9
        v_and_b32 v9, 15, v0
        v_lshlrev_b32 v9, 5, v9
        v_lshlrev_b32 v10, 4, v8
        v_sub_u32 v10, v10, v9
        v_add_u32 v10, s{T6}, v10
        v_add_u32 v{UB}, {U_OFF + 480}, v10
        v_lshl_add_u32 v9, v8, 3, v9
        v_sub_u32 v10, s{T6}, v9
        v_add_u32 v{UE}, {U_OFF + 504}, v10
        s_add_u32 s{T0}, s{T0}, {YD:#x}
        v_add_u32 v{YS}, s{T0}, v9
        v_lshlrev_b32 v7, 16, v{DV}""")
        def reads(rho):
            st = FR + 64 * (rho & 1)
            ra = lambda i, q: (lambda: a.ds(f"ds_read_b64_tr_b16 {vr(st+4*i+2*q,2)}, v{HA} offset:{64*(8*i+rho) + 8*q}"))
            rb = lambda d: (lambda: a.ds(f"ds_read_b128 {vr(st+32+4*d,4)}, v{UB} offset:{64*(56 - (8*d - rho))}"))
            L = [("A0", ra(0,0)), ("A0", ra(0,1))] + [(f"B{d}", rb(d)) for d in range(8)]
            for i in range(1, 8): L += [(f"A{i}", ra(i,0)), (f"A{i}", ra(i,1))]
            return L
        toks = {}
        R0 = reads(0)
        for n, f in R0:
            if n == "B0": a.wait(tu)
            toks[n] = f()
        self.stamp("v.u")
        for rho in range(8):
            st = FR + 64 * (rho & 1)
            nxt = reads(rho + 1) if rho < 7 else []
            out = {}; k = 0; m = 0
            for i in range(8):
                for c in range(i, 8):
                    a.wait(toks[f"A{i}"], toks[f"B{c-i}"])
                    d = ACC + 4 * c
                    a(f"v_mfma_f32_16x16x32_bf16 {vr(d,4)}, {vr(st+4*i,4)}, {vr(st+32+4*(c-i),4)}, {'0' if (rho == 0 and i == 0) else vr(d,4)}")
                    m += 1
                    if m >= 4 and k < len(nxt): out[nxt[k][0]] = nxt[k][1](); k += 1
            assert k == len(nxt)
            toks = out
        self.stamp("v.mfma")
        tu = [a.ds(f"ds_read_b64 {vr(FR+2*c,2)}, v{UE} offset:{512*(7-c)}") for c in range(8)]
        for c in range(8):
            a.wait(tu[c])
            d, u, t = ACC + 4*c, FR + 2*c, FR + 32 + 8*(c & 1)
            a(f"""v_and_b32 v{t}, 0xffff0000, v{u+1}
            v_lshlrev_b32 v{t+1}, 16, v{u+1}
            v_and_b32 v{t+2}, 0xffff0000, v{u}
            v_lshlrev_b32 v{t+3}, 16, v{u}""")
            for e in range(4): a(f"v_fmac_f32 v{d+e}, v7, v{t+e}")
            a(f"v_cvt_pk_bf16_f32 v{t+4}, v{d}, v{d+1}\nv_cvt_pk_bf16_f32 v{t+5}, v{d+2}, v{d+3}")
            a.vm(f"buffer_store_dwordx2 {vr(t+4,2)}, v{YS}, s[{rWS}:{rWS+3}], 0 offen offset:{512*c} sc1")
        self.stamp("v.st")

    O_, QM, QR, KRM, KM, S_, IDX, AKM, AKR, AV = 16, 32, 36, 38, 40, 64, 2, 3, 4, 5
    VS = (48, 128)
    GX, GW, XE, WOV, YDV, F3T = 144, 184, 224, 230, 235, 12
    def m2b(self, S): self.a(f"v_mfma_f32_32x32x4_2b_bf16 {vr(S,32)}, {vr(self.KRM,2)}, {vr(self.QR,2)}, 0")
    def mqk(self, S, h): self.a(f"v_mfma_f32_32x32x16_bf16 {vr(S+16*h,16)}, {vr(self.KM+4*h,4)}, {vr(self.QM,4)}, {vr(S+16*h,16)}")
    def smf(self, V, P): self.a(f"v_smfmac_f32_32x32x32_bf16 {vr(self.O_,16)}, {vr(V,4)}, {vr(P,8)}, v{self.IDX}")
    def attention(self):
        a = self.a
        a.label("L_ATT")
        a.reset_counters()
        a(f"""v_mov_b32 v{self.IDX}, 0xdddddddd
        v_lshlrev_b32 v{self.AKM}, 4, v0
        v_lshlrev_b32 v6, 4, v0
        v_lshlrev_b32 v8, 3, v0
        v_add_u32 v{self.AKR}, 2048, v8
        v_and_b32 v9, 31, v0
        v_lshrrev_b32 v10, 5, v0
        v_mul_u32_u24 v10, 320, v10
        v_lshl_add_u32 v10, v9, 4, v10
        v_add_u32 v{self.AV}, 2560, v10
        s_lshr_b32 s{T0}, s{sWAVE}, 1
        s_mul_i32 s{T0}, s{T0}, {Q_US}
        s_add_u32 s{T0}, s{T0}, {L_Q}
        s_and_b32 s{T1}, s{sWAVE}, 1
        s_lshl_b32 s{T2}, s{T1}, 10
        s_add_u32 s{T2}, s{T2}, s{T0}
        v_add_u32 v10, s{T2}, v6
        s_lshl_b32 s{T1}, s{T1}, 8
        s_add_u32 s{T1}, s{T1}, s{T0}
        v_lshl_add_u32 v11, v9, 3, s{T1}""")
        for e in range(16): a(f"v_mov_b32 v{self.O_+e}, 0")
        for st in self.VS:
            for e in range(16): a(f"v_mov_b32 v{st+e}, 0x3f803f80")
        a("s_barrier")
        self.stamp("att0")
        base = {"K": 0, "V": 0}
        def bump(kind, u):
            while u * KV_US - base[kind] > 11 * KV_US:
                base[kind] += 12 * KV_US
                for r in ((self.AKM, self.AKR) if kind == "K" else (self.AV,)): a(f"v_add_u32 v{r}, {12*KV_US}, v{r}")
            return u * KV_US - base[kind]
        def rKR(u): o = bump("K", u); return a.ds(f"ds_read_b64 {vr(self.KRM,2)}, v{self.AKR} offset:{o}")
        def rKM(u, h): o = bump("K", u); return a.ds(f"ds_read_b128 {vr(self.KM+4*h,4)}, v{self.AKM} offset:{o + 1024*h}")
        def rV(u):
            o = bump("V", u)
            a(f"s_mov_b64 exec, s[{sVMASK}:{sVMASK+1}]")
            for g in range(4): t = a.ds(f"ds_read_b128 {vr(self.VS[u&1]+4*g,4)}, v{self.AV} offset:{o + 640*g}")
            a("s_mov_b64 exec, -1")
            return t
        tq = [a.ds(f"ds_read_b64 {vr(self.QR,2)}, v11 offset:2048")]
        tKR = rKR(0)
        tq.append(a.ds(f"ds_read_b128 {vr(self.QM,4)}, v10"))
        tK0 = rKM(0, 0); tK1 = rKM(0, 1); tV = {0: rV(0)}
        a.wait(tq[0], tKR); self.m2b(self.S_); tKR = rKR(1)
        a.nop(17)
        a.wait(tq[1], tK0); self.mqk(self.S_, 0); tK0 = rKM(1, 0)
        a.wait(tK1); self.mqk(self.S_, 1); tK1 = rKM(1, 1)
        a.nop(9)
        for u in range(32):
            if u % 8 == 6 and u < 30: self.att_sync(u // 8)
            X, Y = self.S_ + 32 * (u & 1), self.S_ + 32 * ((u + 1) & 1)
            Vc, Vp = self.VS[u & 1], self.VS[(u + 1) & 1]
            nx = u < 31
            for p in range(32):
                if p == 2:
                    if nx: a.wait(tKR, tV[u])
                    else: a.wait(tV[u])
                    if u > 0: self.smf(Vp + 12, Y + 24)
                    if nx: tV[u+1] = rV(u + 1)
                if p == 6 and nx:
                    self.m2b(Y)
                    if u < 30: tKR = rKR(u + 2)
                if p == 14: self.smf(Vc, X)
                if p == 18: self.smf(Vc + 4, X + 8)
                if p == 22 and nx:
                    a.wait(tK0, tK1); self.mqk(Y, 0)
                    if u < 30: tK0 = rKM(u + 2, 0)
                if p == 26: self.smf(Vc + 8, X + 16)
                if p == 30 and nx:
                    self.mqk(Y, 1)
                    if u < 30: tK1 = rKM(u + 2, 1)
                a(f"v_exp_f32 v{X+p}, v{X+p}")
        a.nop(2)
        self.smf(self.VS[1] + 12, self.S_ + 32 + 24)
        self.stamp("attend")

    def att_sync(self, k):
        a = self.a
        if k == 0:
            a.wait_all(vm=True, ds=False, force=True)
            L = a.newlabel("NOF3")
            a(f"s_cmp_lt_u32 s{sWAVE}, 4\ns_cbranch_scc1 {L}\ns_cmp_ge_u32 s{sLW}, s{sNCH}\ns_cbranch_scc1 {L}")
            a(f"s_lshl_b32 s{T0}, s{sCH}, 2\ns_add_u32 s{T0}, s{T0}, {F3:#x}")
            self.flag_store(T0, 8)
            a.label(L)
            a("s_barrier")
            self.stamp("sync0")
            a(f"s_mul_i32 s{T2}, s{sHEAD}, {KV_HS}\ns_mul_i32 s{T3}, s{sWAVE}, {KV_US}")
            self.kv_unit_dma(T2, T3, 16 * KV_US); self.kv_unit_dma(T2, T3, 24 * KV_US)
        elif k == 1:
            a.wait_all(vm=True, ds=False, force=True)
            a("s_barrier")
            self.stamp("sync1")
            self.srd(rA, pX, 2048 * 1280); self.srd(rB, pGW, 1280)
            a(f"""v_and_b32 v8, 15, v0
            v_lshrrev_b32 v9, 4, v0
            s_lshl_b32 s{T0}, s{sHEAD}, 6
            s_lshl_b32 s{T1}, s{sTB}, 4
            s_add_u32 s{T0}, s{T0}, s{T1}
            v_add_u32 v8, s{T0}, v8
            v_mul_u32_u24 v8, 1280, v8
            s_mul_i32 s{T0}, s{sKH}, 640
            v_lshl_add_u32 v10, v9, 4, s{T0}
            v_add_u32 v11, v8, v10
            s_mul_i32 s{T0}, s{sQB}, 160
            s_mul_i32 s{T1}, s{sKH}, 96
            s_add_u32 s{T0}, s{T0}, s{T1}
            v_lshl_add_u32 v8, v9, 3, v8
            v_add_u32 v7, s{T0}, v8
            s_mul_i32 s{T0}, s{sQB}, 320
            s_add_u32 s{T0}, s{T0}, {F3:#x}
            v_min_u32 v9, 39, v0
            v_lshl_add_u32 v14, v9, 3, s{T0}""")
            for j in range(10):
                a.vm(f"buffer_load_dwordx4 {vr(self.GX+4*j,4)}, v11, s[{rA}:{rA+3}], 0 offen offset:{64*j}")
                a.vm(f"buffer_load_dwordx4 {vr(self.GW+4*j,4)}, v10, s[{rB}:{rB+3}], 0 offen offset:{64*j}")
            for j in range(3): a.vm(f"buffer_load_dwordx2 {vr(self.XE+2*j,2)}, v7, s[{rA}:{rA+3}], 0 offen offset:{32*j}")
            self.tF3 = a.vm(f"buffer_load_dwordx2 {vr(self.F3T,2)}, v14, s[{rWS}:{rWS+3}], 0 offen sc1")
        else:
            a("s_barrier")
            self.stamp("sync2")
            self.srd(rA, pWO, 640 * 1280)
            a(f"s_mul_i32 s{T0}, s{sQB}, 160")
            for j in range(5):
                a(f"""v_add_u32 v8, {64*j}, v0
                v_mul_u32_u24 v9, 6554, v8
                v_lshrrev_b32 v9, 16, v9
                v_mul_u32_u24 v9, {1280-160}, v9
                v_lshl_add_u32 v9, v8, 4, v9
                v_add_u32 v9, s{T0}, v9""")
                a(f"v_subrev_u32 v{self.WOV+j}, {1024*j if j < 4 else 0}, v9")
            def piece(add):
                a(f"s_add_u32 s{T1}, s{sWAVE}, {add}\ns_mul_i32 s{T2}, s{T1}, 5120\ns_mul_i32 s{T1}, s{T1}, 40960\ns_add_u32 m0, s{T2}, {L_WO}\ns_nop 0")
                for j in range(4): a.vm(f"buffer_load_dwordx4 v{self.WOV+j}, s[{rA}:{rA+3}], s{T1} offen offset:{1024*j} lds")
                a(f"s_add_u32 m0, s{T2}, {L_WO + 4096}\ns_nop 0")
                a.vm(f"buffer_load_dwordx4 v{self.WOV+4}, s[{rA}:{rA+3}], s{T1} offen lds")
            L1, L2 = a.newlabel("YD"), a.newlabel("YDD")
            a(f"s_cmp_ge_u32 s{sWAVE}, 4\ns_cbranch_scc1 {L1}")
            snap = a.snapshot()
            piece(0); piece(8); piece(16)
            a(f"s_branch {L2}")
            a.label(L1)
            a.restore(snap)
            a.wait(self.tF3)
            LD = a.newlabel("F3OK")
            self.poll_check(self.F3T, 2)
            a(f"s_cbranch_scc1 {LD}")
            self.poll([(14, rWS, 0, 2)], self.F3T)
            a.label(LD)
            a(f"""s_mul_i32 s{T0}, s{sQB}, 80
            s_mul_i32 s{T1}, s{sLW}, 20
            s_add_u32 s{T0}, s{T0}, s{T1}
            v_lshrrev_b32 v8, 3, v0
            v_add_u32 v8, s{T0}, v8
            v_lshlrev_b32 v8, 12, v8
            v_and_b32 v9, 7, v0
            v_lshl_add_u32 v8, v9, 4, v8
            s_lshl_b32 s{T0}, s{sHEAD}, 7
            s_add_u32 s{T0}, s{T0}, {YD:#x}
            s_mul_i32 s{T1}, s{sLW}, 2560
            s_add_u32 m0, s{T1}, {L_YD}
            s_add_u32 s{T2}, s{T0}, {8*4096-1024}
            s_add_u32 s{T3}, s{T0}, {16*4096-2048}""")
            a.vm(f"buffer_load_dwordx4 v8, s[{rWS}:{rWS+3}], s{T0} offen sc1 lds")
            a.vm(f"buffer_load_dwordx4 v8, s[{rWS}:{rWS+3}], s{T2} offen offset:1024 sc1 lds")
            a("s_mov_b32 exec_hi, 0")
            a.vm(f"buffer_load_dwordx4 v8, s[{rWS}:{rWS+3}], s{T3} offen offset:2048 sc1 lds")
            a("s_mov_b32 exec_hi, -1")
            piece(0); piece(8)
            a.label(L2)
            a.reset_counters_vm_unknown = True

    def finish(self):
        a = self.a
        O = self.O_
        TMP = 64
        GA, ACC, OF, WF = 8, 236, 16, 64
        a(f"""s_lshl_b32 s{T0}, s{sHEAD}, 16
        s_lshl_b32 s{T1}, s{sQB}, 3
        s_add_u32 s{T1}, s{T1}, s{sWAVE}
        s_lshl_b32 s{T2}, s{T1}, 10
        s_add_u32 s{T0}, s{T0}, s{T2}
        s_add_u32 s{T0}, s{T0}, {OM:#x}
        s_lshl_b32 s{T2}, s{sHEAD}, 14
        s_lshl_b32 s{T1}, s{T1}, 8
        s_add_u32 s{T1}, s{T1}, s{T2}
        s_add_u32 s{T1}, s{T1}, {ORM:#x}
        v_lshlrev_b32 v3, 3, v0
        s_mov_b32 s{T2}, {f2u(2.0**-60):#x}
        s_mov_b32 s{T3}, {f2u(2.0**60):#x}
        s_mov_b32 s{T4}, 0x7f7fffff""")
        a.label("L_NORM")
        a(f"v_rcp_f32 v{TMP+4}, v{O+12}")
        for e in range(4): a(f"v_add_f32 v{TMP+e}, abs(v{O+e}), abs(v{O+4+e})")
        for e in range(4): a(f"v_add_f32 v{TMP+e}, v{TMP+e}, abs(v{O+8+e})")
        a(f"""v_add_f32 v{TMP}, v{TMP}, v{TMP+1}
        v_add_f32 v{TMP+2}, v{TMP+2}, v{TMP+3}
        v_cmp_le_f32 vcc, s{T2}, v{O+12}
        v_cmp_ge_f32 s[{sM}:{sM+1}], s{T3}, v{O+12}
        v_add_f32 v{TMP}, v{TMP}, v{TMP+2}
        s_nop 0
        s_and_b64 s[{sM}:{sM+1}], s[{sM}:{sM+1}], vcc
        v_cmp_ge_f32 vcc, s{T4}, v{TMP}
        s_nop 1
        s_and_b64 s[{sM}:{sM+1}], s[{sM}:{sM+1}], vcc
        s_cmp_eq_u64 s[{sM}:{sM+1}], exec
        s_cbranch_scc1 L_NORM_OK
        s_cmp_eq_u32 s{sSLOW}, 0
        s_cbranch_scc1 L_SLOW""")
        a.label("L_NORM_OK")
        for e in range(12): a(f"v_mul_f32 v{O+e}, v{O+e}, v{TMP+4}")
        for e in range(6): a(f"v_cvt_pk_bf16_f32 v{TMP+8+e}, v{O+2*e}, v{O+2*e+1}")
        a(f"buffer_store_dwordx4 {vr(TMP+8,4)}, v6, s[{rWS}:{rWS+3}], s{T0} offen sc1")
        a("s_mov_b32 exec_hi, 0")
        a(f"buffer_store_dwordx2 {vr(TMP+12,2)}, v3, s[{rWS}:{rWS+3}], s{T1} offen sc1")
        a("s_mov_b32 exec_hi, -1")
        a("s_waitcnt vmcnt(2)")
        a.reset_counters()
        for j in range(10):
            a(f"v_mfma_f32_16x16x32_bf16 {vr(GA,4)}, {vr(self.GW+4*j,4)}, {vr(self.GX+4*j,4)}, {'0' if j == 0 else vr(GA,4)}")
        WM0, WM1, WR0, WR1, AOM, AOR, AF4, AEX = 56, 57, 58, 59, 60, 61, 62, 63
        a(f"""v_lshrrev_b32 v2, 4, v0
        v_lshrrev_b32 v3, 2, v0
        v_and_b32 v3, 3, v3
        v_and_b32 v4, 3, v0
        v_lshlrev_b32 v4, 3, v4
        s_mul_i32 s{T2}, s{sKH}, {51200 + 96}
        s_mul_i32 s{T3}, s{sKH}, {51200 - 64}
        v_lshrrev_b32 v5, 1, v2
        v_mul_u32_u24 v5, 20, v5
        v_and_b32 v12, 1, v2
        v_lshl_add_u32 v5, v12, 2, v5
        v_add_u32 v5, v5, v3
        v_mul_u32_u24 v5, 160, v5
        v_add_u32 v5, v5, v4
        v_add_u32 v{WM0}, s{T2}, v5
        v_add_u32 v{WM1}, s{T3}, v5
        v_mul_u32_u24 v5, 20, v2
        v_add3_u32 v5, v5, v3, 16
        v_mul_u32_u24 v5, 160, v5
        v_add_u32 v5, v5, v4
        v_add_u32 v{WR0}, s{T2}, v5
        v_add_u32 v{WR1}, s{T3}, v5
        v_and_b32 v5, 15, v0
        s_lshl_b32 s{T2}, s{sKH}, 20
        s_lshl_b32 s{T3}, s{sHEAD}, 11
        s_add_u32 s{T2}, s{T2}, s{T3}
        s_lshr_b32 s{T3}, s{sTB}, 1
        s_lshl_b32 s{T4}, s{T3}, 10
        s_add_u32 s{T2}, s{T2}, s{T4}
        s_and_b32 s{T4}, s{sTB}, 1
        s_lshl_b32 s{T4}, s{T4}, 8
        s_add_u32 s{T2}, s{T2}, s{T4}
        s_add_u32 s{T2}, s{T2}, {OM:#x}
        v_lshrrev_b32 v13, 1, v2
        v_lshlrev_b32 v13, 16, v13
        v_lshl_add_u32 v13, v12, 9, v13
        v_lshl_add_u32 v13, v5, 4, v13
        v_add_u32 v{AOM}, s{T2}, v13
        s_lshl_b32 s{T2}, s{sKH}, 18
        s_lshl_b32 s{T4}, s{sHEAD}, 9
        s_add_u32 s{T2}, s{T2}, s{T4}
        s_lshl_b32 s{T4}, s{sTB}, 7
        s_add_u32 s{T2}, s{T2}, s{T4}
        s_add_u32 s{T2}, s{T2}, {ORM:#x}
        v_lshlrev_b32 v13, 14, v2
        v_lshl_add_u32 v13, v5, 3, v13
        v_add_u32 v{AOR}, s{T2}, v13
        s_lshl_b32 s{T2}, s{sHEAD}, 8
        s_lshl_b32 s{T4}, s{sKH}, 7
        s_add_u32 s{T2}, s{T2}, s{T4}
        s_lshl_b32 s{T3}, s{T3}, 2
        s_add_u32 s{T2}, s{T2}, s{T3}
        s_add_u32 s{T2}, s{T2}, {F4:#x}
        v_lshl_add_u32 v{AF4}, v5, 3, s{T2}""")
        a(f"""s_lshl_b32 s{T0}, s{sQB}, 10
        s_lshr_b32 s{T1}, s{sWAVE}, 1
        s_lshl_b32 s{T1}, s{T1}, 8
        s_add_u32 s{T0}, s{T0}, s{T1}
        s_lshl_b32 s{T1}, s{sHEAD}, 3
        s_add_u32 s{T0}, s{T0}, s{T1}
        s_and_b32 s{T1}, s{sWAVE}, 1
        s_lshl_b32 s{T1}, s{T1}, 2
        s_add_u32 s{T0}, s{T0}, s{T1}
        s_add_u32 s{T0}, s{T0}, {F4:#x}
        s_barrier""")
        def wfrag(step, regstep):
            toks = []
            for b in range(5):
                for q in range(2):
                    if step < 8: ad, off = (WM0 if b < 2 else WM1), (40*step + 8*q)*160 + 32*b
                    else: ad, off = (WR0 if b < 2 else WR1), (160*(step-8) + 80*q)*160 + 32*b
                    t = a.ds(f"ds_read_b64_tr_b16 {vr(WF + 20*regstep + 4*b + 2*q, 2)}, v{ad} offset:{L_WO + off}")
                toks.append(t)
            return toks
        tw = {0: wfrag(0, 0), 1: wfrag(1, 1)}
        a("s_waitcnt vmcnt(0)")
        self.flag_store(T0, 12)
        self.stamp("F4set")
        for s in range(2, 8): tw[s] = wfrag(s, s)
        self.poll([(AF4, rWS, 0, 1)], 12)
        self.stamp("F4ok")
        to = {}
        for s in range(8):
            a(f"s_mov_b32 s{T0}, {s*131072}")
            to[s] = a.vm(f"buffer_load_dwordx4 {vr(OF+4*s,4)}, v{AOM}, s[{rWS}:{rWS+3}], s{T0} offen sc1")
        for rs in range(2):
            for q in range(2):
                a(f"s_mov_b32 s{T0}, {(8*rs+4*q)*16384}")
                to[8+rs] = a.vm(f"buffer_load_dwordx2 {vr(OF+32+4*rs+2*q,2)}, v{AOR}, s[{rWS}:{rWS+3}], s{T0} offen sc1")
        AYD, AX2 = 5, 15
        a(f"""s_lshl_b32 s{T0}, s{sWAVE}, 12
        s_add_u32 s{T0}, s{T0}, {L_EX}
        v_add_u32 v{AEX}, s{T0}, v6
        s_xor_b32 s{T0}, s{sWAVE}, 4
        s_lshl_b32 s{T0}, s{T0}, 12
        s_lshl_b32 s{T1}, s{sKH}, 10
        s_add_u32 s{T1}, s{T1}, s{T0}
        s_add_u32 s{T1}, s{T1}, {L_EX}
        v_add_u32 v{AX2}, s{T1}, v6
        s_add_u32 s{T0}, s{T0}, {L_EX}
        v_add_u32 v14, s{T0}, v6
        v_lshl_add_u32 v{AYD}, v2, 2, v3
        v_lshl_add_u32 v{AYD}, v{AYD}, 7, v4
        s_mul_i32 s{T0}, s{sKH}, {48*128}
        s_lshl_b32 s{T1}, s{sTB}, 5
        s_add_u32 s{T0}, s{T0}, s{T1}
        s_add_u32 s{T0}, s{T0}, {L_YD}
        v_add_u32 v{AYD}, s{T0}, v{AYD}""")
        self.srd(rA, pOUT, 2048 * 1280)
        for s in range(10):
            rs = s if s < 8 else s - 8
            a.wait(to[s])
            for b in range(5):
                a.wait(tw[s][b])
                d = ACC + 4*b
                a(f"v_mfma_f32_16x16x32_bf16 {vr(d,4)}, {vr(WF+20*rs+4*b,4)}, {vr(OF+4*s,4)}, {'0' if s == 0 else vr(d,4)}")
            if s < 2: tw[8+s] = wfrag(8 + s, s)
        self.stamp("mfma")
        YR = 64
        ty = [a.ds(f"ds_read_b64_tr_b16 {vr(YR+2*b,2)}, v{AYD} offset:{2048*b}") for b in range(3)]
        a.ds(f"ds_write_b32 v{AEX}, v{GA} offset:3072")
        a.nop(3)
        for b in (2, 3, 4): a.ds(f"ds_write_b128 v{AEX}, {vr(ACC+4*b,4)} offset:{1024*(b-2)}")
        BB = 96
        for b in range(3):
            a.wait(ty[b])
            x, y, t = self.XE + 2*b, YR + 2*b, BB + 4*b
            a(f"""v_lshlrev_b32 v72, 16, v{x}
            v_and_b32 v73, 0xffff0000, v{x}
            v_lshlrev_b32 v74, 16, v{x+1}
            v_and_b32 v75, 0xffff0000, v{x+1}
            v_lshlrev_b32 v76, 16, v{y}
            v_and_b32 v77, 0xffff0000, v{y}
            v_lshlrev_b32 v78, 16, v{y+1}
            v_and_b32 v79, 0xffff0000, v{y+1}""")
            for e in range(4): a(f"v_mul_f32 v{t+e}, v{72+e}, v{76+e}")
        a.wait_all(vm=False)
        a("s_barrier")
        tg = a.ds(f"ds_read_b32 v9, v14 offset:3072")
        tp = [a.ds(f"ds_read_b128 {vr(80+4*b,4)}, v{AX2} offset:{1024*b}") for b in range(3)]
        a.wait(tg)
        a(f"""v_add_f32 v8, v8, v9
        v_mul_f32 v8, {f2u(-math.log2(math.e)):#x}, v8
        v_exp_f32 v8, v8
        s_nop 0
        v_add_f32 v8, 1.0, v8
        v_rcp_f32 v8, v8""")
        for b in range(3):
            if b == 2: a(f"s_cmp_lg_u32 s{sKH}, 0\ns_cbranch_scc1 L_FIN")
            a.wait(tp[b])
            for e in range(4): a(f"v_add_f32 v{80+4*b+e}, v{80+4*b+e}, v{ACC+4*b+e}")
            for e in range(4): a(f"v_sub_f32 v{80+4*b+e}, v{80+4*b+e}, v{BB+4*b+e}")
            for e in range(4): a(f"v_fmac_f32 v{BB+4*b+e}, v8, v{80+4*b+e}")
            a(f"v_cvt_pk_bf16_f32 v{72+2*b}, v{BB+4*b}, v{BB+4*b+1}\nv_cvt_pk_bf16_f32 v{73+2*b}, v{BB+4*b+2}, v{BB+4*b+3}")
            a.vm(f"buffer_store_dwordx2 {vr(72+2*b,2)}, v7, s[{rA}:{rA+3}], 0 offen offset:{32*b}")
        a.label("L_FIN")
        if self.stamps:
            a("s_waitcnt vmcnt(0)")
            self.stamp("end")
            a(f"s_lshl_b32 s{T0}, s{sWG}, 3\ns_add_u32 s{T0}, s{T0}, s{sWAVE}\ns_lshl_b32 s{T0}, s{T0}, 8\ns_add_u32 s{T0}, s{T0}, {TS:#x}\nv_lshlrev_b32 v2, 2, v0")
            a(f"buffer_store_dword v1, v2, s[{rWS}:{rWS+3}], s{T0} offen")
            if "dbgst" in self.opt:
                wg = int(self.opt["dbgst"])
                self.srd(rB, pDBG, 256)
                for wv, names, w0 in ((0, ["c.epi", "c.F2set", "c.F2ok", "att0", "attend", "F4set", "F4ok", "end"], 1), (4, ["l.b0", "l.b2", "l.b5", "l.b9", "v.u", "v.st", "attend"], 9)):
                    L = a.newlabel("DBG")
                    a(f"s_cmp_lg_u32 s{sWG}, {wg}\ns_cbranch_scc1 {L}\ns_cmp_lg_u32 s{sWAVE}, {wv}\ns_cbranch_scc1 {L}")
                    a(f"v_readlane_b32 s{T1}, v1, 0\ns_mov_b64 exec, 1")
                    for j, n in enumerate(names):
                        a(f"v_readlane_b32 s{T2}, v1, {self.names.index(n)}\ns_nop 3\ns_sub_u32 s{T2}, s{T2}, s{T1}\nv_mov_b32 v3, s{T2}\nv_mov_b32 v4, {4*(w0+j)}\nbuffer_store_dword v3, v4, s[{rB}:{rB+3}], 0 offen")
                    a.label(L)
        a.label("L_END")
        a("s_endpgm")

    def slow(self):
        a = self.a
        S, V, M = self.S_, self.VS[0], 96
        a.label("L_SLOW")
        a(f"""s_mov_b32 s{sSLOW}, 1
        s_mul_i32 s{T5}, s{sHEAD}, {KV_HS}
        v_lshlrev_b32 v{self.AKM}, 3, v0
        v_and_b32 v9, 31, v0
        v_lshrrev_b32 v10, 5, v0
        v_mul_u32_u24 v10, 320, v10
        v_lshl_add_u32 v10, v9, 4, v10
        v_add_u32 v{self.AV}, 2560, v10
        v_mov_b32 v{M}, 0xff800000""")
        def scores():
            a(f"""buffer_load_dwordx2 {vr(self.KRM,2)}, v{self.AKM}, s[{rWS}:{rWS+3}], s{T6} offen offset:2048 sc1
            buffer_load_dwordx4 {vr(self.KM,4)}, v6, s[{rWS}:{rWS+3}], s{T6} offen sc1
            buffer_load_dwordx4 {vr(self.KM+4,4)}, v6, s[{rWS}:{rWS+3}], s{T6} offen offset:1024 sc1
            s_waitcnt vmcnt(0)""")
            self.m2b(S); a.nop(18); self.mqk(S, 0); self.mqk(S, 1); a.nop(12)
        a(f"s_mov_b32 s{T6}, s{T5}\ns_mov_b32 s{sCNT}, 0")
        a.label("L_SLOW1")
        scores()
        for e in range(16): a(f"v_max3_f32 v{M}, v{M}, v{S+2*e}, v{S+2*e+1}")
        a(f"s_add_u32 s{T6}, s{T6}, {KV_US}\ns_add_u32 s{sCNT}, s{sCNT}, 1\ns_cmp_lt_u32 s{sCNT}, 32\ns_cbranch_scc1 L_SLOW1")
        a(f"v_mov_b32 v{M+1}, v{M}\ns_nop 1\nv_permlane32_swap_b32 v{M}, v{M+1}\ns_nop 1\nv_max_f32 v{M}, v{M}, v{M+1}")
        for e in range(16): a(f"v_mov_b32 v{self.O_+e}, 0")
        a(f"s_mov_b32 s{T6}, s{T5}\ns_mov_b32 s{sCNT}, 0")
        a.label("L_SLOW2")
        a(f"s_mov_b64 exec, s[{sVMASK}:{sVMASK+1}]")
        for g in range(4): a(f"buffer_load_dwordx4 {vr(V+4*g,4)}, v{self.AV}, s[{rWS}:{rWS+3}], s{T6} offen offset:{640*g} sc1")
        a("s_mov_b64 exec, -1")
        scores()
        for e in range(32): a(f"v_sub_f32 v{S+e}, v{S+e}, v{M}")
        for e in range(32): a(f"v_exp_f32 v{S+e}, v{S+e}")
        a.nop(2)
        for g in range(4): self.smf(V + 4*g, S + 8*g)
        a(f"s_add_u32 s{T6}, s{T6}, {KV_US}\ns_add_u32 s{sCNT}, s{sCNT}, 1\ns_cmp_lt_u32 s{sCNT}, 32\ns_cbranch_scc1 L_SLOW2")
        a(f"v_lshlrev_b32 v3, 3, v0")
        a.nop(12)
        a("s_branch L_NORM")

    def build(self):
        self.prologue(); self.gemm_compute(); self.loader(); self.attention(); self.finish(); self.slow()
        bad = lint(self.a.lines)
        head = f"""; Fused kernel: QKV projection, depthwise convolutions, attention, output projection and gated mix.
; @launch grid=(256,1,1) block=(512,1,1) lds={LDS_BYTES}
.amdgcn_target "amdgcn-amd-amdhsa--gfx950"
.text
.globl {NAME}
.p2align 8
.type {NAME},@function
{NAME}:
"""
        tail = f""".section .rodata,"a"
.p2align 6
.amdhsa_kernel {NAME}
  .amdhsa_next_free_vgpr 256
  .amdhsa_next_free_sgpr 102
  .amdhsa_accum_offset 256
  .amdhsa_group_segment_fixed_size 0
  .amdhsa_kernarg_size 104
  .amdhsa_user_sgpr_count 2
  .amdhsa_user_sgpr_kernarg_segment_ptr 1
  .amdhsa_system_sgpr_workgroup_id_x 1
  .amdhsa_float_denorm_mode_32 3
.end_amdhsa_kernel
"""
        return head + self.a.text() + tail, bad

if __name__ == "__main__":
    out = sys.argv[1] if len(sys.argv) > 1 else "gated_mix__mha_block__ssm_conv_h3__prompt.s"
    opt = dict(x[2:].split("=") for x in sys.argv if x.startswith("-D"))
    G = Gen(stamps="--stamps" in sys.argv, opt=opt)
    src, bad = G.build()
    if G.stamps: src = src.replace("; @launch", "; STAMPS " + " ".join(G.names) + "\n; @launch", 1)
    for b in bad: print("LINT:", b)
    open(out, "w").write(src)
    print("wrote", out, len(src), "bytes;", len(bad), "lint findings")
```

```python
import sys, math, struct
from asmlib import *

NAME = "gated_mix__mha_block__ssm_conv_h3__prompt_kernel"
def f2u(x): return struct.unpack("<I", struct.pack("<f", x))[0]

KV, QO, UR, YD, OM, ORM = 0, 0x500000, 0x780000, 0xA00000, 0xC80000, 0xE80000
F1, F2, F4, F3, F5, GT = 0xF00000, 0xF04000, 0xF08000, 0xF0C000, 0xF0D000, 0xF0E000
TS = 0xF10000
WS_SIZE = 0x1000000
KV_HS, KV_US = 163840, 5120
Q_HS, Q_US = 81920, 2560
NSLOT = 5
L_X, L_W = 0, 81920
L_Q, L_SIG = 81920, 94208
L_CONV, CONV_SZ, CS, U_OFF = 98304, 21248, 4160, 16640
L_WO, L_YD, L_EX = 0, 102400, 112640
LDS_BYTES = 163840
sWG, sWAVE = 2, 3
pX, pW, pWO, pWS, pK, pV, pSH, pH, pD, pGW, pOUT, pDBG = 4, 6, 8, 10, 12, 14, 16, 18, 20, 22, 24, 26
rWS, rA, rB, rC, rD = 28, 32, 36, 40, 44
sXCD, sI, sJT, sRT, sPRT, sCJ, sCH0, sNCH, sHEAD, sQB = 48, 49, 50, 51, 52, 53, 54, 55, 56, 57
sLW, sCH, sKH, sTB, sCNT, sSLOW = 58, 59, 60, 61, 62, 63
T0, T1, T2, T3, T4, T5, T6, T7 = 64, 65, 66, 67, 68, 69, 70, 71
sM = 72
sVMASK = 74
sTS = 76
sE = 78
sSC = 86
sKVB, sKVW, sOMS, sORS, sF4S, sCL = 87, 88, 89, 90, 91, 92
POLL_MAX = 30000
IDX, AKM, AKR, AV, L16, AQM, AQR, AF3, YDV = 224, 225, 226, 227, 228, 229, 230, 231, 232
WOV = 233
F3T = 238
WM0, WM1, WR0, WR1, AOM, AOR, AOUT, AG, AEX, AX2, AYD, AF4 = 244, 245, 246, 247, 248, 249, 250, 251, 252, 253, 254, 255
O_, QM, QR, KRM, KM, S_ = 192, 32, 36, 38, 40, 64
VS = (48, 208)
XE = 8

class Gen:
    def __init__(self, stamps=False, opt=None):
        self.a = Asm(); self.stamps = stamps; self.names = []; self.opt = opt or {}
    def o(self, k, d): return type(d)(self.opt.get(k, d))
    def srd(self, r, p, size):
        self.a(f"s_mov_b32 s{r}, s{p}\ns_mov_b32 s{r+1}, s{p+1}\ns_mov_b32 s{r+2}, {size:#x}\ns_mov_b32 s{r+3}, 0x20000")
    def stamp(self, name):
        if not self.stamps: return
        if name not in self.names: self.names.append(name)
        k = self.names.index(name); assert k < 62
        self.a(f"s_memrealtime s[{sTS}:{sTS+1}]\ns_waitcnt lgkmcnt(0)\nv_writelane_b32 v1, s{sTS}, {k}")
        if name == "start": self.a(f"s_memtime s[{sTS}:{sTS+1}]\ns_waitcnt lgkmcnt(0)\nv_writelane_b32 v1, s{sTS}, 62")
        if name == "end": self.a(f"s_memtime s[{sTS}:{sTS+1}]\ns_waitcnt lgkmcnt(0)\nv_writelane_b32 v1, s{sTS}, 63")
        self.a.done["ds"] = self.a.n["ds"]
    def poll(self, loads, tmp, cmp=None):
        a = self.a
        L, D = a.newlabel("POLL"), a.newlabel("POLLD")
        a(f"s_mov_b32 s{sCNT}, 0")
        a.label(L)
        k = 0
        for (va, r, imm, wd) in loads:
            ins = {1: "buffer_load_dword", 2: "buffer_load_dwordx2", 4: "buffer_load_dwordx4"}[wd]
            a(f"{ins} {vr(tmp+k, wd)}, v{va}, s[{r}:{r+3}], 0 offen offset:{imm} sc1"); k += wd
        a("s_waitcnt vmcnt(0)")
        a.done["vm"] = a.n["vm"]
        self.poll_check(tmp, k, cmp)
        a(f"s_cbranch_scc1 {D}")
        a(f"s_add_u32 s{sCNT}, s{sCNT}, 1\ns_cmp_lt_u32 s{sCNT}, {POLL_MAX}\ns_cbranch_scc0 {D}\ns_sleep 1\ns_branch {L}")
        a.label(D)
    def poll_check(self, tmp, k, cmp=None):
        a = self.a
        for j in range(1, k, 2):
            if j + 1 < k: a(f"v_min3_u32 v{tmp}, v{tmp}, v{tmp+j}, v{tmp+j+1}")
            else: a(f"v_min_u32 v{tmp}, v{tmp}, v{tmp+j}")
        a(cmp or f"v_cmp_ne_u32 vcc, 0, v{tmp}")
        a("s_nop 1\ns_cmp_eq_u64 vcc, exec")
    def flag_store(self, s, vt):
        a = self.a
        a(f"v_mov_b32 v{vt}, s{s}\nv_mov_b32 v{vt+1}, 1\ns_mov_b64 exec, 1")
        t = a.vm(f"buffer_store_dword v{vt+1}, v{vt}, s[{rWS}:{rWS+3}], 0 offen sc1")
        a("s_mov_b64 exec, -1")
        return t

    def prologue(self):
        a = self.a
        a(f"s_cmp_ge_u32 s{sWG}, 256\ns_cbranch_scc1 L_END")
        a(f"""s_load_dwordx4 s[4:7], s[0:1], 0
        s_load_dwordx16 s[12:27], s[0:1], 32
        s_load_dwordx2 s[10:11], s[0:1], 96
        s_load_dwordx2 s[8:9], s[0:1], 16
        v_lshrrev_b32 v1, 6, v0
        v_and_b32 v0, 63, v0
        s_and_b32 s{sXCD}, s{sWG}, 7
        v_readfirstlane_b32 s{sWAVE}, v1
        s_lshr_b32 s{sI}, s{sWG}, 3
        s_and_b32 s{T0}, s{sXCD}, 1
        s_mul_i32 s{T0}, s{T0}, 30
        s_add_u32 s{T0}, s{T0}, s{sI}
        s_lshr_b32 s{sJT}, s{T0}, 2
        s_and_b32 s{T0}, s{T0}, 3
        s_lshr_b32 s{T1}, s{sXCD}, 1
        s_lshl_b32 s{T1}, s{T1}, 2
        s_add_u32 s{sRT}, s{T0}, s{T1}
        s_lshr_b32 s{T0}, s{sI}, 4
        s_lshl_b32 s{T1}, s{sXCD}, 1
        s_add_u32 s{sPRT}, s{T0}, s{T1}
        s_and_b32 s{sCJ}, s{sI}, 15
        s_sub_u32 s{sLW}, s{sWAVE}, 4
        s_cmp_ge_u32 s{sWAVE}, 4
        s_cbranch_scc1 L_LOADER""")
    def common_scalars(self):
        self.a(f"""s_lshr_b32 s{T0}, s{sWG}, 1
        s_mul_i32 s{T0}, s{T0}, 5
        s_and_b32 s{T1}, s{sWG}, 1
        s_mul_i32 s{T2}, s{T1}, 3
        s_add_u32 s{sCH0}, s{T0}, s{T2}
        s_sub_u32 s{sNCH}, 3, s{T1}
        s_lshr_b32 s{T0}, s{sI}, 3
        s_lshl_b32 s{T1}, s{sXCD}, 2
        s_add_u32 s{sHEAD}, s{T0}, s{T1}
        s_and_b32 s{sQB}, s{sI}, 7
        s_lshr_b32 s{sKH}, s{sWAVE}, 2
        s_and_b32 s{sTB}, s{sWAVE}, 3
        s_mov_b32 s{sSLOW}, 0
        s_mov_b32 s{sVMASK}, 0x000fffff
        s_mov_b32 s{sVMASK+1}, 0x000fffff""")
    def persistent(self, t=192):
        a = self.a
        a(f"""v_mov_b32 v{IDX}, 0xdddddddd
        v_lshlrev_b32 v{AKM}, 4, v0
        v_lshlrev_b32 v{L16}, 4, v0
        v_lshlrev_b32 v{t}, 3, v0
        v_add_u32 v{AKR}, 2048, v{t}
        v_and_b32 v{t+1}, 31, v0
        v_lshrrev_b32 v{t+2}, 5, v0
        v_mul_u32_u24 v{t+2}, 320, v{t+2}
        v_lshl_add_u32 v{t+2}, v{t+1}, 4, v{t+2}
        v_add_u32 v{AV}, 2560, v{t+2}
        s_lshr_b32 s{T0}, s{sWAVE}, 1
        s_mul_i32 s{T0}, s{T0}, {Q_US}
        s_add_u32 s{T0}, s{T0}, {L_Q}
        s_and_b32 s{T1}, s{sWAVE}, 1
        s_lshl_b32 s{T2}, s{T1}, 10
        s_add_u32 s{T2}, s{T2}, s{T0}
        v_add_u32 v{AQM}, s{T2}, v{L16}
        s_lshl_b32 s{T1}, s{T1}, 8
        s_add_u32 s{T1}, s{T1}, s{T0}
        v_lshl_add_u32 v{AQR}, v{t+1}, 3, s{T1}
        s_mul_i32 s{sKVB}, s{sHEAD}, {KV_HS}
        s_mul_i32 s{sKVW}, s{sWAVE}, {KV_US}
        s_lshl_b32 s{T0}, s{sHEAD}, 16
        s_lshl_b32 s{T1}, s{sQB}, 3
        s_add_u32 s{T1}, s{T1}, s{sWAVE}
        s_lshl_b32 s{T2}, s{T1}, 10
        s_add_u32 s{T0}, s{T0}, s{T2}
        s_add_u32 s{sOMS}, s{T0}, {OM:#x}
        s_lshl_b32 s{T2}, s{sHEAD}, 14
        s_lshl_b32 s{T1}, s{T1}, 8
        s_add_u32 s{T1}, s{T1}, s{T2}
        s_add_u32 s{sORS}, s{T1}, {ORM:#x}
        s_lshl_b32 s{T0}, s{sQB}, 11
        s_lshl_b32 s{T1}, s{sHEAD}, 6
        s_add_u32 s{T0}, s{T0}, s{T1}
        s_add_u32 s{sF4S}, s{T0}, {F4:#x}""")
        a(f"""s_mul_i32 s{T0}, s{sQB}, 320
        s_add_u32 s{T0}, s{T0}, {F3:#x}
        v_lshl_add_u32 v{AF3}, v0, 3, s{T0}
        s_lshr_b32 s{T0}, s{sHEAD}, 1
        s_lshl_b32 s{T0}, s{T0}, 6
        s_and_b32 s{T1}, s{sHEAD}, 1
        s_lshl_b32 s{T1}, s{T1}, 3
        s_add_u32 s{T0}, s{T0}, s{T1}
        s_add_u32 s{T0}, s{T0}, {F5:#x}
        v_mov_b32 v{t}, s{T0}
        s_mov_b32 s{sM}, 0
        s_mov_b32 s{sM+1}, 0xffffff00
        v_cndmask_b32 v{AF3}, v{AF3}, v{t}, s[{sM}:{sM+1}]""")
        a(f"s_mul_i32 s{T0}, s{sWAVE}, {13*64}\ns_mul_i32 s{T1}, s{sQB}, 160")
        for k in range(5):
            a(f"""s_add_u32 s{T2}, s{T0}, {64*k}
            v_add_u32 v{t}, s{T2}, v0
            v_mul_u32_u24 v{t+1}, 52429, v{t}
            v_lshrrev_b32 v{t+1}, 19, v{t+1}
            v_mul_u32_u24 v{t+1}, {1280-160}, v{t+1}
            v_lshl_add_u32 v{t+1}, v{t}, 4, v{t+1}
            v_add_u32 v{WOV+k}, s{T1}, v{t+1}""")
        a(f"""s_mul_i32 s{T0}, s{sQB}, 80
        s_mul_i32 s{T1}, s{sWAVE}, 10
        s_add_u32 s{T0}, s{T0}, s{T1}
        v_lshrrev_b32 v{t}, 3, v0
        v_add_u32 v{t}, s{T0}, v{t}
        v_lshlrev_b32 v{t}, 12, v{t}
        v_and_b32 v{t+1}, 7, v0
        v_lshl_add_u32 v{t}, v{t+1}, 4, v{t}
        s_lshl_b32 s{T0}, s{sHEAD}, 7
        s_add_u32 s{T0}, s{T0}, {YD:#x}
        v_add_u32 v{YDV}, s{T0}, v{t}""")
        q, r, c8, tt, b0 = t, t + 1, t + 2, t + 3, t + 4
        a(f"""v_lshrrev_b32 v{q}, 4, v0
        v_lshrrev_b32 v{r}, 2, v0
        v_and_b32 v{r}, 3, v{r}
        v_and_b32 v{c8}, 3, v0
        v_lshlrev_b32 v{c8}, 3, v{c8}
        v_and_b32 v{tt}, 15, v0
        v_and_b32 v{b0}, 1, v{q}
        s_mul_i32 s{T2}, s{sKH}, {51200 + 96}
        s_mul_i32 s{T3}, s{sKH}, {51200 - 64}
        v_lshrrev_b32 v{t+5}, 1, v{q}
        v_mul_u32_u24 v{t+5}, 20, v{t+5}
        v_lshl_add_u32 v{t+5}, v{b0}, 2, v{t+5}
        v_add_u32 v{t+5}, v{t+5}, v{r}
        v_mul_u32_u24 v{t+5}, 160, v{t+5}
        v_add_u32 v{t+5}, v{t+5}, v{c8}
        v_add_u32 v{WM0}, s{T2}, v{t+5}
        v_add_u32 v{WM1}, s{T3}, v{t+5}
        v_mul_u32_u24 v{t+5}, 20, v{q}
        v_add3_u32 v{t+5}, v{t+5}, v{r}, 16
        v_mul_u32_u24 v{t+5}, 160, v{t+5}
        v_add_u32 v{t+5}, v{t+5}, v{c8}
        v_add_u32 v{WR0}, s{T2}, v{t+5}
        v_add_u32 v{WR1}, s{T3}, v{t+5}
        s_lshl_b32 s{T2}, s{sKH}, 20
        s_lshl_b32 s{T3}, s{sHEAD}, 11
        s_add_u32 s{T2}, s{T2}, s{T3}
        s_lshr_b32 s{T3}, s{sTB}, 1
        s_lshl_b32 s{T4}, s{T3}, 10
        s_add_u32 s{T2}, s{T2}, s{T4}
        s_and_b32 s{T4}, s{sTB}, 1
        s_lshl_b32 s{T4}, s{T4}, 8
        s_add_u32 s{T2}, s{T2}, s{T4}
        s_add_u32 s{T2}, s{T2}, {OM:#x}
        v_lshrrev_b32 v{t+5}, 1, v{q}
        v_lshlrev_b32 v{t+5}, 16, v{t+5}
        v_lshl_add_u32 v{t+5}, v{b0}, 9, v{t+5}
        v_lshl_add_u32 v{t+5}, v{tt}, 4, v{t+5}
        v_add_u32 v{AOM}, s{T2}, v{t+5}
        s_lshl_b32 s{T2}, s{sKH}, 18
        s_lshl_b32 s{T4}, s{sHEAD}, 9
        s_add_u32 s{T2}, s{T2}, s{T4}
        s_lshl_b32 s{T4}, s{sTB}, 7
        s_add_u32 s{T2}, s{T2}, s{T4}
        s_add_u32 s{T2}, s{T2}, {ORM:#x}
        v_lshlrev_b32 v{t+5}, 14, v{q}
        v_lshl_add_u32 v{t+5}, v{tt}, 3, v{t+5}
        v_add_u32 v{AOR}, s{T2}, v{t+5}
        s_lshr_b32 s{T2}, s{sHEAD}, 2
        s_lshl_b32 s{T2}, s{T2}, 11
        s_add_u32 s{T2}, s{T2}, {F4:#x}
        v_and_b32 v{t+5}, 31, v0
        v_lshl_add_u32 v{AF4}, v{t+5}, 6, s{T2}
        s_lshl_b32 s{T0}, s{sHEAD}, 6
        s_lshl_b32 s{T1}, s{sTB}, 4
        s_add_u32 s{T0}, s{T0}, s{T1}
        v_add_u32 v{t+5}, s{T0}, v{tt}
        v_lshlrev_b32 v{AG}, 2, v{t+5}
        v_add_u32 v{AG}, {GT:#x}, v{AG}
        v_mul_u32_u24 v{t+5}, 1280, v{t+5}
        v_lshl_add_u32 v{t+5}, v{q}, 3, v{t+5}
        s_mul_i32 s{T0}, s{sQB}, 160
        s_mul_i32 s{T1}, s{sKH}, 96
        s_add_u32 s{T0}, s{T0}, s{T1}
        v_add_u32 v{AOUT}, s{T0}, v{t+5}
        s_lshl_b32 s{T0}, s{sWAVE}, 12
        s_add_u32 s{T0}, s{T0}, {L_EX}
        v_add_u32 v{AEX}, s{T0}, v{L16}
        s_xor_b32 s{T0}, s{sWAVE}, 4
        s_lshl_b32 s{T0}, s{T0}, 12
        s_lshl_b32 s{T1}, s{sKH}, 10
        s_add_u32 s{T1}, s{T1}, s{T0}
        s_add_u32 s{T1}, s{T1}, {L_EX}
        v_add_u32 v{AX2}, s{T1}, v{L16}
        v_lshl_add_u32 v{AYD}, v{q}, 2, v{r}
        v_lshl_add_u32 v{AYD}, v{AYD}, 7, v{c8}
        s_mul_i32 s{T0}, s{sKH}, {48*128}
        s_lshl_b32 s{T1}, s{sTB}, 5
        s_add_u32 s{T0}, s{T0}, s{T1}
        s_add_u32 s{T0}, s{T0}, {L_YD}
        v_add_u32 v{AYD}, s{T0}, v{AYD}""")
    def att_init_list(self):
        return [f"v_mov_b32 v{O_+e}, 0" for e in range(16)] + [f"v_mov_b32 v{st+e}, 0x3f803f80" for st in VS for e in range(16)]

    def flag_reset(self):
        a = self.a
        L = a.newlabel("NOZ")
        a(f"s_cmp_lg_u32 s{sWAVE}, 0\ns_cbranch_scc1 {L}")
        a(f"""s_lshl_b32 s{T0}, s{sCJ}, 10
        s_lshl_b32 s{T1}, s{sPRT}, 6
        s_add_u32 s{T0}, s{T0}, s{T1}
        s_add_u32 s{T0}, s{T0}, {F1:#x}
        v_and_b32 v10, 3, v0
        v_lshlrev_b32 v11, 2, v10
        v_add_u32 v12, s{T0}, v11
        v_add_u32 v13, s{sCL}, v11
        s_mov_b32 s{sM}, 0xf0
        s_mov_b32 s{sM+1}, 0
        v_cndmask_b32 v12, v12, v13, s[{sM}:{sM+1}]
        s_lshl_b32 s{T0}, s{sCH0}, 2
        s_add_u32 s{T0}, s{T0}, {F3:#x}
        v_add_u32 v13, s{T0}, v11
        s_mov_b32 s{sM}, 0x300
        s_cmp_eq_u32 s{sNCH}, 3
        s_cselect_b32 s{sM}, 0x700, s{sM}
        v_cndmask_b32 v12, v12, v13, s[{sM}:{sM+1}]
        s_lshl_b32 s{T0}, s{sQB}, 11
        s_lshl_b32 s{T1}, s{sHEAD}, 6
        s_add_u32 s{T0}, s{T0}, s{T1}
        s_add_u32 s{T0}, s{T0}, {F4:#x}
        v_mov_b32 v13, s{T0}
        s_mov_b32 s{sM}, 0x1000
        v_cndmask_b32 v12, v12, v13, s[{sM}:{sM+1}]
        v_mov_b32 v13, 0
        s_mov_b32 exec_lo, 0x1fff
        s_mov_b32 exec_hi, 0
        buffer_store_dword v13, v12, s[{rWS}:{rWS+3}], 0 offen sc1
        s_mov_b64 exec, 1""")
        self.srd(rA, pDBG, 256)
        a(f"""s_and_b32 s{T0}, s{sWG}, 1
        s_lshl_b32 s{T0}, s{T0}, 7
        v_mov_b32 v12, s{T0}
        v_mov_b32 v13, 1
        s_waitcnt vmcnt(0)
        buffer_atomic_add v13, v12, s[{rA}:{rA+3}], 0 offen sc1
        s_mov_b64 exec, -1""")
        a.label(L)

    XA, WA, XA2, WA2, EA = 2, 6, 128, 132, 136
    def gemm_compute(self):
        a = self.a
        XA, WA = self.XA, self.WA
        self.common_scalars()
        a(f"""s_lshl_b32 s{T0}, s{sJT}, 10
        s_lshl_b32 s{T1}, s{sRT}, 6
        s_add_u32 s{T0}, s{T0}, s{T1}
        s_add_u32 s{sCL}, s{T0}, {F2:#x}
        s_lshl_b32 s{T0}, s{sXCD}, 1
        s_add_u32 s{T0}, s{T0}, s{sI}
        s_sub_u32 s{T7}, s{T0}, 30
        s_lshl_b32 s{T0}, s{T7}, 6
        s_add_u32 s{T0}, s{T0}, {F5:#x}
        s_cmp_ge_u32 s{sI}, 30
        s_cselect_b32 s{sCL}, s{T0}, s{sCL}
        s_waitcnt lgkmcnt(0)""")
        self.srd(rWS, pWS, WS_SIZE)
        if self.stamps: a("v_mov_b32 v1, 0")
        self.stamp("start")
        self.flag_reset()
        a(f"s_lshl_b32 s{T0}, s{sWAVE}, 2\ns_add_u32 s{sCL}, s{sCL}, s{T0}")
        self.persistent()
        for l in self.att_init_list():
            if int(l.split()[1][1:-1]) >= 192: a(l)
        a(f"s_cmp_ge_u32 s{sI}, 30\ns_cbranch_scc1 L_C_NOTILE")
        a(f"""s_and_b32 s{T0}, s{sWAVE}, 1
        s_lshl_b32 s{T0}, s{T0}, 13
        v_and_b32 v8, 31, v0
        v_lshrrev_b32 v9, 5, v0
        v_lshrrev_b32 v10, 1, v8
        v_and_b32 v10, 7, v10
        v_xor_b32 v10, v10, v9
        v_lshlrev_b32 v8, 7, v8
        v_add_u32 v8, s{T0}, v8""")
        for ks in range(4):
            a(f"v_xor_b32 v11, {2*ks}, v10\nv_lshl_add_u32 v{XA+ks}, v11, 4, v8\nv_add_u32 v{self.XA2+ks}, 0x10000, v{XA+ks}")
        a(f"""v_lshrrev_b32 v8, 2, v0
        v_and_b32 v8, 3, v8
        v_lshrrev_b32 v9, 5, v0
        v_lshl_add_u32 v9, v9, 3, v8
        v_lshlrev_b32 v9, 8, v9
        v_lshrrev_b32 v10, 4, v0
        v_and_b32 v10, 1, v10
        v_lshlrev_b32 v10, 1, v10
        v_lshrrev_b32 v11, 1, v0
        v_and_b32 v11, 1, v11
        v_or_b32 v10, v10, v11
        v_and_b32 v11, 1, v0
        v_lshlrev_b32 v11, 3, v11
        v_add_u32 v9, v9, v11
        v_add_u32 v9, {L_W}, v9
        s_and_b32 s{T0}, s{sWAVE}, 2""")
        for i in range(2):
            a(f"""s_add_u32 s{T1}, s{T0}, {i}
            v_xor_b32 v11, s{T1}, v8
            v_lshl_add_u32 v11, v11, 2, v10
            v_lshl_add_u32 v{WA+i}, v11, 4, v9
            v_add_u32 v{self.WA2+i}, 0x10000, v{WA+i}""")
        def lowinit():
            for l in self.att_init_list():
                if int(l.split()[1][1:-1]) < 192: a(l)
        a(f"s_cmp_ge_u32 s{sJT}, 10\ns_cbranch_scc1 L_C_VTILE")
        self.epi_qk_setup()
        self.gemm_loop(False)
        lowinit()
        a(f"s_cmp_ge_u32 s{sJT}, 5\ns_cbranch_scc1 L_C_KEPI")
        snap = a.snapshot()
        self.gemm_epi_qk(True)
        a("s_branch L_C_FLAG")
        a.label("L_C_KEPI")
        a.restore(snap)
        self.gemm_epi_qk(False)
        a("s_branch L_C_FLAG")
        a.label("L_C_NOTILE")
        self.gate()
        lowinit()
        a("s_branch L_C_FLAG")
        a.label("L_C_VTILE")
        self.epi_v_setup()
        self.gemm_loop(True)
        lowinit()
        self.gemm_epi_v()
        a.label("L_C_FLAG")
        a.reset_counters()
        self.stamp("c.epi")
        a("s_waitcnt vmcnt(0)")
        self.flag_store(sCL, 2)
        self.stamp("c.F2set")
        a("s_branch L_ATT")

    def gate(self):
        a = self.a
        a.reset_counters()
        X, W, Z = 32, 12, 2
        self.srd(rA, pX, 2048 * 1280); self.srd(rB, pGW, 1280)
        a(f"""s_lshl_b32 s{T0}, s{T7}, 7
        s_lshl_b32 s{T1}, s{sWAVE}, 5
        s_add_u32 s{T6}, s{T0}, s{T1}
        v_lshrrev_b32 v10, 4, v0
        v_add_u32 v11, s{T6}, v10
        v_mul_u32_u24 v11, 1280, v11
        v_and_b32 v2, 15, v0
        v_lshlrev_b32 v3, 4, v2
        v_add_u32 v11, v11, v3""")
        for j in range(5): tw = a.vm(f"buffer_load_dwordx4 {vr(W+4*j,4)}, v3, s[{rB}:{rB+3}], 0 offen offset:{256*j}")
        tx = []
        for g in range(8):
            a(f"s_mov_b32 s{T0}, {5120*g}")
            for j in range(5): t = a.vm(f"buffer_load_dwordx4 {vr(X+20*g+4*j,4)}, v11, s[{rA}:{rA+3}], s{T0} offen offset:{256*j}")
            tx.append(t)
        a(f"""v_lshl_add_u32 v10, v2, 2, v10
        v_add_u32 v10, s{T6}, v10
        v_lshlrev_b32 v10, 2, v10
        v_add_u32 v10, {GT:#x}, v10
        v_mov_b32 v11, v2
        s_barrier
        s_barrier""")
        for g in range(8):
            a.wait(tw, tx[g])
            for e in range(20):
                a(f"v_dot2_f32_bf16 v{Z+g}, v{X+20*g+e}, v{W+e}, {'0' if e == 0 else f'v{Z+g}'}")
        a.nop(3)
        for sh in (8, 4, 2, 1):
            for g in range(8): a(f"v_add_f32_dpp v{Z+g}, v{Z+g}, v{Z+g} row_ror:{sh} row_mask:0xf bank_mask:0xf")
        for g in range(1, 8):
            a(f"v_cmp_eq_u32 vcc, {g}, v11\ns_nop 1\nv_cndmask_b32 v{Z}, v{Z}, v{Z+g}, vcc")
        a(f"""v_mul_f32 v{Z}, {f2u(-math.log2(math.e)):#x}, v{Z}
        v_exp_f32 v{Z}, v{Z}
        s_mov_b32 exec_lo, 0x00ff00ff
        v_add_f32 v{Z}, 1.0, v{Z}
        v_rcp_f32 v{Z}, v{Z}
        s_mov_b32 exec_hi, 0x00ff00ff
        buffer_store_dword v{Z}, v10, s[{rWS}:{rWS+3}], 0 offen sc1
        s_mov_b64 exec, -1""")

    def gemm_loop(self, vt):
        a = self.a
        a.reset_counters()
        FR, ACC = 32, 64
        def reads(s, ks):
            st = FR + 16 * (ks & 1); sl = s % NSLOT
            xa, wa, sl = (self.XA, self.WA, sl * 16384) if sl < 4 else (self.XA2, self.WA2, 0)
            rx = lambda j: (lambda: a.ds(f"ds_read_b128 {vr(st+4*j,4)}, v{xa+ks} offset:{sl + 4096*j}"))
            rw = lambda i, q: (lambda: a.ds(f"ds_read_b64_tr_b16 {vr(st+8+4*i+2*q,2)}, v{wa+i} offset:{sl + (16*ks+4*q)*256}"))
            if vt: return [("X0", rx(0)), ("W0", rw(0,0)), ("W0", rw(0,1)), ("W1", rw(1,0)), ("W1", rw(1,1)), ("X1", rx(1))]
            return [("W0", rw(0,0)), ("W0", rw(0,1)), ("X0", rx(0)), ("X1", rx(1)), ("W1", rw(1,0)), ("W1", rw(1,1))]
        def group(ks, toks, nxt, first):
            st = FR + 16 * (ks & 1); out = {}
            sched = [3, 3, 0, 0]; k = 0
            for m, (i, j) in enumerate(((0,0),(0,1),(1,0),(1,1))):
                if vt: A, B, na, nb = st + 4*i, st + 8 + 4*j, f"X{i}", f"W{j}"
                else:  A, B, na, nb = st + 8 + 4*i, st + 4*j, f"W{i}", f"X{j}"
                a.wait(toks[na], toks[nb])
                d = ACC + 16 * (2*i + j)
                a(f"v_mfma_f32_32x32x16_bf16 {vr(d,16)}, {vr(A,4)}, {vr(B,4)}, {'0' if first else vr(d,16)}")
                for _ in range(sched[m]):
                    if k < len(nxt): out[nxt[k][0]] = nxt[k][1](); k += 1
            return out
        a("s_barrier")
        toks = {}
        for n, f in reads(0, 0): toks[n] = f()
        for s in range(10):
            for ks in range(4):
                if ks < 3:
                    toks = group(ks, toks, reads(s, ks + 1), s == 0 and ks == 0)
                else:
                    a.wait_all(vm=False); a("s_barrier")
                    toks = group(ks, toks, reads(s + 1, 0) if s < 9 else [], False)

    def epi_qk_setup(self):
        a = self.a
        sBASE, sHS, sPQ = T0, T1, T3
        a(f"""s_mov_b32 s{sHS}, {Q_HS}
        s_mov_b32 s{T4}, {Q_US}
        s_cmp_ge_u32 s{sJT}, 5
        s_cselect_b32 s{sHS}, {KV_HS}, s{sHS}
        s_cselect_b32 s{T4}, {KV_US}, s{T4}
        s_cselect_b32 s{sBASE}, {KV}, {QO:#x}
        s_cselect_b32 s{T5}, 5, 0
        s_cselect_b64 s[{sM}:{sM+1}], -1, 0
        s_mov_b32 s{sSC}, {f2u(math.log2(math.e) / math.sqrt(20.0)):#x}
        s_sub_u32 s{T5}, s{sJT}, s{T5}
        s_lshl_b32 s{sPQ}, s{T5}, 4
        s_and_b32 s{T5}, s{sWAVE}, 2
        s_lshl_b32 s{T5}, s{T5}, 2
        s_add_u32 s{sPQ}, s{sPQ}, s{T5}
        s_lshl_b32 s{T5}, s{sRT}, 1
        s_and_b32 s{T6}, s{sWAVE}, 1
        s_add_u32 s{T5}, s{T5}, s{T6}
        s_mul_i32 s{T5}, s{T5}, s{T4}
        s_add_u32 s{sBASE}, s{sBASE}, s{T5}
        v_and_b32 v8, 31, v0
        v_and_b32 v9, 0x13, v0
        v_and_b32 v10, 4, v0
        v_lshl_or_b32 v9, v10, 1, v9
        v_and_b32 v10, 8, v0
        v_lshrrev_b32 v10, 1, v10
        v_or_b32 v9, v9, v10
        v_cndmask_b32 v8, v8, v9, s[{sM}:{sM+1}]
        v_lshrrev_b32 v9, 5, v0
        v_lshlrev_b32 v10, 3, v9
        v_lshl_add_u32 v12, v8, 4, v10
        v_add_u32 v13, 1024, v12
        v_mul_lo_u32 v10, v9, s{sHS}
        v_lshl_add_u32 v14, v8, 3, v10
        v_add_u32 v14, 1024, v14
        v_add_u32 v15, 256, v14""")
        for p in range(8):
            a(f"""s_add_u32 s{T4}, s{sPQ}, {p}
            s_mul_i32 s{T5}, s{T4}, 205
            s_lshr_b32 s{T5}, s{T5}, 10
            s_mul_i32 s{T6}, s{T5}, 5
            s_sub_u32 s{T4}, s{T4}, s{T6}
            s_lshl_b32 s{T5}, s{T5}, 1
            s_mul_i32 s{T5}, s{T5}, s{sHS}
            s_add_u32 s{T5}, s{T5}, s{sBASE}
            s_lshl_b32 s{T6}, s{T4}, 9
            s_add_u32 s{T5}, s{T5}, s{T6}
            s_sub_u32 s{T6}, s{sHS}, 1536
            s_cmp_ge_u32 s{T4}, 3
            s_cselect_b32 s{T6}, s{T6}, 0
            s_add_u32 s{sE+p}, s{T5}, s{T6}
            s_cmp_eq_u32 s{T4}, 2
            s_cselect_b64 s[{sM}:{sM+1}], -1, 0""")
            for j in range(2): a(f"v_cndmask_b32 v{self.EA+2*p+j}, v{12+j}, v{14+j}, s[{sM}:{sM+1}]")
    def gemm_epi_qk(self, scale):
        a = self.a
        ACC = 64; k = 0
        for i in range(2):
            for j in range(2):
                for g in range(4):
                    d = ACC + 16 * (2*i + j) + 4*g
                    t = 8 + 2 * (k % 12); k += 1
                    if scale:
                        for e in range(4): a(f"v_mul_f32 v{d+e}, s{sSC}, v{d+e}")
                    a(f"v_cvt_pk_bf16_f32 v{t}, v{d}, v{d+1}\nv_cvt_pk_bf16_f32 v{t+1}, v{d+2}, v{d+3}")
                    a.vm(f"buffer_store_dwordx2 {vr(t,2)}, v{self.EA+2*(4*i+g)+j}, s[{rWS}:{rWS+3}], s{sE+4*i+g} offen sc1")
    def epi_v_setup(self):
        a = self.a
        a(f"""s_sub_u32 s{T0}, s{sJT}, 10
        s_lshl_b32 s{T0}, s{T0}, 7
        s_and_b32 s{T1}, s{sWAVE}, 2
        s_lshl_b32 s{T1}, s{T1}, 5
        s_add_u32 s{T0}, s{T0}, s{T1}
        s_lshl_b32 s{T1}, s{sRT}, 1
        s_and_b32 s{T2}, s{sWAVE}, 1
        s_add_u32 s{T1}, s{T1}, s{T2}
        s_mul_i32 s{T1}, s{T1}, {KV_US}
        s_add_u32 s{sE}, s{T1}, {KV + 2560}
        s_mov_b32 s{T2}, {KV_HS - 320}
        v_and_b32 v8, 31, v0
        v_lshrrev_b32 v9, 5, v0
        v_mul_u32_u24 v9, 320, v9""")
        for j in range(2):
            a(f"""v_add_u32 v10, s{T0}, v8
            v_add_u32 v10, {32*j}, v10
            v_mul_u32_u24 v11, 3277, v10
            v_lshrrev_b32 v11, 16, v11
            v_mul_lo_u32 v11, v11, s{T2}
            v_lshl_add_u32 v10, v10, 4, v9
            v_add_u32 v{self.EA+j}, v10, v11""")
    def gemm_epi_v(self):
        a = self.a
        ACC = 64; k = 0
        for i in range(2):
            for j in range(2):
                for s in range(2):
                    d = ACC + 16 * (2*i + j) + 8*s
                    t = 8 + 4 * (k % 6); k += 1
                    for e in range(4): a(f"v_cvt_pk_bf16_f32 v{t+e}, v{d+2*e}, v{d+2*e+1}")
                    a.vm(f"buffer_store_dwordx4 {vr(t,4)}, v{self.EA+j}, s[{rWS}:{rWS+3}], s{sE} offen offset:{(2*i+s)*640} sc1")

    XS, WS_, PA, PB, PW, PS, HA, HL = 2, 6, 10, 11, 12, 13, 14, 15
    KR_, VV_, SW_, HD_, DV_, PO_ = 16, 176, 116, 132, 156, 160
    def dma_setup(self):
        a = self.a
        a(f"""v_lshrrev_b32 v16, 3, v0
        v_and_b32 v17, 7, v0
        v_lshrrev_b32 v18, 1, v16
        s_lshl_b32 s{T0}, s{sRT}, 7
        s_lshl_b32 s{T1}, s{sLW}, 5
        s_add_u32 s{T0}, s{T0}, s{T1}
        v_add_u32 v16, s{T0}, v16
        v_mul_u32_u24 v16, 1280, v16""")
        for n in range(4):
            a(f"""v_xor_b32 v19, {(4*n) & 7}, v18
            v_xor_b32 v19, v19, v17
            v_lshl_add_u32 v19, v19, 4, v16
            v_add_u32 v{self.XS+n}, {n*(8*1280-1024)}, v19""")
        a(f"""v_lshrrev_b32 v16, 4, v0
        v_and_b32 v17, 15, v0
        v_lshlrev_b32 v18, 2, v16
        v_xor_b32 v17, v17, v18
        s_lshl_b32 s{T0}, s{sLW}, 4
        v_add_u32 v16, s{T0}, v16
        v_mul_u32_u24 v16, 3840, v16
        v_lshl_add_u32 v16, v17, 4, v16
        s_lshl_b32 s{T0}, s{sJT}, 8
        v_add_u32 v{self.WS_}, s{T0}, v16""")
        for n in range(1, 4): a(f"v_add_u32 v{self.WS_+n}, {n*(4*3840-1024)}, v{self.WS_}")
        a(f"s_lshl_b32 s{T7}, s{sLW}, 12")
    def stage_dma(self, s):
        a = self.a
        sl = (s % NSLOT) * 16384
        a(f"s_add_u32 m0, s{T7}, {L_X + sl}\ns_mov_b32 s{T0}, {128*s}")
        for n in range(4): a.vm(f"buffer_load_dwordx4 v{self.XS+n}, s[{rA}:{rA+3}], s{T0} offen offset:{1024*n} lds")
        a(f"s_add_u32 m0, s{T7}, {L_W + sl}\ns_mov_b32 s{T0}, {64*3840*s}")
        for n in range(4): t = a.vm(f"buffer_load_dwordx4 v{self.WS_+n}, s[{rB}:{rB+3}], s{T0} offen offset:{1024*n} lds")
        return t
    def pre_setup(self):
        self.a(f"""v_mul_u32_u24 v16, 52, v0
        v_lshrrev_b32 v16, 8, v16
        v_mul_u32_u24 v17, 5, v16
        v_sub_u32 v17, v0, v17
        s_lshl_b32 s{T0}, s{sPRT}, 7
        s_lshl_b32 s{T1}, s{sLW}, 5
        s_add_u32 s{T0}, s{T0}, s{T1}
        v_lshl_add_u32 v16, v16, 2, s{T0}
        s_mul_i32 s{T1}, s{sCJ}, 80
        v_lshl_add_u32 v18, v17, 4, s{T1}
        v_mul_u32_u24 v19, 1280, v16
        v_add_u32 v{self.PB}, v19, v18
        v_subrev_u32 v{self.PA}, 3840, v{self.PB}
        v_lshlrev_b32 v{self.PW}, 2, v18
        v_lshlrev_b32 v18, 11, v18
        v_lshlrev_b32 v16, 1, v16
        v_sub_u32 v18, v18, v16
        v_add_u32 v{self.PS}, {UR + 4088:#x}, v18""")
    def pre_loads(self):
        a = self.a
        self.srd(rC, pK, 2048 * 1280); self.srd(rD, pV, 2048 * 1280)
        a("s_mov_b32 exec_hi, 0xff")
        for j in range(3): a.vm(f"buffer_load_dwordx4 {vr(self.KR_+4*j,4)}, v{self.PA}, s[{rC}:{rC+3}], 0 offen offset:{1280*j}")
        for j in range(4): a.vm(f"buffer_load_dwordx4 {vr(self.KR_+12+4*j,4)}, v{self.PB}, s[{rC}:{rC+3}], 0 offen offset:{1280*j}")
        for j in range(4): a.vm(f"buffer_load_dwordx4 {vr(self.VV_+4*j,4)}, v{self.PB}, s[{rD}:{rD+3}], 0 offen offset:{1280*j}")
        self.srd(rC, pSH, 640 * 8)
        for j in range(4): tp = a.vm(f"buffer_load_dwordx4 {vr(self.SW_+4*j,4)}, v{self.PW}, s[{rC}:{rC+3}], 0 offen offset:{16*j}")
        a("s_mov_b32 exec_hi, -1")
        return tp
    def h_loads(self):
        a = self.a
        a(f"""s_min_u32 s{T0}, s{sLW}, 2
        s_add_u32 s{sCH}, s{sCH0}, s{T0}
        s_min_u32 s{sCH}, s{sCH}, 639
        s_lshl_b32 s{T1}, s{sCH}, 12
        v_lshl_add_u32 v{self.HA}, v0, 4, s{T1}
        s_mul_i32 s{T0}, s{T0}, {CONV_SZ}
        s_add_u32 s{T6}, s{T0}, {L_CONV}
        v_lshl_add_u32 v{self.HL}, v0, 4, s{T6}
        s_lshl_b32 s{T1}, s{sCH}, 1
        v_mov_b32 v{self.DV_}, s{T1}""")
        self.srd(rD, pH, 640 * 4096)
        for g in range(4):
            a.vm(f"buffer_load_dwordx4 {vr(self.HD_+6*g,4)}, v{self.HA}, s[{rD}:{rD+3}], 0 offen offset:{1024*g}")
            a.vm(f"buffer_load_dwordx2 {vr(self.HD_+6*g+4,2)}, v{self.HA}, s[{rD}:{rD+3}], 0 offen offset:{1024*g+16}")
        self.srd(rC, pD, 640 * 2)
        return a.vm(f"buffer_load_ushort v{self.DV_}, v{self.DV_}, s[{rC}:{rC+3}], 0 offen")
    def pre_compute_list(self):
        L = []
        K, V, W, AC = 76, 90, 98, 106
        lo = lambda d, s: L.append(f"v_lshlrev_b32 v{d}, 16, v{s}")
        hi = lambda d, s: L.append(f"v_and_b32 v{d}, 0xffff0000, v{s}")
        for p in range(4):
            for j in range(7): lo(K+2*j, self.KR_+4*j+p); hi(K+2*j+1, self.KR_+4*j+p)
            for j in range(4): lo(V+2*j, self.VV_+4*j+p); hi(V+2*j+1, self.VV_+4*j+p)
            w = self.SW_ + 4*p
            lo(W, w); lo(W+1, w+2); hi(W+2, w); hi(W+3, w+2); lo(W+4, w+1); lo(W+5, w+3); hi(W+6, w+1); hi(W+7, w+3)
            for lag in (3, 2, 1, 0):
                for t in range(4):
                    kk = K + 2*(3 + t - lag)
                    if self.o("pk", 1):
                        if lag == 3: L.append(f"v_pk_mul_f32 {vr(AC+2*t,2)}, {vr(kk,2)}, {vr(W+2*lag,2)}")
                        else: L.append(f"v_pk_fma_f32 {vr(AC+2*t,2)}, {vr(kk,2)}, {vr(W+2*lag,2)}, {vr(AC+2*t,2)}")
                    else:
                        for h in range(2):
                            if lag == 3: L.append(f"v_mul_f32 v{AC+2*t+h}, v{kk+h}, v{W+2*lag+h}")
                            else: L.append(f"v_fmac_f32 v{AC+2*t+h}, v{kk+h}, v{W+2*lag+h}")
            for t in range(4):
                if self.o("pk", 1): L.append(f"v_pk_mul_f32 {vr(AC+2*t,2)}, {vr(AC+2*t,2)}, {vr(V+2*t,2)}")
                else:
                    for h in range(2): L.append(f"v_mul_f32 v{AC+2*t+h}, v{AC+2*t+h}, v{V+2*t+h}")
            for h in range(2):
                o = self.PO_ + 4*p + 2*h
                L.append(f"v_cvt_pk_bf16_f32 v{o}, v{AC+6+h}, v{AC+4+h}"); L.append(f"v_cvt_pk_bf16_f32 v{o+1}, v{AC+2+h}, v{AC+h}")
        return L
    def pre_stores(self):
        a = self.a
        a("s_mov_b32 exec_hi, 0xff")
        for e in range(8):
            a(f"s_mov_b32 s{T0}, {4096*e}")
            t = a.vm(f"buffer_store_dwordx2 {vr(self.PO_+2*e,2)}, v{self.PS}, s[{rWS}:{rWS+3}], s{T0} offen sc1")
        a("s_mov_b32 exec_hi, -1")
        return t
    def h_group(self, D, imm, t0):
        a = self.a
        t1, t2 = t0 + 4, t0 + 8
        for e in range(4): a(f"v_alignbit_b32 v{t0+e}, v{D+e+1}, v{D+e}, 16")
        for e in range(4): a(f"v_mov_b32 v{t1+e}, v{D+e+1}")
        for e in range(4): a(f"v_alignbit_b32 v{t2+e}, v{D+e+2}, v{D+e+1}, 16")
        for r, src in enumerate((t0, t1, t2, D + 2)):
            a.ds(f"ds_write_b128 v{self.HL}, {vr(src,4)} offset:{r*CS + imm}")
    def h_to_lds(self):
        a = self.a
        a(f"v_readlane_b32 s{T0}, v{self.HD_}, 0\nv_readlane_b32 s{T1}, v{self.HD_+1}, 0")
        for g in range(4): self.h_group(self.HD_ + 6*g, 32 + 1024*g, 64 + 12*g)
        D = 112
        for e in range(6): a(f"v_mov_b32 v{D+e}, 0")
        a("s_mov_b32 exec_hi, 0")
        a.ds(f"ds_write_b128 v{self.HL}, {vr(D,4)} offset:{U_OFF + 4096}")
        a(f"v_writelane_b32 v{D+4}, s{T0}, 1\nv_writelane_b32 v{D+5}, s{T1}, 1\ns_mov_b64 exec, 3")
        self.h_group(D, 0, 120)
        a("s_mov_b64 exec, -1")
    def f1_flag(self):
        a = self.a
        a(f"""s_lshl_b32 s{T0}, s{sCJ}, 10
        s_lshl_b32 s{T1}, s{sPRT}, 6
        s_add_u32 s{T0}, s{T0}, s{T1}
        s_lshl_b32 s{T1}, s{sLW}, 2
        s_add_u32 s{T0}, s{T0}, s{T1}
        s_add_u32 s{T0}, s{T0}, {F1:#x}""")
        return self.flag_store(T0, 114)
    def sig_clear(self):
        a = self.a
        a(f"v_mov_b32 v44, {L_SIG}\nv_mov_b32 v45, 0")
        a.ds("ds_write_b32 v44, v45")
        a.wait_all(vm=False)
    def counter_load(self):
        a = self.a
        L = a.newlabel("NOCL")
        a("v_and_b32 v46, 1, v0\nv_lshlrev_b32 v46, 7, v46")
        a(f"s_cmp_lg_u32 s{sWAVE}, 7\ns_cbranch_scc1 {L}")
        self.srd(rC, pDBG, 256)
        a(f"buffer_load_dword v47, v46, s[{rC}:{rC+3}], 0 offen sc1")
        a.label(L)

    def loader(self):
        a = self.a
        a.label("L_LOADER")
        a.reset_counters()
        kvfirst = self.o("kvfirst", 1)
        if kvfirst: self.pre_setup()
        self.dma_setup()
        a("s_waitcnt lgkmcnt(0)")
        if self.stamps: a("v_mov_b32 v1, 0")
        self.stamp("start")
        if kvfirst: tp = self.pre_loads()
        self.srd(rA, pX, 2048 * 1280); self.srd(rB, pW, 640 * 3840)
        a(f"s_cmp_ge_u32 s{sI}, 30\ns_cbranch_scc1 L_L_SKIP")
        S = {s: self.stage_dma(s) for s in range(NSLOT)}
        a.label("L_L_SKIP")
        if not kvfirst: self.pre_setup(); tp = self.pre_loads()
        self.srd(rWS, pWS, WS_SIZE)
        self.common_scalars()
        self.persistent()
        a(f"s_cmp_ge_u32 s{sI}, 30\ns_cbranch_scc1 L_L_NOTILE")
        PC = self.pre_compute_list()
        c0, c1 = self.o("c0", 1), self.o("c1", 6)
        per = -(-len(PC) // (c1 - c0 + 1))
        ts = None; flagged = False
        for s in range(10):
            a.wait(S[s])
            if ts is not None and not flagged and a.done["vm"] >= ts.idx: self.f1_flag(); flagged = True
            self.stamp(f"l.w{s}")
            a("s_barrier")
            self.stamp(f"l.b{s}")
            if 1 <= s and s + NSLOT - 1 <= 9: S[s+NSLOT-1] = self.stage_dma(s + NSLOT - 1)
            if s == 10 - NSLOT: th = self.h_loads()
            if s == 6: self.counter_load()
            if c0 <= s <= c1:
                if s == c0: a.wait(tp)
                for l in PC[(s-c0)*per:(s-c0+1)*per]: a(l)
                if s == c1: ts = self.pre_stores()
            if s == c1 + 2 and not flagged: a.wait(ts); self.f1_flag(); flagged = True
        if not flagged: a.wait(ts); self.f1_flag()
        self.sig_clear()
        a("s_branch L_CONV")
        a.label("L_L_NOTILE")
        a.reset_counters()
        self.h_loads()
        a.wait_all(force=True)
        for l in PC: a(l)
        self.pre_stores()
        self.counter_load()
        a.wait_all(force=True)
        a("s_barrier")
        self.f1_flag()
        self.sig_clear()
        a.label("L_CONV")
        a.reset_counters()
        a("s_barrier")
        a(f"s_cmp_eq_u32 s{sWAVE}, 7\ns_cbranch_scc1 L_FETCH")
        a(f"s_cmp_lt_u32 s{sLW}, s{sNCH}\ns_cbranch_scc1 L_CONV2")
        for l in self.att_init_list(): a(l)
        a("s_branch L_ATT")
        self.fetcher()
        a.label("L_CONV2")
        self.conv()

    def fetcher(self):
        a = self.a
        a.label("L_FETCH")
        a.reset_counters()
        OK = a.newlabel("CNTOK")
        a("s_waitcnt vmcnt(0)")
        self.poll_check(47, 1, cmp="v_cmp_le_u32 vcc, 0x80, v47")
        a(f"s_cbranch_scc1 {OK}")
        self.srd(rC, pDBG, 256)
        self.poll([(46, rC, 0, 1)], 47, cmp="v_cmp_le_u32 vcc, 0x80, v47")
        a.label(OK)
        a(f"""s_mul_i32 s{T0}, s{sCH0}, 1639
        s_lshr_b32 s{T0}, s{T0}, 16
        s_lshl_b32 s{T0}, s{T0}, 10
        s_add_u32 s{T0}, s{T0}, {F1:#x}
        v_and_b32 v8, 15, v0
        v_lshl_add_u32 v9, v8, 6, s{T0}""")
        self.poll([(9, rWS, 0, 4)], 16)
        self.stamp("f.F1ok")
        a(f"s_lshl_b32 s{T0}, s{sCH0}, 12\ns_add_u32 s{T0}, s{T0}, {UR:#x}")
        for c in range(3):
            L = a.newlabel("NOU")
            if c == 2: a(f"s_cmp_lt_u32 s{sNCH}, 3\ns_cbranch_scc1 {L}")
            a(f"s_mov_b32 m0, {L_CONV + c*CONV_SZ + U_OFF}\ns_add_u32 s{T1}, s{T0}, {4096*c}")
            for j in range(4): a(f"buffer_load_dwordx4 v{L16}, s[{rWS}:{rWS+3}], s{T1} offen offset:{1024*j} sc1 lds")
            if c == 2: a.label(L)
        a(f"""s_mul_i32 s{T0}, s{sHEAD}, 20
        v_lshrrev_b32 v9, 4, v0
        v_and_b32 v10, 1, v9
        v_mul_u32_u24 v10, 19, v10
        v_add_u32 v10, s{T0}, v10
        v_lshrrev_b32 v10, 7, v10
        v_lshrrev_b32 v9, 1, v9
        v_mul_u32_u24 v9, 5, v9
        v_add3_u32 v9, v9, v10, 5
        v_lshl_add_u32 v9, v9, 4, v8
        v_lshlrev_b32 v9, 6, v9
        v_add_u32 v9, {F2:#x}, v9
        v_lshl_add_u32 v10, v10, 4, s{sQB}
        v_add_u32 v10, s{sQB}, v10
        v_and_b32 v11, 1, v0
        v_add_u32 v10, v10, v11
        v_lshlrev_b32 v10, 6, v10
        v_add_u32 v10, {F2:#x}, v10
        v_mov_b32 v44, {L_SIG}
        v_mov_b32 v45, 1""")
        for l in self.att_init_list(): a(l)
        a("s_waitcnt vmcnt(0)\nds_write_b32 v44, v45")
        self.stamp("f.u")
        self.poll([(9, rWS, 0, 4), (10, rWS, 0, 4)], 16)
        self.stamp("f.F2ok")
        a(f"""s_mul_i32 s{T0}, s{sHEAD}, {Q_HS}
        s_mul_i32 s{T1}, s{sQB}, {4*Q_US}
        s_add_u32 s{T0}, s{T0}, s{T1}
        s_add_u32 s{T0}, s{T0}, {QO:#x}""")
        def lin(sbase, lds0, n):
            for k in range(n):
                if k % 4 == 0: a(f"s_mov_b32 m0, {lds0 + 1024*k}\ns_add_u32 s{T1}, s{sbase}, {1024*k}")
                a.vm(f"buffer_load_dwordx4 v{L16}, s[{rWS}:{rWS+3}], s{T1} offen offset:{1024*(k%4)} sc1 lds")
        lin(T0, L_Q, 10)
        lin(sKVB, 0, 40)
        a.wait_all()
        self.stamp("f.kv0")
        a("s_branch L_ATT")

    def conv(self):
        a = self.a
        a.reset_counters()
        ACC, FR = 16, 64
        HA, UB, UE, YS, DV = 2, 3, 4, 5, self.DV_
        a("s_waitcnt vmcnt(0)")
        self.h_to_lds()
        a(f"""v_lshrrev_b32 v8, 4, v0
        s_lshl_b32 s{T0}, s{sCH}, 12
        v_lshrrev_b32 v9, 2, v0
        v_and_b32 v9, 3, v9
        v_mul_u32_u24 v9, {CS}, v9
        v_lshl_add_u32 v9, v8, 4, v9
        v_and_b32 v10, 3, v0
        v_lshl_add_u32 v9, v10, 3, v9
        v_add_u32 v{HA}, s{T6}, v9
        v_and_b32 v9, 15, v0
        v_lshlrev_b32 v9, 5, v9
        v_lshlrev_b32 v10, 4, v8
        v_sub_u32 v10, v10, v9
        v_add_u32 v10, s{T6}, v10
        v_add_u32 v{UB}, {U_OFF + 480}, v10
        v_lshl_add_u32 v9, v8, 3, v9
        v_sub_u32 v10, s{T6}, v9
        v_add_u32 v{UE}, {U_OFF + 504}, v10
        s_add_u32 s{T0}, s{T0}, {YD:#x}
        v_add_u32 v{YS}, s{T0}, v9
        v_lshlrev_b32 v7, 16, v{DV}
        v_mov_b32 v8, {L_SIG}
        s_mov_b32 s{sCNT}, 0""")
        self.stamp("v.h")
        L, D = a.newlabel("SIG"), a.newlabel("SIGD")
        a.label(L)
        a(f"""ds_read_b32 v9, v8
        s_waitcnt lgkmcnt(0)
        v_readfirstlane_b32 s{T0}, v9
        s_add_u32 s{sCNT}, s{sCNT}, 1
        s_cmp_lg_u32 s{T0}, 0
        s_cbranch_scc1 {D}
        s_cmp_lt_u32 s{sCNT}, {POLL_MAX*40}
        s_cbranch_scc1 {L}""")
        a.label(D)
        a.reset_counters()
        def reads(rho):
            st = FR + 64 * (rho & 1)
            ra = lambda i, q: (lambda: a.ds(f"ds_read_b64_tr_b16 {vr(st+4*i+2*q,2)}, v{HA} offset:{64*(8*i+rho) + 8*q}"))
            rb = lambda d: (lambda: a.ds(f"ds_read_b128 {vr(st+32+4*d,4)}, v{UB} offset:{64*(56 - (8*d - rho))}"))
            L = [("A0", ra(0,0)), ("A0", ra(0,1))] + [(f"B{d}", rb(d)) for d in range(8)]
            for i in range(1, 8): L += [(f"A{i}", ra(i,0)), (f"A{i}", ra(i,1))]
            return L
        toks = {}
        for n, f in reads(0): toks[n] = f()
        self.stamp("v.u")
        init = self.att_init_list()
        for rho in range(8):
            st = FR + 64 * (rho & 1)
            nxt = reads(rho + 1) if rho < 7 else []
            out = {}; k = 0; m = 0
            for i in range(8):
                for c in range(i, 8):
                    a.wait(toks[f"A{i}"], toks[f"B{c-i}"])
                    d = ACC + 4 * c
                    a(f"v_mfma_f32_16x16x32_bf16 {vr(d,4)}, {vr(st+4*i,4)}, {vr(st+32+4*(c-i),4)}, {'0' if (rho == 0 and i == 0) else vr(d,4)}")
                    m += 1
                    if m >= 4 and k < len(nxt): out[nxt[k][0]] = nxt[k][1](); k += 1
                    elif m >= 28 and init: a(init.pop())
            assert k == len(nxt)
            toks = out
        assert not init
        self.stamp("v.mfma")
        tu = [a.ds(f"ds_read_b64 {vr(FR+2*c,2)}, v{UE} offset:{512*(7-c)}") for c in range(8)]
        for c in range(8):
            a.wait(tu[c])
            d, u, t = ACC + 4*c, FR + 2*c, FR + 32 + 8*(c & 3)
            a(f"""v_and_b32 v{t}, 0xffff0000, v{u+1}
            v_lshlrev_b32 v{t+1}, 16, v{u+1}
            v_and_b32 v{t+2}, 0xffff0000, v{u}
            v_lshlrev_b32 v{t+3}, 16, v{u}""")
            for e in range(4): a(f"v_fmac_f32 v{d+e}, v7, v{t+e}")
            a(f"v_cvt_pk_bf16_f32 v{t+4}, v{d}, v{d+1}\nv_cvt_pk_bf16_f32 v{t+5}, v{d+2}, v{d+3}")
            a.vm(f"buffer_store_dwordx2 {vr(t+4,2)}, v{YS}, s[{rWS}:{rWS+3}], 0 offen offset:{512*c} sc1")
        self.stamp("v.st")

    def m2b(self, S): self.a(f"v_mfma_f32_32x32x4_2b_bf16 {vr(S,32)}, {vr(KRM,2)}, {vr(QR,2)}, 0")
    def mqk(self, S, h): self.a(f"v_mfma_f32_32x32x16_bf16 {vr(S+16*h,16)}, {vr(KM+4*h,4)}, {vr(QM,4)}, {vr(S+16*h,16)}")
    def smf(self, V, P): self.a(f"v_smfmac_f32_32x32x32_bf16 {vr(O_,16)}, {vr(V,4)}, {vr(P,8)}, v{IDX}")
    def side_kv(self, add):
        a = self.a
        def mk(j):
            def f():
                a(f"s_add_u32 m0, s{sKVW}, {add*KV_US + 1024*j}\ns_add_u32 s{T5}, s{sKVW}, s{sKVB}\ns_add_u32 s{T5}, s{T5}, {add*KV_US + 1024*j}")
                a.vm(f"buffer_load_dwordx4 v{L16}, s[{rWS}:{rWS+3}], s{T5} offen sc1 lds")
            return f
        return [mk(j) for j in range(5)]
    def side_wo(self):
        a = self.a
        def mk(k):
            def f():
                L = a.newlabel("NOWO")
                if k >= 9: a(f"s_cmp_eq_u32 s{sWAVE}, 7\ns_cbranch_scc1 {L}")
                a(f"s_add_u32 m0, s{T4}, {L_WO + 1024*k}\ns_mov_b32 s{T5}, {40960*(k//5)}")
                a.vm(f"buffer_load_dwordx4 v{WOV + k%5}, s[{rA}:{rA+3}], s{T5} offen lds")
                if k >= 9: a.label(L)
            return f
        return [mk(k) for k in range(13)]
    def side_yd(self):
        a = self.a
        def f0():
            OK = a.newlabel("F3OK")
            a.wait(self.tF3)
            self.poll_check(F3T, 2)
            a(f"s_cbranch_scc1 {OK}")
            snap = a.snapshot(); self.poll([(AF3, rWS, 0, 2)], F3T); a.restore(snap)
            a.label(OK)
            a(f"s_mul_i32 s{T5}, s{sWAVE}, 1280\ns_add_u32 m0, s{T5}, {L_YD}\ns_mov_b32 s{T5}, {8*4096 - 1024}")
            a.vm(f"buffer_load_dwordx4 v{YDV}, s[{rWS}:{rWS+3}], 0 offen sc1 lds")
            a("s_mov_b64 exec, 0xffff")
            a.vm(f"buffer_load_dwordx4 v{YDV}, s[{rWS}:{rWS+3}], s{T5} offen offset:1024 sc1 lds")
            a("s_mov_b64 exec, -1")
        return [f0]
    def side_x(self):
        a = self.a
        def mk(j):
            def f():
                if j == 0: self.srd(rA, pX, 2048 * 1280)
                a.vm(f"buffer_load_dwordx2 {vr(XE+2*j,2)}, v{AOUT}, s[{rA}:{rA+3}], 0 offen offset:{32*j}")
            return f
        def f3(): self.tF3 = a.vm(f"buffer_load_dwordx2 {vr(F3T,2)}, v{AF3}, s[{rWS}:{rWS+3}], 0 offen sc1")
        return [mk(j) for j in range(3)] + [f3]
    def attention(self):
        a = self.a
        a.label("L_ATT")
        a.reset_counters()
        a("s_barrier")
        self.stamp("att0")
        base = {"K": 0, "V": 0}
        def bump(kind, u):
            while u * KV_US - base[kind] > 11 * KV_US:
                base[kind] += 12 * KV_US
                for r in ((AKM, AKR) if kind == "K" else (AV,)): a(f"v_add_u32 v{r}, {12*KV_US}, v{r}")
            return u * KV_US - base[kind]
        def rKR(u): o = bump("K", u); return a.ds(f"ds_read_b64 {vr(KRM,2)}, v{AKR} offset:{o}")
        def rKM(u, h): o = bump("K", u); return a.ds(f"ds_read_b128 {vr(KM+4*h,4)}, v{AKM} offset:{o + 1024*h}")
        def rV(u):
            o = bump("V", u)
            a(f"s_mov_b64 exec, s[{sVMASK}:{sVMASK+1}]")
            for g in range(4): t = a.ds(f"ds_read_b128 {vr(VS[u&1]+4*g,4)}, v{AV} offset:{o + 640*g}")
            a("s_mov_b64 exec, -1")
            return t
        tq = [a.ds(f"ds_read_b64 {vr(QR,2)}, v{AQR} offset:2048")]
        tKR = rKR(0)
        tq.append(a.ds(f"ds_read_b128 {vr(QM,4)}, v{AQM}"))
        tK0 = rKM(0, 0); tK1 = rKM(0, 1); tV = {0: rV(0)}
        side = self.side_kv(8)
        a.wait(tq[0], tKR); self.m2b(S_); tKR = rKR(1)
        for _ in range(4): side.pop(0)()
        a.nop(1)
        a.wait(tq[1], tK0); self.mqk(S_, 0); tK0 = rKM(1, 0)
        a.wait(tK1); self.mqk(S_, 1); tK1 = rKM(1, 1)
        side.pop(0)()
        a.nop(5)
        zones = {0: self.o("z0", "2,4,5"), 6: self.o("z1", "3,5,7"), 14: self.o("z1", "3,5,7"), 22: self.o("z3", "4,7,9")}
        prio = {}
        if self.o("prio", 1):
            for u0, z in zones.items():
                prio[u0] = 3
                for k, d in enumerate(int(x) for x in z.split(",")): prio[u0 + d] = 2 - k
        for u in range(32):
            if u % 8 == 6 and u < 30:
                assert not side
                side = self.att_sync(u // 8)
            if u in prio: a(f"s_setprio {prio[u]}")
            X, Y = S_ + 32 * (u & 1), S_ + 32 * ((u + 1) & 1)
            Vc, Vp = VS[u & 1], VS[(u + 1) & 1]
            nx = u < 31
            for p in range(32):
                if p == 2:
                    if nx: a.wait(tKR, tV[u])
                    else: a.wait(tV[u])
                    if u > 0: self.smf(Vp + 12, Y + 24)
                    if nx: tV[u+1] = rV(u + 1)
                if p == 6 and nx:
                    self.m2b(Y)
                    if u < 30: tKR = rKR(u + 2)
                if p in (10, 20) and side: side.pop(0)()
                if p == 14: self.smf(Vc, X)
                if p == 18: self.smf(Vc + 4, X + 8)
                if p == 22 and nx:
                    a.wait(tK0, tK1); self.mqk(Y, 0)
                    if u < 30: tK0 = rKM(u + 2, 0)
                if p == 26: self.smf(Vc + 8, X + 16)
                if p == 30 and nx:
                    self.mqk(Y, 1)
                    if u < 30: tK1 = rKM(u + 2, 1)
                a(f"v_exp_f32 v{X+p}, v{X+p}")
        assert not side
        a.nop(2)
        self.smf(VS[1] + 12, S_ + 32 + 24)
        self.stamp("attend")
    def att_sync(self, k):
        a = self.a
        if k == 0:
            a.wait_all(vm=True, ds=False, force=True)
            L = a.newlabel("NOF3")
            a(f"s_cmp_ge_u32 s{sLW}, s{sNCH}\ns_cbranch_scc1 {L}")
            a(f"s_lshl_b32 s{T0}, s{sCH}, 2\ns_add_u32 s{T0}, s{T0}, {F3:#x}")
            self.flag_store(T0, 14)
            a.label(L)
            a("s_barrier")
            self.stamp("sync0")
            return self.side_kv(16) + self.side_kv(24)
        if k == 1:
            a.wait_all(vm=True, ds=False, force=True)
            a("s_barrier")
            self.stamp("sync1")
            return self.side_x()
        a("s_barrier")
        self.stamp("sync2")
        self.srd(rA, pWO, 640 * 1280)
        a(f"s_mul_i32 s{T4}, s{sWAVE}, {13*1024}")
        return self.side_yd() + self.side_wo()

    def finish(self):
        a = self.a
        O, TMP = O_, 16
        ACC, OF, WF, G = 224, 16, 56, 14
        a(f"""v_lshlrev_b32 v2, 3, v0
        s_mov_b32 s{T2}, {f2u(2.0**-60):#x}
        s_mov_b32 s{T3}, {f2u(2.0**60):#x}
        s_mov_b32 s{T4}, 0x7f7fffff
        s_setprio 0""")
        a.nop(7)
        a.label("L_NORM")
        a(f"v_rcp_f32 v{TMP+4}, v{O+12}")
        for e in range(4): a(f"v_add_f32 v{TMP+e}, abs(v{O+e}), abs(v{O+4+e})")
        for e in range(4): a(f"v_add_f32 v{TMP+e}, v{TMP+e}, abs(v{O+8+e})")
        a(f"""v_add_f32 v{TMP}, v{TMP}, v{TMP+1}
        v_add_f32 v{TMP+2}, v{TMP+2}, v{TMP+3}
        v_cmp_le_f32 vcc, s{T2}, v{O+12}
        v_cmp_ge_f32 s[{sM}:{sM+1}], s{T3}, v{O+12}
        v_add_f32 v{TMP}, v{TMP}, v{TMP+2}
        s_nop 0
        s_and_b64 s[{sM}:{sM+1}], s[{sM}:{sM+1}], vcc
        v_cmp_ge_f32 vcc, s{T4}, v{TMP}
        s_nop 1
        s_and_b64 s[{sM}:{sM+1}], s[{sM}:{sM+1}], vcc
        s_cmp_eq_u64 s[{sM}:{sM+1}], exec
        s_cbranch_scc1 L_NORM_OK
        s_cmp_eq_u32 s{sSLOW}, 0
        s_cbranch_scc1 L_SLOW""")
        a.label("L_NORM_OK")
        for e in range(8): a(f"v_mul_f32 v{O+e}, v{O+e}, v{TMP+4}")
        for e in range(4): a(f"v_cvt_pk_bf16_f32 v{TMP+8+e}, v{O+2*e}, v{O+2*e+1}")
        a(f"buffer_store_dwordx4 {vr(TMP+8,4)}, v{L16}, s[{rWS}:{rWS+3}], s{sOMS} offen sc1")
        for e in range(8, 12): a(f"v_mul_f32 v{O+e}, v{O+e}, v{TMP+4}")
        for e in range(4, 6): a(f"v_cvt_pk_bf16_f32 v{TMP+8+e}, v{O+2*e}, v{O+2*e+1}")
        a("s_mov_b32 exec_hi, 0")
        a(f"buffer_store_dwordx2 {vr(TMP+12,2)}, v2, s[{rWS}:{rWS+3}], s{sORS} offen sc1")
        a("s_mov_b32 exec_hi, -1")
        self.srd(rA, pOUT, 2048 * 1280)
        a("s_waitcnt vmcnt(0)\ns_barrier")
        a.reset_counters()
        L = a.newlabel("NOF4")
        a(f"s_cmp_lg_u32 s{sWAVE}, 0\ns_cbranch_scc1 {L}")
        self.flag_store(sF4S, 2)
        a.label(L)
        a.reset_counters()
        self.stamp("F4set")
        tg = a.vm(f"buffer_load_dword v{G}, v{AG}, s[{rWS}:{rWS+3}], 0 offen sc1")
        def wfrag(step, regstep):
            toks = []
            for b in range(5):
                for q in range(2):
                    if step < 8: ad, off = (WM0 if b < 2 else WM1), (40*step + 8*q)*160 + 32*b
                    else: ad, off = (WR0 if b < 2 else WR1), (160*(step-8) + 80*q)*160 + 32*b
                    t = a.ds(f"ds_read_b64_tr_b16 {vr(WF + 20*regstep + 4*b + 2*q, 2)}, v{ad} offset:{L_WO + off}")
                toks.append(t)
            return toks
        tw = {s: wfrag(s, s) for s in range(8)}
        YR, BB = 2, 16
        ty = [a.ds(f"ds_read_b64_tr_b16 {vr(YR+2*b,2)}, v{AYD} offset:{2048*b}") for b in range(3)]
        keep = [216, 217, 218, 219, 220, 221, 222, 223, 2, 3, 4, 5]
        for b in range(3):
            a.wait(ty[b])
            x, y = XE + 2*b, YR + 2*b
            a(f"""v_lshlrev_b32 v16, 16, v{x}
            v_and_b32 v17, 0xffff0000, v{x}
            v_lshlrev_b32 v18, 16, v{x+1}
            v_and_b32 v19, 0xffff0000, v{x+1}
            v_lshlrev_b32 v20, 16, v{y}
            v_and_b32 v21, 0xffff0000, v{y}
            v_lshlrev_b32 v22, 16, v{y+1}
            v_and_b32 v23, 0xffff0000, v{y+1}""")
            for e in range(4): a(f"v_mul_f32 v{keep[4*b+e]}, v{16+e}, v{20+e}")
        L = a.newlabel("NOP4")
        a(f"s_cmp_lg_u32 s{sWAVE}, 0\ns_cbranch_scc1 {L}")
        snap = a.snapshot(); self.poll([(AF4, rWS, 0, 1)], 15); a.restore(snap)
        a.label(L)
        a("s_barrier")
        self.stamp("F4ok")
        to = {}
        for s in range(8):
            a(f"s_mov_b32 s{T0}, {s*131072}")
            to[s] = a.vm(f"buffer_load_dwordx4 {vr(OF+4*s,4)}, v{AOM}, s[{rWS}:{rWS+3}], s{T0} offen sc1")
        for rs in range(2):
            for q in range(2):
                a(f"s_mov_b32 s{T0}, {(8*rs+4*q)*16384}")
                to[8+rs] = a.vm(f"buffer_load_dwordx2 {vr(OF+32+4*rs+2*q,2)}, v{AOR}, s[{rWS}:{rWS+3}], s{T0} offen sc1")
        for s in range(10):
            rs = s if s < 8 else s - 8
            a.wait(to[s])
            order = range(5) if s < 9 else (2, 3, 4, 0, 1)
            for b in order:
                a.wait(tw[s][b])
                d = ACC + 4*b
                a(f"v_mfma_f32_16x16x32_bf16 {vr(d,4)}, {vr(WF+20*rs+4*b,4)}, {vr(OF+4*s,4)}, {'0' if s == 0 else vr(d,4)}")
            if s < 2: tw[8+s] = wfrag(8 + s, s)
        self.stamp("mfma")
        a.nop(4)
        for b in (2, 3, 4): a.ds(f"ds_write_b128 v{AEX}, {vr(ACC+4*b,4)} offset:{1024*(b-2)}")
        for b in range(3):
            for e in range(4): a(f"v_sub_f32 v{ACC+4*b+e}, v{ACC+4*b+e}, v{keep[4*b+e]}")
        a.wait_all(vm=False)
        a("s_barrier")
        tp = [a.ds(f"ds_read_b128 {vr(16+4*b,4)}, v{AX2} offset:{1024*b}") for b in range(3)]
        a.wait(tg)
        for b in range(3):
            if b == 2: a(f"s_cmp_lg_u32 s{sKH}, 0\ns_cbranch_scc1 L_FIN")
            a.wait(tp[b])
            for e in range(4): a(f"v_add_f32 v{16+4*b+e}, v{16+4*b+e}, v{ACC+4*b+e}")
            for e in range(4): a(f"v_fmac_f32 v{keep[4*b+e]}, v{G}, v{16+4*b+e}")
            a(f"v_cvt_pk_bf16_f32 v{32+2*b}, v{keep[4*b]}, v{keep[4*b+1]}\nv_cvt_pk_bf16_f32 v{33+2*b}, v{keep[4*b+2]}, v{keep[4*b+3]}")
            a.vm(f"buffer_store_dwordx2 {vr(32+2*b,2)}, v{AOUT}, s[{rA}:{rA+3}], 0 offen offset:{32*b}")
        a.label("L_FIN")
        if self.stamps:
            self.stamp("st")
            a("s_waitcnt vmcnt(0)")
            self.stamp("end")
            a(f"s_lshl_b32 s{T0}, s{sWG}, 3\ns_add_u32 s{T0}, s{T0}, s{sWAVE}\ns_lshl_b32 s{T0}, s{T0}, 8\ns_add_u32 s{T0}, s{T0}, {TS:#x}\nv_lshlrev_b32 v2, 2, v0")
            a(f"buffer_store_dword v1, v2, s[{rWS}:{rWS+3}], s{T0} offen")
        a.label("L_END")
        a("s_endpgm")

    def slow(self):
        a = self.a
        S, V, M, AVS = S_, VS[0], 96, 98
        a.label("L_SLOW")
        a(f"""s_mov_b32 s{sSLOW}, 1
        v_and_b32 v{M}, 31, v0
        v_lshrrev_b32 v{AVS}, 5, v0
        v_mul_u32_u24 v{AVS}, 320, v{AVS}
        v_lshl_add_u32 v{AVS}, v{M}, 4, v{AVS}
        v_add_u32 v{AVS}, 2560, v{AVS}
        v_mov_b32 v{M}, 0xff800000""")
        def scores():
            a(f"""buffer_load_dwordx2 {vr(KRM,2)}, v2, s[{rWS}:{rWS+3}], s{T6} offen offset:2048 sc1
            buffer_load_dwordx4 {vr(KM,4)}, v{L16}, s[{rWS}:{rWS+3}], s{T6} offen sc1
            buffer_load_dwordx4 {vr(KM+4,4)}, v{L16}, s[{rWS}:{rWS+3}], s{T6} offen offset:1024 sc1
            s_waitcnt vmcnt(0)""")
            self.m2b(S); a.nop(18); self.mqk(S, 0); self.mqk(S, 1); a.nop(12)
        a(f"s_mov_b32 s{T6}, s{sKVB}\ns_mov_b32 s{sCNT}, 0")
        a.label("L_SLOW1")
        scores()
        for e in range(16): a(f"v_max3_f32 v{M}, v{M}, v{S+2*e}, v{S+2*e+1}")
        a(f"s_add_u32 s{T6}, s{T6}, {KV_US}\ns_add_u32 s{sCNT}, s{sCNT}, 1\ns_cmp_lt_u32 s{sCNT}, 32\ns_cbranch_scc1 L_SLOW1")
        a(f"v_mov_b32 v{M+1}, v{M}\ns_nop 1\nv_permlane32_swap_b32 v{M}, v{M+1}\ns_nop 1\nv_max_f32 v{M}, v{M}, v{M+1}")
        for e in range(16): a(f"v_mov_b32 v{O_+e}, 0")
        a(f"s_mov_b32 s{T6}, s{sKVB}\ns_mov_b32 s{sCNT}, 0")
        a.label("L_SLOW2")
        a(f"s_mov_b64 exec, s[{sVMASK}:{sVMASK+1}]")
        for g in range(4): a(f"buffer_load_dwordx4 {vr(V+4*g,4)}, v{AVS}, s[{rWS}:{rWS+3}], s{T6} offen offset:{640*g} sc1")
        a("s_mov_b64 exec, -1")
        scores()
        for e in range(32): a(f"v_sub_f32 v{S+e}, v{S+e}, v{M}")
        for e in range(32): a(f"v_exp_f32 v{S+e}, v{S+e}")
        a.nop(2)
        for g in range(4): self.smf(V + 4*g, S + 8*g)
        a(f"s_add_u32 s{T6}, s{T6}, {KV_US}\ns_add_u32 s{sCNT}, s{sCNT}, 1\ns_cmp_lt_u32 s{sCNT}, 32\ns_cbranch_scc1 L_SLOW2")
        a.nop(12)
        a("s_branch L_NORM")

    def build(self):
        self.prologue(); self.gemm_compute(); self.loader(); self.attention(); self.finish(); self.slow()
        bad = lint(self.a.lines)
        head = f"""; Fused kernel: QKV projection, depthwise convolutions, attention, output projection and gated mix.
; @launch grid=(256,1,1) block=(512,1,1) lds={LDS_BYTES}
.amdgcn_target "amdgcn-amd-amdhsa--gfx950"
.text
.globl {NAME}
.p2align 8
.type {NAME},@function
{NAME}:
"""
        tail = f""".section .rodata,"a"
.p2align 6
.amdhsa_kernel {NAME}
  .amdhsa_next_free_vgpr 256
  .amdhsa_next_free_sgpr 102
  .amdhsa_accum_offset 256
  .amdhsa_group_segment_fixed_size 0
  .amdhsa_kernarg_size 104
  .amdhsa_user_sgpr_count 2
  .amdhsa_user_sgpr_kernarg_segment_ptr 1
  .amdhsa_system_sgpr_workgroup_id_x 1
  .amdhsa_float_denorm_mode_32 3
.end_amdhsa_kernel
"""
        return head + self.a.text() + tail, bad

if __name__ == "__main__":
    out = sys.argv[1] if len(sys.argv) > 1 else "gated_mix__mha_block__ssm_conv_h3__prompt.s"
    opt = dict(x[2:].split("=") for x in sys.argv if x.startswith("-D"))
    G = Gen(stamps="--stamps" in sys.argv, opt=opt)
    src, bad = G.build()
    if G.stamps: src = src.replace("; @launch", "; STAMPS " + " ".join(G.names) + "\n; @launch", 1)
    for b in bad: print("LINT:", b)
    open(out, "w").write(src)
    print("wrote", out, len(src), "bytes;", len(bad), "lint findings")
```

```python
import sys, math, struct
from asmlib import *

NAME = "gated_mix__mha_block__ssm_conv_h3__prompt_kernel"
def f2u(x): return struct.unpack("<I", struct.pack("<f", x))[0]

KV, QO, UR, YD, OM, ORM = 0, 0x500000, 0x780000, 0xA00000, 0xC80000, 0xE80000
F2, F4, F3, F5, GT, F1 = 0xF04000, 0xF08000, 0xF0C000, 0xF0D000, 0xF0E000, 0xFA0000
TS = 0xF10000
WS_SIZE = 0x1000000
KV_HS, KV_US = 163840, 5120
Q_HS, Q_US = 81920, 2560
NSLOT = 3
L_X, L_W = 0, 49152
L_Q, L_SIG = 81920, 162048
L_CONV, CONV_SZ, CS, U_OFF = 98304, 21248, 4160, 16640
L_WO, L_YD, L_EX = 0, 102400, 112640
LDS_BYTES = 163840
sWG, sWAVE = 2, 3
pX, pW, pWO, pWS, pK, pV, pSH, pH, pD, pGW, pOUT, pDBG = 4, 6, 8, 10, 12, 14, 16, 18, 20, 22, 24, 26
rWS, rA, rB, rC, rD = 28, 32, 36, 40, 44
sXCD, sI, sJT, sRT, sPRT, sCJ, sCH0, sNCH, sHEAD, sQB = 48, 49, 50, 51, 52, 53, 54, 55, 56, 57
sLW, sCH, sKH, sTB, sCNT, sSLOW = 58, 59, 60, 61, 62, 63
T0, T1, T2, T3, T4, T5, T6, T7 = 64, 65, 66, 67, 68, 69, 70, 71
sM = 72
sVMASK = 74
sTS = 76
sE = 78
sSC = 86
sKVB, sKVW, sOMS, sORS, sF4S, sCL = 87, 88, 89, 90, 91, 92
sNB, sBC, sU, sK = 93, 94, 95, 96
sM2 = 98
sKVG = 97
POLL_MAX = 30000
IDX, AKM, AKR, AV, L16, AQM, AQR, AF3, YDV = 224, 225, 226, 227, 228, 229, 230, 231, 232
WOV = 233
F3T = 238
ONES = 240
WM0, WM1, WR0, WR1, AOM, AOR, AOUT, AG, AEX, AX2, AYD, AF4 = 244, 245, 246, 247, 248, 249, 250, 251, 252, 253, 254, 255
O_, QM, QR, KRM, KM, S_ = 192, 32, 36, 38, 40, 64
VS = (48, 208)
XE = 8

class Gen:
    def __init__(self, stamps=False, opt=None):
        self.a = Asm(); self.stamps = stamps; self.names = []; self.opt = opt or {}
        self.nt = " nt" if int(self.opt.get("nt", 1)) else ""
        self.gnt = " nt" if int(self.opt.get("gnt", 0)) else ""
    def o(self, k, d): return type(d)(self.opt.get(k, d))
    def srd(self, r, p, size):
        self.a(f"s_mov_b32 s{r}, s{p}\ns_mov_b32 s{r+1}, s{p+1}\ns_mov_b32 s{r+2}, {size:#x}\ns_mov_b32 s{r+3}, 0x20000")
    def stamp(self, name):
        if not self.stamps: return
        if name not in self.names: self.names.append(name)
        k = self.names.index(name); assert k < 60
        self.a(f"s_memrealtime s[{sTS}:{sTS+1}]\ns_waitcnt lgkmcnt(0)\nv_writelane_b32 v1, s{sTS}, {k}")
        if name in ("att0", "attend"): self.a(f"s_memtime s[{sTS}:{sTS+1}]\ns_waitcnt lgkmcnt(0)\nv_writelane_b32 v1, s{sTS}, {60 if name == 'att0' else 61}")
        if name == "start": self.a(f"s_memtime s[{sTS}:{sTS+1}]\ns_waitcnt lgkmcnt(0)\nv_writelane_b32 v1, s{sTS}, 62")
        if name == "end": self.a(f"s_memtime s[{sTS}:{sTS+1}]\ns_waitcnt lgkmcnt(0)\nv_writelane_b32 v1, s{sTS}, 63")
        self.a.done["ds"] = self.a.n["ds"]
    def poll(self, loads, tmp, cmp=None):
        a = self.a
        L, D = a.newlabel("POLL"), a.newlabel("POLLD")
        a(f"s_mov_b32 s{sCNT}, 0")
        a.label(L)
        k = 0
        for (va, r, imm, wd) in loads:
            ins = {1: "buffer_load_dword", 2: "buffer_load_dwordx2", 4: "buffer_load_dwordx4"}[wd]
            a(f"{ins} {vr(tmp+k, wd)}, v{va}, s[{r}:{r+3}], 0 offen offset:{imm} sc1"); k += wd
        a("s_waitcnt vmcnt(0)")
        a.done["vm"] = a.n["vm"]
        self.poll_check(tmp, k, cmp)
        a(f"s_cbranch_scc1 {D}")
        a(f"s_add_u32 s{sCNT}, s{sCNT}, 1\ns_cmp_lt_u32 s{sCNT}, {POLL_MAX}\ns_cbranch_scc0 {D}\ns_sleep 1\ns_branch {L}")
        a.label(D)
    def mpoll(self, addrs, tmp, elastic=False):
        a = self.a
        L, D = a.newlabel("MP"), a.newlabel("MPD")
        M = [sM, sM2][:len(addrs)]
        a(f"s_mov_b32 s{sCNT}, 0")
        for m in M: a(f"s_mov_b64 s[{m}:{m+1}], -1")
        a.label(L)
        for k, (va, m) in enumerate(zip(addrs, M)):
            S = a.newlabel("MS")
            a(f"s_mov_b64 exec, s[{m}:{m+1}]\ns_cbranch_execz {S}\nbuffer_load_dword v{tmp+k}, v{va}, s[{rWS}:{rWS+3}], 0 offen sc1")
            a.label(S)
        a("s_mov_b64 exec, -1")
        if elastic: self.ewait()
        else: a("s_waitcnt vmcnt(0)")
        a.done["vm"] = a.n["vm"]
        for k, m in enumerate(M):
            a(f"v_cmp_eq_u32 vcc, 0, v{tmp+k}\ns_nop 1\ns_and_b64 s[{m}:{m+1}], s[{m}:{m+1}], vcc")
        if len(M) == 2: a(f"s_or_b64 vcc, s[{sM}:{sM+1}], s[{sM2}:{sM2+1}]")
        a(f"s_cbranch_scc0 {D}")
        a(f"s_add_u32 s{sCNT}, s{sCNT}, 1\ns_cmp_lt_u32 s{sCNT}, {POLL_MAX}\ns_cbranch_scc0 {D}\ns_sleep {self.o('psleep', 4)}\ns_branch {L}")
        a.label(D)
    def last_flag(self, off, sN, sAddr, vt):
        a = self.a
        L = a.newlabel("NL")
        a(f"""v_mov_b32 v{vt}, {L_SIG}
        v_mov_b32 v{vt+1}, 1
        s_mov_b64 exec, 1
        ds_add_rtn_u32 v{vt+1}, v{vt}, v{vt+1} offset:{off}
        s_waitcnt lgkmcnt(0)
        v_readfirstlane_b32 s{T0}, v{vt+1}
        s_mov_b64 exec, -1
        s_add_u32 s{T0}, s{T0}, 1
        s_cmp_lg_u32 s{T0}, {sN}
        s_cbranch_scc1 {L}""")
        self.flag_store(sAddr, vt, two=True)
        a.label(L)
    def poll_check(self, tmp, k, cmp=None):
        a = self.a
        for j in range(1, k, 2):
            if j + 1 < k: a(f"v_min3_u32 v{tmp}, v{tmp}, v{tmp+j}, v{tmp+j+1}")
            else: a(f"v_min_u32 v{tmp}, v{tmp}, v{tmp+j}")
        a(cmp or f"v_cmp_ne_u32 vcc, 0, v{tmp}")
        a("s_nop 1\ns_cmp_eq_u64 vcc, exec")
    def flag_store(self, s, vt, two=False):
        a = self.a
        a(f"v_lshl_add_u32 v{vt}, v0, 2, s{s}\nv_mov_b32 v{vt+1}, 1\ns_mov_b64 exec, {3 if two else 1}")
        t = a.vm(f"buffer_store_dword v{vt+1}, v{vt}, s[{rWS}:{rWS+3}], 0 offen sc1")
        a("s_mov_b64 exec, -1")
        return t

    def prologue(self):
        a = self.a
        a(f"s_cmp_ge_u32 s{sWG}, 256\ns_cbranch_scc1 L_END")
        if self.opt.get("diag") == "spin":
            a("s_mov_b32 s60, 2500\nv_mov_b32 v10, 0")
            a.label("L_DSPIN")
            for e in range(8): a(f"v_exp_f32 v{11+e}, v10")
            a("s_sub_u32 s60, s60, 1\ns_cmp_lg_u32 s60, 0\ns_cbranch_scc1 L_DSPIN")
        if self.opt.get("diag") == "chain":
            a("s_load_dwordx2 s[32:33], s[0:1], 24\ns_waitcnt lgkmcnt(0)\ns_mov_b32 s34, 2621440\ns_mov_b32 s35, 0x20000\ns_mul_i32 s60, s2, 256\nv_mov_b32 v10, s60")
            for e in range(32): a("buffer_load_dword v12, v10, s[32:35], 0 offen\ns_waitcnt vmcnt(0)\nv_and_b32 v12, 0, v12\nv_add_u32 v10, v10, v12\nv_add_u32 v10, 0x13000, v10")
        if self.opt.get("diag") == "bq":
            a("s_load_dwordx2 s[32:33], s[0:1], 24\ns_waitcnt lgkmcnt(0)\ns_mov_b32 s34, 2621440\ns_mov_b32 s35, 0x20000\nv_lshlrev_b32 v10, 4, v0\ns_mul_i32 s60, s2, 10240")
            a("buffer_load_dwordx4 v[12:15], v10, s[32:35], s60 offen\ns_add_u32 s60, s60, 2048\nbuffer_load_dwordx4 v[16:19], v10, s[32:35], s60 offen\ns_waitcnt vmcnt(0)")
        a(f"""s_load_dwordx4 s[4:7], s[0:1], 0
        s_load_dwordx16 s[12:27], s[0:1], 32
        s_load_dwordx2 s[10:11], s[0:1], 96
        s_load_dwordx2 s[8:9], s[0:1], 16
        v_lshrrev_b32 v1, 6, v0
        v_and_b32 v0, 63, v0
        s_and_b32 s{sXCD}, s{sWG}, 7
        v_readfirstlane_b32 s{sWAVE}, v1
        s_lshr_b32 s{sI}, s{sWG}, 3
        s_and_b32 s{T0}, s{sXCD}, 1
        s_mul_i32 s{T0}, s{T0}, 30
        s_add_u32 s{T0}, s{T0}, s{sI}
        s_lshr_b32 s{sJT}, s{T0}, 2
        s_and_b32 s{T0}, s{T0}, 3
        s_lshr_b32 s{T1}, s{sXCD}, 1
        s_lshl_b32 s{T1}, s{T1}, 2
        s_add_u32 s{sRT}, s{T0}, s{T1}
        s_lshr_b32 s{T0}, s{sWG}, 1
        s_mul_i32 s{T0}, s{T0}, 5
        s_and_b32 s{T1}, s{sWG}, 1
        s_mul_i32 s{T2}, s{T1}, 3
        s_add_u32 s{sCH0}, s{T0}, s{T2}
        s_sub_u32 s{sNCH}, 3, s{T1}
        s_sub_u32 s{sLW}, s{sWAVE}, 4
        s_cmp_lt_u32 s{sWAVE}, 4
        s_cbranch_scc1 L_COMPUTE
        s_cmp_gt_u32 s{sWAVE}, 4
        s_cbranch_scc1 L_SIDE""")
    def common_scalars(self):
        self.a(f"""s_cmp_ge_u32 s{sI}, 30
        s_cselect_b32 s{sNB}, 1, 11
        s_mov_b32 s{sBC}, 0
        s_lshr_b32 s{T0}, s{sI}, 3
        s_lshl_b32 s{T1}, s{sXCD}, 2
        s_add_u32 s{sHEAD}, s{T0}, s{T1}
        s_and_b32 s{sQB}, s{sI}, 7
        s_lshr_b32 s{sKH}, s{sWAVE}, 2
        s_and_b32 s{sTB}, s{sWAVE}, 3
        s_mov_b32 s{sSLOW}, 0
        s_mov_b32 s{sVMASK}, 0x000fffff
        s_mov_b32 s{sVMASK+1}, 0x000fffff""")
    def persistent(self, t=192):
        a = self.a
        a(f"""s_mov_b32 s{sM}, 0x11000000
        s_mov_b32 s{sM+1}, 0x11000000
        v_mov_b32 v{t}, 0x3f803f80
        v_cndmask_b32 v{ONES}, 0, v{t}, s[{sM}:{sM+1}]""")
        a(f"""v_mov_b32 v{IDX}, 0xdddddddd
        v_lshlrev_b32 v{AKM}, 4, v0
        v_lshlrev_b32 v{L16}, 4, v0
        v_lshlrev_b32 v{t}, 3, v0
        v_add_u32 v{AKR}, 2048, v{t}
        v_and_b32 v{t+1}, 31, v0
        v_lshrrev_b32 v{t+2}, 5, v0
        v_mul_u32_u24 v{t+2}, 320, v{t+2}
        v_lshl_add_u32 v{t+2}, v{t+1}, 4, v{t+2}
        v_add_u32 v{AV}, 2560, v{t+2}
        s_lshr_b32 s{T0}, s{sWAVE}, 1
        s_mul_i32 s{T0}, s{T0}, {Q_US}
        s_add_u32 s{T0}, s{T0}, {L_Q}
        s_and_b32 s{T1}, s{sWAVE}, 1
        s_lshl_b32 s{T2}, s{T1}, 10
        s_add_u32 s{T2}, s{T2}, s{T0}
        v_add_u32 v{AQM}, s{T2}, v{L16}
        s_lshl_b32 s{T1}, s{T1}, 8
        s_add_u32 s{T1}, s{T1}, s{T0}
        v_lshl_add_u32 v{AQR}, v{t+1}, 3, s{T1}
        s_mul_i32 s{sKVB}, s{sHEAD}, {KV_HS}
        s_mul_i32 s{sKVW}, s{sWAVE}, {KV_US}
        s_add_u32 s{sKVG}, s{sKVW}, s{sKVB}
        s_lshl_b32 s{T0}, s{sHEAD}, 16
        s_lshl_b32 s{T1}, s{sQB}, 3
        s_add_u32 s{T1}, s{T1}, s{sWAVE}
        s_lshl_b32 s{T2}, s{T1}, 10
        s_add_u32 s{T0}, s{T0}, s{T2}
        s_add_u32 s{sOMS}, s{T0}, {OM:#x}
        s_lshl_b32 s{T2}, s{sHEAD}, 14
        s_lshl_b32 s{T1}, s{T1}, 8
        s_add_u32 s{T1}, s{T1}, s{T2}
        s_add_u32 s{sORS}, s{T1}, {ORM:#x}
        s_lshl_b32 s{T0}, s{sQB}, 11
        s_lshl_b32 s{T1}, s{sHEAD}, 6
        s_add_u32 s{T0}, s{T0}, s{T1}
        s_add_u32 s{sF4S}, s{T0}, {F4:#x}""")
        a(f"""s_mul_i32 s{T0}, s{sQB}, 320
        s_add_u32 s{T0}, s{T0}, {F3:#x}
        v_lshl_add_u32 v{AF3}, v0, 3, s{T0}
        s_lshr_b32 s{T0}, s{sHEAD}, 1
        s_lshl_b32 s{T0}, s{T0}, 6
        s_add_u32 s{T0}, s{T0}, {F5:#x}
        v_mov_b32 v{t}, s{T0}
        s_mov_b32 s{sM}, 0
        s_mov_b32 s{sM+1}, 0xffffff00
        v_cndmask_b32 v{AF3}, v{AF3}, v{t}, s[{sM}:{sM+1}]""")
        a(f"s_mul_i32 s{T0}, s{sWAVE}, {13*64}\ns_mul_i32 s{T1}, s{sQB}, 160")
        for k in range(5):
            a(f"""s_add_u32 s{T2}, s{T0}, {64*k}
            v_add_u32 v{t}, s{T2}, v0
            v_mul_u32_u24 v{t+1}, 52429, v{t}
            v_lshrrev_b32 v{t+1}, 19, v{t+1}
            v_mul_u32_u24 v{t+1}, {1280-160}, v{t+1}
            v_lshl_add_u32 v{t+1}, v{t}, 4, v{t+1}
            v_add_u32 v{WOV+k}, s{T1}, v{t+1}""")
        a(f"""s_mul_i32 s{T0}, s{sQB}, 80
        s_mul_i32 s{T1}, s{sWAVE}, 10
        s_add_u32 s{T0}, s{T0}, s{T1}
        v_lshrrev_b32 v{t}, 3, v0
        v_add_u32 v{t}, s{T0}, v{t}
        v_lshlrev_b32 v{t}, 12, v{t}
        v_and_b32 v{t+1}, 7, v0
        v_lshl_add_u32 v{t}, v{t+1}, 4, v{t}
        s_lshl_b32 s{T0}, s{sHEAD}, 7
        s_add_u32 s{T0}, s{T0}, {YD:#x}
        v_add_u32 v{YDV}, s{T0}, v{t}""")
        q, r, c8, tt, b0 = t, t + 1, t + 2, t + 3, t + 4
        a(f"""v_lshrrev_b32 v{q}, 4, v0
        v_lshrrev_b32 v{r}, 2, v0
        v_and_b32 v{r}, 3, v{r}
        v_and_b32 v{c8}, 3, v0
        v_lshlrev_b32 v{c8}, 3, v{c8}
        v_and_b32 v{tt}, 15, v0
        v_and_b32 v{b0}, 1, v{q}
        s_mul_i32 s{T2}, s{sKH}, {51200 + 96}
        s_mul_i32 s{T3}, s{sKH}, {51200 - 64}
        v_lshrrev_b32 v{t+5}, 1, v{q}
        v_mul_u32_u24 v{t+5}, 20, v{t+5}
        v_lshl_add_u32 v{t+5}, v{b0}, 2, v{t+5}
        v_add_u32 v{t+5}, v{t+5}, v{r}
        v_mul_u32_u24 v{t+5}, 160, v{t+5}
        v_add_u32 v{t+5}, v{t+5}, v{c8}
        v_add_u32 v{WM0}, s{T2}, v{t+5}
        v_add_u32 v{WM1}, s{T3}, v{t+5}
        v_mul_u32_u24 v{t+5}, 20, v{q}
        v_add3_u32 v{t+5}, v{t+5}, v{r}, 16
        v_mul_u32_u24 v{t+5}, 160, v{t+5}
        v_add_u32 v{t+5}, v{t+5}, v{c8}
        v_add_u32 v{WR0}, s{T2}, v{t+5}
        v_add_u32 v{WR1}, s{T3}, v{t+5}
        s_lshl_b32 s{T2}, s{sKH}, 20
        s_lshl_b32 s{T3}, s{sHEAD}, 11
        s_add_u32 s{T2}, s{T2}, s{T3}
        s_lshr_b32 s{T3}, s{sTB}, 1
        s_lshl_b32 s{T4}, s{T3}, 10
        s_add_u32 s{T2}, s{T2}, s{T4}
        s_and_b32 s{T4}, s{sTB}, 1
        s_lshl_b32 s{T4}, s{T4}, 8
        s_add_u32 s{T2}, s{T2}, s{T4}
        s_add_u32 s{T2}, s{T2}, {OM:#x}
        v_lshrrev_b32 v{t+5}, 1, v{q}
        v_lshlrev_b32 v{t+5}, 16, v{t+5}
        v_lshl_add_u32 v{t+5}, v{b0}, 9, v{t+5}
        v_lshl_add_u32 v{t+5}, v{tt}, 4, v{t+5}
        v_add_u32 v{AOM}, s{T2}, v{t+5}
        s_lshl_b32 s{T2}, s{sKH}, 18
        s_lshl_b32 s{T4}, s{sHEAD}, 9
        s_add_u32 s{T2}, s{T2}, s{T4}
        s_lshl_b32 s{T4}, s{sTB}, 7
        s_add_u32 s{T2}, s{T2}, s{T4}
        s_add_u32 s{T2}, s{T2}, {ORM:#x}
        v_lshlrev_b32 v{t+5}, 14, v{q}
        v_lshl_add_u32 v{t+5}, v{tt}, 3, v{t+5}
        v_add_u32 v{AOR}, s{T2}, v{t+5}
        s_lshr_b32 s{T2}, s{sHEAD}, 2
        s_lshl_b32 s{T2}, s{T2}, 11
        s_add_u32 s{T2}, s{T2}, {F4:#x}
        v_and_b32 v{t+5}, 31, v0
        v_lshl_add_u32 v{AF4}, v{t+5}, 6, s{T2}
        s_lshl_b32 s{T0}, s{sHEAD}, 6
        s_lshl_b32 s{T1}, s{sTB}, 4
        s_add_u32 s{T0}, s{T0}, s{T1}
        v_add_u32 v{t+5}, s{T0}, v{tt}
        v_lshlrev_b32 v{AG}, 2, v{t+5}
        v_add_u32 v{AG}, {GT:#x}, v{AG}
        v_mul_u32_u24 v{t+5}, 1280, v{t+5}
        v_lshl_add_u32 v{t+5}, v{q}, 3, v{t+5}
        s_mul_i32 s{T0}, s{sQB}, 160
        s_mul_i32 s{T1}, s{sKH}, 96
        s_add_u32 s{T0}, s{T0}, s{T1}
        v_add_u32 v{AOUT}, s{T0}, v{t+5}
        s_lshl_b32 s{T0}, s{sWAVE}, 12
        s_add_u32 s{T0}, s{T0}, {L_EX}
        v_add_u32 v{AEX}, s{T0}, v{L16}
        s_xor_b32 s{T0}, s{sWAVE}, 4
        s_lshl_b32 s{T0}, s{T0}, 12
        s_lshl_b32 s{T1}, s{sKH}, 10
        s_add_u32 s{T1}, s{T1}, s{T0}
        s_add_u32 s{T1}, s{T1}, {L_EX}
        v_add_u32 v{AX2}, s{T1}, v{L16}
        v_lshl_add_u32 v{AYD}, v{q}, 2, v{r}
        v_lshl_add_u32 v{AYD}, v{AYD}, 7, v{c8}
        s_mul_i32 s{T0}, s{sKH}, {48*128}
        s_lshl_b32 s{T1}, s{sTB}, 5
        s_add_u32 s{T0}, s{T0}, s{T1}
        s_add_u32 s{T0}, s{T0}, {L_YD}
        v_add_u32 v{AYD}, s{T0}, v{AYD}""")
    def att_init_list(self):
        if self.o("ones", 2) == 12:
            return [f"v_mov_b32 v{O_+e}, 0" for e in range(16)] + [f"v_mov_b32 v{st+e}, 0x3f803f80" for st in VS for e in range(16)]
        return [f"v_mov_b32 v{O_+e}, 0" for e in range(16)] + [f"v_mov_b32 v{st+e}, v{ONES}" for st in VS for e in range(16)]

    def flag_reset(self):
        a = self.a
        L = a.newlabel("NOZ")
        a(f"s_cmp_lg_u32 s{sWAVE}, 0\ns_cbranch_scc1 {L}")
        a(f"""s_lshl_b32 s{T0}, s{sWG}, 6
        s_add_u32 s{T0}, s{T0}, {F1:#x}
        v_mov_b32 v12, s{T0}
        v_and_b32 v10, 3, v0
        v_lshlrev_b32 v11, 2, v10
        v_add_u32 v13, s{sCL}, v11
        s_mov_b32 s{sM}, 0xf
        s_mov_b32 s{sM+1}, 0
        v_cndmask_b32 v12, v12, v13, s[{sM}:{sM+1}]
        s_lshl_b32 s{T0}, s{sCH0}, 2
        s_add_u32 s{T0}, s{T0}, {F3:#x}
        v_add_u32 v13, s{T0}, v11
        s_mov_b32 s{sM}, 0x30
        s_cmp_eq_u32 s{sNCH}, 3
        s_cselect_b32 s{sM}, 0x70, s{sM}
        v_cndmask_b32 v12, v12, v13, s[{sM}:{sM+1}]
        s_lshl_b32 s{T0}, s{sQB}, 11
        s_lshl_b32 s{T1}, s{sHEAD}, 6
        s_add_u32 s{T0}, s{T0}, s{T1}
        s_add_u32 s{T0}, s{T0}, {F4:#x}
        v_mov_b32 v13, s{T0}
        s_mov_b32 s{sM}, 0x100
        v_cndmask_b32 v12, v12, v13, s[{sM}:{sM+1}]
        v_mov_b32 v13, 0
        s_mov_b32 exec_lo, 0x1ff
        s_mov_b32 exec_hi, 0
        buffer_store_dword v13, v12, s[{rWS}:{rWS+3}], 0 offen sc1
        s_mov_b64 exec, 1""")
        self.srd(rA, pDBG, 256)
        a(f"""s_and_b32 s{T0}, s{sWG}, 1
        s_lshl_b32 s{T0}, s{T0}, 7
        v_mov_b32 v12, s{T0}
        v_mov_b32 v13, 1
        s_waitcnt vmcnt(0)
        buffer_atomic_add v13, v12, s[{rA}:{rA+3}], 0 offen sc1
        s_mov_b64 exec, -1""")
        a.label(L)

    XA, WA, XA2, WA2, EA = 2, 6, 128, 132, 136
    def gemm_compute(self):
        a = self.a
        XA, WA = self.XA, self.WA
        a.label("L_COMPUTE")
        if self.o("cpf", 1):
            L = a.newlabel("NOPF")
            a(f"""s_cmp_lg_u32 s{sWAVE}, 1
            s_cbranch_scc1 {L}
            s_getpc_b64 s[{T2}:{T3}]
            L_PC:
            s_sub_u32 s{T2}, s{T2}, L_PC-{NAME}
            s_subb_u32 s{T3}, s{T3}, 0
            s_and_b32 s{T0}, s{sI}, 7
            s_lshl_b32 s{T0}, s{T0}, 13
            v_lshl_add_u32 v10, v0, 7, s{T0}
            v_min_u32 v10, L_CODE_END-{NAME}-4, v10
            global_load_dword v31, v10, s[{T2}:{T3}]""")
            a.label(L)
        self.common_scalars()
        a(f"""s_lshl_b32 s{T0}, s{sJT}, 10
        s_lshl_b32 s{T1}, s{sRT}, 6
        s_add_u32 s{T0}, s{T0}, s{T1}
        s_add_u32 s{sCL}, s{T0}, {F2:#x}
        s_lshl_b32 s{T0}, s{sXCD}, 1
        s_add_u32 s{T0}, s{T0}, s{sI}
        s_sub_u32 s{T7}, s{T0}, 30
        s_lshl_b32 s{T0}, s{T7}, 6
        s_add_u32 s{T0}, s{T0}, {F5:#x}
        s_cmp_ge_u32 s{sI}, 30
        s_cselect_b32 s{sCL}, s{T0}, s{sCL}
        s_waitcnt lgkmcnt(0)""")
        self.srd(rWS, pWS, WS_SIZE)
        if self.stamps: a("v_mov_b32 v1, 0")
        self.stamp("start")
        self.flag_reset()
        self.persistent()
        for l in self.att_init_list():
            if int(l.split()[1][1:-1]) >= 192: a(l)
        a(f"s_cmp_eq_u32 s{sWAVE}, 0\ns_cbranch_scc1 L_C_NW\ns_waitcnt vmcnt(0)")
        a.label("L_C_NW")
        a(f"s_cmp_ge_u32 s{sI}, 30\ns_cbranch_scc1 L_C_NOTILE")
        a(f"""s_and_b32 s{T0}, s{sWAVE}, 1
        s_lshl_b32 s{T0}, s{T0}, 13
        v_and_b32 v8, 31, v0
        v_lshrrev_b32 v9, 5, v0
        v_lshrrev_b32 v10, 1, v8
        v_and_b32 v10, 7, v10
        v_xor_b32 v10, v10, v9
        v_lshlrev_b32 v8, 7, v8
        v_add_u32 v8, s{T0}, v8""")
        for ks in range(4):
            a(f"v_xor_b32 v11, {2*ks}, v10\nv_lshl_add_u32 v{XA+ks}, v11, 4, v8")
        a(f"""v_lshrrev_b32 v8, 2, v0
        v_and_b32 v8, 3, v8
        v_lshrrev_b32 v9, 5, v0
        v_lshl_add_u32 v9, v9, 3, v8
        v_lshlrev_b32 v9, 8, v9
        v_lshrrev_b32 v10, 4, v0
        v_and_b32 v10, 1, v10
        v_lshlrev_b32 v10, 1, v10
        v_lshrrev_b32 v11, 1, v0
        v_and_b32 v11, 1, v11
        v_or_b32 v10, v10, v11
        v_and_b32 v11, 1, v0
        v_lshlrev_b32 v11, 3, v11
        v_add_u32 v9, v9, v11
        v_add_u32 v9, {L_W}, v9
        s_and_b32 s{T0}, s{sWAVE}, 2""")
        for i in range(2):
            a(f"""s_add_u32 s{T1}, s{T0}, {i}
            v_xor_b32 v11, s{T1}, v8
            v_lshl_add_u32 v11, v11, 2, v10
            v_lshl_add_u32 v{WA+i}, v11, 4, v9""")
        def lowinit():
            for l in self.att_init_list():
                if int(l.split()[1][1:-1]) < 192: a(l)
        a(f"s_cmp_ge_u32 s{sJT}, 10\ns_cbranch_scc1 L_C_VTILE")
        self.epi_qk_setup()
        self.gemm_loop(False, self.gemm_epi_qk, lowinit)
        a("s_branch L_C_FLAG")
        a.label("L_C_NOTILE")
        self.gate()
        lowinit()
        a("s_branch L_C_FLAG")
        a.label("L_C_VTILE")
        self.epi_v_setup()
        self.gemm_loop(True, self.gemm_epi_v, lowinit)
        a.label("L_C_FLAG")
        a.reset_counters()
        self.stamp("c.epi")
        L = a.newlabel("KVW")
        a(f"s_cmp_eq_u32 s{sWAVE}, 3\ns_cbranch_scc1 {L}")
        a("s_waitcnt vmcnt(0)")
        self.last_flag(12, 4, sCL, 2)
        self.stamp("c.F2set")
        a("s_branch L_ATT")
        a.label(L)
        self.kv_fetch_setup()
        a(f"buffer_load_dword v29, v28, s[{rC}:{rC+3}], 0 offen sc1")
        a("s_waitcnt vmcnt(0)")
        self.last_flag(12, 4, sCL, 2)
        self.kv_fetch()
        a("s_branch L_ATT")

    def gate(self):
        a = self.a
        a.reset_counters()
        X, W, Z = 32, 12, 2
        self.srd(rA, pX, 2048 * 1280); self.srd(rB, pGW, 1280)
        a(f"""s_lshl_b32 s{T0}, s{T7}, 7
        s_lshl_b32 s{T1}, s{sWAVE}, 5
        s_add_u32 s{T6}, s{T0}, s{T1}
        v_lshrrev_b32 v10, 4, v0
        v_add_u32 v11, s{T6}, v10
        v_mul_u32_u24 v11, 1280, v11
        v_and_b32 v2, 15, v0
        v_lshlrev_b32 v3, 4, v2
        v_add_u32 v11, v11, v3""")
        for j in range(5): tw = a.vm(f"buffer_load_dwordx4 {vr(W+4*j,4)}, v3, s[{rB}:{rB+3}], 0 offen offset:{256*j}")
        tx = []
        for g in range(8):
            a(f"s_mov_b32 s{T0}, {5120*g}")
            for j in range(5): t = a.vm(f"buffer_load_dwordx4 {vr(X+20*g+4*j,4)}, v11, s[{rA}:{rA+3}], s{T0} offen offset:{256*j}")
            tx.append(t)
        a(f"""v_lshl_add_u32 v10, v2, 2, v10
        v_add_u32 v10, s{T6}, v10
        v_lshlrev_b32 v10, 2, v10
        v_add_u32 v10, {GT:#x}, v10
        v_mov_b32 v11, v2
        s_barrier""")
        for g in range(8):
            a.wait(tw, tx[g])
            for e in range(20):
                a(f"v_dot2_f32_bf16 v{Z+g}, v{X+20*g+e}, v{W+e}, {'0' if e == 0 else f'v{Z+g}'}")
        a.nop(3)
        for sh in (8, 4, 2, 1):
            for g in range(8): a(f"v_add_f32_dpp v{Z+g}, v{Z+g}, v{Z+g} row_ror:{sh} row_mask:0xf bank_mask:0xf")
        for g in range(1, 8):
            a(f"v_cmp_eq_u32 vcc, {g}, v11\ns_nop 1\nv_cndmask_b32 v{Z}, v{Z}, v{Z+g}, vcc")
        a(f"""v_mul_f32 v{Z}, {f2u(-math.log2(math.e)):#x}, v{Z}
        v_exp_f32 v{Z}, v{Z}
        s_mov_b32 exec_lo, 0x00ff00ff
        v_add_f32 v{Z}, 1.0, v{Z}
        v_rcp_f32 v{Z}, v{Z}
        s_mov_b32 exec_hi, 0x00ff00ff
        buffer_store_dword v{Z}, v10, s[{rWS}:{rWS+3}], 0 offen sc1
        s_mov_b64 exec, -1""")

    def gemm_loop(self, vt, epi, fill):
        a = self.a
        a.reset_counters()
        FR, ACC = 32, 64
        def reads(s, ks):
            st = FR + 16 * (ks & 1); sl = s % NSLOT
            xa, wa, sl = (self.XA, self.WA, sl * 16384) if sl < 4 else (self.XA2, self.WA2, 0)
            rx = lambda j: (lambda: a.ds(f"ds_read_b128 {vr(st+4*j,4)}, v{xa+ks} offset:{sl + 4096*j}"))
            rw = lambda i, q: (lambda: a.ds(f"ds_read_b64_tr_b16 {vr(st+8+4*i+2*q,2)}, v{wa+i} offset:{sl + (16*ks+4*q)*256}"))
            if vt: return [("X0", rx(0)), ("W0", rw(0,0)), ("W0", rw(0,1)), ("W1", rw(1,0)), ("W1", rw(1,1)), ("X1", rx(1))]
            return [("W0", rw(0,0)), ("W0", rw(0,1)), ("X0", rx(0)), ("X1", rx(1)), ("W1", rw(1,0)), ("W1", rw(1,1))]
        def group(ks, toks, nxt, first):
            st = FR + 16 * (ks & 1); out = {}
            sched = [3, 3, 0, 0]; k = 0
            for m, (i, j) in enumerate(((0,0),(0,1),(1,0),(1,1))):
                if vt: A, B, na, nb = st + 4*i, st + 8 + 4*j, f"X{i}", f"W{j}"
                else:  A, B, na, nb = st + 8 + 4*i, st + 4*j, f"W{i}", f"X{j}"
                a.wait(toks[na], toks[nb])
                d = ACC + 16 * (2*i + j)
                a(f"v_mfma_f32_32x32x16_bf16 {vr(d,16)}, {vr(A,4)}, {vr(B,4)}, {'0' if first else vr(d,16)}")
                for _ in range(sched[m]):
                    if k < len(nxt): out[nxt[k][0]] = nxt[k][1](); k += 1
            return out
        a("s_barrier")
        toks = {}
        for n, f in reads(0, 0): toks[n] = f()
        for s in range(9):
            for ks in range(4):
                if ks < 3:
                    toks = group(ks, toks, reads(s, ks + 1), s == 0 and ks == 0)
                else:
                    a.wait_all(vm=False); a("s_barrier")
                    if s < 8: toks = group(ks, toks, reads(s + 1, 0), False)
        sets = (FR, 152, 168, 8)
        T = {}
        def rd(ks, nm):
            st = sets[ks]; sl = (9 % NSLOT) * 16384; k = int(nm[1])
            if nm[0] == "X": T[ks, nm] = a.ds(f"ds_read_b128 {vr(st+4*k,4)}, v{self.XA+ks} offset:{sl + 4096*k}")
            else:
                for q in range(2): T[ks, nm] = a.ds(f"ds_read_b64_tr_b16 {vr(st+8+4*k+2*q,2)}, v{self.WA+k} offset:{sl + (16*ks+4*q)*256}")
        na, nb = ("X", "W") if vt else ("W", "X")
        first = [(lambda ks=ks, nm=nm: rd(ks, nm)) for ks in range(4) for nm in (na + "0", nb + "0")]
        later = [(lambda ks=ks: rd(ks, nb + "1")) for ks in range(4)] + [(lambda ks=ks: rd(ks, na + "1")) for ks in range(4)]
        group(3, toks, [(f"f{i}", f) for i, f in enumerate(first[:6])], False)
        for f in first[6:]: f()
        off = lambda nm: 4 * int(nm[1]) + (0 if nm[0] == "X" else 8)
        pend = []
        for bi, (i, j) in enumerate(((0,0),(0,1),(1,0),(1,1))):
            d = ACC + 16 * (2*i + j)
            for ks in range(4):
                a.wait(T[ks, f"{na}{i}"], T[ks, f"{nb}{j}"])
                a(f"v_mfma_f32_32x32x16_bf16 {vr(d,16)}, {vr(sets[ks]+off(f'{na}{i}'),4)}, {vr(sets[ks]+off(f'{nb}{j}'),4)}, {vr(d,16)}")
                if bi < 2 and later: later.pop(0)()
                if bi == 2 and ks == 3: a.wait_all(vm=False); a("s_barrier")
                if bi >= 2:
                    n = -(-len(pend) // (4 - ks + (4 if bi == 2 else 0)))
                    for _ in range(min(n, 9)): pend.pop(0)()
            if bi == 1: pend += epi(0, 0)
            if bi == 1: pend += epi(0, 1)
            if bi == 2: last = epi(1, 0)
        for f in pend: f()
        for f in last: f()
        for f in epi(1, 1): f()
        fill()

    def epi_qk_setup(self):
        a = self.a
        sBASE, sHS, sPQ = T0, T1, T3
        a(f"""s_mov_b32 s{sHS}, {Q_HS}
        s_mov_b32 s{T4}, {Q_US}
        s_cmp_ge_u32 s{sJT}, 5
        s_cselect_b32 s{sHS}, {KV_HS}, s{sHS}
        s_cselect_b32 s{T4}, {KV_US}, s{T4}
        s_cselect_b32 s{sBASE}, {KV}, {QO:#x}
        s_cselect_b32 s{T5}, 5, 0
        s_cselect_b64 s[{sM}:{sM+1}], -1, 0
        s_cselect_b32 s{sSC}, 1.0, {f2u(math.log2(math.e) / math.sqrt(20.0)):#x}
        s_sub_u32 s{T5}, s{sJT}, s{T5}
        s_lshl_b32 s{sPQ}, s{T5}, 4
        s_and_b32 s{T5}, s{sWAVE}, 2
        s_lshl_b32 s{T5}, s{T5}, 2
        s_add_u32 s{sPQ}, s{sPQ}, s{T5}
        s_lshl_b32 s{T5}, s{sRT}, 1
        s_and_b32 s{T6}, s{sWAVE}, 1
        s_add_u32 s{T5}, s{T5}, s{T6}
        s_mul_i32 s{T5}, s{T5}, s{T4}
        s_add_u32 s{sBASE}, s{sBASE}, s{T5}
        v_and_b32 v8, 31, v0
        v_and_b32 v9, 0x13, v0
        v_and_b32 v10, 4, v0
        v_lshl_or_b32 v9, v10, 1, v9
        v_and_b32 v10, 8, v0
        v_lshrrev_b32 v10, 1, v10
        v_or_b32 v9, v9, v10
        v_cndmask_b32 v8, v8, v9, s[{sM}:{sM+1}]
        v_lshrrev_b32 v9, 5, v0
        v_lshlrev_b32 v10, 3, v9
        v_lshl_add_u32 v12, v8, 4, v10
        v_add_u32 v13, 1024, v12
        v_mul_lo_u32 v10, v9, s{sHS}
        v_lshl_add_u32 v14, v8, 3, v10
        v_add_u32 v14, 1024, v14
        v_add_u32 v15, 256, v14""")
        for p in range(8):
            a(f"""s_add_u32 s{T4}, s{sPQ}, {p}
            s_mul_i32 s{T5}, s{T4}, 205
            s_lshr_b32 s{T5}, s{T5}, 10
            s_mul_i32 s{T6}, s{T5}, 5
            s_sub_u32 s{T4}, s{T4}, s{T6}
            s_lshl_b32 s{T5}, s{T5}, 1
            s_mul_i32 s{T5}, s{T5}, s{sHS}
            s_add_u32 s{T5}, s{T5}, s{sBASE}
            s_lshl_b32 s{T6}, s{T4}, 9
            s_add_u32 s{T5}, s{T5}, s{T6}
            s_sub_u32 s{T6}, s{sHS}, 1536
            s_cmp_ge_u32 s{T4}, 3
            s_cselect_b32 s{T6}, s{T6}, 0
            s_add_u32 s{sE+p}, s{T5}, s{T6}
            s_cmp_eq_u32 s{T4}, 2
            s_cselect_b64 s[{sM}:{sM+1}], -1, 0""")
            for j in range(2): a(f"v_cndmask_b32 v{self.EA+2*p+j}, v{12+j}, v{14+j}, s[{sM}:{sM+1}]")
    def gemm_epi_qk(self, i, j):
        a = self.a; L = []
        for g in range(4):
            d = 64 + 16 * (2*i + j) + 4*g
            for e in range(4): L.append(lambda d=d, e=e: a(f"v_mul_f32 v{d+e}, s{sSC}, v{d+e}"))
            L.append(lambda d=d: a(f"v_cvt_pk_bf16_f32 v{d}, v{d}, v{d+1}"))
            L.append(lambda d=d: a(f"v_cvt_pk_bf16_f32 v{d+1}, v{d+2}, v{d+3}"))
            L.append(lambda d=d, g=g: a.vm(f"buffer_store_dwordx2 {vr(d,2)}, v{self.EA+2*(4*i+g)+j}, s[{rWS}:{rWS+3}], s{sE+4*i+g} offen sc1"))
        return L
    def epi_v_setup(self):
        a = self.a
        a(f"""s_sub_u32 s{T0}, s{sJT}, 10
        s_lshl_b32 s{T0}, s{T0}, 7
        s_and_b32 s{T1}, s{sWAVE}, 2
        s_lshl_b32 s{T1}, s{T1}, 5
        s_add_u32 s{T0}, s{T0}, s{T1}
        s_lshl_b32 s{T1}, s{sRT}, 1
        s_and_b32 s{T2}, s{sWAVE}, 1
        s_add_u32 s{T1}, s{T1}, s{T2}
        s_mul_i32 s{T1}, s{T1}, {KV_US}
        s_add_u32 s{sE}, s{T1}, {KV + 2560}
        s_mov_b32 s{T2}, {KV_HS - 320}
        v_and_b32 v8, 31, v0
        v_lshrrev_b32 v9, 5, v0
        v_mul_u32_u24 v9, 320, v9""")
        for j in range(2):
            a(f"""v_add_u32 v10, s{T0}, v8
            v_add_u32 v10, {32*j}, v10
            v_mul_u32_u24 v11, 3277, v10
            v_lshrrev_b32 v11, 16, v11
            v_mul_lo_u32 v11, v11, s{T2}
            v_lshl_add_u32 v10, v10, 4, v9
            v_add_u32 v{self.EA+j}, v10, v11""")
    def gemm_epi_v(self, i, j):
        a = self.a; L = []
        for s in range(2):
            d = 64 + 16 * (2*i + j) + 8*s
            for e in range(4): L.append(lambda d=d, e=e: a(f"v_cvt_pk_bf16_f32 v{d+e}, v{d+2*e}, v{d+2*e+1}"))
            L.append(lambda d=d, s=s: a.vm(f"buffer_store_dwordx4 {vr(d,4)}, v{self.EA+j}, s[{rWS}:{rWS+3}], s{sE} offen offset:{(2*i+s)*640} sc1"))
        return L

    XS, WS_, PA, PB, PW, PS, HA, HL = 2, 6, 10, 11, 12, 13, 14, 15
    KR_, VV_, SW_, HD_, DV_, PO_ = 16, 176, 116, 132, 156, 160
    def dma_setup(self):
        a = self.a
        a(f"""v_lshrrev_b32 v16, 3, v0
        v_and_b32 v17, 7, v0
        v_lshrrev_b32 v18, 1, v16
        s_lshl_b32 s{T0}, s{sRT}, 7
        v_add_u32 v16, s{T0}, v16
        v_mul_u32_u24 v16, 1280, v16""")
        for n in range(4):
            a(f"""v_xor_b32 v19, {(4*n) & 7}, v18
            v_xor_b32 v19, v19, v17
            v_lshl_add_u32 v19, v19, 4, v16
            v_add_u32 v{self.XS+n}, {n*(8*1280-1024)}, v19""")
        a(f"""v_lshrrev_b32 v16, 4, v0
        v_and_b32 v17, 15, v0
        v_lshlrev_b32 v18, 2, v16
        v_xor_b32 v17, v17, v18
        v_mul_u32_u24 v16, 3840, v16
        v_lshl_add_u32 v16, v17, 4, v16
        s_lshl_b32 s{T0}, s{sJT}, 8
        v_add_u32 v{self.WS_}, s{T0}, v16""")
        for n in range(1, 4): a(f"v_add_u32 v{self.WS_+n}, {n*(4*3840-1024)}, v{self.WS_}")
        P = self.o("rot", 1)
        a(f"s_add_u32 s{T0}, s{sJT}, s{sRT}")
        if P == 1: a(f"s_mov_b32 s{sK}, 0")
        elif P == 2: a(f"s_and_b32 s{T0}, s{T0}, 1\ns_mul_i32 s{sK}, s{T0}, 5")
        elif P == 3: a(f"s_mul_i32 s{T1}, s{T0}, 43\ns_lshr_b32 s{T1}, s{T1}, 7\ns_mul_i32 s{T1}, s{T1}, 3\ns_sub_u32 s{T0}, s{T0}, s{T1}\ns_mul_i32 s{T0}, s{T0}, 7\ns_lshr_b32 s{sK}, s{T0}, 1")
        elif P == 4: a(f"s_and_b32 s{T0}, s{T0}, 3\ns_mul_i32 s{T0}, s{T0}, 5\ns_lshr_b32 s{sK}, s{T0}, 1")
    def stage_dma(self, s):
        a = self.a
        sl = (s % NSLOT) * 16384
        a(f"s_lshl_b32 s{T0}, s{sK}, 7\ns_mul_i32 s{T1}, s{sK}, {64*3840}")
        def ld(txt):
            if a.n["vm"] - a.done["vm"] >= 62: a.wait(Tok("vm", a.done["vm"] + 8))
            return a.vm(txt)
        for h in range(4):
            a(f"s_mov_b32 m0, {L_X + sl + 4096*h}")
            a(f"s_add_u32 s{T2}, s{T0}, {32*1280*h}")
            for n in range(4): ld(f"buffer_load_dwordx4 v{self.XS+n}, s[{rA}:{rA+3}], s{T2} offen offset:{1024*n}{self.gnt} lds")
            a(f"s_mov_b32 m0, {L_W + sl + 4096*h}")
            a(f"s_add_u32 s{T2}, s{T1}, {16*3840*h}")
            for n in range(4): t = ld(f"buffer_load_dwordx4 v{self.WS_+n}, s[{rB}:{rB+3}], s{T2} offen offset:{1024*n}{self.gnt} lds")
        a(f"s_add_u32 s{sK}, s{sK}, 1\ns_cmp_eq_u32 s{sK}, 10\ns_cselect_b32 s{sK}, 0, s{sK}")
        return t
    def conv_scalars(self):
        a = self.a
        a(f"""s_min_u32 s{T0}, s{sLW}, 2
        s_add_u32 s{sCH}, s{sCH0}, s{T0}
        s_min_u32 s{sCH}, s{sCH}, 639
        s_mul_i32 s{T0}, s{T0}, {CONV_SZ}
        s_add_u32 s{T6}, s{T0}, {L_CONV}
        s_lshl_b32 s{T1}, s{sCH}, 1
        v_mov_b32 v{self.DV_}, s{T1}
        s_lshl_b32 s{T1}, s{sCH}, 12
        v_lshl_add_u32 v{self.HA}, v0, 4, s{T1}
        v_lshl_add_u32 v{self.HL}, v0, 4, s{T6}""")
        self.srd(rD, pH, 640 * 4096)
        self.h_loads(self.HD_)
        self.srd(rC, pD, 640 * 2)
        return a.vm(f"buffer_load_ushort v{self.DV_}, v{self.DV_}, s[{rC}:{rC+3}], 0 offen")
    def pre_setup(self):
        self.a(f"""s_and_b32 s{T0}, s{sU}, 63
        s_lshr_b32 s{T1}, s{sU}, 6
        s_lshl_b32 s{T5}, s{sWG}, 6
        s_add_u32 s{T5}, s{T5}, {F1:#x}
        s_lshl_b32 s{T0}, s{T0}, 5
        s_lshl_b32 s{T1}, s{T1}, 7
        v_lshrrev_b32 v16, 3, v0
        v_and_b32 v17, 7, v0
        v_lshl_add_u32 v16, v16, 2, s{T0}
        v_lshl_add_u32 v18, v17, 4, s{T1}
        v_mul_u32_u24 v19, 1280, v16
        v_add_u32 v{self.PB}, v19, v18
        v_subrev_u32 v{self.PA}, 3840, v{self.PB}
        v_lshlrev_b32 v{self.PW}, 2, v18
        v_lshlrev_b32 v18, 11, v18
        v_lshlrev_b32 v16, 1, v16
        v_sub_u32 v18, v18, v16
        v_add_u32 v{self.PS}, {UR + 4088:#x}, v18""")
    def pre_loads(self):
        a = self.a
        self.srd(rC, pK, 2048 * 1280); self.srd(rD, pV, 2048 * 1280); self.srd(rB, pSH, 640 * 8)
        for j in range(4): a(f"buffer_load_dwordx4 {vr(self.KR_+12+4*j,4)}, v{self.PB}, s[{rC}:{rC+3}], 0 offen offset:{1280*j}{self.nt}")
        for j in range(4): a(f"buffer_load_dwordx4 {vr(self.VV_+4*j,4)}, v{self.PB}, s[{rD}:{rD+3}], 0 offen offset:{1280*j}{self.nt}")
        for j in range(3): a(f"buffer_load_dwordx4 {vr(self.KR_+4*j,4)}, v{self.PA}, s[{rC}:{rC+3}], 0 offen offset:{1280*j}{self.nt}")
        for j in range(4): a(f"buffer_load_dwordx4 {vr(self.SW_+4*j,4)}, v{self.PW}, s[{rB}:{rB+3}], 0 offen offset:{16*j}")
    def h_loads(self, D):
        a = self.a
        for g in range(4):
            a.vm(f"buffer_load_dwordx4 {vr(D+6*g,4)}, v{self.HA}, s[{rD}:{rD+3}], 0 offen offset:{1024*g}{self.nt}")
            a.vm(f"buffer_load_dwordx2 {vr(D+6*g+4,2)}, v{self.HA}, s[{rD}:{rD+3}], 0 offen offset:{1024*g+16}{self.nt}")
    def bar(self):
        a = self.a; L = a.newlabel("NB")
        a(f"s_cmp_ge_u32 s{sBC}, s{sNB}\ns_cbranch_scc1 {L}\ns_barrier\ns_add_u32 s{sBC}, s{sBC}, 1")
        a.label(L)
    def bar_rest(self):
        a = self.a; L, D = a.newlabel("BR"), a.newlabel("BRD")
        a.label(L)
        a(f"s_cmp_ge_u32 s{sBC}, s{sNB}\ns_cbranch_scc1 {D}\ns_barrier\ns_add_u32 s{sBC}, s{sBC}, 1\ns_branch {L}")
        a.label(D)
    def ewait(self):
        a = self.a; L, D = a.newlabel("EW"), a.newlabel("EWD")
        a.label(L)
        a(f"""s_getreg_b32 s{T0}, hwreg(HW_REG_IB_STS)
        s_and_b32 s{T0}, s{T0}, 0x00c0000f
        s_cbranch_scc0 {D}
        s_cmp_ge_u32 s{sBC}, s{sNB}
        s_cbranch_scc1 {D}
        s_barrier
        s_add_u32 s{sBC}, s{sBC}, 1
        s_branch {L}""")
        a.label(D)
        a("s_waitcnt vmcnt(0)")
    def epoll(self, loads, tmp, cmp=None):
        a = self.a
        L, D = a.newlabel("EP"), a.newlabel("EPD")
        a(f"s_mov_b32 s{sCNT}, 0")
        a.label(L)
        k = 0
        for (va, r, imm, wd) in loads:
            ins = {1: "buffer_load_dword", 2: "buffer_load_dwordx2", 4: "buffer_load_dwordx4"}[wd]
            a(f"{ins} {vr(tmp+k, wd)}, v{va}, s[{r}:{r+3}], 0 offen offset:{imm} sc1"); k += wd
        self.ewait()
        self.poll_check(tmp, k, cmp)
        a(f"s_cbranch_scc1 {D}")
        a(f"s_add_u32 s{sCNT}, s{sCNT}, 1\ns_cmp_lt_u32 s{sCNT}, {POLL_MAX}\ns_cbranch_scc0 {D}\ns_sleep 1\ns_branch {L}")
        a.label(D)
    def pre_compute_list(self):
        L = []
        K, V, W, AC = 76, 90, 98, 106
        lo = lambda d, s: L.append(f"v_lshlrev_b32 v{d}, 16, v{s}")
        hi = lambda d, s: L.append(f"v_and_b32 v{d}, 0xffff0000, v{s}")
        for p in range(4):
            for j in range(7): lo(K+2*j, self.KR_+4*j+p); hi(K+2*j+1, self.KR_+4*j+p)
            for j in range(4): lo(V+2*j, self.VV_+4*j+p); hi(V+2*j+1, self.VV_+4*j+p)
            w = self.SW_ + 4*p
            lo(W, w); lo(W+1, w+2); hi(W+2, w); hi(W+3, w+2); lo(W+4, w+1); lo(W+5, w+3); hi(W+6, w+1); hi(W+7, w+3)
            for lag in (3, 2, 1, 0):
                for t in range(4):
                    kk = K + 2*(3 + t - lag)
                    if self.o("pk", 1):
                        if lag == 3: L.append(f"v_pk_mul_f32 {vr(AC+2*t,2)}, {vr(kk,2)}, {vr(W+2*lag,2)}")
                        else: L.append(f"v_pk_fma_f32 {vr(AC+2*t,2)}, {vr(kk,2)}, {vr(W+2*lag,2)}, {vr(AC+2*t,2)}")
                    else:
                        for h in range(2):
                            if lag == 3: L.append(f"v_mul_f32 v{AC+2*t+h}, v{kk+h}, v{W+2*lag+h}")
                            else: L.append(f"v_fmac_f32 v{AC+2*t+h}, v{kk+h}, v{W+2*lag+h}")
            for t in range(4):
                if self.o("pk", 1): L.append(f"v_pk_mul_f32 {vr(AC+2*t,2)}, {vr(AC+2*t,2)}, {vr(V+2*t,2)}")
                else:
                    for h in range(2): L.append(f"v_mul_f32 v{AC+2*t+h}, v{AC+2*t+h}, v{V+2*t+h}")
            for h in range(2):
                o = self.PO_ + 4*p + 2*h
                L.append(f"v_cvt_pk_bf16_f32 v{o}, v{AC+6+h}, v{AC+4+h}"); L.append(f"v_cvt_pk_bf16_f32 v{o+1}, v{AC+2+h}, v{AC+h}")
        return L
    def pre_stores(self):
        a = self.a
        for e in range(8):
            a(f"s_mov_b32 s{T0}, {4096*e}")
            a(f"buffer_store_dwordx2 {vr(self.PO_+2*e,2)}, v{self.PS}, s[{rWS}:{rWS+3}], s{T0} offen sc1")
    def h_group(self, D, imm, t0):
        a = self.a
        t1, t2 = t0 + 4, t0 + 8
        for e in range(4): a(f"v_alignbit_b32 v{t0+e}, v{D+e+1}, v{D+e}, 16")
        for e in range(4): a(f"v_mov_b32 v{t1+e}, v{D+e+1}")
        for e in range(4): a(f"v_alignbit_b32 v{t2+e}, v{D+e+2}, v{D+e+1}, 16")
        for r, src in enumerate((t0, t1, t2, D + 2)):
            a(f"ds_write_b128 v{self.HL}, {vr(src,4)} offset:{r*CS + imm}")
    def h_to_lds(self, HD, off):
        a = self.a
        a(f"v_readlane_b32 s{T1}, v{HD}, 0\nv_readlane_b32 s{T2}, v{HD+1}, 0")
        for g in range(4):
            self.h_group(HD + 6*g, off + 32 + 1024*g, 64 + 12*g)
        D = 112
        for e in range(6): a(f"v_mov_b32 v{D+e}, 0")
        a("s_mov_b32 exec_hi, 0")
        a(f"ds_write_b128 v{self.HL}, {vr(D,4)} offset:{off + U_OFF + 4096}")
        a(f"v_writelane_b32 v{D+4}, s{T1}, 1\nv_writelane_b32 v{D+5}, s{T2}, 1\ns_mov_b64 exec, 3")
        self.h_group(D, off, 120)
        a("s_mov_b64 exec, -1")

    def dma_role(self):
        a = self.a
        a.reset_counters()
        fine = self.o("fine", 0)
        self.dma_setup()
        a("s_waitcnt lgkmcnt(0)")
        self.srd(rA, pX, 2048 * 1280); self.srd(rB, pW, 640 * 3840)
        a(f"s_cmp_ge_u32 s{sI}, 30\ns_cbranch_scc1 L_D_SKIP")
        S = {0: self.stage_dma(0)}
        a.label("L_D_SKIP")
        if self.stamps: a("v_mov_b32 v1, 0")
        self.stamp("start")
        self.srd(rWS, pWS, WS_SIZE)
        self.common_scalars()
        self.persistent()
        a(f"s_cmp_ge_u32 s{sI}, 30\ns_cbranch_scc1 L_D_NT")
        if self.o("dprio", 0): a(f"s_setprio {self.o('dprio', 0)}")
        S[1] = self.stage_dma(1)
        for s in range(10):
            a.wait(S[s])
            if fine: self.stamp(f"l.w{s}")
            a("s_barrier")
            if fine or s in (0, 5, 9): self.stamp(f"l.b{s}")
            if s + 2 <= 9:
                S[s+2] = self.stage_dma(s + 2)
                if fine: self.stamp(f"l.i{s}")
            if s == 8: self.conv_scalars()
        a("s_barrier")
        a.label("L_CONV")
        self.conv()
    def side_role(self):
        a = self.a
        a.label("L_SIDE")
        a.reset_counters()
        a(f"""s_cmp_eq_u32 s{sWAVE}, 7
        s_cselect_b32 s{T0}, 1, 0
        s_cmp_eq_u32 s{sWAVE}, 6
        s_cselect_b32 s{T0}, 2, s{T0}
        s_add_u32 s{sU}, s{sCH0}, s{T0}
        s_cmp_ge_u32 s{T0}, s{sNCH}
        s_cbranch_scc1 L_IDLE""")
        self.pre_setup()
        a("s_waitcnt lgkmcnt(0)")
        self.pre_loads()
        if self.stamps: a("v_mov_b32 v1, 0")
        self.stamp("start")
        self.srd(rWS, pWS, WS_SIZE)
        self.common_scalars()
        self.persistent()
        a(f"""v_mov_b32 v44, {L_SIG}
        v_mov_b32 v46, 0
        v_mov_b32 v47, 0
        ds_write_b64 v44, v[46:47]
        ds_write_b64 v44, v[46:47] offset:8
        v_and_b32 v46, 1, v0
        v_lshlrev_b32 v46, 7, v46
        s_waitcnt lgkmcnt(0)""")
        self.bar()
        self.ewait()
        self.stamp("s.kv")
        if self.o("sprio", 0): a(f"s_setprio {self.o('sprio', 0)}")
        PC = self.pre_compute_list()
        nch = self.o("nchunk", 2)
        per = -(-len(PC) // nch)
        for c in range(nch):
            for l in PC[c*per:(c+1)*per]: a(l)
            if c < nch - 1 or self.o("barst", 1): self.bar()
        self.pre_stores()
        self.srd(rC, pDBG, 256)
        a(f"buffer_load_dword v47, v46, s[{rC}:{rC+3}], 0 offen sc1")
        self.stamp("s.st")
        self.ewait()
        self.last_flag(8, f"s{sNCH}", T5, 114)
        self.stamp("s.F1set")
        a(f"s_cmp_eq_u32 s{sWAVE}, 7\ns_cbranch_scc1 L_FETCH")
        LG, LD = a.newlabel("SG"), a.newlabel("SGD")
        a.label(LG)
        a(f"s_cmp_ge_u32 s{sBC}, 8\ns_cbranch_scc1 {LD}\ns_cmp_ge_u32 s{sBC}, s{sNB}\ns_cbranch_scc1 {LD}\ns_barrier\ns_add_u32 s{sBC}, s{sBC}, 1\ns_branch {LG}")
        a.label(LD)
        self.conv_scalars()
        self.bar_rest()
        a("s_branch L_CONV")
        a.label("L_D_NT")
        self.conv_scalars()
        a("s_barrier\ns_branch L_CONV")
        a.label("L_IDLE")
        a("s_waitcnt lgkmcnt(0)")
        if self.stamps: a("v_mov_b32 v1, 0")
        self.stamp("start")
        self.srd(rWS, pWS, WS_SIZE)
        self.common_scalars()
        self.persistent()
        for l in self.att_init_list(): a(l)
        self.bar_rest()
        a("s_branch L_ATT")
        self.fetcher()

    def fetcher(self):
        a = self.a
        a.label("L_FETCH")
        a.reset_counters()
        OK = a.newlabel("CNTOK")
        a("s_setprio 0")
        self.poll_check(47, 1, cmp="v_cmp_le_u32 vcc, 0x80, v47")
        a(f"s_cbranch_scc1 {OK}")
        self.epoll([(46, rC, 0, 1)], 47, cmp="v_cmp_le_u32 vcc, 0x80, v47")
        a.label(OK)
        a(f"""s_andn2_b32 s{T1}, s{sCH0}, 63
        s_add_u32 s{T2}, s{sCH0}, s{sNCH}
        s_sub_u32 s{T2}, s{T2}, 1
        s_or_b32 s{T2}, s{T2}, 63""")
        for r in (T1, T2):
            a(f"""s_mul_i32 s{T3}, s{r}, 13108
            s_lshr_b32 s{T3}, s{T3}, 16
            s_mul_i32 s{T4}, s{T3}, 5
            s_sub_u32 s{T4}, s{r}, s{T4}
            s_lshl_b32 s{T3}, s{T3}, 1
            s_cmp_ge_u32 s{T4}, 3
            s_addc_u32 s{r}, s{T3}, 0""")
        a(f"""v_add_u32 v9, s{T1}, v0
        v_min_u32 v9, s{T2}, v9
        v_lshlrev_b32 v9, 6, v9
        v_add_u32 v9, {F1:#x}, v9""")
        self.mpoll([9], 16, elastic=True)
        self.stamp("f.F1ok")
        a(f"s_lshl_b32 s{T2}, s{sCH0}, 12\ns_add_u32 s{T2}, s{T2}, {UR:#x}")
        for c in range(3):
            L = a.newlabel("NOU")
            if c == 2: a(f"s_cmp_lt_u32 s{sNCH}, 3\ns_cbranch_scc1 {L}")
            a(f"s_mov_b32 m0, {L_CONV + c*CONV_SZ + U_OFF}\ns_add_u32 s{T1}, s{T2}, {4096*c}")
            for j in range(4): a(f"buffer_load_dwordx4 v{L16}, s[{rWS}:{rWS+3}], s{T1} offen offset:{1024*j} sc1 lds")
            if c == 2: a.label(L)
        a("v_mov_b32 v45, 1")
        self.ewait()
        a("ds_write_b32 v44, v45")
        self.stamp("f.u")
        self.bar_rest()
        for l in self.att_init_list(): a(l)
        a("s_branch L_ATT")
    def kv_fetch(self):
        a = self.a
        a.reset_counters()
        OK = a.newlabel("CNTOK")
        self.poll_check(29, 1, cmp="v_cmp_le_u32 vcc, 0x80, v29")
        a(f"s_cbranch_scc1 {OK}")
        self.poll([(28, rC, 0, 1)], 29, cmp="v_cmp_le_u32 vcc, 0x80, v29")
        a.label(OK)
        self.mpoll([30, 31], 16)
        self.stamp("f.F2ok")
        a(f"""s_mul_i32 s{T0}, s{sHEAD}, {Q_HS}
        s_mul_i32 s{T1}, s{sQB}, {4*Q_US}
        s_add_u32 s{T0}, s{T0}, s{T1}
        s_add_u32 s{T0}, s{T0}, {QO:#x}""")
        def lin(sbase, lds0, n):
            for k in range(n):
                if k % 4 == 0: a(f"s_mov_b32 m0, {lds0 + 1024*k}\ns_add_u32 s{T1}, s{sbase}, {1024*k}")
                a.vm(f"buffer_load_dwordx4 v{L16}, s[{rWS}:{rWS+3}], s{T1} offen offset:{1024*(k%4)} sc1 lds")
        lin(T0, L_Q, 10)
        lin(sKVB, 0, 40)
        a(f"v_mov_b32 v16, {L_SIG}\nv_mov_b32 v17, 1")
        a.wait_all()
        a("ds_write_b32 v16, v17 offset:4")
        self.stamp("f.kv0")
    def kv_fetch_setup(self):
        a = self.a
        self.srd(rC, pDBG, 256)
        a(f"""s_mul_i32 s{T0}, s{sHEAD}, 20
        v_and_b32 v28, 15, v0
        v_lshrrev_b32 v30, 4, v0
        v_and_b32 v31, 1, v30
        v_mul_u32_u24 v31, 19, v31
        v_add_u32 v31, s{T0}, v31
        v_lshrrev_b32 v31, 7, v31
        v_lshrrev_b32 v30, 1, v30
        v_mul_u32_u24 v30, 5, v30
        v_add3_u32 v30, v30, v31, 5
        v_lshl_add_u32 v30, v30, 4, v28
        v_lshlrev_b32 v30, 6, v30
        v_add_u32 v30, {F2:#x}, v30
        v_lshl_add_u32 v31, v31, 4, s{sQB}
        v_add_u32 v31, s{sQB}, v31
        v_and_b32 v28, 1, v0
        v_add_u32 v31, v31, v28
        v_lshlrev_b32 v31, 6, v31
        v_add_u32 v31, {F2:#x}, v31
        v_lshlrev_b32 v28, 7, v28""")

    def sig_wait(self, off):
        a = self.a
        L, D = a.newlabel("SIG"), a.newlabel("SIGD")
        a(f"v_mov_b32 v14, {L_SIG}\ns_mov_b32 s{sCNT}, 0")
        a.label(L)
        a(f"""ds_read_b32 v15, v14 offset:{off}
        s_waitcnt lgkmcnt(0)
        v_readfirstlane_b32 s{T0}, v15
        s_add_u32 s{sCNT}, s{sCNT}, 1
        s_cmp_lg_u32 s{T0}, 0
        s_cbranch_scc1 {D}
        s_sleep 1
        s_cmp_lt_u32 s{sCNT}, {POLL_MAX*40}
        s_cbranch_scc1 {L}""")
        a.label(D)
    def conv(self):
        a = self.a
        a.reset_counters()
        ACC, FR = 16, 64
        HA, UB, UE, YS, DV = 2, 3, 4, 5, self.DV_
        a(f"s_waitcnt vmcnt(0)\ns_setprio {self.o('cprio', 3)}")
        self.h_to_lds(self.HD_, 0)
        a(f"""v_lshrrev_b32 v8, 4, v0
        s_lshl_b32 s{T0}, s{sCH}, 12
        v_lshrrev_b32 v9, 2, v0
        v_and_b32 v9, 3, v9
        v_mul_u32_u24 v9, {CS}, v9
        v_lshl_add_u32 v9, v8, 4, v9
        v_and_b32 v10, 3, v0
        v_lshl_add_u32 v9, v10, 3, v9
        v_add_u32 v{HA}, s{T6}, v9
        v_and_b32 v9, 15, v0
        v_lshlrev_b32 v9, 5, v9
        v_lshlrev_b32 v10, 4, v8
        v_sub_u32 v10, v10, v9
        v_add_u32 v10, s{T6}, v10
        v_add_u32 v{UB}, {U_OFF + 480}, v10
        v_lshl_add_u32 v9, v8, 3, v9
        v_sub_u32 v10, s{T6}, v9
        v_add_u32 v{UE}, {U_OFF + 504}, v10
        s_add_u32 s{T0}, s{T0}, {YD:#x}
        v_add_u32 v{YS}, s{T0}, v9
        v_lshlrev_b32 v7, 16, v{DV}""")
        self.stamp("v.h")
        self.sig_wait(0)
        a.reset_counters()
        def reads(rho):
            st = FR + 64 * (rho & 1)
            ra = lambda i, q: (lambda: a.ds(f"ds_read_b64_tr_b16 {vr(st+4*i+2*q,2)}, v{HA} offset:{64*(8*i+rho) + 8*q}"))
            rb = lambda d: (lambda: a.ds(f"ds_read_b128 {vr(st+32+4*d,4)}, v{UB} offset:{64*(56 - (8*d - rho))}"))
            L = [("A0", ra(0,0)), ("A0", ra(0,1))] + [(f"B{d}", rb(d)) for d in range(8)]
            for i in range(1, 8): L += [(f"A{i}", ra(i,0)), (f"A{i}", ra(i,1))]
            return L
        toks = {}
        for n, f in reads(0): toks[n] = f()
        self.stamp("v.u")
        init = self.att_init_list()
        for rho in range(8):
            st = FR + 64 * (rho & 1)
            nxt = reads(rho + 1) if rho < 7 else []
            out = {}; k = 0; m = 0
            for i in range(8):
                for c in range(i, 8):
                    a.wait(toks[f"A{i}"], toks[f"B{c-i}"])
                    d = ACC + 4 * c
                    a(f"v_mfma_f32_16x16x32_bf16 {vr(d,4)}, {vr(st+4*i,4)}, {vr(st+32+4*(c-i),4)}, {'0' if (rho == 0 and i == 0) else vr(d,4)}")
                    m += 1
                    if m >= 4 and k < len(nxt): out[nxt[k][0]] = nxt[k][1](); k += 1
                    elif m >= 28 and init: a(init.pop())
            assert k == len(nxt)
            toks = out
        assert not init
        self.stamp("v.mfma")
        tu = [a.ds(f"ds_read_b64 {vr(FR+2*c,2)}, v{UE} offset:{512*(7-c)}") for c in range(8)]
        for c in range(8):
            a.wait(tu[c])
            d, u, t = ACC + 4*c, FR + 2*c, FR + 32 + 8*(c & 3)
            a(f"""v_and_b32 v{t}, 0xffff0000, v{u+1}
            v_lshlrev_b32 v{t+1}, 16, v{u+1}
            v_and_b32 v{t+2}, 0xffff0000, v{u}
            v_lshlrev_b32 v{t+3}, 16, v{u}""")
            for e in range(4): a(f"v_fmac_f32 v{d+e}, v7, v{t+e}")
            a(f"v_cvt_pk_bf16_f32 v{t+4}, v{d}, v{d+1}\nv_cvt_pk_bf16_f32 v{t+5}, v{d+2}, v{d+3}")
            a.vm(f"buffer_store_dwordx2 {vr(t+4,2)}, v{YS}, s[{rWS}:{rWS+3}], 0 offen offset:{512*c} sc1")
        self.stamp("v.st")

    def m2b(self, S): self.a(f"v_mfma_f32_32x32x4_2b_bf16 {vr(S,32)}, {vr(KRM,2)}, {vr(QR,2)}, 0")
    def mqk(self, S, h): self.a(f"v_mfma_f32_32x32x16_bf16 {vr(S+16*h,16)}, {vr(KM+4*h,4)}, {vr(QM,4)}, {vr(S+16*h,16)}")
    def smf(self, V, P): self.a(f"v_smfmac_f32_32x32x32_bf16 {vr(O_,16)}, {vr(V,4)}, {vr(P,8)}, v{IDX}")
    def side_kv(self, add):
        a = self.a
        def mk(j):
            def f():
                if j == 0: a(f"s_add_u32 m0, s{sKVW}, {add*KV_US}\ns_add_u32 s{T5}, s{sKVG}, {add*KV_US}")
                if j == 4: a(f"s_add_u32 m0, m0, 4096\ns_add_u32 s{T5}, s{T5}, 4096")
                a.vm(f"buffer_load_dwordx4 v{L16}, s[{rWS}:{rWS+3}], s{T5} offen offset:{1024*(j%4)} sc1 lds")
            return f
        return [mk(j) for j in range(5)]
    def side_wo(self):
        a = self.a
        def mk(k):
            def f():
                L = a.newlabel("NOWO")
                if k == 0: a(f"s_mul_i32 s{T4}, s{sWAVE}, {13*1024}\ns_add_u32 m0, s{T4}, {L_WO}")
                else: a("s_add_u32 m0, m0, 1024")
                if k % 5 == 0: a(f"s_mov_b32 s{T5}, {40960*(k//5)}")
                elif k < 9: a("s_nop 0")
                if k >= 9: a(f"s_cmp_eq_u32 s{sWAVE}, 7\ns_cbranch_scc1 {L}")
                a.vm(f"buffer_load_dwordx4 v{WOV + k%5}, s[{rA}:{rA+3}], s{T5} offen lds")
                if k >= 9: a.label(L)
            return f
        return [mk(k) for k in range(13)]
    def side_yd(self):
        a = self.a
        def f0():
            OK = a.newlabel("F3OK")
            a.wait(self.tF3)
            self.poll_check(F3T, 2)
            a(f"s_cbranch_scc1 {OK}")
            snap = a.snapshot(); self.poll([(AF3, rWS, 0, 2)], F3T); a.restore(snap)
            a.label(OK)
            a(f"s_mul_i32 s{T5}, s{sWAVE}, 1280\ns_add_u32 m0, s{T5}, {L_YD}\ns_mov_b32 s{T5}, {8*4096 - 1024}")
            a.vm(f"buffer_load_dwordx4 v{YDV}, s[{rWS}:{rWS+3}], 0 offen sc1 lds")
            a("s_mov_b64 exec, 0xffff")
            a.vm(f"buffer_load_dwordx4 v{YDV}, s[{rWS}:{rWS+3}], s{T5} offen offset:1024 sc1 lds")
            a("s_mov_b64 exec, -1")
        return [f0]
    def side_x(self):
        a = self.a
        def mk(j):
            def f():
                if j == 0: self.srd(rA, pX, 2048 * 1280)
                a.vm(f"buffer_load_dwordx2 {vr(XE+2*j,2)}, v{AOUT}, s[{rA}:{rA+3}], 0 offen offset:{32*j}")
            return f
        def f3(): self.tF3 = a.vm(f"buffer_load_dwordx2 {vr(F3T,2)}, v{AF3}, s[{rWS}:{rWS+3}], 0 offen sc1")
        return [mk(j) for j in range(3)] + [f3]
    def attention(self):
        a = self.a
        a.label("L_ATT")
        a.reset_counters()
        self.sig_wait(4)
        self.stamp("att0")
        base = {"K": 0, "V": 0}
        def bump(kind, u):
            while u * KV_US - base[kind] > 11 * KV_US:
                base[kind] += 12 * KV_US
                for r in ((AKM, AKR) if kind == "K" else (AV,)): a(f"v_add_u32 v{r}, {12*KV_US}, v{r}")
            return u * KV_US - base[kind]
        def rKR(u): o = bump("K", u); return a.ds(f"ds_read_b64 {vr(KRM,2)}, v{AKR} offset:{o}")
        def rKM(u, h): o = bump("K", u); return a.ds(f"ds_read_b128 {vr(KM+4*h,4)}, v{AKM} offset:{o + 1024*h}")
        def rV(u):
            o = bump("V", u)
            a(f"s_mov_b64 exec, s[{sVMASK}:{sVMASK+1}]")
            for g in range(4): t = a.ds(f"ds_read_b128 {vr(VS[u&1]+4*g,4)}, v{AV} offset:{o + 640*g}")
            a("s_mov_b64 exec, -1")
            return t
        tq = [a.ds(f"ds_read_b64 {vr(QR,2)}, v{AQR} offset:2048")]
        tKR = rKR(0)
        tq.append(a.ds(f"ds_read_b128 {vr(QM,4)}, v{AQM}"))
        tK0 = rKM(0, 0); tK1 = rKM(0, 1); tV = {0: rV(0)}
        side = self.side_kv(8)
        a.wait(tq[0], tKR); self.m2b(S_); tKR = rKR(1)
        for _ in range(4): side.pop(0)()
        a.nop(11)
        a.wait(tq[1], tK0); self.mqk(S_, 0); tK0 = rKM(1, 0)
        a.wait(tK1); self.mqk(S_, 1); tK1 = rKM(1, 1)
        side.pop(0)()
        a.nop(6)
        zones = {0: self.o("z0", "3,5"), 6: self.o("z1", "3,5,7"), 14: self.o("z1", "3,5,7"), 22: self.o("z3", "4,7,9")}
        prio = {}
        if self.o("prio", 1):
            for u0, z in zones.items():
                zz = [int(x) for x in z.split(",")]
                prio[u0] = len(zz)
                for k, d in enumerate(zz): prio[u0 + d] = len(zz) - 1 - k
        for u in range(32):
            if u % 8 == 6 and u < 30:
                assert not side
                side = self.att_sync(u // 8)
            if u in prio: a(f"s_setprio {prio[u]}")
            X, Y = S_ + 32 * (u & 1), S_ + 32 * ((u + 1) & 1)
            Vc, Vp = VS[u & 1], VS[(u + 1) & 1]
            nx = u < 31
            for p in range(32):
                if p == 2:
                    if nx: a.wait(tKR, tV[u])
                    else: a.wait(tV[u])
                    if u > 0: self.smf(Vp + 12, Y + 24)
                    if nx: tV[u+1] = rV(u + 1)
                if p == 6 and nx:
                    self.m2b(Y)
                    if u < 30: tKR = rKR(u + 2)
                if p in (10, 20) and side: side.pop(0)()
                if p == 14: self.smf(Vc, X)
                if p == 18: self.smf(Vc + 4, X + 8)
                if p == 22 and nx:
                    a.wait(tK0, tK1); self.mqk(Y, 0)
                    if u < 30: tK0 = rKM(u + 2, 0)
                if p == 26: self.smf(Vc + 8, X + 16)
                if p == 30 and nx:
                    self.mqk(Y, 1)
                    if u < 30: tK1 = rKM(u + 2, 1)
                a(f"v_exp_f32 v{X+p}, v{X+p}")
        assert not side
        a.nop(2)
        self.smf(VS[1] + 12, S_ + 32 + 24)
        self.stamp("attend")
    def att_sync(self, k):
        a = self.a
        if k == 0:
            a.wait_all(vm=True, ds=False, force=True)
            L = a.newlabel("NOF3")
            a(f"s_cmp_ge_u32 s{sLW}, s{sNCH}\ns_cbranch_scc1 {L}")
            a(f"s_lshl_b32 s{T0}, s{sCH}, 2\ns_add_u32 s{T0}, s{T0}, {F3:#x}")
            self.flag_store(T0, 14)
            a.label(L)
            a("s_barrier")
            self.stamp("sync0")
            return self.side_kv(16) + self.side_kv(24)
        if k == 1:
            a.wait_all(vm=True, ds=False, force=True)
            a("s_barrier")
            self.stamp("sync1")
            return self.side_x()
        a("s_barrier")
        self.stamp("sync2")
        self.srd(rA, pWO, 640 * 1280)
        return self.side_yd() + self.side_wo()

    def finish(self):
        a = self.a
        O, TMP = O_, 16
        ACC, OF, WF, G = 224, 16, 56, 14
        a(f"""v_lshlrev_b32 v2, 3, v0
        s_mov_b32 s{T2}, {f2u(2.0**-60):#x}
        s_mov_b32 s{T3}, {f2u(2.0**60):#x}
        s_mov_b32 s{T4}, 0x7f7fffff
        s_setprio 0""")
        a.nop(7)
        a.label("L_NORM")
        a(f"v_rcp_f32 v{TMP+4}, v{O+12}")
        for e in range(4): a(f"v_add_f32 v{TMP+e}, abs(v{O+e}), abs(v{O+4+e})")
        for e in range(4): a(f"v_add_f32 v{TMP+e}, v{TMP+e}, abs(v{O+8+e})")
        a(f"""v_add_f32 v{TMP}, v{TMP}, v{TMP+1}
        v_add_f32 v{TMP+2}, v{TMP+2}, v{TMP+3}
        v_cmp_le_f32 vcc, s{T2}, v{O+12}
        v_cmp_ge_f32 s[{sM}:{sM+1}], s{T3}, v{O+12}
        v_add_f32 v{TMP}, v{TMP}, v{TMP+2}
        s_nop 0
        s_and_b64 s[{sM}:{sM+1}], s[{sM}:{sM+1}], vcc
        v_cmp_ge_f32 vcc, s{T4}, v{TMP}
        s_nop 1
        s_and_b64 s[{sM}:{sM+1}], s[{sM}:{sM+1}], vcc
        s_cmp_eq_u64 s[{sM}:{sM+1}], exec
        s_cbranch_scc1 L_NORM_OK
        s_cmp_eq_u32 s{sSLOW}, 0
        s_cbranch_scc1 L_SLOW""")
        a.label("L_NORM_OK")
        for e in range(8): a(f"v_mul_f32 v{O+e}, v{O+e}, v{TMP+4}")
        for e in range(4): a(f"v_cvt_pk_bf16_f32 v{TMP+8+e}, v{O+2*e}, v{O+2*e+1}")
        a(f"buffer_store_dwordx4 {vr(TMP+8,4)}, v{L16}, s[{rWS}:{rWS+3}], s{sOMS} offen sc1")
        for e in range(8, 12): a(f"v_mul_f32 v{O+e}, v{O+e}, v{TMP+4}")
        for e in range(4, 6): a(f"v_cvt_pk_bf16_f32 v{TMP+8+e}, v{O+2*e}, v{O+2*e+1}")
        a("s_mov_b32 exec_hi, 0")
        a(f"buffer_store_dwordx2 {vr(TMP+12,2)}, v2, s[{rWS}:{rWS+3}], s{sORS} offen sc1")
        a("s_mov_b32 exec_hi, -1")
        self.srd(rA, pOUT, 2048 * 1280)
        a("s_waitcnt vmcnt(0)\ns_barrier")
        a.reset_counters()
        L = a.newlabel("NOF4")
        a(f"s_cmp_lg_u32 s{sWAVE}, 0\ns_cbranch_scc1 {L}")
        self.flag_store(sF4S, 2)
        a.label(L)
        a.reset_counters()
        self.stamp("F4set")
        tg = a.vm(f"buffer_load_dword v{G}, v{AG}, s[{rWS}:{rWS+3}], 0 offen sc1")
        def wfrag(step, regstep):
            toks = []
            for b in range(5):
                for q in range(2):
                    if step < 8: ad, off = (WM0 if b < 2 else WM1), (40*step + 8*q)*160 + 32*b
                    else: ad, off = (WR0 if b < 2 else WR1), (160*(step-8) + 80*q)*160 + 32*b
                    t = a.ds(f"ds_read_b64_tr_b16 {vr(WF + 20*regstep + 4*b + 2*q, 2)}, v{ad} offset:{L_WO + off}")
                toks.append(t)
            return toks
        tw = {s: wfrag(s, s) for s in range(8)}
        YR, BB = 2, 16
        ty = [a.ds(f"ds_read_b64_tr_b16 {vr(YR+2*b,2)}, v{AYD} offset:{2048*b}") for b in range(3)]
        keep = [216, 217, 218, 219, 220, 221, 222, 223, 2, 3, 4, 5]
        for b in range(3):
            a.wait(ty[b])
            x, y = XE + 2*b, YR + 2*b
            a(f"""v_lshlrev_b32 v16, 16, v{x}
            v_and_b32 v17, 0xffff0000, v{x}
            v_lshlrev_b32 v18, 16, v{x+1}
            v_and_b32 v19, 0xffff0000, v{x+1}
            v_lshlrev_b32 v20, 16, v{y}
            v_and_b32 v21, 0xffff0000, v{y}
            v_lshlrev_b32 v22, 16, v{y+1}
            v_and_b32 v23, 0xffff0000, v{y+1}""")
            for e in range(4): a(f"v_mul_f32 v{keep[4*b+e]}, v{16+e}, v{20+e}")
        L = a.newlabel("NOP4")
        a(f"s_cmp_lg_u32 s{sWAVE}, 0\ns_cbranch_scc1 {L}")
        snap = a.snapshot(); self.mpoll([AF4], 15); a.restore(snap)
        a.label(L)
        a("s_barrier")
        self.stamp("F4ok")
        to = {}
        for s in range(8):
            a(f"s_mov_b32 s{T0}, {s*131072}")
            to[s] = a.vm(f"buffer_load_dwordx4 {vr(OF+4*s,4)}, v{AOM}, s[{rWS}:{rWS+3}], s{T0} offen sc1")
        for rs in range(2):
            for q in range(2):
                a(f"s_mov_b32 s{T0}, {(8*rs+4*q)*16384}")
                to[8+rs] = a.vm(f"buffer_load_dwordx2 {vr(OF+32+4*rs+2*q,2)}, v{AOR}, s[{rWS}:{rWS+3}], s{T0} offen sc1")
        for s in range(10):
            rs = s if s < 8 else s - 8
            a.wait(to[s])
            order = range(5) if s < 9 else (2, 3, 4, 0, 1)
            for b in order:
                a.wait(tw[s][b])
                d = ACC + 4*b
                a(f"v_mfma_f32_16x16x32_bf16 {vr(d,4)}, {vr(WF+20*rs+4*b,4)}, {vr(OF+4*s,4)}, {'0' if s == 0 else vr(d,4)}")
            if s < 2: tw[8+s] = wfrag(8 + s, s)
        self.stamp("mfma")
        a.nop(4)
        for b in (2, 3, 4): a.ds(f"ds_write_b128 v{AEX}, {vr(ACC+4*b,4)} offset:{1024*(b-2)}")
        for b in range(3):
            for e in range(4): a(f"v_sub_f32 v{ACC+4*b+e}, v{ACC+4*b+e}, v{keep[4*b+e]}")
        a.wait_all(vm=False)
        a("s_barrier")
        tp = [a.ds(f"ds_read_b128 {vr(16+4*b,4)}, v{AX2} offset:{1024*b}") for b in range(3)]
        a.wait(tg)
        for b in range(3):
            if b == 2: a(f"s_cmp_lg_u32 s{sKH}, 0\ns_cbranch_scc1 L_FIN")
            a.wait(tp[b])
            for e in range(4): a(f"v_add_f32 v{16+4*b+e}, v{16+4*b+e}, v{ACC+4*b+e}")
            for e in range(4): a(f"v_fmac_f32 v{keep[4*b+e]}, v{G}, v{16+4*b+e}")
            a(f"v_cvt_pk_bf16_f32 v{32+2*b}, v{keep[4*b]}, v{keep[4*b+1]}\nv_cvt_pk_bf16_f32 v{33+2*b}, v{keep[4*b+2]}, v{keep[4*b+3]}")
            a.vm(f"buffer_store_dwordx2 {vr(32+2*b,2)}, v{AOUT}, s[{rA}:{rA+3}], 0 offen offset:{32*b}")
        a.label("L_FIN")
        if self.stamps:
            self.stamp("st")
            a("s_waitcnt vmcnt(0)")
            self.stamp("end")
            a(f"s_lshl_b32 s{T0}, s{sWG}, 3\ns_add_u32 s{T0}, s{T0}, s{sWAVE}\ns_lshl_b32 s{T0}, s{T0}, 8\ns_add_u32 s{T0}, s{T0}, {TS:#x}\nv_lshlrev_b32 v2, 2, v0")
            a(f"buffer_store_dword v1, v2, s[{rWS}:{rWS+3}], s{T0} offen")
        a.label("L_END")
        a("s_endpgm")

    def slow(self):
        a = self.a
        S, V, M, AVS = S_, VS[0], 96, 98
        a.label("L_SLOW")
        a(f"""s_mov_b32 s{sSLOW}, 1
        v_and_b32 v{M}, 31, v0
        v_lshrrev_b32 v{AVS}, 5, v0
        v_mul_u32_u24 v{AVS}, 320, v{AVS}
        v_lshl_add_u32 v{AVS}, v{M}, 4, v{AVS}
        v_add_u32 v{AVS}, 2560, v{AVS}
        v_mov_b32 v{M}, 0xff800000""")
        def scores():
            a(f"""buffer_load_dwordx2 {vr(KRM,2)}, v2, s[{rWS}:{rWS+3}], s{T6} offen offset:2048 sc1
            buffer_load_dwordx4 {vr(KM,4)}, v{L16}, s[{rWS}:{rWS+3}], s{T6} offen sc1
            buffer_load_dwordx4 {vr(KM+4,4)}, v{L16}, s[{rWS}:{rWS+3}], s{T6} offen offset:1024 sc1
            s_waitcnt vmcnt(0)""")
            self.m2b(S); a.nop(18); self.mqk(S, 0); self.mqk(S, 1); a.nop(12)
        a(f"s_mov_b32 s{T6}, s{sKVB}\ns_mov_b32 s{sCNT}, 0")
        a.label("L_SLOW1")
        scores()
        for e in range(16): a(f"v_max3_f32 v{M}, v{M}, v{S+2*e}, v{S+2*e+1}")
        a(f"s_add_u32 s{T6}, s{T6}, {KV_US}\ns_add_u32 s{sCNT}, s{sCNT}, 1\ns_cmp_lt_u32 s{sCNT}, 32\ns_cbranch_scc1 L_SLOW1")
        a(f"v_mov_b32 v{M+1}, v{M}\ns_nop 1\nv_permlane32_swap_b32 v{M}, v{M+1}\ns_nop 1\nv_max_f32 v{M}, v{M}, v{M+1}")
        for e in range(16): a(f"v_mov_b32 v{O_+e}, 0")
        a(f"s_mov_b32 s{T6}, s{sKVB}\ns_mov_b32 s{sCNT}, 0")
        a.label("L_SLOW2")
        a(f"s_mov_b64 exec, s[{sVMASK}:{sVMASK+1}]")
        for g in range(4): a(f"buffer_load_dwordx4 {vr(V+4*g,4)}, v{AVS}, s[{rWS}:{rWS+3}], s{T6} offen offset:{640*g} sc1")
        a("s_mov_b64 exec, -1")
        scores()
        for e in range(32): a(f"v_sub_f32 v{S+e}, v{S+e}, v{M}")
        for e in range(32): a(f"v_exp_f32 v{S+e}, v{S+e}")
        a.nop(2)
        for g in range(4): self.smf(V + 4*g, S + 8*g)
        a(f"s_add_u32 s{T6}, s{T6}, {KV_US}\ns_add_u32 s{sCNT}, s{sCNT}, 1\ns_cmp_lt_u32 s{sCNT}, 32\ns_cbranch_scc1 L_SLOW2")
        a.nop(12)
        a("s_branch L_NORM")

    def build(self):
        self.prologue(); self.dma_role(); self.attention(); self.finish(); self.side_role(); self.gemm_compute(); self.slow(); self.a.label('L_CODE_END')
        bad = lint(self.a.lines)
        head = f"""; Fused kernel: QKV projection, depthwise convolutions, attention, output projection and gated mix.
; @launch grid=(256,1,1) block=(512,1,1) lds={LDS_BYTES}
.amdgcn_target "amdgcn-amd-amdhsa--gfx950"
.text
.globl {NAME}
.p2align 8
.type {NAME},@function
{NAME}:
"""
        tail = f""".section .rodata,"a"
.p2align 6
.amdhsa_kernel {NAME}
  .amdhsa_next_free_vgpr 256
  .amdhsa_next_free_sgpr 102
  .amdhsa_accum_offset 256
  .amdhsa_group_segment_fixed_size 0
  .amdhsa_kernarg_size 104
  .amdhsa_user_sgpr_count 2
  .amdhsa_user_sgpr_kernarg_segment_ptr 1
  .amdhsa_system_sgpr_workgroup_id_x 1
  .amdhsa_float_denorm_mode_32 3
.end_amdhsa_kernel
"""
        return head + self.a.text() + tail, bad

if __name__ == "__main__":
    out = sys.argv[1] if len(sys.argv) > 1 else "gated_mix__mha_block__ssm_conv_h3__prompt.s"
    opt = dict(x[2:].split("=") for x in sys.argv if x.startswith("-D"))
    G = Gen(stamps="--stamps" in sys.argv, opt=opt)
    src, bad = G.build()
    if G.stamps: src = src.replace("; @launch", "; STAMPS " + " ".join(G.names) + "\n; @launch", 1)
    for b in bad: print("LINT:", b)
    open(out, "w").write(src)
    print("wrote", out, len(src), "bytes;", len(bad), "lint findings")
```

```python
import sys, math, struct
from asmlib import *

NAME = "gated_mix__mha_block__ssm_conv_h3__prompt_kernel"
def f2u(x): return struct.unpack("<I", struct.pack("<f", x))[0]

KV, QO, UR, YD, OM, ORM = 0, 0x500000, 0x780000, 0xA00000, 0xC80000, 0xE80000
F2, F4, F3, F5, GT, F1 = 0xF04000, 0xF08000, 0xF0C000, 0xF0D000, 0xF0E000, 0xFA0000
TS = 0xF10000
WS_SIZE = 0x1000000
KV_HS, KV_US = 163840, 5120
Q_HS, Q_US = 81920, 2560
NSLOT = 3
L_X, L_W = 0, 49152
L_Q, L_SIG = 81920, 162048
L_CONV, CONV_SZ, CS, U_OFF = 98304, 21248, 4160, 16640
L_WO, L_YD, L_EX = 0, 102400, 112640
LDS_BYTES = 163840
sWG, sWAVE = 2, 3
pX, pW, pWO, pWS, pK, pV, pSH, pH, pD, pGW, pOUT, pDBG = 4, 6, 8, 10, 12, 14, 16, 18, 20, 22, 24, 26
rWS, rA, rB, rC, rD = 28, 32, 36, 40, 44
sXCD, sI, sJT, sRT, sPRT, sCJ, sCH0, sNCH, sHEAD, sQB = 48, 49, 50, 51, 52, 53, 54, 55, 56, 57
sLW, sCH, sKH, sTB, sCNT, sSLOW = 58, 59, 60, 61, 62, 63
T0, T1, T2, T3, T4, T5, T6, T7 = 64, 65, 66, 67, 68, 69, 70, 71
sM = 72
sVMASK = 74
sTS = 76
sE = 78
sSC = 86
sKVB, sKVW, sOMS, sORS, sF4S, sCL = 87, 88, 89, 90, 91, 92
sNB, sBC, sU, sK = 93, 94, 95, 96
sM2 = 98
sKVG = 97
POLL_MAX = 30000
IDX, AKM, AKR, AV, L16, AQM, AQR, AF3, YDV = 224, 225, 226, 227, 228, 229, 230, 231, 232
WOV = 233
F3T = 238
ONES = 240
WM0, WM1, WR0, WR1, AOM, AOR, AOUT, AG, AEX, AX2, AYD, AF4 = 244, 245, 246, 247, 248, 249, 250, 251, 252, 253, 254, 255
O_, QM, QR, KRM, KM, S_ = 192, 32, 36, 38, 40, 64
VS = (48, 208)
XE = 8

class Gen:
    def __init__(self, stamps=False, opt=None):
        self.a = Asm(); self.stamps = stamps; self.names = []; self.opt = opt or {}
        self.nt = " nt" if int(self.opt.get("nt", 1)) else ""
        self.gnt = " nt" if int(self.opt.get("gnt", 0)) else ""
    def o(self, k, d): return type(d)(self.opt.get(k, d))
    def srd(self, r, p, size):
        self.a(f"s_mov_b32 s{r}, s{p}\ns_mov_b32 s{r+1}, s{p+1}\ns_mov_b32 s{r+2}, {size:#x}\ns_mov_b32 s{r+3}, 0x20000")
    def stamp(self, name):
        if not self.stamps: return
        if name not in self.names: self.names.append(name)
        k = self.names.index(name); assert k < 60
        self.a(f"s_memrealtime s[{sTS}:{sTS+1}]\ns_waitcnt lgkmcnt(0)\nv_writelane_b32 v1, s{sTS}, {k}")
        if name in ("att0", "attend"): self.a(f"s_memtime s[{sTS}:{sTS+1}]\ns_waitcnt lgkmcnt(0)\nv_writelane_b32 v1, s{sTS}, {60 if name == 'att0' else 61}")
        if name == "start": self.a(f"s_memtime s[{sTS}:{sTS+1}]\ns_waitcnt lgkmcnt(0)\nv_writelane_b32 v1, s{sTS}, 62")
        if name == "end": self.a(f"s_memtime s[{sTS}:{sTS+1}]\ns_waitcnt lgkmcnt(0)\nv_writelane_b32 v1, s{sTS}, 63")
        self.a.done["ds"] = self.a.n["ds"]
    def poll(self, loads, tmp, cmp=None):
        a = self.a
        L, D = a.newlabel("POLL"), a.newlabel("POLLD")
        a(f"s_mov_b32 s{sCNT}, 0")
        a.label(L)
        k = 0
        for (va, r, imm, wd) in loads:
            ins = {1: "buffer_load_dword", 2: "buffer_load_dwordx2", 4: "buffer_load_dwordx4"}[wd]
            a(f"{ins} {vr(tmp+k, wd)}, v{va}, s[{r}:{r+3}], 0 offen offset:{imm} sc1"); k += wd
        a("s_waitcnt vmcnt(0)")
        a.done["vm"] = a.n["vm"]
        self.poll_check(tmp, k, cmp)
        a(f"s_cbranch_scc1 {D}")
        a(f"s_add_u32 s{sCNT}, s{sCNT}, 1\ns_cmp_lt_u32 s{sCNT}, {POLL_MAX}\ns_cbranch_scc0 {D}\ns_sleep 1\ns_branch {L}")
        a.label(D)
    def mpoll(self, addrs, tmp, elastic=False):
        a = self.a
        L, D = a.newlabel("MP"), a.newlabel("MPD")
        M = [sM, sM2][:len(addrs)]
        a(f"s_mov_b32 s{sCNT}, 0")
        for m in M: a(f"s_mov_b64 s[{m}:{m+1}], -1")
        a.label(L)
        for k, (va, m) in enumerate(zip(addrs, M)):
            S = a.newlabel("MS")
            a(f"s_mov_b64 exec, s[{m}:{m+1}]\ns_cbranch_execz {S}\nbuffer_load_dword v{tmp+k}, v{va}, s[{rWS}:{rWS+3}], 0 offen sc1")
            a.label(S)
        a("s_mov_b64 exec, -1")
        if elastic: self.ewait()
        else: a("s_waitcnt vmcnt(0)")
        a.done["vm"] = a.n["vm"]
        for k, m in enumerate(M):
            a(f"v_cmp_eq_u32 vcc, 0, v{tmp+k}\ns_nop 1\ns_and_b64 s[{m}:{m+1}], s[{m}:{m+1}], vcc")
        if len(M) == 2: a(f"s_or_b64 vcc, s[{sM}:{sM+1}], s[{sM2}:{sM2+1}]")
        a(f"s_cbranch_scc0 {D}")
        a(f"s_add_u32 s{sCNT}, s{sCNT}, 1\ns_cmp_lt_u32 s{sCNT}, {POLL_MAX}\ns_cbranch_scc0 {D}\ns_sleep {self.o('psleep', 4)}\ns_branch {L}")
        a.label(D)
    def last_flag(self, off, sN, sAddr, vt):
        a = self.a
        L = a.newlabel("NL")
        a(f"""v_mov_b32 v{vt}, {L_SIG}
        v_mov_b32 v{vt+1}, 1
        s_mov_b64 exec, 1
        ds_add_rtn_u32 v{vt+1}, v{vt}, v{vt+1} offset:{off}
        s_waitcnt lgkmcnt(0)
        v_readfirstlane_b32 s{T0}, v{vt+1}
        s_mov_b64 exec, -1
        s_add_u32 s{T0}, s{T0}, 1
        s_cmp_lg_u32 s{T0}, {sN}
        s_cbranch_scc1 {L}""")
        self.flag_store(sAddr, vt, two=True)
        a.label(L)
    def poll_check(self, tmp, k, cmp=None):
        a = self.a
        for j in range(1, k, 2):
            if j + 1 < k: a(f"v_min3_u32 v{tmp}, v{tmp}, v{tmp+j}, v{tmp+j+1}")
            else: a(f"v_min_u32 v{tmp}, v{tmp}, v{tmp+j}")
        a(cmp or f"v_cmp_ne_u32 vcc, 0, v{tmp}")
        a("s_nop 1\ns_cmp_eq_u64 vcc, exec")
    def flag_store(self, s, vt, two=False):
        a = self.a
        a(f"v_lshl_add_u32 v{vt}, v0, 2, s{s}\nv_mov_b32 v{vt+1}, 1\ns_mov_b64 exec, {3 if two else 1}")
        t = a.vm(f"buffer_store_dword v{vt+1}, v{vt}, s[{rWS}:{rWS+3}], 0 offen sc1")
        a("s_mov_b64 exec, -1")
        return t

    def prologue(self):
        a = self.a
        a(f"s_cmp_ge_u32 s{sWG}, 256\ns_cbranch_scc1 L_END")
        if self.opt.get("diag") == "spin":
            a("s_mov_b32 s60, 2500\nv_mov_b32 v10, 0")
            a.label("L_DSPIN")
            for e in range(8): a(f"v_exp_f32 v{11+e}, v10")
            a("s_sub_u32 s60, s60, 1\ns_cmp_lg_u32 s60, 0\ns_cbranch_scc1 L_DSPIN")
        if self.opt.get("diag") == "chain":
            a("s_load_dwordx2 s[32:33], s[0:1], 24\ns_waitcnt lgkmcnt(0)\ns_mov_b32 s34, 2621440\ns_mov_b32 s35, 0x20000\ns_mul_i32 s60, s2, 256\nv_mov_b32 v10, s60")
            for e in range(32): a("buffer_load_dword v12, v10, s[32:35], 0 offen\ns_waitcnt vmcnt(0)\nv_and_b32 v12, 0, v12\nv_add_u32 v10, v10, v12\nv_add_u32 v10, 0x13000, v10")
        if self.opt.get("diag") == "bq":
            a("s_load_dwordx2 s[32:33], s[0:1], 24\ns_waitcnt lgkmcnt(0)\ns_mov_b32 s34, 2621440\ns_mov_b32 s35, 0x20000\nv_lshlrev_b32 v10, 4, v0\ns_mul_i32 s60, s2, 10240")
            a("buffer_load_dwordx4 v[12:15], v10, s[32:35], s60 offen\ns_add_u32 s60, s60, 2048\nbuffer_load_dwordx4 v[16:19], v10, s[32:35], s60 offen\ns_waitcnt vmcnt(0)")
        a(f"""s_load_dwordx4 s[4:7], s[0:1], 0
        s_load_dwordx16 s[12:27], s[0:1], 32
        s_load_dwordx2 s[10:11], s[0:1], 96
        s_load_dwordx2 s[8:9], s[0:1], 16
        v_lshrrev_b32 v1, 6, v0
        v_and_b32 v0, 63, v0
        s_and_b32 s{sXCD}, s{sWG}, 7
        v_readfirstlane_b32 s{sWAVE}, v1
        s_lshr_b32 s{sI}, s{sWG}, 3
        s_and_b32 s{T0}, s{sXCD}, 1
        s_mul_i32 s{T0}, s{T0}, 30
        s_add_u32 s{T0}, s{T0}, s{sI}
        s_lshr_b32 s{sJT}, s{T0}, 2
        s_and_b32 s{T0}, s{T0}, 3
        s_lshr_b32 s{T1}, s{sXCD}, 1
        s_lshl_b32 s{T1}, s{T1}, 2
        s_add_u32 s{sRT}, s{T0}, s{T1}
        s_lshr_b32 s{T0}, s{sWG}, 1
        s_mul_i32 s{T0}, s{T0}, 5
        s_and_b32 s{T1}, s{sWG}, 1
        s_mul_i32 s{T2}, s{T1}, 3
        s_add_u32 s{sCH0}, s{T0}, s{T2}
        s_sub_u32 s{sNCH}, 3, s{T1}
        s_sub_u32 s{sLW}, s{sWAVE}, 4
        s_cmp_lt_u32 s{sWAVE}, 4
        s_cbranch_scc1 L_COMPUTE
        s_cmp_gt_u32 s{sWAVE}, 4
        s_cbranch_scc1 L_SIDE""")
    def common_scalars(self):
        self.a(f"""s_cmp_ge_u32 s{sI}, 30
        s_cselect_b32 s{sNB}, 1, 11
        s_mov_b32 s{sBC}, 0
        s_lshr_b32 s{T0}, s{sI}, 3
        s_lshl_b32 s{T1}, s{sXCD}, 2
        s_add_u32 s{sHEAD}, s{T0}, s{T1}
        s_and_b32 s{sQB}, s{sI}, 7
        s_lshr_b32 s{sKH}, s{sWAVE}, 2
        s_and_b32 s{sTB}, s{sWAVE}, 3
        s_mov_b32 s{sSLOW}, 0
        s_mov_b32 s{sVMASK}, 0x000fffff
        s_mov_b32 s{sVMASK+1}, 0x000fffff""")
    def persistent(self, t=192):
        a = self.a
        a(f"""s_mov_b32 s{sM}, 0x11000000
        s_mov_b32 s{sM+1}, 0x11000000
        v_mov_b32 v{t}, 0x3f803f80
        v_cndmask_b32 v{ONES}, 0, v{t}, s[{sM}:{sM+1}]""")
        a(f"""v_mov_b32 v{IDX}, 0xdddddddd
        v_lshlrev_b32 v{AKM}, 4, v0
        v_lshlrev_b32 v{L16}, 4, v0
        v_lshlrev_b32 v{t}, 3, v0
        v_add_u32 v{AKR}, 2048, v{t}
        v_and_b32 v{t+1}, 31, v0
        v_lshrrev_b32 v{t+2}, 5, v0
        v_mul_u32_u24 v{t+2}, 320, v{t+2}
        v_lshl_add_u32 v{t+2}, v{t+1}, 4, v{t+2}
        v_add_u32 v{AV}, 2560, v{t+2}
        s_lshr_b32 s{T0}, s{sWAVE}, 1
        s_mul_i32 s{T0}, s{T0}, {Q_US}
        s_add_u32 s{T0}, s{T0}, {L_Q}
        s_and_b32 s{T1}, s{sWAVE}, 1
        s_lshl_b32 s{T2}, s{T1}, 10
        s_add_u32 s{T2}, s{T2}, s{T0}
        v_add_u32 v{AQM}, s{T2}, v{L16}
        s_lshl_b32 s{T1}, s{T1}, 8
        s_add_u32 s{T1}, s{T1}, s{T0}
        v_lshl_add_u32 v{AQR}, v{t+1}, 3, s{T1}
        s_mul_i32 s{sKVB}, s{sHEAD}, {KV_HS}
        s_mul_i32 s{sKVW}, s{sWAVE}, {KV_US}
        s_add_u32 s{sKVG}, s{sKVW}, s{sKVB}
        s_lshl_b32 s{T0}, s{sHEAD}, 16
        s_lshl_b32 s{T1}, s{sQB}, 3
        s_add_u32 s{T1}, s{T1}, s{sWAVE}
        s_lshl_b32 s{T2}, s{T1}, 10
        s_add_u32 s{T0}, s{T0}, s{T2}
        s_add_u32 s{sOMS}, s{T0}, {OM:#x}
        s_lshl_b32 s{T2}, s{sHEAD}, 14
        s_lshl_b32 s{T1}, s{T1}, 8
        s_add_u32 s{T1}, s{T1}, s{T2}
        s_add_u32 s{sORS}, s{T1}, {ORM:#x}
        s_lshl_b32 s{T0}, s{sQB}, 11
        s_lshl_b32 s{T1}, s{sHEAD}, 6
        s_add_u32 s{T0}, s{T0}, s{T1}
        s_add_u32 s{sF4S}, s{T0}, {F4:#x}""")
        a(f"""s_mul_i32 s{T0}, s{sQB}, 320
        s_add_u32 s{T0}, s{T0}, {F3:#x}
        v_lshl_add_u32 v{AF3}, v0, 3, s{T0}
        s_lshr_b32 s{T0}, s{sHEAD}, 1
        s_lshl_b32 s{T0}, s{T0}, 6
        s_add_u32 s{T0}, s{T0}, {F5:#x}
        v_mov_b32 v{t}, s{T0}
        s_mov_b32 s{sM}, 0
        s_mov_b32 s{sM+1}, 0xffffff00
        v_cndmask_b32 v{AF3}, v{AF3}, v{t}, s[{sM}:{sM+1}]""")
        a(f"s_mul_i32 s{T0}, s{sWAVE}, {13*64}\ns_mul_i32 s{T1}, s{sQB}, 160")
        for k in range(5):
            a(f"""s_add_u32 s{T2}, s{T0}, {64*k}
            v_add_u32 v{t}, s{T2}, v0
            v_mul_u32_u24 v{t+1}, 52429, v{t}
            v_lshrrev_b32 v{t+1}, 19, v{t+1}
            v_mul_u32_u24 v{t+1}, {1280-160}, v{t+1}
            v_lshl_add_u32 v{t+1}, v{t}, 4, v{t+1}
            v_add_u32 v{WOV+k}, s{T1}, v{t+1}""")
        a(f"""s_mul_i32 s{T0}, s{sQB}, 80
        s_mul_i32 s{T1}, s{sWAVE}, 10
        s_add_u32 s{T0}, s{T0}, s{T1}
        v_lshrrev_b32 v{t}, 3, v0
        v_add_u32 v{t}, s{T0}, v{t}
        v_lshlrev_b32 v{t}, 12, v{t}
        v_and_b32 v{t+1}, 7, v0
        v_lshl_add_u32 v{t}, v{t+1}, 4, v{t}
        s_lshl_b32 s{T0}, s{sHEAD}, 7
        s_add_u32 s{T0}, s{T0}, {YD:#x}
        v_add_u32 v{YDV}, s{T0}, v{t}""")
        q, r, c8, tt, b0 = t, t + 1, t + 2, t + 3, t + 4
        a(f"""v_lshrrev_b32 v{q}, 4, v0
        v_lshrrev_b32 v{r}, 2, v0
        v_and_b32 v{r}, 3, v{r}
        v_and_b32 v{c8}, 3, v0
        v_lshlrev_b32 v{c8}, 3, v{c8}
        v_and_b32 v{tt}, 15, v0
        v_and_b32 v{b0}, 1, v{q}
        s_mul_i32 s{T2}, s{sKH}, {51200 + 96}
        s_mul_i32 s{T3}, s{sKH}, {51200 - 64}
        v_lshrrev_b32 v{t+5}, 1, v{q}
        v_mul_u32_u24 v{t+5}, 20, v{t+5}
        v_lshl_add_u32 v{t+5}, v{b0}, 2, v{t+5}
        v_add_u32 v{t+5}, v{t+5}, v{r}
        v_mul_u32_u24 v{t+5}, 160, v{t+5}
        v_add_u32 v{t+5}, v{t+5}, v{c8}
        v_add_u32 v{WM0}, s{T2}, v{t+5}
        v_add_u32 v{WM1}, s{T3}, v{t+5}
        v_mul_u32_u24 v{t+5}, 20, v{q}
        v_add3_u32 v{t+5}, v{t+5}, v{r}, 16
        v_mul_u32_u24 v{t+5}, 160, v{t+5}
        v_add_u32 v{t+5}, v{t+5}, v{c8}
        v_add_u32 v{WR0}, s{T2}, v{t+5}
        v_add_u32 v{WR1}, s{T3}, v{t+5}
        s_lshl_b32 s{T2}, s{sKH}, 20
        s_lshl_b32 s{T3}, s{sHEAD}, 11
        s_add_u32 s{T2}, s{T2}, s{T3}
        s_lshr_b32 s{T3}, s{sTB}, 1
        s_lshl_b32 s{T4}, s{T3}, 10
        s_add_u32 s{T2}, s{T2}, s{T4}
        s_and_b32 s{T4}, s{sTB}, 1
        s_lshl_b32 s{T4}, s{T4}, 8
        s_add_u32 s{T2}, s{T2}, s{T4}
        s_add_u32 s{T2}, s{T2}, {OM:#x}
        v_lshrrev_b32 v{t+5}, 1, v{q}
        v_lshlrev_b32 v{t+5}, 16, v{t+5}
        v_lshl_add_u32 v{t+5}, v{b0}, 9, v{t+5}
        v_lshl_add_u32 v{t+5}, v{tt}, 4, v{t+5}
        v_add_u32 v{AOM}, s{T2}, v{t+5}
        s_lshl_b32 s{T2}, s{sKH}, 18
        s_lshl_b32 s{T4}, s{sHEAD}, 9
        s_add_u32 s{T2}, s{T2}, s{T4}
        s_lshl_b32 s{T4}, s{sTB}, 7
        s_add_u32 s{T2}, s{T2}, s{T4}
        s_add_u32 s{T2}, s{T2}, {ORM:#x}
        v_lshlrev_b32 v{t+5}, 14, v{q}
        v_lshl_add_u32 v{t+5}, v{tt}, 3, v{t+5}
        v_add_u32 v{AOR}, s{T2}, v{t+5}
        s_lshr_b32 s{T2}, s{sHEAD}, 2
        s_lshl_b32 s{T2}, s{T2}, 11
        s_add_u32 s{T2}, s{T2}, {F4:#x}
        v_and_b32 v{t+5}, 31, v0
        v_lshl_add_u32 v{AF4}, v{t+5}, 6, s{T2}
        s_lshl_b32 s{T0}, s{sHEAD}, 6
        s_lshl_b32 s{T1}, s{sTB}, 4
        s_add_u32 s{T0}, s{T0}, s{T1}
        v_add_u32 v{t+5}, s{T0}, v{tt}
        v_lshlrev_b32 v{AG}, 2, v{t+5}
        v_add_u32 v{AG}, {GT:#x}, v{AG}
        v_mul_u32_u24 v{t+5}, 1280, v{t+5}
        v_lshl_add_u32 v{t+5}, v{q}, 3, v{t+5}
        s_mul_i32 s{T0}, s{sQB}, 160
        s_mul_i32 s{T1}, s{sKH}, 96
        s_add_u32 s{T0}, s{T0}, s{T1}
        v_add_u32 v{AOUT}, s{T0}, v{t+5}
        s_lshl_b32 s{T0}, s{sWAVE}, 12
        s_add_u32 s{T0}, s{T0}, {L_EX}
        v_add_u32 v{AEX}, s{T0}, v{L16}
        s_xor_b32 s{T0}, s{sWAVE}, 4
        s_lshl_b32 s{T0}, s{T0}, 12
        s_lshl_b32 s{T1}, s{sKH}, 10
        s_add_u32 s{T1}, s{T1}, s{T0}
        s_add_u32 s{T1}, s{T1}, {L_EX}
        v_add_u32 v{AX2}, s{T1}, v{L16}
        v_lshl_add_u32 v{AYD}, v{q}, 2, v{r}
        v_lshl_add_u32 v{AYD}, v{AYD}, 7, v{c8}
        s_mul_i32 s{T0}, s{sKH}, {48*128}
        s_lshl_b32 s{T1}, s{sTB}, 5
        s_add_u32 s{T0}, s{T0}, s{T1}
        s_add_u32 s{T0}, s{T0}, {L_YD}
        v_add_u32 v{AYD}, s{T0}, v{AYD}""")
    def att_init_list(self):
        if self.o("ones", 2) == 12:
            return [f"v_mov_b32 v{O_+e}, 0" for e in range(16)] + [f"v_mov_b32 v{st+e}, 0x3f803f80" for st in VS for e in range(16)]
        return [f"v_mov_b32 v{O_+e}, 0" for e in range(16)] + [f"v_mov_b32 v{st+e}, v{ONES}" for st in VS for e in range(16)]

    def flag_reset(self):
        a = self.a
        L = a.newlabel("NOZ")
        a(f"s_cmp_lg_u32 s{sWAVE}, 0\ns_cbranch_scc1 {L}")
        a(f"""s_lshl_b32 s{T0}, s{sWG}, 6
        s_add_u32 s{T0}, s{T0}, {F1:#x}
        v_mov_b32 v12, s{T0}
        v_and_b32 v10, 3, v0
        v_lshlrev_b32 v11, 2, v10
        v_add_u32 v13, s{sCL}, v11
        s_mov_b32 s{sM}, 0xf
        s_mov_b32 s{sM+1}, 0
        v_cndmask_b32 v12, v12, v13, s[{sM}:{sM+1}]
        s_lshl_b32 s{T0}, s{sCH0}, 2
        s_add_u32 s{T0}, s{T0}, {F3:#x}
        v_add_u32 v13, s{T0}, v11
        s_mov_b32 s{sM}, 0x30
        s_cmp_eq_u32 s{sNCH}, 3
        s_cselect_b32 s{sM}, 0x70, s{sM}
        v_cndmask_b32 v12, v12, v13, s[{sM}:{sM+1}]
        s_lshl_b32 s{T0}, s{sQB}, 11
        s_lshl_b32 s{T1}, s{sHEAD}, 6
        s_add_u32 s{T0}, s{T0}, s{T1}
        s_add_u32 s{T0}, s{T0}, {F4:#x}
        v_mov_b32 v13, s{T0}
        s_mov_b32 s{sM}, 0x100
        v_cndmask_b32 v12, v12, v13, s[{sM}:{sM+1}]
        v_mov_b32 v13, 0
        s_mov_b32 exec_lo, 0x1ff
        s_mov_b32 exec_hi, 0
        buffer_store_dword v13, v12, s[{rWS}:{rWS+3}], 0 offen sc1
        s_mov_b64 exec, 1""")
        self.srd(rA, pDBG, 256)
        a(f"""s_and_b32 s{T0}, s{sWG}, 1
        s_lshl_b32 s{T0}, s{T0}, 7
        v_mov_b32 v12, s{T0}
        v_mov_b32 v13, 1
        s_waitcnt vmcnt(0)
        buffer_atomic_add v13, v12, s[{rA}:{rA+3}], 0 offen sc1
        s_mov_b64 exec, -1""")
        a.label(L)

    XA, WA, XA2, WA2, EA = 2, 6, 128, 132, 136
    def gemm_compute(self):
        a = self.a
        XA, WA = self.XA, self.WA
        a.label("L_COMPUTE")
        if self.o("cpf", 1):
            L = a.newlabel("NOPF")
            a(f"""s_cmp_lg_u32 s{sWAVE}, 1
            s_cbranch_scc1 {L}
            s_getpc_b64 s[{T2}:{T3}]
            L_PC:
            s_sub_u32 s{T2}, s{T2}, L_PC-{NAME}
            s_subb_u32 s{T3}, s{T3}, 0
            s_and_b32 s{T0}, s{sI}, 7
            s_lshl_b32 s{T0}, s{T0}, 13
            v_lshl_add_u32 v10, v0, 7, s{T0}
            v_min_u32 v10, L_CODE_END-{NAME}-4, v10
            global_load_dword v31, v10, s[{T2}:{T3}]""")
            a.label(L)
        self.common_scalars()
        a(f"""s_lshl_b32 s{T0}, s{sJT}, 10
        s_lshl_b32 s{T1}, s{sRT}, 6
        s_add_u32 s{T0}, s{T0}, s{T1}
        s_add_u32 s{sCL}, s{T0}, {F2:#x}
        s_lshl_b32 s{T0}, s{sXCD}, 1
        s_add_u32 s{T0}, s{T0}, s{sI}
        s_sub_u32 s{T7}, s{T0}, 30
        s_lshl_b32 s{T0}, s{T7}, 6
        s_add_u32 s{T0}, s{T0}, {F5:#x}
        s_cmp_ge_u32 s{sI}, 30
        s_cselect_b32 s{sCL}, s{T0}, s{sCL}
        s_waitcnt lgkmcnt(0)""")
        self.srd(rWS, pWS, WS_SIZE)
        if self.stamps: a("v_mov_b32 v1, 0")
        self.stamp("start")
        self.flag_reset()
        self.persistent()
        for l in self.att_init_list():
            if int(l.split()[1][1:-1]) >= 192: a(l)
        a(f"s_cmp_eq_u32 s{sWAVE}, 0\ns_cbranch_scc1 L_C_NW\ns_waitcnt vmcnt(0)")
        a.label("L_C_NW")
        a(f"s_cmp_ge_u32 s{sI}, 30\ns_cbranch_scc1 L_C_NOTILE")
        a(f"""s_and_b32 s{T0}, s{sWAVE}, 1
        s_lshl_b32 s{T0}, s{T0}, 13
        v_and_b32 v8, 31, v0
        v_lshrrev_b32 v9, 5, v0
        v_lshrrev_b32 v10, 1, v8
        v_and_b32 v10, 7, v10
        v_xor_b32 v10, v10, v9
        v_lshlrev_b32 v8, 7, v8
        v_add_u32 v8, s{T0}, v8""")
        for ks in range(4):
            a(f"v_xor_b32 v11, {2*ks}, v10\nv_lshl_add_u32 v{XA+ks}, v11, 4, v8")
        a(f"""v_lshrrev_b32 v8, 2, v0
        v_and_b32 v8, 3, v8
        v_lshrrev_b32 v9, 5, v0
        v_lshl_add_u32 v9, v9, 3, v8
        v_lshlrev_b32 v9, 8, v9
        v_lshrrev_b32 v10, 4, v0
        v_and_b32 v10, 1, v10
        v_lshlrev_b32 v10, 1, v10
        v_lshrrev_b32 v11, 1, v0
        v_and_b32 v11, 1, v11
        v_or_b32 v10, v10, v11
        v_and_b32 v11, 1, v0
        v_lshlrev_b32 v11, 3, v11
        v_add_u32 v9, v9, v11
        v_add_u32 v9, {L_W}, v9
        s_and_b32 s{T0}, s{sWAVE}, 2""")
        for i in range(2):
            a(f"""s_add_u32 s{T1}, s{T0}, {i}
            v_xor_b32 v11, s{T1}, v8
            v_lshl_add_u32 v11, v11, 2, v10
            v_lshl_add_u32 v{WA+i}, v11, 4, v9""")
        def lowinit():
            for l in self.att_init_list():
                if int(l.split()[1][1:-1]) < 192: a(l)
        a(f"s_cmp_ge_u32 s{sJT}, 10\ns_cbranch_scc1 L_C_VTILE")
        self.epi_qk_setup()
        self.gemm_loop(False, self.gemm_epi_qk, lowinit)
        a("s_branch L_C_FLAG")
        a.label("L_C_NOTILE")
        self.gate()
        lowinit()
        a("s_branch L_C_FLAG")
        a.label("L_C_VTILE")
        self.epi_v_setup()
        self.gemm_loop(True, self.gemm_epi_v, lowinit)
        a.label("L_C_FLAG")
        a.reset_counters()
        self.stamp("c.epi")
        L = a.newlabel("KVW")
        a(f"s_cmp_eq_u32 s{sWAVE}, 3\ns_cbranch_scc1 {L}")
        a("s_waitcnt vmcnt(0)")
        self.last_flag(12, 4, sCL, 2)
        self.stamp("c.F2set")
        a("s_branch L_ATT")
        a.label(L)
        self.kv_fetch_setup()
        a(f"buffer_load_dword v29, v28, s[{rC}:{rC+3}], 0 offen sc1")
        a("s_waitcnt vmcnt(0)")
        self.last_flag(12, 4, sCL, 2)
        self.kv_fetch()
        a("s_branch L_ATT")

    def gate(self):
        a = self.a
        a.reset_counters()
        X, W, Z = 32, 12, 2
        self.srd(rA, pX, 2048 * 1280); self.srd(rB, pGW, 1280)
        a(f"""s_lshl_b32 s{T0}, s{T7}, 7
        s_lshl_b32 s{T1}, s{sWAVE}, 5
        s_add_u32 s{T6}, s{T0}, s{T1}
        v_lshrrev_b32 v10, 4, v0
        v_add_u32 v11, s{T6}, v10
        v_mul_u32_u24 v11, 1280, v11
        v_and_b32 v2, 15, v0
        v_lshlrev_b32 v3, 4, v2
        v_add_u32 v11, v11, v3""")
        for j in range(5): tw = a.vm(f"buffer_load_dwordx4 {vr(W+4*j,4)}, v3, s[{rB}:{rB+3}], 0 offen offset:{256*j}")
        tx = []
        for g in range(8):
            a(f"s_mov_b32 s{T0}, {5120*g}")
            for j in range(5): t = a.vm(f"buffer_load_dwordx4 {vr(X+20*g+4*j,4)}, v11, s[{rA}:{rA+3}], s{T0} offen offset:{256*j}")
            tx.append(t)
        a(f"""v_lshl_add_u32 v10, v2, 2, v10
        v_add_u32 v10, s{T6}, v10
        v_lshlrev_b32 v10, 2, v10
        v_add_u32 v10, {GT:#x}, v10
        v_mov_b32 v11, v2
        s_barrier""")
        for g in range(8):
            a.wait(tw, tx[g])
            for e in range(20):
                a(f"v_dot2_f32_bf16 v{Z+g}, v{X+20*g+e}, v{W+e}, {'0' if e == 0 else f'v{Z+g}'}")
        a.nop(3)
        for sh in (8, 4, 2, 1):
            for g in range(8): a(f"v_add_f32_dpp v{Z+g}, v{Z+g}, v{Z+g} row_ror:{sh} row_mask:0xf bank_mask:0xf")
        for g in range(1, 8):
            a(f"v_cmp_eq_u32 vcc, {g}, v11\ns_nop 1\nv_cndmask_b32 v{Z}, v{Z}, v{Z+g}, vcc")
        a(f"""v_mul_f32 v{Z}, {f2u(-math.log2(math.e)):#x}, v{Z}
        v_exp_f32 v{Z}, v{Z}
        s_mov_b32 exec_lo, 0x00ff00ff
        v_add_f32 v{Z}, 1.0, v{Z}
        v_rcp_f32 v{Z}, v{Z}
        s_mov_b32 exec_hi, 0x00ff00ff
        buffer_store_dword v{Z}, v10, s[{rWS}:{rWS+3}], 0 offen sc1
        s_mov_b64 exec, -1""")

    def gemm_loop(self, vt, epi, fill):
        a = self.a
        a.reset_counters()
        FR, ACC = 32, 64
        def reads(s, ks):
            st = FR + 16 * (ks & 1); sl = s % NSLOT
            xa, wa, sl = (self.XA, self.WA, sl * 16384) if sl < 4 else (self.XA2, self.WA2, 0)
            rx = lambda j: (lambda: a.ds(f"ds_read_b128 {vr(st+4*j,4)}, v{xa+ks} offset:{sl + 4096*j}"))
            rw = lambda i, q: (lambda: a.ds(f"ds_read_b64_tr_b16 {vr(st+8+4*i+2*q,2)}, v{wa+i} offset:{sl + (16*ks+4*q)*256}"))
            if vt: return [("X0", rx(0)), ("W0", rw(0,0)), ("W0", rw(0,1)), ("W1", rw(1,0)), ("W1", rw(1,1)), ("X1", rx(1))]
            return [("W0", rw(0,0)), ("W0", rw(0,1)), ("X0", rx(0)), ("X1", rx(1)), ("W1", rw(1,0)), ("W1", rw(1,1))]
        def group(ks, toks, nxt, first):
            st = FR + 16 * (ks & 1); out = {}
            sched = [3, 3, 0, 0]; k = 0
            for m, (i, j) in enumerate(((0,0),(0,1),(1,0),(1,1))):
                if vt: A, B, na, nb = st + 4*i, st + 8 + 4*j, f"X{i}", f"W{j}"
                else:  A, B, na, nb = st + 8 + 4*i, st + 4*j, f"W{i}", f"X{j}"
                a.wait(toks[na], toks[nb])
                d = ACC + 16 * (2*i + j)
                a(f"v_mfma_f32_32x32x16_bf16 {vr(d,16)}, {vr(A,4)}, {vr(B,4)}, {'0' if first else vr(d,16)}")
                for _ in range(sched[m]):
                    if k < len(nxt): out[nxt[k][0]] = nxt[k][1](); k += 1
            return out
        a("s_barrier")
        toks = {}
        for n, f in reads(0, 0): toks[n] = f()
        for s in range(9):
            for ks in range(4):
                if ks < 3:
                    toks = group(ks, toks, reads(s, ks + 1), s == 0 and ks == 0)
                else:
                    a.wait_all(vm=False); a("s_barrier")
                    if s < 8: toks = group(ks, toks, reads(s + 1, 0), False)
        sets = (FR, 152, 168, 8)
        T = {}
        def rd(ks, nm):
            st = sets[ks]; sl = (9 % NSLOT) * 16384; k = int(nm[1])
            if nm[0] == "X": T[ks, nm] = a.ds(f"ds_read_b128 {vr(st+4*k,4)}, v{self.XA+ks} offset:{sl + 4096*k}")
            else:
                for q in range(2): T[ks, nm] = a.ds(f"ds_read_b64_tr_b16 {vr(st+8+4*k+2*q,2)}, v{self.WA+k} offset:{sl + (16*ks+4*q)*256}")
        na, nb = ("X", "W") if vt else ("W", "X")
        first = [(lambda ks=ks, nm=nm: rd(ks, nm)) for ks in range(4) for nm in (na + "0", nb + "0")]
        later = [(lambda ks=ks: rd(ks, nb + "1")) for ks in range(4)] + [(lambda ks=ks: rd(ks, na + "1")) for ks in range(4)]
        group(3, toks, [(f"f{i}", f) for i, f in enumerate(first[:6])], False)
        for f in first[6:]: f()
        off = lambda nm: 4 * int(nm[1]) + (0 if nm[0] == "X" else 8)
        pend = []
        for bi, (i, j) in enumerate(((0,0),(0,1),(1,0),(1,1))):
            d = ACC + 16 * (2*i + j)
            for ks in range(4):
                a.wait(T[ks, f"{na}{i}"], T[ks, f"{nb}{j}"])
                a(f"v_mfma_f32_32x32x16_bf16 {vr(d,16)}, {vr(sets[ks]+off(f'{na}{i}'),4)}, {vr(sets[ks]+off(f'{nb}{j}'),4)}, {vr(d,16)}")
                if bi < 2 and later: later.pop(0)()
                if bi == 2 and ks == 3: a.wait_all(vm=False); a("s_barrier")
                if bi >= 2:
                    n = -(-len(pend) // (4 - ks + (4 if bi == 2 else 0)))
                    for _ in range(min(n, 9)): pend.pop(0)()
            if bi == 1: pend += epi(0, 0)
            if bi == 1: pend += epi(0, 1)
            if bi == 2: last = epi(1, 0)
        for f in pend: f()
        for f in last: f()
        for f in epi(1, 1): f()
        fill()

    def epi_qk_setup(self):
        a = self.a
        sBASE, sHS, sPQ = T0, T1, T3
        a(f"""s_mov_b32 s{sHS}, {Q_HS}
        s_mov_b32 s{T4}, {Q_US}
        s_cmp_ge_u32 s{sJT}, 5
        s_cselect_b32 s{sHS}, {KV_HS}, s{sHS}
        s_cselect_b32 s{T4}, {KV_US}, s{T4}
        s_cselect_b32 s{sBASE}, {KV}, {QO:#x}
        s_cselect_b32 s{T5}, 5, 0
        s_cselect_b64 s[{sM}:{sM+1}], -1, 0
        s_cselect_b32 s{sSC}, 1.0, {f2u(math.log2(math.e) / math.sqrt(20.0)):#x}
        s_sub_u32 s{T5}, s{sJT}, s{T5}
        s_lshl_b32 s{sPQ}, s{T5}, 4
        s_and_b32 s{T5}, s{sWAVE}, 2
        s_lshl_b32 s{T5}, s{T5}, 2
        s_add_u32 s{sPQ}, s{sPQ}, s{T5}
        s_lshl_b32 s{T5}, s{sRT}, 1
        s_and_b32 s{T6}, s{sWAVE}, 1
        s_add_u32 s{T5}, s{T5}, s{T6}
        s_mul_i32 s{T5}, s{T5}, s{T4}
        s_add_u32 s{sBASE}, s{sBASE}, s{T5}
        v_and_b32 v8, 31, v0
        v_and_b32 v9, 0x13, v0
        v_and_b32 v10, 4, v0
        v_lshl_or_b32 v9, v10, 1, v9
        v_and_b32 v10, 8, v0
        v_lshrrev_b32 v10, 1, v10
        v_or_b32 v9, v9, v10
        v_cndmask_b32 v8, v8, v9, s[{sM}:{sM+1}]
        v_lshrrev_b32 v9, 5, v0
        v_lshlrev_b32 v10, 3, v9
        v_lshl_add_u32 v12, v8, 4, v10
        v_add_u32 v13, 1024, v12
        v_mul_lo_u32 v10, v9, s{sHS}
        v_lshl_add_u32 v14, v8, 3, v10
        v_add_u32 v14, 1024, v14
        v_add_u32 v15, 256, v14""")
        for p in range(8):
            a(f"""s_add_u32 s{T4}, s{sPQ}, {p}
            s_mul_i32 s{T5}, s{T4}, 205
            s_lshr_b32 s{T5}, s{T5}, 10
            s_mul_i32 s{T6}, s{T5}, 5
            s_sub_u32 s{T4}, s{T4}, s{T6}
            s_lshl_b32 s{T5}, s{T5}, 1
            s_mul_i32 s{T5}, s{T5}, s{sHS}
            s_add_u32 s{T5}, s{T5}, s{sBASE}
            s_lshl_b32 s{T6}, s{T4}, 9
            s_add_u32 s{T5}, s{T5}, s{T6}
            s_sub_u32 s{T6}, s{sHS}, 1536
            s_cmp_ge_u32 s{T4}, 3
            s_cselect_b32 s{T6}, s{T6}, 0
            s_add_u32 s{sE+p}, s{T5}, s{T6}
            s_cmp_eq_u32 s{T4}, 2
            s_cselect_b64 s[{sM}:{sM+1}], -1, 0""")
            for j in range(2): a(f"v_cndmask_b32 v{self.EA+2*p+j}, v{12+j}, v{14+j}, s[{sM}:{sM+1}]")
    def gemm_epi_qk(self, i, j):
        a = self.a; L = []
        for g in range(4):
            d = 64 + 16 * (2*i + j) + 4*g
            for e in range(4): L.append(lambda d=d, e=e: a(f"v_mul_f32 v{d+e}, s{sSC}, v{d+e}"))
            L.append(lambda d=d: a(f"v_cvt_pk_bf16_f32 v{d}, v{d}, v{d+1}"))
            L.append(lambda d=d: a(f"v_cvt_pk_bf16_f32 v{d+1}, v{d+2}, v{d+3}"))
            L.append(lambda d=d, g=g: a.vm(f"buffer_store_dwordx2 {vr(d,2)}, v{self.EA+2*(4*i+g)+j}, s[{rWS}:{rWS+3}], s{sE+4*i+g} offen sc1"))
        return L
    def epi_v_setup(self):
        a = self.a
        a(f"""s_sub_u32 s{T0}, s{sJT}, 10
        s_lshl_b32 s{T0}, s{T0}, 7
        s_and_b32 s{T1}, s{sWAVE}, 2
        s_lshl_b32 s{T1}, s{T1}, 5
        s_add_u32 s{T0}, s{T0}, s{T1}
        s_lshl_b32 s{T1}, s{sRT}, 1
        s_and_b32 s{T2}, s{sWAVE}, 1
        s_add_u32 s{T1}, s{T1}, s{T2}
        s_mul_i32 s{T1}, s{T1}, {KV_US}
        s_add_u32 s{sE}, s{T1}, {KV + 2560}
        s_mov_b32 s{T2}, {KV_HS - 320}
        v_and_b32 v8, 31, v0
        v_lshrrev_b32 v9, 5, v0
        v_mul_u32_u24 v9, 320, v9""")
        for j in range(2):
            a(f"""v_add_u32 v10, s{T0}, v8
            v_add_u32 v10, {32*j}, v10
            v_mul_u32_u24 v11, 3277, v10
            v_lshrrev_b32 v11, 16, v11
            v_mul_lo_u32 v11, v11, s{T2}
            v_lshl_add_u32 v10, v10, 4, v9
            v_add_u32 v{self.EA+j}, v10, v11""")
    def gemm_epi_v(self, i, j):
        a = self.a; L = []
        for s in range(2):
            d = 64 + 16 * (2*i + j) + 8*s
            for e in range(4): L.append(lambda d=d, e=e: a(f"v_cvt_pk_bf16_f32 v{d+e}, v{d+2*e}, v{d+2*e+1}"))
            L.append(lambda d=d, s=s: a.vm(f"buffer_store_dwordx4 {vr(d,4)}, v{self.EA+j}, s[{rWS}:{rWS+3}], s{sE} offen offset:{(2*i+s)*640} sc1"))
        return L

    XS, WS_, PA, PB, PW, PS, HA, HL = 2, 6, 10, 11, 12, 13, 14, 15
    KR_, VV_, SW_, HD_, DV_, PO_ = 16, 176, 116, 132, 156, 160
    def dma_setup(self):
        a = self.a
        a(f"""v_lshrrev_b32 v16, 3, v0
        v_and_b32 v17, 7, v0
        v_lshrrev_b32 v18, 1, v16
        s_lshl_b32 s{T0}, s{sRT}, 7
        v_add_u32 v16, s{T0}, v16
        v_mul_u32_u24 v16, 1280, v16""")
        for n in range(4):
            a(f"""v_xor_b32 v19, {(4*n) & 7}, v18
            v_xor_b32 v19, v19, v17
            v_lshl_add_u32 v19, v19, 4, v16
            v_add_u32 v{self.XS+n}, {n*(8*1280-1024)}, v19""")
        a(f"""v_lshrrev_b32 v16, 4, v0
        v_and_b32 v17, 15, v0
        v_lshlrev_b32 v18, 2, v16
        v_xor_b32 v17, v17, v18
        v_mul_u32_u24 v16, 3840, v16
        v_lshl_add_u32 v16, v17, 4, v16
        s_lshl_b32 s{T0}, s{sJT}, 8
        v_add_u32 v{self.WS_}, s{T0}, v16""")
        for n in range(1, 4): a(f"v_add_u32 v{self.WS_+n}, {n*(4*3840-1024)}, v{self.WS_}")
        P = self.o("rot", 1)
        a(f"s_add_u32 s{T0}, s{sJT}, s{sRT}")
        if P == 1: a(f"s_mov_b32 s{sK}, 0")
        elif P == 2: a(f"s_and_b32 s{T0}, s{T0}, 1\ns_mul_i32 s{sK}, s{T0}, 5")
        elif P == 3: a(f"s_mul_i32 s{T1}, s{T0}, 43\ns_lshr_b32 s{T1}, s{T1}, 7\ns_mul_i32 s{T1}, s{T1}, 3\ns_sub_u32 s{T0}, s{T0}, s{T1}\ns_mul_i32 s{T0}, s{T0}, 7\ns_lshr_b32 s{sK}, s{T0}, 1")
        elif P == 4: a(f"s_and_b32 s{T0}, s{T0}, 3\ns_mul_i32 s{T0}, s{T0}, 5\ns_lshr_b32 s{sK}, s{T0}, 1")
    def stage_dma(self, s):
        a = self.a
        sl = (s % NSLOT) * 16384
        a(f"s_lshl_b32 s{T0}, s{sK}, 7\ns_mul_i32 s{T1}, s{sK}, {64*3840}")
        def ld(txt):
            if a.n["vm"] - a.done["vm"] >= 62: a.wait(Tok("vm", a.done["vm"] + 8))
            return a.vm(txt)
        for h in range(4):
            a(f"s_mov_b32 m0, {L_X + sl + 4096*h}")
            a(f"s_add_u32 s{T2}, s{T0}, {32*1280*h}")
            for n in range(4): ld(f"buffer_load_dwordx4 v{self.XS+n}, s[{rA}:{rA+3}], s{T2} offen offset:{1024*n}{self.gnt} lds")
            a(f"s_mov_b32 m0, {L_W + sl + 4096*h}")
            a(f"s_add_u32 s{T2}, s{T1}, {16*3840*h}")
            for n in range(4): t = ld(f"buffer_load_dwordx4 v{self.WS_+n}, s[{rB}:{rB+3}], s{T2} offen offset:{1024*n}{self.gnt} lds")
        a(f"s_add_u32 s{sK}, s{sK}, 1\ns_cmp_eq_u32 s{sK}, 10\ns_cselect_b32 s{sK}, 0, s{sK}")
        return t
    def conv_scalars(self):
        a = self.a
        a(f"""s_min_u32 s{T0}, s{sLW}, 2
        s_add_u32 s{sCH}, s{sCH0}, s{T0}
        s_min_u32 s{sCH}, s{sCH}, 639
        s_mul_i32 s{T0}, s{T0}, {CONV_SZ}
        s_add_u32 s{T6}, s{T0}, {L_CONV}
        s_lshl_b32 s{T1}, s{sCH}, 1
        v_mov_b32 v{self.DV_}, s{T1}
        s_lshl_b32 s{T1}, s{sCH}, 12
        v_lshl_add_u32 v{self.HA}, v0, 4, s{T1}
        v_lshl_add_u32 v{self.HL}, v0, 4, s{T6}""")
        self.srd(rD, pH, 640 * 4096)
        self.h_loads(self.HD_)
        self.srd(rC, pD, 640 * 2)
        return a.vm(f"buffer_load_ushort v{self.DV_}, v{self.DV_}, s[{rC}:{rC+3}], 0 offen")
    def pre_setup(self):
        self.a(f"""s_and_b32 s{T0}, s{sU}, 63
        s_lshr_b32 s{T1}, s{sU}, 6
        s_lshl_b32 s{T5}, s{sWG}, 6
        s_add_u32 s{T5}, s{T5}, {F1:#x}
        s_lshl_b32 s{T0}, s{T0}, 5
        s_lshl_b32 s{T1}, s{T1}, 7
        v_lshrrev_b32 v16, 3, v0
        v_and_b32 v17, 7, v0
        v_lshl_add_u32 v16, v16, 2, s{T0}
        v_lshl_add_u32 v18, v17, 4, s{T1}
        v_mul_u32_u24 v19, 1280, v16
        v_add_u32 v{self.PB}, v19, v18
        v_subrev_u32 v{self.PA}, 3840, v{self.PB}
        v_lshlrev_b32 v{self.PW}, 2, v18
        v_lshlrev_b32 v18, 11, v18
        v_lshlrev_b32 v16, 1, v16
        v_sub_u32 v18, v18, v16
        v_add_u32 v{self.PS}, {UR + 4088:#x}, v18""")
    def pre_loads(self):
        a = self.a
        self.srd(rC, pK, 2048 * 1280); self.srd(rD, pV, 2048 * 1280); self.srd(rB, pSH, 640 * 8)
        for j in range(4): a(f"buffer_load_dwordx4 {vr(self.KR_+12+4*j,4)}, v{self.PB}, s[{rC}:{rC+3}], 0 offen offset:{1280*j}{self.nt}")
        for j in range(4): a(f"buffer_load_dwordx4 {vr(self.VV_+4*j,4)}, v{self.PB}, s[{rD}:{rD+3}], 0 offen offset:{1280*j}{self.nt}")
        for j in range(3): a(f"buffer_load_dwordx4 {vr(self.KR_+4*j,4)}, v{self.PA}, s[{rC}:{rC+3}], 0 offen offset:{1280*j}{self.nt}")
        for j in range(4): a(f"buffer_load_dwordx4 {vr(self.SW_+4*j,4)}, v{self.PW}, s[{rB}:{rB+3}], 0 offen offset:{16*j}")
    def h_loads(self, D):
        a = self.a
        for g in range(4):
            a.vm(f"buffer_load_dwordx4 {vr(D+6*g,4)}, v{self.HA}, s[{rD}:{rD+3}], 0 offen offset:{1024*g}{self.nt}")
            a.vm(f"buffer_load_dwordx2 {vr(D+6*g+4,2)}, v{self.HA}, s[{rD}:{rD+3}], 0 offen offset:{1024*g+16}{self.nt}")
    def bar(self):
        a = self.a; L = a.newlabel("NB")
        a(f"s_cmp_ge_u32 s{sBC}, s{sNB}\ns_cbranch_scc1 {L}\ns_barrier\ns_add_u32 s{sBC}, s{sBC}, 1")
        a.label(L)
    def bar_rest(self):
        a = self.a; L, D = a.newlabel("BR"), a.newlabel("BRD")
        a.label(L)
        a(f"s_cmp_ge_u32 s{sBC}, s{sNB}\ns_cbranch_scc1 {D}\ns_barrier\ns_add_u32 s{sBC}, s{sBC}, 1\ns_branch {L}")
        a.label(D)
    def ewait(self):
        a = self.a; L, D = a.newlabel("EW"), a.newlabel("EWD")
        a.label(L)
        a(f"""s_getreg_b32 s{T0}, hwreg(HW_REG_IB_STS)
        s_and_b32 s{T0}, s{T0}, 0x00c0000f
        s_cbranch_scc0 {D}
        s_cmp_ge_u32 s{sBC}, s{sNB}
        s_cbranch_scc1 {D}
        s_barrier
        s_add_u32 s{sBC}, s{sBC}, 1
        s_branch {L}""")
        a.label(D)
        a("s_waitcnt vmcnt(0)")
    def epoll(self, loads, tmp, cmp=None):
        a = self.a
        L, D = a.newlabel("EP"), a.newlabel("EPD")
        a(f"s_mov_b32 s{sCNT}, 0")
        a.label(L)
        k = 0
        for (va, r, imm, wd) in loads:
            ins = {1: "buffer_load_dword", 2: "buffer_load_dwordx2", 4: "buffer_load_dwordx4"}[wd]
            a(f"{ins} {vr(tmp+k, wd)}, v{va}, s[{r}:{r+3}], 0 offen offset:{imm} sc1"); k += wd
        self.ewait()
        self.poll_check(tmp, k, cmp)
        a(f"s_cbranch_scc1 {D}")
        a(f"s_add_u32 s{sCNT}, s{sCNT}, 1\ns_cmp_lt_u32 s{sCNT}, {POLL_MAX}\ns_cbranch_scc0 {D}\ns_sleep 1\ns_branch {L}")
        a.label(D)
    def pre_compute_list(self):
        L = []
        K, V, W, AC = 76, 90, 98, 106
        lo = lambda d, s: L.append(f"v_lshlrev_b32 v{d}, 16, v{s}")
        hi = lambda d, s: L.append(f"v_and_b32 v{d}, 0xffff0000, v{s}")
        for p in range(4):
            for j in range(7): lo(K+2*j, self.KR_+4*j+p); hi(K+2*j+1, self.KR_+4*j+p)
            for j in range(4): lo(V+2*j, self.VV_+4*j+p); hi(V+2*j+1, self.VV_+4*j+p)
            w = self.SW_ + 4*p
            lo(W, w); lo(W+1, w+2); hi(W+2, w); hi(W+3, w+2); lo(W+4, w+1); lo(W+5, w+3); hi(W+6, w+1); hi(W+7, w+3)
            for lag in (3, 2, 1, 0):
                for t in range(4):
                    kk = K + 2*(3 + t - lag)
                    if self.o("pk", 1):
                        if lag == 3: L.append(f"v_pk_mul_f32 {vr(AC+2*t,2)}, {vr(kk,2)}, {vr(W+2*lag,2)}")
                        else: L.append(f"v_pk_fma_f32 {vr(AC+2*t,2)}, {vr(kk,2)}, {vr(W+2*lag,2)}, {vr(AC+2*t,2)}")
                    else:
                        for h in range(2):
                            if lag == 3: L.append(f"v_mul_f32 v{AC+2*t+h}, v{kk+h}, v{W+2*lag+h}")
                            else: L.append(f"v_fmac_f32 v{AC+2*t+h}, v{kk+h}, v{W+2*lag+h}")
            for t in range(4):
                if self.o("pk", 1): L.append(f"v_pk_mul_f32 {vr(AC+2*t,2)}, {vr(AC+2*t,2)}, {vr(V+2*t,2)}")
                else:
                    for h in range(2): L.append(f"v_mul_f32 v{AC+2*t+h}, v{AC+2*t+h}, v{V+2*t+h}")
            for h in range(2):
                o = self.PO_ + 4*p + 2*h
                L.append(f"v_cvt_pk_bf16_f32 v{o}, v{AC+6+h}, v{AC+4+h}"); L.append(f"v_cvt_pk_bf16_f32 v{o+1}, v{AC+2+h}, v{AC+h}")
        return L
    def pre_stores(self):
        a = self.a
        for e in range(8):
            a(f"s_mov_b32 s{T0}, {4096*e}")
            a(f"buffer_store_dwordx2 {vr(self.PO_+2*e,2)}, v{self.PS}, s[{rWS}:{rWS+3}], s{T0} offen sc1")
    def h_group(self, D, imm, t0):
        a = self.a
        t1, t2 = t0 + 4, t0 + 8
        for e in range(4): a(f"v_alignbit_b32 v{t0+e}, v{D+e+1}, v{D+e}, 16")
        for e in range(4): a(f"v_mov_b32 v{t1+e}, v{D+e+1}")
        for e in range(4): a(f"v_alignbit_b32 v{t2+e}, v{D+e+2}, v{D+e+1}, 16")
        for r, src in enumerate((t0, t1, t2, D + 2)):
            a(f"ds_write_b128 v{self.HL}, {vr(src,4)} offset:{r*CS + imm}")
    def h_to_lds(self, HD, off):
        a = self.a
        a(f"v_readlane_b32 s{T1}, v{HD}, 0\nv_readlane_b32 s{T2}, v{HD+1}, 0")
        for g in range(4):
            self.h_group(HD + 6*g, off + 32 + 1024*g, 64 + 12*g)
        D = 112
        for e in range(6): a(f"v_mov_b32 v{D+e}, 0")
        a("s_mov_b32 exec_hi, 0")
        a(f"ds_write_b128 v{self.HL}, {vr(D,4)} offset:{off + U_OFF + 4096}")
        a(f"v_writelane_b32 v{D+4}, s{T1}, 1\nv_writelane_b32 v{D+5}, s{T2}, 1\ns_mov_b64 exec, 3")
        self.h_group(D, off, 120)
        a("s_mov_b64 exec, -1")

    def dma_role(self):
        a = self.a
        a.reset_counters()
        fine = self.o("fine", 0)
        self.dma_setup()
        a("s_waitcnt lgkmcnt(0)")
        self.srd(rA, pX, 2048 * 1280); self.srd(rB, pW, 640 * 3840)
        a(f"s_cmp_ge_u32 s{sI}, 30\ns_cbranch_scc1 L_D_SKIP")
        S = {0: self.stage_dma(0)}
        a.label("L_D_SKIP")
        if self.stamps: a("v_mov_b32 v1, 0")
        self.stamp("start")
        self.srd(rWS, pWS, WS_SIZE)
        self.common_scalars()
        self.persistent()
        a(f"s_cmp_ge_u32 s{sI}, 30\ns_cbranch_scc1 L_D_NT")
        if self.o("dprio", 0): a(f"s_setprio {self.o('dprio', 0)}")
        S[1] = self.stage_dma(1)
        for s in range(10):
            a.wait(S[s])
            if fine: self.stamp(f"l.w{s}")
            a("s_barrier")
            if fine or s in (0, 5, 9): self.stamp(f"l.b{s}")
            if s + 2 <= 9:
                S[s+2] = self.stage_dma(s + 2)
                if fine: self.stamp(f"l.i{s}")
            if s == 8: self.conv_scalars()
        a("s_barrier")
        a.label("L_CONV")
        self.conv()
    def side_role(self):
        a = self.a
        a.label("L_SIDE")
        a.reset_counters()
        a(f"""s_cmp_eq_u32 s{sWAVE}, 7
        s_cselect_b32 s{T0}, 1, 0
        s_cmp_eq_u32 s{sWAVE}, 6
        s_cselect_b32 s{T0}, 2, s{T0}
        s_add_u32 s{sU}, s{sCH0}, s{T0}
        s_cmp_ge_u32 s{T0}, s{sNCH}
        s_cbranch_scc1 L_IDLE""")
        self.pre_setup()
        a("s_waitcnt lgkmcnt(0)")
        self.pre_loads()
        if self.stamps: a("v_mov_b32 v1, 0")
        self.stamp("start")
        self.srd(rWS, pWS, WS_SIZE)
        self.common_scalars()
        self.persistent()
        a(f"""v_mov_b32 v44, {L_SIG}
        v_mov_b32 v46, 0
        v_mov_b32 v47, 0
        ds_write_b64 v44, v[46:47]
        ds_write_b64 v44, v[46:47] offset:8
        v_and_b32 v46, 1, v0
        v_lshlrev_b32 v46, 7, v46
        s_waitcnt lgkmcnt(0)""")
        self.bar()
        self.ewait()
        self.stamp("s.kv")
        if self.o("sprio", 0): a(f"s_setprio {self.o('sprio', 0)}")
        PC = self.pre_compute_list()
        nch = self.o("nchunk", 2)
        per = -(-len(PC) // nch)
        for c in range(nch):
            for l in PC[c*per:(c+1)*per]: a(l)
            if c < nch - 1 or self.o("barst", 1): self.bar()
        self.pre_stores()
        self.srd(rC, pDBG, 256)
        a(f"buffer_load_dword v47, v46, s[{rC}:{rC+3}], 0 offen sc1")
        self.stamp("s.st")
        self.ewait()
        self.last_flag(8, f"s{sNCH}", T5, 114)
        self.stamp("s.F1set")
        a(f"s_cmp_eq_u32 s{sWAVE}, 7\ns_cbranch_scc1 L_FETCH")
        LG, LD = a.newlabel("SG"), a.newlabel("SGD")
        a.label(LG)
        a(f"s_cmp_ge_u32 s{sBC}, 8\ns_cbranch_scc1 {LD}\ns_cmp_ge_u32 s{sBC}, s{sNB}\ns_cbranch_scc1 {LD}\ns_barrier\ns_add_u32 s{sBC}, s{sBC}, 1\ns_branch {LG}")
        a.label(LD)
        self.conv_scalars()
        self.bar_rest()
        a("s_branch L_CONV")
        a.label("L_D_NT")
        self.conv_scalars()
        a("s_barrier\ns_branch L_CONV")
        a.label("L_IDLE")
        a("s_waitcnt lgkmcnt(0)")
        if self.stamps: a("v_mov_b32 v1, 0")
        self.stamp("start")
        self.srd(rWS, pWS, WS_SIZE)
        self.common_scalars()
        self.persistent()
        for l in self.att_init_list(): a(l)
        self.bar_rest()
        a("s_branch L_ATT")
        self.fetcher()

    def fetcher(self):
        a = self.a
        a.label("L_FETCH")
        a.reset_counters()
        OK = a.newlabel("CNTOK")
        a("s_setprio 0")
        self.poll_check(47, 1, cmp="v_cmp_le_u32 vcc, 0x80, v47")
        a(f"s_cbranch_scc1 {OK}")
        self.epoll([(46, rC, 0, 1)], 47, cmp="v_cmp_le_u32 vcc, 0x80, v47")
        a.label(OK)
        a(f"""s_andn2_b32 s{T1}, s{sCH0}, 63
        s_add_u32 s{T2}, s{sCH0}, s{sNCH}
        s_sub_u32 s{T2}, s{T2}, 1
        s_or_b32 s{T2}, s{T2}, 63""")
        for r in (T1, T2):
            a(f"""s_mul_i32 s{T3}, s{r}, 13108
            s_lshr_b32 s{T3}, s{T3}, 16
            s_mul_i32 s{T4}, s{T3}, 5
            s_sub_u32 s{T4}, s{r}, s{T4}
            s_lshl_b32 s{T3}, s{T3}, 1
            s_cmp_ge_u32 s{T4}, 3
            s_addc_u32 s{r}, s{T3}, 0""")
        a(f"""v_add_u32 v9, s{T1}, v0
        v_min_u32 v9, s{T2}, v9
        v_lshlrev_b32 v9, 6, v9
        v_add_u32 v9, {F1:#x}, v9""")
        self.mpoll([9], 16, elastic=True)
        self.stamp("f.F1ok")
        a(f"s_lshl_b32 s{T2}, s{sCH0}, 12\ns_add_u32 s{T2}, s{T2}, {UR:#x}")
        for c in range(3):
            L = a.newlabel("NOU")
            if c == 2: a(f"s_cmp_lt_u32 s{sNCH}, 3\ns_cbranch_scc1 {L}")
            a(f"s_mov_b32 m0, {L_CONV + c*CONV_SZ + U_OFF}\ns_add_u32 s{T1}, s{T2}, {4096*c}")
            for j in range(4): a(f"buffer_load_dwordx4 v{L16}, s[{rWS}:{rWS+3}], s{T1} offen offset:{1024*j} sc1 lds")
            if c == 2: a.label(L)
        a("v_mov_b32 v45, 1")
        self.ewait()
        a("ds_write_b32 v44, v45")
        self.stamp("f.u")
        self.bar_rest()
        for l in self.att_init_list(): a(l)
        a("s_branch L_ATT")
    def kv_fetch(self):
        a = self.a
        a.reset_counters()
        OK = a.newlabel("CNTOK")
        self.poll_check(29, 1, cmp="v_cmp_le_u32 vcc, 0x80, v29")
        a(f"s_cbranch_scc1 {OK}")
        self.poll([(28, rC, 0, 1)], 29, cmp="v_cmp_le_u32 vcc, 0x80, v29")
        a.label(OK)
        self.mpoll([30, 31], 16)
        self.stamp("f.F2ok")
        a(f"""s_mul_i32 s{T0}, s{sHEAD}, {Q_HS}
        s_mul_i32 s{T1}, s{sQB}, {4*Q_US}
        s_add_u32 s{T0}, s{T0}, s{T1}
        s_add_u32 s{T0}, s{T0}, {QO:#x}""")
        def lin(sbase, lds0, n):
            for k in range(n):
                if k % 4 == 0: a(f"s_mov_b32 m0, {lds0 + 1024*k}\ns_add_u32 s{T1}, s{sbase}, {1024*k}")
                a.vm(f"buffer_load_dwordx4 v{L16}, s[{rWS}:{rWS+3}], s{T1} offen offset:{1024*(k%4)} sc1 lds")
        lin(T0, L_Q, 10)
        lin(sKVB, 0, 40)
        a(f"v_mov_b32 v16, {L_SIG}\nv_mov_b32 v17, 1")
        a.wait_all()
        a("ds_write_b32 v16, v17 offset:4")
        self.stamp("f.kv0")
    def kv_fetch_setup(self):
        a = self.a
        self.srd(rC, pDBG, 256)
        a(f"""s_mul_i32 s{T0}, s{sHEAD}, 20
        v_and_b32 v28, 15, v0
        v_lshrrev_b32 v30, 4, v0
        v_and_b32 v31, 1, v30
        v_mul_u32_u24 v31, 19, v31
        v_add_u32 v31, s{T0}, v31
        v_lshrrev_b32 v31, 7, v31
        v_lshrrev_b32 v30, 1, v30
        v_mul_u32_u24 v30, 5, v30
        v_add3_u32 v30, v30, v31, 5
        v_lshl_add_u32 v30, v30, 4, v28
        v_lshlrev_b32 v30, 6, v30
        v_add_u32 v30, {F2:#x}, v30
        v_lshl_add_u32 v31, v31, 4, s{sQB}
        v_add_u32 v31, s{sQB}, v31
        v_and_b32 v28, 1, v0
        v_add_u32 v31, v31, v28
        v_lshlrev_b32 v31, 6, v31
        v_add_u32 v31, {F2:#x}, v31
        v_lshlrev_b32 v28, 7, v28""")

    def sig_wait(self, off):
        a = self.a
        L, D = a.newlabel("SIG"), a.newlabel("SIGD")
        a(f"v_mov_b32 v14, {L_SIG}\ns_mov_b32 s{sCNT}, 0")
        a.label(L)
        a(f"""ds_read_b32 v15, v14 offset:{off}
        s_waitcnt lgkmcnt(0)
        v_readfirstlane_b32 s{T0}, v15
        s_add_u32 s{sCNT}, s{sCNT}, 1
        s_cmp_lg_u32 s{T0}, 0
        s_cbranch_scc1 {D}
        s_sleep 1
        s_cmp_lt_u32 s{sCNT}, {POLL_MAX*40}
        s_cbranch_scc1 {L}""")
        a.label(D)
    def conv(self):
        a = self.a
        a.reset_counters()
        ACC, FR = 16, 64
        HA, UB, UE, YS, DV = 2, 3, 4, 5, self.DV_
        a(f"s_waitcnt vmcnt(0)\ns_setprio {self.o('cprio', 3)}")
        self.h_to_lds(self.HD_, 0)
        a(f"""v_lshrrev_b32 v8, 4, v0
        s_lshl_b32 s{T0}, s{sCH}, 12
        v_lshrrev_b32 v9, 2, v0
        v_and_b32 v9, 3, v9
        v_mul_u32_u24 v9, {CS}, v9
        v_lshl_add_u32 v9, v8, 4, v9
        v_and_b32 v10, 3, v0
        v_lshl_add_u32 v9, v10, 3, v9
        v_add_u32 v{HA}, s{T6}, v9
        v_and_b32 v9, 15, v0
        v_lshlrev_b32 v9, 5, v9
        v_lshlrev_b32 v10, 4, v8
        v_sub_u32 v10, v10, v9
        v_add_u32 v10, s{T6}, v10
        v_add_u32 v{UB}, {U_OFF + 480}, v10
        v_lshl_add_u32 v9, v8, 3, v9
        v_sub_u32 v10, s{T6}, v9
        v_add_u32 v{UE}, {U_OFF + 504}, v10
        s_add_u32 s{T0}, s{T0}, {YD:#x}
        v_add_u32 v{YS}, s{T0}, v9
        v_lshlrev_b32 v7, 16, v{DV}""")
        self.stamp("v.h")
        self.sig_wait(0)
        a.reset_counters()
        def reads(rho):
            st = FR + 64 * (rho & 1)
            ra = lambda i, q: (lambda: a.ds(f"ds_read_b64_tr_b16 {vr(st+4*i+2*q,2)}, v{HA} offset:{64*(8*i+rho) + 8*q}"))
            rb = lambda d: (lambda: a.ds(f"ds_read_b128 {vr(st+32+4*d,4)}, v{UB} offset:{64*(56 - (8*d - rho))}"))
            L = [("A0", ra(0,0)), ("A0", ra(0,1))] + [(f"B{d}", rb(d)) for d in range(8)]
            for i in range(1, 8): L += [(f"A{i}", ra(i,0)), (f"A{i}", ra(i,1))]
            return L
        toks = {}
        for n, f in reads(0): toks[n] = f()
        self.stamp("v.u")
        init = self.att_init_list()
        for rho in range(8):
            st = FR + 64 * (rho & 1)
            nxt = reads(rho + 1) if rho < 7 else []
            out = {}; k = 0; m = 0
            for i in range(8):
                for c in range(i, 8):
                    a.wait(toks[f"A{i}"], toks[f"B{c-i}"])
                    d = ACC + 4 * c
                    a(f"v_mfma_f32_16x16x32_bf16 {vr(d,4)}, {vr(st+4*i,4)}, {vr(st+32+4*(c-i),4)}, {'0' if (rho == 0 and i == 0) else vr(d,4)}")
                    m += 1
                    if m >= 4 and k < len(nxt): out[nxt[k][0]] = nxt[k][1](); k += 1
                    elif m >= 28 and init: a(init.pop())
            assert k == len(nxt)
            toks = out
        assert not init
        self.stamp("v.mfma")
        tu = [a.ds(f"ds_read_b64 {vr(FR+2*c,2)}, v{UE} offset:{512*(7-c)}") for c in range(8)]
        for c in range(8):
            a.wait(tu[c])
            d, u, t = ACC + 4*c, FR + 2*c, FR + 32 + 8*(c & 3)
            a(f"""v_and_b32 v{t}, 0xffff0000, v{u+1}
            v_lshlrev_b32 v{t+1}, 16, v{u+1}
            v_and_b32 v{t+2}, 0xffff0000, v{u}
            v_lshlrev_b32 v{t+3}, 16, v{u}""")
            for e in range(4): a(f"v_fmac_f32 v{d+e}, v7, v{t+e}")
            a(f"v_cvt_pk_bf16_f32 v{t+4}, v{d}, v{d+1}\nv_cvt_pk_bf16_f32 v{t+5}, v{d+2}, v{d+3}")
            a.vm(f"buffer_store_dwordx2 {vr(t+4,2)}, v{YS}, s[{rWS}:{rWS+3}], 0 offen offset:{512*c} sc1")
        self.stamp("v.st")

    def m2b(self, S): self.a(f"v_mfma_f32_32x32x4_2b_bf16 {vr(S,32)}, {vr(KRM,2)}, {vr(QR,2)}, 0")
    def mqk(self, S, h): self.a(f"v_mfma_f32_32x32x16_bf16 {vr(S+16*h,16)}, {vr(KM+4*h,4)}, {vr(QM,4)}, {vr(S+16*h,16)}")
    def smf(self, V, P): self.a(f"v_smfmac_f32_32x32x32_bf16 {vr(O_,16)}, {vr(V,4)}, {vr(P,8)}, v{IDX}")
    def side_kv(self, add):
        a = self.a
        def mk(j):
            def f():
                if j == 0: a(f"s_add_u32 m0, s{sKVW}, {add*KV_US}\ns_add_u32 s{T5}, s{sKVG}, {add*KV_US}")
                if j == 4: a(f"s_add_u32 m0, m0, 4096\ns_add_u32 s{T5}, s{T5}, 4096")
                a.vm(f"buffer_load_dwordx4 v{L16}, s[{rWS}:{rWS+3}], s{T5} offen offset:{1024*(j%4)} sc1 lds")
            return f
        return [mk(j) for j in range(5)]
    def side_wo(self):
        a = self.a
        def mk(k):
            def f():
                L = a.newlabel("NOWO")
                if k == 0: a(f"s_mul_i32 s{T4}, s{sWAVE}, {13*1024}\ns_add_u32 m0, s{T4}, {L_WO}")
                else: a("s_add_u32 m0, m0, 1024")
                if k % 5 == 0: a(f"s_mov_b32 s{T5}, {40960*(k//5)}")
                elif k < 9: a("s_nop 0")
                if k >= 9: a(f"s_cmp_eq_u32 s{sWAVE}, 7\ns_cbranch_scc1 {L}")
                a.vm(f"buffer_load_dwordx4 v{WOV + k%5}, s[{rA}:{rA+3}], s{T5} offen lds")
                if k >= 9: a.label(L)
            return f
        return [mk(k) for k in range(13)]
    def side_yd(self):
        a = self.a
        def f0():
            OK = a.newlabel("F3OK")
            a.wait(self.tF3)
            self.poll_check(F3T, 2)
            a(f"s_cbranch_scc1 {OK}")
            snap = a.snapshot(); self.poll([(AF3, rWS, 0, 2)], F3T); a.restore(snap)
            a.label(OK)
            a(f"s_mul_i32 s{T5}, s{sWAVE}, 1280\ns_add_u32 m0, s{T5}, {L_YD}\ns_mov_b32 s{T5}, {8*4096 - 1024}")
            a.vm(f"buffer_load_dwordx4 v{YDV}, s[{rWS}:{rWS+3}], 0 offen sc1 lds")
            a("s_mov_b64 exec, 0xffff")
            a.vm(f"buffer_load_dwordx4 v{YDV}, s[{rWS}:{rWS+3}], s{T5} offen offset:1024 sc1 lds")
            a("s_mov_b64 exec, -1")
        return [f0]
    def side_x(self):
        a = self.a
        def mk(j):
            def f():
                if j == 0: self.srd(rA, pX, 2048 * 1280)
                a.vm(f"buffer_load_dwordx2 {vr(XE+2*j,2)}, v{AOUT}, s[{rA}:{rA+3}], 0 offen offset:{32*j}")
            return f
        def f3(): self.tF3 = a.vm(f"buffer_load_dwordx2 {vr(F3T,2)}, v{AF3}, s[{rWS}:{rWS+3}], 0 offen sc1")
        return [mk(j) for j in range(3)] + [f3]
    def attention(self):
        a = self.a
        a.label("L_ATT")
        a.reset_counters()
        self.sig_wait(4)
        self.stamp("att0")
        base = {"K": 0, "V": 0}
        def bump(kind, u):
            while u * KV_US - base[kind] > 11 * KV_US:
                base[kind] += 12 * KV_US
                for r in ((AKM, AKR) if kind == "K" else (AV,)): a(f"v_add_u32 v{r}, {12*KV_US}, v{r}")
            return u * KV_US - base[kind]
        def rKR(u): o = bump("K", u); return a.ds(f"ds_read_b64 {vr(KRM,2)}, v{AKR} offset:{o}")
        def rKM(u, h): o = bump("K", u); return a.ds(f"ds_read_b128 {vr(KM+4*h,4)}, v{AKM} offset:{o + 1024*h}")
        def rV(u):
            o = bump("V", u)
            a(f"s_mov_b64 exec, s[{sVMASK}:{sVMASK+1}]")
            for g in range(4): t = a.ds(f"ds_read_b128 {vr(VS[u&1]+4*g,4)}, v{AV} offset:{o + 640*g}")
            a("s_mov_b64 exec, -1")
            return t
        tq = [a.ds(f"ds_read_b64 {vr(QR,2)}, v{AQR} offset:2048")]
        tKR = rKR(0)
        tq.append(a.ds(f"ds_read_b128 {vr(QM,4)}, v{AQM}"))
        tK0 = rKM(0, 0); tK1 = rKM(0, 1); tV = {0: rV(0)}
        side = self.side_kv(8)
        a.wait(tq[0], tKR); self.m2b(S_); tKR = rKR(1)
        for _ in range(4): side.pop(0)()
        a.nop(11)
        a.wait(tq[1], tK0); self.mqk(S_, 0); tK0 = rKM(1, 0)
        a.wait(tK1); self.mqk(S_, 1); tK1 = rKM(1, 1)
        side.pop(0)()
        a.nop(6)
        zones = {0: self.o("z0", "3,5"), 6: self.o("z1", "3,5,7"), 14: self.o("z1", "3,5,7"), 22: self.o("z3", "4,7,9")}
        prio = {}
        if self.o("prio", 1):
            for u0, z in zones.items():
                zz = [int(x) for x in z.split(",")]
                prio[u0] = len(zz)
                for k, d in enumerate(zz): prio[u0 + d] = len(zz) - 1 - k
        for u in range(32):
            if u % 8 == 6 and u < 30:
                assert not side
                side = self.att_sync(u // 8)
            if u in prio: a(f"s_setprio {prio[u]}")
            X, Y = S_ + 32 * (u & 1), S_ + 32 * ((u + 1) & 1)
            Vc, Vp = VS[u & 1], VS[(u + 1) & 1]
            nx = u < 31
            for p in range(32):
                if p == 2:
                    if nx: a.wait(tKR, tV[u])
                    else: a.wait(tV[u])
                    if u > 0: self.smf(Vp + 12, Y + 24)
                    if nx: tV[u+1] = rV(u + 1)
                if p == 6 and nx:
                    self.m2b(Y)
                    if u < 30: tKR = rKR(u + 2)
                if p in (10, 20) and side: side.pop(0)()
                if p == 14: self.smf(Vc, X)
                if p == 18: self.smf(Vc + 4, X + 8)
                if p == 22 and nx:
                    a.wait(tK0, tK1); self.mqk(Y, 0)
                    if u < 30: tK0 = rKM(u + 2, 0)
                if p == 26: self.smf(Vc + 8, X + 16)
                if p == 30 and nx:
                    self.mqk(Y, 1)
                    if u < 30: tK1 = rKM(u + 2, 1)
                a(f"v_exp_f32 v{X+p}, v{X+p}")
        assert not side
        a.nop(2)
        self.smf(VS[1] + 12, S_ + 32 + 24)
        self.stamp("attend")
    def att_sync(self, k):
        a = self.a
        if k == 0:
            a.wait_all(vm=True, ds=False, force=True)
            L = a.newlabel("NOF3")
            a(f"s_cmp_ge_u32 s{sLW}, s{sNCH}\ns_cbranch_scc1 {L}")
            a(f"s_lshl_b32 s{T0}, s{sCH}, 2\ns_add_u32 s{T0}, s{T0}, {F3:#x}")
            self.flag_store(T0, 14)
            a.label(L)
            a("s_barrier")
            self.stamp("sync0")
            return self.side_kv(16) + self.side_kv(24)
        if k == 1:
            a.wait_all(vm=True, ds=False, force=True)
            a("s_barrier")
            self.stamp("sync1")
            return self.side_x()
        a("s_barrier")
        self.stamp("sync2")
        self.srd(rA, pWO, 640 * 1280)
        return self.side_yd() + self.side_wo()

    def finish(self):
        a = self.a
        O, TMP = O_, 16
        ACC, OF, WF, G = 224, 16, 56, 14
        a(f"""v_lshlrev_b32 v2, 3, v0
        s_mov_b32 s{T2}, {f2u(2.0**-60):#x}
        s_mov_b32 s{T3}, {f2u(2.0**60):#x}
        s_mov_b32 s{T4}, 0x7f7fffff
        s_setprio 0""")
        a.nop(7)
        a.label("L_NORM")
        a(f"v_rcp_f32 v{TMP+4}, v{O+12}")
        for e in range(4): a(f"v_add_f32 v{TMP+e}, abs(v{O+e}), abs(v{O+4+e})")
        for e in range(4): a(f"v_add_f32 v{TMP+e}, v{TMP+e}, abs(v{O+8+e})")
        a(f"""v_add_f32 v{TMP}, v{TMP}, v{TMP+1}
        v_add_f32 v{TMP+2}, v{TMP+2}, v{TMP+3}
        v_cmp_le_f32 vcc, s{T2}, v{O+12}
        v_cmp_ge_f32 s[{sM}:{sM+1}], s{T3}, v{O+12}
        v_add_f32 v{TMP}, v{TMP}, v{TMP+2}
        s_nop 0
        s_and_b64 s[{sM}:{sM+1}], s[{sM}:{sM+1}], vcc
        v_cmp_ge_f32 vcc, s{T4}, v{TMP}
        s_nop 1
        s_and_b64 s[{sM}:{sM+1}], s[{sM}:{sM+1}], vcc
        s_cmp_eq_u64 s[{sM}:{sM+1}], exec
        s_cbranch_scc1 L_NORM_OK
        s_cmp_eq_u32 s{sSLOW}, 0
        s_cbranch_scc1 L_SLOW""")
        a.label("L_NORM_OK")
        for e in range(8): a(f"v_mul_f32 v{O+e}, v{O+e}, v{TMP+4}")
        for e in range(4): a(f"v_cvt_pk_bf16_f32 v{TMP+8+e}, v{O+2*e}, v{O+2*e+1}")
        a(f"buffer_store_dwordx4 {vr(TMP+8,4)}, v{L16}, s[{rWS}:{rWS+3}], s{sOMS} offen sc1")
        for e in range(8, 12): a(f"v_mul_f32 v{O+e}, v{O+e}, v{TMP+4}")
        for e in range(4, 6): a(f"v_cvt_pk_bf16_f32 v{TMP+8+e}, v{O+2*e}, v{O+2*e+1}")
        a("s_mov_b32 exec_hi, 0")
        a(f"buffer_store_dwordx2 {vr(TMP+12,2)}, v2, s[{rWS}:{rWS+3}], s{sORS} offen sc1")
        a("s_mov_b32 exec_hi, -1")
        self.srd(rA, pOUT, 2048 * 1280)
        a("s_waitcnt vmcnt(0)\ns_barrier")
        a.reset_counters()
        L = a.newlabel("NOF4")
        a(f"s_cmp_lg_u32 s{sWAVE}, 0\ns_cbranch_scc1 {L}")
        self.flag_store(sF4S, 2)
        a.label(L)
        a.reset_counters()
        self.stamp("F4set")
        tg = a.vm(f"buffer_load_dword v{G}, v{AG}, s[{rWS}:{rWS+3}], 0 offen sc1")
        def wfrag(step, regstep):
            toks = []
            for b in range(5):
                for q in range(2):
                    if step < 8: ad, off = (WM0 if b < 2 else WM1), (40*step + 8*q)*160 + 32*b
                    else: ad, off = (WR0 if b < 2 else WR1), (160*(step-8) + 80*q)*160 + 32*b
                    t = a.ds(f"ds_read_b64_tr_b16 {vr(WF + 20*regstep + 4*b + 2*q, 2)}, v{ad} offset:{L_WO + off}")
                toks.append(t)
            return toks
        tw = {s: wfrag(s, s) for s in range(8)}
        YR, BB = 2, 16
        ty = [a.ds(f"ds_read_b64_tr_b16 {vr(YR+2*b,2)}, v{AYD} offset:{2048*b}") for b in range(3)]
        keep = [216, 217, 218, 219, 220, 221, 222, 223, 2, 3, 4, 5]
        for b in range(3):
            a.wait(ty[b])
            x, y = XE + 2*b, YR + 2*b
            a(f"""v_lshlrev_b32 v16, 16, v{x}
            v_and_b32 v17, 0xffff0000, v{x}
            v_lshlrev_b32 v18, 16, v{x+1}
            v_and_b32 v19, 0xffff0000, v{x+1}
            v_lshlrev_b32 v20, 16, v{y}
            v_and_b32 v21, 0xffff0000, v{y}
            v_lshlrev_b32 v22, 16, v{y+1}
            v_and_b32 v23, 0xffff0000, v{y+1}""")
            for e in range(4): a(f"v_mul_f32 v{keep[4*b+e]}, v{16+e}, v{20+e}")
        L = a.newlabel("NOP4")
        a(f"s_cmp_lg_u32 s{sWAVE}, 0\ns_cbranch_scc1 {L}")
        snap = a.snapshot(); self.mpoll([AF4], 15); a.restore(snap)
        a.label(L)
        a("s_barrier")
        self.stamp("F4ok")
        to = {}
        for s in range(8):
            a(f"s_mov_b32 s{T0}, {s*131072}")
            to[s] = a.vm(f"buffer_load_dwordx4 {vr(OF+4*s,4)}, v{AOM}, s[{rWS}:{rWS+3}], s{T0} offen sc1")
        for rs in range(2):
            for q in range(2):
                a(f"s_mov_b32 s{T0}, {(8*rs+4*q)*16384}")
                to[8+rs] = a.vm(f"buffer_load_dwordx2 {vr(OF+32+4*rs+2*q,2)}, v{AOR}, s[{rWS}:{rWS+3}], s{T0} offen sc1")
        for s in range(10):
            rs = s if s < 8 else s - 8
            a.wait(to[s])
            order = range(5) if s < 9 else (2, 3, 4, 0, 1)
            for b in order:
                a.wait(tw[s][b])
                d = ACC + 4*b
                a(f"v_mfma_f32_16x16x32_bf16 {vr(d,4)}, {vr(WF+20*rs+4*b,4)}, {vr(OF+4*s,4)}, {'0' if s == 0 else vr(d,4)}")
            if s < 2: tw[8+s] = wfrag(8 + s, s)
        self.stamp("mfma")
        a.nop(4)
        for b in (2, 3, 4): a.ds(f"ds_write_b128 v{AEX}, {vr(ACC+4*b,4)} offset:{1024*(b-2)}")
        for b in range(3):
            for e in range(4): a(f"v_sub_f32 v{ACC+4*b+e}, v{ACC+4*b+e}, v{keep[4*b+e]}")
        a.wait_all(vm=False)
        a("s_barrier")
        tp = [a.ds(f"ds_read_b128 {vr(16+4*b,4)}, v{AX2} offset:{1024*b}") for b in range(3)]
        a.wait(tg)
        for b in range(3):
            if b == 2: a(f"s_cmp_lg_u32 s{sKH}, 0\ns_cbranch_scc1 L_FIN")
            a.wait(tp[b])
            for e in range(4): a(f"v_add_f32 v{16+4*b+e}, v{16+4*b+e}, v{ACC+4*b+e}")
            for e in range(4): a(f"v_fmac_f32 v{keep[4*b+e]}, v{G}, v{16+4*b+e}")
            a(f"v_cvt_pk_bf16_f32 v{32+2*b}, v{keep[4*b]}, v{keep[4*b+1]}\nv_cvt_pk_bf16_f32 v{33+2*b}, v{keep[4*b+2]}, v{keep[4*b+3]}")
            a.vm(f"buffer_store_dwordx2 {vr(32+2*b,2)}, v{AOUT}, s[{rA}:{rA+3}], 0 offen offset:{32*b}")
        a.label("L_FIN")
        if self.stamps:
            self.stamp("st")
            a("s_waitcnt vmcnt(0)")
            self.stamp("end")
            a(f"s_lshl_b32 s{T0}, s{sWG}, 3\ns_add_u32 s{T0}, s{T0}, s{sWAVE}\ns_lshl_b32 s{T0}, s{T0}, 8\ns_add_u32 s{T0}, s{T0}, {TS:#x}\nv_lshlrev_b32 v2, 2, v0")
            a(f"buffer_store_dword v1, v2, s[{rWS}:{rWS+3}], s{T0} offen")
            if "enc" in self.opt:
                n0, n1, wv = self.opt["enc"].split(",")
                a(f"s_cmp_lg_u32 s{sWG}, 100\ns_cbranch_scc1 L_END\ns_cmp_lg_u32 s{sWAVE}, {wv}\ns_cbranch_scc1 L_END")
                a(f"v_readlane_b32 s{T1}, v1, {self.names.index(n0)}\nv_readlane_b32 s{T2}, v1, {self.names.index(n1)}\nv_readlane_b32 s{T3}, v1, {self.names.index('end')}\ns_nop 3")
                a(f"s_sub_u32 s{T2}, s{T2}, s{T1}\ns_lshl_b32 s{T2}, s{T2}, 3\ns_and_b32 s{T2}, s{T2}, 0xffff\ns_add_u32 s{T3}, s{T3}, s{T2}")
                a.label("L_ENC")
                a(f"s_memrealtime s[{sTS}:{sTS+1}]\ns_waitcnt lgkmcnt(0)\ns_sub_u32 s{T1}, s{T3}, s{sTS}\ns_cmp_gt_i32 s{T1}, 0\ns_cbranch_scc1 L_ENC")
        a.label("L_END")
        a("s_endpgm")

    def slow(self):
        a = self.a
        S, V, M, AVS = S_, VS[0], 96, 98
        a.label("L_SLOW")
        a(f"""s_mov_b32 s{sSLOW}, 1
        v_and_b32 v{M}, 31, v0
        v_lshrrev_b32 v{AVS}, 5, v0
        v_mul_u32_u24 v{AVS}, 320, v{AVS}
        v_lshl_add_u32 v{AVS}, v{M}, 4, v{AVS}
        v_add_u32 v{AVS}, 2560, v{AVS}
        v_mov_b32 v{M}, 0xff800000""")
        def scores():
            a(f"""buffer_load_dwordx2 {vr(KRM,2)}, v2, s[{rWS}:{rWS+3}], s{T6} offen offset:2048 sc1
            buffer_load_dwordx4 {vr(KM,4)}, v{L16}, s[{rWS}:{rWS+3}], s{T6} offen sc1
            buffer_load_dwordx4 {vr(KM+4,4)}, v{L16}, s[{rWS}:{rWS+3}], s{T6} offen offset:1024 sc1
            s_waitcnt vmcnt(0)""")
            self.m2b(S); a.nop(18); self.mqk(S, 0); self.mqk(S, 1); a.nop(12)
        a(f"s_mov_b32 s{T6}, s{sKVB}\ns_mov_b32 s{sCNT}, 0")
        a.label("L_SLOW1")
        scores()
        for e in range(16): a(f"v_max3_f32 v{M}, v{M}, v{S+2*e}, v{S+2*e+1}")
        a(f"s_add_u32 s{T6}, s{T6}, {KV_US}\ns_add_u32 s{sCNT}, s{sCNT}, 1\ns_cmp_lt_u32 s{sCNT}, 32\ns_cbranch_scc1 L_SLOW1")
        a(f"v_mov_b32 v{M+1}, v{M}\ns_nop 1\nv_permlane32_swap_b32 v{M}, v{M+1}\ns_nop 1\nv_max_f32 v{M}, v{M}, v{M+1}")
        for e in range(16): a(f"v_mov_b32 v{O_+e}, 0")
        a(f"s_mov_b32 s{T6}, s{sKVB}\ns_mov_b32 s{sCNT}, 0")
        a.label("L_SLOW2")
        a(f"s_mov_b64 exec, s[{sVMASK}:{sVMASK+1}]")
        for g in range(4): a(f"buffer_load_dwordx4 {vr(V+4*g,4)}, v{AVS}, s[{rWS}:{rWS+3}], s{T6} offen offset:{640*g} sc1")
        a("s_mov_b64 exec, -1")
        scores()
        for e in range(32): a(f"v_sub_f32 v{S+e}, v{S+e}, v{M}")
        for e in range(32): a(f"v_exp_f32 v{S+e}, v{S+e}")
        a.nop(2)
        for g in range(4): self.smf(V + 4*g, S + 8*g)
        a(f"s_add_u32 s{T6}, s{T6}, {KV_US}\ns_add_u32 s{sCNT}, s{sCNT}, 1\ns_cmp_lt_u32 s{sCNT}, 32\ns_cbranch_scc1 L_SLOW2")
        a.nop(12)
        a("s_branch L_NORM")

    def build(self):
        self.prologue(); self.dma_role(); self.attention(); self.finish(); self.side_role(); self.gemm_compute(); self.slow(); self.a.label('L_CODE_END')
        bad = lint(self.a.lines)
        head = f"""; Fused kernel: QKV projection, depthwise convolutions, attention, output projection and gated mix.
; @launch grid=(256,1,1) block=(512,1,1) lds={LDS_BYTES}
.amdgcn_target "amdgcn-amd-amdhsa--gfx950"
.text
.globl {NAME}
.p2align 8
.type {NAME},@function
{NAME}:
"""
        tail = f""".section .rodata,"a"
.p2align 6
.amdhsa_kernel {NAME}
  .amdhsa_next_free_vgpr 256
  .amdhsa_next_free_sgpr 102
  .amdhsa_accum_offset 256
  .amdhsa_group_segment_fixed_size 0
  .amdhsa_kernarg_size 104
  .amdhsa_user_sgpr_count 2
  .amdhsa_user_sgpr_kernarg_segment_ptr 1
  .amdhsa_system_sgpr_workgroup_id_x 1
  .amdhsa_float_denorm_mode_32 3
.end_amdhsa_kernel
"""
        return head + self.a.text() + tail, bad

if __name__ == "__main__":
    out = sys.argv[1] if len(sys.argv) > 1 else "gated_mix__mha_block__ssm_conv_h3__prompt.s"
    opt = dict(x[2:].split("=") for x in sys.argv if x.startswith("-D"))
    G = Gen(stamps="--stamps" in sys.argv, opt=opt)
    src, bad = G.build()
    if G.stamps: src = src.replace("; @launch", "; STAMPS " + " ".join(G.names) + "\n; @launch", 1)
    for b in bad: print("LINT:", b)
    open(out, "w").write(src)
    print("wrote", out, len(src), "bytes;", len(bad), "lint findings")
```

```python
import sys, math, struct
from asmlib import *

NAME = "gated_mix__mha_block__ssm_conv_h3__prompt_kernel"
def f2u(x): return struct.unpack("<I", struct.pack("<f", x))[0]

KV, QO, UR, YD, OM, ORM = 0, 0x500000, 0x780000, 0xA00000, 0xC80000, 0xE80000
F2, F4, F3, F5, GT, F1 = 0xF04000, 0xF08000, 0xF0C000, 0xF0D000, 0xF0E000, 0xFA0000
TS = 0xF10000
WS_SIZE = 0x1000000
KV_HS, KV_US = 163840, 5120
Q_HS, Q_US = 81920, 2560
NSLOT = 3
L_X, L_W = 0, 49152
L_Q, L_SIG = 81920, 162048
L_CONV, CONV_SZ, CS, U_OFF = 98304, 21248, 4160, 16640
L_WO, L_YD, L_EX = 0, 102400, 112640
LDS_BYTES = 163840
sWG, sWAVE = 2, 3
pX, pW, pWO, pWS, pK, pV, pSH, pH, pD, pGW, pOUT, pDBG = 4, 6, 8, 10, 12, 14, 16, 18, 20, 22, 24, 26
rWS, rA, rB, rC, rD = 28, 32, 36, 40, 44
sXCD, sI, sJT, sRT, sPRT, sCJ, sCH0, sNCH, sHEAD, sQB = 48, 49, 50, 51, 52, 53, 54, 55, 56, 57
sLW, sCH, sKH, sTB, sCNT, sSLOW = 58, 59, 60, 61, 62, 63
T0, T1, T2, T3, T4, T5, T6, T7 = 64, 65, 66, 67, 68, 69, 70, 71
sM = 72
sVMASK = 74
sTS = 76
sE = 78
sSC = 86
sKVB, sKVW, sOMS, sORS, sF4S, sCL = 87, 88, 89, 90, 91, 92
sNB, sBC, sU, sK = 93, 94, 95, 96
sM2 = 98
sKVG = 97
POLL_MAX = 30000
IDX, AKM, AKR, AV, L16, AQM, AQR, AF3, YDV = 224, 225, 226, 227, 228, 229, 230, 231, 232
WOV = 233
F3T = 238
ONES, APX, AQM2, AQR2 = 240, 241, 242, 243
QM2, QR2, O2 = 128, 132, 144
WM0, WM1, WR0, WR1, AOM, AOR, AOUT, AG, AEX, AX2, AYD, AF4 = 244, 245, 246, 247, 248, 249, 250, 251, 252, 253, 254, 255
O_, QM, QR, KRM, KM, S_ = 192, 32, 36, 38, 40, 64
VS = (48, 208)
XE = 8

class Gen:
    def __init__(self, stamps=False, opt=None):
        self.a = Asm(); self.stamps = stamps; self.names = []; self.opt = opt or {}
        self.nt = " nt" if int(self.opt.get("nt", 1)) else ""
        self.gnt = " nt" if int(self.opt.get("gnt", 0)) else ""
    def o(self, k, d): return type(d)(self.opt.get(k, d))
    def srd(self, r, p, size):
        self.a(f"s_mov_b32 s{r}, s{p}\ns_mov_b32 s{r+1}, s{p+1}\ns_mov_b32 s{r+2}, {size:#x}\ns_mov_b32 s{r+3}, 0x20000")
    def stamp(self, name):
        if not self.stamps: return
        if name not in self.names: self.names.append(name)
        k = self.names.index(name); assert k < 60
        self.a(f"s_memrealtime s[{sTS}:{sTS+1}]\ns_waitcnt lgkmcnt(0)\nv_writelane_b32 v1, s{sTS}, {k}")
        if name in ("att0", "attend"): self.a(f"s_memtime s[{sTS}:{sTS+1}]\ns_waitcnt lgkmcnt(0)\nv_writelane_b32 v1, s{sTS}, {60 if name == 'att0' else 61}")
        if name == "start": self.a(f"s_memtime s[{sTS}:{sTS+1}]\ns_waitcnt lgkmcnt(0)\nv_writelane_b32 v1, s{sTS}, 62")
        if name == "end": self.a(f"s_memtime s[{sTS}:{sTS+1}]\ns_waitcnt lgkmcnt(0)\nv_writelane_b32 v1, s{sTS}, 63")
        self.a.done["ds"] = self.a.n["ds"]
    def poll(self, loads, tmp, cmp=None):
        a = self.a
        L, D = a.newlabel("POLL"), a.newlabel("POLLD")
        a(f"s_mov_b32 s{sCNT}, 0")
        a.label(L)
        k = 0
        for (va, r, imm, wd) in loads:
            ins = {1: "buffer_load_dword", 2: "buffer_load_dwordx2", 4: "buffer_load_dwordx4"}[wd]
            a(f"{ins} {vr(tmp+k, wd)}, v{va}, s[{r}:{r+3}], 0 offen offset:{imm} sc1"); k += wd
        a("s_waitcnt vmcnt(0)")
        a.done["vm"] = a.n["vm"]
        self.poll_check(tmp, k, cmp)
        a(f"s_cbranch_scc1 {D}")
        a(f"s_add_u32 s{sCNT}, s{sCNT}, 1\ns_cmp_lt_u32 s{sCNT}, {POLL_MAX}\ns_cbranch_scc0 {D}\ns_sleep 1\ns_branch {L}")
        a.label(D)
    def mpoll(self, addrs, tmp, elastic=False):
        a = self.a
        L, D = a.newlabel("MP"), a.newlabel("MPD")
        M = [sM, sM2][:len(addrs)]
        a(f"s_mov_b32 s{sCNT}, 0")
        for m in M: a(f"s_mov_b64 s[{m}:{m+1}], -1")
        a.label(L)
        for k, (va, m) in enumerate(zip(addrs, M)):
            S = a.newlabel("MS")
            a(f"s_mov_b64 exec, s[{m}:{m+1}]\ns_cbranch_execz {S}\nbuffer_load_dword v{tmp+k}, v{va}, s[{rWS}:{rWS+3}], 0 offen sc1")
            a.label(S)
        a("s_mov_b64 exec, -1")
        if elastic: self.ewait()
        else: a("s_waitcnt vmcnt(0)")
        a.done["vm"] = a.n["vm"]
        for k, m in enumerate(M):
            a(f"v_cmp_eq_u32 vcc, 0, v{tmp+k}\ns_nop 1\ns_and_b64 s[{m}:{m+1}], s[{m}:{m+1}], vcc")
        if len(M) == 2: a(f"s_or_b64 vcc, s[{sM}:{sM+1}], s[{sM2}:{sM2+1}]")
        a(f"s_cbranch_scc0 {D}")
        a(f"s_add_u32 s{sCNT}, s{sCNT}, 1\ns_cmp_lt_u32 s{sCNT}, {POLL_MAX}\ns_cbranch_scc0 {D}\ns_sleep {self.o('psleep', 4)}\ns_branch {L}")
        a.label(D)
    def last_flag(self, off, sN, sAddr, vt):
        a = self.a
        L = a.newlabel("NL")
        a(f"""v_mov_b32 v{vt}, {L_SIG}
        v_mov_b32 v{vt+1}, 1
        s_mov_b64 exec, 1
        ds_add_rtn_u32 v{vt+1}, v{vt}, v{vt+1} offset:{off}
        s_waitcnt lgkmcnt(0)
        v_readfirstlane_b32 s{T0}, v{vt+1}
        s_mov_b64 exec, -1
        s_add_u32 s{T0}, s{T0}, 1
        s_cmp_lg_u32 s{T0}, {sN}
        s_cbranch_scc1 {L}""")
        self.flag_store(sAddr, vt, two=True)
        a.label(L)
    def poll_check(self, tmp, k, cmp=None):
        a = self.a
        for j in range(1, k, 2):
            if j + 1 < k: a(f"v_min3_u32 v{tmp}, v{tmp}, v{tmp+j}, v{tmp+j+1}")
            else: a(f"v_min_u32 v{tmp}, v{tmp}, v{tmp+j}")
        a(cmp or f"v_cmp_ne_u32 vcc, 0, v{tmp}")
        a("s_nop 1\ns_cmp_eq_u64 vcc, exec")
    def flag_store(self, s, vt, two=False):
        a = self.a
        a(f"v_lshl_add_u32 v{vt}, v0, 2, s{s}\nv_mov_b32 v{vt+1}, 1\ns_mov_b64 exec, {3 if two else 1}")
        t = a.vm(f"buffer_store_dword v{vt+1}, v{vt}, s[{rWS}:{rWS+3}], 0 offen sc1")
        a("s_mov_b64 exec, -1")
        return t

    def prologue(self):
        a = self.a
        a(f"s_cmp_ge_u32 s{sWG}, 256\ns_cbranch_scc1 L_END")
        if self.opt.get("diag") == "spin":
            a("s_mov_b32 s60, 2500\nv_mov_b32 v10, 0")
            a.label("L_DSPIN")
            for e in range(8): a(f"v_exp_f32 v{11+e}, v10")
            a("s_sub_u32 s60, s60, 1\ns_cmp_lg_u32 s60, 0\ns_cbranch_scc1 L_DSPIN")
        if self.opt.get("diag") == "chain":
            a("s_load_dwordx2 s[32:33], s[0:1], 24\ns_waitcnt lgkmcnt(0)\ns_mov_b32 s34, 2621440\ns_mov_b32 s35, 0x20000\ns_mul_i32 s60, s2, 256\nv_mov_b32 v10, s60")
            for e in range(32): a("buffer_load_dword v12, v10, s[32:35], 0 offen\ns_waitcnt vmcnt(0)\nv_and_b32 v12, 0, v12\nv_add_u32 v10, v10, v12\nv_add_u32 v10, 0x13000, v10")
        if self.opt.get("diag") == "bq":
            a("s_load_dwordx2 s[32:33], s[0:1], 24\ns_waitcnt lgkmcnt(0)\ns_mov_b32 s34, 2621440\ns_mov_b32 s35, 0x20000\nv_lshlrev_b32 v10, 4, v0\ns_mul_i32 s60, s2, 10240")
            a("buffer_load_dwordx4 v[12:15], v10, s[32:35], s60 offen\ns_add_u32 s60, s60, 2048\nbuffer_load_dwordx4 v[16:19], v10, s[32:35], s60 offen\ns_waitcnt vmcnt(0)")
        a(f"""s_load_dwordx4 s[4:7], s[0:1], 0
        s_load_dwordx16 s[12:27], s[0:1], 32
        s_load_dwordx2 s[10:11], s[0:1], 96
        s_load_dwordx2 s[8:9], s[0:1], 16
        v_lshrrev_b32 v1, 6, v0
        v_and_b32 v0, 63, v0
        s_and_b32 s{sXCD}, s{sWG}, 7
        v_readfirstlane_b32 s{sWAVE}, v1
        s_lshr_b32 s{sI}, s{sWG}, 3
        s_and_b32 s{T0}, s{sXCD}, 1
        s_mul_i32 s{T0}, s{T0}, 30
        s_add_u32 s{T0}, s{T0}, s{sI}
        s_lshr_b32 s{sJT}, s{T0}, 2
        s_and_b32 s{T0}, s{T0}, 3
        s_lshr_b32 s{T1}, s{sXCD}, 1
        s_lshl_b32 s{T1}, s{T1}, 2
        s_add_u32 s{sRT}, s{T0}, s{T1}
        s_lshr_b32 s{T0}, s{sWG}, 1
        s_mul_i32 s{T0}, s{T0}, 5
        s_and_b32 s{T1}, s{sWG}, 1
        s_mul_i32 s{T2}, s{T1}, 3
        s_add_u32 s{sCH0}, s{T0}, s{T2}
        s_sub_u32 s{sNCH}, 3, s{T1}
        s_sub_u32 s{sLW}, s{sWAVE}, 4
        s_cmp_lt_u32 s{sWAVE}, 4
        s_cbranch_scc1 L_COMPUTE
        s_cmp_gt_u32 s{sWAVE}, 4
        s_cbranch_scc1 L_SIDE""")
    def common_scalars(self):
        self.a(f"""s_cmp_ge_u32 s{sI}, 30
        s_cselect_b32 s{sNB}, 1, 11
        s_mov_b32 s{sBC}, 0
        s_lshr_b32 s{T0}, s{sI}, 3
        s_lshl_b32 s{T1}, s{sXCD}, 2
        s_add_u32 s{sHEAD}, s{T0}, s{T1}
        s_and_b32 s{sQB}, s{sI}, 7
        s_lshr_b32 s{sKH}, s{sWAVE}, 2
        s_and_b32 s{sTB}, s{sWAVE}, 3
        s_mov_b32 s{sSLOW}, 0
        s_mov_b32 s{sVMASK}, 0x000fffff
        s_mov_b32 s{sVMASK+1}, 0x000fffff""")
    def persistent(self, t=192):
        a = self.a
        a(f"""s_mov_b32 s{sM}, 0x11000000
        s_mov_b32 s{sM+1}, 0x11000000
        v_mov_b32 v{t}, 0x3f803f80
        v_cndmask_b32 v{ONES}, 0, v{t}, s[{sM}:{sM+1}]""")
        a(f"""v_mov_b32 v{IDX}, 0xdddddddd
        v_lshlrev_b32 v{AKM}, 4, v0
        v_lshlrev_b32 v{L16}, 4, v0
        v_lshlrev_b32 v{t}, 3, v0
        v_add_u32 v{AKR}, 2048, v{t}
        v_and_b32 v{t+1}, 31, v0
        v_lshrrev_b32 v{t+2}, 5, v0
        v_mul_u32_u24 v{t+2}, 320, v{t+2}
        v_lshl_add_u32 v{t+2}, v{t+1}, 4, v{t+2}
        v_add_u32 v{AV}, 2560, v{t+2}
        s_mul_i32 s{T0}, s{sKH}, {KV_US}
        v_add_u32 v{AKM}, s{T0}, v{AKM}
        v_add_u32 v{AKR}, s{T0}, v{AKR}
        v_add_u32 v{AV}, s{T0}, v{AV}
        s_mul_i32 s{T0}, s{sTB}, {Q_US}
        s_add_u32 s{T0}, s{T0}, {L_Q}
        s_lshl_b32 s{T2}, s{sKH}, 10
        s_add_u32 s{T2}, s{T2}, s{T0}
        v_add_u32 v{AQM}, s{T2}, v{L16}
        s_lshl_b32 s{T1}, s{sKH}, 8
        s_add_u32 s{T1}, s{T1}, s{T0}
        v_lshl_add_u32 v{AQR}, v{t+1}, 3, s{T1}
        s_xor_b32 s{T3}, s{sKH}, 1
        s_lshl_b32 s{T2}, s{T3}, 10
        s_add_u32 s{T2}, s{T2}, s{T0}
        v_add_u32 v{AQM2}, s{T2}, v{L16}
        s_lshl_b32 s{T1}, s{T3}, 8
        s_add_u32 s{T1}, s{T1}, s{T0}
        v_lshl_add_u32 v{AQR2}, v{t+1}, 3, s{T1}
        s_mul_i32 s{sKVB}, s{sHEAD}, {KV_HS}
        s_mul_i32 s{sKVW}, s{sWAVE}, {KV_US}
        s_add_u32 s{sKVG}, s{sKVW}, s{sKVB}
        s_lshl_b32 s{T0}, s{sHEAD}, 16
        s_lshl_b32 s{T1}, s{sQB}, 2
        s_add_u32 s{T1}, s{T1}, s{sTB}
        s_lshl_b32 s{T1}, s{T1}, 1
        s_add_u32 s{T1}, s{T1}, s{sKH}
        s_lshl_b32 s{T2}, s{T1}, 10
        s_add_u32 s{T0}, s{T0}, s{T2}
        s_add_u32 s{sOMS}, s{T0}, {OM:#x}
        s_lshl_b32 s{T2}, s{sHEAD}, 14
        s_lshl_b32 s{T1}, s{T1}, 8
        s_add_u32 s{T1}, s{T1}, s{T2}
        s_add_u32 s{sORS}, s{T1}, {ORM:#x}
        s_lshl_b32 s{T0}, s{sQB}, 11
        s_lshl_b32 s{T1}, s{sHEAD}, 6
        s_add_u32 s{T0}, s{T0}, s{T1}
        s_add_u32 s{sF4S}, s{T0}, {F4:#x}""")
        a(f"""s_mul_i32 s{T0}, s{sQB}, 320
        s_add_u32 s{T0}, s{T0}, {F3:#x}
        v_lshl_add_u32 v{AF3}, v0, 3, s{T0}
        s_lshr_b32 s{T0}, s{sHEAD}, 1
        s_lshl_b32 s{T0}, s{T0}, 6
        s_add_u32 s{T0}, s{T0}, {F5:#x}
        v_mov_b32 v{t}, s{T0}
        s_mov_b32 s{sM}, 0
        s_mov_b32 s{sM+1}, 0xffffff00
        v_cndmask_b32 v{AF3}, v{AF3}, v{t}, s[{sM}:{sM+1}]""")
        a(f"s_mul_i32 s{T0}, s{sWAVE}, {13*64}\ns_mul_i32 s{T1}, s{sQB}, 160")
        for k in range(5):
            a(f"""s_add_u32 s{T2}, s{T0}, {64*k}
            v_add_u32 v{t}, s{T2}, v0
            v_mul_u32_u24 v{t+1}, 52429, v{t}
            v_lshrrev_b32 v{t+1}, 19, v{t+1}
            v_mul_u32_u24 v{t+1}, {1280-160}, v{t+1}
            v_lshl_add_u32 v{t+1}, v{t}, 4, v{t+1}
            v_add_u32 v{WOV+k}, s{T1}, v{t+1}""")
        a(f"""s_mul_i32 s{T0}, s{sQB}, 80
        s_mul_i32 s{T1}, s{sWAVE}, 10
        s_add_u32 s{T0}, s{T0}, s{T1}
        v_lshrrev_b32 v{t}, 3, v0
        v_add_u32 v{t}, s{T0}, v{t}
        v_lshlrev_b32 v{t}, 12, v{t}
        v_and_b32 v{t+1}, 7, v0
        v_lshl_add_u32 v{t}, v{t+1}, 4, v{t}
        s_lshl_b32 s{T0}, s{sHEAD}, 7
        s_add_u32 s{T0}, s{T0}, {YD:#x}
        v_add_u32 v{YDV}, s{T0}, v{t}""")
        q, r, c8, tt, b0 = t, t + 1, t + 2, t + 3, t + 4
        a(f"""v_lshrrev_b32 v{q}, 4, v0
        v_lshrrev_b32 v{r}, 2, v0
        v_and_b32 v{r}, 3, v{r}
        v_and_b32 v{c8}, 3, v0
        v_lshlrev_b32 v{c8}, 3, v{c8}
        v_and_b32 v{tt}, 15, v0
        v_and_b32 v{b0}, 1, v{q}
        s_mul_i32 s{T2}, s{sKH}, {51200 + 96}
        s_mul_i32 s{T3}, s{sKH}, {51200 - 64}
        v_lshrrev_b32 v{t+5}, 1, v{q}
        v_mul_u32_u24 v{t+5}, 20, v{t+5}
        v_lshl_add_u32 v{t+5}, v{b0}, 2, v{t+5}
        v_add_u32 v{t+5}, v{t+5}, v{r}
        v_mul_u32_u24 v{t+5}, 160, v{t+5}
        v_add_u32 v{t+5}, v{t+5}, v{c8}
        v_add_u32 v{WM0}, s{T2}, v{t+5}
        v_add_u32 v{WM1}, s{T3}, v{t+5}
        v_mul_u32_u24 v{t+5}, 20, v{q}
        v_add3_u32 v{t+5}, v{t+5}, v{r}, 16
        v_mul_u32_u24 v{t+5}, 160, v{t+5}
        v_add_u32 v{t+5}, v{t+5}, v{c8}
        v_add_u32 v{WR0}, s{T2}, v{t+5}
        v_add_u32 v{WR1}, s{T3}, v{t+5}
        s_lshl_b32 s{T2}, s{sKH}, 20
        s_lshl_b32 s{T3}, s{sHEAD}, 11
        s_add_u32 s{T2}, s{T2}, s{T3}
        s_lshr_b32 s{T3}, s{sTB}, 1
        s_lshl_b32 s{T4}, s{T3}, 10
        s_add_u32 s{T2}, s{T2}, s{T4}
        s_and_b32 s{T4}, s{sTB}, 1
        s_lshl_b32 s{T4}, s{T4}, 8
        s_add_u32 s{T2}, s{T2}, s{T4}
        s_add_u32 s{T2}, s{T2}, {OM:#x}
        v_lshrrev_b32 v{t+5}, 1, v{q}
        v_lshlrev_b32 v{t+5}, 16, v{t+5}
        v_lshl_add_u32 v{t+5}, v{b0}, 9, v{t+5}
        v_lshl_add_u32 v{t+5}, v{tt}, 4, v{t+5}
        v_add_u32 v{AOM}, s{T2}, v{t+5}
        s_lshl_b32 s{T2}, s{sKH}, 18
        s_lshl_b32 s{T4}, s{sHEAD}, 9
        s_add_u32 s{T2}, s{T2}, s{T4}
        s_lshl_b32 s{T4}, s{sTB}, 7
        s_add_u32 s{T2}, s{T2}, s{T4}
        s_add_u32 s{T2}, s{T2}, {ORM:#x}
        v_lshlrev_b32 v{t+5}, 14, v{q}
        v_lshl_add_u32 v{t+5}, v{tt}, 3, v{t+5}
        v_add_u32 v{AOR}, s{T2}, v{t+5}
        s_lshr_b32 s{T2}, s{sHEAD}, 2
        s_lshl_b32 s{T2}, s{T2}, 11
        s_add_u32 s{T2}, s{T2}, {F4:#x}
        v_and_b32 v{t+5}, 31, v0
        v_lshl_add_u32 v{AF4}, v{t+5}, 6, s{T2}
        s_lshl_b32 s{T0}, s{sHEAD}, 6
        s_lshl_b32 s{T1}, s{sTB}, 4
        s_add_u32 s{T0}, s{T0}, s{T1}
        v_add_u32 v{t+5}, s{T0}, v{tt}
        v_lshlrev_b32 v{AG}, 2, v{t+5}
        v_add_u32 v{AG}, {GT:#x}, v{AG}
        v_mul_u32_u24 v{t+5}, 1280, v{t+5}
        v_lshl_add_u32 v{t+5}, v{q}, 3, v{t+5}
        s_mul_i32 s{T0}, s{sQB}, 160
        s_mul_i32 s{T1}, s{sKH}, 96
        s_add_u32 s{T0}, s{T0}, s{T1}
        v_add_u32 v{AOUT}, s{T0}, v{t+5}
        s_lshl_b32 s{T0}, s{sWAVE}, 12
        s_add_u32 s{T0}, s{T0}, {L_EX}
        v_add_u32 v{AEX}, s{T0}, v{L16}
        s_xor_b32 s{T0}, s{sWAVE}, 4
        s_lshl_b32 s{T0}, s{T0}, 12
        s_add_u32 s{T1}, s{T0}, {L_EX}
        v_add_u32 v{APX}, s{T1}, v{L16}
        s_lshl_b32 s{T1}, s{sKH}, 10
        s_add_u32 s{T1}, s{T1}, s{T0}
        s_add_u32 s{T1}, s{T1}, {L_EX}
        v_add_u32 v{AX2}, s{T1}, v{L16}
        v_lshl_add_u32 v{AYD}, v{q}, 2, v{r}
        v_lshl_add_u32 v{AYD}, v{AYD}, 7, v{c8}
        s_mul_i32 s{T0}, s{sKH}, {48*128}
        s_lshl_b32 s{T1}, s{sTB}, 5
        s_add_u32 s{T0}, s{T0}, s{T1}
        s_add_u32 s{T0}, s{T0}, {L_YD}
        v_add_u32 v{AYD}, s{T0}, v{AYD}""")
    def att_init_list(self):
        if self.o("ones", 2) == 12:
            return [f"v_mov_b32 v{O_+e}, 0" for e in range(16)] + [f"v_mov_b32 v{st+e}, 0x3f803f80" for st in VS for e in range(16)]
        return [f"v_mov_b32 v{O_+e}, 0" for e in range(16)] + [f"v_mov_b32 v{st+e}, v{ONES}" for st in VS for e in range(16)]

    def flag_reset(self):
        a = self.a
        L = a.newlabel("NOZ")
        a(f"s_cmp_lg_u32 s{sWAVE}, 0\ns_cbranch_scc1 {L}")
        a(f"""s_lshl_b32 s{T0}, s{sWG}, 6
        s_add_u32 s{T0}, s{T0}, {F1:#x}
        v_mov_b32 v12, s{T0}
        v_and_b32 v10, 3, v0
        v_lshlrev_b32 v11, 2, v10
        v_add_u32 v13, s{sCL}, v11
        s_mov_b32 s{sM}, 0xf
        s_mov_b32 s{sM+1}, 0
        v_cndmask_b32 v12, v12, v13, s[{sM}:{sM+1}]
        s_lshl_b32 s{T0}, s{sCH0}, 2
        s_add_u32 s{T0}, s{T0}, {F3:#x}
        v_add_u32 v13, s{T0}, v11
        s_mov_b32 s{sM}, 0x30
        s_cmp_eq_u32 s{sNCH}, 3
        s_cselect_b32 s{sM}, 0x70, s{sM}
        v_cndmask_b32 v12, v12, v13, s[{sM}:{sM+1}]
        s_lshl_b32 s{T0}, s{sQB}, 11
        s_lshl_b32 s{T1}, s{sHEAD}, 6
        s_add_u32 s{T0}, s{T0}, s{T1}
        s_add_u32 s{T0}, s{T0}, {F4:#x}
        v_mov_b32 v13, s{T0}
        s_mov_b32 s{sM}, 0x100
        v_cndmask_b32 v12, v12, v13, s[{sM}:{sM+1}]
        v_mov_b32 v13, 0
        s_mov_b32 exec_lo, 0x1ff
        s_mov_b32 exec_hi, 0
        buffer_store_dword v13, v12, s[{rWS}:{rWS+3}], 0 offen sc1
        s_mov_b64 exec, 1""")
        self.srd(rA, pDBG, 256)
        a(f"""s_and_b32 s{T0}, s{sWG}, 1
        s_lshl_b32 s{T0}, s{T0}, 7
        v_mov_b32 v12, s{T0}
        v_mov_b32 v13, 1
        s_waitcnt vmcnt(0)
        buffer_atomic_add v13, v12, s[{rA}:{rA+3}], 0 offen sc1
        s_mov_b64 exec, -1""")
        a.label(L)

    XA, WA, XA2, WA2, EA = 2, 6, 128, 132, 136
    def gemm_compute(self):
        a = self.a
        XA, WA = self.XA, self.WA
        a.label("L_COMPUTE")
        if self.o("cpf", 1):
            L = a.newlabel("NOPF")
            a(f"""s_cmp_lg_u32 s{sWAVE}, 1
            s_cbranch_scc1 {L}
            s_getpc_b64 s[{T2}:{T3}]
            L_PC:
            s_sub_u32 s{T2}, s{T2}, L_PC-{NAME}
            s_subb_u32 s{T3}, s{T3}, 0
            s_and_b32 s{T0}, s{sI}, 7
            s_lshl_b32 s{T0}, s{T0}, 13
            v_lshl_add_u32 v10, v0, 7, s{T0}
            v_min_u32 v10, L_CODE_END-{NAME}-4, v10
            global_load_dword v31, v10, s[{T2}:{T3}]""")
            a.label(L)
        self.common_scalars()
        a(f"""s_lshl_b32 s{T0}, s{sJT}, 10
        s_lshl_b32 s{T1}, s{sRT}, 6
        s_add_u32 s{T0}, s{T0}, s{T1}
        s_add_u32 s{sCL}, s{T0}, {F2:#x}
        s_lshl_b32 s{T0}, s{sXCD}, 1
        s_add_u32 s{T0}, s{T0}, s{sI}
        s_sub_u32 s{T7}, s{T0}, 30
        s_lshl_b32 s{T0}, s{T7}, 6
        s_add_u32 s{T0}, s{T0}, {F5:#x}
        s_cmp_ge_u32 s{sI}, 30
        s_cselect_b32 s{sCL}, s{T0}, s{sCL}
        s_waitcnt lgkmcnt(0)""")
        self.srd(rWS, pWS, WS_SIZE)
        if self.stamps: a("v_mov_b32 v1, 0")
        self.stamp("start")
        self.flag_reset()
        self.persistent()
        for l in self.att_init_list():
            if int(l.split()[1][1:-1]) >= 192: a(l)
        a(f"s_cmp_eq_u32 s{sWAVE}, 0\ns_cbranch_scc1 L_C_NW\ns_waitcnt vmcnt(0)")
        a.label("L_C_NW")
        a(f"s_cmp_ge_u32 s{sI}, 30\ns_cbranch_scc1 L_C_NOTILE")
        a(f"""s_and_b32 s{T0}, s{sWAVE}, 1
        s_lshl_b32 s{T0}, s{T0}, 13
        v_and_b32 v8, 31, v0
        v_lshrrev_b32 v9, 5, v0
        v_lshrrev_b32 v10, 1, v8
        v_and_b32 v10, 7, v10
        v_xor_b32 v10, v10, v9
        v_lshlrev_b32 v8, 7, v8
        v_add_u32 v8, s{T0}, v8""")
        for ks in range(4):
            a(f"v_xor_b32 v11, {2*ks}, v10\nv_lshl_add_u32 v{XA+ks}, v11, 4, v8")
        a(f"""v_lshrrev_b32 v8, 2, v0
        v_and_b32 v8, 3, v8
        v_lshrrev_b32 v9, 5, v0
        v_lshl_add_u32 v9, v9, 3, v8
        v_lshlrev_b32 v9, 8, v9
        v_lshrrev_b32 v10, 4, v0
        v_and_b32 v10, 1, v10
        v_lshlrev_b32 v10, 1, v10
        v_lshrrev_b32 v11, 1, v0
        v_and_b32 v11, 1, v11
        v_or_b32 v10, v10, v11
        v_and_b32 v11, 1, v0
        v_lshlrev_b32 v11, 3, v11
        v_add_u32 v9, v9, v11
        v_add_u32 v9, {L_W}, v9
        s_and_b32 s{T0}, s{sWAVE}, 2""")
        for i in range(2):
            a(f"""s_add_u32 s{T1}, s{T0}, {i}
            v_xor_b32 v11, s{T1}, v8
            v_lshl_add_u32 v11, v11, 2, v10
            v_lshl_add_u32 v{WA+i}, v11, 4, v9""")
        def lowinit():
            for l in self.att_init_list():
                if int(l.split()[1][1:-1]) < 192: a(l)
        a(f"s_cmp_ge_u32 s{sJT}, 10\ns_cbranch_scc1 L_C_VTILE")
        self.epi_qk_setup()
        self.gemm_loop(False, self.gemm_epi_qk, lowinit)
        a("s_branch L_C_FLAG")
        a.label("L_C_NOTILE")
        self.gate()
        lowinit()
        a("s_branch L_C_FLAG")
        a.label("L_C_VTILE")
        self.epi_v_setup()
        self.gemm_loop(True, self.gemm_epi_v, lowinit)
        a.label("L_C_FLAG")
        a.reset_counters()
        self.stamp("c.epi")
        L = a.newlabel("KVW")
        a(f"s_cmp_eq_u32 s{sWAVE}, 3\ns_cbranch_scc1 {L}")
        a("s_waitcnt vmcnt(0)")
        self.last_flag(12, 4, sCL, 2)
        self.stamp("c.F2set")
        a("s_branch L_ATT")
        a.label(L)
        self.kv_fetch_setup()
        a(f"buffer_load_dword v29, v28, s[{rC}:{rC+3}], 0 offen sc1")
        a("s_waitcnt vmcnt(0)")
        self.last_flag(12, 4, sCL, 2)
        self.kv_fetch()
        a("s_branch L_ATT")

    def gate(self):
        a = self.a
        a.reset_counters()
        X, W, Z = 32, 12, 2
        self.srd(rA, pX, 2048 * 1280); self.srd(rB, pGW, 1280)
        a(f"""s_lshl_b32 s{T0}, s{T7}, 7
        s_lshl_b32 s{T1}, s{sWAVE}, 5
        s_add_u32 s{T6}, s{T0}, s{T1}
        v_lshrrev_b32 v10, 4, v0
        v_add_u32 v11, s{T6}, v10
        v_mul_u32_u24 v11, 1280, v11
        v_and_b32 v2, 15, v0
        v_lshlrev_b32 v3, 4, v2
        v_add_u32 v11, v11, v3""")
        for j in range(5): tw = a.vm(f"buffer_load_dwordx4 {vr(W+4*j,4)}, v3, s[{rB}:{rB+3}], 0 offen offset:{256*j}")
        tx = []
        for g in range(8):
            a(f"s_mov_b32 s{T0}, {5120*g}")
            for j in range(5): t = a.vm(f"buffer_load_dwordx4 {vr(X+20*g+4*j,4)}, v11, s[{rA}:{rA+3}], s{T0} offen offset:{256*j}")
            tx.append(t)
        a(f"""v_lshl_add_u32 v10, v2, 2, v10
        v_add_u32 v10, s{T6}, v10
        v_lshlrev_b32 v10, 2, v10
        v_add_u32 v10, {GT:#x}, v10
        v_mov_b32 v11, v2
        s_barrier""")
        for g in range(8):
            a.wait(tw, tx[g])
            for e in range(20):
                a(f"v_dot2_f32_bf16 v{Z+g}, v{X+20*g+e}, v{W+e}, {'0' if e == 0 else f'v{Z+g}'}")
        a.nop(3)
        for sh in (8, 4, 2, 1):
            for g in range(8): a(f"v_add_f32_dpp v{Z+g}, v{Z+g}, v{Z+g} row_ror:{sh} row_mask:0xf bank_mask:0xf")
        for g in range(1, 8):
            a(f"v_cmp_eq_u32 vcc, {g}, v11\ns_nop 1\nv_cndmask_b32 v{Z}, v{Z}, v{Z+g}, vcc")
        a(f"""v_mul_f32 v{Z}, {f2u(-math.log2(math.e)):#x}, v{Z}
        v_exp_f32 v{Z}, v{Z}
        s_mov_b32 exec_lo, 0x00ff00ff
        v_add_f32 v{Z}, 1.0, v{Z}
        v_rcp_f32 v{Z}, v{Z}
        s_mov_b32 exec_hi, 0x00ff00ff
        buffer_store_dword v{Z}, v10, s[{rWS}:{rWS+3}], 0 offen sc1
        s_mov_b64 exec, -1""")

    def gemm_loop(self, vt, epi, fill):
        a = self.a
        a.reset_counters()
        FR, ACC = 32, 64
        def reads(s, ks):
            st = FR + 16 * (ks & 1); sl = s % NSLOT
            xa, wa, sl = (self.XA, self.WA, sl * 16384) if sl < 4 else (self.XA2, self.WA2, 0)
            rx = lambda j: (lambda: a.ds(f"ds_read_b128 {vr(st+4*j,4)}, v{xa+ks} offset:{sl + 4096*j}"))
            rw = lambda i, q: (lambda: a.ds(f"ds_read_b64_tr_b16 {vr(st+8+4*i+2*q,2)}, v{wa+i} offset:{sl + (16*ks+4*q)*256}"))
            if vt: return [("X0", rx(0)), ("W0", rw(0,0)), ("W0", rw(0,1)), ("W1", rw(1,0)), ("W1", rw(1,1)), ("X1", rx(1))]
            return [("W0", rw(0,0)), ("W0", rw(0,1)), ("X0", rx(0)), ("X1", rx(1)), ("W1", rw(1,0)), ("W1", rw(1,1))]
        def group(ks, toks, nxt, first):
            st = FR + 16 * (ks & 1); out = {}
            sched = [3, 3, 0, 0]; k = 0
            for m, (i, j) in enumerate(((0,0),(0,1),(1,0),(1,1))):
                if vt: A, B, na, nb = st + 4*i, st + 8 + 4*j, f"X{i}", f"W{j}"
                else:  A, B, na, nb = st + 8 + 4*i, st + 4*j, f"W{i}", f"X{j}"
                a.wait(toks[na], toks[nb])
                d = ACC + 16 * (2*i + j)
                a(f"v_mfma_f32_32x32x16_bf16 {vr(d,16)}, {vr(A,4)}, {vr(B,4)}, {'0' if first else vr(d,16)}")
                for _ in range(sched[m]):
                    if k < len(nxt): out[nxt[k][0]] = nxt[k][1](); k += 1
            return out
        a("s_barrier")
        toks = {}
        for n, f in reads(0, 0): toks[n] = f()
        for s in range(9):
            for ks in range(4):
                if ks < 3:
                    toks = group(ks, toks, reads(s, ks + 1), s == 0 and ks == 0)
                else:
                    a.wait_all(vm=False); a("s_barrier")
                    if s < 8: toks = group(ks, toks, reads(s + 1, 0), False)
        sets = (FR, 152, 168, 8)
        T = {}
        def rd(ks, nm):
            st = sets[ks]; sl = (9 % NSLOT) * 16384; k = int(nm[1])
            if nm[0] == "X": T[ks, nm] = a.ds(f"ds_read_b128 {vr(st+4*k,4)}, v{self.XA+ks} offset:{sl + 4096*k}")
            else:
                for q in range(2): T[ks, nm] = a.ds(f"ds_read_b64_tr_b16 {vr(st+8+4*k+2*q,2)}, v{self.WA+k} offset:{sl + (16*ks+4*q)*256}")
        na, nb = ("X", "W") if vt else ("W", "X")
        first = [(lambda ks=ks, nm=nm: rd(ks, nm)) for ks in range(4) for nm in (na + "0", nb + "0")]
        later = [(lambda ks=ks: rd(ks, nb + "1")) for ks in range(4)] + [(lambda ks=ks: rd(ks, na + "1")) for ks in range(4)]
        group(3, toks, [(f"f{i}", f) for i, f in enumerate(first[:6])], False)
        for f in first[6:]: f()
        off = lambda nm: 4 * int(nm[1]) + (0 if nm[0] == "X" else 8)
        pend = []
        for bi, (i, j) in enumerate(((0,0),(0,1),(1,0),(1,1))):
            d = ACC + 16 * (2*i + j)
            for ks in range(4):
                a.wait(T[ks, f"{na}{i}"], T[ks, f"{nb}{j}"])
                a(f"v_mfma_f32_32x32x16_bf16 {vr(d,16)}, {vr(sets[ks]+off(f'{na}{i}'),4)}, {vr(sets[ks]+off(f'{nb}{j}'),4)}, {vr(d,16)}")
                if bi < 2 and later: later.pop(0)()
                if bi == 2 and ks == 3: a.wait_all(vm=False); a("s_barrier")
                if bi >= 2:
                    n = -(-len(pend) // (4 - ks + (4 if bi == 2 else 0)))
                    for _ in range(min(n, 9)): pend.pop(0)()
            if bi == 1: pend += epi(0, 0)
            if bi == 1: pend += epi(0, 1)
            if bi == 2: last = epi(1, 0)
        for f in pend: f()
        for f in last: f()
        for f in epi(1, 1): f()
        fill()

    def epi_qk_setup(self):
        a = self.a
        sBASE, sHS, sPQ = T0, T1, T3
        a(f"""s_mov_b32 s{sHS}, {Q_HS}
        s_mov_b32 s{T4}, {Q_US}
        s_cmp_ge_u32 s{sJT}, 5
        s_cselect_b32 s{sHS}, {KV_HS}, s{sHS}
        s_cselect_b32 s{T4}, {KV_US}, s{T4}
        s_cselect_b32 s{sBASE}, {KV}, {QO:#x}
        s_cselect_b32 s{T5}, 5, 0
        s_cselect_b64 s[{sM}:{sM+1}], -1, 0
        s_cselect_b32 s{sSC}, 1.0, {f2u(math.log2(math.e) / math.sqrt(20.0)):#x}
        s_sub_u32 s{T5}, s{sJT}, s{T5}
        s_lshl_b32 s{sPQ}, s{T5}, 4
        s_and_b32 s{T5}, s{sWAVE}, 2
        s_lshl_b32 s{T5}, s{T5}, 2
        s_add_u32 s{sPQ}, s{sPQ}, s{T5}
        s_lshl_b32 s{T5}, s{sRT}, 1
        s_and_b32 s{T6}, s{sWAVE}, 1
        s_add_u32 s{T5}, s{T5}, s{T6}
        s_mul_i32 s{T5}, s{T5}, s{T4}
        s_add_u32 s{sBASE}, s{sBASE}, s{T5}
        v_and_b32 v8, 31, v0
        v_and_b32 v9, 0x13, v0
        v_and_b32 v10, 4, v0
        v_lshl_or_b32 v9, v10, 1, v9
        v_and_b32 v10, 8, v0
        v_lshrrev_b32 v10, 1, v10
        v_or_b32 v9, v9, v10
        v_cndmask_b32 v8, v8, v9, s[{sM}:{sM+1}]
        v_lshrrev_b32 v9, 5, v0
        v_lshlrev_b32 v10, 3, v9
        v_lshl_add_u32 v12, v8, 4, v10
        v_add_u32 v13, 1024, v12
        v_mul_lo_u32 v10, v9, s{sHS}
        v_lshl_add_u32 v14, v8, 3, v10
        v_add_u32 v14, 1024, v14
        v_add_u32 v15, 256, v14""")
        for p in range(8):
            a(f"""s_add_u32 s{T4}, s{sPQ}, {p}
            s_mul_i32 s{T5}, s{T4}, 205
            s_lshr_b32 s{T5}, s{T5}, 10
            s_mul_i32 s{T6}, s{T5}, 5
            s_sub_u32 s{T4}, s{T4}, s{T6}
            s_lshl_b32 s{T5}, s{T5}, 1
            s_mul_i32 s{T5}, s{T5}, s{sHS}
            s_add_u32 s{T5}, s{T5}, s{sBASE}
            s_lshl_b32 s{T6}, s{T4}, 9
            s_add_u32 s{T5}, s{T5}, s{T6}
            s_sub_u32 s{T6}, s{sHS}, 1536
            s_cmp_ge_u32 s{T4}, 3
            s_cselect_b32 s{T6}, s{T6}, 0
            s_add_u32 s{sE+p}, s{T5}, s{T6}
            s_cmp_eq_u32 s{T4}, 2
            s_cselect_b64 s[{sM}:{sM+1}], -1, 0""")
            for j in range(2): a(f"v_cndmask_b32 v{self.EA+2*p+j}, v{12+j}, v{14+j}, s[{sM}:{sM+1}]")
    def gemm_epi_qk(self, i, j):
        a = self.a; L = []
        for g in range(4):
            d = 64 + 16 * (2*i + j) + 4*g
            for e in range(4): L.append(lambda d=d, e=e: a(f"v_mul_f32 v{d+e}, s{sSC}, v{d+e}"))
            L.append(lambda d=d: a(f"v_cvt_pk_bf16_f32 v{d}, v{d}, v{d+1}"))
            L.append(lambda d=d: a(f"v_cvt_pk_bf16_f32 v{d+1}, v{d+2}, v{d+3}"))
            L.append(lambda d=d, g=g: a.vm(f"buffer_store_dwordx2 {vr(d,2)}, v{self.EA+2*(4*i+g)+j}, s[{rWS}:{rWS+3}], s{sE+4*i+g} offen sc1"))
        return L
    def epi_v_setup(self):
        a = self.a
        a(f"""s_sub_u32 s{T0}, s{sJT}, 10
        s_lshl_b32 s{T0}, s{T0}, 7
        s_and_b32 s{T1}, s{sWAVE}, 2
        s_lshl_b32 s{T1}, s{T1}, 5
        s_add_u32 s{T0}, s{T0}, s{T1}
        s_lshl_b32 s{T1}, s{sRT}, 1
        s_and_b32 s{T2}, s{sWAVE}, 1
        s_add_u32 s{T1}, s{T1}, s{T2}
        s_mul_i32 s{T1}, s{T1}, {KV_US}
        s_add_u32 s{sE}, s{T1}, {KV + 2560}
        s_mov_b32 s{T2}, {KV_HS - 320}
        v_and_b32 v8, 31, v0
        v_lshrrev_b32 v9, 5, v0
        v_mul_u32_u24 v9, 320, v9""")
        for j in range(2):
            a(f"""v_add_u32 v10, s{T0}, v8
            v_add_u32 v10, {32*j}, v10
            v_mul_u32_u24 v11, 3277, v10
            v_lshrrev_b32 v11, 16, v11
            v_mul_lo_u32 v11, v11, s{T2}
            v_lshl_add_u32 v10, v10, 4, v9
            v_add_u32 v{self.EA+j}, v10, v11""")
    def gemm_epi_v(self, i, j):
        a = self.a; L = []
        for s in range(2):
            d = 64 + 16 * (2*i + j) + 8*s
            for e in range(4): L.append(lambda d=d, e=e: a(f"v_cvt_pk_bf16_f32 v{d+e}, v{d+2*e}, v{d+2*e+1}"))
            L.append(lambda d=d, s=s: a.vm(f"buffer_store_dwordx4 {vr(d,4)}, v{self.EA+j}, s[{rWS}:{rWS+3}], s{sE} offen offset:{(2*i+s)*640} sc1"))
        return L

    XS, WS_, PA, PB, PW, PS, HA, HL = 2, 6, 10, 11, 12, 13, 14, 15
    KR_, VV_, SW_, HD_, DV_, PO_ = 16, 176, 116, 132, 156, 160
    def dma_setup(self):
        a = self.a
        a(f"""v_lshrrev_b32 v16, 3, v0
        v_and_b32 v17, 7, v0
        v_lshrrev_b32 v18, 1, v16
        s_lshl_b32 s{T0}, s{sRT}, 7
        v_add_u32 v16, s{T0}, v16
        v_mul_u32_u24 v16, 1280, v16""")
        for n in range(4):
            a(f"""v_xor_b32 v19, {(4*n) & 7}, v18
            v_xor_b32 v19, v19, v17
            v_lshl_add_u32 v19, v19, 4, v16
            v_add_u32 v{self.XS+n}, {n*(8*1280-1024)}, v19""")
        a(f"""v_lshrrev_b32 v16, 4, v0
        v_and_b32 v17, 15, v0
        v_lshlrev_b32 v18, 2, v16
        v_xor_b32 v17, v17, v18
        v_mul_u32_u24 v16, 3840, v16
        v_lshl_add_u32 v16, v17, 4, v16
        s_lshl_b32 s{T0}, s{sJT}, 8
        v_add_u32 v{self.WS_}, s{T0}, v16""")
        for n in range(1, 4): a(f"v_add_u32 v{self.WS_+n}, {n*(4*3840-1024)}, v{self.WS_}")
        P = self.o("rot", 1)
        a(f"s_add_u32 s{T0}, s{sJT}, s{sRT}")
        if P == 1: a(f"s_mov_b32 s{sK}, 0")
        elif P == 2: a(f"s_and_b32 s{T0}, s{T0}, 1\ns_mul_i32 s{sK}, s{T0}, 5")
        elif P == 3: a(f"s_mul_i32 s{T1}, s{T0}, 43\ns_lshr_b32 s{T1}, s{T1}, 7\ns_mul_i32 s{T1}, s{T1}, 3\ns_sub_u32 s{T0}, s{T0}, s{T1}\ns_mul_i32 s{T0}, s{T0}, 7\ns_lshr_b32 s{sK}, s{T0}, 1")
        elif P == 4: a(f"s_and_b32 s{T0}, s{T0}, 3\ns_mul_i32 s{T0}, s{T0}, 5\ns_lshr_b32 s{sK}, s{T0}, 1")
    def stage_dma(self, s):
        a = self.a
        sl = (s % NSLOT) * 16384
        a(f"s_lshl_b32 s{T0}, s{sK}, 7\ns_mul_i32 s{T1}, s{sK}, {64*3840}")
        def ld(txt):
            if a.n["vm"] - a.done["vm"] >= 62: a.wait(Tok("vm", a.done["vm"] + 8))
            return a.vm(txt)
        for h in range(4):
            a(f"s_mov_b32 m0, {L_X + sl + 4096*h}")
            a(f"s_add_u32 s{T2}, s{T0}, {32*1280*h}")
            for n in range(4): ld(f"buffer_load_dwordx4 v{self.XS+n}, s[{rA}:{rA+3}], s{T2} offen offset:{1024*n}{self.gnt} lds")
            a(f"s_mov_b32 m0, {L_W + sl + 4096*h}")
            a(f"s_add_u32 s{T2}, s{T1}, {16*3840*h}")
            for n in range(4): t = ld(f"buffer_load_dwordx4 v{self.WS_+n}, s[{rB}:{rB+3}], s{T2} offen offset:{1024*n}{self.gnt} lds")
        a(f"s_add_u32 s{sK}, s{sK}, 1\ns_cmp_eq_u32 s{sK}, 10\ns_cselect_b32 s{sK}, 0, s{sK}")
        return t
    def conv_scalars(self):
        a = self.a
        a(f"""s_min_u32 s{T0}, s{sLW}, 2
        s_add_u32 s{sCH}, s{sCH0}, s{T0}
        s_min_u32 s{sCH}, s{sCH}, 639
        s_mul_i32 s{T0}, s{T0}, {CONV_SZ}
        s_add_u32 s{T6}, s{T0}, {L_CONV}
        s_lshl_b32 s{T1}, s{sCH}, 1
        v_mov_b32 v{self.DV_}, s{T1}
        s_lshl_b32 s{T1}, s{sCH}, 12
        v_lshl_add_u32 v{self.HA}, v0, 4, s{T1}
        v_lshl_add_u32 v{self.HL}, v0, 4, s{T6}""")
        self.srd(rD, pH, 640 * 4096)
        a(f"s_mov_b32 m0, s{T6}\ns_nop 0")
        if "h" not in self.o("ab", ""):
            for g in range(4): a.vm(f"buffer_load_dwordx4 v{self.HA}, s[{rD}:{rD+3}], 0 offen offset:{1024*g}{self.nt} lds")
        self.srd(rC, pD, 640 * 2)
        return a.vm(f"buffer_load_ushort v{self.DV_}, v{self.DV_}, s[{rC}:{rC+3}], 0 offen")
    def pre_setup(self):
        self.a(f"""s_and_b32 s{T0}, s{sU}, 63
        s_lshr_b32 s{T1}, s{sU}, 6
        s_lshl_b32 s{T5}, s{sWG}, 6
        s_add_u32 s{T5}, s{T5}, {F1:#x}
        s_lshl_b32 s{T0}, s{T0}, 5
        s_lshl_b32 s{T1}, s{T1}, 7
        v_lshrrev_b32 v16, 3, v0
        v_and_b32 v17, 7, v0
        v_lshl_add_u32 v16, v16, 2, s{T0}
        v_lshl_add_u32 v18, v17, 4, s{T1}
        v_mul_u32_u24 v19, 1280, v16
        v_add_u32 v{self.PB}, v19, v18
        v_subrev_u32 v{self.PA}, 3840, v{self.PB}
        v_lshlrev_b32 v{self.PW}, 2, v18
        v_lshlrev_b32 v18, 11, v18
        v_lshlrev_b32 v16, 1, v16
        v_sub_u32 v18, v18, v16
        v_add_u32 v{self.PS}, {UR + 4088:#x}, v18""")
    def pre_loads(self):
        a = self.a
        if "k" in self.o("ab", ""): return
        self.srd(rC, pK, 2048 * 1280); self.srd(rD, pV, 2048 * 1280); self.srd(rB, pSH, 640 * 8)
        for j in range(4): a(f"buffer_load_dwordx4 {vr(self.KR_+12+4*j,4)}, v{self.PB}, s[{rC}:{rC+3}], 0 offen offset:{1280*j}{self.nt}")
        for j in range(4): a(f"buffer_load_dwordx4 {vr(self.VV_+4*j,4)}, v{self.PB}, s[{rD}:{rD+3}], 0 offen offset:{1280*j}{self.nt}")
        for j in range(3): a(f"buffer_load_dwordx4 {vr(self.KR_+4*j,4)}, v{self.PA}, s[{rC}:{rC+3}], 0 offen offset:{1280*j}{self.nt}")
        for j in range(4): a(f"buffer_load_dwordx4 {vr(self.SW_+4*j,4)}, v{self.PW}, s[{rB}:{rB+3}], 0 offen offset:{16*j}")
    def h_loads(self, D):
        a = self.a
        if "h" in self.o("ab", ""): return
        for g in range(4):
            a.vm(f"buffer_load_dwordx4 {vr(D+6*g,4)}, v{self.HA}, s[{rD}:{rD+3}], 0 offen offset:{1024*g}{self.nt}")
            a.vm(f"buffer_load_dwordx2 {vr(D+6*g+4,2)}, v{self.HA}, s[{rD}:{rD+3}], 0 offen offset:{1024*g+16}{self.nt}")
    def bar(self):
        a = self.a; L = a.newlabel("NB")
        a(f"s_cmp_ge_u32 s{sBC}, s{sNB}\ns_cbranch_scc1 {L}\ns_barrier\ns_add_u32 s{sBC}, s{sBC}, 1")
        a.label(L)
    def bar_rest(self):
        a = self.a; L, D = a.newlabel("BR"), a.newlabel("BRD")
        a.label(L)
        a(f"s_cmp_ge_u32 s{sBC}, s{sNB}\ns_cbranch_scc1 {D}\ns_barrier\ns_add_u32 s{sBC}, s{sBC}, 1\ns_branch {L}")
        a.label(D)
    def ewait(self):
        a = self.a; L, D = a.newlabel("EW"), a.newlabel("EWD")
        a.label(L)
        a(f"""s_getreg_b32 s{T0}, hwreg(HW_REG_IB_STS)
        s_and_b32 s{T0}, s{T0}, 0x00c0000f
        s_cbranch_scc0 {D}
        s_cmp_ge_u32 s{sBC}, s{sNB}
        s_cbranch_scc1 {D}
        s_barrier
        s_add_u32 s{sBC}, s{sBC}, 1
        s_branch {L}""")
        a.label(D)
        a("s_waitcnt vmcnt(0)")
    def epoll(self, loads, tmp, cmp=None):
        a = self.a
        L, D = a.newlabel("EP"), a.newlabel("EPD")
        a(f"s_mov_b32 s{sCNT}, 0")
        a.label(L)
        k = 0
        for (va, r, imm, wd) in loads:
            ins = {1: "buffer_load_dword", 2: "buffer_load_dwordx2", 4: "buffer_load_dwordx4"}[wd]
            a(f"{ins} {vr(tmp+k, wd)}, v{va}, s[{r}:{r+3}], 0 offen offset:{imm} sc1"); k += wd
        self.ewait()
        self.poll_check(tmp, k, cmp)
        a(f"s_cbranch_scc1 {D}")
        a(f"s_add_u32 s{sCNT}, s{sCNT}, 1\ns_cmp_lt_u32 s{sCNT}, {POLL_MAX}\ns_cbranch_scc0 {D}\ns_sleep 1\ns_branch {L}")
        a.label(D)
    def pre_compute_list(self):
        L = []
        K, V, W, AC = 76, 90, 98, 106
        lo = lambda d, s: L.append(f"v_lshlrev_b32 v{d}, 16, v{s}")
        hi = lambda d, s: L.append(f"v_and_b32 v{d}, 0xffff0000, v{s}")
        for p in range(4):
            for j in range(7): lo(K+2*j, self.KR_+4*j+p); hi(K+2*j+1, self.KR_+4*j+p)
            for j in range(4): lo(V+2*j, self.VV_+4*j+p); hi(V+2*j+1, self.VV_+4*j+p)
            w = self.SW_ + 4*p
            lo(W, w); lo(W+1, w+2); hi(W+2, w); hi(W+3, w+2); lo(W+4, w+1); lo(W+5, w+3); hi(W+6, w+1); hi(W+7, w+3)
            for lag in (3, 2, 1, 0):
                for t in range(4):
                    kk = K + 2*(3 + t - lag)
                    if self.o("pk", 1):
                        if lag == 3: L.append(f"v_pk_mul_f32 {vr(AC+2*t,2)}, {vr(kk,2)}, {vr(W+2*lag,2)}")
                        else: L.append(f"v_pk_fma_f32 {vr(AC+2*t,2)}, {vr(kk,2)}, {vr(W+2*lag,2)}, {vr(AC+2*t,2)}")
                    else:
                        for h in range(2):
                            if lag == 3: L.append(f"v_mul_f32 v{AC+2*t+h}, v{kk+h}, v{W+2*lag+h}")
                            else: L.append(f"v_fmac_f32 v{AC+2*t+h}, v{kk+h}, v{W+2*lag+h}")
            for t in range(4):
                if self.o("pk", 1): L.append(f"v_pk_mul_f32 {vr(AC+2*t,2)}, {vr(AC+2*t,2)}, {vr(V+2*t,2)}")
                else:
                    for h in range(2): L.append(f"v_mul_f32 v{AC+2*t+h}, v{AC+2*t+h}, v{V+2*t+h}")
            for h in range(2):
                o = self.PO_ + 4*p + 2*h
                L.append(f"v_cvt_pk_bf16_f32 v{o}, v{AC+6+h}, v{AC+4+h}"); L.append(f"v_cvt_pk_bf16_f32 v{o+1}, v{AC+2+h}, v{AC+h}")
        return L
    def pre_stores(self):
        a = self.a
        if "s" in self.o("ab", ""): return
        if not self.o("st4", 1):
            for e in range(8):
                a(f"s_mov_b32 s{T0}, {4096*e}")
                a(f"buffer_store_dwordx2 {vr(self.PO_+2*e,2)}, v{self.PS}, s[{rWS}:{rWS+3}], s{T0} offen sc1")
            return
        for e in range(8): a(f"ds_write_b64 v{(self.PA, self.PW)[e & 1]}, {vr(self.PO_+2*e,2)} offset:{64*(e & 6)}")
        for k in range(1, 4): a(f"v_xor_b32 v{76+k}, {32*k}, v{self.PB}")
        a("s_waitcnt lgkmcnt(0)")
        for k in range(4): a(f"ds_read_b128 {vr(self.PO_+4*k,4)}, v{76+k if k else self.PB} offset:{1024*k}")
        for k in range(4):
            a(f"s_mov_b32 s{T0}, {65536*k}\ns_waitcnt lgkmcnt({3-k})")
            a(f"buffer_store_dwordx4 {vr(self.PO_+4*k,4)}, v{self.PS}, s[{rWS}:{rWS+3}], s{T0} offen sc1")
    def pre_store_setup(self):
        if not self.o("st4", 1): return
        assert (L_CONV + CONV_SZ + 2*CS) % 128 == 0 and CONV_SZ % 128 == 0 and (L_CONV + U_OFF) % 128 == 0
        self.a(f"""s_mul_i32 s{T0}, s{sLW}, {CONV_SZ}
        s_add_u32 s{T0}, s{T0}, {L_CONV + 2*CS}
        s_cmp_eq_u32 s{sWAVE}, 7
        s_cselect_b32 s{T0}, {L_CONV + U_OFF}, s{T0}
        v_and_b32 v76, 7, v0
        v_lshrrev_b32 v77, 3, v0
        v_sub_u32 v77, 7, v77
        v_lshrrev_b32 v78, 1, v77
        v_xor_b32 v78, v78, v76
        v_lshlrev_b32 v78, 4, v78
        v_and_b32 v77, 1, v77
        v_lshl_add_u32 v78, v77, 3, v78
        v_lshl_add_u32 v78, v76, 9, v78
        v_add_u32 v{self.PA}, s{T0}, v78
        v_xor_b32 v{self.PW}, 64, v{self.PA}
        v_lshrrev_b32 v76, 5, v0
        v_and_b32 v77, 31, v0
        v_xor_b32 v77, v77, v76
        v_lshlrev_b32 v77, 4, v77
        v_lshl_add_u32 v76, v76, 9, v77
        v_add_u32 v{self.PB}, s{T0}, v76
        s_lshr_b32 s{T1}, s{sU}, 6
        s_lshl_b32 s{T1}, s{T1}, 18
        s_and_b32 s{T0}, s{sU}, 63
        s_lshl_b32 s{T0}, s{T0}, 6
        s_sub_u32 s{T1}, s{T1}, s{T0}
        s_add_u32 s{T1}, s{T1}, {UR + 4032:#x}
        v_lshrrev_b32 v76, 2, v0
        v_lshlrev_b32 v76, 12, v76
        v_and_b32 v77, 3, v0
        v_lshl_add_u32 v76, v77, 4, v76
        v_add_u32 v{self.PS}, s{T1}, v76""")
    def h_group(self, D, imm, t0):
        a = self.a
        t1, t2 = t0 + 4, t0 + 8
        for e in range(4): a(f"v_alignbit_b32 v{t0+e}, v{D+e+1}, v{D+e}, 16")
        for e in range(4): a(f"v_mov_b32 v{t1+e}, v{D+e+1}")
        for e in range(4): a(f"v_alignbit_b32 v{t2+e}, v{D+e+2}, v{D+e+1}, 16")
        for r, src in enumerate((t0, t1, t2, D + 2)):
            a(f"ds_write_b128 v{self.HL}, {vr(src,4)} offset:{r*CS + imm}")
    def h_to_lds(self, HD, off):
        a = self.a
        a(f"v_readlane_b32 s{T1}, v{HD}, 0\nv_readlane_b32 s{T2}, v{HD+1}, 0")
        for g in range(4):
            self.h_group(HD + 6*g, off + 32 + 1024*g, 64 + 12*g)
        D = 112
        for e in range(6): a(f"v_mov_b32 v{D+e}, 0")
        a("s_mov_b32 exec_hi, 0")
        a(f"ds_write_b128 v{self.HL}, {vr(D,4)} offset:{off + U_OFF + 4096}")
        a(f"v_writelane_b32 v{D+4}, s{T1}, 1\nv_writelane_b32 v{D+5}, s{T2}, 1\ns_mov_b64 exec, 3")
        self.h_group(D, off, 120)
        a("s_mov_b64 exec, -1")

    def dma_role(self):
        a = self.a
        a.reset_counters()
        fine = self.o("fine", 0)
        self.dma_setup()
        a("s_waitcnt lgkmcnt(0)")
        self.srd(rA, pX, 2048 * 1280); self.srd(rB, pW, 640 * 3840)
        a(f"s_cmp_ge_u32 s{sI}, 30\ns_cbranch_scc1 L_D_SKIP")
        S = {0: self.stage_dma(0)}
        if self.o("s1early", 0): S[1] = self.stage_dma(1)
        a.label("L_D_SKIP")
        if self.stamps: a("v_mov_b32 v1, 0")
        self.stamp("start")
        self.srd(rWS, pWS, WS_SIZE)
        self.common_scalars()
        self.persistent()
        a(f"s_cmp_ge_u32 s{sI}, 30\ns_cbranch_scc1 L_D_NT")
        if self.o("dprio", 0): a(f"s_setprio {self.o('dprio', 0)}")
        if not self.o("s1early", 0): S[1] = self.stage_dma(1)
        if self.o("hat", 0) == 0: self.conv_scalars()
        for s in range(10):
            a.wait(S[s])
            if fine: self.stamp(f"l.w{s}")
            a("s_barrier")
            if fine or s in (0, 5, 9): self.stamp(f"l.b{s}")
            if s + 2 <= 9:
                S[s+2] = self.stage_dma(s + 2)
                if fine: self.stamp(f"l.i{s}")
            if s == {1: 3, 2: 9}.get(self.o("hat", 0), -1): self.conv_scalars()
        a("s_barrier")
        a.label("L_CONV")
        self.conv()
    def side_role(self):
        a = self.a
        a.label("L_SIDE")
        a.reset_counters()
        a(f"""s_cmp_eq_u32 s{sWAVE}, 7
        s_cselect_b32 s{T0}, 1, 0
        s_cmp_eq_u32 s{sWAVE}, 6
        s_cselect_b32 s{T0}, 2, s{T0}
        s_add_u32 s{sU}, s{sCH0}, s{T0}
        s_cmp_ge_u32 s{T0}, s{sNCH}
        s_cbranch_scc1 L_IDLE""")
        slate = self.o("slate", 0)
        if slate:
            self.common_scalars()
            self.persistent()
        self.pre_setup()
        a("s_waitcnt lgkmcnt(0)")
        if slate > 1: a(f"s_sleep {slate}")
        self.pre_loads()
        if self.o("hat", 0) == 0:
            L7 = a.newlabel("H7")
            a(f"s_cmp_eq_u32 s{sWAVE}, 7\ns_cbranch_scc1 {L7}")
            self.conv_scalars()
            a.label(L7)
        if self.stamps: a("v_mov_b32 v1, 0")
        self.stamp("start")
        self.srd(rWS, pWS, WS_SIZE)
        if not slate:
            self.common_scalars()
            self.persistent()
        a(f"""v_mov_b32 v44, {L_SIG}
        v_mov_b32 v46, 0
        v_mov_b32 v47, 0
        ds_write_b64 v44, v[46:47]
        ds_write_b64 v44, v[46:47] offset:8
        v_and_b32 v46, 1, v0
        v_lshlrev_b32 v46, 7, v46
        s_waitcnt lgkmcnt(0)""")
        self.pre_store_setup()
        self.bar()
        self.ewait()
        self.stamp("s.kv")
        if self.o("sprio", 0): a(f"s_setprio {self.o('sprio', 0)}")
        PC = self.pre_compute_list()
        nch = self.o("nchunk", 2)
        per = -(-len(PC) // nch)
        for c in range(nch):
            for l in (PC[c*per:(c+1)*per] if "v" not in self.o("ab", "") else []): a(l)
            if c < nch - 1 or self.o("barst", 1): self.bar()
        self.pre_stores()
        if self.o("hat", 0) == 1:
            L7 = a.newlabel("H7")
            a(f"s_cmp_eq_u32 s{sWAVE}, 7\ns_cbranch_scc1 {L7}")
            self.conv_scalars()
            a.label(L7)
        self.srd(rC, pDBG, 256)
        a(f"buffer_load_dword v47, v46, s[{rC}:{rC+3}], 0 offen sc1")
        self.stamp("s.st")
        self.ewait()
        self.last_flag(8, f"s{sNCH}", T5, 114)
        self.stamp("s.F1set")
        a(f"s_cmp_eq_u32 s{sWAVE}, 7\ns_cbranch_scc1 L_FETCH")
        if self.o("hat", 0) == 2:
            LG, LD = a.newlabel("SG"), a.newlabel("SGD")
            a.label(LG)
            a(f"s_cmp_ge_u32 s{sBC}, 10\ns_cbranch_scc1 {LD}\ns_cmp_ge_u32 s{sBC}, s{sNB}\ns_cbranch_scc1 {LD}\ns_barrier\ns_add_u32 s{sBC}, s{sBC}, 1\ns_branch {LG}")
            a.label(LD)
            self.conv_scalars()
        self.bar_rest()
        a("s_branch L_CONV")
        a.label("L_D_NT")
        self.conv_scalars()
        a("s_barrier\ns_branch L_CONV")
        a.label("L_IDLE")
        a("s_waitcnt lgkmcnt(0)")
        if self.stamps: a("v_mov_b32 v1, 0")
        self.stamp("start")
        self.srd(rWS, pWS, WS_SIZE)
        self.common_scalars()
        self.persistent()
        for l in self.att_init_list(): a(l)
        self.bar_rest()
        a("s_branch L_ATT")
        self.fetcher()

    def fetcher(self):
        a = self.a
        a.label("L_FETCH")
        a.reset_counters()
        OK = a.newlabel("CNTOK")
        a("s_setprio 0")
        self.poll_check(47, 1, cmp="v_cmp_le_u32 vcc, 0x80, v47")
        a(f"s_cbranch_scc1 {OK}")
        self.epoll([(46, rC, 0, 1)], 47, cmp="v_cmp_le_u32 vcc, 0x80, v47")
        a.label(OK)
        a(f"""s_andn2_b32 s{T1}, s{sCH0}, 63
        s_add_u32 s{T2}, s{sCH0}, s{sNCH}
        s_sub_u32 s{T2}, s{T2}, 1
        s_or_b32 s{T2}, s{T2}, 63""")
        for r in (T1, T2):
            a(f"""s_mul_i32 s{T3}, s{r}, 13108
            s_lshr_b32 s{T3}, s{T3}, 16
            s_mul_i32 s{T4}, s{T3}, 5
            s_sub_u32 s{T4}, s{r}, s{T4}
            s_lshl_b32 s{T3}, s{T3}, 1
            s_cmp_ge_u32 s{T4}, 3
            s_addc_u32 s{r}, s{T3}, 0""")
        a(f"""v_add_u32 v9, s{T1}, v0
        v_min_u32 v9, s{T2}, v9
        v_lshlrev_b32 v9, 6, v9
        v_add_u32 v9, {F1:#x}, v9""")
        if self.o("pgate", 9):
            LG, LD = a.newlabel("PG"), a.newlabel("PGD")
            a.label(LG)
            a(f"s_cmp_ge_u32 s{sBC}, {self.o('pgate', 9)}\ns_cbranch_scc1 {LD}\ns_cmp_ge_u32 s{sBC}, s{sNB}\ns_cbranch_scc1 {LD}\ns_barrier\ns_add_u32 s{sBC}, s{sBC}, 1\ns_branch {LG}")
            a.label(LD)
        if "p" not in self.o("ab", ""): self.mpoll([9], 16, elastic=True)
        self.stamp("f.F1ok")
        a(f"s_lshl_b32 s{T2}, s{sCH0}, 12\ns_add_u32 s{T2}, s{T2}, {UR:#x}")
        for c in range(3 if "u" not in self.o("ab", "") else 0):
            L = a.newlabel("NOU")
            if c == 2: a(f"s_cmp_lt_u32 s{sNCH}, 3\ns_cbranch_scc1 {L}")
            a(f"s_mov_b32 m0, {L_CONV + c*CONV_SZ + U_OFF}\ns_add_u32 s{T1}, s{T2}, {4096*c}")
            for j in range(4): a(f"buffer_load_dwordx4 v{L16}, s[{rWS}:{rWS+3}], s{T1} offen offset:{1024*j} sc1 lds")
            if c == 2: a.label(L)
        a("v_mov_b32 v45, 1")
        self.ewait()
        a("ds_write_b32 v44, v45")
        self.stamp("f.u")
        self.bar_rest()
        for l in self.att_init_list(): a(l)
        a("s_branch L_ATT")
    def kv_fetch(self):
        a = self.a
        a.reset_counters()
        OK = a.newlabel("CNTOK")
        self.poll_check(29, 1, cmp="v_cmp_le_u32 vcc, 0x80, v29")
        a(f"s_cbranch_scc1 {OK}")
        self.poll([(28, rC, 0, 1)], 29, cmp="v_cmp_le_u32 vcc, 0x80, v29")
        a.label(OK)
        self.mpoll([30, 31], 16)
        self.stamp("f.F2ok")
        a(f"""s_mul_i32 s{T0}, s{sHEAD}, {Q_HS}
        s_mul_i32 s{T1}, s{sQB}, {4*Q_US}
        s_add_u32 s{T0}, s{T0}, s{T1}
        s_add_u32 s{T0}, s{T0}, {QO:#x}""")
        def lin(sbase, lds0, n):
            for k in range(n):
                if k % 4 == 0: a(f"s_mov_b32 m0, {lds0 + 1024*k}\ns_add_u32 s{T1}, s{sbase}, {1024*k}")
                a.vm(f"buffer_load_dwordx4 v{L16}, s[{rWS}:{rWS+3}], s{T1} offen offset:{1024*(k%4)} sc1 lds")
        lin(T0, L_Q, 10)
        lin(sKVB, 0, 40)
        a(f"v_mov_b32 v16, {L_SIG}\nv_mov_b32 v17, 1")
        a.wait_all()
        a("ds_write_b32 v16, v17 offset:4")
        self.stamp("f.kv0")
    def kv_fetch_setup(self):
        a = self.a
        self.srd(rC, pDBG, 256)
        a(f"""s_mul_i32 s{T0}, s{sHEAD}, 20
        v_and_b32 v28, 15, v0
        v_lshrrev_b32 v30, 4, v0
        v_and_b32 v31, 1, v30
        v_mul_u32_u24 v31, 19, v31
        v_add_u32 v31, s{T0}, v31
        v_lshrrev_b32 v31, 7, v31
        v_lshrrev_b32 v30, 1, v30
        v_mul_u32_u24 v30, 5, v30
        v_add3_u32 v30, v30, v31, 5
        v_lshl_add_u32 v30, v30, 4, v28
        v_lshlrev_b32 v30, 6, v30
        v_add_u32 v30, {F2:#x}, v30
        v_lshl_add_u32 v31, v31, 4, s{sQB}
        v_add_u32 v31, s{sQB}, v31
        v_and_b32 v28, 1, v0
        v_add_u32 v31, v31, v28
        v_lshlrev_b32 v31, 6, v31
        v_add_u32 v31, {F2:#x}, v31
        v_lshlrev_b32 v28, 7, v28""")

    def sig_wait(self, off):
        a = self.a
        L, D = a.newlabel("SIG"), a.newlabel("SIGD")
        a(f"v_mov_b32 v14, {L_SIG}\ns_mov_b32 s{sCNT}, 0")
        a.label(L)
        a(f"""ds_read_b32 v15, v14 offset:{off}
        s_waitcnt lgkmcnt(0)
        v_readfirstlane_b32 s{T0}, v15
        s_add_u32 s{sCNT}, s{sCNT}, 1
        s_cmp_lg_u32 s{T0}, 0
        s_cbranch_scc1 {D}
        s_sleep 1
        s_cmp_lt_u32 s{sCNT}, {POLL_MAX*40}
        s_cbranch_scc1 {L}""")
        a.label(D)
    def conv(self):
        a = self.a
        a.reset_counters()
        ACC, FR = 16, 64
        HA, UB, UE, YS, DV = 2, 3, 4, 5, self.DV_
        a(f"s_waitcnt vmcnt(0)\ns_setprio {self.o('hprio', 0)}")
        for g in range(4):
            a(f"ds_read_b128 {vr(self.HD_+6*g,4)}, v{self.HL} offset:{1024*g}")
            a(f"ds_read_b64 {vr(self.HD_+6*g+4,2)}, v{self.HL} offset:{1024*g+16}")
        a("s_waitcnt lgkmcnt(0)")
        self.h_to_lds(self.HD_, 0)
        a(f"""v_lshrrev_b32 v8, 4, v0
        s_lshl_b32 s{T0}, s{sCH}, 12
        v_lshrrev_b32 v9, 2, v0
        v_and_b32 v9, 3, v9
        v_mul_u32_u24 v9, {CS}, v9
        v_lshl_add_u32 v9, v8, 4, v9
        v_and_b32 v10, 3, v0
        v_lshl_add_u32 v9, v10, 3, v9
        v_add_u32 v{HA}, s{T6}, v9
        v_and_b32 v9, 15, v0
        v_lshlrev_b32 v9, 5, v9
        v_lshlrev_b32 v10, 4, v8
        v_sub_u32 v10, v10, v9
        v_add_u32 v10, s{T6}, v10
        v_add_u32 v{UB}, {U_OFF + 480}, v10
        v_lshl_add_u32 v9, v8, 3, v9
        v_sub_u32 v10, s{T6}, v9
        v_add_u32 v{UE}, {U_OFF + 504}, v10
        s_add_u32 s{T0}, s{T0}, {YD:#x}
        v_add_u32 v{YS}, s{T0}, v9
        v_lshlrev_b32 v7, 16, v{DV}""")
        self.stamp("v.h")
        self.sig_wait(0)
        a(f"s_setprio {self.o('cprio', 3)}")
        a.reset_counters()
        def reads(rho):
            st = FR + 64 * (rho & 1)
            ra = lambda i, q: (lambda: a.ds(f"ds_read_b64_tr_b16 {vr(st+4*i+2*q,2)}, v{HA} offset:{64*(8*i+rho) + 8*q}"))
            rb = lambda d: (lambda: a.ds(f"ds_read_b128 {vr(st+32+4*d,4)}, v{UB} offset:{64*(56 - (8*d - rho))}"))
            L = [("A0", ra(0,0)), ("A0", ra(0,1))] + [(f"B{d}", rb(d)) for d in range(8)]
            for i in range(1, 8): L += [(f"A{i}", ra(i,0)), (f"A{i}", ra(i,1))]
            return L
        toks = {}
        for n, f in reads(0): toks[n] = f()
        self.stamp("v.u")
        init = self.att_init_list()
        for rho in range(8):
            st = FR + 64 * (rho & 1)
            nxt = reads(rho + 1) if rho < 7 else []
            out = {}; k = 0; m = 0
            for i in range(8):
                for c in range(i, 8):
                    a.wait(toks[f"A{i}"], toks[f"B{c-i}"])
                    d = ACC + 4 * c
                    a(f"v_mfma_f32_16x16x32_bf16 {vr(d,4)}, {vr(st+4*i,4)}, {vr(st+32+4*(c-i),4)}, {'0' if (rho == 0 and i == 0) else vr(d,4)}")
                    m += 1
                    if m >= 4 and k < len(nxt): out[nxt[k][0]] = nxt[k][1](); k += 1
                    elif m >= 28 and init: a(init.pop())
            assert k == len(nxt)
            toks = out
        assert not init
        self.stamp("v.mfma")
        tu = [a.ds(f"ds_read_b64 {vr(FR+2*c,2)}, v{UE} offset:{512*(7-c)}") for c in range(8)]
        for c in range(8):
            a.wait(tu[c])
            d, u, t = ACC + 4*c, FR + 2*c, FR + 32 + 8*(c & 3)
            a(f"""v_and_b32 v{t}, 0xffff0000, v{u+1}
            v_lshlrev_b32 v{t+1}, 16, v{u+1}
            v_and_b32 v{t+2}, 0xffff0000, v{u}
            v_lshlrev_b32 v{t+3}, 16, v{u}""")
            for e in range(4): a(f"v_fmac_f32 v{d+e}, v7, v{t+e}")
            a(f"v_cvt_pk_bf16_f32 v{t+4}, v{d}, v{d+1}\nv_cvt_pk_bf16_f32 v{t+5}, v{d+2}, v{d+3}")
            a.vm(f"buffer_store_dwordx2 {vr(t+4,2)}, v{YS}, s[{rWS}:{rWS+3}], 0 offen offset:{512*c} sc1")
        self.stamp("v.st")

    def m2b(self, S, j=1): self.a(f"v_mfma_f32_32x32x4_2b_bf16 {vr(S,32)}, {vr(KRM,2)}, {vr((QR2, QR)[j],2)}, 0")
    def mqk(self, S, h, j=1): self.a(f"v_mfma_f32_32x32x16_bf16 {vr(S+16*h,16)}, {vr(KM+4*h,4)}, {vr((QM2, QM)[j],4)}, {vr(S+16*h,16)}")
    def smf(self, V, P, j=1): self.a(f"v_smfmac_f32_32x32x32_bf16 {vr((O2, O_)[j],16)}, {vr(V,4)}, {vr(P,8)}, v{IDX}")
    def side_kv(self, add):
        a = self.a
        def mk(j):
            def f():
                if j == 0: a(f"s_add_u32 m0, s{sKVW}, {add*KV_US}\ns_add_u32 s{T5}, s{sKVG}, {add*KV_US}")
                if j == 4: a(f"s_add_u32 m0, m0, 4096\ns_add_u32 s{T5}, s{T5}, 4096")
                a.vm(f"buffer_load_dwordx4 v{L16}, s[{rWS}:{rWS+3}], s{T5} offen offset:{1024*(j%4)} sc1 lds")
            return f
        return [mk(j) for j in range(5)]
    def side_wo(self):
        a = self.a
        def mk(k):
            def f():
                L = a.newlabel("NOWO")
                if k == 0: a(f"s_mul_i32 s{T4}, s{sWAVE}, {13*1024}\ns_add_u32 m0, s{T4}, {L_WO}")
                else: a("s_add_u32 m0, m0, 1024")
                if k % 5 == 0: a(f"s_mov_b32 s{T5}, {40960*(k//5)}")
                elif k < 9: a("s_nop 0")
                if k >= 9: a(f"s_cmp_eq_u32 s{sWAVE}, 7\ns_cbranch_scc1 {L}")
                a.vm(f"buffer_load_dwordx4 v{WOV + k%5}, s[{rA}:{rA+3}], s{T5} offen lds")
                if k >= 9: a.label(L)
            return f
        return [mk(k) for k in range(13)]
    def side_yd(self):
        a = self.a
        def f0():
            OK = a.newlabel("F3OK")
            a.wait(self.tF3)
            self.poll_check(F3T, 2)
            a(f"s_cbranch_scc1 {OK}")
            snap = a.snapshot(); self.poll([(AF3, rWS, 0, 2)], F3T); a.restore(snap)
            a.label(OK)
            a(f"s_mul_i32 s{T5}, s{sWAVE}, 1280\ns_add_u32 m0, s{T5}, {L_YD}\ns_mov_b32 s{T5}, {8*4096 - 1024}")
            a.vm(f"buffer_load_dwordx4 v{YDV}, s[{rWS}:{rWS+3}], 0 offen sc1 lds")
            a("s_mov_b64 exec, 0xffff")
            a.vm(f"buffer_load_dwordx4 v{YDV}, s[{rWS}:{rWS+3}], s{T5} offen offset:1024 sc1 lds")
            a("s_mov_b64 exec, -1")
        return [f0]
    def side_x(self):
        a = self.a
        def mk(j):
            def f():
                if j == 0: self.srd(rA, pX, 2048 * 1280)
                a.vm(f"buffer_load_dwordx2 {vr(XE+2*j,2)}, v{AOUT}, s[{rA}:{rA+3}], 0 offen offset:{32*j}")
            return f
        def f3(): self.tF3 = a.vm(f"buffer_load_dwordx2 {vr(F3T,2)}, v{AF3}, s[{rWS}:{rWS+3}], 0 offen sc1")
        return [mk(j) for j in range(3)] + [f3]
    def attention(self):
        a = self.a
        a.label("L_ATT")
        a.reset_counters()
        for e in range(16): a(f"v_mov_b32 v{O2+e}, 0")
        self.sig_wait(4)
        self.stamp("att0")
        US2 = 2 * KV_US
        base = {"K": 0, "V": 0}
        def bump(kind, u):
            while u * US2 - base[kind] > 5 * US2:
                base[kind] += 6 * US2
                for r in ((AKM, AKR) if kind == "K" else (AV,)): a(f"v_add_u32 v{r}, {6*US2}, v{r}")
            return u * US2 - base[kind]
        def rKR(u): o = bump("K", u); return a.ds(f"ds_read_b64 {vr(KRM,2)}, v{AKR} offset:{o}")
        def rKM(u, h): o = bump("K", u); return a.ds(f"ds_read_b128 {vr(KM+4*h,4)}, v{AKM} offset:{o + 1024*h}")
        def rV(u):
            o = bump("V", u)
            a(f"s_mov_b64 exec, s[{sVMASK}:{sVMASK+1}]")
            for g in range(4): t = a.ds(f"ds_read_b128 {vr(VS[u&1]+4*g,4)}, v{AV} offset:{o + 640*g}")
            a("s_mov_b64 exec, -1")
            return t
        tq = [a.ds(f"ds_read_b64 {vr(QR2,2)}, v{AQR2} offset:2048")]
        tKR = rKR(0)
        tq.append(a.ds(f"ds_read_b128 {vr(QM2,4)}, v{AQM2}"))
        tK0 = rKM(0, 0); tK1 = rKM(0, 1)
        tq.append(a.ds(f"ds_read_b64 {vr(QR,2)}, v{AQR} offset:2048"))
        tq.append(a.ds(f"ds_read_b128 {vr(QM,4)}, v{AQM}"))
        tV = {0: rV(0)}
        side = self.side_kv(8)
        a.wait(tq[0], tKR); self.m2b(S_, 0)
        for _ in range(4): side.pop(0)()
        a.nop(12)
        a.wait(tq[1], tK0); self.mqk(S_, 0, 0)
        a.wait(tK1); self.mqk(S_, 1, 0)
        side.pop(0)()
        a.nop(8)
        zones = {0: self.o("z0", "3,5"), 6: self.o("z1", "3,5,7"), 14: self.o("z1", "3,5,7"), 22: self.o("z3", "3,5,7"), 30: self.o("z4", "1")}
        prio = {}
        if self.o("prio", 1):
            for u0, z in zones.items():
                zz = [int(x) for x in z.split(",")]
                prio[u0] = len(zz)
                for k, d in enumerate(zz): prio[u0 + d] = len(zz) - 1 - k
        for t in range(32):
            if t % 8 == 6 and t < 30:
                assert not side
                side = self.att_sync(t // 8)
            if t == 30: a("s_barrier")
            if t in prio: a(f"s_setprio {prio[t]}")
            u, j = t >> 1, t & 1
            X, Y = S_ + 32 * j, S_ + 32 * (1 - j)
            Vc, Vp = VS[u & 1], VS[((t - 1) >> 1) & 1]
            nx = t < 31
            rl = j == 0 and u < 15
            for p in range(32):
                if p == 2:
                    if t == 0: a.wait(tq[2])
                    if j == 1 and nx: a.wait(tKR)
                    if t > 0: self.smf(Vp + 12, Y + 24, 1 - j)
                    if rl: tV[u+1] = rV(u + 1)
                if p == 6 and nx:
                    self.m2b(Y, 1 - j)
                    if rl: tKR = rKR(u + 1)
                if p in (10, 20) and side: side.pop(0)()
                if t == 31 and p in (16, 20, 24): a.ds(f"ds_write_b128 v{AEX}, {vr(O2+(p-16),4)} offset:{256*(p-16)}")
                if t == 31 and p == 28: a.ds(f"ds_write_b32 v{AEX}, v{O2+12} offset:3072")
                if p == 14: a.wait(tV[u]); self.smf(Vc, X, j)
                if p == 18: self.smf(Vc + 4, X + 8, j)
                if p == 22 and nx:
                    a.wait(tK0, tK1, tq[3]); self.mqk(Y, 0, 1 - j)
                    if rl: tK0 = rKM(u + 1, 0)
                if p == 26: self.smf(Vc + 8, X + 16, j)
                if p == 30 and nx:
                    self.mqk(Y, 1, 1 - j)
                    if rl: tK1 = rKM(u + 1, 1)
                a(f"v_exp_f32 v{X+p}, v{X+p}")
        assert not side
        a.nop(2)
        self.smf(VS[1] + 12, S_ + 32 + 24, 1)
        self.stamp("attend")
        a("s_setprio 0")
        a.wait_all(vm=False)
        a("s_barrier")
        tl = a.ds(f"ds_read_b32 v{O2+12}, v{APX} offset:3072")
        tp = [a.ds(f"ds_read_b128 {vr(O2+4*k,4)}, v{APX} offset:{1024*k}") for k in range(3)]
        self.fin_pre()
        a.nop(1)
        a.wait(tl); a(f"v_add_f32 v{O_+12}, v{O_+12}, v{O2+12}")
        for k in range(3):
            a.wait(tp[k])
            for e in range(4): a(f"v_add_f32 v{O_+4*k+e}, v{O_+4*k+e}, v{O2+4*k+e}")
    def att_sync(self, k):
        a = self.a
        if k == 0:
            a.wait_all(vm=True, ds=False, force=True)
            L = a.newlabel("NOF3")
            a(f"s_cmp_ge_u32 s{sLW}, s{sNCH}\ns_cbranch_scc1 {L}")
            a(f"s_lshl_b32 s{T0}, s{sCH}, 2\ns_add_u32 s{T0}, s{T0}, {F3:#x}")
            self.flag_store(T0, 14)
            a.label(L)
            a("s_barrier")
            self.stamp("sync0")
            return self.side_kv(16) + self.side_kv(24)
        if k == 1:
            a.wait_all(vm=True, ds=False, force=True)
            a("s_barrier")
            self.stamp("sync1")
            return self.side_x()
        a("s_barrier")
        self.stamp("sync2")
        self.srd(rA, pWO, 640 * 1280)
        return self.side_yd() + self.side_wo()

    def fin_pre(self):
        self.a(f"""v_lshlrev_b32 v2, 3, v0
        s_mov_b32 s{T2}, {f2u(2.0**-60):#x}
        s_mov_b32 s{T3}, {f2u(2.0**60):#x}
        s_mov_b32 s{T4}, 0x7f7fffff""")
    def finish(self):
        a = self.a
        O, TMP = O_, 16
        ACC, OF, WF, G = 224, 16, 56, 14
        a.label("L_NORM")
        a(f"v_rcp_f32 v{TMP+4}, v{O+12}")
        for e in range(4): a(f"v_add_f32 v{TMP+e}, abs(v{O+e}), abs(v{O+4+e})")
        for e in range(4): a(f"v_add_f32 v{TMP+e}, v{TMP+e}, abs(v{O+8+e})")
        a(f"""v_add_f32 v{TMP}, v{TMP}, v{TMP+1}
        v_add_f32 v{TMP+2}, v{TMP+2}, v{TMP+3}
        v_cmp_le_f32 vcc, s{T2}, v{O+12}
        v_cmp_ge_f32 s[{sM}:{sM+1}], s{T3}, v{O+12}
        v_add_f32 v{TMP}, v{TMP}, v{TMP+2}
        s_nop 0
        s_and_b64 s[{sM}:{sM+1}], s[{sM}:{sM+1}], vcc
        v_cmp_ge_f32 vcc, s{T4}, v{TMP}
        s_nop 1
        s_and_b64 s[{sM}:{sM+1}], s[{sM}:{sM+1}], vcc
        s_cmp_eq_u64 s[{sM}:{sM+1}], exec
        s_cbranch_scc1 L_NORM_OK
        s_cmp_eq_u32 s{sSLOW}, 0
        s_cbranch_scc1 L_SLOW""")
        a.label("L_NORM_OK")
        for e in range(8): a(f"v_mul_f32 v{O+e}, v{O+e}, v{TMP+4}")
        for e in range(4): a(f"v_cvt_pk_bf16_f32 v{TMP+8+e}, v{O+2*e}, v{O+2*e+1}")
        a(f"buffer_store_dwordx4 {vr(TMP+8,4)}, v{L16}, s[{rWS}:{rWS+3}], s{sOMS} offen sc1")
        for e in range(8, 12): a(f"v_mul_f32 v{O+e}, v{O+e}, v{TMP+4}")
        for e in range(4, 6): a(f"v_cvt_pk_bf16_f32 v{TMP+8+e}, v{O+2*e}, v{O+2*e+1}")
        a("s_mov_b32 exec_hi, 0")
        a(f"buffer_store_dwordx2 {vr(TMP+12,2)}, v2, s[{rWS}:{rWS+3}], s{sORS} offen sc1")
        a("s_mov_b32 exec_hi, -1")
        self.srd(rA, pOUT, 2048 * 1280)
        a("s_waitcnt vmcnt(0)\ns_barrier")
        a.reset_counters()
        L = a.newlabel("NOF4")
        a(f"s_cmp_lg_u32 s{sWAVE}, 0\ns_cbranch_scc1 {L}")
        self.flag_store(sF4S, 2)
        a.label(L)
        a.reset_counters()
        self.stamp("F4set")
        tg = a.vm(f"buffer_load_dword v{G}, v{AG}, s[{rWS}:{rWS+3}], 0 offen sc1")
        def wfrag(step, regstep):
            toks = []
            for b in range(5):
                for q in range(2):
                    if step < 8: ad, off = (WM0 if b < 2 else WM1), (40*step + 8*q)*160 + 32*b
                    else: ad, off = (WR0 if b < 2 else WR1), (160*(step-8) + 80*q)*160 + 32*b
                    t = a.ds(f"ds_read_b64_tr_b16 {vr(WF + 20*regstep + 4*b + 2*q, 2)}, v{ad} offset:{L_WO + off}")
                toks.append(t)
            return toks
        tw = {s: wfrag(s, s) for s in range(8)}
        YR, BB = 2, 16
        ty = [a.ds(f"ds_read_b64_tr_b16 {vr(YR+2*b,2)}, v{AYD} offset:{2048*b}") for b in range(3)]
        keep = [216, 217, 218, 219, 220, 221, 222, 223, 2, 3, 4, 5]
        for b in range(3):
            a.wait(ty[b])
            x, y = XE + 2*b, YR + 2*b
            a(f"""v_lshlrev_b32 v16, 16, v{x}
            v_and_b32 v17, 0xffff0000, v{x}
            v_lshlrev_b32 v18, 16, v{x+1}
            v_and_b32 v19, 0xffff0000, v{x+1}
            v_lshlrev_b32 v20, 16, v{y}
            v_and_b32 v21, 0xffff0000, v{y}
            v_lshlrev_b32 v22, 16, v{y+1}
            v_and_b32 v23, 0xffff0000, v{y+1}""")
            for e in range(4): a(f"v_mul_f32 v{keep[4*b+e]}, v{16+e}, v{20+e}")
        L = a.newlabel("NOP4")
        a(f"s_cmp_lg_u32 s{sWAVE}, 0\ns_cbranch_scc1 {L}")
        snap = a.snapshot(); self.mpoll([AF4], 15); a.restore(snap)
        a.label(L)
        a("s_barrier")
        self.stamp("F4ok")
        to = {}
        for s in range(8):
            a(f"s_mov_b32 s{T0}, {s*131072}")
            to[s] = a.vm(f"buffer_load_dwordx4 {vr(OF+4*s,4)}, v{AOM}, s[{rWS}:{rWS+3}], s{T0} offen sc1")
        for rs in range(2):
            for q in range(2):
                a(f"s_mov_b32 s{T0}, {(8*rs+4*q)*16384}")
                to[8+rs] = a.vm(f"buffer_load_dwordx2 {vr(OF+32+4*rs+2*q,2)}, v{AOR}, s[{rWS}:{rWS+3}], s{T0} offen sc1")
        for s in range(10):
            rs = s if s < 8 else s - 8
            a.wait(to[s])
            order = range(5) if s < 9 else (2, 3, 4, 0, 1)
            for b in order:
                a.wait(tw[s][b])
                d = ACC + 4*b
                a(f"v_mfma_f32_16x16x32_bf16 {vr(d,4)}, {vr(WF+20*rs+4*b,4)}, {vr(OF+4*s,4)}, {'0' if s == 0 else vr(d,4)}")
            if s < 2: tw[8+s] = wfrag(8 + s, s)
        self.stamp("mfma")
        a.nop(4)
        for b in (2, 3, 4): a.ds(f"ds_write_b128 v{AEX}, {vr(ACC+4*b,4)} offset:{1024*(b-2)}")
        for b in range(3):
            for e in range(4): a(f"v_sub_f32 v{ACC+4*b+e}, v{ACC+4*b+e}, v{keep[4*b+e]}")
        a.wait_all(vm=False)
        a("s_barrier")
        tp = [a.ds(f"ds_read_b128 {vr(16+4*b,4)}, v{AX2} offset:{1024*b}") for b in range(3)]
        a.wait(tg)
        for b in range(3):
            if b == 2: a(f"s_cmp_lg_u32 s{sKH}, 0\ns_cbranch_scc1 L_FIN")
            a.wait(tp[b])
            for e in range(4): a(f"v_add_f32 v{16+4*b+e}, v{16+4*b+e}, v{ACC+4*b+e}")
            for e in range(4): a(f"v_fmac_f32 v{keep[4*b+e]}, v{G}, v{16+4*b+e}")
            a(f"v_cvt_pk_bf16_f32 v{32+2*b}, v{keep[4*b]}, v{keep[4*b+1]}\nv_cvt_pk_bf16_f32 v{33+2*b}, v{keep[4*b+2]}, v{keep[4*b+3]}")
            a.vm(f"buffer_store_dwordx2 {vr(32+2*b,2)}, v{AOUT}, s[{rA}:{rA+3}], 0 offen offset:{32*b}")
        a.label("L_FIN")
        if self.stamps:
            self.stamp("st")
            a("s_waitcnt vmcnt(0)")
            self.stamp("end")
            a(f"s_lshl_b32 s{T0}, s{sWG}, 3\ns_add_u32 s{T0}, s{T0}, s{sWAVE}\ns_lshl_b32 s{T0}, s{T0}, 8\ns_add_u32 s{T0}, s{T0}, {TS:#x}\nv_lshlrev_b32 v2, 2, v0")
            a(f"buffer_store_dword v1, v2, s[{rWS}:{rWS+3}], s{T0} offen")
            if "enc" in self.opt:
                n0, n1, wv = self.opt["enc"].split(",")
                for n in (n0, n1):
                    if n not in self.names: self.names.append(n)
                a(f"s_cmp_lg_u32 s{sWG}, 100\ns_cbranch_scc1 L_END\ns_cmp_lg_u32 s{sWAVE}, {wv}\ns_cbranch_scc1 L_END")
                a(f"v_readlane_b32 s{T1}, v1, {self.names.index(n0)}\nv_readlane_b32 s{T2}, v1, {self.names.index(n1)}\nv_readlane_b32 s{T3}, v1, {self.names.index('end')}\ns_nop 3")
                a(f"s_sub_u32 s{T2}, s{T2}, s{T1}\ns_lshl_b32 s{T2}, s{T2}, 3\ns_and_b32 s{T2}, s{T2}, 0xffff\ns_add_u32 s{T3}, s{T3}, s{T2}")
                a.label("L_ENC")
                a(f"s_memrealtime s[{sTS}:{sTS+1}]\ns_waitcnt lgkmcnt(0)\ns_sub_u32 s{T1}, s{T3}, s{sTS}\ns_cmp_gt_i32 s{T1}, 0\ns_cbranch_scc1 L_ENC")
        a.label("L_END")
        a("s_endpgm")

    def slow(self):
        a = self.a
        S, V, M, AVS = S_, VS[0], 96, 98
        a.label("L_SLOW")
        a(f"""s_mov_b32 s{sSLOW}, 1
        v_and_b32 v{M}, 31, v0
        v_lshrrev_b32 v{AVS}, 5, v0
        v_mul_u32_u24 v{AVS}, 320, v{AVS}
        v_lshl_add_u32 v{AVS}, v{M}, 4, v{AVS}
        v_add_u32 v{AVS}, 2560, v{AVS}
        v_mov_b32 v{M}, 0xff800000""")
        def scores():
            a(f"""buffer_load_dwordx2 {vr(KRM,2)}, v2, s[{rWS}:{rWS+3}], s{T6} offen offset:2048 sc1
            buffer_load_dwordx4 {vr(KM,4)}, v{L16}, s[{rWS}:{rWS+3}], s{T6} offen sc1
            buffer_load_dwordx4 {vr(KM+4,4)}, v{L16}, s[{rWS}:{rWS+3}], s{T6} offen offset:1024 sc1
            s_waitcnt vmcnt(0)""")
            self.m2b(S); a.nop(18); self.mqk(S, 0); self.mqk(S, 1); a.nop(12)
        a(f"s_mov_b32 s{T6}, s{sKVB}\ns_mov_b32 s{sCNT}, 0")
        a.label("L_SLOW1")
        scores()
        for e in range(16): a(f"v_max3_f32 v{M}, v{M}, v{S+2*e}, v{S+2*e+1}")
        a(f"s_add_u32 s{T6}, s{T6}, {KV_US}\ns_add_u32 s{sCNT}, s{sCNT}, 1\ns_cmp_lt_u32 s{sCNT}, 32\ns_cbranch_scc1 L_SLOW1")
        a(f"v_mov_b32 v{M+1}, v{M}\ns_nop 1\nv_permlane32_swap_b32 v{M}, v{M+1}\ns_nop 1\nv_max_f32 v{M}, v{M}, v{M+1}")
        for e in range(16): a(f"v_mov_b32 v{O_+e}, 0")
        a(f"s_mov_b32 s{T6}, s{sKVB}\ns_mov_b32 s{sCNT}, 0")
        a.label("L_SLOW2")
        a(f"s_mov_b64 exec, s[{sVMASK}:{sVMASK+1}]")
        for g in range(4): a(f"buffer_load_dwordx4 {vr(V+4*g,4)}, v{AVS}, s[{rWS}:{rWS+3}], s{T6} offen offset:{640*g} sc1")
        a("s_mov_b64 exec, -1")
        scores()
        for e in range(32): a(f"v_sub_f32 v{S+e}, v{S+e}, v{M}")
        for e in range(32): a(f"v_exp_f32 v{S+e}, v{S+e}")
        a.nop(2)
        for g in range(4): self.smf(V + 4*g, S + 8*g)
        a(f"s_add_u32 s{T6}, s{T6}, {KV_US}\ns_add_u32 s{sCNT}, s{sCNT}, 1\ns_cmp_lt_u32 s{sCNT}, 32\ns_cbranch_scc1 L_SLOW2")
        a.nop(12)
        a("s_branch L_NORM")

    def build(self):
        self.prologue(); self.dma_role(); self.attention(); self.finish(); self.side_role(); self.gemm_compute(); self.slow(); self.a.label('L_CODE_END')
        bad = lint(self.a.lines)
        head = f"""; Fused kernel: QKV projection, depthwise convolutions, attention, output projection and gated mix.
; One persistent workgroup per CU; hand-offs through d_ws flags that every launch clears itself (counted in d_debug).
; @launch grid=(256,1,1) block=(512,1,1) lds={LDS_BYTES}
.amdgcn_target "amdgcn-amd-amdhsa--gfx950"
.text
.globl {NAME}
.p2align 8
.type {NAME},@function
{NAME}:
"""
        tail = f""".section .rodata,"a"
.p2align 6
.amdhsa_kernel {NAME}
  .amdhsa_next_free_vgpr 256
  .amdhsa_next_free_sgpr 102
  .amdhsa_accum_offset 256
  .amdhsa_group_segment_fixed_size 0
  .amdhsa_kernarg_size 104
  .amdhsa_user_sgpr_count 2
  .amdhsa_user_sgpr_kernarg_segment_ptr 1
  .amdhsa_system_sgpr_workgroup_id_x 1
  .amdhsa_float_denorm_mode_32 3
.end_amdhsa_kernel
"""
        return head + self.a.text() + tail, bad

if __name__ == "__main__":
    out = sys.argv[1] if len(sys.argv) > 1 else "gated_mix__mha_block__ssm_conv_h3__prompt.s"
    opt = dict(x[2:].split("=") for x in sys.argv if x.startswith("-D"))
    G = Gen(stamps="--stamps" in sys.argv, opt=opt)
    src, bad = G.build()
    if G.stamps: src = src.replace("; @launch", "; STAMPS " + " ".join(G.names) + "\n; @launch", 1)
    for b in bad: print("LINT:", b)
    open(out, "w").write(src)
    print("wrote", out, len(src), "bytes;", len(bad), "lint findings")
```

```python
import sys, math, struct
from asmlib import *

NAME = "gated_mix__mha_block__ssm_conv_h3__prompt_kernel"
def f2u(x): return struct.unpack("<I", struct.pack("<f", x))[0]

KV, QO, UR, YD, OM, ORM = 0, 0x500000, 0x780000, 0xA00000, 0xC80000, 0xE80000
F2, F4, F3, F5, GT, F1 = 0xF04000, 0xF08000, 0xF0C000, 0xF0D000, 0xF0E000, 0xFA0000
TS = 0xF10000
WS_SIZE = 0x1000000
KV_HS, KV_US = 163840, 5120
Q_HS, Q_US = 81920, 2560
NSLOT = 3
L_X, L_W = 0, 49152
L_Q, L_SIG = 81920, 162048
L_CONV, CONV_SZ, CS, U_OFF = 98304, 21248, 4160, 16640
L_WO, L_YD, L_EX = 0, 102400, 112640
LDS_BYTES = 163840
sWG, sWAVE = 2, 3
pX, pW, pWO, pWS, pK, pV, pSH, pH, pD, pGW, pOUT, pDBG = 4, 6, 8, 10, 12, 14, 16, 18, 20, 22, 24, 26
rWS, rA, rB, rC, rD = 28, 32, 36, 40, 44
sXCD, sI, sJT, sRT, sPRT, sCJ, sCH0, sNCH, sHEAD, sQB = 48, 49, 50, 51, 52, 53, 54, 55, 56, 57
sLW, sCH, sKH, sTB, sCNT, sSLOW = 58, 59, 60, 61, 62, 63
T0, T1, T2, T3, T4, T5, T6, T7 = 64, 65, 66, 67, 68, 69, 70, 71
sM = 72
sVMASK = 74
sTS = 76
sE = 78
sSC = 86
sKVB, sKVW, sOMS, sORS, sF4S, sCL = 87, 88, 89, 90, 91, 92
sNB, sBC, sU, sK = 93, 94, 95, 96
sM2 = 98
sKVG = 97
POLL_MAX = 30000
IDX, AKM, AKR, AV, L16, AQM, AQR, AF3, YDV = 224, 225, 226, 227, 228, 229, 230, 231, 232
WOV = 233
F3T = 238
ONES, APX, AQM2, AQR2 = 240, 241, 242, 243
QM2, QR2, O2 = 128, 132, 144
WM0, WM1, WR0, WR1, AOM, AOR, AOUT, AG, AEX, AX2, AYD, AF4 = 244, 245, 246, 247, 248, 249, 250, 251, 252, 253, 254, 255
O_, QM, QR, KRM, KM, S_ = 192, 32, 36, 38, 40, 64
VS = (48, 208)
XE = 8

class Gen:
    def __init__(self, stamps=False, opt=None):
        self.a = Asm(); self.stamps = stamps; self.names = []; self.opt = opt or {}
        self.nt = " nt" if int(self.opt.get("nt", 1)) else ""
        self.gnt = " nt" if int(self.opt.get("gnt", 0)) else ""
    def o(self, k, d): return type(d)(self.opt.get(k, d))
    def srd(self, r, p, size):
        self.a(f"s_mov_b32 s{r}, s{p}\ns_mov_b32 s{r+1}, s{p+1}\ns_mov_b32 s{r+2}, {size:#x}\ns_mov_b32 s{r+3}, 0x20000")
    def stamp(self, name):
        if not self.stamps: return
        if name not in self.names: self.names.append(name)
        k = self.names.index(name); assert k < 60
        self.a(f"s_memrealtime s[{sTS}:{sTS+1}]\ns_waitcnt lgkmcnt(0)\nv_writelane_b32 v1, s{sTS}, {k}")
        if name in ("att0", "attend"): self.a(f"s_memtime s[{sTS}:{sTS+1}]\ns_waitcnt lgkmcnt(0)\nv_writelane_b32 v1, s{sTS}, {60 if name == 'att0' else 61}")
        if name == "start":
            if "entry" not in self.names: self.names.append("entry")
            self.a(f"v_writelane_b32 v1, s100, {self.names.index('entry')}")
        if name == "start": self.a(f"s_memtime s[{sTS}:{sTS+1}]\ns_waitcnt lgkmcnt(0)\nv_writelane_b32 v1, s{sTS}, 62")
        if name == "end": self.a(f"s_memtime s[{sTS}:{sTS+1}]\ns_waitcnt lgkmcnt(0)\nv_writelane_b32 v1, s{sTS}, 63")
        self.a.done["ds"] = self.a.n["ds"]
    def poll(self, loads, tmp, cmp=None):
        a = self.a
        L, D = a.newlabel("POLL"), a.newlabel("POLLD")
        a(f"s_mov_b32 s{sCNT}, 0")
        a.label(L)
        k = 0
        for (va, r, imm, wd) in loads:
            ins = {1: "buffer_load_dword", 2: "buffer_load_dwordx2", 4: "buffer_load_dwordx4"}[wd]
            a(f"{ins} {vr(tmp+k, wd)}, v{va}, s[{r}:{r+3}], 0 offen offset:{imm} sc1"); k += wd
        a("s_waitcnt vmcnt(0)")
        a.done["vm"] = a.n["vm"]
        self.poll_check(tmp, k, cmp)
        a(f"s_cbranch_scc1 {D}")
        a(f"s_add_u32 s{sCNT}, s{sCNT}, 1\ns_cmp_lt_u32 s{sCNT}, {POLL_MAX}\ns_cbranch_scc0 {D}\ns_sleep 1\ns_branch {L}")
        a.label(D)
    def mpoll(self, addrs, tmp, elastic=False):
        a = self.a
        L, D = a.newlabel("MP"), a.newlabel("MPD")
        M = [sM, sM2][:len(addrs)]
        a(f"s_mov_b32 s{sCNT}, 0")
        for m in M: a(f"s_mov_b64 s[{m}:{m+1}], -1")
        a.label(L)
        for k, (va, m) in enumerate(zip(addrs, M)):
            S = a.newlabel("MS")
            a(f"s_mov_b64 exec, s[{m}:{m+1}]\ns_cbranch_execz {S}\nbuffer_load_dword v{tmp+k}, v{va}, s[{rWS}:{rWS+3}], 0 offen sc1")
            a.label(S)
        a("s_mov_b64 exec, -1")
        if elastic: self.ewait()
        else: a("s_waitcnt vmcnt(0)")
        a.done["vm"] = a.n["vm"]
        for k, m in enumerate(M):
            a(f"v_cmp_eq_u32 vcc, 0, v{tmp+k}\ns_nop 1\ns_and_b64 s[{m}:{m+1}], s[{m}:{m+1}], vcc")
        if len(M) == 2: a(f"s_or_b64 vcc, s[{sM}:{sM+1}], s[{sM2}:{sM2+1}]")
        a(f"s_cbranch_scc0 {D}")
        a(f"s_add_u32 s{sCNT}, s{sCNT}, 1\ns_cmp_lt_u32 s{sCNT}, {POLL_MAX}\ns_cbranch_scc0 {D}\ns_sleep {self.o('psleep', 4)}\ns_branch {L}")
        a.label(D)
    def last_flag(self, off, sN, sAddr, vt):
        a = self.a
        L = a.newlabel("NL")
        a(f"""v_mov_b32 v{vt}, {L_SIG}
        v_mov_b32 v{vt+1}, 1
        s_mov_b64 exec, 1
        ds_add_rtn_u32 v{vt+1}, v{vt}, v{vt+1} offset:{off}
        s_waitcnt lgkmcnt(0)
        v_readfirstlane_b32 s{T0}, v{vt+1}
        s_mov_b64 exec, -1
        s_add_u32 s{T0}, s{T0}, 1
        s_cmp_lg_u32 s{T0}, {sN}
        s_cbranch_scc1 {L}""")
        self.flag_store(sAddr, vt, two=True)
        a.label(L)
    def poll_check(self, tmp, k, cmp=None):
        a = self.a
        for j in range(1, k, 2):
            if j + 1 < k: a(f"v_min3_u32 v{tmp}, v{tmp}, v{tmp+j}, v{tmp+j+1}")
            else: a(f"v_min_u32 v{tmp}, v{tmp}, v{tmp+j}")
        a(cmp or f"v_cmp_ne_u32 vcc, 0, v{tmp}")
        a("s_nop 1\ns_cmp_eq_u64 vcc, exec")
    def flag_store(self, s, vt, two=False):
        a = self.a
        a(f"v_lshl_add_u32 v{vt}, v0, 2, s{s}\nv_mov_b32 v{vt+1}, 1\ns_mov_b64 exec, {3 if two else 1}")
        t = a.vm(f"buffer_store_dword v{vt+1}, v{vt}, s[{rWS}:{rWS+3}], 0 offen sc1")
        a("s_mov_b64 exec, -1")
        return t

    def prologue(self):
        a = self.a
        if self.stamps: a("s_memrealtime s[100:101]")
        a(f"s_cmp_ge_u32 s{sWG}, 256\ns_cbranch_scc1 L_END")
        if self.opt.get("diag") == "spin":
            a("s_mov_b32 s60, 2500\nv_mov_b32 v10, 0")
            a.label("L_DSPIN")
            for e in range(8): a(f"v_exp_f32 v{11+e}, v10")
            a("s_sub_u32 s60, s60, 1\ns_cmp_lg_u32 s60, 0\ns_cbranch_scc1 L_DSPIN")
        if self.opt.get("diag") == "chain":
            a("s_load_dwordx2 s[32:33], s[0:1], 24\ns_waitcnt lgkmcnt(0)\ns_mov_b32 s34, 2621440\ns_mov_b32 s35, 0x20000\ns_mul_i32 s60, s2, 256\nv_mov_b32 v10, s60")
            for e in range(32): a("buffer_load_dword v12, v10, s[32:35], 0 offen\ns_waitcnt vmcnt(0)\nv_and_b32 v12, 0, v12\nv_add_u32 v10, v10, v12\nv_add_u32 v10, 0x13000, v10")
        if self.opt.get("diag") == "bq":
            a("s_load_dwordx2 s[32:33], s[0:1], 24\ns_waitcnt lgkmcnt(0)\ns_mov_b32 s34, 2621440\ns_mov_b32 s35, 0x20000\nv_lshlrev_b32 v10, 4, v0\ns_mul_i32 s60, s2, 10240")
            a("buffer_load_dwordx4 v[12:15], v10, s[32:35], s60 offen\ns_add_u32 s60, s60, 2048\nbuffer_load_dwordx4 v[16:19], v10, s[32:35], s60 offen\ns_waitcnt vmcnt(0)")
        a(f"""s_load_dwordx4 s[4:7], s[0:1], 0
        s_load_dwordx16 s[12:27], s[0:1], 32
        s_load_dwordx2 s[10:11], s[0:1], 96
        s_load_dwordx2 s[8:9], s[0:1], 16
        v_lshrrev_b32 v1, 6, v0
        v_and_b32 v0, 63, v0
        s_and_b32 s{sXCD}, s{sWG}, 7
        v_readfirstlane_b32 s{sWAVE}, v1
        s_lshr_b32 s{sI}, s{sWG}, 3
        s_and_b32 s{T0}, s{sXCD}, 1
        s_mul_i32 s{T0}, s{T0}, 30
        s_add_u32 s{T0}, s{T0}, s{sI}
        s_lshr_b32 s{sJT}, s{T0}, 2
        s_and_b32 s{T0}, s{T0}, 3
        s_lshr_b32 s{T1}, s{sXCD}, 1
        s_lshl_b32 s{T1}, s{T1}, 2
        s_add_u32 s{sRT}, s{T0}, s{T1}
        s_lshr_b32 s{T0}, s{sWG}, 1
        s_mul_i32 s{T0}, s{T0}, 5
        s_and_b32 s{T1}, s{sWG}, 1
        s_mul_i32 s{T2}, s{T1}, 3
        s_add_u32 s{sCH0}, s{T0}, s{T2}
        s_sub_u32 s{sNCH}, 3, s{T1}
        s_sub_u32 s{sLW}, s{sWAVE}, 4
        s_cmp_lt_u32 s{sWAVE}, 4
        s_cbranch_scc1 L_COMPUTE
        s_cmp_gt_u32 s{sWAVE}, 4
        s_cbranch_scc1 L_SIDE""")
    def common_scalars(self):
        self.a(f"""s_cmp_ge_u32 s{sI}, 30
        s_cselect_b32 s{sNB}, 1, 11
        s_mov_b32 s{sBC}, 0
        s_lshr_b32 s{T0}, s{sI}, 3
        s_lshl_b32 s{T1}, s{sXCD}, 2
        s_add_u32 s{sHEAD}, s{T0}, s{T1}
        s_and_b32 s{sQB}, s{sI}, 7
        s_lshr_b32 s{sKH}, s{sWAVE}, 2
        s_and_b32 s{sTB}, s{sWAVE}, 3
        s_mov_b32 s{sSLOW}, 0
        s_mov_b32 s{sVMASK}, 0x000fffff
        s_mov_b32 s{sVMASK+1}, 0x000fffff""")
    def persistent(self, t=192):
        a = self.a
        a(f"""s_mov_b32 s{sM}, 0x11000000
        s_mov_b32 s{sM+1}, 0x11000000
        v_mov_b32 v{t}, 0x3f803f80
        v_cndmask_b32 v{ONES}, 0, v{t}, s[{sM}:{sM+1}]""")
        a(f"""v_mov_b32 v{IDX}, 0xdddddddd
        v_lshlrev_b32 v{AKM}, 4, v0
        v_lshlrev_b32 v{L16}, 4, v0
        v_lshlrev_b32 v{t}, 3, v0
        v_add_u32 v{AKR}, 2048, v{t}
        v_and_b32 v{t+1}, 31, v0
        v_lshrrev_b32 v{t+2}, 5, v0
        v_mul_u32_u24 v{t+2}, 320, v{t+2}
        v_lshl_add_u32 v{t+2}, v{t+1}, 4, v{t+2}
        v_add_u32 v{AV}, 2560, v{t+2}
        s_mul_i32 s{T0}, s{sKH}, {KV_US}
        v_add_u32 v{AKM}, s{T0}, v{AKM}
        v_add_u32 v{AKR}, s{T0}, v{AKR}
        v_add_u32 v{AV}, s{T0}, v{AV}
        s_mul_i32 s{T0}, s{sTB}, {Q_US}
        s_add_u32 s{T0}, s{T0}, {L_Q}
        s_lshl_b32 s{T2}, s{sKH}, 10
        s_add_u32 s{T2}, s{T2}, s{T0}
        v_add_u32 v{AQM}, s{T2}, v{L16}
        s_lshl_b32 s{T1}, s{sKH}, 8
        s_add_u32 s{T1}, s{T1}, s{T0}
        v_lshl_add_u32 v{AQR}, v{t+1}, 3, s{T1}
        s_xor_b32 s{T3}, s{sKH}, 1
        s_lshl_b32 s{T2}, s{T3}, 10
        s_add_u32 s{T2}, s{T2}, s{T0}
        v_add_u32 v{AQM2}, s{T2}, v{L16}
        s_lshl_b32 s{T1}, s{T3}, 8
        s_add_u32 s{T1}, s{T1}, s{T0}
        v_lshl_add_u32 v{AQR2}, v{t+1}, 3, s{T1}
        s_mul_i32 s{sKVB}, s{sHEAD}, {KV_HS}
        s_mul_i32 s{sKVW}, s{sWAVE}, {KV_US}
        s_add_u32 s{sKVG}, s{sKVW}, s{sKVB}
        s_lshl_b32 s{T0}, s{sHEAD}, 16
        s_lshl_b32 s{T1}, s{sQB}, 2
        s_add_u32 s{T1}, s{T1}, s{sTB}
        s_lshl_b32 s{T1}, s{T1}, 1
        s_add_u32 s{T1}, s{T1}, s{sKH}
        s_lshl_b32 s{T2}, s{T1}, 10
        s_add_u32 s{T0}, s{T0}, s{T2}
        s_add_u32 s{sOMS}, s{T0}, {OM:#x}
        s_lshl_b32 s{T2}, s{sHEAD}, 14
        s_lshl_b32 s{T1}, s{T1}, 8
        s_add_u32 s{T1}, s{T1}, s{T2}
        s_add_u32 s{sORS}, s{T1}, {ORM:#x}
        s_lshl_b32 s{T0}, s{sQB}, 11
        s_lshl_b32 s{T1}, s{sHEAD}, 6
        s_add_u32 s{T0}, s{T0}, s{T1}
        s_add_u32 s{sF4S}, s{T0}, {F4:#x}""")
        a(f"""s_mul_i32 s{T0}, s{sQB}, 320
        s_add_u32 s{T0}, s{T0}, {F3:#x}
        v_lshl_add_u32 v{AF3}, v0, 3, s{T0}
        s_lshr_b32 s{T0}, s{sHEAD}, 1
        s_lshl_b32 s{T0}, s{T0}, 6
        s_add_u32 s{T0}, s{T0}, {F5:#x}
        v_mov_b32 v{t}, s{T0}
        s_mov_b32 s{sM}, 0
        s_mov_b32 s{sM+1}, 0xffffff00
        v_cndmask_b32 v{AF3}, v{AF3}, v{t}, s[{sM}:{sM+1}]""")
        a(f"s_mul_i32 s{T0}, s{sWAVE}, {13*64}\ns_mul_i32 s{T1}, s{sQB}, 160")
        for k in range(5):
            a(f"""s_add_u32 s{T2}, s{T0}, {64*k}
            v_add_u32 v{t}, s{T2}, v0
            v_mul_u32_u24 v{t+1}, 52429, v{t}
            v_lshrrev_b32 v{t+1}, 19, v{t+1}
            v_mul_u32_u24 v{t+1}, {1280-160}, v{t+1}
            v_lshl_add_u32 v{t+1}, v{t}, 4, v{t+1}
            v_add_u32 v{WOV+k}, s{T1}, v{t+1}""")
        a(f"""s_mul_i32 s{T0}, s{sQB}, 80
        s_mul_i32 s{T1}, s{sWAVE}, 10
        s_add_u32 s{T0}, s{T0}, s{T1}
        v_lshrrev_b32 v{t}, 3, v0
        v_add_u32 v{t}, s{T0}, v{t}
        v_lshlrev_b32 v{t}, 12, v{t}
        v_and_b32 v{t+1}, 7, v0
        v_lshl_add_u32 v{t}, v{t+1}, 4, v{t}
        s_lshl_b32 s{T0}, s{sHEAD}, 7
        s_add_u32 s{T0}, s{T0}, {YD:#x}
        v_add_u32 v{YDV}, s{T0}, v{t}""")
        q, r, c8, tt, b0 = t, t + 1, t + 2, t + 3, t + 4
        a(f"""v_lshrrev_b32 v{q}, 4, v0
        v_lshrrev_b32 v{r}, 2, v0
        v_and_b32 v{r}, 3, v{r}
        v_and_b32 v{c8}, 3, v0
        v_lshlrev_b32 v{c8}, 3, v{c8}
        v_and_b32 v{tt}, 15, v0
        v_and_b32 v{b0}, 1, v{q}
        s_mul_i32 s{T2}, s{sKH}, {51200 + 96}
        s_mul_i32 s{T3}, s{sKH}, {51200 - 64}
        v_lshrrev_b32 v{t+5}, 1, v{q}
        v_mul_u32_u24 v{t+5}, 20, v{t+5}
        v_lshl_add_u32 v{t+5}, v{b0}, 2, v{t+5}
        v_add_u32 v{t+5}, v{t+5}, v{r}
        v_mul_u32_u24 v{t+5}, 160, v{t+5}
        v_add_u32 v{t+5}, v{t+5}, v{c8}
        v_add_u32 v{WM0}, s{T2}, v{t+5}
        v_add_u32 v{WM1}, s{T3}, v{t+5}
        v_mul_u32_u24 v{t+5}, 20, v{q}
        v_add3_u32 v{t+5}, v{t+5}, v{r}, 16
        v_mul_u32_u24 v{t+5}, 160, v{t+5}
        v_add_u32 v{t+5}, v{t+5}, v{c8}
        v_add_u32 v{WR0}, s{T2}, v{t+5}
        v_add_u32 v{WR1}, s{T3}, v{t+5}
        s_lshl_b32 s{T2}, s{sKH}, 20
        s_lshl_b32 s{T3}, s{sHEAD}, 11
        s_add_u32 s{T2}, s{T2}, s{T3}
        s_lshr_b32 s{T3}, s{sTB}, 1
        s_lshl_b32 s{T4}, s{T3}, 10
        s_add_u32 s{T2}, s{T2}, s{T4}
        s_and_b32 s{T4}, s{sTB}, 1
        s_lshl_b32 s{T4}, s{T4}, 8
        s_add_u32 s{T2}, s{T2}, s{T4}
        s_add_u32 s{T2}, s{T2}, {OM:#x}
        v_lshrrev_b32 v{t+5}, 1, v{q}
        v_lshlrev_b32 v{t+5}, 16, v{t+5}
        v_lshl_add_u32 v{t+5}, v{b0}, 9, v{t+5}
        v_lshl_add_u32 v{t+5}, v{tt}, 4, v{t+5}
        v_add_u32 v{AOM}, s{T2}, v{t+5}
        s_lshl_b32 s{T2}, s{sKH}, 18
        s_lshl_b32 s{T4}, s{sHEAD}, 9
        s_add_u32 s{T2}, s{T2}, s{T4}
        s_lshl_b32 s{T4}, s{sTB}, 7
        s_add_u32 s{T2}, s{T2}, s{T4}
        s_add_u32 s{T2}, s{T2}, {ORM:#x}
        v_lshlrev_b32 v{t+5}, 14, v{q}
        v_lshl_add_u32 v{t+5}, v{tt}, 3, v{t+5}
        v_add_u32 v{AOR}, s{T2}, v{t+5}
        s_lshr_b32 s{T2}, s{sHEAD}, 2
        s_lshl_b32 s{T2}, s{T2}, 11
        s_add_u32 s{T2}, s{T2}, {F4:#x}
        v_and_b32 v{t+5}, 31, v0
        v_lshl_add_u32 v{AF4}, v{t+5}, 6, s{T2}
        s_lshl_b32 s{T0}, s{sHEAD}, 6
        s_lshl_b32 s{T1}, s{sTB}, 4
        s_add_u32 s{T0}, s{T0}, s{T1}
        v_add_u32 v{t+5}, s{T0}, v{tt}
        v_lshlrev_b32 v{AG}, 2, v{t+5}
        v_add_u32 v{AG}, {GT:#x}, v{AG}
        v_mul_u32_u24 v{t+5}, 1280, v{t+5}
        v_lshl_add_u32 v{t+5}, v{q}, 3, v{t+5}
        s_mul_i32 s{T0}, s{sQB}, 160
        s_mul_i32 s{T1}, s{sKH}, 96
        s_add_u32 s{T0}, s{T0}, s{T1}
        v_add_u32 v{AOUT}, s{T0}, v{t+5}
        s_lshl_b32 s{T0}, s{sWAVE}, 12
        s_add_u32 s{T0}, s{T0}, {L_EX}
        v_add_u32 v{AEX}, s{T0}, v{L16}
        s_xor_b32 s{T0}, s{sWAVE}, 4
        s_lshl_b32 s{T0}, s{T0}, 12
        s_add_u32 s{T1}, s{T0}, {L_EX}
        v_add_u32 v{APX}, s{T1}, v{L16}
        s_lshl_b32 s{T1}, s{sKH}, 10
        s_add_u32 s{T1}, s{T1}, s{T0}
        s_add_u32 s{T1}, s{T1}, {L_EX}
        v_add_u32 v{AX2}, s{T1}, v{L16}
        v_lshl_add_u32 v{AYD}, v{q}, 2, v{r}
        v_lshl_add_u32 v{AYD}, v{AYD}, 7, v{c8}
        s_mul_i32 s{T0}, s{sKH}, {48*128}
        s_lshl_b32 s{T1}, s{sTB}, 5
        s_add_u32 s{T0}, s{T0}, s{T1}
        s_add_u32 s{T0}, s{T0}, {L_YD}
        v_add_u32 v{AYD}, s{T0}, v{AYD}""")
    def att_init_list(self):
        if self.o("ones", 2) == 12:
            return [f"v_mov_b32 v{O_+e}, 0" for e in range(16)] + [f"v_mov_b32 v{st+e}, 0x3f803f80" for st in VS for e in range(16)]
        return [f"v_mov_b32 v{O_+e}, 0" for e in range(16)] + [f"v_mov_b32 v{st+e}, v{ONES}" for st in VS for e in range(16)]

    def flag_reset(self):
        a = self.a
        L = a.newlabel("NOZ")
        a(f"s_cmp_lg_u32 s{sWAVE}, 0\ns_cbranch_scc1 {L}")
        a(f"""s_lshl_b32 s{T0}, s{sWG}, 6
        s_add_u32 s{T0}, s{T0}, {F1:#x}
        v_mov_b32 v12, s{T0}
        v_and_b32 v10, 3, v0
        v_lshlrev_b32 v11, 2, v10
        v_add_u32 v13, s{sCL}, v11
        s_mov_b32 s{sM}, 0xf
        s_mov_b32 s{sM+1}, 0
        v_cndmask_b32 v12, v12, v13, s[{sM}:{sM+1}]
        s_lshl_b32 s{T0}, s{sCH0}, 2
        s_add_u32 s{T0}, s{T0}, {F3:#x}
        v_add_u32 v13, s{T0}, v11
        s_mov_b32 s{sM}, 0x30
        s_cmp_eq_u32 s{sNCH}, 3
        s_cselect_b32 s{sM}, 0x70, s{sM}
        v_cndmask_b32 v12, v12, v13, s[{sM}:{sM+1}]
        s_lshl_b32 s{T0}, s{sQB}, 11
        s_lshl_b32 s{T1}, s{sHEAD}, 6
        s_add_u32 s{T0}, s{T0}, s{T1}
        s_add_u32 s{T0}, s{T0}, {F4:#x}
        v_mov_b32 v13, s{T0}
        s_mov_b32 s{sM}, 0x100
        v_cndmask_b32 v12, v12, v13, s[{sM}:{sM+1}]
        v_mov_b32 v13, 0
        s_mov_b32 exec_lo, 0x1ff
        s_mov_b32 exec_hi, 0
        buffer_store_dword v13, v12, s[{rWS}:{rWS+3}], 0 offen sc1
        s_mov_b64 exec, 1""")
        self.srd(rA, pDBG, 256)
        a(f"""s_and_b32 s{T0}, s{sWG}, 1
        s_lshl_b32 s{T0}, s{T0}, 7
        v_mov_b32 v12, s{T0}
        v_mov_b32 v13, 1
        s_waitcnt vmcnt(0)
        buffer_atomic_add v13, v12, s[{rA}:{rA+3}], 0 offen sc1
        s_mov_b64 exec, -1""")
        a.label(L)

    XA, WA, XA2, WA2, EA = 2, 6, 128, 132, 136
    def gemm_compute(self):
        a = self.a
        XA, WA = self.XA, self.WA
        a.label("L_COMPUTE")
        if self.o("cpf", 1):
            L = a.newlabel("NOPF")
            a(f"""s_cmp_lg_u32 s{sWAVE}, 1
            s_cbranch_scc1 {L}
            s_getpc_b64 s[{T2}:{T3}]
            L_PC:
            s_sub_u32 s{T2}, s{T2}, L_PC-{NAME}
            s_subb_u32 s{T3}, s{T3}, 0
            s_and_b32 s{T0}, s{sI}, 7
            s_lshl_b32 s{T0}, s{T0}, 13
            v_lshl_add_u32 v10, v0, 7, s{T0}
            v_min_u32 v10, L_CODE_END-{NAME}-4, v10
            global_load_dword v31, v10, s[{T2}:{T3}]""")
            a.label(L)
        self.common_scalars()
        a(f"""s_lshl_b32 s{T0}, s{sJT}, 10
        s_lshl_b32 s{T1}, s{sRT}, 6
        s_add_u32 s{T0}, s{T0}, s{T1}
        s_add_u32 s{sCL}, s{T0}, {F2:#x}
        s_lshl_b32 s{T0}, s{sXCD}, 1
        s_add_u32 s{T0}, s{T0}, s{sI}
        s_sub_u32 s{T7}, s{T0}, 30
        s_lshl_b32 s{T0}, s{T7}, 6
        s_add_u32 s{T0}, s{T0}, {F5:#x}
        s_cmp_ge_u32 s{sI}, 30
        s_cselect_b32 s{sCL}, s{T0}, s{sCL}
        s_waitcnt lgkmcnt(0)""")
        self.srd(rWS, pWS, WS_SIZE)
        if self.stamps: a("v_mov_b32 v1, 0")
        self.stamp("start")
        self.flag_reset()
        self.persistent()
        for l in self.att_init_list():
            if int(l.split()[1][1:-1]) >= 192: a(l)
        a(f"s_cmp_eq_u32 s{sWAVE}, 0\ns_cbranch_scc1 L_C_NW\ns_waitcnt vmcnt(0)")
        a.label("L_C_NW")
        a(f"s_cmp_ge_u32 s{sI}, 30\ns_cbranch_scc1 L_C_NOTILE")
        a(f"""s_and_b32 s{T0}, s{sWAVE}, 1
        s_lshl_b32 s{T0}, s{T0}, 13
        v_and_b32 v8, 31, v0
        v_lshrrev_b32 v9, 5, v0
        v_lshrrev_b32 v10, 1, v8
        v_and_b32 v10, 7, v10
        v_xor_b32 v10, v10, v9
        v_lshlrev_b32 v8, 7, v8
        v_add_u32 v8, s{T0}, v8""")
        for ks in range(4):
            a(f"v_xor_b32 v11, {2*ks}, v10\nv_lshl_add_u32 v{XA+ks}, v11, 4, v8")
        a(f"""v_lshrrev_b32 v8, 2, v0
        v_and_b32 v8, 3, v8
        v_lshrrev_b32 v9, 5, v0
        v_lshl_add_u32 v9, v9, 3, v8
        v_lshlrev_b32 v9, 8, v9
        v_lshrrev_b32 v10, 4, v0
        v_and_b32 v10, 1, v10
        v_lshlrev_b32 v10, 1, v10
        v_lshrrev_b32 v11, 1, v0
        v_and_b32 v11, 1, v11
        v_or_b32 v10, v10, v11
        v_and_b32 v11, 1, v0
        v_lshlrev_b32 v11, 3, v11
        v_add_u32 v9, v9, v11
        v_add_u32 v9, {L_W}, v9
        s_and_b32 s{T0}, s{sWAVE}, 2""")
        for i in range(2):
            a(f"""s_add_u32 s{T1}, s{T0}, {i}
            v_xor_b32 v11, s{T1}, v8
            v_lshl_add_u32 v11, v11, 2, v10
            v_lshl_add_u32 v{WA+i}, v11, 4, v9""")
        def lowinit():
            for l in self.att_init_list():
                if int(l.split()[1][1:-1]) < 192: a(l)
        a(f"s_cmp_ge_u32 s{sJT}, 10\ns_cbranch_scc1 L_C_VTILE")
        self.epi_qk_setup()
        self.gemm_loop(False, self.gemm_epi_qk, lowinit)
        a("s_branch L_C_FLAG")
        a.label("L_C_NOTILE")
        self.gate()
        lowinit()
        a("s_branch L_C_FLAG")
        a.label("L_C_VTILE")
        self.epi_v_setup()
        self.gemm_loop(True, self.gemm_epi_v, lowinit)
        a.label("L_C_FLAG")
        a.reset_counters()
        self.stamp("c.epi")
        L = a.newlabel("KVW")
        a(f"s_cmp_eq_u32 s{sWAVE}, 3\ns_cbranch_scc1 {L}")
        a("s_waitcnt vmcnt(0)")
        self.last_flag(12, 4, sCL, 2)
        self.stamp("c.F2set")
        a("s_branch L_ATT")
        a.label(L)
        self.kv_fetch_setup()
        a(f"buffer_load_dword v29, v28, s[{rC}:{rC+3}], 0 offen sc1")
        a("s_waitcnt vmcnt(0)")
        self.last_flag(12, 4, sCL, 2)
        self.kv_fetch()
        a("s_branch L_ATT")

    def gate(self):
        a = self.a
        a.reset_counters()
        X, W, Z = 32, 12, 2
        self.srd(rA, pX, 2048 * 1280); self.srd(rB, pGW, 1280)
        a(f"""s_lshl_b32 s{T0}, s{T7}, 7
        s_lshl_b32 s{T1}, s{sWAVE}, 5
        s_add_u32 s{T6}, s{T0}, s{T1}
        v_lshrrev_b32 v10, 4, v0
        v_add_u32 v11, s{T6}, v10
        v_mul_u32_u24 v11, 1280, v11
        v_and_b32 v2, 15, v0
        v_lshlrev_b32 v3, 4, v2
        v_add_u32 v11, v11, v3""")
        for j in range(5): tw = a.vm(f"buffer_load_dwordx4 {vr(W+4*j,4)}, v3, s[{rB}:{rB+3}], 0 offen offset:{256*j}")
        tx = []
        for g in range(8):
            a(f"s_mov_b32 s{T0}, {5120*g}")
            for j in range(5): t = a.vm(f"buffer_load_dwordx4 {vr(X+20*g+4*j,4)}, v11, s[{rA}:{rA+3}], s{T0} offen offset:{256*j}")
            tx.append(t)
        a(f"""v_lshl_add_u32 v10, v2, 2, v10
        v_add_u32 v10, s{T6}, v10
        v_lshlrev_b32 v10, 2, v10
        v_add_u32 v10, {GT:#x}, v10
        v_mov_b32 v11, v2
        s_barrier""")
        for g in range(8):
            a.wait(tw, tx[g])
            for e in range(20):
                a(f"v_dot2_f32_bf16 v{Z+g}, v{X+20*g+e}, v{W+e}, {'0' if e == 0 else f'v{Z+g}'}")
        a.nop(3)
        for sh in (8, 4, 2, 1):
            for g in range(8): a(f"v_add_f32_dpp v{Z+g}, v{Z+g}, v{Z+g} row_ror:{sh} row_mask:0xf bank_mask:0xf")
        for g in range(1, 8):
            a(f"v_cmp_eq_u32 vcc, {g}, v11\ns_nop 1\nv_cndmask_b32 v{Z}, v{Z}, v{Z+g}, vcc")
        a(f"""v_mul_f32 v{Z}, {f2u(-math.log2(math.e)):#x}, v{Z}
        v_exp_f32 v{Z}, v{Z}
        s_mov_b32 exec_lo, 0x00ff00ff
        v_add_f32 v{Z}, 1.0, v{Z}
        v_rcp_f32 v{Z}, v{Z}
        s_mov_b32 exec_hi, 0x00ff00ff
        buffer_store_dword v{Z}, v10, s[{rWS}:{rWS+3}], 0 offen sc1
        s_mov_b64 exec, -1""")

    def gemm_loop(self, vt, epi, fill):
        a = self.a
        a.reset_counters()
        FR, ACC = 32, 64
        def reads(s, ks):
            st = FR + 16 * (ks & 1); sl = s % NSLOT
            xa, wa, sl = (self.XA, self.WA, sl * 16384) if sl < 4 else (self.XA2, self.WA2, 0)
            rx = lambda j: (lambda: a.ds(f"ds_read_b128 {vr(st+4*j,4)}, v{xa+ks} offset:{sl + 4096*j}"))
            rw = lambda i, q: (lambda: a.ds(f"ds_read_b64_tr_b16 {vr(st+8+4*i+2*q,2)}, v{wa+i} offset:{sl + (16*ks+4*q)*256}"))
            if vt: return [("X0", rx(0)), ("W0", rw(0,0)), ("W0", rw(0,1)), ("W1", rw(1,0)), ("W1", rw(1,1)), ("X1", rx(1))]
            return [("W0", rw(0,0)), ("W0", rw(0,1)), ("X0", rx(0)), ("X1", rx(1)), ("W1", rw(1,0)), ("W1", rw(1,1))]
        def group(ks, toks, nxt, first):
            st = FR + 16 * (ks & 1); out = {}
            sched = [3, 3, 0, 0]; k = 0
            for m, (i, j) in enumerate(((0,0),(0,1),(1,0),(1,1))):
                if vt: A, B, na, nb = st + 4*i, st + 8 + 4*j, f"X{i}", f"W{j}"
                else:  A, B, na, nb = st + 8 + 4*i, st + 4*j, f"W{i}", f"X{j}"
                a.wait(toks[na], toks[nb])
                d = ACC + 16 * (2*i + j)
                a(f"v_mfma_f32_32x32x16_bf16 {vr(d,16)}, {vr(A,4)}, {vr(B,4)}, {'0' if first else vr(d,16)}")
                for _ in range(sched[m]):
                    if k < len(nxt): out[nxt[k][0]] = nxt[k][1](); k += 1
            return out
        a("s_barrier")
        toks = {}
        for n, f in reads(0, 0): toks[n] = f()
        for s in range(9):
            for ks in range(4):
                if ks < 3:
                    toks = group(ks, toks, reads(s, ks + 1), s == 0 and ks == 0)
                else:
                    a.wait_all(vm=False); a("s_barrier")
                    if s < 8: toks = group(ks, toks, reads(s + 1, 0), False)
        sets = (FR, 152, 168, 8)
        T = {}
        def rd(ks, nm):
            st = sets[ks]; sl = (9 % NSLOT) * 16384; k = int(nm[1])
            if nm[0] == "X": T[ks, nm] = a.ds(f"ds_read_b128 {vr(st+4*k,4)}, v{self.XA+ks} offset:{sl + 4096*k}")
            else:
                for q in range(2): T[ks, nm] = a.ds(f"ds_read_b64_tr_b16 {vr(st+8+4*k+2*q,2)}, v{self.WA+k} offset:{sl + (16*ks+4*q)*256}")
        na, nb = ("X", "W") if vt else ("W", "X")
        first = [(lambda ks=ks, nm=nm: rd(ks, nm)) for ks in range(4) for nm in (na + "0", nb + "0")]
        later = [(lambda ks=ks: rd(ks, nb + "1")) for ks in range(4)] + [(lambda ks=ks: rd(ks, na + "1")) for ks in range(4)]
        group(3, toks, [(f"f{i}", f) for i, f in enumerate(first[:6])], False)
        for f in first[6:]: f()
        off = lambda nm: 4 * int(nm[1]) + (0 if nm[0] == "X" else 8)
        pend = []
        for bi, (i, j) in enumerate(((0,0),(0,1),(1,0),(1,1))):
            d = ACC + 16 * (2*i + j)
            for ks in range(4):
                a.wait(T[ks, f"{na}{i}"], T[ks, f"{nb}{j}"])
                a(f"v_mfma_f32_32x32x16_bf16 {vr(d,16)}, {vr(sets[ks]+off(f'{na}{i}'),4)}, {vr(sets[ks]+off(f'{nb}{j}'),4)}, {vr(d,16)}")
                if bi < 2 and later: later.pop(0)()
                if bi == 2 and ks == 3: a.wait_all(vm=False); a("s_barrier")
                if bi >= 2:
                    n = -(-len(pend) // (4 - ks + (4 if bi == 2 else 0)))
                    for _ in range(min(n, 9)): pend.pop(0)()
            if bi == 1: pend += epi(0, 0)
            if bi == 1: pend += epi(0, 1)
            if bi == 2: last = epi(1, 0)
        for f in pend: f()
        for f in last: f()
        for f in epi(1, 1): f()
        fill()

    def epi_qk_setup(self):
        a = self.a
        sBASE, sHS, sPQ = T0, T1, T3
        a(f"""s_mov_b32 s{sHS}, {Q_HS}
        s_mov_b32 s{T4}, {Q_US}
        s_cmp_ge_u32 s{sJT}, 5
        s_cselect_b32 s{sHS}, {KV_HS}, s{sHS}
        s_cselect_b32 s{T4}, {KV_US}, s{T4}
        s_cselect_b32 s{sBASE}, {KV}, {QO:#x}
        s_cselect_b32 s{T5}, 5, 0
        s_cselect_b64 s[{sM}:{sM+1}], -1, 0
        s_cselect_b32 s{sSC}, 1.0, {f2u(math.log2(math.e) / math.sqrt(20.0)):#x}
        s_sub_u32 s{T5}, s{sJT}, s{T5}
        s_lshl_b32 s{sPQ}, s{T5}, 4
        s_and_b32 s{T5}, s{sWAVE}, 2
        s_lshl_b32 s{T5}, s{T5}, 2
        s_add_u32 s{sPQ}, s{sPQ}, s{T5}
        s_lshl_b32 s{T5}, s{sRT}, 1
        s_and_b32 s{T6}, s{sWAVE}, 1
        s_add_u32 s{T5}, s{T5}, s{T6}
        s_mul_i32 s{T5}, s{T5}, s{T4}
        s_add_u32 s{sBASE}, s{sBASE}, s{T5}
        v_and_b32 v8, 31, v0
        v_and_b32 v9, 0x13, v0
        v_and_b32 v10, 4, v0
        v_lshl_or_b32 v9, v10, 1, v9
        v_and_b32 v10, 8, v0
        v_lshrrev_b32 v10, 1, v10
        v_or_b32 v9, v9, v10
        v_cndmask_b32 v8, v8, v9, s[{sM}:{sM+1}]
        v_lshrrev_b32 v9, 5, v0
        v_lshlrev_b32 v10, 3, v9
        v_lshl_add_u32 v12, v8, 4, v10
        v_add_u32 v13, 1024, v12
        v_mul_lo_u32 v10, v9, s{sHS}
        v_lshl_add_u32 v14, v8, 3, v10
        v_add_u32 v14, 1024, v14
        v_add_u32 v15, 256, v14""")
        for p in range(8):
            a(f"""s_add_u32 s{T4}, s{sPQ}, {p}
            s_mul_i32 s{T5}, s{T4}, 205
            s_lshr_b32 s{T5}, s{T5}, 10
            s_mul_i32 s{T6}, s{T5}, 5
            s_sub_u32 s{T4}, s{T4}, s{T6}
            s_lshl_b32 s{T5}, s{T5}, 1
            s_mul_i32 s{T5}, s{T5}, s{sHS}
            s_add_u32 s{T5}, s{T5}, s{sBASE}
            s_lshl_b32 s{T6}, s{T4}, 9
            s_add_u32 s{T5}, s{T5}, s{T6}
            s_sub_u32 s{T6}, s{sHS}, 1536
            s_cmp_ge_u32 s{T4}, 3
            s_cselect_b32 s{T6}, s{T6}, 0
            s_add_u32 s{sE+p}, s{T5}, s{T6}
            s_cmp_eq_u32 s{T4}, 2
            s_cselect_b64 s[{sM}:{sM+1}], -1, 0""")
            for j in range(2): a(f"v_cndmask_b32 v{self.EA+2*p+j}, v{12+j}, v{14+j}, s[{sM}:{sM+1}]")
    def gemm_epi_qk(self, i, j):
        a = self.a; L = []
        for g in range(4):
            d = 64 + 16 * (2*i + j) + 4*g
            for e in range(4): L.append(lambda d=d, e=e: a(f"v_mul_f32 v{d+e}, s{sSC}, v{d+e}"))
            L.append(lambda d=d: a(f"v_cvt_pk_bf16_f32 v{d}, v{d}, v{d+1}"))
            L.append(lambda d=d: a(f"v_cvt_pk_bf16_f32 v{d+1}, v{d+2}, v{d+3}"))
            L.append(lambda d=d, g=g: a.vm(f"buffer_store_dwordx2 {vr(d,2)}, v{self.EA+2*(4*i+g)+j}, s[{rWS}:{rWS+3}], s{sE+4*i+g} offen sc1"))
        return L
    def epi_v_setup(self):
        a = self.a
        a(f"""s_sub_u32 s{T0}, s{sJT}, 10
        s_lshl_b32 s{T0}, s{T0}, 7
        s_and_b32 s{T1}, s{sWAVE}, 2
        s_lshl_b32 s{T1}, s{T1}, 5
        s_add_u32 s{T0}, s{T0}, s{T1}
        s_lshl_b32 s{T1}, s{sRT}, 1
        s_and_b32 s{T2}, s{sWAVE}, 1
        s_add_u32 s{T1}, s{T1}, s{T2}
        s_mul_i32 s{T1}, s{T1}, {KV_US}
        s_add_u32 s{sE}, s{T1}, {KV + 2560}
        s_mov_b32 s{T2}, {KV_HS - 320}
        v_and_b32 v8, 31, v0
        v_lshrrev_b32 v9, 5, v0
        v_mul_u32_u24 v9, 320, v9""")
        for j in range(2):
            a(f"""v_add_u32 v10, s{T0}, v8
            v_add_u32 v10, {32*j}, v10
            v_mul_u32_u24 v11, 3277, v10
            v_lshrrev_b32 v11, 16, v11
            v_mul_lo_u32 v11, v11, s{T2}
            v_lshl_add_u32 v10, v10, 4, v9
            v_add_u32 v{self.EA+j}, v10, v11""")
    def gemm_epi_v(self, i, j):
        a = self.a; L = []
        for s in range(2):
            d = 64 + 16 * (2*i + j) + 8*s
            for e in range(4): L.append(lambda d=d, e=e: a(f"v_cvt_pk_bf16_f32 v{d+e}, v{d+2*e}, v{d+2*e+1}"))
            L.append(lambda d=d, s=s: a.vm(f"buffer_store_dwordx4 {vr(d,4)}, v{self.EA+j}, s[{rWS}:{rWS+3}], s{sE} offen offset:{(2*i+s)*640} sc1"))
        return L

    XS, WS_, PA, PB, PW, PS, HA, HL = 2, 6, 10, 11, 12, 13, 14, 15
    KR_, VV_, SW_, HD_, DV_, PO_ = 16, 176, 116, 132, 156, 160
    def dma_setup(self):
        a = self.a
        a(f"""v_lshrrev_b32 v16, 3, v0
        v_and_b32 v17, 7, v0
        v_lshrrev_b32 v18, 1, v16
        s_lshl_b32 s{T0}, s{sRT}, 7
        v_add_u32 v16, s{T0}, v16
        v_mul_u32_u24 v16, 1280, v16""")
        for n in range(4):
            a(f"""v_xor_b32 v19, {(4*n) & 7}, v18
            v_xor_b32 v19, v19, v17
            v_lshl_add_u32 v19, v19, 4, v16
            v_add_u32 v{self.XS+n}, {n*(8*1280-1024)}, v19""")
        a(f"""v_lshrrev_b32 v16, 4, v0
        v_and_b32 v17, 15, v0
        v_lshlrev_b32 v18, 2, v16
        v_xor_b32 v17, v17, v18
        v_mul_u32_u24 v16, 3840, v16
        v_lshl_add_u32 v16, v17, 4, v16
        s_lshl_b32 s{T0}, s{sJT}, 8
        v_add_u32 v{self.WS_}, s{T0}, v16""")
        for n in range(1, 4): a(f"v_add_u32 v{self.WS_+n}, {n*(4*3840-1024)}, v{self.WS_}")
        P = self.o("rot", 1)
        a(f"s_add_u32 s{T0}, s{sJT}, s{sRT}")
        if P == 1: a(f"s_mov_b32 s{sK}, 0")
        elif P == 2: a(f"s_and_b32 s{T0}, s{T0}, 1\ns_mul_i32 s{sK}, s{T0}, 5")
        elif P == 3: a(f"s_mul_i32 s{T1}, s{T0}, 43\ns_lshr_b32 s{T1}, s{T1}, 7\ns_mul_i32 s{T1}, s{T1}, 3\ns_sub_u32 s{T0}, s{T0}, s{T1}\ns_mul_i32 s{T0}, s{T0}, 7\ns_lshr_b32 s{sK}, s{T0}, 1")
        elif P == 4: a(f"s_and_b32 s{T0}, s{T0}, 3\ns_mul_i32 s{T0}, s{T0}, 5\ns_lshr_b32 s{sK}, s{T0}, 1")
    def stage_dma(self, s):
        a = self.a
        sl = (s % NSLOT) * 16384
        a(f"s_lshl_b32 s{T0}, s{sK}, 7\ns_mul_i32 s{T1}, s{sK}, {64*3840}")
        def ld(txt):
            if a.n["vm"] - a.done["vm"] >= 62: a.wait(Tok("vm", a.done["vm"] + 8))
            return a.vm(txt)
        for h in range(4):
            a(f"s_mov_b32 m0, {L_X + sl + 4096*h}")
            a(f"s_add_u32 s{T2}, s{T0}, {32*1280*h}")
            for n in range(4): ld(f"buffer_load_dwordx4 v{self.XS+n}, s[{rA}:{rA+3}], s{T2} offen offset:{1024*n}{self.gnt} lds")
            a(f"s_mov_b32 m0, {L_W + sl + 4096*h}")
            a(f"s_add_u32 s{T2}, s{T1}, {16*3840*h}")
            for n in range(4): t = ld(f"buffer_load_dwordx4 v{self.WS_+n}, s[{rB}:{rB+3}], s{T2} offen offset:{1024*n}{self.gnt} lds")
        a(f"s_add_u32 s{sK}, s{sK}, 1\ns_cmp_eq_u32 s{sK}, 10\ns_cselect_b32 s{sK}, 0, s{sK}")
        return t
    def conv_scalars(self):
        a = self.a
        a(f"""s_min_u32 s{T0}, s{sLW}, 2
        s_add_u32 s{sCH}, s{sCH0}, s{T0}
        s_min_u32 s{sCH}, s{sCH}, 639
        s_mul_i32 s{T0}, s{T0}, {CONV_SZ}
        s_add_u32 s{T6}, s{T0}, {L_CONV}
        s_lshl_b32 s{T1}, s{sCH}, 1
        v_mov_b32 v{self.DV_}, s{T1}
        s_lshl_b32 s{T1}, s{sCH}, 12
        v_lshl_add_u32 v{self.HA}, v0, 4, s{T1}
        v_lshl_add_u32 v{self.HL}, v0, 4, s{T6}""")
        self.srd(rD, pH, 640 * 4096)
        a(f"s_mov_b32 m0, s{T6}\ns_nop 0")
        if "h" not in self.o("ab", ""):
            for g in range(4): a.vm(f"buffer_load_dwordx4 v{self.HA}, s[{rD}:{rD+3}], 0 offen offset:{1024*g}{self.nt} lds")
        self.srd(rC, pD, 640 * 2)
        return a.vm(f"buffer_load_ushort v{self.DV_}, v{self.DV_}, s[{rC}:{rC+3}], 0 offen")
    def pre_setup(self):
        self.a(f"""s_and_b32 s{T0}, s{sU}, 63
        s_lshr_b32 s{T1}, s{sU}, 6
        s_lshl_b32 s{T5}, s{sWG}, 6
        s_add_u32 s{T5}, s{T5}, {F1:#x}
        s_lshl_b32 s{T0}, s{T0}, 5
        s_lshl_b32 s{T1}, s{T1}, 7
        v_lshrrev_b32 v16, 3, v0
        v_and_b32 v17, 7, v0
        v_lshl_add_u32 v16, v16, 2, s{T0}
        v_lshl_add_u32 v18, v17, 4, s{T1}
        v_mul_u32_u24 v19, 1280, v16
        v_add_u32 v{self.PB}, v19, v18
        v_subrev_u32 v{self.PA}, 3840, v{self.PB}
        v_lshlrev_b32 v{self.PW}, 2, v18
        v_lshlrev_b32 v18, 11, v18
        v_lshlrev_b32 v16, 1, v16
        v_sub_u32 v18, v18, v16
        v_add_u32 v{self.PS}, {UR + 4088:#x}, v18""")
    def pre_loads(self):
        a = self.a
        if "k" in self.o("ab", ""): return
        self.srd(rC, pK, 2048 * 1280); self.srd(rD, pV, 2048 * 1280); self.srd(rB, pSH, 640 * 8)
        for j in range(4): a(f"buffer_load_dwordx4 {vr(self.KR_+12+4*j,4)}, v{self.PB}, s[{rC}:{rC+3}], 0 offen offset:{1280*j}{self.nt}")
        for j in range(4): a(f"buffer_load_dwordx4 {vr(self.VV_+4*j,4)}, v{self.PB}, s[{rD}:{rD+3}], 0 offen offset:{1280*j}{self.nt}")
        for j in range(3): a(f"buffer_load_dwordx4 {vr(self.KR_+4*j,4)}, v{self.PA}, s[{rC}:{rC+3}], 0 offen offset:{1280*j}{self.nt}")
        for j in range(4): a(f"buffer_load_dwordx4 {vr(self.SW_+4*j,4)}, v{self.PW}, s[{rB}:{rB+3}], 0 offen offset:{16*j}")
    def h_loads(self, D):
        a = self.a
        if "h" in self.o("ab", ""): return
        for g in range(4):
            a.vm(f"buffer_load_dwordx4 {vr(D+6*g,4)}, v{self.HA}, s[{rD}:{rD+3}], 0 offen offset:{1024*g}{self.nt}")
            a.vm(f"buffer_load_dwordx2 {vr(D+6*g+4,2)}, v{self.HA}, s[{rD}:{rD+3}], 0 offen offset:{1024*g+16}{self.nt}")
    def bar(self):
        a = self.a; L = a.newlabel("NB")
        a(f"s_cmp_ge_u32 s{sBC}, s{sNB}\ns_cbranch_scc1 {L}\ns_barrier\ns_add_u32 s{sBC}, s{sBC}, 1")
        a.label(L)
    def bar_rest(self):
        a = self.a; L, D = a.newlabel("BR"), a.newlabel("BRD")
        a.label(L)
        a(f"s_cmp_ge_u32 s{sBC}, s{sNB}\ns_cbranch_scc1 {D}\ns_barrier\ns_add_u32 s{sBC}, s{sBC}, 1\ns_branch {L}")
        a.label(D)
    def ewait(self):
        a = self.a; L, D = a.newlabel("EW"), a.newlabel("EWD")
        a.label(L)
        a(f"""s_getreg_b32 s{T0}, hwreg(HW_REG_IB_STS)
        s_and_b32 s{T0}, s{T0}, 0x00c0000f
        s_cbranch_scc0 {D}
        s_cmp_ge_u32 s{sBC}, s{sNB}
        s_cbranch_scc1 {D}
        s_barrier
        s_add_u32 s{sBC}, s{sBC}, 1
        s_branch {L}""")
        a.label(D)
        a("s_waitcnt vmcnt(0)")
    def epoll(self, loads, tmp, cmp=None):
        a = self.a
        L, D = a.newlabel("EP"), a.newlabel("EPD")
        a(f"s_mov_b32 s{sCNT}, 0")
        a.label(L)
        k = 0
        for (va, r, imm, wd) in loads:
            ins = {1: "buffer_load_dword", 2: "buffer_load_dwordx2", 4: "buffer_load_dwordx4"}[wd]
            a(f"{ins} {vr(tmp+k, wd)}, v{va}, s[{r}:{r+3}], 0 offen offset:{imm} sc1"); k += wd
        self.ewait()
        self.poll_check(tmp, k, cmp)
        a(f"s_cbranch_scc1 {D}")
        a(f"s_add_u32 s{sCNT}, s{sCNT}, 1\ns_cmp_lt_u32 s{sCNT}, {POLL_MAX}\ns_cbranch_scc0 {D}\ns_sleep 1\ns_branch {L}")
        a.label(D)
    def pre_compute_list(self):
        L = []
        K, V, W, AC = 76, 90, 98, 106
        lo = lambda d, s: L.append(f"v_lshlrev_b32 v{d}, 16, v{s}")
        hi = lambda d, s: L.append(f"v_and_b32 v{d}, 0xffff0000, v{s}")
        for p in range(4):
            for j in range(7): lo(K+2*j, self.KR_+4*j+p); hi(K+2*j+1, self.KR_+4*j+p)
            for j in range(4): lo(V+2*j, self.VV_+4*j+p); hi(V+2*j+1, self.VV_+4*j+p)
            w = self.SW_ + 4*p
            lo(W, w); lo(W+1, w+2); hi(W+2, w); hi(W+3, w+2); lo(W+4, w+1); lo(W+5, w+3); hi(W+6, w+1); hi(W+7, w+3)
            for lag in (3, 2, 1, 0):
                for t in range(4):
                    kk = K + 2*(3 + t - lag)
                    if self.o("pk", 1):
                        if lag == 3: L.append(f"v_pk_mul_f32 {vr(AC+2*t,2)}, {vr(kk,2)}, {vr(W+2*lag,2)}")
                        else: L.append(f"v_pk_fma_f32 {vr(AC+2*t,2)}, {vr(kk,2)}, {vr(W+2*lag,2)}, {vr(AC+2*t,2)}")
                    else:
                        for h in range(2):
                            if lag == 3: L.append(f"v_mul_f32 v{AC+2*t+h}, v{kk+h}, v{W+2*lag+h}")
                            else: L.append(f"v_fmac_f32 v{AC+2*t+h}, v{kk+h}, v{W+2*lag+h}")
            for t in range(4):
                if self.o("pk", 1): L.append(f"v_pk_mul_f32 {vr(AC+2*t,2)}, {vr(AC+2*t,2)}, {vr(V+2*t,2)}")
                else:
                    for h in range(2): L.append(f"v_mul_f32 v{AC+2*t+h}, v{AC+2*t+h}, v{V+2*t+h}")
            for h in range(2):
                o = self.PO_ + 4*p + 2*h
                L.append(f"v_cvt_pk_bf16_f32 v{o}, v{AC+6+h}, v{AC+4+h}"); L.append(f"v_cvt_pk_bf16_f32 v{o+1}, v{AC+2+h}, v{AC+h}")
        return L
    def pre_stores(self):
        a = self.a
        if "s" in self.o("ab", ""): return
        if not self.o("st4", 1):
            for e in range(8):
                a(f"s_mov_b32 s{T0}, {4096*e}")
                a(f"buffer_store_dwordx2 {vr(self.PO_+2*e,2)}, v{self.PS}, s[{rWS}:{rWS+3}], s{T0} offen sc1")
            return
        for e in range(8): a(f"ds_write_b64 v{(self.PA, self.PW)[e & 1]}, {vr(self.PO_+2*e,2)} offset:{64*(e & 6)}")
        for k in range(1, 4): a(f"v_xor_b32 v{76+k}, {32*k}, v{self.PB}")
        a("s_waitcnt lgkmcnt(0)")
        for k in range(4): a(f"ds_read_b128 {vr(self.PO_+4*k,4)}, v{76+k if k else self.PB} offset:{1024*k}")
        for k in range(4):
            a(f"s_mov_b32 s{T0}, {65536*k}\ns_waitcnt lgkmcnt({3-k})")
            a(f"buffer_store_dwordx4 {vr(self.PO_+4*k,4)}, v{self.PS}, s[{rWS}:{rWS+3}], s{T0} offen sc1")
    def pre_store_setup(self):
        if not self.o("st4", 1): return
        assert (L_CONV + CONV_SZ + 2*CS) % 128 == 0 and CONV_SZ % 128 == 0 and (L_CONV + U_OFF) % 128 == 0
        self.a(f"""s_mul_i32 s{T0}, s{sLW}, {CONV_SZ}
        s_add_u32 s{T0}, s{T0}, {L_CONV + 2*CS}
        s_cmp_eq_u32 s{sWAVE}, 7
        s_cselect_b32 s{T0}, {L_CONV + U_OFF}, s{T0}
        v_and_b32 v76, 7, v0
        v_lshrrev_b32 v77, 3, v0
        v_sub_u32 v77, 7, v77
        v_lshrrev_b32 v78, 1, v77
        v_xor_b32 v78, v78, v76
        v_lshlrev_b32 v78, 4, v78
        v_and_b32 v77, 1, v77
        v_lshl_add_u32 v78, v77, 3, v78
        v_lshl_add_u32 v78, v76, 9, v78
        v_add_u32 v{self.PA}, s{T0}, v78
        v_xor_b32 v{self.PW}, 64, v{self.PA}
        v_lshrrev_b32 v76, 5, v0
        v_and_b32 v77, 31, v0
        v_xor_b32 v77, v77, v76
        v_lshlrev_b32 v77, 4, v77
        v_lshl_add_u32 v76, v76, 9, v77
        v_add_u32 v{self.PB}, s{T0}, v76
        s_lshr_b32 s{T1}, s{sU}, 6
        s_lshl_b32 s{T1}, s{T1}, 18
        s_and_b32 s{T0}, s{sU}, 63
        s_lshl_b32 s{T0}, s{T0}, 6
        s_sub_u32 s{T1}, s{T1}, s{T0}
        s_add_u32 s{T1}, s{T1}, {UR + 4032:#x}
        v_lshrrev_b32 v76, 2, v0
        v_lshlrev_b32 v76, 12, v76
        v_and_b32 v77, 3, v0
        v_lshl_add_u32 v76, v77, 4, v76
        v_add_u32 v{self.PS}, s{T1}, v76""")
    def h_group(self, D, imm, t0):
        a = self.a
        t1, t2 = t0 + 4, t0 + 8
        for e in range(4): a(f"v_alignbit_b32 v{t0+e}, v{D+e+1}, v{D+e}, 16")
        for e in range(4): a(f"v_mov_b32 v{t1+e}, v{D+e+1}")
        for e in range(4): a(f"v_alignbit_b32 v{t2+e}, v{D+e+2}, v{D+e+1}, 16")
        for r, src in enumerate((t0, t1, t2, D + 2)):
            a(f"ds_write_b128 v{self.HL}, {vr(src,4)} offset:{r*CS + imm}")
    def h_to_lds(self, HD, off):
        a = self.a
        a(f"v_readlane_b32 s{T1}, v{HD}, 0\nv_readlane_b32 s{T2}, v{HD+1}, 0")
        for g in range(4):
            self.h_group(HD + 6*g, off + 32 + 1024*g, 64 + 12*g)
        D = 112
        for e in range(6): a(f"v_mov_b32 v{D+e}, 0")
        a("s_mov_b32 exec_hi, 0")
        a(f"ds_write_b128 v{self.HL}, {vr(D,4)} offset:{off + U_OFF + 4096}")
        a(f"v_writelane_b32 v{D+4}, s{T1}, 1\nv_writelane_b32 v{D+5}, s{T2}, 1\ns_mov_b64 exec, 3")
        self.h_group(D, off, 120)
        a("s_mov_b64 exec, -1")

    def dma_role(self):
        a = self.a
        a.reset_counters()
        fine = self.o("fine", 0)
        self.dma_setup()
        a("s_waitcnt lgkmcnt(0)")
        self.srd(rA, pX, 2048 * 1280); self.srd(rB, pW, 640 * 3840)
        a(f"s_cmp_ge_u32 s{sI}, 30\ns_cbranch_scc1 L_D_SKIP")
        S = {0: self.stage_dma(0)}
        if self.o("s1early", 0): S[1] = self.stage_dma(1)
        a.label("L_D_SKIP")
        if self.stamps: a("v_mov_b32 v1, 0")
        self.stamp("start")
        self.srd(rWS, pWS, WS_SIZE)
        self.common_scalars()
        self.persistent()
        a(f"s_cmp_ge_u32 s{sI}, 30\ns_cbranch_scc1 L_D_NT")
        if self.o("dprio", 0): a(f"s_setprio {self.o('dprio', 0)}")
        if not self.o("s1early", 0): S[1] = self.stage_dma(1)
        if self.o("hat", 0) == 0: self.conv_scalars()
        for s in range(10):
            a.wait(S[s])
            if fine: self.stamp(f"l.w{s}")
            a("s_barrier")
            if fine or s in (0, 5, 9): self.stamp(f"l.b{s}")
            if s + 2 <= 9:
                S[s+2] = self.stage_dma(s + 2)
                if fine: self.stamp(f"l.i{s}")
            if s == {1: 3, 2: 9}.get(self.o("hat", 0), -1): self.conv_scalars()
        a("s_barrier")
        a.label("L_CONV")
        self.conv()
    def side_role(self):
        a = self.a
        a.label("L_SIDE")
        a.reset_counters()
        a(f"""s_cmp_eq_u32 s{sWAVE}, 7
        s_cselect_b32 s{T0}, 1, 0
        s_cmp_eq_u32 s{sWAVE}, 6
        s_cselect_b32 s{T0}, 2, s{T0}
        s_add_u32 s{sU}, s{sCH0}, s{T0}
        s_cmp_ge_u32 s{T0}, s{sNCH}
        s_cbranch_scc1 L_IDLE""")
        slate = self.o("slate", 0)
        if slate:
            self.common_scalars()
            self.persistent()
        self.pre_setup()
        a("s_waitcnt lgkmcnt(0)")
        if slate > 1: a(f"s_sleep {slate}")
        self.pre_loads()
        if self.o("hat", 0) == 0:
            L7 = a.newlabel("H7")
            a(f"s_cmp_eq_u32 s{sWAVE}, 7\ns_cbranch_scc1 {L7}")
            self.conv_scalars()
            a.label(L7)
        if self.stamps: a("v_mov_b32 v1, 0")
        self.stamp("start")
        self.srd(rWS, pWS, WS_SIZE)
        if not slate:
            self.common_scalars()
            self.persistent()
        a(f"""v_mov_b32 v44, {L_SIG}
        v_mov_b32 v46, 0
        v_mov_b32 v47, 0
        ds_write_b64 v44, v[46:47]
        ds_write_b64 v44, v[46:47] offset:8
        v_and_b32 v46, 1, v0
        v_lshlrev_b32 v46, 7, v46
        s_waitcnt lgkmcnt(0)""")
        self.pre_store_setup()
        self.bar()
        self.ewait()
        self.stamp("s.kv")
        if self.o("sprio", 0): a(f"s_setprio {self.o('sprio', 0)}")
        PC = self.pre_compute_list()
        nch = self.o("nchunk", 2)
        per = -(-len(PC) // nch)
        for c in range(nch):
            for l in (PC[c*per:(c+1)*per] if "v" not in self.o("ab", "") else []): a(l)
            if c < nch - 1 or self.o("barst", 1): self.bar()
        self.pre_stores()
        if self.o("hat", 0) == 1:
            L7 = a.newlabel("H7")
            a(f"s_cmp_eq_u32 s{sWAVE}, 7\ns_cbranch_scc1 {L7}")
            self.conv_scalars()
            a.label(L7)
        self.srd(rC, pDBG, 256)
        a(f"buffer_load_dword v47, v46, s[{rC}:{rC+3}], 0 offen sc1")
        self.stamp("s.st")
        self.ewait()
        self.last_flag(8, f"s{sNCH}", T5, 114)
        self.stamp("s.F1set")
        a(f"s_cmp_eq_u32 s{sWAVE}, 7\ns_cbranch_scc1 L_FETCH")
        if self.o("hat", 0) == 2:
            LG, LD = a.newlabel("SG"), a.newlabel("SGD")
            a.label(LG)
            a(f"s_cmp_ge_u32 s{sBC}, 10\ns_cbranch_scc1 {LD}\ns_cmp_ge_u32 s{sBC}, s{sNB}\ns_cbranch_scc1 {LD}\ns_barrier\ns_add_u32 s{sBC}, s{sBC}, 1\ns_branch {LG}")
            a.label(LD)
            self.conv_scalars()
        self.bar_rest()
        a("s_branch L_CONV")
        a.label("L_D_NT")
        self.conv_scalars()
        a("s_barrier\ns_branch L_CONV")
        a.label("L_IDLE")
        a("s_waitcnt lgkmcnt(0)")
        if self.stamps: a("v_mov_b32 v1, 0")
        self.stamp("start")
        self.srd(rWS, pWS, WS_SIZE)
        self.common_scalars()
        self.persistent()
        for l in self.att_init_list(): a(l)
        self.bar_rest()
        a("s_branch L_ATT")
        self.fetcher()

    def fetcher(self):
        a = self.a
        a.label("L_FETCH")
        a.reset_counters()
        OK = a.newlabel("CNTOK")
        a("s_setprio 0")
        self.poll_check(47, 1, cmp="v_cmp_le_u32 vcc, 0x80, v47")
        a(f"s_cbranch_scc1 {OK}")
        self.epoll([(46, rC, 0, 1)], 47, cmp="v_cmp_le_u32 vcc, 0x80, v47")
        a.label(OK)
        a(f"""s_andn2_b32 s{T1}, s{sCH0}, 63
        s_add_u32 s{T2}, s{sCH0}, s{sNCH}
        s_sub_u32 s{T2}, s{T2}, 1
        s_or_b32 s{T2}, s{T2}, 63""")
        for r in (T1, T2):
            a(f"""s_mul_i32 s{T3}, s{r}, 13108
            s_lshr_b32 s{T3}, s{T3}, 16
            s_mul_i32 s{T4}, s{T3}, 5
            s_sub_u32 s{T4}, s{r}, s{T4}
            s_lshl_b32 s{T3}, s{T3}, 1
            s_cmp_ge_u32 s{T4}, 3
            s_addc_u32 s{r}, s{T3}, 0""")
        a(f"""v_add_u32 v9, s{T1}, v0
        v_min_u32 v9, s{T2}, v9
        v_lshlrev_b32 v9, 6, v9
        v_add_u32 v9, {F1:#x}, v9""")
        if self.o("pgate", 9):
            LG, LD = a.newlabel("PG"), a.newlabel("PGD")
            a.label(LG)
            a(f"s_cmp_ge_u32 s{sBC}, {self.o('pgate', 9)}\ns_cbranch_scc1 {LD}\ns_cmp_ge_u32 s{sBC}, s{sNB}\ns_cbranch_scc1 {LD}\ns_barrier\ns_add_u32 s{sBC}, s{sBC}, 1\ns_branch {LG}")
            a.label(LD)
        if "p" not in self.o("ab", ""): self.mpoll([9], 16, elastic=True)
        self.stamp("f.F1ok")
        a(f"s_lshl_b32 s{T2}, s{sCH0}, 12\ns_add_u32 s{T2}, s{T2}, {UR:#x}")
        for c in range(3 if "u" not in self.o("ab", "") else 0):
            L = a.newlabel("NOU")
            if c == 2: a(f"s_cmp_lt_u32 s{sNCH}, 3\ns_cbranch_scc1 {L}")
            a(f"s_mov_b32 m0, {L_CONV + c*CONV_SZ + U_OFF}\ns_add_u32 s{T1}, s{T2}, {4096*c}")
            for j in range(4): a(f"buffer_load_dwordx4 v{L16}, s[{rWS}:{rWS+3}], s{T1} offen offset:{1024*j} sc1 lds")
            if c == 2: a.label(L)
        a("v_mov_b32 v45, 1")
        self.ewait()
        a("ds_write_b32 v44, v45")
        self.stamp("f.u")
        self.bar_rest()
        for l in self.att_init_list(): a(l)
        a("s_branch L_ATT")
    def kv_fetch(self):
        a = self.a
        a.reset_counters()
        OK = a.newlabel("CNTOK")
        self.poll_check(29, 1, cmp="v_cmp_le_u32 vcc, 0x80, v29")
        a(f"s_cbranch_scc1 {OK}")
        self.poll([(28, rC, 0, 1)], 29, cmp="v_cmp_le_u32 vcc, 0x80, v29")
        a.label(OK)
        self.mpoll([30, 31], 16)
        self.stamp("f.F2ok")
        a(f"""s_mul_i32 s{T0}, s{sHEAD}, {Q_HS}
        s_mul_i32 s{T1}, s{sQB}, {4*Q_US}
        s_add_u32 s{T0}, s{T0}, s{T1}
        s_add_u32 s{T0}, s{T0}, {QO:#x}""")
        def lin(sbase, lds0, n):
            for k in range(n):
                if k % 4 == 0: a(f"s_mov_b32 m0, {lds0 + 1024*k}\ns_add_u32 s{T1}, s{sbase}, {1024*k}")
                a.vm(f"buffer_load_dwordx4 v{L16}, s[{rWS}:{rWS+3}], s{T1} offen offset:{1024*(k%4)} sc1 lds")
        lin(T0, L_Q, 10)
        lin(sKVB, 0, 40)
        a(f"v_mov_b32 v16, {L_SIG}\nv_mov_b32 v17, 1")
        a.wait_all()
        a("ds_write_b32 v16, v17 offset:4")
        self.stamp("f.kv0")
    def kv_fetch_setup(self):
        a = self.a
        self.srd(rC, pDBG, 256)
        a(f"""s_mul_i32 s{T0}, s{sHEAD}, 20
        v_and_b32 v28, 15, v0
        v_lshrrev_b32 v30, 4, v0
        v_and_b32 v31, 1, v30
        v_mul_u32_u24 v31, 19, v31
        v_add_u32 v31, s{T0}, v31
        v_lshrrev_b32 v31, 7, v31
        v_lshrrev_b32 v30, 1, v30
        v_mul_u32_u24 v30, 5, v30
        v_add3_u32 v30, v30, v31, 5
        v_lshl_add_u32 v30, v30, 4, v28
        v_lshlrev_b32 v30, 6, v30
        v_add_u32 v30, {F2:#x}, v30
        v_lshl_add_u32 v31, v31, 4, s{sQB}
        v_add_u32 v31, s{sQB}, v31
        v_and_b32 v28, 1, v0
        v_add_u32 v31, v31, v28
        v_lshlrev_b32 v31, 6, v31
        v_add_u32 v31, {F2:#x}, v31
        v_lshlrev_b32 v28, 7, v28""")

    def sig_wait(self, off):
        a = self.a
        L, D = a.newlabel("SIG"), a.newlabel("SIGD")
        a(f"v_mov_b32 v14, {L_SIG}\ns_mov_b32 s{sCNT}, 0")
        a.label(L)
        a(f"""ds_read_b32 v15, v14 offset:{off}
        s_waitcnt lgkmcnt(0)
        v_readfirstlane_b32 s{T0}, v15
        s_add_u32 s{sCNT}, s{sCNT}, 1
        s_cmp_lg_u32 s{T0}, 0
        s_cbranch_scc1 {D}
        s_sleep 1
        s_cmp_lt_u32 s{sCNT}, {POLL_MAX*40}
        s_cbranch_scc1 {L}""")
        a.label(D)
    def conv(self):
        a = self.a
        a.reset_counters()
        ACC, FR = 16, 64
        HA, UB, UE, YS, DV = 2, 3, 4, 5, self.DV_
        a(f"s_waitcnt vmcnt(0)\ns_setprio {self.o('hprio', 0)}")
        for g in range(4):
            a(f"ds_read_b128 {vr(self.HD_+6*g,4)}, v{self.HL} offset:{1024*g}")
            a(f"ds_read_b64 {vr(self.HD_+6*g+4,2)}, v{self.HL} offset:{1024*g+16}")
        a("s_waitcnt lgkmcnt(0)")
        self.h_to_lds(self.HD_, 0)
        a(f"""v_lshrrev_b32 v8, 4, v0
        s_lshl_b32 s{T0}, s{sCH}, 12
        v_lshrrev_b32 v9, 2, v0
        v_and_b32 v9, 3, v9
        v_mul_u32_u24 v9, {CS}, v9
        v_lshl_add_u32 v9, v8, 4, v9
        v_and_b32 v10, 3, v0
        v_lshl_add_u32 v9, v10, 3, v9
        v_add_u32 v{HA}, s{T6}, v9
        v_and_b32 v9, 15, v0
        v_lshlrev_b32 v9, 5, v9
        v_lshlrev_b32 v10, 4, v8
        v_sub_u32 v10, v10, v9
        v_add_u32 v10, s{T6}, v10
        v_add_u32 v{UB}, {U_OFF + 480}, v10
        v_lshl_add_u32 v9, v8, 3, v9
        v_sub_u32 v10, s{T6}, v9
        v_add_u32 v{UE}, {U_OFF + 504}, v10
        s_add_u32 s{T0}, s{T0}, {YD:#x}
        v_add_u32 v{YS}, s{T0}, v9
        v_lshlrev_b32 v7, 16, v{DV}""")
        self.stamp("v.h")
        self.sig_wait(0)
        a(f"s_setprio {self.o('cprio', 3)}")
        a.reset_counters()
        def reads(rho):
            st = FR + 64 * (rho & 1)
            ra = lambda i, q: (lambda: a.ds(f"ds_read_b64_tr_b16 {vr(st+4*i+2*q,2)}, v{HA} offset:{64*(8*i+rho) + 8*q}"))
            rb = lambda d: (lambda: a.ds(f"ds_read_b128 {vr(st+32+4*d,4)}, v{UB} offset:{64*(56 - (8*d - rho))}"))
            L = [("A0", ra(0,0)), ("A0", ra(0,1))] + [(f"B{d}", rb(d)) for d in range(8)]
            for i in range(1, 8): L += [(f"A{i}", ra(i,0)), (f"A{i}", ra(i,1))]
            return L
        toks = {}
        for n, f in reads(0): toks[n] = f()
        self.stamp("v.u")
        init = self.att_init_list()
        for rho in range(8):
            st = FR + 64 * (rho & 1)
            nxt = reads(rho + 1) if rho < 7 else []
            out = {}; k = 0; m = 0
            for i in range(8):
                for c in range(i, 8):
                    a.wait(toks[f"A{i}"], toks[f"B{c-i}"])
                    d = ACC + 4 * c
                    a(f"v_mfma_f32_16x16x32_bf16 {vr(d,4)}, {vr(st+4*i,4)}, {vr(st+32+4*(c-i),4)}, {'0' if (rho == 0 and i == 0) else vr(d,4)}")
                    m += 1
                    if m >= 4 and k < len(nxt): out[nxt[k][0]] = nxt[k][1](); k += 1
                    elif m >= 28 and init: a(init.pop())
            assert k == len(nxt)
            toks = out
        assert not init
        self.stamp("v.mfma")
        tu = [a.ds(f"ds_read_b64 {vr(FR+2*c,2)}, v{UE} offset:{512*(7-c)}") for c in range(8)]
        for c in range(8):
            a.wait(tu[c])
            d, u, t = ACC + 4*c, FR + 2*c, FR + 32 + 8*(c & 3)
            a(f"""v_and_b32 v{t}, 0xffff0000, v{u+1}
            v_lshlrev_b32 v{t+1}, 16, v{u+1}
            v_and_b32 v{t+2}, 0xffff0000, v{u}
            v_lshlrev_b32 v{t+3}, 16, v{u}""")
            for e in range(4): a(f"v_fmac_f32 v{d+e}, v7, v{t+e}")
            a(f"v_cvt_pk_bf16_f32 v{t+4}, v{d}, v{d+1}\nv_cvt_pk_bf16_f32 v{t+5}, v{d+2}, v{d+3}")
            a.vm(f"buffer_store_dwordx2 {vr(t+4,2)}, v{YS}, s[{rWS}:{rWS+3}], 0 offen offset:{512*c} sc1")
        self.stamp("v.st")

    def m2b(self, S, j=1): self.a(f"v_mfma_f32_32x32x4_2b_bf16 {vr(S,32)}, {vr(KRM,2)}, {vr((QR2, QR)[j],2)}, 0")
    def mqk(self, S, h, j=1): self.a(f"v_mfma_f32_32x32x16_bf16 {vr(S+16*h,16)}, {vr(KM+4*h,4)}, {vr((QM2, QM)[j],4)}, {vr(S+16*h,16)}")
    def smf(self, V, P, j=1): self.a(f"v_smfmac_f32_32x32x32_bf16 {vr((O2, O_)[j],16)}, {vr(V,4)}, {vr(P,8)}, v{IDX}")
    def side_kv(self, add):
        a = self.a
        def mk(j):
            def f():
                if j == 0: a(f"s_add_u32 m0, s{sKVW}, {add*KV_US}\ns_add_u32 s{T5}, s{sKVG}, {add*KV_US}")
                if j == 4: a(f"s_add_u32 m0, m0, 4096\ns_add_u32 s{T5}, s{T5}, 4096")
                a.vm(f"buffer_load_dwordx4 v{L16}, s[{rWS}:{rWS+3}], s{T5} offen offset:{1024*(j%4)} sc1 lds")
            return f
        return [mk(j) for j in range(5)]
    def side_wo(self):
        a = self.a
        def mk(k):
            def f():
                L = a.newlabel("NOWO")
                if k == 0: a(f"s_mul_i32 s{T4}, s{sWAVE}, {13*1024}\ns_add_u32 m0, s{T4}, {L_WO}")
                else: a("s_add_u32 m0, m0, 1024")
                if k % 5 == 0: a(f"s_mov_b32 s{T5}, {40960*(k//5)}")
                elif k < 9: a("s_nop 0")
                if k >= 9: a(f"s_cmp_eq_u32 s{sWAVE}, 7\ns_cbranch_scc1 {L}")
                a.vm(f"buffer_load_dwordx4 v{WOV + k%5}, s[{rA}:{rA+3}], s{T5} offen lds")
                if k >= 9: a.label(L)
            return f
        return [mk(k) for k in range(13)]
    def side_yd(self):
        a = self.a
        def f0():
            OK = a.newlabel("F3OK")
            a.wait(self.tF3)
            self.poll_check(F3T, 2)
            a(f"s_cbranch_scc1 {OK}")
            snap = a.snapshot(); self.poll([(AF3, rWS, 0, 2)], F3T); a.restore(snap)
            a.label(OK)
            a(f"s_mul_i32 s{T5}, s{sWAVE}, 1280\ns_add_u32 m0, s{T5}, {L_YD}\ns_mov_b32 s{T5}, {8*4096 - 1024}")
            a.vm(f"buffer_load_dwordx4 v{YDV}, s[{rWS}:{rWS+3}], 0 offen sc1 lds")
            a("s_mov_b64 exec, 0xffff")
            a.vm(f"buffer_load_dwordx4 v{YDV}, s[{rWS}:{rWS+3}], s{T5} offen offset:1024 sc1 lds")
            a("s_mov_b64 exec, -1")
        return [f0]
    def side_x(self):
        a = self.a
        def mk(j):
            def f():
                if j == 0: self.srd(rA, pX, 2048 * 1280)
                a.vm(f"buffer_load_dwordx2 {vr(XE+2*j,2)}, v{AOUT}, s[{rA}:{rA+3}], 0 offen offset:{32*j}")
            return f
        def f3(): self.tF3 = a.vm(f"buffer_load_dwordx2 {vr(F3T,2)}, v{AF3}, s[{rWS}:{rWS+3}], 0 offen sc1")
        return [mk(j) for j in range(3)] + [f3]
    def attention(self):
        a = self.a
        a.label("L_ATT")
        a.reset_counters()
        for e in range(16): a(f"v_mov_b32 v{O2+e}, 0")
        self.sig_wait(4)
        self.stamp("att0")
        US2 = 2 * KV_US
        base = {"K": 0, "V": 0}
        def bump(kind, u):
            while u * US2 - base[kind] > 5 * US2:
                base[kind] += 6 * US2
                for r in ((AKM, AKR) if kind == "K" else (AV,)): a(f"v_add_u32 v{r}, {6*US2}, v{r}")
            return u * US2 - base[kind]
        def rKR(u): o = bump("K", u); return a.ds(f"ds_read_b64 {vr(KRM,2)}, v{AKR} offset:{o}")
        def rKM(u, h): o = bump("K", u); return a.ds(f"ds_read_b128 {vr(KM+4*h,4)}, v{AKM} offset:{o + 1024*h}")
        def rV(u):
            o = bump("V", u)
            a(f"s_mov_b64 exec, s[{sVMASK}:{sVMASK+1}]")
            for g in range(4): t = a.ds(f"ds_read_b128 {vr(VS[u&1]+4*g,4)}, v{AV} offset:{o + 640*g}")
            a("s_mov_b64 exec, -1")
            return t
        tq = [a.ds(f"ds_read_b64 {vr(QR2,2)}, v{AQR2} offset:2048")]
        tKR = rKR(0)
        tq.append(a.ds(f"ds_read_b128 {vr(QM2,4)}, v{AQM2}"))
        tK0 = rKM(0, 0); tK1 = rKM(0, 1)
        tq.append(a.ds(f"ds_read_b64 {vr(QR,2)}, v{AQR} offset:2048"))
        tq.append(a.ds(f"ds_read_b128 {vr(QM,4)}, v{AQM}"))
        tV = {0: rV(0)}
        side = self.side_kv(8)
        a.wait(tq[0], tKR); self.m2b(S_, 0)
        for _ in range(4): side.pop(0)()
        a.nop(12)
        a.wait(tq[1], tK0); self.mqk(S_, 0, 0)
        a.wait(tK1); self.mqk(S_, 1, 0)
        side.pop(0)()
        a.nop(8)
        zones = {0: self.o("z0", "3,5"), 6: self.o("z1", "3,5,7"), 14: self.o("z1", "3,5,7"), 22: self.o("z3", "3,5,7"), 30: self.o("z4", "1")}
        prio = {}
        if self.o("prio", 1):
            for u0, z in zones.items():
                zz = [int(x) for x in z.split(",")]
                prio[u0] = len(zz)
                for k, d in enumerate(zz): prio[u0 + d] = len(zz) - 1 - k
        for t in range(32):
            if t % 8 == 6 and t < 30:
                assert not side
                side = self.att_sync(t // 8)
            if t == 30: a("s_barrier")
            if t in prio: a(f"s_setprio {prio[t]}")
            u, j = t >> 1, t & 1
            X, Y = S_ + 32 * j, S_ + 32 * (1 - j)
            Vc, Vp = VS[u & 1], VS[((t - 1) >> 1) & 1]
            nx = t < 31
            rl = j == 0 and u < 15
            for p in range(32):
                if p == 2:
                    if t == 0: a.wait(tq[2])
                    if j == 1 and nx: a.wait(tKR)
                    if t > 0: self.smf(Vp + 12, Y + 24, 1 - j)
                    if rl: tV[u+1] = rV(u + 1)
                if p == 6 and nx:
                    self.m2b(Y, 1 - j)
                    if rl: tKR = rKR(u + 1)
                if p in (10, 20) and side: side.pop(0)()
                if t == 31 and p in (16, 20, 24): a.ds(f"ds_write_b128 v{AEX}, {vr(O2+(p-16),4)} offset:{256*(p-16)}")
                if t == 31 and p == 28: a.ds(f"ds_write_b32 v{AEX}, v{O2+12} offset:3072")
                if p == 14: a.wait(tV[u]); self.smf(Vc, X, j)
                if p == 18: self.smf(Vc + 4, X + 8, j)
                if p == 22 and nx:
                    a.wait(tK0, tK1, tq[3]); self.mqk(Y, 0, 1 - j)
                    if rl: tK0 = rKM(u + 1, 0)
                if p == 26: self.smf(Vc + 8, X + 16, j)
                if p == 30 and nx:
                    self.mqk(Y, 1, 1 - j)
                    if rl: tK1 = rKM(u + 1, 1)
                a(f"v_exp_f32 v{X+p}, v{X+p}")
        assert not side
        a.nop(2)
        self.smf(VS[1] + 12, S_ + 32 + 24, 1)
        self.stamp("attend")
        a("s_setprio 0")
        a.wait_all(vm=False)
        a("s_barrier")
        tl = a.ds(f"ds_read_b32 v{O2+12}, v{APX} offset:3072")
        tp = [a.ds(f"ds_read_b128 {vr(O2+4*k,4)}, v{APX} offset:{1024*k}") for k in range(3)]
        self.fin_pre()
        a.nop(1)
        a.wait(tl); a(f"v_add_f32 v{O_+12}, v{O_+12}, v{O2+12}")
        for k in range(3):
            a.wait(tp[k])
            for e in range(4): a(f"v_add_f32 v{O_+4*k+e}, v{O_+4*k+e}, v{O2+4*k+e}")
    def att_sync(self, k):
        a = self.a
        if k == 0:
            a.wait_all(vm=True, ds=False, force=True)
            L = a.newlabel("NOF3")
            a(f"s_cmp_ge_u32 s{sLW}, s{sNCH}\ns_cbranch_scc1 {L}")
            a(f"s_lshl_b32 s{T0}, s{sCH}, 2\ns_add_u32 s{T0}, s{T0}, {F3:#x}")
            self.flag_store(T0, 14)
            a.label(L)
            a("s_barrier")
            self.stamp("sync0")
            return self.side_kv(16) + self.side_kv(24)
        if k == 1:
            a.wait_all(vm=True, ds=False, force=True)
            a("s_barrier")
            self.stamp("sync1")
            return self.side_x()
        a("s_barrier")
        self.stamp("sync2")
        self.srd(rA, pWO, 640 * 1280)
        return self.side_yd() + self.side_wo()

    def fin_pre(self):
        self.a(f"""v_lshlrev_b32 v2, 3, v0
        s_mov_b32 s{T2}, {f2u(2.0**-60):#x}
        s_mov_b32 s{T3}, {f2u(2.0**60):#x}
        s_mov_b32 s{T4}, 0x7f7fffff""")
    def finish(self):
        a = self.a
        O, TMP = O_, 16
        ACC, OF, WF, G = 224, 16, 56, 14
        a.label("L_NORM")
        a(f"v_rcp_f32 v{TMP+4}, v{O+12}")
        for e in range(4): a(f"v_add_f32 v{TMP+e}, abs(v{O+e}), abs(v{O+4+e})")
        for e in range(4): a(f"v_add_f32 v{TMP+e}, v{TMP+e}, abs(v{O+8+e})")
        a(f"""v_add_f32 v{TMP}, v{TMP}, v{TMP+1}
        v_add_f32 v{TMP+2}, v{TMP+2}, v{TMP+3}
        v_cmp_le_f32 vcc, s{T2}, v{O+12}
        v_cmp_ge_f32 s[{sM}:{sM+1}], s{T3}, v{O+12}
        v_add_f32 v{TMP}, v{TMP}, v{TMP+2}
        s_nop 0
        s_and_b64 s[{sM}:{sM+1}], s[{sM}:{sM+1}], vcc
        v_cmp_ge_f32 vcc, s{T4}, v{TMP}
        s_nop 1
        s_and_b64 s[{sM}:{sM+1}], s[{sM}:{sM+1}], vcc
        s_cmp_eq_u64 s[{sM}:{sM+1}], exec
        s_cbranch_scc1 L_NORM_OK
        s_cmp_eq_u32 s{sSLOW}, 0
        s_cbranch_scc1 L_SLOW""")
        a.label("L_NORM_OK")
        for e in range(8): a(f"v_mul_f32 v{O+e}, v{O+e}, v{TMP+4}")
        for e in range(4): a(f"v_cvt_pk_bf16_f32 v{TMP+8+e}, v{O+2*e}, v{O+2*e+1}")
        a(f"buffer_store_dwordx4 {vr(TMP+8,4)}, v{L16}, s[{rWS}:{rWS+3}], s{sOMS} offen sc1")
        for e in range(8, 12): a(f"v_mul_f32 v{O+e}, v{O+e}, v{TMP+4}")
        for e in range(4, 6): a(f"v_cvt_pk_bf16_f32 v{TMP+8+e}, v{O+2*e}, v{O+2*e+1}")
        a("s_mov_b32 exec_hi, 0")
        a(f"buffer_store_dwordx2 {vr(TMP+12,2)}, v2, s[{rWS}:{rWS+3}], s{sORS} offen sc1")
        a("s_mov_b32 exec_hi, -1")
        self.srd(rA, pOUT, 2048 * 1280)
        a("s_waitcnt vmcnt(0)\ns_barrier")
        a.reset_counters()
        L = a.newlabel("NOF4")
        a(f"s_cmp_lg_u32 s{sWAVE}, 0\ns_cbranch_scc1 {L}")
        self.flag_store(sF4S, 2)
        a.label(L)
        a.reset_counters()
        self.stamp("F4set")
        tg = a.vm(f"buffer_load_dword v{G}, v{AG}, s[{rWS}:{rWS+3}], 0 offen sc1")
        def wfrag(step, regstep):
            toks = []
            for b in range(5):
                for q in range(2):
                    if step < 8: ad, off = (WM0 if b < 2 else WM1), (40*step + 8*q)*160 + 32*b
                    else: ad, off = (WR0 if b < 2 else WR1), (160*(step-8) + 80*q)*160 + 32*b
                    t = a.ds(f"ds_read_b64_tr_b16 {vr(WF + 20*regstep + 4*b + 2*q, 2)}, v{ad} offset:{L_WO + off}")
                toks.append(t)
            return toks
        tw = {s: wfrag(s, s) for s in range(8)}
        YR, BB = 2, 16
        ty = [a.ds(f"ds_read_b64_tr_b16 {vr(YR+2*b,2)}, v{AYD} offset:{2048*b}") for b in range(3)]
        keep = [216, 217, 218, 219, 220, 221, 222, 223, 2, 3, 4, 5]
        for b in range(3):
            a.wait(ty[b])
            x, y = XE + 2*b, YR + 2*b
            a(f"""v_lshlrev_b32 v16, 16, v{x}
            v_and_b32 v17, 0xffff0000, v{x}
            v_lshlrev_b32 v18, 16, v{x+1}
            v_and_b32 v19, 0xffff0000, v{x+1}
            v_lshlrev_b32 v20, 16, v{y}
            v_and_b32 v21, 0xffff0000, v{y}
            v_lshlrev_b32 v22, 16, v{y+1}
            v_and_b32 v23, 0xffff0000, v{y+1}""")
            for e in range(4): a(f"v_mul_f32 v{keep[4*b+e]}, v{16+e}, v{20+e}")
        L = a.newlabel("NOP4")
        a(f"s_cmp_lg_u32 s{sWAVE}, 0\ns_cbranch_scc1 {L}")
        snap = a.snapshot(); self.mpoll([AF4], 15); a.restore(snap)
        a.label(L)
        a("s_barrier")
        self.stamp("F4ok")
        to = {}
        for s in range(8):
            a(f"s_mov_b32 s{T0}, {s*131072}")
            to[s] = a.vm(f"buffer_load_dwordx4 {vr(OF+4*s,4)}, v{AOM}, s[{rWS}:{rWS+3}], s{T0} offen sc1")
        for rs in range(2):
            for q in range(2):
                a(f"s_mov_b32 s{T0}, {(8*rs+4*q)*16384}")
                to[8+rs] = a.vm(f"buffer_load_dwordx2 {vr(OF+32+4*rs+2*q,2)}, v{AOR}, s[{rWS}:{rWS+3}], s{T0} offen sc1")
        for s in range(10):
            rs = s if s < 8 else s - 8
            a.wait(to[s])
            order = range(5) if s < 9 else (2, 3, 4, 0, 1)
            for b in order:
                a.wait(tw[s][b])
                d = ACC + 4*b
                a(f"v_mfma_f32_16x16x32_bf16 {vr(d,4)}, {vr(WF+20*rs+4*b,4)}, {vr(OF+4*s,4)}, {'0' if s == 0 else vr(d,4)}")
            if s < 2: tw[8+s] = wfrag(8 + s, s)
        self.stamp("mfma")
        a.nop(4)
        for b in (2, 3, 4): a.ds(f"ds_write_b128 v{AEX}, {vr(ACC+4*b,4)} offset:{1024*(b-2)}")
        for b in range(3):
            for e in range(4): a(f"v_sub_f32 v{ACC+4*b+e}, v{ACC+4*b+e}, v{keep[4*b+e]}")
        a.wait_all(vm=False)
        a("s_barrier")
        tp = [a.ds(f"ds_read_b128 {vr(16+4*b,4)}, v{AX2} offset:{1024*b}") for b in range(3)]
        a.wait(tg)
        for b in range(3):
            if b == 2: a(f"s_cmp_lg_u32 s{sKH}, 0\ns_cbranch_scc1 L_FIN")
            a.wait(tp[b])
            for e in range(4): a(f"v_add_f32 v{16+4*b+e}, v{16+4*b+e}, v{ACC+4*b+e}")
            for e in range(4): a(f"v_fmac_f32 v{keep[4*b+e]}, v{G}, v{16+4*b+e}")
            a(f"v_cvt_pk_bf16_f32 v{32+2*b}, v{keep[4*b]}, v{keep[4*b+1]}\nv_cvt_pk_bf16_f32 v{33+2*b}, v{keep[4*b+2]}, v{keep[4*b+3]}")
            a.vm(f"buffer_store_dwordx2 {vr(32+2*b,2)}, v{AOUT}, s[{rA}:{rA+3}], 0 offen offset:{32*b}")
        a.label("L_FIN")
        if self.stamps:
            self.stamp("st")
            a("s_waitcnt vmcnt(0)")
            self.stamp("end")
            a(f"s_lshl_b32 s{T0}, s{sWG}, 3\ns_add_u32 s{T0}, s{T0}, s{sWAVE}\ns_lshl_b32 s{T0}, s{T0}, 8\ns_add_u32 s{T0}, s{T0}, {TS:#x}\nv_lshlrev_b32 v2, 2, v0")
            a(f"buffer_store_dword v1, v2, s[{rWS}:{rWS+3}], s{T0} offen")
            if "enc" in self.opt:
                n0, n1, wv, wg = self.opt["enc"].split(",")
                for n in (n0, n1):
                    if n not in self.names: self.names.append(n)
                a(f"s_cmp_lg_u32 s{sWG}, {wg}\ns_cbranch_scc1 L_END\ns_cmp_lg_u32 s{sWAVE}, {wv}\ns_cbranch_scc1 L_END")
                a(f"v_readlane_b32 s{T1}, v1, {self.names.index(n0)}\nv_readlane_b32 s{T2}, v1, {self.names.index(n1)}\nv_readlane_b32 s{T3}, v1, {self.names.index('end')}\ns_nop 3")
                a(f"s_sub_u32 s{T2}, s{T2}, s{T1}\ns_lshl_b32 s{T2}, s{T2}, 3\ns_and_b32 s{T2}, s{T2}, 0xffff\ns_add_u32 s{T3}, s{T3}, s{T2}")
                a.label("L_ENC")
                a(f"s_memrealtime s[{sTS}:{sTS+1}]\ns_waitcnt lgkmcnt(0)\ns_sub_u32 s{T1}, s{T3}, s{sTS}\ns_cmp_gt_i32 s{T1}, 0\ns_cbranch_scc1 L_ENC")
        a.label("L_END")
        a("s_endpgm")

    def slow(self):
        a = self.a
        S, V, M, AVS = S_, VS[0], 96, 98
        a.label("L_SLOW")
        a(f"""s_mov_b32 s{sSLOW}, 1
        v_and_b32 v{M}, 31, v0
        v_lshrrev_b32 v{AVS}, 5, v0
        v_mul_u32_u24 v{AVS}, 320, v{AVS}
        v_lshl_add_u32 v{AVS}, v{M}, 4, v{AVS}
        v_add_u32 v{AVS}, 2560, v{AVS}
        v_mov_b32 v{M}, 0xff800000""")
        def scores():
            a(f"""buffer_load_dwordx2 {vr(KRM,2)}, v2, s[{rWS}:{rWS+3}], s{T6} offen offset:2048 sc1
            buffer_load_dwordx4 {vr(KM,4)}, v{L16}, s[{rWS}:{rWS+3}], s{T6} offen sc1
            buffer_load_dwordx4 {vr(KM+4,4)}, v{L16}, s[{rWS}:{rWS+3}], s{T6} offen offset:1024 sc1
            s_waitcnt vmcnt(0)""")
            self.m2b(S); a.nop(18); self.mqk(S, 0); self.mqk(S, 1); a.nop(12)
        a(f"s_mov_b32 s{T6}, s{sKVB}\ns_mov_b32 s{sCNT}, 0")
        a.label("L_SLOW1")
        scores()
        for e in range(16): a(f"v_max3_f32 v{M}, v{M}, v{S+2*e}, v{S+2*e+1}")
        a(f"s_add_u32 s{T6}, s{T6}, {KV_US}\ns_add_u32 s{sCNT}, s{sCNT}, 1\ns_cmp_lt_u32 s{sCNT}, 32\ns_cbranch_scc1 L_SLOW1")
        a(f"v_mov_b32 v{M+1}, v{M}\ns_nop 1\nv_permlane32_swap_b32 v{M}, v{M+1}\ns_nop 1\nv_max_f32 v{M}, v{M}, v{M+1}")
        for e in range(16): a(f"v_mov_b32 v{O_+e}, 0")
        a(f"s_mov_b32 s{T6}, s{sKVB}\ns_mov_b32 s{sCNT}, 0")
        a.label("L_SLOW2")
        a(f"s_mov_b64 exec, s[{sVMASK}:{sVMASK+1}]")
        for g in range(4): a(f"buffer_load_dwordx4 {vr(V+4*g,4)}, v{AVS}, s[{rWS}:{rWS+3}], s{T6} offen offset:{640*g} sc1")
        a("s_mov_b64 exec, -1")
        scores()
        for e in range(32): a(f"v_sub_f32 v{S+e}, v{S+e}, v{M}")
        for e in range(32): a(f"v_exp_f32 v{S+e}, v{S+e}")
        a.nop(2)
        for g in range(4): self.smf(V + 4*g, S + 8*g)
        a(f"s_add_u32 s{T6}, s{T6}, {KV_US}\ns_add_u32 s{sCNT}, s{sCNT}, 1\ns_cmp_lt_u32 s{sCNT}, 32\ns_cbranch_scc1 L_SLOW2")
        a.nop(12)
        a("s_branch L_NORM")

    def build(self):
        self.prologue(); self.dma_role(); self.attention(); self.finish(); self.side_role(); self.gemm_compute(); self.slow(); self.a.label('L_CODE_END')
        bad = lint(self.a.lines)
        head = f"""; Fused kernel: QKV projection, depthwise convolutions, attention, output projection and gated mix.
; One persistent workgroup per CU; hand-offs through d_ws flags that every launch clears itself (counted in d_debug).
; @launch grid=(256,1,1) block=(512,1,1) lds={LDS_BYTES}
.amdgcn_target "amdgcn-amd-amdhsa--gfx950"
.text
.globl {NAME}
.p2align 8
.type {NAME},@function
{NAME}:
"""
        tail = f""".section .rodata,"a"
.p2align 6
.amdhsa_kernel {NAME}
  .amdhsa_next_free_vgpr 256
  .amdhsa_next_free_sgpr 102
  .amdhsa_accum_offset 256
  .amdhsa_group_segment_fixed_size 0
  .amdhsa_kernarg_size 104
  .amdhsa_user_sgpr_count 2
  .amdhsa_user_sgpr_kernarg_segment_ptr 1
  .amdhsa_system_sgpr_workgroup_id_x 1
  .amdhsa_float_denorm_mode_32 3
.end_amdhsa_kernel
"""
        return head + self.a.text() + tail, bad

if __name__ == "__main__":
    out = sys.argv[1] if len(sys.argv) > 1 else "gated_mix__mha_block__ssm_conv_h3__prompt.s"
    opt = dict(x[2:].split("=") for x in sys.argv if x.startswith("-D"))
    G = Gen(stamps="--stamps" in sys.argv, opt=opt)
    src, bad = G.build()
    if G.stamps: src = src.replace("; @launch", "; STAMPS " + " ".join(G.names) + "\n; @launch", 1)
    for b in bad: print("LINT:", b)
    open(out, "w").write(src)
    print("wrote", out, len(src), "bytes;", len(bad), "lint findings")
```

```python
import sys, math, struct
from asmlib import *

NAME = "gated_mix__mha_block__ssm_conv_h3__prompt_kernel"
def f2u(x): return struct.unpack("<I", struct.pack("<f", x))[0]

KV, QO, UR, YD, OM, ORM = 0, 0x500000, 0x780000, 0xA00000, 0xC80000, 0xE80000
F2, F4, F3, F5, GT, F1 = 0xF04000, 0xF08000, 0xF0C000, 0xF0D000, 0xF0E000, 0xFA0000
TS = 0xF10000
WS_SIZE = 0x1000000
KV_HS, KV_US = 163840, 5120
Q_HS, Q_US = 81920, 2560
NSLOT = 3
L_X, L_W = 0, 49152
L_Q, L_SIG = 81920, 162048
L_CONV, CONV_SZ, CS, U_OFF = 98304, 21248, 4160, 16640
L_WO, L_YD, L_EX = 0, 102400, 112640
LDS_BYTES = 163840
sWG, sWAVE = 2, 3
pX, pW, pWO, pWS, pK, pV, pSH, pH, pD, pGW, pOUT, pDBG = 4, 6, 8, 10, 12, 14, 16, 18, 20, 22, 24, 26
rWS, rA, rB, rC, rD = 28, 32, 36, 40, 44
sXCD, sI, sJT, sRT, sPRT, sCJ, sCH0, sNCH, sHEAD, sQB = 48, 49, 50, 51, 52, 53, 54, 55, 56, 57
sLW, sCH, sKH, sTB, sCNT, sSLOW = 58, 59, 60, 61, 62, 63
T0, T1, T2, T3, T4, T5, T6, T7 = 64, 65, 66, 67, 68, 69, 70, 71
sM = 72
sVMASK = 74
sTS = 76
sE = 78
sSC = 86
sKVB, sKVW, sOMS, sORS, sF4S, sCL = 87, 88, 89, 90, 91, 92
sNB, sBC, sU, sK = 93, 94, 95, 96
sM2 = 98
sKVG = 97
sRET = 52
POLL_MAX = 30000
IDX, AKM, AKR, AV, L16, AQM, AQR, AF3, YDV = 224, 225, 226, 227, 228, 229, 230, 231, 232
WOV = 233
F3T = 238
ONES, APX, AQM2, AQR2 = 240, 241, 242, 243
QM2, QR2, O2 = 128, 132, 144
WM0, WM1, WR0, WR1, AOM, AOR, AOUT, AG, AEX, AX2, AYD, AF4 = 244, 245, 246, 247, 248, 249, 250, 251, 252, 253, 254, 255
O_, QM, QR, KRM, KM, S_ = 192, 32, 36, 38, 40, 64
VS = (48, 208)
XE = 8

class Gen:
    def __init__(self, stamps=False, opt=None):
        self.a = Asm(); self.stamps = stamps; self.names = []; self.opt = opt or {}
        self.nt = " nt" if int(self.opt.get("nt", 1)) else ""
        self.gnt = " nt" if int(self.opt.get("gnt", 0)) else ""
    def o(self, k, d): return type(d)(self.opt.get(k, d))
    def srd(self, r, p, size):
        self.a(f"s_mov_b32 s{r}, s{p}\ns_mov_b32 s{r+1}, s{p+1}\ns_mov_b32 s{r+2}, {size:#x}\ns_mov_b32 s{r+3}, 0x20000")
    def stamp(self, name):
        if not self.stamps: return
        if name not in self.names: self.names.append(name)
        k = self.names.index(name); assert k < 60
        self.a(f"s_memrealtime s[{sTS}:{sTS+1}]\ns_waitcnt lgkmcnt(0)\nv_writelane_b32 v1, s{sTS}, {k}")
        if name in ("att0", "attend"): self.a(f"s_memtime s[{sTS}:{sTS+1}]\ns_waitcnt lgkmcnt(0)\nv_writelane_b32 v1, s{sTS}, {60 if name == 'att0' else 61}")
        if name == "start":
            if "entry" not in self.names: self.names.append("entry")
            self.a(f"v_writelane_b32 v1, s100, {self.names.index('entry')}")
        if name == "start": self.a(f"s_memtime s[{sTS}:{sTS+1}]\ns_waitcnt lgkmcnt(0)\nv_writelane_b32 v1, s{sTS}, 62")
        if name == "end": self.a(f"s_memtime s[{sTS}:{sTS+1}]\ns_waitcnt lgkmcnt(0)\nv_writelane_b32 v1, s{sTS}, 63")
        self.a.done["ds"] = self.a.n["ds"]
    def poll(self, loads, tmp, cmp=None):
        a = self.a
        L, D = a.newlabel("POLL"), a.newlabel("POLLD")
        a(f"s_mov_b32 s{sCNT}, 0")
        a.label(L)
        k = 0
        for (va, r, imm, wd) in loads:
            ins = {1: "buffer_load_dword", 2: "buffer_load_dwordx2", 4: "buffer_load_dwordx4"}[wd]
            a(f"{ins} {vr(tmp+k, wd)}, v{va}, s[{r}:{r+3}], 0 offen offset:{imm} sc1"); k += wd
        a("s_waitcnt vmcnt(0)")
        a.done["vm"] = a.n["vm"]
        self.poll_check(tmp, k, cmp)
        a(f"s_cbranch_scc1 {D}")
        a(f"s_add_u32 s{sCNT}, s{sCNT}, 1\ns_cmp_lt_u32 s{sCNT}, {POLL_MAX}\ns_cbranch_scc0 {D}\ns_sleep 1\ns_branch {L}")
        a.label(D)
    def mpoll(self, addrs, tmp, elastic=False):
        a = self.a
        L, D = a.newlabel("MP"), a.newlabel("MPD")
        M = [sM, sM2][:len(addrs)]
        a(f"s_mov_b32 s{sCNT}, 0")
        for m in M: a(f"s_mov_b64 s[{m}:{m+1}], -1")
        a.label(L)
        for k, (va, m) in enumerate(zip(addrs, M)):
            S = a.newlabel("MS")
            a(f"s_mov_b64 exec, s[{m}:{m+1}]\ns_cbranch_execz {S}\nbuffer_load_dword v{tmp+k}, v{va}, s[{rWS}:{rWS+3}], 0 offen sc1")
            a.label(S)
        a("s_mov_b64 exec, -1")
        if elastic: self.ewait()
        else: a("s_waitcnt vmcnt(0)")
        a.done["vm"] = a.n["vm"]
        for k, m in enumerate(M):
            a(f"v_cmp_eq_u32 vcc, 0, v{tmp+k}\ns_nop 1\ns_and_b64 s[{m}:{m+1}], s[{m}:{m+1}], vcc")
        if len(M) == 2: a(f"s_or_b64 vcc, s[{sM}:{sM+1}], s[{sM2}:{sM2+1}]")
        a(f"s_cbranch_scc0 {D}")
        a(f"s_add_u32 s{sCNT}, s{sCNT}, 1\ns_cmp_lt_u32 s{sCNT}, {POLL_MAX}\ns_cbranch_scc0 {D}\ns_sleep {self.o('psleep', 4)}\ns_branch {L}")
        a.label(D)
    def last_flag(self, off, sN, sAddr, vt):
        a = self.a
        L = a.newlabel("NL")
        a(f"""v_mov_b32 v{vt}, {L_SIG}
        v_mov_b32 v{vt+1}, 1
        s_mov_b64 exec, 1
        ds_add_rtn_u32 v{vt+1}, v{vt}, v{vt+1} offset:{off}
        s_waitcnt lgkmcnt(0)
        v_readfirstlane_b32 s{T0}, v{vt+1}
        s_mov_b64 exec, -1
        s_add_u32 s{T0}, s{T0}, 1
        s_cmp_lg_u32 s{T0}, {sN}
        s_cbranch_scc1 {L}""")
        self.flag_store(sAddr, vt, two=True)
        a.label(L)
    def poll_check(self, tmp, k, cmp=None):
        a = self.a
        for j in range(1, k, 2):
            if j + 1 < k: a(f"v_min3_u32 v{tmp}, v{tmp}, v{tmp+j}, v{tmp+j+1}")
            else: a(f"v_min_u32 v{tmp}, v{tmp}, v{tmp+j}")
        a(cmp or f"v_cmp_ne_u32 vcc, 0, v{tmp}")
        a("s_nop 1\ns_cmp_eq_u64 vcc, exec")
    def flag_store(self, s, vt, two=False):
        a = self.a
        a(f"v_lshl_add_u32 v{vt}, v0, 2, s{s}\nv_mov_b32 v{vt+1}, 1\ns_mov_b64 exec, {3 if two else 1}")
        t = a.vm(f"buffer_store_dword v{vt+1}, v{vt}, s[{rWS}:{rWS+3}], 0 offen sc1")
        a("s_mov_b64 exec, -1")
        return t

    def prologue(self):
        a = self.a
        if self.stamps: a("s_memrealtime s[100:101]")
        a(f"s_cmp_ge_u32 s{sWG}, 256\ns_cbranch_scc1 L_END")
        if self.opt.get("diag") == "spin":
            a("s_mov_b32 s60, 2500\nv_mov_b32 v10, 0")
            a.label("L_DSPIN")
            for e in range(8): a(f"v_exp_f32 v{11+e}, v10")
            a("s_sub_u32 s60, s60, 1\ns_cmp_lg_u32 s60, 0\ns_cbranch_scc1 L_DSPIN")
        if self.opt.get("diag") == "chain":
            a("s_load_dwordx2 s[32:33], s[0:1], 24\ns_waitcnt lgkmcnt(0)\ns_mov_b32 s34, 2621440\ns_mov_b32 s35, 0x20000\ns_mul_i32 s60, s2, 256\nv_mov_b32 v10, s60")
            for e in range(32): a("buffer_load_dword v12, v10, s[32:35], 0 offen\ns_waitcnt vmcnt(0)\nv_and_b32 v12, 0, v12\nv_add_u32 v10, v10, v12\nv_add_u32 v10, 0x13000, v10")
        if self.opt.get("diag") == "bq":
            a("s_load_dwordx2 s[32:33], s[0:1], 24\ns_waitcnt lgkmcnt(0)\ns_mov_b32 s34, 2621440\ns_mov_b32 s35, 0x20000\nv_lshlrev_b32 v10, 4, v0\ns_mul_i32 s60, s2, 10240")
            a("buffer_load_dwordx4 v[12:15], v10, s[32:35], s60 offen\ns_add_u32 s60, s60, 2048\nbuffer_load_dwordx4 v[16:19], v10, s[32:35], s60 offen\ns_waitcnt vmcnt(0)")
        a(f"""s_load_dwordx4 s[4:7], s[0:1], 0
        s_load_dwordx16 s[12:27], s[0:1], 32
        s_load_dwordx2 s[10:11], s[0:1], 96
        s_load_dwordx2 s[8:9], s[0:1], 16
        v_lshrrev_b32 v1, 6, v0
        v_and_b32 v0, 63, v0
        s_and_b32 s{sXCD}, s{sWG}, 7
        v_readfirstlane_b32 s{sWAVE}, v1
        s_lshr_b32 s{sI}, s{sWG}, 3
        s_and_b32 s{T0}, s{sXCD}, 1
        s_mul_i32 s{T0}, s{T0}, 30
        s_add_u32 s{T0}, s{T0}, s{sI}
        s_lshr_b32 s{sJT}, s{T0}, 2
        s_and_b32 s{T0}, s{T0}, 3
        s_lshr_b32 s{T1}, s{sXCD}, 1
        s_lshl_b32 s{T1}, s{T1}, 2
        s_add_u32 s{sRT}, s{T0}, s{T1}
        s_lshr_b32 s{T0}, s{sWG}, 1
        s_mul_i32 s{T0}, s{T0}, 5
        s_and_b32 s{T1}, s{sWG}, 1
        s_mul_i32 s{T2}, s{T1}, 3
        s_add_u32 s{sCH0}, s{T0}, s{T2}
        s_sub_u32 s{sNCH}, 3, s{T1}
        s_sub_u32 s{sLW}, s{sWAVE}, 4""")
        if self.o("cpf", 1) == 2: self.code_prefetch()
        a(f"""s_cmp_lt_u32 s{sWAVE}, 4
        s_cbranch_scc1 L_COMPUTE
        s_cmp_gt_u32 s{sWAVE}, 4
        s_cbranch_scc1 L_SIDE""")
    def code_prefetch(self):
        a = self.a
        L = a.newlabel("NOPF")
        a(f"""s_cmp_lg_u32 s{sWAVE}, 1
        s_cbranch_scc1 {L}
        s_getpc_b64 s[{T2}:{T3}]
        L_PC:
        s_sub_u32 s{T2}, s{T2}, L_PC-{NAME}
        s_subb_u32 s{T3}, s{T3}, 0
        s_and_b32 s{T0}, s{sI}, 7
        s_lshl_b32 s{T0}, s{T0}, 13
        v_lshl_add_u32 v10, v0, 7, s{T0}
        v_min_u32 v10, L_CODE_END-{NAME}-4, v10
        global_load_dword v31, v10, s[{T2}:{T3}]""")
        a.label(L)
    def common_scalars(self):
        self.a(f"""s_cmp_ge_u32 s{sI}, 30
        s_cselect_b32 s{sNB}, 1, 10
        s_mov_b32 s{sBC}, 0
        s_lshr_b32 s{T0}, s{sI}, 3
        s_lshl_b32 s{T1}, s{sXCD}, 2
        s_add_u32 s{sHEAD}, s{T0}, s{T1}
        s_and_b32 s{sQB}, s{sI}, 7
        s_lshr_b32 s{sKH}, s{sWAVE}, 2
        s_and_b32 s{sTB}, s{sWAVE}, 3
        s_mov_b32 s{sSLOW}, 0
        s_mov_b32 s{sVMASK}, 0x000fffff
        s_mov_b32 s{sVMASK+1}, 0x000fffff""")
    def setup_call(self):
        if self.o("sub", 1): self.a(f"s_call_b64 s[{sRET}:{sRET+1}], L_SETUP")
        else: self.common_scalars(); self.persistent()
    def setup_sub(self):
        if not self.o("sub", 1): return
        self.a.label("L_SETUP")
        self.common_scalars(); self.persistent()
        self.a(f"s_setpc_b64 s[{sRET}:{sRET+1}]")
    def persistent(self, t=192):
        a = self.a
        a(f"""s_mov_b32 s{sM}, 0x11000000
        s_mov_b32 s{sM+1}, 0x11000000
        v_mov_b32 v{t}, 0x3f803f80
        v_cndmask_b32 v{ONES}, 0, v{t}, s[{sM}:{sM+1}]""")
        a(f"""v_mov_b32 v{IDX}, 0xdddddddd
        v_lshlrev_b32 v{AKM}, 4, v0
        v_lshlrev_b32 v{L16}, 4, v0
        v_lshlrev_b32 v{t}, 3, v0
        v_add_u32 v{AKR}, 2048, v{t}
        v_and_b32 v{t+1}, 31, v0
        v_lshrrev_b32 v{t+2}, 5, v0
        v_mul_u32_u24 v{t+2}, 320, v{t+2}
        v_lshl_add_u32 v{t+2}, v{t+1}, 4, v{t+2}
        v_add_u32 v{AV}, 2560, v{t+2}
        s_mul_i32 s{T0}, s{sKH}, {KV_US}
        v_add_u32 v{AKM}, s{T0}, v{AKM}
        v_add_u32 v{AKR}, s{T0}, v{AKR}
        v_add_u32 v{AV}, s{T0}, v{AV}
        s_mul_i32 s{T0}, s{sTB}, {Q_US}
        s_add_u32 s{T0}, s{T0}, {L_Q}
        s_lshl_b32 s{T2}, s{sKH}, 10
        s_add_u32 s{T2}, s{T2}, s{T0}
        v_add_u32 v{AQM}, s{T2}, v{L16}
        s_lshl_b32 s{T1}, s{sKH}, 8
        s_add_u32 s{T1}, s{T1}, s{T0}
        v_lshl_add_u32 v{AQR}, v{t+1}, 3, s{T1}
        s_xor_b32 s{T3}, s{sKH}, 1
        s_lshl_b32 s{T2}, s{T3}, 10
        s_add_u32 s{T2}, s{T2}, s{T0}
        v_add_u32 v{AQM2}, s{T2}, v{L16}
        s_lshl_b32 s{T1}, s{T3}, 8
        s_add_u32 s{T1}, s{T1}, s{T0}
        v_lshl_add_u32 v{AQR2}, v{t+1}, 3, s{T1}
        s_mul_i32 s{sKVB}, s{sHEAD}, {KV_HS}
        s_mul_i32 s{sKVW}, s{sWAVE}, {KV_US}
        s_add_u32 s{sKVG}, s{sKVW}, s{sKVB}
        s_lshl_b32 s{T0}, s{sHEAD}, 16
        s_lshl_b32 s{T1}, s{sQB}, 2
        s_add_u32 s{T1}, s{T1}, s{sTB}
        s_lshl_b32 s{T1}, s{T1}, 1
        s_add_u32 s{T1}, s{T1}, s{sKH}
        s_lshl_b32 s{T2}, s{T1}, 10
        s_add_u32 s{T0}, s{T0}, s{T2}
        s_add_u32 s{sOMS}, s{T0}, {OM:#x}
        s_lshl_b32 s{T2}, s{sHEAD}, 14
        s_lshl_b32 s{T1}, s{T1}, 8
        s_add_u32 s{T1}, s{T1}, s{T2}
        s_add_u32 s{sORS}, s{T1}, {ORM:#x}
        s_lshl_b32 s{T0}, s{sQB}, 11
        s_lshl_b32 s{T1}, s{sHEAD}, 6
        s_add_u32 s{T0}, s{T0}, s{T1}
        s_add_u32 s{sF4S}, s{T0}, {F4:#x}""")
        a(f"""s_mul_i32 s{T0}, s{sQB}, 320
        s_add_u32 s{T0}, s{T0}, {F3:#x}
        v_lshl_add_u32 v{AF3}, v0, 3, s{T0}
        s_lshr_b32 s{T0}, s{sHEAD}, 1
        s_lshl_b32 s{T0}, s{T0}, 6
        s_add_u32 s{T0}, s{T0}, {F5:#x}
        v_mov_b32 v{t}, s{T0}
        s_mov_b32 s{sM}, 0
        s_mov_b32 s{sM+1}, 0xffffff00
        v_cndmask_b32 v{AF3}, v{AF3}, v{t}, s[{sM}:{sM+1}]""")
        a(f"s_mul_i32 s{T0}, s{sWAVE}, {13*64}\ns_mul_i32 s{T1}, s{sQB}, 160")
        for k in range(5):
            a(f"""s_add_u32 s{T2}, s{T0}, {64*k}
            v_add_u32 v{t}, s{T2}, v0
            v_mul_u32_u24 v{t+1}, 52429, v{t}
            v_lshrrev_b32 v{t+1}, 19, v{t+1}
            v_mul_u32_u24 v{t+1}, {1280-160}, v{t+1}
            v_lshl_add_u32 v{t+1}, v{t}, 4, v{t+1}
            v_add_u32 v{WOV+k}, s{T1}, v{t+1}""")
        a(f"""s_mul_i32 s{T0}, s{sQB}, 80
        s_mul_i32 s{T1}, s{sWAVE}, 10
        s_add_u32 s{T0}, s{T0}, s{T1}
        v_lshrrev_b32 v{t}, 3, v0
        v_add_u32 v{t}, s{T0}, v{t}
        v_lshlrev_b32 v{t}, 12, v{t}
        v_and_b32 v{t+1}, 7, v0
        v_lshl_add_u32 v{t}, v{t+1}, 4, v{t}
        s_lshl_b32 s{T0}, s{sHEAD}, 7
        s_add_u32 s{T0}, s{T0}, {YD:#x}
        v_add_u32 v{YDV}, s{T0}, v{t}""")
        q, r, c8, tt, b0 = t, t + 1, t + 2, t + 3, t + 4
        a(f"""v_lshrrev_b32 v{q}, 4, v0
        v_lshrrev_b32 v{r}, 2, v0
        v_and_b32 v{r}, 3, v{r}
        v_and_b32 v{c8}, 3, v0
        v_lshlrev_b32 v{c8}, 3, v{c8}
        v_and_b32 v{tt}, 15, v0
        v_and_b32 v{b0}, 1, v{q}
        s_mul_i32 s{T2}, s{sKH}, {51200 + 96}
        s_mul_i32 s{T3}, s{sKH}, {51200 - 64}
        v_lshrrev_b32 v{t+5}, 1, v{q}
        v_mul_u32_u24 v{t+5}, 20, v{t+5}
        v_lshl_add_u32 v{t+5}, v{b0}, 2, v{t+5}
        v_add_u32 v{t+5}, v{t+5}, v{r}
        v_mul_u32_u24 v{t+5}, 160, v{t+5}
        v_add_u32 v{t+5}, v{t+5}, v{c8}
        v_add_u32 v{WM0}, s{T2}, v{t+5}
        v_add_u32 v{WM1}, s{T3}, v{t+5}
        v_mul_u32_u24 v{t+5}, 20, v{q}
        v_add3_u32 v{t+5}, v{t+5}, v{r}, 16
        v_mul_u32_u24 v{t+5}, 160, v{t+5}
        v_add_u32 v{t+5}, v{t+5}, v{c8}
        v_add_u32 v{WR0}, s{T2}, v{t+5}
        v_add_u32 v{WR1}, s{T3}, v{t+5}
        s_lshl_b32 s{T2}, s{sKH}, 20
        s_lshl_b32 s{T3}, s{sHEAD}, 11
        s_add_u32 s{T2}, s{T2}, s{T3}
        s_lshr_b32 s{T3}, s{sTB}, 1
        s_lshl_b32 s{T4}, s{T3}, 10
        s_add_u32 s{T2}, s{T2}, s{T4}
        s_and_b32 s{T4}, s{sTB}, 1
        s_lshl_b32 s{T4}, s{T4}, 8
        s_add_u32 s{T2}, s{T2}, s{T4}
        s_add_u32 s{T2}, s{T2}, {OM:#x}
        v_lshrrev_b32 v{t+5}, 1, v{q}
        v_lshlrev_b32 v{t+5}, 16, v{t+5}
        v_lshl_add_u32 v{t+5}, v{b0}, 9, v{t+5}
        v_lshl_add_u32 v{t+5}, v{tt}, 4, v{t+5}
        v_add_u32 v{AOM}, s{T2}, v{t+5}
        s_lshl_b32 s{T2}, s{sKH}, 18
        s_lshl_b32 s{T4}, s{sHEAD}, 9
        s_add_u32 s{T2}, s{T2}, s{T4}
        s_lshl_b32 s{T4}, s{sTB}, 7
        s_add_u32 s{T2}, s{T2}, s{T4}
        s_add_u32 s{T2}, s{T2}, {ORM:#x}
        v_lshlrev_b32 v{t+5}, 14, v{q}
        v_lshl_add_u32 v{t+5}, v{tt}, 3, v{t+5}
        v_add_u32 v{AOR}, s{T2}, v{t+5}
        s_lshr_b32 s{T2}, s{sHEAD}, 2
        s_lshl_b32 s{T2}, s{T2}, 11
        s_add_u32 s{T2}, s{T2}, {F4:#x}
        v_and_b32 v{t+5}, 31, v0
        v_lshl_add_u32 v{AF4}, v{t+5}, 6, s{T2}
        s_lshl_b32 s{T0}, s{sHEAD}, 6
        s_lshl_b32 s{T1}, s{sTB}, 4
        s_add_u32 s{T0}, s{T0}, s{T1}
        v_add_u32 v{t+5}, s{T0}, v{tt}
        v_lshlrev_b32 v{AG}, 2, v{t+5}
        v_add_u32 v{AG}, {GT:#x}, v{AG}
        v_mul_u32_u24 v{t+5}, 1280, v{t+5}
        v_lshl_add_u32 v{t+5}, v{q}, 3, v{t+5}
        s_mul_i32 s{T0}, s{sQB}, 160
        s_mul_i32 s{T1}, s{sKH}, 96
        s_add_u32 s{T0}, s{T0}, s{T1}
        v_add_u32 v{AOUT}, s{T0}, v{t+5}
        s_lshl_b32 s{T0}, s{sWAVE}, 12
        s_add_u32 s{T0}, s{T0}, {L_EX}
        v_add_u32 v{AEX}, s{T0}, v{L16}
        s_xor_b32 s{T0}, s{sWAVE}, 4
        s_lshl_b32 s{T0}, s{T0}, 12
        s_add_u32 s{T1}, s{T0}, {L_EX}
        v_add_u32 v{APX}, s{T1}, v{L16}
        s_lshl_b32 s{T1}, s{sKH}, 10
        s_add_u32 s{T1}, s{T1}, s{T0}
        s_add_u32 s{T1}, s{T1}, {L_EX}
        v_add_u32 v{AX2}, s{T1}, v{L16}
        v_lshl_add_u32 v{AYD}, v{q}, 2, v{r}
        v_lshl_add_u32 v{AYD}, v{AYD}, 7, v{c8}
        s_mul_i32 s{T0}, s{sKH}, {48*128}
        s_lshl_b32 s{T1}, s{sTB}, 5
        s_add_u32 s{T0}, s{T0}, s{T1}
        s_add_u32 s{T0}, s{T0}, {L_YD}
        v_add_u32 v{AYD}, s{T0}, v{AYD}""")
    def att_init_list(self):
        if self.o("ones", 2) == 12:
            return [f"v_mov_b32 v{O_+e}, 0" for e in range(16)] + [f"v_mov_b32 v{st+e}, 0x3f803f80" for st in VS for e in range(16)]
        return [f"v_mov_b32 v{O_+e}, 0" for e in range(16)] + [f"v_mov_b32 v{st+e}, v{ONES}" for st in VS for e in range(16)]

    def flag_reset(self):
        a = self.a
        L = a.newlabel("NOZ")
        a(f"s_cmp_lg_u32 s{sWAVE}, 0\ns_cbranch_scc1 {L}")
        a(f"""s_lshl_b32 s{T0}, s{sWG}, 6
        s_add_u32 s{T0}, s{T0}, {F1:#x}
        v_mov_b32 v12, s{T0}
        v_and_b32 v10, 3, v0
        v_lshlrev_b32 v11, 2, v10
        v_add_u32 v13, s{sCL}, v11
        s_mov_b32 s{sM}, 0xf
        s_mov_b32 s{sM+1}, 0
        v_cndmask_b32 v12, v12, v13, s[{sM}:{sM+1}]
        s_lshl_b32 s{T0}, s{sCH0}, 2
        s_add_u32 s{T0}, s{T0}, {F3:#x}
        v_add_u32 v13, s{T0}, v11
        s_mov_b32 s{sM}, 0x30
        s_cmp_eq_u32 s{sNCH}, 3
        s_cselect_b32 s{sM}, 0x70, s{sM}
        v_cndmask_b32 v12, v12, v13, s[{sM}:{sM+1}]
        s_lshl_b32 s{T0}, s{sQB}, 11
        s_lshl_b32 s{T1}, s{sHEAD}, 6
        s_add_u32 s{T0}, s{T0}, s{T1}
        s_add_u32 s{T0}, s{T0}, {F4:#x}
        v_mov_b32 v13, s{T0}
        s_mov_b32 s{sM}, 0x100
        v_cndmask_b32 v12, v12, v13, s[{sM}:{sM+1}]
        v_mov_b32 v13, 0
        s_mov_b32 exec_lo, 0x1ff
        s_mov_b32 exec_hi, 0
        buffer_store_dword v13, v12, s[{rWS}:{rWS+3}], 0 offen sc1
        s_mov_b64 exec, 1""")
        self.srd(rA, pDBG, 256)
        a(f"""s_and_b32 s{T0}, s{sWG}, 1
        s_lshl_b32 s{T0}, s{T0}, 7
        v_mov_b32 v12, s{T0}
        v_mov_b32 v13, 1
        s_waitcnt vmcnt(0)
        buffer_atomic_add v13, v12, s[{rA}:{rA+3}], 0 offen sc1
        s_mov_b64 exec, -1""")
        a.label(L)

    XA, WA, XA2, WA2, EA = 2, 6, 128, 132, 136
    def gemm_compute(self):
        a = self.a
        XA, WA = self.XA, self.WA
        a.label("L_COMPUTE")
        if self.o("cpf", 1) == 1: self.code_prefetch()
        self.common_scalars()
        a(f"""s_lshl_b32 s{T0}, s{sJT}, 10
        s_lshl_b32 s{T1}, s{sRT}, 6
        s_add_u32 s{T0}, s{T0}, s{T1}
        s_add_u32 s{sCL}, s{T0}, {F2:#x}
        s_lshl_b32 s{T0}, s{sXCD}, 1
        s_add_u32 s{T0}, s{T0}, s{sI}
        s_sub_u32 s{T7}, s{T0}, 30
        s_lshl_b32 s{T0}, s{T7}, 6
        s_add_u32 s{T0}, s{T0}, {F5:#x}
        s_cmp_ge_u32 s{sI}, 30
        s_cselect_b32 s{sCL}, s{T0}, s{sCL}
        s_waitcnt lgkmcnt(0)""")
        self.srd(rWS, pWS, WS_SIZE)
        if self.stamps: a("v_mov_b32 v1, 0")
        self.stamp("start")
        self.flag_reset()
        self.setup_call()
        for l in self.att_init_list():
            if int(l.split()[1][1:-1]) >= 192: a(l)
        a(f"s_cmp_eq_u32 s{sWAVE}, 0\ns_cbranch_scc1 L_C_NW\ns_waitcnt vmcnt(0)")
        a.label("L_C_NW")
        a(f"s_cmp_ge_u32 s{sI}, 30\ns_cbranch_scc1 L_C_NOTILE")
        a(f"""s_and_b32 s{T0}, s{sWAVE}, 1
        s_lshl_b32 s{T0}, s{T0}, 13
        v_and_b32 v8, 31, v0
        v_lshrrev_b32 v9, 5, v0
        v_lshrrev_b32 v10, 1, v8
        v_and_b32 v10, 7, v10
        v_xor_b32 v10, v10, v9
        v_lshlrev_b32 v8, 7, v8
        v_add_u32 v8, s{T0}, v8""")
        for ks in range(4):
            a(f"v_xor_b32 v11, {2*ks}, v10\nv_lshl_add_u32 v{XA+ks}, v11, 4, v8")
        a(f"""v_lshrrev_b32 v8, 2, v0
        v_and_b32 v8, 3, v8
        v_lshrrev_b32 v9, 5, v0
        v_lshl_add_u32 v9, v9, 3, v8
        v_lshlrev_b32 v9, 8, v9
        v_lshrrev_b32 v10, 4, v0
        v_and_b32 v10, 1, v10
        v_lshlrev_b32 v10, 1, v10
        v_lshrrev_b32 v11, 1, v0
        v_and_b32 v11, 1, v11
        v_or_b32 v10, v10, v11
        v_and_b32 v11, 1, v0
        v_lshlrev_b32 v11, 3, v11
        v_add_u32 v9, v9, v11
        v_add_u32 v9, {L_W}, v9
        s_and_b32 s{T0}, s{sWAVE}, 2""")
        for i in range(2):
            a(f"""s_add_u32 s{T1}, s{T0}, {i}
            v_xor_b32 v11, s{T1}, v8
            v_lshl_add_u32 v11, v11, 2, v10
            v_lshl_add_u32 v{WA+i}, v11, 4, v9""")
        def lowinit():
            for l in self.att_init_list():
                if int(l.split()[1][1:-1]) < 192: a(l)
        a(f"s_setprio {self.o('gprio', 3)}")
        a(f"s_cmp_ge_u32 s{sJT}, 10\ns_cbranch_scc1 L_C_VTILE")
        self.epi_qk_setup()
        self.gemm_loop(False, self.gemm_epi_qk, lowinit)
        a("s_branch L_C_FLAG")
        a.label("L_C_NOTILE")
        self.gate()
        lowinit()
        a("s_branch L_C_FLAG")
        a.label("L_C_VTILE")
        self.epi_v_setup()
        self.gemm_loop(True, self.gemm_epi_v, lowinit)
        a.label("L_C_FLAG")
        a.reset_counters()
        self.stamp("c.epi")
        L = a.newlabel("KVW")
        a(f"s_cmp_eq_u32 s{sWAVE}, 3\ns_cbranch_scc1 {L}")
        a("s_waitcnt vmcnt(0)")
        self.last_flag(12, 4, sCL, 2)
        self.stamp("c.F2set")
        a("s_branch L_ATT")
        a.label(L)
        self.kv_fetch_setup()
        a(f"buffer_load_dword v29, v28, s[{rC}:{rC+3}], 0 offen sc1")
        a("s_waitcnt vmcnt(0)")
        self.last_flag(12, 4, sCL, 2)
        self.kv_fetch()
        a("s_branch L_ATT")

    def gate(self):
        a = self.a
        a.reset_counters()
        X, W, Z = 32, 12, 2
        self.srd(rA, pX, 2048 * 1280); self.srd(rB, pGW, 1280)
        a(f"""s_lshl_b32 s{T0}, s{T7}, 7
        s_lshl_b32 s{T1}, s{sWAVE}, 5
        s_add_u32 s{T6}, s{T0}, s{T1}
        v_lshrrev_b32 v10, 4, v0
        v_add_u32 v11, s{T6}, v10
        v_mul_u32_u24 v11, 1280, v11
        v_and_b32 v2, 15, v0
        v_lshlrev_b32 v3, 4, v2
        v_add_u32 v11, v11, v3""")
        for j in range(5): tw = a.vm(f"buffer_load_dwordx4 {vr(W+4*j,4)}, v3, s[{rB}:{rB+3}], 0 offen offset:{256*j}")
        tx = []
        for g in range(8):
            a(f"s_mov_b32 s{T0}, {5120*g}")
            for j in range(5): t = a.vm(f"buffer_load_dwordx4 {vr(X+20*g+4*j,4)}, v11, s[{rA}:{rA+3}], s{T0} offen offset:{256*j}")
            tx.append(t)
        a(f"""v_lshl_add_u32 v10, v2, 2, v10
        v_add_u32 v10, s{T6}, v10
        v_lshlrev_b32 v10, 2, v10
        v_add_u32 v10, {GT:#x}, v10
        v_mov_b32 v11, v2
        s_barrier""")
        for g in range(8):
            a.wait(tw, tx[g])
            for e in range(20):
                a(f"v_dot2_f32_bf16 v{Z+g}, v{X+20*g+e}, v{W+e}, {'0' if e == 0 else f'v{Z+g}'}")
        a.nop(3)
        for sh in (8, 4, 2, 1):
            for g in range(8): a(f"v_add_f32_dpp v{Z+g}, v{Z+g}, v{Z+g} row_ror:{sh} row_mask:0xf bank_mask:0xf")
        for g in range(1, 8):
            a(f"v_cmp_eq_u32 vcc, {g}, v11\ns_nop 1\nv_cndmask_b32 v{Z}, v{Z}, v{Z+g}, vcc")
        a(f"""v_mul_f32 v{Z}, {f2u(-math.log2(math.e)):#x}, v{Z}
        v_exp_f32 v{Z}, v{Z}
        s_mov_b32 exec_lo, 0x00ff00ff
        v_add_f32 v{Z}, 1.0, v{Z}
        v_rcp_f32 v{Z}, v{Z}
        s_mov_b32 exec_hi, 0x00ff00ff
        buffer_store_dword v{Z}, v10, s[{rWS}:{rWS+3}], 0 offen sc1
        s_mov_b64 exec, -1""")

    def gemm_loop(self, vt, epi, fill):
        a = self.a
        a.reset_counters()
        FR, ACC = 32, 64
        def reads(s, ks):
            st = FR + 16 * (ks & 1); sl = s % NSLOT
            xa, wa, sl = (self.XA, self.WA, sl * 16384) if sl < 4 else (self.XA2, self.WA2, 0)
            rx = lambda j: (lambda: a.ds(f"ds_read_b128 {vr(st+4*j,4)}, v{xa+ks} offset:{sl + 4096*j}"))
            rw = lambda i, q: (lambda: a.ds(f"ds_read_b64_tr_b16 {vr(st+8+4*i+2*q,2)}, v{wa+i} offset:{sl + (16*ks+4*q)*256}"))
            if vt: return [("X0", rx(0)), ("W0", rw(0,0)), ("W0", rw(0,1)), ("W1", rw(1,0)), ("W1", rw(1,1)), ("X1", rx(1))]
            return [("W0", rw(0,0)), ("W0", rw(0,1)), ("X0", rx(0)), ("X1", rx(1)), ("W1", rw(1,0)), ("W1", rw(1,1))]
        def group(ks, toks, nxt, first):
            st = FR + 16 * (ks & 1); out = {}
            sched = [3, 3, 0, 0]; k = 0
            for m, (i, j) in enumerate(((0,0),(0,1),(1,0),(1,1))):
                if vt: A, B, na, nb = st + 4*i, st + 8 + 4*j, f"X{i}", f"W{j}"
                else:  A, B, na, nb = st + 8 + 4*i, st + 4*j, f"W{i}", f"X{j}"
                a.wait(toks[na], toks[nb])
                d = ACC + 16 * (2*i + j)
                a(f"v_mfma_f32_32x32x16_bf16 {vr(d,16)}, {vr(A,4)}, {vr(B,4)}, {'0' if first else vr(d,16)}")
                for _ in range(sched[m]):
                    if k < len(nxt): out[nxt[k][0]] = nxt[k][1](); k += 1
            return out
        a("s_barrier")
        toks = {}
        for n, f in reads(0, 0): toks[n] = f()
        for s in range(9):
            for ks in range(4):
                if ks < 3:
                    toks = group(ks, toks, reads(s, ks + 1), s == 0 and ks == 0)
                else:
                    a.wait_all(vm=False); a("s_barrier")
                    if s < 8: toks = group(ks, toks, reads(s + 1, 0), False)
        sets = (FR, 152, 168, 8)
        T = {}
        def rd(ks, nm):
            st = sets[ks]; sl = (9 % NSLOT) * 16384; k = int(nm[1])
            if nm[0] == "X": T[ks, nm] = a.ds(f"ds_read_b128 {vr(st+4*k,4)}, v{self.XA+ks} offset:{sl + 4096*k}")
            else:
                for q in range(2): T[ks, nm] = a.ds(f"ds_read_b64_tr_b16 {vr(st+8+4*k+2*q,2)}, v{self.WA+k} offset:{sl + (16*ks+4*q)*256}")
        na, nb = ("X", "W") if vt else ("W", "X")
        first = [(lambda ks=ks, nm=nm: rd(ks, nm)) for ks in range(4) for nm in (na + "0", nb + "0")]
        later = [(lambda ks=ks: rd(ks, nb + "1")) for ks in range(4)] + [(lambda ks=ks: rd(ks, na + "1")) for ks in range(4)]
        group(3, toks, [(f"f{i}", f) for i, f in enumerate(first[:6])], False)
        for f in first[6:]: f()
        off = lambda nm: 4 * int(nm[1]) + (0 if nm[0] == "X" else 8)
        pend = []
        for bi, (i, j) in enumerate(((0,0),(0,1),(1,0),(1,1))):
            d = ACC + 16 * (2*i + j)
            for ks in range(4):
                a.wait(T[ks, f"{na}{i}"], T[ks, f"{nb}{j}"])
                a(f"v_mfma_f32_32x32x16_bf16 {vr(d,16)}, {vr(sets[ks]+off(f'{na}{i}'),4)}, {vr(sets[ks]+off(f'{nb}{j}'),4)}, {vr(d,16)}")
                if bi < 2 and later: later.pop(0)()
                if bi >= 2:
                    n = -(-len(pend) // (4 - ks + (4 if bi == 2 else 0)))
                    for _ in range(min(n, 9)): pend.pop(0)()
            if bi == 1: pend += epi(0, 0)
            if bi == 1: pend += epi(0, 1)
            if bi == 2: last = epi(1, 0)
        for f in pend: f()
        for f in last: f()
        for f in epi(1, 1): f()
        fill()

    def epi_qk_setup(self):
        a = self.a
        sBASE, sHS, sPQ = T0, T1, T3
        a(f"""s_mov_b32 s{sHS}, {Q_HS}
        s_mov_b32 s{T4}, {Q_US}
        s_cmp_ge_u32 s{sJT}, 5
        s_cselect_b32 s{sHS}, {KV_HS}, s{sHS}
        s_cselect_b32 s{T4}, {KV_US}, s{T4}
        s_cselect_b32 s{sBASE}, {KV}, {QO:#x}
        s_cselect_b32 s{T5}, 5, 0
        s_cselect_b64 s[{sM}:{sM+1}], -1, 0
        s_cselect_b32 s{sSC}, 1.0, {f2u(math.log2(math.e) / math.sqrt(20.0)):#x}
        s_sub_u32 s{T5}, s{sJT}, s{T5}
        s_lshl_b32 s{sPQ}, s{T5}, 4
        s_and_b32 s{T5}, s{sWAVE}, 2
        s_lshl_b32 s{T5}, s{T5}, 2
        s_add_u32 s{sPQ}, s{sPQ}, s{T5}
        s_lshl_b32 s{T5}, s{sRT}, 1
        s_and_b32 s{T6}, s{sWAVE}, 1
        s_add_u32 s{T5}, s{T5}, s{T6}
        s_mul_i32 s{T5}, s{T5}, s{T4}
        s_add_u32 s{sBASE}, s{sBASE}, s{T5}
        v_and_b32 v8, 31, v0
        v_and_b32 v9, 0x13, v0
        v_and_b32 v10, 4, v0
        v_lshl_or_b32 v9, v10, 1, v9
        v_and_b32 v10, 8, v0
        v_lshrrev_b32 v10, 1, v10
        v_or_b32 v9, v9, v10
        v_cndmask_b32 v8, v8, v9, s[{sM}:{sM+1}]
        v_lshrrev_b32 v9, 5, v0
        v_lshlrev_b32 v10, 3, v9
        v_lshl_add_u32 v12, v8, 4, v10
        v_add_u32 v13, 1024, v12
        v_mul_lo_u32 v10, v9, s{sHS}
        v_lshl_add_u32 v14, v8, 3, v10
        v_add_u32 v14, 1024, v14
        v_add_u32 v15, 256, v14""")
        for p in range(8):
            a(f"""s_add_u32 s{T4}, s{sPQ}, {p}
            s_mul_i32 s{T5}, s{T4}, 205
            s_lshr_b32 s{T5}, s{T5}, 10
            s_mul_i32 s{T6}, s{T5}, 5
            s_sub_u32 s{T4}, s{T4}, s{T6}
            s_lshl_b32 s{T5}, s{T5}, 1
            s_mul_i32 s{T5}, s{T5}, s{sHS}
            s_add_u32 s{T5}, s{T5}, s{sBASE}
            s_lshl_b32 s{T6}, s{T4}, 9
            s_add_u32 s{T5}, s{T5}, s{T6}
            s_sub_u32 s{T6}, s{sHS}, 1536
            s_cmp_ge_u32 s{T4}, 3
            s_cselect_b32 s{T6}, s{T6}, 0
            s_add_u32 s{sE+p}, s{T5}, s{T6}
            s_cmp_eq_u32 s{T4}, 2
            s_cselect_b64 s[{sM}:{sM+1}], -1, 0""")
            for j in range(2): a(f"v_cndmask_b32 v{self.EA+2*p+j}, v{12+j}, v{14+j}, s[{sM}:{sM+1}]")
    def gemm_epi_qk(self, i, j):
        a = self.a; L = []
        for g in range(4):
            d = 64 + 16 * (2*i + j) + 4*g
            for e in range(4): L.append(lambda d=d, e=e: a(f"v_mul_f32 v{d+e}, s{sSC}, v{d+e}"))
            L.append(lambda d=d: a(f"v_cvt_pk_bf16_f32 v{d}, v{d}, v{d+1}"))
            L.append(lambda d=d: a(f"v_cvt_pk_bf16_f32 v{d+1}, v{d+2}, v{d+3}"))
            L.append(lambda d=d, g=g: a.vm(f"buffer_store_dwordx2 {vr(d,2)}, v{self.EA+2*(4*i+g)+j}, s[{rWS}:{rWS+3}], s{sE+4*i+g} offen sc1"))
        return L
    def epi_v_setup(self):
        a = self.a
        a(f"""s_sub_u32 s{T0}, s{sJT}, 10
        s_lshl_b32 s{T0}, s{T0}, 7
        s_and_b32 s{T1}, s{sWAVE}, 2
        s_lshl_b32 s{T1}, s{T1}, 5
        s_add_u32 s{T0}, s{T0}, s{T1}
        s_lshl_b32 s{T1}, s{sRT}, 1
        s_and_b32 s{T2}, s{sWAVE}, 1
        s_add_u32 s{T1}, s{T1}, s{T2}
        s_mul_i32 s{T1}, s{T1}, {KV_US}
        s_add_u32 s{sE}, s{T1}, {KV + 2560}
        s_mov_b32 s{T2}, {KV_HS - 320}
        v_and_b32 v8, 31, v0
        v_lshrrev_b32 v9, 5, v0
        v_mul_u32_u24 v9, 320, v9""")
        for j in range(2):
            a(f"""v_add_u32 v10, s{T0}, v8
            v_add_u32 v10, {32*j}, v10
            v_mul_u32_u24 v11, 3277, v10
            v_lshrrev_b32 v11, 16, v11
            v_mul_lo_u32 v11, v11, s{T2}
            v_lshl_add_u32 v10, v10, 4, v9
            v_add_u32 v{self.EA+j}, v10, v11""")
    def gemm_epi_v(self, i, j):
        a = self.a; L = []
        for s in range(2):
            d = 64 + 16 * (2*i + j) + 8*s
            for e in range(4): L.append(lambda d=d, e=e: a(f"v_cvt_pk_bf16_f32 v{d+e}, v{d+2*e}, v{d+2*e+1}"))
            L.append(lambda d=d, s=s: a.vm(f"buffer_store_dwordx4 {vr(d,4)}, v{self.EA+j}, s[{rWS}:{rWS+3}], s{sE} offen offset:{(2*i+s)*640} sc1"))
        return L

    XS, WS_, PA, PB, PW, PS, HA, HL = 2, 6, 10, 11, 12, 13, 14, 15
    KR_, VV_, SW_, HD_, DV_, PO_ = 16, 176, 116, 132, 156, 160
    def dma_setup(self):
        a = self.a
        a(f"""v_lshrrev_b32 v16, 3, v0
        v_and_b32 v17, 7, v0
        v_lshrrev_b32 v18, 1, v16
        s_lshl_b32 s{T0}, s{sRT}, 7
        v_add_u32 v16, s{T0}, v16
        v_mul_u32_u24 v16, 1280, v16""")
        for n in range(4):
            a(f"""v_xor_b32 v19, {(4*n) & 7}, v18
            v_xor_b32 v19, v19, v17
            v_lshl_add_u32 v19, v19, 4, v16
            v_add_u32 v{self.XS+n}, {n*(8*1280-1024)}, v19""")
        a(f"""v_lshrrev_b32 v16, 4, v0
        v_and_b32 v17, 15, v0
        v_lshlrev_b32 v18, 2, v16
        v_xor_b32 v17, v17, v18
        v_mul_u32_u24 v16, 3840, v16
        v_lshl_add_u32 v16, v17, 4, v16
        s_lshl_b32 s{T0}, s{sJT}, 8
        v_add_u32 v{self.WS_}, s{T0}, v16""")
        for n in range(1, 4): a(f"v_add_u32 v{self.WS_+n}, {n*(4*3840-1024)}, v{self.WS_}")
        P = self.o("rot", 1)
        a(f"s_add_u32 s{T0}, s{sJT}, s{sRT}")
        if P == 1: a(f"s_mov_b32 s{sK}, 0")
        elif P == 2: a(f"s_and_b32 s{T0}, s{T0}, 1\ns_mul_i32 s{sK}, s{T0}, 5")
        elif P == 3: a(f"s_mul_i32 s{T1}, s{T0}, 43\ns_lshr_b32 s{T1}, s{T1}, 7\ns_mul_i32 s{T1}, s{T1}, 3\ns_sub_u32 s{T0}, s{T0}, s{T1}\ns_mul_i32 s{T0}, s{T0}, 7\ns_lshr_b32 s{sK}, s{T0}, 1")
        elif P == 4: a(f"s_and_b32 s{T0}, s{T0}, 3\ns_mul_i32 s{T0}, s{T0}, 5\ns_lshr_b32 s{sK}, s{T0}, 1")
    def stage_dma(self, s):
        a = self.a
        sl = (s % NSLOT) * 16384
        a(f"s_lshl_b32 s{T0}, s{sK}, 7\ns_mul_i32 s{T1}, s{sK}, {64*3840}")
        def ld(txt):
            if a.n["vm"] - a.done["vm"] >= 62: a.wait(Tok("vm", a.done["vm"] + 8))
            return a.vm(txt)
        for h in range(4):
            a(f"s_mov_b32 m0, {L_X + sl + 4096*h}")
            a(f"s_add_u32 s{T2}, s{T0}, {32*1280*h}")
            for n in range(4): ld(f"buffer_load_dwordx4 v{self.XS+n}, s[{rA}:{rA+3}], s{T2} offen offset:{1024*n}{self.gnt} lds")
            a(f"s_mov_b32 m0, {L_W + sl + 4096*h}")
            a(f"s_add_u32 s{T2}, s{T1}, {16*3840*h}")
            for n in range(4): t = ld(f"buffer_load_dwordx4 v{self.WS_+n}, s[{rB}:{rB+3}], s{T2} offen offset:{1024*n}{self.gnt} lds")
        a(f"s_add_u32 s{sK}, s{sK}, 1\ns_cmp_eq_u32 s{sK}, 10\ns_cselect_b32 s{sK}, 0, s{sK}")
        return t
    def conv_scalars(self):
        a = self.a
        a(f"""s_min_u32 s{T0}, s{sLW}, 2
        s_add_u32 s{sCH}, s{sCH0}, s{T0}
        s_min_u32 s{sCH}, s{sCH}, 639
        s_mul_i32 s{T0}, s{T0}, {CONV_SZ}
        s_add_u32 s{T6}, s{T0}, {L_CONV}
        s_lshl_b32 s{T1}, s{sCH}, 1
        v_mov_b32 v{self.DV_}, s{T1}
        s_lshl_b32 s{T1}, s{sCH}, 12
        v_lshl_add_u32 v{self.HA}, v0, 4, s{T1}
        v_lshl_add_u32 v{self.HL}, v0, 4, s{T6}""")
        self.srd(rD, pH, 640 * 4096)
        a(f"s_mov_b32 m0, s{T6}\ns_nop 0")
        if "h" not in self.o("ab", ""):
            for g in range(4): a.vm(f"buffer_load_dwordx4 v{self.HA}, s[{rD}:{rD+3}], 0 offen offset:{1024*g}{self.nt} lds")
        self.srd(rC, pD, 640 * 2)
        return a.vm(f"buffer_load_ushort v{self.DV_}, v{self.DV_}, s[{rC}:{rC+3}], 0 offen")
    def pre_setup(self):
        self.a(f"""s_and_b32 s{T0}, s{sU}, 63
        s_lshr_b32 s{T1}, s{sU}, 6
        s_lshl_b32 s{T5}, s{sWG}, 6
        s_add_u32 s{T5}, s{T5}, {F1:#x}
        s_lshl_b32 s{T0}, s{T0}, 5
        s_lshl_b32 s{T1}, s{T1}, 7
        v_lshrrev_b32 v16, 3, v0
        v_and_b32 v17, 7, v0
        v_lshl_add_u32 v16, v16, 2, s{T0}
        v_lshl_add_u32 v18, v17, 4, s{T1}
        v_mul_u32_u24 v19, 1280, v16
        v_add_u32 v{self.PB}, v19, v18
        v_subrev_u32 v{self.PA}, 3840, v{self.PB}
        v_lshlrev_b32 v{self.PW}, 2, v18
        v_lshlrev_b32 v18, 11, v18
        v_lshlrev_b32 v16, 1, v16
        v_sub_u32 v18, v18, v16
        v_add_u32 v{self.PS}, {UR + 4088:#x}, v18""")
    def pre_loads(self):
        a = self.a
        if "k" in self.o("ab", ""): return
        self.srd(rC, pK, 2048 * 1280); self.srd(rD, pV, 2048 * 1280); self.srd(rB, pSH, 640 * 8)
        for j in range(4): a(f"buffer_load_dwordx4 {vr(self.KR_+12+4*j,4)}, v{self.PB}, s[{rC}:{rC+3}], 0 offen offset:{1280*j}{self.nt}")
        for j in range(4): a(f"buffer_load_dwordx4 {vr(self.VV_+4*j,4)}, v{self.PB}, s[{rD}:{rD+3}], 0 offen offset:{1280*j}{self.nt}")
        for j in range(3): a(f"buffer_load_dwordx4 {vr(self.KR_+4*j,4)}, v{self.PA}, s[{rC}:{rC+3}], 0 offen offset:{1280*j}{self.nt}")
        for j in range(4): a(f"buffer_load_dwordx4 {vr(self.SW_+4*j,4)}, v{self.PW}, s[{rB}:{rB+3}], 0 offen offset:{16*j}")
    def h_loads(self, D):
        a = self.a
        if "h" in self.o("ab", ""): return
        for g in range(4):
            a.vm(f"buffer_load_dwordx4 {vr(D+6*g,4)}, v{self.HA}, s[{rD}:{rD+3}], 0 offen offset:{1024*g}{self.nt}")
            a.vm(f"buffer_load_dwordx2 {vr(D+6*g+4,2)}, v{self.HA}, s[{rD}:{rD+3}], 0 offen offset:{1024*g+16}{self.nt}")
    def bar(self):
        a = self.a; L = a.newlabel("NB")
        a(f"s_cmp_ge_u32 s{sBC}, s{sNB}\ns_cbranch_scc1 {L}\ns_barrier\ns_add_u32 s{sBC}, s{sBC}, 1")
        a.label(L)
    def bar_rest(self):
        a = self.a; L, D = a.newlabel("BR"), a.newlabel("BRD")
        a.label(L)
        a(f"s_cmp_ge_u32 s{sBC}, s{sNB}\ns_cbranch_scc1 {D}\ns_barrier\ns_add_u32 s{sBC}, s{sBC}, 1\ns_branch {L}")
        a.label(D)
    def ewait(self, n=1):
        a = self.a; L, L2, D = a.newlabel("EW"), a.newlabel("EX"), a.newlabel("EWD")
        a.label(L)
        a(f"s_mov_b32 s{T1}, {n}")
        a.label(L2)
        a(f"""s_getreg_b32 s{T0}, hwreg(HW_REG_IB_STS)
        s_and_b32 s{T0}, s{T0}, 0x00c0000f
        s_cbranch_scc0 {D}
        s_cmp_ge_u32 s{sBC}, s{sNB}
        s_cbranch_scc1 {D}""")
        if n > 1: a(f"s_sleep 1\ns_sub_u32 s{T1}, s{T1}, 1\ns_cmp_lg_u32 s{T1}, 0\ns_cbranch_scc1 {L2}")
        a(f"""s_barrier
        s_add_u32 s{sBC}, s{sBC}, 1
        s_branch {L}""")
        a.label(D)
        a("s_waitcnt vmcnt(0)")
    def epoll(self, loads, tmp, cmp=None):
        a = self.a
        L, D = a.newlabel("EP"), a.newlabel("EPD")
        a(f"s_mov_b32 s{sCNT}, 0")
        a.label(L)
        k = 0
        for (va, r, imm, wd) in loads:
            ins = {1: "buffer_load_dword", 2: "buffer_load_dwordx2", 4: "buffer_load_dwordx4"}[wd]
            a(f"{ins} {vr(tmp+k, wd)}, v{va}, s[{r}:{r+3}], 0 offen offset:{imm} sc1"); k += wd
        self.ewait()
        self.poll_check(tmp, k, cmp)
        a(f"s_cbranch_scc1 {D}")
        a(f"s_add_u32 s{sCNT}, s{sCNT}, 1\ns_cmp_lt_u32 s{sCNT}, {POLL_MAX}\ns_cbranch_scc0 {D}\ns_sleep 1\ns_branch {L}")
        a.label(D)
    def pre_compute_list(self):
        L = []
        K, V, W, AC = 76, 90, 98, 106
        lo = lambda d, s: L.append(f"v_lshlrev_b32 v{d}, 16, v{s}")
        hi = lambda d, s: L.append(f"v_and_b32 v{d}, 0xffff0000, v{s}")
        for p in range(4):
            for j in range(7): lo(K+2*j, self.KR_+4*j+p); hi(K+2*j+1, self.KR_+4*j+p)
            for j in range(4): lo(V+2*j, self.VV_+4*j+p); hi(V+2*j+1, self.VV_+4*j+p)
            w = self.SW_ + 4*p
            lo(W, w); lo(W+1, w+2); hi(W+2, w); hi(W+3, w+2); lo(W+4, w+1); lo(W+5, w+3); hi(W+6, w+1); hi(W+7, w+3)
            for lag in (3, 2, 1, 0):
                for t in range(4):
                    kk = K + 2*(3 + t - lag)
                    if self.o("pk", 1):
                        if lag == 3: L.append(f"v_pk_mul_f32 {vr(AC+2*t,2)}, {vr(kk,2)}, {vr(W+2*lag,2)}")
                        else: L.append(f"v_pk_fma_f32 {vr(AC+2*t,2)}, {vr(kk,2)}, {vr(W+2*lag,2)}, {vr(AC+2*t,2)}")
                    else:
                        for h in range(2):
                            if lag == 3: L.append(f"v_mul_f32 v{AC+2*t+h}, v{kk+h}, v{W+2*lag+h}")
                            else: L.append(f"v_fmac_f32 v{AC+2*t+h}, v{kk+h}, v{W+2*lag+h}")
            for t in range(4):
                if self.o("pk", 1): L.append(f"v_pk_mul_f32 {vr(AC+2*t,2)}, {vr(AC+2*t,2)}, {vr(V+2*t,2)}")
                else:
                    for h in range(2): L.append(f"v_mul_f32 v{AC+2*t+h}, v{AC+2*t+h}, v{V+2*t+h}")
            for h in range(2):
                o = self.PO_ + 4*p + 2*h
                L.append(f"v_cvt_pk_bf16_f32 v{o}, v{AC+6+h}, v{AC+4+h}"); L.append(f"v_cvt_pk_bf16_f32 v{o+1}, v{AC+2+h}, v{AC+h}")
        return L
    def pre_stores(self):
        a = self.a
        if "s" in self.o("ab", ""): return
        if not self.o("st4", 1):
            for e in range(8):
                a(f"s_mov_b32 s{T0}, {4096*e}")
                a(f"buffer_store_dwordx2 {vr(self.PO_+2*e,2)}, v{self.PS}, s[{rWS}:{rWS+3}], s{T0} offen sc1")
            return
        for e in range(8): a(f"ds_write_b64 v{(self.PA, self.PW)[e & 1]}, {vr(self.PO_+2*e,2)} offset:{64*(e & 6)}")
        for k in range(1, 4): a(f"v_xor_b32 v{76+k}, {32*k}, v{self.PB}")
        a("s_waitcnt lgkmcnt(0)")
        for k in range(4): a(f"ds_read_b128 {vr(self.PO_+4*k,4)}, v{76+k if k else self.PB} offset:{1024*k}")
        for k in range(4):
            a(f"s_mov_b32 s{T0}, {65536*k}\ns_waitcnt lgkmcnt({3-k})")
            a(f"buffer_store_dwordx4 {vr(self.PO_+4*k,4)}, v{self.PS}, s[{rWS}:{rWS+3}], s{T0} offen sc1")
    def pre_store_setup(self):
        if not self.o("st4", 1): return
        assert (L_CONV + CONV_SZ + 2*CS) % 128 == 0 and CONV_SZ % 128 == 0 and (L_CONV + U_OFF) % 128 == 0
        self.a(f"""s_mul_i32 s{T0}, s{sLW}, {CONV_SZ}
        s_add_u32 s{T0}, s{T0}, {L_CONV + 2*CS}
        s_cmp_eq_u32 s{sWAVE}, 7
        s_cselect_b32 s{T0}, {L_CONV + U_OFF}, s{T0}
        v_and_b32 v76, 7, v0
        v_lshrrev_b32 v77, 3, v0
        v_sub_u32 v77, 7, v77
        v_lshrrev_b32 v78, 1, v77
        v_xor_b32 v78, v78, v76
        v_lshlrev_b32 v78, 4, v78
        v_and_b32 v77, 1, v77
        v_lshl_add_u32 v78, v77, 3, v78
        v_lshl_add_u32 v78, v76, 9, v78
        v_add_u32 v{self.PA}, s{T0}, v78
        v_xor_b32 v{self.PW}, 64, v{self.PA}
        v_lshrrev_b32 v76, 5, v0
        v_and_b32 v77, 31, v0
        v_xor_b32 v77, v77, v76
        v_lshlrev_b32 v77, 4, v77
        v_lshl_add_u32 v76, v76, 9, v77
        v_add_u32 v{self.PB}, s{T0}, v76
        s_lshr_b32 s{T1}, s{sU}, 6
        s_lshl_b32 s{T1}, s{T1}, 18
        s_and_b32 s{T0}, s{sU}, 63
        s_lshl_b32 s{T0}, s{T0}, 6
        s_sub_u32 s{T1}, s{T1}, s{T0}
        s_add_u32 s{T1}, s{T1}, {UR + 4032:#x}
        v_lshrrev_b32 v76, 2, v0
        v_lshlrev_b32 v76, 12, v76
        v_and_b32 v77, 3, v0
        v_lshl_add_u32 v76, v77, 4, v76
        v_add_u32 v{self.PS}, s{T1}, v76""")
    def h_valu(self, D, t0):
        L = [f"v_alignbit_b32 v{t0+e}, v{D+e+1}, v{D+e}, 16" for e in range(4)]
        L += [f"v_mov_b32 v{t0+4+e}, v{D+e+1}" for e in range(4)]
        return L + [f"v_alignbit_b32 v{t0+8+e}, v{D+e+2}, v{D+e+1}, 16" for e in range(4)]
    def h_writes(self, D, imm, t0):
        for r, src in enumerate((t0, t0 + 4, t0 + 8, D + 2)):
            self.a(f"ds_write_b128 v{self.HL}, {vr(src,4)} offset:{r*CS + imm}")
    def conv_prep(self, part):
        a = self.a
        HD, D = self.HD_, 112
        HA, UB, UE, YS = 16, 17, 18, 19
        if part == 0:
            for g in range(4):
                a(f"ds_read_b128 {vr(HD+6*g,4)}, v{self.HL} offset:{1024*g}")
                a(f"ds_read_b64 {vr(HD+6*g+4,2)}, v{self.HL} offset:{1024*g+16}")
            a(f"""v_lshrrev_b32 v22, 4, v0
            s_lshl_b32 s{T0}, s{sCH}, 12
            v_lshrrev_b32 v23, 2, v0
            v_and_b32 v23, 3, v23
            v_mul_u32_u24 v23, {CS}, v23
            v_lshl_add_u32 v23, v22, 4, v23
            v_and_b32 v24, 3, v0
            v_lshl_add_u32 v23, v24, 3, v23
            v_add_u32 v{HA}, s{T6}, v23
            v_and_b32 v23, 15, v0
            v_lshlrev_b32 v23, 5, v23
            v_lshlrev_b32 v24, 4, v22
            v_sub_u32 v24, v24, v23
            v_add_u32 v24, s{T6}, v24
            v_add_u32 v{UB}, {U_OFF + 480}, v24
            v_lshl_add_u32 v23, v22, 3, v23
            v_sub_u32 v24, s{T6}, v23
            v_add_u32 v{UE}, {U_OFF + 504}, v24
            s_add_u32 s{T0}, s{T0}, {YD:#x}
            v_add_u32 v{YS}, s{T0}, v23
            v_lshlrev_b32 v20, 16, v{self.DV_}""")
            for e in range(6): a(f"v_mov_b32 v{D+e}, 0")
            a("s_waitcnt lgkmcnt(0)")
            a(f"v_readlane_b32 s{T1}, v{HD}, 0\nv_readlane_b32 s{T2}, v{HD+1}, 0")
            for l in self.h_valu(HD, 64): a(l)
            a(f"v_writelane_b32 v{D+4}, s{T1}, 1\nv_writelane_b32 v{D+5}, s{T2}, 1")
        else:
            for g in range(1, 4):
                for l in self.h_valu(HD + 6*g, 64 + 12*g): a(l)
            for l in self.h_valu(D, 120): a(l)
    def h_store(self):
        a = self.a
        for g in range(4): self.h_writes(self.HD_ + 6*g, 32 + 1024*g, 64 + 12*g)
        a("s_mov_b32 exec_hi, 0")
        a(f"ds_write_b128 v{self.HL}, v[112:115] offset:{U_OFF + 4096}")
        a("s_mov_b64 exec, 3")
        self.h_writes(112, 0, 120)
        a("s_mov_b64 exec, -1")
        for d, r in ((2, 16), (3, 17), (4, 18), (5, 19), (7, 20)): a(f"v_mov_b32 v{d}, v{r}")

    def dma_role(self):
        a = self.a
        a.reset_counters()
        fine = self.o("fine", 0)
        self.dma_setup()
        a("s_waitcnt lgkmcnt(0)")
        self.srd(rA, pX, 2048 * 1280); self.srd(rB, pW, 640 * 3840)
        a(f"s_cmp_ge_u32 s{sI}, 30\ns_cbranch_scc1 L_D_SKIP")
        S = {0: self.stage_dma(0)}
        if self.o("s1early", 0): S[1] = self.stage_dma(1)
        a.label("L_D_SKIP")
        if self.stamps: a("v_mov_b32 v1, 0")
        self.stamp("start")
        self.srd(rWS, pWS, WS_SIZE)
        self.setup_call()
        a(f"s_cmp_ge_u32 s{sI}, 30\ns_cbranch_scc1 L_D_NT")
        if self.o("dprio", 0): a(f"s_setprio {self.o('dprio', 0)}")
        if not self.o("s1early", 0): S[1] = self.stage_dma(1)
        if self.o("hat", 0) == 0: self.conv_scalars()
        for s in range(10):
            a.wait(S[s])
            if fine: self.stamp(f"l.w{s}")
            a("s_barrier")
            if fine or s in (0, 5, 9): self.stamp(f"l.b{s}")
            if s + 2 <= 9:
                S[s+2] = self.stage_dma(s + 2)
                if fine: self.stamp(f"l.i{s}")
            if s == 8: self.conv_prep(0)
            if s == 9: self.conv_prep(1)
        a.label("L_CONV")
        self.conv()
    def side_role(self):
        a = self.a
        a.label("L_SIDE")
        a.reset_counters()
        a(f"""s_cmp_eq_u32 s{sWAVE}, 7
        s_cselect_b32 s{T0}, 1, 0
        s_cmp_eq_u32 s{sWAVE}, 6
        s_cselect_b32 s{T0}, 2, s{T0}
        s_add_u32 s{sU}, s{sCH0}, s{T0}
        s_cmp_ge_u32 s{T0}, s{sNCH}
        s_cbranch_scc1 L_IDLE""")
        slate = self.o("slate", 0)
        if slate: self.setup_call()
        self.pre_setup()
        a("s_waitcnt lgkmcnt(0)")
        if slate > 1: a(f"s_sleep {slate}")
        self.pre_loads()
        if self.o("hat", 0) == 0:
            L7 = a.newlabel("H7")
            a(f"s_cmp_eq_u32 s{sWAVE}, 7\ns_cbranch_scc1 {L7}")
            self.conv_scalars()
            a.label(L7)
        if self.stamps: a("v_mov_b32 v1, 0")
        self.stamp("start")
        self.srd(rWS, pWS, WS_SIZE)
        if not slate: self.setup_call()
        a(f"""v_mov_b32 v44, {L_SIG}
        v_mov_b32 v46, 0
        v_mov_b32 v47, 0
        ds_write_b64 v44, v[46:47]
        ds_write_b64 v44, v[46:47] offset:8
        v_and_b32 v46, 1, v0
        v_lshlrev_b32 v46, 7, v46
        s_waitcnt lgkmcnt(0)""")
        self.pre_store_setup()
        self.bar()
        self.ewait(self.o("espin0", 1))
        self.stamp("s.kv")
        if self.o("sprio", 0): a(f"s_setprio {self.o('sprio', 0)}")
        PC = self.pre_compute_list()
        nch = self.o("nchunk", 2)
        per = -(-len(PC) // nch)
        for c in range(nch):
            for l in (PC[c*per:(c+1)*per] if "v" not in self.o("ab", "") else []): a(l)
            if c < nch - 1 or self.o("barst", 1): self.bar()
        self.pre_stores()
        if self.o("hat", 0) == 1:
            L7 = a.newlabel("H7")
            a(f"s_cmp_eq_u32 s{sWAVE}, 7\ns_cbranch_scc1 {L7}")
            self.conv_scalars()
            a.label(L7)
        self.srd(rC, pDBG, 256)
        a(f"buffer_load_dword v47, v46, s[{rC}:{rC+3}], 0 offen sc1")
        self.stamp("s.st")
        self.ewait(self.o("espin", 1))
        self.last_flag(8, f"s{sNCH}", T5, 114)
        self.stamp("s.F1set")
        a(f"s_cmp_eq_u32 s{sWAVE}, 7\ns_cbranch_scc1 L_FETCH")
        self.bar()
        self.conv_prep(0)
        self.bar()
        self.conv_prep(1)
        self.bar_rest()
        a("s_branch L_CONV")
        a.label("L_D_NT")
        self.conv_scalars()
        a("s_barrier\ns_waitcnt vmcnt(0)")
        self.conv_prep(0); self.conv_prep(1)
        a("s_branch L_CONV")
        a.label("L_IDLE")
        a("s_waitcnt lgkmcnt(0)")
        if self.stamps: a("v_mov_b32 v1, 0")
        self.stamp("start")
        self.srd(rWS, pWS, WS_SIZE)
        self.setup_call()
        for l in self.att_init_list(): a(l)
        self.bar_rest()
        a("s_branch L_ATT")
        self.fetcher()

    def fetcher(self):
        a = self.a
        a.label("L_FETCH")
        a.reset_counters()
        OK = a.newlabel("CNTOK")
        a("s_setprio 0")
        self.poll_check(47, 1, cmp="v_cmp_le_u32 vcc, 0x80, v47")
        a(f"s_cbranch_scc1 {OK}")
        self.epoll([(46, rC, 0, 1)], 47, cmp="v_cmp_le_u32 vcc, 0x80, v47")
        a.label(OK)
        a(f"""s_andn2_b32 s{T1}, s{sCH0}, 63
        s_add_u32 s{T2}, s{sCH0}, s{sNCH}
        s_sub_u32 s{T2}, s{T2}, 1
        s_or_b32 s{T2}, s{T2}, 63""")
        for r in (T1, T2):
            a(f"""s_mul_i32 s{T3}, s{r}, 13108
            s_lshr_b32 s{T3}, s{T3}, 16
            s_mul_i32 s{T4}, s{T3}, 5
            s_sub_u32 s{T4}, s{r}, s{T4}
            s_lshl_b32 s{T3}, s{T3}, 1
            s_cmp_ge_u32 s{T4}, 3
            s_addc_u32 s{r}, s{T3}, 0""")
        a(f"""v_add_u32 v9, s{T1}, v0
        v_min_u32 v9, s{T2}, v9
        v_lshlrev_b32 v9, 6, v9
        v_add_u32 v9, {F1:#x}, v9""")
        if self.o("pgate", 9):
            LG, LD = a.newlabel("PG"), a.newlabel("PGD")
            a.label(LG)
            a(f"s_cmp_ge_u32 s{sBC}, {self.o('pgate', 9)}\ns_cbranch_scc1 {LD}\ns_cmp_ge_u32 s{sBC}, s{sNB}\ns_cbranch_scc1 {LD}\ns_barrier\ns_add_u32 s{sBC}, s{sBC}, 1\ns_branch {LG}")
            a.label(LD)
        if "p" not in self.o("ab", ""): self.mpoll([9], 16, elastic=True)
        self.stamp("f.F1ok")
        a(f"s_lshl_b32 s{T2}, s{sCH0}, 12\ns_add_u32 s{T2}, s{T2}, {UR:#x}")
        for c in range(3 if "u" not in self.o("ab", "") else 0):
            L = a.newlabel("NOU")
            if c == 2: a(f"s_cmp_lt_u32 s{sNCH}, 3\ns_cbranch_scc1 {L}")
            a(f"s_mov_b32 m0, {L_CONV + c*CONV_SZ + U_OFF}\ns_add_u32 s{T1}, s{T2}, {4096*c}")
            for j in range(4): a(f"buffer_load_dwordx4 v{L16}, s[{rWS}:{rWS+3}], s{T1} offen offset:{1024*j} sc1 lds")
            if c == 2: a.label(L)
        a("v_mov_b32 v45, 1")
        self.ewait()
        a("ds_write_b32 v44, v45")
        self.stamp("f.u")
        self.bar_rest()
        for l in self.att_init_list(): a(l)
        a("s_branch L_ATT")
    def kv_fetch(self):
        a = self.a
        a.reset_counters()
        OK = a.newlabel("CNTOK")
        self.poll_check(29, 1, cmp="v_cmp_le_u32 vcc, 0x80, v29")
        a(f"s_cbranch_scc1 {OK}")
        self.poll([(28, rC, 0, 1)], 29, cmp="v_cmp_le_u32 vcc, 0x80, v29")
        a.label(OK)
        self.sig_wait(12, 4)
        self.mpoll([30, 31], 16)
        self.stamp("f.F2ok")
        a(f"""s_mul_i32 s{T0}, s{sHEAD}, {Q_HS}
        s_mul_i32 s{T1}, s{sQB}, {4*Q_US}
        s_add_u32 s{T0}, s{T0}, s{T1}
        s_add_u32 s{T0}, s{T0}, {QO:#x}""")
        def lin(sbase, lds0, n):
            T = []
            for k in range(n):
                if k % 4 == 0: a(f"s_mov_b32 m0, {lds0 + 1024*k}\ns_add_u32 s{T1}, s{sbase}, {1024*k}")
                T.append(a.vm(f"buffer_load_dwordx4 v{L16}, s[{rWS}:{rWS+3}], s{T1} offen offset:{1024*(k%4)} sc1 lds"))
            return T
        if self.o("kv3", 1):
            lin(T0, L_Q, 10)
            T = lin(sKVB, 0, 40)
            a(f"v_mov_b32 v16, {L_SIG}\nv_mov_b32 v17, 1\nv_mov_b32 v18, 2")
            a.wait(T[9]); a("ds_write_b32 v16, v17 offset:4")
            a.wait(T[19]); a("ds_write_b32 v16, v18 offset:4")
        else:
            lin(T0, L_Q, 10)
            lin(sKVB, 0, 40)
            a(f"v_mov_b32 v16, {L_SIG}\nv_mov_b32 v17, 3")
            a.wait_all()
            a("ds_write_b32 v16, v17 offset:4")
        self.stamp("f.kv0")
    def kv_fetch_setup(self):
        a = self.a
        self.srd(rC, pDBG, 256)
        a(f"""s_mul_i32 s{T0}, s{sHEAD}, 20
        v_and_b32 v28, 15, v0
        v_lshrrev_b32 v30, 4, v0
        v_and_b32 v31, 1, v30
        v_mul_u32_u24 v31, 19, v31
        v_add_u32 v31, s{T0}, v31
        v_lshrrev_b32 v31, 7, v31
        v_lshrrev_b32 v30, 1, v30
        v_mul_u32_u24 v30, 5, v30
        v_add3_u32 v30, v30, v31, 5
        v_lshl_add_u32 v30, v30, 4, v28
        v_lshlrev_b32 v30, 6, v30
        v_add_u32 v30, {F2:#x}, v30
        v_lshl_add_u32 v31, v31, 4, s{sQB}
        v_add_u32 v31, s{sQB}, v31
        v_and_b32 v28, 1, v0
        v_add_u32 v31, v31, v28
        v_lshlrev_b32 v31, 6, v31
        v_add_u32 v31, {F2:#x}, v31
        v_lshlrev_b32 v28, 7, v28""")

    def sig_check(self, off, thr, tok):
        a = self.a
        OK = a.newlabel("SOK")
        a.wait(tok)
        a(f"v_readfirstlane_b32 s{T0}, v15\ns_nop 0\ns_cmp_ge_u32 s{T0}, {thr}\ns_cbranch_scc1 {OK}")
        self.sig_wait(off, thr)
        a.label(OK)
    def sig_wait(self, off, thr=1):
        a = self.a
        L, D = a.newlabel("SIG"), a.newlabel("SIGD")
        a(f"v_mov_b32 v14, {L_SIG}\ns_mov_b32 s{sCNT}, 0")
        a.label(L)
        a(f"""ds_read_b32 v15, v14 offset:{off}
        s_waitcnt lgkmcnt(0)
        v_readfirstlane_b32 s{T0}, v15
        s_add_u32 s{sCNT}, s{sCNT}, 1
        s_cmp_ge_u32 s{T0}, {thr}
        s_cbranch_scc1 {D}
        s_sleep 1
        s_cmp_lt_u32 s{sCNT}, {POLL_MAX*40}
        s_cbranch_scc1 {L}""")
        a.label(D)
    def conv(self):
        a = self.a
        a.reset_counters()
        ACC, FR = 16, 64
        HA, UB, UE, YS, DV = 2, 3, 4, 5, self.DV_
        a(f"s_setprio {self.o('hprio', 0)}")
        self.h_store()
        self.stamp("v.h")
        self.sig_wait(0)
        a(f"s_setprio {self.o('cprio', 3)}")
        a.reset_counters()
        def reads(rho):
            st = FR + 64 * (rho & 1)
            ra = lambda i, q: (lambda: a.ds(f"ds_read_b64_tr_b16 {vr(st+4*i+2*q,2)}, v{HA} offset:{64*(8*i+rho) + 8*q}"))
            rb = lambda d: (lambda: a.ds(f"ds_read_b128 {vr(st+32+4*d,4)}, v{UB} offset:{64*(56 - (8*d - rho))}"))
            L = [("A0", ra(0,0)), ("A0", ra(0,1))] + [(f"B{d}", rb(d)) for d in range(8)]
            for i in range(1, 8): L += [(f"A{i}", ra(i,0)), (f"A{i}", ra(i,1))]
            return L
        toks = {}
        for n, f in reads(0): toks[n] = f()
        self.stamp("v.u")
        init = self.att_init_list()
        for rho in range(8):
            st = FR + 64 * (rho & 1)
            nxt = reads(rho + 1) if rho < 7 else []
            out = {}; k = 0; m = 0
            for i in range(8):
                for c in range(i, 8):
                    a.wait(toks[f"A{i}"], toks[f"B{c-i}"])
                    d = ACC + 4 * c
                    a(f"v_mfma_f32_16x16x32_bf16 {vr(d,4)}, {vr(st+4*i,4)}, {vr(st+32+4*(c-i),4)}, {'0' if (rho == 0 and i == 0) else vr(d,4)}")
                    m += 1
                    if m >= 4 and k < len(nxt): out[nxt[k][0]] = nxt[k][1](); k += 1
                    elif m >= 28 and init: a(init.pop())
            assert k == len(nxt)
            toks = out
        assert not init
        self.stamp("v.mfma")
        tu = [a.ds(f"ds_read_b64 {vr(FR+2*c,2)}, v{UE} offset:{512*(7-c)}") for c in range(8)]
        for c in range(8):
            a.wait(tu[c])
            d, u, t = ACC + 4*c, FR + 2*c, FR + 32 + 8*(c & 3)
            a(f"""v_and_b32 v{t}, 0xffff0000, v{u+1}
            v_lshlrev_b32 v{t+1}, 16, v{u+1}
            v_and_b32 v{t+2}, 0xffff0000, v{u}
            v_lshlrev_b32 v{t+3}, 16, v{u}""")
            for e in range(4): a(f"v_fmac_f32 v{d+e}, v7, v{t+e}")
            a(f"v_cvt_pk_bf16_f32 v{t+4}, v{d}, v{d+1}\nv_cvt_pk_bf16_f32 v{t+5}, v{d+2}, v{d+3}")
            a.vm(f"buffer_store_dwordx2 {vr(t+4,2)}, v{YS}, s[{rWS}:{rWS+3}], 0 offen offset:{512*c} sc1")
        self.stamp("v.st")

    def m2b(self, S, j=1): self.a(f"v_mfma_f32_32x32x4_2b_bf16 {vr(S,32)}, {vr(KRM,2)}, {vr((QR2, QR)[j],2)}, 0")
    def mqk(self, S, h, j=1): self.a(f"v_mfma_f32_32x32x16_bf16 {vr(S+16*h,16)}, {vr(KM+4*h,4)}, {vr((QM2, QM)[j],4)}, {vr(S+16*h,16)}")
    def smf(self, V, P, j=1): self.a(f"v_smfmac_f32_32x32x32_bf16 {vr((O2, O_)[j],16)}, {vr(V,4)}, {vr(P,8)}, v{IDX}")
    def side_kv(self, add):
        a = self.a
        def mk(j):
            def f():
                if j == 0: a(f"s_add_u32 m0, s{sKVW}, {add*KV_US}\ns_add_u32 s{T5}, s{sKVG}, {add*KV_US}")
                if j == 4: a(f"s_add_u32 m0, m0, 4096\ns_add_u32 s{T5}, s{T5}, 4096")
                a.vm(f"buffer_load_dwordx4 v{L16}, s[{rWS}:{rWS+3}], s{T5} offen offset:{1024*(j%4)} sc1 lds")
            return f
        return [mk(j) for j in range(5)]
    def side_wo(self):
        a = self.a
        def mk(k):
            def f():
                L = a.newlabel("NOWO")
                if k == 0: a(f"s_mul_i32 s{T4}, s{sWAVE}, {13*1024}\ns_add_u32 m0, s{T4}, {L_WO}")
                else: a("s_add_u32 m0, m0, 1024")
                if k % 5 == 0: a(f"s_mov_b32 s{T5}, {40960*(k//5)}")
                elif k < 9: a("s_nop 0")
                if k >= 9: a(f"s_cmp_eq_u32 s{sWAVE}, 7\ns_cbranch_scc1 {L}")
                a.vm(f"buffer_load_dwordx4 v{WOV + k%5}, s[{rA}:{rA+3}], s{T5} offen lds")
                if k >= 9: a.label(L)
            return f
        return [mk(k) for k in range(13)]
    def side_yd(self):
        a = self.a
        def f0():
            OK = a.newlabel("F3OK")
            a.wait(self.tF3)
            self.poll_check(F3T, 2)
            a(f"s_cbranch_scc1 {OK}")
            snap = a.snapshot(); self.poll([(AF3, rWS, 0, 2)], F3T); a.restore(snap)
            a.label(OK)
            a(f"s_mul_i32 s{T5}, s{sWAVE}, 1280\ns_add_u32 m0, s{T5}, {L_YD}\ns_mov_b32 s{T5}, {8*4096 - 1024}")
            a.vm(f"buffer_load_dwordx4 v{YDV}, s[{rWS}:{rWS+3}], 0 offen sc1 lds")
            a("s_mov_b64 exec, 0xffff")
            a.vm(f"buffer_load_dwordx4 v{YDV}, s[{rWS}:{rWS+3}], s{T5} offen offset:1024 sc1 lds")
            a("s_mov_b64 exec, -1")
        return [f0]
    def side_x(self):
        a = self.a
        def mk(j):
            def f():
                if j == 0: self.srd(rA, pX, 2048 * 1280)
                a.vm(f"buffer_load_dwordx2 {vr(XE+2*j,2)}, v{AOUT}, s[{rA}:{rA+3}], 0 offen offset:{32*j}")
            return f
        def f3(): self.tF3 = a.vm(f"buffer_load_dwordx2 {vr(F3T,2)}, v{AF3}, s[{rWS}:{rWS+3}], 0 offen sc1")
        return [mk(j) for j in range(3)] + [f3]
    def attention(self):
        a = self.a
        a.label("L_ATT")
        a.reset_counters()
        for e in range(16): a(f"v_mov_b32 v{O2+e}, 0")
        self.sig_wait(4)
        self.stamp("att0")
        US2 = 2 * KV_US
        base = {"K": 0, "V": 0}
        def bump(kind, u):
            while u * US2 - base[kind] > 5 * US2:
                base[kind] += 6 * US2
                for r in ((AKM, AKR) if kind == "K" else (AV,)): a(f"v_add_u32 v{r}, {6*US2}, v{r}")
            return u * US2 - base[kind]
        def rKR(u): o = bump("K", u); return a.ds(f"ds_read_b64 {vr(KRM,2)}, v{AKR} offset:{o}")
        def rKM(u, h): o = bump("K", u); return a.ds(f"ds_read_b128 {vr(KM+4*h,4)}, v{AKM} offset:{o + 1024*h}")
        def rV(u):
            o = bump("V", u)
            a(f"s_mov_b64 exec, s[{sVMASK}:{sVMASK+1}]")
            for g in range(4): t = a.ds(f"ds_read_b128 {vr(VS[u&1]+4*g,4)}, v{AV} offset:{o + 640*g}")
            a("s_mov_b64 exec, -1")
            return t
        tq = [a.ds(f"ds_read_b64 {vr(QR2,2)}, v{AQR2} offset:2048")]
        tKR = rKR(0)
        tq.append(a.ds(f"ds_read_b128 {vr(QM2,4)}, v{AQM2}"))
        tK0 = rKM(0, 0); tK1 = rKM(0, 1)
        tq.append(a.ds(f"ds_read_b64 {vr(QR,2)}, v{AQR} offset:2048"))
        tq.append(a.ds(f"ds_read_b128 {vr(QM,4)}, v{AQM}"))
        tV = {0: rV(0)}
        side = self.side_kv(8)
        a.wait(tq[0], tKR); self.m2b(S_, 0)
        for _ in range(4): side.pop(0)()
        a.nop(12)
        a.wait(tq[1], tK0); self.mqk(S_, 0, 0)
        a.wait(tK1); self.mqk(S_, 1, 0)
        side.pop(0)()
        if self.o("kv3", 1):
            self.sig_check(4, 2, a.ds("ds_read_b32 v15, v14 offset:4")); a.nop(2)
        else: a.nop(8)
        zones = {0: self.o("z0", "3,5"), 6: self.o("z1", "3,5,7"), 14: self.o("z1", "3,5,7"), 22: self.o("z3", "3,5,7"), 30: self.o("z4", "1")}
        prio = {}
        if self.o("prio", 1):
            for u0, z in zones.items():
                zz = [int(x) for x in z.split(",")]
                prio[u0] = len(zz)
                for k, d in enumerate(zz): prio[u0 + d] = len(zz) - 1 - k
        for t in range(32):
            if t % 8 == 6 and t < 30:
                assert not side
                side = self.att_sync(t // 8)
            if t == 1 and self.o("kv3", 1):
                L3 = a.newlabel("N3")
                a(f"s_cmp_lg_u32 s{sWAVE}, 3\ns_cbranch_scc1 {L3}\nv_mov_b32 v15, 3\ns_waitcnt vmcnt(5)\nds_write_b32 v14, v15 offset:4")
                a.label(L3)
            if t == 2 and self.o("kv3", 1): self.sig_check(4, 3, tsig)
            if t == 30: a("s_barrier")
            if t in prio: a(f"s_setprio {prio[t]}")
            u, j = t >> 1, t & 1
            X, Y = S_ + 32 * j, S_ + 32 * (1 - j)
            Vc, Vp = VS[u & 1], VS[((t - 1) >> 1) & 1]
            nx = t < 31
            rl = j == 0 and u < 15
            for p in range(32):
                if p == 2:
                    if t == 0: a.wait(tq[2])
                    if j == 1 and nx: a.wait(tKR)
                    if t > 0: self.smf(Vp + 12, Y + 24, 1 - j)
                    if rl: tV[u+1] = rV(u + 1)
                if p == 6 and nx:
                    self.m2b(Y, 1 - j)
                    if rl: tKR = rKR(u + 1)
                if t == 1 and p == 24 and self.o("kv3", 1): tsig = a.ds("ds_read_b32 v15, v14 offset:4")
                if p in (10, 20) and side: side.pop(0)()
                if t == 31 and p in (16, 20, 24): a.ds(f"ds_write_b128 v{AEX}, {vr(O2+(p-16),4)} offset:{256*(p-16)}")
                if t == 31 and p == 28: a.ds(f"ds_write_b32 v{AEX}, v{O2+12} offset:3072")
                if p == 14: a.wait(tV[u]); self.smf(Vc, X, j)
                if p == 18: self.smf(Vc + 4, X + 8, j)
                if p == 22 and nx:
                    a.wait(tK0, tK1, tq[3]); self.mqk(Y, 0, 1 - j)
                    if rl: tK0 = rKM(u + 1, 0)
                if p == 26: self.smf(Vc + 8, X + 16, j)
                if p == 30 and nx:
                    self.mqk(Y, 1, 1 - j)
                    if rl: tK1 = rKM(u + 1, 1)
                a(f"v_exp_f32 v{X+p}, v{X+p}")
        assert not side
        a.nop(2)
        self.smf(VS[1] + 12, S_ + 32 + 24, 1)
        self.stamp("attend")
        a("s_setprio 0")
        a.wait_all(vm=False)
        a("s_barrier")
        tl = a.ds(f"ds_read_b32 v{O2+12}, v{APX} offset:3072")
        tp = [a.ds(f"ds_read_b128 {vr(O2+4*k,4)}, v{APX} offset:{1024*k}") for k in range(3)]
        self.fin_pre()
        a.nop(1)
        a.wait(tl); a(f"v_add_f32 v{O_+12}, v{O_+12}, v{O2+12}")
        for k in range(3):
            a.wait(tp[k])
            for e in range(4): a(f"v_add_f32 v{O_+4*k+e}, v{O_+4*k+e}, v{O2+4*k+e}")
    def att_sync(self, k):
        a = self.a
        if k == 0:
            a.wait_all(vm=True, ds=False, force=True)
            L = a.newlabel("NOF3")
            a(f"s_cmp_ge_u32 s{sLW}, s{sNCH}\ns_cbranch_scc1 {L}")
            a(f"s_lshl_b32 s{T0}, s{sCH}, 2\ns_add_u32 s{T0}, s{T0}, {F3:#x}")
            self.flag_store(T0, 14)
            a.label(L)
            a("s_barrier")
            self.stamp("sync0")
            return self.side_kv(16) + self.side_kv(24)
        if k == 1:
            a.wait_all(vm=True, ds=False, force=True)
            a("s_barrier")
            self.stamp("sync1")
            return self.side_x()
        a("s_barrier")
        self.stamp("sync2")
        self.srd(rA, pWO, 640 * 1280)
        return self.side_yd() + self.side_wo()

    def fin_pre(self):
        self.a(f"""v_lshlrev_b32 v2, 3, v0
        s_mov_b32 s{T2}, {f2u(2.0**-60):#x}
        s_mov_b32 s{T3}, {f2u(2.0**60):#x}
        s_mov_b32 s{T4}, 0x7f7fffff""")
    def finish(self):
        a = self.a
        O, TMP = O_, 16
        ACC, OF, WF, G = 224, 16, 56, 14
        a.label("L_NORM")
        a(f"v_rcp_f32 v{TMP+4}, v{O+12}")
        for e in range(4): a(f"v_add_f32 v{TMP+e}, abs(v{O+e}), abs(v{O+4+e})")
        for e in range(4): a(f"v_add_f32 v{TMP+e}, v{TMP+e}, abs(v{O+8+e})")
        a(f"""v_add_f32 v{TMP}, v{TMP}, v{TMP+1}
        v_add_f32 v{TMP+2}, v{TMP+2}, v{TMP+3}
        v_cmp_le_f32 vcc, s{T2}, v{O+12}
        v_cmp_ge_f32 s[{sM}:{sM+1}], s{T3}, v{O+12}
        v_add_f32 v{TMP}, v{TMP}, v{TMP+2}
        s_nop 0
        s_and_b64 s[{sM}:{sM+1}], s[{sM}:{sM+1}], vcc
        v_cmp_ge_f32 vcc, s{T4}, v{TMP}
        s_nop 1
        s_and_b64 s[{sM}:{sM+1}], s[{sM}:{sM+1}], vcc
        s_cmp_eq_u64 s[{sM}:{sM+1}], exec
        s_cbranch_scc1 L_NORM_OK
        s_cmp_eq_u32 s{sSLOW}, 0
        s_cbranch_scc1 L_SLOW""")
        a.label("L_NORM_OK")
        for e in range(8): a(f"v_mul_f32 v{O+e}, v{O+e}, v{TMP+4}")
        for e in range(4): a(f"v_cvt_pk_bf16_f32 v{TMP+8+e}, v{O+2*e}, v{O+2*e+1}")
        a(f"buffer_store_dwordx4 {vr(TMP+8,4)}, v{L16}, s[{rWS}:{rWS+3}], s{sOMS} offen sc1")
        for e in range(8, 12): a(f"v_mul_f32 v{O+e}, v{O+e}, v{TMP+4}")
        for e in range(4, 6): a(f"v_cvt_pk_bf16_f32 v{TMP+8+e}, v{O+2*e}, v{O+2*e+1}")
        a("s_mov_b32 exec_hi, 0")
        a(f"buffer_store_dwordx2 {vr(TMP+12,2)}, v2, s[{rWS}:{rWS+3}], s{sORS} offen sc1")
        a("s_mov_b32 exec_hi, -1")
        self.srd(rA, pOUT, 2048 * 1280)
        a("s_waitcnt vmcnt(0)\ns_barrier")
        a.reset_counters()
        L = a.newlabel("NOF4")
        a(f"s_cmp_lg_u32 s{sWAVE}, 0\ns_cbranch_scc1 {L}")
        self.flag_store(sF4S, 2)
        a.label(L)
        a.reset_counters()
        self.stamp("F4set")
        tg = a.vm(f"buffer_load_dword v{G}, v{AG}, s[{rWS}:{rWS+3}], 0 offen sc1")
        def wfrag(step, regstep):
            toks = []
            for b in range(5):
                for q in range(2):
                    if step < 8: ad, off = (WM0 if b < 2 else WM1), (40*step + 8*q)*160 + 32*b
                    else: ad, off = (WR0 if b < 2 else WR1), (160*(step-8) + 80*q)*160 + 32*b
                    t = a.ds(f"ds_read_b64_tr_b16 {vr(WF + 20*regstep + 4*b + 2*q, 2)}, v{ad} offset:{L_WO + off}")
                toks.append(t)
            return toks
        tw = {s: wfrag(s, s) for s in range(8)}
        YR, BB = 2, 16
        ty = [a.ds(f"ds_read_b64_tr_b16 {vr(YR+2*b,2)}, v{AYD} offset:{2048*b}") for b in range(3)]
        keep = [216, 217, 218, 219, 220, 221, 222, 223, 2, 3, 4, 5]
        for b in range(3):
            a.wait(ty[b])
            x, y = XE + 2*b, YR + 2*b
            a(f"""v_lshlrev_b32 v16, 16, v{x}
            v_and_b32 v17, 0xffff0000, v{x}
            v_lshlrev_b32 v18, 16, v{x+1}
            v_and_b32 v19, 0xffff0000, v{x+1}
            v_lshlrev_b32 v20, 16, v{y}
            v_and_b32 v21, 0xffff0000, v{y}
            v_lshlrev_b32 v22, 16, v{y+1}
            v_and_b32 v23, 0xffff0000, v{y+1}""")
            for e in range(4): a(f"v_mul_f32 v{keep[4*b+e]}, v{16+e}, v{20+e}")
        L = a.newlabel("NOP4")
        a(f"s_cmp_lg_u32 s{sWAVE}, 0\ns_cbranch_scc1 {L}")
        snap = a.snapshot(); self.mpoll([AF4], 15); a.restore(snap)
        a.label(L)
        a("s_barrier")
        self.stamp("F4ok")
        to = {}
        for s in range(8):
            a(f"s_mov_b32 s{T0}, {s*131072}")
            to[s] = a.vm(f"buffer_load_dwordx4 {vr(OF+4*s,4)}, v{AOM}, s[{rWS}:{rWS+3}], s{T0} offen sc1")
        for rs in range(2):
            for q in range(2):
                a(f"s_mov_b32 s{T0}, {(8*rs+4*q)*16384}")
                to[8+rs] = a.vm(f"buffer_load_dwordx2 {vr(OF+32+4*rs+2*q,2)}, v{AOR}, s[{rWS}:{rWS+3}], s{T0} offen sc1")
        for s in range(10):
            rs = s if s < 8 else s - 8
            a.wait(to[s])
            order = range(5) if s < 9 else (2, 3, 4, 0, 1)
            for b in order:
                a.wait(tw[s][b])
                d = ACC + 4*b
                a(f"v_mfma_f32_16x16x32_bf16 {vr(d,4)}, {vr(WF+20*rs+4*b,4)}, {vr(OF+4*s,4)}, {'0' if s == 0 else vr(d,4)}")
            if s < 2: tw[8+s] = wfrag(8 + s, s)
        self.stamp("mfma")
        a.nop(4)
        for b in (2, 3, 4): a.ds(f"ds_write_b128 v{AEX}, {vr(ACC+4*b,4)} offset:{1024*(b-2)}")
        for b in range(3):
            for e in range(4): a(f"v_sub_f32 v{ACC+4*b+e}, v{ACC+4*b+e}, v{keep[4*b+e]}")
        a.wait_all(vm=False)
        a("s_barrier")
        tp = [a.ds(f"ds_read_b128 {vr(16+4*b,4)}, v{AX2} offset:{1024*b}") for b in range(3)]
        a.wait(tg)
        for b in range(3):
            if b == 2: a(f"s_cmp_lg_u32 s{sKH}, 0\ns_cbranch_scc1 L_FIN")
            a.wait(tp[b])
            for e in range(4): a(f"v_add_f32 v{16+4*b+e}, v{16+4*b+e}, v{ACC+4*b+e}")
            for e in range(4): a(f"v_fmac_f32 v{keep[4*b+e]}, v{G}, v{16+4*b+e}")
            a(f"v_cvt_pk_bf16_f32 v{32+2*b}, v{keep[4*b]}, v{keep[4*b+1]}\nv_cvt_pk_bf16_f32 v{33+2*b}, v{keep[4*b+2]}, v{keep[4*b+3]}")
            a.vm(f"buffer_store_dwordx2 {vr(32+2*b,2)}, v{AOUT}, s[{rA}:{rA+3}], 0 offen offset:{32*b} {self.o('ost', 'sc1').replace('+', ' ')}")
        a.label("L_FIN")
        if self.stamps:
            self.stamp("st")
            a("s_waitcnt vmcnt(0)")
            self.stamp("end")
            a(f"s_lshl_b32 s{T0}, s{sWG}, 3\ns_add_u32 s{T0}, s{T0}, s{sWAVE}\ns_lshl_b32 s{T0}, s{T0}, 8\ns_add_u32 s{T0}, s{T0}, {TS:#x}\nv_lshlrev_b32 v2, 2, v0")
            a(f"buffer_store_dword v1, v2, s[{rWS}:{rWS+3}], s{T0} offen")
            if "enc" in self.opt:
                n0, n1, wv, wg = self.opt["enc"].split(",")
                for n in (n0, n1):
                    if n not in self.names: self.names.append(n)
                a(f"s_cmp_lg_u32 s{sWG}, {wg}\ns_cbranch_scc1 L_END\ns_cmp_lg_u32 s{sWAVE}, {wv}\ns_cbranch_scc1 L_END")
                a(f"v_readlane_b32 s{T1}, v1, {self.names.index(n0)}\nv_readlane_b32 s{T2}, v1, {self.names.index(n1)}\nv_readlane_b32 s{T3}, v1, {self.names.index('end')}\ns_nop 3")
                a(f"s_sub_u32 s{T2}, s{T2}, s{T1}\ns_lshl_b32 s{T2}, s{T2}, 3\ns_and_b32 s{T2}, s{T2}, 0xffff\ns_add_u32 s{T3}, s{T3}, s{T2}")
                a.label("L_ENC")
                a(f"s_memrealtime s[{sTS}:{sTS+1}]\ns_waitcnt lgkmcnt(0)\ns_sub_u32 s{T1}, s{T3}, s{sTS}\ns_cmp_gt_i32 s{T1}, 0\ns_cbranch_scc1 L_ENC")
        a.label("L_END")
        a("s_endpgm")

    def slow(self):
        a = self.a
        S, V, M, AVS = S_, VS[0], 96, 98
        a.label("L_SLOW")
        a(f"""s_mov_b32 s{sSLOW}, 1
        v_and_b32 v{M}, 31, v0
        v_lshrrev_b32 v{AVS}, 5, v0
        v_mul_u32_u24 v{AVS}, 320, v{AVS}
        v_lshl_add_u32 v{AVS}, v{M}, 4, v{AVS}
        v_add_u32 v{AVS}, 2560, v{AVS}
        v_mov_b32 v{M}, 0xff800000""")
        def scores():
            a(f"""buffer_load_dwordx2 {vr(KRM,2)}, v2, s[{rWS}:{rWS+3}], s{T6} offen offset:2048 sc1
            buffer_load_dwordx4 {vr(KM,4)}, v{L16}, s[{rWS}:{rWS+3}], s{T6} offen sc1
            buffer_load_dwordx4 {vr(KM+4,4)}, v{L16}, s[{rWS}:{rWS+3}], s{T6} offen offset:1024 sc1
            s_waitcnt vmcnt(0)""")
            self.m2b(S); a.nop(18); self.mqk(S, 0); self.mqk(S, 1); a.nop(12)
        a(f"s_mov_b32 s{T6}, s{sKVB}\ns_mov_b32 s{sCNT}, 0")
        a.label("L_SLOW1")
        scores()
        for e in range(16): a(f"v_max3_f32 v{M}, v{M}, v{S+2*e}, v{S+2*e+1}")
        a(f"s_add_u32 s{T6}, s{T6}, {KV_US}\ns_add_u32 s{sCNT}, s{sCNT}, 1\ns_cmp_lt_u32 s{sCNT}, 32\ns_cbranch_scc1 L_SLOW1")
        a(f"v_mov_b32 v{M+1}, v{M}\ns_nop 1\nv_permlane32_swap_b32 v{M}, v{M+1}\ns_nop 1\nv_max_f32 v{M}, v{M}, v{M+1}")
        for e in range(16): a(f"v_mov_b32 v{O_+e}, 0")
        a(f"s_mov_b32 s{T6}, s{sKVB}\ns_mov_b32 s{sCNT}, 0")
        a.label("L_SLOW2")
        a(f"s_mov_b64 exec, s[{sVMASK}:{sVMASK+1}]")
        for g in range(4): a(f"buffer_load_dwordx4 {vr(V+4*g,4)}, v{AVS}, s[{rWS}:{rWS+3}], s{T6} offen offset:{640*g} sc1")
        a("s_mov_b64 exec, -1")
        scores()
        for e in range(32): a(f"v_sub_f32 v{S+e}, v{S+e}, v{M}")
        for e in range(32): a(f"v_exp_f32 v{S+e}, v{S+e}")
        a.nop(2)
        for g in range(4): self.smf(V + 4*g, S + 8*g)
        a(f"s_add_u32 s{T6}, s{T6}, {KV_US}\ns_add_u32 s{sCNT}, s{sCNT}, 1\ns_cmp_lt_u32 s{sCNT}, 32\ns_cbranch_scc1 L_SLOW2")
        a.nop(12)
        a("s_branch L_NORM")

    def build(self):
        self.prologue(); self.dma_role(); self.attention(); self.finish(); self.setup_sub(); self.side_role(); self.gemm_compute(); self.slow(); self.a.label('L_CODE_END')
        bad = lint(self.a.lines)
        head = f"""; Fused kernel: QKV projection, depthwise convolutions, attention, output projection and gated mix.
; One persistent workgroup per CU; hand-offs through d_ws flags that every launch clears itself (counted in d_debug).
; @launch grid=(256,1,1) block=(512,1,1) lds={LDS_BYTES}
.amdgcn_target "amdgcn-amd-amdhsa--gfx950"
.text
.globl {NAME}
.p2align 8
.type {NAME},@function
{NAME}:
"""
        tail = f""".section .rodata,"a"
.p2align 6
.amdhsa_kernel {NAME}
  .amdhsa_next_free_vgpr 256
  .amdhsa_next_free_sgpr 102
  .amdhsa_accum_offset 256
  .amdhsa_group_segment_fixed_size 0
  .amdhsa_kernarg_size 104
  .amdhsa_user_sgpr_count 2
  .amdhsa_user_sgpr_kernarg_segment_ptr 1
  .amdhsa_system_sgpr_workgroup_id_x 1
  .amdhsa_float_denorm_mode_32 3
.end_amdhsa_kernel
"""
        return head + self.a.text() + tail, bad

if __name__ == "__main__":
    out = sys.argv[1] if len(sys.argv) > 1 else "gated_mix__mha_block__ssm_conv_h3__prompt.s"
    opt = dict(x[2:].split("=") for x in sys.argv if x.startswith("-D"))
    G = Gen(stamps="--stamps" in sys.argv, opt=opt)
    src, bad = G.build()
    if G.stamps: src = src.replace("; @launch", "; STAMPS " + " ".join(G.names) + "\n; @launch", 1)
    for b in bad: print("LINT:", b)
    open(out, "w").write(src)
    print("wrote", out, len(src), "bytes;", len(bad), "lint findings")
```

```python
import sys, math, struct
from asmlib import *

NAME = "gated_mix__mha_block__ssm_conv_h3__prompt_kernel"
def f2u(x): return struct.unpack("<I", struct.pack("<f", x))[0]

KV, QO, UR, YD, OM, ORM = 0, 0x500000, 0x780000, 0xA00000, 0xC80000, 0xE80000
F2, F4, F3, F5, GT, F1 = 0xF04000, 0xF08000, 0xF0C000, 0xF0D000, 0xF0E000, 0xFA0000
TS = 0xF10000
WS_SIZE = 0x1000000
KV_HS, KV_US = 163840, 5120
Q_HS, Q_US = 81920, 2560
NSLOT = 3
L_X, L_W = 0, 49152
L_Q, L_SIG = 81920, 162048
L_CONV, CONV_SZ, CS, U_OFF = 98304, 21248, 4160, 16640
L_WO, L_YD, L_EX = 0, 102400, 112640
LDS_BYTES = 163840
sWG, sWAVE = 2, 3
pX, pW, pWO, pWS, pK, pV, pSH, pH, pD, pGW, pOUT, pDBG = 4, 6, 8, 10, 12, 14, 16, 18, 20, 22, 24, 26
rWS, rA, rB, rC, rD = 28, 32, 36, 40, 44
sXCD, sI, sJT, sRT, sPRT, sCJ, sCH0, sNCH, sHEAD, sQB = 48, 49, 50, 51, 52, 53, 54, 55, 56, 57
sLW, sCH, sKH, sTB, sCNT, sSLOW = 58, 59, 60, 61, 62, 63
T0, T1, T2, T3, T4, T5, T6, T7 = 64, 65, 66, 67, 68, 69, 70, 71
sM = 72
sVMASK = 74
sTS = 76
sE = 78
sSC = 86
sKVB, sKVW, sOMS, sORS, sF4S, sCL = 87, 88, 89, 90, 91, 92
sNB, sBC, sU, sK = 93, 94, 78, 96
sM2 = 98
sKVG = 97
sRET = 52
sPI, sNU, sG = 100, 101, 95
POLL_MAX = 30000
IDX, AKM, AKR, AV, L16, AQM, AQR, AF3, YDV = 224, 225, 226, 227, 228, 229, 230, 231, 232
WOV = 233
F3T = 238
ONES, APX, AQM2, AQR2 = 240, 241, 242, 243
QM2, QR2, O2 = 128, 132, 144
WM0, WM1, WR0, WR1, AOM, AOR, AOUT, AG, AEX, AX2, AYD, AF4 = 244, 245, 246, 247, 248, 249, 250, 251, 252, 253, 254, 255
O_, QM, QR, KRM, KM, S_ = 192, 32, 36, 38, 40, 64
VS = (48, 208)
XE = 8

class Gen:
    def __init__(self, stamps=False, opt=None):
        self.a = Asm(); self.stamps = stamps; self.names = []; self.opt = opt or {}
        self.nt = " nt" if int(self.opt.get("nt", 1)) else ""
        self.gnt = " nt" if int(self.opt.get("gnt", 0)) else ""
    def o(self, k, d): return type(d)(self.opt.get(k, d))
    def srd(self, r, p, size):
        self.a(f"s_mov_b32 s{r}, s{p}\ns_mov_b32 s{r+1}, s{p+1}\ns_mov_b32 s{r+2}, {size:#x}\ns_mov_b32 s{r+3}, 0x20000")
    def stamp(self, name):
        if not self.stamps: return
        if name not in self.names: self.names.append(name)
        k = self.names.index(name); assert k < 58
        if name == "start": self.a("s_mov_b32 s99, s76")
        self.a(f"s_memrealtime s[{sTS}:{sTS+1}]\ns_waitcnt lgkmcnt(0)\nv_writelane_b32 v1, s{sTS}, {k}")
        if name in ("l.b5", "l.b9"): self.a(f"s_memtime s[{sTS}:{sTS+1}]\ns_waitcnt lgkmcnt(0)\nv_writelane_b32 v1, s{sTS}, {58 if name == 'l.b5' else 59}")
        if name in ("att0", "attend"): self.a(f"s_memtime s[{sTS}:{sTS+1}]\ns_waitcnt lgkmcnt(0)\nv_writelane_b32 v1, s{sTS}, {60 if name == 'att0' else 61}")
        if name == "start":
            if "entry" not in self.names: self.names.append("entry")
            self.a(f"v_writelane_b32 v1, s99, {self.names.index('entry')}")
        if name == "start": self.a(f"s_memtime s[{sTS}:{sTS+1}]\ns_waitcnt lgkmcnt(0)\nv_writelane_b32 v1, s{sTS}, 62")
        if name == "end": self.a(f"s_memtime s[{sTS}:{sTS+1}]\ns_waitcnt lgkmcnt(0)\nv_writelane_b32 v1, s{sTS}, 63")
        self.a.done["ds"] = self.a.n["ds"]
    def poll(self, loads, tmp, cmp=None):
        a = self.a
        L, D = a.newlabel("POLL"), a.newlabel("POLLD")
        a(f"s_mov_b32 s{sCNT}, 0")
        a.label(L)
        k = 0
        for (va, r, imm, wd) in loads:
            ins = {1: "buffer_load_dword", 2: "buffer_load_dwordx2", 4: "buffer_load_dwordx4"}[wd]
            a(f"{ins} {vr(tmp+k, wd)}, v{va}, s[{r}:{r+3}], 0 offen offset:{imm} sc1"); k += wd
        a("s_waitcnt vmcnt(0)")
        a.done["vm"] = a.n["vm"]
        self.poll_check(tmp, k, cmp)
        a(f"s_cbranch_scc1 {D}")
        a(f"s_add_u32 s{sCNT}, s{sCNT}, 1\ns_cmp_lt_u32 s{sCNT}, {POLL_MAX}\ns_cbranch_scc0 {D}\ns_sleep 1\ns_branch {L}")
        a.label(D)
    def mpoll(self, addrs, tmp, elastic=False):
        a = self.a
        L, D = a.newlabel("MP"), a.newlabel("MPD")
        M = [sM, sM2][:len(addrs)]
        a(f"s_mov_b32 s{sCNT}, 0")
        for m in M: a(f"s_mov_b64 s[{m}:{m+1}], -1")
        a.label(L)
        for k, (va, m) in enumerate(zip(addrs, M)):
            S = a.newlabel("MS")
            a(f"s_mov_b64 exec, s[{m}:{m+1}]\ns_cbranch_execz {S}\nbuffer_load_dword v{tmp+k}, v{va}, s[{rWS}:{rWS+3}], 0 offen sc1")
            a.label(S)
        a("s_mov_b64 exec, -1")
        if elastic: self.ewait()
        else: a("s_waitcnt vmcnt(0)")
        a.done["vm"] = a.n["vm"]
        for k, m in enumerate(M):
            a(f"v_cmp_eq_u32 vcc, 0, v{tmp+k}\ns_nop 1\ns_and_b64 s[{m}:{m+1}], s[{m}:{m+1}], vcc")
        if len(M) == 2: a(f"s_or_b64 vcc, s[{sM}:{sM+1}], s[{sM2}:{sM2+1}]")
        a(f"s_cbranch_scc0 {D}")
        a(f"s_add_u32 s{sCNT}, s{sCNT}, 1\ns_cmp_lt_u32 s{sCNT}, {POLL_MAX}\ns_cbranch_scc0 {D}\ns_sleep {self.o('psleep', 4)}\ns_branch {L}")
        a.label(D)
    def last_flag(self, off, sN, sAddr, vt, base=L_SIG):
        a = self.a
        L = a.newlabel("NL")
        a(f"""v_mov_b32 v{vt}, {base}
        v_mov_b32 v{vt+1}, 1
        s_mov_b64 exec, 1
        ds_add_rtn_u32 v{vt+1}, v{vt}, v{vt+1} offset:{off}
        s_waitcnt lgkmcnt(0)
        v_readfirstlane_b32 s{T0}, v{vt+1}
        s_mov_b64 exec, -1
        s_add_u32 s{T0}, s{T0}, 1
        s_cmp_lg_u32 s{T0}, {sN}
        s_cbranch_scc1 {L}""")
        self.flag_store(sAddr, vt, two=True)
        a.label(L)
    def poll_check(self, tmp, k, cmp=None):
        a = self.a
        for j in range(1, k, 2):
            if j + 1 < k: a(f"v_min3_u32 v{tmp}, v{tmp}, v{tmp+j}, v{tmp+j+1}")
            else: a(f"v_min_u32 v{tmp}, v{tmp}, v{tmp+j}")
        a(cmp or f"v_cmp_ne_u32 vcc, 0, v{tmp}")
        a("s_nop 1\ns_cmp_eq_u64 vcc, exec")
    def flag_store(self, s, vt, two=False):
        a = self.a
        a(f"v_lshl_add_u32 v{vt}, v0, 2, s{s}\nv_mov_b32 v{vt+1}, 1\ns_mov_b64 exec, {3 if two else 1}")
        t = a.vm(f"buffer_store_dword v{vt+1}, v{vt}, s[{rWS}:{rWS+3}], 0 offen sc1")
        a("s_mov_b64 exec, -1")
        return t

    def prologue(self):
        a = self.a
        if self.stamps: a("s_memrealtime s[76:77]")
        a(f"s_cmp_ge_u32 s{sWG}, 256\ns_cbranch_scc1 L_END")
        if self.opt.get("diag") == "spin":
            a("s_mov_b32 s60, 2500\nv_mov_b32 v10, 0")
            a.label("L_DSPIN")
            for e in range(8): a(f"v_exp_f32 v{11+e}, v10")
            a("s_sub_u32 s60, s60, 1\ns_cmp_lg_u32 s60, 0\ns_cbranch_scc1 L_DSPIN")
        if self.opt.get("diag") == "chain":
            a("s_load_dwordx2 s[32:33], s[0:1], 24\ns_waitcnt lgkmcnt(0)\ns_mov_b32 s34, 2621440\ns_mov_b32 s35, 0x20000\ns_mul_i32 s60, s2, 256\nv_mov_b32 v10, s60")
            for e in range(32): a("buffer_load_dword v12, v10, s[32:35], 0 offen\ns_waitcnt vmcnt(0)\nv_and_b32 v12, 0, v12\nv_add_u32 v10, v10, v12\nv_add_u32 v10, 0x13000, v10")
        if self.opt.get("diag") == "bq":
            a("s_load_dwordx2 s[32:33], s[0:1], 24\ns_waitcnt lgkmcnt(0)\ns_mov_b32 s34, 2621440\ns_mov_b32 s35, 0x20000\nv_lshlrev_b32 v10, 4, v0\ns_mul_i32 s60, s2, 10240")
            a("buffer_load_dwordx4 v[12:15], v10, s[32:35], s60 offen\ns_add_u32 s60, s60, 2048\nbuffer_load_dwordx4 v[16:19], v10, s[32:35], s60 offen\ns_waitcnt vmcnt(0)")
        a(f"""s_load_dwordx4 s[4:7], s[0:1], 0
        s_load_dwordx16 s[12:27], s[0:1], 32
        s_load_dwordx2 s[10:11], s[0:1], 96
        s_load_dwordx2 s[8:9], s[0:1], 16
        v_lshrrev_b32 v1, 6, v0
        v_and_b32 v0, 63, v0
        s_and_b32 s{sXCD}, s{sWG}, 7
        v_readfirstlane_b32 s{sWAVE}, v1
        s_lshr_b32 s{sI}, s{sWG}, 3
        s_and_b32 s{T0}, s{sXCD}, 1
        s_mul_i32 s{T0}, s{T0}, 30
        s_add_u32 s{T0}, s{T0}, s{sI}
        s_lshr_b32 s{sJT}, s{T0}, 2
        s_and_b32 s{T0}, s{T0}, 3
        s_lshr_b32 s{T1}, s{sXCD}, 1
        s_lshl_b32 s{T1}, s{T1}, 2
        s_add_u32 s{sRT}, s{T0}, s{T1}
        s_sub_u32 s{sLW}, s{sWAVE}, 4
        s_mul_i32 s{T0}, s{sXCD}, 30
        s_add_u32 s{sPI}, s{T0}, s{sI}
        s_mul_i32 s{sG}, s{sPI}, 171
        s_lshr_b32 s{sG}, s{sG}, 9
        s_mul_i32 s{T1}, s{sG}, 3
        s_sub_u32 s{T1}, s{sPI}, s{T1}
        s_lshl_b32 s{T2}, s{sG}, 3
        s_mul_i32 s{T3}, s{T1}, 3
        s_add_u32 s{sCH0}, s{T2}, s{T3}
        s_lshr_b32 s{T1}, s{T1}, 1
        s_sub_u32 s{sNCH}, 3, s{T1}
        s_lshl_b32 s{T0}, s{sXCD}, 1
        s_add_u32 s{T0}, s{T0}, s{sI}
        s_add_u32 s{T0}, s{T0}, 210
        s_cmp_ge_u32 s{sI}, 30
        s_cselect_b32 s{sPI}, s{T0}, s{sPI}
        s_cselect_b32 s{sNCH}, 0, s{sNCH}
        s_cselect_b32 s{sNU}, 8, 2""")
        if self.o("cpf", 1) == 2: self.code_prefetch()
        a(f"""s_cmp_lt_u32 s{sWAVE}, 4
        s_cbranch_scc1 L_COMPUTE
        s_cmp_gt_u32 s{sWAVE}, 4
        s_cbranch_scc1 L_SIDE""")
    def code_prefetch(self):
        a = self.a
        L = a.newlabel("NOPF")
        a(f"""s_cmp_lg_u32 s{sWAVE}, 1
        s_cbranch_scc1 {L}
        s_getpc_b64 s[{T2}:{T3}]
        L_PC:
        s_sub_u32 s{T2}, s{T2}, L_PC-{NAME}
        s_subb_u32 s{T3}, s{T3}, 0
        s_and_b32 s{T0}, s{sI}, 7
        s_lshl_b32 s{T0}, s{T0}, 13
        v_lshl_add_u32 v10, v0, 7, s{T0}
        v_min_u32 v10, L_CODE_END-{NAME}-4, v10
        global_load_dword v31, v10, s[{T2}:{T3}]""")
        a.label(L)
    def common_scalars(self):
        self.a(f"""s_cmp_ge_u32 s{sI}, 30
        s_cselect_b32 s{sNB}, 1, 10
        s_mov_b32 s{sBC}, 0
        s_lshr_b32 s{T0}, s{sI}, 3
        s_lshl_b32 s{T1}, s{sXCD}, 2
        s_add_u32 s{sHEAD}, s{T0}, s{T1}
        s_and_b32 s{sQB}, s{sI}, 7
        s_lshr_b32 s{sKH}, s{sWAVE}, 2
        s_and_b32 s{sTB}, s{sWAVE}, 3
        s_mov_b32 s{sSLOW}, 0
        s_mov_b32 s{sVMASK}, 0x000fffff
        s_mov_b32 s{sVMASK+1}, 0x000fffff""")
    def setup_call(self):
        if self.o("sub", 1): self.a(f"s_call_b64 s[{sRET}:{sRET+1}], L_SETUP")
        else: self.common_scalars(); self.persistent()
    def setup_sub(self):
        if not self.o("sub", 1): return
        self.a.label("L_SETUP")
        self.common_scalars(); self.persistent()
        self.a(f"s_setpc_b64 s[{sRET}:{sRET+1}]")
    def persistent(self, t=192):
        a = self.a
        a(f"""s_mov_b32 s{sM}, 0x11000000
        s_mov_b32 s{sM+1}, 0x11000000
        v_mov_b32 v{t}, 0x3f803f80
        v_cndmask_b32 v{ONES}, 0, v{t}, s[{sM}:{sM+1}]""")
        a(f"""v_mov_b32 v{IDX}, 0xdddddddd
        v_lshlrev_b32 v{AKM}, 4, v0
        v_lshlrev_b32 v{L16}, 4, v0
        v_lshlrev_b32 v{t}, 3, v0
        v_add_u32 v{AKR}, 2048, v{t}
        v_and_b32 v{t+1}, 31, v0
        v_lshrrev_b32 v{t+2}, 5, v0
        v_mul_u32_u24 v{t+2}, 320, v{t+2}
        v_lshl_add_u32 v{t+2}, v{t+1}, 4, v{t+2}
        v_add_u32 v{AV}, 2560, v{t+2}
        s_mul_i32 s{T0}, s{sKH}, {KV_US}
        v_add_u32 v{AKM}, s{T0}, v{AKM}
        v_add_u32 v{AKR}, s{T0}, v{AKR}
        v_add_u32 v{AV}, s{T0}, v{AV}
        s_mul_i32 s{T0}, s{sTB}, {Q_US}
        s_add_u32 s{T0}, s{T0}, {L_Q}
        s_lshl_b32 s{T2}, s{sKH}, 10
        s_add_u32 s{T2}, s{T2}, s{T0}
        v_add_u32 v{AQM}, s{T2}, v{L16}
        s_lshl_b32 s{T1}, s{sKH}, 8
        s_add_u32 s{T1}, s{T1}, s{T0}
        v_lshl_add_u32 v{AQR}, v{t+1}, 3, s{T1}
        s_xor_b32 s{T3}, s{sKH}, 1
        s_lshl_b32 s{T2}, s{T3}, 10
        s_add_u32 s{T2}, s{T2}, s{T0}
        v_add_u32 v{AQM2}, s{T2}, v{L16}
        s_lshl_b32 s{T1}, s{T3}, 8
        s_add_u32 s{T1}, s{T1}, s{T0}
        v_lshl_add_u32 v{AQR2}, v{t+1}, 3, s{T1}
        s_mul_i32 s{sKVB}, s{sHEAD}, {KV_HS}
        s_mul_i32 s{sKVW}, s{sWAVE}, {KV_US}
        s_add_u32 s{sKVG}, s{sKVW}, s{sKVB}
        s_lshl_b32 s{T0}, s{sHEAD}, 16
        s_lshl_b32 s{T1}, s{sQB}, 2
        s_add_u32 s{T1}, s{T1}, s{sTB}
        s_lshl_b32 s{T1}, s{T1}, 1
        s_add_u32 s{T1}, s{T1}, s{sKH}
        s_lshl_b32 s{T2}, s{T1}, 10
        s_add_u32 s{T0}, s{T0}, s{T2}
        s_add_u32 s{sOMS}, s{T0}, {OM:#x}
        s_lshl_b32 s{T2}, s{sHEAD}, 14
        s_lshl_b32 s{T1}, s{T1}, 8
        s_add_u32 s{T1}, s{T1}, s{T2}
        s_add_u32 s{sORS}, s{T1}, {ORM:#x}
        s_lshl_b32 s{T0}, s{sQB}, 11
        s_lshl_b32 s{T1}, s{sHEAD}, 6
        s_add_u32 s{T0}, s{T0}, s{T1}
        s_add_u32 s{sF4S}, s{T0}, {F4:#x}""")
        a(f"""s_mul_i32 s{T0}, s{sQB}, 320
        s_add_u32 s{T0}, s{T0}, {F3:#x}
        v_lshl_add_u32 v{AF3}, v0, 3, s{T0}
        s_lshr_b32 s{T0}, s{sHEAD}, 1
        s_lshl_b32 s{T0}, s{T0}, 6
        s_add_u32 s{T0}, s{T0}, {F5:#x}
        v_mov_b32 v{t}, s{T0}
        s_mov_b32 s{sM}, 0
        s_mov_b32 s{sM+1}, 0xffffff00
        v_cndmask_b32 v{AF3}, v{AF3}, v{t}, s[{sM}:{sM+1}]""")
        a(f"s_mul_i32 s{T0}, s{sWAVE}, {13*64}\ns_mul_i32 s{T1}, s{sQB}, 160")
        for k in range(5):
            a(f"""s_add_u32 s{T2}, s{T0}, {64*k}
            v_add_u32 v{t}, s{T2}, v0
            v_mul_u32_u24 v{t+1}, 52429, v{t}
            v_lshrrev_b32 v{t+1}, 19, v{t+1}
            v_mul_u32_u24 v{t+1}, {1280-160}, v{t+1}
            v_lshl_add_u32 v{t+1}, v{t}, 4, v{t+1}
            v_add_u32 v{WOV+k}, s{T1}, v{t+1}""")
        a(f"""s_mul_i32 s{T0}, s{sQB}, 80
        s_mul_i32 s{T1}, s{sWAVE}, 10
        s_add_u32 s{T0}, s{T0}, s{T1}
        v_lshrrev_b32 v{t}, 3, v0
        v_add_u32 v{t}, s{T0}, v{t}
        v_lshlrev_b32 v{t}, 12, v{t}
        v_and_b32 v{t+1}, 7, v0
        v_lshl_add_u32 v{t}, v{t+1}, 4, v{t}
        s_lshl_b32 s{T0}, s{sHEAD}, 7
        s_add_u32 s{T0}, s{T0}, {YD:#x}
        v_add_u32 v{YDV}, s{T0}, v{t}""")
        q, r, c8, tt, b0 = t, t + 1, t + 2, t + 3, t + 4
        a(f"""v_lshrrev_b32 v{q}, 4, v0
        v_lshrrev_b32 v{r}, 2, v0
        v_and_b32 v{r}, 3, v{r}
        v_and_b32 v{c8}, 3, v0
        v_lshlrev_b32 v{c8}, 3, v{c8}
        v_and_b32 v{tt}, 15, v0
        v_and_b32 v{b0}, 1, v{q}
        s_mul_i32 s{T2}, s{sKH}, {51200 + 96}
        s_mul_i32 s{T3}, s{sKH}, {51200 - 64}
        v_lshrrev_b32 v{t+5}, 1, v{q}
        v_mul_u32_u24 v{t+5}, 20, v{t+5}
        v_lshl_add_u32 v{t+5}, v{b0}, 2, v{t+5}
        v_add_u32 v{t+5}, v{t+5}, v{r}
        v_mul_u32_u24 v{t+5}, 160, v{t+5}
        v_add_u32 v{t+5}, v{t+5}, v{c8}
        v_add_u32 v{WM0}, s{T2}, v{t+5}
        v_add_u32 v{WM1}, s{T3}, v{t+5}
        v_mul_u32_u24 v{t+5}, 20, v{q}
        v_add3_u32 v{t+5}, v{t+5}, v{r}, 16
        v_mul_u32_u24 v{t+5}, 160, v{t+5}
        v_add_u32 v{t+5}, v{t+5}, v{c8}
        v_add_u32 v{WR0}, s{T2}, v{t+5}
        v_add_u32 v{WR1}, s{T3}, v{t+5}
        s_lshl_b32 s{T2}, s{sKH}, 20
        s_lshl_b32 s{T3}, s{sHEAD}, 11
        s_add_u32 s{T2}, s{T2}, s{T3}
        s_lshr_b32 s{T3}, s{sTB}, 1
        s_lshl_b32 s{T4}, s{T3}, 10
        s_add_u32 s{T2}, s{T2}, s{T4}
        s_and_b32 s{T4}, s{sTB}, 1
        s_lshl_b32 s{T4}, s{T4}, 8
        s_add_u32 s{T2}, s{T2}, s{T4}
        s_add_u32 s{T2}, s{T2}, {OM:#x}
        v_lshrrev_b32 v{t+5}, 1, v{q}
        v_lshlrev_b32 v{t+5}, 16, v{t+5}
        v_lshl_add_u32 v{t+5}, v{b0}, 9, v{t+5}
        v_lshl_add_u32 v{t+5}, v{tt}, 4, v{t+5}
        v_add_u32 v{AOM}, s{T2}, v{t+5}
        s_lshl_b32 s{T2}, s{sKH}, 18
        s_lshl_b32 s{T4}, s{sHEAD}, 9
        s_add_u32 s{T2}, s{T2}, s{T4}
        s_lshl_b32 s{T4}, s{sTB}, 7
        s_add_u32 s{T2}, s{T2}, s{T4}
        s_add_u32 s{T2}, s{T2}, {ORM:#x}
        v_lshlrev_b32 v{t+5}, 14, v{q}
        v_lshl_add_u32 v{t+5}, v{tt}, 3, v{t+5}
        v_add_u32 v{AOR}, s{T2}, v{t+5}
        s_lshr_b32 s{T2}, s{sHEAD}, 2
        s_lshl_b32 s{T2}, s{T2}, 11
        s_add_u32 s{T2}, s{T2}, {F4:#x}
        v_and_b32 v{t+5}, 31, v0
        v_lshl_add_u32 v{AF4}, v{t+5}, 6, s{T2}
        s_lshl_b32 s{T0}, s{sHEAD}, 6
        s_lshl_b32 s{T1}, s{sTB}, 4
        s_add_u32 s{T0}, s{T0}, s{T1}
        v_add_u32 v{t+5}, s{T0}, v{tt}
        v_lshlrev_b32 v{AG}, 2, v{t+5}
        v_add_u32 v{AG}, {GT:#x}, v{AG}
        v_mul_u32_u24 v{t+5}, 1280, v{t+5}
        v_lshl_add_u32 v{t+5}, v{q}, 3, v{t+5}
        s_mul_i32 s{T0}, s{sQB}, 160
        s_mul_i32 s{T1}, s{sKH}, 96
        s_add_u32 s{T0}, s{T0}, s{T1}
        v_add_u32 v{AOUT}, s{T0}, v{t+5}
        s_lshl_b32 s{T0}, s{sWAVE}, 12
        s_add_u32 s{T0}, s{T0}, {L_EX}
        v_add_u32 v{AEX}, s{T0}, v{L16}
        s_xor_b32 s{T0}, s{sWAVE}, 4
        s_lshl_b32 s{T0}, s{T0}, 12
        s_add_u32 s{T1}, s{T0}, {L_EX}
        v_add_u32 v{APX}, s{T1}, v{L16}
        s_lshl_b32 s{T1}, s{sKH}, 10
        s_add_u32 s{T1}, s{T1}, s{T0}
        s_add_u32 s{T1}, s{T1}, {L_EX}
        v_add_u32 v{AX2}, s{T1}, v{L16}
        v_lshl_add_u32 v{AYD}, v{q}, 2, v{r}
        v_lshl_add_u32 v{AYD}, v{AYD}, 7, v{c8}
        s_mul_i32 s{T0}, s{sKH}, {48*128}
        s_lshl_b32 s{T1}, s{sTB}, 5
        s_add_u32 s{T0}, s{T0}, s{T1}
        s_add_u32 s{T0}, s{T0}, {L_YD}
        v_add_u32 v{AYD}, s{T0}, v{AYD}""")
    def att_init_list(self):
        if self.o("ones", 2) == 12:
            return [f"v_mov_b32 v{O_+e}, 0" for e in range(16)] + [f"v_mov_b32 v{st+e}, 0x3f803f80" for st in VS for e in range(16)]
        return [f"v_mov_b32 v{O_+e}, 0" for e in range(16)] + [f"v_mov_b32 v{st+e}, v{ONES}" for st in VS for e in range(16)]

    def flag_reset(self):
        a = self.a
        L = a.newlabel("NOZ")
        a(f"s_cmp_lg_u32 s{sWAVE}, 0\ns_cbranch_scc1 {L}")
        a(f"""s_lshl_b32 s{T0}, s{sPI}, 6
        s_add_u32 s{T0}, s{T0}, {F1:#x}
        v_mov_b32 v12, s{T0}
        v_and_b32 v10, 3, v0
        v_lshlrev_b32 v11, 2, v10
        v_add_u32 v13, s{sCL}, v11
        s_mov_b32 s{sM}, 0xf
        s_mov_b32 s{sM+1}, 0
        v_cndmask_b32 v12, v12, v13, s[{sM}:{sM+1}]
        s_lshl_b32 s{T0}, s{sCH0}, 2
        s_add_u32 s{T0}, s{T0}, {F3:#x}
        v_add_u32 v13, s{T0}, v11
        s_lshl_b32 s{sM}, 16, s{sNCH}
        s_sub_u32 s{sM}, s{sM}, 16
        v_cndmask_b32 v12, v12, v13, s[{sM}:{sM+1}]
        s_lshl_b32 s{T0}, s{sQB}, 11
        s_lshl_b32 s{T1}, s{sHEAD}, 6
        s_add_u32 s{T0}, s{T0}, s{T1}
        s_add_u32 s{T0}, s{T0}, {F4:#x}
        v_mov_b32 v13, s{T0}
        s_mov_b32 s{sM}, 0x100
        v_cndmask_b32 v12, v12, v13, s[{sM}:{sM+1}]
        s_lshl_b32 s{T0}, s{sG}, 6
        s_add_u32 s{T0}, s{T0}, {F1 + 256*64:#x}
        v_mov_b32 v13, s{T0}
        s_cmp_lt_u32 s{sG}, 32
        s_cselect_b32 s{T1}, s{sNCH}, 0
        s_cmp_eq_u32 s{T1}, 2
        s_cselect_b32 s{sM}, 0x200, 0
        v_cndmask_b32 v12, v12, v13, s[{sM}:{sM+1}]
        v_mov_b32 v13, 0
        s_mov_b32 exec_lo, 0x3ff
        s_mov_b32 exec_hi, 0
        buffer_store_dword v13, v12, s[{rWS}:{rWS+3}], 0 offen sc1
        s_mov_b64 exec, 1""")
        self.srd(rA, pDBG, 256)
        a(f"""s_and_b32 s{T0}, s{sWG}, 1
        s_lshl_b32 s{T0}, s{T0}, 7
        v_mov_b32 v12, s{T0}
        v_mov_b32 v13, 1
        s_waitcnt vmcnt(0)
        buffer_atomic_add v13, v12, s[{rA}:{rA+3}], 0 offen sc1
        s_mov_b64 exec, -1""")
        a.label(L)

    XA, WA, XA2, WA2, EA = 2, 6, 128, 132, 136
    def gemm_compute(self):
        a = self.a
        XA, WA = self.XA, self.WA
        a.label("L_COMPUTE")
        if self.o("cpf", 1) == 1: self.code_prefetch()
        self.common_scalars()
        a(f"""s_lshl_b32 s{T0}, s{sJT}, 10
        s_lshl_b32 s{T1}, s{sRT}, 6
        s_add_u32 s{T0}, s{T0}, s{T1}
        s_add_u32 s{sCL}, s{T0}, {F2:#x}
        s_lshl_b32 s{T0}, s{sXCD}, 1
        s_add_u32 s{T0}, s{T0}, s{sI}
        s_sub_u32 s{T7}, s{T0}, 30
        s_lshl_b32 s{T0}, s{T7}, 6
        s_add_u32 s{T0}, s{T0}, {F5:#x}
        s_cmp_ge_u32 s{sI}, 30
        s_cselect_b32 s{sCL}, s{T0}, s{sCL}
        s_waitcnt lgkmcnt(0)""")
        self.srd(rWS, pWS, WS_SIZE)
        if self.stamps: a("v_mov_b32 v1, 0")
        self.stamp("start")
        self.flag_reset()
        self.setup_call()
        for l in self.att_init_list():
            if int(l.split()[1][1:-1]) >= 192: a(l)
        a(f"s_cmp_eq_u32 s{sWAVE}, 0\ns_cbranch_scc1 L_C_NW\ns_waitcnt vmcnt(0)")
        a.label("L_C_NW")
        a(f"s_cmp_ge_u32 s{sI}, 30\ns_cbranch_scc1 L_C_NOTILE")
        a(f"""s_and_b32 s{T0}, s{sWAVE}, 1
        s_lshl_b32 s{T0}, s{T0}, 13
        v_and_b32 v8, 31, v0
        v_lshrrev_b32 v9, 5, v0
        v_lshrrev_b32 v10, 1, v8
        v_and_b32 v10, 7, v10
        v_xor_b32 v10, v10, v9
        v_lshlrev_b32 v8, 7, v8
        v_add_u32 v8, s{T0}, v8""")
        for ks in range(4):
            a(f"v_xor_b32 v11, {2*ks}, v10\nv_lshl_add_u32 v{XA+ks}, v11, 4, v8")
        a(f"""v_lshrrev_b32 v8, 2, v0
        v_and_b32 v8, 3, v8
        v_lshrrev_b32 v9, 5, v0
        v_lshl_add_u32 v9, v9, 3, v8
        v_lshlrev_b32 v9, 8, v9
        v_lshrrev_b32 v10, 4, v0
        v_and_b32 v10, 1, v10
        v_lshlrev_b32 v10, 1, v10
        v_lshrrev_b32 v11, 1, v0
        v_and_b32 v11, 1, v11
        v_or_b32 v10, v10, v11
        v_and_b32 v11, 1, v0
        v_lshlrev_b32 v11, 3, v11
        v_add_u32 v9, v9, v11
        v_add_u32 v9, {L_W}, v9
        s_and_b32 s{T0}, s{sWAVE}, 2""")
        for i in range(2):
            a(f"""s_add_u32 s{T1}, s{T0}, {i}
            v_xor_b32 v11, s{T1}, v8
            v_lshl_add_u32 v11, v11, 2, v10
            v_lshl_add_u32 v{WA+i}, v11, 4, v9""")
        def lowinit():
            for l in self.att_init_list():
                if int(l.split()[1][1:-1]) < 192: a(l)
        a(f"s_setprio {self.o('gprio', 3)}")
        a(f"s_cmp_ge_u32 s{sJT}, 10\ns_cbranch_scc1 L_C_VTILE")
        self.epi_qk_setup()
        self.gemm_loop(False, self.gemm_epi_qk, lowinit)
        a("s_branch L_C_FLAG")
        a.label("L_C_NOTILE")
        a(f"s_call_b64 s[{sRET}:{sRET+1}], L_SPARE")
        self.stamp("g.pre")
        self.sig_wait(8, 8)
        self.stamp("g.go")
        self.gate()
        lowinit()
        a("s_branch L_C_FLAG")
        a.label("L_C_VTILE")
        self.epi_v_setup()
        self.gemm_loop(True, self.gemm_epi_v, lowinit)
        a.label("L_C_FLAG")
        a.reset_counters()
        self.stamp("c.epi")
        L = a.newlabel("KVW")
        a(f"s_cmp_eq_u32 s{sWAVE}, 3\ns_cbranch_scc1 {L}")
        a("s_waitcnt vmcnt(0)")
        self.last_flag(12, 4, sCL, 2)
        self.stamp("c.F2set")
        a("s_branch L_ATT")
        a.label(L)
        self.kv_fetch_setup()
        a(f"buffer_load_dword v29, v28, s[{rC}:{rC+3}], 0 offen sc1")
        a("s_waitcnt vmcnt(0)")
        self.last_flag(12, 4, sCL, 2)
        self.kv_fetch()
        a("s_branch L_ATT")

    def gate(self):
        a = self.a
        a.reset_counters()
        X, W, Z = 32, 12, 2
        self.srd(rA, pX, 2048 * 1280); self.srd(rB, pGW, 1280)
        a(f"""s_lshl_b32 s{T0}, s{T7}, 7
        s_lshl_b32 s{T1}, s{sWAVE}, 5
        s_add_u32 s{T6}, s{T0}, s{T1}
        v_lshrrev_b32 v10, 4, v0
        v_add_u32 v11, s{T6}, v10
        v_mul_u32_u24 v11, 1280, v11
        v_and_b32 v2, 15, v0
        v_lshlrev_b32 v3, 4, v2
        v_add_u32 v11, v11, v3""")
        for j in range(5): tw = a.vm(f"buffer_load_dwordx4 {vr(W+4*j,4)}, v3, s[{rB}:{rB+3}], 0 offen offset:{256*j}")
        tx = []
        for g in range(8):
            a(f"s_mov_b32 s{T0}, {5120*g}")
            for j in range(5): t = a.vm(f"buffer_load_dwordx4 {vr(X+20*g+4*j,4)}, v11, s[{rA}:{rA+3}], s{T0} offen offset:{256*j}")
            tx.append(t)
        a(f"""v_lshl_add_u32 v10, v2, 2, v10
        v_add_u32 v10, s{T6}, v10
        v_lshlrev_b32 v10, 2, v10
        v_add_u32 v10, {GT:#x}, v10
        v_mov_b32 v11, v2""")
        for g in range(8):
            a.wait(tw, tx[g])
            for e in range(20):
                a(f"v_dot2_f32_bf16 v{Z+g}, v{X+20*g+e}, v{W+e}, {'0' if e == 0 else f'v{Z+g}'}")
        a.nop(3)
        for sh in (8, 4, 2, 1):
            for g in range(8): a(f"v_add_f32_dpp v{Z+g}, v{Z+g}, v{Z+g} row_ror:{sh} row_mask:0xf bank_mask:0xf")
        for g in range(1, 8):
            a(f"v_cmp_eq_u32 vcc, {g}, v11\ns_nop 1\nv_cndmask_b32 v{Z}, v{Z}, v{Z+g}, vcc")
        a(f"""v_mul_f32 v{Z}, {f2u(-math.log2(math.e)):#x}, v{Z}
        v_exp_f32 v{Z}, v{Z}
        s_mov_b32 exec_lo, 0x00ff00ff
        v_add_f32 v{Z}, 1.0, v{Z}
        v_rcp_f32 v{Z}, v{Z}
        s_mov_b32 exec_hi, 0x00ff00ff
        buffer_store_dword v{Z}, v10, s[{rWS}:{rWS+3}], 0 offen sc1
        s_mov_b64 exec, -1""")

    def gemm_loop(self, vt, epi, fill):
        a = self.a
        a.reset_counters()
        FR, ACC = 32, 64
        def reads(s, ks):
            st = FR + 16 * (ks & 1); sl = s % NSLOT
            xa, wa, sl = (self.XA, self.WA, sl * 16384) if sl < 4 else (self.XA2, self.WA2, 0)
            rx = lambda j: (lambda: a.ds(f"ds_read_b128 {vr(st+4*j,4)}, v{xa+ks} offset:{sl + 4096*j}"))
            rw = lambda i, q: (lambda: a.ds(f"ds_read_b64_tr_b16 {vr(st+8+4*i+2*q,2)}, v{wa+i} offset:{sl + (16*ks+4*q)*256}"))
            if vt: return [("X0", rx(0)), ("W0", rw(0,0)), ("W0", rw(0,1)), ("W1", rw(1,0)), ("W1", rw(1,1)), ("X1", rx(1))]
            return [("W0", rw(0,0)), ("W0", rw(0,1)), ("X0", rx(0)), ("X1", rx(1)), ("W1", rw(1,0)), ("W1", rw(1,1))]
        def group(ks, toks, nxt, first):
            st = FR + 16 * (ks & 1); out = {}
            sched = [3, 3, 0, 0]; k = 0
            for m, (i, j) in enumerate(((0,0),(0,1),(1,0),(1,1))):
                if vt: A, B, na, nb = st + 4*i, st + 8 + 4*j, f"X{i}", f"W{j}"
                else:  A, B, na, nb = st + 8 + 4*i, st + 4*j, f"W{i}", f"X{j}"
                a.wait(toks[na], toks[nb])
                d = ACC + 16 * (2*i + j)
                a(f"v_mfma_f32_32x32x16_bf16 {vr(d,16)}, {vr(A,4)}, {vr(B,4)}, {'0' if first else vr(d,16)}")
                for _ in range(sched[m]):
                    if k < len(nxt): out[nxt[k][0]] = nxt[k][1](); k += 1
            return out
        a("s_barrier")
        toks = {}
        for n, f in reads(0, 0): toks[n] = f()
        for s in range(9):
            for ks in range(4):
                if ks < 3:
                    toks = group(ks, toks, reads(s, ks + 1), s == 0 and ks == 0)
                else:
                    a.wait_all(vm=False); a("s_barrier")
                    if s < 8: toks = group(ks, toks, reads(s + 1, 0), False)
        sets = (FR, 152, 168, 8)
        T = {}
        def rd(ks, nm):
            st = sets[ks]; sl = (9 % NSLOT) * 16384; k = int(nm[1])
            if nm[0] == "X": T[ks, nm] = a.ds(f"ds_read_b128 {vr(st+4*k,4)}, v{self.XA+ks} offset:{sl + 4096*k}")
            else:
                for q in range(2): T[ks, nm] = a.ds(f"ds_read_b64_tr_b16 {vr(st+8+4*k+2*q,2)}, v{self.WA+k} offset:{sl + (16*ks+4*q)*256}")
        na, nb = ("X", "W") if vt else ("W", "X")
        first = [(lambda ks=ks, nm=nm: rd(ks, nm)) for ks in range(4) for nm in (na + "0", nb + "0")]
        later = [(lambda ks=ks: rd(ks, nb + "1")) for ks in range(4)] + [(lambda ks=ks: rd(ks, na + "1")) for ks in range(4)]
        group(3, toks, [(f"f{i}", f) for i, f in enumerate(first[:6])], False)
        for f in first[6:]: f()
        off = lambda nm: 4 * int(nm[1]) + (0 if nm[0] == "X" else 8)
        pend = []
        for bi, (i, j) in enumerate(((0,0),(0,1),(1,0),(1,1))):
            d = ACC + 16 * (2*i + j)
            for ks in range(4):
                a.wait(T[ks, f"{na}{i}"], T[ks, f"{nb}{j}"])
                a(f"v_mfma_f32_32x32x16_bf16 {vr(d,16)}, {vr(sets[ks]+off(f'{na}{i}'),4)}, {vr(sets[ks]+off(f'{nb}{j}'),4)}, {vr(d,16)}")
                if bi < 2 and later: later.pop(0)()
                if bi >= 2:
                    n = -(-len(pend) // (4 - ks + (4 if bi == 2 else 0)))
                    for _ in range(min(n, 9)): pend.pop(0)()
            if bi == 1: pend += epi(0, 0)
            if bi == 1: pend += epi(0, 1)
            if bi == 2: last = epi(1, 0)
        for f in pend: f()
        for f in last: f()
        for f in epi(1, 1): f()
        fill()

    def epi_qk_setup(self):
        a = self.a
        sBASE, sHS, sPQ = T0, T1, T3
        a(f"""s_mov_b32 s{sHS}, {Q_HS}
        s_mov_b32 s{T4}, {Q_US}
        s_cmp_ge_u32 s{sJT}, 5
        s_cselect_b32 s{sHS}, {KV_HS}, s{sHS}
        s_cselect_b32 s{T4}, {KV_US}, s{T4}
        s_cselect_b32 s{sBASE}, {KV}, {QO:#x}
        s_cselect_b32 s{T5}, 5, 0
        s_cselect_b64 s[{sM}:{sM+1}], -1, 0
        s_cselect_b32 s{sSC}, 1.0, {f2u(math.log2(math.e) / math.sqrt(20.0)):#x}
        s_sub_u32 s{T5}, s{sJT}, s{T5}
        s_lshl_b32 s{sPQ}, s{T5}, 4
        s_and_b32 s{T5}, s{sWAVE}, 2
        s_lshl_b32 s{T5}, s{T5}, 2
        s_add_u32 s{sPQ}, s{sPQ}, s{T5}
        s_lshl_b32 s{T5}, s{sRT}, 1
        s_and_b32 s{T6}, s{sWAVE}, 1
        s_add_u32 s{T5}, s{T5}, s{T6}
        s_mul_i32 s{T5}, s{T5}, s{T4}
        s_add_u32 s{sBASE}, s{sBASE}, s{T5}
        v_and_b32 v8, 31, v0
        v_and_b32 v9, 0x13, v0
        v_and_b32 v10, 4, v0
        v_lshl_or_b32 v9, v10, 1, v9
        v_and_b32 v10, 8, v0
        v_lshrrev_b32 v10, 1, v10
        v_or_b32 v9, v9, v10
        v_cndmask_b32 v8, v8, v9, s[{sM}:{sM+1}]
        v_lshrrev_b32 v9, 5, v0
        v_lshlrev_b32 v10, 3, v9
        v_lshl_add_u32 v12, v8, 4, v10
        v_add_u32 v13, 1024, v12
        v_mul_lo_u32 v10, v9, s{sHS}
        v_lshl_add_u32 v14, v8, 3, v10
        v_add_u32 v14, 1024, v14
        v_add_u32 v15, 256, v14""")
        for p in range(8):
            a(f"""s_add_u32 s{T4}, s{sPQ}, {p}
            s_mul_i32 s{T5}, s{T4}, 205
            s_lshr_b32 s{T5}, s{T5}, 10
            s_mul_i32 s{T6}, s{T5}, 5
            s_sub_u32 s{T4}, s{T4}, s{T6}
            s_lshl_b32 s{T5}, s{T5}, 1
            s_mul_i32 s{T5}, s{T5}, s{sHS}
            s_add_u32 s{T5}, s{T5}, s{sBASE}
            s_lshl_b32 s{T6}, s{T4}, 9
            s_add_u32 s{T5}, s{T5}, s{T6}
            s_sub_u32 s{T6}, s{sHS}, 1536
            s_cmp_ge_u32 s{T4}, 3
            s_cselect_b32 s{T6}, s{T6}, 0
            s_add_u32 s{sE+p}, s{T5}, s{T6}
            s_cmp_eq_u32 s{T4}, 2
            s_cselect_b64 s[{sM}:{sM+1}], -1, 0""")
            for j in range(2): a(f"v_cndmask_b32 v{self.EA+2*p+j}, v{12+j}, v{14+j}, s[{sM}:{sM+1}]")
    def gemm_epi_qk(self, i, j):
        a = self.a; L = []
        for g in range(4):
            d = 64 + 16 * (2*i + j) + 4*g
            for e in range(4): L.append(lambda d=d, e=e: a(f"v_mul_f32 v{d+e}, s{sSC}, v{d+e}"))
            L.append(lambda d=d: a(f"v_cvt_pk_bf16_f32 v{d}, v{d}, v{d+1}"))
            L.append(lambda d=d: a(f"v_cvt_pk_bf16_f32 v{d+1}, v{d+2}, v{d+3}"))
            L.append(lambda d=d, g=g: a.vm(f"buffer_store_dwordx2 {vr(d,2)}, v{self.EA+2*(4*i+g)+j}, s[{rWS}:{rWS+3}], s{sE+4*i+g} offen sc1"))
        return L
    def epi_v_setup(self):
        a = self.a
        a(f"""s_sub_u32 s{T0}, s{sJT}, 10
        s_lshl_b32 s{T0}, s{T0}, 7
        s_and_b32 s{T1}, s{sWAVE}, 2
        s_lshl_b32 s{T1}, s{T1}, 5
        s_add_u32 s{T0}, s{T0}, s{T1}
        s_lshl_b32 s{T1}, s{sRT}, 1
        s_and_b32 s{T2}, s{sWAVE}, 1
        s_add_u32 s{T1}, s{T1}, s{T2}
        s_mul_i32 s{T1}, s{T1}, {KV_US}
        s_add_u32 s{sE}, s{T1}, {KV + 2560}
        s_mov_b32 s{T2}, {KV_HS - 320}
        v_and_b32 v8, 31, v0
        v_lshrrev_b32 v9, 5, v0
        v_mul_u32_u24 v9, 320, v9""")
        for j in range(2):
            a(f"""v_add_u32 v10, s{T0}, v8
            v_add_u32 v10, {32*j}, v10
            v_mul_u32_u24 v11, 3277, v10
            v_lshrrev_b32 v11, 16, v11
            v_mul_lo_u32 v11, v11, s{T2}
            v_lshl_add_u32 v10, v10, 4, v9
            v_add_u32 v{self.EA+j}, v10, v11""")
    def gemm_epi_v(self, i, j):
        a = self.a; L = []
        for s in range(2):
            d = 64 + 16 * (2*i + j) + 8*s
            for e in range(4): L.append(lambda d=d, e=e: a(f"v_cvt_pk_bf16_f32 v{d+e}, v{d+2*e}, v{d+2*e+1}"))
            L.append(lambda d=d, s=s: a.vm(f"buffer_store_dwordx4 {vr(d,4)}, v{self.EA+j}, s[{rWS}:{rWS+3}], s{sE} offen offset:{(2*i+s)*640} sc1"))
        return L

    XS, WS_, PA, PB, PW, PS, HA, HL = 2, 6, 10, 11, 12, 13, 14, 15
    KR_, VV_, SW_, HD_, DV_, PO_ = 16, 176, 116, 132, 156, 160
    def dma_setup(self):
        a = self.a
        a(f"""v_lshrrev_b32 v16, 3, v0
        v_and_b32 v17, 7, v0
        v_lshrrev_b32 v18, 1, v16
        s_lshl_b32 s{T0}, s{sRT}, 7
        v_add_u32 v16, s{T0}, v16
        v_mul_u32_u24 v16, 1280, v16""")
        for n in range(4):
            a(f"""v_xor_b32 v19, {(4*n) & 7}, v18
            v_xor_b32 v19, v19, v17
            v_lshl_add_u32 v19, v19, 4, v16
            v_add_u32 v{self.XS+n}, {n*(8*1280-1024)}, v19""")
        a(f"""v_lshrrev_b32 v16, 4, v0
        v_and_b32 v17, 15, v0
        v_lshlrev_b32 v18, 2, v16
        v_xor_b32 v17, v17, v18
        v_mul_u32_u24 v16, 3840, v16
        v_lshl_add_u32 v16, v17, 4, v16
        s_lshl_b32 s{T0}, s{sJT}, 8
        v_add_u32 v{self.WS_}, s{T0}, v16""")
        for n in range(1, 4): a(f"v_add_u32 v{self.WS_+n}, {n*(4*3840-1024)}, v{self.WS_}")
        P = self.o("rot", 1)
        a(f"s_add_u32 s{T0}, s{sJT}, s{sRT}")
        if P == 1: a(f"s_mov_b32 s{sK}, 0")
        elif P == 2: a(f"s_and_b32 s{T0}, s{T0}, 1\ns_mul_i32 s{sK}, s{T0}, 5")
        elif P == 3: a(f"s_mul_i32 s{T1}, s{T0}, 43\ns_lshr_b32 s{T1}, s{T1}, 7\ns_mul_i32 s{T1}, s{T1}, 3\ns_sub_u32 s{T0}, s{T0}, s{T1}\ns_mul_i32 s{T0}, s{T0}, 7\ns_lshr_b32 s{sK}, s{T0}, 1")
        elif P == 4: a(f"s_and_b32 s{T0}, s{T0}, 3\ns_mul_i32 s{T0}, s{T0}, 5\ns_lshr_b32 s{sK}, s{T0}, 1")
    def stage_dma(self, s):
        a = self.a
        sl = (s % NSLOT) * 16384
        a(f"s_lshl_b32 s{T0}, s{sK}, 7\ns_mul_i32 s{T1}, s{sK}, {64*3840}")
        def ld(txt):
            if a.n["vm"] - a.done["vm"] >= 62: a.wait(Tok("vm", a.done["vm"] + 8))
            return a.vm(txt)
        for h in range(4):
            a(f"s_mov_b32 m0, {L_X + sl + 4096*h}")
            a(f"s_add_u32 s{T2}, s{T0}, {32*1280*h}")
            for n in range(4): ld(f"buffer_load_dwordx4 v{self.XS+n}, s[{rA}:{rA+3}], s{T2} offen offset:{1024*n}{self.gnt} lds")
            a(f"s_mov_b32 m0, {L_W + sl + 4096*h}")
            a(f"s_add_u32 s{T2}, s{T1}, {16*3840*h}")
            for n in range(4): t = ld(f"buffer_load_dwordx4 v{self.WS_+n}, s[{rB}:{rB+3}], s{T2} offen offset:{1024*n}{self.gnt} lds")
        a(f"s_add_u32 s{sK}, s{sK}, 1\ns_cmp_eq_u32 s{sK}, 10\ns_cselect_b32 s{sK}, 0, s{sK}")
        return t
    def conv_scalars(self):
        a = self.a
        a(f"""s_min_u32 s{T0}, s{sLW}, 2
        s_add_u32 s{sCH}, s{sCH0}, s{T0}
        s_min_u32 s{sCH}, s{sCH}, 639
        s_mul_i32 s{T0}, s{T0}, {CONV_SZ}
        s_add_u32 s{T6}, s{T0}, {L_CONV}
        s_lshl_b32 s{T1}, s{sCH}, 1
        v_mov_b32 v{self.DV_}, s{T1}
        s_lshl_b32 s{T1}, s{sCH}, 12
        v_lshl_add_u32 v{self.HA}, v0, 4, s{T1}
        v_lshl_add_u32 v{self.HL}, v0, 4, s{T6}""")
        self.srd(rD, pH, 640 * 4096)
        a(f"s_mov_b32 m0, s{T6}\ns_nop 0")
        if "h" not in self.o("ab", ""):
            for g in range(4): a.vm(f"buffer_load_dwordx4 v{self.HA}, s[{rD}:{rD+3}], 0 offen offset:{1024*g}{self.nt} lds")
        self.srd(rC, pD, 640 * 2)
        return a.vm(f"buffer_load_ushort v{self.DV_}, v{self.DV_}, s[{rC}:{rC+3}], 0 offen")
    def pre_setup(self):
        self.a(f"""s_and_b32 s{T0}, s{sU}, 63
        s_lshr_b32 s{T1}, s{sU}, 6
        s_lshl_b32 s{T5}, s{sPI}, 6
        s_add_u32 s{T5}, s{T5}, {F1:#x}
        s_lshl_b32 s{T0}, s{T0}, 5
        s_lshl_b32 s{T1}, s{T1}, 7
        v_lshrrev_b32 v16, 3, v0
        v_and_b32 v17, 7, v0
        v_lshl_add_u32 v16, v16, 2, s{T0}
        v_lshl_add_u32 v18, v17, 4, s{T1}
        v_mul_u32_u24 v19, 1280, v16
        v_add_u32 v{self.PB}, v19, v18
        v_subrev_u32 v{self.PA}, 3840, v{self.PB}
        v_lshlrev_b32 v{self.PW}, 2, v18
        v_lshlrev_b32 v18, 11, v18
        v_lshlrev_b32 v16, 1, v16
        v_sub_u32 v18, v18, v16
        v_add_u32 v{self.PS}, {UR + 4088:#x}, v18""")
    def pre_loads(self):
        a = self.a
        if "k" in self.o("ab", ""): return
        self.srd(rC, pK, 2048 * 1280); self.srd(rD, pV, 2048 * 1280); self.srd(rB, pSH, 640 * 8)
        for j in range(4): a(f"buffer_load_dwordx4 {vr(self.KR_+12+4*j,4)}, v{self.PB}, s[{rC}:{rC+3}], 0 offen offset:{1280*j}{self.nt}")
        for j in range(4): a(f"buffer_load_dwordx4 {vr(self.VV_+4*j,4)}, v{self.PB}, s[{rD}:{rD+3}], 0 offen offset:{1280*j}{self.nt}")
        for j in range(3): a(f"buffer_load_dwordx4 {vr(self.KR_+4*j,4)}, v{self.PA}, s[{rC}:{rC+3}], 0 offen offset:{1280*j}{self.nt}")
        for j in range(4): a(f"buffer_load_dwordx4 {vr(self.SW_+4*j,4)}, v{self.PW}, s[{rB}:{rB+3}], 0 offen offset:{16*j}")
    def h_loads(self, D):
        a = self.a
        if "h" in self.o("ab", ""): return
        for g in range(4):
            a.vm(f"buffer_load_dwordx4 {vr(D+6*g,4)}, v{self.HA}, s[{rD}:{rD+3}], 0 offen offset:{1024*g}{self.nt}")
            a.vm(f"buffer_load_dwordx2 {vr(D+6*g+4,2)}, v{self.HA}, s[{rD}:{rD+3}], 0 offen offset:{1024*g+16}{self.nt}")
    def bar(self):
        a = self.a; L = a.newlabel("NB")
        a(f"s_cmp_ge_u32 s{sBC}, s{sNB}\ns_cbranch_scc1 {L}\ns_barrier\ns_add_u32 s{sBC}, s{sBC}, 1")
        a.label(L)
    def bar_rest(self):
        a = self.a; L, D = a.newlabel("BR"), a.newlabel("BRD")
        a.label(L)
        a(f"s_cmp_ge_u32 s{sBC}, s{sNB}\ns_cbranch_scc1 {D}\ns_barrier\ns_add_u32 s{sBC}, s{sBC}, 1\ns_branch {L}")
        a.label(D)
    def ewait(self, n=1):
        a = self.a; L, L2, D = a.newlabel("EW"), a.newlabel("EX"), a.newlabel("EWD")
        a.label(L)
        a(f"s_mov_b32 s{T1}, {n}")
        a.label(L2)
        a(f"""s_getreg_b32 s{T0}, hwreg(HW_REG_IB_STS)
        s_and_b32 s{T0}, s{T0}, 0x00c0000f
        s_cbranch_scc0 {D}
        s_cmp_ge_u32 s{sBC}, s{sNB}
        s_cbranch_scc1 {D}""")
        if n > 1: a(f"s_sleep 1\ns_sub_u32 s{T1}, s{T1}, 1\ns_cmp_lg_u32 s{T1}, 0\ns_cbranch_scc1 {L2}")
        a(f"""s_barrier
        s_add_u32 s{sBC}, s{sBC}, 1
        s_branch {L}""")
        a.label(D)
        a("s_waitcnt vmcnt(0)")
    def epoll(self, loads, tmp, cmp=None):
        a = self.a
        L, D = a.newlabel("EP"), a.newlabel("EPD")
        a(f"s_mov_b32 s{sCNT}, 0")
        a.label(L)
        k = 0
        for (va, r, imm, wd) in loads:
            ins = {1: "buffer_load_dword", 2: "buffer_load_dwordx2", 4: "buffer_load_dwordx4"}[wd]
            a(f"{ins} {vr(tmp+k, wd)}, v{va}, s[{r}:{r+3}], 0 offen offset:{imm} sc1"); k += wd
        self.ewait()
        self.poll_check(tmp, k, cmp)
        a(f"s_cbranch_scc1 {D}")
        a(f"s_add_u32 s{sCNT}, s{sCNT}, 1\ns_cmp_lt_u32 s{sCNT}, {POLL_MAX}\ns_cbranch_scc0 {D}\ns_sleep 1\ns_branch {L}")
        a.label(D)
    def pre_compute_list(self):
        L = []
        K, V, W, AC = 76, 90, 98, 106
        lo = lambda d, s: L.append(f"v_lshlrev_b32 v{d}, 16, v{s}")
        hi = lambda d, s: L.append(f"v_and_b32 v{d}, 0xffff0000, v{s}")
        for p in range(4):
            for j in range(7): lo(K+2*j, self.KR_+4*j+p); hi(K+2*j+1, self.KR_+4*j+p)
            for j in range(4): lo(V+2*j, self.VV_+4*j+p); hi(V+2*j+1, self.VV_+4*j+p)
            w = self.SW_ + 4*p
            lo(W, w); lo(W+1, w+2); hi(W+2, w); hi(W+3, w+2); lo(W+4, w+1); lo(W+5, w+3); hi(W+6, w+1); hi(W+7, w+3)
            for lag in (3, 2, 1, 0):
                for t in range(4):
                    kk = K + 2*(3 + t - lag)
                    if self.o("pk", 1):
                        if lag == 3: L.append(f"v_pk_mul_f32 {vr(AC+2*t,2)}, {vr(kk,2)}, {vr(W+2*lag,2)}")
                        else: L.append(f"v_pk_fma_f32 {vr(AC+2*t,2)}, {vr(kk,2)}, {vr(W+2*lag,2)}, {vr(AC+2*t,2)}")
                    else:
                        for h in range(2):
                            if lag == 3: L.append(f"v_mul_f32 v{AC+2*t+h}, v{kk+h}, v{W+2*lag+h}")
                            else: L.append(f"v_fmac_f32 v{AC+2*t+h}, v{kk+h}, v{W+2*lag+h}")
            for t in range(4):
                if self.o("pk", 1): L.append(f"v_pk_mul_f32 {vr(AC+2*t,2)}, {vr(AC+2*t,2)}, {vr(V+2*t,2)}")
                else:
                    for h in range(2): L.append(f"v_mul_f32 v{AC+2*t+h}, v{AC+2*t+h}, v{V+2*t+h}")
            for h in range(2):
                o = self.PO_ + 4*p + 2*h
                L.append(f"v_cvt_pk_bf16_f32 v{o}, v{AC+6+h}, v{AC+4+h}"); L.append(f"v_cvt_pk_bf16_f32 v{o+1}, v{AC+2+h}, v{AC+h}")
        return L
    def pre_stores(self):
        a = self.a
        if "s" in self.o("ab", ""): return
        if not self.o("st4", 1):
            for e in range(8):
                a(f"s_mov_b32 s{T0}, {4096*e}")
                a(f"buffer_store_dwordx2 {vr(self.PO_+2*e,2)}, v{self.PS}, s[{rWS}:{rWS+3}], s{T0} offen sc1")
            return
        for e in range(8): a(f"ds_write_b64 v{(self.PA, self.PW)[e & 1]}, {vr(self.PO_+2*e,2)} offset:{64*(e & 6)}")
        for k in range(1, 4): a(f"v_xor_b32 v{76+k}, {32*k}, v{self.PB}")
        a("s_waitcnt lgkmcnt(0)")
        for k in range(4): a(f"ds_read_b128 {vr(self.PO_+4*k,4)}, v{76+k if k else self.PB} offset:{1024*k}")
        for k in range(4):
            a(f"s_mov_b32 s{T0}, {65536*k}\ns_waitcnt lgkmcnt({3-k})")
            a(f"buffer_store_dwordx4 {vr(self.PO_+4*k,4)}, v{self.PS}, s[{rWS}:{rWS+3}], s{T0} offen sc1")
    def pre_store_setup(self, spare=False):
        if not self.o("st4", 1): return
        assert (L_CONV + CONV_SZ + 2*CS) % 128 == 0 and CONV_SZ % 128 == 0 and (L_CONV + U_OFF) % 128 == 0
        if spare: self.a(f"s_lshl_b32 s{T0}, s{sWAVE}, 12")
        else: self.a(f"""s_mul_i32 s{T0}, s{sLW}, {CONV_SZ}
        s_add_u32 s{T0}, s{T0}, {L_CONV + 2*CS}
        s_cmp_eq_u32 s{sWAVE}, 7
        s_cselect_b32 s{T0}, {L_CONV + U_OFF}, s{T0}""")
        self.a(f"""v_and_b32 v76, 7, v0
        v_lshrrev_b32 v77, 3, v0
        v_sub_u32 v77, 7, v77
        v_lshrrev_b32 v78, 1, v77
        v_xor_b32 v78, v78, v76
        v_lshlrev_b32 v78, 4, v78
        v_and_b32 v77, 1, v77
        v_lshl_add_u32 v78, v77, 3, v78
        v_lshl_add_u32 v78, v76, 9, v78
        v_add_u32 v{self.PA}, s{T0}, v78
        v_xor_b32 v{self.PW}, 64, v{self.PA}
        v_lshrrev_b32 v76, 5, v0
        v_and_b32 v77, 31, v0
        v_xor_b32 v77, v77, v76
        v_lshlrev_b32 v77, 4, v77
        v_lshl_add_u32 v76, v76, 9, v77
        v_add_u32 v{self.PB}, s{T0}, v76
        s_lshr_b32 s{T1}, s{sU}, 6
        s_lshl_b32 s{T1}, s{T1}, 18
        s_and_b32 s{T0}, s{sU}, 63
        s_lshl_b32 s{T0}, s{T0}, 6
        s_sub_u32 s{T1}, s{T1}, s{T0}
        s_add_u32 s{T1}, s{T1}, {UR + 4032:#x}
        v_lshrrev_b32 v76, 2, v0
        v_lshlrev_b32 v76, 12, v76
        v_and_b32 v77, 3, v0
        v_lshl_add_u32 v76, v77, 4, v76
        v_add_u32 v{self.PS}, s{T1}, v76""")
    def h_valu(self, D, t0):
        L = [f"v_alignbit_b32 v{t0+e}, v{D+e+1}, v{D+e}, 16" for e in range(4)]
        L += [f"v_mov_b32 v{t0+4+e}, v{D+e+1}" for e in range(4)]
        return L + [f"v_alignbit_b32 v{t0+8+e}, v{D+e+2}, v{D+e+1}, 16" for e in range(4)]
    def h_writes(self, D, imm, t0):
        for r, src in enumerate((t0, t0 + 4, t0 + 8, D + 2)):
            self.a(f"ds_write_b128 v{self.HL}, {vr(src,4)} offset:{r*CS + imm}")
    def conv_prep(self, part):
        a = self.a
        HD, D = self.HD_, 112
        HA, UB, UE, YS = 16, 17, 18, 19
        if part == 0:
            for g in range(4):
                a(f"ds_read_b128 {vr(HD+6*g,4)}, v{self.HL} offset:{1024*g}")
                a(f"ds_read_b64 {vr(HD+6*g+4,2)}, v{self.HL} offset:{1024*g+16}")
            a(f"""v_lshrrev_b32 v22, 4, v0
            s_lshl_b32 s{T0}, s{sCH}, 12
            v_lshrrev_b32 v23, 2, v0
            v_and_b32 v23, 3, v23
            v_mul_u32_u24 v23, {CS}, v23
            v_lshl_add_u32 v23, v22, 4, v23
            v_and_b32 v24, 3, v0
            v_lshl_add_u32 v23, v24, 3, v23
            v_add_u32 v{HA}, s{T6}, v23
            v_and_b32 v23, 15, v0
            v_lshlrev_b32 v23, 5, v23
            v_lshlrev_b32 v24, 4, v22
            v_sub_u32 v24, v24, v23
            v_add_u32 v24, s{T6}, v24
            v_add_u32 v{UB}, {U_OFF + 480}, v24
            v_lshl_add_u32 v23, v22, 3, v23
            v_sub_u32 v24, s{T6}, v23
            v_add_u32 v{UE}, {U_OFF + 504}, v24
            s_add_u32 s{T0}, s{T0}, {YD:#x}
            v_add_u32 v{YS}, s{T0}, v23
            v_lshlrev_b32 v20, 16, v{self.DV_}""")
            for e in range(6): a(f"v_mov_b32 v{D+e}, 0")
            a("s_waitcnt lgkmcnt(0)")
            a(f"v_readlane_b32 s{T1}, v{HD}, 0\nv_readlane_b32 s{T2}, v{HD+1}, 0")
            for l in self.h_valu(HD, 64): a(l)
            a(f"v_writelane_b32 v{D+4}, s{T1}, 1\nv_writelane_b32 v{D+5}, s{T2}, 1")
        else:
            for g in range(1, 4):
                for l in self.h_valu(HD + 6*g, 64 + 12*g): a(l)
            for l in self.h_valu(D, 120): a(l)
    def h_store(self):
        a = self.a
        for g in range(4): self.h_writes(self.HD_ + 6*g, 32 + 1024*g, 64 + 12*g)
        a("s_mov_b32 exec_hi, 0")
        a(f"ds_write_b128 v{self.HL}, v[112:115] offset:{U_OFF + 4096}")
        a("s_mov_b64 exec, 3")
        self.h_writes(112, 0, 120)
        a("s_mov_b64 exec, -1")
        for d, r in ((2, 16), (3, 17), (4, 18), (5, 19), (7, 20)): a(f"v_mov_b32 v{d}, v{r}")

    def dma_role(self):
        a = self.a
        a.reset_counters()
        fine = self.o("fine", 0)
        self.dma_setup()
        a("s_waitcnt lgkmcnt(0)")
        self.srd(rA, pX, 2048 * 1280); self.srd(rB, pW, 640 * 3840)
        a(f"s_cmp_ge_u32 s{sI}, 30\ns_cbranch_scc1 L_D_SKIP")
        S = {0: self.stage_dma(0)}
        if self.o("s1early", 0): S[1] = self.stage_dma(1)
        a.label("L_D_SKIP")
        if self.stamps: a("v_mov_b32 v1, 0")
        self.stamp("start")
        self.srd(rWS, pWS, WS_SIZE)
        self.setup_call()
        a(f"s_cmp_ge_u32 s{sI}, 30\ns_cbranch_scc1 L_D_NT")
        if self.o("dprio", 0): a(f"s_setprio {self.o('dprio', 0)}")
        if not self.o("s1early", 0): S[1] = self.stage_dma(1)
        if self.o("hat", 0) == 0: self.conv_scalars()
        for s in range(10):
            a.wait(S[s])
            if fine: self.stamp(f"l.w{s}")
            a("s_barrier")
            if fine or s in (0, 5, 9): self.stamp(f"l.b{s}")
            if s + 2 <= 9:
                S[s+2] = self.stage_dma(s + 2)
                if fine: self.stamp(f"l.i{s}")
            if s == 8 and self.o("prep", 1): self.conv_prep(0)
            if s == 9 and self.o("prep", 1): self.conv_prep(1)
        a.label("L_CONV")
        self.conv()
    def side_role(self):
        a = self.a
        a.label("L_SIDE")
        a.reset_counters()
        a(f"""s_cmp_ge_u32 s{sI}, 30
        s_cbranch_scc1 L_S_NT
        s_lshr_b32 s{T0}, s{sLW}, 1
        s_lshl_b32 s{sU}, s{sPI}, 1
        s_add_u32 s{sU}, s{sU}, s{T0}
        s_mov_b32 s{T7}, {L_SIG}
        s_cmp_lg_u32 s{sWAVE}, 6
        s_cbranch_scc1 L_S_GO
        s_cmp_lt_u32 s{sG}, 32
        s_cselect_b32 s{T1}, s{sNCH}, 0
        s_cmp_lg_u32 s{T1}, 2
        s_cbranch_scc1 L_W6
        s_add_u32 s{sU}, s{sG}, 608
        s_add_u32 s{sPI}, s{sG}, 256
        s_mov_b32 s{sNU}, 1
        s_mov_b32 s{T7}, {L_SIG + 8}
        L_S_GO:""")
        slate = self.o("slate", 0)
        if slate: self.setup_call()
        self.pre_setup()
        a("s_waitcnt lgkmcnt(0)")
        if slate > 1: a(f"s_sleep {slate}")
        self.pre_loads()
        if self.o("hat", 0) == 0:
            L7 = a.newlabel("H7")
            a(f"s_cmp_ge_u32 s{sLW}, s{sNCH}\ns_cbranch_scc1 {L7}")
            self.conv_scalars()
            a.label(L7)
        if self.stamps: a("v_mov_b32 v1, 0")
        self.stamp("start")
        self.srd(rWS, pWS, WS_SIZE)
        if not slate: self.setup_call()
        a(f"""v_mov_b32 v44, {L_SIG}
        v_mov_b32 v46, 0
        v_mov_b32 v47, 0
        ds_write_b64 v44, v[46:47]
        ds_write_b64 v44, v[46:47] offset:8
        ds_write_b32 v44, v46 offset:16
        v_and_b32 v46, 1, v0
        v_lshlrev_b32 v46, 7, v46
        s_waitcnt lgkmcnt(0)""")
        self.pre_store_setup()
        self.bar()
        self.ewait(self.o("espin0", 1))
        self.stamp("s.kv")
        if self.o("sprio", 0): a(f"s_setprio {self.o('sprio', 0)}")
        PC = self.pre_compute_list()
        nch = self.o("nchunk", 2)
        per = -(-len(PC) // nch)
        for c in range(nch):
            for l in (PC[c*per:(c+1)*per] if "v" not in self.o("ab", "") else []): a(l)
            if c < nch - 1 or self.o("barst", 1): self.bar()
        self.pre_stores()
        if self.o("hat", 0) == 1:
            L7 = a.newlabel("H7")
            a(f"s_cmp_ge_u32 s{sLW}, s{sNCH}\ns_cbranch_scc1 {L7}")
            self.conv_scalars()
            a.label(L7)
        self.srd(rC, pDBG, 256)
        a(f"buffer_load_dword v47, v46, s[{rC}:{rC+3}], 0 offen sc1")
        self.stamp("s.st")
        self.ewait(self.o("espin", 1))
        self.last_flag(8, f"s{sNU}", T5, 114, base=f"s{T7}")
        self.stamp("s.F1set")
        a(f"s_cmp_eq_u32 s{sWAVE}, 7\ns_cbranch_scc1 L_FETCH\ns_cmp_eq_u32 s{sWAVE}, 6\ns_cbranch_scc1 L_IDLE2")
        a.label("L_PREP")
        if self.o("prep", 1):
            self.bar()
            self.conv_prep(0)
            self.bar()
            self.conv_prep(1)
        self.bar_rest()
        a("s_branch L_CONV")
        a.label("L_W6")
        a("s_waitcnt lgkmcnt(0)")
        a(f"s_cmp_lt_u32 s{sNCH}, 3\ns_cbranch_scc1 L_IDLE")
        self.conv_scalars()
        if self.stamps: a("v_mov_b32 v1, 0")
        self.stamp("start")
        self.srd(rWS, pWS, WS_SIZE)
        self.setup_call()
        self.bar()
        self.ewait()
        a("s_branch L_PREP")
        a.label("L_IDLE")
        if self.stamps: a("v_mov_b32 v1, 0")
        self.stamp("start")
        self.srd(rWS, pWS, WS_SIZE)
        self.setup_call()
        a.label("L_IDLE2")
        for l in self.att_init_list(): a(l)
        self.bar_rest()
        a("s_branch L_ATT")
        a.label("L_S_NT")
        a("s_waitcnt lgkmcnt(0)")
        if self.stamps: a("v_mov_b32 v1, 0")
        self.stamp("start")
        self.srd(rWS, pWS, WS_SIZE)
        self.setup_call()
        a.label("L_D_NT")
        a(f"s_call_b64 s[{sRET}:{sRET+1}], L_SPARE")
        a(f"s_mov_b32 s{sBC}, 1\ns_branch L_IDLE2")
        a.label("L_SPARE")
        a(f"""s_sub_u32 s{T0}, s{sPI}, 180
        s_lshl_b32 s{T0}, s{T0}, 3
        s_add_u32 s{sU}, s{T0}, s{sWAVE}""")
        self.pre_setup()
        self.pre_loads()
        a(f"""v_mov_b32 v44, {L_SIG}
        v_mov_b32 v46, 0
        v_mov_b32 v47, 0
        ds_write_b64 v44, v[46:47]
        ds_write_b64 v44, v[46:47] offset:8
        s_waitcnt lgkmcnt(0)
        s_barrier""")
        a.label("L_SPARE2")
        self.pre_store_setup(spare=True)
        a("s_waitcnt vmcnt(0)")
        for l in PC: a(l)
        self.pre_stores()
        a.label("L_SPARE3")
        a("s_waitcnt vmcnt(0)")
        self.last_flag(8, f"s{sNU}", T5, 114)
        a(f"s_setpc_b64 s[{sRET}:{sRET+1}]")
        self.fetcher()

    def fetcher(self):
        a = self.a
        a.label("L_FETCH")
        a.reset_counters()
        OK = a.newlabel("CNTOK")
        a("s_setprio 0")
        self.poll_check(47, 1, cmp="v_cmp_le_u32 vcc, 0x80, v47")
        a(f"s_cbranch_scc1 {OK}")
        self.epoll([(46, rC, 0, 1)], 47, cmp="v_cmp_le_u32 vcc, 0x80, v47")
        a.label(OK)
        a(f"""s_andn2_b32 s{T1}, s{sCH0}, 63
        s_add_u32 s{T2}, s{sCH0}, s{sNCH}
        s_sub_u32 s{T2}, s{T2}, 1
        s_or_b32 s{T2}, s{T2}, 63""")
        for r in (T1, T2):
            a(f"""s_lshr_b32 s{T3}, s{r}, 3
            s_add_u32 s{T3}, s{T3}, 180
            s_lshr_b32 s{T4}, s{r}, 1
            s_cmp_ge_u32 s{r}, 480
            s_cselect_b32 s{T4}, s{T3}, s{T4}
            s_sub_u32 s{T3}, s{r}, 352
            s_cmp_ge_u32 s{r}, 608
            s_cselect_b32 s{r}, s{T3}, s{T4}""")
        a(f"""v_add_u32 v9, s{T1}, v0
        v_min_u32 v9, s{T2}, v9
        v_lshlrev_b32 v9, 6, v9
        v_add_u32 v9, {F1:#x}, v9""")
        if self.o("pgate", 9):
            LG, LD = a.newlabel("PG"), a.newlabel("PGD")
            a.label(LG)
            a(f"s_cmp_ge_u32 s{sBC}, {self.o('pgate', 9)}\ns_cbranch_scc1 {LD}\ns_cmp_ge_u32 s{sBC}, s{sNB}\ns_cbranch_scc1 {LD}\ns_barrier\ns_add_u32 s{sBC}, s{sBC}, 1\ns_branch {LG}")
            a.label(LD)
        if "p" not in self.o("ab", ""): self.mpoll([9], 16, elastic=True)
        self.stamp("f.F1ok")
        a(f"s_lshl_b32 s{T2}, s{sCH0}, 12\ns_add_u32 s{T2}, s{T2}, {UR:#x}")
        for c in range(3 if "u" not in self.o("ab", "") else 0):
            L = a.newlabel("NOU")
            if c == 2: a(f"s_cmp_lt_u32 s{sNCH}, 3\ns_cbranch_scc1 {L}")
            a(f"s_mov_b32 m0, {L_CONV + c*CONV_SZ + U_OFF}\ns_add_u32 s{T1}, s{T2}, {4096*c}")
            for j in range(4): a(f"buffer_load_dwordx4 v{L16}, s[{rWS}:{rWS+3}], s{T1} offen offset:{1024*j} sc1 lds")
            if c == 2: a.label(L)
        a("v_mov_b32 v45, 1")
        self.ewait()
        a("ds_write_b32 v44, v45")
        self.stamp("f.u")
        self.bar_rest()
        for l in self.att_init_list(): a(l)
        a("s_branch L_ATT")
    def kv_fetch(self):
        a = self.a
        a.reset_counters()
        OK = a.newlabel("CNTOK")
        self.poll_check(29, 1, cmp="v_cmp_le_u32 vcc, 0x80, v29")
        a(f"s_cbranch_scc1 {OK}")
        self.poll([(28, rC, 0, 1)], 29, cmp="v_cmp_le_u32 vcc, 0x80, v29")
        a.label(OK)
        self.sig_wait(12, 4)
        self.sig_wait(8, f"s{sNU}")
        self.mpoll([30, 31], 16)
        self.stamp("f.F2ok")
        a(f"""s_mul_i32 s{T0}, s{sHEAD}, {Q_HS}
        s_mul_i32 s{T1}, s{sQB}, {4*Q_US}
        s_add_u32 s{T0}, s{T0}, s{T1}
        s_add_u32 s{T0}, s{T0}, {QO:#x}""")
        def lin(sbase, lds0, n):
            T = []
            for k in range(n):
                if k % 4 == 0: a(f"s_mov_b32 m0, {lds0 + 1024*k}\ns_add_u32 s{T1}, s{sbase}, {1024*k}")
                T.append(a.vm(f"buffer_load_dwordx4 v{L16}, s[{rWS}:{rWS+3}], s{T1} offen offset:{1024*(k%4)} sc1 lds"))
            return T
        if self.o("kv3", 1):
            lin(T0, L_Q, 10)
            T = lin(sKVB, 0, 40)
            a(f"v_mov_b32 v16, {L_SIG}\nv_mov_b32 v17, 1\nv_mov_b32 v18, 2")
            a.wait(T[9]); a("ds_write_b32 v16, v17 offset:4")
            a.wait(T[19]); a("ds_write_b32 v16, v18 offset:4")
        else:
            lin(T0, L_Q, 10)
            lin(sKVB, 0, 40)
            a(f"v_mov_b32 v16, {L_SIG}\nv_mov_b32 v17, 3")
            a.wait_all()
            a("ds_write_b32 v16, v17 offset:4")
        self.stamp("f.kv0")
    def kv_fetch_setup(self):
        a = self.a
        self.srd(rC, pDBG, 256)
        a(f"""s_mul_i32 s{T0}, s{sHEAD}, 20
        v_and_b32 v28, 15, v0
        v_lshrrev_b32 v30, 4, v0
        v_and_b32 v31, 1, v30
        v_mul_u32_u24 v31, 19, v31
        v_add_u32 v31, s{T0}, v31
        v_lshrrev_b32 v31, 7, v31
        v_lshrrev_b32 v30, 1, v30
        v_mul_u32_u24 v30, 5, v30
        v_add3_u32 v30, v30, v31, 5
        v_lshl_add_u32 v30, v30, 4, v28
        v_lshlrev_b32 v30, 6, v30
        v_add_u32 v30, {F2:#x}, v30
        v_lshl_add_u32 v31, v31, 4, s{sQB}
        v_add_u32 v31, s{sQB}, v31
        v_and_b32 v28, 1, v0
        v_add_u32 v31, v31, v28
        v_lshlrev_b32 v31, 6, v31
        v_add_u32 v31, {F2:#x}, v31
        v_lshlrev_b32 v28, 7, v28""")

    def sig_check(self, off, thr, tok):
        a = self.a
        OK = a.newlabel("SOK")
        a.wait(tok)
        a(f"v_readfirstlane_b32 s{T0}, v15\ns_nop 0\ns_cmp_ge_u32 s{T0}, {thr}\ns_cbranch_scc1 {OK}")
        self.sig_wait(off, thr)
        a.label(OK)
    def sig_wait(self, off, thr=1):
        a = self.a
        L, D = a.newlabel("SIG"), a.newlabel("SIGD")
        a(f"v_mov_b32 v14, {L_SIG}\ns_mov_b32 s{sCNT}, 0")
        a.label(L)
        a(f"""ds_read_b32 v15, v14 offset:{off}
        s_waitcnt lgkmcnt(0)
        v_readfirstlane_b32 s{T0}, v15
        s_add_u32 s{sCNT}, s{sCNT}, 1
        s_cmp_ge_u32 s{T0}, {thr}
        s_cbranch_scc1 {D}
        s_sleep 1
        s_cmp_lt_u32 s{sCNT}, {POLL_MAX*40}
        s_cbranch_scc1 {L}""")
        a.label(D)
    def conv(self):
        a = self.a
        a.reset_counters()
        ACC, FR = 16, 64
        HA, UB, UE, YS, DV = 2, 3, 4, 5, self.DV_
        a(f"s_setprio {self.o('hprio', 0)}")
        if not self.o("prep", 1): self.conv_prep(0); self.conv_prep(1)
        self.h_store()
        self.stamp("v.h")
        self.sig_wait(0)
        a(f"s_setprio {self.o('cprio', 3)}")
        a.reset_counters()
        def reads(rho):
            st = FR + 64 * (rho & 1)
            ra = lambda i, q: (lambda: a.ds(f"ds_read_b64_tr_b16 {vr(st+4*i+2*q,2)}, v{HA} offset:{64*(8*i+rho) + 8*q}"))
            rb = lambda d: (lambda: a.ds(f"ds_read_b128 {vr(st+32+4*d,4)}, v{UB} offset:{64*(56 - (8*d - rho))}"))
            L = [("A0", ra(0,0)), ("A0", ra(0,1))] + [(f"B{d}", rb(d)) for d in range(8)]
            for i in range(1, 8): L += [(f"A{i}", ra(i,0)), (f"A{i}", ra(i,1))]
            return L
        toks = {}
        for n, f in reads(0): toks[n] = f()
        self.stamp("v.u")
        init = self.att_init_list()
        for rho in range(8):
            st = FR + 64 * (rho & 1)
            nxt = reads(rho + 1) if rho < 7 else []
            out = {}; k = 0; m = 0
            for i in range(8):
                for c in range(i, 8):
                    a.wait(toks[f"A{i}"], toks[f"B{c-i}"])
                    d = ACC + 4 * c
                    a(f"v_mfma_f32_16x16x32_bf16 {vr(d,4)}, {vr(st+4*i,4)}, {vr(st+32+4*(c-i),4)}, {'0' if (rho == 0 and i == 0) else vr(d,4)}")
                    m += 1
                    if m >= 4 and k < len(nxt): out[nxt[k][0]] = nxt[k][1](); k += 1
                    elif m >= 28 and init: a(init.pop())
            assert k == len(nxt)
            toks = out
        assert not init
        self.stamp("v.mfma")
        tu = [a.ds(f"ds_read_b64 {vr(FR+2*c,2)}, v{UE} offset:{512*(7-c)}") for c in range(8)]
        for c in range(8):
            a.wait(tu[c])
            d, u, t = ACC + 4*c, FR + 2*c, FR + 32 + 8*(c & 3)
            a(f"""v_and_b32 v{t}, 0xffff0000, v{u+1}
            v_lshlrev_b32 v{t+1}, 16, v{u+1}
            v_and_b32 v{t+2}, 0xffff0000, v{u}
            v_lshlrev_b32 v{t+3}, 16, v{u}""")
            for e in range(4): a(f"v_fmac_f32 v{d+e}, v7, v{t+e}")
            a(f"v_cvt_pk_bf16_f32 v{t+4}, v{d}, v{d+1}\nv_cvt_pk_bf16_f32 v{t+5}, v{d+2}, v{d+3}")
            a.vm(f"buffer_store_dwordx2 {vr(t+4,2)}, v{YS}, s[{rWS}:{rWS+3}], 0 offen offset:{512*c} sc1")
        self.stamp("v.st")

    def m2b(self, S, j=1): self.a(f"v_mfma_f32_32x32x4_2b_bf16 {vr(S,32)}, {vr(KRM,2)}, {vr((QR2, QR)[j],2)}, 0")
    def mqk(self, S, h, j=1): self.a(f"v_mfma_f32_32x32x16_bf16 {vr(S+16*h,16)}, {vr(KM+4*h,4)}, {vr((QM2, QM)[j],4)}, {vr(S+16*h,16)}")
    def smf(self, V, P, j=1): self.a(f"v_smfmac_f32_32x32x32_bf16 {vr((O2, O_)[j],16)}, {vr(V,4)}, {vr(P,8)}, v{IDX}")
    def side_kv(self, add):
        a = self.a
        def mk(j):
            def f():
                if j == 0: a(f"s_add_u32 m0, s{sKVW}, {add*KV_US}\ns_add_u32 s{T5}, s{sKVG}, {add*KV_US}")
                if j == 4: a(f"s_add_u32 m0, m0, 4096\ns_add_u32 s{T5}, s{T5}, 4096")
                a.vm(f"buffer_load_dwordx4 v{L16}, s[{rWS}:{rWS+3}], s{T5} offen offset:{1024*(j%4)} sc1 lds")
            return f
        return [mk(j) for j in range(5)]
    def side_wo(self):
        a = self.a
        def mk(k):
            def f():
                L = a.newlabel("NOWO")
                if k == 0: a(f"s_mul_i32 s{T4}, s{sWAVE}, {13*1024}\ns_add_u32 m0, s{T4}, {L_WO}")
                else: a("s_add_u32 m0, m0, 1024")
                if k % 5 == 0: a(f"s_mov_b32 s{T5}, {40960*(k//5)}")
                elif k < 9: a("s_nop 0")
                if k >= 9: a(f"s_cmp_eq_u32 s{sWAVE}, 7\ns_cbranch_scc1 {L}")
                a.vm(f"buffer_load_dwordx4 v{WOV + k%5}, s[{rA}:{rA+3}], s{T5} offen lds")
                if k >= 9: a.label(L)
            return f
        return [mk(k) for k in range(13)]
    def side_yd(self):
        a = self.a
        def f0():
            OK = a.newlabel("F3OK")
            a.wait(self.tF3)
            self.poll_check(F3T, 2)
            a(f"s_cbranch_scc1 {OK}")
            snap = a.snapshot(); self.poll([(AF3, rWS, 0, 2)], F3T); a.restore(snap)
            a.label(OK)
            a(f"s_mul_i32 s{T5}, s{sWAVE}, 1280\ns_add_u32 m0, s{T5}, {L_YD}\ns_mov_b32 s{T5}, {8*4096 - 1024}")
            a.vm(f"buffer_load_dwordx4 v{YDV}, s[{rWS}:{rWS+3}], 0 offen sc1 lds")
            a("s_mov_b64 exec, 0xffff")
            a.vm(f"buffer_load_dwordx4 v{YDV}, s[{rWS}:{rWS+3}], s{T5} offen offset:1024 sc1 lds")
            a("s_mov_b64 exec, -1")
        return [f0]
    def side_x(self):
        a = self.a
        def mk(j):
            def f():
                if j == 0: self.srd(rA, pX, 2048 * 1280)
                a.vm(f"buffer_load_dwordx2 {vr(XE+2*j,2)}, v{AOUT}, s[{rA}:{rA+3}], 0 offen offset:{32*j}")
            return f
        def f3(): self.tF3 = a.vm(f"buffer_load_dwordx2 {vr(F3T,2)}, v{AF3}, s[{rWS}:{rWS+3}], 0 offen sc1")
        return [mk(j) for j in range(3)] + [f3]
    def attention(self):
        a = self.a
        a.label("L_ATT")
        a.reset_counters()
        for e in range(16): a(f"v_mov_b32 v{O2+e}, 0")
        self.sig_wait(4)
        self.stamp("att0")
        US2 = 2 * KV_US
        base = {"K": 0, "V": 0}
        def bump(kind, u):
            while u * US2 - base[kind] > 5 * US2:
                base[kind] += 6 * US2
                for r in ((AKM, AKR) if kind == "K" else (AV,)): a(f"v_add_u32 v{r}, {6*US2}, v{r}")
            return u * US2 - base[kind]
        def rKR(u): o = bump("K", u); return a.ds(f"ds_read_b64 {vr(KRM,2)}, v{AKR} offset:{o}")
        def rKM(u, h): o = bump("K", u); return a.ds(f"ds_read_b128 {vr(KM+4*h,4)}, v{AKM} offset:{o + 1024*h}")
        def rV(u):
            o = bump("V", u)
            a(f"s_mov_b64 exec, s[{sVMASK}:{sVMASK+1}]")
            for g in range(4): t = a.ds(f"ds_read_b128 {vr(VS[u&1]+4*g,4)}, v{AV} offset:{o + 640*g}")
            a("s_mov_b64 exec, -1")
            return t
        tq = [a.ds(f"ds_read_b64 {vr(QR2,2)}, v{AQR2} offset:2048")]
        tKR = rKR(0)
        tq.append(a.ds(f"ds_read_b128 {vr(QM2,4)}, v{AQM2}"))
        tK0 = rKM(0, 0); tK1 = rKM(0, 1)
        tq.append(a.ds(f"ds_read_b64 {vr(QR,2)}, v{AQR} offset:2048"))
        tq.append(a.ds(f"ds_read_b128 {vr(QM,4)}, v{AQM}"))
        tV = {0: rV(0)}
        side = self.side_kv(8)
        a.wait(tq[0], tKR); self.m2b(S_, 0)
        for _ in range(4): side.pop(0)()
        a.nop(12)
        a.wait(tq[1], tK0); self.mqk(S_, 0, 0)
        a.wait(tK1); self.mqk(S_, 1, 0)
        side.pop(0)()
        if self.o("kv3", 1):
            self.sig_check(4, 2, a.ds("ds_read_b32 v15, v14 offset:4")); a.nop(2)
        else: a.nop(8)
        zones = {0: self.o("z0", "3,5"), 6: self.o("z1", "3,5,7"), 14: self.o("z1", "3,5,7"), 22: self.o("z3", "3,5,7"), 30: self.o("z4", "1")}
        prio = {}
        if self.o("prio", 1):
            for u0, z in zones.items():
                zz = [int(x) for x in z.split(",")]
                prio[u0] = len(zz)
                for k, d in enumerate(zz): prio[u0 + d] = len(zz) - 1 - k
        for t in range(32):
            if t % 8 == 6 and t < 30:
                assert not side
                side = self.att_sync(t // 8)
            if t == 1 and self.o("kv3", 1):
                L3 = a.newlabel("N3")
                a(f"s_cmp_lg_u32 s{sWAVE}, 3\ns_cbranch_scc1 {L3}\nv_mov_b32 v15, 3\ns_waitcnt vmcnt(5)\nds_write_b32 v14, v15 offset:4")
                a.label(L3)
            if t == 2 and self.o("kv3", 1): self.sig_check(4, 3, tsig)
            if t == 30: a("s_barrier")
            if t in prio: a(f"s_setprio {prio[t]}")
            u, j = t >> 1, t & 1
            X, Y = S_ + 32 * j, S_ + 32 * (1 - j)
            Vc, Vp = VS[u & 1], VS[((t - 1) >> 1) & 1]
            nx = t < 31
            rl = j == 0 and u < 15
            P = [int(x) for x in self.o("pos", "2,6,14,18,22,26,30").split(",")]
            SP = [int(x) for x in self.o("spos", "10,20").split(",")]
            for p in range(32):
                if p == P[0]:
                    if t == 0: a.wait(tq[2])
                    if j == 1 and nx: a.wait(tKR)
                    if t > 0: self.smf(Vp + 12, Y + 24, 1 - j)
                    if rl and self.o("vpos", -1) < 0: tV[u+1] = rV(u + 1)
                if p == self.o("vpos", -1) and rl: tV[u+1] = rV(u + 1)
                if p == P[1] and nx:
                    self.m2b(Y, 1 - j)
                    if rl: tKR = rKR(u + 1)
                if t == 1 and p == 24 and self.o("kv3", 1): tsig = a.ds("ds_read_b32 v15, v14 offset:4")
                if p in SP and side: side.pop(0)()
                if t == 31 and p in (16, 20, 24): a.ds(f"ds_write_b128 v{AEX}, {vr(O2+(p-16),4)} offset:{256*(p-16)}")
                if t == 31 and p == 28: a.ds(f"ds_write_b32 v{AEX}, v{O2+12} offset:3072")
                if p == P[2]: a.wait(tV[u]); self.smf(Vc, X, j)
                if p == P[3]: self.smf(Vc + 4, X + 8, j)
                if p == P[4] and nx:
                    a.wait(tK0, tK1, tq[3]); self.mqk(Y, 0, 1 - j)
                    if rl: tK0 = rKM(u + 1, 0)
                if p == P[5]: self.smf(Vc + 8, X + 16, j)
                if p == P[6] and nx:
                    self.mqk(Y, 1, 1 - j)
                    if rl: tK1 = rKM(u + 1, 1)
                a(f"v_exp_f32 v{X+p}, v{X+p}")
        assert not side
        a.nop(2)
        self.smf(VS[1] + 12, S_ + 32 + 24, 1)
        self.stamp("attend")
        a("s_setprio 0")
        a.wait_all(vm=False)
        a("s_barrier")
        tl = a.ds(f"ds_read_b32 v{O2+12}, v{APX} offset:3072")
        tp = [a.ds(f"ds_read_b128 {vr(O2+4*k,4)}, v{APX} offset:{1024*k}") for k in range(3)]
        self.fin_pre()
        a.nop(1)
        a.wait(tl); a(f"v_add_f32 v{O_+12}, v{O_+12}, v{O2+12}")
        for k in range(3):
            a.wait(tp[k])
            for e in range(4): a(f"v_add_f32 v{O_+4*k+e}, v{O_+4*k+e}, v{O2+4*k+e}")
    def att_sync(self, k):
        a = self.a
        if k == 0:
            a.wait_all(vm=True, ds=False, force=True)
            L = a.newlabel("NOF3")
            a(f"s_cmp_ge_u32 s{sLW}, s{sNCH}\ns_cbranch_scc1 {L}")
            a(f"s_lshl_b32 s{T0}, s{sCH}, 2\ns_add_u32 s{T0}, s{T0}, {F3:#x}")
            self.flag_store(T0, 14)
            a.label(L)
            a("s_barrier")
            self.stamp("sync0")
            return self.side_kv(16) + self.side_kv(24)
        if k == 1:
            a.wait_all(vm=True, ds=False, force=True)
            a("s_barrier")
            self.stamp("sync1")
            return self.side_x()
        a("s_barrier")
        self.stamp("sync2")
        self.srd(rA, pWO, 640 * 1280)
        return self.side_yd() + self.side_wo()

    def fin_pre(self):
        self.a(f"""v_lshlrev_b32 v2, 3, v0
        s_mov_b32 s{T2}, {f2u(2.0**-60):#x}
        s_mov_b32 s{T3}, {f2u(2.0**60):#x}
        s_mov_b32 s{T4}, 0x7f7fffff""")
    def finish(self):
        a = self.a
        O, TMP = O_, 16
        ACC, OF, WF, G = 224, 16, 56, 14
        a.label("L_NORM")
        a(f"v_rcp_f32 v{TMP+4}, v{O+12}")
        for e in range(4): a(f"v_add_f32 v{TMP+e}, abs(v{O+e}), abs(v{O+4+e})")
        for e in range(4): a(f"v_add_f32 v{TMP+e}, v{TMP+e}, abs(v{O+8+e})")
        a(f"""v_add_f32 v{TMP}, v{TMP}, v{TMP+1}
        v_add_f32 v{TMP+2}, v{TMP+2}, v{TMP+3}
        v_cmp_le_f32 vcc, s{T2}, v{O+12}
        v_cmp_ge_f32 s[{sM}:{sM+1}], s{T3}, v{O+12}
        v_add_f32 v{TMP}, v{TMP}, v{TMP+2}
        s_nop 0
        s_and_b64 s[{sM}:{sM+1}], s[{sM}:{sM+1}], vcc
        v_cmp_ge_f32 vcc, s{T4}, v{TMP}
        s_nop 1
        s_and_b64 s[{sM}:{sM+1}], s[{sM}:{sM+1}], vcc
        s_cmp_eq_u64 s[{sM}:{sM+1}], exec
        s_cbranch_scc1 L_NORM_OK
        s_cmp_eq_u32 s{sSLOW}, 0
        s_cbranch_scc1 L_SLOW""")
        a.label("L_NORM_OK")
        for e in range(8): a(f"v_mul_f32 v{O+e}, v{O+e}, v{TMP+4}")
        for e in range(4): a(f"v_cvt_pk_bf16_f32 v{TMP+8+e}, v{O+2*e}, v{O+2*e+1}")
        a(f"buffer_store_dwordx4 {vr(TMP+8,4)}, v{L16}, s[{rWS}:{rWS+3}], s{sOMS} offen sc1")
        for e in range(8, 12): a(f"v_mul_f32 v{O+e}, v{O+e}, v{TMP+4}")
        for e in range(4, 6): a(f"v_cvt_pk_bf16_f32 v{TMP+8+e}, v{O+2*e}, v{O+2*e+1}")
        a("s_mov_b32 exec_hi, 0")
        a(f"buffer_store_dwordx2 {vr(TMP+12,2)}, v2, s[{rWS}:{rWS+3}], s{sORS} offen sc1")
        a("s_mov_b32 exec_hi, -1")
        self.srd(rA, pOUT, 2048 * 1280)
        a("s_waitcnt vmcnt(0)\ns_barrier")
        a.reset_counters()
        L = a.newlabel("NOF4")
        a(f"s_cmp_lg_u32 s{sWAVE}, 0\ns_cbranch_scc1 {L}")
        self.flag_store(sF4S, 2)
        a.label(L)
        a.reset_counters()
        self.stamp("F4set")
        tg = a.vm(f"buffer_load_dword v{G}, v{AG}, s[{rWS}:{rWS+3}], 0 offen sc1")
        def wfrag(step, regstep):
            toks = []
            for b in range(5):
                for q in range(2):
                    if step < 8: ad, off = (WM0 if b < 2 else WM1), (40*step + 8*q)*160 + 32*b
                    else: ad, off = (WR0 if b < 2 else WR1), (160*(step-8) + 80*q)*160 + 32*b
                    t = a.ds(f"ds_read_b64_tr_b16 {vr(WF + 20*regstep + 4*b + 2*q, 2)}, v{ad} offset:{L_WO + off}")
                toks.append(t)
            return toks
        tw = {s: wfrag(s, s) for s in range(8)}
        YR, BB = 2, 16
        ty = [a.ds(f"ds_read_b64_tr_b16 {vr(YR+2*b,2)}, v{AYD} offset:{2048*b}") for b in range(3)]
        keep = [216, 217, 218, 219, 220, 221, 222, 223, 2, 3, 4, 5]
        for b in range(3):
            a.wait(ty[b])
            x, y = XE + 2*b, YR + 2*b
            a(f"""v_lshlrev_b32 v16, 16, v{x}
            v_and_b32 v17, 0xffff0000, v{x}
            v_lshlrev_b32 v18, 16, v{x+1}
            v_and_b32 v19, 0xffff0000, v{x+1}
            v_lshlrev_b32 v20, 16, v{y}
            v_and_b32 v21, 0xffff0000, v{y}
            v_lshlrev_b32 v22, 16, v{y+1}
            v_and_b32 v23, 0xffff0000, v{y+1}""")
            for e in range(4): a(f"v_mul_f32 v{keep[4*b+e]}, v{16+e}, v{20+e}")
        L = a.newlabel("NOP4")
        a(f"s_cmp_lg_u32 s{sWAVE}, 0\ns_cbranch_scc1 {L}")
        snap = a.snapshot(); self.mpoll([AF4], 15); a.restore(snap)
        a.label(L)
        a("s_barrier")
        self.stamp("F4ok")
        to = {}
        for s in range(8):
            a(f"s_mov_b32 s{T0}, {s*131072}")
            to[s] = a.vm(f"buffer_load_dwordx4 {vr(OF+4*s,4)}, v{AOM}, s[{rWS}:{rWS+3}], s{T0} offen sc1")
        for rs in range(2):
            for q in range(2):
                a(f"s_mov_b32 s{T0}, {(8*rs+4*q)*16384}")
                to[8+rs] = a.vm(f"buffer_load_dwordx2 {vr(OF+32+4*rs+2*q,2)}, v{AOR}, s[{rWS}:{rWS+3}], s{T0} offen sc1")
        for s in range(10):
            rs = s if s < 8 else s - 8
            a.wait(to[s])
            order = range(5) if s < 9 else (2, 3, 4, 0, 1)
            for b in order:
                a.wait(tw[s][b])
                d = ACC + 4*b
                a(f"v_mfma_f32_16x16x32_bf16 {vr(d,4)}, {vr(WF+20*rs+4*b,4)}, {vr(OF+4*s,4)}, {'0' if s == 0 else vr(d,4)}")
            if s < 2: tw[8+s] = wfrag(8 + s, s)
        self.stamp("mfma")
        a.nop(4)
        for b in (2, 3, 4): a.ds(f"ds_write_b128 v{AEX}, {vr(ACC+4*b,4)} offset:{1024*(b-2)}")
        for b in range(3):
            for e in range(4): a(f"v_sub_f32 v{ACC+4*b+e}, v{ACC+4*b+e}, v{keep[4*b+e]}")
        a.wait_all(vm=False)
        a("s_barrier")
        tp = [a.ds(f"ds_read_b128 {vr(16+4*b,4)}, v{AX2} offset:{1024*b}") for b in range(3)]
        a.wait(tg)
        for b in range(3):
            if b == 2: a(f"s_cmp_lg_u32 s{sKH}, 0\ns_cbranch_scc1 L_FIN")
            a.wait(tp[b])
            for e in range(4): a(f"v_add_f32 v{16+4*b+e}, v{16+4*b+e}, v{ACC+4*b+e}")
            for e in range(4): a(f"v_fmac_f32 v{keep[4*b+e]}, v{G}, v{16+4*b+e}")
            a(f"v_cvt_pk_bf16_f32 v{32+2*b}, v{keep[4*b]}, v{keep[4*b+1]}\nv_cvt_pk_bf16_f32 v{33+2*b}, v{keep[4*b+2]}, v{keep[4*b+3]}")
            a.vm(f"buffer_store_dwordx2 {vr(32+2*b,2)}, v{AOUT}, s[{rA}:{rA+3}], 0 offen offset:{32*b} {self.o('ost', 'sc1').replace('+', ' ')}")
        a.label("L_FIN")
        if self.stamps:
            self.stamp("st")
            a("s_waitcnt vmcnt(0)")
            self.stamp("end")
            a(f"s_lshl_b32 s{T0}, s{sWG}, 3\ns_add_u32 s{T0}, s{T0}, s{sWAVE}\ns_lshl_b32 s{T0}, s{T0}, 8\ns_add_u32 s{T0}, s{T0}, {TS:#x}\nv_lshlrev_b32 v2, 2, v0")
            a(f"buffer_store_dword v1, v2, s[{rWS}:{rWS+3}], s{T0} offen")
            if "enc" in self.opt:
                n0, n1, wv, wg = self.opt["enc"].split(",")
                for n in (n0, n1):
                    if n not in self.names: self.names.append(n)
                a(f"s_cmp_lg_u32 s{sWG}, {wg}\ns_cbranch_scc1 L_END\ns_cmp_lg_u32 s{sWAVE}, {wv}\ns_cbranch_scc1 L_END")
                a(f"v_readlane_b32 s{T1}, v1, {self.names.index(n0)}\nv_readlane_b32 s{T2}, v1, {self.names.index(n1)}\nv_readlane_b32 s{T3}, v1, {self.names.index('end')}\ns_nop 3")
                a(f"s_sub_u32 s{T2}, s{T2}, s{T1}\ns_lshl_b32 s{T2}, s{T2}, 3\ns_and_b32 s{T2}, s{T2}, 0xffff\ns_add_u32 s{T3}, s{T3}, s{T2}")
                a.label("L_ENC")
                a(f"s_memrealtime s[{sTS}:{sTS+1}]\ns_waitcnt lgkmcnt(0)\ns_sub_u32 s{T1}, s{T3}, s{sTS}\ns_cmp_gt_i32 s{T1}, 0\ns_cbranch_scc1 L_ENC")
        a.label("L_END")
        a("s_endpgm")

    def slow(self):
        a = self.a
        S, V, M, AVS = S_, VS[0], 96, 98
        a.label("L_SLOW")
        a(f"""s_mov_b32 s{sSLOW}, 1
        v_and_b32 v{M}, 31, v0
        v_lshrrev_b32 v{AVS}, 5, v0
        v_mul_u32_u24 v{AVS}, 320, v{AVS}
        v_lshl_add_u32 v{AVS}, v{M}, 4, v{AVS}
        v_add_u32 v{AVS}, 2560, v{AVS}
        v_mov_b32 v{M}, 0xff800000""")
        def scores():
            a(f"""buffer_load_dwordx2 {vr(KRM,2)}, v2, s[{rWS}:{rWS+3}], s{T6} offen offset:2048 sc1
            buffer_load_dwordx4 {vr(KM,4)}, v{L16}, s[{rWS}:{rWS+3}], s{T6} offen sc1
            buffer_load_dwordx4 {vr(KM+4,4)}, v{L16}, s[{rWS}:{rWS+3}], s{T6} offen offset:1024 sc1
            s_waitcnt vmcnt(0)""")
            self.m2b(S); a.nop(18); self.mqk(S, 0); self.mqk(S, 1); a.nop(12)
        a(f"s_mov_b32 s{T6}, s{sKVB}\ns_mov_b32 s{sCNT}, 0")
        a.label("L_SLOW1")
        scores()
        for e in range(16): a(f"v_max3_f32 v{M}, v{M}, v{S+2*e}, v{S+2*e+1}")
        a(f"s_add_u32 s{T6}, s{T6}, {KV_US}\ns_add_u32 s{sCNT}, s{sCNT}, 1\ns_cmp_lt_u32 s{sCNT}, 32\ns_cbranch_scc1 L_SLOW1")
        a(f"v_mov_b32 v{M+1}, v{M}\ns_nop 1\nv_permlane32_swap_b32 v{M}, v{M+1}\ns_nop 1\nv_max_f32 v{M}, v{M}, v{M+1}")
        for e in range(16): a(f"v_mov_b32 v{O_+e}, 0")
        a(f"s_mov_b32 s{T6}, s{sKVB}\ns_mov_b32 s{sCNT}, 0")
        a.label("L_SLOW2")
        a(f"s_mov_b64 exec, s[{sVMASK}:{sVMASK+1}]")
        for g in range(4): a(f"buffer_load_dwordx4 {vr(V+4*g,4)}, v{AVS}, s[{rWS}:{rWS+3}], s{T6} offen offset:{640*g} sc1")
        a("s_mov_b64 exec, -1")
        scores()
        for e in range(32): a(f"v_sub_f32 v{S+e}, v{S+e}, v{M}")
        for e in range(32): a(f"v_exp_f32 v{S+e}, v{S+e}")
        a.nop(2)
        for g in range(4): self.smf(V + 4*g, S + 8*g)
        a(f"s_add_u32 s{T6}, s{T6}, {KV_US}\ns_add_u32 s{sCNT}, s{sCNT}, 1\ns_cmp_lt_u32 s{sCNT}, 32\ns_cbranch_scc1 L_SLOW2")
        a.nop(12)
        a("s_branch L_NORM")

    def build(self):
        self.prologue(); self.dma_role(); self.attention(); self.finish(); self.setup_sub(); self.side_role(); self.gemm_compute(); self.slow(); self.a.label('L_CODE_END')
        bad = lint(self.a.lines)
        head = f"""; Fused kernel: QKV projection, depthwise convolutions, attention, output projection and gated mix.
; One persistent workgroup per CU; hand-offs through d_ws flags that every launch clears itself (counted in d_debug).
; @launch grid=(256,1,1) block=(512,1,1) lds={LDS_BYTES}
.amdgcn_target "amdgcn-amd-amdhsa--gfx950"
.text
.globl {NAME}
.p2align 8
.type {NAME},@function
{NAME}:
"""
        tail = f""".section .rodata,"a"
.p2align 6
.amdhsa_kernel {NAME}
  .amdhsa_next_free_vgpr 256
  .amdhsa_next_free_sgpr 102
  .amdhsa_accum_offset 256
  .amdhsa_group_segment_fixed_size 0
  .amdhsa_kernarg_size 104
  .amdhsa_user_sgpr_count 2
  .amdhsa_user_sgpr_kernarg_segment_ptr 1
  .amdhsa_system_sgpr_workgroup_id_x 1
  .amdhsa_float_denorm_mode_32 3
.end_amdhsa_kernel
"""
        return head + self.a.text() + tail, bad

if __name__ == "__main__":
    out = sys.argv[1] if len(sys.argv) > 1 else "gated_mix__mha_block__ssm_conv_h3__prompt.s"
    opt = dict(x[2:].split("=") for x in sys.argv if x.startswith("-D"))
    G = Gen(stamps="--stamps" in sys.argv, opt=opt)
    src, bad = G.build()
    if G.stamps: src = src.replace("; @launch", "; STAMPS " + " ".join(G.names) + "\n; @launch", 1)
    for b in bad: print("LINT:", b)
    open(out, "w").write(src)
    print("wrote", out, len(src), "bytes;", len(bad), "lint findings")
```

```python
import sys, math, struct
from asmlib import *

NAME = "gated_mix__mha_block__ssm_conv_h3__prompt_kernel"
def f2u(x): return struct.unpack("<I", struct.pack("<f", x))[0]

KV, QO, UR, YD, OM, ORM = 0, 0x500000, 0x780000, 0xA00000, 0xC80000, 0xE80000
F2, F4, F3, F5, GT, F1 = 0xF04000, 0xF08000, 0xF0C000, 0xF0D000, 0xF0E000, 0xFA0000
TS = 0xF10000
WS_SIZE = 0x1000000
KV_HS, KV_US = 163840, 5120
Q_HS, Q_US = 81920, 2560
NSLOT = 3
L_X, L_W = 0, 49152
L_Q, L_SIG = 81920, 162048
L_CONV, CONV_SZ, CS, U_OFF = 98304, 21248, 4160, 16640
L_WO, L_YD, L_EX = 0, 102400, 112640
LDS_BYTES = 163840
sWG, sWAVE = 2, 3
pX, pW, pWO, pWS, pK, pV, pSH, pH, pD, pGW, pOUT, pDBG = 4, 6, 8, 10, 12, 14, 16, 18, 20, 22, 24, 26
rWS, rA, rB, rC, rD = 28, 32, 36, 40, 44
sXCD, sI, sJT, sRT, sPRT, sCJ, sCH0, sNCH, sHEAD, sQB = 48, 49, 50, 51, 52, 53, 54, 55, 56, 57
sLW, sCH, sKH, sTB, sCNT, sSLOW = 58, 59, 60, 61, 62, 63
T0, T1, T2, T3, T4, T5, T6, T7 = 64, 65, 66, 67, 68, 69, 70, 71
sM = 72
sVMASK = 74
sTS = 76
sE = 78
sSC = 86
sKVB, sKVW, sOMS, sORS, sF4S, sCL = 87, 88, 89, 90, 91, 92
sNB, sBC, sU, sK = 93, 94, 78, 96
sM2 = 98
sKVG = 97
sRET = 52
sPI, sNU, sG = 100, 101, 95
POLL_MAX = 30000
IDX, AKM, AKR, AV, L16, AQM, AQR, AF3, YDV = 224, 225, 226, 227, 228, 229, 230, 231, 232
WOV = 233
F3T = 238
ONES, APX, AQM2, AQR2 = 240, 241, 242, 243
QM2, QR2, O2 = 128, 132, 144
WM0, WM1, WR0, WR1, AOM, AOR, AOUT, AG, AEX, AX2, AYD, AF4 = 244, 245, 246, 247, 248, 249, 250, 251, 252, 253, 254, 255
O_, QM, QR, KRM, KM, S_ = 192, 32, 36, 38, 40, 64
VS = (48, 208)
XE = 8

class Gen:
    def __init__(self, stamps=False, opt=None):
        self.a = Asm(); self.stamps = stamps; self.names = []; self.opt = opt or {}
        self.nt = " nt" if int(self.opt.get("nt", 1)) else ""
        self.gnt = " nt" if int(self.opt.get("gnt", 0)) else ""
    def o(self, k, d): return type(d)(self.opt.get(k, d))
    def srd(self, r, p, size):
        self.a(f"s_mov_b32 s{r}, s{p}\ns_mov_b32 s{r+1}, s{p+1}\ns_mov_b32 s{r+2}, {size:#x}\ns_mov_b32 s{r+3}, 0x20000")
    def stamp(self, name):
        if not self.stamps: return
        if name not in self.names: self.names.append(name)
        k = self.names.index(name); assert k < 58
        if name == "start": self.a("s_mov_b32 s99, s76")
        self.a(f"s_memrealtime s[{sTS}:{sTS+1}]\ns_waitcnt lgkmcnt(0)\nv_writelane_b32 v1, s{sTS}, {k}")
        if name in ("l.b5", "l.b9"): self.a(f"s_memtime s[{sTS}:{sTS+1}]\ns_waitcnt lgkmcnt(0)\nv_writelane_b32 v1, s{sTS}, {58 if name == 'l.b5' else 59}")
        if name in ("att0", "attend"): self.a(f"s_memtime s[{sTS}:{sTS+1}]\ns_waitcnt lgkmcnt(0)\nv_writelane_b32 v1, s{sTS}, {60 if name == 'att0' else 61}")
        if name == "start":
            if "entry" not in self.names: self.names.append("entry")
            self.a(f"v_writelane_b32 v1, s99, {self.names.index('entry')}")
        if name == "start": self.a(f"s_memtime s[{sTS}:{sTS+1}]\ns_waitcnt lgkmcnt(0)\nv_writelane_b32 v1, s{sTS}, 62")
        if name == "end": self.a(f"s_memtime s[{sTS}:{sTS+1}]\ns_waitcnt lgkmcnt(0)\nv_writelane_b32 v1, s{sTS}, 63")
        self.a.done["ds"] = self.a.n["ds"]
    def poll(self, loads, tmp, cmp=None):
        a = self.a
        L, D = a.newlabel("POLL"), a.newlabel("POLLD")
        a(f"s_mov_b32 s{sCNT}, 0")
        a.label(L)
        k = 0
        for (va, r, imm, wd) in loads:
            ins = {1: "buffer_load_dword", 2: "buffer_load_dwordx2", 4: "buffer_load_dwordx4"}[wd]
            a(f"{ins} {vr(tmp+k, wd)}, v{va}, s[{r}:{r+3}], 0 offen offset:{imm} sc1"); k += wd
        a("s_waitcnt vmcnt(0)")
        a.done["vm"] = a.n["vm"]
        self.poll_check(tmp, k, cmp)
        a(f"s_cbranch_scc1 {D}")
        a(f"s_add_u32 s{sCNT}, s{sCNT}, 1\ns_cmp_lt_u32 s{sCNT}, {POLL_MAX}\ns_cbranch_scc0 {D}\ns_sleep 1\ns_branch {L}")
        a.label(D)
    def mpoll(self, addrs, tmp, elastic=False):
        a = self.a
        L, D = a.newlabel("MP"), a.newlabel("MPD")
        M = [sM, sM2][:len(addrs)]
        a(f"s_mov_b32 s{sCNT}, 0")
        for m in M: a(f"s_mov_b64 s[{m}:{m+1}], -1")
        a.label(L)
        for k, (va, m) in enumerate(zip(addrs, M)):
            S = a.newlabel("MS")
            a(f"s_mov_b64 exec, s[{m}:{m+1}]\ns_cbranch_execz {S}\nbuffer_load_dword v{tmp+k}, v{va}, s[{rWS}:{rWS+3}], 0 offen sc1")
            a.label(S)
        a("s_mov_b64 exec, -1")
        if elastic: self.ewait()
        else: a("s_waitcnt vmcnt(0)")
        a.done["vm"] = a.n["vm"]
        for k, m in enumerate(M):
            a(f"v_cmp_eq_u32 vcc, 0, v{tmp+k}\ns_nop 1\ns_and_b64 s[{m}:{m+1}], s[{m}:{m+1}], vcc")
        if len(M) == 2: a(f"s_or_b64 vcc, s[{sM}:{sM+1}], s[{sM2}:{sM2+1}]")
        a(f"s_cbranch_scc0 {D}")
        a(f"s_add_u32 s{sCNT}, s{sCNT}, 1\ns_cmp_lt_u32 s{sCNT}, {POLL_MAX}\ns_cbranch_scc0 {D}\ns_sleep {self.o('psleep', 4)}\ns_branch {L}")
        a.label(D)
    def last_flag(self, off, sN, sAddr, vt, base=L_SIG):
        a = self.a
        L = a.newlabel("NL")
        a(f"""v_mov_b32 v{vt}, {base}
        v_mov_b32 v{vt+1}, 1
        s_mov_b64 exec, 1
        ds_add_rtn_u32 v{vt+1}, v{vt}, v{vt+1} offset:{off}
        s_waitcnt lgkmcnt(0)
        v_readfirstlane_b32 s{T0}, v{vt+1}
        s_mov_b64 exec, -1
        s_add_u32 s{T0}, s{T0}, 1
        s_cmp_lg_u32 s{T0}, {sN}
        s_cbranch_scc1 {L}""")
        self.flag_store(sAddr, vt, two=True)
        a.label(L)
    def poll_check(self, tmp, k, cmp=None):
        a = self.a
        for j in range(1, k, 2):
            if j + 1 < k: a(f"v_min3_u32 v{tmp}, v{tmp}, v{tmp+j}, v{tmp+j+1}")
            else: a(f"v_min_u32 v{tmp}, v{tmp}, v{tmp+j}")
        a(cmp or f"v_cmp_ne_u32 vcc, 0, v{tmp}")
        a("s_nop 1\ns_cmp_eq_u64 vcc, exec")
    def flag_store(self, s, vt, two=False):
        a = self.a
        a(f"v_lshl_add_u32 v{vt}, v0, 2, s{s}\nv_mov_b32 v{vt+1}, 1\ns_mov_b64 exec, {3 if two else 1}")
        t = a.vm(f"buffer_store_dword v{vt+1}, v{vt}, s[{rWS}:{rWS+3}], 0 offen sc1")
        a("s_mov_b64 exec, -1")
        return t

    def prologue(self):
        a = self.a
        if self.stamps: a("s_memrealtime s[76:77]")
        a(f"s_cmp_ge_u32 s{sWG}, 256\ns_cbranch_scc1 L_END")
        if self.opt.get("diag") == "spin":
            a("s_mov_b32 s60, 2500\nv_mov_b32 v10, 0")
            a.label("L_DSPIN")
            for e in range(8): a(f"v_exp_f32 v{11+e}, v10")
            a("s_sub_u32 s60, s60, 1\ns_cmp_lg_u32 s60, 0\ns_cbranch_scc1 L_DSPIN")
        if self.opt.get("diag") == "chain":
            a("s_load_dwordx2 s[32:33], s[0:1], 24\ns_waitcnt lgkmcnt(0)\ns_mov_b32 s34, 2621440\ns_mov_b32 s35, 0x20000\ns_mul_i32 s60, s2, 256\nv_mov_b32 v10, s60")
            for e in range(32): a("buffer_load_dword v12, v10, s[32:35], 0 offen\ns_waitcnt vmcnt(0)\nv_and_b32 v12, 0, v12\nv_add_u32 v10, v10, v12\nv_add_u32 v10, 0x13000, v10")
        if self.opt.get("diag") == "bq":
            a("s_load_dwordx2 s[32:33], s[0:1], 24\ns_waitcnt lgkmcnt(0)\ns_mov_b32 s34, 2621440\ns_mov_b32 s35, 0x20000\nv_lshlrev_b32 v10, 4, v0\ns_mul_i32 s60, s2, 10240")
            a("buffer_load_dwordx4 v[12:15], v10, s[32:35], s60 offen\ns_add_u32 s60, s60, 2048\nbuffer_load_dwordx4 v[16:19], v10, s[32:35], s60 offen\ns_waitcnt vmcnt(0)")
        a(f"""s_load_dwordx4 s[4:7], s[0:1], 0
        s_load_dwordx16 s[12:27], s[0:1], 32
        s_load_dwordx2 s[10:11], s[0:1], 96
        s_load_dwordx2 s[8:9], s[0:1], 16
        v_lshrrev_b32 v1, 6, v0
        v_and_b32 v0, 63, v0
        s_and_b32 s{sXCD}, s{sWG}, 7
        v_readfirstlane_b32 s{sWAVE}, v1
        s_lshr_b32 s{sI}, s{sWG}, 3
        s_and_b32 s{T0}, s{sXCD}, 1
        s_mul_i32 s{T0}, s{T0}, 30
        s_add_u32 s{T0}, s{T0}, s{sI}
        s_lshr_b32 s{sJT}, s{T0}, 2
        s_and_b32 s{T0}, s{T0}, 3
        s_lshr_b32 s{T1}, s{sXCD}, 1
        s_lshl_b32 s{T1}, s{T1}, 2
        s_add_u32 s{sRT}, s{T0}, s{T1}
        s_sub_u32 s{sLW}, s{sWAVE}, 4
        s_mul_i32 s{T0}, s{sXCD}, 30
        s_add_u32 s{sPI}, s{T0}, s{sI}
        s_mul_i32 s{sG}, s{sPI}, 171
        s_lshr_b32 s{sG}, s{sG}, 9
        s_mul_i32 s{T1}, s{sG}, 3
        s_sub_u32 s{T1}, s{sPI}, s{T1}
        s_lshl_b32 s{T2}, s{sG}, 3
        s_mul_i32 s{T3}, s{T1}, 3
        s_add_u32 s{sCH0}, s{T2}, s{T3}
        s_lshr_b32 s{T1}, s{T1}, 1
        s_sub_u32 s{sNCH}, 3, s{T1}
        s_lshl_b32 s{T0}, s{sXCD}, 1
        s_add_u32 s{T0}, s{T0}, s{sI}
        s_add_u32 s{T0}, s{T0}, 210
        s_cmp_ge_u32 s{sI}, 30
        s_cselect_b32 s{sPI}, s{T0}, s{sPI}
        s_cselect_b32 s{sNCH}, 0, s{sNCH}
        s_cselect_b32 s{sNU}, 8, 2""")
        if self.o("cpf", 1) == 2: self.code_prefetch()
        a(f"""s_cmp_lt_u32 s{sWAVE}, 4
        s_cbranch_scc1 L_COMPUTE
        s_cmp_gt_u32 s{sWAVE}, 4
        s_cbranch_scc1 L_SIDE""")
    def code_prefetch(self):
        a = self.a
        L = a.newlabel("NOPF")
        a(f"""s_cmp_lg_u32 s{sWAVE}, 1
        s_cbranch_scc1 {L}
        s_getpc_b64 s[{T2}:{T3}]
        L_PC:
        s_sub_u32 s{T2}, s{T2}, L_PC-{NAME}
        s_subb_u32 s{T3}, s{T3}, 0
        s_and_b32 s{T0}, s{sI}, 7
        s_lshl_b32 s{T0}, s{T0}, 13
        v_lshl_add_u32 v10, v0, 7, s{T0}
        v_min_u32 v10, L_CODE_END-{NAME}-4, v10
        global_load_dword v31, v10, s[{T2}:{T3}]""")
        a.label(L)
    def common_scalars(self):
        self.a(f"""s_cmp_ge_u32 s{sI}, 30
        s_cselect_b32 s{sNB}, 1, 10
        s_mov_b32 s{sBC}, 0
        s_lshr_b32 s{T0}, s{sI}, 3
        s_lshl_b32 s{T1}, s{sXCD}, 2
        s_add_u32 s{sHEAD}, s{T0}, s{T1}
        s_and_b32 s{sQB}, s{sI}, 7
        s_lshr_b32 s{sKH}, s{sWAVE}, 2
        s_and_b32 s{sTB}, s{sWAVE}, 3
        s_mov_b32 s{sSLOW}, 0
        s_mov_b32 s{sVMASK}, 0x000fffff
        s_mov_b32 s{sVMASK+1}, 0x000fffff""")
    def setup_call(self):
        if self.o("sub", 1): self.a(f"s_call_b64 s[{sRET}:{sRET+1}], L_SETUP")
        else: self.common_scalars(); self.persistent()
    def setup_sub(self):
        if not self.o("sub", 1): return
        self.a.label("L_SETUP")
        self.common_scalars(); self.persistent()
        self.a(f"s_setpc_b64 s[{sRET}:{sRET+1}]")
    def persistent(self, t=192):
        a = self.a
        a(f"""s_mov_b32 s{sM}, 0x11000000
        s_mov_b32 s{sM+1}, 0x11000000
        v_mov_b32 v{t}, 0x3f803f80
        v_cndmask_b32 v{ONES}, 0, v{t}, s[{sM}:{sM+1}]""")
        a(f"""v_mov_b32 v{IDX}, 0xdddddddd
        v_lshlrev_b32 v{AKM}, 4, v0
        v_lshlrev_b32 v{L16}, 4, v0
        v_lshlrev_b32 v{t}, 3, v0
        v_add_u32 v{AKR}, 2048, v{t}
        v_and_b32 v{t+1}, 31, v0
        v_lshrrev_b32 v{t+2}, 5, v0
        v_mul_u32_u24 v{t+2}, 320, v{t+2}
        v_lshl_add_u32 v{t+2}, v{t+1}, 4, v{t+2}
        v_add_u32 v{AV}, 2560, v{t+2}
        s_mul_i32 s{T0}, s{sKH}, {KV_US}
        v_add_u32 v{AKM}, s{T0}, v{AKM}
        v_add_u32 v{AKR}, s{T0}, v{AKR}
        v_add_u32 v{AV}, s{T0}, v{AV}
        s_mul_i32 s{T0}, s{sTB}, {Q_US}
        s_add_u32 s{T0}, s{T0}, {L_Q}
        s_lshl_b32 s{T2}, s{sKH}, 10
        s_add_u32 s{T2}, s{T2}, s{T0}
        v_add_u32 v{AQM}, s{T2}, v{L16}
        s_lshl_b32 s{T1}, s{sKH}, 8
        s_add_u32 s{T1}, s{T1}, s{T0}
        v_lshl_add_u32 v{AQR}, v{t+1}, 3, s{T1}
        s_xor_b32 s{T3}, s{sKH}, 1
        s_lshl_b32 s{T2}, s{T3}, 10
        s_add_u32 s{T2}, s{T2}, s{T0}
        v_add_u32 v{AQM2}, s{T2}, v{L16}
        s_lshl_b32 s{T1}, s{T3}, 8
        s_add_u32 s{T1}, s{T1}, s{T0}
        v_lshl_add_u32 v{AQR2}, v{t+1}, 3, s{T1}
        s_mul_i32 s{sKVB}, s{sHEAD}, {KV_HS}
        s_mul_i32 s{sKVW}, s{sWAVE}, {KV_US}
        s_add_u32 s{sKVG}, s{sKVW}, s{sKVB}
        s_lshl_b32 s{T0}, s{sHEAD}, 16
        s_lshl_b32 s{T1}, s{sQB}, 2
        s_add_u32 s{T1}, s{T1}, s{sTB}
        s_lshl_b32 s{T1}, s{T1}, 1
        s_add_u32 s{T1}, s{T1}, s{sKH}
        s_lshl_b32 s{T2}, s{T1}, 10
        s_add_u32 s{T0}, s{T0}, s{T2}
        s_add_u32 s{sOMS}, s{T0}, {OM:#x}
        s_lshl_b32 s{T2}, s{sHEAD}, 14
        s_lshl_b32 s{T1}, s{T1}, 8
        s_add_u32 s{T1}, s{T1}, s{T2}
        s_add_u32 s{sORS}, s{T1}, {ORM:#x}
        s_lshl_b32 s{T0}, s{sQB}, 11
        s_lshl_b32 s{T1}, s{sHEAD}, 6
        s_add_u32 s{T0}, s{T0}, s{T1}
        s_add_u32 s{sF4S}, s{T0}, {F4:#x}""")
        a(f"""s_mul_i32 s{T0}, s{sQB}, 320
        s_add_u32 s{T0}, s{T0}, {F3:#x}
        v_lshl_add_u32 v{AF3}, v0, 3, s{T0}
        s_lshr_b32 s{T0}, s{sHEAD}, 1
        s_lshl_b32 s{T0}, s{T0}, 6
        s_add_u32 s{T0}, s{T0}, {F5:#x}
        v_mov_b32 v{t}, s{T0}
        s_mov_b32 s{sM}, 0
        s_mov_b32 s{sM+1}, 0xffffff00
        v_cndmask_b32 v{AF3}, v{AF3}, v{t}, s[{sM}:{sM+1}]""")
        a(f"s_mul_i32 s{T0}, s{sWAVE}, {13*64}\ns_mul_i32 s{T1}, s{sQB}, 160")
        for k in range(5):
            a(f"""s_add_u32 s{T2}, s{T0}, {64*k}
            v_add_u32 v{t}, s{T2}, v0
            v_mul_u32_u24 v{t+1}, 52429, v{t}
            v_lshrrev_b32 v{t+1}, 19, v{t+1}
            v_mul_u32_u24 v{t+1}, {1280-160}, v{t+1}
            v_lshl_add_u32 v{t+1}, v{t}, 4, v{t+1}
            v_add_u32 v{WOV+k}, s{T1}, v{t+1}""")
        a(f"""s_mul_i32 s{T0}, s{sQB}, 80
        s_mul_i32 s{T1}, s{sWAVE}, 10
        s_add_u32 s{T0}, s{T0}, s{T1}
        v_lshrrev_b32 v{t}, 3, v0
        v_add_u32 v{t}, s{T0}, v{t}
        v_lshlrev_b32 v{t}, 12, v{t}
        v_and_b32 v{t+1}, 7, v0
        v_lshl_add_u32 v{t}, v{t+1}, 4, v{t}
        s_lshl_b32 s{T0}, s{sHEAD}, 7
        s_add_u32 s{T0}, s{T0}, {YD:#x}
        v_add_u32 v{YDV}, s{T0}, v{t}""")
        q, r, c8, tt, b0 = t, t + 1, t + 2, t + 3, t + 4
        a(f"""v_lshrrev_b32 v{q}, 4, v0
        v_lshrrev_b32 v{r}, 2, v0
        v_and_b32 v{r}, 3, v{r}
        v_and_b32 v{c8}, 3, v0
        v_lshlrev_b32 v{c8}, 3, v{c8}
        v_and_b32 v{tt}, 15, v0
        v_and_b32 v{b0}, 1, v{q}
        s_mul_i32 s{T2}, s{sKH}, {51200 + 96}
        s_mul_i32 s{T3}, s{sKH}, {51200 - 64}
        v_lshrrev_b32 v{t+5}, 1, v{q}
        v_mul_u32_u24 v{t+5}, 20, v{t+5}
        v_lshl_add_u32 v{t+5}, v{b0}, 2, v{t+5}
        v_add_u32 v{t+5}, v{t+5}, v{r}
        v_mul_u32_u24 v{t+5}, 160, v{t+5}
        v_add_u32 v{t+5}, v{t+5}, v{c8}
        v_add_u32 v{WM0}, s{T2}, v{t+5}
        v_add_u32 v{WM1}, s{T3}, v{t+5}
        v_mul_u32_u24 v{t+5}, 20, v{q}
        v_add3_u32 v{t+5}, v{t+5}, v{r}, 16
        v_mul_u32_u24 v{t+5}, 160, v{t+5}
        v_add_u32 v{t+5}, v{t+5}, v{c8}
        v_add_u32 v{WR0}, s{T2}, v{t+5}
        v_add_u32 v{WR1}, s{T3}, v{t+5}
        s_lshl_b32 s{T2}, s{sKH}, 20
        s_lshl_b32 s{T3}, s{sHEAD}, 11
        s_add_u32 s{T2}, s{T2}, s{T3}
        s_lshr_b32 s{T3}, s{sTB}, 1
        s_lshl_b32 s{T4}, s{T3}, 10
        s_add_u32 s{T2}, s{T2}, s{T4}
        s_and_b32 s{T4}, s{sTB}, 1
        s_lshl_b32 s{T4}, s{T4}, 8
        s_add_u32 s{T2}, s{T2}, s{T4}
        s_add_u32 s{T2}, s{T2}, {OM:#x}
        v_lshrrev_b32 v{t+5}, 1, v{q}
        v_lshlrev_b32 v{t+5}, 16, v{t+5}
        v_lshl_add_u32 v{t+5}, v{b0}, 9, v{t+5}
        v_lshl_add_u32 v{t+5}, v{tt}, 4, v{t+5}
        v_add_u32 v{AOM}, s{T2}, v{t+5}
        s_lshl_b32 s{T2}, s{sKH}, 18
        s_lshl_b32 s{T4}, s{sHEAD}, 9
        s_add_u32 s{T2}, s{T2}, s{T4}
        s_lshl_b32 s{T4}, s{sTB}, 7
        s_add_u32 s{T2}, s{T2}, s{T4}
        s_add_u32 s{T2}, s{T2}, {ORM:#x}
        v_lshlrev_b32 v{t+5}, 14, v{q}
        v_lshl_add_u32 v{t+5}, v{tt}, 3, v{t+5}
        v_add_u32 v{AOR}, s{T2}, v{t+5}
        s_lshr_b32 s{T2}, s{sHEAD}, 2
        s_lshl_b32 s{T2}, s{T2}, 11
        s_add_u32 s{T2}, s{T2}, {F4:#x}
        v_and_b32 v{t+5}, 31, v0
        v_lshl_add_u32 v{AF4}, v{t+5}, 6, s{T2}
        s_lshl_b32 s{T0}, s{sHEAD}, 6
        s_lshl_b32 s{T1}, s{sTB}, 4
        s_add_u32 s{T0}, s{T0}, s{T1}
        v_add_u32 v{t+5}, s{T0}, v{tt}
        v_lshlrev_b32 v{AG}, 2, v{t+5}
        v_add_u32 v{AG}, {GT:#x}, v{AG}
        v_mul_u32_u24 v{t+5}, 1280, v{t+5}
        v_lshl_add_u32 v{t+5}, v{q}, 3, v{t+5}
        s_mul_i32 s{T0}, s{sQB}, 160
        s_mul_i32 s{T1}, s{sKH}, 96
        s_add_u32 s{T0}, s{T0}, s{T1}
        v_add_u32 v{AOUT}, s{T0}, v{t+5}
        s_lshl_b32 s{T0}, s{sWAVE}, 12
        s_add_u32 s{T0}, s{T0}, {L_EX}
        v_add_u32 v{AEX}, s{T0}, v{L16}
        s_xor_b32 s{T0}, s{sWAVE}, 4
        s_lshl_b32 s{T0}, s{T0}, 12
        s_add_u32 s{T1}, s{T0}, {L_EX}
        v_add_u32 v{APX}, s{T1}, v{L16}
        s_lshl_b32 s{T1}, s{sKH}, 10
        s_add_u32 s{T1}, s{T1}, s{T0}
        s_add_u32 s{T1}, s{T1}, {L_EX}
        v_add_u32 v{AX2}, s{T1}, v{L16}
        v_lshl_add_u32 v{AYD}, v{q}, 2, v{r}
        v_lshl_add_u32 v{AYD}, v{AYD}, 7, v{c8}
        s_mul_i32 s{T0}, s{sKH}, {48*128}
        s_lshl_b32 s{T1}, s{sTB}, 5
        s_add_u32 s{T0}, s{T0}, s{T1}
        s_add_u32 s{T0}, s{T0}, {L_YD}
        v_add_u32 v{AYD}, s{T0}, v{AYD}""")
    def att_init_list(self):
        if self.o("ones", 2) == 12:
            return [f"v_mov_b32 v{O_+e}, 0" for e in range(16)] + [f"v_mov_b32 v{st+e}, 0x3f803f80" for st in VS for e in range(16)]
        return [f"v_mov_b32 v{O_+e}, 0" for e in range(16)] + [f"v_mov_b32 v{st+e}, v{ONES}" for st in VS for e in range(16)]

    def flag_reset(self):
        a = self.a
        L = a.newlabel("NOZ")
        a(f"s_cmp_lg_u32 s{sWAVE}, 0\ns_cbranch_scc1 {L}")
        a(f"""s_lshl_b32 s{T0}, s{sPI}, 6
        s_add_u32 s{T0}, s{T0}, {F1:#x}
        v_mov_b32 v12, s{T0}
        v_and_b32 v10, 3, v0
        v_lshlrev_b32 v11, 2, v10
        v_add_u32 v13, s{sCL}, v11
        s_mov_b32 s{sM}, 0xf
        s_mov_b32 s{sM+1}, 0
        v_cndmask_b32 v12, v12, v13, s[{sM}:{sM+1}]
        s_lshl_b32 s{T0}, s{sCH0}, 2
        s_add_u32 s{T0}, s{T0}, {F3:#x}
        v_add_u32 v13, s{T0}, v11
        s_lshl_b32 s{sM}, 16, s{sNCH}
        s_sub_u32 s{sM}, s{sM}, 16
        v_cndmask_b32 v12, v12, v13, s[{sM}:{sM+1}]
        s_lshl_b32 s{T0}, s{sQB}, 11
        s_lshl_b32 s{T1}, s{sHEAD}, 6
        s_add_u32 s{T0}, s{T0}, s{T1}
        s_add_u32 s{T0}, s{T0}, {F4:#x}
        v_mov_b32 v13, s{T0}
        s_mov_b32 s{sM}, 0x100
        v_cndmask_b32 v12, v12, v13, s[{sM}:{sM+1}]
        s_lshl_b32 s{T0}, s{sG}, 6
        s_add_u32 s{T0}, s{T0}, {F1 + 256*64:#x}
        v_mov_b32 v13, s{T0}
        s_cmp_lt_u32 s{sG}, 32
        s_cselect_b32 s{T1}, s{sNCH}, 0
        s_cmp_eq_u32 s{T1}, 2
        s_cselect_b32 s{sM}, 0x200, 0
        v_cndmask_b32 v12, v12, v13, s[{sM}:{sM+1}]
        v_mov_b32 v13, 0
        s_mov_b32 exec_lo, 0x3ff
        s_mov_b32 exec_hi, 0
        buffer_store_dword v13, v12, s[{rWS}:{rWS+3}], 0 offen sc1
        s_mov_b64 exec, 1""")
        self.srd(rA, pDBG, 256)
        a(f"""s_and_b32 s{T0}, s{sWG}, 1
        s_lshl_b32 s{T0}, s{T0}, 7
        v_mov_b32 v12, s{T0}
        v_mov_b32 v13, 1
        s_waitcnt vmcnt(0)
        buffer_atomic_add v13, v12, s[{rA}:{rA+3}], 0 offen sc1
        s_mov_b64 exec, -1""")
        a.label(L)

    XA, WA, XA2, WA2, EA = 2, 6, 128, 132, 136
    def gemm_compute(self):
        a = self.a
        XA, WA = self.XA, self.WA
        a.label("L_COMPUTE")
        if self.o("cpf", 1) == 1: self.code_prefetch()
        self.common_scalars()
        a(f"""s_lshl_b32 s{T0}, s{sJT}, 10
        s_lshl_b32 s{T1}, s{sRT}, 6
        s_add_u32 s{T0}, s{T0}, s{T1}
        s_add_u32 s{sCL}, s{T0}, {F2:#x}
        s_lshl_b32 s{T0}, s{sXCD}, 1
        s_add_u32 s{T0}, s{T0}, s{sI}
        s_sub_u32 s{T7}, s{T0}, 30
        s_lshl_b32 s{T0}, s{T7}, 6
        s_add_u32 s{T0}, s{T0}, {F5:#x}
        s_cmp_ge_u32 s{sI}, 30
        s_cselect_b32 s{sCL}, s{T0}, s{sCL}
        s_waitcnt lgkmcnt(0)""")
        self.srd(rWS, pWS, WS_SIZE)
        if self.stamps: a("v_mov_b32 v1, 0")
        self.stamp("start")
        self.flag_reset()
        self.setup_call()
        for l in self.att_init_list():
            if int(l.split()[1][1:-1]) >= 192: a(l)
        a(f"s_cmp_eq_u32 s{sWAVE}, 0\ns_cbranch_scc1 L_C_NW\ns_waitcnt vmcnt(0)")
        a.label("L_C_NW")
        a(f"s_cmp_ge_u32 s{sI}, 30\ns_cbranch_scc1 L_C_NOTILE")
        a(f"""s_and_b32 s{T0}, s{sWAVE}, 1
        s_lshl_b32 s{T0}, s{T0}, 13
        v_and_b32 v8, 31, v0
        v_lshrrev_b32 v9, 5, v0
        v_lshrrev_b32 v10, 1, v8
        v_and_b32 v10, 7, v10
        v_xor_b32 v10, v10, v9
        v_lshlrev_b32 v8, 7, v8
        v_add_u32 v8, s{T0}, v8""")
        for ks in range(4):
            a(f"v_xor_b32 v11, {2*ks}, v10\nv_lshl_add_u32 v{XA+ks}, v11, 4, v8")
        a(f"""v_lshrrev_b32 v8, 2, v0
        v_and_b32 v8, 3, v8
        v_lshrrev_b32 v9, 5, v0
        v_lshl_add_u32 v9, v9, 3, v8
        v_lshlrev_b32 v9, 8, v9
        v_lshrrev_b32 v10, 4, v0
        v_and_b32 v10, 1, v10
        v_lshlrev_b32 v10, 1, v10
        v_lshrrev_b32 v11, 1, v0
        v_and_b32 v11, 1, v11
        v_or_b32 v10, v10, v11
        v_and_b32 v11, 1, v0
        v_lshlrev_b32 v11, 3, v11
        v_add_u32 v9, v9, v11
        v_add_u32 v9, {L_W}, v9
        s_and_b32 s{T0}, s{sWAVE}, 2""")
        for i in range(2):
            a(f"""s_add_u32 s{T1}, s{T0}, {i}
            v_xor_b32 v11, s{T1}, v8
            v_lshl_add_u32 v11, v11, 2, v10
            v_lshl_add_u32 v{WA+i}, v11, 4, v9""")
        def lowinit():
            for l in self.att_init_list():
                if int(l.split()[1][1:-1]) < 192: a(l)
        a(f"s_setprio {self.o('gprio', 3)}")
        a(f"s_cmp_ge_u32 s{sJT}, 10\ns_cbranch_scc1 L_C_VTILE")
        self.epi_qk_setup()
        self.gemm_loop(False, self.gemm_epi_qk, lowinit)
        a("s_branch L_C_FLAG")
        a.label("L_C_NOTILE")
        a(f"s_call_b64 s[{sRET}:{sRET+1}], L_SPARE")
        self.stamp("g.pre")
        self.sig_wait(8, 8)
        self.stamp("g.go")
        self.gate()
        lowinit()
        a("s_branch L_C_FLAG")
        a.label("L_C_VTILE")
        self.epi_v_setup()
        self.gemm_loop(True, self.gemm_epi_v, lowinit)
        a.label("L_C_FLAG")
        a.reset_counters()
        self.stamp("c.epi")
        L = a.newlabel("KVW")
        a(f"s_cmp_eq_u32 s{sWAVE}, 3\ns_cbranch_scc1 {L}")
        a("s_waitcnt vmcnt(0)")
        self.last_flag(12, 4, sCL, 2)
        self.stamp("c.F2set")
        a("s_branch L_ATT")
        a.label(L)
        self.kv_fetch_setup()
        a(f"buffer_load_dword v29, v28, s[{rC}:{rC+3}], 0 offen sc1")
        a("s_waitcnt vmcnt(0)")
        self.last_flag(12, 4, sCL, 2)
        self.kv_fetch()
        a("s_branch L_ATT")

    def gate(self):
        a = self.a
        a.reset_counters()
        X, W, Z = 32, 12, 2
        self.srd(rA, pX, 2048 * 1280); self.srd(rB, pGW, 1280)
        a(f"""s_lshl_b32 s{T0}, s{T7}, 7
        s_lshl_b32 s{T1}, s{sWAVE}, 5
        s_add_u32 s{T6}, s{T0}, s{T1}
        v_lshrrev_b32 v10, 4, v0
        v_add_u32 v11, s{T6}, v10
        v_mul_u32_u24 v11, 1280, v11
        v_and_b32 v2, 15, v0
        v_lshlrev_b32 v3, 4, v2
        v_add_u32 v11, v11, v3""")
        for j in range(5): tw = a.vm(f"buffer_load_dwordx4 {vr(W+4*j,4)}, v3, s[{rB}:{rB+3}], 0 offen offset:{256*j}")
        tx = []
        for g in range(8):
            a(f"s_mov_b32 s{T0}, {5120*g}")
            for j in range(5): t = a.vm(f"buffer_load_dwordx4 {vr(X+20*g+4*j,4)}, v11, s[{rA}:{rA+3}], s{T0} offen offset:{256*j}")
            tx.append(t)
        a(f"""v_lshl_add_u32 v10, v2, 2, v10
        v_add_u32 v10, s{T6}, v10
        v_lshlrev_b32 v10, 2, v10
        v_add_u32 v10, {GT:#x}, v10
        v_mov_b32 v11, v2""")
        for g in range(8):
            a.wait(tw, tx[g])
            for e in range(20):
                a(f"v_dot2_f32_bf16 v{Z+g}, v{X+20*g+e}, v{W+e}, {'0' if e == 0 else f'v{Z+g}'}")
        a.nop(3)
        for sh in (8, 4, 2, 1):
            for g in range(8): a(f"v_add_f32_dpp v{Z+g}, v{Z+g}, v{Z+g} row_ror:{sh} row_mask:0xf bank_mask:0xf")
        for g in range(1, 8):
            a(f"v_cmp_eq_u32 vcc, {g}, v11\ns_nop 1\nv_cndmask_b32 v{Z}, v{Z}, v{Z+g}, vcc")
        a(f"""v_mul_f32 v{Z}, {f2u(-math.log2(math.e)):#x}, v{Z}
        v_exp_f32 v{Z}, v{Z}
        s_mov_b32 exec_lo, 0x00ff00ff
        v_add_f32 v{Z}, 1.0, v{Z}
        v_rcp_f32 v{Z}, v{Z}
        s_mov_b32 exec_hi, 0x00ff00ff
        buffer_store_dword v{Z}, v10, s[{rWS}:{rWS+3}], 0 offen sc1
        s_mov_b64 exec, -1""")

    def gemm_loop(self, vt, epi, fill):
        a = self.a
        a.reset_counters()
        FR, ACC = 32, 64
        def reads(s, ks):
            st = FR + 16 * (ks & 1); sl = s % NSLOT
            xa, wa, sl = (self.XA, self.WA, sl * 16384) if sl < 4 else (self.XA2, self.WA2, 0)
            rx = lambda j: (lambda: a.ds(f"ds_read_b128 {vr(st+4*j,4)}, v{xa+ks} offset:{sl + 4096*j}"))
            rw = lambda i, q: (lambda: a.ds(f"ds_read_b64_tr_b16 {vr(st+8+4*i+2*q,2)}, v{wa+i} offset:{sl + (16*ks+4*q)*256}"))
            if vt: return [("X0", rx(0)), ("W0", rw(0,0)), ("W0", rw(0,1)), ("W1", rw(1,0)), ("W1", rw(1,1)), ("X1", rx(1))]
            return [("W0", rw(0,0)), ("W0", rw(0,1)), ("X0", rx(0)), ("X1", rx(1)), ("W1", rw(1,0)), ("W1", rw(1,1))]
        def group(ks, toks, nxt, first):
            st = FR + 16 * (ks & 1); out = {}
            sched = [3, 3, 0, 0]; k = 0
            for m, (i, j) in enumerate(((0,0),(0,1),(1,0),(1,1))):
                if vt: A, B, na, nb = st + 4*i, st + 8 + 4*j, f"X{i}", f"W{j}"
                else:  A, B, na, nb = st + 8 + 4*i, st + 4*j, f"W{i}", f"X{j}"
                a.wait(toks[na], toks[nb])
                d = ACC + 16 * (2*i + j)
                a(f"v_mfma_f32_32x32x16_bf16 {vr(d,16)}, {vr(A,4)}, {vr(B,4)}, {'0' if first else vr(d,16)}")
                for _ in range(sched[m]):
                    if k < len(nxt): out[nxt[k][0]] = nxt[k][1](); k += 1
            return out
        a("s_barrier")
        toks = {}
        for n, f in reads(0, 0): toks[n] = f()
        for s in range(9):
            for ks in range(4):
                if ks < 3:
                    toks = group(ks, toks, reads(s, ks + 1), s == 0 and ks == 0)
                else:
                    a.wait_all(vm=False); a("s_barrier")
                    if s < 8: toks = group(ks, toks, reads(s + 1, 0), False)
        sets = (FR, 152, 168, 8)
        T = {}
        def rd(ks, nm):
            st = sets[ks]; sl = (9 % NSLOT) * 16384; k = int(nm[1])
            if nm[0] == "X": T[ks, nm] = a.ds(f"ds_read_b128 {vr(st+4*k,4)}, v{self.XA+ks} offset:{sl + 4096*k}")
            else:
                for q in range(2): T[ks, nm] = a.ds(f"ds_read_b64_tr_b16 {vr(st+8+4*k+2*q,2)}, v{self.WA+k} offset:{sl + (16*ks+4*q)*256}")
        na, nb = ("X", "W") if vt else ("W", "X")
        first = [(lambda ks=ks, nm=nm: rd(ks, nm)) for ks in range(4) for nm in (na + "0", nb + "0")]
        later = [(lambda ks=ks: rd(ks, nb + "1")) for ks in range(4)] + [(lambda ks=ks: rd(ks, na + "1")) for ks in range(4)]
        group(3, toks, [(f"f{i}", f) for i, f in enumerate(first[:6])], False)
        for f in first[6:]: f()
        off = lambda nm: 4 * int(nm[1]) + (0 if nm[0] == "X" else 8)
        pend = []
        for bi, (i, j) in enumerate(((0,0),(0,1),(1,0),(1,1))):
            d = ACC + 16 * (2*i + j)
            for ks in range(4):
                a.wait(T[ks, f"{na}{i}"], T[ks, f"{nb}{j}"])
                a(f"v_mfma_f32_32x32x16_bf16 {vr(d,16)}, {vr(sets[ks]+off(f'{na}{i}'),4)}, {vr(sets[ks]+off(f'{nb}{j}'),4)}, {vr(d,16)}")
                if bi < 2 and later: later.pop(0)()
                if bi >= 2:
                    n = -(-len(pend) // (4 - ks + (4 if bi == 2 else 0)))
                    for _ in range(min(n, 9)): pend.pop(0)()
            if bi == 1: pend += epi(0, 0)
            if bi == 1: pend += epi(0, 1)
            if bi == 2: last = epi(1, 0)
        for f in pend: f()
        for f in last: f()
        for f in epi(1, 1): f()
        fill()

    def epi_qk_setup(self):
        a = self.a
        sBASE, sHS, sPQ = T0, T1, T3
        a(f"""s_mov_b32 s{sHS}, {Q_HS}
        s_mov_b32 s{T4}, {Q_US}
        s_cmp_ge_u32 s{sJT}, 5
        s_cselect_b32 s{sHS}, {KV_HS}, s{sHS}
        s_cselect_b32 s{T4}, {KV_US}, s{T4}
        s_cselect_b32 s{sBASE}, {KV}, {QO:#x}
        s_cselect_b32 s{T5}, 5, 0
        s_cselect_b64 s[{sM}:{sM+1}], -1, 0
        s_cselect_b32 s{sSC}, 1.0, {f2u(math.log2(math.e) / math.sqrt(20.0)):#x}
        s_sub_u32 s{T5}, s{sJT}, s{T5}
        s_lshl_b32 s{sPQ}, s{T5}, 4
        s_and_b32 s{T5}, s{sWAVE}, 2
        s_lshl_b32 s{T5}, s{T5}, 2
        s_add_u32 s{sPQ}, s{sPQ}, s{T5}
        s_lshl_b32 s{T5}, s{sRT}, 1
        s_and_b32 s{T6}, s{sWAVE}, 1
        s_add_u32 s{T5}, s{T5}, s{T6}
        s_mul_i32 s{T5}, s{T5}, s{T4}
        s_add_u32 s{sBASE}, s{sBASE}, s{T5}
        v_and_b32 v8, 31, v0
        v_and_b32 v9, 0x13, v0
        v_and_b32 v10, 4, v0
        v_lshl_or_b32 v9, v10, 1, v9
        v_and_b32 v10, 8, v0
        v_lshrrev_b32 v10, 1, v10
        v_or_b32 v9, v9, v10
        v_cndmask_b32 v8, v8, v9, s[{sM}:{sM+1}]
        v_lshrrev_b32 v9, 5, v0
        v_lshlrev_b32 v10, 3, v9
        v_lshl_add_u32 v12, v8, 4, v10
        v_add_u32 v13, 1024, v12
        v_mul_lo_u32 v10, v9, s{sHS}
        v_lshl_add_u32 v14, v8, 3, v10
        v_add_u32 v14, 1024, v14
        v_add_u32 v15, 256, v14""")
        for p in range(8):
            a(f"""s_add_u32 s{T4}, s{sPQ}, {p}
            s_mul_i32 s{T5}, s{T4}, 205
            s_lshr_b32 s{T5}, s{T5}, 10
            s_mul_i32 s{T6}, s{T5}, 5
            s_sub_u32 s{T4}, s{T4}, s{T6}
            s_lshl_b32 s{T5}, s{T5}, 1
            s_mul_i32 s{T5}, s{T5}, s{sHS}
            s_add_u32 s{T5}, s{T5}, s{sBASE}
            s_lshl_b32 s{T6}, s{T4}, 9
            s_add_u32 s{T5}, s{T5}, s{T6}
            s_sub_u32 s{T6}, s{sHS}, 1536
            s_cmp_ge_u32 s{T4}, 3
            s_cselect_b32 s{T6}, s{T6}, 0
            s_add_u32 s{sE+p}, s{T5}, s{T6}
            s_cmp_eq_u32 s{T4}, 2
            s_cselect_b64 s[{sM}:{sM+1}], -1, 0""")
            for j in range(2): a(f"v_cndmask_b32 v{self.EA+2*p+j}, v{12+j}, v{14+j}, s[{sM}:{sM+1}]")
    def gemm_epi_qk(self, i, j):
        a = self.a; L = []
        for g in range(4):
            d = 64 + 16 * (2*i + j) + 4*g
            for e in range(4): L.append(lambda d=d, e=e: a(f"v_mul_f32 v{d+e}, s{sSC}, v{d+e}"))
            L.append(lambda d=d: a(f"v_cvt_pk_bf16_f32 v{d}, v{d}, v{d+1}"))
            L.append(lambda d=d: a(f"v_cvt_pk_bf16_f32 v{d+1}, v{d+2}, v{d+3}"))
            L.append(lambda d=d, g=g: a.vm(f"buffer_store_dwordx2 {vr(d,2)}, v{self.EA+2*(4*i+g)+j}, s[{rWS}:{rWS+3}], s{sE+4*i+g} offen sc1"))
        return L
    def epi_v_setup(self):
        a = self.a
        a(f"""s_sub_u32 s{T0}, s{sJT}, 10
        s_lshl_b32 s{T0}, s{T0}, 7
        s_and_b32 s{T1}, s{sWAVE}, 2
        s_lshl_b32 s{T1}, s{T1}, 5
        s_add_u32 s{T0}, s{T0}, s{T1}
        s_lshl_b32 s{T1}, s{sRT}, 1
        s_and_b32 s{T2}, s{sWAVE}, 1
        s_add_u32 s{T1}, s{T1}, s{T2}
        s_mul_i32 s{T1}, s{T1}, {KV_US}
        s_add_u32 s{sE}, s{T1}, {KV + 2560}
        s_mov_b32 s{T2}, {KV_HS - 320}
        v_and_b32 v8, 31, v0
        v_lshrrev_b32 v9, 5, v0
        v_mul_u32_u24 v9, 320, v9""")
        for j in range(2):
            a(f"""v_add_u32 v10, s{T0}, v8
            v_add_u32 v10, {32*j}, v10
            v_mul_u32_u24 v11, 3277, v10
            v_lshrrev_b32 v11, 16, v11
            v_mul_lo_u32 v11, v11, s{T2}
            v_lshl_add_u32 v10, v10, 4, v9
            v_add_u32 v{self.EA+j}, v10, v11""")
    def gemm_epi_v(self, i, j):
        a = self.a; L = []
        for s in range(2):
            d = 64 + 16 * (2*i + j) + 8*s
            for e in range(4): L.append(lambda d=d, e=e: a(f"v_cvt_pk_bf16_f32 v{d+e}, v{d+2*e}, v{d+2*e+1}"))
            L.append(lambda d=d, s=s: a.vm(f"buffer_store_dwordx4 {vr(d,4)}, v{self.EA+j}, s[{rWS}:{rWS+3}], s{sE} offen offset:{(2*i+s)*640} sc1"))
        return L

    XS, WS_, PA, PB, PW, PS, HA, HL = 2, 6, 10, 11, 12, 13, 14, 15
    KR_, VV_, SW_, HD_, DV_, PO_ = 16, 176, 116, 132, 156, 160
    def dma_setup(self):
        a = self.a
        a(f"""v_lshrrev_b32 v16, 3, v0
        v_and_b32 v17, 7, v0
        v_lshrrev_b32 v18, 1, v16
        s_lshl_b32 s{T0}, s{sRT}, 7
        v_add_u32 v16, s{T0}, v16
        v_mul_u32_u24 v16, 1280, v16""")
        for n in range(4):
            a(f"""v_xor_b32 v19, {(4*n) & 7}, v18
            v_xor_b32 v19, v19, v17
            v_lshl_add_u32 v19, v19, 4, v16
            v_add_u32 v{self.XS+n}, {n*(8*1280-1024)}, v19""")
        a(f"""v_lshrrev_b32 v16, 4, v0
        v_and_b32 v17, 15, v0
        v_lshlrev_b32 v18, 2, v16
        v_xor_b32 v17, v17, v18
        v_mul_u32_u24 v16, 3840, v16
        v_lshl_add_u32 v16, v17, 4, v16
        s_lshl_b32 s{T0}, s{sJT}, 8
        v_add_u32 v{self.WS_}, s{T0}, v16""")
        for n in range(1, 4): a(f"v_add_u32 v{self.WS_+n}, {n*(4*3840-1024)}, v{self.WS_}")
        P = self.o("rot", 1)
        a(f"s_add_u32 s{T0}, s{sJT}, s{sRT}")
        if P == 1: a(f"s_mov_b32 s{sK}, 0")
        elif P == 2: a(f"s_and_b32 s{T0}, s{T0}, 1\ns_mul_i32 s{sK}, s{T0}, 5")
        elif P == 3: a(f"s_mul_i32 s{T1}, s{T0}, 43\ns_lshr_b32 s{T1}, s{T1}, 7\ns_mul_i32 s{T1}, s{T1}, 3\ns_sub_u32 s{T0}, s{T0}, s{T1}\ns_mul_i32 s{T0}, s{T0}, 7\ns_lshr_b32 s{sK}, s{T0}, 1")
        elif P == 4: a(f"s_and_b32 s{T0}, s{T0}, 3\ns_mul_i32 s{T0}, s{T0}, 5\ns_lshr_b32 s{sK}, s{T0}, 1")
    def stage_dma(self, s):
        a = self.a
        sl = (s % NSLOT) * 16384
        a(f"s_lshl_b32 s{T0}, s{sK}, 7\ns_mul_i32 s{T1}, s{sK}, {64*3840}")
        def ld(txt):
            if a.n["vm"] - a.done["vm"] >= 62: a.wait(Tok("vm", a.done["vm"] + 8))
            return a.vm(txt)
        for h in range(4):
            a(f"s_mov_b32 m0, {L_X + sl + 4096*h}")
            a(f"s_add_u32 s{T2}, s{T0}, {32*1280*h}")
            for n in range(4): ld(f"buffer_load_dwordx4 v{self.XS+n}, s[{rA}:{rA+3}], s{T2} offen offset:{1024*n}{self.gnt} lds")
            a(f"s_mov_b32 m0, {L_W + sl + 4096*h}")
            a(f"s_add_u32 s{T2}, s{T1}, {16*3840*h}")
            for n in range(4): t = ld(f"buffer_load_dwordx4 v{self.WS_+n}, s[{rB}:{rB+3}], s{T2} offen offset:{1024*n}{self.gnt} lds")
        a(f"s_add_u32 s{sK}, s{sK}, 1\ns_cmp_eq_u32 s{sK}, 10\ns_cselect_b32 s{sK}, 0, s{sK}")
        return t
    def conv_scalars(self):
        a = self.a
        a(f"""s_min_u32 s{T0}, s{sLW}, 2
        s_add_u32 s{sCH}, s{sCH0}, s{T0}
        s_min_u32 s{sCH}, s{sCH}, 639
        s_mul_i32 s{T0}, s{T0}, {CONV_SZ}
        s_add_u32 s{T6}, s{T0}, {L_CONV}
        s_lshl_b32 s{T1}, s{sCH}, 1
        v_mov_b32 v{self.DV_}, s{T1}
        s_lshl_b32 s{T1}, s{sCH}, 12
        v_lshl_add_u32 v{self.HA}, v0, 4, s{T1}
        v_lshl_add_u32 v{self.HL}, v0, 4, s{T6}""")
        self.srd(rD, pH, 640 * 4096)
        a(f"s_mov_b32 m0, s{T6}\ns_nop 0")
        if "h" not in self.o("ab", ""):
            for g in range(4): a.vm(f"buffer_load_dwordx4 v{self.HA}, s[{rD}:{rD+3}], 0 offen offset:{1024*g}{self.nt} lds")
        self.srd(rC, pD, 640 * 2)
        return a.vm(f"buffer_load_ushort v{self.DV_}, v{self.DV_}, s[{rC}:{rC+3}], 0 offen")
    def pre_setup(self):
        self.a(f"""s_and_b32 s{T0}, s{sU}, 63
        s_lshr_b32 s{T1}, s{sU}, 6
        s_lshl_b32 s{T5}, s{sPI}, 6
        s_add_u32 s{T5}, s{T5}, {F1:#x}
        s_lshl_b32 s{T0}, s{T0}, 5
        s_lshl_b32 s{T1}, s{T1}, 7
        v_lshrrev_b32 v16, 3, v0
        v_and_b32 v17, 7, v0
        v_lshl_add_u32 v16, v16, 2, s{T0}
        v_lshl_add_u32 v18, v17, 4, s{T1}
        v_mul_u32_u24 v19, 1280, v16
        v_add_u32 v{self.PB}, v19, v18
        v_subrev_u32 v{self.PA}, 3840, v{self.PB}
        v_lshlrev_b32 v{self.PW}, 2, v18
        v_lshlrev_b32 v18, 11, v18
        v_lshlrev_b32 v16, 1, v16
        v_sub_u32 v18, v18, v16
        v_add_u32 v{self.PS}, {UR + 4088:#x}, v18""")
    def pre_loads(self):
        a = self.a
        if "k" in self.o("ab", ""): return
        self.srd(rC, pK, 2048 * 1280); self.srd(rD, pV, 2048 * 1280); self.srd(rB, pSH, 640 * 8)
        for j in range(4): a(f"buffer_load_dwordx4 {vr(self.KR_+12+4*j,4)}, v{self.PB}, s[{rC}:{rC+3}], 0 offen offset:{1280*j}{self.nt}")
        for j in range(4): a(f"buffer_load_dwordx4 {vr(self.VV_+4*j,4)}, v{self.PB}, s[{rD}:{rD+3}], 0 offen offset:{1280*j}{self.nt}")
        for j in range(3): a(f"buffer_load_dwordx4 {vr(self.KR_+4*j,4)}, v{self.PA}, s[{rC}:{rC+3}], 0 offen offset:{1280*j}{self.nt}")
        for j in range(4): a(f"buffer_load_dwordx4 {vr(self.SW_+4*j,4)}, v{self.PW}, s[{rB}:{rB+3}], 0 offen offset:{16*j}")
    def h_loads(self, D):
        a = self.a
        if "h" in self.o("ab", ""): return
        for g in range(4):
            a.vm(f"buffer_load_dwordx4 {vr(D+6*g,4)}, v{self.HA}, s[{rD}:{rD+3}], 0 offen offset:{1024*g}{self.nt}")
            a.vm(f"buffer_load_dwordx2 {vr(D+6*g+4,2)}, v{self.HA}, s[{rD}:{rD+3}], 0 offen offset:{1024*g+16}{self.nt}")
    def bar(self):
        a = self.a; L = a.newlabel("NB")
        a(f"s_cmp_ge_u32 s{sBC}, s{sNB}\ns_cbranch_scc1 {L}\ns_barrier\ns_add_u32 s{sBC}, s{sBC}, 1")
        a.label(L)
    def bar_rest(self):
        a = self.a; L, D = a.newlabel("BR"), a.newlabel("BRD")
        a.label(L)
        a(f"s_cmp_ge_u32 s{sBC}, s{sNB}\ns_cbranch_scc1 {D}\ns_barrier\ns_add_u32 s{sBC}, s{sBC}, 1\ns_branch {L}")
        a.label(D)
    def ewait(self, n=1):
        a = self.a; L, L2, D = a.newlabel("EW"), a.newlabel("EX"), a.newlabel("EWD")
        a.label(L)
        a(f"s_mov_b32 s{T1}, {n}")
        a.label(L2)
        a(f"""s_getreg_b32 s{T0}, hwreg(HW_REG_IB_STS)
        s_and_b32 s{T0}, s{T0}, 0x00c0000f
        s_cbranch_scc0 {D}
        s_cmp_ge_u32 s{sBC}, s{sNB}
        s_cbranch_scc1 {D}""")
        if n > 1: a(f"s_sleep 1\ns_sub_u32 s{T1}, s{T1}, 1\ns_cmp_lg_u32 s{T1}, 0\ns_cbranch_scc1 {L2}")
        a(f"""s_barrier
        s_add_u32 s{sBC}, s{sBC}, 1
        s_branch {L}""")
        a.label(D)
        a("s_waitcnt vmcnt(0)")
    def epoll(self, loads, tmp, cmp=None):
        a = self.a
        L, D = a.newlabel("EP"), a.newlabel("EPD")
        a(f"s_mov_b32 s{sCNT}, 0")
        a.label(L)
        k = 0
        for (va, r, imm, wd) in loads:
            ins = {1: "buffer_load_dword", 2: "buffer_load_dwordx2", 4: "buffer_load_dwordx4"}[wd]
            a(f"{ins} {vr(tmp+k, wd)}, v{va}, s[{r}:{r+3}], 0 offen offset:{imm} sc1"); k += wd
        self.ewait()
        self.poll_check(tmp, k, cmp)
        a(f"s_cbranch_scc1 {D}")
        a(f"s_add_u32 s{sCNT}, s{sCNT}, 1\ns_cmp_lt_u32 s{sCNT}, {POLL_MAX}\ns_cbranch_scc0 {D}\ns_sleep 1\ns_branch {L}")
        a.label(D)
    def pre_compute_list(self):
        L = []
        K, V, W, AC = 76, 90, 98, 106
        lo = lambda d, s: L.append(f"v_lshlrev_b32 v{d}, 16, v{s}")
        hi = lambda d, s: L.append(f"v_and_b32 v{d}, 0xffff0000, v{s}")
        for p in range(4):
            for j in range(7): lo(K+2*j, self.KR_+4*j+p); hi(K+2*j+1, self.KR_+4*j+p)
            for j in range(4): lo(V+2*j, self.VV_+4*j+p); hi(V+2*j+1, self.VV_+4*j+p)
            w = self.SW_ + 4*p
            lo(W, w); lo(W+1, w+2); hi(W+2, w); hi(W+3, w+2); lo(W+4, w+1); lo(W+5, w+3); hi(W+6, w+1); hi(W+7, w+3)
            for lag in (3, 2, 1, 0):
                for t in range(4):
                    kk = K + 2*(3 + t - lag)
                    if self.o("pk", 1):
                        if lag == 3: L.append(f"v_pk_mul_f32 {vr(AC+2*t,2)}, {vr(kk,2)}, {vr(W+2*lag,2)}")
                        else: L.append(f"v_pk_fma_f32 {vr(AC+2*t,2)}, {vr(kk,2)}, {vr(W+2*lag,2)}, {vr(AC+2*t,2)}")
                    else:
                        for h in range(2):
                            if lag == 3: L.append(f"v_mul_f32 v{AC+2*t+h}, v{kk+h}, v{W+2*lag+h}")
                            else: L.append(f"v_fmac_f32 v{AC+2*t+h}, v{kk+h}, v{W+2*lag+h}")
            for t in range(4):
                if self.o("pk", 1): L.append(f"v_pk_mul_f32 {vr(AC+2*t,2)}, {vr(AC+2*t,2)}, {vr(V+2*t,2)}")
                else:
                    for h in range(2): L.append(f"v_mul_f32 v{AC+2*t+h}, v{AC+2*t+h}, v{V+2*t+h}")
            for h in range(2):
                o = self.PO_ + 4*p + 2*h
                L.append(f"v_cvt_pk_bf16_f32 v{o}, v{AC+6+h}, v{AC+4+h}"); L.append(f"v_cvt_pk_bf16_f32 v{o+1}, v{AC+2+h}, v{AC+h}")
        return L
    def pre_stores(self):
        a = self.a
        if "s" in self.o("ab", ""): return
        if not self.o("st4", 1):
            for e in range(8):
                a(f"s_mov_b32 s{T0}, {4096*e}")
                a(f"buffer_store_dwordx2 {vr(self.PO_+2*e,2)}, v{self.PS}, s[{rWS}:{rWS+3}], s{T0} offen sc1")
            return
        for e in range(8): a(f"ds_write_b64 v{(self.PA, self.PW)[e & 1]}, {vr(self.PO_+2*e,2)} offset:{64*(e & 6)}")
        for k in range(1, 4): a(f"v_xor_b32 v{76+k}, {32*k}, v{self.PB}")
        a("s_waitcnt lgkmcnt(0)")
        for k in range(4): a(f"ds_read_b128 {vr(self.PO_+4*k,4)}, v{76+k if k else self.PB} offset:{1024*k}")
        for k in range(4):
            a(f"s_mov_b32 s{T0}, {65536*k}\ns_waitcnt lgkmcnt({3-k})")
            a(f"buffer_store_dwordx4 {vr(self.PO_+4*k,4)}, v{self.PS}, s[{rWS}:{rWS+3}], s{T0} offen sc1")
    def pre_store_setup(self, spare=False):
        if not self.o("st4", 1): return
        assert (L_CONV + CONV_SZ + 2*CS) % 128 == 0 and CONV_SZ % 128 == 0 and (L_CONV + U_OFF) % 128 == 0
        if spare: self.a(f"s_lshl_b32 s{T0}, s{sWAVE}, 12")
        else: self.a(f"""s_mul_i32 s{T0}, s{sLW}, {CONV_SZ}
        s_add_u32 s{T0}, s{T0}, {L_CONV + 2*CS}
        s_cmp_eq_u32 s{sWAVE}, 7
        s_cselect_b32 s{T0}, {L_CONV + U_OFF}, s{T0}""")
        self.a(f"""v_and_b32 v76, 7, v0
        v_lshrrev_b32 v77, 3, v0
        v_sub_u32 v77, 7, v77
        v_lshrrev_b32 v78, 1, v77
        v_xor_b32 v78, v78, v76
        v_lshlrev_b32 v78, 4, v78
        v_and_b32 v77, 1, v77
        v_lshl_add_u32 v78, v77, 3, v78
        v_lshl_add_u32 v78, v76, 9, v78
        v_add_u32 v{self.PA}, s{T0}, v78
        v_xor_b32 v{self.PW}, 64, v{self.PA}
        v_lshrrev_b32 v76, 5, v0
        v_and_b32 v77, 31, v0
        v_xor_b32 v77, v77, v76
        v_lshlrev_b32 v77, 4, v77
        v_lshl_add_u32 v76, v76, 9, v77
        v_add_u32 v{self.PB}, s{T0}, v76
        s_lshr_b32 s{T1}, s{sU}, 6
        s_lshl_b32 s{T1}, s{T1}, 18
        s_and_b32 s{T0}, s{sU}, 63
        s_lshl_b32 s{T0}, s{T0}, 6
        s_sub_u32 s{T1}, s{T1}, s{T0}
        s_add_u32 s{T1}, s{T1}, {UR + 4032:#x}
        v_lshrrev_b32 v76, 2, v0
        v_lshlrev_b32 v76, 12, v76
        v_and_b32 v77, 3, v0
        v_lshl_add_u32 v76, v77, 4, v76
        v_add_u32 v{self.PS}, s{T1}, v76""")
    def h_valu(self, D, t0):
        L = [f"v_alignbit_b32 v{t0+e}, v{D+e+1}, v{D+e}, 16" for e in range(4)]
        L += [f"v_mov_b32 v{t0+4+e}, v{D+e+1}" for e in range(4)]
        return L + [f"v_alignbit_b32 v{t0+8+e}, v{D+e+2}, v{D+e+1}, 16" for e in range(4)]
    def h_writes(self, D, imm, t0):
        for r, src in enumerate((t0, t0 + 4, t0 + 8, D + 2)):
            self.a(f"ds_write_b128 v{self.HL}, {vr(src,4)} offset:{r*CS + imm}")
    def conv_prep(self, part):
        a = self.a
        HD, D = self.HD_, 112
        HA, UB, UE, YS = 16, 17, 18, 19
        if part == 0:
            for g in range(4):
                a(f"ds_read_b128 {vr(HD+6*g,4)}, v{self.HL} offset:{1024*g}")
                a(f"ds_read_b64 {vr(HD+6*g+4,2)}, v{self.HL} offset:{1024*g+16}")
            a(f"""v_lshrrev_b32 v22, 4, v0
            s_lshl_b32 s{T0}, s{sCH}, 12
            v_lshrrev_b32 v23, 2, v0
            v_and_b32 v23, 3, v23
            v_mul_u32_u24 v23, {CS}, v23
            v_lshl_add_u32 v23, v22, 4, v23
            v_and_b32 v24, 3, v0
            v_lshl_add_u32 v23, v24, 3, v23
            v_add_u32 v{HA}, s{T6}, v23
            v_and_b32 v23, 15, v0
            v_lshlrev_b32 v23, 5, v23
            v_lshlrev_b32 v24, 4, v22
            v_sub_u32 v24, v24, v23
            v_add_u32 v24, s{T6}, v24
            v_add_u32 v{UB}, {U_OFF + 480}, v24
            v_lshl_add_u32 v23, v22, 3, v23
            v_sub_u32 v24, s{T6}, v23
            v_add_u32 v{UE}, {U_OFF + 504}, v24
            s_add_u32 s{T0}, s{T0}, {YD:#x}
            v_add_u32 v{YS}, s{T0}, v23
            v_lshlrev_b32 v20, 16, v{self.DV_}""")
            for e in range(6): a(f"v_mov_b32 v{D+e}, 0")
            a("s_waitcnt lgkmcnt(0)")
            a(f"v_readlane_b32 s{T1}, v{HD}, 0\nv_readlane_b32 s{T2}, v{HD+1}, 0")
            for l in self.h_valu(HD, 64): a(l)
            a(f"v_writelane_b32 v{D+4}, s{T1}, 1\nv_writelane_b32 v{D+5}, s{T2}, 1")
        else:
            for g in range(1, 4):
                for l in self.h_valu(HD + 6*g, 64 + 12*g): a(l)
            for l in self.h_valu(D, 120): a(l)
    def h_store(self):
        a = self.a
        for g in range(4): self.h_writes(self.HD_ + 6*g, 32 + 1024*g, 64 + 12*g)
        a("s_mov_b32 exec_hi, 0")
        a(f"ds_write_b128 v{self.HL}, v[112:115] offset:{U_OFF + 4096}")
        a("s_mov_b64 exec, 3")
        self.h_writes(112, 0, 120)
        a("s_mov_b64 exec, -1")
        for d, r in ((2, 16), (3, 17), (4, 18), (5, 19), (7, 20)): a(f"v_mov_b32 v{d}, v{r}")

    def dma_role(self):
        a = self.a
        a.reset_counters()
        fine = self.o("fine", 0)
        self.dma_setup()
        a("s_waitcnt lgkmcnt(0)")
        self.srd(rA, pX, 2048 * 1280); self.srd(rB, pW, 640 * 3840)
        a(f"s_cmp_ge_u32 s{sI}, 30\ns_cbranch_scc1 L_D_SKIP")
        S = {0: self.stage_dma(0)}
        if self.o("s1early", 0): S[1] = self.stage_dma(1)
        a.label("L_D_SKIP")
        if self.stamps: a("v_mov_b32 v1, 0")
        self.stamp("start")
        self.srd(rWS, pWS, WS_SIZE)
        self.setup_call()
        a(f"s_cmp_ge_u32 s{sI}, 30\ns_cbranch_scc1 L_D_NT")
        if self.o("dprio", 0): a(f"s_setprio {self.o('dprio', 0)}")
        if not self.o("s1early", 0): S[1] = self.stage_dma(1)
        if self.o("hat", 0) == 0: self.conv_scalars()
        for s in range(10):
            a.wait(S[s])
            if fine: self.stamp(f"l.w{s}")
            a("s_barrier")
            if fine or s in (0, 5, 9): self.stamp(f"l.b{s}")
            if s + 2 <= 9:
                S[s+2] = self.stage_dma(s + 2)
                if fine: self.stamp(f"l.i{s}")
            if s == 8 and self.o("prep", 1): self.conv_prep(0)
            if s == 9 and self.o("prep", 1): self.conv_prep(1)
        a.label("L_CONV")
        self.conv()
    def side_role(self):
        a = self.a
        a.label("L_SIDE")
        a.reset_counters()
        a(f"""s_cmp_ge_u32 s{sI}, 30
        s_cbranch_scc1 L_S_NT
        s_lshr_b32 s{T0}, s{sLW}, 1
        s_lshl_b32 s{sU}, s{sPI}, 1
        s_add_u32 s{sU}, s{sU}, s{T0}
        s_mov_b32 s{T7}, {L_SIG}
        s_cmp_lg_u32 s{sWAVE}, 6
        s_cbranch_scc1 L_S_GO
        s_cmp_lt_u32 s{sG}, 32
        s_cselect_b32 s{T1}, s{sNCH}, 0
        s_cmp_lg_u32 s{T1}, 2
        s_cbranch_scc1 L_W6
        s_add_u32 s{sU}, s{sG}, 608
        s_add_u32 s{sPI}, s{sG}, 256
        s_mov_b32 s{sNU}, 1
        s_mov_b32 s{T7}, {L_SIG + 8}
        L_S_GO:""")
        slate = self.o("slate", 0)
        if slate: self.setup_call()
        self.pre_setup()
        a("s_waitcnt lgkmcnt(0)")
        if slate > 1: a(f"s_sleep {slate}")
        self.pre_loads()
        if self.o("hat", 0) == 0:
            L7 = a.newlabel("H7")
            a(f"s_cmp_ge_u32 s{sLW}, s{sNCH}\ns_cbranch_scc1 {L7}")
            self.conv_scalars()
            a.label(L7)
        if self.stamps: a("v_mov_b32 v1, 0")
        self.stamp("start")
        self.srd(rWS, pWS, WS_SIZE)
        if not slate: self.setup_call()
        a(f"""v_mov_b32 v44, {L_SIG}
        v_mov_b32 v46, 0
        v_mov_b32 v47, 0
        ds_write_b64 v44, v[46:47]
        ds_write_b64 v44, v[46:47] offset:8
        ds_write_b32 v44, v46 offset:16
        v_and_b32 v46, 1, v0
        v_lshlrev_b32 v46, 7, v46
        s_waitcnt lgkmcnt(0)""")
        self.pre_store_setup()
        self.bar()
        self.ewait(self.o("espin0", 1))
        self.stamp("s.kv")
        if self.o("sprio", 0): a(f"s_setprio {self.o('sprio', 0)}")
        PC = self.pre_compute_list()
        nch = self.o("nchunk", 2)
        per = -(-len(PC) // nch)
        for c in range(nch):
            for l in (PC[c*per:(c+1)*per] if "v" not in self.o("ab", "") else []): a(l)
            if c < nch - 1 or self.o("barst", 1): self.bar()
        self.pre_stores()
        if self.o("hat", 0) == 1:
            L7 = a.newlabel("H7")
            a(f"s_cmp_ge_u32 s{sLW}, s{sNCH}\ns_cbranch_scc1 {L7}")
            self.conv_scalars()
            a.label(L7)
        self.srd(rC, pDBG, 256)
        a(f"buffer_load_dword v47, v46, s[{rC}:{rC+3}], 0 offen sc1")
        self.stamp("s.st")
        self.ewait(self.o("espin", 1))
        self.last_flag(8, f"s{sNU}", T5, 114, base=f"s{T7}")
        self.stamp("s.F1set")
        a(f"s_cmp_eq_u32 s{sWAVE}, 7\ns_cbranch_scc1 L_FETCH\ns_cmp_eq_u32 s{sWAVE}, 6\ns_cbranch_scc1 L_IDLE2")
        a.label("L_PREP")
        if self.o("prep", 1):
            self.bar()
            self.conv_prep(0)
            self.bar()
            self.conv_prep(1)
        self.bar_rest()
        a("s_branch L_CONV")
        a.label("L_W6")
        a("s_waitcnt lgkmcnt(0)")
        a(f"s_cmp_lt_u32 s{sNCH}, 3\ns_cbranch_scc1 L_IDLE")
        self.conv_scalars()
        if self.stamps: a("v_mov_b32 v1, 0")
        self.stamp("start")
        self.srd(rWS, pWS, WS_SIZE)
        self.setup_call()
        self.bar()
        self.ewait()
        a("s_branch L_PREP")
        a.label("L_IDLE")
        if self.stamps: a("v_mov_b32 v1, 0")
        self.stamp("start")
        self.srd(rWS, pWS, WS_SIZE)
        self.setup_call()
        a.label("L_IDLE2")
        for l in self.att_init_list(): a(l)
        self.bar_rest()
        a("s_branch L_ATT")
        a.label("L_S_NT")
        a("s_waitcnt lgkmcnt(0)")
        if self.stamps: a("v_mov_b32 v1, 0")
        self.stamp("start")
        self.srd(rWS, pWS, WS_SIZE)
        self.setup_call()
        a.label("L_D_NT")
        a(f"s_call_b64 s[{sRET}:{sRET+1}], L_SPARE")
        a(f"s_mov_b32 s{sBC}, 1\ns_branch L_IDLE2")
        a.label("L_SPARE")
        a(f"""s_sub_u32 s{T0}, s{sPI}, 180
        s_lshl_b32 s{T0}, s{T0}, 3
        s_add_u32 s{sU}, s{T0}, s{sWAVE}""")
        self.pre_setup()
        self.pre_loads()
        a(f"""v_mov_b32 v44, {L_SIG}
        v_mov_b32 v46, 0
        v_mov_b32 v47, 0
        ds_write_b64 v44, v[46:47]
        ds_write_b64 v44, v[46:47] offset:8
        s_waitcnt lgkmcnt(0)
        s_barrier""")
        a.label("L_SPARE2")
        self.pre_store_setup(spare=True)
        a("s_waitcnt vmcnt(0)")
        for l in PC: a(l)
        self.pre_stores()
        a.label("L_SPARE3")
        a("s_waitcnt vmcnt(0)")
        self.last_flag(8, f"s{sNU}", T5, 114)
        a(f"s_setpc_b64 s[{sRET}:{sRET+1}]")
        self.fetcher()

    def fetcher(self):
        a = self.a
        a.label("L_FETCH")
        a.reset_counters()
        OK = a.newlabel("CNTOK")
        a("s_setprio 0")
        self.poll_check(47, 1, cmp="v_cmp_le_u32 vcc, 0x80, v47")
        a(f"s_cbranch_scc1 {OK}")
        self.epoll([(46, rC, 0, 1)], 47, cmp="v_cmp_le_u32 vcc, 0x80, v47")
        a.label(OK)
        a(f"""s_andn2_b32 s{T1}, s{sCH0}, 63
        s_add_u32 s{T2}, s{sCH0}, s{sNCH}
        s_sub_u32 s{T2}, s{T2}, 1
        s_or_b32 s{T2}, s{T2}, 63""")
        for r in (T1, T2):
            a(f"""s_lshr_b32 s{T3}, s{r}, 3
            s_add_u32 s{T3}, s{T3}, 180
            s_lshr_b32 s{T4}, s{r}, 1
            s_cmp_ge_u32 s{r}, 480
            s_cselect_b32 s{T4}, s{T3}, s{T4}
            s_sub_u32 s{T3}, s{r}, 352
            s_cmp_ge_u32 s{r}, 608
            s_cselect_b32 s{r}, s{T3}, s{T4}""")
        a(f"""v_add_u32 v9, s{T1}, v0
        v_min_u32 v9, s{T2}, v9
        v_lshlrev_b32 v9, 6, v9
        v_add_u32 v9, {F1:#x}, v9""")
        if self.o("pgate", 9):
            LG, LD = a.newlabel("PG"), a.newlabel("PGD")
            a.label(LG)
            a(f"s_cmp_ge_u32 s{sBC}, {self.o('pgate', 9)}\ns_cbranch_scc1 {LD}\ns_cmp_ge_u32 s{sBC}, s{sNB}\ns_cbranch_scc1 {LD}\ns_barrier\ns_add_u32 s{sBC}, s{sBC}, 1\ns_branch {LG}")
            a.label(LD)
        if "p" not in self.o("ab", ""): self.mpoll([9], 16, elastic=True)
        self.stamp("f.F1ok")
        a(f"s_lshl_b32 s{T2}, s{sCH0}, 12\ns_add_u32 s{T2}, s{T2}, {UR:#x}")
        for c in range(3 if "u" not in self.o("ab", "") else 0):
            L = a.newlabel("NOU")
            if c == 2: a(f"s_cmp_lt_u32 s{sNCH}, 3\ns_cbranch_scc1 {L}")
            a(f"s_mov_b32 m0, {L_CONV + c*CONV_SZ + U_OFF}\ns_add_u32 s{T1}, s{T2}, {4096*c}")
            for j in range(4): a(f"buffer_load_dwordx4 v{L16}, s[{rWS}:{rWS+3}], s{T1} offen offset:{1024*j} sc1 lds")
            if c == 2: a.label(L)
        a("v_mov_b32 v45, 1")
        self.ewait()
        a("ds_write_b32 v44, v45")
        self.stamp("f.u")
        self.bar_rest()
        for l in self.att_init_list(): a(l)
        a("s_branch L_ATT")
    def kv_fetch(self):
        a = self.a
        a.reset_counters()
        OK = a.newlabel("CNTOK")
        self.poll_check(29, 1, cmp="v_cmp_le_u32 vcc, 0x80, v29")
        a(f"s_cbranch_scc1 {OK}")
        self.poll([(28, rC, 0, 1)], 29, cmp="v_cmp_le_u32 vcc, 0x80, v29")
        a.label(OK)
        self.sig_wait(12, 4)
        self.sig_wait(8, f"s{sNU}")
        self.mpoll([30, 31], 16)
        self.stamp("f.F2ok")
        a(f"""s_mul_i32 s{T0}, s{sHEAD}, {Q_HS}
        s_mul_i32 s{T1}, s{sQB}, {4*Q_US}
        s_add_u32 s{T0}, s{T0}, s{T1}
        s_add_u32 s{T0}, s{T0}, {QO:#x}""")
        def lin(sbase, lds0, n):
            T = []
            for k in range(n):
                if k % 4 == 0: a(f"s_mov_b32 m0, {lds0 + 1024*k}\ns_add_u32 s{T1}, s{sbase}, {1024*k}")
                T.append(a.vm(f"buffer_load_dwordx4 v{L16}, s[{rWS}:{rWS+3}], s{T1} offen offset:{1024*(k%4)} sc1 lds"))
            return T
        if self.o("kv3", 1):
            lin(T0, L_Q, 10)
            T = lin(sKVB, 0, 40)
            a(f"v_mov_b32 v16, {L_SIG}\nv_mov_b32 v17, 1\nv_mov_b32 v18, 2")
            a.wait(T[9]); a("ds_write_b32 v16, v17 offset:4")
            a.wait(T[19]); a("ds_write_b32 v16, v18 offset:4")
        else:
            lin(T0, L_Q, 10)
            lin(sKVB, 0, 40)
            a(f"v_mov_b32 v16, {L_SIG}\nv_mov_b32 v17, 3")
            a.wait_all()
            a("ds_write_b32 v16, v17 offset:4")
        self.stamp("f.kv0")
    def kv_fetch_setup(self):
        a = self.a
        self.srd(rC, pDBG, 256)
        a(f"""s_mul_i32 s{T0}, s{sHEAD}, 20
        v_and_b32 v28, 15, v0
        v_lshrrev_b32 v30, 4, v0
        v_and_b32 v31, 1, v30
        v_mul_u32_u24 v31, 19, v31
        v_add_u32 v31, s{T0}, v31
        v_lshrrev_b32 v31, 7, v31
        v_lshrrev_b32 v30, 1, v30
        v_mul_u32_u24 v30, 5, v30
        v_add3_u32 v30, v30, v31, 5
        v_lshl_add_u32 v30, v30, 4, v28
        v_lshlrev_b32 v30, 6, v30
        v_add_u32 v30, {F2:#x}, v30
        v_lshl_add_u32 v31, v31, 4, s{sQB}
        v_add_u32 v31, s{sQB}, v31
        v_and_b32 v28, 1, v0
        v_add_u32 v31, v31, v28
        v_lshlrev_b32 v31, 6, v31
        v_add_u32 v31, {F2:#x}, v31
        v_lshlrev_b32 v28, 7, v28""")

    def sig_check(self, off, thr, tok):
        a = self.a
        OK = a.newlabel("SOK")
        a.wait(tok)
        a(f"v_readfirstlane_b32 s{T0}, v15\ns_nop 0\ns_cmp_ge_u32 s{T0}, {thr}\ns_cbranch_scc1 {OK}")
        self.sig_wait(off, thr)
        a.label(OK)
    def sig_wait(self, off, thr=1):
        a = self.a
        L, D = a.newlabel("SIG"), a.newlabel("SIGD")
        a(f"v_mov_b32 v14, {L_SIG}\ns_mov_b32 s{sCNT}, 0")
        a.label(L)
        a(f"""ds_read_b32 v15, v14 offset:{off}
        s_waitcnt lgkmcnt(0)
        v_readfirstlane_b32 s{T0}, v15
        s_add_u32 s{sCNT}, s{sCNT}, 1
        s_cmp_ge_u32 s{T0}, {thr}
        s_cbranch_scc1 {D}
        s_sleep 1
        s_cmp_lt_u32 s{sCNT}, {POLL_MAX*40}
        s_cbranch_scc1 {L}""")
        a.label(D)
    def conv(self):
        a = self.a
        a.reset_counters()
        ACC, FR = 16, 64
        HA, UB, UE, YS, DV = 2, 3, 4, 5, self.DV_
        a(f"s_setprio {self.o('hprio', 0)}")
        if not self.o("prep", 1): self.conv_prep(0); self.conv_prep(1)
        self.h_store()
        self.stamp("v.h")
        self.sig_wait(0)
        a(f"s_setprio {self.o('cprio', 3)}")
        a.reset_counters()
        def reads(rho):
            st = FR + 64 * (rho & 1)
            ra = lambda i, q: (lambda: a.ds(f"ds_read_b64_tr_b16 {vr(st+4*i+2*q,2)}, v{HA} offset:{64*(8*i+rho) + 8*q}"))
            rb = lambda d: (lambda: a.ds(f"ds_read_b128 {vr(st+32+4*d,4)}, v{UB} offset:{64*(56 - (8*d - rho))}"))
            L = [("A0", ra(0,0)), ("A0", ra(0,1))] + [(f"B{d}", rb(d)) for d in range(8)]
            for i in range(1, 8): L += [(f"A{i}", ra(i,0)), (f"A{i}", ra(i,1))]
            return L
        toks = {}
        for n, f in reads(0): toks[n] = f()
        self.stamp("v.u")
        init = self.att_init_list()
        for rho in range(8):
            st = FR + 64 * (rho & 1)
            nxt = reads(rho + 1) if rho < 7 else []
            out = {}; k = 0; m = 0
            for i in range(8):
                for c in range(i, 8):
                    a.wait(toks[f"A{i}"], toks[f"B{c-i}"])
                    d = ACC + 4 * c
                    a(f"v_mfma_f32_16x16x32_bf16 {vr(d,4)}, {vr(st+4*i,4)}, {vr(st+32+4*(c-i),4)}, {'0' if (rho == 0 and i == 0) else vr(d,4)}")
                    m += 1
                    if m >= 4 and k < len(nxt): out[nxt[k][0]] = nxt[k][1](); k += 1
                    elif m >= 28 and init: a(init.pop())
            assert k == len(nxt)
            toks = out
        assert not init
        self.stamp("v.mfma")
        tu = [a.ds(f"ds_read_b64 {vr(FR+2*c,2)}, v{UE} offset:{512*(7-c)}") for c in range(8)]
        for c in range(8):
            a.wait(tu[c])
            d, u, t = ACC + 4*c, FR + 2*c, FR + 32 + 8*(c & 3)
            a(f"""v_and_b32 v{t}, 0xffff0000, v{u+1}
            v_lshlrev_b32 v{t+1}, 16, v{u+1}
            v_and_b32 v{t+2}, 0xffff0000, v{u}
            v_lshlrev_b32 v{t+3}, 16, v{u}""")
            for e in range(4): a(f"v_fmac_f32 v{d+e}, v7, v{t+e}")
            a(f"v_cvt_pk_bf16_f32 v{t+4}, v{d}, v{d+1}\nv_cvt_pk_bf16_f32 v{t+5}, v{d+2}, v{d+3}")
            a.vm(f"buffer_store_dwordx2 {vr(t+4,2)}, v{YS}, s[{rWS}:{rWS+3}], 0 offen offset:{512*c} sc1")
        self.stamp("v.st")

    def m2b(self, S, j=1): self.a(f"v_mfma_f32_32x32x4_2b_bf16 {vr(S,32)}, {vr(KRM,2)}, {vr((QR2, QR)[j],2)}, 0")
    def mqk(self, S, h, j=1): self.a(f"v_mfma_f32_32x32x16_bf16 {vr(S+16*h,16)}, {vr(KM+4*h,4)}, {vr((QM2, QM)[j],4)}, {vr(S+16*h,16)}")
    def smf(self, V, P, j=1): self.a(f"v_smfmac_f32_32x32x32_bf16 {vr((O2, O_)[j],16)}, {vr(V,4)}, {vr(P,8)}, v{IDX}")
    def side_kv(self, add):
        a = self.a
        def mk(j):
            def f():
                if j == 0: a(f"s_add_u32 m0, s{sKVW}, {add*KV_US}\ns_add_u32 s{T5}, s{sKVG}, {add*KV_US}")
                if j == 4: a(f"s_add_u32 m0, m0, 4096\ns_add_u32 s{T5}, s{T5}, 4096")
                a.vm(f"buffer_load_dwordx4 v{L16}, s[{rWS}:{rWS+3}], s{T5} offen offset:{1024*(j%4)} sc1 lds")
            return f
        return [mk(j) for j in range(5)]
    def side_wo(self):
        a = self.a
        def mk(k):
            def f():
                L = a.newlabel("NOWO")
                if k == 0: a(f"s_mul_i32 s{T4}, s{sWAVE}, {13*1024}\ns_add_u32 m0, s{T4}, {L_WO}")
                else: a("s_add_u32 m0, m0, 1024")
                if k % 5 == 0: a(f"s_mov_b32 s{T5}, {40960*(k//5)}")
                elif k < 9: a("s_nop 0")
                if k >= 9: a(f"s_cmp_eq_u32 s{sWAVE}, 7\ns_cbranch_scc1 {L}")
                a.vm(f"buffer_load_dwordx4 v{WOV + k%5}, s[{rA}:{rA+3}], s{T5} offen lds")
                if k >= 9: a.label(L)
            return f
        return [mk(k) for k in range(13)]
    def side_yd(self):
        a = self.a
        def f0():
            OK = a.newlabel("F3OK")
            a.wait(self.tF3)
            self.poll_check(F3T, 2)
            a(f"s_cbranch_scc1 {OK}")
            snap = a.snapshot(); self.poll([(AF3, rWS, 0, 2)], F3T); a.restore(snap)
            a.label(OK)
            a(f"s_mul_i32 s{T5}, s{sWAVE}, 1280\ns_add_u32 m0, s{T5}, {L_YD}\ns_mov_b32 s{T5}, {8*4096 - 1024}")
            a.vm(f"buffer_load_dwordx4 v{YDV}, s[{rWS}:{rWS+3}], 0 offen sc1 lds")
            a("s_mov_b64 exec, 0xffff")
            a.vm(f"buffer_load_dwordx4 v{YDV}, s[{rWS}:{rWS+3}], s{T5} offen offset:1024 sc1 lds")
            a("s_mov_b64 exec, -1")
        return [f0]
    def side_x(self):
        a = self.a
        def mk(j):
            def f():
                if j == 0: self.srd(rA, pX, 2048 * 1280)
                a.vm(f"buffer_load_dwordx2 {vr(XE+2*j,2)}, v{AOUT}, s[{rA}:{rA+3}], 0 offen offset:{32*j}")
            return f
        def f3(): self.tF3 = a.vm(f"buffer_load_dwordx2 {vr(F3T,2)}, v{AF3}, s[{rWS}:{rWS+3}], 0 offen sc1")
        return [mk(j) for j in range(3)] + [f3]
    def attention(self):
        a = self.a
        a.label("L_ATT")
        a.reset_counters()
        for e in range(16): a(f"v_mov_b32 v{O2+e}, 0")
        self.sig_wait(4)
        self.stamp("att0")
        US2 = 2 * KV_US
        base = {"K": 0, "V": 0}
        def bump(kind, u):
            while u * US2 - base[kind] > 5 * US2:
                base[kind] += 6 * US2
                for r in ((AKM, AKR) if kind == "K" else (AV,)): a(f"v_add_u32 v{r}, {6*US2}, v{r}")
            return u * US2 - base[kind]
        def rKR(u): o = bump("K", u); return a.ds(f"ds_read_b64 {vr(KRM,2)}, v{AKR} offset:{o}")
        def rKM(u, h): o = bump("K", u); return a.ds(f"ds_read_b128 {vr(KM+4*h,4)}, v{AKM} offset:{o + 1024*h}")
        def rV(u):
            o = bump("V", u)
            a(f"s_mov_b64 exec, s[{sVMASK}:{sVMASK+1}]")
            for g in range(4): t = a.ds(f"ds_read_b128 {vr(VS[u&1]+4*g,4)}, v{AV} offset:{o + 640*g}")
            a("s_mov_b64 exec, -1")
            return t
        tq = [a.ds(f"ds_read_b64 {vr(QR2,2)}, v{AQR2} offset:2048")]
        tKR = rKR(0)
        tq.append(a.ds(f"ds_read_b128 {vr(QM2,4)}, v{AQM2}"))
        tK0 = rKM(0, 0); tK1 = rKM(0, 1)
        tq.append(a.ds(f"ds_read_b64 {vr(QR,2)}, v{AQR} offset:2048"))
        tq.append(a.ds(f"ds_read_b128 {vr(QM,4)}, v{AQM}"))
        tV = {0: rV(0)}
        side = self.side_kv(8)
        a.wait(tq[0], tKR); self.m2b(S_, 0)
        for _ in range(4): side.pop(0)()
        a.nop(12)
        a.wait(tq[1], tK0); self.mqk(S_, 0, 0)
        a.wait(tK1); self.mqk(S_, 1, 0)
        side.pop(0)()
        if self.o("kv3", 1):
            self.sig_check(4, 2, a.ds("ds_read_b32 v15, v14 offset:4")); a.nop(2)
        else: a.nop(8)
        zones = {0: self.o("z0", "3,5"), 6: self.o("z1", "3,5,7"), 14: self.o("z1", "3,5,7"), 22: self.o("z3", "3,5,7"), 30: self.o("z4", "1")}
        prio = {}
        if self.o("prio", 1):
            for u0, z in zones.items():
                zz = [int(x) for x in z.split(",")]
                prio[u0] = len(zz)
                for k, d in enumerate(zz): prio[u0 + d] = len(zz) - 1 - k
        for t in range(32):
            if t % 8 == 6 and t < 30:
                assert not side
                side = self.att_sync(t // 8)
            if t == 1 and self.o("kv3", 1):
                L3 = a.newlabel("N3")
                a(f"s_cmp_lg_u32 s{sWAVE}, 3\ns_cbranch_scc1 {L3}\nv_mov_b32 v15, 3\ns_waitcnt vmcnt(5)\nds_write_b32 v14, v15 offset:4")
                a.label(L3)
            if t == 2 and self.o("kv3", 1): self.sig_check(4, 3, tsig)
            if t == 30: a("s_barrier")
            if t in prio: a(f"s_setprio {prio[t]}")
            u, j = t >> 1, t & 1
            X, Y = S_ + 32 * j, S_ + 32 * (1 - j)
            Vc, Vp = VS[u & 1], VS[((t - 1) >> 1) & 1]
            nx = t < 31
            rl = j == 0 and u < 15
            P = [int(x) for x in self.o("pos", "2,6,14,18,22,26,30").split(",")]
            SP = [int(x) for x in self.o("spos", "10,20").split(",")]
            for p in range(32):
                if p == P[0]:
                    if t == 0: a.wait(tq[2])
                    if j == 1 and nx: a.wait(tKR)
                    if t > 0: self.smf(Vp + 12, Y + 24, 1 - j)
                    if rl and self.o("vpos", -1) < 0: tV[u+1] = rV(u + 1)
                if p == self.o("vpos", -1) and rl: tV[u+1] = rV(u + 1)
                if p == P[1] and nx:
                    self.m2b(Y, 1 - j)
                    if rl: tKR = rKR(u + 1)
                if t == 1 and p == 24 and self.o("kv3", 1): tsig = a.ds("ds_read_b32 v15, v14 offset:4")
                if p in SP and side: side.pop(0)()
                if t == 31 and p in (16, 20, 24): a.ds(f"ds_write_b128 v{AEX}, {vr(O2+(p-16),4)} offset:{256*(p-16)}")
                if t == 31 and p == 28: a.ds(f"ds_write_b32 v{AEX}, v{O2+12} offset:3072")
                if p == P[2]: a.wait(tV[u]); self.smf(Vc, X, j)
                if p == P[3]: self.smf(Vc + 4, X + 8, j)
                if p == P[4] and nx:
                    a.wait(tK0, tK1, tq[3]); self.mqk(Y, 0, 1 - j)
                    if rl: tK0 = rKM(u + 1, 0)
                if p == P[5]: self.smf(Vc + 8, X + 16, j)
                if p == P[6] and nx:
                    self.mqk(Y, 1, 1 - j)
                    if rl: tK1 = rKM(u + 1, 1)
                a(f"v_exp_f32 v{X+p}, v{X+p}")
        assert not side
        a.nop(2)
        self.smf(VS[1] + 12, S_ + 32 + 24, 1)
        self.stamp("attend")
        a("s_setprio 0")
        a.wait_all(vm=False)
        a("s_barrier")
        tl = a.ds(f"ds_read_b32 v{O2+12}, v{APX} offset:3072")
        tp = [a.ds(f"ds_read_b128 {vr(O2+4*k,4)}, v{APX} offset:{1024*k}") for k in range(3)]
        self.fin_pre()
        a.nop(1)
        a.wait(tl); a(f"v_add_f32 v{O_+12}, v{O_+12}, v{O2+12}")
        for k in range(3):
            a.wait(tp[k])
            for e in range(4): a(f"v_add_f32 v{O_+4*k+e}, v{O_+4*k+e}, v{O2+4*k+e}")
    def att_sync(self, k):
        a = self.a
        if k == 0:
            a.wait_all(vm=True, ds=False, force=True)
            L = a.newlabel("NOF3")
            a(f"s_cmp_ge_u32 s{sLW}, s{sNCH}\ns_cbranch_scc1 {L}")
            a(f"s_lshl_b32 s{T0}, s{sCH}, 2\ns_add_u32 s{T0}, s{T0}, {F3:#x}")
            self.flag_store(T0, 14)
            a.label(L)
            a("s_barrier")
            self.stamp("sync0")
            return self.side_kv(16) + self.side_kv(24)
        if k == 1:
            a.wait_all(vm=True, ds=False, force=True)
            a("s_barrier")
            self.stamp("sync1")
            return self.side_x()
        a("s_barrier")
        self.stamp("sync2")
        self.srd(rA, pWO, 640 * 1280)
        return self.side_yd() + self.side_wo()

    def fin_pre(self):
        self.a(f"""v_lshlrev_b32 v2, 3, v0
        s_mov_b32 s{T2}, {f2u(2.0**-60):#x}
        s_mov_b32 s{T3}, {f2u(2.0**60):#x}
        s_mov_b32 s{T4}, 0x7f7fffff""")
    def finish(self):
        a = self.a
        O, TMP = O_, 16
        ACC, OF, WF, G = 224, 16, 56, 14
        a.label("L_NORM")
        a(f"v_rcp_f32 v{TMP+4}, v{O+12}")
        for e in range(4): a(f"v_add_f32 v{TMP+e}, abs(v{O+e}), abs(v{O+4+e})")
        for e in range(4): a(f"v_add_f32 v{TMP+e}, v{TMP+e}, abs(v{O+8+e})")
        a(f"""v_add_f32 v{TMP}, v{TMP}, v{TMP+1}
        v_add_f32 v{TMP+2}, v{TMP+2}, v{TMP+3}
        v_cmp_le_f32 vcc, s{T2}, v{O+12}
        v_cmp_ge_f32 s[{sM}:{sM+1}], s{T3}, v{O+12}
        v_add_f32 v{TMP}, v{TMP}, v{TMP+2}
        s_nop 0
        s_and_b64 s[{sM}:{sM+1}], s[{sM}:{sM+1}], vcc
        v_cmp_ge_f32 vcc, s{T4}, v{TMP}
        s_nop 1
        s_and_b64 s[{sM}:{sM+1}], s[{sM}:{sM+1}], vcc
        s_cmp_eq_u64 s[{sM}:{sM+1}], exec
        s_cbranch_scc1 L_NORM_OK
        s_cmp_eq_u32 s{sSLOW}, 0
        s_cbranch_scc1 L_SLOW""")
        a.label("L_NORM_OK")
        for e in range(8): a(f"v_mul_f32 v{O+e}, v{O+e}, v{TMP+4}")
        for e in range(4): a(f"v_cvt_pk_bf16_f32 v{TMP+8+e}, v{O+2*e}, v{O+2*e+1}")
        a(f"buffer_store_dwordx4 {vr(TMP+8,4)}, v{L16}, s[{rWS}:{rWS+3}], s{sOMS} offen sc1")
        for e in range(8, 12): a(f"v_mul_f32 v{O+e}, v{O+e}, v{TMP+4}")
        for e in range(4, 6): a(f"v_cvt_pk_bf16_f32 v{TMP+8+e}, v{O+2*e}, v{O+2*e+1}")
        a("s_mov_b32 exec_hi, 0")
        a(f"buffer_store_dwordx2 {vr(TMP+12,2)}, v2, s[{rWS}:{rWS+3}], s{sORS} offen sc1")
        a("s_mov_b32 exec_hi, -1")
        self.srd(rA, pOUT, 2048 * 1280)
        a("s_waitcnt vmcnt(0)\ns_barrier")
        a.reset_counters()
        L = a.newlabel("NOF4")
        a(f"s_cmp_lg_u32 s{sWAVE}, 0\ns_cbranch_scc1 {L}")
        self.flag_store(sF4S, 2)
        a.label(L)
        a.reset_counters()
        self.stamp("F4set")
        tg = a.vm(f"buffer_load_dword v{G}, v{AG}, s[{rWS}:{rWS+3}], 0 offen sc1")
        def wfrag(step, regstep):
            toks = []
            for b in range(5):
                for q in range(2):
                    if step < 8: ad, off = (WM0 if b < 2 else WM1), (40*step + 8*q)*160 + 32*b
                    else: ad, off = (WR0 if b < 2 else WR1), (160*(step-8) + 80*q)*160 + 32*b
                    t = a.ds(f"ds_read_b64_tr_b16 {vr(WF + 20*regstep + 4*b + 2*q, 2)}, v{ad} offset:{L_WO + off}")
                toks.append(t)
            return toks
        tw = {s: wfrag(s, s) for s in range(8)}
        YR, BB = 2, 16
        ty = [a.ds(f"ds_read_b64_tr_b16 {vr(YR+2*b,2)}, v{AYD} offset:{2048*b}") for b in range(3)]
        keep = [216, 217, 218, 219, 220, 221, 222, 223, 2, 3, 4, 5]
        for b in range(3):
            a.wait(ty[b])
            x, y = XE + 2*b, YR + 2*b
            a(f"""v_lshlrev_b32 v16, 16, v{x}
            v_and_b32 v17, 0xffff0000, v{x}
            v_lshlrev_b32 v18, 16, v{x+1}
            v_and_b32 v19, 0xffff0000, v{x+1}
            v_lshlrev_b32 v20, 16, v{y}
            v_and_b32 v21, 0xffff0000, v{y}
            v_lshlrev_b32 v22, 16, v{y+1}
            v_and_b32 v23, 0xffff0000, v{y+1}""")
            for e in range(4): a(f"v_mul_f32 v{keep[4*b+e]}, v{16+e}, v{20+e}")
        L = a.newlabel("NOP4")
        a(f"s_cmp_lg_u32 s{sWAVE}, 0\ns_cbranch_scc1 {L}")
        snap = a.snapshot(); self.mpoll([AF4], 15); a.restore(snap)
        a.label(L)
        a("v_lshrrev_b32 v16, 4, v0\nv_and_b32 v16, 1, v16\nv_mul_u32_u24 v16, 24, v16")
        a(f"v_add_u32 v15, v16, v{AOUT}")
        a("s_barrier")
        self.stamp("F4ok")
        to = {}
        for s in range(8):
            a(f"s_mov_b32 s{T0}, {s*131072}")
            to[s] = a.vm(f"buffer_load_dwordx4 {vr(OF+4*s,4)}, v{AOM}, s[{rWS}:{rWS+3}], s{T0} offen sc1")
        for rs in range(2):
            for q in range(2):
                a(f"s_mov_b32 s{T0}, {(8*rs+4*q)*16384}")
                to[8+rs] = a.vm(f"buffer_load_dwordx2 {vr(OF+32+4*rs+2*q,2)}, v{AOR}, s[{rWS}:{rWS+3}], s{T0} offen sc1")
        for s in range(10):
            rs = s if s < 8 else s - 8
            a.wait(to[s])
            order = range(5) if s < 9 else (2, 3, 4, 0, 1)
            for b in order:
                a.wait(tw[s][b])
                d = ACC + 4*b
                a(f"v_mfma_f32_16x16x32_bf16 {vr(d,4)}, {vr(WF+20*rs+4*b,4)}, {vr(OF+4*s,4)}, {'0' if s == 0 else vr(d,4)}")
            if s < 2: tw[8+s] = wfrag(8 + s, s)
        self.stamp("mfma")
        a.nop(4)
        for b in (2, 3, 4): a.ds(f"ds_write_b128 v{AEX}, {vr(ACC+4*b,4)} offset:{1024*(b-2)}")
        for b in range(3):
            for e in range(4): a(f"v_sub_f32 v{ACC+4*b+e}, v{ACC+4*b+e}, v{keep[4*b+e]}")
        a.wait_all(vm=False)
        a("s_barrier")
        tp = [a.ds(f"ds_read_b128 {vr(16+4*b,4)}, v{AX2} offset:{1024*b}") for b in range(3)]
        a.wait(tg)
        fl = self.o('ost', '').replace('+', ' ')
        for b in range(3):
            if b == 2: a(f"s_cmp_lg_u32 s{sKH}, 0\ns_cbranch_scc1 L_FIN")
            a.wait(tp[b])
            for e in range(4): a(f"v_add_f32 v{16+4*b+e}, v{16+4*b+e}, v{ACC+4*b+e}")
            for e in range(4): a(f"v_fmac_f32 v{keep[4*b+e]}, v{G}, v{16+4*b+e}")
            a(f"v_cvt_pk_bf16_f32 v{32+2*b}, v{keep[4*b]}, v{keep[4*b+1]}\nv_cvt_pk_bf16_f32 v{33+2*b}, v{keep[4*b+2]}, v{keep[4*b+3]}")
            if self.o("o4", 1) and b < 2:
                if b == 1:
                    a("s_nop 1\nv_permlane16_swap_b32 v32, v34\nv_permlane16_swap_b32 v33, v35")
                    a.vm(f"buffer_store_dwordx4 v[32:35], v15, s[{rA}:{rA+3}], 0 offen {fl}")
            else: a.vm(f"buffer_store_dwordx2 {vr(32+2*b,2)}, v{AOUT}, s[{rA}:{rA+3}], 0 offen offset:{32*b} {fl}")
        a.label("L_FIN")
        if self.stamps:
            self.stamp("st")
            a("s_waitcnt vmcnt(0)")
            self.stamp("end")
            a(f"s_lshl_b32 s{T0}, s{sWG}, 3\ns_add_u32 s{T0}, s{T0}, s{sWAVE}\ns_lshl_b32 s{T0}, s{T0}, 8\ns_add_u32 s{T0}, s{T0}, {TS:#x}\nv_lshlrev_b32 v2, 2, v0")
            a(f"buffer_store_dword v1, v2, s[{rWS}:{rWS+3}], s{T0} offen")
            if "enc" in self.opt:
                n0, n1, wv, wg = self.opt["enc"].split(",")
                for n in (n0, n1):
                    if n not in self.names: self.names.append(n)
                a(f"s_cmp_lg_u32 s{sWG}, {wg}\ns_cbranch_scc1 L_END\ns_cmp_lg_u32 s{sWAVE}, {wv}\ns_cbranch_scc1 L_END")
                a(f"v_readlane_b32 s{T1}, v1, {self.names.index(n0)}\nv_readlane_b32 s{T2}, v1, {self.names.index(n1)}\nv_readlane_b32 s{T3}, v1, {self.names.index('end')}\ns_nop 3")
                a(f"s_sub_u32 s{T2}, s{T2}, s{T1}\ns_lshl_b32 s{T2}, s{T2}, 3\ns_and_b32 s{T2}, s{T2}, 0xffff\ns_add_u32 s{T3}, s{T3}, s{T2}")
                a.label("L_ENC")
                a(f"s_memrealtime s[{sTS}:{sTS+1}]\ns_waitcnt lgkmcnt(0)\ns_sub_u32 s{T1}, s{T3}, s{sTS}\ns_cmp_gt_i32 s{T1}, 0\ns_cbranch_scc1 L_ENC")
        a.label("L_END")
        a("s_endpgm")

    def slow(self):
        a = self.a
        S, V, M, AVS = S_, VS[0], 96, 98
        a.label("L_SLOW")
        a(f"""s_mov_b32 s{sSLOW}, 1
        v_and_b32 v{M}, 31, v0
        v_lshrrev_b32 v{AVS}, 5, v0
        v_mul_u32_u24 v{AVS}, 320, v{AVS}
        v_lshl_add_u32 v{AVS}, v{M}, 4, v{AVS}
        v_add_u32 v{AVS}, 2560, v{AVS}
        v_mov_b32 v{M}, 0xff800000""")
        def scores():
            a(f"""buffer_load_dwordx2 {vr(KRM,2)}, v2, s[{rWS}:{rWS+3}], s{T6} offen offset:2048 sc1
            buffer_load_dwordx4 {vr(KM,4)}, v{L16}, s[{rWS}:{rWS+3}], s{T6} offen sc1
            buffer_load_dwordx4 {vr(KM+4,4)}, v{L16}, s[{rWS}:{rWS+3}], s{T6} offen offset:1024 sc1
            s_waitcnt vmcnt(0)""")
            self.m2b(S); a.nop(18); self.mqk(S, 0); self.mqk(S, 1); a.nop(12)
        a(f"s_mov_b32 s{T6}, s{sKVB}\ns_mov_b32 s{sCNT}, 0")
        a.label("L_SLOW1")
        scores()
        for e in range(16): a(f"v_max3_f32 v{M}, v{M}, v{S+2*e}, v{S+2*e+1}")
        a(f"s_add_u32 s{T6}, s{T6}, {KV_US}\ns_add_u32 s{sCNT}, s{sCNT}, 1\ns_cmp_lt_u32 s{sCNT}, 32\ns_cbranch_scc1 L_SLOW1")
        a(f"v_mov_b32 v{M+1}, v{M}\ns_nop 1\nv_permlane32_swap_b32 v{M}, v{M+1}\ns_nop 1\nv_max_f32 v{M}, v{M}, v{M+1}")
        for e in range(16): a(f"v_mov_b32 v{O_+e}, 0")
        a(f"s_mov_b32 s{T6}, s{sKVB}\ns_mov_b32 s{sCNT}, 0")
        a.label("L_SLOW2")
        a(f"s_mov_b64 exec, s[{sVMASK}:{sVMASK+1}]")
        for g in range(4): a(f"buffer_load_dwordx4 {vr(V+4*g,4)}, v{AVS}, s[{rWS}:{rWS+3}], s{T6} offen offset:{640*g} sc1")
        a("s_mov_b64 exec, -1")
        scores()
        for e in range(32): a(f"v_sub_f32 v{S+e}, v{S+e}, v{M}")
        for e in range(32): a(f"v_exp_f32 v{S+e}, v{S+e}")
        a.nop(2)
        for g in range(4): self.smf(V + 4*g, S + 8*g)
        a(f"s_add_u32 s{T6}, s{T6}, {KV_US}\ns_add_u32 s{sCNT}, s{sCNT}, 1\ns_cmp_lt_u32 s{sCNT}, 32\ns_cbranch_scc1 L_SLOW2")
        a.nop(12)
        a("s_branch L_NORM")

    def build(self):
        self.prologue(); self.dma_role(); self.attention(); self.finish(); self.setup_sub(); self.side_role(); self.gemm_compute(); self.slow(); self.a.label('L_CODE_END')
        bad = lint(self.a.lines)
        head = f"""; Fused kernel: QKV projection, depthwise convolutions, attention, output projection and gated mix.
; One persistent workgroup per CU; hand-offs through d_ws flags that every launch clears itself (counted in d_debug).
; @launch grid=(256,1,1) block=(512,1,1) lds={LDS_BYTES}
.amdgcn_target "amdgcn-amd-amdhsa--gfx950"
.text
.globl {NAME}
.p2align 8
.type {NAME},@function
{NAME}:
"""
        tail = f""".section .rodata,"a"
.p2align 6
.amdhsa_kernel {NAME}
  .amdhsa_next_free_vgpr 256
  .amdhsa_next_free_sgpr 102
  .amdhsa_accum_offset 256
  .amdhsa_group_segment_fixed_size 0
  .amdhsa_kernarg_size 104
  .amdhsa_user_sgpr_count 2
  .amdhsa_user_sgpr_kernarg_segment_ptr 1
  .amdhsa_system_sgpr_workgroup_id_x 1
  .amdhsa_float_denorm_mode_32 3
.end_amdhsa_kernel
"""
        return head + self.a.text() + tail, bad

if __name__ == "__main__":
    out = sys.argv[1] if len(sys.argv) > 1 else "gated_mix__mha_block__ssm_conv_h3__prompt.s"
    opt = dict(x[2:].split("=") for x in sys.argv if x.startswith("-D"))
    G = Gen(stamps="--stamps" in sys.argv, opt=opt)
    src, bad = G.build()
    if G.stamps: src = src.replace("; @launch", "; STAMPS " + " ".join(G.names) + "\n; @launch", 1)
    for b in bad: print("LINT:", b)
    open(out, "w").write(src)
    print("wrote", out, len(src), "bytes;", len(bad), "lint findings")
```

```python
import sys, math, struct
from asmlib import *

NAME = "gated_mix__mha_block__ssm_conv_h3__prompt_kernel"
def f2u(x): return struct.unpack("<I", struct.pack("<f", x))[0]

KV, QO, UR, YD, OM, ORM = 0, 0x500000, 0x780000, 0xA00000, 0xC80000, 0xE80000
F2, F4, F3, F5, GT, F1 = 0xF04000, 0xF08000, 0xF0C000, 0xF0D000, 0xF0E000, 0xFA0000
TS = 0xF10000
WS_SIZE = 0x1000000
KV_HS, KV_US = 163840, 5120
Q_HS, Q_US = 81920, 2560
NSLOT = 3
L_X, L_W = 0, 49152
L_Q, L_SIG = 81920, 162048
L_CONV, CONV_SZ, CS, U_OFF = 98304, 21248, 4160, 16640
L_WO, L_YD, L_EX, L_RDY = 0, 102400, 112640, 145408
LDS_BYTES = 163840
sWG, sWAVE = 2, 3
pX, pW, pWO, pWS, pK, pV, pSH, pH, pD, pGW, pOUT, pDBG = 4, 6, 8, 10, 12, 14, 16, 18, 20, 22, 24, 26
rWS, rA, rB, rC, rD = 28, 32, 36, 40, 44
sXCD, sI, sJT, sRT, sPRT, sCJ, sCH0, sNCH, sHEAD, sQB = 48, 49, 50, 51, 52, 53, 54, 55, 56, 57
sLW, sCH, sKH, sTB, sCNT, sSLOW = 58, 59, 60, 61, 62, 63
T0, T1, T2, T3, T4, T5, T6, T7 = 64, 65, 66, 67, 68, 69, 70, 71
sM = 72
sVMASK = 74
sTS = 76
sE = 78
sSC = 86
sKVB, sKVW, sOMS, sORS, sF4S, sCL = 87, 88, 89, 90, 91, 92
sNB, sBC, sU, sK = 93, 94, 78, 96
sM2 = 98
sKVG = 97
sRET = 52
sPI, sNU, sG = 100, 101, 95
POLL_MAX = 30000
IDX, AKM, AKR, AV, L16, AQM, AQR, AF3, YDV = 224, 225, 226, 227, 228, 229, 230, 231, 232
WOV = 233
F3T = 238
ONES, APX, AQM2, AQR2 = 240, 241, 242, 243
QM2, QR2, O2 = 128, 132, 144
WM0, WM1, WR0, WR1, AOM, AOR, AOUT, AG, AEX, AX2, AYD, AF4 = 244, 245, 246, 247, 248, 249, 250, 251, 252, 253, 254, 255
O_, QM, QR, KRM, KM, S_ = 192, 32, 36, 38, 40, 64
VS = (48, 208)
XE = 8

class Gen:
    def __init__(self, stamps=False, opt=None):
        self.a = Asm(); self.stamps = stamps; self.names = []; self.opt = opt or {}
        self.nt = " nt" if int(self.opt.get("nt", 1)) else ""
        self.gnt = " nt" if int(self.opt.get("gnt", 0)) else ""
    def o(self, k, d): return type(d)(self.opt.get(k, d))
    def srd(self, r, p, size):
        self.a(f"s_mov_b32 s{r}, s{p}\ns_mov_b32 s{r+1}, s{p+1}\ns_mov_b32 s{r+2}, {size:#x}\ns_mov_b32 s{r+3}, 0x20000")
    def stamp(self, name):
        if not self.stamps: return
        if name not in self.names: self.names.append(name)
        k = self.names.index(name); assert k < 58
        if name == "start": self.a("s_mov_b32 s99, s76")
        self.a(f"s_memrealtime s[{sTS}:{sTS+1}]\ns_waitcnt lgkmcnt(0)\nv_writelane_b32 v1, s{sTS}, {k}")
        if name in ("l.b5", "l.b9"): self.a(f"s_memtime s[{sTS}:{sTS+1}]\ns_waitcnt lgkmcnt(0)\nv_writelane_b32 v1, s{sTS}, {58 if name == 'l.b5' else 59}")
        if name in ("att0", "attend"): self.a(f"s_memtime s[{sTS}:{sTS+1}]\ns_waitcnt lgkmcnt(0)\nv_writelane_b32 v1, s{sTS}, {60 if name == 'att0' else 61}")
        if name == "start":
            if "entry" not in self.names: self.names.append("entry")
            self.a(f"v_writelane_b32 v1, s99, {self.names.index('entry')}")
        if name == "start": self.a(f"s_memtime s[{sTS}:{sTS+1}]\ns_waitcnt lgkmcnt(0)\nv_writelane_b32 v1, s{sTS}, 62")
        if name == "end": self.a(f"s_memtime s[{sTS}:{sTS+1}]\ns_waitcnt lgkmcnt(0)\nv_writelane_b32 v1, s{sTS}, 63")
        self.a.done["ds"] = self.a.n["ds"]
    def poll(self, loads, tmp, cmp=None):
        a = self.a
        L, D = a.newlabel("POLL"), a.newlabel("POLLD")
        a(f"s_mov_b32 s{sCNT}, 0")
        a.label(L)
        k = 0
        for (va, r, imm, wd) in loads:
            ins = {1: "buffer_load_dword", 2: "buffer_load_dwordx2", 4: "buffer_load_dwordx4"}[wd]
            a(f"{ins} {vr(tmp+k, wd)}, v{va}, s[{r}:{r+3}], 0 offen offset:{imm} sc1"); k += wd
        a("s_waitcnt vmcnt(0)")
        a.done["vm"] = a.n["vm"]
        self.poll_check(tmp, k, cmp)
        a(f"s_cbranch_scc1 {D}")
        a(f"s_add_u32 s{sCNT}, s{sCNT}, 1\ns_cmp_lt_u32 s{sCNT}, {POLL_MAX}\ns_cbranch_scc0 {D}\ns_sleep 1\ns_branch {L}")
        a.label(D)
    def mpoll(self, addrs, tmp, elastic=False):
        a = self.a
        L, D = a.newlabel("MP"), a.newlabel("MPD")
        M = [sM, sM2][:len(addrs)]
        a(f"s_mov_b32 s{sCNT}, 0")
        for m in M: a(f"s_mov_b64 s[{m}:{m+1}], -1")
        a.label(L)
        for k, (va, m) in enumerate(zip(addrs, M)):
            S = a.newlabel("MS")
            a(f"s_mov_b64 exec, s[{m}:{m+1}]\ns_cbranch_execz {S}\nbuffer_load_dword v{tmp+k}, v{va}, s[{rWS}:{rWS+3}], 0 offen sc1")
            a.label(S)
        a("s_mov_b64 exec, -1")
        if elastic: self.ewait()
        else: a("s_waitcnt vmcnt(0)")
        a.done["vm"] = a.n["vm"]
        for k, m in enumerate(M):
            a(f"v_cmp_eq_u32 vcc, 0, v{tmp+k}\ns_nop 1\ns_and_b64 s[{m}:{m+1}], s[{m}:{m+1}], vcc")
        if len(M) == 2: a(f"s_or_b64 vcc, s[{sM}:{sM+1}], s[{sM2}:{sM2+1}]")
        a(f"s_cbranch_scc0 {D}")
        a(f"s_add_u32 s{sCNT}, s{sCNT}, 1\ns_cmp_lt_u32 s{sCNT}, {POLL_MAX}\ns_cbranch_scc0 {D}\ns_sleep {self.o('psleep', 4)}\ns_branch {L}")
        a.label(D)
    def last_flag(self, off, sN, sAddr, vt, base=L_SIG):
        a = self.a
        L = a.newlabel("NL")
        a(f"""v_mov_b32 v{vt}, {base}
        v_mov_b32 v{vt+1}, 1
        s_mov_b64 exec, 1
        ds_add_rtn_u32 v{vt+1}, v{vt}, v{vt+1} offset:{off}
        s_waitcnt lgkmcnt(0)
        v_readfirstlane_b32 s{T0}, v{vt+1}
        s_mov_b64 exec, -1
        s_add_u32 s{T0}, s{T0}, 1
        s_cmp_lg_u32 s{T0}, {sN}
        s_cbranch_scc1 {L}""")
        self.flag_store(sAddr, vt, two=True)
        a.label(L)
    def poll_check(self, tmp, k, cmp=None):
        a = self.a
        for j in range(1, k, 2):
            if j + 1 < k: a(f"v_min3_u32 v{tmp}, v{tmp}, v{tmp+j}, v{tmp+j+1}")
            else: a(f"v_min_u32 v{tmp}, v{tmp}, v{tmp+j}")
        a(cmp or f"v_cmp_ne_u32 vcc, 0, v{tmp}")
        a("s_nop 1\ns_cmp_eq_u64 vcc, exec")
    def flag_store(self, s, vt, two=False):
        a = self.a
        a(f"v_lshl_add_u32 v{vt}, v0, 2, s{s}\nv_mov_b32 v{vt+1}, 1\ns_mov_b64 exec, {3 if two else 1}")
        t = a.vm(f"buffer_store_dword v{vt+1}, v{vt}, s[{rWS}:{rWS+3}], 0 offen sc1")
        a("s_mov_b64 exec, -1")
        return t

    def prologue(self):
        a = self.a
        if self.stamps: a("s_memrealtime s[76:77]")
        a(f"s_cmp_ge_u32 s{sWG}, 256\ns_cbranch_scc1 L_END")
        if self.opt.get("diag") == "spin":
            a("s_mov_b32 s60, 2500\nv_mov_b32 v10, 0")
            a.label("L_DSPIN")
            for e in range(8): a(f"v_exp_f32 v{11+e}, v10")
            a("s_sub_u32 s60, s60, 1\ns_cmp_lg_u32 s60, 0\ns_cbranch_scc1 L_DSPIN")
        if self.opt.get("diag") == "chain":
            a("s_load_dwordx2 s[32:33], s[0:1], 24\ns_waitcnt lgkmcnt(0)\ns_mov_b32 s34, 2621440\ns_mov_b32 s35, 0x20000\ns_mul_i32 s60, s2, 256\nv_mov_b32 v10, s60")
            for e in range(32): a("buffer_load_dword v12, v10, s[32:35], 0 offen\ns_waitcnt vmcnt(0)\nv_and_b32 v12, 0, v12\nv_add_u32 v10, v10, v12\nv_add_u32 v10, 0x13000, v10")
        if self.opt.get("diag") == "bq":
            a("s_load_dwordx2 s[32:33], s[0:1], 24\ns_waitcnt lgkmcnt(0)\ns_mov_b32 s34, 2621440\ns_mov_b32 s35, 0x20000\nv_lshlrev_b32 v10, 4, v0\ns_mul_i32 s60, s2, 10240")
            a("buffer_load_dwordx4 v[12:15], v10, s[32:35], s60 offen\ns_add_u32 s60, s60, 2048\nbuffer_load_dwordx4 v[16:19], v10, s[32:35], s60 offen\ns_waitcnt vmcnt(0)")
        a(f"""s_load_dwordx4 s[4:7], s[0:1], 0
        s_load_dwordx16 s[12:27], s[0:1], 32
        s_load_dwordx2 s[10:11], s[0:1], 96
        s_load_dwordx2 s[8:9], s[0:1], 16
        v_lshrrev_b32 v1, 6, v0
        v_and_b32 v0, 63, v0
        s_and_b32 s{sXCD}, s{sWG}, 7
        v_readfirstlane_b32 s{sWAVE}, v1
        s_lshr_b32 s{sI}, s{sWG}, 3
        s_and_b32 s{T0}, s{sXCD}, 1
        s_mul_i32 s{T0}, s{T0}, 30
        s_add_u32 s{T0}, s{T0}, s{sI}
        s_lshr_b32 s{sJT}, s{T0}, 2
        s_and_b32 s{T0}, s{T0}, 3
        s_lshr_b32 s{T1}, s{sXCD}, 1
        s_lshl_b32 s{T1}, s{T1}, 2
        s_add_u32 s{sRT}, s{T0}, s{T1}
        s_sub_u32 s{sLW}, s{sWAVE}, 4
        s_mul_i32 s{T0}, s{sXCD}, 30
        s_add_u32 s{sPI}, s{T0}, s{sI}
        s_mul_i32 s{sG}, s{sPI}, 171
        s_lshr_b32 s{sG}, s{sG}, 9
        s_mul_i32 s{T1}, s{sG}, 3
        s_sub_u32 s{T1}, s{sPI}, s{T1}
        s_lshl_b32 s{T2}, s{sG}, 3
        s_mul_i32 s{T3}, s{T1}, 3
        s_add_u32 s{sCH0}, s{T2}, s{T3}
        s_lshr_b32 s{T1}, s{T1}, 1
        s_sub_u32 s{sNCH}, 3, s{T1}
        s_lshl_b32 s{T0}, s{sXCD}, 1
        s_add_u32 s{T0}, s{T0}, s{sI}
        s_add_u32 s{T0}, s{T0}, 210
        s_cmp_ge_u32 s{sI}, 30
        s_cselect_b32 s{sPI}, s{T0}, s{sPI}
        s_cselect_b32 s{sNCH}, 0, s{sNCH}
        s_cselect_b32 s{sNU}, 8, 2""")
        if self.o("cpf", 1) == 2: self.code_prefetch()
        a(f"""s_cmp_lt_u32 s{sWAVE}, 4
        s_cbranch_scc1 L_COMPUTE
        s_cmp_gt_u32 s{sWAVE}, 4
        s_cbranch_scc1 L_SIDE""")
    def code_prefetch(self):
        a = self.a
        L = a.newlabel("NOPF")
        a(f"""s_cmp_lg_u32 s{sWAVE}, 1
        s_cbranch_scc1 {L}
        s_getpc_b64 s[{T2}:{T3}]
        L_PC:
        s_sub_u32 s{T2}, s{T2}, L_PC-{NAME}
        s_subb_u32 s{T3}, s{T3}, 0
        s_and_b32 s{T0}, s{sI}, 7
        s_lshl_b32 s{T0}, s{T0}, 13
        v_lshl_add_u32 v10, v0, 7, s{T0}
        v_min_u32 v10, L_CODE_END-{NAME}-4, v10
        global_load_dword v31, v10, s[{T2}:{T3}]""")
        a.label(L)
    def common_scalars(self):
        self.a(f"""s_cmp_ge_u32 s{sI}, 30
        s_cselect_b32 s{sNB}, 1, 10
        s_mov_b32 s{sBC}, 0
        s_lshr_b32 s{T0}, s{sI}, 3
        s_lshl_b32 s{T1}, s{sXCD}, 2
        s_add_u32 s{sHEAD}, s{T0}, s{T1}
        s_and_b32 s{sQB}, s{sI}, 7
        s_lshr_b32 s{sKH}, s{sWAVE}, 2
        s_and_b32 s{sTB}, s{sWAVE}, 3
        s_mov_b32 s{sSLOW}, 0
        s_mov_b32 s{sVMASK}, 0x000fffff
        s_mov_b32 s{sVMASK+1}, 0x000fffff""")
    def setup_call(self):
        if self.o("sub", 1): self.a(f"s_call_b64 s[{sRET}:{sRET+1}], L_SETUP")
        else: self.common_scalars(); self.persistent()
    def setup_sub(self):
        if not self.o("sub", 1): return
        self.a.label("L_SETUP")
        self.common_scalars(); self.persistent()
        self.a(f"s_setpc_b64 s[{sRET}:{sRET+1}]")
    def persistent(self, t=192):
        a = self.a
        a(f"""s_mov_b32 s{sM}, 0x11000000
        s_mov_b32 s{sM+1}, 0x11000000
        v_mov_b32 v{t}, 0x3f803f80
        v_cndmask_b32 v{ONES}, 0, v{t}, s[{sM}:{sM+1}]""")
        a(f"""v_mov_b32 v{IDX}, 0xdddddddd
        v_lshlrev_b32 v{AKM}, 4, v0
        v_lshlrev_b32 v{L16}, 4, v0
        v_lshlrev_b32 v{t}, 3, v0
        v_add_u32 v{AKR}, 2048, v{t}
        v_and_b32 v{t+1}, 31, v0
        v_lshrrev_b32 v{t+2}, 5, v0
        v_mul_u32_u24 v{t+2}, 320, v{t+2}
        v_lshl_add_u32 v{t+2}, v{t+1}, 4, v{t+2}
        v_add_u32 v{AV}, 2560, v{t+2}
        s_mul_i32 s{T0}, s{sKH}, {KV_US}
        v_add_u32 v{AKM}, s{T0}, v{AKM}
        v_add_u32 v{AKR}, s{T0}, v{AKR}
        v_add_u32 v{AV}, s{T0}, v{AV}
        s_mul_i32 s{T0}, s{sTB}, {Q_US}
        s_add_u32 s{T0}, s{T0}, {L_Q}
        s_lshl_b32 s{T2}, s{sKH}, 10
        s_add_u32 s{T2}, s{T2}, s{T0}
        v_add_u32 v{AQM}, s{T2}, v{L16}
        s_lshl_b32 s{T1}, s{sKH}, 8
        s_add_u32 s{T1}, s{T1}, s{T0}
        v_lshl_add_u32 v{AQR}, v{t+1}, 3, s{T1}
        s_xor_b32 s{T3}, s{sKH}, 1
        s_lshl_b32 s{T2}, s{T3}, 10
        s_add_u32 s{T2}, s{T2}, s{T0}
        v_add_u32 v{AQM2}, s{T2}, v{L16}
        s_lshl_b32 s{T1}, s{T3}, 8
        s_add_u32 s{T1}, s{T1}, s{T0}
        v_lshl_add_u32 v{AQR2}, v{t+1}, 3, s{T1}
        s_mul_i32 s{sKVB}, s{sHEAD}, {KV_HS}
        s_mul_i32 s{sKVW}, s{sWAVE}, {KV_US}
        s_add_u32 s{sKVG}, s{sKVW}, s{sKVB}
        s_lshl_b32 s{T0}, s{sHEAD}, 16
        s_lshl_b32 s{T1}, s{sQB}, 2
        s_add_u32 s{T1}, s{T1}, s{sTB}
        s_lshl_b32 s{T1}, s{T1}, 1
        s_add_u32 s{T1}, s{T1}, s{sKH}
        s_lshl_b32 s{T2}, s{T1}, 10
        s_add_u32 s{T0}, s{T0}, s{T2}
        s_add_u32 s{sOMS}, s{T0}, {OM:#x}
        s_lshl_b32 s{T2}, s{sHEAD}, 14
        s_lshl_b32 s{T1}, s{T1}, 8
        s_add_u32 s{T1}, s{T1}, s{T2}
        s_add_u32 s{sORS}, s{T1}, {ORM:#x}
        s_lshl_b32 s{T0}, s{sQB}, 11
        s_lshl_b32 s{T1}, s{sHEAD}, 6
        s_add_u32 s{T0}, s{T0}, s{T1}
        s_add_u32 s{sF4S}, s{T0}, {F4:#x}""")
        a(f"""s_mul_i32 s{T0}, s{sQB}, 320
        s_add_u32 s{T0}, s{T0}, {F3:#x}
        v_lshl_add_u32 v{AF3}, v0, 3, s{T0}
        s_lshr_b32 s{T0}, s{sHEAD}, 1
        s_lshl_b32 s{T0}, s{T0}, 6
        s_add_u32 s{T0}, s{T0}, {F5:#x}
        v_mov_b32 v{t}, s{T0}
        s_mov_b32 s{sM}, 0
        s_mov_b32 s{sM+1}, 0xffffff00
        v_cndmask_b32 v{AF3}, v{AF3}, v{t}, s[{sM}:{sM+1}]""")
        a(f"s_mul_i32 s{T0}, s{sWAVE}, {13*64}\ns_mul_i32 s{T1}, s{sQB}, 160")
        for k in range(5):
            a(f"""s_add_u32 s{T2}, s{T0}, {64*k}
            v_add_u32 v{t}, s{T2}, v0
            v_mul_u32_u24 v{t+1}, 52429, v{t}
            v_lshrrev_b32 v{t+1}, 19, v{t+1}
            v_mul_u32_u24 v{t+1}, {1280-160}, v{t+1}
            v_lshl_add_u32 v{t+1}, v{t}, 4, v{t+1}
            v_add_u32 v{WOV+k}, s{T1}, v{t+1}""")
        a(f"""s_mul_i32 s{T0}, s{sQB}, 80
        s_mul_i32 s{T1}, s{sWAVE}, 10
        s_add_u32 s{T0}, s{T0}, s{T1}
        v_lshrrev_b32 v{t}, 3, v0
        v_add_u32 v{t}, s{T0}, v{t}
        v_lshlrev_b32 v{t}, 12, v{t}
        v_and_b32 v{t+1}, 7, v0
        v_lshl_add_u32 v{t}, v{t+1}, 4, v{t}
        s_lshl_b32 s{T0}, s{sHEAD}, 7
        s_add_u32 s{T0}, s{T0}, {YD:#x}
        v_add_u32 v{YDV}, s{T0}, v{t}""")
        q, r, c8, tt, b0 = t, t + 1, t + 2, t + 3, t + 4
        a(f"""v_lshrrev_b32 v{q}, 4, v0
        v_lshrrev_b32 v{r}, 2, v0
        v_and_b32 v{r}, 3, v{r}
        v_and_b32 v{c8}, 3, v0
        v_lshlrev_b32 v{c8}, 3, v{c8}
        v_and_b32 v{tt}, 15, v0
        v_and_b32 v{b0}, 1, v{q}
        s_mul_i32 s{T2}, s{sKH}, {51200 + 96}
        s_mul_i32 s{T3}, s{sKH}, {51200 - 64}
        v_lshrrev_b32 v{t+5}, 1, v{q}
        v_mul_u32_u24 v{t+5}, 20, v{t+5}
        v_lshl_add_u32 v{t+5}, v{b0}, 2, v{t+5}
        v_add_u32 v{t+5}, v{t+5}, v{r}
        v_mul_u32_u24 v{t+5}, 160, v{t+5}
        v_add_u32 v{t+5}, v{t+5}, v{c8}
        v_add_u32 v{WM0}, s{T2}, v{t+5}
        v_add_u32 v{WM1}, s{T3}, v{t+5}
        v_mul_u32_u24 v{t+5}, 20, v{q}
        v_add3_u32 v{t+5}, v{t+5}, v{r}, 16
        v_mul_u32_u24 v{t+5}, 160, v{t+5}
        v_add_u32 v{t+5}, v{t+5}, v{c8}
        v_add_u32 v{WR0}, s{T2}, v{t+5}
        v_add_u32 v{WR1}, s{T3}, v{t+5}
        s_lshl_b32 s{T2}, s{sKH}, 20
        s_lshl_b32 s{T3}, s{sHEAD}, 11
        s_add_u32 s{T2}, s{T2}, s{T3}
        s_lshr_b32 s{T3}, s{sTB}, 1
        s_lshl_b32 s{T4}, s{T3}, 10
        s_add_u32 s{T2}, s{T2}, s{T4}
        s_and_b32 s{T4}, s{sTB}, 1
        s_lshl_b32 s{T4}, s{T4}, 8
        s_add_u32 s{T2}, s{T2}, s{T4}
        s_add_u32 s{T2}, s{T2}, {OM:#x}
        v_lshrrev_b32 v{t+5}, 1, v{q}
        v_lshlrev_b32 v{t+5}, 16, v{t+5}
        v_lshl_add_u32 v{t+5}, v{b0}, 9, v{t+5}
        v_lshl_add_u32 v{t+5}, v{tt}, 4, v{t+5}
        v_add_u32 v{AOM}, s{T2}, v{t+5}
        s_lshl_b32 s{T2}, s{sKH}, 18
        s_lshl_b32 s{T4}, s{sHEAD}, 9
        s_add_u32 s{T2}, s{T2}, s{T4}
        s_lshl_b32 s{T4}, s{sTB}, 7
        s_add_u32 s{T2}, s{T2}, s{T4}
        s_add_u32 s{T2}, s{T2}, {ORM:#x}
        v_lshlrev_b32 v{t+5}, 14, v{q}
        v_lshl_add_u32 v{t+5}, v{tt}, 3, v{t+5}
        v_add_u32 v{AOR}, s{T2}, v{t+5}
        s_lshr_b32 s{T2}, s{sHEAD}, 2
        s_lshl_b32 s{T2}, s{T2}, 11
        s_add_u32 s{T2}, s{T2}, {F4:#x}
        s_lshl_b32 s{T3}, s{sKH}, 10
        s_add_u32 s{T2}, s{T2}, s{T3}
        v_lshl_add_u32 v{AF4}, v{tt}, 6, s{T2}
        s_lshl_b32 s{T0}, s{sHEAD}, 6
        s_lshl_b32 s{T1}, s{sTB}, 4
        s_add_u32 s{T0}, s{T0}, s{T1}
        v_add_u32 v{t+5}, s{T0}, v{tt}
        v_lshlrev_b32 v{AG}, 2, v{t+5}
        v_add_u32 v{AG}, {GT:#x}, v{AG}
        v_mul_u32_u24 v{t+5}, 1280, v{t+5}
        v_lshl_add_u32 v{t+5}, v{q}, 3, v{t+5}
        s_mul_i32 s{T0}, s{sQB}, 160
        s_mul_i32 s{T1}, s{sKH}, 96
        s_add_u32 s{T0}, s{T0}, s{T1}
        v_add_u32 v{AOUT}, s{T0}, v{t+5}
        s_lshl_b32 s{T0}, s{sWAVE}, 12
        s_add_u32 s{T0}, s{T0}, {L_EX}
        v_add_u32 v{AEX}, s{T0}, v{L16}
        s_xor_b32 s{T0}, s{sWAVE}, 4
        s_lshl_b32 s{T0}, s{T0}, 12
        s_add_u32 s{T1}, s{T0}, {L_EX}
        v_add_u32 v{APX}, s{T1}, v{L16}
        s_lshl_b32 s{T1}, s{sKH}, 10
        s_add_u32 s{T1}, s{T1}, s{T0}
        s_add_u32 s{T1}, s{T1}, {L_EX}
        v_add_u32 v{AX2}, s{T1}, v{L16}
        v_lshl_add_u32 v{AYD}, v{q}, 2, v{r}
        v_lshl_add_u32 v{AYD}, v{AYD}, 7, v{c8}
        s_mul_i32 s{T0}, s{sKH}, {48*128}
        s_lshl_b32 s{T1}, s{sTB}, 5
        s_add_u32 s{T0}, s{T0}, s{T1}
        s_add_u32 s{T0}, s{T0}, {L_YD}
        v_add_u32 v{AYD}, s{T0}, v{AYD}""")
    def att_init_list(self):
        if self.o("ones", 2) == 12:
            return [f"v_mov_b32 v{O_+e}, 0" for e in range(16)] + [f"v_mov_b32 v{st+e}, 0x3f803f80" for st in VS for e in range(16)]
        return [f"v_mov_b32 v{O_+e}, 0" for e in range(16)] + [f"v_mov_b32 v{st+e}, v{ONES}" for st in VS for e in range(16)]

    def flag_reset(self):
        a = self.a
        L = a.newlabel("NOZ")
        a(f"s_cmp_lg_u32 s{sWAVE}, 0\ns_cbranch_scc1 {L}")
        a(f"""s_lshl_b32 s{T0}, s{sPI}, 6
        s_add_u32 s{T0}, s{T0}, {F1:#x}
        v_mov_b32 v12, s{T0}
        v_and_b32 v10, 3, v0
        v_lshlrev_b32 v11, 2, v10
        v_add_u32 v13, s{sCL}, v11
        s_mov_b32 s{sM}, 0xf
        s_mov_b32 s{sM+1}, 0
        v_cndmask_b32 v12, v12, v13, s[{sM}:{sM+1}]
        s_lshl_b32 s{T0}, s{sCH0}, 2
        s_add_u32 s{T0}, s{T0}, {F3:#x}
        v_add_u32 v13, s{T0}, v11
        s_lshl_b32 s{sM}, 16, s{sNCH}
        s_sub_u32 s{sM}, s{sM}, 16
        v_cndmask_b32 v12, v12, v13, s[{sM}:{sM+1}]
        s_lshl_b32 s{T0}, s{sQB}, 11
        s_lshl_b32 s{T1}, s{sHEAD}, 6
        s_add_u32 s{T0}, s{T0}, s{T1}
        s_add_u32 s{T0}, s{T0}, {F4:#x}
        v_mov_b32 v13, s{T0}
        s_mov_b32 s{sM}, 0x100
        v_cndmask_b32 v12, v12, v13, s[{sM}:{sM+1}]
        s_lshl_b32 s{T0}, s{sG}, 6
        s_add_u32 s{T0}, s{T0}, {F1 + 256*64:#x}
        v_mov_b32 v13, s{T0}
        s_cmp_lt_u32 s{sG}, 32
        s_cselect_b32 s{T1}, s{sNCH}, 0
        s_cmp_eq_u32 s{T1}, 2
        s_cselect_b32 s{sM}, 0x200, 0
        v_cndmask_b32 v12, v12, v13, s[{sM}:{sM+1}]
        v_mov_b32 v13, 0
        s_mov_b32 exec_lo, 0x3ff
        s_mov_b32 exec_hi, 0
        buffer_store_dword v13, v12, s[{rWS}:{rWS+3}], 0 offen sc1
        s_mov_b64 exec, 1""")
        self.srd(rA, pDBG, 256)
        a(f"""s_and_b32 s{T0}, s{sWG}, 1
        s_lshl_b32 s{T0}, s{T0}, 7
        v_mov_b32 v12, s{T0}
        v_mov_b32 v13, 1
        s_waitcnt vmcnt(0)
        buffer_atomic_add v13, v12, s[{rA}:{rA+3}], 0 offen sc1
        s_mov_b64 exec, -1""")
        a.label(L)

    XA, WA, XA2, WA2, EA = 2, 6, 128, 132, 136
    def gemm_compute(self):
        a = self.a
        XA, WA = self.XA, self.WA
        a.label("L_COMPUTE")
        if self.o("cpf", 1) == 1: self.code_prefetch()
        self.common_scalars()
        a(f"""s_lshl_b32 s{T0}, s{sJT}, 10
        s_lshl_b32 s{T1}, s{sRT}, 6
        s_add_u32 s{T0}, s{T0}, s{T1}
        s_add_u32 s{sCL}, s{T0}, {F2:#x}
        s_lshl_b32 s{T0}, s{sXCD}, 1
        s_add_u32 s{T0}, s{T0}, s{sI}
        s_sub_u32 s{T7}, s{T0}, 30
        s_lshl_b32 s{T0}, s{T7}, 6
        s_add_u32 s{T0}, s{T0}, {F5:#x}
        s_cmp_ge_u32 s{sI}, 30
        s_cselect_b32 s{sCL}, s{T0}, s{sCL}
        s_waitcnt lgkmcnt(0)""")
        self.srd(rWS, pWS, WS_SIZE)
        if self.stamps: a("v_mov_b32 v1, 0")
        self.stamp("start")
        self.flag_reset()
        self.setup_call()
        for l in self.att_init_list():
            if int(l.split()[1][1:-1]) >= 192: a(l)
        a(f"s_cmp_eq_u32 s{sWAVE}, 0\ns_cbranch_scc1 L_C_NW\ns_waitcnt vmcnt(0)")
        a.label("L_C_NW")
        a(f"s_cmp_ge_u32 s{sI}, 30\ns_cbranch_scc1 L_C_NOTILE")
        a(f"""s_and_b32 s{T0}, s{sWAVE}, 1
        s_lshl_b32 s{T0}, s{T0}, 13
        v_and_b32 v8, 31, v0
        v_lshrrev_b32 v9, 5, v0
        v_lshrrev_b32 v10, 1, v8
        v_and_b32 v10, 7, v10
        v_xor_b32 v10, v10, v9
        v_lshlrev_b32 v8, 7, v8
        v_add_u32 v8, s{T0}, v8""")
        for ks in range(4):
            a(f"v_xor_b32 v11, {2*ks}, v10\nv_lshl_add_u32 v{XA+ks}, v11, 4, v8")
        a(f"""v_lshrrev_b32 v8, 2, v0
        v_and_b32 v8, 3, v8
        v_lshrrev_b32 v9, 5, v0
        v_lshl_add_u32 v9, v9, 3, v8
        v_lshlrev_b32 v9, 8, v9
        v_lshrrev_b32 v10, 4, v0
        v_and_b32 v10, 1, v10
        v_lshlrev_b32 v10, 1, v10
        v_lshrrev_b32 v11, 1, v0
        v_and_b32 v11, 1, v11
        v_or_b32 v10, v10, v11
        v_and_b32 v11, 1, v0
        v_lshlrev_b32 v11, 3, v11
        v_add_u32 v9, v9, v11
        v_add_u32 v9, {L_W}, v9
        s_and_b32 s{T0}, s{sWAVE}, 2""")
        for i in range(2):
            a(f"""s_add_u32 s{T1}, s{T0}, {i}
            v_xor_b32 v11, s{T1}, v8
            v_lshl_add_u32 v11, v11, 2, v10
            v_lshl_add_u32 v{WA+i}, v11, 4, v9""")
        def lowinit():
            for l in self.att_init_list():
                if int(l.split()[1][1:-1]) < 192: a(l)
        a(f"s_setprio {self.o('gprio', 3)}")
        a(f"s_cmp_ge_u32 s{sJT}, 10\ns_cbranch_scc1 L_C_VTILE")
        self.epi_qk_setup()
        self.gemm_loop(False, self.gemm_epi_qk, lowinit)
        a("s_branch L_C_FLAG")
        a.label("L_C_NOTILE")
        a(f"s_call_b64 s[{sRET}:{sRET+1}], L_SPARE")
        self.stamp("g.pre")
        self.sig_wait(8, 8)
        self.stamp("g.go")
        self.gate()
        lowinit()
        a("s_branch L_C_FLAG")
        a.label("L_C_VTILE")
        self.epi_v_setup()
        self.gemm_loop(True, self.gemm_epi_v, lowinit)
        a.label("L_C_FLAG")
        a.reset_counters()
        self.stamp("c.epi")
        L = a.newlabel("KVW")
        a(f"s_cmp_eq_u32 s{sWAVE}, 3\ns_cbranch_scc1 {L}")
        a("s_waitcnt vmcnt(0)")
        self.last_flag(12, 4, sCL, 2)
        self.stamp("c.F2set")
        a("s_branch L_ATT")
        a.label(L)
        self.kv_fetch_setup()
        a(f"buffer_load_dword v29, v28, s[{rC}:{rC+3}], 0 offen sc1")
        a("s_waitcnt vmcnt(0)")
        self.last_flag(12, 4, sCL, 2)
        self.kv_fetch()
        a("s_branch L_ATT")

    def gate(self):
        a = self.a
        a.reset_counters()
        X, W, Z = 32, 12, 2
        self.srd(rA, pX, 2048 * 1280); self.srd(rB, pGW, 1280)
        a(f"""s_lshl_b32 s{T0}, s{T7}, 7
        s_lshl_b32 s{T1}, s{sWAVE}, 5
        s_add_u32 s{T6}, s{T0}, s{T1}
        v_lshrrev_b32 v10, 4, v0
        v_add_u32 v11, s{T6}, v10
        v_mul_u32_u24 v11, 1280, v11
        v_and_b32 v2, 15, v0
        v_lshlrev_b32 v3, 4, v2
        v_add_u32 v11, v11, v3""")
        for j in range(5): tw = a.vm(f"buffer_load_dwordx4 {vr(W+4*j,4)}, v3, s[{rB}:{rB+3}], 0 offen offset:{256*j}")
        tx = []
        for g in range(8):
            a(f"s_mov_b32 s{T0}, {5120*g}")
            for j in range(5): t = a.vm(f"buffer_load_dwordx4 {vr(X+20*g+4*j,4)}, v11, s[{rA}:{rA+3}], s{T0} offen offset:{256*j}")
            tx.append(t)
        a(f"""v_lshl_add_u32 v10, v2, 2, v10
        v_add_u32 v10, s{T6}, v10
        v_lshlrev_b32 v10, 2, v10
        v_add_u32 v10, {GT:#x}, v10
        v_mov_b32 v11, v2""")
        for g in range(8):
            a.wait(tw, tx[g])
            for e in range(20):
                a(f"v_dot2_f32_bf16 v{Z+g}, v{X+20*g+e}, v{W+e}, {'0' if e == 0 else f'v{Z+g}'}")
        a.nop(3)
        for sh in (8, 4, 2, 1):
            for g in range(8): a(f"v_add_f32_dpp v{Z+g}, v{Z+g}, v{Z+g} row_ror:{sh} row_mask:0xf bank_mask:0xf")
        for g in range(1, 8):
            a(f"v_cmp_eq_u32 vcc, {g}, v11\ns_nop 1\nv_cndmask_b32 v{Z}, v{Z}, v{Z+g}, vcc")
        a(f"""v_mul_f32 v{Z}, {f2u(-math.log2(math.e)):#x}, v{Z}
        v_exp_f32 v{Z}, v{Z}
        s_mov_b32 exec_lo, 0x00ff00ff
        v_add_f32 v{Z}, 1.0, v{Z}
        v_rcp_f32 v{Z}, v{Z}
        s_mov_b32 exec_hi, 0x00ff00ff
        buffer_store_dword v{Z}, v10, s[{rWS}:{rWS+3}], 0 offen sc1
        s_mov_b64 exec, -1""")

    def gemm_loop(self, vt, epi, fill):
        a = self.a
        a.reset_counters()
        FR, ACC = 32, 64
        def reads(s, ks):
            st = FR + 16 * (ks & 1); sl = s % NSLOT
            xa, wa, sl = (self.XA, self.WA, sl * 16384) if sl < 4 else (self.XA2, self.WA2, 0)
            rx = lambda j: (lambda: a.ds(f"ds_read_b128 {vr(st+4*j,4)}, v{xa+ks} offset:{sl + 4096*j}"))
            rw = lambda i, q: (lambda: a.ds(f"ds_read_b64_tr_b16 {vr(st+8+4*i+2*q,2)}, v{wa+i} offset:{sl + (16*ks+4*q)*256}"))
            if vt: return [("X0", rx(0)), ("W0", rw(0,0)), ("W0", rw(0,1)), ("W1", rw(1,0)), ("W1", rw(1,1)), ("X1", rx(1))]
            return [("W0", rw(0,0)), ("W0", rw(0,1)), ("X0", rx(0)), ("X1", rx(1)), ("W1", rw(1,0)), ("W1", rw(1,1))]
        def group(ks, toks, nxt, first):
            st = FR + 16 * (ks & 1); out = {}
            sched = [int(x) for x in self.o('gs', '3300')]; k = 0
            for m, (i, j) in enumerate(((0,0),(0,1),(1,0),(1,1))):
                if vt: A, B, na, nb = st + 4*i, st + 8 + 4*j, f"X{i}", f"W{j}"
                else:  A, B, na, nb = st + 8 + 4*i, st + 4*j, f"W{i}", f"X{j}"
                a.wait(toks[na], toks[nb])
                d = ACC + 16 * (2*i + j)
                a(f"v_mfma_f32_32x32x16_bf16 {vr(d,16)}, {vr(A,4)}, {vr(B,4)}, {'0' if first else vr(d,16)}")
                for _ in range(sched[m]):
                    if k < len(nxt): out[nxt[k][0]] = nxt[k][1](); k += 1
            return out
        a("s_barrier")
        toks = {}
        for n, f in reads(0, 0): toks[n] = f()
        for s in range(9):
            for ks in range(4):
                if ks < 3:
                    toks = group(ks, toks, reads(s, ks + 1), s == 0 and ks == 0)
                else:
                    a.wait_all(vm=False); a("s_barrier")
                    if s < 8: toks = group(ks, toks, reads(s + 1, 0), False)
        sets = (FR, 152, 168, 8)
        T = {}
        def rd(ks, nm):
            st = sets[ks]; sl = (9 % NSLOT) * 16384; k = int(nm[1])
            if nm[0] == "X": T[ks, nm] = a.ds(f"ds_read_b128 {vr(st+4*k,4)}, v{self.XA+ks} offset:{sl + 4096*k}")
            else:
                for q in range(2): T[ks, nm] = a.ds(f"ds_read_b64_tr_b16 {vr(st+8+4*k+2*q,2)}, v{self.WA+k} offset:{sl + (16*ks+4*q)*256}")
        na, nb = ("X", "W") if vt else ("W", "X")
        first = [(lambda ks=ks, nm=nm: rd(ks, nm)) for ks in range(4) for nm in (na + "0", nb + "0")]
        later = [(lambda ks=ks: rd(ks, nb + "1")) for ks in range(4)] + [(lambda ks=ks: rd(ks, na + "1")) for ks in range(4)]
        group(3, toks, [(f"f{i}", f) for i, f in enumerate(first[:6])], False)
        for f in first[6:]: f()
        off = lambda nm: 4 * int(nm[1]) + (0 if nm[0] == "X" else 8)
        pend = []
        for bi, (i, j) in enumerate(((0,0),(0,1),(1,0),(1,1))):
            d = ACC + 16 * (2*i + j)
            for ks in range(4):
                a.wait(T[ks, f"{na}{i}"], T[ks, f"{nb}{j}"])
                a(f"v_mfma_f32_32x32x16_bf16 {vr(d,16)}, {vr(sets[ks]+off(f'{na}{i}'),4)}, {vr(sets[ks]+off(f'{nb}{j}'),4)}, {vr(d,16)}")
                if bi < 2 and later: later.pop(0)()
                if bi >= 2:
                    n = -(-len(pend) // (4 - ks + (4 if bi == 2 else 0)))
                    for _ in range(min(n, 9)): pend.pop(0)()
            if bi == 1: pend += epi(0, 0)
            if bi == 1: pend += epi(0, 1)
            if bi == 2: last = epi(1, 0)
        for f in pend: f()
        for f in last: f()
        for f in epi(1, 1): f()
        fill()

    def epi_qk_setup(self):
        a = self.a
        sBASE, sHS, sPQ = T0, T1, T3
        a(f"""s_mov_b32 s{sHS}, {Q_HS}
        s_mov_b32 s{T4}, {Q_US}
        s_cmp_ge_u32 s{sJT}, 5
        s_cselect_b32 s{sHS}, {KV_HS}, s{sHS}
        s_cselect_b32 s{T4}, {KV_US}, s{T4}
        s_cselect_b32 s{sBASE}, {KV}, {QO:#x}
        s_cselect_b32 s{T5}, 5, 0
        s_cselect_b64 s[{sM}:{sM+1}], -1, 0
        s_cselect_b32 s{sSC}, 1.0, {f2u(math.log2(math.e) / math.sqrt(20.0)):#x}
        s_sub_u32 s{T5}, s{sJT}, s{T5}
        s_lshl_b32 s{sPQ}, s{T5}, 4
        s_and_b32 s{T5}, s{sWAVE}, 2
        s_lshl_b32 s{T5}, s{T5}, 2
        s_add_u32 s{sPQ}, s{sPQ}, s{T5}
        s_lshl_b32 s{T5}, s{sRT}, 1
        s_and_b32 s{T6}, s{sWAVE}, 1
        s_add_u32 s{T5}, s{T5}, s{T6}
        s_mul_i32 s{T5}, s{T5}, s{T4}
        s_add_u32 s{sBASE}, s{sBASE}, s{T5}
        v_and_b32 v8, 31, v0
        v_and_b32 v9, 0x13, v0
        v_and_b32 v10, 4, v0
        v_lshl_or_b32 v9, v10, 1, v9
        v_and_b32 v10, 8, v0
        v_lshrrev_b32 v10, 1, v10
        v_or_b32 v9, v9, v10
        v_cndmask_b32 v8, v8, v9, s[{sM}:{sM+1}]
        v_lshrrev_b32 v9, 5, v0
        v_lshlrev_b32 v10, 3, v9
        v_lshl_add_u32 v12, v8, 4, v10
        v_add_u32 v13, 1024, v12
        v_mul_lo_u32 v10, v9, s{sHS}
        v_lshl_add_u32 v14, v8, 3, v10
        v_add_u32 v14, 1024, v14
        v_add_u32 v15, 256, v14""")
        for p in range(8):
            a(f"""s_add_u32 s{T4}, s{sPQ}, {p}
            s_mul_i32 s{T5}, s{T4}, 205
            s_lshr_b32 s{T5}, s{T5}, 10
            s_mul_i32 s{T6}, s{T5}, 5
            s_sub_u32 s{T4}, s{T4}, s{T6}
            s_lshl_b32 s{T5}, s{T5}, 1
            s_mul_i32 s{T5}, s{T5}, s{sHS}
            s_add_u32 s{T5}, s{T5}, s{sBASE}
            s_lshl_b32 s{T6}, s{T4}, 9
            s_add_u32 s{T5}, s{T5}, s{T6}
            s_sub_u32 s{T6}, s{sHS}, 1536
            s_cmp_ge_u32 s{T4}, 3
            s_cselect_b32 s{T6}, s{T6}, 0
            s_add_u32 s{sE+p}, s{T5}, s{T6}
            s_cmp_eq_u32 s{T4}, 2
            s_cselect_b64 s[{sM}:{sM+1}], -1, 0""")
            for j in range(2): a(f"v_cndmask_b32 v{self.EA+2*p+j}, v{12+j}, v{14+j}, s[{sM}:{sM+1}]")
    def gemm_epi_qk(self, i, j):
        a = self.a; L = []
        for g in range(4):
            d = 64 + 16 * (2*i + j) + 4*g
            for e in range(4): L.append(lambda d=d, e=e: a(f"v_mul_f32 v{d+e}, s{sSC}, v{d+e}"))
            L.append(lambda d=d: a(f"v_cvt_pk_bf16_f32 v{d}, v{d}, v{d+1}"))
            L.append(lambda d=d: a(f"v_cvt_pk_bf16_f32 v{d+1}, v{d+2}, v{d+3}"))
            L.append(lambda d=d, g=g: a.vm(f"buffer_store_dwordx2 {vr(d,2)}, v{self.EA+2*(4*i+g)+j}, s[{rWS}:{rWS+3}], s{sE+4*i+g} offen sc1"))
        return L
    def epi_v_setup(self):
        a = self.a
        a(f"""s_sub_u32 s{T0}, s{sJT}, 10
        s_lshl_b32 s{T0}, s{T0}, 7
        s_and_b32 s{T1}, s{sWAVE}, 2
        s_lshl_b32 s{T1}, s{T1}, 5
        s_add_u32 s{T0}, s{T0}, s{T1}
        s_lshl_b32 s{T1}, s{sRT}, 1
        s_and_b32 s{T2}, s{sWAVE}, 1
        s_add_u32 s{T1}, s{T1}, s{T2}
        s_mul_i32 s{T1}, s{T1}, {KV_US}
        s_add_u32 s{sE}, s{T1}, {KV + 2560}
        s_mov_b32 s{T2}, {KV_HS - 320}
        v_and_b32 v8, 31, v0
        v_lshrrev_b32 v9, 5, v0
        v_mul_u32_u24 v9, 320, v9""")
        for j in range(2):
            a(f"""v_add_u32 v10, s{T0}, v8
            v_add_u32 v10, {32*j}, v10
            v_mul_u32_u24 v11, 3277, v10
            v_lshrrev_b32 v11, 16, v11
            v_mul_lo_u32 v11, v11, s{T2}
            v_lshl_add_u32 v10, v10, 4, v9
            v_add_u32 v{self.EA+j}, v10, v11""")
    def gemm_epi_v(self, i, j):
        a = self.a; L = []
        for s in range(2):
            d = 64 + 16 * (2*i + j) + 8*s
            for e in range(4): L.append(lambda d=d, e=e: a(f"v_cvt_pk_bf16_f32 v{d+e}, v{d+2*e}, v{d+2*e+1}"))
            L.append(lambda d=d, s=s: a.vm(f"buffer_store_dwordx4 {vr(d,4)}, v{self.EA+j}, s[{rWS}:{rWS+3}], s{sE} offen offset:{(2*i+s)*640} sc1"))
        return L

    XS, WS_, PA, PB, PW, PS, HA, HL = 2, 6, 10, 11, 12, 13, 14, 15
    KR_, VV_, SW_, HD_, DV_, PO_ = 16, 176, 116, 132, 156, 160
    def dma_setup(self):
        a = self.a
        a(f"""v_lshrrev_b32 v16, 3, v0
        v_and_b32 v17, 7, v0
        v_lshrrev_b32 v18, 1, v16
        s_lshl_b32 s{T0}, s{sRT}, 7
        v_add_u32 v16, s{T0}, v16
        v_mul_u32_u24 v16, 1280, v16""")
        for n in range(4):
            a(f"""v_xor_b32 v19, {(4*n) & 7}, v18
            v_xor_b32 v19, v19, v17
            v_lshl_add_u32 v19, v19, 4, v16
            v_add_u32 v{self.XS+n}, {n*(8*1280-1024)}, v19""")
        a(f"""v_lshrrev_b32 v16, 4, v0
        v_and_b32 v17, 15, v0
        v_lshlrev_b32 v18, 2, v16
        v_xor_b32 v17, v17, v18
        v_mul_u32_u24 v16, 3840, v16
        v_lshl_add_u32 v16, v17, 4, v16
        s_lshl_b32 s{T0}, s{sJT}, 8
        v_add_u32 v{self.WS_}, s{T0}, v16""")
        for n in range(1, 4): a(f"v_add_u32 v{self.WS_+n}, {n*(4*3840-1024)}, v{self.WS_}")
        P = self.o("rot", 1)
        a(f"s_add_u32 s{T0}, s{sJT}, s{sRT}")
        if P == 1: a(f"s_mov_b32 s{sK}, 0")
        elif P == 2: a(f"s_and_b32 s{T0}, s{T0}, 1\ns_mul_i32 s{sK}, s{T0}, 5")
        elif P == 3: a(f"s_mul_i32 s{T1}, s{T0}, 43\ns_lshr_b32 s{T1}, s{T1}, 7\ns_mul_i32 s{T1}, s{T1}, 3\ns_sub_u32 s{T0}, s{T0}, s{T1}\ns_mul_i32 s{T0}, s{T0}, 7\ns_lshr_b32 s{sK}, s{T0}, 1")
        elif P == 4: a(f"s_and_b32 s{T0}, s{T0}, 3\ns_mul_i32 s{T0}, s{T0}, 5\ns_lshr_b32 s{sK}, s{T0}, 1")
    def stage_dma(self, s):
        a = self.a
        sl = (s % NSLOT) * 16384
        a(f"s_lshl_b32 s{T0}, s{sK}, 7\ns_mul_i32 s{T1}, s{sK}, {64*3840}")
        def ld(txt):
            if a.n["vm"] - a.done["vm"] >= 62: a.wait(Tok("vm", a.done["vm"] + 8))
            return a.vm(txt)
        for h in range(4):
            a(f"s_mov_b32 m0, {L_X + sl + 4096*h}")
            a(f"s_add_u32 s{T2}, s{T0}, {32*1280*h}")
            for n in range(4): ld(f"buffer_load_dwordx4 v{self.XS+n}, s[{rA}:{rA+3}], s{T2} offen offset:{1024*n}{self.gnt} lds")
            a(f"s_mov_b32 m0, {L_W + sl + 4096*h}")
            a(f"s_add_u32 s{T2}, s{T1}, {16*3840*h}")
            for n in range(4): t = ld(f"buffer_load_dwordx4 v{self.WS_+n}, s[{rB}:{rB+3}], s{T2} offen offset:{1024*n}{self.gnt} lds")
        a(f"s_add_u32 s{sK}, s{sK}, 1\ns_cmp_eq_u32 s{sK}, 10\ns_cselect_b32 s{sK}, 0, s{sK}")
        return t
    def conv_scalars(self):
        a = self.a
        a(f"""s_min_u32 s{T0}, s{sLW}, 2
        s_add_u32 s{sCH}, s{sCH0}, s{T0}
        s_min_u32 s{sCH}, s{sCH}, 639
        s_mul_i32 s{T0}, s{T0}, {CONV_SZ}
        s_add_u32 s{T6}, s{T0}, {L_CONV}
        s_lshl_b32 s{T1}, s{sCH}, 1
        v_mov_b32 v{self.DV_}, s{T1}
        s_lshl_b32 s{T1}, s{sCH}, 12
        v_lshl_add_u32 v{self.HA}, v0, 4, s{T1}
        v_lshl_add_u32 v{self.HL}, v0, 4, s{T6}""")
        self.srd(rD, pH, 640 * 4096)
        a(f"s_mov_b32 m0, s{T6}\ns_nop 0")
        if "h" not in self.o("ab", ""):
            for g in range(4): a.vm(f"buffer_load_dwordx4 v{self.HA}, s[{rD}:{rD+3}], 0 offen offset:{1024*g}{self.nt} lds")
        self.srd(rC, pD, 640 * 2)
        return a.vm(f"buffer_load_ushort v{self.DV_}, v{self.DV_}, s[{rC}:{rC+3}], 0 offen")
    def pre_setup(self):
        self.a(f"""s_and_b32 s{T0}, s{sU}, 63
        s_lshr_b32 s{T1}, s{sU}, 6
        s_lshl_b32 s{T5}, s{sPI}, 6
        s_add_u32 s{T5}, s{T5}, {F1:#x}
        s_lshl_b32 s{T0}, s{T0}, 5
        s_lshl_b32 s{T1}, s{T1}, 7
        v_lshrrev_b32 v16, 3, v0
        v_and_b32 v17, 7, v0
        v_lshl_add_u32 v16, v16, 2, s{T0}
        v_lshl_add_u32 v18, v17, 4, s{T1}
        v_mul_u32_u24 v19, 1280, v16
        v_add_u32 v{self.PB}, v19, v18
        v_subrev_u32 v{self.PA}, 3840, v{self.PB}
        v_lshlrev_b32 v{self.PW}, 2, v18
        v_lshlrev_b32 v18, 11, v18
        v_lshlrev_b32 v16, 1, v16
        v_sub_u32 v18, v18, v16
        v_add_u32 v{self.PS}, {UR + 4088:#x}, v18""")
    def pre_loads(self):
        a = self.a
        if "k" in self.o("ab", ""): return
        self.srd(rC, pK, 2048 * 1280); self.srd(rD, pV, 2048 * 1280); self.srd(rB, pSH, 640 * 8)
        for j in range(4): a(f"buffer_load_dwordx4 {vr(self.KR_+12+4*j,4)}, v{self.PB}, s[{rC}:{rC+3}], 0 offen offset:{1280*j}{self.nt}")
        for j in range(4): a(f"buffer_load_dwordx4 {vr(self.VV_+4*j,4)}, v{self.PB}, s[{rD}:{rD+3}], 0 offen offset:{1280*j}{self.nt}")
        for j in range(3): a(f"buffer_load_dwordx4 {vr(self.KR_+4*j,4)}, v{self.PA}, s[{rC}:{rC+3}], 0 offen offset:{1280*j}{self.nt}")
        for j in range(4): a(f"buffer_load_dwordx4 {vr(self.SW_+4*j,4)}, v{self.PW}, s[{rB}:{rB+3}], 0 offen offset:{16*j}")
    def h_loads(self, D):
        a = self.a
        if "h" in self.o("ab", ""): return
        for g in range(4):
            a.vm(f"buffer_load_dwordx4 {vr(D+6*g,4)}, v{self.HA}, s[{rD}:{rD+3}], 0 offen offset:{1024*g}{self.nt}")
            a.vm(f"buffer_load_dwordx2 {vr(D+6*g+4,2)}, v{self.HA}, s[{rD}:{rD+3}], 0 offen offset:{1024*g+16}{self.nt}")
    def bar(self):
        a = self.a; L = a.newlabel("NB")
        a(f"s_cmp_ge_u32 s{sBC}, s{sNB}\ns_cbranch_scc1 {L}\ns_barrier\ns_add_u32 s{sBC}, s{sBC}, 1")
        a.label(L)
    def bar_rest(self):
        a = self.a; L, D = a.newlabel("BR"), a.newlabel("BRD")
        a.label(L)
        a(f"s_cmp_ge_u32 s{sBC}, s{sNB}\ns_cbranch_scc1 {D}\ns_barrier\ns_add_u32 s{sBC}, s{sBC}, 1\ns_branch {L}")
        a.label(D)
    def ewait(self, n=1):
        a = self.a; L, L2, D = a.newlabel("EW"), a.newlabel("EX"), a.newlabel("EWD")
        a.label(L)
        a(f"s_mov_b32 s{T1}, {n}")
        a.label(L2)
        a(f"""s_getreg_b32 s{T0}, hwreg(HW_REG_IB_STS)
        s_and_b32 s{T0}, s{T0}, 0x00c0000f
        s_cbranch_scc0 {D}
        s_cmp_ge_u32 s{sBC}, s{sNB}
        s_cbranch_scc1 {D}""")
        if n > 1: a(f"s_sleep 1\ns_sub_u32 s{T1}, s{T1}, 1\ns_cmp_lg_u32 s{T1}, 0\ns_cbranch_scc1 {L2}")
        a(f"""s_barrier
        s_add_u32 s{sBC}, s{sBC}, 1
        s_branch {L}""")
        a.label(D)
        a("s_waitcnt vmcnt(0)")
    def epoll(self, loads, tmp, cmp=None):
        a = self.a
        L, D = a.newlabel("EP"), a.newlabel("EPD")
        a(f"s_mov_b32 s{sCNT}, 0")
        a.label(L)
        k = 0
        for (va, r, imm, wd) in loads:
            ins = {1: "buffer_load_dword", 2: "buffer_load_dwordx2", 4: "buffer_load_dwordx4"}[wd]
            a(f"{ins} {vr(tmp+k, wd)}, v{va}, s[{r}:{r+3}], 0 offen offset:{imm} sc1"); k += wd
        self.ewait()
        self.poll_check(tmp, k, cmp)
        a(f"s_cbranch_scc1 {D}")
        a(f"s_add_u32 s{sCNT}, s{sCNT}, 1\ns_cmp_lt_u32 s{sCNT}, {POLL_MAX}\ns_cbranch_scc0 {D}\ns_sleep 1\ns_branch {L}")
        a.label(D)
    def pre_compute_list(self):
        L = []
        K, V, W, AC = 76, 90, 98, 106
        lo = lambda d, s: L.append(f"v_lshlrev_b32 v{d}, 16, v{s}")
        hi = lambda d, s: L.append(f"v_and_b32 v{d}, 0xffff0000, v{s}")
        for p in range(4):
            for j in range(7): lo(K+2*j, self.KR_+4*j+p); hi(K+2*j+1, self.KR_+4*j+p)
            for j in range(4): lo(V+2*j, self.VV_+4*j+p); hi(V+2*j+1, self.VV_+4*j+p)
            w = self.SW_ + 4*p
            lo(W, w); lo(W+1, w+2); hi(W+2, w); hi(W+3, w+2); lo(W+4, w+1); lo(W+5, w+3); hi(W+6, w+1); hi(W+7, w+3)
            for lag in (3, 2, 1, 0):
                for t in range(4):
                    kk = K + 2*(3 + t - lag)
                    if self.o("pk", 1):
                        if lag == 3: L.append(f"v_pk_mul_f32 {vr(AC+2*t,2)}, {vr(kk,2)}, {vr(W+2*lag,2)}")
                        else: L.append(f"v_pk_fma_f32 {vr(AC+2*t,2)}, {vr(kk,2)}, {vr(W+2*lag,2)}, {vr(AC+2*t,2)}")
                    else:
                        for h in range(2):
                            if lag == 3: L.append(f"v_mul_f32 v{AC+2*t+h}, v{kk+h}, v{W+2*lag+h}")
                            else: L.append(f"v_fmac_f32 v{AC+2*t+h}, v{kk+h}, v{W+2*lag+h}")
            for t in range(4):
                if self.o("pk", 1): L.append(f"v_pk_mul_f32 {vr(AC+2*t,2)}, {vr(AC+2*t,2)}, {vr(V+2*t,2)}")
                else:
                    for h in range(2): L.append(f"v_mul_f32 v{AC+2*t+h}, v{AC+2*t+h}, v{V+2*t+h}")
            for h in range(2):
                o = self.PO_ + 4*p + 2*h
                L.append(f"v_cvt_pk_bf16_f32 v{o}, v{AC+6+h}, v{AC+4+h}"); L.append(f"v_cvt_pk_bf16_f32 v{o+1}, v{AC+2+h}, v{AC+h}")
        return L
    def pre_stores(self):
        a = self.a
        if "s" in self.o("ab", ""): return
        if not self.o("st4", 1):
            for e in range(8):
                a(f"s_mov_b32 s{T0}, {4096*e}")
                a(f"buffer_store_dwordx2 {vr(self.PO_+2*e,2)}, v{self.PS}, s[{rWS}:{rWS+3}], s{T0} offen sc1")
            return
        for e in range(8): a(f"ds_write_b64 v{(self.PA, self.PW)[e & 1]}, {vr(self.PO_+2*e,2)} offset:{64*(e & 6)}")
        for k in range(1, 4): a(f"v_xor_b32 v{76+k}, {32*k}, v{self.PB}")
        a("s_waitcnt lgkmcnt(0)")
        for k in range(4): a(f"ds_read_b128 {vr(self.PO_+4*k,4)}, v{76+k if k else self.PB} offset:{1024*k}")
        for k in range(4):
            a(f"s_mov_b32 s{T0}, {65536*k}\ns_waitcnt lgkmcnt({3-k})")
            a(f"buffer_store_dwordx4 {vr(self.PO_+4*k,4)}, v{self.PS}, s[{rWS}:{rWS+3}], s{T0} offen sc1")
    def pre_store_setup(self, spare=False):
        if not self.o("st4", 1): return
        assert (L_CONV + CONV_SZ + 2*CS) % 128 == 0 and CONV_SZ % 128 == 0 and (L_CONV + U_OFF) % 128 == 0
        if spare: self.a(f"s_lshl_b32 s{T0}, s{sWAVE}, 12")
        else: self.a(f"""s_mul_i32 s{T0}, s{sLW}, {CONV_SZ}
        s_add_u32 s{T0}, s{T0}, {L_CONV + 2*CS}
        s_cmp_eq_u32 s{sWAVE}, 7
        s_cselect_b32 s{T0}, {L_CONV + U_OFF}, s{T0}""")
        self.a(f"""v_and_b32 v76, 7, v0
        v_lshrrev_b32 v77, 3, v0
        v_sub_u32 v77, 7, v77
        v_lshrrev_b32 v78, 1, v77
        v_xor_b32 v78, v78, v76
        v_lshlrev_b32 v78, 4, v78
        v_and_b32 v77, 1, v77
        v_lshl_add_u32 v78, v77, 3, v78
        v_lshl_add_u32 v78, v76, 9, v78
        v_add_u32 v{self.PA}, s{T0}, v78
        v_xor_b32 v{self.PW}, 64, v{self.PA}
        v_lshrrev_b32 v76, 5, v0
        v_and_b32 v77, 31, v0
        v_xor_b32 v77, v77, v76
        v_lshlrev_b32 v77, 4, v77
        v_lshl_add_u32 v76, v76, 9, v77
        v_add_u32 v{self.PB}, s{T0}, v76
        s_lshr_b32 s{T1}, s{sU}, 6
        s_lshl_b32 s{T1}, s{T1}, 18
        s_and_b32 s{T0}, s{sU}, 63
        s_lshl_b32 s{T0}, s{T0}, 6
        s_sub_u32 s{T1}, s{T1}, s{T0}
        s_add_u32 s{T1}, s{T1}, {UR + 4032:#x}
        v_lshrrev_b32 v76, 2, v0
        v_lshlrev_b32 v76, 12, v76
        v_and_b32 v77, 3, v0
        v_lshl_add_u32 v76, v77, 4, v76
        v_add_u32 v{self.PS}, s{T1}, v76""")
    def h_valu(self, D, t0):
        L = [f"v_alignbit_b32 v{t0+e}, v{D+e+1}, v{D+e}, 16" for e in range(4)]
        L += [f"v_mov_b32 v{t0+4+e}, v{D+e+1}" for e in range(4)]
        return L + [f"v_alignbit_b32 v{t0+8+e}, v{D+e+2}, v{D+e+1}, 16" for e in range(4)]
    def h_writes(self, D, imm, t0):
        for r, src in enumerate((t0, t0 + 4, t0 + 8, D + 2)):
            self.a(f"ds_write_b128 v{self.HL}, {vr(src,4)} offset:{r*CS + imm}")
    def conv_prep(self, part):
        a = self.a
        HD, D = self.HD_, 112
        HA, UB, UE, YS = 16, 17, 18, 19
        if part == 0:
            for g in range(4):
                a(f"ds_read_b128 {vr(HD+6*g,4)}, v{self.HL} offset:{1024*g}")
                a(f"ds_read_b64 {vr(HD+6*g+4,2)}, v{self.HL} offset:{1024*g+16}")
            a(f"""v_lshrrev_b32 v22, 4, v0
            s_lshl_b32 s{T0}, s{sCH}, 12
            v_lshrrev_b32 v23, 2, v0
            v_and_b32 v23, 3, v23
            v_mul_u32_u24 v23, {CS}, v23
            v_lshl_add_u32 v23, v22, 4, v23
            v_and_b32 v24, 3, v0
            v_lshl_add_u32 v23, v24, 3, v23
            v_add_u32 v{HA}, s{T6}, v23
            v_and_b32 v23, 15, v0
            v_lshlrev_b32 v23, 5, v23
            v_lshlrev_b32 v24, 4, v22
            v_sub_u32 v24, v24, v23
            v_add_u32 v24, s{T6}, v24
            v_add_u32 v{UB}, {U_OFF + 480}, v24
            v_lshl_add_u32 v23, v22, 3, v23
            v_sub_u32 v24, s{T6}, v23
            v_add_u32 v{UE}, {U_OFF + 504}, v24
            s_add_u32 s{T0}, s{T0}, {YD:#x}
            v_add_u32 v{YS}, s{T0}, v23
            v_lshlrev_b32 v20, 16, v{self.DV_}""")
            for e in range(6): a(f"v_mov_b32 v{D+e}, 0")
            a("s_waitcnt lgkmcnt(0)")
            a(f"v_readlane_b32 s{T1}, v{HD}, 0\nv_readlane_b32 s{T2}, v{HD+1}, 0")
            for l in self.h_valu(HD, 64): a(l)
            a(f"v_writelane_b32 v{D+4}, s{T1}, 1\nv_writelane_b32 v{D+5}, s{T2}, 1")
        else:
            for g in range(1, 4):
                for l in self.h_valu(HD + 6*g, 64 + 12*g): a(l)
            for l in self.h_valu(D, 120): a(l)
    def h_store(self):
        a = self.a
        for g in range(4): self.h_writes(self.HD_ + 6*g, 32 + 1024*g, 64 + 12*g)
        a("s_mov_b32 exec_hi, 0")
        a(f"ds_write_b128 v{self.HL}, v[112:115] offset:{U_OFF + 4096}")
        a("s_mov_b64 exec, 3")
        self.h_writes(112, 0, 120)
        a("s_mov_b64 exec, -1")
        for d, r in ((2, 16), (3, 17), (4, 18), (5, 19), (7, 20)): a(f"v_mov_b32 v{d}, v{r}")

    def dma_role(self):
        a = self.a
        a.reset_counters()
        fine = self.o("fine", 0)
        self.dma_setup()
        a("s_waitcnt lgkmcnt(0)")
        self.srd(rA, pX, 2048 * 1280); self.srd(rB, pW, 640 * 3840)
        a(f"s_cmp_ge_u32 s{sI}, 30\ns_cbranch_scc1 L_D_SKIP")
        S = {0: self.stage_dma(0)}
        if self.o("s1early", 0): S[1] = self.stage_dma(1)
        a.label("L_D_SKIP")
        if self.stamps: a("v_mov_b32 v1, 0")
        self.stamp("start")
        self.srd(rWS, pWS, WS_SIZE)
        self.setup_call()
        a(f"s_cmp_ge_u32 s{sI}, 30\ns_cbranch_scc1 L_D_NT")
        if self.o("dprio", 0): a(f"s_setprio {self.o('dprio', 0)}")
        if not self.o("s1early", 0): S[1] = self.stage_dma(1)
        if self.o("hat", 0) == 0: self.conv_scalars()
        for s in range(10):
            a.wait(S[s])
            if fine: self.stamp(f"l.w{s}")
            a("s_barrier")
            if fine or s in (0, 5, 9): self.stamp(f"l.b{s}")
            if s + 2 <= 9 and "d" in self.o("ab", ""): S[s+2] = S[1]
            elif s + 2 <= 9:
                S[s+2] = self.stage_dma(s + 2)
                if fine: self.stamp(f"l.i{s}")
            if s == 8 and self.o("prep", 1): self.conv_prep(0)
            if s == 9 and self.o("prep", 1): self.conv_prep(1)
        a.label("L_CONV")
        self.conv()
    def side_role(self):
        a = self.a
        a.label("L_SIDE")
        a.reset_counters()
        a(f"""s_cmp_ge_u32 s{sI}, 30
        s_cbranch_scc1 L_S_NT
        s_lshr_b32 s{T0}, s{sLW}, 1
        s_lshl_b32 s{sU}, s{sPI}, 1
        s_add_u32 s{sU}, s{sU}, s{T0}
        s_mov_b32 s{T7}, {L_SIG}
        s_cmp_lg_u32 s{sWAVE}, 6
        s_cbranch_scc1 L_S_GO
        s_cmp_lt_u32 s{sG}, 32
        s_cselect_b32 s{T1}, s{sNCH}, 0
        s_cmp_lg_u32 s{T1}, 2
        s_cbranch_scc1 L_W6
        s_add_u32 s{sU}, s{sG}, 608
        s_add_u32 s{sPI}, s{sG}, 256
        s_mov_b32 s{sNU}, 1
        s_mov_b32 s{T7}, {L_SIG + 8}
        L_S_GO:""")
        slate = self.o("slate", 0)
        if slate: self.setup_call()
        self.pre_setup()
        a("s_waitcnt lgkmcnt(0)")
        if slate > 1: a(f"s_sleep {slate}")
        self.pre_loads()
        if self.o("hat", 0) == 0:
            L7 = a.newlabel("H7")
            a(f"s_cmp_ge_u32 s{sLW}, s{sNCH}\ns_cbranch_scc1 {L7}")
            self.conv_scalars()
            a.label(L7)
        if self.stamps: a("v_mov_b32 v1, 0")
        self.stamp("start")
        self.srd(rWS, pWS, WS_SIZE)
        if not slate: self.setup_call()
        a(f"""v_mov_b32 v44, {L_SIG}
        v_mov_b32 v46, 0
        v_mov_b32 v47, 0
        ds_write_b64 v44, v[46:47]
        ds_write_b64 v44, v[46:47] offset:8
        ds_write_b32 v44, v46 offset:16
        v_and_b32 v46, 1, v0
        v_lshlrev_b32 v46, 7, v46
        s_waitcnt lgkmcnt(0)""")
        self.pre_store_setup()
        self.bar()
        self.ewait(self.o("espin0", 1))
        self.stamp("s.kv")
        if self.o("sprio", 0): a(f"s_setprio {self.o('sprio', 0)}")
        PC = self.pre_compute_list()
        nch = self.o("nchunk", 2)
        per = -(-len(PC) // nch)
        for c in range(nch):
            for l in (PC[c*per:(c+1)*per] if "v" not in self.o("ab", "") else []): a(l)
            if c < nch - 1 or self.o("barst", 1): self.bar()
        self.pre_stores()
        if self.o("hat", 0) == 1:
            L7 = a.newlabel("H7")
            a(f"s_cmp_ge_u32 s{sLW}, s{sNCH}\ns_cbranch_scc1 {L7}")
            self.conv_scalars()
            a.label(L7)
        self.srd(rC, pDBG, 256)
        a(f"buffer_load_dword v47, v46, s[{rC}:{rC+3}], 0 offen sc1")
        self.stamp("s.st")
        self.ewait(self.o("espin", 1))
        self.last_flag(8, f"s{sNU}", T5, 114, base=f"s{T7}")
        self.stamp("s.F1set")
        a(f"s_cmp_eq_u32 s{sWAVE}, 7\ns_cbranch_scc1 L_FETCH\ns_cmp_eq_u32 s{sWAVE}, 6\ns_cbranch_scc1 L_IDLE2")
        a.label("L_PREP")
        if self.o("prep", 1):
            self.bar()
            self.conv_prep(0)
            self.bar()
            self.conv_prep(1)
        self.bar_rest()
        a("s_branch L_CONV")
        a.label("L_W6")
        a("s_waitcnt lgkmcnt(0)")
        a(f"s_cmp_lt_u32 s{sNCH}, 3\ns_cbranch_scc1 L_IDLE")
        self.conv_scalars()
        if self.stamps: a("v_mov_b32 v1, 0")
        self.stamp("start")
        self.srd(rWS, pWS, WS_SIZE)
        self.setup_call()
        self.bar()
        self.ewait()
        a("s_branch L_PREP")
        a.label("L_IDLE")
        if self.stamps: a("v_mov_b32 v1, 0")
        self.stamp("start")
        self.srd(rWS, pWS, WS_SIZE)
        self.setup_call()
        a.label("L_IDLE2")
        for l in self.att_init_list(): a(l)
        self.bar_rest()
        a("s_branch L_ATT")
        a.label("L_S_NT")
        a("s_waitcnt lgkmcnt(0)")
        if self.stamps: a("v_mov_b32 v1, 0")
        self.stamp("start")
        self.srd(rWS, pWS, WS_SIZE)
        self.setup_call()
        a.label("L_D_NT")
        a(f"s_call_b64 s[{sRET}:{sRET+1}], L_SPARE")
        a(f"s_mov_b32 s{sBC}, 1\ns_branch L_IDLE2")
        a.label("L_SPARE")
        a(f"""s_sub_u32 s{T0}, s{sPI}, 180
        s_lshl_b32 s{T0}, s{T0}, 3
        s_add_u32 s{sU}, s{T0}, s{sWAVE}""")
        self.pre_setup()
        self.pre_loads()
        a(f"""v_mov_b32 v44, {L_SIG}
        v_mov_b32 v46, 0
        v_mov_b32 v47, 0
        ds_write_b64 v44, v[46:47]
        ds_write_b64 v44, v[46:47] offset:8
        s_waitcnt lgkmcnt(0)
        s_barrier""")
        a.label("L_SPARE2")
        self.pre_store_setup(spare=True)
        a("s_waitcnt vmcnt(0)")
        for l in PC: a(l)
        self.pre_stores()
        a.label("L_SPARE3")
        a("s_waitcnt vmcnt(0)")
        self.last_flag(8, f"s{sNU}", T5, 114)
        a(f"s_setpc_b64 s[{sRET}:{sRET+1}]")
        self.fetcher()

    def fetcher(self):
        a = self.a
        a.label("L_FETCH")
        a.reset_counters()
        OK = a.newlabel("CNTOK")
        a("s_setprio 0")
        self.poll_check(47, 1, cmp="v_cmp_le_u32 vcc, 0x80, v47")
        a(f"s_cbranch_scc1 {OK}")
        self.epoll([(46, rC, 0, 1)], 47, cmp="v_cmp_le_u32 vcc, 0x80, v47")
        a.label(OK)
        a(f"""s_andn2_b32 s{T1}, s{sCH0}, 63
        s_add_u32 s{T2}, s{sCH0}, s{sNCH}
        s_sub_u32 s{T2}, s{T2}, 1
        s_or_b32 s{T2}, s{T2}, 63""")
        for r in (T1, T2):
            a(f"""s_lshr_b32 s{T3}, s{r}, 3
            s_add_u32 s{T3}, s{T3}, 180
            s_lshr_b32 s{T4}, s{r}, 1
            s_cmp_ge_u32 s{r}, 480
            s_cselect_b32 s{T4}, s{T3}, s{T4}
            s_sub_u32 s{T3}, s{r}, 352
            s_cmp_ge_u32 s{r}, 608
            s_cselect_b32 s{r}, s{T3}, s{T4}""")
        a(f"""v_add_u32 v9, s{T1}, v0
        v_min_u32 v9, s{T2}, v9
        v_lshlrev_b32 v9, 6, v9
        v_add_u32 v9, {F1:#x}, v9""")
        if self.o("pgate", 9):
            LG, LD = a.newlabel("PG"), a.newlabel("PGD")
            a.label(LG)
            a(f"s_cmp_ge_u32 s{sBC}, {self.o('pgate', 9)}\ns_cbranch_scc1 {LD}\ns_cmp_ge_u32 s{sBC}, s{sNB}\ns_cbranch_scc1 {LD}\ns_barrier\ns_add_u32 s{sBC}, s{sBC}, 1\ns_branch {LG}")
            a.label(LD)
        if "p" not in self.o("ab", ""): self.mpoll([9], 16, elastic=True)
        self.stamp("f.F1ok")
        a(f"s_lshl_b32 s{T2}, s{sCH0}, 12\ns_add_u32 s{T2}, s{T2}, {UR:#x}")
        for c in range(3 if "u" not in self.o("ab", "") else 0):
            L = a.newlabel("NOU")
            if c == 2: a(f"s_cmp_lt_u32 s{sNCH}, 3\ns_cbranch_scc1 {L}")
            a(f"s_mov_b32 m0, {L_CONV + c*CONV_SZ + U_OFF}\ns_add_u32 s{T1}, s{T2}, {4096*c}")
            for j in range(4): a(f"buffer_load_dwordx4 v{L16}, s[{rWS}:{rWS+3}], s{T1} offen offset:{1024*j} sc1 lds")
            if c == 2: a.label(L)
        a("v_mov_b32 v45, 1")
        self.ewait()
        a("ds_write_b32 v44, v45")
        self.stamp("f.u")
        self.bar_rest()
        for l in self.att_init_list(): a(l)
        a("s_branch L_ATT")
    def kv_fetch(self):
        a = self.a
        a.reset_counters()
        OK = a.newlabel("CNTOK")
        self.poll_check(29, 1, cmp="v_cmp_le_u32 vcc, 0x80, v29")
        a(f"s_cbranch_scc1 {OK}")
        self.poll([(28, rC, 0, 1)], 29, cmp="v_cmp_le_u32 vcc, 0x80, v29")
        a.label(OK)
        self.sig_wait(12, 4)
        self.sig_wait(8, f"s{sNU}")
        self.mpoll([30, 31], 16)
        self.stamp("f.F2ok")
        a(f"""s_mul_i32 s{T0}, s{sHEAD}, {Q_HS}
        s_mul_i32 s{T1}, s{sQB}, {4*Q_US}
        s_add_u32 s{T0}, s{T0}, s{T1}
        s_add_u32 s{T0}, s{T0}, {QO:#x}""")
        def lin(sbase, lds0, n):
            T = []
            for k in range(n):
                if k % 4 == 0: a(f"s_mov_b32 m0, {lds0 + 1024*k}\ns_add_u32 s{T1}, s{sbase}, {1024*k}")
                T.append(a.vm(f"buffer_load_dwordx4 v{L16}, s[{rWS}:{rWS+3}], s{T1} offen offset:{1024*(k%4)} sc1 lds"))
            return T
        if self.o("kv3", 1):
            lin(T0, L_Q, 10)
            T = lin(sKVB, 0, 40)
            a(f"v_mov_b32 v16, {L_SIG}\nv_mov_b32 v17, 1\nv_mov_b32 v18, 2")
            a.wait(T[9]); a("ds_write_b32 v16, v17 offset:4")
            a.wait(T[19]); a("ds_write_b32 v16, v18 offset:4")
        else:
            lin(T0, L_Q, 10)
            lin(sKVB, 0, 40)
            a(f"v_mov_b32 v16, {L_SIG}\nv_mov_b32 v17, 3")
            a.wait_all()
            a("ds_write_b32 v16, v17 offset:4")
        self.stamp("f.kv0")
    def kv_fetch_setup(self):
        a = self.a
        self.srd(rC, pDBG, 256)
        a(f"""s_mul_i32 s{T0}, s{sHEAD}, 20
        v_and_b32 v28, 15, v0
        v_lshrrev_b32 v30, 4, v0
        v_and_b32 v31, 1, v30
        v_mul_u32_u24 v31, 19, v31
        v_add_u32 v31, s{T0}, v31
        v_lshrrev_b32 v31, 7, v31
        v_lshrrev_b32 v30, 1, v30
        v_mul_u32_u24 v30, 5, v30
        v_add3_u32 v30, v30, v31, 5
        v_lshl_add_u32 v30, v30, 4, v28
        v_lshlrev_b32 v30, 6, v30
        v_add_u32 v30, {F2:#x}, v30
        v_lshl_add_u32 v31, v31, 4, s{sQB}
        v_add_u32 v31, s{sQB}, v31
        v_and_b32 v28, 1, v0
        v_add_u32 v31, v31, v28
        v_lshlrev_b32 v31, 6, v31
        v_add_u32 v31, {F2:#x}, v31
        v_lshlrev_b32 v28, 7, v28""")

    def sig_check(self, off, thr, tok):
        a = self.a
        OK = a.newlabel("SOK")
        a.wait(tok)
        a(f"v_readfirstlane_b32 s{T0}, v15\ns_nop 0\ns_cmp_ge_u32 s{T0}, {thr}\ns_cbranch_scc1 {OK}")
        self.sig_wait(off, thr)
        a.label(OK)
    def sig_wait(self, off, thr=1):
        a = self.a
        L, D = a.newlabel("SIG"), a.newlabel("SIGD")
        a(f"v_mov_b32 v14, {L_SIG}\ns_mov_b32 s{sCNT}, 0")
        a.label(L)
        a(f"""ds_read_b32 v15, v14 offset:{off}
        s_waitcnt lgkmcnt(0)
        v_readfirstlane_b32 s{T0}, v15
        s_add_u32 s{sCNT}, s{sCNT}, 1
        s_cmp_ge_u32 s{T0}, {thr}
        s_cbranch_scc1 {D}
        s_sleep 1
        s_cmp_lt_u32 s{sCNT}, {POLL_MAX*40}
        s_cbranch_scc1 {L}""")
        a.label(D)
    def conv(self):
        a = self.a
        a.reset_counters()
        ACC, FR = 16, 64
        HA, UB, UE, YS, DV = 2, 3, 4, 5, self.DV_
        a(f"s_setprio {self.o('hprio', 0)}")
        if not self.o("prep", 1): self.conv_prep(0); self.conv_prep(1)
        self.h_store()
        self.stamp("v.h")
        self.sig_wait(0)
        a(f"s_setprio {self.o('cprio', 3)}")
        a.reset_counters()
        def reads(rho):
            st = FR + 64 * (rho & 1)
            ra = lambda i, q: (lambda: a.ds(f"ds_read_b64_tr_b16 {vr(st+4*i+2*q,2)}, v{HA} offset:{64*(8*i+rho) + 8*q}"))
            rb = lambda d: (lambda: a.ds(f"ds_read_b128 {vr(st+32+4*d,4)}, v{UB} offset:{64*(56 - (8*d - rho))}"))
            L = [("A0", ra(0,0)), ("A0", ra(0,1))] + [(f"B{d}", rb(d)) for d in range(8)]
            for i in range(1, 8): L += [(f"A{i}", ra(i,0)), (f"A{i}", ra(i,1))]
            return L
        toks = {}
        for n, f in reads(0): toks[n] = f()
        self.stamp("v.u")
        init = self.att_init_list()
        for rho in range(8):
            st = FR + 64 * (rho & 1)
            nxt = reads(rho + 1) if rho < 7 else []
            out = {}; k = 0; m = 0
            for i in range(8):
                for c in range(i, 8):
                    a.wait(toks[f"A{i}"], toks[f"B{c-i}"])
                    d = ACC + 4 * c
                    a(f"v_mfma_f32_16x16x32_bf16 {vr(d,4)}, {vr(st+4*i,4)}, {vr(st+32+4*(c-i),4)}, {'0' if (rho == 0 and i == 0) else vr(d,4)}")
                    m += 1
                    if m >= 4 and k < len(nxt): out[nxt[k][0]] = nxt[k][1](); k += 1
                    elif m >= 28 and init: a(init.pop())
            assert k == len(nxt)
            toks = out
        assert not init
        self.stamp("v.mfma")
        tu = [a.ds(f"ds_read_b64 {vr(FR+2*c,2)}, v{UE} offset:{512*(7-c)}") for c in range(8)]
        for c in range(8):
            a.wait(tu[c])
            d, u, t = ACC + 4*c, FR + 2*c, FR + 32 + 8*(c & 3)
            a(f"""v_and_b32 v{t}, 0xffff0000, v{u+1}
            v_lshlrev_b32 v{t+1}, 16, v{u+1}
            v_and_b32 v{t+2}, 0xffff0000, v{u}
            v_lshlrev_b32 v{t+3}, 16, v{u}""")
            for e in range(4): a(f"v_fmac_f32 v{d+e}, v7, v{t+e}")
            a(f"v_cvt_pk_bf16_f32 v{t+4}, v{d}, v{d+1}\nv_cvt_pk_bf16_f32 v{t+5}, v{d+2}, v{d+3}")
            a.vm(f"buffer_store_dwordx2 {vr(t+4,2)}, v{YS}, s[{rWS}:{rWS+3}], 0 offen offset:{512*c} sc1")
        self.stamp("v.st")

    def m2b(self, S, j=1): self.a(f"v_mfma_f32_32x32x4_2b_bf16 {vr(S,32)}, {vr(KRM,2)}, {vr((QR2, QR)[j],2)}, 0")
    def mqk(self, S, h, j=1): self.a(f"v_mfma_f32_32x32x16_bf16 {vr(S+16*h,16)}, {vr(KM+4*h,4)}, {vr((QM2, QM)[j],4)}, {vr(S+16*h,16)}")
    def smf(self, V, P, j=1): self.a(f"v_smfmac_f32_32x32x32_bf16 {vr((O2, O_)[j],16)}, {vr(V,4)}, {vr(P,8)}, v{IDX}")
    def side_kv(self, add):
        a = self.a
        def mk(j):
            def f():
                if j == 0: a(f"s_add_u32 m0, s{sKVW}, {add*KV_US}\ns_add_u32 s{T5}, s{sKVG}, {add*KV_US}")
                if j == 4: a(f"s_add_u32 m0, m0, 4096\ns_add_u32 s{T5}, s{T5}, 4096")
                a.vm(f"buffer_load_dwordx4 v{L16}, s[{rWS}:{rWS+3}], s{T5} offen offset:{1024*(j%4)} sc1 lds")
            return f
        return [mk(j) for j in range(5)]
    def side_wo(self):
        a = self.a
        def mk(k):
            def f():
                L = a.newlabel("NOWO")
                if k == 0: a(f"s_mul_i32 s{T4}, s{sWAVE}, {13*1024}\ns_add_u32 m0, s{T4}, {L_WO}")
                else: a("s_add_u32 m0, m0, 1024")
                if k % 5 == 0: a(f"s_mov_b32 s{T5}, {40960*(k//5)}")
                elif k < 9: a("s_nop 0")
                if k >= 9: a(f"s_cmp_eq_u32 s{sWAVE}, 7\ns_cbranch_scc1 {L}")
                a.vm(f"buffer_load_dwordx4 v{WOV + k%5}, s[{rA}:{rA+3}], s{T5} offen lds")
                if k >= 9: a.label(L)
            return f
        return [mk(k) for k in range(13)]
    def side_yd(self):
        a = self.a
        def f0():
            OK = a.newlabel("F3OK")
            a.wait(self.tF3)
            self.poll_check(F3T, 2)
            a(f"s_cbranch_scc1 {OK}")
            snap = a.snapshot(); self.poll([(AF3, rWS, 0, 2)], F3T); a.restore(snap)
            a.label(OK)
            a(f"s_mul_i32 s{T5}, s{sWAVE}, 1280\ns_add_u32 m0, s{T5}, {L_YD}\ns_mov_b32 s{T5}, {8*4096 - 1024}")
            a.vm(f"buffer_load_dwordx4 v{YDV}, s[{rWS}:{rWS+3}], 0 offen sc1 lds")
            a("s_mov_b64 exec, 0xffff")
            a.vm(f"buffer_load_dwordx4 v{YDV}, s[{rWS}:{rWS+3}], s{T5} offen offset:1024 sc1 lds")
            a("s_mov_b64 exec, -1")
        return [f0]
    def side_x(self):
        a = self.a
        def mk(j):
            def f():
                if j == 0: self.srd(rA, pX, 2048 * 1280)
                a.vm(f"buffer_load_dwordx2 {vr(XE+2*j,2)}, v{AOUT}, s[{rA}:{rA+3}], 0 offen offset:{32*j}")
            return f
        def f3(): self.tF3 = a.vm(f"buffer_load_dwordx2 {vr(F3T,2)}, v{AF3}, s[{rWS}:{rWS+3}], 0 offen sc1")
        return [mk(j) for j in range(3)] + [f3]
    def attention(self):
        a = self.a
        a.label("L_ATT")
        a.reset_counters()
        self.sig_wait(4)
        self.stamp("att0")
        US2 = 2 * KV_US
        base = {"K": 0, "V": 0}
        def bump(kind, u):
            while u * US2 - base[kind] > 5 * US2:
                base[kind] += 6 * US2
                for r in ((AKM, AKR) if kind == "K" else (AV,)): a(f"v_add_u32 v{r}, {6*US2}, v{r}")
            return u * US2 - base[kind]
        def rKR(u): o = bump("K", u); return a.ds(f"ds_read_b64 {vr(KRM,2)}, v{AKR} offset:{o}")
        def rKM(u, h): o = bump("K", u); return a.ds(f"ds_read_b128 {vr(KM+4*h,4)}, v{AKM} offset:{o + 1024*h}")
        def rV(u):
            o = bump("V", u)
            a(f"s_mov_b64 exec, s[{sVMASK}:{sVMASK+1}]")
            for g in range(4): t = a.ds(f"ds_read_b128 {vr(VS[u&1]+4*g,4)}, v{AV} offset:{o + 640*g}")
            a("s_mov_b64 exec, -1")
            return t
        tq = [a.ds(f"ds_read_b64 {vr(QR2,2)}, v{AQR2} offset:2048")]
        tKR = rKR(0)
        tq.append(a.ds(f"ds_read_b128 {vr(QM2,4)}, v{AQM2}"))
        tK0 = rKM(0, 0); tK1 = rKM(0, 1)
        tq.append(a.ds(f"ds_read_b64 {vr(QR,2)}, v{AQR} offset:2048"))
        tq.append(a.ds(f"ds_read_b128 {vr(QM,4)}, v{AQM}"))
        tV = {0: rV(0)}
        side = self.side_kv(8)
        a.wait(tq[0], tKR); self.m2b(S_, 0)
        for _ in range(4): side.pop(0)()
        for e in range(16): a(f"v_mov_b32 v{O2+e}, 0")
        a.wait(tq[1], tK0); self.mqk(S_, 0, 0)
        a.wait(tK1); self.mqk(S_, 1, 0)
        side.pop(0)()
        if self.o("kv3", 1):
            self.sig_check(4, 2, a.ds("ds_read_b32 v15, v14 offset:4")); a.nop(2)
        else: a.nop(8)
        zones = {0: self.o("z0", "3,5"), 6: self.o("z1", "3,5,7"), 14: self.o("z1", "3,5,7"), 22: self.o("z3", "3,5,7"), 30: self.o("z4", "1")}
        if self.o("nob30", 0): del zones[30]
        prio = {}
        if self.o("prio", 1):
            for u0, z in zones.items():
                zz = [int(x) for x in z.split(",")]
                prio[u0] = len(zz)
                for k, d in enumerate(zz): prio[u0 + d] = len(zz) - 1 - k
        for t in range(32):
            if t % 8 == 6 and t < 30:
                assert not side
                side = self.att_sync(t // 8)
            if t == 1 and self.o("kv3", 1):
                L3 = a.newlabel("N3")
                a(f"s_cmp_lg_u32 s{sWAVE}, 3\ns_cbranch_scc1 {L3}\nv_mov_b32 v15, 3\ns_waitcnt vmcnt(5)\nds_write_b32 v14, v15 offset:4")
                a.label(L3)
            if t == 2 and self.o("kv3", 1): self.sig_check(4, 3, tsig)
            if t == 30 and not self.o("nob30", 0): a("s_barrier")
            if t in prio: a(f"s_setprio {prio[t]}")
            u, j = t >> 1, t & 1
            X, Y = S_ + 32 * j, S_ + 32 * (1 - j)
            Vc, Vp = VS[u & 1], VS[((t - 1) >> 1) & 1]
            nx = t < 31
            rl = j == 0 and u < 15
            P = [int(x) for x in self.o("pos", "2,6,14,18,22,26,30").split(",")]
            SP = [int(x) for x in self.o("spos", "10,20").split(",")]
            for p in range(32):
                if p == P[0]:
                    if t == 0: a.wait(tq[2])
                    if j == 1 and nx: a.wait(tKR)
                    if t > 0: self.smf(Vp + 12, Y + 24, 1 - j)
                    if rl and self.o("vpos", -1) < 0: tV[u+1] = rV(u + 1)
                if p == self.o("vpos", -1) and rl: tV[u+1] = rV(u + 1)
                if p == P[1] and nx:
                    self.m2b(Y, 1 - j)
                    if rl: tKR = rKR(u + 1)
                if t == 1 and p == 24 and self.o("kv3", 1): tsig = a.ds("ds_read_b32 v15, v14 offset:4")
                if p in SP and side: side.pop(0)()
                if t == 31 and p in (16, 20, 24): a.ds(f"ds_write_b128 v{AEX}, {vr(O2+(p-16),4)} offset:{256*(p-16)}")
                if t == 31 and p == 28: a.ds(f"ds_write_b32 v{AEX}, v{O2+12} offset:3072")
                if p == P[2]: a.wait(tV[u]); self.smf(Vc, X, j)
                if p == P[3]: self.smf(Vc + 4, X + 8, j)
                if p == P[4] and nx:
                    a.wait(tK0, tK1, tq[3]); self.mqk(Y, 0, 1 - j)
                    if rl: tK0 = rKM(u + 1, 0)
                if p == P[5]: self.smf(Vc + 8, X + 16, j)
                if p == P[6] and nx:
                    self.mqk(Y, 1, 1 - j)
                    if rl: tK1 = rKM(u + 1, 1)
                a(f"v_exp_f32 v{X+p}, v{X+p}")
        assert not side
        a.nop(2)
        self.smf(VS[1] + 12, S_ + 32 + 24, 1)
        self.stamp("attend")
        a("s_setprio 0")
        a.wait_all(vm=False)
        a("s_barrier")
        tl = a.ds(f"ds_read_b32 v{O2+12}, v{APX} offset:3072")
        tp = [a.ds(f"ds_read_b128 {vr(O2+4*k,4)}, v{APX} offset:{1024*k}") for k in range(3)]
        self.fin_pre()
        a.nop(1)
        a.wait(tl); a(f"v_add_f32 v{O_+12}, v{O_+12}, v{O2+12}")
        for k in range(3):
            a.wait(tp[k])
            for e in range(4): a(f"v_add_f32 v{O_+4*k+e}, v{O_+4*k+e}, v{O2+4*k+e}")
    def att_sync(self, k):
        a = self.a
        if k == 0:
            a.wait_all(vm=True, ds=False, force=True)
            L = a.newlabel("NOF3")
            a(f"s_cmp_ge_u32 s{sLW}, s{sNCH}\ns_cbranch_scc1 {L}")
            a(f"s_lshl_b32 s{T0}, s{sCH}, 2\ns_add_u32 s{T0}, s{T0}, {F3:#x}")
            self.flag_store(T0, 14)
            a.label(L)
            a("s_barrier")
            self.stamp("sync0")
            return self.side_kv(16) + self.side_kv(24)
        if k == 1:
            a.wait_all(vm=True, ds=False, force=True)
            a("s_barrier")
            self.stamp("sync1")
            return self.side_x()
        a("s_barrier")
        self.stamp("sync2")
        self.srd(rA, pWO, 640 * 1280)
        return self.side_yd() + self.side_wo()

    def fin_pre(self):
        self.a(f"""v_lshlrev_b32 v2, 3, v0
        s_mov_b32 s{T2}, {f2u(2.0**-60):#x}
        s_mov_b32 s{T3}, {f2u(2.0**60):#x}
        s_mov_b32 s{T4}, 0x7f7fffff""")
    def finish(self):
        a = self.a
        O, TMP = O_, 16
        ACC, OF, WF, GG = 224, 16, 56, 14
        a.label("L_NORM")
        a(f"v_rcp_f32 v{TMP+4}, v{O+12}")
        for e in range(4): a(f"v_add_f32 v{TMP+e}, abs(v{O+e}), abs(v{O+4+e})")
        for e in range(4): a(f"v_add_f32 v{TMP+e}, v{TMP+e}, abs(v{O+8+e})")
        a(f"""v_add_f32 v{TMP}, v{TMP}, v{TMP+1}
        v_add_f32 v{TMP+2}, v{TMP+2}, v{TMP+3}
        v_cmp_le_f32 vcc, s{T2}, v{O+12}
        v_cmp_ge_f32 s[{sM}:{sM+1}], s{T3}, v{O+12}
        v_add_f32 v{TMP}, v{TMP}, v{TMP+2}
        s_nop 0
        s_and_b64 s[{sM}:{sM+1}], s[{sM}:{sM+1}], vcc
        v_cmp_ge_f32 vcc, s{T4}, v{TMP}
        s_nop 1
        s_and_b64 s[{sM}:{sM+1}], s[{sM}:{sM+1}], vcc
        s_cmp_eq_u64 s[{sM}:{sM+1}], exec
        s_cbranch_scc1 L_NORM_OK
        s_cmp_eq_u32 s{sSLOW}, 0
        s_cbranch_scc1 L_SLOW""")
        a.label("L_NORM_OK")
        for e in range(8): a(f"v_mul_f32 v{O+e}, v{O+e}, v{TMP+4}")
        for e in range(4): a(f"v_cvt_pk_bf16_f32 v{TMP+8+e}, v{O+2*e}, v{O+2*e+1}")
        a(f"buffer_store_dwordx4 {vr(TMP+8,4)}, v{L16}, s[{rWS}:{rWS+3}], s{sOMS} offen sc1")
        for e in range(8, 12): a(f"v_mul_f32 v{O+e}, v{O+e}, v{TMP+4}")
        for e in range(4, 6): a(f"v_cvt_pk_bf16_f32 v{TMP+8+e}, v{O+2*e}, v{O+2*e+1}")
        a("s_mov_b32 exec_hi, 0")
        a(f"buffer_store_dwordx2 {vr(TMP+12,2)}, v2, s[{rWS}:{rWS+3}], s{sORS} offen sc1")
        a("s_mov_b32 exec_hi, -1")
        self.srd(rA, pOUT, 2048 * 1280)
        a(f"s_lshl_b32 s{T0}, s{sKH}, 2\ns_add_u32 s{T0}, s{T0}, {L_RDY}\nv_mov_b32 v{AQM}, s{T0}\nv_mov_b32 v{AQR}, 0\nds_write_b32 v{AQM}, v{AQR}")
        a("s_waitcnt vmcnt(0) lgkmcnt(0)\ns_barrier")
        a.reset_counters()
        L = a.newlabel("NOF4")
        a(f"s_cmp_lg_u32 s{sWAVE}, 0\ns_cbranch_scc1 {L}")
        self.flag_store(sF4S, 2)
        a.label(L)
        a.reset_counters()
        self.stamp("F4set")
        tg = a.vm(f"buffer_load_dword v{GG}, v{AG}, s[{rWS}:{rWS+3}], 0 offen sc1")
        def wfrag(step, regstep):
            toks = []
            for b in range(5):
                for q in range(2):
                    if step < 8: ad, off = (WM0 if b < 2 else WM1), (40*step + 8*q)*160 + 32*b
                    else: ad, off = (WR0 if b < 2 else WR1), (160*(step-8) + 80*q)*160 + 32*b
                    t = a.ds(f"ds_read_b64_tr_b16 {vr(int(WF + 20*regstep) + 4*b + 2*q, 2)}, v{ad} offset:{L_WO + off}")
                toks.append(t)
            return toks
        tw = {s: wfrag(s, s) for s in range(8)}
        YR, BB = 2, 16
        ty = [a.ds(f"ds_read_b64_tr_b16 {vr(YR+2*b,2)}, v{AYD} offset:{2048*b}") for b in range(3)]
        keep = [216, 217, 218, 219, 220, 221, 222, 223, 2, 3, 4, 5]
        for b in range(3):
            a.wait(ty[b])
            x, y = XE + 2*b, YR + 2*b
            a(f"""v_lshlrev_b32 v16, 16, v{x}
            v_and_b32 v17, 0xffff0000, v{x}
            v_lshlrev_b32 v18, 16, v{x+1}
            v_and_b32 v19, 0xffff0000, v{x+1}
            v_lshlrev_b32 v20, 16, v{y}
            v_and_b32 v21, 0xffff0000, v{y}
            v_lshlrev_b32 v22, 16, v{y+1}
            v_and_b32 v23, 0xffff0000, v{y+1}""")
            for e in range(4): a(f"v_mul_f32 v{keep[4*b+e]}, v{16+e}, v{20+e}")
        a("v_lshrrev_b32 v16, 4, v0\nv_and_b32 v16, 1, v16\nv_mul_u32_u24 v16, 24, v16")
        a(f"v_add_u32 v15, v16, v{AOUT}\nv_mov_b32 v6, v{AQM}")
        a.wait_all(vm=False)
        sPEND, sR = sM2, T6
        a(f"s_mov_b64 s[{sPEND}:{sPEND+1}], 0xffff")
        def wait_group(done):
            L, N, D = a.newlabel("GW"), a.newlabel("GN"), a.newlabel("GD")
            a(f"s_mov_b32 s{sCNT}, 0\ns_cmp_lg_u32 s{sTB}, 0\ns_cbranch_scc1 {N}")
            a.label(L)
            a(f"""s_mov_b64 exec, s[{sPEND}:{sPEND+1}]
            buffer_load_dword v7, v{AF4}, s[{rWS}:{rWS+3}], 0 offen sc1
            s_waitcnt vmcnt(0)
            v_cmp_eq_u32 vcc, 0, v7
            s_add_u32 s{sCNT}, s{sCNT}, 1
            s_mov_b64 exec, -1
            s_mov_b64 s[{sPEND}:{sPEND+1}], vcc
            s_cmp_ge_u32 s{sCNT}, {POLL_MAX}
            s_cselect_b32 s{sPEND}, 0, s{sPEND}
            s_and_b32 s{T0}, s{sPEND}, 0xff
            s_cselect_b32 s{sR}, 0, 1
            s_and_b32 s{T0}, s{sPEND}, 0xff00
            s_cselect_b32 s{T0}, 0, 2
            s_or_b32 s{sR}, s{sR}, s{T0}
            s_and_b32 s{T0}, s{sR}, {3 - done}
            s_cbranch_scc1 {L}P
            s_sleep {self.o('psleep', 4)}
            s_branch {L}""")
            a.label(L + "P")
            a(f"v_mov_b32 v7, s{sR}\nds_write_b32 v6, v7\ns_branch {D}")
            a.label(N)
            a(f"""ds_read_b32 v7, v6
            s_waitcnt lgkmcnt(0)
            v_readfirstlane_b32 s{sR}, v7
            s_add_u32 s{sCNT}, s{sCNT}, 1
            s_cmp_ge_u32 s{sCNT}, {POLL_MAX*40}
            s_cselect_b32 s{sR}, 3, s{sR}
            s_and_b32 s{T0}, s{sR}, {3 - done}
            s_cbranch_scc1 {D}
            s_sleep 1
            s_branch {N}""")
            a.label(D)
        def oloads(steps, base):
            to = {}
            for k, s in enumerate(steps):
                if s < 8:
                    a(f"s_mov_b32 s{T0}, {s*131072}")
                    to[s] = a.vm(f"buffer_load_dwordx4 {vr(base+4*k,4)}, v{AOM}, s[{rWS}:{rWS+3}], s{T0} offen sc1")
                else:
                    for q in range(2):
                        a(f"s_mov_b32 s{T0}, {(8*(s-8)+4*q)*16384}")
                        to[s] = a.vm(f"buffer_load_dwordx2 {vr(base+4*k+2*q,2)}, v{AOR}, s[{rWS}:{rWS+3}], s{T0} offen sc1")
            return to
        def mm(steps, to, obase, acc, wrem, trem, after=None):
            for k, s in enumerate(steps):
                a.wait(to[s])
                for b in (range(5) if s < 8 else (2, 3, 4, 0, 1)):
                    w = WF + 20*s + 4*b if s < 8 else wrem + 4*b
                    if s >= 8: a.wait(trem()[b])
                    a(f"v_mfma_f32_16x16x32_bf16 {vr(acc+4*b,4)}, {vr(w,4)}, {vr(obase+4*k,4)}, {'0' if k == 0 else vr(acc+4*b,4)}")
                if after: after(s)
        def wrem_to(step, reg): return wfrag(step, (reg - WF) // 20)
        def add_from(src):
            for b in (2, 3, 4, 0, 1):
                for e in range(4): a(f"v_add_f32 v{ACC+4*b+e}, v{ACC+4*b+e}, v{src+4*b+e}")
        G = ([0, 1, 2, 3, 8], [4, 5, 6, 7, 9])
        wait_group(0)
        self.stamp("F4ok")
        a(f"s_cmp_lg_u32 s{sR}, 3\ns_cbranch_scc1 L_P3_PART")
        a.reset_counters()
        order = [0, 1, 2, 3, 8, 4, 5, 6, 7, 9]
        to = oloads(order, OF)
        tr = {}
        def after(s):
            if s == 0: tr[8] = wfrag(8, 0)
            if s == 1: tr[9] = wfrag(9, 1)
        mm(G[0], to, OF, WF + 60 if False else ACC, WF, lambda: tr[8], after)
        mm(G[1], to, OF + 20, WF + 40, WF + 20, lambda: tr[9])
        a.nop(4)
        add_from(WF + 40)
        a.label("L_P3_SUM")
        def part():
            a.label("L_P3_PART")
            a(f"s_cmp_eq_u32 s{sR}, 2\ns_cbranch_scc1 L_P3_B")
            for first in (0, 1):
                if first: a.label("L_P3_B")
                save = WF + 80 * first
                for n, g in enumerate((first, 1 - first)):
                    a.reset_counters()
                    if n: wait_group(1 << first); a.reset_counters()
                    to = oloads(G[g], OF)
                    trem = wfrag(G[g][4], (OF + 20 - WF) / 20)
                    mm(G[g], to, OF, ACC, OF + 20, lambda: trem)
                    a.nop(4 if n else 8)
                    if n: add_from(save)
                    else:
                        for e in range(20): a(f"v_mov_b32 v{save+e}, v{ACC+e}")
                a("s_branch L_P3_SUM")
        self.p3_part = part
        a.reset_counters()
        self.stamp("mfma")
        for b in (2, 3, 4): a.ds(f"ds_write_b128 v{AEX}, {vr(ACC+4*b,4)} offset:{1024*(b-2)}")
        for b in range(3):
            for e in range(4): a(f"v_sub_f32 v{ACC+4*b+e}, v{ACC+4*b+e}, v{keep[4*b+e]}")
        a.wait_all(vm=False)
        a("s_barrier")
        tp = [a.ds(f"ds_read_b128 {vr(16+4*b,4)}, v{AX2} offset:{1024*b}") for b in range(3)]
        fl = self.o('ost', '').replace('+', ' ')
        for b in range(3):
            if b == 2: a(f"s_cmp_lg_u32 s{sKH}, 0\ns_cbranch_scc1 L_FIN")
            a.wait(tp[b])
            for e in range(4): a(f"v_add_f32 v{16+4*b+e}, v{16+4*b+e}, v{ACC+4*b+e}")
            for e in range(4): a(f"v_fmac_f32 v{keep[4*b+e]}, v{GG}, v{16+4*b+e}")
            a(f"v_cvt_pk_bf16_f32 v{32+2*b}, v{keep[4*b]}, v{keep[4*b+1]}\nv_cvt_pk_bf16_f32 v{33+2*b}, v{keep[4*b+2]}, v{keep[4*b+3]}")
            if self.o("o4", 1) and b < 2:
                if b == 1:
                    a("s_nop 1\nv_permlane16_swap_b32 v32, v34\nv_permlane16_swap_b32 v33, v35")
                    a.vm(f"buffer_store_dwordx4 v[32:35], v15, s[{rA}:{rA+3}], 0 offen {fl}")
            else: a.vm(f"buffer_store_dwordx2 {vr(32+2*b,2)}, v{AOUT}, s[{rA}:{rA+3}], 0 offen offset:{32*b} {fl}")
        a.label("L_FIN")
        if self.stamps:
            self.stamp("st")
            a("s_waitcnt vmcnt(0)")
            self.stamp("end")
            a(f"s_lshl_b32 s{T0}, s{sWG}, 3\ns_add_u32 s{T0}, s{T0}, s{sWAVE}\ns_lshl_b32 s{T0}, s{T0}, 8\ns_add_u32 s{T0}, s{T0}, {TS:#x}\nv_lshlrev_b32 v2, 2, v0")
            a(f"buffer_store_dword v1, v2, s[{rWS}:{rWS+3}], s{T0} offen")
            if "enc" in self.opt:
                n0, n1, wv, wg = self.opt["enc"].split(",")
                for n in (n0, n1):
                    if n not in self.names: self.names.append(n)
                a(f"s_cmp_lg_u32 s{sWG}, {wg}\ns_cbranch_scc1 L_END\ns_cmp_lg_u32 s{sWAVE}, {wv}\ns_cbranch_scc1 L_END")
                a(f"v_readlane_b32 s{T1}, v1, {self.names.index(n0)}\nv_readlane_b32 s{T2}, v1, {self.names.index(n1)}\nv_readlane_b32 s{T3}, v1, {self.names.index('end')}\ns_nop 3")
                a(f"s_sub_u32 s{T2}, s{T2}, s{T1}\ns_lshl_b32 s{T2}, s{T2}, 3\ns_and_b32 s{T2}, s{T2}, 0xffff\ns_add_u32 s{T3}, s{T3}, s{T2}")
                a.label("L_ENC")
                a(f"s_memrealtime s[{sTS}:{sTS+1}]\ns_waitcnt lgkmcnt(0)\ns_sub_u32 s{T1}, s{T3}, s{sTS}\ns_cmp_gt_i32 s{T1}, 0\ns_cbranch_scc1 L_ENC")
        a.label("L_END")
        a("s_endpgm")

    def slow(self):
        a = self.a
        S, V, M, AVS = S_, VS[0], 96, 98
        a.label("L_SLOW")
        a(f"""s_mov_b32 s{sSLOW}, 1
        v_and_b32 v{M}, 31, v0
        v_lshrrev_b32 v{AVS}, 5, v0
        v_mul_u32_u24 v{AVS}, 320, v{AVS}
        v_lshl_add_u32 v{AVS}, v{M}, 4, v{AVS}
        v_add_u32 v{AVS}, 2560, v{AVS}
        v_mov_b32 v{M}, 0xff800000""")
        def scores():
            a(f"""buffer_load_dwordx2 {vr(KRM,2)}, v2, s[{rWS}:{rWS+3}], s{T6} offen offset:2048 sc1
            buffer_load_dwordx4 {vr(KM,4)}, v{L16}, s[{rWS}:{rWS+3}], s{T6} offen sc1
            buffer_load_dwordx4 {vr(KM+4,4)}, v{L16}, s[{rWS}:{rWS+3}], s{T6} offen offset:1024 sc1
            s_waitcnt vmcnt(0)""")
            self.m2b(S); a.nop(18); self.mqk(S, 0); self.mqk(S, 1); a.nop(12)
        a(f"s_mov_b32 s{T6}, s{sKVB}\ns_mov_b32 s{sCNT}, 0")
        a.label("L_SLOW1")
        scores()
        for e in range(16): a(f"v_max3_f32 v{M}, v{M}, v{S+2*e}, v{S+2*e+1}")
        a(f"s_add_u32 s{T6}, s{T6}, {KV_US}\ns_add_u32 s{sCNT}, s{sCNT}, 1\ns_cmp_lt_u32 s{sCNT}, 32\ns_cbranch_scc1 L_SLOW1")
        a(f"v_mov_b32 v{M+1}, v{M}\ns_nop 1\nv_permlane32_swap_b32 v{M}, v{M+1}\ns_nop 1\nv_max_f32 v{M}, v{M}, v{M+1}")
        for e in range(16): a(f"v_mov_b32 v{O_+e}, 0")
        a(f"s_mov_b32 s{T6}, s{sKVB}\ns_mov_b32 s{sCNT}, 0")
        a.label("L_SLOW2")
        a(f"s_mov_b64 exec, s[{sVMASK}:{sVMASK+1}]")
        for g in range(4): a(f"buffer_load_dwordx4 {vr(V+4*g,4)}, v{AVS}, s[{rWS}:{rWS+3}], s{T6} offen offset:{640*g} sc1")
        a("s_mov_b64 exec, -1")
        scores()
        for e in range(32): a(f"v_sub_f32 v{S+e}, v{S+e}, v{M}")
        for e in range(32): a(f"v_exp_f32 v{S+e}, v{S+e}")
        a.nop(2)
        for g in range(4): self.smf(V + 4*g, S + 8*g)
        a(f"s_add_u32 s{T6}, s{T6}, {KV_US}\ns_add_u32 s{sCNT}, s{sCNT}, 1\ns_cmp_lt_u32 s{sCNT}, 32\ns_cbranch_scc1 L_SLOW2")
        a.nop(12)
        a("s_branch L_NORM")

    def build(self):
        self.prologue(); self.dma_role(); self.attention(); self.finish(); self.p3_part(); self.setup_sub(); self.side_role(); self.gemm_compute(); self.slow(); self.a.label('L_CODE_END')
        bad = lint(self.a.lines)
        head = f"""; Fused kernel: QKV projection, depthwise convolutions, attention, output projection and gated mix.
; One persistent workgroup per CU; hand-offs through d_ws flags that every launch clears itself (counted in d_debug).
; @launch grid=(256,1,1) block=(512,1,1) lds={LDS_BYTES}
.amdgcn_target "amdgcn-amd-amdhsa--gfx950"
.text
.globl {NAME}
.p2align 8
.type {NAME},@function
{NAME}:
"""
        tail = f""".section .rodata,"a"
.p2align 6
.amdhsa_kernel {NAME}
  .amdhsa_next_free_vgpr 256
  .amdhsa_next_free_sgpr 102
  .amdhsa_accum_offset 256
  .amdhsa_group_segment_fixed_size 0
  .amdhsa_kernarg_size 104
  .amdhsa_user_sgpr_count 2
  .amdhsa_user_sgpr_kernarg_segment_ptr 1
  .amdhsa_system_sgpr_workgroup_id_x 1
  .amdhsa_float_denorm_mode_32 3
.end_amdhsa_kernel
"""
        return head + self.a.text() + tail, bad

if __name__ == "__main__":
    out = sys.argv[1] if len(sys.argv) > 1 else "gated_mix__mha_block__ssm_conv_h3__prompt.s"
    opt = dict(x[2:].split("=") for x in sys.argv if x.startswith("-D"))
    G = Gen(stamps="--stamps" in sys.argv, opt=opt)
    src, bad = G.build()
    if G.stamps: src = src.replace("; @launch", "; STAMPS " + " ".join(G.names) + "\n; @launch", 1)
    for b in bad: print("LINT:", b)
    open(out, "w").write(src)
    print("wrote", out, len(src), "bytes;", len(bad), "lint findings")
```

```python
import re

class Tok:
    __slots__ = ("kind", "idx")
    def __init__(self, kind, idx): self.kind, self.idx = kind, idx

class Asm:
    def __init__(self):
        self.lines = []
        self.reset_counters()
        self.uid = 0
    def reset_counters(self):
        self.n = {"vm": 0, "ds": 0}
        self.done = {"vm": 0, "ds": 0}
    def snapshot(self): return (dict(self.n), dict(self.done))
    def restore(self, s): self.n, self.done = dict(s[0]), dict(s[1])
    def __call__(self, text):
        for l in text.strip("\n").split("\n"):
            l = l.strip()
            if l: self.lines.append(l)
    def label(self, name): self.lines.append(name + ":")
    def newlabel(self, p="L"):
        self.uid += 1
        return f"{p}_{self.uid}"
    def vm(self, text):
        self(text); self.n["vm"] += 1
        assert self.n["vm"] - self.done["vm"] <= 63, "vmcnt overflow"
        return Tok("vm", self.n["vm"])
    def ds(self, text):
        self(text); self.n["ds"] += 1
        return Tok("ds", self.n["ds"])
    def wait(self, *toks):
        need = {}
        for t in toks:
            if t is None: continue
            if isinstance(t, (list, tuple)):
                for x in t:
                    if x is not None and x.idx > self.done[x.kind]: need[x.kind] = max(need.get(x.kind, 0), x.idx)
            elif t.idx > self.done[t.kind]: need[t.kind] = max(need.get(t.kind, 0), t.idx)
        parts = []
        if "vm" in need:
            c = self.n["vm"] - need["vm"]; assert c <= 63
            parts.append(f"vmcnt({c})"); self.done["vm"] = need["vm"]
        if "ds" in need:
            c = self.n["ds"] - need["ds"]
            if c > 15: c = 15;
            parts.append(f"lgkmcnt({c})"); self.done["ds"] = max(need["ds"], self.n["ds"] - c)
        if parts: self("s_waitcnt " + " ".join(parts))
    def wait_all(self, vm=True, ds=True, force=False):
        parts = []
        if vm and (force or self.n["vm"] > self.done["vm"]): parts.append("vmcnt(0)"); self.done["vm"] = self.n["vm"]
        if ds and (force or self.n["ds"] > self.done["ds"]): parts.append("lgkmcnt(0)"); self.done["ds"] = self.n["ds"]
        if parts: self("s_waitcnt " + " ".join(parts))
    def nop(self, n):
        while n > 0:
            k = min(n, 16); self(f"s_nop {k-1}"); n -= k
    def text(self):
        return "\n".join((l if l.endswith(":") or l.startswith(".") or l.startswith(";") else "    " + l) for l in self.lines) + "\n"

def vr(a, n=1): return f"v{a}" if n == 1 else f"v[{a}:{a+n-1}]"
def sr(a, n=1): return f"s{a}" if n == 1 else f"s[{a}:{a+n-1}]"

_REG = re.compile(r"^(-|abs\(|\|)?([vsa])(?:(\d+)|\[(\d+):(\d+)\])\)?\|?$")
def regs_of(op):
    op = op.strip()
    if op in ("vcc", "exec"): return {(op, 0), (op, 1)}
    if op in ("vcc_lo", "exec_lo"): return {(op[:-3], 0)}
    if op in ("vcc_hi", "exec_hi"): return {(op[:-3], 1)}
    if op == "m0": return {("m0", 0)}
    m = _REG.match(op)
    if not m: return set()
    k = m.group(2)
    if m.group(3) is not None: return {(k, int(m.group(3)))}
    return {(k, i) for i in range(int(m.group(4)), int(m.group(5)) + 1)}

TRANS = ("v_exp_", "v_log_", "v_rcp_", "v_rsq_", "v_sqrt_", "v_sin_", "v_cos_")
def passes(mn):
    if "32x32x4_2b" in mn: return 16
    if "32x32" in mn: return 8
    if "16x16" in mn: return 4
    raise ValueError(mn)

class Ins:
    def __init__(self, text):
        self.text = text
        t = text.split(";")[0].strip()
        p = t.split(None, 1)
        self.mn = p[0]
        ops = [o.strip() for o in re.split(r",\s*(?![^\[]*\])", p[1])] if len(p) > 1 else []
        if ops:
            last = ops[-1].split()
            self.mods = last[1:]; ops[-1] = last[0] if last else ""
        else: self.mods = []
        self.ops = ops
        mn = self.mn
        self.mfma = mn.startswith("v_mfma") or mn.startswith("v_smfmac")
        self.valu = mn.startswith("v_") and not self.mfma
        self.trans = mn.startswith(TRANS)
        self.vmem = mn.startswith("buffer_") or mn.startswith("global_")
        self.dsop = mn.startswith("ds_")
        self.salu = mn.startswith("s_")
        R = [regs_of(o) for o in ops]
        w, r = set(), set()
        self.A = self.B = self.C = self.D = set()
        if self.mfma:
            self.D = R[0]; self.A = R[1]; self.B = R[2]
            if mn.startswith("v_smfmac"): self.C = R[0]; self.A = R[1] | R[3]
            else: self.C = R[3]
            w = self.D; r = self.A | self.B | self.C
        elif self.valu:
            if mn.startswith("v_cmp"):
                w = R[0]; r = set().union(*R[1:])
                if mn.startswith("v_cmpx"): w = w | regs_of("exec")
            elif mn.startswith("v_permlane") and "swap" in mn:
                w = R[0] | R[1]; r = R[0] | R[1]
            elif "_co_" in mn:
                w = R[0] | R[1]; r = set().union(*R[2:])
            elif mn in ("v_nop",): pass
            else:
                w = R[0]; r = set().union(*R[1:]) if len(R) > 1 else set()
                if mn.startswith(("v_fmac", "v_dot2c", "v_writelane", "v_pk_fmac")): r |= R[0]
                if mn.startswith("v_cndmask") and len(ops) == 3: r |= regs_of("vcc")
        elif self.vmem:
            if "lds" in self.mods or "_lds_" in mn:
                r = set().union(*R) | {("m0", 0)}
            elif "load" in mn: w = R[0]; r = set().union(*R[1:])
            elif mn in ("buffer_wbl2", "buffer_inv"): pass
            else:
                r = set().union(*R)
                if "atomic" in mn and "sc0" in self.mods: w = R[0]
        elif self.dsop:
            if "read" in mn or "permute" in mn or "swizzle" in mn: w = R[0]; r = set().union(*R[1:])
            else: r = set().union(*R)
        elif self.salu:
            if mn.startswith(("s_cmp", "s_cbranch", "s_branch", "s_waitcnt", "s_nop", "s_barrier", "s_endpgm", "s_sleep", "s_setprio", "s_bitcmp")):
                r = set().union(*R) if R else set()
            else:
                w = R[0] if R else set(); r = set().union(*R[1:]) if len(R) > 1 else set()
                if "saveexec" in mn: w = w | regs_of("exec")
        self.w, self.r = w, r
        self.ws = int(ops[0]) + 1 if mn == "s_nop" else 1
        self.widestore = (self.vmem and "store" in mn and ("x4" in mn or "x3" in mn))
        self.stdata = R[0] if self.widestore else set()

def need_states(p, c):
    n = 0
    sg = lambda s: {x for x in s if x[0] in ("s", "vcc")}
    vg = lambda s: {x for x in s if x[0] in ("v", "a")}
    if p.valu:
        pw = vg(p.w)
        if c.mfma and pw & c.r: n = max(n, 2)
        if p.trans and c.valu and not c.trans and pw & c.r: n = max(n, 1)
        if p.trans and c.valu and c.trans and pw & c.r: n = max(n, 1)
        if c.mn.startswith("v_permlane") and pw & c.r: n = max(n, 2)
        if c.mn.startswith(("v_readlane", "v_readfirstlane")) and pw & c.r: n = max(n, 1)
        if c.valu and any(m.startswith(("row_", "quad_perm", "wave_", "row_bcast")) for m in c.mods) and pw & c.r: n = max(n, 2)
        ps = sg(p.w)
        if c.valu and ps & c.r: n = max(n, 4 if c.mn.startswith(("v_readlane", "v_writelane")) else 2)
        if c.vmem and ps & c.r: n = max(n, 5)
        if c.salu and ps & c.r: n = max(n, 1)
        if ("exec", 0) in p.w and (c.mfma or c.mn.startswith(("v_permlane", "v_read", "v_write"))): n = max(n, 4)
    if p.salu and ("m0", 0) in p.w and c.vmem and ("m0", 0) in c.r: n = max(n, 1)
    if p.widestore and p.stdata & c.w: n = max(n, 2)
    if p.mfma:
        k = passes(p.mn); i = {4: 0, 8: 1, 16: 2}[k]
        if c.mfma:
            if p.D & (c.A | c.B): n = max(n, (8, 12, 20)[i])
            if p.D & c.C:
                if not (p.D == c.C and passes(c.mn) == k): n = max(n, (6, 10, 18)[i])
            elif p.D & c.D and not (p.D == c.D and passes(c.mn) == k): n = max(n, (6, 10, 18)[i])
        else:
            if p.D & (c.r | c.w): n = max(n, (8, 12, 20)[i])
            if c.valu and p.C & c.w: n = max(n, (3, 7, 15)[i])
    return n

def lint(lines):
    ins = []
    for l in lines:
        if l.endswith(":") or l.startswith(".") or l.startswith(";"): continue
        ins.append(Ins(l))
    bad = []
    for j, c in enumerate(ins):
        d = 0
        for i in range(j - 1, max(-1, j - 24), -1):
            p = ins[i]
            if p.mn in ("s_branch", "s_endpgm"): break
            n = need_states(p, c)
            if n > d: bad.append(f"need {n} have {d}: [{p.text}] -> [{c.text}]")
            d += p.ws
            if d >= 20: break
    return bad

def lint_cfg(lines):
    ins, lab = [], {}
    for l in lines:
        if l.startswith(";") or l.startswith("."): continue
        if l.endswith(":"): lab[l[:-1]] = len(ins); continue
        ins.append(Ins(l))
    pred = [[] for _ in range(len(ins) + 1)]
    rets = {}
    for i, x in enumerate(ins):
        if x.mn not in ("s_branch", "s_endpgm", "s_setpc_b64", "s_call_b64"): pred[i + 1].append(i)
        if x.mn == "s_branch" or x.mn.startswith("s_cbranch"): pred[lab[x.ops[0]]].append(i)
        if x.mn == "s_call_b64":
            t = lab[x.ops[1]]; pred[t].append(i)
            j = t
            while ins[j].mn != "s_setpc_b64": j += 1
            pred[i + 1].append(j)
    bad = set()
    for j, c in enumerate(ins):
        if not (c.r or c.w): continue
        stack = [(p, 0) for p in pred[j]]; seen = {}
        while stack:
            i, d = stack.pop()
            if seen.get(i, 99) <= d: continue
            seen[i] = d
            p = ins[i]
            n = need_states(p, c)
            if n > d: bad.add(f"need {n} have {d}: [{p.text}] -> [{c.text}]")
            d2 = d + p.ws
            if d2 < 20: stack += [(q, d2) for q in pred[i]]
    return sorted(bad)
```

```python
import sys, math, struct
from asmlib import *

NAME = "gated_mix__mha_block__ssm_conv_h3__prompt_kernel"
def f2u(x): return struct.unpack("<I", struct.pack("<f", x))[0]

KV, QO, UR, YD, OM, ORM = 0, 0x500000, 0x780000, 0xA00000, 0xC80000, 0xE80000
F2, F4, F3, F5, GT, F1 = 0xF04000, 0xF08000, 0xF0C000, 0xF0D000, 0xF0E000, 0xFA0000
TS = 0xF10000
WS_SIZE = 0x1000000
KV_HS, KV_US = 163840, 5120
Q_HS, Q_US = 81920, 2560
NSLOT = 3
L_X, L_W = 0, 49152
L_Q, L_SIG = 81920, 162048
L_CONV, CONV_SZ, CS, U_OFF = 98304, 21248, 4160, 16640
L_WO, L_YD, L_EX, L_RDY = 0, 102400, 112640, 145408
LDS_BYTES = 163840
sWG, sWAVE = 2, 3
pX, pW, pWO, pWS, pK, pV, pSH, pH, pD, pGW, pOUT, pDBG = 4, 6, 8, 10, 12, 14, 16, 18, 20, 22, 24, 26
rWS, rA, rB, rC, rD = 28, 32, 36, 40, 44
sXCD, sI, sJT, sRT, sPRT, sCJ, sCH0, sNCH, sHEAD, sQB = 48, 49, 50, 51, 52, 53, 54, 55, 56, 57
sLW, sCH, sKH, sTB, sCNT, sSLOW = 58, 59, 60, 61, 62, 63
T0, T1, T2, T3, T4, T5, T6, T7 = 64, 65, 66, 67, 68, 69, 70, 71
sM = 72
sVMASK = 74
sTS = 76
sE = 78
sSC = 86
sKVB, sKVW, sOMS, sORS, sF4S, sCL = 87, 88, 89, 90, 91, 92
sNB, sBC, sU, sK = 93, 94, 78, 96
sM2 = 98
sKVG = 97
sRET = 52
sPI, sNU, sG = 100, 101, 95
POLL_MAX = 200000
IDX, AKM, AKR, AV, L16, AQM, AQR, AF3, YDV = 224, 225, 226, 227, 228, 229, 230, 231, 232
WOV = 233
F3T = 238
ONES, APX, AQM2, AQR2 = 240, 241, 242, 243
QM2, QR2, O2 = 128, 132, 144
WM0, WM1, WR0, WR1, AOM, AOR, AOUT, AG, AEX, AX2, AYD, AF4 = 244, 245, 246, 247, 248, 249, 250, 251, 252, 253, 254, 255
O_, QM, QR, KRM, KM, S_ = 192, 32, 36, 38, 40, 64
VS = (48, 208)
XE = 8

class Gen:
    def __init__(self, stamps=False, opt=None):
        self.a = Asm(); self.stamps = stamps; self.names = []; self.opt = opt or {}
        self.nt = " nt" if int(self.opt.get("nt", 1)) else ""
        self.gnt = " nt" if int(self.opt.get("gnt", 0)) else ""
    def o(self, k, d): return type(d)(self.opt.get(k, d))
    def srd(self, r, p, size):
        self.a(f"s_mov_b32 s{r}, s{p}\ns_mov_b32 s{r+1}, s{p+1}\ns_mov_b32 s{r+2}, {size:#x}\ns_mov_b32 s{r+3}, 0x20000")
    def stamp(self, name):
        if not self.stamps: return
        if self.o("lite", 0) and name not in ("start", "att0", "attend", "end"): return
        if name not in self.names: self.names.append(name)
        k = self.names.index(name); assert k < 58
        if name == "start": self.a("s_mov_b32 s99, s76")
        self.a(f"s_memrealtime s[{sTS}:{sTS+1}]\ns_waitcnt lgkmcnt(0)\nv_writelane_b32 v1, s{sTS}, {k}")
        if name in ("l.b5", "l.b9"): self.a(f"s_memtime s[{sTS}:{sTS+1}]\ns_waitcnt lgkmcnt(0)\nv_writelane_b32 v1, s{sTS}, {58 if name == 'l.b5' else 59}")
        if name in ("att0", "attend"): self.a(f"s_memtime s[{sTS}:{sTS+1}]\ns_waitcnt lgkmcnt(0)\nv_writelane_b32 v1, s{sTS}, {60 if name == 'att0' else 61}")
        if name == "start":
            if "entry" not in self.names: self.names.append("entry")
            self.a(f"v_writelane_b32 v1, s99, {self.names.index('entry')}")
        if name == "start": self.a(f"s_memtime s[{sTS}:{sTS+1}]\ns_waitcnt lgkmcnt(0)\nv_writelane_b32 v1, s{sTS}, 62")
        if name == "end": self.a(f"s_memtime s[{sTS}:{sTS+1}]\ns_waitcnt lgkmcnt(0)\nv_writelane_b32 v1, s{sTS}, 63")
        self.a.done["ds"] = self.a.n["ds"]
    def poll(self, loads, tmp, cmp=None):
        a = self.a
        L, D = a.newlabel("POLL"), a.newlabel("POLLD")
        a(f"s_mov_b32 s{sCNT}, 0")
        a.label(L)
        k = 0
        for (va, r, imm, wd) in loads:
            ins = {1: "buffer_load_dword", 2: "buffer_load_dwordx2", 4: "buffer_load_dwordx4"}[wd]
            a(f"{ins} {vr(tmp+k, wd)}, v{va}, s[{r}:{r+3}], 0 offen offset:{imm} sc1"); k += wd
        a("s_waitcnt vmcnt(0)")
        a.done["vm"] = a.n["vm"]
        self.poll_check(tmp, k, cmp)
        a(f"s_cbranch_scc1 {D}")
        a(f"s_add_u32 s{sCNT}, s{sCNT}, 1\ns_cmp_lt_u32 s{sCNT}, {POLL_MAX}\ns_cbranch_scc0 {D}\ns_sleep 1\ns_branch {L}")
        a.label(D)
    def mpoll(self, addrs, tmp, elastic=False):
        a = self.a
        L, D = a.newlabel("MP"), a.newlabel("MPD")
        M = [sM, sM2][:len(addrs)]
        a(f"s_mov_b32 s{sCNT}, 0")
        for m in M: a(f"s_mov_b64 s[{m}:{m+1}], -1")
        a.label(L)
        for k, (va, m) in enumerate(zip(addrs, M)):
            S = a.newlabel("MS")
            a(f"s_mov_b64 exec, s[{m}:{m+1}]\ns_cbranch_execz {S}\nbuffer_load_dword v{tmp+k}, v{va}, s[{rWS}:{rWS+3}], 0 offen sc1")
            a.label(S)
        a("s_mov_b64 exec, -1")
        if elastic: self.ewait()
        else: a("s_waitcnt vmcnt(0)")
        a.done["vm"] = a.n["vm"]
        for k, m in enumerate(M):
            a(f"v_cmp_eq_u32 vcc, 0, v{tmp+k}\ns_nop 1\ns_and_b64 s[{m}:{m+1}], s[{m}:{m+1}], vcc")
        if len(M) == 2: a(f"s_or_b64 vcc, s[{sM}:{sM+1}], s[{sM2}:{sM2+1}]")
        a(f"s_cbranch_scc0 {D}")
        a(f"s_add_u32 s{sCNT}, s{sCNT}, 1\ns_cmp_lt_u32 s{sCNT}, {POLL_MAX}\ns_cbranch_scc0 {D}\ns_sleep {self.o('psleep', 2)}\ns_branch {L}")
        a.label(D)
    def last_flag(self, off, sN, sAddr, vt, base=L_SIG):
        a = self.a
        L = a.newlabel("NL")
        a(f"""v_mov_b32 v{vt}, {base}
        v_mov_b32 v{vt+1}, 1
        s_mov_b64 exec, 1
        ds_add_rtn_u32 v{vt+1}, v{vt}, v{vt+1} offset:{off}
        s_waitcnt lgkmcnt(0)
        v_readfirstlane_b32 s{T0}, v{vt+1}
        s_mov_b64 exec, -1
        s_add_u32 s{T0}, s{T0}, 1
        s_cmp_lg_u32 s{T0}, {sN}
        s_cbranch_scc1 {L}""")
        self.flag_store(sAddr, vt, two=True)
        a.label(L)
    def poll_check(self, tmp, k, cmp=None):
        a = self.a
        for j in range(1, k, 2):
            if j + 1 < k: a(f"v_min3_u32 v{tmp}, v{tmp}, v{tmp+j}, v{tmp+j+1}")
            else: a(f"v_min_u32 v{tmp}, v{tmp}, v{tmp+j}")
        a(cmp or f"v_cmp_ne_u32 vcc, 0, v{tmp}")
        a("s_nop 1\ns_cmp_eq_u64 vcc, exec")
    def flag_store(self, s, vt, two=False):
        a = self.a
        a(f"v_lshl_add_u32 v{vt}, v0, 2, s{s}\nv_mov_b32 v{vt+1}, 1\ns_mov_b64 exec, {3 if two else 1}")
        t = a.vm(f"buffer_store_dword v{vt+1}, v{vt}, s[{rWS}:{rWS+3}], 0 offen sc1")
        a("s_mov_b64 exec, -1")
        return t

    def prologue(self):
        a = self.a
        if self.stamps: a("s_memrealtime s[76:77]")
        a(f"s_cmp_ge_u32 s{sWG}, 256\ns_cbranch_scc1 L_END")
        if self.opt.get("diag") == "spin":
            a("s_mov_b32 s60, 2500\nv_mov_b32 v10, 0")
            a.label("L_DSPIN")
            for e in range(8): a(f"v_exp_f32 v{11+e}, v10")
            a("s_sub_u32 s60, s60, 1\ns_cmp_lg_u32 s60, 0\ns_cbranch_scc1 L_DSPIN")
        if self.opt.get("diag") == "chain":
            a("s_load_dwordx2 s[32:33], s[0:1], 24\ns_waitcnt lgkmcnt(0)\ns_mov_b32 s34, 2621440\ns_mov_b32 s35, 0x20000\ns_mul_i32 s60, s2, 256\nv_mov_b32 v10, s60")
            for e in range(32): a("buffer_load_dword v12, v10, s[32:35], 0 offen\ns_waitcnt vmcnt(0)\nv_and_b32 v12, 0, v12\nv_add_u32 v10, v10, v12\nv_add_u32 v10, 0x13000, v10")
        if self.opt.get("diag") == "bq":
            a("s_load_dwordx2 s[32:33], s[0:1], 24\ns_waitcnt lgkmcnt(0)\ns_mov_b32 s34, 2621440\ns_mov_b32 s35, 0x20000\nv_lshlrev_b32 v10, 4, v0\ns_mul_i32 s60, s2, 10240")
            a("buffer_load_dwordx4 v[12:15], v10, s[32:35], s60 offen\ns_add_u32 s60, s60, 2048\nbuffer_load_dwordx4 v[16:19], v10, s[32:35], s60 offen\ns_waitcnt vmcnt(0)")
        a(f"""s_load_dwordx4 s[4:7], s[0:1], 0
        s_load_dwordx16 s[12:27], s[0:1], 32
        s_load_dwordx2 s[10:11], s[0:1], 96
        s_load_dwordx2 s[8:9], s[0:1], 16
        v_lshrrev_b32 v1, 6, v0
        v_and_b32 v0, 63, v0
        s_and_b32 s{sXCD}, s{sWG}, 7
        v_readfirstlane_b32 s{sWAVE}, v1
        s_lshr_b32 s{sI}, s{sWG}, 3
        s_and_b32 s{T0}, s{sXCD}, 1
        s_mul_i32 s{T0}, s{T0}, 30
        s_add_u32 s{T0}, s{T0}, s{sI}
        s_lshr_b32 s{sJT}, s{T0}, 2
        s_and_b32 s{T0}, s{T0}, 3
        s_lshr_b32 s{T1}, s{sXCD}, 1
        s_lshl_b32 s{T1}, s{T1}, 2
        s_add_u32 s{sRT}, s{T0}, s{T1}
        s_sub_u32 s{sLW}, s{sWAVE}, 4
        s_mul_i32 s{T0}, s{sXCD}, 30
        s_add_u32 s{sPI}, s{T0}, s{sI}
        s_mul_i32 s{sG}, s{sPI}, 171
        s_lshr_b32 s{sG}, s{sG}, 9
        s_mul_i32 s{T1}, s{sG}, 3
        s_sub_u32 s{T1}, s{sPI}, s{T1}
        s_lshl_b32 s{T2}, s{sG}, 3
        s_mul_i32 s{T3}, s{T1}, 3
        s_add_u32 s{sCH0}, s{T2}, s{T3}
        s_lshr_b32 s{T1}, s{T1}, 1
        s_sub_u32 s{sNCH}, 3, s{T1}
        s_lshl_b32 s{T0}, s{sXCD}, 1
        s_add_u32 s{T0}, s{T0}, s{sI}
        s_add_u32 s{T0}, s{T0}, 210
        s_cmp_ge_u32 s{sI}, 30
        s_cselect_b32 s{sPI}, s{T0}, s{sPI}
        s_cselect_b32 s{sNCH}, 0, s{sNCH}
        s_cselect_b32 s{sNU}, 8, 2""")
        if self.o("cpf", 1) == 2: self.code_prefetch()
        a(f"""s_cmp_lt_u32 s{sWAVE}, 4
        s_cbranch_scc1 L_COMPUTE
        s_cmp_gt_u32 s{sWAVE}, 4
        s_cbranch_scc1 L_SIDE""")
    def code_prefetch(self):
        a = self.a
        L = a.newlabel("NOPF")
        a(f"""s_cmp_lg_u32 s{sWAVE}, 1
        s_cbranch_scc1 {L}
        s_getpc_b64 s[{T2}:{T3}]
        L_PC:
        s_sub_u32 s{T2}, s{T2}, L_PC-{NAME}
        s_subb_u32 s{T3}, s{T3}, 0
        s_and_b32 s{T0}, s{sI}, 7
        s_lshl_b32 s{T0}, s{T0}, 13
        v_lshl_add_u32 v10, v0, 7, s{T0}
        v_min_u32 v10, L_CODE_END-{NAME}-4, v10
        global_load_dword v31, v10, s[{T2}:{T3}]""")
        a.label(L)
    def common_scalars(self):
        self.a(f"""s_cmp_ge_u32 s{sI}, 30
        s_cselect_b32 s{sNB}, 1, 10
        s_mov_b32 s{sBC}, 0
        s_lshr_b32 s{T0}, s{sI}, 3
        s_lshl_b32 s{T1}, s{sXCD}, 2
        s_add_u32 s{sHEAD}, s{T0}, s{T1}
        s_and_b32 s{sQB}, s{sI}, 7
        s_lshr_b32 s{sKH}, s{sWAVE}, 2
        s_and_b32 s{sTB}, s{sWAVE}, 3
        s_mov_b32 s{sSLOW}, 0
        s_mov_b32 s{sVMASK}, 0x000fffff
        s_mov_b32 s{sVMASK+1}, 0x000fffff""")
    def setup_call(self):
        if self.o("sub", 1): self.a(f"s_call_b64 s[{sRET}:{sRET+1}], L_SETUP")
        else: self.common_scalars(); self.persistent()
    def setup_sub(self):
        if not self.o("sub", 1): return
        self.a.label("L_SETUP")
        self.common_scalars(); self.persistent()
        self.a(f"s_setpc_b64 s[{sRET}:{sRET+1}]")
    def persistent(self, t=192):
        a = self.a
        a(f"""s_mov_b32 s{sM}, 0x11000000
        s_mov_b32 s{sM+1}, 0x11000000
        v_mov_b32 v{t}, 0x3f803f80
        v_cndmask_b32 v{ONES}, 0, v{t}, s[{sM}:{sM+1}]""")
        a(f"""v_mov_b32 v{IDX}, 0xdddddddd
        v_lshlrev_b32 v{AKM}, 4, v0
        v_lshlrev_b32 v{L16}, 4, v0
        v_lshlrev_b32 v{t}, 3, v0
        v_add_u32 v{AKR}, 2048, v{t}
        v_and_b32 v{t+1}, 31, v0
        v_lshrrev_b32 v{t+2}, 5, v0
        v_mul_u32_u24 v{t+2}, 320, v{t+2}
        v_lshl_add_u32 v{t+2}, v{t+1}, 4, v{t+2}
        v_add_u32 v{AV}, 2560, v{t+2}
        s_mul_i32 s{T0}, s{sKH}, {KV_US}
        v_add_u32 v{AKM}, s{T0}, v{AKM}
        v_add_u32 v{AKR}, s{T0}, v{AKR}
        v_add_u32 v{AV}, s{T0}, v{AV}
        s_mul_i32 s{T0}, s{sTB}, {Q_US}
        s_add_u32 s{T0}, s{T0}, {L_Q}
        s_lshl_b32 s{T2}, s{sKH}, 10
        s_add_u32 s{T2}, s{T2}, s{T0}
        v_add_u32 v{AQM}, s{T2}, v{L16}
        s_lshl_b32 s{T1}, s{sKH}, 8
        s_add_u32 s{T1}, s{T1}, s{T0}
        v_lshl_add_u32 v{AQR}, v{t+1}, 3, s{T1}
        s_xor_b32 s{T3}, s{sKH}, 1
        s_lshl_b32 s{T2}, s{T3}, 10
        s_add_u32 s{T2}, s{T2}, s{T0}
        v_add_u32 v{AQM2}, s{T2}, v{L16}
        s_lshl_b32 s{T1}, s{T3}, 8
        s_add_u32 s{T1}, s{T1}, s{T0}
        v_lshl_add_u32 v{AQR2}, v{t+1}, 3, s{T1}
        s_mul_i32 s{sKVB}, s{sHEAD}, {KV_HS}
        s_mul_i32 s{sKVW}, s{sWAVE}, {KV_US}
        s_add_u32 s{sKVG}, s{sKVW}, s{sKVB}
        s_lshl_b32 s{T0}, s{sHEAD}, 16
        s_lshl_b32 s{T1}, s{sQB}, 2
        s_add_u32 s{T1}, s{T1}, s{sTB}
        s_lshl_b32 s{T1}, s{T1}, 1
        s_add_u32 s{T1}, s{T1}, s{sKH}
        s_lshl_b32 s{T2}, s{T1}, 10
        s_add_u32 s{T0}, s{T0}, s{T2}
        s_add_u32 s{sOMS}, s{T0}, {OM:#x}
        s_lshl_b32 s{T2}, s{sHEAD}, 14
        s_lshl_b32 s{T1}, s{T1}, 8
        s_add_u32 s{T1}, s{T1}, s{T2}
        s_add_u32 s{sORS}, s{T1}, {ORM:#x}
        s_lshl_b32 s{T0}, s{sQB}, 11
        s_lshl_b32 s{T1}, s{sHEAD}, 6
        s_add_u32 s{T0}, s{T0}, s{T1}
        s_add_u32 s{sF4S}, s{T0}, {F4:#x}""")
        a(f"""s_mul_i32 s{T0}, s{sQB}, 320
        s_add_u32 s{T0}, s{T0}, {F3:#x}
        v_lshl_add_u32 v{AF3}, v0, 3, s{T0}
        s_lshr_b32 s{T0}, s{sHEAD}, 1
        s_lshl_b32 s{T0}, s{T0}, 6
        s_add_u32 s{T0}, s{T0}, {F5:#x}
        v_mov_b32 v{t}, s{T0}
        s_mov_b32 s{sM}, 0
        s_mov_b32 s{sM+1}, 0xffffff00
        v_cndmask_b32 v{AF3}, v{AF3}, v{t}, s[{sM}:{sM+1}]""")
        a(f"s_mul_i32 s{T0}, s{sWAVE}, {13*64}\ns_mul_i32 s{T1}, s{sQB}, 160")
        for k in range(5):
            a(f"""s_add_u32 s{T2}, s{T0}, {64*k}
            v_add_u32 v{t}, s{T2}, v0
            v_mul_u32_u24 v{t+1}, 52429, v{t}
            v_lshrrev_b32 v{t+1}, 19, v{t+1}
            v_mul_u32_u24 v{t+1}, {1280-160}, v{t+1}
            v_lshl_add_u32 v{t+1}, v{t}, 4, v{t+1}
            v_add_u32 v{WOV+k}, s{T1}, v{t+1}""")
        a(f"""s_mul_i32 s{T0}, s{sQB}, 80
        s_mul_i32 s{T1}, s{sWAVE}, 10
        s_add_u32 s{T0}, s{T0}, s{T1}
        v_lshrrev_b32 v{t}, 3, v0
        v_add_u32 v{t}, s{T0}, v{t}
        v_lshlrev_b32 v{t}, 12, v{t}
        v_and_b32 v{t+1}, 7, v0
        v_lshl_add_u32 v{t}, v{t+1}, 4, v{t}
        s_lshl_b32 s{T0}, s{sHEAD}, 7
        s_add_u32 s{T0}, s{T0}, {YD:#x}
        v_add_u32 v{YDV}, s{T0}, v{t}""")
        q, r, c8, tt, b0 = t, t + 1, t + 2, t + 3, t + 4
        a(f"""v_lshrrev_b32 v{q}, 4, v0
        v_lshrrev_b32 v{r}, 2, v0
        v_and_b32 v{r}, 3, v{r}
        v_and_b32 v{c8}, 3, v0
        v_lshlrev_b32 v{c8}, 3, v{c8}
        v_and_b32 v{tt}, 15, v0
        v_and_b32 v{b0}, 1, v{q}
        s_mul_i32 s{T2}, s{sKH}, {51200 + 96}
        s_mul_i32 s{T3}, s{sKH}, {51200 - 64}
        v_lshrrev_b32 v{t+5}, 1, v{q}
        v_mul_u32_u24 v{t+5}, 20, v{t+5}
        v_lshl_add_u32 v{t+5}, v{b0}, 2, v{t+5}
        v_add_u32 v{t+5}, v{t+5}, v{r}
        v_mul_u32_u24 v{t+5}, 160, v{t+5}
        v_add_u32 v{t+5}, v{t+5}, v{c8}
        v_add_u32 v{WM0}, s{T2}, v{t+5}
        v_add_u32 v{WM1}, s{T3}, v{t+5}
        v_mul_u32_u24 v{t+5}, 20, v{q}
        v_add3_u32 v{t+5}, v{t+5}, v{r}, 16
        v_mul_u32_u24 v{t+5}, 160, v{t+5}
        v_add_u32 v{t+5}, v{t+5}, v{c8}
        v_add_u32 v{WR0}, s{T2}, v{t+5}
        v_add_u32 v{WR1}, s{T3}, v{t+5}
        s_lshl_b32 s{T2}, s{sKH}, 20
        s_lshl_b32 s{T3}, s{sHEAD}, 11
        s_add_u32 s{T2}, s{T2}, s{T3}
        s_lshr_b32 s{T3}, s{sTB}, 1
        s_lshl_b32 s{T4}, s{T3}, 10
        s_add_u32 s{T2}, s{T2}, s{T4}
        s_and_b32 s{T4}, s{sTB}, 1
        s_lshl_b32 s{T4}, s{T4}, 8
        s_add_u32 s{T2}, s{T2}, s{T4}
        s_add_u32 s{T2}, s{T2}, {OM:#x}
        v_lshrrev_b32 v{t+5}, 1, v{q}
        v_lshlrev_b32 v{t+5}, 16, v{t+5}
        v_lshl_add_u32 v{t+5}, v{b0}, 9, v{t+5}
        v_lshl_add_u32 v{t+5}, v{tt}, 4, v{t+5}
        v_add_u32 v{AOM}, s{T2}, v{t+5}
        s_lshl_b32 s{T2}, s{sKH}, 18
        s_lshl_b32 s{T4}, s{sHEAD}, 9
        s_add_u32 s{T2}, s{T2}, s{T4}
        s_lshl_b32 s{T4}, s{sTB}, 7
        s_add_u32 s{T2}, s{T2}, s{T4}
        s_add_u32 s{T2}, s{T2}, {ORM:#x}
        v_lshlrev_b32 v{t+5}, 14, v{q}
        v_lshl_add_u32 v{t+5}, v{tt}, 3, v{t+5}
        v_add_u32 v{AOR}, s{T2}, v{t+5}
        s_lshr_b32 s{T2}, s{sHEAD}, 2
        s_lshl_b32 s{T2}, s{T2}, 11
        s_add_u32 s{T2}, s{T2}, {F4:#x}
        s_lshl_b32 s{T3}, s{sKH}, 10
        s_add_u32 s{T2}, s{T2}, s{T3}
        v_lshl_add_u32 v{AF4}, v{tt}, 6, s{T2}
        s_lshl_b32 s{T0}, s{sHEAD}, 6
        s_lshl_b32 s{T1}, s{sTB}, 4
        s_add_u32 s{T0}, s{T0}, s{T1}
        v_add_u32 v{t+5}, s{T0}, v{tt}
        v_lshlrev_b32 v{AG}, 2, v{t+5}
        v_add_u32 v{AG}, {GT:#x}, v{AG}
        v_mul_u32_u24 v{t+5}, 1280, v{t+5}
        v_lshl_add_u32 v{t+5}, v{q}, 3, v{t+5}
        s_mul_i32 s{T0}, s{sQB}, 160
        s_mul_i32 s{T1}, s{sKH}, 96
        s_add_u32 s{T0}, s{T0}, s{T1}
        v_add_u32 v{AOUT}, s{T0}, v{t+5}
        s_lshl_b32 s{T0}, s{sWAVE}, 12
        s_add_u32 s{T0}, s{T0}, {L_EX}
        v_add_u32 v{AEX}, s{T0}, v{L16}
        s_xor_b32 s{T0}, s{sWAVE}, 4
        s_lshl_b32 s{T0}, s{T0}, 12
        s_add_u32 s{T1}, s{T0}, {L_EX}
        v_add_u32 v{APX}, s{T1}, v{L16}
        s_lshl_b32 s{T1}, s{sKH}, 10
        s_add_u32 s{T1}, s{T1}, s{T0}
        s_add_u32 s{T1}, s{T1}, {L_EX}
        v_add_u32 v{AX2}, s{T1}, v{L16}
        v_lshl_add_u32 v{AYD}, v{q}, 2, v{r}
        v_lshl_add_u32 v{AYD}, v{AYD}, 7, v{c8}
        s_mul_i32 s{T0}, s{sKH}, {48*128}
        s_lshl_b32 s{T1}, s{sTB}, 5
        s_add_u32 s{T0}, s{T0}, s{T1}
        s_add_u32 s{T0}, s{T0}, {L_YD}
        v_add_u32 v{AYD}, s{T0}, v{AYD}""")
    def att_init_list(self):
        if self.o("ones", 2) == 12:
            return [f"v_mov_b32 v{O_+e}, 0" for e in range(16)] + [f"v_mov_b32 v{st+e}, 0x3f803f80" for st in VS for e in range(16)]
        return [f"v_mov_b32 v{O_+e}, 0" for e in range(16)] + [f"v_mov_b32 v{st+e}, v{ONES}" for st in VS for e in range(16)]

    def flag_reset(self):
        a = self.a
        L = a.newlabel("NOZ")
        a(f"s_cmp_lg_u32 s{sWAVE}, 0\ns_cbranch_scc1 {L}")
        a(f"""s_lshl_b32 s{T0}, s{sPI}, 6
        s_add_u32 s{T0}, s{T0}, {F1:#x}
        v_mov_b32 v12, s{T0}
        v_and_b32 v10, 3, v0
        v_lshlrev_b32 v11, 2, v10
        v_add_u32 v13, s{sCL}, v11
        s_mov_b32 s{sM}, 0xf
        s_mov_b32 s{sM+1}, 0
        v_cndmask_b32 v12, v12, v13, s[{sM}:{sM+1}]
        s_lshl_b32 s{T0}, s{sCH0}, 2
        s_add_u32 s{T0}, s{T0}, {F3:#x}
        v_add_u32 v13, s{T0}, v11
        s_lshl_b32 s{sM}, 16, s{sNCH}
        s_sub_u32 s{sM}, s{sM}, 16
        v_cndmask_b32 v12, v12, v13, s[{sM}:{sM+1}]
        s_lshl_b32 s{T0}, s{sQB}, 11
        s_lshl_b32 s{T1}, s{sHEAD}, 6
        s_add_u32 s{T0}, s{T0}, s{T1}
        s_add_u32 s{T0}, s{T0}, {F4:#x}
        v_mov_b32 v13, s{T0}
        s_mov_b32 s{sM}, 0x100
        v_cndmask_b32 v12, v12, v13, s[{sM}:{sM+1}]
        s_lshl_b32 s{T0}, s{sG}, 6
        s_add_u32 s{T0}, s{T0}, {F1 + 256*64:#x}
        v_mov_b32 v13, s{T0}
        s_cmp_lt_u32 s{sG}, 32
        s_cselect_b32 s{T1}, s{sNCH}, 0
        s_cmp_eq_u32 s{T1}, 2
        s_cselect_b32 s{sM}, 0x200, 0
        v_cndmask_b32 v12, v12, v13, s[{sM}:{sM+1}]
        v_mov_b32 v13, 0
        s_mov_b32 exec_lo, 0x3ff
        s_mov_b32 exec_hi, 0
        buffer_store_dword v13, v12, s[{rWS}:{rWS+3}], 0 offen sc1
        s_mov_b64 exec, 1""")
        self.srd(rA, pDBG, 256)
        a(f"""s_and_b32 s{T0}, s{sWG}, 1
        s_lshl_b32 s{T0}, s{T0}, 7
        v_mov_b32 v12, s{T0}
        v_mov_b32 v13, 1
        s_waitcnt vmcnt(0)
        buffer_atomic_add v13, v12, s[{rA}:{rA+3}], 0 offen sc1
        s_mov_b64 exec, -1""")
        a.label(L)

    XA, WA, XA2, WA2, EA = 2, 6, 128, 132, 136
    def gemm_compute(self):
        a = self.a
        XA, WA = self.XA, self.WA
        a.label("L_COMPUTE")
        if self.o("cpf", 1) == 1: self.code_prefetch()
        self.common_scalars()
        a(f"""s_lshl_b32 s{T0}, s{sJT}, 10
        s_lshl_b32 s{T1}, s{sRT}, 6
        s_add_u32 s{T0}, s{T0}, s{T1}
        s_add_u32 s{sCL}, s{T0}, {F2:#x}
        s_lshl_b32 s{T0}, s{sXCD}, 1
        s_add_u32 s{T0}, s{T0}, s{sI}
        s_sub_u32 s{T7}, s{T0}, 30
        s_lshl_b32 s{T0}, s{T7}, 6
        s_add_u32 s{T0}, s{T0}, {F5:#x}
        s_cmp_ge_u32 s{sI}, 30
        s_cselect_b32 s{sCL}, s{T0}, s{sCL}
        s_waitcnt lgkmcnt(0)""")
        self.srd(rWS, pWS, WS_SIZE)
        if self.stamps: a("v_mov_b32 v1, 0")
        self.stamp("start")
        self.flag_reset()
        self.setup_call()
        for l in self.att_init_list():
            if int(l.split()[1][1:-1]) >= 192: a(l)
        a(f"s_cmp_eq_u32 s{sWAVE}, 0\ns_cbranch_scc1 L_C_NW\ns_waitcnt vmcnt(0)")
        a.label("L_C_NW")
        a(f"s_cmp_ge_u32 s{sI}, 30\ns_cbranch_scc1 L_C_NOTILE")
        a(f"""s_and_b32 s{T0}, s{sWAVE}, 1
        s_lshl_b32 s{T0}, s{T0}, 13
        v_and_b32 v8, 31, v0
        v_lshrrev_b32 v9, 5, v0
        v_lshrrev_b32 v10, 1, v8
        v_and_b32 v10, 7, v10
        v_xor_b32 v10, v10, v9
        v_lshlrev_b32 v8, 7, v8
        v_add_u32 v8, s{T0}, v8""")
        for ks in range(4):
            a(f"v_xor_b32 v11, {2*ks}, v10\nv_lshl_add_u32 v{XA+ks}, v11, 4, v8")
        a(f"""v_lshrrev_b32 v8, 2, v0
        v_and_b32 v8, 3, v8
        v_lshrrev_b32 v9, 5, v0
        v_lshl_add_u32 v9, v9, 3, v8
        v_lshlrev_b32 v9, 8, v9
        v_lshrrev_b32 v10, 4, v0
        v_and_b32 v10, 1, v10
        v_lshlrev_b32 v10, 1, v10
        v_lshrrev_b32 v11, 1, v0
        v_and_b32 v11, 1, v11
        v_or_b32 v10, v10, v11
        v_and_b32 v11, 1, v0
        v_lshlrev_b32 v11, 3, v11
        v_add_u32 v9, v9, v11
        v_add_u32 v9, {L_W}, v9
        s_and_b32 s{T0}, s{sWAVE}, 2""")
        for i in range(2):
            a(f"""s_add_u32 s{T1}, s{T0}, {i}
            v_xor_b32 v11, s{T1}, v8
            v_lshl_add_u32 v11, v11, 2, v10
            v_lshl_add_u32 v{WA+i}, v11, 4, v9""")
        def lowinit():
            for l in self.att_init_list():
                if int(l.split()[1][1:-1]) < 192: a(l)
        a(f"s_setprio {self.o('gprio', 3)}")
        a(f"s_cmp_ge_u32 s{sJT}, 10\ns_cbranch_scc1 L_C_VTILE")
        self.epi_qk_setup()
        self.gemm_loop(False, self.gemm_epi_qk, lowinit)
        a("s_branch L_C_FLAG")
        a.label("L_C_NOTILE")
        a(f"s_call_b64 s[{sRET}:{sRET+1}], L_SPARE")
        self.stamp("g.pre")
        self.sig_wait(8, 8)
        self.stamp("g.go")
        self.gate()
        lowinit()
        a("s_branch L_C_FLAG")
        a.label("L_C_VTILE")
        self.epi_v_setup()
        self.gemm_loop(True, self.gemm_epi_v, lowinit)
        a.label("L_C_FLAG")
        a.reset_counters()
        self.stamp("c.epi")
        L = a.newlabel("KVW")
        a(f"s_cmp_eq_u32 s{sWAVE}, 3\ns_cbranch_scc1 {L}")
        a("s_waitcnt vmcnt(0)")
        self.last_flag(12, 4, sCL, 2)
        self.stamp("c.F2set")
        a("s_branch L_ATT")
        a.label(L)
        self.kv_fetch_setup()
        a(f"buffer_load_dword v29, v28, s[{rC}:{rC+3}], 0 offen sc1")
        a("s_waitcnt vmcnt(0)")
        self.last_flag(12, 4, sCL, 2)
        self.kv_fetch()
        a("s_branch L_ATT")

    def gate(self):
        a = self.a
        a.reset_counters()
        X, W, Z = 32, 12, 2
        self.srd(rA, pX, 2048 * 1280); self.srd(rB, pGW, 1280)
        a(f"""s_lshl_b32 s{T0}, s{T7}, 7
        s_lshl_b32 s{T1}, s{sWAVE}, 5
        s_add_u32 s{T6}, s{T0}, s{T1}
        v_lshrrev_b32 v10, 4, v0
        v_add_u32 v11, s{T6}, v10
        v_mul_u32_u24 v11, 1280, v11
        v_and_b32 v2, 15, v0
        v_lshlrev_b32 v3, 4, v2
        v_add_u32 v11, v11, v3""")
        for j in range(5): tw = a.vm(f"buffer_load_dwordx4 {vr(W+4*j,4)}, v3, s[{rB}:{rB+3}], 0 offen offset:{256*j}")
        tx = []
        for g in range(8):
            a(f"s_mov_b32 s{T0}, {5120*g}")
            for j in range(5): t = a.vm(f"buffer_load_dwordx4 {vr(X+20*g+4*j,4)}, v11, s[{rA}:{rA+3}], s{T0} offen offset:{256*j}")
            tx.append(t)
        a(f"""v_lshl_add_u32 v10, v2, 2, v10
        v_add_u32 v10, s{T6}, v10
        v_lshlrev_b32 v10, 2, v10
        v_add_u32 v10, {GT:#x}, v10
        v_mov_b32 v11, v2""")
        for g in range(8):
            a.wait(tw, tx[g])
            for e in range(20):
                a(f"v_dot2_f32_bf16 v{Z+g}, v{X+20*g+e}, v{W+e}, {'0' if e == 0 else f'v{Z+g}'}")
        a.nop(3)
        for sh in (8, 4, 2, 1):
            for g in range(8): a(f"v_add_f32_dpp v{Z+g}, v{Z+g}, v{Z+g} row_ror:{sh} row_mask:0xf bank_mask:0xf")
        for g in range(1, 8):
            a(f"v_cmp_eq_u32 vcc, {g}, v11\ns_nop 1\nv_cndmask_b32 v{Z}, v{Z}, v{Z+g}, vcc")
        a(f"""v_mul_f32 v{Z}, {f2u(-math.log2(math.e)):#x}, v{Z}
        v_exp_f32 v{Z}, v{Z}
        s_mov_b32 exec_lo, 0x00ff00ff
        v_add_f32 v{Z}, 1.0, v{Z}
        v_rcp_f32 v{Z}, v{Z}
        s_mov_b32 exec_hi, 0x00ff00ff
        buffer_store_dword v{Z}, v10, s[{rWS}:{rWS+3}], 0 offen sc1
        s_mov_b64 exec, -1""")

    def gemm_loop(self, vt, epi, fill):
        a = self.a
        a.reset_counters()
        FR, ACC = 32, 64
        def reads(s, ks):
            st = FR + 16 * (ks & 1); sl = s % NSLOT
            xa, wa, sl = (self.XA, self.WA, sl * 16384) if sl < 4 else (self.XA2, self.WA2, 0)
            rx = lambda j: (lambda: a.ds(f"ds_read_b128 {vr(st+4*j,4)}, v{xa+ks} offset:{sl + 4096*j}"))
            rw = lambda i, q: (lambda: a.ds(f"ds_read_b64_tr_b16 {vr(st+8+4*i+2*q,2)}, v{wa+i} offset:{sl + (16*ks+4*q)*256}"))
            if vt: return [("X0", rx(0)), ("W0", rw(0,0)), ("W0", rw(0,1)), ("W1", rw(1,0)), ("W1", rw(1,1)), ("X1", rx(1))]
            return [("W0", rw(0,0)), ("W0", rw(0,1)), ("X0", rx(0)), ("X1", rx(1)), ("W1", rw(1,0)), ("W1", rw(1,1))]
        def group(ks, toks, nxt, first):
            st = FR + 16 * (ks & 1); out = {}
            sched = [int(x) for x in self.o('gs', '3300')]; k = 0
            for m, (i, j) in enumerate(((0,0),(0,1),(1,0),(1,1))):
                if vt: A, B, na, nb = st + 4*i, st + 8 + 4*j, f"X{i}", f"W{j}"
                else:  A, B, na, nb = st + 8 + 4*i, st + 4*j, f"W{i}", f"X{j}"
                a.wait(toks[na], toks[nb])
                d = ACC + 16 * (2*i + j)
                a(f"v_mfma_f32_32x32x16_bf16 {vr(d,16)}, {vr(A,4)}, {vr(B,4)}, {'0' if first else vr(d,16)}")
                for _ in range(sched[m]):
                    if k < len(nxt): out[nxt[k][0]] = nxt[k][1](); k += 1
            return out
        a("s_barrier")
        toks = {}
        for n, f in reads(0, 0): toks[n] = f()
        for s in range(9):
            for ks in range(4):
                if ks < 3:
                    toks = group(ks, toks, reads(s, ks + 1), s == 0 and ks == 0)
                else:
                    a.wait_all(vm=False); a("s_barrier")
                    if s < 8: toks = group(ks, toks, reads(s + 1, 0), False)
        sets = (FR, 152, 168, 8)
        T = {}
        def rd(ks, nm):
            st = sets[ks]; sl = (9 % NSLOT) * 16384; k = int(nm[1])
            if nm[0] == "X": T[ks, nm] = a.ds(f"ds_read_b128 {vr(st+4*k,4)}, v{self.XA+ks} offset:{sl + 4096*k}")
            else:
                for q in range(2): T[ks, nm] = a.ds(f"ds_read_b64_tr_b16 {vr(st+8+4*k+2*q,2)}, v{self.WA+k} offset:{sl + (16*ks+4*q)*256}")
        na, nb = ("X", "W") if vt else ("W", "X")
        first = [(lambda ks=ks, nm=nm: rd(ks, nm)) for ks in range(4) for nm in (na + "0", nb + "0")]
        later = [(lambda ks=ks: rd(ks, nb + "1")) for ks in range(4)] + [(lambda ks=ks: rd(ks, na + "1")) for ks in range(4)]
        group(3, toks, [(f"f{i}", f) for i, f in enumerate(first[:6])], False)
        for f in first[6:]: f()
        off = lambda nm: 4 * int(nm[1]) + (0 if nm[0] == "X" else 8)
        pend = []
        for bi, (i, j) in enumerate(((0,0),(0,1),(1,0),(1,1))):
            d = ACC + 16 * (2*i + j)
            for ks in range(4):
                a.wait(T[ks, f"{na}{i}"], T[ks, f"{nb}{j}"])
                a(f"v_mfma_f32_32x32x16_bf16 {vr(d,16)}, {vr(sets[ks]+off(f'{na}{i}'),4)}, {vr(sets[ks]+off(f'{nb}{j}'),4)}, {vr(d,16)}")
                if bi < 2 and later: later.pop(0)()
                if bi >= 2:
                    n = -(-len(pend) // (4 - ks + (4 if bi == 2 else 0)))
                    for _ in range(min(n, 9)): pend.pop(0)()
            if bi == 1: pend += epi(0, 0)
            if bi == 1: pend += epi(0, 1)
            if bi == 2: last = epi(1, 0)
        for f in pend: f()
        for f in last: f()
        for f in epi(1, 1): f()
        fill()

    def epi_qk_setup(self):
        a = self.a
        sBASE, sHS, sPQ = T0, T1, T3
        a(f"""s_mov_b32 s{sHS}, {Q_HS}
        s_mov_b32 s{T4}, {Q_US}
        s_cmp_ge_u32 s{sJT}, 5
        s_cselect_b32 s{sHS}, {KV_HS}, s{sHS}
        s_cselect_b32 s{T4}, {KV_US}, s{T4}
        s_cselect_b32 s{sBASE}, {KV}, {QO:#x}
        s_cselect_b32 s{T5}, 5, 0
        s_cselect_b64 s[{sM}:{sM+1}], -1, 0
        s_cselect_b32 s{sSC}, 1.0, {f2u(math.log2(math.e) / math.sqrt(20.0)):#x}
        s_sub_u32 s{T5}, s{sJT}, s{T5}
        s_lshl_b32 s{sPQ}, s{T5}, 4
        s_and_b32 s{T5}, s{sWAVE}, 2
        s_lshl_b32 s{T5}, s{T5}, 2
        s_add_u32 s{sPQ}, s{sPQ}, s{T5}
        s_lshl_b32 s{T5}, s{sRT}, 1
        s_and_b32 s{T6}, s{sWAVE}, 1
        s_add_u32 s{T5}, s{T5}, s{T6}
        s_mul_i32 s{T5}, s{T5}, s{T4}
        s_add_u32 s{sBASE}, s{sBASE}, s{T5}
        v_and_b32 v8, 31, v0
        v_and_b32 v9, 0x13, v0
        v_and_b32 v10, 4, v0
        v_lshl_or_b32 v9, v10, 1, v9
        v_and_b32 v10, 8, v0
        v_lshrrev_b32 v10, 1, v10
        v_or_b32 v9, v9, v10
        v_cndmask_b32 v8, v8, v9, s[{sM}:{sM+1}]
        v_lshrrev_b32 v9, 5, v0
        v_lshlrev_b32 v10, 3, v9
        v_lshl_add_u32 v12, v8, 4, v10
        v_add_u32 v13, 1024, v12
        v_mul_lo_u32 v10, v9, s{sHS}
        v_lshl_add_u32 v14, v8, 3, v10
        v_add_u32 v14, 1024, v14
        v_add_u32 v15, 256, v14""")
        for p in range(8):
            a(f"""s_add_u32 s{T4}, s{sPQ}, {p}
            s_mul_i32 s{T5}, s{T4}, 205
            s_lshr_b32 s{T5}, s{T5}, 10
            s_mul_i32 s{T6}, s{T5}, 5
            s_sub_u32 s{T4}, s{T4}, s{T6}
            s_lshl_b32 s{T5}, s{T5}, 1
            s_mul_i32 s{T5}, s{T5}, s{sHS}
            s_add_u32 s{T5}, s{T5}, s{sBASE}
            s_lshl_b32 s{T6}, s{T4}, 9
            s_add_u32 s{T5}, s{T5}, s{T6}
            s_sub_u32 s{T6}, s{sHS}, 1536
            s_cmp_ge_u32 s{T4}, 3
            s_cselect_b32 s{T6}, s{T6}, 0
            s_add_u32 s{sE+p}, s{T5}, s{T6}
            s_cmp_eq_u32 s{T4}, 2
            s_cselect_b64 s[{sM}:{sM+1}], -1, 0""")
            for j in range(2): a(f"v_cndmask_b32 v{self.EA+2*p+j}, v{12+j}, v{14+j}, s[{sM}:{sM+1}]")
    def gemm_epi_qk(self, i, j):
        a = self.a; L = []
        for g in range(4):
            d = 64 + 16 * (2*i + j) + 4*g
            for e in range(4): L.append(lambda d=d, e=e: a(f"v_mul_f32 v{d+e}, s{sSC}, v{d+e}"))
            L.append(lambda d=d: a(f"v_cvt_pk_bf16_f32 v{d}, v{d}, v{d+1}"))
            L.append(lambda d=d: a(f"v_cvt_pk_bf16_f32 v{d+1}, v{d+2}, v{d+3}"))
            L.append(lambda d=d, g=g: a.vm(f"buffer_store_dwordx2 {vr(d,2)}, v{self.EA+2*(4*i+g)+j}, s[{rWS}:{rWS+3}], s{sE+4*i+g} offen sc1"))
        return L
    def epi_v_setup(self):
        a = self.a
        a(f"""s_sub_u32 s{T0}, s{sJT}, 10
        s_lshl_b32 s{T0}, s{T0}, 7
        s_and_b32 s{T1}, s{sWAVE}, 2
        s_lshl_b32 s{T1}, s{T1}, 5
        s_add_u32 s{T0}, s{T0}, s{T1}
        s_lshl_b32 s{T1}, s{sRT}, 1
        s_and_b32 s{T2}, s{sWAVE}, 1
        s_add_u32 s{T1}, s{T1}, s{T2}
        s_mul_i32 s{T1}, s{T1}, {KV_US}
        s_add_u32 s{sE}, s{T1}, {KV + 2560}
        s_mov_b32 s{T2}, {KV_HS - 320}
        v_and_b32 v8, 31, v0
        v_lshrrev_b32 v9, 5, v0
        v_mul_u32_u24 v9, 320, v9""")
        for j in range(2):
            a(f"""v_add_u32 v10, s{T0}, v8
            v_add_u32 v10, {32*j}, v10
            v_mul_u32_u24 v11, 3277, v10
            v_lshrrev_b32 v11, 16, v11
            v_mul_lo_u32 v11, v11, s{T2}
            v_lshl_add_u32 v10, v10, 4, v9
            v_add_u32 v{self.EA+j}, v10, v11""")
    def gemm_epi_v(self, i, j):
        a = self.a; L = []
        for s in range(2):
            d = 64 + 16 * (2*i + j) + 8*s
            for e in range(4): L.append(lambda d=d, e=e: a(f"v_cvt_pk_bf16_f32 v{d+e}, v{d+2*e}, v{d+2*e+1}"))
            L.append(lambda d=d, s=s: a.vm(f"buffer_store_dwordx4 {vr(d,4)}, v{self.EA+j}, s[{rWS}:{rWS+3}], s{sE} offen offset:{(2*i+s)*640} sc1"))
        return L

    XS, WS_, PA, PB, PW, PS, HA, HL = 2, 6, 10, 11, 12, 13, 14, 15
    KR_, VV_, SW_, HD_, DV_, PO_ = 16, 176, 116, 132, 156, 160
    def dma_setup(self):
        a = self.a
        a(f"""v_lshrrev_b32 v16, 3, v0
        v_and_b32 v17, 7, v0
        v_lshrrev_b32 v18, 1, v16
        s_lshl_b32 s{T0}, s{sRT}, 7
        v_add_u32 v16, s{T0}, v16
        v_mul_u32_u24 v16, 1280, v16""")
        for n in range(4):
            a(f"""v_xor_b32 v19, {(4*n) & 7}, v18
            v_xor_b32 v19, v19, v17
            v_lshl_add_u32 v19, v19, 4, v16
            v_add_u32 v{self.XS+n}, {n*(8*1280-1024)}, v19""")
        a(f"""v_lshrrev_b32 v16, 4, v0
        v_and_b32 v17, 15, v0
        v_lshlrev_b32 v18, 2, v16
        v_xor_b32 v17, v17, v18
        v_mul_u32_u24 v16, 3840, v16
        v_lshl_add_u32 v16, v17, 4, v16
        s_lshl_b32 s{T0}, s{sJT}, 8
        v_add_u32 v{self.WS_}, s{T0}, v16""")
        for n in range(1, 4): a(f"v_add_u32 v{self.WS_+n}, {n*(4*3840-1024)}, v{self.WS_}")
        P = self.o("rot", 1)
        a(f"s_add_u32 s{T0}, s{sJT}, s{sRT}")
        if P == 1: a(f"s_mov_b32 s{sK}, 0")
        elif P == 2: a(f"s_and_b32 s{T0}, s{T0}, 1\ns_mul_i32 s{sK}, s{T0}, 5")
        elif P == 3: a(f"s_mul_i32 s{T1}, s{T0}, 43\ns_lshr_b32 s{T1}, s{T1}, 7\ns_mul_i32 s{T1}, s{T1}, 3\ns_sub_u32 s{T0}, s{T0}, s{T1}\ns_mul_i32 s{T0}, s{T0}, 7\ns_lshr_b32 s{sK}, s{T0}, 1")
        elif P == 4: a(f"s_and_b32 s{T0}, s{T0}, 3\ns_mul_i32 s{T0}, s{T0}, 5\ns_lshr_b32 s{sK}, s{T0}, 1")
    def stage_dma(self, s):
        a = self.a
        sl = (s % NSLOT) * 16384
        a(f"s_lshl_b32 s{T0}, s{sK}, 7\ns_mul_i32 s{T1}, s{sK}, {64*3840}")
        def ld(txt):
            if a.n["vm"] - a.done["vm"] >= 62: a.wait(Tok("vm", a.done["vm"] + 8))
            return a.vm(txt)
        for h in range(4):
            a(f"s_mov_b32 m0, {L_X + sl + 4096*h}")
            a(f"s_add_u32 s{T2}, s{T0}, {32*1280*h}")
            for n in range(4): ld(f"buffer_load_dwordx4 v{self.XS+n}, s[{rA}:{rA+3}], s{T2} offen offset:{1024*n}{' nt' if s < self.o('gnt0', 0) else ''} lds")
            a(f"s_mov_b32 m0, {L_W + sl + 4096*h}")
            a(f"s_add_u32 s{T2}, s{T1}, {16*3840*h}")
            for n in range(4): t = ld(f"buffer_load_dwordx4 v{self.WS_+n}, s[{rB}:{rB+3}], s{T2} offen offset:{1024*n}{' nt' if s < self.o('gnt0', 0) else ''} lds")
        a(f"s_add_u32 s{sK}, s{sK}, 1\ns_cmp_eq_u32 s{sK}, 10\ns_cselect_b32 s{sK}, 0, s{sK}")
        return t
    def conv_scalars(self):
        a = self.a
        a(f"""s_min_u32 s{T0}, s{sLW}, 2
        s_add_u32 s{sCH}, s{sCH0}, s{T0}
        s_min_u32 s{sCH}, s{sCH}, 639
        s_mul_i32 s{T0}, s{T0}, {CONV_SZ}
        s_add_u32 s{T6}, s{T0}, {L_CONV}
        s_lshl_b32 s{T1}, s{sCH}, 1
        v_mov_b32 v{self.DV_}, s{T1}
        s_lshl_b32 s{T1}, s{sCH}, 12
        v_lshl_add_u32 v{self.HA}, v0, 4, s{T1}
        v_lshl_add_u32 v{self.HL}, v0, 4, s{T6}""")
        self.srd(rD, pH, 640 * 4096)
        a(f"s_mov_b32 m0, s{T6}\ns_nop 0")
        if "h" not in self.o("ab", ""):
            for g in range(4): a.vm(f"buffer_load_dwordx4 v{self.HA}, s[{rD}:{rD+3}], 0 offen offset:{1024*g}{self.nt} lds")
        self.srd(rC, pD, 640 * 2)
        return a.vm(f"buffer_load_ushort v{self.DV_}, v{self.DV_}, s[{rC}:{rC+3}], 0 offen")
    def pre_setup(self):
        self.a(f"""s_and_b32 s{T0}, s{sU}, 63
        s_lshr_b32 s{T1}, s{sU}, 6
        s_lshl_b32 s{T5}, s{sPI}, 6
        s_add_u32 s{T5}, s{T5}, {F1:#x}
        s_lshl_b32 s{T0}, s{T0}, 5
        s_lshl_b32 s{T1}, s{T1}, 7
        v_lshrrev_b32 v16, 3, v0
        v_and_b32 v17, 7, v0
        v_lshl_add_u32 v16, v16, 2, s{T0}
        v_lshl_add_u32 v18, v17, 4, s{T1}
        v_mul_u32_u24 v19, 1280, v16
        v_add_u32 v{self.PB}, v19, v18
        v_subrev_u32 v{self.PA}, 3840, v{self.PB}
        v_lshlrev_b32 v{self.PW}, 2, v18
        v_lshlrev_b32 v18, 11, v18
        v_lshlrev_b32 v16, 1, v16
        v_sub_u32 v18, v18, v16
        v_add_u32 v{self.PS}, {UR + 4088:#x}, v18""")
    def pre_loads(self):
        a = self.a
        if "k" in self.o("ab", ""): return
        self.srd(rC, pK, 2048 * 1280); self.srd(rD, pV, 2048 * 1280); self.srd(rB, pSH, 640 * 8)
        for j in range(4): a(f"buffer_load_dwordx4 {vr(self.KR_+12+4*j,4)}, v{self.PB}, s[{rC}:{rC+3}], 0 offen offset:{1280*j}{self.nt}")
        for j in range(4): a(f"buffer_load_dwordx4 {vr(self.VV_+4*j,4)}, v{self.PB}, s[{rD}:{rD+3}], 0 offen offset:{1280*j}{self.nt}")
        for j in range(3): a(f"buffer_load_dwordx4 {vr(self.KR_+4*j,4)}, v{self.PA}, s[{rC}:{rC+3}], 0 offen offset:{1280*j}{self.nt}")
        for j in range(4): a(f"buffer_load_dwordx4 {vr(self.SW_+4*j,4)}, v{self.PW}, s[{rB}:{rB+3}], 0 offen offset:{16*j}")
    def h_loads(self, D):
        a = self.a
        if "h" in self.o("ab", ""): return
        for g in range(4):
            a.vm(f"buffer_load_dwordx4 {vr(D+6*g,4)}, v{self.HA}, s[{rD}:{rD+3}], 0 offen offset:{1024*g}{self.nt}")
            a.vm(f"buffer_load_dwordx2 {vr(D+6*g+4,2)}, v{self.HA}, s[{rD}:{rD+3}], 0 offen offset:{1024*g+16}{self.nt}")
    def bar(self):
        a = self.a; L = a.newlabel("NB")
        a(f"s_cmp_ge_u32 s{sBC}, s{sNB}\ns_cbranch_scc1 {L}\ns_barrier\ns_add_u32 s{sBC}, s{sBC}, 1")
        a.label(L)
    def bar_rest(self):
        a = self.a; L, D = a.newlabel("BR"), a.newlabel("BRD")
        a.label(L)
        a(f"s_cmp_ge_u32 s{sBC}, s{sNB}\ns_cbranch_scc1 {D}\ns_barrier\ns_add_u32 s{sBC}, s{sBC}, 1\ns_branch {L}")
        a.label(D)
    def ewait(self, n=1):
        a = self.a; L, L2, D = a.newlabel("EW"), a.newlabel("EX"), a.newlabel("EWD")
        a.label(L)
        a(f"s_mov_b32 s{T1}, {n}")
        a.label(L2)
        a(f"""s_getreg_b32 s{T0}, hwreg(HW_REG_IB_STS)
        s_and_b32 s{T0}, s{T0}, 0x00c0000f
        s_cbranch_scc0 {D}
        s_cmp_ge_u32 s{sBC}, s{sNB}
        s_cbranch_scc1 {D}""")
        if n > 1: a(f"s_sleep 1\ns_sub_u32 s{T1}, s{T1}, 1\ns_cmp_lg_u32 s{T1}, 0\ns_cbranch_scc1 {L2}")
        a(f"""s_barrier
        s_add_u32 s{sBC}, s{sBC}, 1
        s_branch {L}""")
        a.label(D)
        a("s_waitcnt vmcnt(0)")
    def epoll(self, loads, tmp, cmp=None):
        a = self.a
        L, D = a.newlabel("EP"), a.newlabel("EPD")
        a(f"s_mov_b32 s{sCNT}, 0")
        a.label(L)
        k = 0
        for (va, r, imm, wd) in loads:
            ins = {1: "buffer_load_dword", 2: "buffer_load_dwordx2", 4: "buffer_load_dwordx4"}[wd]
            a(f"{ins} {vr(tmp+k, wd)}, v{va}, s[{r}:{r+3}], 0 offen offset:{imm} sc1"); k += wd
        self.ewait()
        self.poll_check(tmp, k, cmp)
        a(f"s_cbranch_scc1 {D}")
        a(f"s_add_u32 s{sCNT}, s{sCNT}, 1\ns_cmp_lt_u32 s{sCNT}, {POLL_MAX}\ns_cbranch_scc0 {D}\ns_sleep 1\ns_branch {L}")
        a.label(D)
    def pre_compute_list(self):
        L = []
        K, V, W, AC = 76, 90, 98, 106
        lo = lambda d, s: L.append(f"v_lshlrev_b32 v{d}, 16, v{s}")
        hi = lambda d, s: L.append(f"v_and_b32 v{d}, 0xffff0000, v{s}")
        for p in range(4):
            for j in range(7): lo(K+2*j, self.KR_+4*j+p); hi(K+2*j+1, self.KR_+4*j+p)
            for j in range(4): lo(V+2*j, self.VV_+4*j+p); hi(V+2*j+1, self.VV_+4*j+p)
            w = self.SW_ + 4*p
            lo(W, w); lo(W+1, w+2); hi(W+2, w); hi(W+3, w+2); lo(W+4, w+1); lo(W+5, w+3); hi(W+6, w+1); hi(W+7, w+3)
            for lag in (3, 2, 1, 0):
                for t in range(4):
                    kk = K + 2*(3 + t - lag)
                    if self.o("pk", 1):
                        if lag == 3: L.append(f"v_pk_mul_f32 {vr(AC+2*t,2)}, {vr(kk,2)}, {vr(W+2*lag,2)}")
                        else: L.append(f"v_pk_fma_f32 {vr(AC+2*t,2)}, {vr(kk,2)}, {vr(W+2*lag,2)}, {vr(AC+2*t,2)}")
                    else:
                        for h in range(2):
                            if lag == 3: L.append(f"v_mul_f32 v{AC+2*t+h}, v{kk+h}, v{W+2*lag+h}")
                            else: L.append(f"v_fmac_f32 v{AC+2*t+h}, v{kk+h}, v{W+2*lag+h}")
            for t in range(4):
                if self.o("pk", 1): L.append(f"v_pk_mul_f32 {vr(AC+2*t,2)}, {vr(AC+2*t,2)}, {vr(V+2*t,2)}")
                else:
                    for h in range(2): L.append(f"v_mul_f32 v{AC+2*t+h}, v{AC+2*t+h}, v{V+2*t+h}")
            for h in range(2):
                o = self.PO_ + 4*p + 2*h
                L.append(f"v_cvt_pk_bf16_f32 v{o}, v{AC+6+h}, v{AC+4+h}"); L.append(f"v_cvt_pk_bf16_f32 v{o+1}, v{AC+2+h}, v{AC+h}")
        return L
    def pre_stores(self):
        a = self.a
        if "s" in self.o("ab", ""): return
        if not self.o("st4", 1):
            for e in range(8):
                a(f"s_mov_b32 s{T0}, {4096*e}")
                a(f"buffer_store_dwordx2 {vr(self.PO_+2*e,2)}, v{self.PS}, s[{rWS}:{rWS+3}], s{T0} offen sc1")
            return
        for e in range(8): a(f"ds_write_b64 v{(self.PA, self.PW)[e & 1]}, {vr(self.PO_+2*e,2)} offset:{64*(e & 6)}")
        for k in range(1, 4): a(f"v_xor_b32 v{76+k}, {32*k}, v{self.PB}")
        a("s_waitcnt lgkmcnt(0)")
        for k in range(4): a(f"ds_read_b128 {vr(self.PO_+4*k,4)}, v{76+k if k else self.PB} offset:{1024*k}")
        for k in range(4):
            a(f"s_mov_b32 s{T0}, {65536*k}\ns_waitcnt lgkmcnt({3-k})")
            a(f"buffer_store_dwordx4 {vr(self.PO_+4*k,4)}, v{self.PS}, s[{rWS}:{rWS+3}], s{T0} offen sc1")
    def pre_store_setup(self, spare=False):
        if not self.o("st4", 1): return
        assert (L_CONV + CONV_SZ + 2*CS) % 128 == 0 and CONV_SZ % 128 == 0 and (L_CONV + U_OFF) % 128 == 0
        if spare: self.a(f"s_lshl_b32 s{T0}, s{sWAVE}, 12")
        else: self.a(f"""s_mul_i32 s{T0}, s{sLW}, {CONV_SZ}
        s_add_u32 s{T0}, s{T0}, {L_CONV + 2*CS}
        s_cmp_eq_u32 s{sWAVE}, 7
        s_cselect_b32 s{T0}, {L_CONV + U_OFF}, s{T0}""")
        self.a(f"""v_and_b32 v76, 7, v0
        v_lshrrev_b32 v77, 3, v0
        v_sub_u32 v77, 7, v77
        v_lshrrev_b32 v78, 1, v77
        v_xor_b32 v78, v78, v76
        v_lshlrev_b32 v78, 4, v78
        v_and_b32 v77, 1, v77
        v_lshl_add_u32 v78, v77, 3, v78
        v_lshl_add_u32 v78, v76, 9, v78
        v_add_u32 v{self.PA}, s{T0}, v78
        v_xor_b32 v{self.PW}, 64, v{self.PA}
        v_lshrrev_b32 v76, 5, v0
        v_and_b32 v77, 31, v0
        v_xor_b32 v77, v77, v76
        v_lshlrev_b32 v77, 4, v77
        v_lshl_add_u32 v76, v76, 9, v77
        v_add_u32 v{self.PB}, s{T0}, v76
        s_lshr_b32 s{T1}, s{sU}, 6
        s_lshl_b32 s{T1}, s{T1}, 18
        s_and_b32 s{T0}, s{sU}, 63
        s_lshl_b32 s{T0}, s{T0}, 6
        s_sub_u32 s{T1}, s{T1}, s{T0}
        s_add_u32 s{T1}, s{T1}, {UR + 4032:#x}
        v_lshrrev_b32 v76, 2, v0
        v_lshlrev_b32 v76, 12, v76
        v_and_b32 v77, 3, v0
        v_lshl_add_u32 v76, v77, 4, v76
        v_add_u32 v{self.PS}, s{T1}, v76""")
    def h_valu(self, D, t0):
        L = [f"v_alignbit_b32 v{t0+e}, v{D+e+1}, v{D+e}, 16" for e in range(4)]
        L += [f"v_mov_b32 v{t0+4+e}, v{D+e+1}" for e in range(4)]
        return L + [f"v_alignbit_b32 v{t0+8+e}, v{D+e+2}, v{D+e+1}, 16" for e in range(4)]
    def h_writes(self, D, imm, t0):
        for r, src in enumerate((t0, t0 + 4, t0 + 8, D + 2)):
            self.a(f"ds_write_b128 v{self.HL}, {vr(src,4)} offset:{r*CS + imm}")
    def conv_prep(self, part):
        a = self.a
        HD, D = self.HD_, 112
        HA, UB, UE, YS = 16, 17, 18, 19
        if part == 0:
            for g in range(4):
                a(f"ds_read_b128 {vr(HD+6*g,4)}, v{self.HL} offset:{1024*g}")
                a(f"ds_read_b64 {vr(HD+6*g+4,2)}, v{self.HL} offset:{1024*g+16}")
            a(f"""v_lshrrev_b32 v22, 4, v0
            s_lshl_b32 s{T0}, s{sCH}, 12
            v_lshrrev_b32 v23, 2, v0
            v_and_b32 v23, 3, v23
            v_mul_u32_u24 v23, {CS}, v23
            v_lshl_add_u32 v23, v22, 4, v23
            v_and_b32 v24, 3, v0
            v_lshl_add_u32 v23, v24, 3, v23
            v_add_u32 v{HA}, s{T6}, v23
            v_and_b32 v23, 15, v0
            v_lshlrev_b32 v23, 5, v23
            v_lshlrev_b32 v24, 4, v22
            v_sub_u32 v24, v24, v23
            v_add_u32 v24, s{T6}, v24
            v_add_u32 v{UB}, {U_OFF + 480}, v24
            v_lshl_add_u32 v23, v22, 3, v23
            v_sub_u32 v24, s{T6}, v23
            v_add_u32 v{UE}, {U_OFF + 504}, v24
            s_add_u32 s{T0}, s{T0}, {YD:#x}
            v_add_u32 v{YS}, s{T0}, v23
            v_lshlrev_b32 v20, 16, v{self.DV_}""")
            for e in range(6): a(f"v_mov_b32 v{D+e}, 0")
            a("s_waitcnt lgkmcnt(0)")
            a(f"v_readlane_b32 s{T1}, v{HD}, 0\nv_readlane_b32 s{T2}, v{HD+1}, 0")
            for l in self.h_valu(HD, 64): a(l)
            a(f"v_writelane_b32 v{D+4}, s{T1}, 1\nv_writelane_b32 v{D+5}, s{T2}, 1")
        else:
            for g in range(1, 4):
                for l in self.h_valu(HD + 6*g, 64 + 12*g): a(l)
            for l in self.h_valu(D, 120): a(l)
    def h_store(self):
        a = self.a
        for g in range(4): self.h_writes(self.HD_ + 6*g, 32 + 1024*g, 64 + 12*g)
        a("s_mov_b32 exec_hi, 0")
        a(f"ds_write_b128 v{self.HL}, v[112:115] offset:{U_OFF + 4096}")
        a("s_mov_b64 exec, 3")
        self.h_writes(112, 0, 120)
        a("s_mov_b64 exec, -1")
        for d, r in ((2, 16), (3, 17), (4, 18), (5, 19), (7, 20)): a(f"v_mov_b32 v{d}, v{r}")

    def dma_role(self):
        a = self.a
        a.reset_counters()
        fine = self.o("fine", 0)
        self.dma_setup()
        a("s_waitcnt lgkmcnt(0)")
        self.srd(rA, pX, 2048 * 1280); self.srd(rB, pW, 640 * 3840)
        a(f"s_cmp_ge_u32 s{sI}, 30\ns_cbranch_scc1 L_D_SKIP")
        S = {0: self.stage_dma(0)}
        if self.o("s1early", 0): S[1] = self.stage_dma(1)
        a.label("L_D_SKIP")
        if self.stamps: a("v_mov_b32 v1, 0")
        self.stamp("start")
        self.srd(rWS, pWS, WS_SIZE)
        self.setup_call()
        a(f"s_cmp_ge_u32 s{sI}, 30\ns_cbranch_scc1 L_D_NT")
        if self.o("dprio", 0): a(f"s_setprio {self.o('dprio', 0)}")
        if not self.o("s1early", 0): S[1] = self.stage_dma(1)
        if self.o("hat", 0) == 0: self.conv_scalars()
        for s in range(10):
            a.wait(S[s])
            if fine: self.stamp(f"l.w{s}")
            a("s_barrier")
            if fine or s in (0, 5, 9): self.stamp(f"l.b{s}")
            if s + 2 <= 9 and "d" in self.o("ab", ""): S[s+2] = S[1]
            elif s + 2 <= 9:
                S[s+2] = self.stage_dma(s + 2)
                if fine: self.stamp(f"l.i{s}")
            if s == 8 and self.o("prep", 1): self.conv_prep(0)
            if s == 9 and self.o("prep", 1): self.conv_prep(1)
        a.label("L_CONV")
        self.conv()
    def side_role(self):
        a = self.a
        a.label("L_SIDE")
        a.reset_counters()
        a(f"""s_cmp_ge_u32 s{sI}, 30
        s_cbranch_scc1 L_S_NT
        s_lshr_b32 s{T0}, s{sLW}, 1
        s_lshl_b32 s{sU}, s{sPI}, 1
        s_add_u32 s{sU}, s{sU}, s{T0}
        s_mov_b32 s{T7}, {L_SIG}
        s_cmp_lg_u32 s{sWAVE}, 6
        s_cbranch_scc1 L_S_GO
        s_cmp_lt_u32 s{sG}, 32
        s_cselect_b32 s{T1}, s{sNCH}, 0
        s_cmp_lg_u32 s{T1}, 2
        s_cbranch_scc1 L_W6
        s_add_u32 s{sU}, s{sG}, 608
        s_add_u32 s{sPI}, s{sG}, 256
        s_mov_b32 s{sNU}, 1
        s_mov_b32 s{T7}, {L_SIG + 8}
        L_S_GO:""")
        slate = self.o("slate", 0)
        if slate: self.setup_call()
        self.pre_setup()
        a("s_waitcnt lgkmcnt(0)")
        if slate > 1: a(f"s_sleep {slate}")
        self.pre_loads()
        if self.o("hat", 0) == 0:
            L7 = a.newlabel("H7")
            a(f"s_cmp_ge_u32 s{sLW}, s{sNCH}\ns_cbranch_scc1 {L7}")
            self.conv_scalars()
            a.label(L7)
        if self.stamps: a("v_mov_b32 v1, 0")
        self.stamp("start")
        self.srd(rWS, pWS, WS_SIZE)
        if not slate: self.setup_call()
        a(f"""v_mov_b32 v44, {L_SIG}
        v_mov_b32 v46, 0
        v_mov_b32 v47, 0
        ds_write_b64 v44, v[46:47]
        ds_write_b64 v44, v[46:47] offset:8
        ds_write_b32 v44, v46 offset:16
        v_and_b32 v46, 1, v0
        v_lshlrev_b32 v46, 7, v46
        s_waitcnt lgkmcnt(0)""")
        self.pre_store_setup()
        self.bar()
        self.ewait(self.o("espin0", 1))
        self.stamp("s.kv")
        if self.o("sprio", 0): a(f"s_setprio {self.o('sprio', 0)}")
        PC = self.pre_compute_list()
        nch = self.o("nchunk", 2)
        per = -(-len(PC) // nch)
        for c in range(nch):
            for l in (PC[c*per:(c+1)*per] if "v" not in self.o("ab", "") else []): a(l)
            if c < nch - 1 or self.o("barst", 1): self.bar()
        self.pre_stores()
        if self.o("hat", 0) == 1:
            L7 = a.newlabel("H7")
            a(f"s_cmp_ge_u32 s{sLW}, s{sNCH}\ns_cbranch_scc1 {L7}")
            self.conv_scalars()
            a.label(L7)
        self.srd(rC, pDBG, 256)
        a(f"buffer_load_dword v47, v46, s[{rC}:{rC+3}], 0 offen sc1")
        self.stamp("s.st")
        self.ewait(self.o("espin", 1))
        self.last_flag(8, f"s{sNU}", T5, 114, base=f"s{T7}")
        self.stamp("s.F1set")
        a(f"s_cmp_eq_u32 s{sWAVE}, 7\ns_cbranch_scc1 L_FETCH\ns_cmp_eq_u32 s{sWAVE}, 6\ns_cbranch_scc1 L_IDLE2")
        a.label("L_PREP")
        if self.o("prep", 1):
            self.bar()
            self.conv_prep(0)
            self.bar()
            self.conv_prep(1)
        self.bar_rest()
        a("s_branch L_CONV")
        a.label("L_W6")
        a("s_waitcnt lgkmcnt(0)")
        a(f"s_cmp_lt_u32 s{sNCH}, 3\ns_cbranch_scc1 L_IDLE")
        self.conv_scalars()
        if self.stamps: a("v_mov_b32 v1, 0")
        self.stamp("start")
        self.srd(rWS, pWS, WS_SIZE)
        self.setup_call()
        self.bar()
        self.ewait()
        a("s_branch L_PREP")
        a.label("L_IDLE")
        if self.stamps: a("v_mov_b32 v1, 0")
        self.stamp("start")
        self.srd(rWS, pWS, WS_SIZE)
        self.setup_call()
        a.label("L_IDLE2")
        for l in self.att_init_list(): a(l)
        self.bar_rest()
        a("s_branch L_ATT")
        a.label("L_S_NT")
        a("s_waitcnt lgkmcnt(0)")
        if self.stamps: a("v_mov_b32 v1, 0")
        self.stamp("start")
        self.srd(rWS, pWS, WS_SIZE)
        self.setup_call()
        a.label("L_D_NT")
        a(f"s_call_b64 s[{sRET}:{sRET+1}], L_SPARE")
        a(f"s_mov_b32 s{sBC}, 1\ns_branch L_IDLE2")
        a.label("L_SPARE")
        a(f"""s_sub_u32 s{T0}, s{sPI}, 180
        s_lshl_b32 s{T0}, s{T0}, 3
        s_add_u32 s{sU}, s{T0}, s{sWAVE}""")
        self.pre_setup()
        self.pre_loads()
        a(f"""v_mov_b32 v44, {L_SIG}
        v_mov_b32 v46, 0
        v_mov_b32 v47, 0
        ds_write_b64 v44, v[46:47]
        ds_write_b64 v44, v[46:47] offset:8
        s_waitcnt lgkmcnt(0)
        s_barrier""")
        a.label("L_SPARE2")
        self.pre_store_setup(spare=True)
        a("s_waitcnt vmcnt(0)")
        for l in PC: a(l)
        self.pre_stores()
        a.label("L_SPARE3")
        a("s_waitcnt vmcnt(0)")
        self.last_flag(8, f"s{sNU}", T5, 114)
        a(f"s_setpc_b64 s[{sRET}:{sRET+1}]")
        self.fetcher()

    def fetcher(self):
        a = self.a
        a.label("L_FETCH")
        a.reset_counters()
        OK = a.newlabel("CNTOK")
        a("s_setprio 0")
        self.poll_check(47, 1, cmp="v_cmp_le_u32 vcc, 0x80, v47")
        a(f"s_cbranch_scc1 {OK}")
        self.epoll([(46, rC, 0, 1)], 47, cmp="v_cmp_le_u32 vcc, 0x80, v47")
        a.label(OK)
        a(f"""s_andn2_b32 s{T1}, s{sCH0}, 63
        s_add_u32 s{T2}, s{sCH0}, s{sNCH}
        s_sub_u32 s{T2}, s{T2}, 1
        s_or_b32 s{T2}, s{T2}, 63""")
        for r in (T1, T2):
            a(f"""s_lshr_b32 s{T3}, s{r}, 3
            s_add_u32 s{T3}, s{T3}, 180
            s_lshr_b32 s{T4}, s{r}, 1
            s_cmp_ge_u32 s{r}, 480
            s_cselect_b32 s{T4}, s{T3}, s{T4}
            s_sub_u32 s{T3}, s{r}, 352
            s_cmp_ge_u32 s{r}, 608
            s_cselect_b32 s{r}, s{T3}, s{T4}""")
        a(f"""v_add_u32 v9, s{T1}, v0
        v_min_u32 v9, s{T2}, v9
        v_lshlrev_b32 v9, 6, v9
        v_add_u32 v9, {F1:#x}, v9""")
        if self.o("pgate", 9):
            LG, LD = a.newlabel("PG"), a.newlabel("PGD")
            a.label(LG)
            a(f"s_cmp_ge_u32 s{sBC}, {self.o('pgate', 9)}\ns_cbranch_scc1 {LD}\ns_cmp_ge_u32 s{sBC}, s{sNB}\ns_cbranch_scc1 {LD}\ns_barrier\ns_add_u32 s{sBC}, s{sBC}, 1\ns_branch {LG}")
            a.label(LD)
        if "p" not in self.o("ab", ""): self.mpoll([9], 16, elastic=True)
        self.stamp("f.F1ok")
        a(f"s_lshl_b32 s{T2}, s{sCH0}, 12\ns_add_u32 s{T2}, s{T2}, {UR:#x}")
        for c in range(3 if "u" not in self.o("ab", "") else 0):
            L = a.newlabel("NOU")
            if c == 2: a(f"s_cmp_lt_u32 s{sNCH}, 3\ns_cbranch_scc1 {L}")
            a(f"s_mov_b32 m0, {L_CONV + c*CONV_SZ + U_OFF}\ns_add_u32 s{T1}, s{T2}, {4096*c}")
            for j in range(4): a(f"buffer_load_dwordx4 v{L16}, s[{rWS}:{rWS+3}], s{T1} offen offset:{1024*j} sc1 lds")
            if c == 2: a.label(L)
        a("v_mov_b32 v45, 1")
        self.ewait()
        a("ds_write_b32 v44, v45")
        self.stamp("f.u")
        self.bar_rest()
        for l in self.att_init_list(): a(l)
        a("s_branch L_ATT")
    def kv_fetch(self):
        a = self.a
        a.reset_counters()
        OK = a.newlabel("CNTOK")
        self.poll_check(29, 1, cmp="v_cmp_le_u32 vcc, 0x80, v29")
        a(f"s_cbranch_scc1 {OK}")
        self.poll([(28, rC, 0, 1)], 29, cmp="v_cmp_le_u32 vcc, 0x80, v29")
        a.label(OK)
        self.sig_wait(12, 4)
        self.sig_wait(8, f"s{sNU}")
        self.mpoll([30, 31], 16)
        self.stamp("f.F2ok")
        a(f"""s_mul_i32 s{T0}, s{sHEAD}, {Q_HS}
        s_mul_i32 s{T1}, s{sQB}, {4*Q_US}
        s_add_u32 s{T0}, s{T0}, s{T1}
        s_add_u32 s{T0}, s{T0}, {QO:#x}""")
        def lin(sbase, lds0, n):
            T = []
            for k in range(n):
                if k % 4 == 0: a(f"s_mov_b32 m0, {lds0 + 1024*k}\ns_add_u32 s{T1}, s{sbase}, {1024*k}")
                T.append(a.vm(f"buffer_load_dwordx4 v{L16}, s[{rWS}:{rWS+3}], s{T1} offen offset:{1024*(k%4)} sc1 lds"))
            return T
        if self.o("kv3", 1):
            lin(T0, L_Q, 10)
            T = lin(sKVB, 0, 40)
            a(f"v_mov_b32 v16, {L_SIG}\nv_mov_b32 v17, 1\nv_mov_b32 v18, 2")
            a.wait(T[9]); a("ds_write_b32 v16, v17 offset:4")
            a.wait(T[19]); a("ds_write_b32 v16, v18 offset:4")
        else:
            lin(T0, L_Q, 10)
            lin(sKVB, 0, 40)
            a(f"v_mov_b32 v16, {L_SIG}\nv_mov_b32 v17, 3")
            a.wait_all()
            a("ds_write_b32 v16, v17 offset:4")
        self.stamp("f.kv0")
    def kv_fetch_setup(self):
        a = self.a
        self.srd(rC, pDBG, 256)
        a(f"""s_mul_i32 s{T0}, s{sHEAD}, 20
        v_and_b32 v28, 15, v0
        v_lshrrev_b32 v30, 4, v0
        v_and_b32 v31, 1, v30
        v_mul_u32_u24 v31, 19, v31
        v_add_u32 v31, s{T0}, v31
        v_lshrrev_b32 v31, 7, v31
        v_lshrrev_b32 v30, 1, v30
        v_mul_u32_u24 v30, 5, v30
        v_add3_u32 v30, v30, v31, 5
        v_lshl_add_u32 v30, v30, 4, v28
        v_lshlrev_b32 v30, 6, v30
        v_add_u32 v30, {F2:#x}, v30
        v_lshl_add_u32 v31, v31, 4, s{sQB}
        v_add_u32 v31, s{sQB}, v31
        v_and_b32 v28, 1, v0
        v_add_u32 v31, v31, v28
        v_lshlrev_b32 v31, 6, v31
        v_add_u32 v31, {F2:#x}, v31
        v_lshlrev_b32 v28, 7, v28""")

    def sig_check(self, off, thr, tok):
        a = self.a
        OK = a.newlabel("SOK")
        a.wait(tok)
        a(f"v_readfirstlane_b32 s{T0}, v15\ns_nop 0\ns_cmp_ge_u32 s{T0}, {thr}\ns_cbranch_scc1 {OK}")
        self.sig_wait(off, thr)
        a.label(OK)
    def sig_wait(self, off, thr=1):
        a = self.a
        L, D = a.newlabel("SIG"), a.newlabel("SIGD")
        a(f"v_mov_b32 v14, {L_SIG}\ns_mov_b32 s{sCNT}, 0")
        a.label(L)
        a(f"""ds_read_b32 v15, v14 offset:{off}
        s_waitcnt lgkmcnt(0)
        v_readfirstlane_b32 s{T0}, v15
        s_add_u32 s{sCNT}, s{sCNT}, 1
        s_cmp_ge_u32 s{T0}, {thr}
        s_cbranch_scc1 {D}
        s_sleep 1
        s_cmp_lt_u32 s{sCNT}, {POLL_MAX*40}
        s_cbranch_scc1 {L}""")
        a.label(D)
    def conv(self):
        a = self.a
        a.reset_counters()
        ACC, FR = 16, 64
        HA, UB, UE, YS, DV = 2, 3, 4, 5, self.DV_
        a(f"s_setprio {self.o('hprio', 0)}")
        if not self.o("prep", 1): self.conv_prep(0); self.conv_prep(1)
        self.h_store()
        self.stamp("v.h")
        self.sig_wait(0)
        a(f"s_setprio {self.o('cprio', 3)}")
        a.reset_counters()
        def reads(rho):
            st = FR + 64 * (rho & 1)
            ra = lambda i, q: (lambda: a.ds(f"ds_read_b64_tr_b16 {vr(st+4*i+2*q,2)}, v{HA} offset:{64*(8*i+rho) + 8*q}"))
            rb = lambda d: (lambda: a.ds(f"ds_read_b128 {vr(st+32+4*d,4)}, v{UB} offset:{64*(56 - (8*d - rho))}"))
            L = [("A0", ra(0,0)), ("A0", ra(0,1))] + [(f"B{d}", rb(d)) for d in range(8)]
            for i in range(1, 8): L += [(f"A{i}", ra(i,0)), (f"A{i}", ra(i,1))]
            return L
        toks = {}
        for n, f in reads(0): toks[n] = f()
        self.stamp("v.u")
        init = self.att_init_list()
        for rho in range(8):
            st = FR + 64 * (rho & 1)
            nxt = reads(rho + 1) if rho < 7 else []
            out = {}; k = 0; m = 0
            for i in range(8):
                for c in range(i, 8):
                    a.wait(toks[f"A{i}"], toks[f"B{c-i}"])
                    d = ACC + 4 * c
                    a(f"v_mfma_f32_16x16x32_bf16 {vr(d,4)}, {vr(st+4*i,4)}, {vr(st+32+4*(c-i),4)}, {'0' if (rho == 0 and i == 0) else vr(d,4)}")
                    m += 1
                    if m >= 4 and k < len(nxt): out[nxt[k][0]] = nxt[k][1](); k += 1
                    elif m >= 28 and init: a(init.pop())
            assert k == len(nxt)
            toks = out
        assert not init
        self.stamp("v.mfma")
        tu = [a.ds(f"ds_read_b64 {vr(FR+2*c,2)}, v{UE} offset:{512*(7-c)}") for c in range(8)]
        for c in range(8):
            a.wait(tu[c])
            d, u, t = ACC + 4*c, FR + 2*c, FR + 32 + 8*(c & 3)
            a(f"""v_and_b32 v{t}, 0xffff0000, v{u+1}
            v_lshlrev_b32 v{t+1}, 16, v{u+1}
            v_and_b32 v{t+2}, 0xffff0000, v{u}
            v_lshlrev_b32 v{t+3}, 16, v{u}""")
            for e in range(4): a(f"v_fmac_f32 v{d+e}, v7, v{t+e}")
            a(f"v_cvt_pk_bf16_f32 v{t+4}, v{d}, v{d+1}\nv_cvt_pk_bf16_f32 v{t+5}, v{d+2}, v{d+3}")
            a.vm(f"buffer_store_dwordx2 {vr(t+4,2)}, v{YS}, s[{rWS}:{rWS+3}], 0 offen offset:{512*c} sc1")
        self.stamp("v.st")

    def m2b(self, S, j=1): self.a(f"v_mfma_f32_32x32x4_2b_bf16 {vr(S,32)}, {vr(KRM,2)}, {vr((QR2, QR)[j],2)}, 0")
    def mqk(self, S, h, j=1): self.a(f"v_mfma_f32_32x32x16_bf16 {vr(S+16*h,16)}, {vr(KM+4*h,4)}, {vr((QM2, QM)[j],4)}, {vr(S+16*h,16)}")
    def smf(self, V, P, j=1): self.a(f"v_smfmac_f32_32x32x32_bf16 {vr((O2, O_)[j],16)}, {vr(V,4)}, {vr(P,8)}, v{IDX}")
    def side_kv(self, add):
        a = self.a
        def mk(j):
            def f():
                if j == 0: a(f"s_add_u32 m0, s{sKVW}, {add*KV_US}\ns_add_u32 s{T5}, s{sKVG}, {add*KV_US}")
                if j == 4: a(f"s_add_u32 m0, m0, 4096\ns_add_u32 s{T5}, s{T5}, 4096")
                a.vm(f"buffer_load_dwordx4 v{L16}, s[{rWS}:{rWS+3}], s{T5} offen offset:{1024*(j%4)} sc1 lds")
            return f
        return [mk(j) for j in range(5)]
    def side_wo(self):
        a = self.a
        def mk(k):
            def f():
                L = a.newlabel("NOWO")
                if k == 0: a(f"s_mul_i32 s{T4}, s{sWAVE}, {13*1024}\ns_add_u32 m0, s{T4}, {L_WO}")
                else: a("s_add_u32 m0, m0, 1024")
                if k % 5 == 0: a(f"s_mov_b32 s{T5}, {40960*(k//5)}")
                elif k < 9: a("s_nop 0")
                if k >= 9: a(f"s_cmp_eq_u32 s{sWAVE}, 7\ns_cbranch_scc1 {L}")
                a.vm(f"buffer_load_dwordx4 v{WOV + k%5}, s[{rA}:{rA+3}], s{T5} offen lds")
                if k >= 9: a.label(L)
            return f
        return [mk(k) for k in range(13)]
    def side_yd(self):
        a = self.a
        def f0():
            OK = a.newlabel("F3OK")
            a.wait(self.tF3)
            self.poll_check(F3T, 2)
            a(f"s_cbranch_scc1 {OK}")
            snap = a.snapshot(); self.poll([(AF3, rWS, 0, 2)], F3T); a.restore(snap)
            a.label(OK)
            a(f"s_mul_i32 s{T5}, s{sWAVE}, 1280\ns_add_u32 m0, s{T5}, {L_YD}\ns_mov_b32 s{T5}, {8*4096 - 1024}")
            a.vm(f"buffer_load_dwordx4 v{YDV}, s[{rWS}:{rWS+3}], 0 offen sc1 lds")
            a("s_mov_b64 exec, 0xffff")
            a.vm(f"buffer_load_dwordx4 v{YDV}, s[{rWS}:{rWS+3}], s{T5} offen offset:1024 sc1 lds")
            a("s_mov_b64 exec, -1")
        return [f0]
    def side_x(self):
        a = self.a
        def mk(j):
            def f():
                if j == 0: self.srd(rA, pX, 2048 * 1280)
                a.vm(f"buffer_load_dwordx2 {vr(XE+2*j,2)}, v{AOUT}, s[{rA}:{rA+3}], 0 offen offset:{32*j}")
            return f
        def f3(): self.tF3 = a.vm(f"buffer_load_dwordx2 {vr(F3T,2)}, v{AF3}, s[{rWS}:{rWS+3}], 0 offen sc1")
        return [mk(j) for j in range(3)] + [f3]
    def attention(self):
        a = self.a
        self.a.lines.append('; ---- attention: S^T = K Q^T (Q pre-scaled by log2(e)/sqrt(20)), P = exp2(S), O^T += V^T P^T; a ones row in V^T gives the row sum.')
        a.label("L_ATT")
        a.reset_counters()
        self.sig_wait(4)
        self.stamp("att0")
        US2 = 2 * KV_US
        base = {"K": 0, "V": 0}
        def bump(kind, u):
            while u * US2 - base[kind] > 5 * US2:
                base[kind] += 6 * US2
                for r in ((AKM, AKR) if kind == "K" else (AV,)): a(f"v_add_u32 v{r}, {6*US2}, v{r}")
            return u * US2 - base[kind]
        def rKR(u): o = bump("K", u); return a.ds(f"ds_read_b64 {vr(KRM,2)}, v{AKR} offset:{o}")
        def rKM(u, h): o = bump("K", u); return a.ds(f"ds_read_b128 {vr(KM+4*h,4)}, v{AKM} offset:{o + 1024*h}")
        def rV(u):
            o = bump("V", u)
            a(f"s_mov_b64 exec, s[{sVMASK}:{sVMASK+1}]")
            for g in range(4): t = a.ds(f"ds_read_b128 {vr(VS[u&1]+4*g,4)}, v{AV} offset:{o + 640*g}")
            a("s_mov_b64 exec, -1")
            return t
        tq = [a.ds(f"ds_read_b64 {vr(QR2,2)}, v{AQR2} offset:2048")]
        tKR = rKR(0)
        tq.append(a.ds(f"ds_read_b128 {vr(QM2,4)}, v{AQM2}"))
        tK0 = rKM(0, 0); tK1 = rKM(0, 1)
        tq.append(a.ds(f"ds_read_b64 {vr(QR,2)}, v{AQR} offset:2048"))
        tq.append(a.ds(f"ds_read_b128 {vr(QM,4)}, v{AQM}"))
        tV = {0: rV(0)}
        side = self.side_kv(8)
        a.wait(tq[0], tKR); self.m2b(S_, 0)
        for _ in range(4): side.pop(0)()
        for e in range(16): a(f"v_mov_b32 v{O2+e}, 0")
        a.wait(tq[1], tK0); self.mqk(S_, 0, 0)
        a.wait(tK1); self.mqk(S_, 1, 0)
        side.pop(0)()
        if self.o("kv3", 1):
            self.sig_check(4, 2, a.ds("ds_read_b32 v15, v14 offset:4")); a.nop(2)
        else: a.nop(8)
        zones = {0: self.o("z0", "2,4"), 6: self.o("z1", "3,5,7"), 14: self.o("z1", "3,5,7"), 22: self.o("z3", "3,5,7"), 30: self.o("z4", "1")}
        if self.o("nob30", 0): del zones[30]
        prio = {}
        if self.o("prio", 1):
            for u0, z in zones.items():
                zz = [int(x) for x in z.split(",")]
                prio[u0] = len(zz)
                for k, d in enumerate(zz): prio[u0 + d] = len(zz) - 1 - k
        for t in range(32):
            if t % 8 == 6 and t < 30:
                assert not side
                side = self.att_sync(t // 8)
            if t == 1 and self.o("kv3", 1):
                L3 = a.newlabel("N3")
                a(f"s_cmp_lg_u32 s{sWAVE}, 3\ns_cbranch_scc1 {L3}\nv_mov_b32 v15, 3\ns_waitcnt vmcnt(5)\nds_write_b32 v14, v15 offset:4")
                a.label(L3)
            if t == 2 and self.o("kv3", 1): self.sig_check(4, 3, tsig)
            if t == 30 and not self.o("nob30", 0): a("s_barrier")
            if t in prio: a(f"s_setprio {prio[t]}")
            u, j = t >> 1, t & 1
            X, Y = S_ + 32 * j, S_ + 32 * (1 - j)
            Vc, Vp = VS[u & 1], VS[((t - 1) >> 1) & 1]
            nx = t < 31
            rl = j == 0 and u < 15
            P = [int(x) for x in self.o("pos", "2,6,14,18,22,26,30").split(",")]
            SP = [int(x) for x in self.o("spos", "10,20").split(",")]
            for p in range(32):
                if p == P[0]:
                    if t == 0: a.wait(tq[2])
                    if j == 1 and nx: a.wait(tKR)
                    if t > 0: self.smf(Vp + 12, Y + 24, 1 - j)
                    if rl and self.o("vpos", -1) < 0: tV[u+1] = rV(u + 1)
                if p == self.o("vpos", -1) and rl: tV[u+1] = rV(u + 1)
                if p == P[1] and nx:
                    self.m2b(Y, 1 - j)
                    if rl: tKR = rKR(u + 1)
                if t == 1 and p == 24 and self.o("kv3", 1): tsig = a.ds("ds_read_b32 v15, v14 offset:4")
                if p in SP and side: side.pop(0)()
                if t == 31 and p in (16, 20, 24): a.ds(f"ds_write_b128 v{AEX}, {vr(O2+(p-16),4)} offset:{256*(p-16)}")
                if t == 31 and p == 28: a.ds(f"ds_write_b32 v{AEX}, v{O2+12} offset:3072")
                if p == P[2]: a.wait(tV[u]); self.smf(Vc, X, j)
                if p == P[3]: self.smf(Vc + 4, X + 8, j)
                if p == P[4] and nx:
                    a.wait(tK0, tK1, tq[3]); self.mqk(Y, 0, 1 - j)
                    if rl: tK0 = rKM(u + 1, 0)
                if p == P[5]: self.smf(Vc + 8, X + 16, j)
                if p == P[6] and nx:
                    self.mqk(Y, 1, 1 - j)
                    if rl: tK1 = rKM(u + 1, 1)
                a(f"v_exp_f32 v{X+p}, v{X+p}")
        assert not side
        a.nop(2)
        self.smf(VS[1] + 12, S_ + 32 + 24, 1)
        self.stamp("attend")
        a("s_setprio 0")
        a.wait_all(vm=False)
        a("s_barrier")
        tl = a.ds(f"ds_read_b32 v{O2+12}, v{APX} offset:3072")
        tp = [a.ds(f"ds_read_b128 {vr(O2+4*k,4)}, v{APX} offset:{1024*k}") for k in range(3)]
        self.fin_pre()
        a.nop(1)
        a.wait(tl); a(f"v_add_f32 v{O_+12}, v{O_+12}, v{O2+12}")
        for k in range(3):
            a.wait(tp[k])
            for e in range(4): a(f"v_add_f32 v{O_+4*k+e}, v{O_+4*k+e}, v{O2+4*k+e}")
    def att_sync(self, k):
        a = self.a
        if k == 0:
            a.wait_all(vm=True, ds=False, force=True)
            L = a.newlabel("NOF3")
            a(f"s_cmp_ge_u32 s{sLW}, s{sNCH}\ns_cbranch_scc1 {L}")
            a(f"s_lshl_b32 s{T0}, s{sCH}, 2\ns_add_u32 s{T0}, s{T0}, {F3:#x}")
            self.flag_store(T0, 14)
            a.label(L)
            a("s_barrier")
            self.stamp("sync0")
            return self.side_kv(16) + self.side_kv(24)
        if k == 1:
            a.wait_all(vm=True, ds=False, force=True)
            a("s_barrier")
            self.stamp("sync1")
            return self.side_x()
        a("s_barrier")
        self.stamp("sync2")
        self.srd(rA, pWO, 640 * 1280)
        return self.side_yd() + self.side_wo()

    def fin_pre(self):
        self.a(f"""v_lshlrev_b32 v2, 3, v0
        s_mov_b32 s{T2}, {f2u(2.0**-60):#x}
        s_mov_b32 s{T3}, {f2u(2.0**60):#x}
        s_mov_b32 s{T4}, 0x7f7fffff""")
    def finish(self):
        a = self.a
        O, TMP = O_, 16
        ACC, OF, WF, GG = 224, 16, 56, 14
        self.a.lines.append('; ---- softmax guard: the loop above shifts by 0 instead of the row max. That is exact as long as the row sum l lies in [2^-60, 2^60]')
        self.a.lines.append(';      and O is finite (no exponential overflowed, none that matters underflowed). Otherwise this wave redoes its rows at L_SLOW')
        a.label("L_NORM")
        a(f"v_rcp_f32 v{TMP+4}, v{O+12}")
        a(f"v_cmp_le_f32 vcc, s{T2}, v{O+12}\nv_cmp_ge_f32 s[{sM}:{sM+1}], s{T3}, v{O+12}")
        for e in range(8): a(f"v_mul_f32 v{O+e}, v{O+e}, v{TMP+4}")
        for e in range(4): a(f"v_cvt_pk_bf16_f32 v{TMP+8+e}, v{O+2*e}, v{O+2*e+1}")
        a(f"buffer_store_dwordx4 {vr(TMP+8,4)}, v{L16}, s[{rWS}:{rWS+3}], s{sOMS} offen sc1")
        for e in range(8, 12): a(f"v_mul_f32 v{O+e}, v{O+e}, v{TMP+4}")
        for e in range(4, 6): a(f"v_cvt_pk_bf16_f32 v{TMP+8+e}, v{O+2*e}, v{O+2*e+1}")
        a("s_mov_b32 exec_hi, 0")
        a(f"buffer_store_dwordx2 {vr(TMP+12,2)}, v2, s[{rWS}:{rWS+3}], s{sORS} offen sc1")
        a("s_mov_b32 exec_hi, -1")
        for e in range(4): a(f"v_add_f32 v{TMP+e}, abs(v{O+e}), abs(v{O+4+e})")
        for e in range(4): a(f"v_add_f32 v{TMP+e}, v{TMP+e}, abs(v{O+8+e})")
        a(f"""v_add_f32 v{TMP}, v{TMP}, v{TMP+1}
        v_add_f32 v{TMP+2}, v{TMP+2}, v{TMP+3}
        s_and_b64 s[{sM}:{sM+1}], s[{sM}:{sM+1}], vcc
        v_add_f32 v{TMP}, v{TMP}, v{TMP+2}
        v_cmp_ge_f32 vcc, s{T4}, v{TMP}
        s_nop 1
        s_and_b64 s[{sM}:{sM+1}], s[{sM}:{sM+1}], vcc
        s_cmp_eq_u64 s[{sM}:{sM+1}], exec
        s_cbranch_scc1 L_NORM_OK
        s_cmp_eq_u32 s{sSLOW}, 0
        s_cbranch_scc1 L_SLOW""")
        a.label("L_NORM_OK")
        self.srd(rA, pOUT, 2048 * 1280)
        a(f"s_lshl_b32 s{T0}, s{sKH}, 2\ns_add_u32 s{T0}, s{T0}, {L_RDY}\nv_mov_b32 v{AQM}, s{T0}\nv_mov_b32 v{AQR}, 0\nds_write_b32 v{AQM}, v{AQR}")
        a("s_waitcnt vmcnt(0) lgkmcnt(0)\ns_barrier")
        a.reset_counters()
        L = a.newlabel("NOF4")
        a(f"s_cmp_lg_u32 s{sWAVE}, 0\ns_cbranch_scc1 {L}")
        self.flag_store(sF4S, 2)
        a.label(L)
        a.reset_counters()
        self.stamp("F4set")
        tg = a.vm(f"buffer_load_dword v{GG}, v{AG}, s[{rWS}:{rWS+3}], 0 offen sc1")
        def wfrag(step, regstep):
            toks = []
            for b in range(5):
                for q in range(2):
                    if step < 8: ad, off = (WM0 if b < 2 else WM1), (40*step + 8*q)*160 + 32*b
                    else: ad, off = (WR0 if b < 2 else WR1), (160*(step-8) + 80*q)*160 + 32*b
                    t = a.ds(f"ds_read_b64_tr_b16 {vr(int(WF + 20*regstep) + 4*b + 2*q, 2)}, v{ad} offset:{L_WO + off}")
                toks.append(t)
            return toks
        tw = {s: wfrag(s, s) for s in range(8)}
        YR, BB = 2, 16
        ty = [a.ds(f"ds_read_b64_tr_b16 {vr(YR+2*b,2)}, v{AYD} offset:{2048*b}") for b in range(3)]
        keep = [216, 217, 218, 219, 220, 221, 222, 223, 2, 3, 4, 5]
        for b in range(3):
            a.wait(ty[b])
            x, y = XE + 2*b, YR + 2*b
            a(f"""v_lshlrev_b32 v16, 16, v{x}
            v_and_b32 v17, 0xffff0000, v{x}
            v_lshlrev_b32 v18, 16, v{x+1}
            v_and_b32 v19, 0xffff0000, v{x+1}
            v_lshlrev_b32 v20, 16, v{y}
            v_and_b32 v21, 0xffff0000, v{y}
            v_lshlrev_b32 v22, 16, v{y+1}
            v_and_b32 v23, 0xffff0000, v{y+1}""")
            for e in range(4): a(f"v_mul_f32 v{keep[4*b+e]}, v{16+e}, v{20+e}")
        a("v_lshrrev_b32 v16, 4, v0\nv_and_b32 v16, 1, v16\nv_mul_u32_u24 v16, 24, v16")
        a(f"v_add_u32 v15, v16, v{AOUT}\nv_mov_b32 v6, v{AQM}")
        a.wait_all(vm=False)
        sPEND, sR = sM2, T6
        a(f"s_mov_b64 s[{sPEND}:{sPEND+1}], 0xffff")
        def wait_group(done):
            L, N, D = a.newlabel("GW"), a.newlabel("GN"), a.newlabel("GD")
            a(f"s_mov_b32 s{sCNT}, 0\ns_cmp_lg_u32 s{sTB}, 0\ns_cbranch_scc1 {N}")
            a.label(L)
            a(f"""s_mov_b64 exec, s[{sPEND}:{sPEND+1}]
            buffer_load_dword v7, v{AF4}, s[{rWS}:{rWS+3}], 0 offen sc1
            s_waitcnt vmcnt(0)
            v_cmp_eq_u32 vcc, 0, v7
            s_add_u32 s{sCNT}, s{sCNT}, 1
            s_mov_b64 exec, -1
            s_mov_b64 s[{sPEND}:{sPEND+1}], vcc
            s_cmp_ge_u32 s{sCNT}, {POLL_MAX}
            s_cselect_b32 s{sPEND}, 0, s{sPEND}
            s_and_b32 s{T0}, s{sPEND}, 0xff
            s_cselect_b32 s{sR}, 0, 1
            s_and_b32 s{T0}, s{sPEND}, 0xff00
            s_cselect_b32 s{T0}, 0, 2
            s_or_b32 s{sR}, s{sR}, s{T0}
            s_and_b32 s{T0}, s{sR}, {3 - done}
            s_cbranch_scc1 {L}P
            s_sleep {self.o('psleep', 2)}
            s_branch {L}""")
            a.label(L + "P")
            a(f"v_mov_b32 v7, s{sR}\nds_write_b32 v6, v7\ns_branch {D}")
            a.label(N)
            a(f"""ds_read_b32 v7, v6
            s_waitcnt lgkmcnt(0)
            v_readfirstlane_b32 s{sR}, v7
            s_add_u32 s{sCNT}, s{sCNT}, 1
            s_cmp_ge_u32 s{sCNT}, {POLL_MAX*40}
            s_cselect_b32 s{sR}, 3, s{sR}
            s_and_b32 s{T0}, s{sR}, {3 - done}
            s_cbranch_scc1 {D}
            s_sleep 1
            s_branch {N}""")
            a.label(D)
        def oloads(steps, base):
            to = {}
            for k, s in enumerate(steps):
                if s < 8:
                    a(f"s_mov_b32 s{T0}, {s*131072}")
                    to[s] = a.vm(f"buffer_load_dwordx4 {vr(base+4*k,4)}, v{AOM}, s[{rWS}:{rWS+3}], s{T0} offen sc1")
                else:
                    for q in range(2):
                        a(f"s_mov_b32 s{T0}, {(8*(s-8)+4*q)*16384}")
                        to[s] = a.vm(f"buffer_load_dwordx2 {vr(base+4*k+2*q,2)}, v{AOR}, s[{rWS}:{rWS+3}], s{T0} offen sc1")
            return to
        def mm(steps, to, obase, acc, wrem, trem, after=None):
            for k, s in enumerate(steps):
                a.wait(to[s])
                for b in (range(5) if s < 8 else (2, 3, 4, 0, 1)):
                    w = WF + 20*s + 4*b if s < 8 else wrem + 4*b
                    if s >= 8: a.wait(trem()[b])
                    a(f"v_mfma_f32_16x16x32_bf16 {vr(acc+4*b,4)}, {vr(w,4)}, {vr(obase+4*k,4)}, {'0' if k == 0 else vr(acc+4*b,4)}")
                if after: after(s)
        def wrem_to(step, reg): return wfrag(step, (reg - WF) // 20)
        def add_from(src):
            for b in (2, 3, 4, 0, 1):
                for e in range(4): a(f"v_add_f32 v{ACC+4*b+e}, v{ACC+4*b+e}, v{src+4*b+e}")
        G = ([0, 1, 2, 3, 8], [4, 5, 6, 7, 9])
        wait_group(0)
        self.stamp("F4ok")
        a(f"s_cmp_lg_u32 s{sR}, 3\ns_cbranch_scc1 L_P3_PART")
        a.reset_counters()
        order = [0, 1, 2, 3, 8, 4, 5, 6, 7, 9]
        to = oloads(order, OF)
        tr = {}
        def after(s):
            if s == 0: tr[8] = wfrag(8, 0)
            if s == 1: tr[9] = wfrag(9, 1)
        mm(G[0], to, OF, WF + 60 if False else ACC, WF, lambda: tr[8], after)
        mm(G[1], to, OF + 20, WF + 40, WF + 20, lambda: tr[9])
        a.nop(4)
        add_from(WF + 40)
        a.label("L_P3_SUM")
        def part():
            a.label("L_P3_PART")
            a(f"s_cmp_eq_u32 s{sR}, 2\ns_cbranch_scc1 L_P3_B")
            for first in (0, 1):
                if first: a.label("L_P3_B")
                save = WF + 80 * first
                for n, g in enumerate((first, 1 - first)):
                    a.reset_counters()
                    if n: wait_group(1 << first); a.reset_counters()
                    to = oloads(G[g], OF)
                    trem = wfrag(G[g][4], (OF + 20 - WF) / 20)
                    mm(G[g], to, OF, ACC, OF + 20, lambda: trem)
                    a.nop(4 if n else 8)
                    if n: add_from(save)
                    else:
                        for e in range(20): a(f"v_mov_b32 v{save+e}, v{ACC+e}")
                a("s_branch L_P3_SUM")
        self.p3_part = part
        a.reset_counters()
        self.stamp("mfma")
        for b in (2, 3, 4): a.ds(f"ds_write_b128 v{AEX}, {vr(ACC+4*b,4)} offset:{1024*(b-2)}")
        for b in range(3):
            for e in range(4): a(f"v_sub_f32 v{ACC+4*b+e}, v{ACC+4*b+e}, v{keep[4*b+e]}")
        a.wait_all(vm=False)
        a("s_barrier")
        tp = [a.ds(f"ds_read_b128 {vr(16+4*b,4)}, v{AX2} offset:{1024*b}") for b in range(3)]
        fl = self.o('ost', '').replace('+', ' ')
        for b in range(3):
            if b == 2: a(f"s_cmp_lg_u32 s{sKH}, 0\ns_cbranch_scc1 L_FIN")
            a.wait(tp[b])
            for e in range(4): a(f"v_add_f32 v{16+4*b+e}, v{16+4*b+e}, v{ACC+4*b+e}")
            for e in range(4): a(f"v_fmac_f32 v{keep[4*b+e]}, v{GG}, v{16+4*b+e}")
            a(f"v_cvt_pk_bf16_f32 v{32+2*b}, v{keep[4*b]}, v{keep[4*b+1]}\nv_cvt_pk_bf16_f32 v{33+2*b}, v{keep[4*b+2]}, v{keep[4*b+3]}")
            if self.o("o4", 1) and b < 2:
                if b == 1:
                    a("s_nop 1\nv_permlane16_swap_b32 v32, v34\nv_permlane16_swap_b32 v33, v35")
                    a.vm(f"buffer_store_dwordx4 v[32:35], v15, s[{rA}:{rA+3}], 0 offen {fl}")
            else: a.vm(f"buffer_store_dwordx2 {vr(32+2*b,2)}, v{AOUT}, s[{rA}:{rA+3}], 0 offen offset:{32*b} {fl}")
        a.label("L_FIN")
        if self.stamps:
            self.stamp("st")
            a("s_waitcnt vmcnt(0)")
            self.stamp("end")
            a(f"s_lshl_b32 s{T0}, s{sWG}, 3\ns_add_u32 s{T0}, s{T0}, s{sWAVE}\ns_lshl_b32 s{T0}, s{T0}, 8\ns_add_u32 s{T0}, s{T0}, {TS:#x}\nv_lshlrev_b32 v2, 2, v0")
            a(f"buffer_store_dword v1, v2, s[{rWS}:{rWS+3}], s{T0} offen")
            if "enc" in self.opt:
                n0, n1, wv, wg = self.opt["enc"].split(",")
                for n in (n0, n1):
                    if n not in self.names: self.names.append(n)
                a(f"s_cmp_lg_u32 s{sWG}, {wg}\ns_cbranch_scc1 L_END\ns_cmp_lg_u32 s{sWAVE}, {wv}\ns_cbranch_scc1 L_END")
                a(f"v_readlane_b32 s{T1}, v1, {self.names.index(n0)}\nv_readlane_b32 s{T2}, v1, {self.names.index(n1)}\nv_readlane_b32 s{T3}, v1, {self.names.index('end')}\ns_nop 3")
                a(f"s_sub_u32 s{T2}, s{T2}, s{T1}\ns_lshl_b32 s{T2}, s{T2}, 3\ns_and_b32 s{T2}, s{T2}, 0xffff\ns_add_u32 s{T3}, s{T3}, s{T2}")
                a.label("L_ENC")
                a(f"s_memrealtime s[{sTS}:{sTS+1}]\ns_waitcnt lgkmcnt(0)\ns_sub_u32 s{T1}, s{T3}, s{sTS}\ns_cmp_gt_i32 s{T1}, 0\ns_cbranch_scc1 L_ENC")
        a.label("L_END")
        a("s_endpgm")

    def slow(self):
        a = self.a
        S, V, M, AVS = S_, VS[0], 96, 98
        a.label("L_SLOW")
        a(f"""s_mov_b32 s{sSLOW}, 1
        v_and_b32 v{M}, 31, v0
        v_lshrrev_b32 v{AVS}, 5, v0
        v_mul_u32_u24 v{AVS}, 320, v{AVS}
        v_lshl_add_u32 v{AVS}, v{M}, 4, v{AVS}
        v_add_u32 v{AVS}, 2560, v{AVS}
        v_mov_b32 v{M}, 0xff800000""")
        def scores():
            a(f"""buffer_load_dwordx2 {vr(KRM,2)}, v2, s[{rWS}:{rWS+3}], s{T6} offen offset:2048 sc1
            buffer_load_dwordx4 {vr(KM,4)}, v{L16}, s[{rWS}:{rWS+3}], s{T6} offen sc1
            buffer_load_dwordx4 {vr(KM+4,4)}, v{L16}, s[{rWS}:{rWS+3}], s{T6} offen offset:1024 sc1
            s_waitcnt vmcnt(0)""")
            self.m2b(S); a.nop(18); self.mqk(S, 0); self.mqk(S, 1); a.nop(12)
        a(f"s_mov_b32 s{T6}, s{sKVB}\ns_mov_b32 s{sCNT}, 0")
        a.label("L_SLOW1")
        scores()
        for e in range(16): a(f"v_max3_f32 v{M}, v{M}, v{S+2*e}, v{S+2*e+1}")
        a(f"s_add_u32 s{T6}, s{T6}, {KV_US}\ns_add_u32 s{sCNT}, s{sCNT}, 1\ns_cmp_lt_u32 s{sCNT}, 32\ns_cbranch_scc1 L_SLOW1")
        a(f"v_mov_b32 v{M+1}, v{M}\ns_nop 1\nv_permlane32_swap_b32 v{M}, v{M+1}\ns_nop 1\nv_max_f32 v{M}, v{M}, v{M+1}")
        for e in range(16): a(f"v_mov_b32 v{O_+e}, 0")
        a(f"s_mov_b32 s{T6}, s{sKVB}\ns_mov_b32 s{sCNT}, 0")
        a.label("L_SLOW2")
        a(f"s_mov_b64 exec, s[{sVMASK}:{sVMASK+1}]")
        for g in range(4): a(f"buffer_load_dwordx4 {vr(V+4*g,4)}, v{AVS}, s[{rWS}:{rWS+3}], s{T6} offen offset:{640*g} sc1")
        a("s_mov_b64 exec, -1")
        scores()
        for e in range(32): a(f"v_sub_f32 v{S+e}, v{S+e}, v{M}")
        for e in range(32): a(f"v_exp_f32 v{S+e}, v{S+e}")
        a.nop(2)
        for g in range(4): self.smf(V + 4*g, S + 8*g)
        a(f"s_add_u32 s{T6}, s{T6}, {KV_US}\ns_add_u32 s{sCNT}, s{sCNT}, 1\ns_cmp_lt_u32 s{sCNT}, 32\ns_cbranch_scc1 L_SLOW2")
        a.nop(12)
        a("s_branch L_NORM")

    def build(self):
        self.prologue(); self.dma_role(); self.attention(); self.finish(); self.p3_part(); self.setup_sub(); self.side_role(); self.gemm_compute(); self.slow(); self.a.label('L_CODE_END')
        bad = lint_cfg(self.a.lines)
        head = f"""; gated_mix( MHA block , H3 SSM conv ): one persistent workgroup of eight waves per CU.
; kernarg: 0 A_x, 8 A_wqkv, 16 A_wo, 24 B_q (not used by the reference), 32 B_k, 40 B_v, 48 B_shift_k, 56 B_ssm_k,
; first clears its own flag words and counts that in d_debug; no flag is trusted before the count is complete. All waits are bounded.
; @launch grid=(256,1,1) block=(512,1,1) lds={LDS_BYTES}
.amdgcn_target "amdgcn-amd-amdhsa--gfx950"
.text
.globl {NAME}
.p2align 8
.type {NAME},@function
{NAME}:
"""
        tail = f""".section .rodata,"a"
.p2align 6
.amdhsa_kernel {NAME}
  .amdhsa_next_free_vgpr 256
  .amdhsa_next_free_sgpr 102
  .amdhsa_accum_offset 256
  .amdhsa_group_segment_fixed_size 0
  .amdhsa_kernarg_size 104
  .amdhsa_user_sgpr_count 2
  .amdhsa_user_sgpr_kernarg_segment_ptr 1
  .amdhsa_system_sgpr_workgroup_id_x 1
  .amdhsa_float_denorm_mode_32 3
.end_amdhsa_kernel
"""
        return head + self.a.text() + tail, bad

if __name__ == "__main__":
    out = sys.argv[1] if len(sys.argv) > 1 else "gated_mix__mha_block__ssm_conv_h3__prompt.s"
    opt = dict(x[2:].split("=") for x in sys.argv if x.startswith("-D"))
    G = Gen(stamps="--stamps" in sys.argv, opt=opt)
    src, bad = G.build()
    if G.stamps: src = src.replace("; @launch", "; STAMPS " + " ".join(G.names) + "\n; @launch", 1)
    for b in bad: print("LINT:", b)
    open(out, "w").write(src)
    print("wrote", out, len(src), "bytes;", len(bad), "lint findings")
```

```python
import sys, math, struct
from asmlib import *

NAME = "gated_mix__mha_block__ssm_conv_h3__prompt_kernel"
def f2u(x): return struct.unpack("<I", struct.pack("<f", x))[0]

KV, QO, UR, YD, OM, ORM = 0, 0x500000, 0x780000, 0xA00000, 0xC80000, 0xE80000
F2, F4, F3, F5, GT, F1 = 0xF04000, 0xF08000, 0xF0C000, 0xF0D000, 0xF0E000, 0xFA0000
TS = 0xF10000
WS_SIZE = 0x1000000
KV_HS, KV_US = 163840, 5120
Q_HS, Q_US = 81920, 2560
NSLOT = 3
L_X, L_W = 0, 49152
L_Q, L_SIG = 81920, 162048
L_CONV, CONV_SZ, CS, U_OFF = 98304, 21248, 4160, 16640
L_WO, L_YD, L_EX, L_RDY = 0, 102400, 112640, 145408
LDS_BYTES = 163840
sWG, sWAVE = 2, 3
pX, pW, pWO, pWS, pK, pV, pSH, pH, pD, pGW, pOUT, pDBG = 4, 6, 8, 10, 12, 14, 16, 18, 20, 22, 24, 26
rWS, rA, rB, rC, rD = 28, 32, 36, 40, 44
sXCD, sI, sJT, sRT, sPRT, sCJ, sCH0, sNCH, sHEAD, sQB = 48, 49, 50, 51, 52, 53, 54, 55, 56, 57
sLW, sCH, sKH, sTB, sCNT, sSLOW = 58, 59, 60, 61, 62, 63
T0, T1, T2, T3, T4, T5, T6, T7 = 64, 65, 66, 67, 68, 69, 70, 71
sM = 72
sVMASK = 74
sTS = 76
sE = 78
sSC = 86
sKVB, sKVW, sOMS, sORS, sF4S, sCL = 87, 88, 89, 90, 91, 92
sNB, sBC, sU, sK = 93, 94, 78, 96
sM2 = 98
sKVG = 97
sRET = 52
sPI, sNU, sG = 100, 101, 95
POLL_MAX = 200000
IDX, AKM, AKR, AV, L16, AQM, AQR, AF3, YDV = 224, 225, 226, 227, 228, 229, 230, 231, 232
WOV = 233
F3T = 238
ONES, APX, AQM2, AQR2 = 240, 241, 242, 243
QM2, QR2, O2 = 128, 132, 144
WM0, WM1, WR0, WR1, AOM, AOR, AOUT, AG, AEX, AX2, AYD, AF4 = 244, 245, 246, 247, 248, 249, 250, 251, 252, 253, 254, 255
O_, QM, QR, KRM, KM, S_ = 192, 32, 36, 38, 40, 64
VS = (48, 208)
XE = 8

class Gen:
    def __init__(self, stamps=False, opt=None):
        self.a = Asm(); self.stamps = stamps; self.names = []; self.opt = opt or {}
        self.nt = " nt" if int(self.opt.get("nt", 1)) else ""
        self.gnt = " nt" if int(self.opt.get("gnt", 0)) else ""
    def o(self, k, d): return type(d)(self.opt.get(k, d))
    def srd(self, r, p, size):
        self.a(f"s_mov_b32 s{r}, s{p}\ns_mov_b32 s{r+1}, s{p+1}\ns_mov_b32 s{r+2}, {size:#x}\ns_mov_b32 s{r+3}, 0x20000")
    def stamp(self, name):
        if not self.stamps: return
        if self.o("lite", 0) and name not in ("start", "att0", "attend", "end"): return
        if name not in self.names: self.names.append(name)
        k = self.names.index(name); assert k < 58
        if name == "start": self.a("s_mov_b32 s99, s76")
        self.a(f"s_memrealtime s[{sTS}:{sTS+1}]\ns_waitcnt lgkmcnt(0)\nv_writelane_b32 v1, s{sTS}, {k}")
        if name in ("l.b5", "l.b9"): self.a(f"s_memtime s[{sTS}:{sTS+1}]\ns_waitcnt lgkmcnt(0)\nv_writelane_b32 v1, s{sTS}, {58 if name == 'l.b5' else 59}")
        if name in ("att0", "attend"): self.a(f"s_memtime s[{sTS}:{sTS+1}]\ns_waitcnt lgkmcnt(0)\nv_writelane_b32 v1, s{sTS}, {60 if name == 'att0' else 61}")
        if name == "start":
            if "entry" not in self.names: self.names.append("entry")
            self.a(f"v_writelane_b32 v1, s99, {self.names.index('entry')}")
        if name == "start": self.a(f"s_memtime s[{sTS}:{sTS+1}]\ns_waitcnt lgkmcnt(0)\nv_writelane_b32 v1, s{sTS}, 62")
        if name == "end": self.a(f"s_memtime s[{sTS}:{sTS+1}]\ns_waitcnt lgkmcnt(0)\nv_writelane_b32 v1, s{sTS}, 63")
        self.a.done["ds"] = self.a.n["ds"]
    def poll(self, loads, tmp, cmp=None):
        a = self.a
        L, D = a.newlabel("POLL"), a.newlabel("POLLD")
        a(f"s_mov_b32 s{sCNT}, 0")
        a.label(L)
        k = 0
        for (va, r, imm, wd) in loads:
            ins = {1: "buffer_load_dword", 2: "buffer_load_dwordx2", 4: "buffer_load_dwordx4"}[wd]
            a(f"{ins} {vr(tmp+k, wd)}, v{va}, s[{r}:{r+3}], 0 offen offset:{imm} sc1"); k += wd
        a("s_waitcnt vmcnt(0)")
        a.done["vm"] = a.n["vm"]
        self.poll_check(tmp, k, cmp)
        a(f"s_cbranch_scc1 {D}")
        a(f"s_add_u32 s{sCNT}, s{sCNT}, 1\ns_cmp_lt_u32 s{sCNT}, {POLL_MAX}\ns_cbranch_scc0 {D}\ns_sleep 1\ns_branch {L}")
        a.label(D)
    def mpoll(self, addrs, tmp, elastic=False):
        a = self.a
        L, D = a.newlabel("MP"), a.newlabel("MPD")
        M = [sM, sM2][:len(addrs)]
        a(f"s_mov_b32 s{sCNT}, 0")
        for m in M: a(f"s_mov_b64 s[{m}:{m+1}], -1")
        a.label(L)
        for k, (va, m) in enumerate(zip(addrs, M)):
            S = a.newlabel("MS")
            a(f"s_mov_b64 exec, s[{m}:{m+1}]\ns_cbranch_execz {S}\nbuffer_load_dword v{tmp+k}, v{va}, s[{rWS}:{rWS+3}], 0 offen sc1")
            a.label(S)
        a("s_mov_b64 exec, -1")
        if elastic: self.ewait()
        else: a("s_waitcnt vmcnt(0)")
        a.done["vm"] = a.n["vm"]
        for k, m in enumerate(M):
            a(f"v_cmp_eq_u32 vcc, 0, v{tmp+k}\ns_nop 1\ns_and_b64 s[{m}:{m+1}], s[{m}:{m+1}], vcc")
        if len(M) == 2: a(f"s_or_b64 vcc, s[{sM}:{sM+1}], s[{sM2}:{sM2+1}]")
        a(f"s_cbranch_scc0 {D}")
        a(f"s_add_u32 s{sCNT}, s{sCNT}, 1\ns_cmp_lt_u32 s{sCNT}, {POLL_MAX}\ns_cbranch_scc0 {D}\ns_sleep {self.o('psleep', 2)}\ns_branch {L}")
        a.label(D)
    def last_flag(self, off, sN, sAddr, vt, base=L_SIG):
        a = self.a
        L = a.newlabel("NL")
        a(f"""v_mov_b32 v{vt}, {base}
        v_mov_b32 v{vt+1}, 1
        s_mov_b64 exec, 1
        ds_add_rtn_u32 v{vt+1}, v{vt}, v{vt+1} offset:{off}
        s_waitcnt lgkmcnt(0)
        v_readfirstlane_b32 s{T0}, v{vt+1}
        s_mov_b64 exec, -1
        s_add_u32 s{T0}, s{T0}, 1
        s_cmp_lg_u32 s{T0}, {sN}
        s_cbranch_scc1 {L}""")
        self.flag_store(sAddr, vt, two=True)
        a.label(L)
    def poll_check(self, tmp, k, cmp=None):
        a = self.a
        for j in range(1, k, 2):
            if j + 1 < k: a(f"v_min3_u32 v{tmp}, v{tmp}, v{tmp+j}, v{tmp+j+1}")
            else: a(f"v_min_u32 v{tmp}, v{tmp}, v{tmp+j}")
        a(cmp or f"v_cmp_ne_u32 vcc, 0, v{tmp}")
        a("s_nop 1\ns_cmp_eq_u64 vcc, exec")
    def flag_store(self, s, vt, two=False):
        a = self.a
        a(f"v_lshl_add_u32 v{vt}, v0, 2, s{s}\nv_mov_b32 v{vt+1}, 1\ns_mov_b64 exec, {3 if two else 1}")
        t = a.vm(f"buffer_store_dword v{vt+1}, v{vt}, s[{rWS}:{rWS+3}], 0 offen sc1")
        a("s_mov_b64 exec, -1")
        return t

    def prologue(self):
        a = self.a
        if self.stamps: a("s_memrealtime s[76:77]")
        a(f"s_cmp_ge_u32 s{sWG}, 256\ns_cbranch_scc1 L_END")
        if self.opt.get("diag") == "spin":
            a("s_mov_b32 s60, 2500\nv_mov_b32 v10, 0")
            a.label("L_DSPIN")
            for e in range(8): a(f"v_exp_f32 v{11+e}, v10")
            a("s_sub_u32 s60, s60, 1\ns_cmp_lg_u32 s60, 0\ns_cbranch_scc1 L_DSPIN")
        if self.opt.get("diag") == "chain":
            a("s_load_dwordx2 s[32:33], s[0:1], 24\ns_waitcnt lgkmcnt(0)\ns_mov_b32 s34, 2621440\ns_mov_b32 s35, 0x20000\ns_mul_i32 s60, s2, 256\nv_mov_b32 v10, s60")
            for e in range(32): a("buffer_load_dword v12, v10, s[32:35], 0 offen\ns_waitcnt vmcnt(0)\nv_and_b32 v12, 0, v12\nv_add_u32 v10, v10, v12\nv_add_u32 v10, 0x13000, v10")
        if self.opt.get("diag") == "bq":
            a("s_load_dwordx2 s[32:33], s[0:1], 24\ns_waitcnt lgkmcnt(0)\ns_mov_b32 s34, 2621440\ns_mov_b32 s35, 0x20000\nv_lshlrev_b32 v10, 4, v0\ns_mul_i32 s60, s2, 10240")
            a("buffer_load_dwordx4 v[12:15], v10, s[32:35], s60 offen\ns_add_u32 s60, s60, 2048\nbuffer_load_dwordx4 v[16:19], v10, s[32:35], s60 offen\ns_waitcnt vmcnt(0)")
        a(f"""s_load_dwordx4 s[4:7], s[0:1], 0
        s_load_dwordx16 s[12:27], s[0:1], 32
        s_load_dwordx2 s[10:11], s[0:1], 96
        s_load_dwordx2 s[8:9], s[0:1], 16
        v_lshrrev_b32 v1, 6, v0
        v_and_b32 v0, 63, v0
        s_and_b32 s{sXCD}, s{sWG}, 7
        v_readfirstlane_b32 s{sWAVE}, v1
        s_lshr_b32 s{sI}, s{sWG}, 3
        s_and_b32 s{T0}, s{sXCD}, 1
        s_mul_i32 s{T0}, s{T0}, 30
        s_add_u32 s{T0}, s{T0}, s{sI}
        s_lshr_b32 s{sJT}, s{T0}, 2
        s_and_b32 s{T0}, s{T0}, 3
        s_lshr_b32 s{T1}, s{sXCD}, 1
        s_lshl_b32 s{T1}, s{T1}, 2
        s_add_u32 s{sRT}, s{T0}, s{T1}
        s_sub_u32 s{sLW}, s{sWAVE}, 4
        s_mul_i32 s{T0}, s{sXCD}, 30
        s_add_u32 s{sPI}, s{T0}, s{sI}
        s_mul_i32 s{sG}, s{sPI}, 171
        s_lshr_b32 s{sG}, s{sG}, 9
        s_mul_i32 s{T1}, s{sG}, 3
        s_sub_u32 s{T1}, s{sPI}, s{T1}
        s_lshl_b32 s{T2}, s{sG}, 3
        s_mul_i32 s{T3}, s{T1}, 3
        s_add_u32 s{sCH0}, s{T2}, s{T3}
        s_lshr_b32 s{T1}, s{T1}, 1
        s_sub_u32 s{sNCH}, 3, s{T1}
        s_lshl_b32 s{T0}, s{sXCD}, 1
        s_add_u32 s{T0}, s{T0}, s{sI}
        s_add_u32 s{T0}, s{T0}, 210
        s_cmp_ge_u32 s{sI}, 30
        s_cselect_b32 s{sPI}, s{T0}, s{sPI}
        s_cselect_b32 s{sNCH}, 0, s{sNCH}
        s_cselect_b32 s{sNU}, 8, 2""")
        if self.o("cpf", 1) == 2: self.code_prefetch()
        a(f"""s_cmp_lt_u32 s{sWAVE}, 4
        s_cbranch_scc1 L_COMPUTE
        s_cmp_gt_u32 s{sWAVE}, 4
        s_cbranch_scc1 L_SIDE""")
    def code_prefetch(self):
        a = self.a
        L = a.newlabel("NOPF")
        a(f"""s_cmp_lg_u32 s{sWAVE}, 1
        s_cbranch_scc1 {L}
        s_getpc_b64 s[{T2}:{T3}]
        L_PC:
        s_sub_u32 s{T2}, s{T2}, L_PC-{NAME}
        s_subb_u32 s{T3}, s{T3}, 0
        s_and_b32 s{T0}, s{sI}, 7
        s_lshl_b32 s{T0}, s{T0}, 13
        v_lshl_add_u32 v10, v0, 7, s{T0}
        v_min_u32 v10, L_CODE_END-{NAME}-4, v10
        global_load_dword v31, v10, s[{T2}:{T3}]""")
        a.label(L)
    def common_scalars(self):
        self.a(f"""s_cmp_ge_u32 s{sI}, 30
        s_cselect_b32 s{sNB}, 1, 10
        s_mov_b32 s{sBC}, 0
        s_lshr_b32 s{T0}, s{sI}, 3
        s_lshl_b32 s{T1}, s{sXCD}, 2
        s_add_u32 s{sHEAD}, s{T0}, s{T1}
        s_and_b32 s{sQB}, s{sI}, 7
        s_lshr_b32 s{sKH}, s{sWAVE}, 2
        s_and_b32 s{sTB}, s{sWAVE}, 3
        s_mov_b32 s{sSLOW}, 0
        s_mov_b32 s{sVMASK}, 0x000fffff
        s_mov_b32 s{sVMASK+1}, 0x000fffff""")
    def setup_call(self):
        if self.o("sub", 1): self.a(f"s_call_b64 s[{sRET}:{sRET+1}], L_SETUP")
        else: self.common_scalars(); self.persistent()
    def setup_sub(self):
        if not self.o("sub", 1): return
        self.a.label("L_SETUP")
        self.common_scalars(); self.persistent()
        self.a(f"s_setpc_b64 s[{sRET}:{sRET+1}]")
    def persistent(self, t=192):
        a = self.a
        a(f"""s_mov_b32 s{sM}, 0x11000000
        s_mov_b32 s{sM+1}, 0x11000000
        v_mov_b32 v{t}, 0x3f803f80
        v_cndmask_b32 v{ONES}, 0, v{t}, s[{sM}:{sM+1}]""")
        a(f"""v_mov_b32 v{IDX}, 0xdddddddd
        v_lshlrev_b32 v{AKM}, 4, v0
        v_lshlrev_b32 v{L16}, 4, v0
        v_lshlrev_b32 v{t}, 3, v0
        v_add_u32 v{AKR}, 2048, v{t}
        v_and_b32 v{t+1}, 31, v0
        v_lshrrev_b32 v{t+2}, 5, v0
        v_mul_u32_u24 v{t+2}, 320, v{t+2}
        v_lshl_add_u32 v{t+2}, v{t+1}, 4, v{t+2}
        v_add_u32 v{AV}, 2560, v{t+2}
        s_mul_i32 s{T0}, s{sKH}, {KV_US}
        v_add_u32 v{AKM}, s{T0}, v{AKM}
        v_add_u32 v{AKR}, s{T0}, v{AKR}
        v_add_u32 v{AV}, s{T0}, v{AV}
        s_mul_i32 s{T0}, s{sTB}, {Q_US}
        s_add_u32 s{T0}, s{T0}, {L_Q}
        s_lshl_b32 s{T2}, s{sKH}, 10
        s_add_u32 s{T2}, s{T2}, s{T0}
        v_add_u32 v{AQM}, s{T2}, v{L16}
        s_lshl_b32 s{T1}, s{sKH}, 8
        s_add_u32 s{T1}, s{T1}, s{T0}
        v_lshl_add_u32 v{AQR}, v{t+1}, 3, s{T1}
        s_xor_b32 s{T3}, s{sKH}, 1
        s_lshl_b32 s{T2}, s{T3}, 10
        s_add_u32 s{T2}, s{T2}, s{T0}
        v_add_u32 v{AQM2}, s{T2}, v{L16}
        s_lshl_b32 s{T1}, s{T3}, 8
        s_add_u32 s{T1}, s{T1}, s{T0}
        v_lshl_add_u32 v{AQR2}, v{t+1}, 3, s{T1}
        s_mul_i32 s{sKVB}, s{sHEAD}, {KV_HS}
        s_mul_i32 s{sKVW}, s{sWAVE}, {KV_US}
        s_add_u32 s{sKVG}, s{sKVW}, s{sKVB}
        s_lshl_b32 s{T0}, s{sHEAD}, 16
        s_lshl_b32 s{T1}, s{sQB}, 2
        s_add_u32 s{T1}, s{T1}, s{sTB}
        s_lshl_b32 s{T1}, s{T1}, 1
        s_add_u32 s{T1}, s{T1}, s{sKH}
        s_lshl_b32 s{T2}, s{T1}, 10
        s_add_u32 s{T0}, s{T0}, s{T2}
        s_add_u32 s{sOMS}, s{T0}, {OM:#x}
        s_lshl_b32 s{T2}, s{sHEAD}, 14
        s_lshl_b32 s{T1}, s{T1}, 8
        s_add_u32 s{T1}, s{T1}, s{T2}
        s_add_u32 s{sORS}, s{T1}, {ORM:#x}
        s_lshl_b32 s{T0}, s{sQB}, 11
        s_lshl_b32 s{T1}, s{sHEAD}, 6
        s_add_u32 s{T0}, s{T0}, s{T1}
        s_add_u32 s{sF4S}, s{T0}, {F4:#x}""")
        a(f"""s_mul_i32 s{T0}, s{sQB}, 320
        s_add_u32 s{T0}, s{T0}, {F3:#x}
        v_lshl_add_u32 v{AF3}, v0, 3, s{T0}
        s_lshr_b32 s{T0}, s{sHEAD}, 1
        s_lshl_b32 s{T0}, s{T0}, 6
        s_add_u32 s{T0}, s{T0}, {F5:#x}
        v_mov_b32 v{t}, s{T0}
        s_mov_b32 s{sM}, 0
        s_mov_b32 s{sM+1}, 0xffffff00
        v_cndmask_b32 v{AF3}, v{AF3}, v{t}, s[{sM}:{sM+1}]""")
        a(f"s_mul_i32 s{T0}, s{sWAVE}, {13*64}\ns_mul_i32 s{T1}, s{sQB}, 160")
        for k in range(5):
            a(f"""s_add_u32 s{T2}, s{T0}, {64*k}
            v_add_u32 v{t}, s{T2}, v0
            v_mul_u32_u24 v{t+1}, 52429, v{t}
            v_lshrrev_b32 v{t+1}, 19, v{t+1}
            v_mul_u32_u24 v{t+1}, {1280-160}, v{t+1}
            v_lshl_add_u32 v{t+1}, v{t}, 4, v{t+1}
            v_add_u32 v{WOV+k}, s{T1}, v{t+1}""")
        a(f"""s_mul_i32 s{T0}, s{sQB}, 80
        s_mul_i32 s{T1}, s{sWAVE}, 10
        s_add_u32 s{T0}, s{T0}, s{T1}
        v_lshrrev_b32 v{t}, 3, v0
        v_add_u32 v{t}, s{T0}, v{t}
        v_lshlrev_b32 v{t}, 12, v{t}
        v_and_b32 v{t+1}, 7, v0
        v_lshl_add_u32 v{t}, v{t+1}, 4, v{t}
        s_lshl_b32 s{T0}, s{sHEAD}, 7
        s_add_u32 s{T0}, s{T0}, {YD:#x}
        v_add_u32 v{YDV}, s{T0}, v{t}""")
        q, r, c8, tt, b0 = t, t + 1, t + 2, t + 3, t + 4
        a(f"""v_lshrrev_b32 v{q}, 4, v0
        v_lshrrev_b32 v{r}, 2, v0
        v_and_b32 v{r}, 3, v{r}
        v_and_b32 v{c8}, 3, v0
        v_lshlrev_b32 v{c8}, 3, v{c8}
        v_and_b32 v{tt}, 15, v0
        v_and_b32 v{b0}, 1, v{q}
        s_mul_i32 s{T2}, s{sKH}, {51200 + 96}
        s_mul_i32 s{T3}, s{sKH}, {51200 - 64}
        v_lshrrev_b32 v{t+5}, 1, v{q}
        v_mul_u32_u24 v{t+5}, 20, v{t+5}
        v_lshl_add_u32 v{t+5}, v{b0}, 2, v{t+5}
        v_add_u32 v{t+5}, v{t+5}, v{r}
        v_mul_u32_u24 v{t+5}, 160, v{t+5}
        v_add_u32 v{t+5}, v{t+5}, v{c8}
        v_add_u32 v{WM0}, s{T2}, v{t+5}
        v_add_u32 v{WM1}, s{T3}, v{t+5}
        v_mul_u32_u24 v{t+5}, 20, v{q}
        v_add3_u32 v{t+5}, v{t+5}, v{r}, 16
        v_mul_u32_u24 v{t+5}, 160, v{t+5}
        v_add_u32 v{t+5}, v{t+5}, v{c8}
        v_add_u32 v{WR0}, s{T2}, v{t+5}
        v_add_u32 v{WR1}, s{T3}, v{t+5}
        s_lshl_b32 s{T2}, s{sKH}, 20
        s_lshl_b32 s{T3}, s{sHEAD}, 11
        s_add_u32 s{T2}, s{T2}, s{T3}
        s_lshr_b32 s{T3}, s{sTB}, 1
        s_lshl_b32 s{T4}, s{T3}, 10
        s_add_u32 s{T2}, s{T2}, s{T4}
        s_and_b32 s{T4}, s{sTB}, 1
        s_lshl_b32 s{T4}, s{T4}, 8
        s_add_u32 s{T2}, s{T2}, s{T4}
        s_add_u32 s{T2}, s{T2}, {OM:#x}
        v_lshrrev_b32 v{t+5}, 1, v{q}
        v_lshlrev_b32 v{t+5}, 16, v{t+5}
        v_lshl_add_u32 v{t+5}, v{b0}, 9, v{t+5}
        v_lshl_add_u32 v{t+5}, v{tt}, 4, v{t+5}
        v_add_u32 v{AOM}, s{T2}, v{t+5}
        s_lshl_b32 s{T2}, s{sKH}, 18
        s_lshl_b32 s{T4}, s{sHEAD}, 9
        s_add_u32 s{T2}, s{T2}, s{T4}
        s_lshl_b32 s{T4}, s{sTB}, 7
        s_add_u32 s{T2}, s{T2}, s{T4}
        s_add_u32 s{T2}, s{T2}, {ORM:#x}
        v_lshlrev_b32 v{t+5}, 14, v{q}
        v_lshl_add_u32 v{t+5}, v{tt}, 3, v{t+5}
        v_add_u32 v{AOR}, s{T2}, v{t+5}
        s_lshr_b32 s{T2}, s{sHEAD}, 2
        s_lshl_b32 s{T2}, s{T2}, 11
        s_add_u32 s{T2}, s{T2}, {F4:#x}
        s_lshl_b32 s{T3}, s{sKH}, 10
        s_add_u32 s{T2}, s{T2}, s{T3}
        v_lshl_add_u32 v{AF4}, v{tt}, 6, s{T2}
        s_lshl_b32 s{T0}, s{sHEAD}, 6
        s_lshl_b32 s{T1}, s{sTB}, 4
        s_add_u32 s{T0}, s{T0}, s{T1}
        v_add_u32 v{t+5}, s{T0}, v{tt}
        v_lshlrev_b32 v{AG}, 2, v{t+5}
        v_add_u32 v{AG}, {GT:#x}, v{AG}
        v_mul_u32_u24 v{t+5}, 1280, v{t+5}
        v_lshl_add_u32 v{t+5}, v{q}, 3, v{t+5}
        s_mul_i32 s{T0}, s{sQB}, 160
        s_mul_i32 s{T1}, s{sKH}, 96
        s_add_u32 s{T0}, s{T0}, s{T1}
        v_add_u32 v{AOUT}, s{T0}, v{t+5}
        s_lshl_b32 s{T0}, s{sWAVE}, 12
        s_add_u32 s{T0}, s{T0}, {L_EX}
        v_add_u32 v{AEX}, s{T0}, v{L16}
        s_xor_b32 s{T0}, s{sWAVE}, 4
        s_lshl_b32 s{T0}, s{T0}, 12
        s_add_u32 s{T1}, s{T0}, {L_EX}
        v_add_u32 v{APX}, s{T1}, v{L16}
        s_lshl_b32 s{T1}, s{sKH}, 10
        s_add_u32 s{T1}, s{T1}, s{T0}
        s_add_u32 s{T1}, s{T1}, {L_EX}
        v_add_u32 v{AX2}, s{T1}, v{L16}
        v_lshl_add_u32 v{AYD}, v{q}, 2, v{r}
        v_lshl_add_u32 v{AYD}, v{AYD}, 7, v{c8}
        s_mul_i32 s{T0}, s{sKH}, {48*128}
        s_lshl_b32 s{T1}, s{sTB}, 5
        s_add_u32 s{T0}, s{T0}, s{T1}
        s_add_u32 s{T0}, s{T0}, {L_YD}
        v_add_u32 v{AYD}, s{T0}, v{AYD}""")
    def att_init_list(self):
        if self.o("ones", 2) == 12:
            return [f"v_mov_b32 v{O_+e}, 0" for e in range(16)] + [f"v_mov_b32 v{st+e}, 0x3f803f80" for st in VS for e in range(16)]
        return [f"v_mov_b32 v{O_+e}, 0" for e in range(16)] + [f"v_mov_b32 v{st+e}, v{ONES}" for st in VS for e in range(16)]

    def flag_reset(self):
        a = self.a
        L = a.newlabel("NOZ")
        a(f"s_cmp_lg_u32 s{sWAVE}, 0\ns_cbranch_scc1 {L}")
        a(f"""s_lshl_b32 s{T0}, s{sPI}, 6
        s_add_u32 s{T0}, s{T0}, {F1:#x}
        v_mov_b32 v12, s{T0}
        v_and_b32 v10, 3, v0
        v_lshlrev_b32 v11, 2, v10
        v_add_u32 v13, s{sCL}, v11
        s_mov_b32 s{sM}, 0xf
        s_mov_b32 s{sM+1}, 0
        v_cndmask_b32 v12, v12, v13, s[{sM}:{sM+1}]
        s_lshl_b32 s{T0}, s{sCH0}, 2
        s_add_u32 s{T0}, s{T0}, {F3:#x}
        v_add_u32 v13, s{T0}, v11
        s_lshl_b32 s{sM}, 16, s{sNCH}
        s_sub_u32 s{sM}, s{sM}, 16
        v_cndmask_b32 v12, v12, v13, s[{sM}:{sM+1}]
        s_lshl_b32 s{T0}, s{sQB}, 11
        s_lshl_b32 s{T1}, s{sHEAD}, 6
        s_add_u32 s{T0}, s{T0}, s{T1}
        s_add_u32 s{T0}, s{T0}, {F4:#x}
        v_mov_b32 v13, s{T0}
        s_mov_b32 s{sM}, 0x100
        v_cndmask_b32 v12, v12, v13, s[{sM}:{sM+1}]
        s_lshl_b32 s{T0}, s{sG}, 6
        s_add_u32 s{T0}, s{T0}, {F1 + 256*64:#x}
        v_mov_b32 v13, s{T0}
        s_cmp_lt_u32 s{sG}, 32
        s_cselect_b32 s{T1}, s{sNCH}, 0
        s_cmp_eq_u32 s{T1}, 2
        s_cselect_b32 s{sM}, 0x200, 0
        v_cndmask_b32 v12, v12, v13, s[{sM}:{sM+1}]
        v_mov_b32 v13, 0
        s_mov_b32 exec_lo, 0x3ff
        s_mov_b32 exec_hi, 0
        buffer_store_dword v13, v12, s[{rWS}:{rWS+3}], 0 offen sc1
        s_mov_b64 exec, 1""")
        self.srd(rA, pDBG, 256)
        a(f"""s_and_b32 s{T0}, s{sWG}, 1
        s_lshl_b32 s{T0}, s{T0}, 7
        v_mov_b32 v12, s{T0}
        v_mov_b32 v13, 1
        s_waitcnt vmcnt(0)
        buffer_atomic_add v13, v12, s[{rA}:{rA+3}], 0 offen sc1
        s_mov_b64 exec, -1""")
        a.label(L)

    XA, WA, XA2, WA2, EA = 2, 6, 128, 132, 136
    def gemm_compute(self):
        a = self.a
        XA, WA = self.XA, self.WA
        a.label("L_COMPUTE")
        if self.o("cpf", 1) == 1: self.code_prefetch()
        self.common_scalars()
        a(f"""s_lshl_b32 s{T0}, s{sJT}, 10
        s_lshl_b32 s{T1}, s{sRT}, 6
        s_add_u32 s{T0}, s{T0}, s{T1}
        s_add_u32 s{sCL}, s{T0}, {F2:#x}
        s_lshl_b32 s{T0}, s{sXCD}, 1
        s_add_u32 s{T0}, s{T0}, s{sI}
        s_sub_u32 s{T7}, s{T0}, 30
        s_lshl_b32 s{T0}, s{T7}, 6
        s_add_u32 s{T0}, s{T0}, {F5:#x}
        s_cmp_ge_u32 s{sI}, 30
        s_cselect_b32 s{sCL}, s{T0}, s{sCL}
        s_waitcnt lgkmcnt(0)""")
        self.srd(rWS, pWS, WS_SIZE)
        if self.stamps: a("v_mov_b32 v1, 0")
        self.stamp("start")
        if self.o("tlb", 0):
            L = a.newlabel("NOTLB")
            a(f"s_cmp_lg_u32 s{sWAVE}, 2\ns_cbranch_scc1 {L}")
            self.srd(rB, pOUT, 2048 * 1280); self.srd(rC, pWO, 640 * 1280)
            a(f"""v_lshlrev_b32 v10, 20, v0
            s_mov_b64 exec, 0xffff
            buffer_load_dword v31, v10, s[{rWS}:{rWS+3}], 0 offen sc1
            s_mov_b64 exec, 7
            buffer_load_dword v30, v10, s[{rB}:{rB+3}], 0 offen sc1
            s_mov_b64 exec, 1
            buffer_load_dword v29, v10, s[{rC}:{rC+3}], 0 offen
            s_mov_b64 exec, -1""")
            a.label(L)
        self.flag_reset()
        self.setup_call()
        for l in self.att_init_list():
            if int(l.split()[1][1:-1]) >= 192: a(l)
        a(f"s_cmp_eq_u32 s{sWAVE}, 0\ns_cbranch_scc1 L_C_NW\ns_waitcnt vmcnt(0)")
        a.label("L_C_NW")
        a(f"s_cmp_ge_u32 s{sI}, 30\ns_cbranch_scc1 L_C_NOTILE")
        a(f"""s_and_b32 s{T0}, s{sWAVE}, 1
        s_lshl_b32 s{T0}, s{T0}, 13
        v_and_b32 v8, 31, v0
        v_lshrrev_b32 v9, 5, v0
        v_lshrrev_b32 v10, 1, v8
        v_and_b32 v10, 7, v10
        v_xor_b32 v10, v10, v9
        v_lshlrev_b32 v8, 7, v8
        v_add_u32 v8, s{T0}, v8""")
        for ks in range(4):
            a(f"v_xor_b32 v11, {2*ks}, v10\nv_lshl_add_u32 v{XA+ks}, v11, 4, v8")
        a(f"""v_lshrrev_b32 v8, 2, v0
        v_and_b32 v8, 3, v8
        v_lshrrev_b32 v9, 5, v0
        v_lshl_add_u32 v9, v9, 3, v8
        v_lshlrev_b32 v9, 8, v9
        v_lshrrev_b32 v10, 4, v0
        v_and_b32 v10, 1, v10
        v_lshlrev_b32 v10, 1, v10
        v_lshrrev_b32 v11, 1, v0
        v_and_b32 v11, 1, v11
        v_or_b32 v10, v10, v11
        v_and_b32 v11, 1, v0
        v_lshlrev_b32 v11, 3, v11
        v_add_u32 v9, v9, v11
        v_add_u32 v9, {L_W}, v9
        s_and_b32 s{T0}, s{sWAVE}, 2""")
        for i in range(2):
            a(f"""s_add_u32 s{T1}, s{T0}, {i}
            v_xor_b32 v11, s{T1}, v8
            v_lshl_add_u32 v11, v11, 2, v10
            v_lshl_add_u32 v{WA+i}, v11, 4, v9""")
        def lowinit():
            for l in self.att_init_list():
                if int(l.split()[1][1:-1]) < 192: a(l)
        a(f"s_setprio {self.o('gprio', 3)}")
        a(f"s_cmp_ge_u32 s{sJT}, 10\ns_cbranch_scc1 L_C_VTILE")
        self.epi_qk_setup()
        self.gemm_loop(False, self.gemm_epi_qk, lowinit)
        a("s_branch L_C_FLAG")
        a.label("L_C_NOTILE")
        a(f"s_call_b64 s[{sRET}:{sRET+1}], L_SPARE")
        self.stamp("g.pre")
        self.sig_wait(8, 8)
        self.stamp("g.go")
        self.gate()
        lowinit()
        a("s_branch L_C_FLAG")
        a.label("L_C_VTILE")
        self.epi_v_setup()
        self.gemm_loop(True, self.gemm_epi_v, lowinit)
        a.label("L_C_FLAG")
        a.reset_counters()
        self.stamp("c.epi")
        L = a.newlabel("KVW")
        a(f"s_cmp_eq_u32 s{sWAVE}, 3\ns_cbranch_scc1 {L}")
        a("s_waitcnt vmcnt(0)")
        self.last_flag(12, 4, sCL, 2)
        self.stamp("c.F2set")
        a("s_branch L_ATT")
        a.label(L)
        self.kv_fetch_setup()
        a(f"buffer_load_dword v29, v28, s[{rC}:{rC+3}], 0 offen sc1")
        a("s_waitcnt vmcnt(0)")
        self.last_flag(12, 4, sCL, 2)
        self.kv_fetch()
        a("s_branch L_ATT")

    def gate(self):
        a = self.a
        a.reset_counters()
        X, W, Z = 32, 12, 2
        self.srd(rA, pX, 2048 * 1280); self.srd(rB, pGW, 1280)
        a(f"""s_lshl_b32 s{T0}, s{T7}, 7
        s_lshl_b32 s{T1}, s{sWAVE}, 5
        s_add_u32 s{T6}, s{T0}, s{T1}
        v_lshrrev_b32 v10, 4, v0
        v_add_u32 v11, s{T6}, v10
        v_mul_u32_u24 v11, 1280, v11
        v_and_b32 v2, 15, v0
        v_lshlrev_b32 v3, 4, v2
        v_add_u32 v11, v11, v3""")
        for j in range(5): tw = a.vm(f"buffer_load_dwordx4 {vr(W+4*j,4)}, v3, s[{rB}:{rB+3}], 0 offen offset:{256*j}")
        tx = []
        for g in range(8):
            a(f"s_mov_b32 s{T0}, {5120*g}")
            for j in range(5): t = a.vm(f"buffer_load_dwordx4 {vr(X+20*g+4*j,4)}, v11, s[{rA}:{rA+3}], s{T0} offen offset:{256*j}")
            tx.append(t)
        a(f"""v_lshl_add_u32 v10, v2, 2, v10
        v_add_u32 v10, s{T6}, v10
        v_lshlrev_b32 v10, 2, v10
        v_add_u32 v10, {GT:#x}, v10
        v_mov_b32 v11, v2""")
        for g in range(8):
            a.wait(tw, tx[g])
            for e in range(20):
                a(f"v_dot2_f32_bf16 v{Z+g}, v{X+20*g+e}, v{W+e}, {'0' if e == 0 else f'v{Z+g}'}")
        a.nop(3)
        for sh in (8, 4, 2, 1):
            for g in range(8): a(f"v_add_f32_dpp v{Z+g}, v{Z+g}, v{Z+g} row_ror:{sh} row_mask:0xf bank_mask:0xf")
        for g in range(1, 8):
            a(f"v_cmp_eq_u32 vcc, {g}, v11\ns_nop 1\nv_cndmask_b32 v{Z}, v{Z}, v{Z+g}, vcc")
        a(f"""v_mul_f32 v{Z}, {f2u(-math.log2(math.e)):#x}, v{Z}
        v_exp_f32 v{Z}, v{Z}
        s_mov_b32 exec_lo, 0x00ff00ff
        v_add_f32 v{Z}, 1.0, v{Z}
        v_rcp_f32 v{Z}, v{Z}
        s_mov_b32 exec_hi, 0x00ff00ff
        buffer_store_dword v{Z}, v10, s[{rWS}:{rWS+3}], 0 offen sc1
        s_mov_b64 exec, -1""")

    def gemm_loop(self, vt, epi, fill):
        a = self.a
        a.reset_counters()
        FR, ACC = 32, 64
        def reads(s, ks):
            st = FR + 16 * (ks & 1); sl = s % NSLOT
            xa, wa, sl = (self.XA, self.WA, sl * 16384) if sl < 4 else (self.XA2, self.WA2, 0)
            rx = lambda j: (lambda: a.ds(f"ds_read_b128 {vr(st+4*j,4)}, v{xa+ks} offset:{sl + 4096*j}"))
            rw = lambda i, q: (lambda: a.ds(f"ds_read_b64_tr_b16 {vr(st+8+4*i+2*q,2)}, v{wa+i} offset:{sl + (16*ks+4*q)*256}"))
            if vt: return [("X0", rx(0)), ("W0", rw(0,0)), ("W0", rw(0,1)), ("W1", rw(1,0)), ("W1", rw(1,1)), ("X1", rx(1))]
            return [("W0", rw(0,0)), ("W0", rw(0,1)), ("X0", rx(0)), ("X1", rx(1)), ("W1", rw(1,0)), ("W1", rw(1,1))]
        def group(ks, toks, nxt, first):
            st = FR + 16 * (ks & 1); out = {}
            sched = [int(x) for x in self.o('gs', '3300')]; k = 0
            for m, (i, j) in enumerate(((0,0),(0,1),(1,0),(1,1))):
                if vt: A, B, na, nb = st + 4*i, st + 8 + 4*j, f"X{i}", f"W{j}"
                else:  A, B, na, nb = st + 8 + 4*i, st + 4*j, f"W{i}", f"X{j}"
                a.wait(toks[na], toks[nb])
                d = ACC + 16 * (2*i + j)
                a(f"v_mfma_f32_32x32x16_bf16 {vr(d,16)}, {vr(A,4)}, {vr(B,4)}, {'0' if first else vr(d,16)}")
                for _ in range(sched[m]):
                    if k < len(nxt): out[nxt[k][0]] = nxt[k][1](); k += 1
            return out
        a("s_barrier")
        toks = {}
        for n, f in reads(0, 0): toks[n] = f()
        for s in range(9):
            for ks in range(4):
                if ks < 3:
                    toks = group(ks, toks, reads(s, ks + 1), s == 0 and ks == 0)
                else:
                    a.wait_all(vm=False); a("s_barrier")
                    if s < 8: toks = group(ks, toks, reads(s + 1, 0), False)
        sets = (FR, 152, 168, 8)
        T = {}
        def rd(ks, nm):
            st = sets[ks]; sl = (9 % NSLOT) * 16384; k = int(nm[1])
            if nm[0] == "X": T[ks, nm] = a.ds(f"ds_read_b128 {vr(st+4*k,4)}, v{self.XA+ks} offset:{sl + 4096*k}")
            else:
                for q in range(2): T[ks, nm] = a.ds(f"ds_read_b64_tr_b16 {vr(st+8+4*k+2*q,2)}, v{self.WA+k} offset:{sl + (16*ks+4*q)*256}")
        na, nb = ("X", "W") if vt else ("W", "X")
        first = [(lambda ks=ks, nm=nm: rd(ks, nm)) for ks in range(4) for nm in (na + "0", nb + "0")]
        later = [(lambda ks=ks: rd(ks, nb + "1")) for ks in range(4)] + [(lambda ks=ks: rd(ks, na + "1")) for ks in range(4)]
        group(3, toks, [(f"f{i}", f) for i, f in enumerate(first[:6])], False)
        for f in first[6:]: f()
        off = lambda nm: 4 * int(nm[1]) + (0 if nm[0] == "X" else 8)
        pend = []
        for bi, (i, j) in enumerate(((0,0),(0,1),(1,0),(1,1))):
            d = ACC + 16 * (2*i + j)
            for ks in range(4):
                a.wait(T[ks, f"{na}{i}"], T[ks, f"{nb}{j}"])
                a(f"v_mfma_f32_32x32x16_bf16 {vr(d,16)}, {vr(sets[ks]+off(f'{na}{i}'),4)}, {vr(sets[ks]+off(f'{nb}{j}'),4)}, {vr(d,16)}")
                if bi < 2 and later: later.pop(0)()
                if bi >= 2:
                    n = -(-len(pend) // (4 - ks + (4 if bi == 2 else 0)))
                    for _ in range(min(n, 9)): pend.pop(0)()
            if bi == 1: pend += epi(0, 0)
            if bi == 1: pend += epi(0, 1)
            if bi == 2: last = epi(1, 0)
        for f in pend: f()
        for f in last: f()
        for f in epi(1, 1): f()
        fill()

    def epi_qk_setup(self):
        a = self.a
        sBASE, sHS, sPQ = T0, T1, T3
        a(f"""s_mov_b32 s{sHS}, {Q_HS}
        s_mov_b32 s{T4}, {Q_US}
        s_cmp_ge_u32 s{sJT}, 5
        s_cselect_b32 s{sHS}, {KV_HS}, s{sHS}
        s_cselect_b32 s{T4}, {KV_US}, s{T4}
        s_cselect_b32 s{sBASE}, {KV}, {QO:#x}
        s_cselect_b32 s{T5}, 5, 0
        s_cselect_b64 s[{sM}:{sM+1}], -1, 0
        s_cselect_b32 s{sSC}, 1.0, {f2u(math.log2(math.e) / math.sqrt(20.0)):#x}
        s_sub_u32 s{T5}, s{sJT}, s{T5}
        s_lshl_b32 s{sPQ}, s{T5}, 4
        s_and_b32 s{T5}, s{sWAVE}, 2
        s_lshl_b32 s{T5}, s{T5}, 2
        s_add_u32 s{sPQ}, s{sPQ}, s{T5}
        s_lshl_b32 s{T5}, s{sRT}, 1
        s_and_b32 s{T6}, s{sWAVE}, 1
        s_add_u32 s{T5}, s{T5}, s{T6}
        s_mul_i32 s{T5}, s{T5}, s{T4}
        s_add_u32 s{sBASE}, s{sBASE}, s{T5}
        v_and_b32 v8, 31, v0
        v_and_b32 v9, 0x13, v0
        v_and_b32 v10, 4, v0
        v_lshl_or_b32 v9, v10, 1, v9
        v_and_b32 v10, 8, v0
        v_lshrrev_b32 v10, 1, v10
        v_or_b32 v9, v9, v10
        v_cndmask_b32 v8, v8, v9, s[{sM}:{sM+1}]
        v_lshrrev_b32 v9, 5, v0
        v_lshlrev_b32 v10, 3, v9
        v_lshl_add_u32 v12, v8, 4, v10
        v_add_u32 v13, 1024, v12
        v_mul_lo_u32 v10, v9, s{sHS}
        v_lshl_add_u32 v14, v8, 3, v10
        v_add_u32 v14, 1024, v14
        v_add_u32 v15, 256, v14""")
        for p in range(8):
            a(f"""s_add_u32 s{T4}, s{sPQ}, {p}
            s_mul_i32 s{T5}, s{T4}, 205
            s_lshr_b32 s{T5}, s{T5}, 10
            s_mul_i32 s{T6}, s{T5}, 5
            s_sub_u32 s{T4}, s{T4}, s{T6}
            s_lshl_b32 s{T5}, s{T5}, 1
            s_mul_i32 s{T5}, s{T5}, s{sHS}
            s_add_u32 s{T5}, s{T5}, s{sBASE}
            s_lshl_b32 s{T6}, s{T4}, 9
            s_add_u32 s{T5}, s{T5}, s{T6}
            s_sub_u32 s{T6}, s{sHS}, 1536
            s_cmp_ge_u32 s{T4}, 3
            s_cselect_b32 s{T6}, s{T6}, 0
            s_add_u32 s{sE+p}, s{T5}, s{T6}
            s_cmp_eq_u32 s{T4}, 2
            s_cselect_b64 s[{sM}:{sM+1}], -1, 0""")
            for j in range(2): a(f"v_cndmask_b32 v{self.EA+2*p+j}, v{12+j}, v{14+j}, s[{sM}:{sM+1}]")
    def gemm_epi_qk(self, i, j):
        a = self.a; L = []
        for g in range(4):
            d = 64 + 16 * (2*i + j) + 4*g
            for e in range(4): L.append(lambda d=d, e=e: a(f"v_mul_f32 v{d+e}, s{sSC}, v{d+e}"))
            L.append(lambda d=d: a(f"v_cvt_pk_bf16_f32 v{d}, v{d}, v{d+1}"))
            L.append(lambda d=d: a(f"v_cvt_pk_bf16_f32 v{d+1}, v{d+2}, v{d+3}"))
            L.append(lambda d=d, g=g: a.vm(f"buffer_store_dwordx2 {vr(d,2)}, v{self.EA+2*(4*i+g)+j}, s[{rWS}:{rWS+3}], s{sE+4*i+g} offen sc1"))
        return L
    def epi_v_setup(self):
        a = self.a
        a(f"""s_sub_u32 s{T0}, s{sJT}, 10
        s_lshl_b32 s{T0}, s{T0}, 7
        s_and_b32 s{T1}, s{sWAVE}, 2
        s_lshl_b32 s{T1}, s{T1}, 5
        s_add_u32 s{T0}, s{T0}, s{T1}
        s_lshl_b32 s{T1}, s{sRT}, 1
        s_and_b32 s{T2}, s{sWAVE}, 1
        s_add_u32 s{T1}, s{T1}, s{T2}
        s_mul_i32 s{T1}, s{T1}, {KV_US}
        s_add_u32 s{sE}, s{T1}, {KV + 2560}
        s_mov_b32 s{T2}, {KV_HS - 320}
        v_and_b32 v8, 31, v0
        v_lshrrev_b32 v9, 5, v0
        v_mul_u32_u24 v9, 320, v9""")
        for j in range(2):
            a(f"""v_add_u32 v10, s{T0}, v8
            v_add_u32 v10, {32*j}, v10
            v_mul_u32_u24 v11, 3277, v10
            v_lshrrev_b32 v11, 16, v11
            v_mul_lo_u32 v11, v11, s{T2}
            v_lshl_add_u32 v10, v10, 4, v9
            v_add_u32 v{self.EA+j}, v10, v11""")
    def gemm_epi_v(self, i, j):
        a = self.a; L = []
        for s in range(2):
            d = 64 + 16 * (2*i + j) + 8*s
            for e in range(4): L.append(lambda d=d, e=e: a(f"v_cvt_pk_bf16_f32 v{d+e}, v{d+2*e}, v{d+2*e+1}"))
            L.append(lambda d=d, s=s: a.vm(f"buffer_store_dwordx4 {vr(d,4)}, v{self.EA+j}, s[{rWS}:{rWS+3}], s{sE} offen offset:{(2*i+s)*640} sc1"))
        return L

    XS, WS_, PA, PB, PW, PS, HA, HL = 2, 6, 10, 11, 12, 13, 14, 15
    KR_, VV_, SW_, HD_, DV_, PO_ = 16, 176, 116, 132, 156, 160
    def dma_setup(self):
        a = self.a
        a(f"""v_lshrrev_b32 v16, 3, v0
        v_and_b32 v17, 7, v0
        v_lshrrev_b32 v18, 1, v16
        s_lshl_b32 s{T0}, s{sRT}, 7
        v_add_u32 v16, s{T0}, v16
        v_mul_u32_u24 v16, 1280, v16""")
        for n in range(4):
            a(f"""v_xor_b32 v19, {(4*n) & 7}, v18
            v_xor_b32 v19, v19, v17
            v_lshl_add_u32 v19, v19, 4, v16
            v_add_u32 v{self.XS+n}, {n*(8*1280-1024)}, v19""")
        a(f"""v_lshrrev_b32 v16, 4, v0
        v_and_b32 v17, 15, v0
        v_lshlrev_b32 v18, 2, v16
        v_xor_b32 v17, v17, v18
        v_mul_u32_u24 v16, 3840, v16
        v_lshl_add_u32 v16, v17, 4, v16
        s_lshl_b32 s{T0}, s{sJT}, 8
        v_add_u32 v{self.WS_}, s{T0}, v16""")
        for n in range(1, 4): a(f"v_add_u32 v{self.WS_+n}, {n*(4*3840-1024)}, v{self.WS_}")
        P = self.o("rot", 1)
        a(f"s_add_u32 s{T0}, s{sJT}, s{sRT}")
        if P == 1: a(f"s_mov_b32 s{sK}, 0")
        elif P == 2: a(f"s_and_b32 s{T0}, s{T0}, 1\ns_mul_i32 s{sK}, s{T0}, 5")
        elif P == 3: a(f"s_mul_i32 s{T1}, s{T0}, 43\ns_lshr_b32 s{T1}, s{T1}, 7\ns_mul_i32 s{T1}, s{T1}, 3\ns_sub_u32 s{T0}, s{T0}, s{T1}\ns_mul_i32 s{T0}, s{T0}, 7\ns_lshr_b32 s{sK}, s{T0}, 1")
        elif P == 4: a(f"s_and_b32 s{T0}, s{T0}, 3\ns_mul_i32 s{T0}, s{T0}, 5\ns_lshr_b32 s{sK}, s{T0}, 1")
    def stage_dma(self, s):
        a = self.a
        sl = (s % NSLOT) * 16384
        a(f"s_lshl_b32 s{T0}, s{sK}, 7\ns_mul_i32 s{T1}, s{sK}, {64*3840}")
        def ld(txt):
            if a.n["vm"] - a.done["vm"] >= 62: a.wait(Tok("vm", a.done["vm"] + 8))
            return a.vm(txt)
        for h in range(4):
            a(f"s_mov_b32 m0, {L_X + sl + 4096*h}")
            a(f"s_add_u32 s{T2}, s{T0}, {32*1280*h}")
            for n in range(4): ld(f"buffer_load_dwordx4 v{self.XS+n}, s[{rA}:{rA+3}], s{T2} offen offset:{1024*n}{' nt' if s < self.o('gnt0', 0) else ''} lds")
            a(f"s_mov_b32 m0, {L_W + sl + 4096*h}")
            a(f"s_add_u32 s{T2}, s{T1}, {16*3840*h}")
            for n in range(4): t = ld(f"buffer_load_dwordx4 v{self.WS_+n}, s[{rB}:{rB+3}], s{T2} offen offset:{1024*n}{' nt' if s < self.o('gnt0', 0) else ''} lds")
        a(f"s_add_u32 s{sK}, s{sK}, 1\ns_cmp_eq_u32 s{sK}, 10\ns_cselect_b32 s{sK}, 0, s{sK}")
        return t
    def conv_scalars(self):
        a = self.a
        a(f"""s_min_u32 s{T0}, s{sLW}, 2
        s_add_u32 s{sCH}, s{sCH0}, s{T0}
        s_min_u32 s{sCH}, s{sCH}, 639
        s_mul_i32 s{T0}, s{T0}, {CONV_SZ}
        s_add_u32 s{T6}, s{T0}, {L_CONV}
        s_lshl_b32 s{T1}, s{sCH}, 1
        v_mov_b32 v{self.DV_}, s{T1}
        s_lshl_b32 s{T1}, s{sCH}, 12
        v_lshl_add_u32 v{self.HA}, v0, 4, s{T1}
        v_lshl_add_u32 v{self.HL}, v0, 4, s{T6}""")
        self.srd(rD, pH, 640 * 4096)
        a(f"s_mov_b32 m0, s{T6}\ns_nop 0")
        if "h" not in self.o("ab", ""):
            for g in range(4): a.vm(f"buffer_load_dwordx4 v{self.HA}, s[{rD}:{rD+3}], 0 offen offset:{1024*g}{self.nt} lds")
        self.srd(rC, pD, 640 * 2)
        return a.vm(f"buffer_load_ushort v{self.DV_}, v{self.DV_}, s[{rC}:{rC+3}], 0 offen")
    def pre_setup(self):
        self.a(f"""s_and_b32 s{T0}, s{sU}, 63
        s_lshr_b32 s{T1}, s{sU}, 6
        s_lshl_b32 s{T5}, s{sPI}, 6
        s_add_u32 s{T5}, s{T5}, {F1:#x}
        s_lshl_b32 s{T0}, s{T0}, 5
        s_lshl_b32 s{T1}, s{T1}, 7
        v_lshrrev_b32 v16, 3, v0
        v_and_b32 v17, 7, v0
        v_lshl_add_u32 v16, v16, 2, s{T0}
        v_lshl_add_u32 v18, v17, 4, s{T1}
        v_mul_u32_u24 v19, 1280, v16
        v_add_u32 v{self.PB}, v19, v18
        v_subrev_u32 v{self.PA}, 3840, v{self.PB}
        v_lshlrev_b32 v{self.PW}, 2, v18
        v_lshlrev_b32 v18, 11, v18
        v_lshlrev_b32 v16, 1, v16
        v_sub_u32 v18, v18, v16
        v_add_u32 v{self.PS}, {UR + 4088:#x}, v18""")
    def pre_loads(self):
        a = self.a
        if "k" in self.o("ab", ""): return
        self.srd(rC, pK, 2048 * 1280); self.srd(rD, pV, 2048 * 1280); self.srd(rB, pSH, 640 * 8)
        for j in range(4): a(f"buffer_load_dwordx4 {vr(self.KR_+12+4*j,4)}, v{self.PB}, s[{rC}:{rC+3}], 0 offen offset:{1280*j}{self.nt}")
        for j in range(4): a(f"buffer_load_dwordx4 {vr(self.VV_+4*j,4)}, v{self.PB}, s[{rD}:{rD+3}], 0 offen offset:{1280*j}{self.nt}")
        for j in range(3): a(f"buffer_load_dwordx4 {vr(self.KR_+4*j,4)}, v{self.PA}, s[{rC}:{rC+3}], 0 offen offset:{1280*j}{self.nt}")
        for j in range(4): a(f"buffer_load_dwordx4 {vr(self.SW_+4*j,4)}, v{self.PW}, s[{rB}:{rB+3}], 0 offen offset:{16*j}")
    def h_loads(self, D):
        a = self.a
        if "h" in self.o("ab", ""): return
        for g in range(4):
            a.vm(f"buffer_load_dwordx4 {vr(D+6*g,4)}, v{self.HA}, s[{rD}:{rD+3}], 0 offen offset:{1024*g}{self.nt}")
            a.vm(f"buffer_load_dwordx2 {vr(D+6*g+4,2)}, v{self.HA}, s[{rD}:{rD+3}], 0 offen offset:{1024*g+16}{self.nt}")
    def bar(self):
        a = self.a; L = a.newlabel("NB")
        a(f"s_cmp_ge_u32 s{sBC}, s{sNB}\ns_cbranch_scc1 {L}\ns_barrier\ns_add_u32 s{sBC}, s{sBC}, 1")
        a.label(L)
    def bar_rest(self):
        a = self.a; L, D = a.newlabel("BR"), a.newlabel("BRD")
        a.label(L)
        a(f"s_cmp_ge_u32 s{sBC}, s{sNB}\ns_cbranch_scc1 {D}\ns_barrier\ns_add_u32 s{sBC}, s{sBC}, 1\ns_branch {L}")
        a.label(D)
    def ewait(self, n=1):
        a = self.a; L, L2, D = a.newlabel("EW"), a.newlabel("EX"), a.newlabel("EWD")
        a.label(L)
        a(f"s_mov_b32 s{T1}, {n}")
        a.label(L2)
        a(f"""s_getreg_b32 s{T0}, hwreg(HW_REG_IB_STS)
        s_and_b32 s{T0}, s{T0}, 0x00c0000f
        s_cbranch_scc0 {D}
        s_cmp_ge_u32 s{sBC}, s{sNB}
        s_cbranch_scc1 {D}""")
        if n > 1: a(f"s_sleep 1\ns_sub_u32 s{T1}, s{T1}, 1\ns_cmp_lg_u32 s{T1}, 0\ns_cbranch_scc1 {L2}")
        a(f"""s_barrier
        s_add_u32 s{sBC}, s{sBC}, 1
        s_branch {L}""")
        a.label(D)
        a("s_waitcnt vmcnt(0)")
    def epoll(self, loads, tmp, cmp=None):
        a = self.a
        L, D = a.newlabel("EP"), a.newlabel("EPD")
        a(f"s_mov_b32 s{sCNT}, 0")
        a.label(L)
        k = 0
        for (va, r, imm, wd) in loads:
            ins = {1: "buffer_load_dword", 2: "buffer_load_dwordx2", 4: "buffer_load_dwordx4"}[wd]
            a(f"{ins} {vr(tmp+k, wd)}, v{va}, s[{r}:{r+3}], 0 offen offset:{imm} sc1"); k += wd
        self.ewait()
        self.poll_check(tmp, k, cmp)
        a(f"s_cbranch_scc1 {D}")
        a(f"s_add_u32 s{sCNT}, s{sCNT}, 1\ns_cmp_lt_u32 s{sCNT}, {POLL_MAX}\ns_cbranch_scc0 {D}\ns_sleep 1\ns_branch {L}")
        a.label(D)
    def pre_compute_list(self):
        L = []
        K, V, W, AC = 76, 90, 98, 106
        lo = lambda d, s: L.append(f"v_lshlrev_b32 v{d}, 16, v{s}")
        hi = lambda d, s: L.append(f"v_and_b32 v{d}, 0xffff0000, v{s}")
        for p in range(4):
            for j in range(7): lo(K+2*j, self.KR_+4*j+p); hi(K+2*j+1, self.KR_+4*j+p)
            for j in range(4): lo(V+2*j, self.VV_+4*j+p); hi(V+2*j+1, self.VV_+4*j+p)
            w = self.SW_ + 4*p
            lo(W, w); lo(W+1, w+2); hi(W+2, w); hi(W+3, w+2); lo(W+4, w+1); lo(W+5, w+3); hi(W+6, w+1); hi(W+7, w+3)
            for lag in (3, 2, 1, 0):
                for t in range(4):
                    kk = K + 2*(3 + t - lag)
                    if self.o("pk", 1):
                        if lag == 3: L.append(f"v_pk_mul_f32 {vr(AC+2*t,2)}, {vr(kk,2)}, {vr(W+2*lag,2)}")
                        else: L.append(f"v_pk_fma_f32 {vr(AC+2*t,2)}, {vr(kk,2)}, {vr(W+2*lag,2)}, {vr(AC+2*t,2)}")
                    else:
                        for h in range(2):
                            if lag == 3: L.append(f"v_mul_f32 v{AC+2*t+h}, v{kk+h}, v{W+2*lag+h}")
                            else: L.append(f"v_fmac_f32 v{AC+2*t+h}, v{kk+h}, v{W+2*lag+h}")
            for t in range(4):
                if self.o("pk", 1): L.append(f"v_pk_mul_f32 {vr(AC+2*t,2)}, {vr(AC+2*t,2)}, {vr(V+2*t,2)}")
                else:
                    for h in range(2): L.append(f"v_mul_f32 v{AC+2*t+h}, v{AC+2*t+h}, v{V+2*t+h}")
            for h in range(2):
                o = self.PO_ + 4*p + 2*h
                L.append(f"v_cvt_pk_bf16_f32 v{o}, v{AC+6+h}, v{AC+4+h}"); L.append(f"v_cvt_pk_bf16_f32 v{o+1}, v{AC+2+h}, v{AC+h}")
        return L
    def pre_stores(self):
        a = self.a
        if "s" in self.o("ab", ""): return
        if not self.o("st4", 1):
            for e in range(8):
                a(f"s_mov_b32 s{T0}, {4096*e}")
                a(f"buffer_store_dwordx2 {vr(self.PO_+2*e,2)}, v{self.PS}, s[{rWS}:{rWS+3}], s{T0} offen sc1")
            return
        for e in range(8): a(f"ds_write_b64 v{(self.PA, self.PW)[e & 1]}, {vr(self.PO_+2*e,2)} offset:{64*(e & 6)}")
        for k in range(1, 4): a(f"v_xor_b32 v{76+k}, {32*k}, v{self.PB}")
        a("s_waitcnt lgkmcnt(0)")
        for k in range(4): a(f"ds_read_b128 {vr(self.PO_+4*k,4)}, v{76+k if k else self.PB} offset:{1024*k}")
        for k in range(4):
            a(f"s_mov_b32 s{T0}, {65536*k}\ns_waitcnt lgkmcnt({3-k})")
            a(f"buffer_store_dwordx4 {vr(self.PO_+4*k,4)}, v{self.PS}, s[{rWS}:{rWS+3}], s{T0} offen sc1")
    def pre_store_setup(self, spare=False):
        if not self.o("st4", 1): return
        assert (L_CONV + CONV_SZ + 2*CS) % 128 == 0 and CONV_SZ % 128 == 0 and (L_CONV + U_OFF) % 128 == 0
        if spare: self.a(f"s_lshl_b32 s{T0}, s{sWAVE}, 12")
        else: self.a(f"""s_mul_i32 s{T0}, s{sLW}, {CONV_SZ}
        s_add_u32 s{T0}, s{T0}, {L_CONV + 2*CS}
        s_cmp_eq_u32 s{sWAVE}, 7
        s_cselect_b32 s{T0}, {L_CONV + U_OFF}, s{T0}""")
        self.a(f"""v_and_b32 v76, 7, v0
        v_lshrrev_b32 v77, 3, v0
        v_sub_u32 v77, 7, v77
        v_lshrrev_b32 v78, 1, v77
        v_xor_b32 v78, v78, v76
        v_lshlrev_b32 v78, 4, v78
        v_and_b32 v77, 1, v77
        v_lshl_add_u32 v78, v77, 3, v78
        v_lshl_add_u32 v78, v76, 9, v78
        v_add_u32 v{self.PA}, s{T0}, v78
        v_xor_b32 v{self.PW}, 64, v{self.PA}
        v_lshrrev_b32 v76, 5, v0
        v_and_b32 v77, 31, v0
        v_xor_b32 v77, v77, v76
        v_lshlrev_b32 v77, 4, v77
        v_lshl_add_u32 v76, v76, 9, v77
        v_add_u32 v{self.PB}, s{T0}, v76
        s_lshr_b32 s{T1}, s{sU}, 6
        s_lshl_b32 s{T1}, s{T1}, 18
        s_and_b32 s{T0}, s{sU}, 63
        s_lshl_b32 s{T0}, s{T0}, 6
        s_sub_u32 s{T1}, s{T1}, s{T0}
        s_add_u32 s{T1}, s{T1}, {UR + 4032:#x}
        v_lshrrev_b32 v76, 2, v0
        v_lshlrev_b32 v76, 12, v76
        v_and_b32 v77, 3, v0
        v_lshl_add_u32 v76, v77, 4, v76
        v_add_u32 v{self.PS}, s{T1}, v76""")
    def h_valu(self, D, t0):
        L = [f"v_alignbit_b32 v{t0+e}, v{D+e+1}, v{D+e}, 16" for e in range(4)]
        L += [f"v_mov_b32 v{t0+4+e}, v{D+e+1}" for e in range(4)]
        return L + [f"v_alignbit_b32 v{t0+8+e}, v{D+e+2}, v{D+e+1}, 16" for e in range(4)]
    def h_writes(self, D, imm, t0):
        for r, src in enumerate((t0, t0 + 4, t0 + 8, D + 2)):
            self.a(f"ds_write_b128 v{self.HL}, {vr(src,4)} offset:{r*CS + imm}")
    def conv_prep(self, part):
        a = self.a
        HD, D = self.HD_, 112
        HA, UB, UE, YS = 16, 17, 18, 19
        if part == 0:
            for g in range(4):
                a(f"ds_read_b128 {vr(HD+6*g,4)}, v{self.HL} offset:{1024*g}")
                a(f"ds_read_b64 {vr(HD+6*g+4,2)}, v{self.HL} offset:{1024*g+16}")
            a(f"""v_lshrrev_b32 v22, 4, v0
            s_lshl_b32 s{T0}, s{sCH}, 12
            v_lshrrev_b32 v23, 2, v0
            v_and_b32 v23, 3, v23
            v_mul_u32_u24 v23, {CS}, v23
            v_lshl_add_u32 v23, v22, 4, v23
            v_and_b32 v24, 3, v0
            v_lshl_add_u32 v23, v24, 3, v23
            v_add_u32 v{HA}, s{T6}, v23
            v_and_b32 v23, 15, v0
            v_lshlrev_b32 v23, 5, v23
            v_lshlrev_b32 v24, 4, v22
            v_sub_u32 v24, v24, v23
            v_add_u32 v24, s{T6}, v24
            v_add_u32 v{UB}, {U_OFF + 480}, v24
            v_lshl_add_u32 v23, v22, 3, v23
            v_sub_u32 v24, s{T6}, v23
            v_add_u32 v{UE}, {U_OFF + 504}, v24
            s_add_u32 s{T0}, s{T0}, {YD:#x}
            v_add_u32 v{YS}, s{T0}, v23
            v_lshlrev_b32 v20, 16, v{self.DV_}""")
            for e in range(6): a(f"v_mov_b32 v{D+e}, 0")
            a("s_waitcnt lgkmcnt(0)")
            a(f"v_readlane_b32 s{T1}, v{HD}, 0\nv_readlane_b32 s{T2}, v{HD+1}, 0")
            for l in self.h_valu(HD, 64): a(l)
            a(f"v_writelane_b32 v{D+4}, s{T1}, 1\nv_writelane_b32 v{D+5}, s{T2}, 1")
        else:
            for g in range(1, 4):
                for l in self.h_valu(HD + 6*g, 64 + 12*g): a(l)
            for l in self.h_valu(D, 120): a(l)
    def h_store(self):
        a = self.a
        for g in range(4): self.h_writes(self.HD_ + 6*g, 32 + 1024*g, 64 + 12*g)
        a("s_mov_b32 exec_hi, 0")
        a(f"ds_write_b128 v{self.HL}, v[112:115] offset:{U_OFF + 4096}")
        a("s_mov_b64 exec, 3")
        self.h_writes(112, 0, 120)
        a("s_mov_b64 exec, -1")
        for d, r in ((2, 16), (3, 17), (4, 18), (5, 19), (7, 20)): a(f"v_mov_b32 v{d}, v{r}")

    def dma_role(self):
        a = self.a
        a.reset_counters()
        fine = self.o("fine", 0)
        self.dma_setup()
        a("s_waitcnt lgkmcnt(0)")
        self.srd(rA, pX, 2048 * 1280); self.srd(rB, pW, 640 * 3840)
        a(f"s_cmp_ge_u32 s{sI}, 30\ns_cbranch_scc1 L_D_SKIP")
        S = {0: self.stage_dma(0)}
        if self.o("s1early", 0): S[1] = self.stage_dma(1)
        a.label("L_D_SKIP")
        if self.stamps: a("v_mov_b32 v1, 0")
        self.stamp("start")
        self.srd(rWS, pWS, WS_SIZE)
        self.setup_call()
        a(f"s_cmp_ge_u32 s{sI}, 30\ns_cbranch_scc1 L_D_NT")
        if self.o("dprio", 0): a(f"s_setprio {self.o('dprio', 0)}")
        if not self.o("s1early", 0): S[1] = self.stage_dma(1)
        if self.o("hat", 0) == 0: self.conv_scalars()
        for s in range(10):
            a.wait(S[s])
            if fine: self.stamp(f"l.w{s}")
            a("s_barrier")
            if fine or s in (0, 5, 9): self.stamp(f"l.b{s}")
            if s + 2 <= 9 and "d" in self.o("ab", ""): S[s+2] = S[1]
            elif s + 2 <= 9:
                S[s+2] = self.stage_dma(s + 2)
                if fine: self.stamp(f"l.i{s}")
            if s == 8 and self.o("prep", 1): self.conv_prep(0)
            if s == 9 and self.o("prep", 1): self.conv_prep(1)
        a.label("L_CONV")
        self.conv()
    def side_role(self):
        a = self.a
        a.label("L_SIDE")
        a.reset_counters()
        a(f"""s_cmp_ge_u32 s{sI}, 30
        s_cbranch_scc1 L_S_NT
        s_lshr_b32 s{T0}, s{sLW}, 1
        s_lshl_b32 s{sU}, s{sPI}, 1
        s_add_u32 s{sU}, s{sU}, s{T0}
        s_mov_b32 s{T7}, {L_SIG}
        s_cmp_lg_u32 s{sWAVE}, 6
        s_cbranch_scc1 L_S_GO
        s_cmp_lt_u32 s{sG}, 32
        s_cselect_b32 s{T1}, s{sNCH}, 0
        s_cmp_lg_u32 s{T1}, 2
        s_cbranch_scc1 L_W6
        s_add_u32 s{sU}, s{sG}, 608
        s_add_u32 s{sPI}, s{sG}, 256
        s_mov_b32 s{sNU}, 1
        s_mov_b32 s{T7}, {L_SIG + 8}
        L_S_GO:""")
        slate = self.o("slate", 0)
        if slate: self.setup_call()
        self.pre_setup()
        a("s_waitcnt lgkmcnt(0)")
        if slate > 1: a(f"s_sleep {slate}")
        self.pre_loads()
        if self.o("hat", 0) == 0:
            L7 = a.newlabel("H7")
            a(f"s_cmp_ge_u32 s{sLW}, s{sNCH}\ns_cbranch_scc1 {L7}")
            self.conv_scalars()
            a.label(L7)
        if self.stamps: a("v_mov_b32 v1, 0")
        self.stamp("start")
        self.srd(rWS, pWS, WS_SIZE)
        if not slate: self.setup_call()
        a(f"""v_mov_b32 v44, {L_SIG}
        v_mov_b32 v46, 0
        v_mov_b32 v47, 0
        ds_write_b64 v44, v[46:47]
        ds_write_b64 v44, v[46:47] offset:8
        ds_write_b32 v44, v46 offset:16
        v_and_b32 v46, 1, v0
        v_lshlrev_b32 v46, 7, v46
        s_waitcnt lgkmcnt(0)""")
        self.pre_store_setup()
        self.bar()
        self.ewait(self.o("espin0", 1))
        self.stamp("s.kv")
        if self.o("sprio", 0): a(f"s_setprio {self.o('sprio', 0)}")
        PC = self.pre_compute_list()
        nch = self.o("nchunk", 2)
        per = -(-len(PC) // nch)
        for c in range(nch):
            for l in (PC[c*per:(c+1)*per] if "v" not in self.o("ab", "") else []): a(l)
            if c < nch - 1 or self.o("barst", 1): self.bar()
        self.pre_stores()
        if self.o("hat", 0) == 1:
            L7 = a.newlabel("H7")
            a(f"s_cmp_ge_u32 s{sLW}, s{sNCH}\ns_cbranch_scc1 {L7}")
            self.conv_scalars()
            a.label(L7)
        self.srd(rC, pDBG, 256)
        a(f"buffer_load_dword v47, v46, s[{rC}:{rC+3}], 0 offen sc1")
        self.stamp("s.st")
        self.ewait(self.o("espin", 1))
        self.last_flag(8, f"s{sNU}", T5, 114, base=f"s{T7}")
        self.stamp("s.F1set")
        a(f"s_cmp_eq_u32 s{sWAVE}, 7\ns_cbranch_scc1 L_FETCH\ns_cmp_eq_u32 s{sWAVE}, 6\ns_cbranch_scc1 L_IDLE2")
        a.label("L_PREP")
        if self.o("prep", 1):
            self.bar()
            self.conv_prep(0)
            self.bar()
            self.conv_prep(1)
        self.bar_rest()
        a("s_branch L_CONV")
        a.label("L_W6")
        a("s_waitcnt lgkmcnt(0)")
        a(f"s_cmp_lt_u32 s{sNCH}, 3\ns_cbranch_scc1 L_IDLE")
        self.conv_scalars()
        if self.stamps: a("v_mov_b32 v1, 0")
        self.stamp("start")
        self.srd(rWS, pWS, WS_SIZE)
        self.setup_call()
        self.bar()
        self.ewait()
        a("s_branch L_PREP")
        a.label("L_IDLE")
        if self.stamps: a("v_mov_b32 v1, 0")
        self.stamp("start")
        self.srd(rWS, pWS, WS_SIZE)
        self.setup_call()
        a.label("L_IDLE2")
        for l in self.att_init_list(): a(l)
        self.bar_rest()
        a("s_branch L_ATT")
        a.label("L_S_NT")
        a("s_waitcnt lgkmcnt(0)")
        if self.stamps: a("v_mov_b32 v1, 0")
        self.stamp("start")
        self.srd(rWS, pWS, WS_SIZE)
        self.setup_call()
        a.label("L_D_NT")
        a(f"s_call_b64 s[{sRET}:{sRET+1}], L_SPARE")
        a(f"s_mov_b32 s{sBC}, 1\ns_branch L_IDLE2")
        a.label("L_SPARE")
        a(f"""s_sub_u32 s{T0}, s{sPI}, 180
        s_lshl_b32 s{T0}, s{T0}, 3
        s_add_u32 s{sU}, s{T0}, s{sWAVE}""")
        self.pre_setup()
        self.pre_loads()
        a(f"""v_mov_b32 v44, {L_SIG}
        v_mov_b32 v46, 0
        v_mov_b32 v47, 0
        ds_write_b64 v44, v[46:47]
        ds_write_b64 v44, v[46:47] offset:8
        s_waitcnt lgkmcnt(0)
        s_barrier""")
        a.label("L_SPARE2")
        self.pre_store_setup(spare=True)
        a("s_waitcnt vmcnt(0)")
        for l in PC: a(l)
        self.pre_stores()
        a.label("L_SPARE3")
        a("s_waitcnt vmcnt(0)")
        self.last_flag(8, f"s{sNU}", T5, 114)
        a(f"s_setpc_b64 s[{sRET}:{sRET+1}]")
        self.fetcher()

    def fetcher(self):
        a = self.a
        a.label("L_FETCH")
        a.reset_counters()
        OK = a.newlabel("CNTOK")
        a("s_setprio 0")
        self.poll_check(47, 1, cmp="v_cmp_le_u32 vcc, 0x80, v47")
        a(f"s_cbranch_scc1 {OK}")
        self.epoll([(46, rC, 0, 1)], 47, cmp="v_cmp_le_u32 vcc, 0x80, v47")
        a.label(OK)
        a(f"""s_andn2_b32 s{T1}, s{sCH0}, 63
        s_add_u32 s{T2}, s{sCH0}, s{sNCH}
        s_sub_u32 s{T2}, s{T2}, 1
        s_or_b32 s{T2}, s{T2}, 63""")
        for r in (T1, T2):
            a(f"""s_lshr_b32 s{T3}, s{r}, 3
            s_add_u32 s{T3}, s{T3}, 180
            s_lshr_b32 s{T4}, s{r}, 1
            s_cmp_ge_u32 s{r}, 480
            s_cselect_b32 s{T4}, s{T3}, s{T4}
            s_sub_u32 s{T3}, s{r}, 352
            s_cmp_ge_u32 s{r}, 608
            s_cselect_b32 s{r}, s{T3}, s{T4}""")
        a(f"""v_add_u32 v9, s{T1}, v0
        v_min_u32 v9, s{T2}, v9
        v_lshlrev_b32 v9, 6, v9
        v_add_u32 v9, {F1:#x}, v9""")
        if self.o("pgate", 9):
            LG, LD = a.newlabel("PG"), a.newlabel("PGD")
            a.label(LG)
            a(f"s_cmp_ge_u32 s{sBC}, {self.o('pgate', 9)}\ns_cbranch_scc1 {LD}\ns_cmp_ge_u32 s{sBC}, s{sNB}\ns_cbranch_scc1 {LD}\ns_barrier\ns_add_u32 s{sBC}, s{sBC}, 1\ns_branch {LG}")
            a.label(LD)
        if "p" not in self.o("ab", ""): self.mpoll([9], 16, elastic=True)
        self.stamp("f.F1ok")
        a(f"s_lshl_b32 s{T2}, s{sCH0}, 12\ns_add_u32 s{T2}, s{T2}, {UR:#x}")
        for c in range(3 if "u" not in self.o("ab", "") else 0):
            L = a.newlabel("NOU")
            if c == 2: a(f"s_cmp_lt_u32 s{sNCH}, 3\ns_cbranch_scc1 {L}")
            a(f"s_mov_b32 m0, {L_CONV + c*CONV_SZ + U_OFF}\ns_add_u32 s{T1}, s{T2}, {4096*c}")
            for j in range(4): a(f"buffer_load_dwordx4 v{L16}, s[{rWS}:{rWS+3}], s{T1} offen offset:{1024*j} sc1 lds")
            if c == 2: a.label(L)
        a("v_mov_b32 v45, 1")
        self.ewait()
        a("ds_write_b32 v44, v45")
        self.stamp("f.u")
        self.bar_rest()
        for l in self.att_init_list(): a(l)
        a("s_branch L_ATT")
    def kv_fetch(self):
        a = self.a
        a.reset_counters()
        OK = a.newlabel("CNTOK")
        self.poll_check(29, 1, cmp="v_cmp_le_u32 vcc, 0x80, v29")
        a(f"s_cbranch_scc1 {OK}")
        self.poll([(28, rC, 0, 1)], 29, cmp="v_cmp_le_u32 vcc, 0x80, v29")
        a.label(OK)
        self.sig_wait(12, 4)
        self.sig_wait(8, f"s{sNU}")
        self.mpoll([30, 31], 16)
        self.stamp("f.F2ok")
        a(f"""s_mul_i32 s{T0}, s{sHEAD}, {Q_HS}
        s_mul_i32 s{T1}, s{sQB}, {4*Q_US}
        s_add_u32 s{T0}, s{T0}, s{T1}
        s_add_u32 s{T0}, s{T0}, {QO:#x}""")
        def lin(sbase, lds0, n):
            T = []
            for k in range(n):
                if k % 4 == 0: a(f"s_mov_b32 m0, {lds0 + 1024*k}\ns_add_u32 s{T1}, s{sbase}, {1024*k}")
                T.append(a.vm(f"buffer_load_dwordx4 v{L16}, s[{rWS}:{rWS+3}], s{T1} offen offset:{1024*(k%4)} sc1 lds"))
            return T
        if self.o("kv3", 1):
            lin(T0, L_Q, 10)
            T = lin(sKVB, 0, 40)
            a(f"v_mov_b32 v16, {L_SIG}\nv_mov_b32 v17, 1\nv_mov_b32 v18, 2")
            a.wait(T[9]); a("ds_write_b32 v16, v17 offset:4")
            a.wait(T[19]); a("ds_write_b32 v16, v18 offset:4")
        else:
            lin(T0, L_Q, 10)
            lin(sKVB, 0, 40)
            a(f"v_mov_b32 v16, {L_SIG}\nv_mov_b32 v17, 3")
            a.wait_all()
            a("ds_write_b32 v16, v17 offset:4")
        self.stamp("f.kv0")
    def kv_fetch_setup(self):
        a = self.a
        self.srd(rC, pDBG, 256)
        a(f"""s_mul_i32 s{T0}, s{sHEAD}, 20
        v_and_b32 v28, 15, v0
        v_lshrrev_b32 v30, 4, v0
        v_and_b32 v31, 1, v30
        v_mul_u32_u24 v31, 19, v31
        v_add_u32 v31, s{T0}, v31
        v_lshrrev_b32 v31, 7, v31
        v_lshrrev_b32 v30, 1, v30
        v_mul_u32_u24 v30, 5, v30
        v_add3_u32 v30, v30, v31, 5
        v_lshl_add_u32 v30, v30, 4, v28
        v_lshlrev_b32 v30, 6, v30
        v_add_u32 v30, {F2:#x}, v30
        v_lshl_add_u32 v31, v31, 4, s{sQB}
        v_add_u32 v31, s{sQB}, v31
        v_and_b32 v28, 1, v0
        v_add_u32 v31, v31, v28
        v_lshlrev_b32 v31, 6, v31
        v_add_u32 v31, {F2:#x}, v31
        v_lshlrev_b32 v28, 7, v28""")

    def sig_check(self, off, thr, tok):
        a = self.a
        OK = a.newlabel("SOK")
        a.wait(tok)
        a(f"v_readfirstlane_b32 s{T0}, v15\ns_nop 0\ns_cmp_ge_u32 s{T0}, {thr}\ns_cbranch_scc1 {OK}")
        self.sig_wait(off, thr)
        a.label(OK)
    def sig_wait(self, off, thr=1):
        a = self.a
        L, D = a.newlabel("SIG"), a.newlabel("SIGD")
        a(f"v_mov_b32 v14, {L_SIG}\ns_mov_b32 s{sCNT}, 0")
        a.label(L)
        a(f"""ds_read_b32 v15, v14 offset:{off}
        s_waitcnt lgkmcnt(0)
        v_readfirstlane_b32 s{T0}, v15
        s_add_u32 s{sCNT}, s{sCNT}, 1
        s_cmp_ge_u32 s{T0}, {thr}
        s_cbranch_scc1 {D}
        s_sleep 1
        s_cmp_lt_u32 s{sCNT}, {POLL_MAX*40}
        s_cbranch_scc1 {L}""")
        a.label(D)
    def conv(self):
        a = self.a
        a.reset_counters()
        ACC, FR = 16, 64
        HA, UB, UE, YS, DV = 2, 3, 4, 5, self.DV_
        a(f"s_setprio {self.o('hprio', 0)}")
        if not self.o("prep", 1): self.conv_prep(0); self.conv_prep(1)
        self.h_store()
        self.stamp("v.h")
        self.sig_wait(0)
        a(f"s_setprio {self.o('cprio', 3)}")
        a.reset_counters()
        def reads(rho):
            st = FR + 64 * (rho & 1)
            ra = lambda i, q: (lambda: a.ds(f"ds_read_b64_tr_b16 {vr(st+4*i+2*q,2)}, v{HA} offset:{64*(8*i+rho) + 8*q}"))
            rb = lambda d: (lambda: a.ds(f"ds_read_b128 {vr(st+32+4*d,4)}, v{UB} offset:{64*(56 - (8*d - rho))}"))
            L = [("A0", ra(0,0)), ("A0", ra(0,1))] + [(f"B{d}", rb(d)) for d in range(8)]
            for i in range(1, 8): L += [(f"A{i}", ra(i,0)), (f"A{i}", ra(i,1))]
            return L
        toks = {}
        for n, f in reads(0): toks[n] = f()
        self.stamp("v.u")
        init = self.att_init_list()
        for rho in range(8):
            st = FR + 64 * (rho & 1)
            nxt = reads(rho + 1) if rho < 7 else []
            out = {}; k = 0; m = 0
            for i in range(8):
                for c in range(i, 8):
                    a.wait(toks[f"A{i}"], toks[f"B{c-i}"])
                    d = ACC + 4 * c
                    a(f"v_mfma_f32_16x16x32_bf16 {vr(d,4)}, {vr(st+4*i,4)}, {vr(st+32+4*(c-i),4)}, {'0' if (rho == 0 and i == 0) else vr(d,4)}")
                    m += 1
                    if m >= 4 and k < len(nxt): out[nxt[k][0]] = nxt[k][1](); k += 1
                    elif m >= 28 and init: a(init.pop())
            assert k == len(nxt)
            toks = out
        assert not init
        self.stamp("v.mfma")
        tu = [a.ds(f"ds_read_b64 {vr(FR+2*c,2)}, v{UE} offset:{512*(7-c)}") for c in range(8)]
        for c in range(8):
            a.wait(tu[c])
            d, u, t = ACC + 4*c, FR + 2*c, FR + 32 + 8*(c & 3)
            a(f"""v_and_b32 v{t}, 0xffff0000, v{u+1}
            v_lshlrev_b32 v{t+1}, 16, v{u+1}
            v_and_b32 v{t+2}, 0xffff0000, v{u}
            v_lshlrev_b32 v{t+3}, 16, v{u}""")
            for e in range(4): a(f"v_fmac_f32 v{d+e}, v7, v{t+e}")
            a(f"v_cvt_pk_bf16_f32 v{t+4}, v{d}, v{d+1}\nv_cvt_pk_bf16_f32 v{t+5}, v{d+2}, v{d+3}")
            a.vm(f"buffer_store_dwordx2 {vr(t+4,2)}, v{YS}, s[{rWS}:{rWS+3}], 0 offen offset:{512*c} sc1")
        self.stamp("v.st")

    def m2b(self, S, j=1): self.a(f"v_mfma_f32_32x32x4_2b_bf16 {vr(S,32)}, {vr(KRM,2)}, {vr((QR2, QR)[j],2)}, 0")
    def mqk(self, S, h, j=1): self.a(f"v_mfma_f32_32x32x16_bf16 {vr(S+16*h,16)}, {vr(KM+4*h,4)}, {vr((QM2, QM)[j],4)}, {vr(S+16*h,16)}")
    def smf(self, V, P, j=1): self.a(f"v_smfmac_f32_32x32x32_bf16 {vr((O2, O_)[j],16)}, {vr(V,4)}, {vr(P,8)}, v{IDX}")
    def side_kv(self, add):
        a = self.a
        def mk(j):
            def f():
                if j == 0: a(f"s_add_u32 m0, s{sKVW}, {add*KV_US}\ns_add_u32 s{T5}, s{sKVG}, {add*KV_US}")
                if j == 4: a(f"s_add_u32 m0, m0, 4096\ns_add_u32 s{T5}, s{T5}, 4096")
                a.vm(f"buffer_load_dwordx4 v{L16}, s[{rWS}:{rWS+3}], s{T5} offen offset:{1024*(j%4)} sc1 lds")
            return f
        return [mk(j) for j in range(5)]
    def side_wo(self):
        a = self.a
        def mk(k):
            def f():
                L = a.newlabel("NOWO")
                if k == 0: a(f"s_mul_i32 s{T4}, s{sWAVE}, {13*1024}\ns_add_u32 m0, s{T4}, {L_WO}")
                else: a("s_add_u32 m0, m0, 1024")
                if k % 5 == 0: a(f"s_mov_b32 s{T5}, {40960*(k//5)}")
                elif k < 9: a("s_nop 0")
                if k >= 9: a(f"s_cmp_eq_u32 s{sWAVE}, 7\ns_cbranch_scc1 {L}")
                a.vm(f"buffer_load_dwordx4 v{WOV + k%5}, s[{rA}:{rA+3}], s{T5} offen lds")
                if k >= 9: a.label(L)
            return f
        return [mk(k) for k in range(13)]
    def side_yd(self):
        a = self.a
        def f0():
            OK = a.newlabel("F3OK")
            a.wait(self.tF3)
            self.poll_check(F3T, 2)
            a(f"s_cbranch_scc1 {OK}")
            snap = a.snapshot(); self.poll([(AF3, rWS, 0, 2)], F3T); a.restore(snap)
            a.label(OK)
            a(f"s_mul_i32 s{T5}, s{sWAVE}, 1280\ns_add_u32 m0, s{T5}, {L_YD}\ns_mov_b32 s{T5}, {8*4096 - 1024}")
            a.vm(f"buffer_load_dwordx4 v{YDV}, s[{rWS}:{rWS+3}], 0 offen sc1 lds")
            a("s_mov_b64 exec, 0xffff")
            a.vm(f"buffer_load_dwordx4 v{YDV}, s[{rWS}:{rWS+3}], s{T5} offen offset:1024 sc1 lds")
            a("s_mov_b64 exec, -1")
        return [f0]
    def side_x(self):
        a = self.a
        def mk(j):
            def f():
                if j == 0: self.srd(rA, pX, 2048 * 1280)
                a.vm(f"buffer_load_dwordx2 {vr(XE+2*j,2)}, v{AOUT}, s[{rA}:{rA+3}], 0 offen offset:{32*j}")
            return f
        def f3(): self.tF3 = a.vm(f"buffer_load_dwordx2 {vr(F3T,2)}, v{AF3}, s[{rWS}:{rWS+3}], 0 offen sc1")
        return [mk(j) for j in range(3)] + [f3]
    def attention(self):
        a = self.a
        self.a.lines.append('; ---- attention: S^T = K Q^T (Q pre-scaled by log2(e)/sqrt(20)), P = exp2(S), O^T += V^T P^T; a ones row in V^T gives the row sum.')
        a.label("L_ATT")
        a.reset_counters()
        self.sig_wait(4)
        self.stamp("att0")
        US2 = 2 * KV_US
        base = {"K": 0, "V": 0}
        def bump(kind, u):
            while u * US2 - base[kind] > 5 * US2:
                base[kind] += 6 * US2
                for r in ((AKM, AKR) if kind == "K" else (AV,)): a(f"v_add_u32 v{r}, {6*US2}, v{r}")
            return u * US2 - base[kind]
        def rKR(u): o = bump("K", u); return a.ds(f"ds_read_b64 {vr(KRM,2)}, v{AKR} offset:{o}")
        def rKM(u, h): o = bump("K", u); return a.ds(f"ds_read_b128 {vr(KM+4*h,4)}, v{AKM} offset:{o + 1024*h}")
        def rV(u):
            o = bump("V", u)
            a(f"s_mov_b64 exec, s[{sVMASK}:{sVMASK+1}]")
            for g in range(4): t = a.ds(f"ds_read_b128 {vr(VS[u&1]+4*g,4)}, v{AV} offset:{o + 640*g}")
            a("s_mov_b64 exec, -1")
            return t
        tq = [a.ds(f"ds_read_b64 {vr(QR2,2)}, v{AQR2} offset:2048")]
        tKR = rKR(0)
        tq.append(a.ds(f"ds_read_b128 {vr(QM2,4)}, v{AQM2}"))
        tK0 = rKM(0, 0); tK1 = rKM(0, 1)
        tq.append(a.ds(f"ds_read_b64 {vr(QR,2)}, v{AQR} offset:2048"))
        tq.append(a.ds(f"ds_read_b128 {vr(QM,4)}, v{AQM}"))
        tV = {0: rV(0)}
        side = self.side_kv(8)
        a.wait(tq[0], tKR); self.m2b(S_, 0)
        for _ in range(4): side.pop(0)()
        for e in range(16): a(f"v_mov_b32 v{O2+e}, 0")
        a.wait(tq[1], tK0); self.mqk(S_, 0, 0)
        a.wait(tK1); self.mqk(S_, 1, 0)
        side.pop(0)()
        if self.o("kv3", 1):
            self.sig_check(4, 2, a.ds("ds_read_b32 v15, v14 offset:4")); a.nop(2)
        else: a.nop(8)
        zones = {0: self.o("z0", "2,4"), 6: self.o("z1", "3,5,7"), 14: self.o("z1", "3,5,7"), 22: self.o("z3", "3,5,7"), 30: self.o("z4", "1")}
        if self.o("nob30", 0): del zones[30]
        prio = {}
        if self.o("prio", 1):
            for u0, z in zones.items():
                zz = [int(x) for x in z.split(",")]
                prio[u0] = len(zz)
                for k, d in enumerate(zz): prio[u0 + d] = len(zz) - 1 - k
        for t in range(32):
            if t % 8 == 6 and t < 30:
                assert not side
                side = self.att_sync(t // 8)
            if t == 1 and self.o("kv3", 1):
                L3 = a.newlabel("N3")
                a(f"s_cmp_lg_u32 s{sWAVE}, 3\ns_cbranch_scc1 {L3}\nv_mov_b32 v15, 3\ns_waitcnt vmcnt(5)\nds_write_b32 v14, v15 offset:4")
                a.label(L3)
            if t == 2 and self.o("kv3", 1): self.sig_check(4, 3, tsig)
            if t == 30 and not self.o("nob30", 0): a("s_barrier")
            if t in prio: a(f"s_setprio {prio[t]}")
            u, j = t >> 1, t & 1
            X, Y = S_ + 32 * j, S_ + 32 * (1 - j)
            Vc, Vp = VS[u & 1], VS[((t - 1) >> 1) & 1]
            nx = t < 31
            rl = j == 0 and u < 15
            P = [int(x) for x in self.o("pos", "2,6,14,18,22,26,30").split(",")]
            SP = [int(x) for x in self.o("spos", "10,20").split(",")]
            for p in range(32):
                if p == P[0]:
                    if t == 0: a.wait(tq[2])
                    if j == 1 and nx: a.wait(tKR)
                    if t > 0: self.smf(Vp + 12, Y + 24, 1 - j)
                    if rl and self.o("vpos", -1) < 0: tV[u+1] = rV(u + 1)
                if p == self.o("vpos", -1) and rl: tV[u+1] = rV(u + 1)
                if p == P[1] and nx:
                    self.m2b(Y, 1 - j)
                    if rl: tKR = rKR(u + 1)
                if t == 1 and p == 24 and self.o("kv3", 1): tsig = a.ds("ds_read_b32 v15, v14 offset:4")
                if p in SP and side: side.pop(0)()
                if t == 31 and p in (16, 20, 24): a.ds(f"ds_write_b128 v{AEX}, {vr(O2+(p-16),4)} offset:{256*(p-16)}")
                if t == 31 and p == 28: a.ds(f"ds_write_b32 v{AEX}, v{O2+12} offset:3072")
                if p == P[2]: a.wait(tV[u]); self.smf(Vc, X, j)
                if p == P[3]: self.smf(Vc + 4, X + 8, j)
                if p == P[4] and nx:
                    a.wait(tK0, tK1, tq[3]); self.mqk(Y, 0, 1 - j)
                    if rl: tK0 = rKM(u + 1, 0)
                if p == P[5]: self.smf(Vc + 8, X + 16, j)
                if p == P[6] and nx:
                    self.mqk(Y, 1, 1 - j)
                    if rl: tK1 = rKM(u + 1, 1)
                a(f"v_exp_f32 v{X+p}, v{X+p}")
        assert not side
        a.nop(2)
        self.smf(VS[1] + 12, S_ + 32 + 24, 1)
        self.stamp("attend")
        a("s_setprio 0")
        a.wait_all(vm=False)
        a("s_barrier")
        tl = a.ds(f"ds_read_b32 v{O2+12}, v{APX} offset:3072")
        tp = [a.ds(f"ds_read_b128 {vr(O2+4*k,4)}, v{APX} offset:{1024*k}") for k in range(3)]
        self.fin_pre()
        a.nop(1)
        a.wait(tl); a(f"v_add_f32 v{O_+12}, v{O_+12}, v{O2+12}")
        for k in range(3):
            a.wait(tp[k])
            for e in range(4): a(f"v_add_f32 v{O_+4*k+e}, v{O_+4*k+e}, v{O2+4*k+e}")
    def att_sync(self, k):
        a = self.a
        if k == 0:
            a.wait_all(vm=True, ds=False, force=True)
            L = a.newlabel("NOF3")
            a(f"s_cmp_ge_u32 s{sLW}, s{sNCH}\ns_cbranch_scc1 {L}")
            a(f"s_lshl_b32 s{T0}, s{sCH}, 2\ns_add_u32 s{T0}, s{T0}, {F3:#x}")
            self.flag_store(T0, 14)
            a.label(L)
            a("s_barrier")
            self.stamp("sync0")
            return self.side_kv(16) + self.side_kv(24)
        if k == 1:
            a.wait_all(vm=True, ds=False, force=True)
            a("s_barrier")
            self.stamp("sync1")
            return self.side_x()
        a("s_barrier")
        self.stamp("sync2")
        self.srd(rA, pWO, 640 * 1280)
        return self.side_yd() + self.side_wo()

    def fin_pre(self):
        self.a(f"""v_lshlrev_b32 v2, 3, v0
        s_mov_b32 s{T2}, {f2u(2.0**-60):#x}
        s_mov_b32 s{T3}, {f2u(2.0**60):#x}
        s_mov_b32 s{T4}, 0x7f7fffff""")
    def finish(self):
        a = self.a
        O, TMP = O_, 16
        ACC, OF, WF, GG = 224, 16, 56, 14
        self.a.lines.append('; ---- softmax guard: the loop above shifts by 0 instead of the row max. That is exact as long as the row sum l lies in [2^-60, 2^60]')
        self.a.lines.append(';      and O is finite (no exponential overflowed, none that matters underflowed). Otherwise this wave redoes its rows at L_SLOW')
        a.label("L_NORM")
        a(f"v_rcp_f32 v{TMP+4}, v{O+12}")
        a(f"v_cmp_le_f32 vcc, s{T2}, v{O+12}\nv_cmp_ge_f32 s[{sM}:{sM+1}], s{T3}, v{O+12}")
        for e in range(8): a(f"v_mul_f32 v{O+e}, v{O+e}, v{TMP+4}")
        for e in range(4): a(f"v_cvt_pk_bf16_f32 v{TMP+8+e}, v{O+2*e}, v{O+2*e+1}")
        a(f"buffer_store_dwordx4 {vr(TMP+8,4)}, v{L16}, s[{rWS}:{rWS+3}], s{sOMS} offen sc1")
        for e in range(8, 12): a(f"v_mul_f32 v{O+e}, v{O+e}, v{TMP+4}")
        for e in range(4, 6): a(f"v_cvt_pk_bf16_f32 v{TMP+8+e}, v{O+2*e}, v{O+2*e+1}")
        a("s_mov_b32 exec_hi, 0")
        a(f"buffer_store_dwordx2 {vr(TMP+12,2)}, v2, s[{rWS}:{rWS+3}], s{sORS} offen sc1")
        a("s_mov_b32 exec_hi, -1")
        for e in range(4): a(f"v_add_f32 v{TMP+e}, abs(v{O+e}), abs(v{O+4+e})")
        for e in range(4): a(f"v_add_f32 v{TMP+e}, v{TMP+e}, abs(v{O+8+e})")
        a(f"""v_add_f32 v{TMP}, v{TMP}, v{TMP+1}
        v_add_f32 v{TMP+2}, v{TMP+2}, v{TMP+3}
        s_and_b64 s[{sM}:{sM+1}], s[{sM}:{sM+1}], vcc
        v_add_f32 v{TMP}, v{TMP}, v{TMP+2}
        v_cmp_ge_f32 vcc, s{T4}, v{TMP}
        s_nop 1
        s_and_b64 s[{sM}:{sM+1}], s[{sM}:{sM+1}], vcc
        s_cmp_eq_u64 s[{sM}:{sM+1}], exec
        s_cbranch_scc1 L_NORM_OK
        s_cmp_eq_u32 s{sSLOW}, 0
        s_cbranch_scc1 L_SLOW""")
        a.label("L_NORM_OK")
        self.srd(rA, pOUT, 2048 * 1280)
        a(f"s_lshl_b32 s{T0}, s{sKH}, 2\ns_add_u32 s{T0}, s{T0}, {L_RDY}\nv_mov_b32 v{AQM}, s{T0}\nv_mov_b32 v{AQR}, 0\nds_write_b32 v{AQM}, v{AQR}")
        a("s_waitcnt vmcnt(0) lgkmcnt(0)\ns_barrier")
        a.reset_counters()
        L = a.newlabel("NOF4")
        a(f"s_cmp_lg_u32 s{sWAVE}, 0\ns_cbranch_scc1 {L}")
        self.flag_store(sF4S, 2)
        a.label(L)
        a.reset_counters()
        self.stamp("F4set")
        tg = a.vm(f"buffer_load_dword v{GG}, v{AG}, s[{rWS}:{rWS+3}], 0 offen sc1")
        def wfrag(step, regstep):
            toks = []
            for b in range(5):
                for q in range(2):
                    if step < 8: ad, off = (WM0 if b < 2 else WM1), (40*step + 8*q)*160 + 32*b
                    else: ad, off = (WR0 if b < 2 else WR1), (160*(step-8) + 80*q)*160 + 32*b
                    t = a.ds(f"ds_read_b64_tr_b16 {vr(int(WF + 20*regstep) + 4*b + 2*q, 2)}, v{ad} offset:{L_WO + off}")
                toks.append(t)
            return toks
        tw = {s: wfrag(s, s) for s in range(8)}
        YR, BB = 2, 16
        ty = [a.ds(f"ds_read_b64_tr_b16 {vr(YR+2*b,2)}, v{AYD} offset:{2048*b}") for b in range(3)]
        keep = [216, 217, 218, 219, 220, 221, 222, 223, 2, 3, 4, 5]
        for b in range(3):
            a.wait(ty[b])
            x, y = XE + 2*b, YR + 2*b
            a(f"""v_lshlrev_b32 v16, 16, v{x}
            v_and_b32 v17, 0xffff0000, v{x}
            v_lshlrev_b32 v18, 16, v{x+1}
            v_and_b32 v19, 0xffff0000, v{x+1}
            v_lshlrev_b32 v20, 16, v{y}
            v_and_b32 v21, 0xffff0000, v{y}
            v_lshlrev_b32 v22, 16, v{y+1}
            v_and_b32 v23, 0xffff0000, v{y+1}""")
            for e in range(4): a(f"v_mul_f32 v{keep[4*b+e]}, v{16+e}, v{20+e}")
        a("v_lshrrev_b32 v16, 4, v0\nv_and_b32 v16, 1, v16\nv_mul_u32_u24 v16, 24, v16")
        a(f"v_add_u32 v15, v16, v{AOUT}\nv_mov_b32 v6, v{AQM}")
        a.wait_all(vm=False)
        sPEND, sR = sM2, T6
        a(f"s_mov_b64 s[{sPEND}:{sPEND+1}], 0xffff")
        def wait_group(done):
            L, N, D = a.newlabel("GW"), a.newlabel("GN"), a.newlabel("GD")
            a(f"s_mov_b32 s{sCNT}, 0\ns_cmp_lg_u32 s{sTB}, 0\ns_cbranch_scc1 {N}")
            a.label(L)
            a(f"""s_mov_b64 exec, s[{sPEND}:{sPEND+1}]
            buffer_load_dword v7, v{AF4}, s[{rWS}:{rWS+3}], 0 offen sc1
            s_waitcnt vmcnt(0)
            v_cmp_eq_u32 vcc, 0, v7
            s_add_u32 s{sCNT}, s{sCNT}, 1
            s_mov_b64 exec, -1
            s_mov_b64 s[{sPEND}:{sPEND+1}], vcc
            s_cmp_ge_u32 s{sCNT}, {POLL_MAX}
            s_cselect_b32 s{sPEND}, 0, s{sPEND}
            s_and_b32 s{T0}, s{sPEND}, 0xff
            s_cselect_b32 s{sR}, 0, 1
            s_and_b32 s{T0}, s{sPEND}, 0xff00
            s_cselect_b32 s{T0}, 0, 2
            s_or_b32 s{sR}, s{sR}, s{T0}
            s_and_b32 s{T0}, s{sR}, {3 - done}
            s_cbranch_scc1 {L}P
            s_sleep {self.o('psleep', 2)}
            s_branch {L}""")
            a.label(L + "P")
            a(f"v_mov_b32 v7, s{sR}\nds_write_b32 v6, v7\ns_branch {D}")
            a.label(N)
            a(f"""ds_read_b32 v7, v6
            s_waitcnt lgkmcnt(0)
            v_readfirstlane_b32 s{sR}, v7
            s_add_u32 s{sCNT}, s{sCNT}, 1
            s_cmp_ge_u32 s{sCNT}, {POLL_MAX*40}
            s_cselect_b32 s{sR}, 3, s{sR}
            s_and_b32 s{T0}, s{sR}, {3 - done}
            s_cbranch_scc1 {D}
            s_sleep 1
            s_branch {N}""")
            a.label(D)
        def oloads(steps, base):
            to = {}
            for k, s in enumerate(steps):
                if s < 8:
                    a(f"s_mov_b32 s{T0}, {s*131072}")
                    to[s] = a.vm(f"buffer_load_dwordx4 {vr(base+4*k,4)}, v{AOM}, s[{rWS}:{rWS+3}], s{T0} offen sc1")
                else:
                    for q in range(2):
                        a(f"s_mov_b32 s{T0}, {(8*(s-8)+4*q)*16384}")
                        to[s] = a.vm(f"buffer_load_dwordx2 {vr(base+4*k+2*q,2)}, v{AOR}, s[{rWS}:{rWS+3}], s{T0} offen sc1")
            return to
        def mm(steps, to, obase, acc, wrem, trem, after=None):
            for k, s in enumerate(steps):
                a.wait(to[s])
                for b in (range(5) if s < 8 else (2, 3, 4, 0, 1)):
                    w = WF + 20*s + 4*b if s < 8 else wrem + 4*b
                    if s >= 8: a.wait(trem()[b])
                    a(f"v_mfma_f32_16x16x32_bf16 {vr(acc+4*b,4)}, {vr(w,4)}, {vr(obase+4*k,4)}, {'0' if k == 0 else vr(acc+4*b,4)}")
                if after: after(s)
        def wrem_to(step, reg): return wfrag(step, (reg - WF) // 20)
        def add_from(src):
            for b in (2, 3, 4, 0, 1):
                for e in range(4): a(f"v_add_f32 v{ACC+4*b+e}, v{ACC+4*b+e}, v{src+4*b+e}")
        G = ([0, 1, 2, 3, 8], [4, 5, 6, 7, 9])
        wait_group(0)
        self.stamp("F4ok")
        a(f"s_cmp_lg_u32 s{sR}, 3\ns_cbranch_scc1 L_P3_PART")
        a.reset_counters()
        order = [0, 1, 2, 3, 8, 4, 5, 6, 7, 9]
        to = oloads(order, OF)
        tr = {}
        def after(s):
            if s == 0: tr[8] = wfrag(8, 0)
            if s == 1: tr[9] = wfrag(9, 1)
        mm(G[0], to, OF, WF + 60 if False else ACC, WF, lambda: tr[8], after)
        mm(G[1], to, OF + 20, WF + 40, WF + 20, lambda: tr[9])
        a.nop(4)
        add_from(WF + 40)
        a.label("L_P3_SUM")
        def part():
            a.label("L_P3_PART")
            a(f"s_cmp_eq_u32 s{sR}, 2\ns_cbranch_scc1 L_P3_B")
            for first in (0, 1):
                if first: a.label("L_P3_B")
                save = WF + 80 * first
                for n, g in enumerate((first, 1 - first)):
                    a.reset_counters()
                    if n: wait_group(1 << first); a.reset_counters()
                    to = oloads(G[g], OF)
                    trem = wfrag(G[g][4], (OF + 20 - WF) / 20)
                    mm(G[g], to, OF, ACC, OF + 20, lambda: trem)
                    a.nop(4 if n else 8)
                    if n: add_from(save)
                    else:
                        for e in range(20): a(f"v_mov_b32 v{save+e}, v{ACC+e}")
                a("s_branch L_P3_SUM")
        self.p3_part = part
        a.reset_counters()
        self.stamp("mfma")
        for b in (2, 3, 4): a.ds(f"ds_write_b128 v{AEX}, {vr(ACC+4*b,4)} offset:{1024*(b-2)}")
        for b in range(3):
            for e in range(4): a(f"v_sub_f32 v{ACC+4*b+e}, v{ACC+4*b+e}, v{keep[4*b+e]}")
        a.wait_all(vm=False)
        a("s_barrier")
        tp = [a.ds(f"ds_read_b128 {vr(16+4*b,4)}, v{AX2} offset:{1024*b}") for b in range(3)]
        fl = self.o('ost', '').replace('+', ' ')
        for b in range(3):
            if b == 2: a(f"s_cmp_lg_u32 s{sKH}, 0\ns_cbranch_scc1 L_FIN")
            a.wait(tp[b])
            for e in range(4): a(f"v_add_f32 v{16+4*b+e}, v{16+4*b+e}, v{ACC+4*b+e}")
            for e in range(4): a(f"v_fmac_f32 v{keep[4*b+e]}, v{GG}, v{16+4*b+e}")
            a(f"v_cvt_pk_bf16_f32 v{32+2*b}, v{keep[4*b]}, v{keep[4*b+1]}\nv_cvt_pk_bf16_f32 v{33+2*b}, v{keep[4*b+2]}, v{keep[4*b+3]}")
            if self.o("o4", 1) and b < 2:
                if b == 1:
                    a("s_nop 1\nv_permlane16_swap_b32 v32, v34\nv_permlane16_swap_b32 v33, v35")
                    a.vm(f"buffer_store_dwordx4 v[32:35], v15, s[{rA}:{rA+3}], 0 offen {fl}")
            else: a.vm(f"buffer_store_dwordx2 {vr(32+2*b,2)}, v{AOUT}, s[{rA}:{rA+3}], 0 offen offset:{32*b} {fl}")
        a.label("L_FIN")
        if self.stamps:
            self.stamp("st")
            a("s_waitcnt vmcnt(0)")
            self.stamp("end")
            a(f"s_lshl_b32 s{T0}, s{sWG}, 3\ns_add_u32 s{T0}, s{T0}, s{sWAVE}\ns_lshl_b32 s{T0}, s{T0}, 8\ns_add_u32 s{T0}, s{T0}, {TS:#x}\nv_lshlrev_b32 v2, 2, v0")
            a(f"buffer_store_dword v1, v2, s[{rWS}:{rWS+3}], s{T0} offen")
            if "enc" in self.opt:
                n0, n1, wv, wg = self.opt["enc"].split(",")
                for n in (n0, n1):
                    if n not in self.names: self.names.append(n)
                a(f"s_cmp_lg_u32 s{sWG}, {wg}\ns_cbranch_scc1 L_END\ns_cmp_lg_u32 s{sWAVE}, {wv}\ns_cbranch_scc1 L_END")
                a(f"v_readlane_b32 s{T1}, v1, {self.names.index(n0)}\nv_readlane_b32 s{T2}, v1, {self.names.index(n1)}\nv_readlane_b32 s{T3}, v1, {self.names.index('end')}\ns_nop 3")
                a(f"s_sub_u32 s{T2}, s{T2}, s{T1}\ns_lshl_b32 s{T2}, s{T2}, 3\ns_and_b32 s{T2}, s{T2}, 0xffff\ns_add_u32 s{T3}, s{T3}, s{T2}")
                a.label("L_ENC")
                a(f"s_memrealtime s[{sTS}:{sTS+1}]\ns_waitcnt lgkmcnt(0)\ns_sub_u32 s{T1}, s{T3}, s{sTS}\ns_cmp_gt_i32 s{T1}, 0\ns_cbranch_scc1 L_ENC")
        a.label("L_END")
        a("s_endpgm")

    def slow(self):
        a = self.a
        S, V, M, AVS = S_, VS[0], 96, 98
        a.label("L_SLOW")
        a(f"""s_mov_b32 s{sSLOW}, 1
        v_and_b32 v{M}, 31, v0
        v_lshrrev_b32 v{AVS}, 5, v0
        v_mul_u32_u24 v{AVS}, 320, v{AVS}
        v_lshl_add_u32 v{AVS}, v{M}, 4, v{AVS}
        v_add_u32 v{AVS}, 2560, v{AVS}
        v_mov_b32 v{M}, 0xff800000""")
        def scores():
            a(f"""buffer_load_dwordx2 {vr(KRM,2)}, v2, s[{rWS}:{rWS+3}], s{T6} offen offset:2048 sc1
            buffer_load_dwordx4 {vr(KM,4)}, v{L16}, s[{rWS}:{rWS+3}], s{T6} offen sc1
            buffer_load_dwordx4 {vr(KM+4,4)}, v{L16}, s[{rWS}:{rWS+3}], s{T6} offen offset:1024 sc1
            s_waitcnt vmcnt(0)""")
            self.m2b(S); a.nop(18); self.mqk(S, 0); self.mqk(S, 1); a.nop(12)
        a(f"s_mov_b32 s{T6}, s{sKVB}\ns_mov_b32 s{sCNT}, 0")
        a.label("L_SLOW1")
        scores()
        for e in range(16): a(f"v_max3_f32 v{M}, v{M}, v{S+2*e}, v{S+2*e+1}")
        a(f"s_add_u32 s{T6}, s{T6}, {KV_US}\ns_add_u32 s{sCNT}, s{sCNT}, 1\ns_cmp_lt_u32 s{sCNT}, 32\ns_cbranch_scc1 L_SLOW1")
        a(f"v_mov_b32 v{M+1}, v{M}\ns_nop 1\nv_permlane32_swap_b32 v{M}, v{M+1}\ns_nop 1\nv_max_f32 v{M}, v{M}, v{M+1}")
        for e in range(16): a(f"v_mov_b32 v{O_+e}, 0")
        a(f"s_mov_b32 s{T6}, s{sKVB}\ns_mov_b32 s{sCNT}, 0")
        a.label("L_SLOW2")
        a(f"s_mov_b64 exec, s[{sVMASK}:{sVMASK+1}]")
        for g in range(4): a(f"buffer_load_dwordx4 {vr(V+4*g,4)}, v{AVS}, s[{rWS}:{rWS+3}], s{T6} offen offset:{640*g} sc1")
        a("s_mov_b64 exec, -1")
        scores()
        for e in range(32): a(f"v_sub_f32 v{S+e}, v{S+e}, v{M}")
        for e in range(32): a(f"v_exp_f32 v{S+e}, v{S+e}")
        a.nop(2)
        for g in range(4): self.smf(V + 4*g, S + 8*g)
        a(f"s_add_u32 s{T6}, s{T6}, {KV_US}\ns_add_u32 s{sCNT}, s{sCNT}, 1\ns_cmp_lt_u32 s{sCNT}, 32\ns_cbranch_scc1 L_SLOW2")
        a.nop(12)
        a("s_branch L_NORM")

    def build(self):
        self.prologue(); self.dma_role(); self.attention(); self.finish(); self.p3_part(); self.setup_sub(); self.side_role(); self.gemm_compute(); self.slow(); self.a.label('L_CODE_END')
        bad = lint_cfg(self.a.lines)
        head = f"""; gated_mix( MHA block , H3 SSM conv ): one persistent workgroup of eight waves per CU.
; kernarg: 0 A_x, 8 A_wqkv, 16 A_wo, 24 B_q (not used by the reference), 32 B_k, 40 B_v, 48 B_shift_k, 56 B_ssm_k,
; first clears its own flag words and counts that in d_debug; no flag is trusted before the count is complete. All waits are bounded.
; @launch grid=(256,1,1) block=(512,1,1) lds={LDS_BYTES}
.amdgcn_target "amdgcn-amd-amdhsa--gfx950"
.text
.globl {NAME}
.p2align 8
.type {NAME},@function
{NAME}:
"""
        tail = f""".section .rodata,"a"
.p2align 6
.amdhsa_kernel {NAME}
  .amdhsa_next_free_vgpr 256
  .amdhsa_next_free_sgpr 102
  .amdhsa_accum_offset 256
  .amdhsa_group_segment_fixed_size 0
  .amdhsa_kernarg_size 104
  .amdhsa_user_sgpr_count 2
  .amdhsa_user_sgpr_kernarg_segment_ptr 1
  .amdhsa_system_sgpr_workgroup_id_x 1
  .amdhsa_float_denorm_mode_32 3
.end_amdhsa_kernel
"""
        return head + self.a.text() + tail, bad

if __name__ == "__main__":
    out = sys.argv[1] if len(sys.argv) > 1 else "gated_mix__mha_block__ssm_conv_h3__prompt.s"
    opt = dict(x[2:].split("=") for x in sys.argv if x.startswith("-D"))
    G = Gen(stamps="--stamps" in sys.argv, opt=opt)
    src, bad = G.build()
    if G.stamps: src = src.replace("; @launch", "; STAMPS " + " ".join(G.names) + "\n; @launch", 1)
    for b in bad: print("LINT:", b)
    open(out, "w").write(src)
    print("wrote", out, len(src), "bytes;", len(bad), "lint findings")
```

```python
import sys, math, struct
from asmlib import *

NAME = "gated_mix__mha_block__ssm_conv_h3__prompt_kernel"
def f2u(x): return struct.unpack("<I", struct.pack("<f", x))[0]

KV, QO, UR, YD, OM, ORM = 0, 0x500000, 0x780000, 0xA00000, 0xC80000, 0xE80000
F2, F4, F3, F5, GT, F1 = 0xF04000, 0xF08000, 0xF0C000, 0xF0D000, 0xF0E000, 0xFA0000
TS = 0xF10000
WS_SIZE = 0x1000000
KV_HS, KV_US = 163840, 5120
Q_HS, Q_US = 81920, 2560
NSLOT = 3
L_X, L_W = 0, 49152
L_Q, L_SIG = 81920, 162048
L_CONV, CONV_SZ, CS, U_OFF = 98304, 21248, 4160, 16640
L_WO, L_YD, L_EX, L_RDY = 0, 102400, 112640, 145408
LDS_BYTES = 163840
sWG, sWAVE = 2, 3
pX, pW, pWO, pWS, pK, pV, pSH, pH, pD, pGW, pOUT, pDBG = 4, 6, 8, 10, 12, 14, 16, 18, 20, 22, 24, 26
rWS, rA, rB, rC, rD = 28, 32, 36, 40, 44
sXCD, sI, sJT, sRT, sPRT, sCJ, sCH0, sNCH, sHEAD, sQB = 48, 49, 50, 51, 52, 53, 54, 55, 56, 57
sLW, sCH, sKH, sTB, sCNT, sSLOW = 58, 59, 60, 61, 62, 63
T0, T1, T2, T3, T4, T5, T6, T7 = 64, 65, 66, 67, 68, 69, 70, 71
sM = 72
sVMASK = 74
sTS = 76
sE = 78
sSC = 86
sKVB, sKVW, sOMS, sORS, sF4S, sCL = 87, 88, 89, 90, 91, 92
sNB, sBC, sU, sK = 93, 94, 78, 96
sM2 = 98
sKVG = 97
sRET = 52
sPI, sNU, sG = 100, 101, 95
POLL_MAX = 200000
IDX, AKM, AKR, AV, L16, AQM, AQR, AF3, YDV = 224, 225, 226, 227, 228, 229, 230, 231, 232
WOV = 233
F3T = 238
ONES, APX, AQM2, AQR2 = 240, 241, 242, 243
QM2, QR2, O2 = 128, 132, 144
WM0, WM1, WR0, WR1, AOM, AOR, AOUT, AG, AEX, AX2, AYD, AF4 = 244, 245, 246, 247, 248, 249, 250, 251, 252, 253, 254, 255
O_, QM, QR, KRM, KM, S_ = 192, 32, 36, 38, 40, 64
VS = (48, 208)
XE = 8

class Gen:
    def __init__(self, stamps=False, opt=None):
        self.a = Asm(); self.stamps = stamps; self.names = []; self.opt = opt or {}
        self.nt = " nt" if int(self.opt.get("nt", 1)) else ""
        self.gnt = " nt" if int(self.opt.get("gnt", 0)) else ""
    def o(self, k, d): return type(d)(self.opt.get(k, d))
    def srd(self, r, p, size):
        self.a(f"s_mov_b32 s{r}, s{p}\ns_mov_b32 s{r+1}, s{p+1}\ns_mov_b32 s{r+2}, {size:#x}\ns_mov_b32 s{r+3}, 0x20000")
    def stamp(self, name):
        if not self.stamps: return
        if self.o("lite", 0) and name not in ("start", "att0", "attend", "end"): return
        if name not in self.names: self.names.append(name)
        k = self.names.index(name); assert k < 58
        if name == "start": self.a("s_mov_b32 s99, s76")
        self.a(f"s_memrealtime s[{sTS}:{sTS+1}]\ns_waitcnt lgkmcnt(0)\nv_writelane_b32 v1, s{sTS}, {k}")
        if name in ("l.b5", "l.b9"): self.a(f"s_memtime s[{sTS}:{sTS+1}]\ns_waitcnt lgkmcnt(0)\nv_writelane_b32 v1, s{sTS}, {58 if name == 'l.b5' else 59}")
        if name in ("att0", "attend"): self.a(f"s_memtime s[{sTS}:{sTS+1}]\ns_waitcnt lgkmcnt(0)\nv_writelane_b32 v1, s{sTS}, {60 if name == 'att0' else 61}")
        if name == "start":
            if "entry" not in self.names: self.names.append("entry")
            self.a(f"v_writelane_b32 v1, s99, {self.names.index('entry')}")
        if name == "start": self.a(f"s_memtime s[{sTS}:{sTS+1}]\ns_waitcnt lgkmcnt(0)\nv_writelane_b32 v1, s{sTS}, 62")
        if name == "end": self.a(f"s_memtime s[{sTS}:{sTS+1}]\ns_waitcnt lgkmcnt(0)\nv_writelane_b32 v1, s{sTS}, 63")
        self.a.done["ds"] = self.a.n["ds"]
    def poll(self, loads, tmp, cmp=None):
        a = self.a
        L, D = a.newlabel("POLL"), a.newlabel("POLLD")
        a(f"s_mov_b32 s{sCNT}, 0")
        a.label(L)
        k = 0
        for (va, r, imm, wd) in loads:
            ins = {1: "buffer_load_dword", 2: "buffer_load_dwordx2", 4: "buffer_load_dwordx4"}[wd]
            a(f"{ins} {vr(tmp+k, wd)}, v{va}, s[{r}:{r+3}], 0 offen offset:{imm} sc1"); k += wd
        a("s_waitcnt vmcnt(0)")
        a.done["vm"] = a.n["vm"]
        self.poll_check(tmp, k, cmp)
        a(f"s_cbranch_scc1 {D}")
        a(f"s_add_u32 s{sCNT}, s{sCNT}, 1\ns_cmp_lt_u32 s{sCNT}, {POLL_MAX}\ns_cbranch_scc0 {D}\ns_sleep 1\ns_branch {L}")
        a.label(D)
    def mpoll(self, addrs, tmp, elastic=False):
        a = self.a
        L, D = a.newlabel("MP"), a.newlabel("MPD")
        M = [sM, sM2][:len(addrs)]
        a(f"s_mov_b32 s{sCNT}, 0")
        for m in M: a(f"s_mov_b64 s[{m}:{m+1}], -1")
        a.label(L)
        for k, (va, m) in enumerate(zip(addrs, M)):
            S = a.newlabel("MS")
            a(f"s_mov_b64 exec, s[{m}:{m+1}]\ns_cbranch_execz {S}\nbuffer_load_dword v{tmp+k}, v{va}, s[{rWS}:{rWS+3}], 0 offen sc1")
            a.label(S)
        a("s_mov_b64 exec, -1")
        if elastic: self.ewait()
        else: a("s_waitcnt vmcnt(0)")
        a.done["vm"] = a.n["vm"]
        for k, m in enumerate(M):
            a(f"v_cmp_eq_u32 vcc, 0, v{tmp+k}\ns_nop 1\ns_and_b64 s[{m}:{m+1}], s[{m}:{m+1}], vcc")
        if len(M) == 2: a(f"s_or_b64 vcc, s[{sM}:{sM+1}], s[{sM2}:{sM2+1}]")
        a(f"s_cbranch_scc0 {D}")
        a(f"s_add_u32 s{sCNT}, s{sCNT}, 1\ns_cmp_lt_u32 s{sCNT}, {POLL_MAX}\ns_cbranch_scc0 {D}\ns_sleep {self.o('psleep', 2)}\ns_branch {L}")
        a.label(D)
    def last_flag(self, off, sN, sAddr, vt, base=L_SIG):
        a = self.a
        L = a.newlabel("NL")
        a(f"""v_mov_b32 v{vt}, {base}
        v_mov_b32 v{vt+1}, 1
        s_mov_b64 exec, 1
        ds_add_rtn_u32 v{vt+1}, v{vt}, v{vt+1} offset:{off}
        s_waitcnt lgkmcnt(0)
        v_readfirstlane_b32 s{T0}, v{vt+1}
        s_mov_b64 exec, -1
        s_add_u32 s{T0}, s{T0}, 1
        s_cmp_lg_u32 s{T0}, {sN}
        s_cbranch_scc1 {L}""")
        self.flag_store(sAddr, vt, two=True)
        a.label(L)
    def poll_check(self, tmp, k, cmp=None):
        a = self.a
        for j in range(1, k, 2):
            if j + 1 < k: a(f"v_min3_u32 v{tmp}, v{tmp}, v{tmp+j}, v{tmp+j+1}")
            else: a(f"v_min_u32 v{tmp}, v{tmp}, v{tmp+j}")
        a(cmp or f"v_cmp_ne_u32 vcc, 0, v{tmp}")
        a("s_nop 1\ns_cmp_eq_u64 vcc, exec")
    def flag_store(self, s, vt, two=False):
        a = self.a
        a(f"v_lshl_add_u32 v{vt}, v0, 2, s{s}\nv_mov_b32 v{vt+1}, 1\ns_mov_b64 exec, {3 if two else 1}")
        t = a.vm(f"buffer_store_dword v{vt+1}, v{vt}, s[{rWS}:{rWS+3}], 0 offen sc1")
        a("s_mov_b64 exec, -1")
        return t

    def prologue(self):
        a = self.a
        if self.stamps: a("s_memrealtime s[76:77]")
        a(f"s_cmp_ge_u32 s{sWG}, 256\ns_cbranch_scc1 L_END")
        if self.opt.get("diag") == "spin":
            a("s_mov_b32 s60, 2500\nv_mov_b32 v10, 0")
            a.label("L_DSPIN")
            for e in range(8): a(f"v_exp_f32 v{11+e}, v10")
            a("s_sub_u32 s60, s60, 1\ns_cmp_lg_u32 s60, 0\ns_cbranch_scc1 L_DSPIN")
        if self.opt.get("diag") == "chain":
            a("s_load_dwordx2 s[32:33], s[0:1], 24\ns_waitcnt lgkmcnt(0)\ns_mov_b32 s34, 2621440\ns_mov_b32 s35, 0x20000\ns_mul_i32 s60, s2, 256\nv_mov_b32 v10, s60")
            for e in range(32): a("buffer_load_dword v12, v10, s[32:35], 0 offen\ns_waitcnt vmcnt(0)\nv_and_b32 v12, 0, v12\nv_add_u32 v10, v10, v12\nv_add_u32 v10, 0x13000, v10")
        if self.opt.get("diag") == "bq":
            a("s_load_dwordx2 s[32:33], s[0:1], 24\ns_waitcnt lgkmcnt(0)\ns_mov_b32 s34, 2621440\ns_mov_b32 s35, 0x20000\nv_lshlrev_b32 v10, 4, v0\ns_mul_i32 s60, s2, 10240")
            a("buffer_load_dwordx4 v[12:15], v10, s[32:35], s60 offen\ns_add_u32 s60, s60, 2048\nbuffer_load_dwordx4 v[16:19], v10, s[32:35], s60 offen\ns_waitcnt vmcnt(0)")
        a(f"""s_load_dwordx4 s[4:7], s[0:1], 0
        s_load_dwordx16 s[12:27], s[0:1], 32
        s_load_dwordx2 s[10:11], s[0:1], 96
        s_load_dwordx2 s[8:9], s[0:1], 16
        v_lshrrev_b32 v1, 6, v0
        v_and_b32 v0, 63, v0
        s_and_b32 s{sXCD}, s{sWG}, 7
        v_readfirstlane_b32 s{sWAVE}, v1
        s_lshr_b32 s{sI}, s{sWG}, 3
        s_and_b32 s{T0}, s{sXCD}, 1
        s_mul_i32 s{T0}, s{T0}, 30
        s_add_u32 s{T0}, s{T0}, s{sI}
        s_lshr_b32 s{sJT}, s{T0}, 2
        s_and_b32 s{T0}, s{T0}, 3
        s_lshr_b32 s{T1}, s{sXCD}, 1
        s_lshl_b32 s{T1}, s{T1}, 2
        s_add_u32 s{sRT}, s{T0}, s{T1}
        s_sub_u32 s{sLW}, s{sWAVE}, 4
        s_mul_i32 s{T0}, s{sXCD}, 30
        s_add_u32 s{sPI}, s{T0}, s{sI}
        s_mul_i32 s{sG}, s{sPI}, 171
        s_lshr_b32 s{sG}, s{sG}, 9
        s_mul_i32 s{T1}, s{sG}, 3
        s_sub_u32 s{T1}, s{sPI}, s{T1}
        s_lshl_b32 s{T2}, s{sG}, 3
        s_mul_i32 s{T3}, s{T1}, 3
        s_add_u32 s{sCH0}, s{T2}, s{T3}
        s_lshr_b32 s{T1}, s{T1}, 1
        s_sub_u32 s{sNCH}, 3, s{T1}
        s_lshl_b32 s{T0}, s{sXCD}, 1
        s_add_u32 s{T0}, s{T0}, s{sI}
        s_add_u32 s{T0}, s{T0}, 210
        s_cmp_ge_u32 s{sI}, 30
        s_cselect_b32 s{sPI}, s{T0}, s{sPI}
        s_cselect_b32 s{sNCH}, 0, s{sNCH}
        s_cselect_b32 s{sNU}, 8, 2""")
        if self.o("cpf", 1) == 2: self.code_prefetch()
        a(f"""s_cmp_lt_u32 s{sWAVE}, 4
        s_cbranch_scc1 L_COMPUTE
        s_cmp_gt_u32 s{sWAVE}, 4
        s_cbranch_scc1 L_SIDE""")
    def code_prefetch(self):
        a = self.a
        L = a.newlabel("NOPF")
        a(f"""s_cmp_lg_u32 s{sWAVE}, 1
        s_cbranch_scc1 {L}
        s_getpc_b64 s[{T2}:{T3}]
        L_PC:
        s_sub_u32 s{T2}, s{T2}, L_PC-{NAME}
        s_subb_u32 s{T3}, s{T3}, 0
        s_and_b32 s{T0}, s{sI}, 7
        s_lshl_b32 s{T0}, s{T0}, 13
        v_lshl_add_u32 v10, v0, 7, s{T0}
        v_min_u32 v10, L_CODE_END-{NAME}-4, v10
        global_load_dword v31, v10, s[{T2}:{T3}]""")
        a.label(L)
    def common_scalars(self):
        self.a(f"""s_cmp_ge_u32 s{sI}, 30
        s_cselect_b32 s{sNB}, 1, 10
        s_mov_b32 s{sBC}, 0
        s_lshr_b32 s{T0}, s{sI}, 3
        s_lshl_b32 s{T1}, s{sXCD}, 2
        s_add_u32 s{sHEAD}, s{T0}, s{T1}
        s_and_b32 s{sQB}, s{sI}, 7
        s_lshr_b32 s{sKH}, s{sWAVE}, 2
        s_and_b32 s{sTB}, s{sWAVE}, 3
        s_mov_b32 s{sSLOW}, 0
        s_mov_b32 s{sVMASK}, 0x000fffff
        s_mov_b32 s{sVMASK+1}, 0x000fffff""")
    def setup_call(self):
        if self.o("sub", 1): self.a(f"s_call_b64 s[{sRET}:{sRET+1}], L_SETUP")
        else: self.common_scalars(); self.persistent()
    def setup_sub(self):
        if not self.o("sub", 1): return
        self.a.label("L_SETUP")
        self.common_scalars(); self.persistent()
        self.a(f"s_setpc_b64 s[{sRET}:{sRET+1}]")
    def persistent(self, t=192):
        a = self.a
        a(f"""s_mov_b32 s{sM}, 0x11000000
        s_mov_b32 s{sM+1}, 0x11000000
        v_mov_b32 v{t}, 0x3f803f80
        v_cndmask_b32 v{ONES}, 0, v{t}, s[{sM}:{sM+1}]""")
        a(f"""v_mov_b32 v{IDX}, 0xdddddddd
        v_lshlrev_b32 v{AKM}, 4, v0
        v_lshlrev_b32 v{L16}, 4, v0
        v_lshlrev_b32 v{t}, 3, v0
        v_add_u32 v{AKR}, 2048, v{t}
        v_and_b32 v{t+1}, 31, v0
        v_lshrrev_b32 v{t+2}, 5, v0
        v_mul_u32_u24 v{t+2}, 320, v{t+2}
        v_lshl_add_u32 v{t+2}, v{t+1}, 4, v{t+2}
        v_add_u32 v{AV}, 2560, v{t+2}
        s_mul_i32 s{T0}, s{sKH}, {KV_US}
        v_add_u32 v{AKM}, s{T0}, v{AKM}
        v_add_u32 v{AKR}, s{T0}, v{AKR}
        v_add_u32 v{AV}, s{T0}, v{AV}
        s_mul_i32 s{T0}, s{sTB}, {Q_US}
        s_add_u32 s{T0}, s{T0}, {L_Q}
        s_lshl_b32 s{T2}, s{sKH}, 10
        s_add_u32 s{T2}, s{T2}, s{T0}
        v_add_u32 v{AQM}, s{T2}, v{L16}
        s_lshl_b32 s{T1}, s{sKH}, 8
        s_add_u32 s{T1}, s{T1}, s{T0}
        v_lshl_add_u32 v{AQR}, v{t+1}, 3, s{T1}
        s_xor_b32 s{T3}, s{sKH}, 1
        s_lshl_b32 s{T2}, s{T3}, 10
        s_add_u32 s{T2}, s{T2}, s{T0}
        v_add_u32 v{AQM2}, s{T2}, v{L16}
        s_lshl_b32 s{T1}, s{T3}, 8
        s_add_u32 s{T1}, s{T1}, s{T0}
        v_lshl_add_u32 v{AQR2}, v{t+1}, 3, s{T1}
        s_mul_i32 s{sKVB}, s{sHEAD}, {KV_HS}
        s_mul_i32 s{sKVW}, s{sWAVE}, {KV_US}
        s_add_u32 s{sKVG}, s{sKVW}, s{sKVB}
        s_lshl_b32 s{T0}, s{sHEAD}, 16
        s_lshl_b32 s{T1}, s{sQB}, 2
        s_add_u32 s{T1}, s{T1}, s{sTB}
        s_lshl_b32 s{T1}, s{T1}, 1
        s_add_u32 s{T1}, s{T1}, s{sKH}
        s_lshl_b32 s{T2}, s{T1}, 10
        s_add_u32 s{T0}, s{T0}, s{T2}
        s_add_u32 s{sOMS}, s{T0}, {OM:#x}
        s_lshl_b32 s{T2}, s{sHEAD}, 14
        s_lshl_b32 s{T1}, s{T1}, 8
        s_add_u32 s{T1}, s{T1}, s{T2}
        s_add_u32 s{sORS}, s{T1}, {ORM:#x}
        s_lshl_b32 s{T0}, s{sQB}, 11
        s_lshl_b32 s{T1}, s{sHEAD}, 6
        s_add_u32 s{T0}, s{T0}, s{T1}
        s_add_u32 s{sF4S}, s{T0}, {F4:#x}""")
        a(f"""s_mul_i32 s{T0}, s{sQB}, 320
        s_add_u32 s{T0}, s{T0}, {F3:#x}
        v_lshl_add_u32 v{AF3}, v0, 3, s{T0}
        s_lshr_b32 s{T0}, s{sHEAD}, 1
        s_lshl_b32 s{T0}, s{T0}, 6
        s_add_u32 s{T0}, s{T0}, {F5:#x}
        v_mov_b32 v{t}, s{T0}
        s_mov_b32 s{sM}, 0
        s_mov_b32 s{sM+1}, 0xffffff00
        v_cndmask_b32 v{AF3}, v{AF3}, v{t}, s[{sM}:{sM+1}]""")
        a(f"s_mul_i32 s{T0}, s{sWAVE}, {13*64}\ns_mul_i32 s{T1}, s{sQB}, 160")
        for k in range(5):
            a(f"""s_add_u32 s{T2}, s{T0}, {64*k}
            v_add_u32 v{t}, s{T2}, v0
            v_mul_u32_u24 v{t+1}, 52429, v{t}
            v_lshrrev_b32 v{t+1}, 19, v{t+1}
            v_mul_u32_u24 v{t+1}, {1280-160}, v{t+1}
            v_lshl_add_u32 v{t+1}, v{t}, 4, v{t+1}
            v_add_u32 v{WOV+k}, s{T1}, v{t+1}""")
        a(f"""s_mul_i32 s{T0}, s{sQB}, 80
        s_mul_i32 s{T1}, s{sWAVE}, 10
        s_add_u32 s{T0}, s{T0}, s{T1}
        v_lshrrev_b32 v{t}, 3, v0
        v_add_u32 v{t}, s{T0}, v{t}
        v_lshlrev_b32 v{t}, 12, v{t}
        v_and_b32 v{t+1}, 7, v0
        v_lshl_add_u32 v{t}, v{t+1}, 4, v{t}
        s_lshl_b32 s{T0}, s{sHEAD}, 7
        s_add_u32 s{T0}, s{T0}, {YD:#x}
        v_add_u32 v{YDV}, s{T0}, v{t}""")
        q, r, c8, tt, b0 = t, t + 1, t + 2, t + 3, t + 4
        a(f"""v_lshrrev_b32 v{q}, 4, v0
        v_lshrrev_b32 v{r}, 2, v0
        v_and_b32 v{r}, 3, v{r}
        v_and_b32 v{c8}, 3, v0
        v_lshlrev_b32 v{c8}, 3, v{c8}
        v_and_b32 v{tt}, 15, v0
        v_and_b32 v{b0}, 1, v{q}
        s_mul_i32 s{T2}, s{sKH}, {51200 + 96}
        s_mul_i32 s{T3}, s{sKH}, {51200 - 64}
        v_lshrrev_b32 v{t+5}, 1, v{q}
        v_mul_u32_u24 v{t+5}, 20, v{t+5}
        v_lshl_add_u32 v{t+5}, v{b0}, 2, v{t+5}
        v_add_u32 v{t+5}, v{t+5}, v{r}
        v_mul_u32_u24 v{t+5}, 160, v{t+5}
        v_add_u32 v{t+5}, v{t+5}, v{c8}
        v_add_u32 v{WM0}, s{T2}, v{t+5}
        v_add_u32 v{WM1}, s{T3}, v{t+5}
        v_mul_u32_u24 v{t+5}, 20, v{q}
        v_add3_u32 v{t+5}, v{t+5}, v{r}, 16
        v_mul_u32_u24 v{t+5}, 160, v{t+5}
        v_add_u32 v{t+5}, v{t+5}, v{c8}
        v_add_u32 v{WR0}, s{T2}, v{t+5}
        v_add_u32 v{WR1}, s{T3}, v{t+5}
        s_lshl_b32 s{T2}, s{sKH}, 20
        s_lshl_b32 s{T3}, s{sHEAD}, 11
        s_add_u32 s{T2}, s{T2}, s{T3}
        s_lshr_b32 s{T3}, s{sTB}, 1
        s_lshl_b32 s{T4}, s{T3}, 10
        s_add_u32 s{T2}, s{T2}, s{T4}
        s_and_b32 s{T4}, s{sTB}, 1
        s_lshl_b32 s{T4}, s{T4}, 8
        s_add_u32 s{T2}, s{T2}, s{T4}
        s_add_u32 s{T2}, s{T2}, {OM:#x}
        v_lshrrev_b32 v{t+5}, 1, v{q}
        v_lshlrev_b32 v{t+5}, 16, v{t+5}
        v_lshl_add_u32 v{t+5}, v{b0}, 9, v{t+5}
        v_lshl_add_u32 v{t+5}, v{tt}, 4, v{t+5}
        v_add_u32 v{AOM}, s{T2}, v{t+5}
        s_lshl_b32 s{T2}, s{sKH}, 18
        s_lshl_b32 s{T4}, s{sHEAD}, 9
        s_add_u32 s{T2}, s{T2}, s{T4}
        s_lshl_b32 s{T4}, s{sTB}, 7
        s_add_u32 s{T2}, s{T2}, s{T4}
        s_add_u32 s{T2}, s{T2}, {ORM:#x}
        v_lshlrev_b32 v{t+5}, 14, v{q}
        v_lshl_add_u32 v{t+5}, v{tt}, 3, v{t+5}
        v_add_u32 v{AOR}, s{T2}, v{t+5}
        s_lshr_b32 s{T2}, s{sHEAD}, 2
        s_lshl_b32 s{T2}, s{T2}, 11
        s_add_u32 s{T2}, s{T2}, {F4:#x}
        s_lshl_b32 s{T3}, s{sKH}, 10
        s_add_u32 s{T2}, s{T2}, s{T3}
        v_lshl_add_u32 v{AF4}, v{tt}, 6, s{T2}
        s_lshl_b32 s{T0}, s{sHEAD}, 6
        s_lshl_b32 s{T1}, s{sTB}, 4
        s_add_u32 s{T0}, s{T0}, s{T1}
        v_add_u32 v{t+5}, s{T0}, v{tt}
        v_lshlrev_b32 v{AG}, 2, v{t+5}
        v_add_u32 v{AG}, {GT:#x}, v{AG}
        v_mul_u32_u24 v{t+5}, 1280, v{t+5}
        v_lshl_add_u32 v{t+5}, v{q}, 3, v{t+5}
        s_mul_i32 s{T0}, s{sQB}, 160
        s_mul_i32 s{T1}, s{sKH}, 96
        s_add_u32 s{T0}, s{T0}, s{T1}
        v_add_u32 v{AOUT}, s{T0}, v{t+5}
        s_lshl_b32 s{T0}, s{sWAVE}, 12
        s_add_u32 s{T0}, s{T0}, {L_EX}
        v_add_u32 v{AEX}, s{T0}, v{L16}
        s_xor_b32 s{T0}, s{sWAVE}, 4
        s_lshl_b32 s{T0}, s{T0}, 12
        s_add_u32 s{T1}, s{T0}, {L_EX}
        v_add_u32 v{APX}, s{T1}, v{L16}
        s_lshl_b32 s{T1}, s{sKH}, 10
        s_add_u32 s{T1}, s{T1}, s{T0}
        s_add_u32 s{T1}, s{T1}, {L_EX}
        v_add_u32 v{AX2}, s{T1}, v{L16}
        v_lshl_add_u32 v{AYD}, v{q}, 2, v{r}
        v_lshl_add_u32 v{AYD}, v{AYD}, 7, v{c8}
        s_mul_i32 s{T0}, s{sKH}, {48*128}
        s_lshl_b32 s{T1}, s{sTB}, 5
        s_add_u32 s{T0}, s{T0}, s{T1}
        s_add_u32 s{T0}, s{T0}, {L_YD}
        v_add_u32 v{AYD}, s{T0}, v{AYD}""")
    def att_init_list(self):
        if self.o("ones", 2) == 12:
            return [f"v_mov_b32 v{O_+e}, 0" for e in range(16)] + [f"v_mov_b32 v{st+e}, 0x3f803f80" for st in VS for e in range(16)]
        return [f"v_mov_b32 v{O_+e}, 0" for e in range(16)] + [f"v_mov_b32 v{st+e}, v{ONES}" for st in VS for e in range(16)]

    def flag_reset(self):
        a = self.a
        L = a.newlabel("NOZ")
        a(f"s_cmp_lg_u32 s{sWAVE}, 0\ns_cbranch_scc1 {L}")
        a(f"""s_lshl_b32 s{T0}, s{sPI}, 6
        s_add_u32 s{T0}, s{T0}, {F1:#x}
        v_mov_b32 v12, s{T0}
        v_and_b32 v10, 3, v0
        v_lshlrev_b32 v11, 2, v10
        v_add_u32 v13, s{sCL}, v11
        s_mov_b32 s{sM}, 0xf
        s_mov_b32 s{sM+1}, 0
        v_cndmask_b32 v12, v12, v13, s[{sM}:{sM+1}]
        s_lshl_b32 s{T0}, s{sCH0}, 2
        s_add_u32 s{T0}, s{T0}, {F3:#x}
        v_add_u32 v13, s{T0}, v11
        s_lshl_b32 s{sM}, 16, s{sNCH}
        s_sub_u32 s{sM}, s{sM}, 16
        v_cndmask_b32 v12, v12, v13, s[{sM}:{sM+1}]
        s_lshl_b32 s{T0}, s{sQB}, 11
        s_lshl_b32 s{T1}, s{sHEAD}, 6
        s_add_u32 s{T0}, s{T0}, s{T1}
        s_add_u32 s{T0}, s{T0}, {F4:#x}
        v_mov_b32 v13, s{T0}
        s_mov_b32 s{sM}, 0x100
        v_cndmask_b32 v12, v12, v13, s[{sM}:{sM+1}]
        s_lshl_b32 s{T0}, s{sG}, 6
        s_add_u32 s{T0}, s{T0}, {F1 + 256*64:#x}
        v_mov_b32 v13, s{T0}
        s_cmp_lt_u32 s{sG}, 32
        s_cselect_b32 s{T1}, s{sNCH}, 0
        s_cmp_eq_u32 s{T1}, 2
        s_cselect_b32 s{sM}, 0x200, 0
        v_cndmask_b32 v12, v12, v13, s[{sM}:{sM+1}]
        v_mov_b32 v13, 0
        s_mov_b32 exec_lo, 0x3ff
        s_mov_b32 exec_hi, 0
        buffer_store_dword v13, v12, s[{rWS}:{rWS+3}], 0 offen sc1
        s_mov_b64 exec, 1""")
        self.srd(rA, pDBG, 256)
        a(f"""s_and_b32 s{T0}, s{sWG}, 1
        s_lshl_b32 s{T0}, s{T0}, 7
        v_mov_b32 v12, s{T0}
        v_mov_b32 v13, 1
        s_waitcnt vmcnt(0)
        buffer_atomic_add v13, v12, s[{rA}:{rA+3}], 0 offen sc1
        s_mov_b64 exec, -1""")
        a.label(L)

    XA, WA, XA2, WA2, EA = 2, 6, 128, 132, 136
    def gemm_compute(self):
        a = self.a
        XA, WA = self.XA, self.WA
        a.label("L_COMPUTE")
        if self.o("cpf", 1) == 1: self.code_prefetch()
        self.common_scalars()
        a(f"""s_lshl_b32 s{T0}, s{sJT}, 10
        s_lshl_b32 s{T1}, s{sRT}, 6
        s_add_u32 s{T0}, s{T0}, s{T1}
        s_add_u32 s{sCL}, s{T0}, {F2:#x}
        s_lshl_b32 s{T0}, s{sXCD}, 1
        s_add_u32 s{T0}, s{T0}, s{sI}
        s_sub_u32 s{T7}, s{T0}, 30
        s_lshl_b32 s{T0}, s{T7}, 6
        s_add_u32 s{T0}, s{T0}, {F5:#x}
        s_cmp_ge_u32 s{sI}, 30
        s_cselect_b32 s{sCL}, s{T0}, s{sCL}
        s_waitcnt lgkmcnt(0)""")
        self.srd(rWS, pWS, WS_SIZE)
        if self.stamps: a("v_mov_b32 v1, 0")
        self.stamp("start")
        if self.o("touch", 0): self.touch()
        if self.o("tlb", 0):
            L = a.newlabel("NOTLB")
            a(f"s_cmp_lg_u32 s{sWAVE}, 2\ns_cbranch_scc1 {L}")
            self.srd(rB, pOUT, 2048 * 1280); self.srd(rC, pWO, 640 * 1280)
            a(f"""v_lshlrev_b32 v10, 20, v0
            s_mov_b64 exec, 0xffff
            buffer_load_dword v31, v10, s[{rWS}:{rWS+3}], 0 offen sc1
            s_mov_b64 exec, 7
            buffer_load_dword v30, v10, s[{rB}:{rB+3}], 0 offen sc1
            s_mov_b64 exec, 1
            buffer_load_dword v29, v10, s[{rC}:{rC+3}], 0 offen
            s_mov_b64 exec, -1""")
            a.label(L)
        self.flag_reset()
        self.setup_call()
        for l in self.att_init_list():
            if int(l.split()[1][1:-1]) >= 192: a(l)
        a(f"s_cmp_eq_u32 s{sWAVE}, 0\ns_cbranch_scc1 L_C_NW\ns_waitcnt vmcnt(0)")
        a.label("L_C_NW")
        a(f"s_cmp_ge_u32 s{sI}, 30\ns_cbranch_scc1 L_C_NOTILE")
        a(f"""s_and_b32 s{T0}, s{sWAVE}, 1
        s_lshl_b32 s{T0}, s{T0}, 13
        v_and_b32 v8, 31, v0
        v_lshrrev_b32 v9, 5, v0
        v_lshrrev_b32 v10, 1, v8
        v_and_b32 v10, 7, v10
        v_xor_b32 v10, v10, v9
        v_lshlrev_b32 v8, 7, v8
        v_add_u32 v8, s{T0}, v8""")
        for ks in range(4):
            a(f"v_xor_b32 v11, {2*ks}, v10\nv_lshl_add_u32 v{XA+ks}, v11, 4, v8")
        a(f"""v_lshrrev_b32 v8, 2, v0
        v_and_b32 v8, 3, v8
        v_lshrrev_b32 v9, 5, v0
        v_lshl_add_u32 v9, v9, 3, v8
        v_lshlrev_b32 v9, 8, v9
        v_lshrrev_b32 v10, 4, v0
        v_and_b32 v10, 1, v10
        v_lshlrev_b32 v10, 1, v10
        v_lshrrev_b32 v11, 1, v0
        v_and_b32 v11, 1, v11
        v_or_b32 v10, v10, v11
        v_and_b32 v11, 1, v0
        v_lshlrev_b32 v11, 3, v11
        v_add_u32 v9, v9, v11
        v_add_u32 v9, {L_W}, v9
        s_and_b32 s{T0}, s{sWAVE}, 2""")
        for i in range(2):
            a(f"""s_add_u32 s{T1}, s{T0}, {i}
            v_xor_b32 v11, s{T1}, v8
            v_lshl_add_u32 v11, v11, 2, v10
            v_lshl_add_u32 v{WA+i}, v11, 4, v9""")
        def lowinit():
            for l in self.att_init_list():
                if int(l.split()[1][1:-1]) < 192: a(l)
        a(f"s_setprio {self.o('gprio', 3)}")
        a(f"s_cmp_ge_u32 s{sJT}, 10\ns_cbranch_scc1 L_C_VTILE")
        self.epi_qk_setup()
        self.gemm_loop(False, self.gemm_epi_qk, lowinit)
        a("s_branch L_C_FLAG")
        a.label("L_C_NOTILE")
        a(f"s_call_b64 s[{sRET}:{sRET+1}], L_SPARE")
        self.stamp("g.pre")
        self.sig_wait(8, 8)
        self.stamp("g.go")
        self.gate()
        lowinit()
        a("s_branch L_C_FLAG")
        a.label("L_C_VTILE")
        self.epi_v_setup()
        self.gemm_loop(True, self.gemm_epi_v, lowinit)
        a.label("L_C_FLAG")
        a.reset_counters()
        self.stamp("c.epi")
        L = a.newlabel("KVW")
        a(f"s_cmp_eq_u32 s{sWAVE}, 3\ns_cbranch_scc1 {L}")
        a("s_waitcnt vmcnt(0)")
        self.last_flag(12, 4, sCL, 2)
        self.stamp("c.F2set")
        a("s_branch L_ATT")
        a.label(L)
        self.kv_fetch_setup()
        a(f"buffer_load_dword v29, v28, s[{rC}:{rC+3}], 0 offen sc1")
        a("s_waitcnt vmcnt(0)")
        self.last_flag(12, 4, sCL, 2)
        self.kv_fetch()
        a("s_branch L_ATT")

    def touch(self):
        a = self.a
        L = a.newlabel("NOTCH")
        k0 = self.o("touch", 0)
        a(f"s_cmp_lg_u32 s{sWAVE}, 2\ns_cbranch_scc1 {L}\ns_cmp_ge_u32 s{sI}, 30\ns_cbranch_scc1 {L}")
        self.srd(rB, pX, 2048 * 1280); self.srd(rC, pW, 640 * 3840)
        a(f"""s_and_b32 s{T0}, s{sJT}, 7
        s_lshl_b32 s{T0}, s{T0}, 4
        s_lshl_b32 s{T1}, s{sRT}, 7
        s_add_u32 s{T0}, s{T0}, s{T1}
        v_and_b32 v10, 15, v0
        v_add_u32 v10, s{T0}, v10
        v_mul_u32_u24 v10, 1280, v10
        v_lshrrev_b32 v11, 4, v0
        v_lshl_add_u32 v10, v11, 7, v10
        s_and_b32 s{T0}, s{sRT}, 3
        s_lshl_b32 s{T0}, s{T0}, 4
        v_lshrrev_b32 v11, 1, v0
        v_and_b32 v11, 15, v11
        v_add_u32 v11, s{T0}, v11
        v_lshrrev_b32 v12, 5, v0
        v_lshl_add_u32 v11, v12, 6, v11
        v_mul_u32_u24 v11, 3840, v11
        v_and_b32 v12, 1, v0
        v_lshl_add_u32 v11, v12, 7, v11
        s_lshl_b32 s{T0}, s{sJT}, 8
        v_add_u32 v11, s{T0}, v11""")
        if self.o("tsleep", 0): a(f"s_sleep {self.o('tsleep', 0)}")
        def w(j, extra=0): a(f"s_mov_b32 s{T0}, {(k0 + 2*j)*64*3840 + extra}\nbuffer_load_dword v31, v11, s[{rC}:{rC+3}], s{T0} offen")
        def x(j): a(f"buffer_load_dword v31, v10, s[{rB}:{rB+3}], 0 offen offset:{(k0 + 4*j)*128}")
        n = 10 - k0
        for j in range((n + 1) // 2):
            w(j)
            if j % 2 == 0: x(j // 2)
        a(f"s_cmp_lg_u32 s{sJT}, 7\ns_cbranch_scc1 {L}\ns_bitcmp1_b32 s{sRT}, 1\ns_cselect_b32 s{T1}, {-32*3840}, {0}\ns_cselect_b32 s{T2}, 0, {32*3840}\ns_add_u32 s{T1}, s{T1}, s{T2}\nv_add_u32 v11, s{T1}, v11")
        for j in range((n + 1) // 2): w(j)
        a.label(L)
    def gate(self):
        a = self.a
        a.reset_counters()
        X, W, Z = 32, 12, 2
        self.srd(rA, pX, 2048 * 1280); self.srd(rB, pGW, 1280)
        a(f"""s_lshl_b32 s{T0}, s{T7}, 7
        s_lshl_b32 s{T1}, s{sWAVE}, 5
        s_add_u32 s{T6}, s{T0}, s{T1}
        v_lshrrev_b32 v10, 4, v0
        v_add_u32 v11, s{T6}, v10
        v_mul_u32_u24 v11, 1280, v11
        v_and_b32 v2, 15, v0
        v_lshlrev_b32 v3, 4, v2
        v_add_u32 v11, v11, v3""")
        for j in range(5): tw = a.vm(f"buffer_load_dwordx4 {vr(W+4*j,4)}, v3, s[{rB}:{rB+3}], 0 offen offset:{256*j}")
        tx = []
        for g in range(8):
            a(f"s_mov_b32 s{T0}, {5120*g}")
            for j in range(5): t = a.vm(f"buffer_load_dwordx4 {vr(X+20*g+4*j,4)}, v11, s[{rA}:{rA+3}], s{T0} offen offset:{256*j}")
            tx.append(t)
        a(f"""v_lshl_add_u32 v10, v2, 2, v10
        v_add_u32 v10, s{T6}, v10
        v_lshlrev_b32 v10, 2, v10
        v_add_u32 v10, {GT:#x}, v10
        v_mov_b32 v11, v2""")
        for g in range(8):
            a.wait(tw, tx[g])
            for e in range(20):
                a(f"v_dot2_f32_bf16 v{Z+g}, v{X+20*g+e}, v{W+e}, {'0' if e == 0 else f'v{Z+g}'}")
        a.nop(3)
        for sh in (8, 4, 2, 1):
            for g in range(8): a(f"v_add_f32_dpp v{Z+g}, v{Z+g}, v{Z+g} row_ror:{sh} row_mask:0xf bank_mask:0xf")
        for g in range(1, 8):
            a(f"v_cmp_eq_u32 vcc, {g}, v11\ns_nop 1\nv_cndmask_b32 v{Z}, v{Z}, v{Z+g}, vcc")
        a(f"""v_mul_f32 v{Z}, {f2u(-math.log2(math.e)):#x}, v{Z}
        v_exp_f32 v{Z}, v{Z}
        s_mov_b32 exec_lo, 0x00ff00ff
        v_add_f32 v{Z}, 1.0, v{Z}
        v_rcp_f32 v{Z}, v{Z}
        s_mov_b32 exec_hi, 0x00ff00ff
        buffer_store_dword v{Z}, v10, s[{rWS}:{rWS+3}], 0 offen sc1
        s_mov_b64 exec, -1""")

    def gemm_loop(self, vt, epi, fill):
        a = self.a
        a.reset_counters()
        FR, ACC = 32, 64
        def reads(s, ks):
            st = FR + 16 * (ks & 1); sl = s % NSLOT
            xa, wa, sl = (self.XA, self.WA, sl * 16384) if sl < 4 else (self.XA2, self.WA2, 0)
            rx = lambda j: (lambda: a.ds(f"ds_read_b128 {vr(st+4*j,4)}, v{xa+ks} offset:{sl + 4096*j}"))
            rw = lambda i, q: (lambda: a.ds(f"ds_read_b64_tr_b16 {vr(st+8+4*i+2*q,2)}, v{wa+i} offset:{sl + (16*ks+4*q)*256}"))
            if vt: return [("X0", rx(0)), ("W0", rw(0,0)), ("W0", rw(0,1)), ("W1", rw(1,0)), ("W1", rw(1,1)), ("X1", rx(1))]
            return [("W0", rw(0,0)), ("W0", rw(0,1)), ("X0", rx(0)), ("X1", rx(1)), ("W1", rw(1,0)), ("W1", rw(1,1))]
        def group(ks, toks, nxt, first):
            st = FR + 16 * (ks & 1); out = {}
            sched = [int(x) for x in self.o('gs', '3300')]; k = 0
            for m, (i, j) in enumerate(((0,0),(0,1),(1,0),(1,1))):
                if vt: A, B, na, nb = st + 4*i, st + 8 + 4*j, f"X{i}", f"W{j}"
                else:  A, B, na, nb = st + 8 + 4*i, st + 4*j, f"W{i}", f"X{j}"
                a.wait(toks[na], toks[nb])
                d = ACC + 16 * (2*i + j)
                a(f"v_mfma_f32_32x32x16_bf16 {vr(d,16)}, {vr(A,4)}, {vr(B,4)}, {'0' if first else vr(d,16)}")
                for _ in range(sched[m]):
                    if k < len(nxt): out[nxt[k][0]] = nxt[k][1](); k += 1
            return out
        a("s_barrier")
        toks = {}
        for n, f in reads(0, 0): toks[n] = f()
        for s in range(9):
            for ks in range(4):
                if ks < 3:
                    toks = group(ks, toks, reads(s, ks + 1), s == 0 and ks == 0)
                else:
                    a.wait_all(vm=False); a("s_barrier")
                    if s < 8: toks = group(ks, toks, reads(s + 1, 0), False)
        sets = (FR, 152, 168, 8)
        T = {}
        def rd(ks, nm):
            st = sets[ks]; sl = (9 % NSLOT) * 16384; k = int(nm[1])
            if nm[0] == "X": T[ks, nm] = a.ds(f"ds_read_b128 {vr(st+4*k,4)}, v{self.XA+ks} offset:{sl + 4096*k}")
            else:
                for q in range(2): T[ks, nm] = a.ds(f"ds_read_b64_tr_b16 {vr(st+8+4*k+2*q,2)}, v{self.WA+k} offset:{sl + (16*ks+4*q)*256}")
        na, nb = ("X", "W") if vt else ("W", "X")
        first = [(lambda ks=ks, nm=nm: rd(ks, nm)) for ks in range(4) for nm in (na + "0", nb + "0")]
        later = [(lambda ks=ks: rd(ks, nb + "1")) for ks in range(4)] + [(lambda ks=ks: rd(ks, na + "1")) for ks in range(4)]
        group(3, toks, [(f"f{i}", f) for i, f in enumerate(first[:6])], False)
        for f in first[6:]: f()
        off = lambda nm: 4 * int(nm[1]) + (0 if nm[0] == "X" else 8)
        pend = []
        for bi, (i, j) in enumerate(((0,0),(0,1),(1,0),(1,1))):
            d = ACC + 16 * (2*i + j)
            for ks in range(4):
                a.wait(T[ks, f"{na}{i}"], T[ks, f"{nb}{j}"])
                a(f"v_mfma_f32_32x32x16_bf16 {vr(d,16)}, {vr(sets[ks]+off(f'{na}{i}'),4)}, {vr(sets[ks]+off(f'{nb}{j}'),4)}, {vr(d,16)}")
                if bi < 2 and later: later.pop(0)()
                if bi >= 2:
                    n = -(-len(pend) // (4 - ks + (4 if bi == 2 else 0)))
                    for _ in range(min(n, 9)): pend.pop(0)()
            if bi == 1: pend += epi(0, 0)
            if bi == 1: pend += epi(0, 1)
            if bi == 2: last = epi(1, 0)
        for f in pend: f()
        for f in last: f()
        for f in epi(1, 1): f()
        fill()

    def epi_qk_setup(self):
        a = self.a
        sBASE, sHS, sPQ = T0, T1, T3
        a(f"""s_mov_b32 s{sHS}, {Q_HS}
        s_mov_b32 s{T4}, {Q_US}
        s_cmp_ge_u32 s{sJT}, 5
        s_cselect_b32 s{sHS}, {KV_HS}, s{sHS}
        s_cselect_b32 s{T4}, {KV_US}, s{T4}
        s_cselect_b32 s{sBASE}, {KV}, {QO:#x}
        s_cselect_b32 s{T5}, 5, 0
        s_cselect_b64 s[{sM}:{sM+1}], -1, 0
        s_cselect_b32 s{sSC}, 1.0, {f2u(math.log2(math.e) / math.sqrt(20.0)):#x}
        s_sub_u32 s{T5}, s{sJT}, s{T5}
        s_lshl_b32 s{sPQ}, s{T5}, 4
        s_and_b32 s{T5}, s{sWAVE}, 2
        s_lshl_b32 s{T5}, s{T5}, 2
        s_add_u32 s{sPQ}, s{sPQ}, s{T5}
        s_lshl_b32 s{T5}, s{sRT}, 1
        s_and_b32 s{T6}, s{sWAVE}, 1
        s_add_u32 s{T5}, s{T5}, s{T6}
        s_mul_i32 s{T5}, s{T5}, s{T4}
        s_add_u32 s{sBASE}, s{sBASE}, s{T5}
        v_and_b32 v8, 31, v0
        v_and_b32 v9, 0x13, v0
        v_and_b32 v10, 4, v0
        v_lshl_or_b32 v9, v10, 1, v9
        v_and_b32 v10, 8, v0
        v_lshrrev_b32 v10, 1, v10
        v_or_b32 v9, v9, v10
        v_cndmask_b32 v8, v8, v9, s[{sM}:{sM+1}]
        v_lshrrev_b32 v9, 5, v0
        v_lshlrev_b32 v10, 3, v9
        v_lshl_add_u32 v12, v8, 4, v10
        v_add_u32 v13, 1024, v12
        v_mul_lo_u32 v10, v9, s{sHS}
        v_lshl_add_u32 v14, v8, 3, v10
        v_add_u32 v14, 1024, v14
        v_add_u32 v15, 256, v14""")
        for p in range(8):
            a(f"""s_add_u32 s{T4}, s{sPQ}, {p}
            s_mul_i32 s{T5}, s{T4}, 205
            s_lshr_b32 s{T5}, s{T5}, 10
            s_mul_i32 s{T6}, s{T5}, 5
            s_sub_u32 s{T4}, s{T4}, s{T6}
            s_lshl_b32 s{T5}, s{T5}, 1
            s_mul_i32 s{T5}, s{T5}, s{sHS}
            s_add_u32 s{T5}, s{T5}, s{sBASE}
            s_lshl_b32 s{T6}, s{T4}, 9
            s_add_u32 s{T5}, s{T5}, s{T6}
            s_sub_u32 s{T6}, s{sHS}, 1536
            s_cmp_ge_u32 s{T4}, 3
            s_cselect_b32 s{T6}, s{T6}, 0
            s_add_u32 s{sE+p}, s{T5}, s{T6}
            s_cmp_eq_u32 s{T4}, 2
            s_cselect_b64 s[{sM}:{sM+1}], -1, 0""")
            for j in range(2): a(f"v_cndmask_b32 v{self.EA+2*p+j}, v{12+j}, v{14+j}, s[{sM}:{sM+1}]")
    def gemm_epi_qk(self, i, j):
        a = self.a; L = []
        for g in range(4):
            d = 64 + 16 * (2*i + j) + 4*g
            for e in range(4): L.append(lambda d=d, e=e: a(f"v_mul_f32 v{d+e}, s{sSC}, v{d+e}"))
            L.append(lambda d=d: a(f"v_cvt_pk_bf16_f32 v{d}, v{d}, v{d+1}"))
            L.append(lambda d=d: a(f"v_cvt_pk_bf16_f32 v{d+1}, v{d+2}, v{d+3}"))
            L.append(lambda d=d, g=g: a.vm(f"buffer_store_dwordx2 {vr(d,2)}, v{self.EA+2*(4*i+g)+j}, s[{rWS}:{rWS+3}], s{sE+4*i+g} offen sc1"))
        return L
    def epi_v_setup(self):
        a = self.a
        a(f"""s_sub_u32 s{T0}, s{sJT}, 10
        s_lshl_b32 s{T0}, s{T0}, 7
        s_and_b32 s{T1}, s{sWAVE}, 2
        s_lshl_b32 s{T1}, s{T1}, 5
        s_add_u32 s{T0}, s{T0}, s{T1}
        s_lshl_b32 s{T1}, s{sRT}, 1
        s_and_b32 s{T2}, s{sWAVE}, 1
        s_add_u32 s{T1}, s{T1}, s{T2}
        s_mul_i32 s{T1}, s{T1}, {KV_US}
        s_add_u32 s{sE}, s{T1}, {KV + 2560}
        s_mov_b32 s{T2}, {KV_HS - 320}
        v_and_b32 v8, 31, v0
        v_lshrrev_b32 v9, 5, v0
        v_mul_u32_u24 v9, 320, v9""")
        for j in range(2):
            a(f"""v_add_u32 v10, s{T0}, v8
            v_add_u32 v10, {32*j}, v10
            v_mul_u32_u24 v11, 3277, v10
            v_lshrrev_b32 v11, 16, v11
            v_mul_lo_u32 v11, v11, s{T2}
            v_lshl_add_u32 v10, v10, 4, v9
            v_add_u32 v{self.EA+j}, v10, v11""")
    def gemm_epi_v(self, i, j):
        a = self.a; L = []
        for s in range(2):
            d = 64 + 16 * (2*i + j) + 8*s
            for e in range(4): L.append(lambda d=d, e=e: a(f"v_cvt_pk_bf16_f32 v{d+e}, v{d+2*e}, v{d+2*e+1}"))
            L.append(lambda d=d, s=s: a.vm(f"buffer_store_dwordx4 {vr(d,4)}, v{self.EA+j}, s[{rWS}:{rWS+3}], s{sE} offen offset:{(2*i+s)*640} sc1"))
        return L

    XS, WS_, PA, PB, PW, PS, HA, HL = 2, 6, 10, 11, 12, 13, 14, 15
    KR_, VV_, SW_, HD_, DV_, PO_ = 16, 176, 116, 132, 156, 160
    def dma_setup(self):
        a = self.a
        a(f"""v_lshrrev_b32 v16, 3, v0
        v_and_b32 v17, 7, v0
        v_lshrrev_b32 v18, 1, v16
        s_lshl_b32 s{T0}, s{sRT}, 7
        v_add_u32 v16, s{T0}, v16
        v_mul_u32_u24 v16, 1280, v16""")
        for n in range(4):
            a(f"""v_xor_b32 v19, {(4*n) & 7}, v18
            v_xor_b32 v19, v19, v17
            v_lshl_add_u32 v19, v19, 4, v16
            v_add_u32 v{self.XS+n}, {n*(8*1280-1024)}, v19""")
        a(f"""v_lshrrev_b32 v16, 4, v0
        v_and_b32 v17, 15, v0
        v_lshlrev_b32 v18, 2, v16
        v_xor_b32 v17, v17, v18
        v_mul_u32_u24 v16, 3840, v16
        v_lshl_add_u32 v16, v17, 4, v16
        s_lshl_b32 s{T0}, s{sJT}, 8
        v_add_u32 v{self.WS_}, s{T0}, v16""")
        for n in range(1, 4): a(f"v_add_u32 v{self.WS_+n}, {n*(4*3840-1024)}, v{self.WS_}")
        if self.o("rc", ""):
            c1, c2, c3 = (int(x) for x in self.o("rc", "").split(","))
            a(f"""s_mul_i32 s{T0}, s{sJT}, {c1}
            s_and_b32 s{T1}, s{sRT}, 3
            s_mul_i32 s{T1}, s{T1}, {c2}
            s_add_u32 s{T0}, s{T0}, s{T1}
            s_lshr_b32 s{T1}, s{sRT}, 2
            s_mul_i32 s{T1}, s{T1}, {c3}
            s_add_u32 s{T0}, s{T0}, s{T1}
            s_mul_i32 s{T1}, s{T0}, 205
            s_lshr_b32 s{T1}, s{T1}, 11
            s_mul_i32 s{T1}, s{T1}, 10
            s_sub_u32 s{sK}, s{T0}, s{T1}""")
            assert all(((v*205) >> 11) == v // 10 for v in range(15*c1 + 3*c2 + 3*c3 + 1))
            return
        P = self.o("rot", 4)
        a(f"s_add_u32 s{T0}, s{sJT}, s{sRT}")
        if P == 1: a(f"s_mov_b32 s{sK}, 0")
        elif P == 2: a(f"s_and_b32 s{T0}, s{T0}, 1\ns_mul_i32 s{sK}, s{T0}, 5")
        elif P == 3: a(f"s_mul_i32 s{T1}, s{T0}, 43\ns_lshr_b32 s{T1}, s{T1}, 7\ns_mul_i32 s{T1}, s{T1}, 3\ns_sub_u32 s{T0}, s{T0}, s{T1}\ns_mul_i32 s{T0}, s{T0}, 7\ns_lshr_b32 s{sK}, s{T0}, 1")
        elif P == 4: a(f"s_and_b32 s{T0}, s{T0}, 3\ns_mul_i32 s{T0}, s{T0}, 5\ns_lshr_b32 s{sK}, s{T0}, 1")
    def stage_dma(self, s):
        a = self.a
        sl = (s % NSLOT) * 16384
        a(f"s_lshl_b32 s{T0}, s{sK}, 7\ns_mul_i32 s{T1}, s{sK}, {64*3840}")
        def ld(txt):
            if a.n["vm"] - a.done["vm"] >= 62: a.wait(Tok("vm", a.done["vm"] + 8))
            return a.vm(txt)
        for h in range(4):
            a(f"s_mov_b32 m0, {L_X + sl + 4096*h}")
            a(f"s_add_u32 s{T2}, s{T0}, {32*1280*h}")
            for n in range(4): ld(f"buffer_load_dwordx4 v{self.XS+n}, s[{rA}:{rA+3}], s{T2} offen offset:{1024*n}{' nt' if s < self.o('gnt0', 0) else ''} lds")
            a(f"s_mov_b32 m0, {L_W + sl + 4096*h}")
            a(f"s_add_u32 s{T2}, s{T1}, {16*3840*h}")
            for n in range(4): t = ld(f"buffer_load_dwordx4 v{self.WS_+n}, s[{rB}:{rB+3}], s{T2} offen offset:{1024*n}{' nt' if s < self.o('gnt0', 0) else ''} lds")
        a(f"s_add_u32 s{sK}, s{sK}, 1\ns_cmp_eq_u32 s{sK}, 10\ns_cselect_b32 s{sK}, 0, s{sK}")
        return t
    def conv_scalars(self):
        a = self.a
        a(f"""s_min_u32 s{T0}, s{sLW}, 2
        s_add_u32 s{sCH}, s{sCH0}, s{T0}
        s_min_u32 s{sCH}, s{sCH}, 639
        s_mul_i32 s{T0}, s{T0}, {CONV_SZ}
        s_add_u32 s{T6}, s{T0}, {L_CONV}
        s_lshl_b32 s{T1}, s{sCH}, 1
        v_mov_b32 v{self.DV_}, s{T1}
        s_lshl_b32 s{T1}, s{sCH}, 12
        v_lshl_add_u32 v{self.HA}, v0, 4, s{T1}
        v_lshl_add_u32 v{self.HL}, v0, 4, s{T6}""")
        self.srd(rD, pH, 640 * 4096)
        a(f"s_mov_b32 m0, s{T6}\ns_nop 0")
        if "h" not in self.o("ab", ""):
            for g in range(4): a.vm(f"buffer_load_dwordx4 v{self.HA}, s[{rD}:{rD+3}], 0 offen offset:{1024*g}{self.nt} lds")
        self.srd(rC, pD, 640 * 2)
        return a.vm(f"buffer_load_ushort v{self.DV_}, v{self.DV_}, s[{rC}:{rC+3}], 0 offen")
    def pre_setup(self):
        self.a(f"""s_and_b32 s{T0}, s{sU}, 63
        s_lshr_b32 s{T1}, s{sU}, 6
        s_lshl_b32 s{T5}, s{sPI}, 6
        s_add_u32 s{T5}, s{T5}, {F1:#x}
        s_lshl_b32 s{T0}, s{T0}, 5
        s_lshl_b32 s{T1}, s{T1}, 7
        v_lshrrev_b32 v16, 3, v0
        v_and_b32 v17, 7, v0
        v_lshl_add_u32 v16, v16, 2, s{T0}
        v_lshl_add_u32 v18, v17, 4, s{T1}
        v_mul_u32_u24 v19, 1280, v16
        v_add_u32 v{self.PB}, v19, v18
        v_subrev_u32 v{self.PA}, 3840, v{self.PB}
        v_lshlrev_b32 v{self.PW}, 2, v18
        v_lshlrev_b32 v18, 11, v18
        v_lshlrev_b32 v16, 1, v16
        v_sub_u32 v18, v18, v16
        v_add_u32 v{self.PS}, {UR + 4088:#x}, v18""")
    def pre_loads(self):
        a = self.a
        if "k" in self.o("ab", ""): return
        self.srd(rC, pK, 2048 * 1280); self.srd(rD, pV, 2048 * 1280); self.srd(rB, pSH, 640 * 8)
        for j in range(4): a(f"buffer_load_dwordx4 {vr(self.KR_+12+4*j,4)}, v{self.PB}, s[{rC}:{rC+3}], 0 offen offset:{1280*j}{self.nt}")
        for j in range(4): a(f"buffer_load_dwordx4 {vr(self.VV_+4*j,4)}, v{self.PB}, s[{rD}:{rD+3}], 0 offen offset:{1280*j}{self.nt}")
        for j in range(3): a(f"buffer_load_dwordx4 {vr(self.KR_+4*j,4)}, v{self.PA}, s[{rC}:{rC+3}], 0 offen offset:{1280*j}{self.nt}")
        for j in range(4): a(f"buffer_load_dwordx4 {vr(self.SW_+4*j,4)}, v{self.PW}, s[{rB}:{rB+3}], 0 offen offset:{16*j}")
    def h_loads(self, D):
        a = self.a
        if "h" in self.o("ab", ""): return
        for g in range(4):
            a.vm(f"buffer_load_dwordx4 {vr(D+6*g,4)}, v{self.HA}, s[{rD}:{rD+3}], 0 offen offset:{1024*g}{self.nt}")
            a.vm(f"buffer_load_dwordx2 {vr(D+6*g+4,2)}, v{self.HA}, s[{rD}:{rD+3}], 0 offen offset:{1024*g+16}{self.nt}")
    def bar(self):
        a = self.a; L = a.newlabel("NB")
        a(f"s_cmp_ge_u32 s{sBC}, s{sNB}\ns_cbranch_scc1 {L}\ns_barrier\ns_add_u32 s{sBC}, s{sBC}, 1")
        a.label(L)
    def bar_rest(self):
        a = self.a; L, D = a.newlabel("BR"), a.newlabel("BRD")
        a.label(L)
        a(f"s_cmp_ge_u32 s{sBC}, s{sNB}\ns_cbranch_scc1 {D}\ns_barrier\ns_add_u32 s{sBC}, s{sBC}, 1\ns_branch {L}")
        a.label(D)
    def ewait(self, n=1):
        a = self.a; L, L2, D = a.newlabel("EW"), a.newlabel("EX"), a.newlabel("EWD")
        a.label(L)
        a(f"s_mov_b32 s{T1}, {n}")
        a.label(L2)
        a(f"""s_getreg_b32 s{T0}, hwreg(HW_REG_IB_STS)
        s_and_b32 s{T0}, s{T0}, 0x00c0000f
        s_cbranch_scc0 {D}
        s_cmp_ge_u32 s{sBC}, s{sNB}
        s_cbranch_scc1 {D}""")
        if n > 1: a(f"s_sleep 1\ns_sub_u32 s{T1}, s{T1}, 1\ns_cmp_lg_u32 s{T1}, 0\ns_cbranch_scc1 {L2}")
        a(f"""s_barrier
        s_add_u32 s{sBC}, s{sBC}, 1
        s_branch {L}""")
        a.label(D)
        a("s_waitcnt vmcnt(0)")
    def epoll(self, loads, tmp, cmp=None):
        a = self.a
        L, D = a.newlabel("EP"), a.newlabel("EPD")
        a(f"s_mov_b32 s{sCNT}, 0")
        a.label(L)
        k = 0
        for (va, r, imm, wd) in loads:
            ins = {1: "buffer_load_dword", 2: "buffer_load_dwordx2", 4: "buffer_load_dwordx4"}[wd]
            a(f"{ins} {vr(tmp+k, wd)}, v{va}, s[{r}:{r+3}], 0 offen offset:{imm} sc1"); k += wd
        self.ewait()
        self.poll_check(tmp, k, cmp)
        a(f"s_cbranch_scc1 {D}")
        a(f"s_add_u32 s{sCNT}, s{sCNT}, 1\ns_cmp_lt_u32 s{sCNT}, {POLL_MAX}\ns_cbranch_scc0 {D}\ns_sleep 1\ns_branch {L}")
        a.label(D)
    def pre_compute_list(self):
        L = []
        K, V, W, AC = 76, 90, 98, 106
        lo = lambda d, s: L.append(f"v_lshlrev_b32 v{d}, 16, v{s}")
        hi = lambda d, s: L.append(f"v_and_b32 v{d}, 0xffff0000, v{s}")
        for p in range(4):
            for j in range(7): lo(K+2*j, self.KR_+4*j+p); hi(K+2*j+1, self.KR_+4*j+p)
            for j in range(4): lo(V+2*j, self.VV_+4*j+p); hi(V+2*j+1, self.VV_+4*j+p)
            w = self.SW_ + 4*p
            lo(W, w); lo(W+1, w+2); hi(W+2, w); hi(W+3, w+2); lo(W+4, w+1); lo(W+5, w+3); hi(W+6, w+1); hi(W+7, w+3)
            for lag in (3, 2, 1, 0):
                for t in range(4):
                    kk = K + 2*(3 + t - lag)
                    if self.o("pk", 1):
                        if lag == 3: L.append(f"v_pk_mul_f32 {vr(AC+2*t,2)}, {vr(kk,2)}, {vr(W+2*lag,2)}")
                        else: L.append(f"v_pk_fma_f32 {vr(AC+2*t,2)}, {vr(kk,2)}, {vr(W+2*lag,2)}, {vr(AC+2*t,2)}")
                    else:
                        for h in range(2):
                            if lag == 3: L.append(f"v_mul_f32 v{AC+2*t+h}, v{kk+h}, v{W+2*lag+h}")
                            else: L.append(f"v_fmac_f32 v{AC+2*t+h}, v{kk+h}, v{W+2*lag+h}")
            for t in range(4):
                if self.o("pk", 1): L.append(f"v_pk_mul_f32 {vr(AC+2*t,2)}, {vr(AC+2*t,2)}, {vr(V+2*t,2)}")
                else:
                    for h in range(2): L.append(f"v_mul_f32 v{AC+2*t+h}, v{AC+2*t+h}, v{V+2*t+h}")
            for h in range(2):
                o = self.PO_ + 4*p + 2*h
                L.append(f"v_cvt_pk_bf16_f32 v{o}, v{AC+6+h}, v{AC+4+h}"); L.append(f"v_cvt_pk_bf16_f32 v{o+1}, v{AC+2+h}, v{AC+h}")
        return L
    def pre_stores(self):
        a = self.a
        if "s" in self.o("ab", ""): return
        if not self.o("st4", 1):
            for e in range(8):
                a(f"s_mov_b32 s{T0}, {4096*e}")
                a(f"buffer_store_dwordx2 {vr(self.PO_+2*e,2)}, v{self.PS}, s[{rWS}:{rWS+3}], s{T0} offen sc1")
            return
        for e in range(8): a(f"ds_write_b64 v{(self.PA, self.PW)[e & 1]}, {vr(self.PO_+2*e,2)} offset:{64*(e & 6)}")
        for k in range(1, 4): a(f"v_xor_b32 v{76+k}, {32*k}, v{self.PB}")
        a("s_waitcnt lgkmcnt(0)")
        for k in range(4): a(f"ds_read_b128 {vr(self.PO_+4*k,4)}, v{76+k if k else self.PB} offset:{1024*k}")
        for k in range(4):
            a(f"s_mov_b32 s{T0}, {65536*k}\ns_waitcnt lgkmcnt({3-k})")
            a(f"buffer_store_dwordx4 {vr(self.PO_+4*k,4)}, v{self.PS}, s[{rWS}:{rWS+3}], s{T0} offen sc1")
    def pre_store_setup(self, spare=False):
        if not self.o("st4", 1): return
        assert (L_CONV + CONV_SZ + 2*CS) % 128 == 0 and CONV_SZ % 128 == 0 and (L_CONV + U_OFF) % 128 == 0
        if spare: self.a(f"s_lshl_b32 s{T0}, s{sWAVE}, 12")
        else: self.a(f"""s_mul_i32 s{T0}, s{sLW}, {CONV_SZ}
        s_add_u32 s{T0}, s{T0}, {L_CONV + 2*CS}
        s_cmp_eq_u32 s{sWAVE}, 7
        s_cselect_b32 s{T0}, {L_CONV + U_OFF}, s{T0}""")
        self.a(f"""v_and_b32 v76, 7, v0
        v_lshrrev_b32 v77, 3, v0
        v_sub_u32 v77, 7, v77
        v_lshrrev_b32 v78, 1, v77
        v_xor_b32 v78, v78, v76
        v_lshlrev_b32 v78, 4, v78
        v_and_b32 v77, 1, v77
        v_lshl_add_u32 v78, v77, 3, v78
        v_lshl_add_u32 v78, v76, 9, v78
        v_add_u32 v{self.PA}, s{T0}, v78
        v_xor_b32 v{self.PW}, 64, v{self.PA}
        v_lshrrev_b32 v76, 5, v0
        v_and_b32 v77, 31, v0
        v_xor_b32 v77, v77, v76
        v_lshlrev_b32 v77, 4, v77
        v_lshl_add_u32 v76, v76, 9, v77
        v_add_u32 v{self.PB}, s{T0}, v76
        s_lshr_b32 s{T1}, s{sU}, 6
        s_lshl_b32 s{T1}, s{T1}, 18
        s_and_b32 s{T0}, s{sU}, 63
        s_lshl_b32 s{T0}, s{T0}, 6
        s_sub_u32 s{T1}, s{T1}, s{T0}
        s_add_u32 s{T1}, s{T1}, {UR + 4032:#x}
        v_lshrrev_b32 v76, 2, v0
        v_lshlrev_b32 v76, 12, v76
        v_and_b32 v77, 3, v0
        v_lshl_add_u32 v76, v77, 4, v76
        v_add_u32 v{self.PS}, s{T1}, v76""")
    def h_valu(self, D, t0):
        L = [f"v_alignbit_b32 v{t0+e}, v{D+e+1}, v{D+e}, 16" for e in range(4)]
        L += [f"v_mov_b32 v{t0+4+e}, v{D+e+1}" for e in range(4)]
        return L + [f"v_alignbit_b32 v{t0+8+e}, v{D+e+2}, v{D+e+1}, 16" for e in range(4)]
    def h_writes(self, D, imm, t0):
        for r, src in enumerate((t0, t0 + 4, t0 + 8, D + 2)):
            self.a(f"ds_write_b128 v{self.HL}, {vr(src,4)} offset:{r*CS + imm}")
    def conv_prep(self, part):
        a = self.a
        HD, D = self.HD_, 112
        HA, UB, UE, YS = 16, 17, 18, 19
        if part == 0:
            for g in range(4):
                a(f"ds_read_b128 {vr(HD+6*g,4)}, v{self.HL} offset:{1024*g}")
                a(f"ds_read_b64 {vr(HD+6*g+4,2)}, v{self.HL} offset:{1024*g+16}")
            a(f"""v_lshrrev_b32 v22, 4, v0
            s_lshl_b32 s{T0}, s{sCH}, 12
            v_lshrrev_b32 v23, 2, v0
            v_and_b32 v23, 3, v23
            v_mul_u32_u24 v23, {CS}, v23
            v_lshl_add_u32 v23, v22, 4, v23
            v_and_b32 v24, 3, v0
            v_lshl_add_u32 v23, v24, 3, v23
            v_add_u32 v{HA}, s{T6}, v23
            v_and_b32 v23, 15, v0
            v_lshlrev_b32 v23, 5, v23
            v_lshlrev_b32 v24, 4, v22
            v_sub_u32 v24, v24, v23
            v_add_u32 v24, s{T6}, v24
            v_add_u32 v{UB}, {U_OFF + 480}, v24
            v_lshl_add_u32 v23, v22, 3, v23
            v_sub_u32 v24, s{T6}, v23
            v_add_u32 v{UE}, {U_OFF + 504}, v24
            s_add_u32 s{T0}, s{T0}, {YD:#x}
            v_add_u32 v{YS}, s{T0}, v23
            v_lshlrev_b32 v20, 16, v{self.DV_}""")
            for e in range(6): a(f"v_mov_b32 v{D+e}, 0")
            a("s_waitcnt lgkmcnt(0)")
            a(f"v_readlane_b32 s{T1}, v{HD}, 0\nv_readlane_b32 s{T2}, v{HD+1}, 0")
            for l in self.h_valu(HD, 64): a(l)
            a(f"v_writelane_b32 v{D+4}, s{T1}, 1\nv_writelane_b32 v{D+5}, s{T2}, 1")
        else:
            for g in range(1, 4):
                for l in self.h_valu(HD + 6*g, 64 + 12*g): a(l)
            for l in self.h_valu(D, 120): a(l)
    def h_store(self):
        a = self.a
        for g in range(4): self.h_writes(self.HD_ + 6*g, 32 + 1024*g, 64 + 12*g)
        a("s_mov_b32 exec_hi, 0")
        a(f"ds_write_b128 v{self.HL}, v[112:115] offset:{U_OFF + 4096}")
        a("s_mov_b64 exec, 3")
        self.h_writes(112, 0, 120)
        a("s_mov_b64 exec, -1")
        for d, r in ((2, 16), (3, 17), (4, 18), (5, 19), (7, 20)): a(f"v_mov_b32 v{d}, v{r}")

    def dma_role(self):
        a = self.a
        a.reset_counters()
        fine = self.o("fine", 0)
        self.dma_setup()
        a("s_waitcnt lgkmcnt(0)")
        self.srd(rA, pX, 2048 * 1280); self.srd(rB, pW, 640 * 3840)
        a(f"s_cmp_ge_u32 s{sI}, 30\ns_cbranch_scc1 L_D_SKIP")
        S = {0: self.stage_dma(0)}
        if self.o("s1early", 0): S[1] = self.stage_dma(1)
        a.label("L_D_SKIP")
        if self.stamps: a("v_mov_b32 v1, 0")
        self.stamp("start")
        self.srd(rWS, pWS, WS_SIZE)
        self.setup_call()
        a(f"s_cmp_ge_u32 s{sI}, 30\ns_cbranch_scc1 L_D_NT")
        if self.o("dprio", 0): a(f"s_setprio {self.o('dprio', 0)}")
        if not self.o("s1early", 0): S[1] = self.stage_dma(1)
        if self.o("hat", 0) == 0: self.conv_scalars()
        for s in range(10):
            a.wait(S[s])
            if fine: self.stamp(f"l.w{s}")
            a("s_barrier")
            if fine or s in (0, 5, 9): self.stamp(f"l.b{s}")
            if s + 2 <= 9 and "d" in self.o("ab", ""): S[s+2] = S[1]
            elif s + 2 <= 9:
                S[s+2] = self.stage_dma(s + 2)
                if fine: self.stamp(f"l.i{s}")
            if s == 8 and self.o("prep", 1): self.conv_prep(0)
            if s == 9 and self.o("prep", 1): self.conv_prep(1)
        a.label("L_CONV")
        self.conv()
    def side_role(self):
        a = self.a
        a.label("L_SIDE")
        a.reset_counters()
        a(f"""s_cmp_ge_u32 s{sI}, 30
        s_cbranch_scc1 L_S_NT
        s_lshr_b32 s{T0}, s{sLW}, 1
        s_lshl_b32 s{sU}, s{sPI}, 1
        s_add_u32 s{sU}, s{sU}, s{T0}
        s_mov_b32 s{T7}, {L_SIG}
        s_cmp_lg_u32 s{sWAVE}, 6
        s_cbranch_scc1 L_S_GO
        s_cmp_lt_u32 s{sG}, 32
        s_cselect_b32 s{T1}, s{sNCH}, 0
        s_cmp_lg_u32 s{T1}, 2
        s_cbranch_scc1 L_W6
        s_add_u32 s{sU}, s{sG}, 608
        s_add_u32 s{sPI}, s{sG}, 256
        s_mov_b32 s{sNU}, 1
        s_mov_b32 s{T7}, {L_SIG + 8}
        L_S_GO:""")
        slate = self.o("slate", 0)
        if slate: self.setup_call()
        self.pre_setup()
        a("s_waitcnt lgkmcnt(0)")
        if slate > 1: a(f"s_sleep {slate}")
        self.pre_loads()
        if self.o("hat", 0) == 0:
            L7 = a.newlabel("H7")
            a(f"s_cmp_ge_u32 s{sLW}, s{sNCH}\ns_cbranch_scc1 {L7}")
            self.conv_scalars()
            a.label(L7)
        if self.stamps: a("v_mov_b32 v1, 0")
        self.stamp("start")
        self.srd(rWS, pWS, WS_SIZE)
        if not slate: self.setup_call()
        a(f"""v_mov_b32 v44, {L_SIG}
        v_mov_b32 v46, 0
        v_mov_b32 v47, 0
        ds_write_b64 v44, v[46:47]
        ds_write_b64 v44, v[46:47] offset:8
        ds_write_b32 v44, v46 offset:16
        v_and_b32 v46, 1, v0
        v_lshlrev_b32 v46, 7, v46
        s_waitcnt lgkmcnt(0)""")
        self.pre_store_setup()
        self.bar()
        self.ewait(self.o("espin0", 1))
        self.stamp("s.kv")
        if self.o("sprio", 0): a(f"s_setprio {self.o('sprio', 0)}")
        PC = self.pre_compute_list()
        nch = self.o("nchunk", 2)
        per = -(-len(PC) // nch)
        for c in range(nch):
            for l in (PC[c*per:(c+1)*per] if "v" not in self.o("ab", "") else []): a(l)
            if c < nch - 1 or self.o("barst", 1): self.bar()
        self.pre_stores()
        if self.o("hat", 0) == 1:
            L7 = a.newlabel("H7")
            a(f"s_cmp_ge_u32 s{sLW}, s{sNCH}\ns_cbranch_scc1 {L7}")
            self.conv_scalars()
            a.label(L7)
        self.srd(rC, pDBG, 256)
        a(f"buffer_load_dword v47, v46, s[{rC}:{rC+3}], 0 offen sc1")
        self.stamp("s.st")
        self.ewait(self.o("espin", 1))
        self.last_flag(8, f"s{sNU}", T5, 114, base=f"s{T7}")
        self.stamp("s.F1set")
        a(f"s_cmp_eq_u32 s{sWAVE}, 7\ns_cbranch_scc1 L_FETCH\ns_cmp_eq_u32 s{sWAVE}, 6\ns_cbranch_scc1 L_IDLE2")
        a.label("L_PREP")
        if self.o("prep", 1):
            self.bar()
            self.conv_prep(0)
            self.bar()
            self.conv_prep(1)
        self.bar_rest()
        a("s_branch L_CONV")
        a.label("L_W6")
        a("s_waitcnt lgkmcnt(0)")
        a(f"s_cmp_lt_u32 s{sNCH}, 3\ns_cbranch_scc1 L_IDLE")
        self.conv_scalars()
        if self.stamps: a("v_mov_b32 v1, 0")
        self.stamp("start")
        self.srd(rWS, pWS, WS_SIZE)
        self.setup_call()
        self.bar()
        self.ewait()
        a("s_branch L_PREP")
        a.label("L_IDLE")
        if self.stamps: a("v_mov_b32 v1, 0")
        self.stamp("start")
        self.srd(rWS, pWS, WS_SIZE)
        self.setup_call()
        a.label("L_IDLE2")
        for l in self.att_init_list(): a(l)
        self.bar_rest()
        a("s_branch L_ATT")
        a.label("L_S_NT")
        a("s_waitcnt lgkmcnt(0)")
        if self.stamps: a("v_mov_b32 v1, 0")
        self.stamp("start")
        self.srd(rWS, pWS, WS_SIZE)
        self.setup_call()
        a.label("L_D_NT")
        a(f"s_call_b64 s[{sRET}:{sRET+1}], L_SPARE")
        a(f"s_mov_b32 s{sBC}, 1\ns_branch L_IDLE2")
        a.label("L_SPARE")
        a(f"""s_sub_u32 s{T0}, s{sPI}, 180
        s_lshl_b32 s{T0}, s{T0}, 3
        s_add_u32 s{sU}, s{T0}, s{sWAVE}""")
        self.pre_setup()
        self.pre_loads()
        a(f"""v_mov_b32 v44, {L_SIG}
        v_mov_b32 v46, 0
        v_mov_b32 v47, 0
        ds_write_b64 v44, v[46:47]
        ds_write_b64 v44, v[46:47] offset:8
        s_waitcnt lgkmcnt(0)
        s_barrier""")
        a.label("L_SPARE2")
        self.pre_store_setup(spare=True)
        a("s_waitcnt vmcnt(0)")
        for l in PC: a(l)
        self.pre_stores()
        a.label("L_SPARE3")
        a("s_waitcnt vmcnt(0)")
        self.last_flag(8, f"s{sNU}", T5, 114)
        a(f"s_setpc_b64 s[{sRET}:{sRET+1}]")
        self.fetcher()

    def fetcher(self):
        a = self.a
        a.label("L_FETCH")
        a.reset_counters()
        OK = a.newlabel("CNTOK")
        a("s_setprio 0")
        self.poll_check(47, 1, cmp="v_cmp_le_u32 vcc, 0x80, v47")
        a(f"s_cbranch_scc1 {OK}")
        self.epoll([(46, rC, 0, 1)], 47, cmp="v_cmp_le_u32 vcc, 0x80, v47")
        a.label(OK)
        a(f"""s_andn2_b32 s{T1}, s{sCH0}, 63
        s_add_u32 s{T2}, s{sCH0}, s{sNCH}
        s_sub_u32 s{T2}, s{T2}, 1
        s_or_b32 s{T2}, s{T2}, 63""")
        for r in (T1, T2):
            a(f"""s_lshr_b32 s{T3}, s{r}, 3
            s_add_u32 s{T3}, s{T3}, 180
            s_lshr_b32 s{T4}, s{r}, 1
            s_cmp_ge_u32 s{r}, 480
            s_cselect_b32 s{T4}, s{T3}, s{T4}
            s_sub_u32 s{T3}, s{r}, 352
            s_cmp_ge_u32 s{r}, 608
            s_cselect_b32 s{r}, s{T3}, s{T4}""")
        a(f"""v_add_u32 v9, s{T1}, v0
        v_min_u32 v9, s{T2}, v9
        v_lshlrev_b32 v9, 6, v9
        v_add_u32 v9, {F1:#x}, v9""")
        if self.o("pgate", 9):
            LG, LD = a.newlabel("PG"), a.newlabel("PGD")
            a.label(LG)
            a(f"s_cmp_ge_u32 s{sBC}, {self.o('pgate', 9)}\ns_cbranch_scc1 {LD}\ns_cmp_ge_u32 s{sBC}, s{sNB}\ns_cbranch_scc1 {LD}\ns_barrier\ns_add_u32 s{sBC}, s{sBC}, 1\ns_branch {LG}")
            a.label(LD)
        if "p" not in self.o("ab", ""): self.mpoll([9], 16, elastic=True)
        self.stamp("f.F1ok")
        a(f"s_lshl_b32 s{T2}, s{sCH0}, 12\ns_add_u32 s{T2}, s{T2}, {UR:#x}")
        for c in range(3 if "u" not in self.o("ab", "") else 0):
            L = a.newlabel("NOU")
            if c == 2: a(f"s_cmp_lt_u32 s{sNCH}, 3\ns_cbranch_scc1 {L}")
            a(f"s_mov_b32 m0, {L_CONV + c*CONV_SZ + U_OFF}\ns_add_u32 s{T1}, s{T2}, {4096*c}")
            for j in range(4): a(f"buffer_load_dwordx4 v{L16}, s[{rWS}:{rWS+3}], s{T1} offen offset:{1024*j} sc1 lds")
            if c == 2: a.label(L)
        a("v_mov_b32 v45, 1")
        self.ewait()
        a("ds_write_b32 v44, v45")
        self.stamp("f.u")
        self.bar_rest()
        for l in self.att_init_list(): a(l)
        a("s_branch L_ATT")
    def kv_fetch(self):
        a = self.a
        a.reset_counters()
        OK = a.newlabel("CNTOK")
        self.poll_check(29, 1, cmp="v_cmp_le_u32 vcc, 0x80, v29")
        a(f"s_cbranch_scc1 {OK}")
        self.poll([(28, rC, 0, 1)], 29, cmp="v_cmp_le_u32 vcc, 0x80, v29")
        a.label(OK)
        self.sig_wait(12, 4)
        self.sig_wait(8, f"s{sNU}")
        self.mpoll([30, 31], 16)
        self.stamp("f.F2ok")
        a(f"""s_mul_i32 s{T0}, s{sHEAD}, {Q_HS}
        s_mul_i32 s{T1}, s{sQB}, {4*Q_US}
        s_add_u32 s{T0}, s{T0}, s{T1}
        s_add_u32 s{T0}, s{T0}, {QO:#x}""")
        def lin(sbase, lds0, n):
            T = []
            for k in range(n):
                if k % 4 == 0: a(f"s_mov_b32 m0, {lds0 + 1024*k}\ns_add_u32 s{T1}, s{sbase}, {1024*k}")
                T.append(a.vm(f"buffer_load_dwordx4 v{L16}, s[{rWS}:{rWS+3}], s{T1} offen offset:{1024*(k%4)} sc1 lds"))
            return T
        if self.o("kv3", 1):
            lin(T0, L_Q, 10)
            T = lin(sKVB, 0, 40)
            a(f"v_mov_b32 v16, {L_SIG}\nv_mov_b32 v17, 1\nv_mov_b32 v18, 2")
            a.wait(T[9]); a("ds_write_b32 v16, v17 offset:4")
            a.wait(T[19]); a("ds_write_b32 v16, v18 offset:4")
        else:
            lin(T0, L_Q, 10)
            lin(sKVB, 0, 40)
            a(f"v_mov_b32 v16, {L_SIG}\nv_mov_b32 v17, 3")
            a.wait_all()
            a("ds_write_b32 v16, v17 offset:4")
        self.stamp("f.kv0")
    def kv_fetch_setup(self):
        a = self.a
        self.srd(rC, pDBG, 256)
        a(f"""s_mul_i32 s{T0}, s{sHEAD}, 20
        v_and_b32 v28, 15, v0
        v_lshrrev_b32 v30, 4, v0
        v_and_b32 v31, 1, v30
        v_mul_u32_u24 v31, 19, v31
        v_add_u32 v31, s{T0}, v31
        v_lshrrev_b32 v31, 7, v31
        v_lshrrev_b32 v30, 1, v30
        v_mul_u32_u24 v30, 5, v30
        v_add3_u32 v30, v30, v31, 5
        v_lshl_add_u32 v30, v30, 4, v28
        v_lshlrev_b32 v30, 6, v30
        v_add_u32 v30, {F2:#x}, v30
        v_lshl_add_u32 v31, v31, 4, s{sQB}
        v_add_u32 v31, s{sQB}, v31
        v_and_b32 v28, 1, v0
        v_add_u32 v31, v31, v28
        v_lshlrev_b32 v31, 6, v31
        v_add_u32 v31, {F2:#x}, v31
        v_lshlrev_b32 v28, 7, v28""")

    def sig_check(self, off, thr, tok):
        a = self.a
        OK = a.newlabel("SOK")
        a.wait(tok)
        a(f"v_readfirstlane_b32 s{T0}, v15\ns_nop 0\ns_cmp_ge_u32 s{T0}, {thr}\ns_cbranch_scc1 {OK}")
        self.sig_wait(off, thr)
        a.label(OK)
    def sig_wait(self, off, thr=1):
        a = self.a
        L, D = a.newlabel("SIG"), a.newlabel("SIGD")
        a(f"v_mov_b32 v14, {L_SIG}\ns_mov_b32 s{sCNT}, 0")
        a.label(L)
        a(f"""ds_read_b32 v15, v14 offset:{off}
        s_waitcnt lgkmcnt(0)
        v_readfirstlane_b32 s{T0}, v15
        s_add_u32 s{sCNT}, s{sCNT}, 1
        s_cmp_ge_u32 s{T0}, {thr}
        s_cbranch_scc1 {D}
        s_sleep 1
        s_cmp_lt_u32 s{sCNT}, {POLL_MAX*40}
        s_cbranch_scc1 {L}""")
        a.label(D)
    def conv(self):
        a = self.a
        a.reset_counters()
        ACC, FR = 16, 64
        HA, UB, UE, YS, DV = 2, 3, 4, 5, self.DV_
        a(f"s_setprio {self.o('hprio', 0)}")
        if not self.o("prep", 1): self.conv_prep(0); self.conv_prep(1)
        self.h_store()
        self.stamp("v.h")
        self.sig_wait(0)
        a(f"s_setprio {self.o('cprio', 3)}")
        a.reset_counters()
        def reads(rho):
            st = FR + 64 * (rho & 1)
            ra = lambda i, q: (lambda: a.ds(f"ds_read_b64_tr_b16 {vr(st+4*i+2*q,2)}, v{HA} offset:{64*(8*i+rho) + 8*q}"))
            rb = lambda d: (lambda: a.ds(f"ds_read_b128 {vr(st+32+4*d,4)}, v{UB} offset:{64*(56 - (8*d - rho))}"))
            L = [("A0", ra(0,0)), ("A0", ra(0,1))] + [(f"B{d}", rb(d)) for d in range(8)]
            for i in range(1, 8): L += [(f"A{i}", ra(i,0)), (f"A{i}", ra(i,1))]
            return L
        toks = {}
        for n, f in reads(0): toks[n] = f()
        self.stamp("v.u")
        init = self.att_init_list()
        for rho in range(8):
            st = FR + 64 * (rho & 1)
            nxt = reads(rho + 1) if rho < 7 else []
            out = {}; k = 0; m = 0
            for i in range(8):
                for c in range(i, 8):
                    a.wait(toks[f"A{i}"], toks[f"B{c-i}"])
                    d = ACC + 4 * c
                    a(f"v_mfma_f32_16x16x32_bf16 {vr(d,4)}, {vr(st+4*i,4)}, {vr(st+32+4*(c-i),4)}, {'0' if (rho == 0 and i == 0) else vr(d,4)}")
                    m += 1
                    if m >= 4 and k < len(nxt): out[nxt[k][0]] = nxt[k][1](); k += 1
                    elif m >= 28 and init: a(init.pop())
            assert k == len(nxt)
            toks = out
        assert not init
        self.stamp("v.mfma")
        tu = [a.ds(f"ds_read_b64 {vr(FR+2*c,2)}, v{UE} offset:{512*(7-c)}") for c in range(8)]
        for c in range(8):
            a.wait(tu[c])
            d, u, t = ACC + 4*c, FR + 2*c, FR + 32 + 8*(c & 3)
            a(f"""v_and_b32 v{t}, 0xffff0000, v{u+1}
            v_lshlrev_b32 v{t+1}, 16, v{u+1}
            v_and_b32 v{t+2}, 0xffff0000, v{u}
            v_lshlrev_b32 v{t+3}, 16, v{u}""")
            for e in range(4): a(f"v_fmac_f32 v{d+e}, v7, v{t+e}")
            a(f"v_cvt_pk_bf16_f32 v{t+4}, v{d}, v{d+1}\nv_cvt_pk_bf16_f32 v{t+5}, v{d+2}, v{d+3}")
            a.vm(f"buffer_store_dwordx2 {vr(t+4,2)}, v{YS}, s[{rWS}:{rWS+3}], 0 offen offset:{512*c} sc1")
        self.stamp("v.st")

    def m2b(self, S, j=1): self.a(f"v_mfma_f32_32x32x4_2b_bf16 {vr(S,32)}, {vr(KRM,2)}, {vr((QR2, QR)[j],2)}, 0")
    def mqk(self, S, h, j=1): self.a(f"v_mfma_f32_32x32x16_bf16 {vr(S+16*h,16)}, {vr(KM+4*h,4)}, {vr((QM2, QM)[j],4)}, {vr(S+16*h,16)}")
    def smf(self, V, P, j=1): self.a(f"v_smfmac_f32_32x32x32_bf16 {vr((O2, O_)[j],16)}, {vr(V,4)}, {vr(P,8)}, v{IDX}")
    def side_kv(self, add):
        a = self.a
        def mk(j):
            def f():
                if j == 0: a(f"s_add_u32 m0, s{sKVW}, {add*KV_US}\ns_add_u32 s{T5}, s{sKVG}, {add*KV_US}")
                if j == 4: a(f"s_add_u32 m0, m0, 4096\ns_add_u32 s{T5}, s{T5}, 4096")
                a.vm(f"buffer_load_dwordx4 v{L16}, s[{rWS}:{rWS+3}], s{T5} offen offset:{1024*(j%4)} sc1 lds")
            return f
        return [mk(j) for j in range(5)]
    def side_wo(self):
        a = self.a
        def mk(k):
            def f():
                L = a.newlabel("NOWO")
                if k == 0: a(f"s_mul_i32 s{T4}, s{sWAVE}, {13*1024}\ns_add_u32 m0, s{T4}, {L_WO}")
                else: a("s_add_u32 m0, m0, 1024")
                if k % 5 == 0: a(f"s_mov_b32 s{T5}, {40960*(k//5)}")
                elif k < 9: a("s_nop 0")
                if k >= 9: a(f"s_cmp_eq_u32 s{sWAVE}, 7\ns_cbranch_scc1 {L}")
                a.vm(f"buffer_load_dwordx4 v{WOV + k%5}, s[{rA}:{rA+3}], s{T5} offen lds")
                if k >= 9: a.label(L)
            return f
        return [mk(k) for k in range(13)]
    def side_yd(self):
        a = self.a
        def f0():
            OK = a.newlabel("F3OK")
            a.wait(self.tF3)
            self.poll_check(F3T, 2)
            a(f"s_cbranch_scc1 {OK}")
            snap = a.snapshot(); self.poll([(AF3, rWS, 0, 2)], F3T); a.restore(snap)
            a.label(OK)
            a(f"s_mul_i32 s{T5}, s{sWAVE}, 1280\ns_add_u32 m0, s{T5}, {L_YD}\ns_mov_b32 s{T5}, {8*4096 - 1024}")
            a.vm(f"buffer_load_dwordx4 v{YDV}, s[{rWS}:{rWS+3}], 0 offen sc1 lds")
            a("s_mov_b64 exec, 0xffff")
            a.vm(f"buffer_load_dwordx4 v{YDV}, s[{rWS}:{rWS+3}], s{T5} offen offset:1024 sc1 lds")
            a("s_mov_b64 exec, -1")
        return [f0]
    def side_x(self):
        a = self.a
        def mk(j):
            def f():
                if j == 0: self.srd(rA, pX, 2048 * 1280)
                a.vm(f"buffer_load_dwordx2 {vr(XE+2*j,2)}, v{AOUT}, s[{rA}:{rA+3}], 0 offen offset:{32*j}")
            return f
        def f3(): self.tF3 = a.vm(f"buffer_load_dwordx2 {vr(F3T,2)}, v{AF3}, s[{rWS}:{rWS+3}], 0 offen sc1")
        return [mk(j) for j in range(3)] + [f3]
    def attention(self):
        a = self.a
        self.a.lines.append('; ---- attention: S^T = K Q^T (Q pre-scaled by log2(e)/sqrt(20)), P = exp2(S), O^T += V^T P^T; a ones row in V^T gives the row sum.')
        a.label("L_ATT")
        a.reset_counters()
        self.sig_wait(4)
        self.stamp("att0")
        US2 = 2 * KV_US
        base = {"K": 0, "V": 0}
        def bump(kind, u):
            while u * US2 - base[kind] > 5 * US2:
                base[kind] += 6 * US2
                for r in ((AKM, AKR) if kind == "K" else (AV,)): a(f"v_add_u32 v{r}, {6*US2}, v{r}")
            return u * US2 - base[kind]
        def rKR(u): o = bump("K", u); return a.ds(f"ds_read_b64 {vr(KRM,2)}, v{AKR} offset:{o}")
        def rKM(u, h): o = bump("K", u); return a.ds(f"ds_read_b128 {vr(KM+4*h,4)}, v{AKM} offset:{o + 1024*h}")
        def rV(u):
            o = bump("V", u)
            a(f"s_mov_b64 exec, s[{sVMASK}:{sVMASK+1}]")
            for g in range(4): t = a.ds(f"ds_read_b128 {vr(VS[u&1]+4*g,4)}, v{AV} offset:{o + 640*g}")
            a("s_mov_b64 exec, -1")
            return t
        tq = [a.ds(f"ds_read_b64 {vr(QR2,2)}, v{AQR2} offset:2048")]
        tKR = rKR(0)
        tq.append(a.ds(f"ds_read_b128 {vr(QM2,4)}, v{AQM2}"))
        tK0 = rKM(0, 0); tK1 = rKM(0, 1)
        tq.append(a.ds(f"ds_read_b64 {vr(QR,2)}, v{AQR} offset:2048"))
        tq.append(a.ds(f"ds_read_b128 {vr(QM,4)}, v{AQM}"))
        tV = {0: rV(0)}
        side = self.side_kv(8)
        a.wait(tq[0], tKR); self.m2b(S_, 0)
        for _ in range(4): side.pop(0)()
        for e in range(16): a(f"v_mov_b32 v{O2+e}, 0")
        a.wait(tq[1], tK0); self.mqk(S_, 0, 0)
        a.wait(tK1); self.mqk(S_, 1, 0)
        side.pop(0)()
        if self.o("kv3", 1):
            self.sig_check(4, 2, a.ds("ds_read_b32 v15, v14 offset:4")); a.nop(2)
        else: a.nop(8)
        zones = {0: self.o("z0", "2,4"), 6: self.o("z1", "3,5,7"), 14: self.o("z1", "3,5,7"), 22: self.o("z3", "3,5,7"), 30: self.o("z4", "1")}
        if self.o("nob30", 0): del zones[30]
        prio = {}
        if self.o("prio", 1):
            for u0, z in zones.items():
                zz = [int(x) for x in z.split(",")]
                prio[u0] = len(zz)
                for k, d in enumerate(zz): prio[u0 + d] = len(zz) - 1 - k
        for t in range(32):
            if t % 8 == 6 and t < 30:
                assert not side
                side = self.att_sync(t // 8)
            if t == 1 and self.o("kv3", 1):
                L3 = a.newlabel("N3")
                a(f"s_cmp_lg_u32 s{sWAVE}, 3\ns_cbranch_scc1 {L3}\nv_mov_b32 v15, 3\ns_waitcnt vmcnt(5)\nds_write_b32 v14, v15 offset:4")
                a.label(L3)
            if t == 2 and self.o("kv3", 1): self.sig_check(4, 3, tsig)
            if t == 30 and not self.o("nob30", 0): a("s_barrier")
            if t in prio: a(f"s_setprio {prio[t]}")
            u, j = t >> 1, t & 1
            X, Y = S_ + 32 * j, S_ + 32 * (1 - j)
            Vc, Vp = VS[u & 1], VS[((t - 1) >> 1) & 1]
            nx = t < 31
            rl = j == 0 and u < 15
            P = [int(x) for x in self.o("pos", "2,6,14,18,22,26,30").split(",")]
            SP = [int(x) for x in self.o("spos", "10,20").split(",")]
            for p in range(32):
                if p == P[0]:
                    if t == 0: a.wait(tq[2])
                    if j == 1 and nx: a.wait(tKR)
                    if t > 0: self.smf(Vp + 12, Y + 24, 1 - j)
                    if rl and self.o("vpos", -1) < 0: tV[u+1] = rV(u + 1)
                if p == self.o("vpos", -1) and rl: tV[u+1] = rV(u + 1)
                if p == P[1] and nx:
                    self.m2b(Y, 1 - j)
                    if rl: tKR = rKR(u + 1)
                if t == 1 and p == 24 and self.o("kv3", 1): tsig = a.ds("ds_read_b32 v15, v14 offset:4")
                if p in SP and side: side.pop(0)()
                if t == 31 and p in (16, 20, 24): a.ds(f"ds_write_b128 v{AEX}, {vr(O2+(p-16),4)} offset:{256*(p-16)}")
                if t == 31 and p == 28: a.ds(f"ds_write_b32 v{AEX}, v{O2+12} offset:3072")
                if p == P[2]: a.wait(tV[u]); self.smf(Vc, X, j)
                if p == P[3]: self.smf(Vc + 4, X + 8, j)
                if p == P[4] and nx:
                    a.wait(tK0, tK1, tq[3]); self.mqk(Y, 0, 1 - j)
                    if rl: tK0 = rKM(u + 1, 0)
                if p == P[5]: self.smf(Vc + 8, X + 16, j)
                if p == P[6] and nx:
                    self.mqk(Y, 1, 1 - j)
                    if rl: tK1 = rKM(u + 1, 1)
                a(f"v_exp_f32 v{X+p}, v{X+p}")
        assert not side
        a.nop(2)
        self.smf(VS[1] + 12, S_ + 32 + 24, 1)
        self.stamp("attend")
        a("s_setprio 0")
        a.wait_all(vm=False)
        a("s_barrier")
        tl = a.ds(f"ds_read_b32 v{O2+12}, v{APX} offset:3072")
        tp = [a.ds(f"ds_read_b128 {vr(O2+4*k,4)}, v{APX} offset:{1024*k}") for k in range(3)]
        self.fin_pre()
        a.nop(1)
        a.wait(tl); a(f"v_add_f32 v{O_+12}, v{O_+12}, v{O2+12}")
        for k in range(3):
            a.wait(tp[k])
            for e in range(4): a(f"v_add_f32 v{O_+4*k+e}, v{O_+4*k+e}, v{O2+4*k+e}")
    def att_sync(self, k):
        a = self.a
        if k == 0:
            a.wait_all(vm=True, ds=False, force=True)
            L = a.newlabel("NOF3")
            a(f"s_cmp_ge_u32 s{sLW}, s{sNCH}\ns_cbranch_scc1 {L}")
            a(f"s_lshl_b32 s{T0}, s{sCH}, 2\ns_add_u32 s{T0}, s{T0}, {F3:#x}")
            self.flag_store(T0, 14)
            a.label(L)
            a("s_barrier")
            self.stamp("sync0")
            return self.side_kv(16) + self.side_kv(24)
        if k == 1:
            a.wait_all(vm=True, ds=False, force=True)
            a("s_barrier")
            self.stamp("sync1")
            return self.side_x()
        a("s_barrier")
        self.stamp("sync2")
        self.srd(rA, pWO, 640 * 1280)
        return self.side_yd() + self.side_wo()

    def fin_pre(self):
        self.a(f"""v_lshlrev_b32 v2, 3, v0
        s_mov_b32 s{T2}, {f2u(2.0**-60):#x}
        s_mov_b32 s{T3}, {f2u(2.0**60):#x}
        s_mov_b32 s{T4}, 0x7f7fffff""")
    def finish(self):
        a = self.a
        O, TMP = O_, 16
        ACC, OF, WF, GG = 224, 16, 56, 14
        self.a.lines.append('; ---- softmax guard: the loop above shifts by 0 instead of the row max. That is exact as long as the row sum l lies in [2^-60, 2^60]')
        self.a.lines.append(';      and O is finite (no exponential overflowed, none that matters underflowed). Otherwise this wave redoes its rows at L_SLOW')
        a.label("L_NORM")
        a(f"v_rcp_f32 v{TMP+4}, v{O+12}")
        a(f"v_cmp_le_f32 vcc, s{T2}, v{O+12}\nv_cmp_ge_f32 s[{sM}:{sM+1}], s{T3}, v{O+12}")
        for e in range(8): a(f"v_mul_f32 v{O+e}, v{O+e}, v{TMP+4}")
        for e in range(4): a(f"v_cvt_pk_bf16_f32 v{TMP+8+e}, v{O+2*e}, v{O+2*e+1}")
        a(f"buffer_store_dwordx4 {vr(TMP+8,4)}, v{L16}, s[{rWS}:{rWS+3}], s{sOMS} offen sc1")
        for e in range(8, 12): a(f"v_mul_f32 v{O+e}, v{O+e}, v{TMP+4}")
        for e in range(4, 6): a(f"v_cvt_pk_bf16_f32 v{TMP+8+e}, v{O+2*e}, v{O+2*e+1}")
        a("s_mov_b32 exec_hi, 0")
        a(f"buffer_store_dwordx2 {vr(TMP+12,2)}, v2, s[{rWS}:{rWS+3}], s{sORS} offen sc1")
        a("s_mov_b32 exec_hi, -1")
        for e in range(4): a(f"v_add_f32 v{TMP+e}, abs(v{O+e}), abs(v{O+4+e})")
        for e in range(4): a(f"v_add_f32 v{TMP+e}, v{TMP+e}, abs(v{O+8+e})")
        a(f"""v_add_f32 v{TMP}, v{TMP}, v{TMP+1}
        v_add_f32 v{TMP+2}, v{TMP+2}, v{TMP+3}
        s_and_b64 s[{sM}:{sM+1}], s[{sM}:{sM+1}], vcc
        v_add_f32 v{TMP}, v{TMP}, v{TMP+2}
        v_cmp_ge_f32 vcc, s{T4}, v{TMP}
        s_nop 1
        s_and_b64 s[{sM}:{sM+1}], s[{sM}:{sM+1}], vcc
        s_cmp_eq_u64 s[{sM}:{sM+1}], exec
        s_cbranch_scc1 L_NORM_OK
        s_cmp_eq_u32 s{sSLOW}, 0
        s_cbranch_scc1 L_SLOW""")
        a.label("L_NORM_OK")
        self.srd(rA, pOUT, 2048 * 1280)
        a(f"s_lshl_b32 s{T0}, s{sKH}, 2\ns_add_u32 s{T0}, s{T0}, {L_RDY}\nv_mov_b32 v{AQM}, s{T0}\nv_mov_b32 v{AQR}, 0\nds_write_b32 v{AQM}, v{AQR}")
        a("s_waitcnt vmcnt(0) lgkmcnt(0)\ns_barrier")
        a.reset_counters()
        L = a.newlabel("NOF4")
        a(f"s_cmp_lg_u32 s{sWAVE}, 0\ns_cbranch_scc1 {L}")
        self.flag_store(sF4S, 2)
        a.label(L)
        a.reset_counters()
        self.stamp("F4set")
        tg = a.vm(f"buffer_load_dword v{GG}, v{AG}, s[{rWS}:{rWS+3}], 0 offen sc1")
        def wfrag(step, regstep):
            toks = []
            for b in range(5):
                for q in range(2):
                    if step < 8: ad, off = (WM0 if b < 2 else WM1), (40*step + 8*q)*160 + 32*b
                    else: ad, off = (WR0 if b < 2 else WR1), (160*(step-8) + 80*q)*160 + 32*b
                    t = a.ds(f"ds_read_b64_tr_b16 {vr(int(WF + 20*regstep) + 4*b + 2*q, 2)}, v{ad} offset:{L_WO + off}")
                toks.append(t)
            return toks
        tw = {s: wfrag(s, s) for s in range(8)}
        YR, BB = 2, 16
        ty = [a.ds(f"ds_read_b64_tr_b16 {vr(YR+2*b,2)}, v{AYD} offset:{2048*b}") for b in range(3)]
        keep = [216, 217, 218, 219, 220, 221, 222, 223, 2, 3, 4, 5]
        for b in range(3):
            a.wait(ty[b])
            x, y = XE + 2*b, YR + 2*b
            a(f"""v_lshlrev_b32 v16, 16, v{x}
            v_and_b32 v17, 0xffff0000, v{x}
            v_lshlrev_b32 v18, 16, v{x+1}
            v_and_b32 v19, 0xffff0000, v{x+1}
            v_lshlrev_b32 v20, 16, v{y}
            v_and_b32 v21, 0xffff0000, v{y}
            v_lshlrev_b32 v22, 16, v{y+1}
            v_and_b32 v23, 0xffff0000, v{y+1}""")
            for e in range(4): a(f"v_mul_f32 v{keep[4*b+e]}, v{16+e}, v{20+e}")
        a("v_lshrrev_b32 v16, 4, v0\nv_and_b32 v16, 1, v16\nv_mul_u32_u24 v16, 24, v16")
        a(f"v_add_u32 v15, v16, v{AOUT}\nv_mov_b32 v6, v{AQM}")
        a.wait_all(vm=False)
        sPEND, sR = sM2, T6
        a(f"s_mov_b64 s[{sPEND}:{sPEND+1}], 0xffff")
        def wait_group(done):
            L, N, D = a.newlabel("GW"), a.newlabel("GN"), a.newlabel("GD")
            a(f"s_mov_b32 s{sCNT}, 0\ns_cmp_lg_u32 s{sTB}, 0\ns_cbranch_scc1 {N}")
            a.label(L)
            a(f"""s_mov_b64 exec, s[{sPEND}:{sPEND+1}]
            buffer_load_dword v7, v{AF4}, s[{rWS}:{rWS+3}], 0 offen sc1
            s_waitcnt vmcnt(0)
            v_cmp_eq_u32 vcc, 0, v7
            s_add_u32 s{sCNT}, s{sCNT}, 1
            s_mov_b64 exec, -1
            s_mov_b64 s[{sPEND}:{sPEND+1}], vcc
            s_cmp_ge_u32 s{sCNT}, {POLL_MAX}
            s_cselect_b32 s{sPEND}, 0, s{sPEND}
            s_and_b32 s{T0}, s{sPEND}, 0xff
            s_cselect_b32 s{sR}, 0, 1
            s_and_b32 s{T0}, s{sPEND}, 0xff00
            s_cselect_b32 s{T0}, 0, 2
            s_or_b32 s{sR}, s{sR}, s{T0}
            s_and_b32 s{T0}, s{sR}, {3 - done}
            s_cbranch_scc1 {L}P
            s_sleep {self.o('psleep', 2)}
            s_branch {L}""")
            a.label(L + "P")
            a(f"v_mov_b32 v7, s{sR}\nds_write_b32 v6, v7\ns_branch {D}")
            a.label(N)
            a(f"""ds_read_b32 v7, v6
            s_waitcnt lgkmcnt(0)
            v_readfirstlane_b32 s{sR}, v7
            s_add_u32 s{sCNT}, s{sCNT}, 1
            s_cmp_ge_u32 s{sCNT}, {POLL_MAX*40}
            s_cselect_b32 s{sR}, 3, s{sR}
            s_and_b32 s{T0}, s{sR}, {3 - done}
            s_cbranch_scc1 {D}
            s_sleep 1
            s_branch {N}""")
            a.label(D)
        def oloads(steps, base):
            to = {}
            for k, s in enumerate(steps):
                if s < 8:
                    a(f"s_mov_b32 s{T0}, {s*131072}")
                    to[s] = a.vm(f"buffer_load_dwordx4 {vr(base+4*k,4)}, v{AOM}, s[{rWS}:{rWS+3}], s{T0} offen sc1")
                else:
                    for q in range(2):
                        a(f"s_mov_b32 s{T0}, {(8*(s-8)+4*q)*16384}")
                        to[s] = a.vm(f"buffer_load_dwordx2 {vr(base+4*k+2*q,2)}, v{AOR}, s[{rWS}:{rWS+3}], s{T0} offen sc1")
            return to
        def mm(steps, to, obase, acc, wrem, trem, after=None):
            for k, s in enumerate(steps):
                a.wait(to[s])
                for b in (range(5) if s < 8 else (2, 3, 4, 0, 1)):
                    w = WF + 20*s + 4*b if s < 8 else wrem + 4*b
                    if s >= 8: a.wait(trem()[b])
                    a(f"v_mfma_f32_16x16x32_bf16 {vr(acc+4*b,4)}, {vr(w,4)}, {vr(obase+4*k,4)}, {'0' if k == 0 else vr(acc+4*b,4)}")
                if after: after(s)
        def wrem_to(step, reg): return wfrag(step, (reg - WF) // 20)
        def add_from(src):
            for b in (2, 3, 4, 0, 1):
                for e in range(4): a(f"v_add_f32 v{ACC+4*b+e}, v{ACC+4*b+e}, v{src+4*b+e}")
        G = ([0, 1, 2, 3, 8], [4, 5, 6, 7, 9])
        wait_group(0)
        self.stamp("F4ok")
        a(f"s_cmp_lg_u32 s{sR}, 3\ns_cbranch_scc1 L_P3_PART")
        a.reset_counters()
        order = [0, 1, 2, 3, 8, 4, 5, 6, 7, 9]
        to = oloads(order, OF)
        tr = {}
        def after(s):
            if s == 0: tr[8] = wfrag(8, 0)
            if s == 1: tr[9] = wfrag(9, 1)
        mm(G[0], to, OF, WF + 60 if False else ACC, WF, lambda: tr[8], after)
        mm(G[1], to, OF + 20, WF + 40, WF + 20, lambda: tr[9])
        a.nop(4)
        add_from(WF + 40)
        a.label("L_P3_SUM")
        def part():
            a.label("L_P3_PART")
            a(f"s_cmp_eq_u32 s{sR}, 2\ns_cbranch_scc1 L_P3_B")
            for first in (0, 1):
                if first: a.label("L_P3_B")
                save = WF + 80 * first
                for n, g in enumerate((first, 1 - first)):
                    a.reset_counters()
                    if n: wait_group(1 << first); a.reset_counters()
                    to = oloads(G[g], OF)
                    trem = wfrag(G[g][4], (OF + 20 - WF) / 20)
                    mm(G[g], to, OF, ACC, OF + 20, lambda: trem)
                    a.nop(4 if n else 8)
                    if n: add_from(save)
                    else:
                        for e in range(20): a(f"v_mov_b32 v{save+e}, v{ACC+e}")
                a("s_branch L_P3_SUM")
        self.p3_part = part
        a.reset_counters()
        self.stamp("mfma")
        for b in (2, 3, 4): a.ds(f"ds_write_b128 v{AEX}, {vr(ACC+4*b,4)} offset:{1024*(b-2)}")
        for b in range(3):
            for e in range(4): a(f"v_sub_f32 v{ACC+4*b+e}, v{ACC+4*b+e}, v{keep[4*b+e]}")
        a.wait_all(vm=False)
        a("s_barrier")
        tp = [a.ds(f"ds_read_b128 {vr(16+4*b,4)}, v{AX2} offset:{1024*b}") for b in range(3)]
        fl = self.o('ost', '').replace('+', ' ')
        for b in range(3):
            if b == 2: a(f"s_cmp_lg_u32 s{sKH}, 0\ns_cbranch_scc1 L_FIN")
            a.wait(tp[b])
            for e in range(4): a(f"v_add_f32 v{16+4*b+e}, v{16+4*b+e}, v{ACC+4*b+e}")
            for e in range(4): a(f"v_fmac_f32 v{keep[4*b+e]}, v{GG}, v{16+4*b+e}")
            a(f"v_cvt_pk_bf16_f32 v{32+2*b}, v{keep[4*b]}, v{keep[4*b+1]}\nv_cvt_pk_bf16_f32 v{33+2*b}, v{keep[4*b+2]}, v{keep[4*b+3]}")
            if self.o("o4", 1) and b < 2:
                if b == 1:
                    a("s_nop 1\nv_permlane16_swap_b32 v32, v34\nv_permlane16_swap_b32 v33, v35")
                    a.vm(f"buffer_store_dwordx4 v[32:35], v15, s[{rA}:{rA+3}], 0 offen {fl}")
            else: a.vm(f"buffer_store_dwordx2 {vr(32+2*b,2)}, v{AOUT}, s[{rA}:{rA+3}], 0 offen offset:{32*b} {fl}")
        a.label("L_FIN")
        if self.stamps:
            self.stamp("st")
            a("s_waitcnt vmcnt(0)")
            self.stamp("end")
            a(f"s_lshl_b32 s{T0}, s{sWG}, 3\ns_add_u32 s{T0}, s{T0}, s{sWAVE}\ns_lshl_b32 s{T0}, s{T0}, 8\ns_add_u32 s{T0}, s{T0}, {TS:#x}\nv_lshlrev_b32 v2, 2, v0")
            a(f"buffer_store_dword v1, v2, s[{rWS}:{rWS+3}], s{T0} offen")
            if "enc" in self.opt:
                n0, n1, wv, wg = self.opt["enc"].split(",")
                for n in (n0, n1):
                    if n not in self.names: self.names.append(n)
                a(f"s_cmp_lg_u32 s{sWG}, {wg}\ns_cbranch_scc1 L_END\ns_cmp_lg_u32 s{sWAVE}, {wv}\ns_cbranch_scc1 L_END")
                a(f"v_readlane_b32 s{T1}, v1, {self.names.index(n0)}\nv_readlane_b32 s{T2}, v1, {self.names.index(n1)}\nv_readlane_b32 s{T3}, v1, {self.names.index('end')}\ns_nop 3")
                a(f"s_sub_u32 s{T2}, s{T2}, s{T1}\ns_lshl_b32 s{T2}, s{T2}, 3\ns_and_b32 s{T2}, s{T2}, 0xffff\ns_add_u32 s{T3}, s{T3}, s{T2}")
                a.label("L_ENC")
                a(f"s_memrealtime s[{sTS}:{sTS+1}]\ns_waitcnt lgkmcnt(0)\ns_sub_u32 s{T1}, s{T3}, s{sTS}\ns_cmp_gt_i32 s{T1}, 0\ns_cbranch_scc1 L_ENC")
        a.label("L_END")
        a("s_endpgm")

    def slow(self):
        a = self.a
        S, V, M, AVS = S_, VS[0], 96, 98
        a.label("L_SLOW")
        a(f"""s_mov_b32 s{sSLOW}, 1
        v_and_b32 v{M}, 31, v0
        v_lshrrev_b32 v{AVS}, 5, v0
        v_mul_u32_u24 v{AVS}, 320, v{AVS}
        v_lshl_add_u32 v{AVS}, v{M}, 4, v{AVS}
        v_add_u32 v{AVS}, 2560, v{AVS}
        v_mov_b32 v{M}, 0xff800000""")
        def scores():
            a(f"""buffer_load_dwordx2 {vr(KRM,2)}, v2, s[{rWS}:{rWS+3}], s{T6} offen offset:2048 sc1
            buffer_load_dwordx4 {vr(KM,4)}, v{L16}, s[{rWS}:{rWS+3}], s{T6} offen sc1
            buffer_load_dwordx4 {vr(KM+4,4)}, v{L16}, s[{rWS}:{rWS+3}], s{T6} offen offset:1024 sc1
            s_waitcnt vmcnt(0)""")
            self.m2b(S); a.nop(18); self.mqk(S, 0); self.mqk(S, 1); a.nop(12)
        a(f"s_mov_b32 s{T6}, s{sKVB}\ns_mov_b32 s{sCNT}, 0")
        a.label("L_SLOW1")
        scores()
        for e in range(16): a(f"v_max3_f32 v{M}, v{M}, v{S+2*e}, v{S+2*e+1}")
        a(f"s_add_u32 s{T6}, s{T6}, {KV_US}\ns_add_u32 s{sCNT}, s{sCNT}, 1\ns_cmp_lt_u32 s{sCNT}, 32\ns_cbranch_scc1 L_SLOW1")
        a(f"v_mov_b32 v{M+1}, v{M}\ns_nop 1\nv_permlane32_swap_b32 v{M}, v{M+1}\ns_nop 1\nv_max_f32 v{M}, v{M}, v{M+1}")
        for e in range(16): a(f"v_mov_b32 v{O_+e}, 0")
        a(f"s_mov_b32 s{T6}, s{sKVB}\ns_mov_b32 s{sCNT}, 0")
        a.label("L_SLOW2")
        a(f"s_mov_b64 exec, s[{sVMASK}:{sVMASK+1}]")
        for g in range(4): a(f"buffer_load_dwordx4 {vr(V+4*g,4)}, v{AVS}, s[{rWS}:{rWS+3}], s{T6} offen offset:{640*g} sc1")
        a("s_mov_b64 exec, -1")
        scores()
        for e in range(32): a(f"v_sub_f32 v{S+e}, v{S+e}, v{M}")
        for e in range(32): a(f"v_exp_f32 v{S+e}, v{S+e}")
        a.nop(2)
        for g in range(4): self.smf(V + 4*g, S + 8*g)
        a(f"s_add_u32 s{T6}, s{T6}, {KV_US}\ns_add_u32 s{sCNT}, s{sCNT}, 1\ns_cmp_lt_u32 s{sCNT}, 32\ns_cbranch_scc1 L_SLOW2")
        a.nop(12)
        a("s_branch L_NORM")

    def build(self):
        self.prologue(); self.dma_role(); self.attention(); self.finish(); self.p3_part(); self.setup_sub(); self.side_role(); self.gemm_compute(); self.slow(); self.a.label('L_CODE_END')
        bad = lint_cfg(self.a.lines)
        head = f"""; gated_mix( MHA block , H3 SSM conv ): one persistent workgroup of eight waves per CU.
; kernarg: 0 A_x, 8 A_wqkv, 16 A_wo, 24 B_q (not used by the reference), 32 B_k, 40 B_v, 48 B_shift_k, 56 B_ssm_k,
; first clears its own flag words and counts that in d_debug; no flag is trusted before the count is complete. All waits are bounded.
; @launch grid=(256,1,1) block=(512,1,1) lds={LDS_BYTES}
.amdgcn_target "amdgcn-amd-amdhsa--gfx950"
.text
.globl {NAME}
.p2align 8
.type {NAME},@function
{NAME}:
"""
        tail = f""".section .rodata,"a"
.p2align 6
.amdhsa_kernel {NAME}
  .amdhsa_next_free_vgpr 256
  .amdhsa_next_free_sgpr 102
  .amdhsa_accum_offset 256
  .amdhsa_group_segment_fixed_size 0
  .amdhsa_kernarg_size 104
  .amdhsa_user_sgpr_count 2
  .amdhsa_user_sgpr_kernarg_segment_ptr 1
  .amdhsa_system_sgpr_workgroup_id_x 1
  .amdhsa_float_denorm_mode_32 3
.end_amdhsa_kernel
"""
        return head + self.a.text() + tail, bad

if __name__ == "__main__":
    out = sys.argv[1] if len(sys.argv) > 1 else "gated_mix__mha_block__ssm_conv_h3__prompt.s"
    opt = dict(x[2:].split("=") for x in sys.argv if x.startswith("-D"))
    G = Gen(stamps="--stamps" in sys.argv, opt=opt)
    src, bad = G.build()
    if G.stamps: src = src.replace("; @launch", "; STAMPS " + " ".join(G.names) + "\n; @launch", 1)
    for b in bad: print("LINT:", b)
    open(out, "w").write(src)
    print("wrote", out, len(src), "bytes;", len(bad), "lint findings")
```

```python
import sys, math, struct
from asmlib import *

NAME = "gated_mix__mha_block__ssm_conv_h3__prompt_kernel"
def f2u(x): return struct.unpack("<I", struct.pack("<f", x))[0]

KV, QO, UR, YD, OM, ORM = 0, 0x500000, 0x780000, 0xA00000, 0xC80000, 0xE80000
F2, F4, F3, F5, GT, F1 = 0xF04000, 0xF08000, 0xF0C000, 0xF0D000, 0xF0E000, 0xFA0000
TS = 0xF10000
WS_SIZE = 0x1000000
KV_HS, KV_US = 163840, 5120
Q_HS, Q_US = 81920, 2560
NSLOT = 3
L_X, L_W = 0, 49152
L_Q, L_SIG = 81920, 162048
L_CONV, CONV_SZ, CS, U_OFF = 98304, 21248, 4160, 16640
L_WO, L_YD, L_EX, L_RDY = 0, 102400, 112640, 145408
LDS_BYTES = 163840
sWG, sWAVE = 2, 3
pX, pW, pWO, pWS, pK, pV, pSH, pH, pD, pGW, pOUT, pDBG = 4, 6, 8, 10, 12, 14, 16, 18, 20, 22, 24, 26
rWS, rA, rB, rC, rD = 28, 32, 36, 40, 44
sXCD, sI, sJT, sRT, sPRT, sCJ, sCH0, sNCH, sHEAD, sQB = 48, 49, 50, 51, 52, 53, 54, 55, 56, 57
sLW, sCH, sKH, sTB, sCNT, sSLOW = 58, 59, 60, 61, 62, 63
T0, T1, T2, T3, T4, T5, T6, T7 = 64, 65, 66, 67, 68, 69, 70, 71
sM = 72
sVMASK = 74
sTS = 76
sE = 78
sSC = 86
sKVB, sKVW, sOMS, sORS, sF4S, sCL = 87, 88, 89, 90, 91, 92
sNB, sBC, sU, sK = 93, 94, 78, 96
sM2 = 98
sKVG = 97
sRET = 52
sPI, sNU, sG = 100, 101, 95
POLL_MAX = 200000
IDX, AKM, AKR, AV, L16, AQM, AQR, AF3, YDV = 224, 225, 226, 227, 228, 229, 230, 231, 232
WOV = 233
F3T = 238
ONES, APX, AQM2, AQR2 = 240, 241, 242, 243
QM2, QR2, O2 = 128, 132, 144
WM0, WM1, WR0, WR1, AOM, AOR, AOUT, AG, AEX, AX2, AYD, AF4 = 244, 245, 246, 247, 248, 249, 250, 251, 252, 253, 254, 255
O_, QM, QR, KRM, KM, S_ = 192, 32, 36, 38, 40, 64
VS = (48, 208)
XE = 8

class Gen:
    def __init__(self, stamps=False, opt=None):
        self.a = Asm(); self.stamps = stamps; self.names = []; self.opt = opt or {}
        self.nt = " nt" if int(self.opt.get("nt", 1)) else ""
        self.gnt = " nt" if int(self.opt.get("gnt", 0)) else ""
    def o(self, k, d): return type(d)(self.opt.get(k, d))
    def srd(self, r, p, size):
        self.a(f"s_mov_b32 s{r}, s{p}\ns_mov_b32 s{r+1}, s{p+1}\ns_mov_b32 s{r+2}, {size:#x}\ns_mov_b32 s{r+3}, 0x20000")
    def stamp(self, name):
        if not self.stamps: return
        if self.o("lite", 0) and name not in ("start", "att0", "attend", "end"): return
        if name not in self.names: self.names.append(name)
        k = self.names.index(name); assert k < 58
        if name == "start": self.a("s_mov_b32 s99, s76")
        self.a(f"s_memrealtime s[{sTS}:{sTS+1}]\ns_waitcnt lgkmcnt(0)\nv_writelane_b32 v1, s{sTS}, {k}")
        if name in ("l.b5", "l.b9"): self.a(f"s_memtime s[{sTS}:{sTS+1}]\ns_waitcnt lgkmcnt(0)\nv_writelane_b32 v1, s{sTS}, {58 if name == 'l.b5' else 59}")
        if name in ("att0", "attend"): self.a(f"s_memtime s[{sTS}:{sTS+1}]\ns_waitcnt lgkmcnt(0)\nv_writelane_b32 v1, s{sTS}, {60 if name == 'att0' else 61}")
        if name == "start":
            if "entry" not in self.names: self.names.append("entry")
            self.a(f"v_writelane_b32 v1, s99, {self.names.index('entry')}")
        if name == "start": self.a(f"s_memtime s[{sTS}:{sTS+1}]\ns_waitcnt lgkmcnt(0)\nv_writelane_b32 v1, s{sTS}, 62")
        if name == "end": self.a(f"s_memtime s[{sTS}:{sTS+1}]\ns_waitcnt lgkmcnt(0)\nv_writelane_b32 v1, s{sTS}, 63")
        self.a.done["ds"] = self.a.n["ds"]
    def poll(self, loads, tmp, cmp=None):
        a = self.a
        L, D = a.newlabel("POLL"), a.newlabel("POLLD")
        a(f"s_mov_b32 s{sCNT}, 0")
        a.label(L)
        k = 0
        for (va, r, imm, wd) in loads:
            ins = {1: "buffer_load_dword", 2: "buffer_load_dwordx2", 4: "buffer_load_dwordx4"}[wd]
            a(f"{ins} {vr(tmp+k, wd)}, v{va}, s[{r}:{r+3}], 0 offen offset:{imm} sc1"); k += wd
        a("s_waitcnt vmcnt(0)")
        a.done["vm"] = a.n["vm"]
        self.poll_check(tmp, k, cmp)
        a(f"s_cbranch_scc1 {D}")
        a(f"s_add_u32 s{sCNT}, s{sCNT}, 1\ns_cmp_lt_u32 s{sCNT}, {POLL_MAX}\ns_cbranch_scc0 {D}\ns_sleep 1\ns_branch {L}")
        a.label(D)
    def mpoll(self, addrs, tmp, elastic=False):
        a = self.a
        L, D = a.newlabel("MP"), a.newlabel("MPD")
        M = [sM, sM2][:len(addrs)]
        a(f"s_mov_b32 s{sCNT}, 0")
        for m in M: a(f"s_mov_b64 s[{m}:{m+1}], -1")
        a.label(L)
        for k, (va, m) in enumerate(zip(addrs, M)):
            S = a.newlabel("MS")
            a(f"s_mov_b64 exec, s[{m}:{m+1}]\ns_cbranch_execz {S}\nbuffer_load_dword v{tmp+k}, v{va}, s[{rWS}:{rWS+3}], 0 offen sc1")
            a.label(S)
        a("s_mov_b64 exec, -1")
        if elastic: self.ewait()
        else: a("s_waitcnt vmcnt(0)")
        a.done["vm"] = a.n["vm"]
        for k, m in enumerate(M):
            a(f"v_cmp_eq_u32 vcc, 0, v{tmp+k}\ns_nop 1\ns_and_b64 s[{m}:{m+1}], s[{m}:{m+1}], vcc")
        if len(M) == 2: a(f"s_or_b64 vcc, s[{sM}:{sM+1}], s[{sM2}:{sM2+1}]")
        a(f"s_cbranch_scc0 {D}")
        a(f"s_add_u32 s{sCNT}, s{sCNT}, 1\ns_cmp_lt_u32 s{sCNT}, {POLL_MAX}\ns_cbranch_scc0 {D}\ns_sleep {self.o('psleep', 2)}\ns_branch {L}")
        a.label(D)
    def last_flag(self, off, sN, sAddr, vt, base=L_SIG):
        a = self.a
        L = a.newlabel("NL")
        a(f"""v_mov_b32 v{vt}, {base}
        v_mov_b32 v{vt+1}, 1
        s_mov_b64 exec, 1
        ds_add_rtn_u32 v{vt+1}, v{vt}, v{vt+1} offset:{off}
        s_waitcnt lgkmcnt(0)
        v_readfirstlane_b32 s{T0}, v{vt+1}
        s_mov_b64 exec, -1
        s_add_u32 s{T0}, s{T0}, 1
        s_cmp_lg_u32 s{T0}, {sN}
        s_cbranch_scc1 {L}""")
        self.flag_store(sAddr, vt, two=True)
        a.label(L)
    def poll_check(self, tmp, k, cmp=None):
        a = self.a
        for j in range(1, k, 2):
            if j + 1 < k: a(f"v_min3_u32 v{tmp}, v{tmp}, v{tmp+j}, v{tmp+j+1}")
            else: a(f"v_min_u32 v{tmp}, v{tmp}, v{tmp+j}")
        a(cmp or f"v_cmp_ne_u32 vcc, 0, v{tmp}")
        a("s_nop 1\ns_cmp_eq_u64 vcc, exec")
    def flag_store(self, s, vt, two=False):
        a = self.a
        a(f"v_lshl_add_u32 v{vt}, v0, 2, s{s}\nv_mov_b32 v{vt+1}, 1\ns_mov_b64 exec, {3 if two else 1}")
        t = a.vm(f"buffer_store_dword v{vt+1}, v{vt}, s[{rWS}:{rWS+3}], 0 offen sc1")
        a("s_mov_b64 exec, -1")
        return t

    def prologue(self):
        a = self.a
        if self.stamps: a("s_memrealtime s[76:77]")
        a(f"s_cmp_ge_u32 s{sWG}, 256\ns_cbranch_scc1 L_END")
        if self.opt.get("diag") == "spin":
            a("s_mov_b32 s60, 2500\nv_mov_b32 v10, 0")
            a.label("L_DSPIN")
            for e in range(8): a(f"v_exp_f32 v{11+e}, v10")
            a("s_sub_u32 s60, s60, 1\ns_cmp_lg_u32 s60, 0\ns_cbranch_scc1 L_DSPIN")
        if self.opt.get("diag") == "chain":
            a("s_load_dwordx2 s[32:33], s[0:1], 24\ns_waitcnt lgkmcnt(0)\ns_mov_b32 s34, 2621440\ns_mov_b32 s35, 0x20000\ns_mul_i32 s60, s2, 256\nv_mov_b32 v10, s60")
            for e in range(32): a("buffer_load_dword v12, v10, s[32:35], 0 offen\ns_waitcnt vmcnt(0)\nv_and_b32 v12, 0, v12\nv_add_u32 v10, v10, v12\nv_add_u32 v10, 0x13000, v10")
        if self.opt.get("diag") == "bq":
            a("s_load_dwordx2 s[32:33], s[0:1], 24\ns_waitcnt lgkmcnt(0)\ns_mov_b32 s34, 2621440\ns_mov_b32 s35, 0x20000\nv_lshlrev_b32 v10, 4, v0\ns_mul_i32 s60, s2, 10240")
            a("buffer_load_dwordx4 v[12:15], v10, s[32:35], s60 offen\ns_add_u32 s60, s60, 2048\nbuffer_load_dwordx4 v[16:19], v10, s[32:35], s60 offen\ns_waitcnt vmcnt(0)")
        a(f"""s_load_dwordx4 s[4:7], s[0:1], 0
        s_load_dwordx16 s[12:27], s[0:1], 32
        s_load_dwordx2 s[10:11], s[0:1], 96
        s_load_dwordx2 s[8:9], s[0:1], 16
        v_lshrrev_b32 v1, 6, v0
        v_and_b32 v0, 63, v0
        s_and_b32 s{sXCD}, s{sWG}, 7
        v_readfirstlane_b32 s{sWAVE}, v1
        s_lshr_b32 s{sI}, s{sWG}, 3
        s_and_b32 s{T0}, s{sXCD}, 1
        s_mul_i32 s{T0}, s{T0}, 30
        s_add_u32 s{T0}, s{T0}, s{sI}
        s_lshr_b32 s{sJT}, s{T0}, 2
        s_and_b32 s{T0}, s{T0}, 3
        s_lshr_b32 s{T1}, s{sXCD}, 1
        s_lshl_b32 s{T1}, s{T1}, 2
        s_add_u32 s{sRT}, s{T0}, s{T1}
        s_sub_u32 s{sLW}, s{sWAVE}, 4
        s_mul_i32 s{T0}, s{sXCD}, 30
        s_add_u32 s{sPI}, s{T0}, s{sI}
        s_mul_i32 s{sG}, s{sPI}, 171
        s_lshr_b32 s{sG}, s{sG}, 9
        s_mul_i32 s{T1}, s{sG}, 3
        s_sub_u32 s{T1}, s{sPI}, s{T1}
        s_lshl_b32 s{T2}, s{sG}, 3
        s_mul_i32 s{T3}, s{T1}, 3
        s_add_u32 s{sCH0}, s{T2}, s{T3}
        s_lshr_b32 s{T1}, s{T1}, 1
        s_sub_u32 s{sNCH}, 3, s{T1}
        s_lshl_b32 s{T0}, s{sXCD}, 1
        s_add_u32 s{T0}, s{T0}, s{sI}
        s_add_u32 s{T0}, s{T0}, 210
        s_cmp_ge_u32 s{sI}, 30
        s_cselect_b32 s{sPI}, s{T0}, s{sPI}
        s_cselect_b32 s{sNCH}, 0, s{sNCH}
        s_cselect_b32 s{sNU}, 8, 2""")
        if self.o("cpf", 1) == 2: self.code_prefetch()
        a(f"""s_cmp_lt_u32 s{sWAVE}, 4
        s_cbranch_scc1 L_COMPUTE
        s_cmp_gt_u32 s{sWAVE}, 4
        s_cbranch_scc1 L_SIDE""")
    def code_prefetch(self):
        a = self.a
        L = a.newlabel("NOPF")
        a(f"""s_cmp_lg_u32 s{sWAVE}, 1
        s_cbranch_scc1 {L}
        s_getpc_b64 s[{T2}:{T3}]
        L_PC:
        s_sub_u32 s{T2}, s{T2}, L_PC-{NAME}
        s_subb_u32 s{T3}, s{T3}, 0
        s_and_b32 s{T0}, s{sI}, 7
        s_lshl_b32 s{T0}, s{T0}, 13
        v_lshl_add_u32 v10, v0, 7, s{T0}
        v_min_u32 v10, L_CODE_END-{NAME}-4, v10
        global_load_dword v31, v10, s[{T2}:{T3}]""")
        a.label(L)
    def common_scalars(self):
        self.a(f"""s_cmp_ge_u32 s{sI}, 30
        s_cselect_b32 s{sNB}, 1, 10
        s_mov_b32 s{sBC}, 0
        s_lshr_b32 s{T0}, s{sI}, 3
        s_lshl_b32 s{T1}, s{sXCD}, 2
        s_add_u32 s{sHEAD}, s{T0}, s{T1}
        s_and_b32 s{sQB}, s{sI}, 7
        s_lshr_b32 s{sKH}, s{sWAVE}, 2
        s_and_b32 s{sTB}, s{sWAVE}, 3
        s_mov_b32 s{sSLOW}, 0
        s_mov_b32 s{sVMASK}, 0x000fffff
        s_mov_b32 s{sVMASK+1}, 0x000fffff""")
    def setup_call(self):
        if self.o("sub", 1): self.a(f"s_call_b64 s[{sRET}:{sRET+1}], L_SETUP")
        else: self.common_scalars(); self.persistent()
    def setup_sub(self):
        if not self.o("sub", 1): return
        self.a.label("L_SETUP")
        self.common_scalars(); self.persistent()
        self.a(f"s_setpc_b64 s[{sRET}:{sRET+1}]")
    def persistent(self, t=192):
        a = self.a
        a(f"""s_mov_b32 s{sM}, 0x11000000
        s_mov_b32 s{sM+1}, 0x11000000
        v_mov_b32 v{t}, 0x3f803f80
        v_cndmask_b32 v{ONES}, 0, v{t}, s[{sM}:{sM+1}]""")
        a(f"""v_mov_b32 v{IDX}, 0xdddddddd
        v_lshlrev_b32 v{AKM}, 4, v0
        v_lshlrev_b32 v{L16}, 4, v0
        v_lshlrev_b32 v{t}, 3, v0
        v_add_u32 v{AKR}, 2048, v{t}
        v_and_b32 v{t+1}, 31, v0
        v_lshrrev_b32 v{t+2}, 5, v0
        v_mul_u32_u24 v{t+2}, 320, v{t+2}
        v_lshl_add_u32 v{t+2}, v{t+1}, 4, v{t+2}
        v_add_u32 v{AV}, 2560, v{t+2}
        s_mul_i32 s{T0}, s{sKH}, {KV_US}
        v_add_u32 v{AKM}, s{T0}, v{AKM}
        v_add_u32 v{AKR}, s{T0}, v{AKR}
        v_add_u32 v{AV}, s{T0}, v{AV}
        s_mul_i32 s{T0}, s{sTB}, {Q_US}
        s_add_u32 s{T0}, s{T0}, {L_Q}
        s_lshl_b32 s{T2}, s{sKH}, 10
        s_add_u32 s{T2}, s{T2}, s{T0}
        v_add_u32 v{AQM}, s{T2}, v{L16}
        s_lshl_b32 s{T1}, s{sKH}, 8
        s_add_u32 s{T1}, s{T1}, s{T0}
        v_lshl_add_u32 v{AQR}, v{t+1}, 3, s{T1}
        s_xor_b32 s{T3}, s{sKH}, 1
        s_lshl_b32 s{T2}, s{T3}, 10
        s_add_u32 s{T2}, s{T2}, s{T0}
        v_add_u32 v{AQM2}, s{T2}, v{L16}
        s_lshl_b32 s{T1}, s{T3}, 8
        s_add_u32 s{T1}, s{T1}, s{T0}
        v_lshl_add_u32 v{AQR2}, v{t+1}, 3, s{T1}
        s_mul_i32 s{sKVB}, s{sHEAD}, {KV_HS}
        s_mul_i32 s{sKVW}, s{sWAVE}, {KV_US}
        s_add_u32 s{sKVG}, s{sKVW}, s{sKVB}
        s_lshl_b32 s{T0}, s{sHEAD}, 16
        s_lshl_b32 s{T1}, s{sQB}, 2
        s_add_u32 s{T1}, s{T1}, s{sTB}
        s_lshl_b32 s{T1}, s{T1}, 1
        s_add_u32 s{T1}, s{T1}, s{sKH}
        s_lshl_b32 s{T2}, s{T1}, 10
        s_add_u32 s{T0}, s{T0}, s{T2}
        s_add_u32 s{sOMS}, s{T0}, {OM:#x}
        s_lshl_b32 s{T2}, s{sHEAD}, 14
        s_lshl_b32 s{T1}, s{T1}, 8
        s_add_u32 s{T1}, s{T1}, s{T2}
        s_add_u32 s{sORS}, s{T1}, {ORM:#x}
        s_lshl_b32 s{T0}, s{sQB}, 11
        s_lshl_b32 s{T1}, s{sHEAD}, 6
        s_add_u32 s{T0}, s{T0}, s{T1}
        s_add_u32 s{sF4S}, s{T0}, {F4:#x}""")
        a(f"""s_mul_i32 s{T0}, s{sQB}, 320
        s_add_u32 s{T0}, s{T0}, {F3:#x}
        v_lshl_add_u32 v{AF3}, v0, 3, s{T0}
        s_lshr_b32 s{T0}, s{sHEAD}, 1
        s_lshl_b32 s{T0}, s{T0}, 6
        s_add_u32 s{T0}, s{T0}, {F5:#x}
        v_mov_b32 v{t}, s{T0}
        s_mov_b32 s{sM}, 0
        s_mov_b32 s{sM+1}, 0xffffff00
        v_cndmask_b32 v{AF3}, v{AF3}, v{t}, s[{sM}:{sM+1}]""")
        a(f"s_mul_i32 s{T0}, s{sWAVE}, {13*64}\ns_mul_i32 s{T1}, s{sQB}, 160")
        for k in range(5):
            a(f"""s_add_u32 s{T2}, s{T0}, {64*k}
            v_add_u32 v{t}, s{T2}, v0
            v_mul_u32_u24 v{t+1}, 52429, v{t}
            v_lshrrev_b32 v{t+1}, 19, v{t+1}
            v_mul_u32_u24 v{t+1}, {1280-160}, v{t+1}
            v_lshl_add_u32 v{t+1}, v{t}, 4, v{t+1}
            v_add_u32 v{WOV+k}, s{T1}, v{t+1}""")
        a(f"""s_mul_i32 s{T0}, s{sQB}, 80
        s_mul_i32 s{T1}, s{sWAVE}, 10
        s_add_u32 s{T0}, s{T0}, s{T1}
        v_lshrrev_b32 v{t}, 3, v0
        v_add_u32 v{t}, s{T0}, v{t}
        v_lshlrev_b32 v{t}, 12, v{t}
        v_and_b32 v{t+1}, 7, v0
        v_lshl_add_u32 v{t}, v{t+1}, 4, v{t}
        s_lshl_b32 s{T0}, s{sHEAD}, 7
        s_add_u32 s{T0}, s{T0}, {YD:#x}
        v_add_u32 v{YDV}, s{T0}, v{t}""")
        q, r, c8, tt, b0 = t, t + 1, t + 2, t + 3, t + 4
        a(f"""v_lshrrev_b32 v{q}, 4, v0
        v_lshrrev_b32 v{r}, 2, v0
        v_and_b32 v{r}, 3, v{r}
        v_and_b32 v{c8}, 3, v0
        v_lshlrev_b32 v{c8}, 3, v{c8}
        v_and_b32 v{tt}, 15, v0
        v_and_b32 v{b0}, 1, v{q}
        s_mul_i32 s{T2}, s{sKH}, {51200 + 96}
        s_mul_i32 s{T3}, s{sKH}, {51200 - 64}
        v_lshrrev_b32 v{t+5}, 1, v{q}
        v_mul_u32_u24 v{t+5}, 20, v{t+5}
        v_lshl_add_u32 v{t+5}, v{b0}, 2, v{t+5}
        v_add_u32 v{t+5}, v{t+5}, v{r}
        v_mul_u32_u24 v{t+5}, 160, v{t+5}
        v_add_u32 v{t+5}, v{t+5}, v{c8}
        v_add_u32 v{WM0}, s{T2}, v{t+5}
        v_add_u32 v{WM1}, s{T3}, v{t+5}
        v_mul_u32_u24 v{t+5}, 20, v{q}
        v_add3_u32 v{t+5}, v{t+5}, v{r}, 16
        v_mul_u32_u24 v{t+5}, 160, v{t+5}
        v_add_u32 v{t+5}, v{t+5}, v{c8}
        v_add_u32 v{WR0}, s{T2}, v{t+5}
        v_add_u32 v{WR1}, s{T3}, v{t+5}
        s_lshl_b32 s{T2}, s{sKH}, 20
        s_lshl_b32 s{T3}, s{sHEAD}, 11
        s_add_u32 s{T2}, s{T2}, s{T3}
        s_lshr_b32 s{T3}, s{sTB}, 1
        s_lshl_b32 s{T4}, s{T3}, 10
        s_add_u32 s{T2}, s{T2}, s{T4}
        s_and_b32 s{T4}, s{sTB}, 1
        s_lshl_b32 s{T4}, s{T4}, 8
        s_add_u32 s{T2}, s{T2}, s{T4}
        s_add_u32 s{T2}, s{T2}, {OM:#x}
        v_lshrrev_b32 v{t+5}, 1, v{q}
        v_lshlrev_b32 v{t+5}, 16, v{t+5}
        v_lshl_add_u32 v{t+5}, v{b0}, 9, v{t+5}
        v_lshl_add_u32 v{t+5}, v{tt}, 4, v{t+5}
        v_add_u32 v{AOM}, s{T2}, v{t+5}
        s_lshl_b32 s{T2}, s{sKH}, 18
        s_lshl_b32 s{T4}, s{sHEAD}, 9
        s_add_u32 s{T2}, s{T2}, s{T4}
        s_lshl_b32 s{T4}, s{sTB}, 7
        s_add_u32 s{T2}, s{T2}, s{T4}
        s_add_u32 s{T2}, s{T2}, {ORM:#x}
        v_lshlrev_b32 v{t+5}, 14, v{q}
        v_lshl_add_u32 v{t+5}, v{tt}, 3, v{t+5}
        v_add_u32 v{AOR}, s{T2}, v{t+5}
        s_lshr_b32 s{T2}, s{sHEAD}, 2
        s_lshl_b32 s{T2}, s{T2}, 11
        s_add_u32 s{T2}, s{T2}, {F4:#x}
        s_lshl_b32 s{T3}, s{sKH}, 10
        s_add_u32 s{T2}, s{T2}, s{T3}
        v_lshl_add_u32 v{AF4}, v{tt}, 6, s{T2}
        s_lshl_b32 s{T0}, s{sHEAD}, 6
        s_lshl_b32 s{T1}, s{sTB}, 4
        s_add_u32 s{T0}, s{T0}, s{T1}
        v_add_u32 v{t+5}, s{T0}, v{tt}
        v_lshlrev_b32 v{AG}, 2, v{t+5}
        v_add_u32 v{AG}, {GT:#x}, v{AG}
        v_mul_u32_u24 v{t+5}, 1280, v{t+5}
        v_lshl_add_u32 v{t+5}, v{q}, 3, v{t+5}
        s_mul_i32 s{T0}, s{sQB}, 160
        s_mul_i32 s{T1}, s{sKH}, 96
        s_add_u32 s{T0}, s{T0}, s{T1}
        v_add_u32 v{AOUT}, s{T0}, v{t+5}
        s_lshl_b32 s{T0}, s{sWAVE}, 12
        s_add_u32 s{T0}, s{T0}, {L_EX}
        v_add_u32 v{AEX}, s{T0}, v{L16}
        s_xor_b32 s{T0}, s{sWAVE}, 4
        s_lshl_b32 s{T0}, s{T0}, 12
        s_add_u32 s{T1}, s{T0}, {L_EX}
        v_add_u32 v{APX}, s{T1}, v{L16}
        s_lshl_b32 s{T1}, s{sKH}, 10
        s_add_u32 s{T1}, s{T1}, s{T0}
        s_add_u32 s{T1}, s{T1}, {L_EX}
        v_add_u32 v{AX2}, s{T1}, v{L16}
        v_lshl_add_u32 v{AYD}, v{q}, 2, v{r}
        v_lshl_add_u32 v{AYD}, v{AYD}, 7, v{c8}
        s_mul_i32 s{T0}, s{sKH}, {48*128}
        s_lshl_b32 s{T1}, s{sTB}, 5
        s_add_u32 s{T0}, s{T0}, s{T1}
        s_add_u32 s{T0}, s{T0}, {L_YD}
        v_add_u32 v{AYD}, s{T0}, v{AYD}""")
    def att_init_list(self):
        if self.o("ones", 2) == 12:
            return [f"v_mov_b32 v{O_+e}, 0" for e in range(16)] + [f"v_mov_b32 v{st+e}, 0x3f803f80" for st in VS for e in range(16)]
        return [f"v_mov_b32 v{O_+e}, 0" for e in range(16)] + [f"v_mov_b32 v{st+e}, v{ONES}" for st in VS for e in range(16)]

    def flag_reset(self):
        a = self.a
        L = a.newlabel("NOZ")
        a(f"s_cmp_lg_u32 s{sWAVE}, 0\ns_cbranch_scc1 {L}")
        a(f"""s_lshl_b32 s{T0}, s{sPI}, 6
        s_add_u32 s{T0}, s{T0}, {F1:#x}
        v_mov_b32 v12, s{T0}
        v_and_b32 v10, 3, v0
        v_lshlrev_b32 v11, 2, v10
        v_add_u32 v13, s{sCL}, v11
        s_mov_b32 s{sM}, 0xf
        s_mov_b32 s{sM+1}, 0
        v_cndmask_b32 v12, v12, v13, s[{sM}:{sM+1}]
        s_lshl_b32 s{T0}, s{sCH0}, 2
        s_add_u32 s{T0}, s{T0}, {F3:#x}
        v_add_u32 v13, s{T0}, v11
        s_lshl_b32 s{sM}, 16, s{sNCH}
        s_sub_u32 s{sM}, s{sM}, 16
        v_cndmask_b32 v12, v12, v13, s[{sM}:{sM+1}]
        s_lshl_b32 s{T0}, s{sQB}, 11
        s_lshl_b32 s{T1}, s{sHEAD}, 6
        s_add_u32 s{T0}, s{T0}, s{T1}
        s_add_u32 s{T0}, s{T0}, {F4:#x}
        v_mov_b32 v13, s{T0}
        s_mov_b32 s{sM}, 0x100
        v_cndmask_b32 v12, v12, v13, s[{sM}:{sM+1}]
        s_lshl_b32 s{T0}, s{sG}, 6
        s_add_u32 s{T0}, s{T0}, {F1 + 256*64:#x}
        v_mov_b32 v13, s{T0}
        s_cmp_lt_u32 s{sG}, 32
        s_cselect_b32 s{T1}, s{sNCH}, 0
        s_cmp_eq_u32 s{T1}, 2
        s_cselect_b32 s{sM}, 0x200, 0
        v_cndmask_b32 v12, v12, v13, s[{sM}:{sM+1}]
        v_mov_b32 v13, 0
        s_mov_b32 exec_lo, 0x3ff
        s_mov_b32 exec_hi, 0
        buffer_store_dword v13, v12, s[{rWS}:{rWS+3}], 0 offen sc1
        s_mov_b64 exec, 1""")
        self.srd(rA, pDBG, 256)
        a(f"""s_and_b32 s{T0}, s{sWG}, 1
        s_lshl_b32 s{T0}, s{T0}, 7
        v_mov_b32 v12, s{T0}
        v_mov_b32 v13, 1
        s_waitcnt vmcnt(0)
        buffer_atomic_add v13, v12, s[{rA}:{rA+3}], 0 offen sc1
        s_mov_b64 exec, -1""")
        a.label(L)

    XA, WA, XA2, WA2, EA = 2, 6, 128, 132, 136
    def gemm_compute(self):
        a = self.a
        XA, WA = self.XA, self.WA
        a.label("L_COMPUTE")
        if self.o("cpf", 1) == 1: self.code_prefetch()
        self.common_scalars()
        a(f"""s_lshl_b32 s{T0}, s{sJT}, 10
        s_lshl_b32 s{T1}, s{sRT}, 6
        s_add_u32 s{T0}, s{T0}, s{T1}
        s_add_u32 s{sCL}, s{T0}, {F2:#x}
        s_lshl_b32 s{T0}, s{sXCD}, 1
        s_add_u32 s{T0}, s{T0}, s{sI}
        s_sub_u32 s{T7}, s{T0}, 30
        s_lshl_b32 s{T0}, s{T7}, 6
        s_add_u32 s{T0}, s{T0}, {F5:#x}
        s_cmp_ge_u32 s{sI}, 30
        s_cselect_b32 s{sCL}, s{T0}, s{sCL}
        s_waitcnt lgkmcnt(0)""")
        self.srd(rWS, pWS, WS_SIZE)
        if self.stamps: a("v_mov_b32 v1, 0")
        self.stamp("start")
        if self.o("touch", 0): self.touch()
        if self.o("tlb", 0):
            L = a.newlabel("NOTLB")
            a(f"s_cmp_lg_u32 s{sWAVE}, 2\ns_cbranch_scc1 {L}")
            self.srd(rB, pOUT, 2048 * 1280); self.srd(rC, pWO, 640 * 1280)
            a(f"""v_lshlrev_b32 v10, 20, v0
            s_mov_b64 exec, 0xffff
            buffer_load_dword v31, v10, s[{rWS}:{rWS+3}], 0 offen sc1
            s_mov_b64 exec, 7
            buffer_load_dword v30, v10, s[{rB}:{rB+3}], 0 offen sc1
            s_mov_b64 exec, 1
            buffer_load_dword v29, v10, s[{rC}:{rC+3}], 0 offen
            s_mov_b64 exec, -1""")
            a.label(L)
        self.flag_reset()
        self.setup_call()
        for l in self.att_init_list():
            if int(l.split()[1][1:-1]) >= 192: a(l)
        a(f"s_cmp_eq_u32 s{sWAVE}, 0\ns_cbranch_scc1 L_C_NW\ns_waitcnt vmcnt(0)")
        a.label("L_C_NW")
        a(f"s_cmp_ge_u32 s{sI}, 30\ns_cbranch_scc1 L_C_NOTILE")
        a(f"""s_and_b32 s{T0}, s{sWAVE}, 1
        s_lshl_b32 s{T0}, s{T0}, 13
        v_and_b32 v8, 31, v0
        v_lshrrev_b32 v9, 5, v0
        v_lshrrev_b32 v10, 1, v8
        v_and_b32 v10, 7, v10
        v_xor_b32 v10, v10, v9
        v_lshlrev_b32 v8, 7, v8
        v_add_u32 v8, s{T0}, v8""")
        for ks in range(4):
            a(f"v_xor_b32 v11, {2*ks}, v10\nv_lshl_add_u32 v{XA+ks}, v11, 4, v8")
        a(f"""v_lshrrev_b32 v8, 2, v0
        v_and_b32 v8, 3, v8
        v_lshrrev_b32 v9, 5, v0
        v_lshl_add_u32 v9, v9, 3, v8
        v_lshlrev_b32 v9, 8, v9
        v_lshrrev_b32 v10, 4, v0
        v_and_b32 v10, 1, v10
        v_lshlrev_b32 v10, 1, v10
        v_lshrrev_b32 v11, 1, v0
        v_and_b32 v11, 1, v11
        v_or_b32 v10, v10, v11
        v_and_b32 v11, 1, v0
        v_lshlrev_b32 v11, 3, v11
        v_add_u32 v9, v9, v11
        v_add_u32 v9, {L_W}, v9
        s_and_b32 s{T0}, s{sWAVE}, 2""")
        for i in range(2):
            a(f"""s_add_u32 s{T1}, s{T0}, {i}
            v_xor_b32 v11, s{T1}, v8
            v_lshl_add_u32 v11, v11, 2, v10
            v_lshl_add_u32 v{WA+i}, v11, 4, v9""")
        def lowinit():
            for l in self.att_init_list():
                if int(l.split()[1][1:-1]) < 192: a(l)
        a(f"s_setprio {self.o('gprio', 3)}")
        a(f"s_cmp_ge_u32 s{sJT}, 10\ns_cbranch_scc1 L_C_VTILE")
        self.epi_qk_setup()
        self.gemm_loop(False, self.gemm_epi_qk, lowinit)
        a("s_branch L_C_FLAG")
        a.label("L_C_NOTILE")
        a(f"s_call_b64 s[{sRET}:{sRET+1}], L_SPARE")
        self.stamp("g.pre")
        self.sig_wait(8, 8)
        self.stamp("g.go")
        self.gate()
        lowinit()
        a("s_branch L_C_FLAG")
        a.label("L_C_VTILE")
        self.epi_v_setup()
        self.gemm_loop(True, self.gemm_epi_v, lowinit)
        a.label("L_C_FLAG")
        a.reset_counters()
        self.stamp("c.epi")
        L = a.newlabel("KVW")
        a(f"s_cmp_eq_u32 s{sWAVE}, 3\ns_cbranch_scc1 {L}")
        a("s_waitcnt vmcnt(0)")
        self.last_flag(12, 4, sCL, 2)
        self.stamp("c.F2set")
        a("s_branch L_ATT")
        a.label(L)
        self.kv_fetch_setup()
        a(f"buffer_load_dword v29, v28, s[{rC}:{rC+3}], 0 offen sc1")
        a("s_waitcnt vmcnt(0)")
        self.last_flag(12, 4, sCL, 2)
        self.kv_fetch()
        a("s_branch L_ATT")

    def touch(self):
        a = self.a
        L = a.newlabel("NOTCH")
        k0 = self.o("touch", 0)
        a(f"s_cmp_lg_u32 s{sWAVE}, 2\ns_cbranch_scc1 {L}\ns_cmp_ge_u32 s{sI}, 30\ns_cbranch_scc1 {L}")
        self.srd(rB, pX, 2048 * 1280); self.srd(rC, pW, 640 * 3840)
        a(f"""s_and_b32 s{T0}, s{sJT}, 7
        s_lshl_b32 s{T0}, s{T0}, 4
        s_lshl_b32 s{T1}, s{sRT}, 7
        s_add_u32 s{T0}, s{T0}, s{T1}
        v_and_b32 v10, 15, v0
        v_add_u32 v10, s{T0}, v10
        v_mul_u32_u24 v10, 1280, v10
        v_lshrrev_b32 v11, 4, v0
        v_lshl_add_u32 v10, v11, 7, v10
        s_and_b32 s{T0}, s{sRT}, 3
        s_lshl_b32 s{T0}, s{T0}, 4
        v_lshrrev_b32 v11, 1, v0
        v_and_b32 v11, 15, v11
        v_add_u32 v11, s{T0}, v11
        v_lshrrev_b32 v12, 5, v0
        v_lshl_add_u32 v11, v12, 6, v11
        v_mul_u32_u24 v11, 3840, v11
        v_and_b32 v12, 1, v0
        v_lshl_add_u32 v11, v12, 7, v11
        s_lshl_b32 s{T0}, s{sJT}, 8
        v_add_u32 v11, s{T0}, v11""")
        if self.o("tsleep", 0): a(f"s_sleep {self.o('tsleep', 0)}")
        def w(j, extra=0): a(f"s_mov_b32 s{T0}, {(k0 + 2*j)*64*3840 + extra}\nbuffer_load_dword v31, v11, s[{rC}:{rC+3}], s{T0} offen")
        def x(j): a(f"buffer_load_dword v31, v10, s[{rB}:{rB+3}], 0 offen offset:{(k0 + 4*j)*128}")
        n = 10 - k0
        for j in range((n + 1) // 2):
            w(j)
            if j % 2 == 0: x(j // 2)
        a(f"s_cmp_lg_u32 s{sJT}, 7\ns_cbranch_scc1 {L}\ns_bitcmp1_b32 s{sRT}, 1\ns_cselect_b32 s{T1}, {-32*3840}, {0}\ns_cselect_b32 s{T2}, 0, {32*3840}\ns_add_u32 s{T1}, s{T1}, s{T2}\nv_add_u32 v11, s{T1}, v11")
        for j in range((n + 1) // 2): w(j)
        a.label(L)
    def gate(self):
        a = self.a
        a.reset_counters()
        X, W, Z = 32, 12, 2
        self.srd(rA, pX, 2048 * 1280); self.srd(rB, pGW, 1280)
        a(f"""s_lshl_b32 s{T0}, s{T7}, 7
        s_lshl_b32 s{T1}, s{sWAVE}, 5
        s_add_u32 s{T6}, s{T0}, s{T1}
        v_lshrrev_b32 v10, 4, v0
        v_add_u32 v11, s{T6}, v10
        v_mul_u32_u24 v11, 1280, v11
        v_and_b32 v2, 15, v0
        v_lshlrev_b32 v3, 4, v2
        v_add_u32 v11, v11, v3""")
        for j in range(5): tw = a.vm(f"buffer_load_dwordx4 {vr(W+4*j,4)}, v3, s[{rB}:{rB+3}], 0 offen offset:{256*j}")
        tx = []
        for g in range(8):
            a(f"s_mov_b32 s{T0}, {5120*g}")
            for j in range(5): t = a.vm(f"buffer_load_dwordx4 {vr(X+20*g+4*j,4)}, v11, s[{rA}:{rA+3}], s{T0} offen offset:{256*j}")
            tx.append(t)
        a(f"""v_lshl_add_u32 v10, v2, 2, v10
        v_add_u32 v10, s{T6}, v10
        v_lshlrev_b32 v10, 2, v10
        v_add_u32 v10, {GT:#x}, v10
        v_mov_b32 v11, v2""")
        for g in range(8):
            a.wait(tw, tx[g])
            for e in range(20):
                a(f"v_dot2_f32_bf16 v{Z+g}, v{X+20*g+e}, v{W+e}, {'0' if e == 0 else f'v{Z+g}'}")
        a.nop(3)
        for sh in (8, 4, 2, 1):
            for g in range(8): a(f"v_add_f32_dpp v{Z+g}, v{Z+g}, v{Z+g} row_ror:{sh} row_mask:0xf bank_mask:0xf")
        for g in range(1, 8):
            a(f"v_cmp_eq_u32 vcc, {g}, v11\ns_nop 1\nv_cndmask_b32 v{Z}, v{Z}, v{Z+g}, vcc")
        a(f"""v_mul_f32 v{Z}, {f2u(-math.log2(math.e)):#x}, v{Z}
        v_exp_f32 v{Z}, v{Z}
        s_mov_b32 exec_lo, 0x00ff00ff
        v_add_f32 v{Z}, 1.0, v{Z}
        v_rcp_f32 v{Z}, v{Z}
        s_mov_b32 exec_hi, 0x00ff00ff
        buffer_store_dword v{Z}, v10, s[{rWS}:{rWS+3}], 0 offen sc1
        s_mov_b64 exec, -1""")

    def gemm_loop(self, vt, epi, fill):
        a = self.a
        a.reset_counters()
        FR, ACC = 32, 64
        def reads(s, ks):
            st = FR + 16 * (ks & 1); sl = s % NSLOT
            xa, wa, sl = (self.XA, self.WA, sl * 16384) if sl < 4 else (self.XA2, self.WA2, 0)
            rx = lambda j: (lambda: a.ds(f"ds_read_b128 {vr(st+4*j,4)}, v{xa+ks} offset:{sl + 4096*j}"))
            rw = lambda i, q: (lambda: a.ds(f"ds_read_b64_tr_b16 {vr(st+8+4*i+2*q,2)}, v{wa+i} offset:{sl + (16*ks+4*q)*256}"))
            if vt: return [("X0", rx(0)), ("W0", rw(0,0)), ("W0", rw(0,1)), ("W1", rw(1,0)), ("W1", rw(1,1)), ("X1", rx(1))]
            return [("W0", rw(0,0)), ("W0", rw(0,1)), ("X0", rx(0)), ("X1", rx(1)), ("W1", rw(1,0)), ("W1", rw(1,1))]
        def group(ks, toks, nxt, first):
            st = FR + 16 * (ks & 1); out = {}
            sched = [int(x) for x in self.o('gs', '3300')]; k = 0
            for m, (i, j) in enumerate(((0,0),(0,1),(1,0),(1,1))):
                if vt: A, B, na, nb = st + 4*i, st + 8 + 4*j, f"X{i}", f"W{j}"
                else:  A, B, na, nb = st + 8 + 4*i, st + 4*j, f"W{i}", f"X{j}"
                a.wait(toks[na], toks[nb])
                d = ACC + 16 * (2*i + j)
                a(f"v_mfma_f32_32x32x16_bf16 {vr(d,16)}, {vr(A,4)}, {vr(B,4)}, {'0' if first else vr(d,16)}")
                for _ in range(sched[m]):
                    if k < len(nxt): out[nxt[k][0]] = nxt[k][1](); k += 1
            return out
        a("s_barrier")
        toks = {}
        for n, f in reads(0, 0): toks[n] = f()
        for s in range(9):
            for ks in range(4):
                if ks < 3:
                    toks = group(ks, toks, reads(s, ks + 1), s == 0 and ks == 0)
                else:
                    a.wait_all(vm=False); a("s_barrier")
                    if s < 8: toks = group(ks, toks, reads(s + 1, 0), False)
        sets = (FR, 152, 168, 8)
        T = {}
        def rd(ks, nm):
            st = sets[ks]; sl = (9 % NSLOT) * 16384; k = int(nm[1])
            if nm[0] == "X": T[ks, nm] = a.ds(f"ds_read_b128 {vr(st+4*k,4)}, v{self.XA+ks} offset:{sl + 4096*k}")
            else:
                for q in range(2): T[ks, nm] = a.ds(f"ds_read_b64_tr_b16 {vr(st+8+4*k+2*q,2)}, v{self.WA+k} offset:{sl + (16*ks+4*q)*256}")
        na, nb = ("X", "W") if vt else ("W", "X")
        first = [(lambda ks=ks, nm=nm: rd(ks, nm)) for ks in range(4) for nm in (na + "0", nb + "0")]
        later = [(lambda ks=ks: rd(ks, nb + "1")) for ks in range(4)] + [(lambda ks=ks: rd(ks, na + "1")) for ks in range(4)]
        group(3, toks, [(f"f{i}", f) for i, f in enumerate(first[:6])], False)
        for f in first[6:]: f()
        off = lambda nm: 4 * int(nm[1]) + (0 if nm[0] == "X" else 8)
        pend = []
        for bi, (i, j) in enumerate(((0,0),(0,1),(1,0),(1,1))):
            d = ACC + 16 * (2*i + j)
            for ks in range(4):
                a.wait(T[ks, f"{na}{i}"], T[ks, f"{nb}{j}"])
                a(f"v_mfma_f32_32x32x16_bf16 {vr(d,16)}, {vr(sets[ks]+off(f'{na}{i}'),4)}, {vr(sets[ks]+off(f'{nb}{j}'),4)}, {vr(d,16)}")
                if bi < 2 and later: later.pop(0)()
                if bi >= 2:
                    n = -(-len(pend) // (4 - ks + (4 if bi == 2 else 0)))
                    for _ in range(min(n, 9)): pend.pop(0)()
            if bi == 1: pend += epi(0, 0)
            if bi == 1: pend += epi(0, 1)
            if bi == 2: last = epi(1, 0)
        for f in pend: f()
        for f in last: f()
        for f in epi(1, 1): f()
        fill()

    def epi_qk_setup(self):
        a = self.a
        sBASE, sHS, sPQ = T0, T1, T3
        a(f"""s_mov_b32 s{sHS}, {Q_HS}
        s_mov_b32 s{T4}, {Q_US}
        s_cmp_ge_u32 s{sJT}, 5
        s_cselect_b32 s{sHS}, {KV_HS}, s{sHS}
        s_cselect_b32 s{T4}, {KV_US}, s{T4}
        s_cselect_b32 s{sBASE}, {KV}, {QO:#x}
        s_cselect_b32 s{T5}, 5, 0
        s_cselect_b64 s[{sM}:{sM+1}], -1, 0
        s_cselect_b32 s{sSC}, 1.0, {f2u(math.log2(math.e) / math.sqrt(20.0)):#x}
        s_sub_u32 s{T5}, s{sJT}, s{T5}
        s_lshl_b32 s{sPQ}, s{T5}, 4
        s_and_b32 s{T5}, s{sWAVE}, 2
        s_lshl_b32 s{T5}, s{T5}, 2
        s_add_u32 s{sPQ}, s{sPQ}, s{T5}
        s_lshl_b32 s{T5}, s{sRT}, 1
        s_and_b32 s{T6}, s{sWAVE}, 1
        s_add_u32 s{T5}, s{T5}, s{T6}
        s_mul_i32 s{T5}, s{T5}, s{T4}
        s_add_u32 s{sBASE}, s{sBASE}, s{T5}
        v_and_b32 v8, 31, v0
        v_and_b32 v9, 0x13, v0
        v_and_b32 v10, 4, v0
        v_lshl_or_b32 v9, v10, 1, v9
        v_and_b32 v10, 8, v0
        v_lshrrev_b32 v10, 1, v10
        v_or_b32 v9, v9, v10
        v_cndmask_b32 v8, v8, v9, s[{sM}:{sM+1}]
        v_lshrrev_b32 v9, 5, v0
        v_lshlrev_b32 v10, 3, v9
        v_lshl_add_u32 v12, v8, 4, v10
        v_add_u32 v13, 1024, v12
        v_mul_lo_u32 v10, v9, s{sHS}
        v_lshl_add_u32 v14, v8, 3, v10
        v_add_u32 v14, 1024, v14
        v_add_u32 v15, 256, v14""")
        for p in range(8):
            a(f"""s_add_u32 s{T4}, s{sPQ}, {p}
            s_mul_i32 s{T5}, s{T4}, 205
            s_lshr_b32 s{T5}, s{T5}, 10
            s_mul_i32 s{T6}, s{T5}, 5
            s_sub_u32 s{T4}, s{T4}, s{T6}
            s_lshl_b32 s{T5}, s{T5}, 1
            s_mul_i32 s{T5}, s{T5}, s{sHS}
            s_add_u32 s{T5}, s{T5}, s{sBASE}
            s_lshl_b32 s{T6}, s{T4}, 9
            s_add_u32 s{T5}, s{T5}, s{T6}
            s_sub_u32 s{T6}, s{sHS}, 1536
            s_cmp_ge_u32 s{T4}, 3
            s_cselect_b32 s{T6}, s{T6}, 0
            s_add_u32 s{sE+p}, s{T5}, s{T6}
            s_cmp_eq_u32 s{T4}, 2
            s_cselect_b64 s[{sM}:{sM+1}], -1, 0""")
            for j in range(2): a(f"v_cndmask_b32 v{self.EA+2*p+j}, v{12+j}, v{14+j}, s[{sM}:{sM+1}]")
    def gemm_epi_qk(self, i, j):
        a = self.a; L = []
        for g in range(4):
            d = 64 + 16 * (2*i + j) + 4*g
            for e in range(4): L.append(lambda d=d, e=e: a(f"v_mul_f32 v{d+e}, s{sSC}, v{d+e}"))
            L.append(lambda d=d: a(f"v_cvt_pk_bf16_f32 v{d}, v{d}, v{d+1}"))
            L.append(lambda d=d: a(f"v_cvt_pk_bf16_f32 v{d+1}, v{d+2}, v{d+3}"))
            L.append(lambda d=d, g=g: a.vm(f"buffer_store_dwordx2 {vr(d,2)}, v{self.EA+2*(4*i+g)+j}, s[{rWS}:{rWS+3}], s{sE+4*i+g} offen sc1{' nt' if 'q' in self.o('stnt', '') else ''}"))
        return L
    def epi_v_setup(self):
        a = self.a
        a(f"""s_sub_u32 s{T0}, s{sJT}, 10
        s_lshl_b32 s{T0}, s{T0}, 7
        s_and_b32 s{T1}, s{sWAVE}, 2
        s_lshl_b32 s{T1}, s{T1}, 5
        s_add_u32 s{T0}, s{T0}, s{T1}
        s_lshl_b32 s{T1}, s{sRT}, 1
        s_and_b32 s{T2}, s{sWAVE}, 1
        s_add_u32 s{T1}, s{T1}, s{T2}
        s_mul_i32 s{T1}, s{T1}, {KV_US}
        s_add_u32 s{sE}, s{T1}, {KV + 2560}
        s_mov_b32 s{T2}, {KV_HS - 320}
        v_and_b32 v8, 31, v0
        v_lshrrev_b32 v9, 5, v0
        v_mul_u32_u24 v9, 320, v9""")
        for j in range(2):
            a(f"""v_add_u32 v10, s{T0}, v8
            v_add_u32 v10, {32*j}, v10
            v_mul_u32_u24 v11, 3277, v10
            v_lshrrev_b32 v11, 16, v11
            v_mul_lo_u32 v11, v11, s{T2}
            v_lshl_add_u32 v10, v10, 4, v9
            v_add_u32 v{self.EA+j}, v10, v11""")
    def gemm_epi_v(self, i, j):
        a = self.a; L = []
        for s in range(2):
            d = 64 + 16 * (2*i + j) + 8*s
            for e in range(4): L.append(lambda d=d, e=e: a(f"v_cvt_pk_bf16_f32 v{d+e}, v{d+2*e}, v{d+2*e+1}"))
            L.append(lambda d=d, s=s: a.vm(f"buffer_store_dwordx4 {vr(d,4)}, v{self.EA+j}, s[{rWS}:{rWS+3}], s{sE} offen offset:{(2*i+s)*640} sc1{' nt' if 'q' in self.o('stnt', '') else ''}"))
        return L

    XS, WS_, PA, PB, PW, PS, HA, HL = 2, 6, 10, 11, 12, 13, 14, 15
    KR_, VV_, SW_, HD_, DV_, PO_ = 16, 176, 116, 132, 156, 160
    def dma_setup(self):
        a = self.a
        a(f"""v_lshrrev_b32 v16, 3, v0
        v_and_b32 v17, 7, v0
        v_lshrrev_b32 v18, 1, v16
        s_lshl_b32 s{T0}, s{sRT}, 7
        v_add_u32 v16, s{T0}, v16
        v_mul_u32_u24 v16, 1280, v16""")
        for n in range(4):
            a(f"""v_xor_b32 v19, {(4*n) & 7}, v18
            v_xor_b32 v19, v19, v17
            v_lshl_add_u32 v19, v19, 4, v16
            v_add_u32 v{self.XS+n}, {n*(8*1280-1024)}, v19""")
        a(f"""v_lshrrev_b32 v16, 4, v0
        v_and_b32 v17, 15, v0
        v_lshlrev_b32 v18, 2, v16
        v_xor_b32 v17, v17, v18
        v_mul_u32_u24 v16, 3840, v16
        v_lshl_add_u32 v16, v17, 4, v16
        s_lshl_b32 s{T0}, s{sJT}, 8
        v_add_u32 v{self.WS_}, s{T0}, v16""")
        for n in range(1, 4): a(f"v_add_u32 v{self.WS_+n}, {n*(4*3840-1024)}, v{self.WS_}")
        if self.o("rc", ""):
            c1, c2, c3 = (int(x) for x in self.o("rc", "").split(","))
            a(f"""s_mul_i32 s{T0}, s{sJT}, {c1}
            s_and_b32 s{T1}, s{sRT}, 3
            s_mul_i32 s{T1}, s{T1}, {c2}
            s_add_u32 s{T0}, s{T0}, s{T1}
            s_lshr_b32 s{T1}, s{sRT}, 2
            s_mul_i32 s{T1}, s{T1}, {c3}
            s_add_u32 s{T0}, s{T0}, s{T1}
            s_mul_i32 s{T1}, s{T0}, 205
            s_lshr_b32 s{T1}, s{T1}, 11
            s_mul_i32 s{T1}, s{T1}, 10
            s_sub_u32 s{sK}, s{T0}, s{T1}""")
            assert all(((v*205) >> 11) == v // 10 for v in range(15*c1 + 3*c2 + 3*c3 + 1))
            return
        P = self.o("rot", 4)
        a(f"s_add_u32 s{T0}, s{sJT}, s{sRT}")
        if P == 1: a(f"s_mov_b32 s{sK}, 0")
        elif P == 2: a(f"s_and_b32 s{T0}, s{T0}, 1\ns_mul_i32 s{sK}, s{T0}, 5")
        elif P == 3: a(f"s_mul_i32 s{T1}, s{T0}, 43\ns_lshr_b32 s{T1}, s{T1}, 7\ns_mul_i32 s{T1}, s{T1}, 3\ns_sub_u32 s{T0}, s{T0}, s{T1}\ns_mul_i32 s{T0}, s{T0}, 7\ns_lshr_b32 s{sK}, s{T0}, 1")
        elif P == 4: a(f"s_and_b32 s{T0}, s{T0}, 3\ns_mul_i32 s{T0}, s{T0}, 5\ns_lshr_b32 s{sK}, s{T0}, 1")
    def stage_dma(self, s):
        a = self.a
        sl = (s % NSLOT) * 16384
        a(f"s_lshl_b32 s{T0}, s{sK}, 7\ns_mul_i32 s{T1}, s{sK}, {64*3840}")
        def ld(txt):
            if a.n["vm"] - a.done["vm"] >= 62: a.wait(Tok("vm", a.done["vm"] + 8))
            return a.vm(txt)
        for h in range(4):
            a(f"s_mov_b32 m0, {L_X + sl + 4096*h}")
            a(f"s_add_u32 s{T2}, s{T0}, {32*1280*h}")
            for n in range(4): ld(f"buffer_load_dwordx4 v{self.XS+n}, s[{rA}:{rA+3}], s{T2} offen offset:{1024*n}{' nt' if s < self.o('gnt0', 0) else ''} lds")
            a(f"s_mov_b32 m0, {L_W + sl + 4096*h}")
            a(f"s_add_u32 s{T2}, s{T1}, {16*3840*h}")
            for n in range(4): t = ld(f"buffer_load_dwordx4 v{self.WS_+n}, s[{rB}:{rB+3}], s{T2} offen offset:{1024*n}{' nt' if s < self.o('gnt0', 0) else ''} lds")
        a(f"s_add_u32 s{sK}, s{sK}, 1\ns_cmp_eq_u32 s{sK}, 10\ns_cselect_b32 s{sK}, 0, s{sK}")
        return t
    def conv_scalars(self):
        a = self.a
        a(f"""s_min_u32 s{T0}, s{sLW}, 2
        s_add_u32 s{sCH}, s{sCH0}, s{T0}
        s_min_u32 s{sCH}, s{sCH}, 639
        s_mul_i32 s{T0}, s{T0}, {CONV_SZ}
        s_add_u32 s{T6}, s{T0}, {L_CONV}
        s_lshl_b32 s{T1}, s{sCH}, 1
        v_mov_b32 v{self.DV_}, s{T1}
        s_lshl_b32 s{T1}, s{sCH}, 12
        v_lshl_add_u32 v{self.HA}, v0, 4, s{T1}
        v_lshl_add_u32 v{self.HL}, v0, 4, s{T6}""")
        self.srd(rD, pH, 640 * 4096)
        a(f"s_mov_b32 m0, s{T6}\ns_nop 0")
        if "h" not in self.o("ab", ""):
            for g in range(4): a.vm(f"buffer_load_dwordx4 v{self.HA}, s[{rD}:{rD+3}], 0 offen offset:{1024*g}{self.nt} lds")
        self.srd(rC, pD, 640 * 2)
        return a.vm(f"buffer_load_ushort v{self.DV_}, v{self.DV_}, s[{rC}:{rC+3}], 0 offen")
    def pre_setup(self):
        self.a(f"""s_and_b32 s{T0}, s{sU}, 63
        s_lshr_b32 s{T1}, s{sU}, 6
        s_lshl_b32 s{T5}, s{sPI}, 6
        s_add_u32 s{T5}, s{T5}, {F1:#x}
        s_lshl_b32 s{T0}, s{T0}, 5
        s_lshl_b32 s{T1}, s{T1}, 7
        v_lshrrev_b32 v16, 3, v0
        v_and_b32 v17, 7, v0
        v_lshl_add_u32 v16, v16, 2, s{T0}
        v_lshl_add_u32 v18, v17, 4, s{T1}
        v_mul_u32_u24 v19, 1280, v16
        v_add_u32 v{self.PB}, v19, v18
        v_subrev_u32 v{self.PA}, 3840, v{self.PB}
        v_lshlrev_b32 v{self.PW}, 2, v18
        v_lshlrev_b32 v18, 11, v18
        v_lshlrev_b32 v16, 1, v16
        v_sub_u32 v18, v18, v16
        v_add_u32 v{self.PS}, {UR + 4088:#x}, v18""")
    def pre_loads(self):
        a = self.a
        if "k" in self.o("ab", ""): return
        self.srd(rC, pK, 2048 * 1280); self.srd(rD, pV, 2048 * 1280); self.srd(rB, pSH, 640 * 8)
        for j in range(4): a(f"buffer_load_dwordx4 {vr(self.KR_+12+4*j,4)}, v{self.PB}, s[{rC}:{rC+3}], 0 offen offset:{1280*j}{self.nt}")
        for j in range(4): a(f"buffer_load_dwordx4 {vr(self.VV_+4*j,4)}, v{self.PB}, s[{rD}:{rD+3}], 0 offen offset:{1280*j}{self.nt}")
        for j in range(3): a(f"buffer_load_dwordx4 {vr(self.KR_+4*j,4)}, v{self.PA}, s[{rC}:{rC+3}], 0 offen offset:{1280*j}{self.nt}")
        for j in range(4): a(f"buffer_load_dwordx4 {vr(self.SW_+4*j,4)}, v{self.PW}, s[{rB}:{rB+3}], 0 offen offset:{16*j}")
    def h_loads(self, D):
        a = self.a
        if "h" in self.o("ab", ""): return
        for g in range(4):
            a.vm(f"buffer_load_dwordx4 {vr(D+6*g,4)}, v{self.HA}, s[{rD}:{rD+3}], 0 offen offset:{1024*g}{self.nt}")
            a.vm(f"buffer_load_dwordx2 {vr(D+6*g+4,2)}, v{self.HA}, s[{rD}:{rD+3}], 0 offen offset:{1024*g+16}{self.nt}")
    def bar(self):
        a = self.a; L = a.newlabel("NB")
        a(f"s_cmp_ge_u32 s{sBC}, s{sNB}\ns_cbranch_scc1 {L}\ns_barrier\ns_add_u32 s{sBC}, s{sBC}, 1")
        a.label(L)
    def bar_rest(self):
        a = self.a; L, D = a.newlabel("BR"), a.newlabel("BRD")
        a.label(L)
        a(f"s_cmp_ge_u32 s{sBC}, s{sNB}\ns_cbranch_scc1 {D}\ns_barrier\ns_add_u32 s{sBC}, s{sBC}, 1\ns_branch {L}")
        a.label(D)
    def ewait(self, n=1):
        a = self.a; L, L2, D = a.newlabel("EW"), a.newlabel("EX"), a.newlabel("EWD")
        a.label(L)
        a(f"s_mov_b32 s{T1}, {n}")
        a.label(L2)
        a(f"""s_getreg_b32 s{T0}, hwreg(HW_REG_IB_STS)
        s_and_b32 s{T0}, s{T0}, 0x00c0000f
        s_cbranch_scc0 {D}
        s_cmp_ge_u32 s{sBC}, s{sNB}
        s_cbranch_scc1 {D}""")
        if n > 1: a(f"s_sleep 1\ns_sub_u32 s{T1}, s{T1}, 1\ns_cmp_lg_u32 s{T1}, 0\ns_cbranch_scc1 {L2}")
        a(f"""s_barrier
        s_add_u32 s{sBC}, s{sBC}, 1
        s_branch {L}""")
        a.label(D)
        a("s_waitcnt vmcnt(0)")
    def epoll(self, loads, tmp, cmp=None):
        a = self.a
        L, D = a.newlabel("EP"), a.newlabel("EPD")
        a(f"s_mov_b32 s{sCNT}, 0")
        a.label(L)
        k = 0
        for (va, r, imm, wd) in loads:
            ins = {1: "buffer_load_dword", 2: "buffer_load_dwordx2", 4: "buffer_load_dwordx4"}[wd]
            a(f"{ins} {vr(tmp+k, wd)}, v{va}, s[{r}:{r+3}], 0 offen offset:{imm} sc1"); k += wd
        self.ewait()
        self.poll_check(tmp, k, cmp)
        a(f"s_cbranch_scc1 {D}")
        a(f"s_add_u32 s{sCNT}, s{sCNT}, 1\ns_cmp_lt_u32 s{sCNT}, {POLL_MAX}\ns_cbranch_scc0 {D}\ns_sleep 1\ns_branch {L}")
        a.label(D)
    def pre_compute_list(self):
        L = []
        K, V, W, AC = 76, 90, 98, 106
        lo = lambda d, s: L.append(f"v_lshlrev_b32 v{d}, 16, v{s}")
        hi = lambda d, s: L.append(f"v_and_b32 v{d}, 0xffff0000, v{s}")
        for p in range(4):
            for j in range(7): lo(K+2*j, self.KR_+4*j+p); hi(K+2*j+1, self.KR_+4*j+p)
            for j in range(4): lo(V+2*j, self.VV_+4*j+p); hi(V+2*j+1, self.VV_+4*j+p)
            w = self.SW_ + 4*p
            lo(W, w); lo(W+1, w+2); hi(W+2, w); hi(W+3, w+2); lo(W+4, w+1); lo(W+5, w+3); hi(W+6, w+1); hi(W+7, w+3)
            for lag in (3, 2, 1, 0):
                for t in range(4):
                    kk = K + 2*(3 + t - lag)
                    if self.o("pk", 1):
                        if lag == 3: L.append(f"v_pk_mul_f32 {vr(AC+2*t,2)}, {vr(kk,2)}, {vr(W+2*lag,2)}")
                        else: L.append(f"v_pk_fma_f32 {vr(AC+2*t,2)}, {vr(kk,2)}, {vr(W+2*lag,2)}, {vr(AC+2*t,2)}")
                    else:
                        for h in range(2):
                            if lag == 3: L.append(f"v_mul_f32 v{AC+2*t+h}, v{kk+h}, v{W+2*lag+h}")
                            else: L.append(f"v_fmac_f32 v{AC+2*t+h}, v{kk+h}, v{W+2*lag+h}")
            for t in range(4):
                if self.o("pk", 1): L.append(f"v_pk_mul_f32 {vr(AC+2*t,2)}, {vr(AC+2*t,2)}, {vr(V+2*t,2)}")
                else:
                    for h in range(2): L.append(f"v_mul_f32 v{AC+2*t+h}, v{AC+2*t+h}, v{V+2*t+h}")
            for h in range(2):
                o = self.PO_ + 4*p + 2*h
                L.append(f"v_cvt_pk_bf16_f32 v{o}, v{AC+6+h}, v{AC+4+h}"); L.append(f"v_cvt_pk_bf16_f32 v{o+1}, v{AC+2+h}, v{AC+h}")
        return L
    def pre_stores(self):
        a = self.a
        if "s" in self.o("ab", ""): return
        if not self.o("st4", 1):
            for e in range(8):
                a(f"s_mov_b32 s{T0}, {4096*e}")
                a(f"buffer_store_dwordx2 {vr(self.PO_+2*e,2)}, v{self.PS}, s[{rWS}:{rWS+3}], s{T0} offen sc1")
            return
        for e in range(8): a(f"ds_write_b64 v{(self.PA, self.PW)[e & 1]}, {vr(self.PO_+2*e,2)} offset:{64*(e & 6)}")
        for k in range(1, 4): a(f"v_xor_b32 v{76+k}, {32*k}, v{self.PB}")
        a("s_waitcnt lgkmcnt(0)")
        for k in range(4): a(f"ds_read_b128 {vr(self.PO_+4*k,4)}, v{76+k if k else self.PB} offset:{1024*k}")
        for k in range(4):
            a(f"s_mov_b32 s{T0}, {65536*k}\ns_waitcnt lgkmcnt({3-k})")
            a(f"buffer_store_dwordx4 {vr(self.PO_+4*k,4)}, v{self.PS}, s[{rWS}:{rWS+3}], s{T0} offen sc1{' nt' if 'u' in self.o('stnt', '') else ''}")
    def pre_store_setup(self, spare=False):
        if not self.o("st4", 1): return
        assert (L_CONV + CONV_SZ + 2*CS) % 128 == 0 and CONV_SZ % 128 == 0 and (L_CONV + U_OFF) % 128 == 0
        if spare: self.a(f"s_lshl_b32 s{T0}, s{sWAVE}, 12")
        else: self.a(f"""s_mul_i32 s{T0}, s{sLW}, {CONV_SZ}
        s_add_u32 s{T0}, s{T0}, {L_CONV + 2*CS}
        s_cmp_eq_u32 s{sWAVE}, 7
        s_cselect_b32 s{T0}, {L_CONV + U_OFF}, s{T0}""")
        self.a(f"""v_and_b32 v76, 7, v0
        v_lshrrev_b32 v77, 3, v0
        v_sub_u32 v77, 7, v77
        v_lshrrev_b32 v78, 1, v77
        v_xor_b32 v78, v78, v76
        v_lshlrev_b32 v78, 4, v78
        v_and_b32 v77, 1, v77
        v_lshl_add_u32 v78, v77, 3, v78
        v_lshl_add_u32 v78, v76, 9, v78
        v_add_u32 v{self.PA}, s{T0}, v78
        v_xor_b32 v{self.PW}, 64, v{self.PA}
        v_lshrrev_b32 v76, 5, v0
        v_and_b32 v77, 31, v0
        v_xor_b32 v77, v77, v76
        v_lshlrev_b32 v77, 4, v77
        v_lshl_add_u32 v76, v76, 9, v77
        v_add_u32 v{self.PB}, s{T0}, v76
        s_lshr_b32 s{T1}, s{sU}, 6
        s_lshl_b32 s{T1}, s{T1}, 18
        s_and_b32 s{T0}, s{sU}, 63
        s_lshl_b32 s{T0}, s{T0}, 6
        s_sub_u32 s{T1}, s{T1}, s{T0}
        s_add_u32 s{T1}, s{T1}, {UR + 4032:#x}
        v_lshrrev_b32 v76, 2, v0
        v_lshlrev_b32 v76, 12, v76
        v_and_b32 v77, 3, v0
        v_lshl_add_u32 v76, v77, 4, v76
        v_add_u32 v{self.PS}, s{T1}, v76""")
    def h_valu(self, D, t0):
        L = [f"v_alignbit_b32 v{t0+e}, v{D+e+1}, v{D+e}, 16" for e in range(4)]
        L += [f"v_mov_b32 v{t0+4+e}, v{D+e+1}" for e in range(4)]
        return L + [f"v_alignbit_b32 v{t0+8+e}, v{D+e+2}, v{D+e+1}, 16" for e in range(4)]
    def h_writes(self, D, imm, t0):
        for r, src in enumerate((t0, t0 + 4, t0 + 8, D + 2)):
            self.a(f"ds_write_b128 v{self.HL}, {vr(src,4)} offset:{r*CS + imm}")
    def conv_prep(self, part):
        a = self.a
        HD, D = self.HD_, 112
        HA, UB, UE, YS = 16, 17, 18, 19
        if part == 0:
            for g in range(4):
                a(f"ds_read_b128 {vr(HD+6*g,4)}, v{self.HL} offset:{1024*g}")
                a(f"ds_read_b64 {vr(HD+6*g+4,2)}, v{self.HL} offset:{1024*g+16}")
            a(f"""v_lshrrev_b32 v22, 4, v0
            s_lshl_b32 s{T0}, s{sCH}, 12
            v_lshrrev_b32 v23, 2, v0
            v_and_b32 v23, 3, v23
            v_mul_u32_u24 v23, {CS}, v23
            v_lshl_add_u32 v23, v22, 4, v23
            v_and_b32 v24, 3, v0
            v_lshl_add_u32 v23, v24, 3, v23
            v_add_u32 v{HA}, s{T6}, v23
            v_and_b32 v23, 15, v0
            v_lshlrev_b32 v23, 5, v23
            v_lshlrev_b32 v24, 4, v22
            v_sub_u32 v24, v24, v23
            v_add_u32 v24, s{T6}, v24
            v_add_u32 v{UB}, {U_OFF + 480}, v24
            v_lshl_add_u32 v23, v22, 3, v23
            v_sub_u32 v24, s{T6}, v23
            v_add_u32 v{UE}, {U_OFF + 504}, v24
            s_add_u32 s{T0}, s{T0}, {YD:#x}
            v_add_u32 v{YS}, s{T0}, v23
            v_lshlrev_b32 v20, 16, v{self.DV_}""")
            for e in range(6): a(f"v_mov_b32 v{D+e}, 0")
            a("s_waitcnt lgkmcnt(0)")
            a(f"v_readlane_b32 s{T1}, v{HD}, 0\nv_readlane_b32 s{T2}, v{HD+1}, 0")
            for l in self.h_valu(HD, 64): a(l)
            a(f"v_writelane_b32 v{D+4}, s{T1}, 1\nv_writelane_b32 v{D+5}, s{T2}, 1")
        else:
            for g in range(1, 4):
                for l in self.h_valu(HD + 6*g, 64 + 12*g): a(l)
            for l in self.h_valu(D, 120): a(l)
    def h_store(self):
        a = self.a
        for g in range(4): self.h_writes(self.HD_ + 6*g, 32 + 1024*g, 64 + 12*g)
        a("s_mov_b32 exec_hi, 0")
        a(f"ds_write_b128 v{self.HL}, v[112:115] offset:{U_OFF + 4096}")
        a("s_mov_b64 exec, 3")
        self.h_writes(112, 0, 120)
        a("s_mov_b64 exec, -1")
        for d, r in ((2, 16), (3, 17), (4, 18), (5, 19), (7, 20)): a(f"v_mov_b32 v{d}, v{r}")

    def dma_role(self):
        a = self.a
        a.reset_counters()
        fine = self.o("fine", 0)
        self.dma_setup()
        a("s_waitcnt lgkmcnt(0)")
        self.srd(rA, pX, 2048 * 1280); self.srd(rB, pW, 640 * 3840)
        a(f"s_cmp_ge_u32 s{sI}, 30\ns_cbranch_scc1 L_D_SKIP")
        S = {0: self.stage_dma(0)}
        if self.o("s1early", 0): S[1] = self.stage_dma(1)
        a.label("L_D_SKIP")
        if self.stamps: a("v_mov_b32 v1, 0")
        self.stamp("start")
        self.srd(rWS, pWS, WS_SIZE)
        self.setup_call()
        a(f"s_cmp_ge_u32 s{sI}, 30\ns_cbranch_scc1 L_D_NT")
        if self.o("dprio", 0): a(f"s_setprio {self.o('dprio', 0)}")
        if not self.o("s1early", 0): S[1] = self.stage_dma(1)
        if self.o("hat", 0) == 0: self.conv_scalars()
        for s in range(10):
            a.wait(S[s])
            if fine: self.stamp(f"l.w{s}")
            a("s_barrier")
            if fine or s in (0, 5, 9): self.stamp(f"l.b{s}")
            if s + 2 <= 9 and "d" in self.o("ab", ""): S[s+2] = S[1]
            elif s + 2 <= 9:
                S[s+2] = self.stage_dma(s + 2)
                if fine: self.stamp(f"l.i{s}")
            if s == 8 and self.o("prep", 1): self.conv_prep(0)
            if s == 9 and self.o("prep", 1): self.conv_prep(1)
        a.label("L_CONV")
        self.conv()
    def side_role(self):
        a = self.a
        a.label("L_SIDE")
        a.reset_counters()
        a(f"""s_cmp_ge_u32 s{sI}, 30
        s_cbranch_scc1 L_S_NT
        s_lshr_b32 s{T0}, s{sLW}, 1
        s_lshl_b32 s{sU}, s{sPI}, 1
        s_add_u32 s{sU}, s{sU}, s{T0}
        s_mov_b32 s{T7}, {L_SIG}
        s_cmp_lg_u32 s{sWAVE}, 6
        s_cbranch_scc1 L_S_GO
        s_cmp_lt_u32 s{sG}, 32
        s_cselect_b32 s{T1}, s{sNCH}, 0
        s_cmp_lg_u32 s{T1}, 2
        s_cbranch_scc1 L_W6
        s_add_u32 s{sU}, s{sG}, 608
        s_add_u32 s{sPI}, s{sG}, 256
        s_mov_b32 s{sNU}, 1
        s_mov_b32 s{T7}, {L_SIG + 8}
        L_S_GO:""")
        slate = self.o("slate", 0)
        if slate: self.setup_call()
        self.pre_setup()
        a("s_waitcnt lgkmcnt(0)")
        if slate > 1: a(f"s_sleep {slate}")
        self.pre_loads()
        if self.o("hat", 0) == 0:
            L7 = a.newlabel("H7")
            a(f"s_cmp_ge_u32 s{sLW}, s{sNCH}\ns_cbranch_scc1 {L7}")
            self.conv_scalars()
            a.label(L7)
        if self.stamps: a("v_mov_b32 v1, 0")
        self.stamp("start")
        self.srd(rWS, pWS, WS_SIZE)
        if not slate: self.setup_call()
        a(f"""v_mov_b32 v44, {L_SIG}
        v_mov_b32 v46, 0
        v_mov_b32 v47, 0
        ds_write_b64 v44, v[46:47]
        ds_write_b64 v44, v[46:47] offset:8
        ds_write_b32 v44, v46 offset:16
        v_and_b32 v46, 1, v0
        v_lshlrev_b32 v46, 7, v46
        s_waitcnt lgkmcnt(0)""")
        self.pre_store_setup()
        self.bar()
        self.ewait(self.o("espin0", 1))
        self.stamp("s.kv")
        if self.o("sprio", 0): a(f"s_setprio {self.o('sprio', 0)}")
        PC = self.pre_compute_list()
        nch = self.o("nchunk", 2)
        per = -(-len(PC) // nch)
        for c in range(nch):
            for l in (PC[c*per:(c+1)*per] if "v" not in self.o("ab", "") else []): a(l)
            if c < nch - 1 or self.o("barst", 1): self.bar()
        self.pre_stores()
        if self.o("hat", 0) == 1:
            L7 = a.newlabel("H7")
            a(f"s_cmp_ge_u32 s{sLW}, s{sNCH}\ns_cbranch_scc1 {L7}")
            self.conv_scalars()
            a.label(L7)
        self.srd(rC, pDBG, 256)
        a(f"buffer_load_dword v47, v46, s[{rC}:{rC+3}], 0 offen sc1")
        self.stamp("s.st")
        self.ewait(self.o("espin", 1))
        self.last_flag(8, f"s{sNU}", T5, 114, base=f"s{T7}")
        self.stamp("s.F1set")
        a(f"s_cmp_eq_u32 s{sWAVE}, 7\ns_cbranch_scc1 L_FETCH\ns_cmp_eq_u32 s{sWAVE}, 6\ns_cbranch_scc1 L_IDLE2")
        a.label("L_PREP")
        if self.o("prep", 1):
            self.bar()
            self.conv_prep(0)
            self.bar()
            self.conv_prep(1)
        self.bar_rest()
        a("s_branch L_CONV")
        a.label("L_W6")
        a("s_waitcnt lgkmcnt(0)")
        a(f"s_cmp_lt_u32 s{sNCH}, 3\ns_cbranch_scc1 L_IDLE")
        self.conv_scalars()
        if self.stamps: a("v_mov_b32 v1, 0")
        self.stamp("start")
        self.srd(rWS, pWS, WS_SIZE)
        self.setup_call()
        self.bar()
        self.ewait()
        a("s_branch L_PREP")
        a.label("L_IDLE")
        if self.stamps: a("v_mov_b32 v1, 0")
        self.stamp("start")
        self.srd(rWS, pWS, WS_SIZE)
        self.setup_call()
        a.label("L_IDLE2")
        for l in self.att_init_list(): a(l)
        self.bar_rest()
        a("s_branch L_ATT")
        a.label("L_S_NT")
        a("s_waitcnt lgkmcnt(0)")
        if self.stamps: a("v_mov_b32 v1, 0")
        self.stamp("start")
        self.srd(rWS, pWS, WS_SIZE)
        self.setup_call()
        a.label("L_D_NT")
        a(f"s_call_b64 s[{sRET}:{sRET+1}], L_SPARE")
        a(f"s_mov_b32 s{sBC}, 1\ns_branch L_IDLE2")
        a.label("L_SPARE")
        a(f"""s_sub_u32 s{T0}, s{sPI}, 180
        s_lshl_b32 s{T0}, s{T0}, 3
        s_add_u32 s{sU}, s{T0}, s{sWAVE}""")
        self.pre_setup()
        self.pre_loads()
        a(f"""v_mov_b32 v44, {L_SIG}
        v_mov_b32 v46, 0
        v_mov_b32 v47, 0
        ds_write_b64 v44, v[46:47]
        ds_write_b64 v44, v[46:47] offset:8
        s_waitcnt lgkmcnt(0)
        s_barrier""")
        a.label("L_SPARE2")
        self.pre_store_setup(spare=True)
        a("s_waitcnt vmcnt(0)")
        for l in PC: a(l)
        self.pre_stores()
        a.label("L_SPARE3")
        a("s_waitcnt vmcnt(0)")
        self.last_flag(8, f"s{sNU}", T5, 114)
        a(f"s_setpc_b64 s[{sRET}:{sRET+1}]")
        self.fetcher()

    def fetcher(self):
        a = self.a
        a.label("L_FETCH")
        a.reset_counters()
        OK = a.newlabel("CNTOK")
        a("s_setprio 0")
        self.poll_check(47, 1, cmp="v_cmp_le_u32 vcc, 0x80, v47")
        a(f"s_cbranch_scc1 {OK}")
        self.epoll([(46, rC, 0, 1)], 47, cmp="v_cmp_le_u32 vcc, 0x80, v47")
        a.label(OK)
        a(f"""s_andn2_b32 s{T1}, s{sCH0}, 63
        s_add_u32 s{T2}, s{sCH0}, s{sNCH}
        s_sub_u32 s{T2}, s{T2}, 1
        s_or_b32 s{T2}, s{T2}, 63""")
        for r in (T1, T2):
            a(f"""s_lshr_b32 s{T3}, s{r}, 3
            s_add_u32 s{T3}, s{T3}, 180
            s_lshr_b32 s{T4}, s{r}, 1
            s_cmp_ge_u32 s{r}, 480
            s_cselect_b32 s{T4}, s{T3}, s{T4}
            s_sub_u32 s{T3}, s{r}, 352
            s_cmp_ge_u32 s{r}, 608
            s_cselect_b32 s{r}, s{T3}, s{T4}""")
        a(f"""v_add_u32 v9, s{T1}, v0
        v_min_u32 v9, s{T2}, v9
        v_lshlrev_b32 v9, 6, v9
        v_add_u32 v9, {F1:#x}, v9""")
        if self.o("pgate", 9):
            LG, LD = a.newlabel("PG"), a.newlabel("PGD")
            a.label(LG)
            a(f"s_cmp_ge_u32 s{sBC}, {self.o('pgate', 9)}\ns_cbranch_scc1 {LD}\ns_cmp_ge_u32 s{sBC}, s{sNB}\ns_cbranch_scc1 {LD}\ns_barrier\ns_add_u32 s{sBC}, s{sBC}, 1\ns_branch {LG}")
            a.label(LD)
        if "p" not in self.o("ab", ""): self.mpoll([9], 16, elastic=True)
        self.stamp("f.F1ok")
        a(f"s_lshl_b32 s{T2}, s{sCH0}, 12\ns_add_u32 s{T2}, s{T2}, {UR:#x}")
        for c in range(3 if "u" not in self.o("ab", "") else 0):
            L = a.newlabel("NOU")
            if c == 2: a(f"s_cmp_lt_u32 s{sNCH}, 3\ns_cbranch_scc1 {L}")
            a(f"s_mov_b32 m0, {L_CONV + c*CONV_SZ + U_OFF}\ns_add_u32 s{T1}, s{T2}, {4096*c}")
            for j in range(4): a(f"buffer_load_dwordx4 v{L16}, s[{rWS}:{rWS+3}], s{T1} offen offset:{1024*j} sc1 lds")
            if c == 2: a.label(L)
        a("v_mov_b32 v45, 1")
        self.ewait()
        a("ds_write_b32 v44, v45")
        self.stamp("f.u")
        self.bar_rest()
        for l in self.att_init_list(): a(l)
        a("s_branch L_ATT")
    def kv_fetch(self):
        a = self.a
        a.reset_counters()
        OK = a.newlabel("CNTOK")
        self.poll_check(29, 1, cmp="v_cmp_le_u32 vcc, 0x80, v29")
        a(f"s_cbranch_scc1 {OK}")
        self.poll([(28, rC, 0, 1)], 29, cmp="v_cmp_le_u32 vcc, 0x80, v29")
        a.label(OK)
        self.sig_wait(12, 4)
        self.sig_wait(8, f"s{sNU}")
        self.mpoll([30, 31], 16)
        self.stamp("f.F2ok")
        a(f"""s_mul_i32 s{T0}, s{sHEAD}, {Q_HS}
        s_mul_i32 s{T1}, s{sQB}, {4*Q_US}
        s_add_u32 s{T0}, s{T0}, s{T1}
        s_add_u32 s{T0}, s{T0}, {QO:#x}""")
        def lin(sbase, lds0, n):
            T = []
            for k in range(n):
                if k % 4 == 0: a(f"s_mov_b32 m0, {lds0 + 1024*k}\ns_add_u32 s{T1}, s{sbase}, {1024*k}")
                T.append(a.vm(f"buffer_load_dwordx4 v{L16}, s[{rWS}:{rWS+3}], s{T1} offen offset:{1024*(k%4)} sc1 lds"))
            return T
        if self.o("kv3", 1):
            lin(T0, L_Q, 10)
            T = lin(sKVB, 0, 40)
            a(f"v_mov_b32 v16, {L_SIG}\nv_mov_b32 v17, 1\nv_mov_b32 v18, 2")
            a.wait(T[9]); a("ds_write_b32 v16, v17 offset:4")
            a.wait(T[19]); a("ds_write_b32 v16, v18 offset:4")
        else:
            lin(T0, L_Q, 10)
            lin(sKVB, 0, 40)
            a(f"v_mov_b32 v16, {L_SIG}\nv_mov_b32 v17, 3")
            a.wait_all()
            a("ds_write_b32 v16, v17 offset:4")
        self.stamp("f.kv0")
    def kv_fetch_setup(self):
        a = self.a
        self.srd(rC, pDBG, 256)
        a(f"""s_mul_i32 s{T0}, s{sHEAD}, 20
        v_and_b32 v28, 15, v0
        v_lshrrev_b32 v30, 4, v0
        v_and_b32 v31, 1, v30
        v_mul_u32_u24 v31, 19, v31
        v_add_u32 v31, s{T0}, v31
        v_lshrrev_b32 v31, 7, v31
        v_lshrrev_b32 v30, 1, v30
        v_mul_u32_u24 v30, 5, v30
        v_add3_u32 v30, v30, v31, 5
        v_lshl_add_u32 v30, v30, 4, v28
        v_lshlrev_b32 v30, 6, v30
        v_add_u32 v30, {F2:#x}, v30
        v_lshl_add_u32 v31, v31, 4, s{sQB}
        v_add_u32 v31, s{sQB}, v31
        v_and_b32 v28, 1, v0
        v_add_u32 v31, v31, v28
        v_lshlrev_b32 v31, 6, v31
        v_add_u32 v31, {F2:#x}, v31
        v_lshlrev_b32 v28, 7, v28""")

    def sig_check(self, off, thr, tok):
        a = self.a
        OK = a.newlabel("SOK")
        a.wait(tok)
        a(f"v_readfirstlane_b32 s{T0}, v15\ns_nop 0\ns_cmp_ge_u32 s{T0}, {thr}\ns_cbranch_scc1 {OK}")
        self.sig_wait(off, thr)
        a.label(OK)
    def sig_wait(self, off, thr=1):
        a = self.a
        L, D = a.newlabel("SIG"), a.newlabel("SIGD")
        a(f"v_mov_b32 v14, {L_SIG}\ns_mov_b32 s{sCNT}, 0")
        a.label(L)
        a(f"""ds_read_b32 v15, v14 offset:{off}
        s_waitcnt lgkmcnt(0)
        v_readfirstlane_b32 s{T0}, v15
        s_add_u32 s{sCNT}, s{sCNT}, 1
        s_cmp_ge_u32 s{T0}, {thr}
        s_cbranch_scc1 {D}
        s_sleep 1
        s_cmp_lt_u32 s{sCNT}, {POLL_MAX*40}
        s_cbranch_scc1 {L}""")
        a.label(D)
    def conv(self):
        a = self.a
        a.reset_counters()
        ACC, FR = 16, 64
        HA, UB, UE, YS, DV = 2, 3, 4, 5, self.DV_
        a(f"s_setprio {self.o('hprio', 0)}")
        if not self.o("prep", 1): self.conv_prep(0); self.conv_prep(1)
        self.h_store()
        self.stamp("v.h")
        self.sig_wait(0)
        a(f"s_setprio {self.o('cprio', 3)}")
        a.reset_counters()
        def reads(rho):
            st = FR + 64 * (rho & 1)
            ra = lambda i, q: (lambda: a.ds(f"ds_read_b64_tr_b16 {vr(st+4*i+2*q,2)}, v{HA} offset:{64*(8*i+rho) + 8*q}"))
            rb = lambda d: (lambda: a.ds(f"ds_read_b128 {vr(st+32+4*d,4)}, v{UB} offset:{64*(56 - (8*d - rho))}"))
            L = [("A0", ra(0,0)), ("A0", ra(0,1))] + [(f"B{d}", rb(d)) for d in range(8)]
            for i in range(1, 8): L += [(f"A{i}", ra(i,0)), (f"A{i}", ra(i,1))]
            return L
        toks = {}
        for n, f in reads(0): toks[n] = f()
        self.stamp("v.u")
        init = self.att_init_list()
        for rho in range(8):
            st = FR + 64 * (rho & 1)
            nxt = reads(rho + 1) if rho < 7 else []
            out = {}; k = 0; m = 0
            for i in range(8):
                for c in range(i, 8):
                    a.wait(toks[f"A{i}"], toks[f"B{c-i}"])
                    d = ACC + 4 * c
                    a(f"v_mfma_f32_16x16x32_bf16 {vr(d,4)}, {vr(st+4*i,4)}, {vr(st+32+4*(c-i),4)}, {'0' if (rho == 0 and i == 0) else vr(d,4)}")
                    m += 1
                    if m >= 4 and k < len(nxt): out[nxt[k][0]] = nxt[k][1](); k += 1
                    elif m >= 28 and init: a(init.pop())
            assert k == len(nxt)
            toks = out
        assert not init
        self.stamp("v.mfma")
        tu = [a.ds(f"ds_read_b64 {vr(FR+2*c,2)}, v{UE} offset:{512*(7-c)}") for c in range(8)]
        for c in range(8):
            a.wait(tu[c])
            d, u, t = ACC + 4*c, FR + 2*c, FR + 32 + 8*(c & 3)
            a(f"""v_and_b32 v{t}, 0xffff0000, v{u+1}
            v_lshlrev_b32 v{t+1}, 16, v{u+1}
            v_and_b32 v{t+2}, 0xffff0000, v{u}
            v_lshlrev_b32 v{t+3}, 16, v{u}""")
            for e in range(4): a(f"v_fmac_f32 v{d+e}, v7, v{t+e}")
            a(f"v_cvt_pk_bf16_f32 v{t+4}, v{d}, v{d+1}\nv_cvt_pk_bf16_f32 v{t+5}, v{d+2}, v{d+3}")
            a.vm(f"buffer_store_dwordx2 {vr(t+4,2)}, v{YS}, s[{rWS}:{rWS+3}], 0 offen offset:{512*c} sc1{' nt' if 'y' in self.o('stnt', '') else ''}")
        self.stamp("v.st")

    def m2b(self, S, j=1): self.a(f"v_mfma_f32_32x32x4_2b_bf16 {vr(S,32)}, {vr(KRM,2)}, {vr((QR2, QR)[j],2)}, 0")
    def mqk(self, S, h, j=1): self.a(f"v_mfma_f32_32x32x16_bf16 {vr(S+16*h,16)}, {vr(KM+4*h,4)}, {vr((QM2, QM)[j],4)}, {vr(S+16*h,16)}")
    def smf(self, V, P, j=1): self.a(f"v_smfmac_f32_32x32x32_bf16 {vr((O2, O_)[j],16)}, {vr(V,4)}, {vr(P,8)}, v{IDX}")
    def side_kv(self, add):
        a = self.a
        def mk(j):
            def f():
                if j == 0: a(f"s_add_u32 m0, s{sKVW}, {add*KV_US}\ns_add_u32 s{T5}, s{sKVG}, {add*KV_US}")
                if j == 4: a(f"s_add_u32 m0, m0, 4096\ns_add_u32 s{T5}, s{T5}, 4096")
                a.vm(f"buffer_load_dwordx4 v{L16}, s[{rWS}:{rWS+3}], s{T5} offen offset:{1024*(j%4)} sc1 lds")
            return f
        return [mk(j) for j in range(5)]
    def side_wo(self):
        a = self.a
        def mk(k):
            def f():
                L = a.newlabel("NOWO")
                if k == 0: a(f"s_mul_i32 s{T4}, s{sWAVE}, {13*1024}\ns_add_u32 m0, s{T4}, {L_WO}")
                else: a("s_add_u32 m0, m0, 1024")
                if k % 5 == 0: a(f"s_mov_b32 s{T5}, {40960*(k//5)}")
                elif k < 9: a("s_nop 0")
                if k >= 9: a(f"s_cmp_eq_u32 s{sWAVE}, 7\ns_cbranch_scc1 {L}")
                a.vm(f"buffer_load_dwordx4 v{WOV + k%5}, s[{rA}:{rA+3}], s{T5} offen{' nt' if 'w' in self.o('stnt', '') else ''} lds")
                if k >= 9: a.label(L)
            return f
        return [mk(k) for k in range(13)]
    def side_yd(self):
        a = self.a
        def f0():
            OK = a.newlabel("F3OK")
            a.wait(self.tF3)
            self.poll_check(F3T, 2)
            a(f"s_cbranch_scc1 {OK}")
            snap = a.snapshot(); self.poll([(AF3, rWS, 0, 2)], F3T); a.restore(snap)
            a.label(OK)
            a(f"s_mul_i32 s{T5}, s{sWAVE}, 1280\ns_add_u32 m0, s{T5}, {L_YD}\ns_mov_b32 s{T5}, {8*4096 - 1024}")
            a.vm(f"buffer_load_dwordx4 v{YDV}, s[{rWS}:{rWS+3}], 0 offen sc1 lds")
            a("s_mov_b64 exec, 0xffff")
            a.vm(f"buffer_load_dwordx4 v{YDV}, s[{rWS}:{rWS+3}], s{T5} offen offset:1024 sc1 lds")
            a("s_mov_b64 exec, -1")
        return [f0]
    def side_x(self):
        a = self.a
        def mk(j):
            def f():
                if j == 0: self.srd(rA, pX, 2048 * 1280)
                a.vm(f"buffer_load_dwordx2 {vr(XE+2*j,2)}, v{AOUT}, s[{rA}:{rA+3}], 0 offen offset:{32*j}")
            return f
        def f3(): self.tF3 = a.vm(f"buffer_load_dwordx2 {vr(F3T,2)}, v{AF3}, s[{rWS}:{rWS+3}], 0 offen sc1")
        return [mk(j) for j in range(3)] + [f3]
    def attention(self):
        a = self.a
        self.a.lines.append('; ---- attention: S^T = K Q^T (Q pre-scaled by log2(e)/sqrt(20)), P = exp2(S), O^T += V^T P^T; a ones row in V^T gives the row sum.')
        a.label("L_ATT")
        a.reset_counters()
        self.sig_wait(4)
        self.stamp("att0")
        US2 = 2 * KV_US
        base = {"K": 0, "V": 0}
        def bump(kind, u):
            while u * US2 - base[kind] > 5 * US2:
                base[kind] += 6 * US2
                for r in ((AKM, AKR) if kind == "K" else (AV,)): a(f"v_add_u32 v{r}, {6*US2}, v{r}")
            return u * US2 - base[kind]
        def rKR(u): o = bump("K", u); return a.ds(f"ds_read_b64 {vr(KRM,2)}, v{AKR} offset:{o}")
        def rKM(u, h): o = bump("K", u); return a.ds(f"ds_read_b128 {vr(KM+4*h,4)}, v{AKM} offset:{o + 1024*h}")
        def rV(u):
            o = bump("V", u)
            a(f"s_mov_b64 exec, s[{sVMASK}:{sVMASK+1}]")
            for g in range(4): t = a.ds(f"ds_read_b128 {vr(VS[u&1]+4*g,4)}, v{AV} offset:{o + 640*g}")
            a("s_mov_b64 exec, -1")
            return t
        tq = [a.ds(f"ds_read_b64 {vr(QR2,2)}, v{AQR2} offset:2048")]
        tKR = rKR(0)
        tq.append(a.ds(f"ds_read_b128 {vr(QM2,4)}, v{AQM2}"))
        tK0 = rKM(0, 0); tK1 = rKM(0, 1)
        tq.append(a.ds(f"ds_read_b64 {vr(QR,2)}, v{AQR} offset:2048"))
        tq.append(a.ds(f"ds_read_b128 {vr(QM,4)}, v{AQM}"))
        tV = {0: rV(0)}
        side = self.side_kv(8)
        a.wait(tq[0], tKR); self.m2b(S_, 0)
        for _ in range(4): side.pop(0)()
        for e in range(16): a(f"v_mov_b32 v{O2+e}, 0")
        a.wait(tq[1], tK0); self.mqk(S_, 0, 0)
        a.wait(tK1); self.mqk(S_, 1, 0)
        side.pop(0)()
        if self.o("kv3", 1):
            self.sig_check(4, 2, a.ds("ds_read_b32 v15, v14 offset:4")); a.nop(2)
        else: a.nop(8)
        zones = {0: self.o("z0", "2,4"), 6: self.o("z1", "3,5,7"), 14: self.o("z1", "3,5,7"), 22: self.o("z3", "3,5,7"), 30: self.o("z4", "1")}
        if self.o("nob30", 0): del zones[30]
        prio = {}
        if self.o("prio", 1):
            for u0, z in zones.items():
                zz = [int(x) for x in z.split(",")]
                prio[u0] = len(zz)
                for k, d in enumerate(zz): prio[u0 + d] = len(zz) - 1 - k
        for t in range(32):
            if t % 8 == 6 and t < 30:
                assert not side
                side = self.att_sync(t // 8)
            if t == 1 and self.o("kv3", 1):
                L3 = a.newlabel("N3")
                a(f"s_cmp_lg_u32 s{sWAVE}, 3\ns_cbranch_scc1 {L3}\nv_mov_b32 v15, 3\ns_waitcnt vmcnt(5)\nds_write_b32 v14, v15 offset:4")
                a.label(L3)
            if t == 2 and self.o("kv3", 1): self.sig_check(4, 3, tsig)
            if t == 30 and not self.o("nob30", 0): a("s_barrier")
            if t in prio: a(f"s_setprio {prio[t]}")
            u, j = t >> 1, t & 1
            X, Y = S_ + 32 * j, S_ + 32 * (1 - j)
            Vc, Vp = VS[u & 1], VS[((t - 1) >> 1) & 1]
            nx = t < 31
            rl = j == 0 and u < 15
            P = [int(x) for x in self.o("pos", "2,6,14,18,22,26,30").split(",")]
            SP = [int(x) for x in self.o("spos", "10,20").split(",")]
            for p in range(32):
                if p == P[0]:
                    if t == 0: a.wait(tq[2])
                    if j == 1 and nx: a.wait(tKR)
                    if t > 0: self.smf(Vp + 12, Y + 24, 1 - j)
                    if rl and self.o("vpos", -1) < 0: tV[u+1] = rV(u + 1)
                if p == self.o("vpos", -1) and rl: tV[u+1] = rV(u + 1)
                if p == P[1] and nx:
                    self.m2b(Y, 1 - j)
                    if rl: tKR = rKR(u + 1)
                if t == 1 and p == 24 and self.o("kv3", 1): tsig = a.ds("ds_read_b32 v15, v14 offset:4")
                if p in SP and side: side.pop(0)()
                if t == 31 and p in (16, 20, 24): a.ds(f"ds_write_b128 v{AEX}, {vr(O2+(p-16),4)} offset:{256*(p-16)}")
                if t == 31 and p == 28: a.ds(f"ds_write_b32 v{AEX}, v{O2+12} offset:3072")
                if p == P[2]: a.wait(tV[u]); self.smf(Vc, X, j)
                if p == P[3]: self.smf(Vc + 4, X + 8, j)
                if p == P[4] and nx:
                    a.wait(tK0, tK1, tq[3]); self.mqk(Y, 0, 1 - j)
                    if rl: tK0 = rKM(u + 1, 0)
                if p == P[5]: self.smf(Vc + 8, X + 16, j)
                if p == P[6] and nx:
                    self.mqk(Y, 1, 1 - j)
                    if rl: tK1 = rKM(u + 1, 1)
                a(f"v_exp_f32 v{X+p}, v{X+p}")
        assert not side
        a.nop(2)
        self.smf(VS[1] + 12, S_ + 32 + 24, 1)
        self.stamp("attend")
        a("s_setprio 0")
        a.wait_all(vm=False)
        a("s_barrier")
        tl = a.ds(f"ds_read_b32 v{O2+12}, v{APX} offset:3072")
        tp = [a.ds(f"ds_read_b128 {vr(O2+4*k,4)}, v{APX} offset:{1024*k}") for k in range(3)]
        self.fin_pre()
        a.nop(1)
        a.wait(tl); a(f"v_add_f32 v{O_+12}, v{O_+12}, v{O2+12}")
        for k in range(3):
            a.wait(tp[k])
            for e in range(4): a(f"v_add_f32 v{O_+4*k+e}, v{O_+4*k+e}, v{O2+4*k+e}")
    def att_sync(self, k):
        a = self.a
        if k == 0:
            a.wait_all(vm=True, ds=False, force=True)
            L = a.newlabel("NOF3")
            a(f"s_cmp_ge_u32 s{sLW}, s{sNCH}\ns_cbranch_scc1 {L}")
            a(f"s_lshl_b32 s{T0}, s{sCH}, 2\ns_add_u32 s{T0}, s{T0}, {F3:#x}")
            self.flag_store(T0, 14)
            a.label(L)
            a("s_barrier")
            self.stamp("sync0")
            return self.side_kv(16) + self.side_kv(24)
        if k == 1:
            a.wait_all(vm=True, ds=False, force=True)
            a("s_barrier")
            self.stamp("sync1")
            return self.side_x()
        a("s_barrier")
        self.stamp("sync2")
        self.srd(rA, pWO, 640 * 1280)
        return self.side_yd() + self.side_wo()

    def fin_pre(self):
        self.a(f"""v_lshlrev_b32 v2, 3, v0
        s_mov_b32 s{T2}, {f2u(2.0**-60):#x}
        s_mov_b32 s{T3}, {f2u(2.0**60):#x}
        s_mov_b32 s{T4}, 0x7f7fffff""")
    def finish(self):
        a = self.a
        O, TMP = O_, 16
        ACC, OF, WF, GG = 224, 16, 56, 14
        self.a.lines.append('; ---- softmax guard: the loop above shifts by 0 instead of the row max. That is exact as long as the row sum l lies in [2^-60, 2^60]')
        self.a.lines.append(';      and O is finite (no exponential overflowed, none that matters underflowed). Otherwise this wave redoes its rows at L_SLOW')
        a.label("L_NORM")
        a(f"v_rcp_f32 v{TMP+4}, v{O+12}")
        a(f"v_cmp_le_f32 vcc, s{T2}, v{O+12}\nv_cmp_ge_f32 s[{sM}:{sM+1}], s{T3}, v{O+12}")
        for e in range(8): a(f"v_mul_f32 v{O+e}, v{O+e}, v{TMP+4}")
        for e in range(4): a(f"v_cvt_pk_bf16_f32 v{TMP+8+e}, v{O+2*e}, v{O+2*e+1}")
        a(f"buffer_store_dwordx4 {vr(TMP+8,4)}, v{L16}, s[{rWS}:{rWS+3}], s{sOMS} offen sc1")
        for e in range(8, 12): a(f"v_mul_f32 v{O+e}, v{O+e}, v{TMP+4}")
        for e in range(4, 6): a(f"v_cvt_pk_bf16_f32 v{TMP+8+e}, v{O+2*e}, v{O+2*e+1}")
        a("s_mov_b32 exec_hi, 0")
        a(f"buffer_store_dwordx2 {vr(TMP+12,2)}, v2, s[{rWS}:{rWS+3}], s{sORS} offen sc1")
        a("s_mov_b32 exec_hi, -1")
        for e in range(4): a(f"v_add_f32 v{TMP+e}, abs(v{O+e}), abs(v{O+4+e})")
        for e in range(4): a(f"v_add_f32 v{TMP+e}, v{TMP+e}, abs(v{O+8+e})")
        a(f"""v_add_f32 v{TMP}, v{TMP}, v{TMP+1}
        v_add_f32 v{TMP+2}, v{TMP+2}, v{TMP+3}
        s_and_b64 s[{sM}:{sM+1}], s[{sM}:{sM+1}], vcc
        v_add_f32 v{TMP}, v{TMP}, v{TMP+2}
        v_cmp_ge_f32 vcc, s{T4}, v{TMP}
        s_nop 1
        s_and_b64 s[{sM}:{sM+1}], s[{sM}:{sM+1}], vcc
        s_cmp_eq_u64 s[{sM}:{sM+1}], exec
        s_cbranch_scc1 L_NORM_OK
        s_cmp_eq_u32 s{sSLOW}, 0
        s_cbranch_scc1 L_SLOW""")
        a.label("L_NORM_OK")
        self.srd(rA, pOUT, 2048 * 1280)
        a(f"s_lshl_b32 s{T0}, s{sKH}, 2\ns_add_u32 s{T0}, s{T0}, {L_RDY}\nv_mov_b32 v{AQM}, s{T0}\nv_mov_b32 v{AQR}, 0\nds_write_b32 v{AQM}, v{AQR}")
        a("s_waitcnt vmcnt(0) lgkmcnt(0)\ns_barrier")
        a.reset_counters()
        L = a.newlabel("NOF4")
        a(f"s_cmp_lg_u32 s{sWAVE}, 0\ns_cbranch_scc1 {L}")
        self.flag_store(sF4S, 2)
        a.label(L)
        a.reset_counters()
        self.stamp("F4set")
        tg = a.vm(f"buffer_load_dword v{GG}, v{AG}, s[{rWS}:{rWS+3}], 0 offen sc1")
        def wfrag(step, regstep):
            toks = []
            for b in range(5):
                for q in range(2):
                    if step < 8: ad, off = (WM0 if b < 2 else WM1), (40*step + 8*q)*160 + 32*b
                    else: ad, off = (WR0 if b < 2 else WR1), (160*(step-8) + 80*q)*160 + 32*b
                    t = a.ds(f"ds_read_b64_tr_b16 {vr(int(WF + 20*regstep) + 4*b + 2*q, 2)}, v{ad} offset:{L_WO + off}")
                toks.append(t)
            return toks
        tw = {s: wfrag(s, s) for s in range(8)}
        YR, BB = 2, 16
        ty = [a.ds(f"ds_read_b64_tr_b16 {vr(YR+2*b,2)}, v{AYD} offset:{2048*b}") for b in range(3)]
        keep = [216, 217, 218, 219, 220, 221, 222, 223, 2, 3, 4, 5]
        for b in range(3):
            a.wait(ty[b])
            x, y = XE + 2*b, YR + 2*b
            a(f"""v_lshlrev_b32 v16, 16, v{x}
            v_and_b32 v17, 0xffff0000, v{x}
            v_lshlrev_b32 v18, 16, v{x+1}
            v_and_b32 v19, 0xffff0000, v{x+1}
            v_lshlrev_b32 v20, 16, v{y}
            v_and_b32 v21, 0xffff0000, v{y}
            v_lshlrev_b32 v22, 16, v{y+1}
            v_and_b32 v23, 0xffff0000, v{y+1}""")
            for e in range(4): a(f"v_mul_f32 v{keep[4*b+e]}, v{16+e}, v{20+e}")
        a("v_lshrrev_b32 v16, 4, v0\nv_and_b32 v16, 1, v16\nv_mul_u32_u24 v16, 24, v16")
        a(f"v_add_u32 v15, v16, v{AOUT}\nv_mov_b32 v6, v{AQM}")
        a.wait_all(vm=False)
        sPEND, sR = sM2, T6
        a(f"s_mov_b64 s[{sPEND}:{sPEND+1}], 0xffff")
        def wait_group(done):
            L, N, D = a.newlabel("GW"), a.newlabel("GN"), a.newlabel("GD")
            a(f"s_mov_b32 s{sCNT}, 0\ns_cmp_lg_u32 s{sTB}, 0\ns_cbranch_scc1 {N}")
            a.label(L)
            a(f"""s_mov_b64 exec, s[{sPEND}:{sPEND+1}]
            buffer_load_dword v7, v{AF4}, s[{rWS}:{rWS+3}], 0 offen sc1
            s_waitcnt vmcnt(0)
            v_cmp_eq_u32 vcc, 0, v7
            s_add_u32 s{sCNT}, s{sCNT}, 1
            s_mov_b64 exec, -1
            s_mov_b64 s[{sPEND}:{sPEND+1}], vcc
            s_cmp_ge_u32 s{sCNT}, {POLL_MAX}
            s_cselect_b32 s{sPEND}, 0, s{sPEND}
            s_and_b32 s{T0}, s{sPEND}, 0xff
            s_cselect_b32 s{sR}, 0, 1
            s_and_b32 s{T0}, s{sPEND}, 0xff00
            s_cselect_b32 s{T0}, 0, 2
            s_or_b32 s{sR}, s{sR}, s{T0}
            s_and_b32 s{T0}, s{sR}, {3 - done}
            s_cbranch_scc1 {L}P
            s_sleep {self.o('psleep', 2)}
            s_branch {L}""")
            a.label(L + "P")
            a(f"v_mov_b32 v7, s{sR}\nds_write_b32 v6, v7\ns_branch {D}")
            a.label(N)
            a(f"""ds_read_b32 v7, v6
            s_waitcnt lgkmcnt(0)
            v_readfirstlane_b32 s{sR}, v7
            s_add_u32 s{sCNT}, s{sCNT}, 1
            s_cmp_ge_u32 s{sCNT}, {POLL_MAX*40}
            s_cselect_b32 s{sR}, 3, s{sR}
            s_and_b32 s{T0}, s{sR}, {3 - done}
            s_cbranch_scc1 {D}
            s_sleep 1
            s_branch {N}""")
            a.label(D)
        def oloads(steps, base):
            to = {}
            for k, s in enumerate(steps):
                if s < 8:
                    a(f"s_mov_b32 s{T0}, {s*131072}")
                    to[s] = a.vm(f"buffer_load_dwordx4 {vr(base+4*k,4)}, v{AOM}, s[{rWS}:{rWS+3}], s{T0} offen sc1")
                else:
                    for q in range(2):
                        a(f"s_mov_b32 s{T0}, {(8*(s-8)+4*q)*16384}")
                        to[s] = a.vm(f"buffer_load_dwordx2 {vr(base+4*k+2*q,2)}, v{AOR}, s[{rWS}:{rWS+3}], s{T0} offen sc1")
            return to
        def mm(steps, to, obase, acc, wrem, trem, after=None):
            for k, s in enumerate(steps):
                a.wait(to[s])
                for b in (range(5) if s < 8 else (2, 3, 4, 0, 1)):
                    w = WF + 20*s + 4*b if s < 8 else wrem + 4*b
                    if s >= 8: a.wait(trem()[b])
                    a(f"v_mfma_f32_16x16x32_bf16 {vr(acc+4*b,4)}, {vr(w,4)}, {vr(obase+4*k,4)}, {'0' if k == 0 else vr(acc+4*b,4)}")
                if after: after(s)
        def wrem_to(step, reg): return wfrag(step, (reg - WF) // 20)
        def add_from(src):
            for b in (2, 3, 4, 0, 1):
                for e in range(4): a(f"v_add_f32 v{ACC+4*b+e}, v{ACC+4*b+e}, v{src+4*b+e}")
        G = ([0, 1, 2, 3, 8], [4, 5, 6, 7, 9])
        wait_group(0)
        self.stamp("F4ok")
        a(f"s_cmp_lg_u32 s{sR}, 3\ns_cbranch_scc1 L_P3_PART")
        a.reset_counters()
        order = [0, 1, 2, 3, 8, 4, 5, 6, 7, 9]
        to = oloads(order, OF)
        tr = {}
        def after(s):
            if s == 0: tr[8] = wfrag(8, 0)
            if s == 1: tr[9] = wfrag(9, 1)
        mm(G[0], to, OF, WF + 60 if False else ACC, WF, lambda: tr[8], after)
        mm(G[1], to, OF + 20, WF + 40, WF + 20, lambda: tr[9])
        a.nop(4)
        add_from(WF + 40)
        a.label("L_P3_SUM")
        def part():
            a.label("L_P3_PART")
            a(f"s_cmp_eq_u32 s{sR}, 2\ns_cbranch_scc1 L_P3_B")
            for first in (0, 1):
                if first: a.label("L_P3_B")
                save = WF + 80 * first
                for n, g in enumerate((first, 1 - first)):
                    a.reset_counters()
                    if n: wait_group(1 << first); a.reset_counters()
                    to = oloads(G[g], OF)
                    trem = wfrag(G[g][4], (OF + 20 - WF) / 20)
                    mm(G[g], to, OF, ACC, OF + 20, lambda: trem)
                    a.nop(4 if n else 8)
                    if n: add_from(save)
                    else:
                        for e in range(20): a(f"v_mov_b32 v{save+e}, v{ACC+e}")
                a("s_branch L_P3_SUM")
        self.p3_part = part
        a.reset_counters()
        self.stamp("mfma")
        for b in (2, 3, 4): a.ds(f"ds_write_b128 v{AEX}, {vr(ACC+4*b,4)} offset:{1024*(b-2)}")
        for b in range(3):
            for e in range(4): a(f"v_sub_f32 v{ACC+4*b+e}, v{ACC+4*b+e}, v{keep[4*b+e]}")
        a.wait_all(vm=False)
        a("s_barrier")
        tp = [a.ds(f"ds_read_b128 {vr(16+4*b,4)}, v{AX2} offset:{1024*b}") for b in range(3)]
        fl = self.o('ost', '').replace('+', ' ')
        for b in range(3):
            if b == 2: a(f"s_cmp_lg_u32 s{sKH}, 0\ns_cbranch_scc1 L_FIN")
            a.wait(tp[b])
            for e in range(4): a(f"v_add_f32 v{16+4*b+e}, v{16+4*b+e}, v{ACC+4*b+e}")
            for e in range(4): a(f"v_fmac_f32 v{keep[4*b+e]}, v{GG}, v{16+4*b+e}")
            a(f"v_cvt_pk_bf16_f32 v{32+2*b}, v{keep[4*b]}, v{keep[4*b+1]}\nv_cvt_pk_bf16_f32 v{33+2*b}, v{keep[4*b+2]}, v{keep[4*b+3]}")
            if self.o("o4", 1) and b < 2:
                if b == 1:
                    a("s_nop 1\nv_permlane16_swap_b32 v32, v34\nv_permlane16_swap_b32 v33, v35")
                    a.vm(f"buffer_store_dwordx4 v[32:35], v15, s[{rA}:{rA+3}], 0 offen {fl}")
            else: a.vm(f"buffer_store_dwordx2 {vr(32+2*b,2)}, v{AOUT}, s[{rA}:{rA+3}], 0 offen offset:{32*b} {fl}")
        a.label("L_FIN")
        if self.stamps:
            self.stamp("st")
            a("s_waitcnt vmcnt(0)")
            self.stamp("end")
            a(f"s_lshl_b32 s{T0}, s{sWG}, 3\ns_add_u32 s{T0}, s{T0}, s{sWAVE}\ns_lshl_b32 s{T0}, s{T0}, 8\ns_add_u32 s{T0}, s{T0}, {TS:#x}\nv_lshlrev_b32 v2, 2, v0")
            a(f"buffer_store_dword v1, v2, s[{rWS}:{rWS+3}], s{T0} offen")
            if "enc" in self.opt:
                n0, n1, wv, wg = self.opt["enc"].split(",")
                for n in (n0, n1):
                    if n not in self.names: self.names.append(n)
                a(f"s_cmp_lg_u32 s{sWG}, {wg}\ns_cbranch_scc1 L_END\ns_cmp_lg_u32 s{sWAVE}, {wv}\ns_cbranch_scc1 L_END")
                a(f"v_readlane_b32 s{T1}, v1, {self.names.index(n0)}\nv_readlane_b32 s{T2}, v1, {self.names.index(n1)}\nv_readlane_b32 s{T3}, v1, {self.names.index('end')}\ns_nop 3")
                a(f"s_sub_u32 s{T2}, s{T2}, s{T1}\ns_lshl_b32 s{T2}, s{T2}, 3\ns_and_b32 s{T2}, s{T2}, 0xffff\ns_add_u32 s{T3}, s{T3}, s{T2}")
                a.label("L_ENC")
                a(f"s_memrealtime s[{sTS}:{sTS+1}]\ns_waitcnt lgkmcnt(0)\ns_sub_u32 s{T1}, s{T3}, s{sTS}\ns_cmp_gt_i32 s{T1}, 0\ns_cbranch_scc1 L_ENC")
        a.label("L_END")
        a("s_endpgm")

    def slow(self):
        a = self.a
        S, V, M, AVS = S_, VS[0], 96, 98
        a.label("L_SLOW")
        a(f"""s_mov_b32 s{sSLOW}, 1
        v_and_b32 v{M}, 31, v0
        v_lshrrev_b32 v{AVS}, 5, v0
        v_mul_u32_u24 v{AVS}, 320, v{AVS}
        v_lshl_add_u32 v{AVS}, v{M}, 4, v{AVS}
        v_add_u32 v{AVS}, 2560, v{AVS}
        v_mov_b32 v{M}, 0xff800000""")
        def scores():
            a(f"""buffer_load_dwordx2 {vr(KRM,2)}, v2, s[{rWS}:{rWS+3}], s{T6} offen offset:2048 sc1
            buffer_load_dwordx4 {vr(KM,4)}, v{L16}, s[{rWS}:{rWS+3}], s{T6} offen sc1
            buffer_load_dwordx4 {vr(KM+4,4)}, v{L16}, s[{rWS}:{rWS+3}], s{T6} offen offset:1024 sc1
            s_waitcnt vmcnt(0)""")
            self.m2b(S); a.nop(18); self.mqk(S, 0); self.mqk(S, 1); a.nop(12)
        a(f"s_mov_b32 s{T6}, s{sKVB}\ns_mov_b32 s{sCNT}, 0")
        a.label("L_SLOW1")
        scores()
        for e in range(16): a(f"v_max3_f32 v{M}, v{M}, v{S+2*e}, v{S+2*e+1}")
        a(f"s_add_u32 s{T6}, s{T6}, {KV_US}\ns_add_u32 s{sCNT}, s{sCNT}, 1\ns_cmp_lt_u32 s{sCNT}, 32\ns_cbranch_scc1 L_SLOW1")
        a(f"v_mov_b32 v{M+1}, v{M}\ns_nop 1\nv_permlane32_swap_b32 v{M}, v{M+1}\ns_nop 1\nv_max_f32 v{M}, v{M}, v{M+1}")
        for e in range(16): a(f"v_mov_b32 v{O_+e}, 0")
        a(f"s_mov_b32 s{T6}, s{sKVB}\ns_mov_b32 s{sCNT}, 0")
        a.label("L_SLOW2")
        a(f"s_mov_b64 exec, s[{sVMASK}:{sVMASK+1}]")
        for g in range(4): a(f"buffer_load_dwordx4 {vr(V+4*g,4)}, v{AVS}, s[{rWS}:{rWS+3}], s{T6} offen offset:{640*g} sc1")
        a("s_mov_b64 exec, -1")
        scores()
        for e in range(32): a(f"v_sub_f32 v{S+e}, v{S+e}, v{M}")
        for e in range(32): a(f"v_exp_f32 v{S+e}, v{S+e}")
        a.nop(2)
        for g in range(4): self.smf(V + 4*g, S + 8*g)
        a(f"s_add_u32 s{T6}, s{T6}, {KV_US}\ns_add_u32 s{sCNT}, s{sCNT}, 1\ns_cmp_lt_u32 s{sCNT}, 32\ns_cbranch_scc1 L_SLOW2")
        a.nop(12)
        a("s_branch L_NORM")

    def build(self):
        self.prologue(); self.dma_role(); self.attention(); self.finish(); self.p3_part(); self.setup_sub(); self.side_role(); self.gemm_compute(); self.slow(); self.a.label('L_CODE_END')
        bad = lint_cfg(self.a.lines)
        head = f"""; gated_mix( MHA block , H3 SSM conv ): one persistent workgroup of eight waves per CU.
; kernarg: 0 A_x, 8 A_wqkv, 16 A_wo, 24 B_q (not used by the reference), 32 B_k, 40 B_v, 48 B_shift_k, 56 B_ssm_k,
; first clears its own flag words and counts that in d_debug; no flag is trusted before the count is complete. All waits are bounded.
; @launch grid=(256,1,1) block=(512,1,1) lds={LDS_BYTES}
.amdgcn_target "amdgcn-amd-amdhsa--gfx950"
.text
.globl {NAME}
.p2align 8
.type {NAME},@function
{NAME}:
"""
        tail = f""".section .rodata,"a"
.p2align 6
.amdhsa_kernel {NAME}
  .amdhsa_next_free_vgpr 256
  .amdhsa_next_free_sgpr 102
  .amdhsa_accum_offset 256
  .amdhsa_group_segment_fixed_size 0
  .amdhsa_kernarg_size 104
  .amdhsa_user_sgpr_count 2
  .amdhsa_user_sgpr_kernarg_segment_ptr 1
  .amdhsa_system_sgpr_workgroup_id_x 1
  .amdhsa_float_denorm_mode_32 3
.end_amdhsa_kernel
"""
        return head + self.a.text() + tail, bad

if __name__ == "__main__":
    out = sys.argv[1] if len(sys.argv) > 1 else "gated_mix__mha_block__ssm_conv_h3__prompt.s"
    opt = dict(x[2:].split("=") for x in sys.argv if x.startswith("-D"))
    G = Gen(stamps="--stamps" in sys.argv, opt=opt)
    src, bad = G.build()
    if G.stamps: src = src.replace("; @launch", "; STAMPS " + " ".join(G.names) + "\n; @launch", 1)
    for b in bad: print("LINT:", b)
    open(out, "w").write(src)
    print("wrote", out, len(src), "bytes;", len(bad), "lint findings")
```

```python
import sys, math, struct
from asmlib import *

NAME = "gated_mix__mha_block__ssm_conv_h3__prompt_kernel"
def f2u(x): return struct.unpack("<I", struct.pack("<f", x))[0]

KV, QO, UR, YD, OM, ORM = 0, 0x500000, 0x780000, 0xA00000, 0xC80000, 0xE80000
F2, F4, F3, F5, GT, F1 = 0xF04000, 0xF08000, 0xF0C000, 0xF0D000, 0xF0E000, 0xFA0000
TS = 0xF10000
WS_SIZE = 0x1000000
KV_HS, KV_US = 163840, 5120
Q_HS, Q_US = 81920, 2560
NSLOT = 3
L_X, L_W = 0, 49152
L_Q, L_SIG = 81920, 162048
L_CONV, CONV_SZ, CS, U_OFF = 98304, 21248, 4160, 16640
L_WO, L_YD, L_EX, L_RDY = 0, 102400, 112640, 145408
LDS_BYTES = 163840
sWG, sWAVE = 2, 3
pX, pW, pWO, pWS, pK, pV, pSH, pH, pD, pGW, pOUT, pDBG = 4, 6, 8, 10, 12, 14, 16, 18, 20, 22, 24, 26
rWS, rA, rB, rC, rD = 28, 32, 36, 40, 44
sXCD, sI, sJT, sRT, sPRT, sCJ, sCH0, sNCH, sHEAD, sQB = 48, 49, 50, 51, 52, 53, 54, 55, 56, 57
sLW, sCH, sKH, sTB, sCNT, sSLOW = 58, 59, 60, 61, 62, 63
T0, T1, T2, T3, T4, T5, T6, T7 = 64, 65, 66, 67, 68, 69, 70, 71
sM = 72
sVMASK = 74
sTS = 76
sE = 78
sSC = 86
sKVB, sKVW, sOMS, sORS, sF4S, sCL = 87, 88, 89, 90, 91, 92
sNB, sBC, sU, sK = 93, 94, 78, 96
sM2 = 98
sKVG = 97
sRET = 52
sPI, sNU, sG = 100, 101, 95
POLL_MAX = 200000
IDX, AKM, AKR, AV, L16, AQM, AQR, AF3, YDV = 224, 225, 226, 227, 228, 229, 230, 231, 232
WOV = 233
F3T = 238
ONES, APX, AQM2, AQR2 = 240, 241, 242, 243
QM2, QR2, O2 = 128, 132, 144
WM0, WM1, WR0, WR1, AOM, AOR, AOUT, AG, AEX, AX2, AYD, AF4 = 244, 245, 246, 247, 248, 249, 250, 251, 252, 253, 254, 255
O_, QM, QR, KRM, KM, S_ = 192, 32, 36, 38, 40, 64
VS = (48, 208)
XE = 8

class Gen:
    def __init__(self, stamps=False, opt=None):
        self.a = Asm(); self.stamps = stamps; self.names = []; self.opt = opt or {}
        self.nt = " nt" if int(self.opt.get("nt", 1)) else ""
        self.gnt = " nt" if int(self.opt.get("gnt", 0)) else ""
    def o(self, k, d): return type(d)(self.opt.get(k, d))
    def srd(self, r, p, size):
        self.a(f"s_mov_b32 s{r}, s{p}\ns_mov_b32 s{r+1}, s{p+1}\ns_mov_b32 s{r+2}, {size:#x}\ns_mov_b32 s{r+3}, 0x20000")
    def stamp(self, name):
        if self.o("jit", 0) and name not in ("end", "st"): self.jitter()
        if not self.stamps: return
        if self.o("lite", 0) and name not in ("start", "att0", "attend", "end"): return
        if name not in self.names: self.names.append(name)
        k = self.names.index(name); assert k < 58
        if name == "start": self.a("s_mov_b32 s99, s76")
        self.a(f"s_memrealtime s[{sTS}:{sTS+1}]\ns_waitcnt lgkmcnt(0)\nv_writelane_b32 v1, s{sTS}, {k}")
        if name in ("l.b5", "l.b9"): self.a(f"s_memtime s[{sTS}:{sTS+1}]\ns_waitcnt lgkmcnt(0)\nv_writelane_b32 v1, s{sTS}, {58 if name == 'l.b5' else 59}")
        if name in ("att0", "attend"): self.a(f"s_memtime s[{sTS}:{sTS+1}]\ns_waitcnt lgkmcnt(0)\nv_writelane_b32 v1, s{sTS}, {60 if name == 'att0' else 61}")
        if name == "start":
            if "entry" not in self.names: self.names.append("entry")
            self.a(f"v_writelane_b32 v1, s99, {self.names.index('entry')}")
        if name == "start": self.a(f"s_memtime s[{sTS}:{sTS+1}]\ns_waitcnt lgkmcnt(0)\nv_writelane_b32 v1, s{sTS}, 62")
        if name == "end": self.a(f"s_memtime s[{sTS}:{sTS+1}]\ns_waitcnt lgkmcnt(0)\nv_writelane_b32 v1, s{sTS}, 63")
        self.a.done["ds"] = self.a.n["ds"]
    def jitter(self):
        a = self.a; self.nj = getattr(self, "nj", 0) + 1
        L, D = a.newlabel("JIT"), a.newlabel("JITD")
        a(f"""s_lshl_b32 s76, s{sWG}, 3
        s_add_u32 s76, s76, s{sWAVE}
        s_add_u32 s76, s76, {self.nj * 7919 + self.o('jit', 0) * 104729}
        s_mul_i32 s76, s76, 0x9e3779b1
        s_lshr_b32 s77, s76, 29
        s_cmp_lg_u32 s77, 0
        s_cbranch_scc1 {D}
        s_bfe_u32 s76, s76, 0x70014""")
        a.label(L)
        a(f"s_sleep 2\ns_sub_u32 s76, s76, 1\ns_cmp_gt_i32 s76, 0\ns_cbranch_scc1 {L}")
        a.label(D)
    def poll(self, loads, tmp, cmp=None):
        a = self.a
        L, D = a.newlabel("POLL"), a.newlabel("POLLD")
        a(f"s_mov_b32 s{sCNT}, 0")
        a.label(L)
        k = 0
        for (va, r, imm, wd) in loads:
            ins = {1: "buffer_load_dword", 2: "buffer_load_dwordx2", 4: "buffer_load_dwordx4"}[wd]
            a(f"{ins} {vr(tmp+k, wd)}, v{va}, s[{r}:{r+3}], 0 offen offset:{imm} sc1"); k += wd
        a("s_waitcnt vmcnt(0)")
        a.done["vm"] = a.n["vm"]
        self.poll_check(tmp, k, cmp)
        a(f"s_cbranch_scc1 {D}")
        a(f"s_add_u32 s{sCNT}, s{sCNT}, 1\ns_cmp_lt_u32 s{sCNT}, {POLL_MAX}\ns_cbranch_scc0 {D}\ns_sleep 1\ns_branch {L}")
        a.label(D)
    def mpoll(self, addrs, tmp, elastic=False):
        a = self.a
        L, D = a.newlabel("MP"), a.newlabel("MPD")
        M = [sM, sM2][:len(addrs)]
        a(f"s_mov_b32 s{sCNT}, 0")
        for m in M: a(f"s_mov_b64 s[{m}:{m+1}], -1")
        a.label(L)
        for k, (va, m) in enumerate(zip(addrs, M)):
            S = a.newlabel("MS")
            a(f"s_mov_b64 exec, s[{m}:{m+1}]\ns_cbranch_execz {S}\nbuffer_load_dword v{tmp+k}, v{va}, s[{rWS}:{rWS+3}], 0 offen sc1")
            a.label(S)
        a("s_mov_b64 exec, -1")
        if elastic: self.ewait()
        else: a("s_waitcnt vmcnt(0)")
        a.done["vm"] = a.n["vm"]
        for k, m in enumerate(M):
            a(f"v_cmp_eq_u32 vcc, 0, v{tmp+k}\ns_nop 1\ns_and_b64 s[{m}:{m+1}], s[{m}:{m+1}], vcc")
        if len(M) == 2: a(f"s_or_b64 vcc, s[{sM}:{sM+1}], s[{sM2}:{sM2+1}]")
        a(f"s_cbranch_scc0 {D}")
        a(f"s_add_u32 s{sCNT}, s{sCNT}, 1\ns_cmp_lt_u32 s{sCNT}, {POLL_MAX}\ns_cbranch_scc0 {D}\ns_sleep {self.o('psleep', 2)}\ns_branch {L}")
        a.label(D)
    def last_flag(self, off, sN, sAddr, vt, base=L_SIG):
        a = self.a
        L = a.newlabel("NL")
        a(f"""v_mov_b32 v{vt}, {base}
        v_mov_b32 v{vt+1}, 1
        s_mov_b64 exec, 1
        ds_add_rtn_u32 v{vt+1}, v{vt}, v{vt+1} offset:{off}
        s_waitcnt lgkmcnt(0)
        v_readfirstlane_b32 s{T0}, v{vt+1}
        s_mov_b64 exec, -1
        s_add_u32 s{T0}, s{T0}, 1
        s_cmp_lg_u32 s{T0}, {sN}
        s_cbranch_scc1 {L}""")
        self.flag_store(sAddr, vt, two=True)
        a.label(L)
    def poll_check(self, tmp, k, cmp=None):
        a = self.a
        for j in range(1, k, 2):
            if j + 1 < k: a(f"v_min3_u32 v{tmp}, v{tmp}, v{tmp+j}, v{tmp+j+1}")
            else: a(f"v_min_u32 v{tmp}, v{tmp}, v{tmp+j}")
        a(cmp or f"v_cmp_ne_u32 vcc, 0, v{tmp}")
        a("s_nop 1\ns_cmp_eq_u64 vcc, exec")
    def flag_store(self, s, vt, two=False):
        a = self.a
        a(f"v_lshl_add_u32 v{vt}, v0, 2, s{s}\nv_mov_b32 v{vt+1}, 1\ns_mov_b64 exec, {3 if two else 1}")
        t = a.vm(f"buffer_store_dword v{vt+1}, v{vt}, s[{rWS}:{rWS+3}], 0 offen sc1")
        a("s_mov_b64 exec, -1")
        return t

    def prologue(self):
        a = self.a
        if self.stamps: a("s_memrealtime s[76:77]")
        a(f"s_cmp_ge_u32 s{sWG}, 256\ns_cbranch_scc1 L_END")
        if self.opt.get("diag") == "spin":
            a("s_mov_b32 s60, 2500\nv_mov_b32 v10, 0")
            a.label("L_DSPIN")
            for e in range(8): a(f"v_exp_f32 v{11+e}, v10")
            a("s_sub_u32 s60, s60, 1\ns_cmp_lg_u32 s60, 0\ns_cbranch_scc1 L_DSPIN")
        if self.opt.get("diag") == "chain":
            a("s_load_dwordx2 s[32:33], s[0:1], 24\ns_waitcnt lgkmcnt(0)\ns_mov_b32 s34, 2621440\ns_mov_b32 s35, 0x20000\ns_mul_i32 s60, s2, 256\nv_mov_b32 v10, s60")
            for e in range(32): a("buffer_load_dword v12, v10, s[32:35], 0 offen\ns_waitcnt vmcnt(0)\nv_and_b32 v12, 0, v12\nv_add_u32 v10, v10, v12\nv_add_u32 v10, 0x13000, v10")
        if self.opt.get("diag") == "bq":
            a("s_load_dwordx2 s[32:33], s[0:1], 24\ns_waitcnt lgkmcnt(0)\ns_mov_b32 s34, 2621440\ns_mov_b32 s35, 0x20000\nv_lshlrev_b32 v10, 4, v0\ns_mul_i32 s60, s2, 10240")
            a("buffer_load_dwordx4 v[12:15], v10, s[32:35], s60 offen\ns_add_u32 s60, s60, 2048\nbuffer_load_dwordx4 v[16:19], v10, s[32:35], s60 offen\ns_waitcnt vmcnt(0)")
        a(f"""s_load_dwordx4 s[4:7], s[0:1], 0
        s_load_dwordx16 s[12:27], s[0:1], 32
        s_load_dwordx2 s[10:11], s[0:1], 96
        s_load_dwordx2 s[8:9], s[0:1], 16
        v_lshrrev_b32 v1, 6, v0
        v_and_b32 v0, 63, v0
        s_and_b32 s{sXCD}, s{sWG}, 7
        v_readfirstlane_b32 s{sWAVE}, v1
        s_lshr_b32 s{sI}, s{sWG}, 3
        s_and_b32 s{T0}, s{sXCD}, 1
        s_mul_i32 s{T0}, s{T0}, 30
        s_add_u32 s{T0}, s{T0}, s{sI}
        s_lshr_b32 s{sJT}, s{T0}, 2
        s_and_b32 s{T0}, s{T0}, 3
        s_lshr_b32 s{T1}, s{sXCD}, 1
        s_lshl_b32 s{T1}, s{T1}, 2
        s_add_u32 s{sRT}, s{T0}, s{T1}
        s_sub_u32 s{sLW}, s{sWAVE}, 4
        s_mul_i32 s{T0}, s{sXCD}, 30
        s_add_u32 s{sPI}, s{T0}, s{sI}
        s_mul_i32 s{sG}, s{sPI}, 171
        s_lshr_b32 s{sG}, s{sG}, 9
        s_mul_i32 s{T1}, s{sG}, 3
        s_sub_u32 s{T1}, s{sPI}, s{T1}
        s_lshl_b32 s{T2}, s{sG}, 3
        s_mul_i32 s{T3}, s{T1}, 3
        s_add_u32 s{sCH0}, s{T2}, s{T3}
        s_lshr_b32 s{T1}, s{T1}, 1
        s_sub_u32 s{sNCH}, 3, s{T1}
        s_lshl_b32 s{T0}, s{sXCD}, 1
        s_add_u32 s{T0}, s{T0}, s{sI}
        s_add_u32 s{T0}, s{T0}, 210
        s_cmp_ge_u32 s{sI}, 30
        s_cselect_b32 s{sPI}, s{T0}, s{sPI}
        s_cselect_b32 s{sNCH}, 0, s{sNCH}
        s_cselect_b32 s{sNU}, 8, 2""")
        if self.o("cpf", 1) == 2: self.code_prefetch()
        a(f"""s_cmp_lt_u32 s{sWAVE}, 4
        s_cbranch_scc1 L_COMPUTE
        s_cmp_gt_u32 s{sWAVE}, 4
        s_cbranch_scc1 L_SIDE""")
    def code_prefetch(self):
        a = self.a
        L = a.newlabel("NOPF")
        a(f"""s_cmp_lg_u32 s{sWAVE}, 1
        s_cbranch_scc1 {L}
        s_getpc_b64 s[{T2}:{T3}]
        L_PC:
        s_sub_u32 s{T2}, s{T2}, L_PC-{NAME}
        s_subb_u32 s{T3}, s{T3}, 0
        s_and_b32 s{T0}, s{sI}, 7
        s_lshl_b32 s{T0}, s{T0}, 13
        v_lshl_add_u32 v10, v0, 7, s{T0}
        v_min_u32 v10, L_CODE_END-{NAME}-4, v10
        global_load_dword v31, v10, s[{T2}:{T3}]""")
        a.label(L)
    def common_scalars(self):
        self.a(f"""s_cmp_ge_u32 s{sI}, 30
        s_cselect_b32 s{sNB}, 1, 10
        s_mov_b32 s{sBC}, 0
        s_lshr_b32 s{T0}, s{sI}, 3
        s_lshl_b32 s{T1}, s{sXCD}, 2
        s_add_u32 s{sHEAD}, s{T0}, s{T1}
        s_and_b32 s{sQB}, s{sI}, 7
        s_lshr_b32 s{sKH}, s{sWAVE}, 2
        s_and_b32 s{sTB}, s{sWAVE}, 3
        s_mov_b32 s{sSLOW}, 0
        s_mov_b32 s{sVMASK}, 0x000fffff
        s_mov_b32 s{sVMASK+1}, 0x000fffff""")
    def setup_call(self):
        if self.o("sub", 1): self.a(f"s_call_b64 s[{sRET}:{sRET+1}], L_SETUP")
        else: self.common_scalars(); self.persistent()
    def setup_sub(self):
        if not self.o("sub", 1): return
        self.a.label("L_SETUP")
        self.common_scalars(); self.persistent()
        self.a(f"s_setpc_b64 s[{sRET}:{sRET+1}]")
    def persistent(self, t=192):
        a = self.a
        a(f"""s_mov_b32 s{sM}, 0x11000000
        s_mov_b32 s{sM+1}, 0x11000000
        v_mov_b32 v{t}, 0x3f803f80
        v_cndmask_b32 v{ONES}, 0, v{t}, s[{sM}:{sM+1}]""")
        a(f"""v_mov_b32 v{IDX}, 0xdddddddd
        v_lshlrev_b32 v{AKM}, 4, v0
        v_lshlrev_b32 v{L16}, 4, v0
        v_lshlrev_b32 v{t}, 3, v0
        v_add_u32 v{AKR}, 2048, v{t}
        v_and_b32 v{t+1}, 31, v0
        v_lshrrev_b32 v{t+2}, 5, v0
        v_mul_u32_u24 v{t+2}, 320, v{t+2}
        v_lshl_add_u32 v{t+2}, v{t+1}, 4, v{t+2}
        v_add_u32 v{AV}, 2560, v{t+2}
        s_mul_i32 s{T0}, s{sKH}, {KV_US}
        v_add_u32 v{AKM}, s{T0}, v{AKM}
        v_add_u32 v{AKR}, s{T0}, v{AKR}
        v_add_u32 v{AV}, s{T0}, v{AV}
        s_mul_i32 s{T0}, s{sTB}, {Q_US}
        s_add_u32 s{T0}, s{T0}, {L_Q}
        s_lshl_b32 s{T2}, s{sKH}, 10
        s_add_u32 s{T2}, s{T2}, s{T0}
        v_add_u32 v{AQM}, s{T2}, v{L16}
        s_lshl_b32 s{T1}, s{sKH}, 8
        s_add_u32 s{T1}, s{T1}, s{T0}
        v_lshl_add_u32 v{AQR}, v{t+1}, 3, s{T1}
        s_xor_b32 s{T3}, s{sKH}, 1
        s_lshl_b32 s{T2}, s{T3}, 10
        s_add_u32 s{T2}, s{T2}, s{T0}
        v_add_u32 v{AQM2}, s{T2}, v{L16}
        s_lshl_b32 s{T1}, s{T3}, 8
        s_add_u32 s{T1}, s{T1}, s{T0}
        v_lshl_add_u32 v{AQR2}, v{t+1}, 3, s{T1}
        s_mul_i32 s{sKVB}, s{sHEAD}, {KV_HS}
        s_mul_i32 s{sKVW}, s{sWAVE}, {KV_US}
        s_add_u32 s{sKVG}, s{sKVW}, s{sKVB}
        s_lshl_b32 s{T0}, s{sHEAD}, 16
        s_lshl_b32 s{T1}, s{sQB}, 2
        s_add_u32 s{T1}, s{T1}, s{sTB}
        s_lshl_b32 s{T1}, s{T1}, 1
        s_add_u32 s{T1}, s{T1}, s{sKH}
        s_lshl_b32 s{T2}, s{T1}, 10
        s_add_u32 s{T0}, s{T0}, s{T2}
        s_add_u32 s{sOMS}, s{T0}, {OM:#x}
        s_lshl_b32 s{T2}, s{sHEAD}, 14
        s_lshl_b32 s{T1}, s{T1}, 8
        s_add_u32 s{T1}, s{T1}, s{T2}
        s_add_u32 s{sORS}, s{T1}, {ORM:#x}
        s_lshl_b32 s{T0}, s{sQB}, 11
        s_lshl_b32 s{T1}, s{sHEAD}, 6
        s_add_u32 s{T0}, s{T0}, s{T1}
        s_add_u32 s{sF4S}, s{T0}, {F4:#x}""")
        a(f"""s_mul_i32 s{T0}, s{sQB}, 320
        s_add_u32 s{T0}, s{T0}, {F3:#x}
        v_lshl_add_u32 v{AF3}, v0, 3, s{T0}
        s_lshr_b32 s{T0}, s{sHEAD}, 1
        s_lshl_b32 s{T0}, s{T0}, 6
        s_add_u32 s{T0}, s{T0}, {F5:#x}
        v_mov_b32 v{t}, s{T0}
        s_mov_b32 s{sM}, 0
        s_mov_b32 s{sM+1}, 0xffffff00
        v_cndmask_b32 v{AF3}, v{AF3}, v{t}, s[{sM}:{sM+1}]""")
        a(f"s_mul_i32 s{T0}, s{sWAVE}, {13*64}\ns_mul_i32 s{T1}, s{sQB}, 160")
        for k in range(5):
            a(f"""s_add_u32 s{T2}, s{T0}, {64*k}
            v_add_u32 v{t}, s{T2}, v0
            v_mul_u32_u24 v{t+1}, 52429, v{t}
            v_lshrrev_b32 v{t+1}, 19, v{t+1}
            v_mul_u32_u24 v{t+1}, {1280-160}, v{t+1}
            v_lshl_add_u32 v{t+1}, v{t}, 4, v{t+1}
            v_add_u32 v{WOV+k}, s{T1}, v{t+1}""")
        a(f"""s_mul_i32 s{T0}, s{sQB}, 80
        s_mul_i32 s{T1}, s{sWAVE}, 10
        s_add_u32 s{T0}, s{T0}, s{T1}
        v_lshrrev_b32 v{t}, 3, v0
        v_add_u32 v{t}, s{T0}, v{t}
        v_lshlrev_b32 v{t}, 12, v{t}
        v_and_b32 v{t+1}, 7, v0
        v_lshl_add_u32 v{t}, v{t+1}, 4, v{t}
        s_lshl_b32 s{T0}, s{sHEAD}, 7
        s_add_u32 s{T0}, s{T0}, {YD:#x}
        v_add_u32 v{YDV}, s{T0}, v{t}""")
        q, r, c8, tt, b0 = t, t + 1, t + 2, t + 3, t + 4
        a(f"""v_lshrrev_b32 v{q}, 4, v0
        v_lshrrev_b32 v{r}, 2, v0
        v_and_b32 v{r}, 3, v{r}
        v_and_b32 v{c8}, 3, v0
        v_lshlrev_b32 v{c8}, 3, v{c8}
        v_and_b32 v{tt}, 15, v0
        v_and_b32 v{b0}, 1, v{q}
        s_mul_i32 s{T2}, s{sKH}, {51200 + 96}
        s_mul_i32 s{T3}, s{sKH}, {51200 - 64}
        v_lshrrev_b32 v{t+5}, 1, v{q}
        v_mul_u32_u24 v{t+5}, 20, v{t+5}
        v_lshl_add_u32 v{t+5}, v{b0}, 2, v{t+5}
        v_add_u32 v{t+5}, v{t+5}, v{r}
        v_mul_u32_u24 v{t+5}, 160, v{t+5}
        v_add_u32 v{t+5}, v{t+5}, v{c8}
        v_add_u32 v{WM0}, s{T2}, v{t+5}
        v_add_u32 v{WM1}, s{T3}, v{t+5}
        v_mul_u32_u24 v{t+5}, 20, v{q}
        v_add3_u32 v{t+5}, v{t+5}, v{r}, 16
        v_mul_u32_u24 v{t+5}, 160, v{t+5}
        v_add_u32 v{t+5}, v{t+5}, v{c8}
        v_add_u32 v{WR0}, s{T2}, v{t+5}
        v_add_u32 v{WR1}, s{T3}, v{t+5}
        s_lshl_b32 s{T2}, s{sKH}, 20
        s_lshl_b32 s{T3}, s{sHEAD}, 11
        s_add_u32 s{T2}, s{T2}, s{T3}
        s_lshr_b32 s{T3}, s{sTB}, 1
        s_lshl_b32 s{T4}, s{T3}, 10
        s_add_u32 s{T2}, s{T2}, s{T4}
        s_and_b32 s{T4}, s{sTB}, 1
        s_lshl_b32 s{T4}, s{T4}, 8
        s_add_u32 s{T2}, s{T2}, s{T4}
        s_add_u32 s{T2}, s{T2}, {OM:#x}
        v_lshrrev_b32 v{t+5}, 1, v{q}
        v_lshlrev_b32 v{t+5}, 16, v{t+5}
        v_lshl_add_u32 v{t+5}, v{b0}, 9, v{t+5}
        v_lshl_add_u32 v{t+5}, v{tt}, 4, v{t+5}
        v_add_u32 v{AOM}, s{T2}, v{t+5}
        s_lshl_b32 s{T2}, s{sKH}, 18
        s_lshl_b32 s{T4}, s{sHEAD}, 9
        s_add_u32 s{T2}, s{T2}, s{T4}
        s_lshl_b32 s{T4}, s{sTB}, 7
        s_add_u32 s{T2}, s{T2}, s{T4}
        s_add_u32 s{T2}, s{T2}, {ORM:#x}
        v_lshlrev_b32 v{t+5}, 14, v{q}
        v_lshl_add_u32 v{t+5}, v{tt}, 3, v{t+5}
        v_add_u32 v{AOR}, s{T2}, v{t+5}
        s_lshr_b32 s{T2}, s{sHEAD}, 2
        s_lshl_b32 s{T2}, s{T2}, 11
        s_add_u32 s{T2}, s{T2}, {F4:#x}
        s_lshl_b32 s{T3}, s{sKH}, 10
        s_add_u32 s{T2}, s{T2}, s{T3}
        v_lshl_add_u32 v{AF4}, v{tt}, 6, s{T2}
        s_lshl_b32 s{T0}, s{sHEAD}, 6
        s_lshl_b32 s{T1}, s{sTB}, 4
        s_add_u32 s{T0}, s{T0}, s{T1}
        v_add_u32 v{t+5}, s{T0}, v{tt}
        v_lshlrev_b32 v{AG}, 2, v{t+5}
        v_add_u32 v{AG}, {GT:#x}, v{AG}
        v_mul_u32_u24 v{t+5}, 1280, v{t+5}
        v_lshl_add_u32 v{t+5}, v{q}, 3, v{t+5}
        s_mul_i32 s{T0}, s{sQB}, 160
        s_mul_i32 s{T1}, s{sKH}, 96
        s_add_u32 s{T0}, s{T0}, s{T1}
        v_add_u32 v{AOUT}, s{T0}, v{t+5}
        s_lshl_b32 s{T0}, s{sWAVE}, 12
        s_add_u32 s{T0}, s{T0}, {L_EX}
        v_add_u32 v{AEX}, s{T0}, v{L16}
        s_xor_b32 s{T0}, s{sWAVE}, 4
        s_lshl_b32 s{T0}, s{T0}, 12
        s_add_u32 s{T1}, s{T0}, {L_EX}
        v_add_u32 v{APX}, s{T1}, v{L16}
        s_lshl_b32 s{T1}, s{sKH}, 10
        s_add_u32 s{T1}, s{T1}, s{T0}
        s_add_u32 s{T1}, s{T1}, {L_EX}
        v_add_u32 v{AX2}, s{T1}, v{L16}
        v_lshl_add_u32 v{AYD}, v{q}, 2, v{r}
        v_lshl_add_u32 v{AYD}, v{AYD}, 7, v{c8}
        s_mul_i32 s{T0}, s{sKH}, {48*128}
        s_lshl_b32 s{T1}, s{sTB}, 5
        s_add_u32 s{T0}, s{T0}, s{T1}
        s_add_u32 s{T0}, s{T0}, {L_YD}
        v_add_u32 v{AYD}, s{T0}, v{AYD}""")
    def att_init_list(self):
        if self.o("ones", 2) == 12:
            return [f"v_mov_b32 v{O_+e}, 0" for e in range(16)] + [f"v_mov_b32 v{st+e}, 0x3f803f80" for st in VS for e in range(16)]
        return [f"v_mov_b32 v{O_+e}, 0" for e in range(16)] + [f"v_mov_b32 v{st+e}, v{ONES}" for st in VS for e in range(16)]

    def flag_reset(self):
        a = self.a
        L = a.newlabel("NOZ")
        a(f"s_cmp_lg_u32 s{sWAVE}, 0\ns_cbranch_scc1 {L}")
        a(f"""s_lshl_b32 s{T0}, s{sPI}, 6
        s_add_u32 s{T0}, s{T0}, {F1:#x}
        v_mov_b32 v12, s{T0}
        v_and_b32 v10, 3, v0
        v_lshlrev_b32 v11, 2, v10
        v_add_u32 v13, s{sCL}, v11
        s_mov_b32 s{sM}, 0xf
        s_mov_b32 s{sM+1}, 0
        v_cndmask_b32 v12, v12, v13, s[{sM}:{sM+1}]
        s_lshl_b32 s{T0}, s{sCH0}, 2
        s_add_u32 s{T0}, s{T0}, {F3:#x}
        v_add_u32 v13, s{T0}, v11
        s_lshl_b32 s{sM}, 16, s{sNCH}
        s_sub_u32 s{sM}, s{sM}, 16
        v_cndmask_b32 v12, v12, v13, s[{sM}:{sM+1}]
        s_lshl_b32 s{T0}, s{sQB}, 11
        s_lshl_b32 s{T1}, s{sHEAD}, 6
        s_add_u32 s{T0}, s{T0}, s{T1}
        s_add_u32 s{T0}, s{T0}, {F4:#x}
        v_mov_b32 v13, s{T0}
        s_mov_b32 s{sM}, 0x100
        v_cndmask_b32 v12, v12, v13, s[{sM}:{sM+1}]
        s_lshl_b32 s{T0}, s{sG}, 6
        s_add_u32 s{T0}, s{T0}, {F1 + 256*64:#x}
        v_mov_b32 v13, s{T0}
        s_cmp_lt_u32 s{sG}, 32
        s_cselect_b32 s{T1}, s{sNCH}, 0
        s_cmp_eq_u32 s{T1}, 2
        s_cselect_b32 s{sM}, 0x200, 0
        v_cndmask_b32 v12, v12, v13, s[{sM}:{sM+1}]
        v_mov_b32 v13, 0
        s_mov_b32 exec_lo, 0x3ff
        s_mov_b32 exec_hi, 0
        buffer_store_dword v13, v12, s[{rWS}:{rWS+3}], 0 offen sc1
        s_mov_b64 exec, 1""")
        self.srd(rA, pDBG, 256)
        a(f"""s_and_b32 s{T0}, s{sWG}, 1
        s_lshl_b32 s{T0}, s{T0}, 7
        v_mov_b32 v12, s{T0}
        v_mov_b32 v13, 1
        s_waitcnt vmcnt(0)
        buffer_atomic_add v13, v12, s[{rA}:{rA+3}], 0 offen sc1
        s_mov_b64 exec, -1""")
        a.label(L)

    XA, WA, XA2, WA2, EA = 2, 6, 128, 132, 136
    def gemm_compute(self):
        a = self.a
        XA, WA = self.XA, self.WA
        self.a.lines.append('; ---- waves 0..3: QKV projection tile (or, in the sixteen workgroups without a tile, the gate); wave 3 then stages Q, K, V')
        a.label("L_COMPUTE")
        if self.o("cpf", 1) == 1: self.code_prefetch()
        self.common_scalars()
        a(f"""s_lshl_b32 s{T0}, s{sJT}, 10
        s_lshl_b32 s{T1}, s{sRT}, 6
        s_add_u32 s{T0}, s{T0}, s{T1}
        s_add_u32 s{sCL}, s{T0}, {F2:#x}
        s_lshl_b32 s{T0}, s{sXCD}, 1
        s_add_u32 s{T0}, s{T0}, s{sI}
        s_sub_u32 s{T7}, s{T0}, 30
        s_lshl_b32 s{T0}, s{T7}, 6
        s_add_u32 s{T0}, s{T0}, {F5:#x}
        s_cmp_ge_u32 s{sI}, 30
        s_cselect_b32 s{sCL}, s{T0}, s{sCL}
        s_waitcnt lgkmcnt(0)""")
        self.srd(rWS, pWS, WS_SIZE)
        if self.stamps: a("v_mov_b32 v1, 0")
        self.stamp("start")
        if self.o("touch", 0): self.touch()
        if self.o("tlb", 0):
            L = a.newlabel("NOTLB")
            a(f"s_cmp_lg_u32 s{sWAVE}, 2\ns_cbranch_scc1 {L}")
            self.srd(rB, pOUT, 2048 * 1280); self.srd(rC, pWO, 640 * 1280)
            a(f"""v_lshlrev_b32 v10, 20, v0
            s_mov_b64 exec, 0xffff
            buffer_load_dword v31, v10, s[{rWS}:{rWS+3}], 0 offen sc1
            s_mov_b64 exec, 7
            buffer_load_dword v30, v10, s[{rB}:{rB+3}], 0 offen sc1
            s_mov_b64 exec, 1
            buffer_load_dword v29, v10, s[{rC}:{rC+3}], 0 offen
            s_mov_b64 exec, -1""")
            a.label(L)
        self.flag_reset()
        late = self.o("late", 1)
        def hiinit():
            self.setup_call()
            for l in self.att_init_list():
                if late or int(l.split()[1][1:-1]) >= 192: a(l)
        if not late: hiinit()
        a(f"s_cmp_eq_u32 s{sWAVE}, 0\ns_cbranch_scc1 L_C_NW\ns_waitcnt vmcnt(0)")
        a.label("L_C_NW")
        a(f"s_cmp_ge_u32 s{sI}, 30\ns_cbranch_scc1 L_C_NOTILE")
        a(f"""s_and_b32 s{T0}, s{sWAVE}, 1
        s_lshl_b32 s{T0}, s{T0}, 13
        v_and_b32 v8, 31, v0
        v_lshrrev_b32 v9, 5, v0
        v_lshrrev_b32 v10, 1, v8
        v_and_b32 v10, 7, v10
        v_xor_b32 v10, v10, v9
        v_lshlrev_b32 v8, 7, v8
        v_add_u32 v8, s{T0}, v8""")
        for ks in range(4):
            a(f"v_xor_b32 v11, {2*ks}, v10\nv_lshl_add_u32 v{XA+ks}, v11, 4, v8")
        a(f"""v_lshrrev_b32 v8, 2, v0
        v_and_b32 v8, 3, v8
        v_lshrrev_b32 v9, 5, v0
        v_lshl_add_u32 v9, v9, 3, v8
        v_lshlrev_b32 v9, 8, v9
        v_lshrrev_b32 v10, 4, v0
        v_and_b32 v10, 1, v10
        v_lshlrev_b32 v10, 1, v10
        v_lshrrev_b32 v11, 1, v0
        v_and_b32 v11, 1, v11
        v_or_b32 v10, v10, v11
        v_and_b32 v11, 1, v0
        v_lshlrev_b32 v11, 3, v11
        v_add_u32 v9, v9, v11
        v_add_u32 v9, {L_W}, v9
        s_and_b32 s{T0}, s{sWAVE}, 2""")
        for i in range(2):
            a(f"""s_add_u32 s{T1}, s{T0}, {i}
            v_xor_b32 v11, s{T1}, v8
            v_lshl_add_u32 v11, v11, 2, v10
            v_lshl_add_u32 v{WA+i}, v11, 4, v9""")
        def lowinit():
            for l in self.att_init_list():
                if not late and int(l.split()[1][1:-1]) < 192: a(l)
        a(f"s_setprio {self.o('gprio', 3)}")
        a(f"s_cmp_ge_u32 s{sJT}, 10\ns_cbranch_scc1 L_C_VTILE")
        self.gemm_loop(False, self.gemm_epi_qk, lowinit, self.deferred(self.epi_qk_setup))
        a("s_branch L_C_FLAG")
        a.label("L_C_NOTILE")
        a(f"s_call_b64 s[{sRET}:{sRET+1}], L_SPARE")
        self.stamp("g.pre")
        self.sig_wait(8, 8)
        self.stamp("g.go")
        self.gate()
        lowinit()
        a("s_branch L_C_FLAG")
        a.label("L_C_VTILE")
        self.gemm_loop(True, self.gemm_epi_v, lowinit, self.deferred(self.epi_v_setup))
        a.label("L_C_FLAG")
        a.reset_counters()
        self.stamp("c.epi")
        L = a.newlabel("KVW")
        a(f"s_cmp_eq_u32 s{sWAVE}, 3\ns_cbranch_scc1 {L}")
        a("s_waitcnt vmcnt(0)")
        self.last_flag(12, 4, sCL, 2)
        self.stamp("c.F2set")
        if late: hiinit()
        a("s_branch L_ATT")
        a.label(L)
        self.kv_fetch_setup()
        a(f"buffer_load_dword v29, v28, s[{rC}:{rC+3}], 0 offen sc1")
        a("s_waitcnt vmcnt(0)")
        self.last_flag(12, 4, sCL, 2)
        if late: hiinit()
        self.kv_fetch()
        a("s_branch L_ATT")

    def touch(self):
        a = self.a
        L = a.newlabel("NOTCH")
        k0 = self.o("touch", 0)
        a(f"s_cmp_lg_u32 s{sWAVE}, 2\ns_cbranch_scc1 {L}\ns_cmp_ge_u32 s{sI}, 30\ns_cbranch_scc1 {L}")
        self.srd(rB, pX, 2048 * 1280); self.srd(rC, pW, 640 * 3840)
        a(f"""s_and_b32 s{T0}, s{sJT}, 7
        s_lshl_b32 s{T0}, s{T0}, 4
        s_lshl_b32 s{T1}, s{sRT}, 7
        s_add_u32 s{T0}, s{T0}, s{T1}
        v_and_b32 v10, 15, v0
        v_add_u32 v10, s{T0}, v10
        v_mul_u32_u24 v10, 1280, v10
        v_lshrrev_b32 v11, 4, v0
        v_lshl_add_u32 v10, v11, 7, v10
        s_and_b32 s{T0}, s{sRT}, 3
        s_lshl_b32 s{T0}, s{T0}, 4
        v_lshrrev_b32 v11, 1, v0
        v_and_b32 v11, 15, v11
        v_add_u32 v11, s{T0}, v11
        v_lshrrev_b32 v12, 5, v0
        v_lshl_add_u32 v11, v12, 6, v11
        v_mul_u32_u24 v11, 3840, v11
        v_and_b32 v12, 1, v0
        v_lshl_add_u32 v11, v12, 7, v11
        s_lshl_b32 s{T0}, s{sJT}, 8
        v_add_u32 v11, s{T0}, v11""")
        if self.o("tsleep", 0): a(f"s_sleep {self.o('tsleep', 0)}")
        def w(j, extra=0): a(f"s_mov_b32 s{T0}, {(k0 + 2*j)*64*3840 + extra}\nbuffer_load_dword v31, v11, s[{rC}:{rC+3}], s{T0} offen")
        def x(j): a(f"buffer_load_dword v31, v10, s[{rB}:{rB+3}], 0 offen offset:{(k0 + 4*j)*128}")
        n = 10 - k0
        for j in range((n + 1) // 2):
            w(j)
            if j % 2 == 0: x(j // 2)
        a(f"s_cmp_lg_u32 s{sJT}, 7\ns_cbranch_scc1 {L}\ns_bitcmp1_b32 s{sRT}, 1\ns_cselect_b32 s{T1}, {-32*3840}, {0}\ns_cselect_b32 s{T2}, 0, {32*3840}\ns_add_u32 s{T1}, s{T1}, s{T2}\nv_add_u32 v11, s{T1}, v11")
        for j in range((n + 1) // 2): w(j)
        a.label(L)
    def gate(self):
        a = self.a
        a.reset_counters()
        X, W, Z = 32, 12, 2
        self.srd(rA, pX, 2048 * 1280); self.srd(rB, pGW, 1280)
        a(f"""s_lshl_b32 s{T0}, s{T7}, 7
        s_lshl_b32 s{T1}, s{sWAVE}, 5
        s_add_u32 s{T6}, s{T0}, s{T1}
        v_lshrrev_b32 v10, 4, v0
        v_add_u32 v11, s{T6}, v10
        v_mul_u32_u24 v11, 1280, v11
        v_and_b32 v2, 15, v0
        v_lshlrev_b32 v3, 4, v2
        v_add_u32 v11, v11, v3""")
        for j in range(5): tw = a.vm(f"buffer_load_dwordx4 {vr(W+4*j,4)}, v3, s[{rB}:{rB+3}], 0 offen offset:{256*j}")
        tx = []
        for g in range(8):
            a(f"s_mov_b32 s{T0}, {5120*g}")
            for j in range(5): t = a.vm(f"buffer_load_dwordx4 {vr(X+20*g+4*j,4)}, v11, s[{rA}:{rA+3}], s{T0} offen offset:{256*j}")
            tx.append(t)
        a(f"""v_lshl_add_u32 v10, v2, 2, v10
        v_add_u32 v10, s{T6}, v10
        v_lshlrev_b32 v10, 2, v10
        v_add_u32 v10, {GT:#x}, v10
        v_mov_b32 v11, v2""")
        for g in range(8):
            a.wait(tw, tx[g])
            for e in range(20):
                a(f"v_dot2_f32_bf16 v{Z+g}, v{X+20*g+e}, v{W+e}, {'0' if e == 0 else f'v{Z+g}'}")
        a.nop(3)
        for sh in (8, 4, 2, 1):
            for g in range(8): a(f"v_add_f32_dpp v{Z+g}, v{Z+g}, v{Z+g} row_ror:{sh} row_mask:0xf bank_mask:0xf")
        for g in range(1, 8):
            a(f"v_cmp_eq_u32 vcc, {g}, v11\ns_nop 1\nv_cndmask_b32 v{Z}, v{Z}, v{Z+g}, vcc")
        a(f"""v_mul_f32 v{Z}, {f2u(-math.log2(math.e)):#x}, v{Z}
        v_exp_f32 v{Z}, v{Z}
        s_mov_b32 exec_lo, 0x00ff00ff
        v_add_f32 v{Z}, 1.0, v{Z}
        v_rcp_f32 v{Z}, v{Z}
        s_mov_b32 exec_hi, 0x00ff00ff
        buffer_store_dword v{Z}, v10, s[{rWS}:{rWS+3}], 0 offen sc1
        s_mov_b64 exec, -1""")

    def deferred(self, f):
        if not self.o("late", 1): f(); return []
        n = len(self.a.lines); f(); L = self.a.lines[n:]; del self.a.lines[n:]
        return L
    def gemm_loop(self, vt, epi, fill, extra):
        a = self.a
        a.reset_counters()
        FR, ACC = 32, 64
        def reads(s, ks):
            st = FR + 16 * (ks & 1); sl = s % NSLOT
            xa, wa, sl = (self.XA, self.WA, sl * 16384) if sl < 4 else (self.XA2, self.WA2, 0)
            rx = lambda j: (lambda: a.ds(f"ds_read_b128 {vr(st+4*j,4)}, v{xa+ks} offset:{sl + 4096*j}"))
            rw = lambda i, q: (lambda: a.ds(f"ds_read_b64_tr_b16 {vr(st+8+4*i+2*q,2)}, v{wa+i} offset:{sl + (16*ks+4*q)*256}"))
            if vt: return [("X0", rx(0)), ("W0", rw(0,0)), ("W0", rw(0,1)), ("W1", rw(1,0)), ("W1", rw(1,1)), ("X1", rx(1))]
            return [("W0", rw(0,0)), ("W0", rw(0,1)), ("X0", rx(0)), ("X1", rx(1)), ("W1", rw(1,0)), ("W1", rw(1,1))]
        def group(ks, toks, nxt, first):
            st = FR + 16 * (ks & 1); out = {}
            sched = [int(x) for x in self.o('gs', '3300')]; k = 0
            for m, (i, j) in enumerate(((0,0),(0,1),(1,0),(1,1))):
                if vt: A, B, na, nb = st + 4*i, st + 8 + 4*j, f"X{i}", f"W{j}"
                else:  A, B, na, nb = st + 8 + 4*i, st + 4*j, f"W{i}", f"X{j}"
                a.wait(toks[na], toks[nb])
                d = ACC + 16 * (2*i + j)
                a(f"v_mfma_f32_32x32x16_bf16 {vr(d,16)}, {vr(A,4)}, {vr(B,4)}, {'0' if first else vr(d,16)}")
                for _ in range(sched[m]):
                    if k < len(nxt): out[nxt[k][0]] = nxt[k][1](); k += 1
                if m >= 2:
                    for _ in range(4):
                        if extra: a(extra.pop(0))
            return out
        a("s_barrier")
        toks = {}
        for n, f in reads(0, 0): toks[n] = f()
        for s in range(9):
            for ks in range(4):
                if ks < 3:
                    toks = group(ks, toks, reads(s, ks + 1), s == 0 and ks == 0)
                else:
                    a.wait_all(vm=False); a("s_barrier")
                    if self.o("jit", 0): self.jitter()
                    if s < 8: toks = group(ks, toks, reads(s + 1, 0), False)
        assert not extra
        sets = (FR, 152, 168, 8)
        T = {}
        def rd(ks, nm):
            st = sets[ks]; sl = (9 % NSLOT) * 16384; k = int(nm[1])
            if nm[0] == "X": T[ks, nm] = a.ds(f"ds_read_b128 {vr(st+4*k,4)}, v{self.XA+ks} offset:{sl + 4096*k}")
            else:
                for q in range(2): T[ks, nm] = a.ds(f"ds_read_b64_tr_b16 {vr(st+8+4*k+2*q,2)}, v{self.WA+k} offset:{sl + (16*ks+4*q)*256}")
        na, nb = ("X", "W") if vt else ("W", "X")
        first = [(lambda ks=ks, nm=nm: rd(ks, nm)) for ks in range(4) for nm in (na + "0", nb + "0")]
        later = [(lambda ks=ks: rd(ks, nb + "1")) for ks in range(4)] + [(lambda ks=ks: rd(ks, na + "1")) for ks in range(4)]
        group(3, toks, [(f"f{i}", f) for i, f in enumerate(first[:6])], False)
        for f in first[6:]: f()
        off = lambda nm: 4 * int(nm[1]) + (0 if nm[0] == "X" else 8)
        pend = []
        for bi, (i, j) in enumerate(((0,0),(0,1),(1,0),(1,1))):
            d = ACC + 16 * (2*i + j)
            for ks in range(4):
                a.wait(T[ks, f"{na}{i}"], T[ks, f"{nb}{j}"])
                a(f"v_mfma_f32_32x32x16_bf16 {vr(d,16)}, {vr(sets[ks]+off(f'{na}{i}'),4)}, {vr(sets[ks]+off(f'{nb}{j}'),4)}, {vr(d,16)}")
                if bi < 2 and later: later.pop(0)()
                if bi >= 2:
                    n = -(-len(pend) // (4 - ks + (4 if bi == 2 else 0)))
                    for _ in range(min(n, 9)): pend.pop(0)()
            if bi == 1: pend += epi(0, 0)
            if bi == 1: pend += epi(0, 1)
            if bi == 2: last = epi(1, 0)
        for f in pend: f()
        for f in last: f()
        for f in epi(1, 1): f()
        fill()

    def epi_qk_setup(self):
        a = self.a
        sBASE, sHS, sPQ = T0, T1, T3
        a(f"""s_mov_b32 s{sHS}, {Q_HS}
        s_mov_b32 s{T4}, {Q_US}
        s_cmp_ge_u32 s{sJT}, 5
        s_cselect_b32 s{sHS}, {KV_HS}, s{sHS}
        s_cselect_b32 s{T4}, {KV_US}, s{T4}
        s_cselect_b32 s{sBASE}, {KV}, {QO:#x}
        s_cselect_b32 s{T5}, 5, 0
        s_cselect_b64 s[{sM}:{sM+1}], -1, 0
        s_cselect_b32 s{sSC}, 1.0, {f2u(math.log2(math.e) / math.sqrt(20.0)):#x}
        s_sub_u32 s{T5}, s{sJT}, s{T5}
        s_lshl_b32 s{sPQ}, s{T5}, 4
        s_and_b32 s{T5}, s{sWAVE}, 2
        s_lshl_b32 s{T5}, s{T5}, 2
        s_add_u32 s{sPQ}, s{sPQ}, s{T5}
        s_lshl_b32 s{T5}, s{sRT}, 1
        s_and_b32 s{T6}, s{sWAVE}, 1
        s_add_u32 s{T5}, s{T5}, s{T6}
        s_mul_i32 s{T5}, s{T5}, s{T4}
        s_add_u32 s{sBASE}, s{sBASE}, s{T5}
        v_and_b32 v8, 31, v0
        v_and_b32 v9, 0x13, v0
        v_and_b32 v10, 4, v0
        v_lshl_or_b32 v9, v10, 1, v9
        v_and_b32 v10, 8, v0
        v_lshrrev_b32 v10, 1, v10
        v_or_b32 v9, v9, v10
        v_cndmask_b32 v8, v8, v9, s[{sM}:{sM+1}]
        v_lshrrev_b32 v9, 5, v0
        v_lshlrev_b32 v10, 3, v9
        v_lshl_add_u32 v12, v8, 4, v10
        v_add_u32 v13, 1024, v12
        v_mul_lo_u32 v10, v9, s{sHS}
        v_lshl_add_u32 v14, v8, 3, v10
        v_add_u32 v14, 1024, v14
        v_add_u32 v15, 256, v14""")
        for p in range(8):
            a(f"""s_add_u32 s{T4}, s{sPQ}, {p}
            s_mul_i32 s{T5}, s{T4}, 205
            s_lshr_b32 s{T5}, s{T5}, 10
            s_mul_i32 s{T6}, s{T5}, 5
            s_sub_u32 s{T4}, s{T4}, s{T6}
            s_lshl_b32 s{T5}, s{T5}, 1
            s_mul_i32 s{T5}, s{T5}, s{sHS}
            s_add_u32 s{T5}, s{T5}, s{sBASE}
            s_lshl_b32 s{T6}, s{T4}, 9
            s_add_u32 s{T5}, s{T5}, s{T6}
            s_sub_u32 s{T6}, s{sHS}, 1536
            s_cmp_ge_u32 s{T4}, 3
            s_cselect_b32 s{T6}, s{T6}, 0
            s_add_u32 s{sE+p}, s{T5}, s{T6}
            s_cmp_eq_u32 s{T4}, 2
            s_cselect_b64 s[{sM}:{sM+1}], -1, 0""")
            for j in range(2): a(f"v_cndmask_b32 v{self.EA+2*p+j}, v{12+j}, v{14+j}, s[{sM}:{sM+1}]")
    def gemm_epi_qk(self, i, j):
        a = self.a; L = []
        for g in range(4):
            d = 64 + 16 * (2*i + j) + 4*g
            for e in range(4): L.append(lambda d=d, e=e: a(f"v_mul_f32 v{d+e}, s{sSC}, v{d+e}"))
            L.append(lambda d=d: a(f"v_cvt_pk_bf16_f32 v{d}, v{d}, v{d+1}"))
            L.append(lambda d=d: a(f"v_cvt_pk_bf16_f32 v{d+1}, v{d+2}, v{d+3}"))
            L.append(lambda d=d, g=g: a.vm(f"buffer_store_dwordx2 {vr(d,2)}, v{self.EA+2*(4*i+g)+j}, s[{rWS}:{rWS+3}], s{sE+4*i+g} offen sc1{' nt' if 'q' in self.o('stnt', '') else ''}"))
        return L
    def epi_v_setup(self):
        a = self.a
        a(f"""s_sub_u32 s{T0}, s{sJT}, 10
        s_lshl_b32 s{T0}, s{T0}, 7
        s_and_b32 s{T1}, s{sWAVE}, 2
        s_lshl_b32 s{T1}, s{T1}, 5
        s_add_u32 s{T0}, s{T0}, s{T1}
        s_lshl_b32 s{T1}, s{sRT}, 1
        s_and_b32 s{T2}, s{sWAVE}, 1
        s_add_u32 s{T1}, s{T1}, s{T2}
        s_mul_i32 s{T1}, s{T1}, {KV_US}
        s_add_u32 s{sE}, s{T1}, {KV + 2560}
        s_mov_b32 s{T2}, {KV_HS - 320}
        v_and_b32 v8, 31, v0
        v_lshrrev_b32 v9, 5, v0
        v_mul_u32_u24 v9, 320, v9""")
        for j in range(2):
            a(f"""v_add_u32 v10, s{T0}, v8
            v_add_u32 v10, {32*j}, v10
            v_mul_u32_u24 v11, 3277, v10
            v_lshrrev_b32 v11, 16, v11
            v_mul_lo_u32 v11, v11, s{T2}
            v_lshl_add_u32 v10, v10, 4, v9
            v_add_u32 v{self.EA+j}, v10, v11""")
    def gemm_epi_v(self, i, j):
        a = self.a; L = []
        for s in range(2):
            d = 64 + 16 * (2*i + j) + 8*s
            for e in range(4): L.append(lambda d=d, e=e: a(f"v_cvt_pk_bf16_f32 v{d+e}, v{d+2*e}, v{d+2*e+1}"))
            L.append(lambda d=d, s=s: a.vm(f"buffer_store_dwordx4 {vr(d,4)}, v{self.EA+j}, s[{rWS}:{rWS+3}], s{sE} offen offset:{(2*i+s)*640} sc1{' nt' if 'q' in self.o('stnt', '') else ''}"))
        return L

    XS, WS_, PA, PB, PW, PS, HA, HL = 2, 6, 10, 11, 12, 13, 14, 15
    KR_, VV_, SW_, HD_, DV_, PO_ = 16, 176, 116, 132, 156, 160
    def dma_setup(self):
        a = self.a
        a(f"""v_lshrrev_b32 v16, 3, v0
        v_and_b32 v17, 7, v0
        v_lshrrev_b32 v18, 1, v16
        s_lshl_b32 s{T0}, s{sRT}, 7
        v_add_u32 v16, s{T0}, v16
        v_mul_u32_u24 v16, 1280, v16""")
        for n in range(4):
            a(f"""v_xor_b32 v19, {(4*n) & 7}, v18
            v_xor_b32 v19, v19, v17
            v_lshl_add_u32 v19, v19, 4, v16
            v_add_u32 v{self.XS+n}, {n*(8*1280-1024)}, v19""")
        a(f"""v_lshrrev_b32 v16, 4, v0
        v_and_b32 v17, 15, v0
        v_lshlrev_b32 v18, 2, v16
        v_xor_b32 v17, v17, v18
        v_mul_u32_u24 v16, 3840, v16
        v_lshl_add_u32 v16, v17, 4, v16
        s_lshl_b32 s{T0}, s{sJT}, 8
        v_add_u32 v{self.WS_}, s{T0}, v16""")
        for n in range(1, 4): a(f"v_add_u32 v{self.WS_+n}, {n*(4*3840-1024)}, v{self.WS_}")
        if self.o("rc", ""):
            c1, c2, c3 = (int(x) for x in self.o("rc", "").split(","))
            a(f"""s_mul_i32 s{T0}, s{sJT}, {c1}
            s_and_b32 s{T1}, s{sRT}, 3
            s_mul_i32 s{T1}, s{T1}, {c2}
            s_add_u32 s{T0}, s{T0}, s{T1}
            s_lshr_b32 s{T1}, s{sRT}, 2
            s_mul_i32 s{T1}, s{T1}, {c3}
            s_add_u32 s{T0}, s{T0}, s{T1}
            s_mul_i32 s{T1}, s{T0}, 205
            s_lshr_b32 s{T1}, s{T1}, 11
            s_mul_i32 s{T1}, s{T1}, 10
            s_sub_u32 s{sK}, s{T0}, s{T1}""")
            assert all(((v*205) >> 11) == v // 10 for v in range(15*c1 + 3*c2 + 3*c3 + 1))
            return
        P = self.o("rot", 4)
        a(f"s_add_u32 s{T0}, s{sJT}, s{sRT}")
        if P == 1: a(f"s_mov_b32 s{sK}, 0")
        elif P == 2: a(f"s_and_b32 s{T0}, s{T0}, 1\ns_mul_i32 s{sK}, s{T0}, 5")
        elif P == 3: a(f"s_mul_i32 s{T1}, s{T0}, 43\ns_lshr_b32 s{T1}, s{T1}, 7\ns_mul_i32 s{T1}, s{T1}, 3\ns_sub_u32 s{T0}, s{T0}, s{T1}\ns_mul_i32 s{T0}, s{T0}, 7\ns_lshr_b32 s{sK}, s{T0}, 1")
        elif P == 4: a(f"s_and_b32 s{T0}, s{T0}, 3\ns_mul_i32 s{T0}, s{T0}, 5\ns_lshr_b32 s{sK}, s{T0}, 1")
    def stage_dma(self, s):
        a = self.a
        sl = (s % NSLOT) * 16384
        a(f"s_lshl_b32 s{T0}, s{sK}, 7\ns_mul_i32 s{T1}, s{sK}, {64*3840}")
        def ld(txt):
            if a.n["vm"] - a.done["vm"] >= 62: a.wait(Tok("vm", a.done["vm"] + 8))
            return a.vm(txt)
        for h in range(4):
            a(f"s_mov_b32 m0, {L_X + sl + 4096*h}")
            a(f"s_add_u32 s{T2}, s{T0}, {32*1280*h}")
            for n in range(4): ld(f"buffer_load_dwordx4 v{self.XS+n}, s[{rA}:{rA+3}], s{T2} offen offset:{1024*n}{' nt' if s < self.o('gnt0', 0) else ''} lds")
            a(f"s_mov_b32 m0, {L_W + sl + 4096*h}")
            a(f"s_add_u32 s{T2}, s{T1}, {16*3840*h}")
            for n in range(4): t = ld(f"buffer_load_dwordx4 v{self.WS_+n}, s[{rB}:{rB+3}], s{T2} offen offset:{1024*n}{' nt' if s < self.o('gnt0', 0) else ''} lds")
        a(f"s_add_u32 s{sK}, s{sK}, 1\ns_cmp_eq_u32 s{sK}, 10\ns_cselect_b32 s{sK}, 0, s{sK}")
        return t
    def conv_scalars(self):
        a = self.a
        a(f"""s_min_u32 s{T0}, s{sLW}, 2
        s_add_u32 s{sCH}, s{sCH0}, s{T0}
        s_min_u32 s{sCH}, s{sCH}, 639
        s_mul_i32 s{T0}, s{T0}, {CONV_SZ}
        s_add_u32 s{T6}, s{T0}, {L_CONV}
        s_lshl_b32 s{T1}, s{sCH}, 1
        v_mov_b32 v{self.DV_}, s{T1}
        s_lshl_b32 s{T1}, s{sCH}, 12
        v_lshl_add_u32 v{self.HA}, v0, 4, s{T1}
        v_lshl_add_u32 v{self.HL}, v0, 4, s{T6}""")
        self.srd(rD, pH, 640 * 4096)
        a(f"s_mov_b32 m0, s{T6}\ns_nop 0")
        if "h" not in self.o("ab", ""):
            for g in range(4): a.vm(f"buffer_load_dwordx4 v{self.HA}, s[{rD}:{rD+3}], 0 offen offset:{1024*g}{self.nt} lds")
        self.srd(rC, pD, 640 * 2)
        return a.vm(f"buffer_load_ushort v{self.DV_}, v{self.DV_}, s[{rC}:{rC+3}], 0 offen")
    def pre_setup(self):
        self.a(f"""s_and_b32 s{T0}, s{sU}, 63
        s_lshr_b32 s{T1}, s{sU}, 6
        s_lshl_b32 s{T5}, s{sPI}, 6
        s_add_u32 s{T5}, s{T5}, {F1:#x}
        s_lshl_b32 s{T0}, s{T0}, 5
        s_lshl_b32 s{T1}, s{T1}, 7
        v_lshrrev_b32 v16, 3, v0
        v_and_b32 v17, 7, v0
        v_lshl_add_u32 v16, v16, 2, s{T0}
        v_lshl_add_u32 v18, v17, 4, s{T1}
        v_mul_u32_u24 v19, 1280, v16
        v_add_u32 v{self.PB}, v19, v18
        v_subrev_u32 v{self.PA}, 3840, v{self.PB}
        v_lshlrev_b32 v{self.PW}, 2, v18
        v_lshlrev_b32 v18, 11, v18
        v_lshlrev_b32 v16, 1, v16
        v_sub_u32 v18, v18, v16
        v_add_u32 v{self.PS}, {UR + 4088:#x}, v18""")
    def pre_loads(self):
        a = self.a
        if "k" in self.o("ab", ""): return
        self.srd(rC, pK, 2048 * 1280); self.srd(rD, pV, 2048 * 1280); self.srd(rB, pSH, 640 * 8)
        for j in range(4): a(f"buffer_load_dwordx4 {vr(self.KR_+12+4*j,4)}, v{self.PB}, s[{rC}:{rC+3}], 0 offen offset:{1280*j}{self.nt}")
        for j in range(4): a(f"buffer_load_dwordx4 {vr(self.VV_+4*j,4)}, v{self.PB}, s[{rD}:{rD+3}], 0 offen offset:{1280*j}{self.nt}")
        for j in range(3): a(f"buffer_load_dwordx4 {vr(self.KR_+4*j,4)}, v{self.PA}, s[{rC}:{rC+3}], 0 offen offset:{1280*j}{self.nt}")
        for j in range(4): a(f"buffer_load_dwordx4 {vr(self.SW_+4*j,4)}, v{self.PW}, s[{rB}:{rB+3}], 0 offen offset:{16*j}")
    def h_loads(self, D):
        a = self.a
        if "h" in self.o("ab", ""): return
        for g in range(4):
            a.vm(f"buffer_load_dwordx4 {vr(D+6*g,4)}, v{self.HA}, s[{rD}:{rD+3}], 0 offen offset:{1024*g}{self.nt}")
            a.vm(f"buffer_load_dwordx2 {vr(D+6*g+4,2)}, v{self.HA}, s[{rD}:{rD+3}], 0 offen offset:{1024*g+16}{self.nt}")
    def bar(self):
        a = self.a; L = a.newlabel("NB")
        a(f"s_cmp_ge_u32 s{sBC}, s{sNB}\ns_cbranch_scc1 {L}\ns_barrier\ns_add_u32 s{sBC}, s{sBC}, 1")
        a.label(L)
    def bar_rest(self):
        a = self.a; L, D = a.newlabel("BR"), a.newlabel("BRD")
        a.label(L)
        a(f"s_cmp_ge_u32 s{sBC}, s{sNB}\ns_cbranch_scc1 {D}\ns_barrier\ns_add_u32 s{sBC}, s{sBC}, 1\ns_branch {L}")
        a.label(D)
    def ewait(self, n=1):
        a = self.a; L, L2, D = a.newlabel("EW"), a.newlabel("EX"), a.newlabel("EWD")
        a.label(L)
        a(f"s_mov_b32 s{T1}, {n}")
        a.label(L2)
        a(f"""s_getreg_b32 s{T0}, hwreg(HW_REG_IB_STS)
        s_and_b32 s{T0}, s{T0}, 0x00c0000f
        s_cbranch_scc0 {D}
        s_cmp_ge_u32 s{sBC}, s{sNB}
        s_cbranch_scc1 {D}""")
        if n > 1: a(f"s_sleep 1\ns_sub_u32 s{T1}, s{T1}, 1\ns_cmp_lg_u32 s{T1}, 0\ns_cbranch_scc1 {L2}")
        a(f"""s_barrier
        s_add_u32 s{sBC}, s{sBC}, 1
        s_branch {L}""")
        a.label(D)
        a("s_waitcnt vmcnt(0)")
    def epoll(self, loads, tmp, cmp=None):
        a = self.a
        L, D = a.newlabel("EP"), a.newlabel("EPD")
        a(f"s_mov_b32 s{sCNT}, 0")
        a.label(L)
        k = 0
        for (va, r, imm, wd) in loads:
            ins = {1: "buffer_load_dword", 2: "buffer_load_dwordx2", 4: "buffer_load_dwordx4"}[wd]
            a(f"{ins} {vr(tmp+k, wd)}, v{va}, s[{r}:{r+3}], 0 offen offset:{imm} sc1"); k += wd
        self.ewait()
        self.poll_check(tmp, k, cmp)
        a(f"s_cbranch_scc1 {D}")
        a(f"s_add_u32 s{sCNT}, s{sCNT}, 1\ns_cmp_lt_u32 s{sCNT}, {POLL_MAX}\ns_cbranch_scc0 {D}\ns_sleep 1\ns_branch {L}")
        a.label(D)
    def pre_compute_list(self):
        L = []
        K, V, W, AC = 76, 90, 98, 106
        lo = lambda d, s: L.append(f"v_lshlrev_b32 v{d}, 16, v{s}")
        hi = lambda d, s: L.append(f"v_and_b32 v{d}, 0xffff0000, v{s}")
        for p in range(4):
            for j in range(7): lo(K+2*j, self.KR_+4*j+p); hi(K+2*j+1, self.KR_+4*j+p)
            for j in range(4): lo(V+2*j, self.VV_+4*j+p); hi(V+2*j+1, self.VV_+4*j+p)
            w = self.SW_ + 4*p
            lo(W, w); lo(W+1, w+2); hi(W+2, w); hi(W+3, w+2); lo(W+4, w+1); lo(W+5, w+3); hi(W+6, w+1); hi(W+7, w+3)
            for lag in (3, 2, 1, 0):
                for t in range(4):
                    kk = K + 2*(3 + t - lag)
                    if self.o("pk", 1):
                        if lag == 3: L.append(f"v_pk_mul_f32 {vr(AC+2*t,2)}, {vr(kk,2)}, {vr(W+2*lag,2)}")
                        else: L.append(f"v_pk_fma_f32 {vr(AC+2*t,2)}, {vr(kk,2)}, {vr(W+2*lag,2)}, {vr(AC+2*t,2)}")
                    else:
                        for h in range(2):
                            if lag == 3: L.append(f"v_mul_f32 v{AC+2*t+h}, v{kk+h}, v{W+2*lag+h}")
                            else: L.append(f"v_fmac_f32 v{AC+2*t+h}, v{kk+h}, v{W+2*lag+h}")
            for t in range(4):
                if self.o("pk", 1): L.append(f"v_pk_mul_f32 {vr(AC+2*t,2)}, {vr(AC+2*t,2)}, {vr(V+2*t,2)}")
                else:
                    for h in range(2): L.append(f"v_mul_f32 v{AC+2*t+h}, v{AC+2*t+h}, v{V+2*t+h}")
            for h in range(2):
                o = self.PO_ + 4*p + 2*h
                L.append(f"v_cvt_pk_bf16_f32 v{o}, v{AC+6+h}, v{AC+4+h}"); L.append(f"v_cvt_pk_bf16_f32 v{o+1}, v{AC+2+h}, v{AC+h}")
        return L
    def pre_stores(self):
        a = self.a
        if "s" in self.o("ab", ""): return
        if not self.o("st4", 1):
            for e in range(8):
                a(f"s_mov_b32 s{T0}, {4096*e}")
                a(f"buffer_store_dwordx2 {vr(self.PO_+2*e,2)}, v{self.PS}, s[{rWS}:{rWS+3}], s{T0} offen sc1")
            return
        for e in range(8): a(f"ds_write_b64 v{(self.PA, self.PW)[e & 1]}, {vr(self.PO_+2*e,2)} offset:{64*(e & 6)}")
        for k in range(1, 4): a(f"v_xor_b32 v{76+k}, {32*k}, v{self.PB}")
        a("s_waitcnt lgkmcnt(0)")
        for k in range(4): a(f"ds_read_b128 {vr(self.PO_+4*k,4)}, v{76+k if k else self.PB} offset:{1024*k}")
        for k in range(4):
            a(f"s_mov_b32 s{T0}, {65536*k}\ns_waitcnt lgkmcnt({3-k})")
            a(f"buffer_store_dwordx4 {vr(self.PO_+4*k,4)}, v{self.PS}, s[{rWS}:{rWS+3}], s{T0} offen sc1{' nt' if 'u' in self.o('stnt', '') else ''}")
    def pre_store_setup(self, spare=False):
        if not self.o("st4", 1): return
        assert (L_CONV + CONV_SZ + 2*CS) % 128 == 0 and CONV_SZ % 128 == 0 and (L_CONV + U_OFF) % 128 == 0
        if spare: self.a(f"s_lshl_b32 s{T0}, s{sWAVE}, 12")
        else: self.a(f"""s_mul_i32 s{T0}, s{sLW}, {CONV_SZ}
        s_add_u32 s{T0}, s{T0}, {L_CONV + 2*CS}
        s_cmp_eq_u32 s{sWAVE}, 7
        s_cselect_b32 s{T0}, {L_CONV + U_OFF}, s{T0}""")
        self.a(f"""v_and_b32 v76, 7, v0
        v_lshrrev_b32 v77, 3, v0
        v_sub_u32 v77, 7, v77
        v_lshrrev_b32 v78, 1, v77
        v_xor_b32 v78, v78, v76
        v_lshlrev_b32 v78, 4, v78
        v_and_b32 v77, 1, v77
        v_lshl_add_u32 v78, v77, 3, v78
        v_lshl_add_u32 v78, v76, 9, v78
        v_add_u32 v{self.PA}, s{T0}, v78
        v_xor_b32 v{self.PW}, 64, v{self.PA}
        v_lshrrev_b32 v76, 5, v0
        v_and_b32 v77, 31, v0
        v_xor_b32 v77, v77, v76
        v_lshlrev_b32 v77, 4, v77
        v_lshl_add_u32 v76, v76, 9, v77
        v_add_u32 v{self.PB}, s{T0}, v76
        s_lshr_b32 s{T1}, s{sU}, 6
        s_lshl_b32 s{T1}, s{T1}, 18
        s_and_b32 s{T0}, s{sU}, 63
        s_lshl_b32 s{T0}, s{T0}, 6
        s_sub_u32 s{T1}, s{T1}, s{T0}
        s_add_u32 s{T1}, s{T1}, {UR + 4032:#x}
        v_lshrrev_b32 v76, 2, v0
        v_lshlrev_b32 v76, 12, v76
        v_and_b32 v77, 3, v0
        v_lshl_add_u32 v76, v77, 4, v76
        v_add_u32 v{self.PS}, s{T1}, v76""")
    def h_valu(self, D, t0):
        L = [f"v_alignbit_b32 v{t0+e}, v{D+e+1}, v{D+e}, 16" for e in range(4)]
        L += [f"v_mov_b32 v{t0+4+e}, v{D+e+1}" for e in range(4)]
        return L + [f"v_alignbit_b32 v{t0+8+e}, v{D+e+2}, v{D+e+1}, 16" for e in range(4)]
    def h_writes(self, D, imm, t0):
        for r, src in enumerate((t0, t0 + 4, t0 + 8, D + 2)):
            self.a(f"ds_write_b128 v{self.HL}, {vr(src,4)} offset:{r*CS + imm}")
    def conv_prep(self, part):
        a = self.a
        HD, D = self.HD_, 112
        HA, UB, UE, YS = 16, 17, 18, 19
        if part == 0:
            for g in range(4):
                a(f"ds_read_b128 {vr(HD+6*g,4)}, v{self.HL} offset:{1024*g}")
                a(f"ds_read_b64 {vr(HD+6*g+4,2)}, v{self.HL} offset:{1024*g+16}")
            a(f"""v_lshrrev_b32 v22, 4, v0
            s_lshl_b32 s{T0}, s{sCH}, 12
            v_lshrrev_b32 v23, 2, v0
            v_and_b32 v23, 3, v23
            v_mul_u32_u24 v23, {CS}, v23
            v_lshl_add_u32 v23, v22, 4, v23
            v_and_b32 v24, 3, v0
            v_lshl_add_u32 v23, v24, 3, v23
            v_add_u32 v{HA}, s{T6}, v23
            v_and_b32 v23, 15, v0
            v_lshlrev_b32 v23, 5, v23
            v_lshlrev_b32 v24, 4, v22
            v_sub_u32 v24, v24, v23
            v_add_u32 v24, s{T6}, v24
            v_add_u32 v{UB}, {U_OFF + 480}, v24
            v_lshl_add_u32 v23, v22, 3, v23
            v_sub_u32 v24, s{T6}, v23
            v_add_u32 v{UE}, {U_OFF + 504}, v24
            s_add_u32 s{T0}, s{T0}, {YD:#x}
            v_add_u32 v{YS}, s{T0}, v23
            v_lshlrev_b32 v20, 16, v{self.DV_}""")
            for e in range(6): a(f"v_mov_b32 v{D+e}, 0")
            a("s_waitcnt lgkmcnt(0)")
            a(f"v_readlane_b32 s{T1}, v{HD}, 0\nv_readlane_b32 s{T2}, v{HD+1}, 0")
            for l in self.h_valu(HD, 64): a(l)
            a(f"v_writelane_b32 v{D+4}, s{T1}, 1\nv_writelane_b32 v{D+5}, s{T2}, 1")
        else:
            for g in range(1, 4):
                for l in self.h_valu(HD + 6*g, 64 + 12*g): a(l)
            for l in self.h_valu(D, 120): a(l)
    def h_store(self):
        a = self.a
        for g in range(4): self.h_writes(self.HD_ + 6*g, 32 + 1024*g, 64 + 12*g)
        a("s_mov_b32 exec_hi, 0")
        a(f"ds_write_b128 v{self.HL}, v[112:115] offset:{U_OFF + 4096}")
        a("s_mov_b64 exec, 3")
        self.h_writes(112, 0, 120)
        a("s_mov_b64 exec, -1")
        for d, r in ((2, 16), (3, 17), (4, 18), (5, 19), (7, 20)): a(f"v_mov_b32 v{d}, v{r}")

    def dma_role(self):
        a = self.a
        a.reset_counters()
        fine = self.o("fine", 0)
        self.a.lines.append('; ---- wave 4: streams the x / wqkv tiles (128 x 64 per stage, ring of three) into LDS, then joins the convolution')
        self.dma_setup()
        a("s_waitcnt lgkmcnt(0)")
        self.srd(rA, pX, 2048 * 1280); self.srd(rB, pW, 640 * 3840)
        a(f"s_cmp_ge_u32 s{sI}, 30\ns_cbranch_scc1 L_D_SKIP")
        S = {0: self.stage_dma(0)}
        if self.o("s1early", 0): S[1] = self.stage_dma(1)
        a.label("L_D_SKIP")
        if self.stamps: a("v_mov_b32 v1, 0")
        self.stamp("start")
        self.srd(rWS, pWS, WS_SIZE)
        if not self.o("late2", 0): self.setup_call()
        a(f"s_cmp_ge_u32 s{sI}, 30\ns_cbranch_scc1 {'L_D_NT0' if self.o('late2', 0) else 'L_D_NT'}")
        if self.o("dprio", 0): a(f"s_setprio {self.o('dprio', 0)}")
        if not self.o("s1early", 0): S[1] = self.stage_dma(1)
        if self.o("hat", 0) == 0: self.conv_scalars()
        for s in range(10):
            a.wait(S[s])
            if fine: self.stamp(f"l.w{s}")
            a("s_barrier")
            if fine or s in (0, 5, 9): self.stamp(f"l.b{s}")
            if s + 2 <= 9 and "d" in self.o("ab", ""): S[s+2] = S[1]
            elif s + 2 <= 9:
                S[s+2] = self.stage_dma(s + 2)
                if fine: self.stamp(f"l.i{s}")
            if s == 8 and self.o("prep", 1): self.conv_prep(0)
            if s == 9 and self.o("prep", 1): self.conv_prep(1)
            if s == 9 and self.o("late2", 0): self.setup_call()
        a.label("L_CONV")
        self.conv()
    def side_role(self):
        a = self.a
        self.a.lines.append('; ---- waves 5..7: short depthwise convolution times v, transposed to channel-major; wave 7 then stages it for the long convolution')
        a.label("L_SIDE")
        a.reset_counters()
        a(f"""s_cmp_ge_u32 s{sI}, 30
        s_cbranch_scc1 L_S_NT
        s_lshr_b32 s{T0}, s{sLW}, 1
        s_lshl_b32 s{sU}, s{sPI}, 1
        s_add_u32 s{sU}, s{sU}, s{T0}
        s_mov_b32 s{T7}, {L_SIG}
        s_cmp_lg_u32 s{sWAVE}, 6
        s_cbranch_scc1 L_S_GO
        s_cmp_lt_u32 s{sG}, 32
        s_cselect_b32 s{T1}, s{sNCH}, 0
        s_cmp_lg_u32 s{T1}, 2
        s_cbranch_scc1 L_W6
        s_add_u32 s{sU}, s{sG}, 608
        s_add_u32 s{sPI}, s{sG}, 256
        s_mov_b32 s{sNU}, 1
        s_mov_b32 s{T7}, {L_SIG + 8}
        L_S_GO:""")
        slate = self.o("slate", 0)
        if slate: self.setup_call()
        self.pre_setup()
        a("s_waitcnt lgkmcnt(0)")
        if slate > 1: a(f"s_sleep {slate}")
        self.pre_loads()
        if self.o("hat", 0) == 0:
            L7 = a.newlabel("H7")
            a(f"s_cmp_ge_u32 s{sLW}, s{sNCH}\ns_cbranch_scc1 {L7}")
            self.conv_scalars()
            a.label(L7)
        if self.stamps: a("v_mov_b32 v1, 0")
        self.stamp("start")
        self.srd(rWS, pWS, WS_SIZE)
        if not slate and not self.o("late2", 0): self.setup_call()
        if self.o("late2", 0): a(f"s_mov_b32 s{sNB}, 10\ns_mov_b32 s{sBC}, 0")
        a(f"""v_mov_b32 v44, {L_SIG}
        v_mov_b32 v46, 0
        v_mov_b32 v47, 0
        ds_write_b64 v44, v[46:47]
        ds_write_b64 v44, v[46:47] offset:8
        ds_write_b32 v44, v46 offset:16
        v_and_b32 v46, 1, v0
        v_lshlrev_b32 v46, 7, v46
        s_waitcnt lgkmcnt(0)""")
        if not self.o("late2", 0): self.pre_store_setup()
        self.bar()
        if self.o("late2", 0):
            self.pre_store_setup()
        self.ewait(self.o("espin0", 1))
        self.stamp("s.kv")
        if self.o("sprio", 0): a(f"s_setprio {self.o('sprio', 0)}")
        PC = self.pre_compute_list()
        nch = self.o("nchunk", 2)
        per = -(-len(PC) // nch)
        for c in range(nch):
            for l in (PC[c*per:(c+1)*per] if "v" not in self.o("ab", "") else []): a(l)
            if c < nch - 1 or self.o("barst", 0): self.bar()
        self.pre_stores()
        if self.o("hat", 0) == 1:
            L7 = a.newlabel("H7")
            a(f"s_cmp_ge_u32 s{sLW}, s{sNCH}\ns_cbranch_scc1 {L7}")
            self.conv_scalars()
            a.label(L7)
        self.srd(rC, pDBG, 256)
        a(f"buffer_load_dword v47, v46, s[{rC}:{rC+3}], 0 offen sc1")
        self.stamp("s.st")
        self.ewait(self.o("espin", 1))
        self.last_flag(8, f"s{sNU}", T5, 114, base=f"s{T7}")
        self.stamp("s.F1set")
        a(f"s_cmp_eq_u32 s{sWAVE}, 7\ns_cbranch_scc1 L_FETCH\ns_cmp_eq_u32 s{sWAVE}, 6\ns_cbranch_scc1 {'L_IDLE3' if self.o('late2', 0) else 'L_IDLE2'}")
        a.label("L_PREP")
        if self.o("prep", 1):
            self.bar()
            self.conv_prep(0)
            self.bar()
            self.conv_prep(1)
        self.bar_rest()
        if self.o("late2", 0):
            a(f"s_cmp_eq_u32 s{sWAVE}, 6\ns_cbranch_scc1 L_CONV")
            self.setup_call()
        a("s_branch L_CONV")
        if self.o("late2", 0):
            a.label("L_IDLE3")
            self.bar_rest()
            self.setup_call()
            a(f"s_mov_b32 s{sBC}, 10\ns_branch L_IDLE2")
        a.label("L_W6")
        a("s_waitcnt lgkmcnt(0)")
        a(f"s_cmp_lt_u32 s{sNCH}, 3\ns_cbranch_scc1 L_IDLE")
        self.conv_scalars()
        if self.stamps: a("v_mov_b32 v1, 0")
        self.stamp("start")
        self.srd(rWS, pWS, WS_SIZE)
        self.setup_call()
        self.bar()
        self.ewait()
        a("s_branch L_PREP")
        a.label("L_IDLE")
        if self.stamps: a("v_mov_b32 v1, 0")
        self.stamp("start")
        self.srd(rWS, pWS, WS_SIZE)
        self.setup_call()
        a.label("L_IDLE2")
        for l in self.att_init_list(): a(l)
        self.bar_rest()
        a("s_branch L_ATT")
        a.label("L_S_NT")
        a("s_waitcnt lgkmcnt(0)")
        if self.stamps: a("v_mov_b32 v1, 0")
        self.stamp("start")
        self.srd(rWS, pWS, WS_SIZE)
        a.label("L_D_NT0")
        self.setup_call()
        a.label("L_D_NT")
        a(f"s_call_b64 s[{sRET}:{sRET+1}], L_SPARE")
        a(f"s_mov_b32 s{sBC}, 1\ns_branch L_IDLE2")
        a.label("L_SPARE")
        a(f"""s_sub_u32 s{T0}, s{sPI}, 180
        s_lshl_b32 s{T0}, s{T0}, 3
        s_add_u32 s{sU}, s{T0}, s{sWAVE}""")
        self.pre_setup()
        self.pre_loads()
        a(f"""v_mov_b32 v44, {L_SIG}
        v_mov_b32 v46, 0
        v_mov_b32 v47, 0
        ds_write_b64 v44, v[46:47]
        ds_write_b64 v44, v[46:47] offset:8
        s_waitcnt lgkmcnt(0)
        s_barrier""")
        a.label("L_SPARE2")
        self.pre_store_setup(spare=True)
        a("s_waitcnt vmcnt(0)")
        for l in PC: a(l)
        self.pre_stores()
        a.label("L_SPARE3")
        a("s_waitcnt vmcnt(0)")
        self.last_flag(8, f"s{sNU}", T5, 114)
        a(f"s_setpc_b64 s[{sRET}:{sRET+1}]")
        self.fetcher()

    def fetcher(self):
        a = self.a
        a.label("L_FETCH")
        a.reset_counters()
        OK = a.newlabel("CNTOK")
        a(f"s_setprio 0\nv_lshlrev_b32 v{L16}, 4, v0")
        self.poll_check(47, 1, cmp="v_cmp_le_u32 vcc, 0x80, v47")
        a(f"s_cbranch_scc1 {OK}")
        self.epoll([(46, rC, 0, 1)], 47, cmp="v_cmp_le_u32 vcc, 0x80, v47")
        a.label(OK)
        a(f"""s_andn2_b32 s{T1}, s{sCH0}, 63
        s_add_u32 s{T2}, s{sCH0}, s{sNCH}
        s_sub_u32 s{T2}, s{T2}, 1
        s_or_b32 s{T2}, s{T2}, 63""")
        for r in (T1, T2):
            a(f"""s_lshr_b32 s{T3}, s{r}, 3
            s_add_u32 s{T3}, s{T3}, 180
            s_lshr_b32 s{T4}, s{r}, 1
            s_cmp_ge_u32 s{r}, 480
            s_cselect_b32 s{T4}, s{T3}, s{T4}
            s_sub_u32 s{T3}, s{r}, 352
            s_cmp_ge_u32 s{r}, 608
            s_cselect_b32 s{r}, s{T3}, s{T4}""")
        a(f"""v_add_u32 v9, s{T1}, v0
        v_min_u32 v9, s{T2}, v9
        v_lshlrev_b32 v9, 6, v9
        v_add_u32 v9, {F1:#x}, v9""")
        if self.o("pgate", 8):
            LG, LD = a.newlabel("PG"), a.newlabel("PGD")
            a.label(LG)
            a(f"s_cmp_ge_u32 s{sBC}, {self.o('pgate', 8)}\ns_cbranch_scc1 {LD}\ns_cmp_ge_u32 s{sBC}, s{sNB}\ns_cbranch_scc1 {LD}\ns_barrier\ns_add_u32 s{sBC}, s{sBC}, 1\ns_branch {LG}")
            a.label(LD)
        if "p" not in self.o("ab", ""): self.mpoll([9], 16, elastic=True)
        self.stamp("f.F1ok")
        a(f"s_lshl_b32 s{T2}, s{sCH0}, 12\ns_add_u32 s{T2}, s{T2}, {UR:#x}")
        for c in range(3 if "u" not in self.o("ab", "") else 0):
            L = a.newlabel("NOU")
            if c == 2: a(f"s_cmp_lt_u32 s{sNCH}, 3\ns_cbranch_scc1 {L}")
            a(f"s_mov_b32 m0, {L_CONV + c*CONV_SZ + U_OFF}\ns_add_u32 s{T1}, s{T2}, {4096*c}")
            for j in range(4): a(f"buffer_load_dwordx4 v{L16}, s[{rWS}:{rWS+3}], s{T1} offen offset:{1024*j} sc1 lds")
            if c == 2: a.label(L)
        a("v_mov_b32 v45, 1")
        self.ewait()
        a("ds_write_b32 v44, v45")
        self.stamp("f.u")
        self.bar_rest()
        if self.o("late2", 0): self.setup_call()
        for l in self.att_init_list(): a(l)
        a("s_branch L_ATT")
    def kv_fetch(self):
        a = self.a
        a.reset_counters()
        OK = a.newlabel("CNTOK")
        self.poll_check(29, 1, cmp="v_cmp_le_u32 vcc, 0x80, v29")
        a(f"s_cbranch_scc1 {OK}")
        self.poll([(28, rC, 0, 1)], 29, cmp="v_cmp_le_u32 vcc, 0x80, v29")
        a.label(OK)
        self.sig_wait(12, 4)
        self.sig_wait(8, f"s{sNU}")
        self.mpoll([30, 31], 16)
        self.stamp("f.F2ok")
        a(f"""s_mul_i32 s{T0}, s{sHEAD}, {Q_HS}
        s_mul_i32 s{T1}, s{sQB}, {4*Q_US}
        s_add_u32 s{T0}, s{T0}, s{T1}
        s_add_u32 s{T0}, s{T0}, {QO:#x}""")
        def lin(sbase, lds0, n):
            T = []
            for k in range(n):
                if k % 4 == 0: a(f"s_mov_b32 m0, {lds0 + 1024*k}\ns_add_u32 s{T1}, s{sbase}, {1024*k}")
                T.append(a.vm(f"buffer_load_dwordx4 v{L16}, s[{rWS}:{rWS+3}], s{T1} offen offset:{1024*(k%4)} sc1 lds"))
            return T
        if self.o("kv3", 1):
            lin(T0, L_Q, 10)
            T = lin(sKVB, 0, 40)
            a(f"v_mov_b32 v16, {L_SIG}\nv_mov_b32 v17, 1\nv_mov_b32 v18, 2")
            a.wait(T[9]); a("ds_write_b32 v16, v17 offset:4")
            a.wait(T[19]); a("ds_write_b32 v16, v18 offset:4")
        else:
            lin(T0, L_Q, 10)
            lin(sKVB, 0, 40)
            a(f"v_mov_b32 v16, {L_SIG}\nv_mov_b32 v17, 3")
            a.wait_all()
            a("ds_write_b32 v16, v17 offset:4")
        self.stamp("f.kv0")
    def kv_fetch_setup(self):
        a = self.a
        self.srd(rC, pDBG, 256)
        a(f"""s_mul_i32 s{T0}, s{sHEAD}, 20
        v_and_b32 v28, 15, v0
        v_lshrrev_b32 v30, 4, v0
        v_and_b32 v31, 1, v30
        v_mul_u32_u24 v31, 19, v31
        v_add_u32 v31, s{T0}, v31
        v_lshrrev_b32 v31, 7, v31
        v_lshrrev_b32 v30, 1, v30
        v_mul_u32_u24 v30, 5, v30
        v_add3_u32 v30, v30, v31, 5
        v_lshl_add_u32 v30, v30, 4, v28
        v_lshlrev_b32 v30, 6, v30
        v_add_u32 v30, {F2:#x}, v30
        v_lshl_add_u32 v31, v31, 4, s{sQB}
        v_add_u32 v31, s{sQB}, v31
        v_and_b32 v28, 1, v0
        v_add_u32 v31, v31, v28
        v_lshlrev_b32 v31, 6, v31
        v_add_u32 v31, {F2:#x}, v31
        v_lshlrev_b32 v28, 7, v28""")

    def sig_check(self, off, thr, tok):
        a = self.a
        OK = a.newlabel("SOK")
        a.wait(tok)
        a(f"v_readfirstlane_b32 s{T0}, v15\ns_nop 0\ns_cmp_ge_u32 s{T0}, {thr}\ns_cbranch_scc1 {OK}")
        self.sig_wait(off, thr)
        a.label(OK)
    def sig_wait(self, off, thr=1):
        a = self.a
        L, D = a.newlabel("SIG"), a.newlabel("SIGD")
        a(f"v_mov_b32 v14, {L_SIG}\ns_mov_b32 s{sCNT}, 0")
        a.label(L)
        a(f"""ds_read_b32 v15, v14 offset:{off}
        s_waitcnt lgkmcnt(0)
        v_readfirstlane_b32 s{T0}, v15
        s_add_u32 s{sCNT}, s{sCNT}, 1
        s_cmp_ge_u32 s{T0}, {thr}
        s_cbranch_scc1 {D}
        s_sleep 1
        s_cmp_lt_u32 s{sCNT}, {POLL_MAX*40}
        s_cbranch_scc1 {L}""")
        a.label(D)
    def conv(self):
        a = self.a
        a.reset_counters()
        ACC, FR = 16, 64
        HA, UB, UE, YS, DV = 2, 3, 4, 5, self.DV_
        a(f"s_setprio {self.o('hprio', 0)}")
        if not self.o("prep", 1): self.conv_prep(0); self.conv_prep(1)
        self.h_store()
        self.stamp("v.h")
        self.sig_wait(0)
        a(f"s_setprio {self.o('cprio', 3)}")
        a.reset_counters()
        def reads(rho):
            st = FR + 64 * (rho & 1)
            ra = lambda i, q: (lambda: a.ds(f"ds_read_b64_tr_b16 {vr(st+4*i+2*q,2)}, v{HA} offset:{64*(8*i+rho) + 8*q}"))
            rb = lambda d: (lambda: a.ds(f"ds_read_b128 {vr(st+32+4*d,4)}, v{UB} offset:{64*(56 - (8*d - rho))}"))
            L = [("A0", ra(0,0)), ("A0", ra(0,1))] + [(f"B{d}", rb(d)) for d in range(8)]
            for i in range(1, 8): L += [(f"A{i}", ra(i,0)), (f"A{i}", ra(i,1))]
            return L
        toks = {}
        for n, f in reads(0): toks[n] = f()
        self.stamp("v.u")
        init = self.att_init_list()
        fold = self.o("cfold", 1)
        tu = {}
        def pre(c):
            u, t = FR + 2*c, FR + 16 + 4*c
            return [lambda: (a.wait(tu[c]), a(f"v_and_b32 v{t}, 0xffff0000, v{u+1}")), lambda: a(f"v_lshlrev_b32 v{t+1}, 16, v{u+1}"),
                    lambda: a(f"v_and_b32 v{t+2}, 0xffff0000, v{u}"), lambda: a(f"v_lshlrev_b32 v{t+3}, 16, v{u}")]
        def post(c):
            d, t = ACC + 4*c, FR + 16 + 4*c
            L = [(lambda e=e: a(f"v_fmac_f32 v{t+e}, v7, v{t+e}") ) for e in range(0)]
            L += [(lambda e=e: a(f"v_fma_f32 v{t+e}, v7, v{t+e}, v{d+e}")) for e in range(4)]
            L += [lambda: a(f"v_cvt_pk_bf16_f32 v{t}, v{t}, v{t+1}"), lambda: a(f"v_cvt_pk_bf16_f32 v{t+1}, v{t+2}, v{t+3}")]
            L += [lambda: a.vm(f"buffer_store_dwordx2 {vr(t,2)}, v{YS}, s[{rWS}:{rWS+3}], 0 offen offset:{512*c} sc1{' nt' if 'y' in self.o('stnt', '') else ''}")]
            return L
        Q, ready = [], {}
        for rho in range(8):
            st = FR + 64 * (rho & 1)
            nxt = reads(rho + 1) if rho < 7 else []
            out = {}; k = 0; m = 0
            for i in range(8):
                for c in range(i, 8):
                    a.wait(toks[f"A{i}"], toks[f"B{c-i}"])
                    d = ACC + 4 * c
                    a(f"v_mfma_f32_16x16x32_bf16 {vr(d,4)}, {vr(st+4*i,4)}, {vr(st+32+4*(c-i),4)}, {'0' if (rho == 0 and i == 0) else vr(d,4)}")
                    m += 1
                    if m >= 4 and k < len(nxt): out[nxt[k][0]] = nxt[k][1](); k += 1
                    elif m >= 28 and init: a(init.pop())
                    if rho == 7 and fold:
                        if c == i: ready[c] = len(a.lines)
                        if m <= 4:
                            for cc in (2*m - 2, 2*m - 1): tu[cc] = a.ds(f"ds_read_b64 {vr(FR+2*cc,2)}, v{UE} offset:{512*(7-cc)}")
                            if m == 4: Q += [(None, f) for cc in range(8) for f in pre(cc)[:0]]
                        else:
                            if m == 5:
                                for cc in range(8): Q += [(None, f) for f in pre(cc)] + [(cc, f) for f in post(cc)]
                            for _ in range(2):
                                if Q and (Q[0][0] is None or (Q[0][0] in ready and len(a.lines) - ready[Q[0][0]] >= 9)): Q.pop(0)[1]()
            assert k == len(nxt)
            toks = out
        assert not init
        self.stamp("v.mfma")
        if not fold:
            for c in range(8): tu[c] = a.ds(f"ds_read_b64 {vr(FR+2*c,2)}, v{UE} offset:{512*(7-c)}")
            for c in range(8): Q += [(None, f) for f in pre(c)] + [(c, f) for f in post(c)]
            ready = {c: -99 for c in range(8)}
        while Q:
            c, f = Q.pop(0)
            if c is not None and len(a.lines) - ready[c] < 9: a.nop(9 - (len(a.lines) - ready[c])); ready[c] = -99
            f()
        self.stamp("v.st")

    def m2b(self, S, j=1): self.a(f"v_mfma_f32_32x32x4_2b_bf16 {vr(S,32)}, {vr(KRM,2)}, {vr((QR2, QR)[j],2)}, 0")
    def mqk(self, S, h, j=1): self.a(f"v_mfma_f32_32x32x16_bf16 {vr(S+16*h,16)}, {vr(KM+4*h,4)}, {vr((QM2, QM)[j],4)}, {vr(S+16*h,16)}")
    def smf(self, V, P, j=1): self.a(f"v_smfmac_f32_32x32x32_bf16 {vr((O2, O_)[j],16)}, {vr(V,4)}, {vr(P,8)}, v{IDX}")
    def side_kv(self, add):
        a = self.a
        def mk(j):
            def f():
                if j == 0: a(f"s_add_u32 m0, s{sKVW}, {add*KV_US}\ns_add_u32 s{T5}, s{sKVG}, {add*KV_US}")
                if j == 4: a(f"s_add_u32 m0, m0, 4096\ns_add_u32 s{T5}, s{T5}, 4096")
                a.vm(f"buffer_load_dwordx4 v{L16}, s[{rWS}:{rWS+3}], s{T5} offen offset:{1024*(j%4)} sc1 lds")
            return f
        return [mk(j) for j in range(5)]
    def side_wo(self):
        a = self.a
        def mk(k):
            def f():
                L = a.newlabel("NOWO")
                if k == 0: a(f"s_mul_i32 s{T4}, s{sWAVE}, {13*1024}\ns_add_u32 m0, s{T4}, {L_WO}")
                else: a("s_add_u32 m0, m0, 1024")
                if k % 5 == 0: a(f"s_mov_b32 s{T5}, {40960*(k//5)}")
                elif k < 9: a("s_nop 0")
                if k >= 9: a(f"s_cmp_eq_u32 s{sWAVE}, 7\ns_cbranch_scc1 {L}")
                a.vm(f"buffer_load_dwordx4 v{WOV + k%5}, s[{rA}:{rA+3}], s{T5} offen{' nt' if 'w' in self.o('stnt', '') else ''} lds")
                if k >= 9: a.label(L)
            return f
        return [mk(k) for k in range(13)]
    def side_yd(self):
        a = self.a
        def f0():
            OK = a.newlabel("F3OK")
            a.wait(self.tF3)
            self.poll_check(F3T, 2)
            a(f"s_cbranch_scc1 {OK}")
            snap = a.snapshot(); self.poll([(AF3, rWS, 0, 2)], F3T); a.restore(snap)
            a.label(OK)
            a(f"s_mul_i32 s{T5}, s{sWAVE}, 1280\ns_add_u32 m0, s{T5}, {L_YD}\ns_mov_b32 s{T5}, {8*4096 - 1024}")
            a.vm(f"buffer_load_dwordx4 v{YDV}, s[{rWS}:{rWS+3}], 0 offen sc1 lds")
            a("s_mov_b64 exec, 0xffff")
            a.vm(f"buffer_load_dwordx4 v{YDV}, s[{rWS}:{rWS+3}], s{T5} offen offset:1024 sc1 lds")
            a("s_mov_b64 exec, -1")
        return [f0]
    def side_x(self):
        a = self.a
        def mk(j):
            def f():
                if j == 0: self.srd(rA, pX, 2048 * 1280)
                a.vm(f"buffer_load_dwordx2 {vr(XE+2*j,2)}, v{AOUT}, s[{rA}:{rA+3}], 0 offen offset:{32*j}")
            return f
        def f3(): self.tF3 = a.vm(f"buffer_load_dwordx2 {vr(F3T,2)}, v{AF3}, s[{rWS}:{rWS+3}], 0 offen sc1")
        return [mk(j) for j in range(3)] + [f3]
    def attention(self):
        a = self.a
        self.a.lines.append('; ---- attention: S^T = K Q^T (Q pre-scaled by log2(e)/sqrt(20)), P = exp2(S), O^T += V^T P^T; a ones row in V^T gives the row sum.')
        self.a.lines.append(';      The sparse MFMA picks the high halves of the fp32 P registers. Waves w and w+4 share 64 queries and split the keys.')
        a.label("L_ATT")
        a.reset_counters()
        self.sig_wait(4)
        self.stamp("att0")
        US2 = 2 * KV_US
        base = {"K": 0, "V": 0}
        def bump(kind, u):
            while u * US2 - base[kind] > 5 * US2:
                base[kind] += 6 * US2
                for r in ((AKM, AKR) if kind == "K" else (AV,)): a(f"v_add_u32 v{r}, {6*US2}, v{r}")
            return u * US2 - base[kind]
        def rKR(u): o = bump("K", u); return a.ds(f"ds_read_b64 {vr(KRM,2)}, v{AKR} offset:{o}")
        def rKM(u, h): o = bump("K", u); return a.ds(f"ds_read_b128 {vr(KM+4*h,4)}, v{AKM} offset:{o + 1024*h}")
        def rV(u):
            o = bump("V", u)
            a(f"s_mov_b64 exec, s[{sVMASK}:{sVMASK+1}]")
            for g in range(4): t = a.ds(f"ds_read_b128 {vr(VS[u&1]+4*g,4)}, v{AV} offset:{o + 640*g}")
            a("s_mov_b64 exec, -1")
            return t
        tq = [a.ds(f"ds_read_b64 {vr(QR2,2)}, v{AQR2} offset:2048")]
        tKR = rKR(0)
        tq.append(a.ds(f"ds_read_b128 {vr(QM2,4)}, v{AQM2}"))
        tK0 = rKM(0, 0); tK1 = rKM(0, 1)
        tq.append(a.ds(f"ds_read_b64 {vr(QR,2)}, v{AQR} offset:2048"))
        tq.append(a.ds(f"ds_read_b128 {vr(QM,4)}, v{AQM}"))
        tV = {0: rV(0)}
        side = self.side_kv(8)
        a.wait(tq[0], tKR); self.m2b(S_, 0)
        for _ in range(4): side.pop(0)()
        for e in range(16): a(f"v_mov_b32 v{O2+e}, 0")
        a.wait(tq[1], tK0); self.mqk(S_, 0, 0)
        a.wait(tK1); self.mqk(S_, 1, 0)
        side.pop(0)()
        if self.o("kv3", 1):
            self.sig_check(4, 2, a.ds("ds_read_b32 v15, v14 offset:4")); a.nop(2)
        else: a.nop(8)
        zones = {0: self.o("z0", "2,4"), 6: self.o("z1", "3,5,7"), 14: self.o("z1", "3,5,7"), 22: self.o("z3", "3,5,7"), 30: self.o("z4", "1")}
        if self.o("nob30", 0): del zones[30]
        prio = {}
        if self.o("prio", 1):
            for u0, z in zones.items():
                zz = [int(x) for x in z.split(",")]
                prio[u0] = len(zz)
                for k, d in enumerate(zz): prio[u0 + d] = len(zz) - 1 - k
        for t in range(32):
            if t % 8 == 6 and t < 30:
                assert not side
                side = self.att_sync(t // 8)
            if t == 1 and self.o("kv3", 1):
                L3 = a.newlabel("N3")
                a(f"s_cmp_lg_u32 s{sWAVE}, 3\ns_cbranch_scc1 {L3}\nv_mov_b32 v15, 3\ns_waitcnt vmcnt(5)\nds_write_b32 v14, v15 offset:4")
                a.label(L3)
            if t == 2 and self.o("kv3", 1): self.sig_check(4, 3, tsig)
            if t == 30 and not self.o("nob30", 0): a("s_barrier")
            if self.o("jit", 0) and t in (0, 1, 3, 5, 9, 12, 13, 17, 20, 21, 23, 25, 27, 28, 29, 31): self.jitter()
            if t in prio: a(f"s_setprio {prio[t]}")
            u, j = t >> 1, t & 1
            X, Y = S_ + 32 * j, S_ + 32 * (1 - j)
            Vc, Vp = VS[u & 1], VS[((t - 1) >> 1) & 1]
            nx = t < 31
            rl = j == 0 and u < 15
            P = [int(x) for x in self.o("pos", "2,6,14,18,22,26,30").split(",")]
            SP = [int(x) for x in self.o("spos", "10,20").split(",")]
            for p in range(32):
                if p == P[0]:
                    if t == 0: a.wait(tq[2])
                    if j == 1 and nx: a.wait(tKR)
                    if t > 0: self.smf(Vp + 12, Y + 24, 1 - j)
                    if rl and self.o("vpos", -1) < 0: tV[u+1] = rV(u + 1)
                if p == self.o("vpos", -1) and rl: tV[u+1] = rV(u + 1)
                if p == P[1] and nx:
                    self.m2b(Y, 1 - j)
                    if rl: tKR = rKR(u + 1)
                if t == 1 and p == 24 and self.o("kv3", 1): tsig = a.ds("ds_read_b32 v15, v14 offset:4")
                if p in SP and side: side.pop(0)()
                if t == 31 and p in (16, 20, 24): a.ds(f"ds_write_b128 v{AEX}, {vr(O2+(p-16),4)} offset:{256*(p-16)}")
                if t == 31 and p == 28: a.ds(f"ds_write_b32 v{AEX}, v{O2+12} offset:3072")
                if p == P[2]: a.wait(tV[u]); self.smf(Vc, X, j)
                if p == P[3]: self.smf(Vc + 4, X + 8, j)
                if p == P[4] and nx:
                    a.wait(tK0, tK1, tq[3]); self.mqk(Y, 0, 1 - j)
                    if rl: tK0 = rKM(u + 1, 0)
                if p == P[5]: self.smf(Vc + 8, X + 16, j)
                if p == P[6] and nx:
                    self.mqk(Y, 1, 1 - j)
                    if rl: tK1 = rKM(u + 1, 1)
                a(f"v_exp_f32 v{X+p}, v{X+p}")
        assert not side
        a.nop(2)
        self.smf(VS[1] + 12, S_ + 32 + 24, 1)
        self.stamp("attend")
        a("s_setprio 0")
        a.wait_all(vm=False)
        a("s_barrier")
        if self.o("jit", 0): self.jitter()
        tl = a.ds(f"ds_read_b32 v{O2+12}, v{APX} offset:3072")
        tp = [a.ds(f"ds_read_b128 {vr(O2+4*k,4)}, v{APX} offset:{1024*k}") for k in range(3)]
        self.fin_pre()
        a.nop(1)
        a.wait(tl); a(f"v_add_f32 v{O_+12}, v{O_+12}, v{O2+12}")
        for k in range(3):
            a.wait(tp[k])
            for e in range(4): a(f"v_add_f32 v{O_+4*k+e}, v{O_+4*k+e}, v{O2+4*k+e}")
    def att_sync(self, k):
        a = self.a
        if k == 0:
            a.wait_all(vm=True, ds=False, force=True)
            L = a.newlabel("NOF3")
            a(f"s_cmp_ge_u32 s{sLW}, s{sNCH}\ns_cbranch_scc1 {L}")
            a(f"s_lshl_b32 s{T0}, s{sCH}, 2\ns_add_u32 s{T0}, s{T0}, {F3:#x}")
            self.flag_store(T0, 14)
            a.label(L)
            a("s_barrier")
            self.stamp("sync0")
            return self.side_kv(16) + self.side_kv(24)
        if k == 1:
            a.wait_all(vm=True, ds=False, force=True)
            a("s_barrier")
            self.stamp("sync1")
            return self.side_x()
        a("s_barrier")
        self.stamp("sync2")
        self.srd(rA, pWO, 640 * 1280)
        return self.side_yd() + self.side_wo()

    def fin_pre(self):
        self.a(f"""v_lshlrev_b32 v2, 3, v0
        s_mov_b32 s{T2}, {f2u(2.0**-60):#x}
        s_mov_b32 s{T3}, {f2u(2.0**60):#x}
        s_mov_b32 s{T4}, 0x7f7fffff""")
    def finish(self):
        a = self.a
        O, TMP = O_, 16
        ACC, OF, WF, GG = 224, 16, 56, 14
        self.a.lines.append('; ---- softmax guard: the loop above shifts by 0 instead of the row max. That is exact as long as the row sum l lies in [2^-60, 2^60]')
        self.a.lines.append(';      and O is finite (no exponential overflowed, none that matters underflowed). Otherwise this wave redoes its rows at L_SLOW')
        self.a.lines.append(';      with the true row max subtracted and stores O again (nobody reads O before the flag below).')
        a.label("L_NORM")
        a(f"v_rcp_f32 v{TMP+4}, v{O+12}")
        a(f"v_cmp_le_f32 vcc, s{T2}, v{O+12}\nv_cmp_ge_f32 s[{sM}:{sM+1}], s{T3}, v{O+12}")
        for e in range(8): a(f"v_mul_f32 v{O+e}, v{O+e}, v{TMP+4}")
        for e in range(4): a(f"v_cvt_pk_bf16_f32 v{TMP+8+e}, v{O+2*e}, v{O+2*e+1}")
        a(f"buffer_store_dwordx4 {vr(TMP+8,4)}, v{L16}, s[{rWS}:{rWS+3}], s{sOMS} offen sc1")
        for e in range(8, 12): a(f"v_mul_f32 v{O+e}, v{O+e}, v{TMP+4}")
        for e in range(4, 6): a(f"v_cvt_pk_bf16_f32 v{TMP+8+e}, v{O+2*e}, v{O+2*e+1}")
        a("s_mov_b32 exec_hi, 0")
        a(f"buffer_store_dwordx2 {vr(TMP+12,2)}, v2, s[{rWS}:{rWS+3}], s{sORS} offen sc1")
        a("s_mov_b32 exec_hi, -1")
        for e in range(4): a(f"v_add_f32 v{TMP+e}, abs(v{O+e}), abs(v{O+4+e})")
        for e in range(4): a(f"v_add_f32 v{TMP+e}, v{TMP+e}, abs(v{O+8+e})")
        a(f"""v_add_f32 v{TMP}, v{TMP}, v{TMP+1}
        v_add_f32 v{TMP+2}, v{TMP+2}, v{TMP+3}
        s_and_b64 s[{sM}:{sM+1}], s[{sM}:{sM+1}], vcc
        v_add_f32 v{TMP}, v{TMP}, v{TMP+2}
        v_cmp_ge_f32 vcc, s{T4}, v{TMP}
        s_nop 1
        s_and_b64 s[{sM}:{sM+1}], s[{sM}:{sM+1}], vcc
        s_cmp_eq_u64 s[{sM}:{sM+1}], exec
        s_cbranch_scc1 L_NORM_OK
        s_cmp_eq_u32 s{sSLOW}, 0
        s_cbranch_scc1 L_SLOW""")
        a.label("L_NORM_OK")
        self.srd(rA, pOUT, 2048 * 1280)
        a(f"s_lshl_b32 s{T0}, s{sKH}, 2\ns_add_u32 s{T0}, s{T0}, {L_RDY}\nv_mov_b32 v{AQM}, s{T0}\nv_mov_b32 v{AQR}, 0\nds_write_b32 v{AQM}, v{AQR}")
        a("s_waitcnt vmcnt(0) lgkmcnt(0)\ns_barrier")
        a.reset_counters()
        L = a.newlabel("NOF4")
        a(f"s_cmp_lg_u32 s{sWAVE}, 0\ns_cbranch_scc1 {L}")
        self.flag_store(sF4S, 2)
        a.label(L)
        a.reset_counters()
        self.stamp("F4set")
        tg = a.vm(f"buffer_load_dword v{GG}, v{AG}, s[{rWS}:{rWS+3}], 0 offen sc1")
        def wfrag(step, regstep):
            toks = []
            for b in range(5):
                for q in range(2):
                    if step < 8: ad, off = (WM0 if b < 2 else WM1), (40*step + 8*q)*160 + 32*b
                    else: ad, off = (WR0 if b < 2 else WR1), (160*(step-8) + 80*q)*160 + 32*b
                    t = a.ds(f"ds_read_b64_tr_b16 {vr(int(WF + 20*regstep) + 4*b + 2*q, 2)}, v{ad} offset:{L_WO + off}")
                toks.append(t)
            return toks
        tw = {s: wfrag(s, s) for s in range(8)}
        YR, BB = 2, 16
        ty = [a.ds(f"ds_read_b64_tr_b16 {vr(YR+2*b,2)}, v{AYD} offset:{2048*b}") for b in range(3)]
        keep = [216, 217, 218, 219, 220, 221, 222, 223, 2, 3, 4, 5]
        for b in range(3):
            a.wait(ty[b])
            x, y = XE + 2*b, YR + 2*b
            a(f"""v_lshlrev_b32 v16, 16, v{x}
            v_and_b32 v17, 0xffff0000, v{x}
            v_lshlrev_b32 v18, 16, v{x+1}
            v_and_b32 v19, 0xffff0000, v{x+1}
            v_lshlrev_b32 v20, 16, v{y}
            v_and_b32 v21, 0xffff0000, v{y}
            v_lshlrev_b32 v22, 16, v{y+1}
            v_and_b32 v23, 0xffff0000, v{y+1}""")
            for e in range(4): a(f"v_mul_f32 v{keep[4*b+e]}, v{16+e}, v{20+e}")
        a("v_lshrrev_b32 v16, 4, v0\nv_and_b32 v16, 1, v16\nv_mul_u32_u24 v16, 24, v16")
        a(f"v_add_u32 v15, v16, v{AOUT}\nv_mov_b32 v6, v{AQM}")
        a.wait_all(vm=False)
        sPEND, sR = sM2, T6
        a(f"s_mov_b64 s[{sPEND}:{sPEND+1}], 0xffff")
        def wait_group(done):
            L, N, D = a.newlabel("GW"), a.newlabel("GN"), a.newlabel("GD")
            a(f"s_mov_b32 s{sCNT}, 0\ns_cmp_lg_u32 s{sTB}, 0\ns_cbranch_scc1 {N}")
            a.label(L)
            a(f"""s_mov_b64 exec, s[{sPEND}:{sPEND+1}]
            buffer_load_dword v7, v{AF4}, s[{rWS}:{rWS+3}], 0 offen sc1
            s_waitcnt vmcnt(0)
            v_cmp_eq_u32 vcc, 0, v7
            s_add_u32 s{sCNT}, s{sCNT}, 1
            s_mov_b64 exec, -1
            s_mov_b64 s[{sPEND}:{sPEND+1}], vcc
            s_cmp_ge_u32 s{sCNT}, {POLL_MAX}
            s_cselect_b32 s{sPEND}, 0, s{sPEND}
            s_and_b32 s{T0}, s{sPEND}, 0xff
            s_cselect_b32 s{sR}, 0, 1
            s_and_b32 s{T0}, s{sPEND}, 0xff00
            s_cselect_b32 s{T0}, 0, 2
            s_or_b32 s{sR}, s{sR}, s{T0}
            s_and_b32 s{T0}, s{sR}, {3 - done}
            s_cbranch_scc1 {L}P
            s_sleep {self.o('psleep', 2)}
            s_branch {L}""")
            a.label(L + "P")
            a(f"v_mov_b32 v7, s{sR}\nds_write_b32 v6, v7\ns_branch {D}")
            a.label(N)
            a(f"""ds_read_b32 v7, v6
            s_waitcnt lgkmcnt(0)
            v_readfirstlane_b32 s{sR}, v7
            s_add_u32 s{sCNT}, s{sCNT}, 1
            s_cmp_ge_u32 s{sCNT}, {POLL_MAX*40}
            s_cselect_b32 s{sR}, 3, s{sR}
            s_and_b32 s{T0}, s{sR}, {3 - done}
            s_cbranch_scc1 {D}
            s_sleep 1
            s_branch {N}""")
            a.label(D)
        def oloads(steps, base):
            to = {}
            for k, s in enumerate(steps):
                if s < 8:
                    a(f"s_mov_b32 s{T0}, {s*131072}")
                    to[s] = a.vm(f"buffer_load_dwordx4 {vr(base+4*k,4)}, v{AOM}, s[{rWS}:{rWS+3}], s{T0} offen sc1")
                else:
                    for q in range(2):
                        a(f"s_mov_b32 s{T0}, {(8*(s-8)+4*q)*16384}")
                        to[s] = a.vm(f"buffer_load_dwordx2 {vr(base+4*k+2*q,2)}, v{AOR}, s[{rWS}:{rWS+3}], s{T0} offen sc1")
            return to
        def mm(steps, to, obase, acc, wrem, trem, after=None):
            for k, s in enumerate(steps):
                a.wait(to[s])
                for b in (range(5) if s < 8 else (2, 3, 4, 0, 1)):
                    w = WF + 20*s + 4*b if s < 8 else wrem + 4*b
                    if s >= 8: a.wait(trem()[b])
                    a(f"v_mfma_f32_16x16x32_bf16 {vr(acc+4*b,4)}, {vr(w,4)}, {vr(obase+4*k,4)}, {'0' if k == 0 else vr(acc+4*b,4)}")
                if after: after(s)
        def wrem_to(step, reg): return wfrag(step, (reg - WF) // 20)
        def add_from(src):
            for b in (2, 3, 4, 0, 1):
                for e in range(4): a(f"v_add_f32 v{ACC+4*b+e}, v{ACC+4*b+e}, v{src+4*b+e}")
        G = ([0, 1, 2, 3, 8], [4, 5, 6, 7, 9])
        wait_group(0)
        self.stamp("F4ok")
        a(f"s_cmp_lg_u32 s{sR}, 3\ns_cbranch_scc1 L_P3_PART")
        a.reset_counters()
        order = [0, 1, 2, 3, 8, 4, 5, 6, 7, 9]
        to = oloads(order, OF)
        tr = {}
        def after(s):
            if s == 0: tr[8] = wfrag(8, 0)
            if s == 1: tr[9] = wfrag(9, 1)
        mm(G[0], to, OF, WF + 60 if False else ACC, WF, lambda: tr[8], after)
        mm(G[1], to, OF + 20, WF + 40, WF + 20, lambda: tr[9])
        a.nop(4)
        add_from(WF + 40)
        a.label("L_P3_SUM")
        def part():
            a.label("L_P3_PART")
            a(f"s_cmp_eq_u32 s{sR}, 2\ns_cbranch_scc1 L_P3_B")
            for first in (0, 1):
                if first: a.label("L_P3_B")
                save = WF + 80 * first
                for n, g in enumerate((first, 1 - first)):
                    a.reset_counters()
                    if n: wait_group(1 << first); a.reset_counters()
                    to = oloads(G[g], OF)
                    trem = wfrag(G[g][4], (OF + 20 - WF) / 20)
                    mm(G[g], to, OF, ACC, OF + 20, lambda: trem)
                    a.nop(4 if n else 8)
                    if n: add_from(save)
                    else:
                        for e in range(20): a(f"v_mov_b32 v{save+e}, v{ACC+e}")
                a("s_branch L_P3_SUM")
        self.p3_part = part
        a.reset_counters()
        self.stamp("mfma")
        for b in (2, 3, 4): a.ds(f"ds_write_b128 v{AEX}, {vr(ACC+4*b,4)} offset:{1024*(b-2)}")
        for b in range(3):
            for e in range(4): a(f"v_sub_f32 v{ACC+4*b+e}, v{ACC+4*b+e}, v{keep[4*b+e]}")
        a.wait_all(vm=False)
        a("s_barrier")
        if self.o("jit", 0): self.jitter()
        tp = [a.ds(f"ds_read_b128 {vr(16+4*b,4)}, v{AX2} offset:{1024*b}") for b in range(3)]
        fl = self.o('ost', '').replace('+', ' ')
        for b in range(3):
            if b == 2: a(f"s_cmp_lg_u32 s{sKH}, 0\ns_cbranch_scc1 L_FIN")
            a.wait(tp[b])
            for e in range(4): a(f"v_add_f32 v{16+4*b+e}, v{16+4*b+e}, v{ACC+4*b+e}")
            for e in range(4): a(f"v_fmac_f32 v{keep[4*b+e]}, v{GG}, v{16+4*b+e}")
            a(f"v_cvt_pk_bf16_f32 v{32+2*b}, v{keep[4*b]}, v{keep[4*b+1]}\nv_cvt_pk_bf16_f32 v{33+2*b}, v{keep[4*b+2]}, v{keep[4*b+3]}")
            if self.o("o4", 1) and b < 2:
                if b == 1:
                    a("s_nop 1\nv_permlane16_swap_b32 v32, v34\nv_permlane16_swap_b32 v33, v35")
                    a.vm(f"buffer_store_dwordx4 v[32:35], v15, s[{rA}:{rA+3}], 0 offen {fl}")
            else: a.vm(f"buffer_store_dwordx2 {vr(32+2*b,2)}, v{AOUT}, s[{rA}:{rA+3}], 0 offen offset:{32*b} {fl}")
        a.label("L_FIN")
        if self.stamps:
            self.stamp("st")
            a("s_waitcnt vmcnt(0)")
            self.stamp("end")
            a(f"s_lshl_b32 s{T0}, s{sWG}, 3\ns_add_u32 s{T0}, s{T0}, s{sWAVE}\ns_lshl_b32 s{T0}, s{T0}, 8\ns_add_u32 s{T0}, s{T0}, {TS:#x}\nv_lshlrev_b32 v2, 2, v0")
            a(f"buffer_store_dword v1, v2, s[{rWS}:{rWS+3}], s{T0} offen")
            if "enc" in self.opt:
                n0, n1, wv, wg = self.opt["enc"].split(",")
                for n in (n0, n1):
                    if n not in self.names: self.names.append(n)
                a(f"s_cmp_lg_u32 s{sWG}, {wg}\ns_cbranch_scc1 L_END\ns_cmp_lg_u32 s{sWAVE}, {wv}\ns_cbranch_scc1 L_END")
                a(f"v_readlane_b32 s{T1}, v1, {self.names.index(n0)}\nv_readlane_b32 s{T2}, v1, {self.names.index(n1)}\nv_readlane_b32 s{T3}, v1, {self.names.index('end')}\ns_nop 3")
                a(f"s_sub_u32 s{T2}, s{T2}, s{T1}\ns_lshl_b32 s{T2}, s{T2}, 3\ns_and_b32 s{T2}, s{T2}, 0xffff\ns_add_u32 s{T3}, s{T3}, s{T2}")
                a.label("L_ENC")
                a(f"s_memrealtime s[{sTS}:{sTS+1}]\ns_waitcnt lgkmcnt(0)\ns_sub_u32 s{T1}, s{T3}, s{sTS}\ns_cmp_gt_i32 s{T1}, 0\ns_cbranch_scc1 L_ENC")
        a.label("L_END")
        a("s_endpgm")

    def slow(self):
        a = self.a
        S, V, M, AVS = S_, VS[0], 96, 98
        a.label("L_SLOW")
        a(f"""s_mov_b32 s{sSLOW}, 1
        v_and_b32 v{M}, 31, v0
        v_lshrrev_b32 v{AVS}, 5, v0
        v_mul_u32_u24 v{AVS}, 320, v{AVS}
        v_lshl_add_u32 v{AVS}, v{M}, 4, v{AVS}
        v_add_u32 v{AVS}, 2560, v{AVS}
        v_mov_b32 v{M}, 0xff800000""")
        def scores():
            a(f"""buffer_load_dwordx2 {vr(KRM,2)}, v2, s[{rWS}:{rWS+3}], s{T6} offen offset:2048 sc1
            buffer_load_dwordx4 {vr(KM,4)}, v{L16}, s[{rWS}:{rWS+3}], s{T6} offen sc1
            buffer_load_dwordx4 {vr(KM+4,4)}, v{L16}, s[{rWS}:{rWS+3}], s{T6} offen offset:1024 sc1
            s_waitcnt vmcnt(0)""")
            self.m2b(S); a.nop(18); self.mqk(S, 0); self.mqk(S, 1); a.nop(12)
        a(f"s_mov_b32 s{T6}, s{sKVB}\ns_mov_b32 s{sCNT}, 0")
        a.label("L_SLOW1")
        scores()
        for e in range(16): a(f"v_max3_f32 v{M}, v{M}, v{S+2*e}, v{S+2*e+1}")
        a(f"s_add_u32 s{T6}, s{T6}, {KV_US}\ns_add_u32 s{sCNT}, s{sCNT}, 1\ns_cmp_lt_u32 s{sCNT}, 32\ns_cbranch_scc1 L_SLOW1")
        a(f"v_mov_b32 v{M+1}, v{M}\ns_nop 1\nv_permlane32_swap_b32 v{M}, v{M+1}\ns_nop 1\nv_max_f32 v{M}, v{M}, v{M+1}")
        for e in range(16): a(f"v_mov_b32 v{O_+e}, 0")
        a(f"s_mov_b32 s{T6}, s{sKVB}\ns_mov_b32 s{sCNT}, 0")
        a.label("L_SLOW2")
        a(f"s_mov_b64 exec, s[{sVMASK}:{sVMASK+1}]")
        for g in range(4): a(f"buffer_load_dwordx4 {vr(V+4*g,4)}, v{AVS}, s[{rWS}:{rWS+3}], s{T6} offen offset:{640*g} sc1")
        a("s_mov_b64 exec, -1")
        scores()
        for e in range(32): a(f"v_sub_f32 v{S+e}, v{S+e}, v{M}")
        for e in range(32): a(f"v_exp_f32 v{S+e}, v{S+e}")
        a.nop(2)
        for g in range(4): self.smf(V + 4*g, S + 8*g)
        a(f"s_add_u32 s{T6}, s{T6}, {KV_US}\ns_add_u32 s{sCNT}, s{sCNT}, 1\ns_cmp_lt_u32 s{sCNT}, 32\ns_cbranch_scc1 L_SLOW2")
        a.nop(12)
        a("s_branch L_NORM")

    def build(self):
        self.prologue(); self.dma_role(); self.attention(); self.finish(); self.p3_part(); self.setup_sub(); self.side_role(); self.gemm_compute(); self.slow(); self.a.label('L_CODE_END')
        bad = lint_cfg(self.a.lines)
        head = f"""; gated_mix( MHA block , H3 SSM conv ): one persistent workgroup of eight waves per CU.
; kernarg: 0 A_x, 8 A_wqkv, 16 A_wo, 24 B_q (not used by the reference), 32 B_k, 40 B_v, 48 B_shift_k, 56 B_ssm_k,
; Hand-offs between workgroups go through d_ws with write-through (sc1) stores, a drained flag word and sc1 loads. Every launch
; first clears its own flag words and counts that in d_debug; no flag is trusted before the count is complete. All waits are bounded.
; @launch grid=(256,1,1) block=(512,1,1) lds={LDS_BYTES}
.amdgcn_target "amdgcn-amd-amdhsa--gfx950"
.text
.globl {NAME}
.p2align 8
.type {NAME},@function
{NAME}:
"""
        tail = f""".section .rodata,"a"
.p2align 6
.amdhsa_kernel {NAME}
  .amdhsa_next_free_vgpr 256
  .amdhsa_next_free_sgpr 102
  .amdhsa_accum_offset 256
  .amdhsa_group_segment_fixed_size 0
  .amdhsa_kernarg_size 104
  .amdhsa_user_sgpr_count 2
  .amdhsa_user_sgpr_kernarg_segment_ptr 1
  .amdhsa_system_sgpr_workgroup_id_x 1
  .amdhsa_float_denorm_mode_32 3
.end_amdhsa_kernel
"""
        return head + self.a.text() + tail, bad

if __name__ == "__main__":
    out = sys.argv[1] if len(sys.argv) > 1 else "gated_mix__mha_block__ssm_conv_h3__prompt.s"
    opt = dict(x[2:].split("=") for x in sys.argv if x.startswith("-D"))
    G = Gen(stamps="--stamps" in sys.argv, opt=opt)
    src, bad = G.build()
    if G.stamps: src = src.replace("; @launch", "; STAMPS " + " ".join(G.names) + "\n; @launch", 1)
    for b in bad: print("LINT:", b)
    open(out, "w").write(src)
    print("wrote", out, len(src), "bytes;", len(bad), "lint findings")
```

```python
import sys, math, struct
from asmlib import *

NAME = "gated_mix__mha_block__ssm_conv_h3__prompt_kernel"
def f2u(x): return struct.unpack("<I", struct.pack("<f", x))[0]

KV, QO, UR, YD, OM, ORM = 0, 0x500000, 0x780000, 0xA00000, 0xC80000, 0xE80000
F2, F4, F3, F5, GT, F1 = 0xF04000, 0xF08000, 0xF0C000, 0xF0D000, 0xF0E000, 0xFA0000
TS = 0xF10000
WS_SIZE = 0x1000000
KV_HS, KV_US = 163840, 5120
Q_HS, Q_US = 81920, 2560
NSLOT = 3
L_X, L_W = 0, 49152
L_Q, L_SIG = 81920, 162048
L_CONV, CONV_SZ, CS, U_OFF = 98304, 21248, 4160, 16640
L_WO, L_YD, L_EX, L_RDY = 0, 102400, 112640, 145408
LDS_BYTES = 163840
sWG, sWAVE = 2, 3
pX, pW, pWO, pWS, pK, pV, pSH, pH, pD, pGW, pOUT, pDBG = 4, 6, 8, 10, 12, 14, 16, 18, 20, 22, 24, 26
rWS, rA, rB, rC, rD = 28, 32, 36, 40, 44
sXCD, sI, sJT, sRT, sPRT, sCJ, sCH0, sNCH, sHEAD, sQB = 48, 49, 50, 51, 52, 53, 54, 55, 56, 57
sLW, sCH, sKH, sTB, sCNT, sSLOW = 58, 59, 60, 61, 62, 63
T0, T1, T2, T3, T4, T5, T6, T7 = 64, 65, 66, 67, 68, 69, 70, 71
sM = 72
sVMASK = 74
sTS = 76
sE = 78
sSC = 86
sKVB, sKVW, sOMS, sORS, sF4S, sCL = 87, 88, 89, 90, 91, 92
sNB, sBC, sU, sK = 93, 94, 78, 96
sM2 = 98
sKVG = 97
sRET = 52
sPI, sNU, sG = 100, 101, 95
POLL_MAX = 200000
IDX, AKM, AKR, AV, L16, AQM, AQR, AF3, YDV = 224, 225, 226, 227, 228, 229, 230, 231, 232
WOV = 233
F3T = 238
ONES, APX, AQM2, AQR2 = 240, 241, 242, 243
QM2, QR2, O2 = 128, 132, 144
WM0, WM1, WR0, WR1, AOM, AOR, AOUT, AG, AEX, AX2, AYD, AF4 = 244, 245, 246, 247, 248, 249, 250, 251, 252, 253, 254, 255
O_, QM, QR, KRM, KM, S_ = 192, 32, 36, 38, 40, 64
VS = (48, 208)
XE = 8

class Gen:
    def __init__(self, stamps=False, opt=None):
        self.a = Asm(); self.stamps = stamps; self.names = []; self.opt = opt or {}
        self.nt = " nt" if int(self.opt.get("nt", 1)) else ""
        self.gnt = " nt" if int(self.opt.get("gnt", 0)) else ""
    def o(self, k, d): return type(d)(self.opt.get(k, d))
    def srd(self, r, p, size):
        self.a(f"s_mov_b32 s{r}, s{p}\ns_mov_b32 s{r+1}, s{p+1}\ns_mov_b32 s{r+2}, {size:#x}\ns_mov_b32 s{r+3}, 0x20000")
    def stamp(self, name):
        if self.o("jit", 0) and name not in ("end", "st"): self.jitter()
        if not self.stamps: return
        if self.o("lite", 0) and name not in ("start", "att0", "attend", "end"): return
        if name not in self.names: self.names.append(name)
        k = self.names.index(name); assert k < 58
        if name == "start": self.a("s_mov_b32 s99, s76")
        self.a(f"s_memrealtime s[{sTS}:{sTS+1}]\ns_waitcnt lgkmcnt(0)\nv_writelane_b32 v1, s{sTS}, {k}")
        if name in ("l.b5", "l.b9"): self.a(f"s_memtime s[{sTS}:{sTS+1}]\ns_waitcnt lgkmcnt(0)\nv_writelane_b32 v1, s{sTS}, {58 if name == 'l.b5' else 59}")
        if name in ("att0", "attend"): self.a(f"s_memtime s[{sTS}:{sTS+1}]\ns_waitcnt lgkmcnt(0)\nv_writelane_b32 v1, s{sTS}, {60 if name == 'att0' else 61}")
        if name == "start":
            if "entry" not in self.names: self.names.append("entry")
            self.a(f"v_writelane_b32 v1, s99, {self.names.index('entry')}")
        if name == "start": self.a(f"s_memtime s[{sTS}:{sTS+1}]\ns_waitcnt lgkmcnt(0)\nv_writelane_b32 v1, s{sTS}, 62")
        if name == "end": self.a(f"s_memtime s[{sTS}:{sTS+1}]\ns_waitcnt lgkmcnt(0)\nv_writelane_b32 v1, s{sTS}, 63")
        self.a.done["ds"] = self.a.n["ds"]
    def jitter(self):
        a = self.a; self.nj = getattr(self, "nj", 0) + 1
        L, D = a.newlabel("JIT"), a.newlabel("JITD")
        a(f"""s_lshl_b32 s76, s{sWG}, 3
        s_add_u32 s76, s76, s{sWAVE}
        s_add_u32 s76, s76, {self.nj * 7919 + self.o('jit', 0) * 104729}
        s_mul_i32 s76, s76, 0x9e3779b1
        s_lshr_b32 s77, s76, 29
        s_cmp_lg_u32 s77, 0
        s_cbranch_scc1 {D}
        s_bfe_u32 s76, s76, 0x70014""")
        a.label(L)
        a(f"s_sleep 2\ns_sub_u32 s76, s76, 1\ns_cmp_gt_i32 s76, 0\ns_cbranch_scc1 {L}")
        a.label(D)
    def poll(self, loads, tmp, cmp=None):
        a = self.a
        L, D = a.newlabel("POLL"), a.newlabel("POLLD")
        a(f"s_mov_b32 s{sCNT}, 0")
        a.label(L)
        k = 0
        for (va, r, imm, wd) in loads:
            ins = {1: "buffer_load_dword", 2: "buffer_load_dwordx2", 4: "buffer_load_dwordx4"}[wd]
            a(f"{ins} {vr(tmp+k, wd)}, v{va}, s[{r}:{r+3}], 0 offen offset:{imm} sc1"); k += wd
        a("s_waitcnt vmcnt(0)")
        a.done["vm"] = a.n["vm"]
        self.poll_check(tmp, k, cmp)
        a(f"s_cbranch_scc1 {D}")
        a(f"s_add_u32 s{sCNT}, s{sCNT}, 1\ns_cmp_lt_u32 s{sCNT}, {POLL_MAX}\ns_cbranch_scc0 {D}\ns_sleep 1\ns_branch {L}")
        a.label(D)
    def mpoll(self, addrs, tmp, elastic=False):
        a = self.a
        L, D = a.newlabel("MP"), a.newlabel("MPD")
        M = [sM, sM2][:len(addrs)]
        a(f"s_mov_b32 s{sCNT}, 0")
        for m in M: a(f"s_mov_b64 s[{m}:{m+1}], -1")
        a.label(L)
        for k, (va, m) in enumerate(zip(addrs, M)):
            S = a.newlabel("MS")
            a(f"s_mov_b64 exec, s[{m}:{m+1}]\ns_cbranch_execz {S}\nbuffer_load_dword v{tmp+k}, v{va}, s[{rWS}:{rWS+3}], 0 offen sc1")
            a.label(S)
        a("s_mov_b64 exec, -1")
        if elastic: self.ewait()
        else: a("s_waitcnt vmcnt(0)")
        a.done["vm"] = a.n["vm"]
        for k, m in enumerate(M):
            a(f"v_cmp_eq_u32 vcc, 0, v{tmp+k}\ns_nop 1\ns_and_b64 s[{m}:{m+1}], s[{m}:{m+1}], vcc")
        if len(M) == 2: a(f"s_or_b64 vcc, s[{sM}:{sM+1}], s[{sM2}:{sM2+1}]")
        a(f"s_cbranch_scc0 {D}")
        a(f"s_add_u32 s{sCNT}, s{sCNT}, 1\ns_cmp_lt_u32 s{sCNT}, {POLL_MAX}\ns_cbranch_scc0 {D}\ns_sleep {self.o('psleep', 2)}\ns_branch {L}")
        a.label(D)
    def last_flag(self, off, sN, sAddr, vt, base=L_SIG):
        a = self.a
        L = a.newlabel("NL")
        a(f"""v_mov_b32 v{vt}, {base}
        v_mov_b32 v{vt+1}, 1
        s_mov_b64 exec, 1
        ds_add_rtn_u32 v{vt+1}, v{vt}, v{vt+1} offset:{off}
        s_waitcnt lgkmcnt(0)
        v_readfirstlane_b32 s{T0}, v{vt+1}
        s_mov_b64 exec, -1
        s_add_u32 s{T0}, s{T0}, 1
        s_cmp_lg_u32 s{T0}, {sN}
        s_cbranch_scc1 {L}""")
        self.flag_store(sAddr, vt, two=True)
        a.label(L)
    def poll_check(self, tmp, k, cmp=None):
        a = self.a
        for j in range(1, k, 2):
            if j + 1 < k: a(f"v_min3_u32 v{tmp}, v{tmp}, v{tmp+j}, v{tmp+j+1}")
            else: a(f"v_min_u32 v{tmp}, v{tmp}, v{tmp+j}")
        a(cmp or f"v_cmp_ne_u32 vcc, 0, v{tmp}")
        a("s_nop 1\ns_cmp_eq_u64 vcc, exec")
    def flag_store(self, s, vt, two=False):
        a = self.a
        a(f"v_lshl_add_u32 v{vt}, v0, 2, s{s}\nv_mov_b32 v{vt+1}, 1\ns_mov_b64 exec, {3 if two else 1}")
        t = a.vm(f"buffer_store_dword v{vt+1}, v{vt}, s[{rWS}:{rWS+3}], 0 offen sc1")
        a("s_mov_b64 exec, -1")
        return t

    def prologue(self):
        a = self.a
        if self.stamps: a("s_memrealtime s[76:77]")
        a(f"s_cmp_ge_u32 s{sWG}, 256\ns_cbranch_scc1 L_END")
        if self.opt.get("diag") == "spin":
            a("s_mov_b32 s60, 2500\nv_mov_b32 v10, 0")
            a.label("L_DSPIN")
            for e in range(8): a(f"v_exp_f32 v{11+e}, v10")
            a("s_sub_u32 s60, s60, 1\ns_cmp_lg_u32 s60, 0\ns_cbranch_scc1 L_DSPIN")
        if self.opt.get("diag") == "chain":
            a("s_load_dwordx2 s[32:33], s[0:1], 24\ns_waitcnt lgkmcnt(0)\ns_mov_b32 s34, 2621440\ns_mov_b32 s35, 0x20000\ns_mul_i32 s60, s2, 256\nv_mov_b32 v10, s60")
            for e in range(32): a("buffer_load_dword v12, v10, s[32:35], 0 offen\ns_waitcnt vmcnt(0)\nv_and_b32 v12, 0, v12\nv_add_u32 v10, v10, v12\nv_add_u32 v10, 0x13000, v10")
        if self.opt.get("diag") == "bq":
            a("s_load_dwordx2 s[32:33], s[0:1], 24\ns_waitcnt lgkmcnt(0)\ns_mov_b32 s34, 2621440\ns_mov_b32 s35, 0x20000\nv_lshlrev_b32 v10, 4, v0\ns_mul_i32 s60, s2, 10240")
            a("buffer_load_dwordx4 v[12:15], v10, s[32:35], s60 offen\ns_add_u32 s60, s60, 2048\nbuffer_load_dwordx4 v[16:19], v10, s[32:35], s60 offen\ns_waitcnt vmcnt(0)")
        a(f"""s_load_dwordx4 s[4:7], s[0:1], 0
        s_load_dwordx16 s[12:27], s[0:1], 32
        s_load_dwordx2 s[10:11], s[0:1], 96
        s_load_dwordx2 s[8:9], s[0:1], 16
        v_lshrrev_b32 v1, 6, v0
        v_and_b32 v0, 63, v0
        s_and_b32 s{sXCD}, s{sWG}, 7
        v_readfirstlane_b32 s{sWAVE}, v1
        s_lshr_b32 s{sI}, s{sWG}, 3
        s_and_b32 s{T0}, s{sXCD}, 1
        s_mul_i32 s{T0}, s{T0}, 30
        s_add_u32 s{T0}, s{T0}, s{sI}
        s_lshr_b32 s{sJT}, s{T0}, 2
        s_and_b32 s{T0}, s{T0}, 3
        s_lshr_b32 s{T1}, s{sXCD}, 1
        s_lshl_b32 s{T1}, s{T1}, 2
        s_add_u32 s{sRT}, s{T0}, s{T1}
        s_sub_u32 s{sLW}, s{sWAVE}, 4
        s_mul_i32 s{T0}, s{sXCD}, 30
        s_add_u32 s{sPI}, s{T0}, s{sI}
        s_mul_i32 s{sG}, s{sPI}, 171
        s_lshr_b32 s{sG}, s{sG}, 9
        s_mul_i32 s{T1}, s{sG}, 3
        s_sub_u32 s{T1}, s{sPI}, s{T1}
        s_lshl_b32 s{T2}, s{sG}, 3
        s_mul_i32 s{T3}, s{T1}, 3
        s_add_u32 s{sCH0}, s{T2}, s{T3}
        s_lshr_b32 s{T1}, s{T1}, 1
        s_sub_u32 s{sNCH}, 3, s{T1}
        s_lshl_b32 s{T0}, s{sXCD}, 1
        s_add_u32 s{T0}, s{T0}, s{sI}
        s_add_u32 s{T0}, s{T0}, 210
        s_cmp_ge_u32 s{sI}, 30
        s_cselect_b32 s{sPI}, s{T0}, s{sPI}
        s_cselect_b32 s{sNCH}, 0, s{sNCH}
        s_cselect_b32 s{sNU}, 8, 2""")
        if self.o("cpf", 1) == 2: self.code_prefetch()
        a(f"""s_cmp_lt_u32 s{sWAVE}, 4
        s_cbranch_scc1 L_COMPUTE
        s_cmp_gt_u32 s{sWAVE}, 4
        s_cbranch_scc1 L_SIDE""")
    def code_prefetch(self):
        a = self.a
        L = a.newlabel("NOPF")
        a(f"""s_cmp_lg_u32 s{sWAVE}, 1
        s_cbranch_scc1 {L}
        s_getpc_b64 s[{T2}:{T3}]
        L_PC:
        s_sub_u32 s{T2}, s{T2}, L_PC-{NAME}
        s_subb_u32 s{T3}, s{T3}, 0
        s_and_b32 s{T0}, s{sI}, 7
        s_lshl_b32 s{T0}, s{T0}, 13
        v_lshl_add_u32 v10, v0, 7, s{T0}
        v_min_u32 v10, L_CODE_END-{NAME}-4, v10
        global_load_dword v31, v10, s[{T2}:{T3}]""")
        a.label(L)
    def common_scalars(self):
        self.a(f"""s_cmp_ge_u32 s{sI}, 30
        s_cselect_b32 s{sNB}, 1, 10
        s_mov_b32 s{sBC}, 0
        s_lshr_b32 s{T0}, s{sI}, 3
        s_lshl_b32 s{T1}, s{sXCD}, 2
        s_add_u32 s{sHEAD}, s{T0}, s{T1}
        s_and_b32 s{sQB}, s{sI}, 7
        s_lshr_b32 s{sKH}, s{sWAVE}, 2
        s_and_b32 s{sTB}, s{sWAVE}, 3
        s_mov_b32 s{sSLOW}, 0
        s_mov_b32 s{sVMASK}, 0x000fffff
        s_mov_b32 s{sVMASK+1}, 0x000fffff""")
    def setup_call(self):
        if self.o("sub", 1): self.a(f"s_call_b64 s[{sRET}:{sRET+1}], L_SETUP")
        else: self.common_scalars(); self.persistent()
    def setup_sub(self):
        if not self.o("sub", 1): return
        self.a.label("L_SETUP")
        self.common_scalars(); self.persistent()
        self.a(f"s_setpc_b64 s[{sRET}:{sRET+1}]")
    def persistent(self, t=192):
        a = self.a
        a(f"""s_mov_b32 s{sM}, 0x11000000
        s_mov_b32 s{sM+1}, 0x11000000
        v_mov_b32 v{t}, 0x3f803f80
        v_cndmask_b32 v{ONES}, 0, v{t}, s[{sM}:{sM+1}]""")
        a(f"""v_mov_b32 v{IDX}, 0xdddddddd
        v_lshlrev_b32 v{AKM}, 4, v0
        v_lshlrev_b32 v{L16}, 4, v0
        v_lshlrev_b32 v{t}, 3, v0
        v_add_u32 v{AKR}, 2048, v{t}
        v_and_b32 v{t+1}, 31, v0
        v_lshrrev_b32 v{t+2}, 5, v0
        v_mul_u32_u24 v{t+2}, 320, v{t+2}
        v_lshl_add_u32 v{t+2}, v{t+1}, 4, v{t+2}
        v_add_u32 v{AV}, 2560, v{t+2}
        s_mul_i32 s{T0}, s{sKH}, {KV_US}
        v_add_u32 v{AKM}, s{T0}, v{AKM}
        v_add_u32 v{AKR}, s{T0}, v{AKR}
        v_add_u32 v{AV}, s{T0}, v{AV}
        s_mul_i32 s{T0}, s{sTB}, {Q_US}
        s_add_u32 s{T0}, s{T0}, {L_Q}
        s_lshl_b32 s{T2}, s{sKH}, 10
        s_add_u32 s{T2}, s{T2}, s{T0}
        v_add_u32 v{AQM}, s{T2}, v{L16}
        s_lshl_b32 s{T1}, s{sKH}, 8
        s_add_u32 s{T1}, s{T1}, s{T0}
        v_lshl_add_u32 v{AQR}, v{t+1}, 3, s{T1}
        s_xor_b32 s{T3}, s{sKH}, 1
        s_lshl_b32 s{T2}, s{T3}, 10
        s_add_u32 s{T2}, s{T2}, s{T0}
        v_add_u32 v{AQM2}, s{T2}, v{L16}
        s_lshl_b32 s{T1}, s{T3}, 8
        s_add_u32 s{T1}, s{T1}, s{T0}
        v_lshl_add_u32 v{AQR2}, v{t+1}, 3, s{T1}
        s_mul_i32 s{sKVB}, s{sHEAD}, {KV_HS}
        s_mul_i32 s{sKVW}, s{sWAVE}, {KV_US}
        s_add_u32 s{sKVG}, s{sKVW}, s{sKVB}
        s_lshl_b32 s{T0}, s{sHEAD}, 16
        s_lshl_b32 s{T1}, s{sQB}, 2
        s_add_u32 s{T1}, s{T1}, s{sTB}
        s_lshl_b32 s{T1}, s{T1}, 1
        s_add_u32 s{T1}, s{T1}, s{sKH}
        s_lshl_b32 s{T2}, s{T1}, 10
        s_add_u32 s{T0}, s{T0}, s{T2}
        s_add_u32 s{sOMS}, s{T0}, {OM:#x}
        s_lshl_b32 s{T2}, s{sHEAD}, 14
        s_lshl_b32 s{T1}, s{T1}, 8
        s_add_u32 s{T1}, s{T1}, s{T2}
        s_add_u32 s{sORS}, s{T1}, {ORM:#x}
        s_lshl_b32 s{T0}, s{sQB}, 11
        s_lshl_b32 s{T1}, s{sHEAD}, 6
        s_add_u32 s{T0}, s{T0}, s{T1}
        s_add_u32 s{sF4S}, s{T0}, {F4:#x}""")
        a(f"""s_mul_i32 s{T0}, s{sQB}, 320
        s_add_u32 s{T0}, s{T0}, {F3:#x}
        v_lshl_add_u32 v{AF3}, v0, 3, s{T0}
        s_lshr_b32 s{T0}, s{sHEAD}, 1
        s_lshl_b32 s{T0}, s{T0}, 6
        s_add_u32 s{T0}, s{T0}, {F5:#x}
        v_mov_b32 v{t}, s{T0}
        s_mov_b32 s{sM}, 0
        s_mov_b32 s{sM+1}, 0xffffff00
        v_cndmask_b32 v{AF3}, v{AF3}, v{t}, s[{sM}:{sM+1}]""")
        a(f"s_mul_i32 s{T0}, s{sWAVE}, {13*64}\ns_mul_i32 s{T1}, s{sQB}, 160")
        for k in range(5):
            a(f"""s_add_u32 s{T2}, s{T0}, {64*k}
            v_add_u32 v{t}, s{T2}, v0
            v_mul_u32_u24 v{t+1}, 52429, v{t}
            v_lshrrev_b32 v{t+1}, 19, v{t+1}
            v_mul_u32_u24 v{t+1}, {1280-160}, v{t+1}
            v_lshl_add_u32 v{t+1}, v{t}, 4, v{t+1}
            v_add_u32 v{WOV+k}, s{T1}, v{t+1}""")
        a(f"""s_mul_i32 s{T0}, s{sQB}, 80
        s_mul_i32 s{T1}, s{sWAVE}, 10
        s_add_u32 s{T0}, s{T0}, s{T1}
        v_lshrrev_b32 v{t}, 3, v0
        v_add_u32 v{t}, s{T0}, v{t}
        v_lshlrev_b32 v{t}, 12, v{t}
        v_and_b32 v{t+1}, 7, v0
        v_lshl_add_u32 v{t}, v{t+1}, 4, v{t}
        s_lshl_b32 s{T0}, s{sHEAD}, 7
        s_add_u32 s{T0}, s{T0}, {YD:#x}
        v_add_u32 v{YDV}, s{T0}, v{t}""")
        q, r, c8, tt, b0 = t, t + 1, t + 2, t + 3, t + 4
        a(f"""v_lshrrev_b32 v{q}, 4, v0
        v_lshrrev_b32 v{r}, 2, v0
        v_and_b32 v{r}, 3, v{r}
        v_and_b32 v{c8}, 3, v0
        v_lshlrev_b32 v{c8}, 3, v{c8}
        v_and_b32 v{tt}, 15, v0
        v_and_b32 v{b0}, 1, v{q}
        s_mul_i32 s{T2}, s{sKH}, {51200 + 96}
        s_mul_i32 s{T3}, s{sKH}, {51200 - 64}
        v_lshrrev_b32 v{t+5}, 1, v{q}
        v_mul_u32_u24 v{t+5}, 20, v{t+5}
        v_lshl_add_u32 v{t+5}, v{b0}, 2, v{t+5}
        v_add_u32 v{t+5}, v{t+5}, v{r}
        v_mul_u32_u24 v{t+5}, 160, v{t+5}
        v_add_u32 v{t+5}, v{t+5}, v{c8}
        v_add_u32 v{WM0}, s{T2}, v{t+5}
        v_add_u32 v{WM1}, s{T3}, v{t+5}
        v_mul_u32_u24 v{t+5}, 20, v{q}
        v_add3_u32 v{t+5}, v{t+5}, v{r}, 16
        v_mul_u32_u24 v{t+5}, 160, v{t+5}
        v_add_u32 v{t+5}, v{t+5}, v{c8}
        v_add_u32 v{WR0}, s{T2}, v{t+5}
        v_add_u32 v{WR1}, s{T3}, v{t+5}
        s_lshl_b32 s{T2}, s{sKH}, 20
        s_lshl_b32 s{T3}, s{sHEAD}, 11
        s_add_u32 s{T2}, s{T2}, s{T3}
        s_lshr_b32 s{T3}, s{sTB}, 1
        s_lshl_b32 s{T4}, s{T3}, 10
        s_add_u32 s{T2}, s{T2}, s{T4}
        s_and_b32 s{T4}, s{sTB}, 1
        s_lshl_b32 s{T4}, s{T4}, 8
        s_add_u32 s{T2}, s{T2}, s{T4}
        s_add_u32 s{T2}, s{T2}, {OM:#x}
        v_lshrrev_b32 v{t+5}, 1, v{q}
        v_lshlrev_b32 v{t+5}, 16, v{t+5}
        v_lshl_add_u32 v{t+5}, v{b0}, 9, v{t+5}
        v_lshl_add_u32 v{t+5}, v{tt}, 4, v{t+5}
        v_add_u32 v{AOM}, s{T2}, v{t+5}
        s_lshl_b32 s{T2}, s{sKH}, 18
        s_lshl_b32 s{T4}, s{sHEAD}, 9
        s_add_u32 s{T2}, s{T2}, s{T4}
        s_lshl_b32 s{T4}, s{sTB}, 7
        s_add_u32 s{T2}, s{T2}, s{T4}
        s_add_u32 s{T2}, s{T2}, {ORM:#x}
        v_lshlrev_b32 v{t+5}, 14, v{q}
        v_lshl_add_u32 v{t+5}, v{tt}, 3, v{t+5}
        v_add_u32 v{AOR}, s{T2}, v{t+5}
        s_lshr_b32 s{T2}, s{sHEAD}, 2
        s_lshl_b32 s{T2}, s{T2}, 11
        s_add_u32 s{T2}, s{T2}, {F4:#x}
        s_lshl_b32 s{T3}, s{sKH}, 10
        s_add_u32 s{T2}, s{T2}, s{T3}
        v_lshl_add_u32 v{AF4}, v{tt}, 6, s{T2}
        s_lshl_b32 s{T0}, s{sHEAD}, 6
        s_lshl_b32 s{T1}, s{sTB}, 4
        s_add_u32 s{T0}, s{T0}, s{T1}
        v_add_u32 v{t+5}, s{T0}, v{tt}
        v_lshlrev_b32 v{AG}, 2, v{t+5}
        v_add_u32 v{AG}, {GT:#x}, v{AG}
        v_mul_u32_u24 v{t+5}, 1280, v{t+5}
        v_lshl_add_u32 v{t+5}, v{q}, 3, v{t+5}
        s_mul_i32 s{T0}, s{sQB}, 160
        s_mul_i32 s{T1}, s{sKH}, 96
        s_add_u32 s{T0}, s{T0}, s{T1}
        v_add_u32 v{AOUT}, s{T0}, v{t+5}
        s_lshl_b32 s{T0}, s{sWAVE}, 12
        s_add_u32 s{T0}, s{T0}, {L_EX}
        v_add_u32 v{AEX}, s{T0}, v{L16}
        s_xor_b32 s{T0}, s{sWAVE}, 4
        s_lshl_b32 s{T0}, s{T0}, 12
        s_add_u32 s{T1}, s{T0}, {L_EX}
        v_add_u32 v{APX}, s{T1}, v{L16}
        s_lshl_b32 s{T1}, s{sKH}, 10
        s_add_u32 s{T1}, s{T1}, s{T0}
        s_add_u32 s{T1}, s{T1}, {L_EX}
        v_add_u32 v{AX2}, s{T1}, v{L16}
        v_lshl_add_u32 v{AYD}, v{q}, 2, v{r}
        v_lshl_add_u32 v{AYD}, v{AYD}, 7, v{c8}
        s_mul_i32 s{T0}, s{sKH}, {48*128}
        s_lshl_b32 s{T1}, s{sTB}, 5
        s_add_u32 s{T0}, s{T0}, s{T1}
        s_add_u32 s{T0}, s{T0}, {L_YD}
        v_add_u32 v{AYD}, s{T0}, v{AYD}""")
    def att_init_list(self):
        if self.o("ones", 2) == 12:
            return [f"v_mov_b32 v{O_+e}, 0" for e in range(16)] + [f"v_mov_b32 v{st+e}, 0x3f803f80" for st in VS for e in range(16)]
        return [f"v_mov_b32 v{O_+e}, 0" for e in range(16)] + [f"v_mov_b32 v{st+e}, v{ONES}" for st in VS for e in range(16)]

    def flag_reset(self):
        a = self.a
        L = a.newlabel("NOZ")
        a(f"s_cmp_lg_u32 s{sWAVE}, 0\ns_cbranch_scc1 {L}")
        a(f"""s_lshl_b32 s{T0}, s{sPI}, 6
        s_add_u32 s{T0}, s{T0}, {F1:#x}
        v_mov_b32 v12, s{T0}
        v_and_b32 v10, 3, v0
        v_lshlrev_b32 v11, 2, v10
        v_add_u32 v13, s{sCL}, v11
        s_mov_b32 s{sM}, 0xf
        s_mov_b32 s{sM+1}, 0
        v_cndmask_b32 v12, v12, v13, s[{sM}:{sM+1}]
        s_lshl_b32 s{T0}, s{sCH0}, 2
        s_add_u32 s{T0}, s{T0}, {F3:#x}
        v_add_u32 v13, s{T0}, v11
        s_lshl_b32 s{sM}, 16, s{sNCH}
        s_sub_u32 s{sM}, s{sM}, 16
        v_cndmask_b32 v12, v12, v13, s[{sM}:{sM+1}]
        s_lshl_b32 s{T0}, s{sQB}, 11
        s_lshl_b32 s{T1}, s{sHEAD}, 6
        s_add_u32 s{T0}, s{T0}, s{T1}
        s_add_u32 s{T0}, s{T0}, {F4:#x}
        v_mov_b32 v13, s{T0}
        s_mov_b32 s{sM}, 0x100
        v_cndmask_b32 v12, v12, v13, s[{sM}:{sM+1}]
        s_lshl_b32 s{T0}, s{sG}, 6
        s_add_u32 s{T0}, s{T0}, {F1 + 256*64:#x}
        v_mov_b32 v13, s{T0}
        s_cmp_lt_u32 s{sG}, 32
        s_cselect_b32 s{T1}, s{sNCH}, 0
        s_cmp_eq_u32 s{T1}, 2
        s_cselect_b32 s{sM}, 0x200, 0
        v_cndmask_b32 v12, v12, v13, s[{sM}:{sM+1}]
        v_mov_b32 v13, 0
        s_mov_b32 exec_lo, 0x3ff
        s_mov_b32 exec_hi, 0
        buffer_store_dword v13, v12, s[{rWS}:{rWS+3}], 0 offen sc1
        s_mov_b64 exec, 1""")
        self.srd(rA, pDBG, 256)
        a(f"""s_and_b32 s{T0}, s{sWG}, 1
        s_lshl_b32 s{T0}, s{T0}, 7
        v_mov_b32 v12, s{T0}
        v_mov_b32 v13, 1
        s_waitcnt vmcnt(0)
        buffer_atomic_add v13, v12, s[{rA}:{rA+3}], 0 offen sc1
        s_mov_b64 exec, -1""")
        a.label(L)

    XA, WA, XA2, WA2, EA = 2, 6, 128, 132, 136
    def gemm_compute(self):
        a = self.a
        XA, WA = self.XA, self.WA
        self.a.lines.append('; ---- waves 0..3: QKV projection tile (or, in the sixteen workgroups without a tile, the gate); wave 3 then stages Q, K, V')
        a.label("L_COMPUTE")
        if self.o("cpf", 1) == 1: self.code_prefetch()
        self.common_scalars()
        a(f"""s_lshl_b32 s{T0}, s{sJT}, 10
        s_lshl_b32 s{T1}, s{sRT}, 6
        s_add_u32 s{T0}, s{T0}, s{T1}
        s_add_u32 s{sCL}, s{T0}, {F2:#x}
        s_lshl_b32 s{T0}, s{sXCD}, 1
        s_add_u32 s{T0}, s{T0}, s{sI}
        s_sub_u32 s{T7}, s{T0}, 30
        s_lshl_b32 s{T0}, s{T7}, 6
        s_add_u32 s{T0}, s{T0}, {F5:#x}
        s_cmp_ge_u32 s{sI}, 30
        s_cselect_b32 s{sCL}, s{T0}, s{sCL}
        s_waitcnt lgkmcnt(0)""")
        self.srd(rWS, pWS, WS_SIZE)
        if self.stamps: a("v_mov_b32 v1, 0")
        self.stamp("start")
        if self.o("touch", 0): self.touch()
        if self.o("tlb", 0):
            L = a.newlabel("NOTLB")
            a(f"s_cmp_lg_u32 s{sWAVE}, 2\ns_cbranch_scc1 {L}")
            self.srd(rB, pOUT, 2048 * 1280); self.srd(rC, pWO, 640 * 1280)
            a(f"""v_lshlrev_b32 v10, 20, v0
            s_mov_b64 exec, 0xffff
            buffer_load_dword v31, v10, s[{rWS}:{rWS+3}], 0 offen sc1
            s_mov_b64 exec, 7
            buffer_load_dword v30, v10, s[{rB}:{rB+3}], 0 offen sc1
            s_mov_b64 exec, 1
            buffer_load_dword v29, v10, s[{rC}:{rC+3}], 0 offen
            s_mov_b64 exec, -1""")
            a.label(L)
        self.flag_reset()
        late = self.o("late", 0)
        def hiinit():
            self.setup_call()
            for l in self.att_init_list():
                if late or int(l.split()[1][1:-1]) >= 192: a(l)
        if not late: hiinit()
        a(f"s_cmp_eq_u32 s{sWAVE}, 0\ns_cbranch_scc1 L_C_NW\ns_waitcnt vmcnt(0)")
        a.label("L_C_NW")
        a(f"s_cmp_ge_u32 s{sI}, 30\ns_cbranch_scc1 L_C_NOTILE")
        a(f"""s_and_b32 s{T0}, s{sWAVE}, 1
        s_lshl_b32 s{T0}, s{T0}, 13
        v_and_b32 v8, 31, v0
        v_lshrrev_b32 v9, 5, v0
        v_lshrrev_b32 v10, 1, v8
        v_and_b32 v10, 7, v10
        v_xor_b32 v10, v10, v9
        v_lshlrev_b32 v8, 7, v8
        v_add_u32 v8, s{T0}, v8""")
        for ks in range(4):
            a(f"v_xor_b32 v11, {2*ks}, v10\nv_lshl_add_u32 v{XA+ks}, v11, 4, v8")
        a(f"""v_lshrrev_b32 v8, 2, v0
        v_and_b32 v8, 3, v8
        v_lshrrev_b32 v9, 5, v0
        v_lshl_add_u32 v9, v9, 3, v8
        v_lshlrev_b32 v9, 8, v9
        v_lshrrev_b32 v10, 4, v0
        v_and_b32 v10, 1, v10
        v_lshlrev_b32 v10, 1, v10
        v_lshrrev_b32 v11, 1, v0
        v_and_b32 v11, 1, v11
        v_or_b32 v10, v10, v11
        v_and_b32 v11, 1, v0
        v_lshlrev_b32 v11, 3, v11
        v_add_u32 v9, v9, v11
        v_add_u32 v9, {L_W}, v9
        s_and_b32 s{T0}, s{sWAVE}, 2""")
        for i in range(2):
            a(f"""s_add_u32 s{T1}, s{T0}, {i}
            v_xor_b32 v11, s{T1}, v8
            v_lshl_add_u32 v11, v11, 2, v10
            v_lshl_add_u32 v{WA+i}, v11, 4, v9""")
        def lowinit():
            for l in self.att_init_list():
                if not late and int(l.split()[1][1:-1]) < 192: a(l)
        a(f"s_setprio {self.o('gprio', 3)}")
        a(f"s_cmp_ge_u32 s{sJT}, 10\ns_cbranch_scc1 L_C_VTILE")
        self.gemm_loop(False, self.gemm_epi_qk, lowinit, self.deferred(self.epi_qk_setup))
        a("s_branch L_C_FLAG")
        a.label("L_C_NOTILE")
        a(f"s_call_b64 s[{sRET}:{sRET+1}], L_SPARE")
        self.stamp("g.pre")
        self.sig_wait(8, 8)
        self.stamp("g.go")
        self.gate()
        lowinit()
        a("s_branch L_C_FLAG")
        a.label("L_C_VTILE")
        self.gemm_loop(True, self.gemm_epi_v, lowinit, self.deferred(self.epi_v_setup))
        a.label("L_C_FLAG")
        a.reset_counters()
        self.stamp("c.epi")
        L = a.newlabel("KVW")
        a(f"s_cmp_eq_u32 s{sWAVE}, 3\ns_cbranch_scc1 {L}")
        a("s_waitcnt vmcnt(0)")
        self.last_flag(12, 4, sCL, 2)
        self.stamp("c.F2set")
        if late: hiinit()
        a("s_branch L_ATT")
        a.label(L)
        self.kv_fetch_setup()
        a(f"buffer_load_dword v29, v28, s[{rC}:{rC+3}], 0 offen sc1")
        a("s_waitcnt vmcnt(0)")
        self.last_flag(12, 4, sCL, 2)
        if late: hiinit()
        self.kv_fetch()
        a("s_branch L_ATT")

    def touch(self):
        a = self.a
        L = a.newlabel("NOTCH")
        k0 = self.o("touch", 0)
        a(f"s_cmp_lg_u32 s{sWAVE}, 2\ns_cbranch_scc1 {L}\ns_cmp_ge_u32 s{sI}, 30\ns_cbranch_scc1 {L}")
        self.srd(rB, pX, 2048 * 1280); self.srd(rC, pW, 640 * 3840)
        a(f"""s_and_b32 s{T0}, s{sJT}, 7
        s_lshl_b32 s{T0}, s{T0}, 4
        s_lshl_b32 s{T1}, s{sRT}, 7
        s_add_u32 s{T0}, s{T0}, s{T1}
        v_and_b32 v10, 15, v0
        v_add_u32 v10, s{T0}, v10
        v_mul_u32_u24 v10, 1280, v10
        v_lshrrev_b32 v11, 4, v0
        v_lshl_add_u32 v10, v11, 7, v10
        s_and_b32 s{T0}, s{sRT}, 3
        s_lshl_b32 s{T0}, s{T0}, 4
        v_lshrrev_b32 v11, 1, v0
        v_and_b32 v11, 15, v11
        v_add_u32 v11, s{T0}, v11
        v_lshrrev_b32 v12, 5, v0
        v_lshl_add_u32 v11, v12, 6, v11
        v_mul_u32_u24 v11, 3840, v11
        v_and_b32 v12, 1, v0
        v_lshl_add_u32 v11, v12, 7, v11
        s_lshl_b32 s{T0}, s{sJT}, 8
        v_add_u32 v11, s{T0}, v11""")
        if self.o("tsleep", 0): a(f"s_sleep {self.o('tsleep', 0)}")
        def w(j, extra=0): a(f"s_mov_b32 s{T0}, {(k0 + 2*j)*64*3840 + extra}\nbuffer_load_dword v31, v11, s[{rC}:{rC+3}], s{T0} offen")
        def x(j): a(f"buffer_load_dword v31, v10, s[{rB}:{rB+3}], 0 offen offset:{(k0 + 4*j)*128}")
        n = 10 - k0
        for j in range((n + 1) // 2):
            w(j)
            if j % 2 == 0: x(j // 2)
        a(f"s_cmp_lg_u32 s{sJT}, 7\ns_cbranch_scc1 {L}\ns_bitcmp1_b32 s{sRT}, 1\ns_cselect_b32 s{T1}, {-32*3840}, {0}\ns_cselect_b32 s{T2}, 0, {32*3840}\ns_add_u32 s{T1}, s{T1}, s{T2}\nv_add_u32 v11, s{T1}, v11")
        for j in range((n + 1) // 2): w(j)
        a.label(L)
    def gate(self):
        a = self.a
        a.reset_counters()
        X, W, Z = 32, 12, 2
        self.srd(rA, pX, 2048 * 1280); self.srd(rB, pGW, 1280)
        a(f"""s_lshl_b32 s{T0}, s{T7}, 7
        s_lshl_b32 s{T1}, s{sWAVE}, 5
        s_add_u32 s{T6}, s{T0}, s{T1}
        v_lshrrev_b32 v10, 4, v0
        v_add_u32 v11, s{T6}, v10
        v_mul_u32_u24 v11, 1280, v11
        v_and_b32 v2, 15, v0
        v_lshlrev_b32 v3, 4, v2
        v_add_u32 v11, v11, v3""")
        for j in range(5): tw = a.vm(f"buffer_load_dwordx4 {vr(W+4*j,4)}, v3, s[{rB}:{rB+3}], 0 offen offset:{256*j}")
        tx = []
        for g in range(8):
            a(f"s_mov_b32 s{T0}, {5120*g}")
            for j in range(5): t = a.vm(f"buffer_load_dwordx4 {vr(X+20*g+4*j,4)}, v11, s[{rA}:{rA+3}], s{T0} offen offset:{256*j}")
            tx.append(t)
        a(f"""v_lshl_add_u32 v10, v2, 2, v10
        v_add_u32 v10, s{T6}, v10
        v_lshlrev_b32 v10, 2, v10
        v_add_u32 v10, {GT:#x}, v10
        v_mov_b32 v11, v2""")
        for g in range(8):
            a.wait(tw, tx[g])
            for e in range(20):
                a(f"v_dot2_f32_bf16 v{Z+g}, v{X+20*g+e}, v{W+e}, {'0' if e == 0 else f'v{Z+g}'}")
        a.nop(3)
        for sh in (8, 4, 2, 1):
            for g in range(8): a(f"v_add_f32_dpp v{Z+g}, v{Z+g}, v{Z+g} row_ror:{sh} row_mask:0xf bank_mask:0xf")
        for g in range(1, 8):
            a(f"v_cmp_eq_u32 vcc, {g}, v11\ns_nop 1\nv_cndmask_b32 v{Z}, v{Z}, v{Z+g}, vcc")
        a(f"""v_mul_f32 v{Z}, {f2u(-math.log2(math.e)):#x}, v{Z}
        v_exp_f32 v{Z}, v{Z}
        s_mov_b32 exec_lo, 0x00ff00ff
        v_add_f32 v{Z}, 1.0, v{Z}
        v_rcp_f32 v{Z}, v{Z}
        s_mov_b32 exec_hi, 0x00ff00ff
        buffer_store_dword v{Z}, v10, s[{rWS}:{rWS+3}], 0 offen sc1
        s_mov_b64 exec, -1""")

    def deferred(self, f):
        if not self.o("late", 0): f(); return []
        n = len(self.a.lines); f(); L = self.a.lines[n:]; del self.a.lines[n:]
        return L
    def gemm_loop(self, vt, epi, fill, extra):
        a = self.a
        a.reset_counters()
        FR, ACC = 32, 64
        def reads(s, ks):
            st = FR + 16 * (ks & 1); sl = s % NSLOT
            xa, wa, sl = (self.XA, self.WA, sl * 16384) if sl < 4 else (self.XA2, self.WA2, 0)
            rx = lambda j: (lambda: a.ds(f"ds_read_b128 {vr(st+4*j,4)}, v{xa+ks} offset:{sl + 4096*j}"))
            rw = lambda i, q: (lambda: a.ds(f"ds_read_b64_tr_b16 {vr(st+8+4*i+2*q,2)}, v{wa+i} offset:{sl + (16*ks+4*q)*256}"))
            if vt: return [("X0", rx(0)), ("W0", rw(0,0)), ("W0", rw(0,1)), ("W1", rw(1,0)), ("W1", rw(1,1)), ("X1", rx(1))]
            return [("W0", rw(0,0)), ("W0", rw(0,1)), ("X0", rx(0)), ("X1", rx(1)), ("W1", rw(1,0)), ("W1", rw(1,1))]
        def group(ks, toks, nxt, first):
            st = FR + 16 * (ks & 1); out = {}
            sched = [int(x) for x in self.o('gs', '3300')]; k = 0
            for m, (i, j) in enumerate(((0,0),(0,1),(1,0),(1,1))):
                if vt: A, B, na, nb = st + 4*i, st + 8 + 4*j, f"X{i}", f"W{j}"
                else:  A, B, na, nb = st + 8 + 4*i, st + 4*j, f"W{i}", f"X{j}"
                a.wait(toks[na], toks[nb])
                d = ACC + 16 * (2*i + j)
                a(f"v_mfma_f32_32x32x16_bf16 {vr(d,16)}, {vr(A,4)}, {vr(B,4)}, {'0' if first else vr(d,16)}")
                for _ in range(sched[m]):
                    if k < len(nxt): out[nxt[k][0]] = nxt[k][1](); k += 1
                if m >= 2:
                    for _ in range(4):
                        if extra: a(extra.pop(0))
            return out
        a("s_barrier")
        toks = {}
        for n, f in reads(0, 0): toks[n] = f()
        for s in range(9):
            for ks in range(4):
                if ks < 3:
                    toks = group(ks, toks, reads(s, ks + 1), s == 0 and ks == 0)
                else:
                    a.wait_all(vm=False); a("s_barrier")
                    if self.o("jit", 0): self.jitter()
                    if s < 8: toks = group(ks, toks, reads(s + 1, 0), False)
        assert not extra
        sets = (FR, 152, 168, 8)
        T = {}
        def rd(ks, nm):
            st = sets[ks]; sl = (9 % NSLOT) * 16384; k = int(nm[1])
            if nm[0] == "X": T[ks, nm] = a.ds(f"ds_read_b128 {vr(st+4*k,4)}, v{self.XA+ks} offset:{sl + 4096*k}")
            else:
                for q in range(2): T[ks, nm] = a.ds(f"ds_read_b64_tr_b16 {vr(st+8+4*k+2*q,2)}, v{self.WA+k} offset:{sl + (16*ks+4*q)*256}")
        na, nb = ("X", "W") if vt else ("W", "X")
        first = [(lambda ks=ks, nm=nm: rd(ks, nm)) for ks in range(4) for nm in (na + "0", nb + "0")]
        later = [(lambda ks=ks: rd(ks, nb + "1")) for ks in range(4)] + [(lambda ks=ks: rd(ks, na + "1")) for ks in range(4)]
        group(3, toks, [(f"f{i}", f) for i, f in enumerate(first[:6])], False)
        for f in first[6:]: f()
        off = lambda nm: 4 * int(nm[1]) + (0 if nm[0] == "X" else 8)
        pend = []
        for bi, (i, j) in enumerate(((0,0),(0,1),(1,0),(1,1))):
            d = ACC + 16 * (2*i + j)
            for ks in range(4):
                a.wait(T[ks, f"{na}{i}"], T[ks, f"{nb}{j}"])
                a(f"v_mfma_f32_32x32x16_bf16 {vr(d,16)}, {vr(sets[ks]+off(f'{na}{i}'),4)}, {vr(sets[ks]+off(f'{nb}{j}'),4)}, {vr(d,16)}")
                if bi < 2 and later: later.pop(0)()
                if bi >= 2:
                    n = -(-len(pend) // (4 - ks + (4 if bi == 2 else 0)))
                    for _ in range(min(n, 9)): pend.pop(0)()
            if bi == 1: pend += epi(0, 0)
            if bi == 1: pend += epi(0, 1)
            if bi == 2: last = epi(1, 0)
        for f in pend: f()
        for f in last: f()
        for f in epi(1, 1): f()
        fill()

    def epi_qk_setup(self):
        a = self.a
        sBASE, sHS, sPQ = T0, T1, T3
        a(f"""s_mov_b32 s{sHS}, {Q_HS}
        s_mov_b32 s{T4}, {Q_US}
        s_cmp_ge_u32 s{sJT}, 5
        s_cselect_b32 s{sHS}, {KV_HS}, s{sHS}
        s_cselect_b32 s{T4}, {KV_US}, s{T4}
        s_cselect_b32 s{sBASE}, {KV}, {QO:#x}
        s_cselect_b32 s{T5}, 5, 0
        s_cselect_b64 s[{sM}:{sM+1}], -1, 0
        s_cselect_b32 s{sSC}, 1.0, {f2u(math.log2(math.e) / math.sqrt(20.0)):#x}
        s_sub_u32 s{T5}, s{sJT}, s{T5}
        s_lshl_b32 s{sPQ}, s{T5}, 4
        s_and_b32 s{T5}, s{sWAVE}, 2
        s_lshl_b32 s{T5}, s{T5}, 2
        s_add_u32 s{sPQ}, s{sPQ}, s{T5}
        s_lshl_b32 s{T5}, s{sRT}, 1
        s_and_b32 s{T6}, s{sWAVE}, 1
        s_add_u32 s{T5}, s{T5}, s{T6}
        s_mul_i32 s{T5}, s{T5}, s{T4}
        s_add_u32 s{sBASE}, s{sBASE}, s{T5}
        v_and_b32 v8, 31, v0
        v_and_b32 v9, 0x13, v0
        v_and_b32 v10, 4, v0
        v_lshl_or_b32 v9, v10, 1, v9
        v_and_b32 v10, 8, v0
        v_lshrrev_b32 v10, 1, v10
        v_or_b32 v9, v9, v10
        v_cndmask_b32 v8, v8, v9, s[{sM}:{sM+1}]
        v_lshrrev_b32 v9, 5, v0
        v_lshlrev_b32 v10, 3, v9
        v_lshl_add_u32 v12, v8, 4, v10
        v_add_u32 v13, 1024, v12
        v_mul_lo_u32 v10, v9, s{sHS}
        v_lshl_add_u32 v14, v8, 3, v10
        v_add_u32 v14, 1024, v14
        v_add_u32 v15, 256, v14""")
        for p in range(8):
            a(f"""s_add_u32 s{T4}, s{sPQ}, {p}
            s_mul_i32 s{T5}, s{T4}, 205
            s_lshr_b32 s{T5}, s{T5}, 10
            s_mul_i32 s{T6}, s{T5}, 5
            s_sub_u32 s{T4}, s{T4}, s{T6}
            s_lshl_b32 s{T5}, s{T5}, 1
            s_mul_i32 s{T5}, s{T5}, s{sHS}
            s_add_u32 s{T5}, s{T5}, s{sBASE}
            s_lshl_b32 s{T6}, s{T4}, 9
            s_add_u32 s{T5}, s{T5}, s{T6}
            s_sub_u32 s{T6}, s{sHS}, 1536
            s_cmp_ge_u32 s{T4}, 3
            s_cselect_b32 s{T6}, s{T6}, 0
            s_add_u32 s{sE+p}, s{T5}, s{T6}
            s_cmp_eq_u32 s{T4}, 2
            s_cselect_b64 s[{sM}:{sM+1}], -1, 0""")
            for j in range(2): a(f"v_cndmask_b32 v{self.EA+2*p+j}, v{12+j}, v{14+j}, s[{sM}:{sM+1}]")
    def gemm_epi_qk(self, i, j):
        a = self.a; L = []
        for g in range(4):
            d = 64 + 16 * (2*i + j) + 4*g
            for e in range(4): L.append(lambda d=d, e=e: a(f"v_mul_f32 v{d+e}, s{sSC}, v{d+e}"))
            L.append(lambda d=d: a(f"v_cvt_pk_bf16_f32 v{d}, v{d}, v{d+1}"))
            L.append(lambda d=d: a(f"v_cvt_pk_bf16_f32 v{d+1}, v{d+2}, v{d+3}"))
            L.append(lambda d=d, g=g: a.vm(f"buffer_store_dwordx2 {vr(d,2)}, v{self.EA+2*(4*i+g)+j}, s[{rWS}:{rWS+3}], s{sE+4*i+g} offen sc1{' nt' if 'q' in self.o('stnt', '') else ''}"))
        return L
    def epi_v_setup(self):
        a = self.a
        a(f"""s_sub_u32 s{T0}, s{sJT}, 10
        s_lshl_b32 s{T0}, s{T0}, 7
        s_and_b32 s{T1}, s{sWAVE}, 2
        s_lshl_b32 s{T1}, s{T1}, 5
        s_add_u32 s{T0}, s{T0}, s{T1}
        s_lshl_b32 s{T1}, s{sRT}, 1
        s_and_b32 s{T2}, s{sWAVE}, 1
        s_add_u32 s{T1}, s{T1}, s{T2}
        s_mul_i32 s{T1}, s{T1}, {KV_US}
        s_add_u32 s{sE}, s{T1}, {KV + 2560}
        s_mov_b32 s{T2}, {KV_HS - 320}
        v_and_b32 v8, 31, v0
        v_lshrrev_b32 v9, 5, v0
        v_mul_u32_u24 v9, 320, v9""")
        for j in range(2):
            a(f"""v_add_u32 v10, s{T0}, v8
            v_add_u32 v10, {32*j}, v10
            v_mul_u32_u24 v11, 3277, v10
            v_lshrrev_b32 v11, 16, v11
            v_mul_lo_u32 v11, v11, s{T2}
            v_lshl_add_u32 v10, v10, 4, v9
            v_add_u32 v{self.EA+j}, v10, v11""")
    def gemm_epi_v(self, i, j):
        a = self.a; L = []
        for s in range(2):
            d = 64 + 16 * (2*i + j) + 8*s
            for e in range(4): L.append(lambda d=d, e=e: a(f"v_cvt_pk_bf16_f32 v{d+e}, v{d+2*e}, v{d+2*e+1}"))
            L.append(lambda d=d, s=s: a.vm(f"buffer_store_dwordx4 {vr(d,4)}, v{self.EA+j}, s[{rWS}:{rWS+3}], s{sE} offen offset:{(2*i+s)*640} sc1{' nt' if 'q' in self.o('stnt', '') else ''}"))
        return L

    XS, WS_, PA, PB, PW, PS, HA, HL = 2, 6, 10, 11, 12, 13, 14, 15
    KR_, VV_, SW_, HD_, DV_, PO_ = 16, 176, 116, 132, 156, 160
    def dma_setup(self):
        a = self.a
        a(f"""v_lshrrev_b32 v16, 3, v0
        v_and_b32 v17, 7, v0
        v_lshrrev_b32 v18, 1, v16
        s_lshl_b32 s{T0}, s{sRT}, 7
        v_add_u32 v16, s{T0}, v16
        v_mul_u32_u24 v16, 1280, v16""")
        for n in range(4):
            a(f"""v_xor_b32 v19, {(4*n) & 7}, v18
            v_xor_b32 v19, v19, v17
            v_lshl_add_u32 v19, v19, 4, v16
            v_add_u32 v{self.XS+n}, {n*(8*1280-1024)}, v19""")
        a(f"""v_lshrrev_b32 v16, 4, v0
        v_and_b32 v17, 15, v0
        v_lshlrev_b32 v18, 2, v16
        v_xor_b32 v17, v17, v18
        v_mul_u32_u24 v16, 3840, v16
        v_lshl_add_u32 v16, v17, 4, v16
        s_lshl_b32 s{T0}, s{sJT}, 8
        v_add_u32 v{self.WS_}, s{T0}, v16""")
        for n in range(1, 4): a(f"v_add_u32 v{self.WS_+n}, {n*(4*3840-1024)}, v{self.WS_}")
        if self.o("rc", ""):
            c1, c2, c3 = (int(x) for x in self.o("rc", "").split(","))
            a(f"""s_mul_i32 s{T0}, s{sJT}, {c1}
            s_and_b32 s{T1}, s{sRT}, 3
            s_mul_i32 s{T1}, s{T1}, {c2}
            s_add_u32 s{T0}, s{T0}, s{T1}
            s_lshr_b32 s{T1}, s{sRT}, 2
            s_mul_i32 s{T1}, s{T1}, {c3}
            s_add_u32 s{T0}, s{T0}, s{T1}
            s_mul_i32 s{T1}, s{T0}, 205
            s_lshr_b32 s{T1}, s{T1}, 11
            s_mul_i32 s{T1}, s{T1}, 10
            s_sub_u32 s{sK}, s{T0}, s{T1}""")
            assert all(((v*205) >> 11) == v // 10 for v in range(15*c1 + 3*c2 + 3*c3 + 1))
            return
        P = self.o("rot", 4)
        a(f"s_add_u32 s{T0}, s{sJT}, s{sRT}")
        if P == 1: a(f"s_mov_b32 s{sK}, 0")
        elif P == 2: a(f"s_and_b32 s{T0}, s{T0}, 1\ns_mul_i32 s{sK}, s{T0}, 5")
        elif P == 3: a(f"s_mul_i32 s{T1}, s{T0}, 43\ns_lshr_b32 s{T1}, s{T1}, 7\ns_mul_i32 s{T1}, s{T1}, 3\ns_sub_u32 s{T0}, s{T0}, s{T1}\ns_mul_i32 s{T0}, s{T0}, 7\ns_lshr_b32 s{sK}, s{T0}, 1")
        elif P == 4: a(f"s_and_b32 s{T0}, s{T0}, 3\ns_mul_i32 s{T0}, s{T0}, 5\ns_lshr_b32 s{sK}, s{T0}, 1")
    def stage_dma(self, s):
        a = self.a
        sl = (s % NSLOT) * 16384
        a(f"s_lshl_b32 s{T0}, s{sK}, 7\ns_mul_i32 s{T1}, s{sK}, {64*3840}")
        def ld(txt):
            if a.n["vm"] - a.done["vm"] >= 62: a.wait(Tok("vm", a.done["vm"] + 8))
            return a.vm(txt)
        for h in range(4):
            a(f"s_mov_b32 m0, {L_X + sl + 4096*h}")
            a(f"s_add_u32 s{T2}, s{T0}, {32*1280*h}")
            for n in range(4): ld(f"buffer_load_dwordx4 v{self.XS+n}, s[{rA}:{rA+3}], s{T2} offen offset:{1024*n}{' nt' if s < self.o('gnt0', 0) else ''} lds")
            a(f"s_mov_b32 m0, {L_W + sl + 4096*h}")
            a(f"s_add_u32 s{T2}, s{T1}, {16*3840*h}")
            for n in range(4): t = ld(f"buffer_load_dwordx4 v{self.WS_+n}, s[{rB}:{rB+3}], s{T2} offen offset:{1024*n}{' nt' if s < self.o('gnt0', 0) else ''} lds")
        a(f"s_add_u32 s{sK}, s{sK}, 1\ns_cmp_eq_u32 s{sK}, 10\ns_cselect_b32 s{sK}, 0, s{sK}")
        return t
    def conv_scalars(self):
        a = self.a
        a(f"""s_min_u32 s{T0}, s{sLW}, 2
        s_add_u32 s{sCH}, s{sCH0}, s{T0}
        s_min_u32 s{sCH}, s{sCH}, 639
        s_mul_i32 s{T0}, s{T0}, {CONV_SZ}
        s_add_u32 s{T6}, s{T0}, {L_CONV}
        s_lshl_b32 s{T1}, s{sCH}, 1
        v_mov_b32 v{self.DV_}, s{T1}
        s_lshl_b32 s{T1}, s{sCH}, 12
        v_lshl_add_u32 v{self.HA}, v0, 4, s{T1}
        v_lshl_add_u32 v{self.HL}, v0, 4, s{T6}""")
        self.srd(rD, pH, 640 * 4096)
        a(f"s_mov_b32 m0, s{T6}\ns_nop 0")
        if "h" not in self.o("ab", ""):
            for g in range(4): a.vm(f"buffer_load_dwordx4 v{self.HA}, s[{rD}:{rD+3}], 0 offen offset:{1024*g}{self.nt} lds")
        self.srd(rC, pD, 640 * 2)
        return a.vm(f"buffer_load_ushort v{self.DV_}, v{self.DV_}, s[{rC}:{rC+3}], 0 offen")
    def pre_setup(self):
        self.a(f"""s_and_b32 s{T0}, s{sU}, 63
        s_lshr_b32 s{T1}, s{sU}, 6
        s_lshl_b32 s{T5}, s{sPI}, 6
        s_add_u32 s{T5}, s{T5}, {F1:#x}
        s_lshl_b32 s{T0}, s{T0}, 5
        s_lshl_b32 s{T1}, s{T1}, 7
        v_lshrrev_b32 v16, 3, v0
        v_and_b32 v17, 7, v0
        v_lshl_add_u32 v16, v16, 2, s{T0}
        v_lshl_add_u32 v18, v17, 4, s{T1}
        v_mul_u32_u24 v19, 1280, v16
        v_add_u32 v{self.PB}, v19, v18
        v_subrev_u32 v{self.PA}, 3840, v{self.PB}
        v_lshlrev_b32 v{self.PW}, 2, v18
        v_lshlrev_b32 v18, 11, v18
        v_lshlrev_b32 v16, 1, v16
        v_sub_u32 v18, v18, v16
        v_add_u32 v{self.PS}, {UR + 4088:#x}, v18""")
    def pre_loads(self):
        a = self.a
        if "k" in self.o("ab", ""): return
        self.srd(rC, pK, 2048 * 1280); self.srd(rD, pV, 2048 * 1280); self.srd(rB, pSH, 640 * 8)
        for j in range(4): a(f"buffer_load_dwordx4 {vr(self.KR_+12+4*j,4)}, v{self.PB}, s[{rC}:{rC+3}], 0 offen offset:{1280*j}{self.nt}")
        for j in range(4): a(f"buffer_load_dwordx4 {vr(self.VV_+4*j,4)}, v{self.PB}, s[{rD}:{rD+3}], 0 offen offset:{1280*j}{self.nt}")
        for j in range(3): a(f"buffer_load_dwordx4 {vr(self.KR_+4*j,4)}, v{self.PA}, s[{rC}:{rC+3}], 0 offen offset:{1280*j}{self.nt}")
        for j in range(4): a(f"buffer_load_dwordx4 {vr(self.SW_+4*j,4)}, v{self.PW}, s[{rB}:{rB+3}], 0 offen offset:{16*j}")
    def h_loads(self, D):
        a = self.a
        if "h" in self.o("ab", ""): return
        for g in range(4):
            a.vm(f"buffer_load_dwordx4 {vr(D+6*g,4)}, v{self.HA}, s[{rD}:{rD+3}], 0 offen offset:{1024*g}{self.nt}")
            a.vm(f"buffer_load_dwordx2 {vr(D+6*g+4,2)}, v{self.HA}, s[{rD}:{rD+3}], 0 offen offset:{1024*g+16}{self.nt}")
    def bar(self):
        a = self.a; L = a.newlabel("NB")
        a(f"s_cmp_ge_u32 s{sBC}, s{sNB}\ns_cbranch_scc1 {L}\ns_barrier\ns_add_u32 s{sBC}, s{sBC}, 1")
        a.label(L)
    def bar_rest(self):
        a = self.a; L, D = a.newlabel("BR"), a.newlabel("BRD")
        a.label(L)
        a(f"s_cmp_ge_u32 s{sBC}, s{sNB}\ns_cbranch_scc1 {D}\ns_barrier\ns_add_u32 s{sBC}, s{sBC}, 1\ns_branch {L}")
        a.label(D)
    def ewait(self, n=1):
        a = self.a; L, L2, D = a.newlabel("EW"), a.newlabel("EX"), a.newlabel("EWD")
        a.label(L)
        a(f"s_mov_b32 s{T1}, {n}")
        a.label(L2)
        a(f"""s_getreg_b32 s{T0}, hwreg(HW_REG_IB_STS)
        s_and_b32 s{T0}, s{T0}, 0x00c0000f
        s_cbranch_scc0 {D}
        s_cmp_ge_u32 s{sBC}, s{sNB}
        s_cbranch_scc1 {D}""")
        if n > 1: a(f"s_sleep 1\ns_sub_u32 s{T1}, s{T1}, 1\ns_cmp_lg_u32 s{T1}, 0\ns_cbranch_scc1 {L2}")
        a(f"""s_barrier
        s_add_u32 s{sBC}, s{sBC}, 1
        s_branch {L}""")
        a.label(D)
        a("s_waitcnt vmcnt(0)")
    def epoll(self, loads, tmp, cmp=None):
        a = self.a
        L, D = a.newlabel("EP"), a.newlabel("EPD")
        a(f"s_mov_b32 s{sCNT}, 0")
        a.label(L)
        k = 0
        for (va, r, imm, wd) in loads:
            ins = {1: "buffer_load_dword", 2: "buffer_load_dwordx2", 4: "buffer_load_dwordx4"}[wd]
            a(f"{ins} {vr(tmp+k, wd)}, v{va}, s[{r}:{r+3}], 0 offen offset:{imm} sc1"); k += wd
        self.ewait()
        self.poll_check(tmp, k, cmp)
        a(f"s_cbranch_scc1 {D}")
        a(f"s_add_u32 s{sCNT}, s{sCNT}, 1\ns_cmp_lt_u32 s{sCNT}, {POLL_MAX}\ns_cbranch_scc0 {D}\ns_sleep 1\ns_branch {L}")
        a.label(D)
    def pre_compute_list(self):
        L = []
        K, V, W, AC = 76, 90, 98, 106
        lo = lambda d, s: L.append(f"v_lshlrev_b32 v{d}, 16, v{s}")
        hi = lambda d, s: L.append(f"v_and_b32 v{d}, 0xffff0000, v{s}")
        for p in range(4):
            for j in range(7): lo(K+2*j, self.KR_+4*j+p); hi(K+2*j+1, self.KR_+4*j+p)
            for j in range(4): lo(V+2*j, self.VV_+4*j+p); hi(V+2*j+1, self.VV_+4*j+p)
            w = self.SW_ + 4*p
            lo(W, w); lo(W+1, w+2); hi(W+2, w); hi(W+3, w+2); lo(W+4, w+1); lo(W+5, w+3); hi(W+6, w+1); hi(W+7, w+3)
            for lag in (3, 2, 1, 0):
                for t in range(4):
                    kk = K + 2*(3 + t - lag)
                    if self.o("pk", 1):
                        if lag == 3: L.append(f"v_pk_mul_f32 {vr(AC+2*t,2)}, {vr(kk,2)}, {vr(W+2*lag,2)}")
                        else: L.append(f"v_pk_fma_f32 {vr(AC+2*t,2)}, {vr(kk,2)}, {vr(W+2*lag,2)}, {vr(AC+2*t,2)}")
                    else:
                        for h in range(2):
                            if lag == 3: L.append(f"v_mul_f32 v{AC+2*t+h}, v{kk+h}, v{W+2*lag+h}")
                            else: L.append(f"v_fmac_f32 v{AC+2*t+h}, v{kk+h}, v{W+2*lag+h}")
            for t in range(4):
                if self.o("pk", 1): L.append(f"v_pk_mul_f32 {vr(AC+2*t,2)}, {vr(AC+2*t,2)}, {vr(V+2*t,2)}")
                else:
                    for h in range(2): L.append(f"v_mul_f32 v{AC+2*t+h}, v{AC+2*t+h}, v{V+2*t+h}")
            for h in range(2):
                o = self.PO_ + 4*p + 2*h
                L.append(f"v_cvt_pk_bf16_f32 v{o}, v{AC+6+h}, v{AC+4+h}"); L.append(f"v_cvt_pk_bf16_f32 v{o+1}, v{AC+2+h}, v{AC+h}")
        return L
    def pre_stores(self):
        a = self.a
        if "s" in self.o("ab", ""): return
        if not self.o("st4", 1):
            for e in range(8):
                a(f"s_mov_b32 s{T0}, {4096*e}")
                a(f"buffer_store_dwordx2 {vr(self.PO_+2*e,2)}, v{self.PS}, s[{rWS}:{rWS+3}], s{T0} offen sc1")
            return
        for e in range(8): a(f"ds_write_b64 v{(self.PA, self.PW)[e & 1]}, {vr(self.PO_+2*e,2)} offset:{64*(e & 6)}")
        for k in range(1, 4): a(f"v_xor_b32 v{76+k}, {32*k}, v{self.PB}")
        a("s_waitcnt lgkmcnt(0)")
        for k in range(4): a(f"ds_read_b128 {vr(self.PO_+4*k,4)}, v{76+k if k else self.PB} offset:{1024*k}")
        for k in range(4):
            a(f"s_mov_b32 s{T0}, {65536*k}\ns_waitcnt lgkmcnt({3-k})")
            a(f"buffer_store_dwordx4 {vr(self.PO_+4*k,4)}, v{self.PS}, s[{rWS}:{rWS+3}], s{T0} offen sc1{' nt' if 'u' in self.o('stnt', '') else ''}")
    def pre_store_setup(self, spare=False):
        if not self.o("st4", 1): return
        assert (L_CONV + CONV_SZ + 2*CS) % 128 == 0 and CONV_SZ % 128 == 0 and (L_CONV + U_OFF) % 128 == 0
        if spare: self.a(f"s_lshl_b32 s{T0}, s{sWAVE}, 12")
        else: self.a(f"""s_mul_i32 s{T0}, s{sLW}, {CONV_SZ}
        s_add_u32 s{T0}, s{T0}, {L_CONV + 2*CS}
        s_cmp_eq_u32 s{sWAVE}, 7
        s_cselect_b32 s{T0}, {L_CONV + U_OFF}, s{T0}""")
        self.a(f"""v_and_b32 v76, 7, v0
        v_lshrrev_b32 v77, 3, v0
        v_sub_u32 v77, 7, v77
        v_lshrrev_b32 v78, 1, v77
        v_xor_b32 v78, v78, v76
        v_lshlrev_b32 v78, 4, v78
        v_and_b32 v77, 1, v77
        v_lshl_add_u32 v78, v77, 3, v78
        v_lshl_add_u32 v78, v76, 9, v78
        v_add_u32 v{self.PA}, s{T0}, v78
        v_xor_b32 v{self.PW}, 64, v{self.PA}
        v_lshrrev_b32 v76, 5, v0
        v_and_b32 v77, 31, v0
        v_xor_b32 v77, v77, v76
        v_lshlrev_b32 v77, 4, v77
        v_lshl_add_u32 v76, v76, 9, v77
        v_add_u32 v{self.PB}, s{T0}, v76
        s_lshr_b32 s{T1}, s{sU}, 6
        s_lshl_b32 s{T1}, s{T1}, 18
        s_and_b32 s{T0}, s{sU}, 63
        s_lshl_b32 s{T0}, s{T0}, 6
        s_sub_u32 s{T1}, s{T1}, s{T0}
        s_add_u32 s{T1}, s{T1}, {UR + 4032:#x}
        v_lshrrev_b32 v76, 2, v0
        v_lshlrev_b32 v76, 12, v76
        v_and_b32 v77, 3, v0
        v_lshl_add_u32 v76, v77, 4, v76
        v_add_u32 v{self.PS}, s{T1}, v76""")
    def h_valu(self, D, t0):
        L = [f"v_alignbit_b32 v{t0+e}, v{D+e+1}, v{D+e}, 16" for e in range(4)]
        L += [f"v_mov_b32 v{t0+4+e}, v{D+e+1}" for e in range(4)]
        return L + [f"v_alignbit_b32 v{t0+8+e}, v{D+e+2}, v{D+e+1}, 16" for e in range(4)]
    def h_writes(self, D, imm, t0):
        for r, src in enumerate((t0, t0 + 4, t0 + 8, D + 2)):
            self.a(f"ds_write_b128 v{self.HL}, {vr(src,4)} offset:{r*CS + imm}")
    def conv_prep(self, part):
        a = self.a
        HD, D = self.HD_, 112
        HA, UB, UE, YS = 16, 17, 18, 19
        if part == 0:
            for g in range(4):
                a(f"ds_read_b128 {vr(HD+6*g,4)}, v{self.HL} offset:{1024*g}")
                a(f"ds_read_b64 {vr(HD+6*g+4,2)}, v{self.HL} offset:{1024*g+16}")
            a(f"""v_lshrrev_b32 v22, 4, v0
            s_lshl_b32 s{T0}, s{sCH}, 12
            v_lshrrev_b32 v23, 2, v0
            v_and_b32 v23, 3, v23
            v_mul_u32_u24 v23, {CS}, v23
            v_lshl_add_u32 v23, v22, 4, v23
            v_and_b32 v24, 3, v0
            v_lshl_add_u32 v23, v24, 3, v23
            v_add_u32 v{HA}, s{T6}, v23
            v_and_b32 v23, 15, v0
            v_lshlrev_b32 v23, 5, v23
            v_lshlrev_b32 v24, 4, v22
            v_sub_u32 v24, v24, v23
            v_add_u32 v24, s{T6}, v24
            v_add_u32 v{UB}, {U_OFF + 480}, v24
            v_lshl_add_u32 v23, v22, 3, v23
            v_sub_u32 v24, s{T6}, v23
            v_add_u32 v{UE}, {U_OFF + 504}, v24
            s_add_u32 s{T0}, s{T0}, {YD:#x}
            v_add_u32 v{YS}, s{T0}, v23
            v_lshlrev_b32 v20, 16, v{self.DV_}""")
            for e in range(6): a(f"v_mov_b32 v{D+e}, 0")
            a("s_waitcnt lgkmcnt(0)")
            a(f"v_readlane_b32 s{T1}, v{HD}, 0\nv_readlane_b32 s{T2}, v{HD+1}, 0")
            for l in self.h_valu(HD, 64): a(l)
            a(f"v_writelane_b32 v{D+4}, s{T1}, 1\nv_writelane_b32 v{D+5}, s{T2}, 1")
        else:
            for g in range(1, 4):
                for l in self.h_valu(HD + 6*g, 64 + 12*g): a(l)
            for l in self.h_valu(D, 120): a(l)
    def h_store(self):
        a = self.a
        for g in range(4): self.h_writes(self.HD_ + 6*g, 32 + 1024*g, 64 + 12*g)
        a("s_mov_b32 exec_hi, 0")
        a(f"ds_write_b128 v{self.HL}, v[112:115] offset:{U_OFF + 4096}")
        a("s_mov_b64 exec, 3")
        self.h_writes(112, 0, 120)
        a("s_mov_b64 exec, -1")
        for d, r in ((2, 16), (3, 17), (4, 18), (5, 19), (7, 20)): a(f"v_mov_b32 v{d}, v{r}")

    def dma_role(self):
        a = self.a
        a.reset_counters()
        fine = self.o("fine", 0)
        self.a.lines.append('; ---- wave 4: streams the x / wqkv tiles (128 x 64 per stage, ring of three) into LDS, then joins the convolution')
        self.dma_setup()
        a("s_waitcnt lgkmcnt(0)")
        self.srd(rA, pX, 2048 * 1280); self.srd(rB, pW, 640 * 3840)
        a(f"s_cmp_ge_u32 s{sI}, 30\ns_cbranch_scc1 L_D_SKIP")
        S = {0: self.stage_dma(0)}
        if self.o("s1early", 0): S[1] = self.stage_dma(1)
        a.label("L_D_SKIP")
        if self.stamps: a("v_mov_b32 v1, 0")
        self.stamp("start")
        self.srd(rWS, pWS, WS_SIZE)
        if not self.o("late2", 0): self.setup_call()
        a(f"s_cmp_ge_u32 s{sI}, 30\ns_cbranch_scc1 {'L_D_NT0' if self.o('late2', 0) else 'L_D_NT'}")
        if self.o("dprio", 0): a(f"s_setprio {self.o('dprio', 0)}")
        if not self.o("s1early", 0): S[1] = self.stage_dma(1)
        if self.o("hat", 0) == 0: self.conv_scalars()
        for s in range(10):
            a.wait(S[s])
            if fine: self.stamp(f"l.w{s}")
            a("s_barrier")
            if fine or s in (0, 5, 9): self.stamp(f"l.b{s}")
            if s + 2 <= 9 and "d" in self.o("ab", ""): S[s+2] = S[1]
            elif s + 2 <= 9:
                S[s+2] = self.stage_dma(s + 2)
                if fine: self.stamp(f"l.i{s}")
            if s == 8 and self.o("prep", 1): self.conv_prep(0)
            if s == 9 and self.o("prep", 1): self.conv_prep(1)
            if s == 9 and self.o("late2", 0): self.setup_call()
        a.label("L_CONV")
        self.conv()
    def side_role(self):
        a = self.a
        self.a.lines.append('; ---- waves 5..7: short depthwise convolution times v, transposed to channel-major; wave 7 then stages it for the long convolution')
        a.label("L_SIDE")
        a.reset_counters()
        a(f"""s_cmp_ge_u32 s{sI}, 30
        s_cbranch_scc1 L_S_NT
        s_lshr_b32 s{T0}, s{sLW}, 1
        s_lshl_b32 s{sU}, s{sPI}, 1
        s_add_u32 s{sU}, s{sU}, s{T0}
        s_mov_b32 s{T7}, {L_SIG}
        s_cmp_lg_u32 s{sWAVE}, 6
        s_cbranch_scc1 L_S_GO
        s_cmp_lt_u32 s{sG}, 32
        s_cselect_b32 s{T1}, s{sNCH}, 0
        s_cmp_lg_u32 s{T1}, 2
        s_cbranch_scc1 L_W6
        s_add_u32 s{sU}, s{sG}, 608
        s_add_u32 s{sPI}, s{sG}, 256
        s_mov_b32 s{sNU}, 1
        s_mov_b32 s{T7}, {L_SIG + 8}
        L_S_GO:""")
        slate = self.o("slate", 0)
        if slate: self.setup_call()
        self.pre_setup()
        a("s_waitcnt lgkmcnt(0)")
        if slate > 1: a(f"s_sleep {slate}")
        self.pre_loads()
        if self.o("hat", 0) == 0:
            L7 = a.newlabel("H7")
            a(f"s_cmp_ge_u32 s{sLW}, s{sNCH}\ns_cbranch_scc1 {L7}")
            self.conv_scalars()
            a.label(L7)
        if self.stamps: a("v_mov_b32 v1, 0")
        self.stamp("start")
        self.srd(rWS, pWS, WS_SIZE)
        if not slate and not self.o("late2", 0): self.setup_call()
        if self.o("late2", 0): a(f"s_mov_b32 s{sNB}, 10\ns_mov_b32 s{sBC}, 0")
        a(f"""v_mov_b32 v44, {L_SIG}
        v_mov_b32 v46, 0
        v_mov_b32 v47, 0
        ds_write_b64 v44, v[46:47]
        ds_write_b64 v44, v[46:47] offset:8
        ds_write_b32 v44, v46 offset:16
        v_and_b32 v46, 1, v0
        v_lshlrev_b32 v46, 7, v46
        s_waitcnt lgkmcnt(0)""")
        if not self.o("late2", 0): self.pre_store_setup()
        self.bar()
        if self.o("late2", 0):
            self.pre_store_setup()
        self.ewait(self.o("espin0", 1))
        self.stamp("s.kv")
        if self.o("sprio", 0): a(f"s_setprio {self.o('sprio', 0)}")
        PC = self.pre_compute_list()
        nch = self.o("nchunk", 2)
        per = -(-len(PC) // nch)
        for c in range(nch):
            for l in (PC[c*per:(c+1)*per] if "v" not in self.o("ab", "") else []): a(l)
            if c < nch - 1 or self.o("barst", 1): self.bar()
        self.pre_stores()
        if self.o("hat", 0) == 1:
            L7 = a.newlabel("H7")
            a(f"s_cmp_ge_u32 s{sLW}, s{sNCH}\ns_cbranch_scc1 {L7}")
            self.conv_scalars()
            a.label(L7)
        self.srd(rC, pDBG, 256)
        a(f"buffer_load_dword v47, v46, s[{rC}:{rC+3}], 0 offen sc1")
        self.stamp("s.st")
        self.ewait(self.o("espin", 1))
        self.last_flag(8, f"s{sNU}", T5, 114, base=f"s{T7}")
        self.stamp("s.F1set")
        a(f"s_cmp_eq_u32 s{sWAVE}, 7\ns_cbranch_scc1 L_FETCH\ns_cmp_eq_u32 s{sWAVE}, 6\ns_cbranch_scc1 {'L_IDLE3' if self.o('late2', 0) else 'L_IDLE2'}")
        a.label("L_PREP")
        if self.o("prep", 1):
            self.bar()
            self.conv_prep(0)
            self.bar()
            self.conv_prep(1)
        self.bar_rest()
        if self.o("late2", 0):
            a(f"s_cmp_eq_u32 s{sWAVE}, 6\ns_cbranch_scc1 L_CONV")
            self.setup_call()
        a("s_branch L_CONV")
        if self.o("late2", 0):
            a.label("L_IDLE3")
            self.bar_rest()
            self.setup_call()
            a(f"s_mov_b32 s{sBC}, 10\ns_branch L_IDLE2")
        a.label("L_W6")
        a("s_waitcnt lgkmcnt(0)")
        a(f"s_cmp_lt_u32 s{sNCH}, 3\ns_cbranch_scc1 L_IDLE")
        self.conv_scalars()
        if self.stamps: a("v_mov_b32 v1, 0")
        self.stamp("start")
        self.srd(rWS, pWS, WS_SIZE)
        self.setup_call()
        self.bar()
        self.ewait()
        a("s_branch L_PREP")
        a.label("L_IDLE")
        if self.stamps: a("v_mov_b32 v1, 0")
        self.stamp("start")
        self.srd(rWS, pWS, WS_SIZE)
        self.setup_call()
        a.label("L_IDLE2")
        for l in self.att_init_list(): a(l)
        self.bar_rest()
        a("s_branch L_ATT")
        a.label("L_S_NT")
        a("s_waitcnt lgkmcnt(0)")
        if self.stamps: a("v_mov_b32 v1, 0")
        self.stamp("start")
        self.srd(rWS, pWS, WS_SIZE)
        a.label("L_D_NT0")
        self.setup_call()
        a.label("L_D_NT")
        a(f"s_call_b64 s[{sRET}:{sRET+1}], L_SPARE")
        a(f"s_mov_b32 s{sBC}, 1\ns_branch L_IDLE2")
        a.label("L_SPARE")
        a(f"""s_sub_u32 s{T0}, s{sPI}, 180
        s_lshl_b32 s{T0}, s{T0}, 3
        s_add_u32 s{sU}, s{T0}, s{sWAVE}""")
        self.pre_setup()
        self.pre_loads()
        a(f"""v_mov_b32 v44, {L_SIG}
        v_mov_b32 v46, 0
        v_mov_b32 v47, 0
        ds_write_b64 v44, v[46:47]
        ds_write_b64 v44, v[46:47] offset:8
        s_waitcnt lgkmcnt(0)
        s_barrier""")
        a.label("L_SPARE2")
        self.pre_store_setup(spare=True)
        a("s_waitcnt vmcnt(0)")
        for l in PC: a(l)
        self.pre_stores()
        a.label("L_SPARE3")
        a("s_waitcnt vmcnt(0)")
        self.last_flag(8, f"s{sNU}", T5, 114)
        a(f"s_setpc_b64 s[{sRET}:{sRET+1}]")
        self.fetcher()

    def fetcher(self):
        a = self.a
        a.label("L_FETCH")
        a.reset_counters()
        OK = a.newlabel("CNTOK")
        a(f"s_setprio 0\nv_lshlrev_b32 v{L16}, 4, v0")
        self.poll_check(47, 1, cmp="v_cmp_le_u32 vcc, 0x80, v47")
        a(f"s_cbranch_scc1 {OK}")
        self.epoll([(46, rC, 0, 1)], 47, cmp="v_cmp_le_u32 vcc, 0x80, v47")
        a.label(OK)
        a(f"""s_andn2_b32 s{T1}, s{sCH0}, 63
        s_add_u32 s{T2}, s{sCH0}, s{sNCH}
        s_sub_u32 s{T2}, s{T2}, 1
        s_or_b32 s{T2}, s{T2}, 63""")
        for r in (T1, T2):
            a(f"""s_lshr_b32 s{T3}, s{r}, 3
            s_add_u32 s{T3}, s{T3}, 180
            s_lshr_b32 s{T4}, s{r}, 1
            s_cmp_ge_u32 s{r}, 480
            s_cselect_b32 s{T4}, s{T3}, s{T4}
            s_sub_u32 s{T3}, s{r}, 352
            s_cmp_ge_u32 s{r}, 608
            s_cselect_b32 s{r}, s{T3}, s{T4}""")
        a(f"""v_add_u32 v9, s{T1}, v0
        v_min_u32 v9, s{T2}, v9
        v_lshlrev_b32 v9, 6, v9
        v_add_u32 v9, {F1:#x}, v9""")
        if self.o("pgate", 9):
            LG, LD = a.newlabel("PG"), a.newlabel("PGD")
            a.label(LG)
            a(f"s_cmp_ge_u32 s{sBC}, {self.o('pgate', 9)}\ns_cbranch_scc1 {LD}\ns_cmp_ge_u32 s{sBC}, s{sNB}\ns_cbranch_scc1 {LD}\ns_barrier\ns_add_u32 s{sBC}, s{sBC}, 1\ns_branch {LG}")
            a.label(LD)
        if "p" not in self.o("ab", ""): self.mpoll([9], 16, elastic=True)
        self.stamp("f.F1ok")
        a(f"s_lshl_b32 s{T2}, s{sCH0}, 12\ns_add_u32 s{T2}, s{T2}, {UR:#x}")
        for c in range(3 if "u" not in self.o("ab", "") else 0):
            L = a.newlabel("NOU")
            if c == 2: a(f"s_cmp_lt_u32 s{sNCH}, 3\ns_cbranch_scc1 {L}")
            a(f"s_mov_b32 m0, {L_CONV + c*CONV_SZ + U_OFF}\ns_add_u32 s{T1}, s{T2}, {4096*c}")
            for j in range(4): a(f"buffer_load_dwordx4 v{L16}, s[{rWS}:{rWS+3}], s{T1} offen offset:{1024*j} sc1 lds")
            if c == 2: a.label(L)
        a("v_mov_b32 v45, 1")
        self.ewait()
        a("ds_write_b32 v44, v45")
        self.stamp("f.u")
        self.bar_rest()
        if self.o("late2", 0): self.setup_call()
        for l in self.att_init_list(): a(l)
        a("s_branch L_ATT")
    def kv_fetch(self):
        a = self.a
        a.reset_counters()
        OK = a.newlabel("CNTOK")
        self.poll_check(29, 1, cmp="v_cmp_le_u32 vcc, 0x80, v29")
        a(f"s_cbranch_scc1 {OK}")
        self.poll([(28, rC, 0, 1)], 29, cmp="v_cmp_le_u32 vcc, 0x80, v29")
        a.label(OK)
        self.sig_wait(12, 4)
        self.sig_wait(8, f"s{sNU}")
        self.mpoll([30, 31], 16)
        self.stamp("f.F2ok")
        a(f"""s_mul_i32 s{T0}, s{sHEAD}, {Q_HS}
        s_mul_i32 s{T1}, s{sQB}, {4*Q_US}
        s_add_u32 s{T0}, s{T0}, s{T1}
        s_add_u32 s{T0}, s{T0}, {QO:#x}""")
        def lin(sbase, lds0, n):
            T = []
            for k in range(n):
                if k % 4 == 0: a(f"s_mov_b32 m0, {lds0 + 1024*k}\ns_add_u32 s{T1}, s{sbase}, {1024*k}")
                T.append(a.vm(f"buffer_load_dwordx4 v{L16}, s[{rWS}:{rWS+3}], s{T1} offen offset:{1024*(k%4)} sc1 lds"))
            return T
        if self.o("kv3", 1):
            lin(T0, L_Q, 10)
            T = lin(sKVB, 0, 40)
            a(f"v_mov_b32 v16, {L_SIG}\nv_mov_b32 v17, 1\nv_mov_b32 v18, 2")
            a.wait(T[9]); a("ds_write_b32 v16, v17 offset:4")
            a.wait(T[19]); a("ds_write_b32 v16, v18 offset:4")
        else:
            lin(T0, L_Q, 10)
            lin(sKVB, 0, 40)
            a(f"v_mov_b32 v16, {L_SIG}\nv_mov_b32 v17, 3")
            a.wait_all()
            a("ds_write_b32 v16, v17 offset:4")
        self.stamp("f.kv0")
    def kv_fetch_setup(self):
        a = self.a
        self.srd(rC, pDBG, 256)
        a(f"""s_mul_i32 s{T0}, s{sHEAD}, 20
        v_and_b32 v28, 15, v0
        v_lshrrev_b32 v30, 4, v0
        v_and_b32 v31, 1, v30
        v_mul_u32_u24 v31, 19, v31
        v_add_u32 v31, s{T0}, v31
        v_lshrrev_b32 v31, 7, v31
        v_lshrrev_b32 v30, 1, v30
        v_mul_u32_u24 v30, 5, v30
        v_add3_u32 v30, v30, v31, 5
        v_lshl_add_u32 v30, v30, 4, v28
        v_lshlrev_b32 v30, 6, v30
        v_add_u32 v30, {F2:#x}, v30
        v_lshl_add_u32 v31, v31, 4, s{sQB}
        v_add_u32 v31, s{sQB}, v31
        v_and_b32 v28, 1, v0
        v_add_u32 v31, v31, v28
        v_lshlrev_b32 v31, 6, v31
        v_add_u32 v31, {F2:#x}, v31
        v_lshlrev_b32 v28, 7, v28""")

    def sig_check(self, off, thr, tok):
        a = self.a
        OK = a.newlabel("SOK")
        a.wait(tok)
        a(f"v_readfirstlane_b32 s{T0}, v15\ns_nop 0\ns_cmp_ge_u32 s{T0}, {thr}\ns_cbranch_scc1 {OK}")
        self.sig_wait(off, thr)
        a.label(OK)
    def sig_wait(self, off, thr=1):
        a = self.a
        L, D = a.newlabel("SIG"), a.newlabel("SIGD")
        a(f"v_mov_b32 v14, {L_SIG}\ns_mov_b32 s{sCNT}, 0")
        a.label(L)
        a(f"""ds_read_b32 v15, v14 offset:{off}
        s_waitcnt lgkmcnt(0)
        v_readfirstlane_b32 s{T0}, v15
        s_add_u32 s{sCNT}, s{sCNT}, 1
        s_cmp_ge_u32 s{T0}, {thr}
        s_cbranch_scc1 {D}
        s_sleep 1
        s_cmp_lt_u32 s{sCNT}, {POLL_MAX*40}
        s_cbranch_scc1 {L}""")
        a.label(D)
    def conv(self):
        a = self.a
        a.reset_counters()
        ACC, FR = 16, 64
        HA, UB, UE, YS, DV = 2, 3, 4, 5, self.DV_
        a(f"s_setprio {self.o('hprio', 0)}")
        if not self.o("prep", 1): self.conv_prep(0); self.conv_prep(1)
        self.h_store()
        self.stamp("v.h")
        self.sig_wait(0)
        a(f"s_setprio {self.o('cprio', 3)}")
        a.reset_counters()
        def reads(rho):
            st = FR + 64 * (rho & 1)
            ra = lambda i, q: (lambda: a.ds(f"ds_read_b64_tr_b16 {vr(st+4*i+2*q,2)}, v{HA} offset:{64*(8*i+rho) + 8*q}"))
            rb = lambda d: (lambda: a.ds(f"ds_read_b128 {vr(st+32+4*d,4)}, v{UB} offset:{64*(56 - (8*d - rho))}"))
            L = [("A0", ra(0,0)), ("A0", ra(0,1))] + [(f"B{d}", rb(d)) for d in range(8)]
            for i in range(1, 8): L += [(f"A{i}", ra(i,0)), (f"A{i}", ra(i,1))]
            return L
        toks = {}
        for n, f in reads(0): toks[n] = f()
        self.stamp("v.u")
        init = self.att_init_list()
        fold = self.o("cfold", 1)
        tu = {}
        def pre(c):
            u, t = FR + 2*c, FR + 16 + 4*c
            return [lambda: (a.wait(tu[c]), a(f"v_and_b32 v{t}, 0xffff0000, v{u+1}")), lambda: a(f"v_lshlrev_b32 v{t+1}, 16, v{u+1}"),
                    lambda: a(f"v_and_b32 v{t+2}, 0xffff0000, v{u}"), lambda: a(f"v_lshlrev_b32 v{t+3}, 16, v{u}")]
        def post(c):
            d, t = ACC + 4*c, FR + 16 + 4*c
            L = [(lambda e=e: a(f"v_fmac_f32 v{t+e}, v7, v{t+e}") ) for e in range(0)]
            L += [(lambda e=e: a(f"v_fma_f32 v{t+e}, v7, v{t+e}, v{d+e}")) for e in range(4)]
            L += [lambda: a(f"v_cvt_pk_bf16_f32 v{t}, v{t}, v{t+1}"), lambda: a(f"v_cvt_pk_bf16_f32 v{t+1}, v{t+2}, v{t+3}")]
            L += [lambda: a.vm(f"buffer_store_dwordx2 {vr(t,2)}, v{YS}, s[{rWS}:{rWS+3}], 0 offen offset:{512*c} sc1{' nt' if 'y' in self.o('stnt', '') else ''}")]
            return L
        Q, ready = [], {}
        for rho in range(8):
            st = FR + 64 * (rho & 1)
            nxt = reads(rho + 1) if rho < 7 else []
            out = {}; k = 0; m = 0
            for i in range(8):
                for c in range(i, 8):
                    a.wait(toks[f"A{i}"], toks[f"B{c-i}"])
                    d = ACC + 4 * c
                    a(f"v_mfma_f32_16x16x32_bf16 {vr(d,4)}, {vr(st+4*i,4)}, {vr(st+32+4*(c-i),4)}, {'0' if (rho == 0 and i == 0) else vr(d,4)}")
                    m += 1
                    if m >= 4 and k < len(nxt): out[nxt[k][0]] = nxt[k][1](); k += 1
                    elif m >= 28 and init: a(init.pop())
                    if rho == 7 and fold:
                        if c == i: ready[c] = len(a.lines)
                        if m <= 4:
                            for cc in (2*m - 2, 2*m - 1): tu[cc] = a.ds(f"ds_read_b64 {vr(FR+2*cc,2)}, v{UE} offset:{512*(7-cc)}")
                            if m == 4: Q += [(None, f) for cc in range(8) for f in pre(cc)[:0]]
                        else:
                            if m == 5:
                                for cc in range(8): Q += [(None, f) for f in pre(cc)] + [(cc, f) for f in post(cc)]
                            for _ in range(2):
                                if Q and (Q[0][0] is None or (Q[0][0] in ready and len(a.lines) - ready[Q[0][0]] >= 9)): Q.pop(0)[1]()
            assert k == len(nxt)
            toks = out
        assert not init
        self.stamp("v.mfma")
        if not fold:
            for c in range(8): tu[c] = a.ds(f"ds_read_b64 {vr(FR+2*c,2)}, v{UE} offset:{512*(7-c)}")
            for c in range(8): Q += [(None, f) for f in pre(c)] + [(c, f) for f in post(c)]
            ready = {c: -99 for c in range(8)}
        while Q:
            c, f = Q.pop(0)
            if c is not None and len(a.lines) - ready[c] < 9: a.nop(9 - (len(a.lines) - ready[c])); ready[c] = -99
            f()
        self.stamp("v.st")

    def m2b(self, S, j=1): self.a(f"v_mfma_f32_32x32x4_2b_bf16 {vr(S,32)}, {vr(KRM,2)}, {vr((QR2, QR)[j],2)}, 0")
    def mqk(self, S, h, j=1): self.a(f"v_mfma_f32_32x32x16_bf16 {vr(S+16*h,16)}, {vr(KM+4*h,4)}, {vr((QM2, QM)[j],4)}, {vr(S+16*h,16)}")
    def smf(self, V, P, j=1): self.a(f"v_smfmac_f32_32x32x32_bf16 {vr((O2, O_)[j],16)}, {vr(V,4)}, {vr(P,8)}, v{IDX}")
    def side_kv(self, add):
        a = self.a
        def mk(j):
            def f():
                if j == 0: a(f"s_add_u32 m0, s{sKVW}, {add*KV_US}\ns_add_u32 s{T5}, s{sKVG}, {add*KV_US}")
                if j == 4: a(f"s_add_u32 m0, m0, 4096\ns_add_u32 s{T5}, s{T5}, 4096")
                a.vm(f"buffer_load_dwordx4 v{L16}, s[{rWS}:{rWS+3}], s{T5} offen offset:{1024*(j%4)} sc1 lds")
            return f
        return [mk(j) for j in range(5)]
    def side_wo(self):
        a = self.a
        def mk(k):
            def f():
                L = a.newlabel("NOWO")
                if k == 0: a(f"s_mul_i32 s{T4}, s{sWAVE}, {13*1024}\ns_add_u32 m0, s{T4}, {L_WO}")
                else: a("s_add_u32 m0, m0, 1024")
                if k % 5 == 0: a(f"s_mov_b32 s{T5}, {40960*(k//5)}")
                elif k < 9: a("s_nop 0")
                if k >= 9: a(f"s_cmp_eq_u32 s{sWAVE}, 7\ns_cbranch_scc1 {L}")
                a.vm(f"buffer_load_dwordx4 v{WOV + k%5}, s[{rA}:{rA+3}], s{T5} offen{' nt' if 'w' in self.o('stnt', '') else ''} lds")
                if k >= 9: a.label(L)
            return f
        return [mk(k) for k in range(13)]
    def side_yd(self):
        a = self.a
        def f0():
            OK = a.newlabel("F3OK")
            a.wait(self.tF3)
            self.poll_check(F3T, 2)
            a(f"s_cbranch_scc1 {OK}")
            snap = a.snapshot(); self.poll([(AF3, rWS, 0, 2)], F3T); a.restore(snap)
            a.label(OK)
            a(f"s_mul_i32 s{T5}, s{sWAVE}, 1280\ns_add_u32 m0, s{T5}, {L_YD}\ns_mov_b32 s{T5}, {8*4096 - 1024}")
            a.vm(f"buffer_load_dwordx4 v{YDV}, s[{rWS}:{rWS+3}], 0 offen sc1 lds")
            a("s_mov_b64 exec, 0xffff")
            a.vm(f"buffer_load_dwordx4 v{YDV}, s[{rWS}:{rWS+3}], s{T5} offen offset:1024 sc1 lds")
            a("s_mov_b64 exec, -1")
        return [f0]
    def side_x(self):
        a = self.a
        def mk(j):
            def f():
                if j == 0: self.srd(rA, pX, 2048 * 1280)
                a.vm(f"buffer_load_dwordx2 {vr(XE+2*j,2)}, v{AOUT}, s[{rA}:{rA+3}], 0 offen offset:{32*j}")
            return f
        def f3(): self.tF3 = a.vm(f"buffer_load_dwordx2 {vr(F3T,2)}, v{AF3}, s[{rWS}:{rWS+3}], 0 offen sc1")
        return [mk(j) for j in range(3)] + [f3]
    def attention(self):
        a = self.a
        self.a.lines.append('; ---- attention: S^T = K Q^T (Q pre-scaled by log2(e)/sqrt(20)), P = exp2(S), O^T += V^T P^T; a ones row in V^T gives the row sum.')
        self.a.lines.append(';      The sparse MFMA picks the high halves of the fp32 P registers. Waves w and w+4 share 64 queries and split the keys.')
        a.label("L_ATT")
        a.reset_counters()
        self.sig_wait(4)
        self.stamp("att0")
        US2 = 2 * KV_US
        base = {"K": 0, "V": 0}
        def bump(kind, u):
            while u * US2 - base[kind] > 5 * US2:
                base[kind] += 6 * US2
                for r in ((AKM, AKR) if kind == "K" else (AV,)): a(f"v_add_u32 v{r}, {6*US2}, v{r}")
            return u * US2 - base[kind]
        def rKR(u): o = bump("K", u); return a.ds(f"ds_read_b64 {vr(KRM,2)}, v{AKR} offset:{o}")
        def rKM(u, h): o = bump("K", u); return a.ds(f"ds_read_b128 {vr(KM+4*h,4)}, v{AKM} offset:{o + 1024*h}")
        def rV(u):
            o = bump("V", u)
            a(f"s_mov_b64 exec, s[{sVMASK}:{sVMASK+1}]")
            for g in range(4): t = a.ds(f"ds_read_b128 {vr(VS[u&1]+4*g,4)}, v{AV} offset:{o + 640*g}")
            a("s_mov_b64 exec, -1")
            return t
        tq = [a.ds(f"ds_read_b64 {vr(QR2,2)}, v{AQR2} offset:2048")]
        tKR = rKR(0)
        tq.append(a.ds(f"ds_read_b128 {vr(QM2,4)}, v{AQM2}"))
        tK0 = rKM(0, 0); tK1 = rKM(0, 1)
        tq.append(a.ds(f"ds_read_b64 {vr(QR,2)}, v{AQR} offset:2048"))
        tq.append(a.ds(f"ds_read_b128 {vr(QM,4)}, v{AQM}"))
        tV = {0: rV(0)}
        side = self.side_kv(8)
        a.wait(tq[0], tKR); self.m2b(S_, 0)
        for _ in range(4): side.pop(0)()
        for e in range(16): a(f"v_mov_b32 v{O2+e}, 0")
        a.wait(tq[1], tK0); self.mqk(S_, 0, 0)
        a.wait(tK1); self.mqk(S_, 1, 0)
        side.pop(0)()
        if self.o("kv3", 1):
            self.sig_check(4, 2, a.ds("ds_read_b32 v15, v14 offset:4")); a.nop(2)
        else: a.nop(8)
        zones = {0: self.o("z0", "2,4"), 6: self.o("z1", "3,5,7"), 14: self.o("z1", "3,5,7"), 22: self.o("z3", "3,5,7"), 30: self.o("z4", "1")}
        if self.o("nob30", 0): del zones[30]
        prio = {}
        if self.o("prio", 1):
            for u0, z in zones.items():
                zz = [int(x) for x in z.split(",")]
                prio[u0] = len(zz)
                for k, d in enumerate(zz): prio[u0 + d] = len(zz) - 1 - k
        for t in range(32):
            if t % 8 == 6 and t < 30:
                assert not side
                side = self.att_sync(t // 8)
            if t == 1 and self.o("kv3", 1):
                L3 = a.newlabel("N3")
                a(f"s_cmp_lg_u32 s{sWAVE}, 3\ns_cbranch_scc1 {L3}\nv_mov_b32 v15, 3\ns_waitcnt vmcnt(5)\nds_write_b32 v14, v15 offset:4")
                a.label(L3)
            if t == 2 and self.o("kv3", 1): self.sig_check(4, 3, tsig)
            if t == 30 and not self.o("nob30", 0): a("s_barrier")
            if self.o("jit", 0) and t in (0, 1, 3, 5, 9, 12, 13, 17, 20, 21, 23, 25, 27, 28, 29, 31): self.jitter()
            if t in prio: a(f"s_setprio {prio[t]}")
            u, j = t >> 1, t & 1
            X, Y = S_ + 32 * j, S_ + 32 * (1 - j)
            Vc, Vp = VS[u & 1], VS[((t - 1) >> 1) & 1]
            nx = t < 31
            rl = j == 0 and u < 15
            P = [int(x) for x in self.o("pos", "2,6,14,18,22,26,30").split(",")]
            SP = [int(x) for x in self.o("spos", "10,20").split(",")]
            for p in range(32):
                if p == P[0]:
                    if t == 0: a.wait(tq[2])
                    if j == 1 and nx: a.wait(tKR)
                    if t > 0: self.smf(Vp + 12, Y + 24, 1 - j)
                    if rl and self.o("vpos", -1) < 0: tV[u+1] = rV(u + 1)
                if p == self.o("vpos", -1) and rl: tV[u+1] = rV(u + 1)
                if p == P[1] and nx:
                    self.m2b(Y, 1 - j)
                    if rl: tKR = rKR(u + 1)
                if t == 1 and p == 24 and self.o("kv3", 1): tsig = a.ds("ds_read_b32 v15, v14 offset:4")
                if p in SP and side: side.pop(0)()
                if t == 31 and p in (16, 20, 24): a.ds(f"ds_write_b128 v{AEX}, {vr(O2+(p-16),4)} offset:{256*(p-16)}")
                if t == 31 and p == 28: a.ds(f"ds_write_b32 v{AEX}, v{O2+12} offset:3072")
                if p == P[2]: a.wait(tV[u]); self.smf(Vc, X, j)
                if p == P[3]: self.smf(Vc + 4, X + 8, j)
                if p == P[4] and nx:
                    a.wait(tK0, tK1, tq[3]); self.mqk(Y, 0, 1 - j)
                    if rl: tK0 = rKM(u + 1, 0)
                if p == P[5]: self.smf(Vc + 8, X + 16, j)
                if p == P[6] and nx:
                    self.mqk(Y, 1, 1 - j)
                    if rl: tK1 = rKM(u + 1, 1)
                a(f"v_exp_f32 v{X+p}, v{X+p}")
        assert not side
        a.nop(2)
        self.smf(VS[1] + 12, S_ + 32 + 24, 1)
        self.stamp("attend")
        a("s_setprio 0")
        a.wait_all(vm=False)
        a("s_barrier")
        if self.o("jit", 0): self.jitter()
        tl = a.ds(f"ds_read_b32 v{O2+12}, v{APX} offset:3072")
        tp = [a.ds(f"ds_read_b128 {vr(O2+4*k,4)}, v{APX} offset:{1024*k}") for k in range(3)]
        self.fin_pre()
        a.nop(1)
        a.wait(tl); a(f"v_add_f32 v{O_+12}, v{O_+12}, v{O2+12}")
        for k in range(3):
            a.wait(tp[k])
            for e in range(4): a(f"v_add_f32 v{O_+4*k+e}, v{O_+4*k+e}, v{O2+4*k+e}")
    def att_sync(self, k):
        a = self.a
        if k == 0:
            a.wait_all(vm=True, ds=False, force=True)
            L = a.newlabel("NOF3")
            a(f"s_cmp_ge_u32 s{sLW}, s{sNCH}\ns_cbranch_scc1 {L}")
            a(f"s_lshl_b32 s{T0}, s{sCH}, 2\ns_add_u32 s{T0}, s{T0}, {F3:#x}")
            self.flag_store(T0, 14)
            a.label(L)
            a("s_barrier")
            self.stamp("sync0")
            return self.side_kv(16) + self.side_kv(24)
        if k == 1:
            a.wait_all(vm=True, ds=False, force=True)
            a("s_barrier")
            self.stamp("sync1")
            return self.side_x()
        a("s_barrier")
        self.stamp("sync2")
        self.srd(rA, pWO, 640 * 1280)
        return self.side_yd() + self.side_wo()

    def fin_pre(self):
        self.a(f"""v_lshlrev_b32 v2, 3, v0
        s_mov_b32 s{T2}, {f2u(2.0**-60):#x}
        s_mov_b32 s{T3}, {f2u(2.0**60):#x}
        s_mov_b32 s{T4}, 0x7f7fffff""")
    def finish(self):
        a = self.a
        O, TMP = O_, 16
        ACC, OF, WF, GG = 224, 16, 56, 14
        self.a.lines.append('; ---- softmax guard: the loop above shifts by 0 instead of the row max. That is exact as long as the row sum l lies in [2^-60, 2^60]')
        self.a.lines.append(';      and O is finite (no exponential overflowed, none that matters underflowed). Otherwise this wave redoes its rows at L_SLOW')
        self.a.lines.append(';      with the true row max subtracted and stores O again (nobody reads O before the flag below).')
        a.label("L_NORM")
        a(f"v_rcp_f32 v{TMP+4}, v{O+12}")
        a(f"v_cmp_le_f32 vcc, s{T2}, v{O+12}\nv_cmp_ge_f32 s[{sM}:{sM+1}], s{T3}, v{O+12}")
        for e in range(8): a(f"v_mul_f32 v{O+e}, v{O+e}, v{TMP+4}")
        for e in range(4): a(f"v_cvt_pk_bf16_f32 v{TMP+8+e}, v{O+2*e}, v{O+2*e+1}")
        a(f"buffer_store_dwordx4 {vr(TMP+8,4)}, v{L16}, s[{rWS}:{rWS+3}], s{sOMS} offen sc1")
        for e in range(8, 12): a(f"v_mul_f32 v{O+e}, v{O+e}, v{TMP+4}")
        for e in range(4, 6): a(f"v_cvt_pk_bf16_f32 v{TMP+8+e}, v{O+2*e}, v{O+2*e+1}")
        a("s_mov_b32 exec_hi, 0")
        a(f"buffer_store_dwordx2 {vr(TMP+12,2)}, v2, s[{rWS}:{rWS+3}], s{sORS} offen sc1")
        a("s_mov_b32 exec_hi, -1")
        for e in range(4): a(f"v_add_f32 v{TMP+e}, abs(v{O+e}), abs(v{O+4+e})")
        for e in range(4): a(f"v_add_f32 v{TMP+e}, v{TMP+e}, abs(v{O+8+e})")
        a(f"""v_add_f32 v{TMP}, v{TMP}, v{TMP+1}
        v_add_f32 v{TMP+2}, v{TMP+2}, v{TMP+3}
        s_and_b64 s[{sM}:{sM+1}], s[{sM}:{sM+1}], vcc
        v_add_f32 v{TMP}, v{TMP}, v{TMP+2}
        v_cmp_ge_f32 vcc, s{T4}, v{TMP}
        s_nop 1
        s_and_b64 s[{sM}:{sM+1}], s[{sM}:{sM+1}], vcc
        s_cmp_eq_u64 s[{sM}:{sM+1}], exec
        s_cbranch_scc1 L_NORM_OK
        s_cmp_eq_u32 s{sSLOW}, 0
        s_cbranch_scc1 L_SLOW""")
        a.label("L_NORM_OK")
        self.srd(rA, pOUT, 2048 * 1280)
        a(f"s_lshl_b32 s{T0}, s{sKH}, 2\ns_add_u32 s{T0}, s{T0}, {L_RDY}\nv_mov_b32 v{AQM}, s{T0}\nv_mov_b32 v{AQR}, 0\nds_write_b32 v{AQM}, v{AQR}")
        a("s_waitcnt vmcnt(0) lgkmcnt(0)\ns_barrier")
        a.reset_counters()
        L = a.newlabel("NOF4")
        a(f"s_cmp_lg_u32 s{sWAVE}, 0\ns_cbranch_scc1 {L}")
        self.flag_store(sF4S, 2)
        a.label(L)
        a.reset_counters()
        self.stamp("F4set")
        tg = a.vm(f"buffer_load_dword v{GG}, v{AG}, s[{rWS}:{rWS+3}], 0 offen sc1")
        def wfrag(step, regstep):
            toks = []
            for b in range(5):
                for q in range(2):
                    if step < 8: ad, off = (WM0 if b < 2 else WM1), (40*step + 8*q)*160 + 32*b
                    else: ad, off = (WR0 if b < 2 else WR1), (160*(step-8) + 80*q)*160 + 32*b
                    t = a.ds(f"ds_read_b64_tr_b16 {vr(int(WF + 20*regstep) + 4*b + 2*q, 2)}, v{ad} offset:{L_WO + off}")
                toks.append(t)
            return toks
        tw = {s: wfrag(s, s) for s in range(8)}
        YR, BB = 2, 16
        ty = [a.ds(f"ds_read_b64_tr_b16 {vr(YR+2*b,2)}, v{AYD} offset:{2048*b}") for b in range(3)]
        keep = [216, 217, 218, 219, 220, 221, 222, 223, 2, 3, 4, 5]
        for b in range(3):
            a.wait(ty[b])
            x, y = XE + 2*b, YR + 2*b
            a(f"""v_lshlrev_b32 v16, 16, v{x}
            v_and_b32 v17, 0xffff0000, v{x}
            v_lshlrev_b32 v18, 16, v{x+1}
            v_and_b32 v19, 0xffff0000, v{x+1}
            v_lshlrev_b32 v20, 16, v{y}
            v_and_b32 v21, 0xffff0000, v{y}
            v_lshlrev_b32 v22, 16, v{y+1}
            v_and_b32 v23, 0xffff0000, v{y+1}""")
            for e in range(4): a(f"v_mul_f32 v{keep[4*b+e]}, v{16+e}, v{20+e}")
        a("v_lshrrev_b32 v16, 4, v0\nv_and_b32 v16, 1, v16\nv_mul_u32_u24 v16, 24, v16")
        a(f"v_add_u32 v15, v16, v{AOUT}\nv_mov_b32 v6, v{AQM}")
        a.wait_all(vm=False)
        sPEND, sR = sM2, T6
        a(f"s_mov_b64 s[{sPEND}:{sPEND+1}], 0xffff")
        def wait_group(done):
            L, N, D = a.newlabel("GW"), a.newlabel("GN"), a.newlabel("GD")
            a(f"s_mov_b32 s{sCNT}, 0\ns_cmp_lg_u32 s{sTB}, 0\ns_cbranch_scc1 {N}")
            a.label(L)
            a(f"""s_mov_b64 exec, s[{sPEND}:{sPEND+1}]
            buffer_load_dword v7, v{AF4}, s[{rWS}:{rWS+3}], 0 offen sc1
            s_waitcnt vmcnt(0)
            v_cmp_eq_u32 vcc, 0, v7
            s_add_u32 s{sCNT}, s{sCNT}, 1
            s_mov_b64 exec, -1
            s_mov_b64 s[{sPEND}:{sPEND+1}], vcc
            s_cmp_ge_u32 s{sCNT}, {POLL_MAX}
            s_cselect_b32 s{sPEND}, 0, s{sPEND}
            s_and_b32 s{T0}, s{sPEND}, 0xff
            s_cselect_b32 s{sR}, 0, 1
            s_and_b32 s{T0}, s{sPEND}, 0xff00
            s_cselect_b32 s{T0}, 0, 2
            s_or_b32 s{sR}, s{sR}, s{T0}
            s_and_b32 s{T0}, s{sR}, {3 - done}
            s_cbranch_scc1 {L}P
            s_sleep {self.o('psleep', 2)}
            s_branch {L}""")
            a.label(L + "P")
            a(f"v_mov_b32 v7, s{sR}\nds_write_b32 v6, v7\ns_branch {D}")
            a.label(N)
            a(f"""ds_read_b32 v7, v6
            s_waitcnt lgkmcnt(0)
            v_readfirstlane_b32 s{sR}, v7
            s_add_u32 s{sCNT}, s{sCNT}, 1
            s_cmp_ge_u32 s{sCNT}, {POLL_MAX*40}
            s_cselect_b32 s{sR}, 3, s{sR}
            s_and_b32 s{T0}, s{sR}, {3 - done}
            s_cbranch_scc1 {D}
            s_sleep 1
            s_branch {N}""")
            a.label(D)
        def oloads(steps, base):
            to = {}
            for k, s in enumerate(steps):
                if s < 8:
                    a(f"s_mov_b32 s{T0}, {s*131072}")
                    to[s] = a.vm(f"buffer_load_dwordx4 {vr(base+4*k,4)}, v{AOM}, s[{rWS}:{rWS+3}], s{T0} offen sc1")
                else:
                    for q in range(2):
                        a(f"s_mov_b32 s{T0}, {(8*(s-8)+4*q)*16384}")
                        to[s] = a.vm(f"buffer_load_dwordx2 {vr(base+4*k+2*q,2)}, v{AOR}, s[{rWS}:{rWS+3}], s{T0} offen sc1")
            return to
        def mm(steps, to, obase, acc, wrem, trem, after=None):
            for k, s in enumerate(steps):
                a.wait(to[s])
                for b in (range(5) if s < 8 else (2, 3, 4, 0, 1)):
                    w = WF + 20*s + 4*b if s < 8 else wrem + 4*b
                    if s >= 8: a.wait(trem()[b])
                    a(f"v_mfma_f32_16x16x32_bf16 {vr(acc+4*b,4)}, {vr(w,4)}, {vr(obase+4*k,4)}, {'0' if k == 0 else vr(acc+4*b,4)}")
                if after: after(s)
        def wrem_to(step, reg): return wfrag(step, (reg - WF) // 20)
        def add_from(src):
            for b in (2, 3, 4, 0, 1):
                for e in range(4): a(f"v_add_f32 v{ACC+4*b+e}, v{ACC+4*b+e}, v{src+4*b+e}")
        G = ([0, 1, 2, 3, 8], [4, 5, 6, 7, 9])
        wait_group(0)
        self.stamp("F4ok")
        a(f"s_cmp_lg_u32 s{sR}, 3\ns_cbranch_scc1 L_P3_PART")
        a.reset_counters()
        order = [0, 1, 2, 3, 8, 4, 5, 6, 7, 9]
        to = oloads(order, OF)
        tr = {}
        def after(s):
            if s == 0: tr[8] = wfrag(8, 0)
            if s == 1: tr[9] = wfrag(9, 1)
        mm(G[0], to, OF, WF + 60 if False else ACC, WF, lambda: tr[8], after)
        mm(G[1], to, OF + 20, WF + 40, WF + 20, lambda: tr[9])
        a.nop(4)
        add_from(WF + 40)
        a.label("L_P3_SUM")
        def part():
            a.label("L_P3_PART")
            a(f"s_cmp_eq_u32 s{sR}, 2\ns_cbranch_scc1 L_P3_B")
            for first in (0, 1):
                if first: a.label("L_P3_B")
                save = WF + 80 * first
                for n, g in enumerate((first, 1 - first)):
                    a.reset_counters()
                    if n: wait_group(1 << first); a.reset_counters()
                    to = oloads(G[g], OF)
                    trem = wfrag(G[g][4], (OF + 20 - WF) / 20)
                    mm(G[g], to, OF, ACC, OF + 20, lambda: trem)
                    a.nop(4 if n else 8)
                    if n: add_from(save)
                    else:
                        for e in range(20): a(f"v_mov_b32 v{save+e}, v{ACC+e}")
                a("s_branch L_P3_SUM")
        self.p3_part = part
        a.reset_counters()
        self.stamp("mfma")
        for b in (2, 3, 4): a.ds(f"ds_write_b128 v{AEX}, {vr(ACC+4*b,4)} offset:{1024*(b-2)}")
        for b in range(3):
            for e in range(4): a(f"v_sub_f32 v{ACC+4*b+e}, v{ACC+4*b+e}, v{keep[4*b+e]}")
        a.wait_all(vm=False)
        a("s_barrier")
        if self.o("jit", 0): self.jitter()
        tp = [a.ds(f"ds_read_b128 {vr(16+4*b,4)}, v{AX2} offset:{1024*b}") for b in range(3)]
        fl = self.o('ost', '').replace('+', ' ')
        for b in range(3):
            if b == 2: a(f"s_cmp_lg_u32 s{sKH}, 0\ns_cbranch_scc1 L_FIN")
            a.wait(tp[b])
            for e in range(4): a(f"v_add_f32 v{16+4*b+e}, v{16+4*b+e}, v{ACC+4*b+e}")
            for e in range(4): a(f"v_fmac_f32 v{keep[4*b+e]}, v{GG}, v{16+4*b+e}")
            a(f"v_cvt_pk_bf16_f32 v{32+2*b}, v{keep[4*b]}, v{keep[4*b+1]}\nv_cvt_pk_bf16_f32 v{33+2*b}, v{keep[4*b+2]}, v{keep[4*b+3]}")
            if self.o("o4", 1) and b < 2:
                if b == 1:
                    a("s_nop 1\nv_permlane16_swap_b32 v32, v34\nv_permlane16_swap_b32 v33, v35")
                    a.vm(f"buffer_store_dwordx4 v[32:35], v15, s[{rA}:{rA+3}], 0 offen {fl}")
            else: a.vm(f"buffer_store_dwordx2 {vr(32+2*b,2)}, v{AOUT}, s[{rA}:{rA+3}], 0 offen offset:{32*b} {fl}")
        a.label("L_FIN")
        if self.stamps:
            self.stamp("st")
            a("s_waitcnt vmcnt(0)")
            self.stamp("end")
            a(f"s_lshl_b32 s{T0}, s{sWG}, 3\ns_add_u32 s{T0}, s{T0}, s{sWAVE}\ns_lshl_b32 s{T0}, s{T0}, 8\ns_add_u32 s{T0}, s{T0}, {TS:#x}\nv_lshlrev_b32 v2, 2, v0")
            a(f"buffer_store_dword v1, v2, s[{rWS}:{rWS+3}], s{T0} offen")
            if "enc" in self.opt:
                n0, n1, wv, wg = self.opt["enc"].split(",")
                for n in (n0, n1):
                    if n not in self.names: self.names.append(n)
                a(f"s_cmp_lg_u32 s{sWG}, {wg}\ns_cbranch_scc1 L_END\ns_cmp_lg_u32 s{sWAVE}, {wv}\ns_cbranch_scc1 L_END")
                a(f"v_readlane_b32 s{T1}, v1, {self.names.index(n0)}\nv_readlane_b32 s{T2}, v1, {self.names.index(n1)}\nv_readlane_b32 s{T3}, v1, {self.names.index('end')}\ns_nop 3")
                a(f"s_sub_u32 s{T2}, s{T2}, s{T1}\ns_lshl_b32 s{T2}, s{T2}, 3\ns_and_b32 s{T2}, s{T2}, 0xffff\ns_add_u32 s{T3}, s{T3}, s{T2}")
                a.label("L_ENC")
                a(f"s_memrealtime s[{sTS}:{sTS+1}]\ns_waitcnt lgkmcnt(0)\ns_sub_u32 s{T1}, s{T3}, s{sTS}\ns_cmp_gt_i32 s{T1}, 0\ns_cbranch_scc1 L_ENC")
        a.label("L_END")
        a("s_endpgm")

    def slow(self):
        a = self.a
        S, V, M, AVS = S_, VS[0], 96, 98
        a.label("L_SLOW")
        a(f"""s_mov_b32 s{sSLOW}, 1
        v_and_b32 v{M}, 31, v0
        v_lshrrev_b32 v{AVS}, 5, v0
        v_mul_u32_u24 v{AVS}, 320, v{AVS}
        v_lshl_add_u32 v{AVS}, v{M}, 4, v{AVS}
        v_add_u32 v{AVS}, 2560, v{AVS}
        v_mov_b32 v{M}, 0xff800000""")
        def scores():
            a(f"""buffer_load_dwordx2 {vr(KRM,2)}, v2, s[{rWS}:{rWS+3}], s{T6} offen offset:2048 sc1
            buffer_load_dwordx4 {vr(KM,4)}, v{L16}, s[{rWS}:{rWS+3}], s{T6} offen sc1
            buffer_load_dwordx4 {vr(KM+4,4)}, v{L16}, s[{rWS}:{rWS+3}], s{T6} offen offset:1024 sc1
            s_waitcnt vmcnt(0)""")
            self.m2b(S); a.nop(18); self.mqk(S, 0); self.mqk(S, 1); a.nop(12)
        a(f"s_mov_b32 s{T6}, s{sKVB}\ns_mov_b32 s{sCNT}, 0")
        a.label("L_SLOW1")
        scores()
        for e in range(16): a(f"v_max3_f32 v{M}, v{M}, v{S+2*e}, v{S+2*e+1}")
        a(f"s_add_u32 s{T6}, s{T6}, {KV_US}\ns_add_u32 s{sCNT}, s{sCNT}, 1\ns_cmp_lt_u32 s{sCNT}, 32\ns_cbranch_scc1 L_SLOW1")
        a(f"v_mov_b32 v{M+1}, v{M}\ns_nop 1\nv_permlane32_swap_b32 v{M}, v{M+1}\ns_nop 1\nv_max_f32 v{M}, v{M}, v{M+1}")
        for e in range(16): a(f"v_mov_b32 v{O_+e}, 0")
        a(f"s_mov_b32 s{T6}, s{sKVB}\ns_mov_b32 s{sCNT}, 0")
        a.label("L_SLOW2")
        a(f"s_mov_b64 exec, s[{sVMASK}:{sVMASK+1}]")
        for g in range(4): a(f"buffer_load_dwordx4 {vr(V+4*g,4)}, v{AVS}, s[{rWS}:{rWS+3}], s{T6} offen offset:{640*g} sc1")
        a("s_mov_b64 exec, -1")
        scores()
        for e in range(32): a(f"v_sub_f32 v{S+e}, v{S+e}, v{M}")
        for e in range(32): a(f"v_exp_f32 v{S+e}, v{S+e}")
        a.nop(2)
        for g in range(4): self.smf(V + 4*g, S + 8*g)
        a(f"s_add_u32 s{T6}, s{T6}, {KV_US}\ns_add_u32 s{sCNT}, s{sCNT}, 1\ns_cmp_lt_u32 s{sCNT}, 32\ns_cbranch_scc1 L_SLOW2")
        a.nop(12)
        a("s_branch L_NORM")

    def build(self):
        self.prologue(); self.dma_role(); self.attention(); self.finish(); self.p3_part(); self.setup_sub(); self.side_role(); self.gemm_compute(); self.slow(); self.a.label('L_CODE_END')
        bad = lint_cfg(self.a.lines)
        head = f"""; gated_mix( MHA block , H3 SSM conv ): one persistent workgroup of eight waves per CU.
; kernarg: 0 A_x, 8 A_wqkv, 16 A_wo, 24 B_q (not used by the reference), 32 B_k, 40 B_v, 48 B_shift_k, 56 B_ssm_k,
; Hand-offs between workgroups go through d_ws with write-through (sc1) stores, a drained flag word and sc1 loads. Every launch
; first clears its own flag words and counts that in d_debug; no flag is trusted before the count is complete. All waits are bounded.
; @launch grid=(256,1,1) block=(512,1,1) lds={LDS_BYTES}
.amdgcn_target "amdgcn-amd-amdhsa--gfx950"
.text
.globl {NAME}
.p2align 8
.type {NAME},@function
{NAME}:
"""
        tail = f""".section .rodata,"a"
.p2align 6
.amdhsa_kernel {NAME}
  .amdhsa_next_free_vgpr 256
  .amdhsa_next_free_sgpr 102
  .amdhsa_accum_offset 256
  .amdhsa_group_segment_fixed_size 0
  .amdhsa_kernarg_size 104
  .amdhsa_user_sgpr_count 2
  .amdhsa_user_sgpr_kernarg_segment_ptr 1
  .amdhsa_system_sgpr_workgroup_id_x 1
  .amdhsa_float_denorm_mode_32 3
.end_amdhsa_kernel
"""
        return head + self.a.text() + tail, bad

if __name__ == "__main__":
    out = sys.argv[1] if len(sys.argv) > 1 else "gated_mix__mha_block__ssm_conv_h3__prompt.s"
    opt = dict(x[2:].split("=") for x in sys.argv if x.startswith("-D"))
    G = Gen(stamps="--stamps" in sys.argv, opt=opt)
    src, bad = G.build()
    if G.stamps: src = src.replace("; @launch", "; STAMPS " + " ".join(G.names) + "\n; @launch", 1)
    for b in bad: print("LINT:", b)
    open(out, "w").write(src)
    print("wrote", out, len(src), "bytes;", len(bad), "lint findings")
```
